```python
import torch

def _softmax(x, axis=-1):
    return torch.softmax(x, dim=axis)
def _gelu(x):
    return torch.nn.functional.gelu(x, approximate="tanh")
def _silu(x):
    return torch.nn.functional.silu(x)
def _sigmoid(x):
    return torch.sigmoid(x)
def _layernorm(x, axis=-1, eps=1e-5):
    m = x.mean(dim=axis, keepdim=True)
    v = x.var(dim=axis, keepdim=True, unbiased=False)
    return (x - m) / torch.sqrt(v + eps)
def _scatter_add(tgt, idx, src, axis=0):
    return tgt.clone().index_add_(axis, idx, src)
def _segment_sum(src, seg, n):
    out = torch.zeros((n,) + src.shape[1:], dtype=src.dtype)
    return out.index_add_(0, seg, src)
def _pad(x, pw):
    flat = tuple(v for pair in reversed(pw) for v in pair)
    return torch.nn.functional.pad(x, flat)

kernel_name = 'concat_heads__compressed_kv_cla__spectral_gfnet__prompt'

def setup_inputs():

    _w = (lambda a: (lambda t: t.to(torch.bfloat16) if t.is_floating_point() else t)(torch.as_tensor(a)))
    def _A_setup():
        B, H, Sq, Sk, D, M = 1, 32, 2048, 2048, 128, 512
        Dc = 4 * D
        return {
            "x": _w((lambda *s: torch.randn(*s, dtype=torch.bfloat16) * 3.2)(B, Sq, M)),
            "c_kv": _w((lambda *s: torch.randn(*s, dtype=torch.bfloat16) * 0.05)(B, Sk, Dc)),
            "w_q": _w((lambda *s: torch.randn(*s, dtype=torch.bfloat16) * 3.2)(M, H, D) * (M ** -0.5)),
            "w_uk": _w((lambda *s: torch.randn(*s, dtype=torch.bfloat16) * 3.2)(Dc, H, D) * (Dc ** -0.5)),
            "w_uv": _w((lambda *s: torch.randn(*s, dtype=torch.bfloat16) * 0.05)(Dc, H, D) * (Dc ** -0.5)),
            "w_o": _w((lambda *s: torch.randn(*s, dtype=torch.bfloat16) * 0.05)(H, D, M) * ((H * D) ** -0.5)),
        }
    _A_in = _A_setup()

    def _B_setup():
        B, S, D = 1, 2048, 512
        Df = D // 2 + 1
        return {
            "x": _w((lambda *s: torch.randn(*s, dtype=torch.bfloat16) * 0.05)(B, S, D)),
            "w_r": _w((lambda *s: torch.randn(*s, dtype=torch.bfloat16) * 0.05)(S, Df) * 0.02),
            "w_i": _w((lambda *s: torch.randn(*s, dtype=torch.bfloat16) * 0.05)(S, Df) * 0.02),
        }
    _B_in = _B_setup()

    return {
        "A_x": _A_in["x"],
        "A_c_kv": _A_in["c_kv"],
        "A_w_q": _A_in["w_q"],
        "A_w_uk": _A_in["w_uk"],
        "A_w_uv": _A_in["w_uv"],
        "A_w_o": _A_in["w_o"],
        "B_x": _B_in["x"],
        "B_w_r": _B_in["w_r"],
        "B_w_i": _B_in["w_i"],
    }

def reference(A_x, A_c_kv, A_w_q, A_w_uk, A_w_uv, A_w_o, B_x, B_w_r, B_w_i):
    def _A_ref(x, c_kv, w_q, w_uk, w_uv, w_o):
        B, Sq, M = x.shape[0], x.shape[1], x.shape[2]
        Sk = c_kv.shape[1]
        H, D = w_q.shape[1], w_q.shape[2]
        q = torch.einsum("bqm,mhd->bhqd", x, w_q)
        k = torch.einsum("bkc,chd->bhkd", c_kv, w_uk)
        v = torch.einsum("bkc,chd->bhkd", c_kv, w_uv)
        scores = torch.einsum("bhqd,bhkd->bhqk", q, k) * (D ** -0.5)
        off = Sk - Sq
        qi = torch.arange(Sq)[:, None]
        kj = torch.arange(Sk)[None, :]
        cmask = kj <= (qi + off)
        scores = torch.where(cmask[None, None], scores, -1e9)
        p = _softmax(scores, axis=-1)
        ctx = torch.einsum("bhqk,bhkd->bhqd", p, v)
        return torch.einsum("bhqd,hdm->bqm", ctx, w_o)

    def _B_ref(x, w_r, w_i):
        B, S, D = x.shape
        X = (lambda x, axes=(-2,-1): torch.fft.rfft2(x.float(), dim=axes))(x, axes=(-2, -1))
        W = w_r + 1j * w_i
        X = X * W
        y = (lambda x, s, axes=(-2,-1): torch.fft.irfft2(x, s=s, dim=axes).to(torch.bfloat16))(X, (S, D), axes=(-2, -1))
        return y

    a = _A_ref(A_x, A_c_kv, A_w_q, A_w_uk, A_w_uv, A_w_o)
    b = _B_ref(B_x, B_w_r, B_w_i)
    return torch.concatenate([a, b], axis=-1)
```

```python
import re

TRANS = ("v_exp_f32", "v_log_f32", "v_rcp_f32", "v_rsq_f32", "v_sqrt_f32", "v_sin_f32", "v_cos_f32",
         "v_rcp_iflag_f32")


def v(i, n=1):
    return f"v{i}" if n == 1 else f"v[{i}:{i + n - 1}]"


def s(i, n=1):
    return f"s{i}" if n == 1 else f"s[{i}:{i + n - 1}]"


_REG = re.compile(r"^-?(?:abs\()?\|?([vsa])(?:(\d+)|\[(\d+):(\d+)\])\)?\|?$")


def regs_of(op):
    op = op.strip()
    if op in ("vcc",):
        return {("vcc", 0)}
    if op in ("vcc_lo", "vcc_hi"):
        return {("vcc", 0)}
    if op in ("exec", "exec_lo", "exec_hi"):
        return {("exec", 0)}
    if op == "m0":
        return {("m0", 0)}
    m = _REG.match(op)
    if not m:
        return set()
    k = m.group(1)
    if m.group(2) is not None:
        return {(k, int(m.group(2)))}
    return {(k, i) for i in range(int(m.group(3)), int(m.group(4)) + 1)}


class Ins:
    __slots__ = ("text", "mn", "ops", "mods", "cls", "w", "r", "rA", "rC", "ws", "storewide", "line", "lds_dma")

    def __init__(self, text):
        self.text = text
        t = text.split(";")[0].strip()
        parts = t.split(None, 1)
        self.mn = parts[0]
        rest = parts[1] if len(parts) > 1 else ""
        ops, depth, cur = [], 0, ""
        for ch in rest:
            if ch in "[(":
                depth += 1
            if ch in "])":
                depth -= 1
            if ch == "," and depth == 0:
                ops.append(cur.strip())
                cur = ""
            else:
                cur += ch
        if cur.strip():
            ops.append(cur.strip())
        mods = []
        if ops:
            last = ops[-1].split()
            ops[-1] = last[0]
            mods = last[1:]
        self.ops, self.mods = ops, mods
        self.w, self.r, self.rA, self.rC = set(), set(), set(), set()
        self.ws = 1
        self.storewide = False
        self.lds_dma = False
        mn = self.mn
        R = regs_of
        if mn.startswith("v_mfma"):
            self.cls = "mfma"
            self.w = R(ops[0])
            self.rA = R(ops[1]) | R(ops[2])
            self.rC = R(ops[3])
            self.r = self.rA | self.rC
        elif mn.startswith("v_"):
            self.cls = "valu"
            base = mn.replace("_e32", "").replace("_e64", "")
            if base.startswith("v_cmp"):
                self.w = R(ops[0])
                for o in ops[1:]:
                    self.r |= R(o)
                if base.startswith("v_cmpx"):
                    self.w |= {("exec", 0)}
            elif base.startswith("v_permlane") and "swap" in base:
                self.w = R(ops[0]) | R(ops[1])
                self.r = set(self.w)
            elif base in ("v_add_co_u32", "v_sub_co_u32", "v_subrev_co_u32", "v_addc_co_u32", "v_subb_co_u32"):
                self.w = R(ops[0]) | R(ops[1])
                for o in ops[2:]:
                    self.r |= R(o)
            elif base == "v_nop":
                pass
            else:
                self.w = R(ops[0])
                for o in ops[1:]:
                    self.r |= R(o)
                if base.startswith("v_fmac") or base.startswith("v_pk_fmac") or base.startswith("v_writelane"):
                    self.r |= self.w
        elif mn.startswith("ds_"):
            self.cls = "ds"
            if mn.startswith("ds_read") or mn.startswith("ds_bpermute") or mn.startswith("ds_permute") or \
                    mn.startswith("ds_swizzle") or "_rtn" in mn:
                self.w = R(ops[0])
                for o in ops[1:]:
                    self.r |= R(o)
                if "d16" in mn:
                    self.r |= self.w
            else:
                for o in ops:
                    self.r |= R(o)
        elif mn.startswith("buffer_") or mn.startswith("global_"):
            self.cls = "vmem"
            if mn in ("buffer_wbl2", "buffer_inv"):
                pass
            elif "lds" in mods or "_lds_" in mn:
                self.lds_dma = True
                for o in ops:
                    self.r |= R(o)
                self.r |= {("m0", 0)}
            elif "_load" in mn:
                self.w = R(ops[0])
                for o in ops[1:]:
                    self.r |= R(o)
                if "d16" in mn:
                    self.r |= self.w
            else:
                for o in ops:
                    self.r |= R(o)
                if "atomic" in mn and "sc0" in mods:
                    self.w = R(ops[0])
                if "x4" in mn or "x3" in mn:
                    self.storewide = True
        elif mn.startswith("s_"):
            self.cls = "salu"
            if mn == "s_nop":
                self.ws = int(ops[0], 0) + 1
            elif mn.startswith("s_cbranch") or mn in ("s_branch", "s_barrier", "s_waitcnt", "s_endpgm", "s_setprio",
                                                     "s_sleep"):
                pass
            elif mn.startswith("s_cmp") or mn.startswith("s_bitcmp"):
                for o in ops:
                    self.r |= R(o)
            else:
                if ops:
                    self.w = R(ops[0])
                for o in ops[1:]:
                    self.r |= R(o)
                if "saveexec" in mn:
                    self.w |= {("exec", 0)}
        else:
            raise ValueError("unknown instr " + text)

    def base(self):
        return self.mn.replace("_e32", "").replace("_e64", "")


def mfma_passes(i):
    if "32x32x16" in i.mn:
        return 8
    if "16x16x32" in i.mn:
        return 4
    raise ValueError(i.mn)


def required(p, c):
    need = 0
    vw = {x for x in p.w if x[0] in "va"}
    sw = {x for x in p.w if x[0] in ("s", "vcc")}
    if p.cls == "valu":
        if c.cls == "mfma" and (vw & c.r):
            need = max(need, 2)
        if c.cls == "valu":
            cb = c.base()
            if p.base() in TRANS and cb not in TRANS and (vw & c.r):
                need = max(need, 1)
            if p.base() in TRANS and cb in TRANS and (vw & c.r):
                need = max(need, 1)
            if cb.startswith("v_permlane") and (vw & c.r):
                need = max(need, 2)
            if cb in ("v_readlane_b32", "v_readfirstlane_b32") and (vw & c.r):
                need = max(need, 1)
            if sw & c.r:
                need = max(need, 2)
                if cb in ("v_readlane_b32", "v_writelane_b32"):
                    need = max(need, 4)
            if ("exec", 0) in p.w and cb in ("v_readlane_b32", "v_readfirstlane_b32", "v_writelane_b32"):
                need = max(need, 4)
            if any("dpp" in m or "row_" in m or "quad_perm" in m for m in c.mods) and (vw & c.r):
                need = max(need, 2)
        if c.cls == "mfma" and ("exec", 0) in p.w:
            need = max(need, 4)
        if c.cls == "vmem" and (sw & c.r):
            need = max(need, 5)
        if c.cls == "salu" and ((sw - {("vcc", 0)}) & c.r):
            need = max(need, 1)
    if p.cls == "salu":
        if ("m0", 0) in p.w and (c.lds_dma or "addtid" in c.mn):
            need = max(need, 1)
    if p.cls == "vmem" and p.storewide:
        data = regs_of(p.ops[0]) if p.mn.startswith("buffer_") else regs_of(p.ops[1])
        if data & c.w:
            need = max(need, 2 if c.cls in ("valu", "mfma") else 1)
    if p.cls == "mfma":
        n = mfma_passes(p)
        if c.cls == "mfma":
            if p.w & c.rC:
                if not (p.w == c.rC and mfma_passes(c) == n):
                    need = max(need, n + 2)
            if p.w & c.rA:
                need = max(need, n + 4)
            if (p.w & c.w) and not (p.w == c.rC):
                need = max(need, n + 2)
        else:
            if p.w & (c.r | c.w):
                need = max(need, n + 4)
            if c.cls == "valu" and (p.rC & c.w):
                need = max(need, n - 1)
            if c.cls in ("ds", "vmem") and (p.rC & c.w):
                need = max(need, n - 1)
    return need


class Asm:
    def __init__(self):
        self.items = []
        self._uid = 0

    def I(self, text):
        ins = Ins(text)
        self.items.append(("i", ins))
        return ins

    def many(self, lst):
        for t in lst:
            self.I(t)

    def label(self, name):
        self.items.append(("l", name))

    def raw(self, text):
        self.items.append(("t", text))

    def comment(self, text):
        self.items.append(("t", "    ; " + text))

    def uid(self, p="L"):
        self._uid += 1
        return f"{p}_{self._uid}"

    def text(self):
        out = []
        for k, x in self.items:
            if k == "i":
                out.append("    " + x.text)
            elif k == "l":
                out.append(x + ":")
            else:
                out.append(x)
        return "\n".join(out) + "\n"

    def check(self, maxback=22, verbose=True):
        ins = []
        labels = {}
        for k, x in self.items:
            if k == "i":
                ins.append(x)
            elif k == "l":
                labels[x] = len(ins)
        preds = [[] for _ in range(len(ins) + 1)]
        for i, x in enumerate(ins):
            if x.mn not in ("s_branch", "s_endpgm"):
                preds[i + 1].append(i)
            if x.mn == "s_branch" or x.mn.startswith("s_cbranch"):
                preds[labels[x.ops[0]]].append(i)
        problems = []
        for ci, c in enumerate(ins):
            if c.cls == "salu" and not c.r and not c.w:
                continue
            stack = [(p, 0) for p in preds[ci]]
            seen = {}
            while stack:
                pi, dist = stack.pop()
                if pi in seen and seen[pi] <= dist:
                    continue
                seen[pi] = dist
                p = ins[pi]
                need = required(p, c)
                if need > dist:
                    problems.append((pi, ci, need, dist))
                nd = dist + p.ws
                if nd < maxback:
                    for q in preds[pi]:
                        stack.append((q, nd))
        if verbose:
            for pi, ci, need, dist in problems[:40]:
                print(f"HAZARD need {need} have {dist}:\n   [{pi}] {ins[pi].text}\n   [{ci}] {ins[ci].text}")
        return problems

    def maxregs(self):
        mv = ms = -1
        for k, x in self.items:
            if k == "i":
                for kind, idx in x.r | x.w:
                    if kind == "v":
                        mv = max(mv, idx)
                    if kind == "s":
                        ms = max(ms, idx)
        return mv + 1, ms + 1


class VM:
    def __init__(self, asm):
        self.a = asm
        self.q = []

    def issue(self, text, tag):
        self.a.I(text)
        self.q.append(tag)
        assert len(self.q) <= 63, "vmcnt overflow"

    def wait(self, tags, emit=True):
        if isinstance(tags, (str, int, tuple)):
            tags = [tags]
        last = -1
        for i, t in enumerate(self.q):
            if t in tags:
                last = i
        if last < 0:
            return None
        n = len(self.q) - 1 - last
        self.q = self.q[last + 1:]
        if emit:
            self.a.I(f"s_waitcnt vmcnt({n})")
        return n


class LG(VM):
    def issue(self, text, tag):
        if len(self.q) >= 15:
            self.a.I("s_waitcnt lgkmcnt(13)")
            self.q = self.q[-13:]
        self.a.I(text)
        self.q.append(tag)

    def wait(self, tags, emit=True):
        n = VM.wait(self, tags, emit=False)
        if n is not None and emit:
            self.a.I(f"s_waitcnt lgkmcnt({n})")
        return n


def interleave(a, mfmas, fillers_per_gap):
    for m, f in zip(mfmas, fillers_per_gap):
        a.I(m)
        for x in f:
            a.I(x)
```

```python
import sys, os, math, struct
sys.path.insert(0, os.path.dirname(os.path.abspath(__file__)))
from asmlib import Asm, VM, LG, v, s

NAME = "concat_heads__compressed_kv_cla__spectral_gfnet__prompt"
MB = 1 << 20
WS_K, WS_V, WS_CTX, WS_Y, WS_WF, WS_Z, WS_Q = 0, 16 * MB, 32 * MB, 48 * MB, 52 * MB, 56 * MB, 64 * MB
KA = dict(x=0, ckv=8, wq=16, wuk=24, wuv=32, wo=40, bx=48, wr=56, wi=64, out=72, dbg=80, ws=88)
MF = "v_mfma_f32_32x32x16_bf16"


def f32(x):
    return "0x%08x" % struct.unpack("<I", struct.pack("<f", x))[0]


def srd(a, d, lo, hi, size, add=0):
    if add:
        a.I(f"s_add_u32 {s(d)}, {s(lo)}, {add if isinstance(add, str) else hex(add)}")
        a.I(f"s_addc_u32 {s(d + 1)}, {s(hi)}, 0")
    else:
        a.I(f"s_mov_b32 {s(d)}, {s(lo)}")
        a.I(f"s_mov_b32 {s(d + 1)}, {s(hi)}")
    a.I(f"s_mov_b32 {s(d + 2)}, {size if isinstance(size, str) else hex(size)}")
    a.I(f"s_mov_b32 {s(d + 3)}, 0x20000")


STAMPS = int(os.environ.get("STAMPS", "0"))
ST0 = 64


class Stamper:
    def __init__(self, a):
        self.a, self.n = a, 0

    def __call__(self):
        if STAMPS and self.n < 15:
            if self.n == 0:
                self.a.I("s_memrealtime s[60:61]")
            self.a.I(f"s_memtime {s(ST0 + 2 * self.n, 2)}")
            self.n += 1

    def dump(self, wave_s, wslo, tmpv=8):
        if not STAMPS:
            return
        a = self.a
        a.I("s_waitcnt vmcnt(0) lgkmcnt(0)")
        a.I(f"s_memtime {s(ST0 + 2 * self.n, 2)}")
        a.I("s_memrealtime s[62:63]")
        self.n += 1
        srd(a, 96, wslo, wslo + 1, 1 * MB, add=128 * MB)
        a.I("s_lshl_b32 s100, s2, 3")
        a.I(f"s_add_u32 s100, s100, {s(wave_s)}")
        a.I("s_lshl_b32 s100, s100, 8")
        a.I("s_waitcnt lgkmcnt(0)")
        a.I(f"v_mov_b32 {v(tmpv + 1)}, 0")
        for i in range(self.n):
            a.I(f"v_mov_b32 {v(tmpv)}, {s(ST0 + 2 * i)}")
            a.I(f"buffer_store_dword {v(tmpv)}, {v(tmpv + 1)}, s[96:99], s100 offen offset:{4 * i}")
        for i, r in ((62, 60), (63, 62), (61, ST0 + 2 * (self.n - 1))):
            a.I(f"v_mov_b32 {v(tmpv)}, {s(r)}")
            a.I(f"buffer_store_dword {v(tmpv)}, {v(tmpv + 1)}, s[96:99], s100 offen offset:{4 * i}")
        a.I("s_waitcnt vmcnt(0)")


def kstart(a, name, nwg):
    a.raw(".text")
    a.raw(f".globl {name}")
    a.raw(".p2align 8")
    a.raw(f".type {name},@function")
    a.label(name)
    a.I(f"s_cmp_ge_u32 s2, {nwg}")
    a.I(f"s_cbranch_scc1 {name}_end")


def kend(a, name):
    a.label(name + "_end")
    a.I("s_endpgm")


def kdesc(name, nv, ns):
    nv = (nv + 7) // 8 * 8
    return f""".section .rodata,"a"
.p2align 6
.amdhsa_kernel {name}
  .amdhsa_next_free_vgpr {nv}
  .amdhsa_next_free_sgpr {max(ns, 16)}
  .amdhsa_accum_offset {nv}
  .amdhsa_group_segment_fixed_size 0
  .amdhsa_kernarg_size 96
  .amdhsa_user_sgpr_count 2
  .amdhsa_user_sgpr_kernarg_segment_ptr 1
  .amdhsa_system_sgpr_workgroup_id_x 1
  .amdhsa_float_denorm_mode_32 3
.end_amdhsa_kernel
"""


QSCALE = math.log2(math.e) / math.sqrt(128.0)


def gen_qkv():
    a = Asm()
    N = "qkvproj_kernel"
    kstart(a, N, 256)
    a.I("s_load_dwordx4 s[4:7], s[0:1], 0")
    a.I("s_load_dwordx4 s[8:11], s[0:1], 16")
    a.I("s_load_dwordx2 s[12:13], s[0:1], 32")
    a.I("s_load_dwordx2 s[14:15], s[0:1], 88")
    a.I("v_lshrrev_b32 v1, 6, v0")
    a.I("v_and_b32 v0, 63, v0")
    a.I("s_and_b32 s17, s2, 7")
    a.I("v_readfirstlane_b32 s16, v1")
    a.I("s_lshr_b32 s18, s2, 3")
    a.I("s_and_b32 s19, s18, 7")
    a.I("s_lshr_b32 s18, s18, 3")
    a.I("s_lshl_b32 s40, s17, 2")
    a.I("s_add_u32 s18, s18, s40")
    a.I("s_mov_b32 s41, 0")
    a.I("s_mul_i32 s42, s18, 6")
    a.I("s_cmp_ge_u32 s18, 11")
    a.I("s_cselect_b32 s41, 1, s41")
    a.I("s_cselect_b32 s40, 64, 0")
    a.I("s_cmp_ge_u32 s18, 21")
    a.I("s_cselect_b32 s41, 2, s41")
    a.I("s_cselect_b32 s40, 126, s40")
    a.I("s_sub_u32 s42, s42, s40")
    a.I("s_lshl_b32 s44, s19, 3")
    a.I("s_add_u32 s44, s44, s16")
    hl, b4, t1, t2 = 9, 10, 11, 12
    a.I(f"v_lshrrev_b32 {v(hl)}, 5, v0")
    a.I(f"v_bfe_u32 {v(b4)}, v0, 4, 1")
    a.I(f"v_lshrrev_b32 {v(t1)}, 3, v0")
    a.I(f"v_lshlrev_b32 {v(t1)}, 10, {v(t1)}")
    a.I("s_lshl_b32 s45, s44, 15")
    a.I(f"v_add_u32 {v(t1)}, s45, {v(t1)}")
    a.I(f"v_lshrrev_b32 {v(t2)}, 4, v0")
    a.I("v_and_b32 v13, 7, v0")
    a.I(f"v_xor_b32 {v(t2)}, {v(t2)}, v13")
    a.I(f"v_lshl_add_u32 v52, {v(t2)}, 4, {v(t1)}")
    a.I("v_xor_b32 v53, 64, v52")
    a.I(f"v_add_u32 v53, {8192 - 1024}, v53")
    a.I(f"v_add_u32 v54, {2 * (8192 - 1024)}, v52")
    a.I(f"v_add_u32 v55, {2 * (8192 - 1024)}, v53")
    a.I("v_and_b32 v13, 31, v0")
    a.I(f"v_bfe_u32 {v(t2)}, v0, 1, 3")
    a.I(f"v_xor_b32 {v(t2)}, {v(t2)}, {v(hl)}")
    a.I(f"v_lshlrev_b32 {v(t2)}, 4, {v(t2)}")
    a.I(f"v_lshl_add_u32 {v(t2)}, v13, 7, {v(t2)}")
    a.I("s_mul_i32 s46, s16, 12288")
    for t in range(4):
        a.I(f"v_xor_b32 {v(56 + t)}, {32 * t}, {v(t2)}")
    for t in range(4):
        a.I(f"v_add_u32 {v(56 + t)}, s46, {v(56 + t)}")
    a.I("v_lshrrev_b32 v2, 3, v0")
    a.I("v_lshlrev_b32 v2, 13, v2")
    a.I(f"v_lshlrev_b32 {v(t1)}, 2, {v(b4)}")
    a.I(f"v_and_b32 {v(t2)}, 7, v0")
    a.I(f"v_xor_b32 {v(t1)}, {v(t1)}, {v(t2)}")
    a.I(f"v_lshl_add_u32 v2, {v(t1)}, 4, v2")
    a.I("s_lshl_b32 s45, s16, 17")
    a.I("v_add_u32 v2, s45, v2")
    a.I(f"v_add_u32 v3, {65536 - 1024}, v2")
    a.I(f"v_bfe_u32 {v(t1)}, v0, 2, 2")
    a.I(f"v_lshl_add_u32 {v(t2)}, {v(hl)}, 3, {v(t1)}")
    a.I(f"v_lshlrev_b32 v4, 7, {v(t2)}")
    a.I(f"v_lshl_add_u32 v4, {v(b4)}, 5, v4")
    a.I(f"v_and_b32 {v(t2)}, 3, v0")
    a.I(f"v_lshl_add_u32 v4, {v(t2)}, 3, v4")
    a.I(f"v_bfe_u32 {v(t2)}, v0, 3, 1")
    a.I(f"v_lshl_add_u32 v4, {v(t2)}, 6, v4")
    a.I("v_xor_b32 v5, 64, v4")
    a.I("v_add_u32 v6, 0x10000, v4")
    a.I("v_add_u32 v7, 0x10000, v5")
    a.I("v_add_u32 v50, 0x20000, v4")
    a.I("v_add_u32 v51, 0x20000, v5")
    a.I("v_lshlrev_b32 v48, 4, v0")
    a.I("s_lshl_b32 s47, s16, 11")
    a.I("s_lshl_b32 s48, s42, 7")
    a.I("s_lshl_b32 s49, s44, 13")
    a.I("s_lshl_b32 s50, s42, 18")
    a.I("s_add_u32 s50, s50, s49")
    a.I("s_waitcnt lgkmcnt(0)")
    a.I("s_cmp_eq_u32 s41, 2")
    a.I("s_cselect_b32 s20, s4, s6")
    a.I("s_cselect_b32 s21, s5, s7")
    a.I("s_cselect_b32 s24, s8, s10")
    a.I("s_cselect_b32 s25, s9, s11")
    a.I(f"s_cselect_b32 s51, {hex(WS_Q)}, 0")
    a.I(f"s_cselect_b32 s52, {f32(QSCALE)}, 1.0")
    a.I(f"s_mov_b32 s22, {hex(2 * MB)}")
    a.I("s_mov_b32 s23, 0x20000")
    a.I(f"s_mov_b32 s26, {hex(4 * MB)}")
    a.I("s_mov_b32 s27, 0x20000")
    srd(a, 28, 14, 15, 16 * MB, add="s51")
    srd(a, 32, 12, 13, 4 * MB)
    srd(a, 36, 14, 15, 16 * MB, add=WS_V)
    srd(a, 56, 6, 7, 2 * MB)
    a.I("s_cmp_eq_u32 s18, 31")
    a.I(f"s_cbranch_scc1 {N}_D")
    a.I("s_cmp_eq_u32 s41, 1")
    a.I(f"s_cbranch_scc1 {N}_B")
    a.I("s_cmp_eq_u32 s18, 10")
    a.I(f"s_cbranch_scc1 {N}_C")

    AF, ACC, RING, PK = 64, 192, 8, 32
    LOOK = 6

    def body(passes, tag):
        vm, lg = VM(a), LG(a)
        st = Stamper(a)
        st()
        NP = len(passes)
        NC = 4 * NP
        NM = 64 * NP
        restage = tag == "D"
        blk = {}
        free = [6, 7, 8, 9]
        nxt = [0]

        def dmaW():
            c = nxt[0]
            if c >= NC or not free:
                return False
            b = free.pop(0)
            blk[c] = b
            nxt[0] += 1
            pp, kc = divmod(c, 4)
            form, su, di = passes[pp]
            a.I(f"s_add_u32 m0, s47, {hex(b * 16384)}")
            if su is not None:
                a.I(f"s_mov_b32 s45, {hex((kc << 20) + su * 128)}")
            else:
                a.I(f"s_add_u32 s45, s48, {hex((kc << 20) + di * 128)}")
            sr = "s[32:35]" if form == "V" else "s[24:27]"
            vm.issue(f"buffer_load_dwordx4 v2, {sr}, s45 offen lds", ("W", c))
            vm.issue(f"buffer_load_dwordx4 v3, {sr}, s45 offen offset:1024 lds", ("W", c))
            return True

        def dmaA(j):
            sr = "s[56:59]" if (restage and j < 8) else "s[20:23]"
            a.I(f"s_add_u32 m0, s46, {hex((j % 3) * 4096)}")
            a.I(f"s_mov_b32 s45, {(j % 8) * 128}")
            for i in range(4):
                vm.issue(f"buffer_load_dwordx4 {v(52 + i)}, {sr}, s45 offen offset:{i * 1024} lds", ("A", j))

        def readA(j):
            vm.wait(("A", j))
            for t in range(4):
                lg.issue(f"ds_read_b128 {v(AF + 16 * (j % 8) + 4 * t, 4)}, {v(56 + t)} offset:{(j % 3) * 4096}", ("A", j))

        dmaW(); dmaA(0); dmaA(1); dmaW(); dmaA(2); dmaW(); dmaW()

        def reads(i):
            c, r = divmod(i, 16)
            t, cb = divmod(r, 2)
            b = blk[c]
            base = [4, 6, 50][b // 4] + cb
            off = (b % 4) * 16384 + t * 2048
            d = RING + 4 * (i % LOOK)
            lg.issue(f"ds_read_b64_tr_b16 {v(d, 2)}, {v(base)} offset:{off}", ("W", i))
            lg.issue(f"ds_read_b64_tr_b16 {v(d + 2, 2)}, {v(base)} offset:{off + 512}", ("W", i))

        def sync(c):
            vm.wait(("W", c))
            a.I("s_barrier")
            if c >= 2:
                free.append(blk[c - 2])
            if c == (10 if restage else 5):
                free.extend([0, 1, 2, 3, 4, 5])
            n = 0
            while n < 2 and dmaW():
                n += 1

        def epi(pp):
            out = []
            form, su, di = passes[pp]
            acc = ACC + 32 * (pp & 1)
            so = 54 + (pp & 1)
            if su is not None:
                out.append(lambda: a.I(f"s_add_u32 s{so}, s49, {hex((su >> 1) * 512 * 1024 + (su & 1) * 4096)}"))
            else:
                out.append(lambda: a.I(f"s_add_u32 s{so}, s50, {hex((di >> 1) * 512 * 1024 + (di & 1) * 4096)}"))
            sr = "s[36:39]" if form == "V" else "s[28:31]"
            for cb in range(2):
                for h in range(2):
                    q = 2 * cb + h
                    for i in range(4):
                        src = acc + 16 * cb + 8 * h + 2 * i
                        if form == "K" and tag in "AD":
                            out.append(lambda src=src: a.I(f"v_mul_f32 {v(src)}, s52, {v(src)}"))
                            out.append(lambda src=src: a.I(f"v_mul_f32 {v(src + 1)}, s52, {v(src + 1)}"))
                        out.append(lambda src=src, q=q, i=i: a.I(
                            f"v_cvt_pk_bf16_f32 {v(PK + 4 * q + i)}, {v(src)}, {v(src + 1)}"))
                    out.append(lambda q=q: vm.issue(
                        f"buffer_store_dwordx4 {v(PK + 4 * q, 4)}, v48, {sr}, s{so} offen offset:{q * 1024}", ("S", pp)))
            return out

        st()
        readA(0)
        sync(0)
        st()
        for i in range(LOOK - 2):
            reads(i)
        lg.wait(("A", 0))
        for i in range(LOOK - 2, LOOK):
            reads(i)
        pend = []
        for i in range(NM):
            c, r = divmod(i, 16)
            t, cb = divmod(r, 2)
            pp, kc = divmod(c, 4)
            k = 8 * kc + t
            if i % 2 == 0:
                lg.wait([("W", i), ("W", i + 1), ("A", i // 8)])
            if pp == 0 and i % 8 == 0 and i // 8 + 3 < (11 if restage else 8):
                dmaA(i // 8 + 3)
            if restage and 72 < i <= 128 + 8 and i % 8 == 4:
                jj = 8 + (i - 76) // 8
                lg.wait(("A", jj))
                if jj + 3 < 16:
                    dmaA(jj + 3)
            acc = v(ACC + 32 * (pp & 1) + 16 * cb, 16)
            wf = v(RING + 4 * (i % LOOK), 4)
            af = v(AF + 4 * k, 4)
            cin = "0" if k == 0 else acc
            if passes[pp][0] == "V":
                a.I(f"{MF} {acc}, {af}, {wf}, {cin}")
            else:
                a.I(f"{MF} {acc}, {wf}, {af}, {cin}")
            j = i + LOOK
            if j < NM:
                if j % 16 == 0:
                    sync(j // 16)
                if j < 64 and j % 8 == 0:
                    readA(j // 8)
                reads(j)
            if restage and 64 <= i < 128 and i % 8 == 7:
                readA(8 + (i - 64) // 8)
            if i % 64 == 63:
                st()
            if i % 64 == 6 and pp >= 1:
                pend = epi(pp - 1)
            if pend:
                pend.pop(0)()
        a.I("s_nop 11")
        for f in epi(NP - 1):
            f()
        st.dump(16, 14)
        a.I("s_endpgm")

    body([("K", None, i) for i in range(6)], "A")
    a.label(N + "_B")
    body([("V", None, i) for i in range(6)], "B")
    a.label(N + "_C")
    body([("K", None, i) for i in range(4)] + [("V", 0, 0), ("V", 1, 0)], "C")
    a.label(N + "_D")
    body([("V", 62, 0), ("V", 63, 0)] + [("K", None, i) for i in range(4)], "D")
    kend(a, N)
    return a, N, (256, 512, 163840)


def gen_attn():
    a = Asm()
    N = "attn_kernel"
    O, Q, S, P, NEGM, RING = 64, 128, [160, 176], [192, 200], 208, 224
    L16, VKA, VVA, VL, VLS, E, VDA, VDB, QREL, T0, T1, T2, NINF = 1, 2, 3, 4, 5, 6, 10, 11, 12, 13, 14, 15, 48
    PK = 16
    sW, sH, sP, sN, sC, sPH, sTHR, sBAR, sKO, sKM, sVM, sQS = 16, 17, 18, 19, 20, 21, 40, 41, 42, 43, 44, 45
    kstart(a, N, 256)
    a.I("s_load_dwordx2 s[4:5], s[0:1], 88")
    a.I("v_lshrrev_b32 v1, 6, v0")
    a.I("v_and_b32 v0, 63, v0")
    a.I("s_and_b32 s6, s2, 7")
    a.I(f"v_readfirstlane_b32 {s(sW)}, v1")
    a.I("s_lshr_b32 s7, s2, 3")
    a.I("s_and_b32 s8, s7, 3")
    a.I("s_lshl_b32 s6, s6, 2")
    a.I(f"s_add_u32 {s(sH)}, s6, s8")
    a.I(f"s_lshr_b32 {s(sP)}, s7, 2")
    a.I(f"s_lshl_b32 s6, {s(sP)}, 2")
    a.I(f"s_sub_u32 s7, 60, s6")
    a.I(f"s_add_u32 s7, s7, {s(sW)}")
    a.I(f"s_add_u32 s8, s6, 7")
    a.I(f"s_sub_u32 s8, s8, {s(sW)}")
    a.I(f"s_cmp_ge_u32 {s(sW)}, 4")
    a.I(f"s_cselect_b32 {s(sQS)}, s8, s7")
    a.I(f"s_add_u32 {s(sN)}, {s(sQS)}, 1")
    a.I("s_sub_u32 s9, 64, s6")
    a.I(f"s_lshr_b32 {s(sBAR)}, s9, 1")
    a.I("s_lshl_b32 s9, s9, 13")
    a.I(f"s_lshl_b32 s10, {s(sH)}, 19")
    a.I(f"v_lshlrev_b32 {v(L16)}, 4, v0")
    a.I(f"s_and_b32 s11, {s(sW)}, 3")
    a.I("s_lshl_b32 s11, s11, 11")
    a.I(f"v_add_u32 {v(VDA)}, s11, {v(L16)}")
    a.I(f"v_add_u32 {v(VDB)}, 0x2000, {v(VDA)}")
    a.I(f"v_and_b32 {v(T0)}, 31, v0")
    a.I(f"v_lshrrev_b32 {v(T1)}, 5, v0")
    a.I(f"v_lshlrev_b32 {v(T1)}, 2, {v(T1)}")
    a.I(f"v_sub_u32 {v(QREL)}, {v(T0)}, {v(T1)}")
    a.I(f"v_mov_b32 {v(NINF)}, 0xff800000")
    a.I(f"s_mov_b32 {s(sTHR)}, {f32(2.0 ** 14)}")
    a.I("s_waitcnt lgkmcnt(0)")
    srd(a, 24, 4, 5, "s9", add="s10")
    a.I(f"s_add_u32 s12, s10, {hex(WS_V - 3 * 8192)}")
    a.I(f"s_add_u32 s13, s9, {3 * 8192}")
    srd(a, 28, 4, 5, "s13", add="s12")
    srd(a, 32, 4, 5, 16 * MB, add=WS_Q)
    srd(a, 36, 4, 5, 16 * MB, add=WS_CTX)
    st = Stamper(a)
    st()
    a.I(f"s_lshl_b32 s12, {s(sQS)}, 13")
    a.I("s_add_u32 s12, s12, s10")
    a.I("s_add_u32 s13, s12, 4096")
    for t in range(8):
        a.I(f"buffer_load_dwordx4 {v(Q + 4 * t, 4)}, {v(L16)}, s[32:35], s{12 + t // 4} offen offset:{(t % 4) * 1024}")
    a.I(f"s_lshl_b32 s46, {s(sQS)}, 18")
    a.I(f"s_lshl_b32 s6, {s(sH)}, 13")
    a.I("s_add_u32 s46, s46, s6")
    a.I("s_add_u32 s47, s46, 4096")
    a.I(f"s_mov_b32 {s(sKM)}, s11")
    a.I(f"s_mov_b32 {s(sKO)}, 0")

    def dma_list(withV=True):
        l = []
        if withV:
            l += [f"s_mov_b32 m0, {s(sVM)}", None,
                  f"buffer_load_dwordx4 {v(VDA)}, s[28:31], {s(sKO)} offen lds",
                  f"buffer_load_dwordx4 {v(VDA)}, s[28:31], {s(sKO)} offen offset:1024 lds",
                  f"s_add_u32 m0, {s(sVM)}, 0x4000", None,
                  f"buffer_load_dwordx4 {v(VDB)}, s[28:31], {s(sKO)} offen lds",
                  f"buffer_load_dwordx4 {v(VDB)}, s[28:31], {s(sKO)} offen offset:1024 lds"]
        l += [f"s_mov_b32 m0, {s(sKM)}", f"s_add_u32 {s(sVM)}, {s(sKM)}, 0x2000",
              f"buffer_load_dwordx4 {v(VDA)}, s[24:27], {s(sKO)} offen lds",
              f"buffer_load_dwordx4 {v(VDA)}, s[24:27], {s(sKO)} offen offset:1024 lds",
              f"s_add_u32 m0, {s(sKM)}, 0x4000", f"s_add_u32 {s(sKM)}, {s(sKM)}, 0x8000",
              f"buffer_load_dwordx4 {v(VDB)}, s[24:27], {s(sKO)} offen lds",
              f"buffer_load_dwordx4 {v(VDB)}, s[24:27], {s(sKO)} offen offset:1024 lds",
              f"s_and_b32 {s(sKM)}, {s(sKM)}, 0x1ffff",
              f"s_add_u32 {s(sKO)}, {s(sKO)}, 0x4000"]
        return l

    def emit_dma(withV=True):
        for x in dma_list(withV):
            a.I(x or "s_nop 0")

    def mask_negm():
        for j in range(16):
            a.I(f"v_cmp_le_i32 vcc, {(j & 3) + 8 * (j >> 2)}, {v(QREL)}")
            a.I("s_nop 1")
            a.I(f"v_cndmask_b32 {v(NEGM + j)}, {v(NINF)}, {v(NEGM + j)}, vcc")
        a.I("s_nop 1")

    def rowmax(Sx, dst):
        a.I(f"v_max3_f32 {v(dst)}, {v(Sx)}, {v(Sx + 1)}, {v(Sx + 2)}")
        for j in range(3, 15, 2):
            a.I(f"v_max3_f32 {v(dst)}, {v(dst)}, {v(Sx + j)}, {v(Sx + j + 1)}")
        a.I(f"v_max_f32 {v(dst)}, {v(dst)}, {v(Sx + 15)}")
        a.I(f"v_mov_b32 {v(T2)}, {v(dst)}")
        a.I("s_nop 1")
        a.I(f"v_permlane32_swap_b32 {v(dst)}, {v(T2)}")
        a.I(f"v_max_f32 {v(dst)}, {v(dst)}, {v(T2)}")

    def role(ld):
        R = "S" if ld else "L"
        if ld:
            emit_dma(withV=False)
            emit_dma()
        for j in range(16):
            a.I(f"v_mov_b32 {v(NEGM + j)}, 0")
        a.I(f"s_cmp_lg_u32 {s(sN)}, 1")
        a.I(f"s_cbranch_scc1 {N}_{R}_nm1")
        mask_negm()
        a.label(f"{N}_{R}_nm1")
        for j in range(64):
            a.I(f"v_mov_b32 {v(O + j)}, 0")
        for j in range(8):
            a.I(f"v_mov_b32 {v(P[1] + j)}, 0")
        a.I(f"v_mov_b32 {v(VL)}, 0")
        a.I(f"v_mov_b32 {v(VLS)}, 0")
        a.I(f"v_mov_b32 {v(VKA)}, {v(L16)}")
        a.I(f"v_mov_b32 {v(VVA)}, {v(L16)}")
        a.I(f"s_waitcnt vmcnt({6 if ld else 0})")
        a.I("s_barrier")
        st()
        for t in range(8):
            a.I(f"ds_read_b128 {v(RING + 4 * t, 4)}, {v(L16)} offset:{t * 1024}")
        dl = [x or "s_nop 0" for x in dma_list()] if ld else []
        for t in range(8):
            if t % 4 == 0:
                a.I("s_waitcnt lgkmcnt(4)")
            a.I(f"{MF} {v(S[0], 16)}, {v(RING + 4 * t, 4)}, {v(Q + 4 * t, 4)}, {v(NEGM if t == 0 else S[0], 16)}")
            a.I(f"ds_read_b128 {v(RING + 4 * t, 4)}, {v(L16)} offset:{16384 + t * 1024}")
            for x in dl[:3]:
                a.I(x)
            dl = dl[3:]
        assert not dl
        if ld:
            emit_dma()
        else:
            a.I("s_nop 11")
        rowmax(S[0], T0)
        for j in range(16):
            a.I(f"v_sub_f32 {v(S[0] + j)}, {v(S[0] + j)}, {v(T0)}")
        for j in range(16):
            a.I(f"v_sub_f32 {v(NEGM + j)}, 0, {v(T0)}")
        a.I(f"s_mov_b32 {s(sPH)}, 0")
        a.I(f"s_sub_u32 {s(sC)}, {s(sN)}, 3")
        a.I(f"s_cbranch_scc0 {N}_{R}_it0")
        a.I(f"s_mov_b32 {s(sPH)}, 1")
        a.I(f"s_sub_u32 {s(sC)}, {s(sN)}, 1")
        a.I(f"s_cmp_lg_u32 {s(sN)}, 2")
        a.I(f"s_cbranch_scc1 {N}_{R}_it0")
        mask_negm()

        def iteration(par):
            gaps = [[] for _ in range(16)]
            pre = [[] for _ in range(16)]
            mf = []
            Sc, Sn, Pc, Pp = S[par], S[1 - par], P[par], P[1 - par]
            e = lambda j: v(E + (j & 3))
            for pos in range(16):
                r = v(RING + 4 * (pos & 7), 4)
                if pos < 8:
                    mf.append(f"{MF} {v(Sn, 16)}, {r}, {v(Q + 4 * pos, 4)}, {v(NEGM if pos == 0 else Sn, 16)}")
                    ks, dt = divmod(pos, 4)
                    gaps[pos].append(f"ds_read_b128 {r}, {v(VVA)} offset:{8192 + par * 16384 + (2 * dt + ks) * 1024}")
                else:
                    ks, dt = divmod(pos - 8, 4)
                    mf.append(f"{MF} {v(O + 16 * dt, 16)}, {r}, {v(Pp + 4 * ks, 4)}, {v(O + 16 * dt, 16)}")
                    gaps[pos].append(f"ds_read_b128 {r}, {v(VKA)} offset:{par * 16384 + (pos - 8) * 1024}")
                if pos % 4 == 0:
                    pre[pos].append("s_waitcnt lgkmcnt(4)")
            gaps[0] += [f"v_add_f32 {v(VL)}, {v(VL)}, {v(VLS)}", f"v_exp_f32 {e(0)}, {v(Sc)}", f"v_exp_f32 {e(1)}, {v(Sc + 1)}"]
            for g in range(1, 16):
                if g < 15:
                    gaps[g].append(f"v_exp_f32 {e(g + 1)}, {v(Sc + g + 1)}")
                if g == 1:
                    gaps[g].append(f"v_add_f32 {v(VLS)}, {e(0)}, {e(1)}")
                else:
                    gaps[g].append(f"v_add_f32 {v(VLS)}, {v(VLS)}, {e(g)}")
                if g % 2 == 1:
                    gaps[g].append(f"v_cvt_pk_bf16_f32 {v(Pc + g // 2)}, {e(g - 1)}, {e(g)}")
            if par == 0:
                gaps[2].append(f"v_add_u32 {v(VKA)}, 0x8000, {v(VKA)}")
                gaps[6].append(f"v_and_b32 {v(VKA)}, 0x1ffff, {v(VKA)}")
                bar = ["s_barrier", f"s_sub_u32 {s(sBAR)}, {s(sBAR)}, 1"]
                if ld:
                    bar = ["s_waitcnt vmcnt(14)"] + bar
                gaps[4] = bar + gaps[4]
                if ld:
                    d = [x for x in dma_list() if x]
                    m0a, l1, l2, m0b, l3, l4, m0c, svm, l5, l6, m0d, skm, l7, l8, sand, sko = d
                    gaps[5] = [m0a] + gaps[5] + [l1]
                    gaps[6] += [l2, m0b]
                    gaps[7] += [l3]
                    gaps[8] += [l4, m0c]
                    gaps[9] += [svm, l5]
                    gaps[10] += [l6, m0d]
                    gaps[11] += [l7]
                    gaps[12] += [l8, skm]
                    gaps[13] += [sand, sko]
            else:
                gaps[10].append(f"v_mov_b32 {v(VVA)}, {v(VKA)}")
            gaps[14].append(f"s_sub_u32 {s(sC)}, {s(sC)}, 1")
            gaps[15].append(f"v_cmp_nge_f32 vcc, {s(sTHR)}, {v(VLS)}")
            for pos in range(16):
                a.many(pre[pos])
                a.I(mf[pos])
                a.many(gaps[pos])
            a.I(f"s_cbranch_vccnz {N}_{R}_slow{par}")
            a.label(f"{N}_{R}_back{par}")
            a.I(f"s_cbranch_scc1 {N}_{R}_spec{par}")

        a.label(f"{N}_{R}_it0")
        iteration(0)
        a.label(f"{N}_{R}_it1")
        iteration(1)
        a.I(f"s_branch {N}_{R}_it0")

        def svc():
            lab = a.uid(f"{N}_{R}_svc")
            a.I(f"s_cmp_eq_u32 {s(sBAR)}, 0")
            a.I(f"s_cbranch_scc1 {lab}")
            if ld:
                a.I("s_waitcnt vmcnt(14)")
            a.I("s_barrier")
            a.I(f"s_sub_u32 {s(sBAR)}, {s(sBAR)}, 1")
            if ld:
                emit_dma()
            a.label(lab)

        for par in range(2):
            Sc, Sn, Pc = S[par], S[1 - par], P[par]
            a.label(f"{N}_{R}_slow{par}")
            a.I("s_nop 15")
            rowmax(Sc, T0)
            a.I(f"v_max_f32 {v(T0)}, 0, {v(T0)}")
            a.I(f"v_exp_f32_e64 {v(T1)}, -{v(T0)}")
            for j in range(16):
                a.I(f"v_sub_f32 {v(NEGM + j)}, {v(NEGM + j)}, {v(T0)}")
                a.I(f"v_sub_f32 {v(Sc + j)}, {v(Sc + j)}, {v(T0)}")
                a.I(f"v_sub_f32 {v(Sn + j)}, {v(Sn + j)}, {v(T0)}")
            for j in range(64):
                a.I(f"v_mul_f32 {v(O + j)}, {v(O + j)}, {v(T1)}")
            a.I(f"v_mul_f32 {v(VL)}, {v(VL)}, {v(T1)}")
            a.I(f"v_mov_b32 {v(VLS)}, 0")
            for i in range(8):
                a.I(f"v_exp_f32 {v(E)}, {v(Sc + 2 * i)}")
                a.I(f"v_exp_f32 {v(E + 1)}, {v(Sc + 2 * i + 1)}")
                a.I("s_nop 0")
                a.I(f"v_add_f32 {v(VLS)}, {v(VLS)}, {v(E)}")
                a.I(f"v_add_f32 {v(VLS)}, {v(VLS)}, {v(E + 1)}")
                a.I(f"v_cvt_pk_bf16_f32 {v(Pc + i)}, {v(E)}, {v(E + 1)}")
            a.I("s_nop 1")
            a.I(f"s_branch {N}_{R}_back{par}")
            a.label(f"{N}_{R}_spec{par}")
            a.I(f"s_cmp_lg_u32 {s(sPH)}, 0")
            a.I(f"s_cbranch_scc1 {N}_{R}_exit{par}")
            a.I(f"s_mov_b32 {s(sPH)}, 1")
            a.I(f"s_mov_b32 {s(sC)}, 1")
            mask_negm()
            a.I(f"s_branch {N}_{R}_it{1 - par}")
            a.label(f"{N}_{R}_exit{par}")
            a.I("s_waitcnt lgkmcnt(0)")
            for pos in range(8):
                ks, dt = divmod(pos, 4)
                a.I(f"ds_read_b128 {v(RING + 4 * pos, 4)}, {v(VVA)} offset:{8192 + (1 - par) * 16384 + (2 * dt + ks) * 1024}")
            a.I(f"v_add_f32 {v(VL)}, {v(VL)}, {v(VLS)}")
            for pos in range(8):
                ks, dt = divmod(pos, 4)
                a.I(f"s_waitcnt lgkmcnt({7 - pos})")
                a.I(f"{MF} {v(O + 16 * dt, 16)}, {v(RING + 4 * pos, 4)}, {v(Pc + 4 * ks, 4)}, {v(O + 16 * dt, 16)}")
            if par == 0:
                a.I(f"s_branch {N}_{R}_epi")
        a.label(f"{N}_{R}_epi")
        st()
        svc()
        a.I(f"v_mov_b32 {v(T2)}, {v(VL)}")
        a.I("s_nop 1")
        a.I(f"v_permlane32_swap_b32 {v(VL)}, {v(T2)}")
        a.I(f"v_add_f32 {v(VL)}, {v(VL)}, {v(T2)}")
        a.I(f"v_rcp_f32 {v(T0)}, {v(VL)}")
        a.I("s_nop 7")
        for dt in range(4):
            for h in range(2):
                q = 2 * dt + h
                for i in range(4):
                    src = O + 16 * dt + 8 * h + 2 * i
                    a.I(f"v_mul_f32 {v(src)}, {v(src)}, {v(T0)}")
                    a.I(f"v_mul_f32 {v(src + 1)}, {v(src + 1)}, {v(T0)}")
                    a.I(f"v_cvt_pk_bf16_f32 {v(PK + 4 * q + i)}, {v(src)}, {v(src + 1)}")
                a.I(f"buffer_store_dwordx4 {v(PK + 4 * q, 4)}, {v(L16)}, s[36:39], s{46 + q // 4} offen offset:{(q % 4) * 1024}")
            if dt == 1:
                svc()
        if ld:
            a.label(f"{N}_{R}_tail")
            a.I(f"s_cmp_eq_u32 {s(sBAR)}, 0")
            a.I(f"s_cbranch_scc1 {N}_{R}_done")
            a.I("s_waitcnt vmcnt(14)")
            a.I("s_barrier")
            a.I(f"s_sub_u32 {s(sBAR)}, {s(sBAR)}, 1")
            emit_dma()
            a.I(f"s_branch {N}_{R}_tail")
            a.label(f"{N}_{R}_done")
        n0 = st.n
        st.dump(sW, 4, tmpv=T0)
        st.n = n0 - 2
        a.I("s_endpgm")

    a.I(f"s_cmp_ge_u32 {s(sW)}, 4")
    a.I(f"s_cbranch_scc1 {N}_short")
    role(False)
    a.label(f"{N}_short")
    role(True)
    kend(a, N)
    return a, N, (256, 512, 131072)


def oproj_body(a, N, st):
    ACC, CR, AFR = 64, 128, 192
    DEPTH = 8
    L16, L16B, VD0, VD1, TB = 1, 2, 3, 4, 5
    a.I("s_and_b32 s10, s2, 7")
    a.I("s_lshr_b32 s11, s2, 3")
    a.I("s_and_b32 s12, s11, 3")
    a.I("s_lshl_b32 s10, s10, 2")
    a.I("s_add_u32 s17, s10, s12")
    a.I("s_lshr_b32 s18, s11, 2")
    a.I(f"v_lshlrev_b32 {v(L16)}, 4, v0")
    a.I(f"v_add_u32 {v(L16B)}, 0x40000, {v(L16)}")
    a.I("v_lshrrev_b32 v8, 3, v0")
    a.I("v_lshlrev_b32 v8, 10, v8")
    a.I("v_bfe_u32 v9, v0, 4, 1")
    a.I("v_lshlrev_b32 v10, 2, v9")
    a.I("v_and_b32 v11, 7, v0")
    a.I("v_xor_b32 v10, v10, v11")
    a.I(f"v_lshl_add_u32 {v(VD0)}, v10, 4, v8")
    a.I("s_lshl_b32 s10, s18, 7")
    a.I(f"v_add_u32 {v(VD0)}, s10, {v(VD0)}")
    a.I(f"v_add_u32 {v(VD1)}, {8192 - 1024}, {v(VD0)}")
    a.I("v_lshrrev_b32 v8, 5, v0")
    a.I("v_bfe_u32 v10, v0, 2, 2")
    a.I("v_lshl_add_u32 v8, v8, 2, v10")
    a.I(f"v_lshlrev_b32 {v(TB)}, 7, v8")
    a.I(f"v_lshl_add_u32 {v(TB)}, v9, 5, {v(TB)}")
    a.I("v_and_b32 v10, 3, v0")
    a.I(f"v_lshl_add_u32 {v(TB)}, v10, 3, {v(TB)}")
    a.I("v_bfe_u32 v10, v0, 3, 1")
    a.I(f"v_lshl_add_u32 {v(TB)}, v10, 6, {v(TB)}")
    a.I("s_lshl_b32 s19, s16, 14")
    a.I(f"v_add_u32 {v(TB)}, s19, {v(TB)}")
    a.I(f"v_xor_b32 {v(TB + 1)}, 64, {v(TB)}")
    a.I("s_lshl_b32 s40, s17, 19")
    a.I("s_lshl_b32 s10, s16, 16")
    a.I("s_add_u32 s40, s40, s10")
    a.I("s_lshl_b32 s41, s16, 20")
    a.I("s_waitcnt lgkmcnt(0)")
    srd(a, 20, 4, 5, 16 * MB, add=WS_CTX)
    srd(a, 24, 6, 7, 4 * MB)
    srd(a, 28, 8, 9, 4 * MB)
    vm, lg = VM(a), LG(a)
    st()

    def loads(g):
        sl = g % DEPTH
        a.I(f"s_add_u32 m0, s19, {sl * 2048}")
        a.I(f"s_add_u32 s42, s41, {hex(g * 16384)}")
        vm.issue(f"buffer_load_dwordx4 {v(VD0)}, s[24:27], s42 offen lds", g)
        vm.issue(f"buffer_load_dwordx4 {v(VD1)}, s[24:27], s42 offen offset:1024 lds", g)
        if g % 4 == 0:
            a.I(f"s_add_u32 s43, s40, {hex(g * 1024)}")
        vm.issue(f"buffer_load_dwordx4 {v(CR + 8 * sl, 4)}, {v(L16)}, s[20:23], s43 offen offset:{(g % 4) * 1024}", g)
        vm.issue(f"buffer_load_dwordx4 {v(CR + 8 * sl + 4, 4)}, {v(L16B)}, s[20:23], s43 offen offset:{(g % 4) * 1024}", g)

    def trs(g):
        sl = g % DEPTH
        vm.wait(g)
        for cb in range(2):
            d = AFR + 8 * (g & 1) + 4 * cb
            lg.issue(f"ds_read_b64_tr_b16 {v(d, 2)}, {v(TB + cb)} offset:{sl * 2048}", g)
            lg.issue(f"ds_read_b64_tr_b16 {v(d + 2, 2)}, {v(TB + cb)} offset:{sl * 2048 + 1024}", g)

    for g in range(DEPTH):
        loads(g)
    st()
    trs(0)
    st()
    for g in range(64):
        if g + 1 < 64:
            trs(g + 1)
        lg.wait(g)
        sl = g % DEPTH
        for qt in range(2):
            for cb in range(2):
                acc = v(ACC + 16 * (2 * qt + cb), 16)
                a.I(f"{MF} {acc}, {v(AFR + 8 * (g & 1) + 4 * cb, 4)}, {v(CR + 8 * sl + 4 * qt, 4)}, {'0' if g == 0 else acc}")
        if g + DEPTH < 64:
            loads(g + DEPTH)
    st()
    a.I(f"v_add_u32 v8, s19, {v(L16)}")
    a.I("s_nop 11")
    for tl in range(4):
        for jq in range(4):
            a.I(f"ds_write_b128 v8, {v(ACC + 16 * tl + 4 * jq, 4)} offset:{(tl * 4 + jq) * 1024}")
    a.I("v_lshrrev_b32 v9, 5, v0")
    a.I("v_and_b32 v10, 31, v0")
    a.I("v_lshlrev_b32 v10, 4, v10")
    a.I("v_lshl_add_u32 v9, v9, 13, v10")
    a.I("s_lshl_b32 s10, s16, 11")
    a.I("v_add_u32 v9, s10, v9")
    a.I("s_lshl_b32 s11, s17, 17")
    a.I("s_lshl_b32 s12, s18, 7")
    a.I("s_add_u32 s11, s11, s12")
    a.I("s_lshl_b32 s12, s16, 5")
    a.I("s_add_u32 s11, s11, s12")
    a.I("v_lshlrev_b32 v10, 11, v0")
    a.I("s_waitcnt lgkmcnt(0)")
    return ACC


def oproj_finish(a, ACC):
    for pw in range(4):
        for i in range(4):
            jq, hl = divmod(i, 2)
            a.I(f"ds_read_b128 {v(ACC + 16 * pw + 4 * i, 4)}, v9 offset:{pw * 16384 + jq * 1024 + hl * 512}")
        if pw == 1:
            a.I("s_waitcnt lgkmcnt(0)")
            for j in range(16):
                a.I(f"v_add_f32 {v(ACC + j)}, {v(ACC + j)}, {v(ACC + 16 + j)}")
    a.I("s_waitcnt lgkmcnt(0)")
    for j in range(16):
        a.I(f"v_add_f32 {v(ACC + 32 + j)}, {v(ACC + 32 + j)}, {v(ACC + 48 + j)}")
    for j in range(16):
        a.I(f"v_add_f32 {v(ACC + j)}, {v(ACC + j)}, {v(ACC + 32 + j)}")
    for i in range(8):
        a.I(f"v_cvt_pk_bf16_f32 {v(12 + i)}, {v(ACC + 2 * i)}, {v(ACC + 2 * i + 1)}")
    a.I("buffer_store_dwordx4 v[12:15], v10, s[28:31], s11 offen")
    a.I("buffer_store_dwordx4 v[16:19], v10, s[28:31], s11 offen offset:16")


def gen_oproj():
    a = Asm()
    N = "oproj_kernel"
    kstart(a, N, 256)
    a.I("s_load_dwordx2 s[4:5], s[0:1], 88")
    a.I("s_load_dwordx2 s[6:7], s[0:1], 40")
    a.I("s_load_dwordx2 s[8:9], s[0:1], 72")
    a.I("v_lshrrev_b32 v1, 6, v0")
    a.I("v_and_b32 v0, 63, v0")
    a.I("s_nop 0")
    a.I("v_readfirstlane_b32 s16, v1")
    a.I("s_nop 0")
    st = Stamper(a)
    ACC = oproj_body(a, N, st)
    a.I("s_barrier")
    oproj_finish(a, ACC)
    st.dump(16, 4, tmpv=8)
    kend(a, N)
    return a, N, (256, 256, 65536)


def PERMC(j):
    return 8 * (j >> 2) + (j & 3)


def gen_mat(a, dst, nf, base, consts, tmp):
    n = len(consts)
    for i in range(0, n, 4):
        for q in range(4):
            a.I(f"v_fmamk_f32 {v(tmp + q)}, {v(nf)}, {f32(float(consts[i + q]))}, {v(base)}")
        for q in range(4):
            a.I(f"v_cos_f32 {v(tmp + q)}, {v(tmp + q)}")
        a.I("s_nop 0")
        for q in range(2):
            a.I(f"v_cvt_pk_bf16_f32 {v(dst + i // 2 + q)}, {v(tmp + 2 * q)}, {v(tmp + 2 * q + 1)}")


def twiddle(a, Dr, Di, regs, nf, base, consts, sign, tmp):
    for x, c in enumerate(consts):
        A, C, S_, U = tmp, tmp + 1, tmp + 2, tmp + 3
        a.I(f"v_fmamk_f32 {v(A)}, {v(nf)}, {f32(float(c))}, {v(base)}")
        a.I(f"v_cos_f32 {v(C)}, {v(A)}")
        a.I(f"v_sin_f32 {v(S_)}, {v(A)}")
        a.I("s_nop 0")
        for j in regs[x]:
            ng = "-" if sign > 0 else ""
            ps = "" if sign > 0 else "-"
            a.I(f"v_mul_f32 {v(U)}, {v(Dr + j)}, {v(S_)}")
            a.I(f"v_mul_f32 {v(Dr + j)}, {v(Dr + j)}, {v(C)}")
            a.I(f"v_fma_f32 {v(Dr + j)}, {ng}{v(Di + j)}, {v(S_)}, {v(Dr + j)}")
            a.I(f"v_fma_f32 {v(Di + j)}, {v(Di + j)}, {v(C)}, {ps}{v(U)}")


def pack(a, dst, src, n):
    for i in range(n):
        a.I(f"v_cvt_pk_bf16_f32 {v(dst + i)}, {v(src + 2 * i)}, {v(src + 2 * i + 1)}")


def b_decode(a):
    a.I("s_and_b32 s20, s2, 7")
    a.I("s_lshl_b32 s20, s20, 3")
    a.I("s_bfe_u32 s22, s2, 0x30003")
    a.I("s_or_b32 s20, s20, s22")
    a.I("s_lshr_b32 s21, s2, 6")


def gen_b1():
    a = Asm()
    N = "b1_kernel"
    kstart(a, N, 256)
    a.I("s_load_dwordx2 s[4:5], s[0:1], 88")
    a.I("s_load_dwordx4 s[8:11], s[0:1], 48")
    a.I("s_load_dwordx2 s[12:13], s[0:1], 64")
    a.I("v_lshrrev_b32 v1, 6, v0")
    a.I("v_and_b32 v2, 255, v0")
    a.I("v_and_b32 v0, 63, v0")
    a.I("v_readfirstlane_b32 s16, v1")
    b_decode(a)
    a.I("s_lshr_b32 s23, s21, 1")
    a.I("s_lshl_b32 s23, s23, 11")
    a.I("s_lshr_b32 s24, s20, 5")
    a.I("s_lshl_b32 s24, s24, 10")
    a.I("s_add_u32 s23, s23, s24")
    a.I("s_and_b32 s24, s20, 31")
    a.I("s_lshl_b32 s24, s24, 4")
    a.I("s_add_u32 s23, s23, s24")
    a.I("s_and_b32 s24, s21, 1")
    a.I("s_lshl_b32 s24, s24, 9")
    a.I("s_add_u32 s23, s23, s24")
    a.I("s_add_u32 s24, s23, 4096")
    a.I("v_lshlrev_b32 v3, 13, v2")
    a.I("s_cmp_ge_u32 s16, 4")
    a.I("s_waitcnt lgkmcnt(0)")
    a.I(f"s_cbranch_scc1 {N}_filt")
    srd(a, 28, 8, 9, 2 * MB)
    srd(a, 32, 4, 5, 257 * 8192, add=WS_Y)
    a.I("s_lshr_b32 s25, s21, 1")
    a.I("s_lshl_b32 s25, s25, 4")
    a.I("s_and_b32 s26, s21, 1")
    a.I("s_lshl_b32 s26, s26, 2")
    a.I("s_add_u32 s25, s25, s26")
    a.I("s_lshr_b32 s26, s16, 1")
    a.I("s_lshl_b32 s26, s26, 3")
    a.I("s_add_u32 s25, s25, s26")
    a.I("s_and_b32 s26, s16, 1")
    a.I("s_lshl_b32 s26, s26, 1")
    a.I("s_add_u32 s25, s25, s26")
    a.I("s_lshl_b32 s25, s25, 6")
    a.I("s_add_u32 s25, s25, s20")
    a.I("s_lshl_b32 s25, s25, 10")
    a.I(f"s_add_u32 s26, s25, {65536 - 1024}")
    a.I("s_lshl_b32 s27, s16, 11")
    a.I("s_mov_b32 m0, s27")
    a.I("v_lshlrev_b32 v4, 4, v0")
    a.I("buffer_load_dwordx4 v4, s[28:31], s25 offen lds")
    a.I("buffer_load_dwordx4 v4, s[28:31], s26 offen offset:1024 lds")
    HL, NF, BS, TM = 5, 6, 7, 8
    C32, NS32, AR, AI, XF, D1R, D1I, TR, TI, D2 = 16, 24, 32, 36, 40, 48, 64, 80, 88, 96
    a.I(f"v_lshrrev_b32 {v(HL)}, 5, v0")
    a.I(f"v_cvt_f32_u32 {v(HL)}, {v(HL)}")
    a.I("v_and_b32 v12, 31, v0")
    a.I("v_cvt_f32_u32 v12, v12")
    a.I(f"v_mul_f32 {v(NF)}, {f32(1 / 32)}, v12")
    a.I(f"v_mul_f32 {v(BS)}, {v(NF)}, {v(HL)}")
    a.I(f"v_mul_f32 {v(BS)}, {f32(8.0)}, {v(BS)}")
    nat = [16 * t + j for t in range(2) for j in range(8)]
    gen_mat(a, C32, NF, BS, nat, TM)
    a.I(f"v_add_f32 {v(BS)}, {f32(0.25)}, {v(BS)}")
    gen_mat(a, NS32, NF, BS, nat, TM)
    a.I("v_and_b32 v13, 15, v0")
    a.I("v_cvt_f32_u32 v13, v13")
    a.I(f"v_mul_f32 {v(NF)}, {f32(1 / 16)}, v13")
    a.I("v_bfe_u32 v13, v0, 4, 1")
    a.I("v_cvt_f32_u32 v13, v13")
    a.I(f"v_mul_f32 {v(BS)}, {v(NF)}, {v(HL)}")
    a.I(f"v_mul_f32 {v(BS)}, 4.0, {v(BS)}")
    a.I(f"v_fmamk_f32 {v(BS)}, v13, {f32(0.25)}, {v(BS)}")
    pc = [PERMC(j) for j in range(8)]
    gen_mat(a, AR, NF, BS, pc, TM)
    a.I(f"v_add_f32 {v(BS)}, {f32(-0.25)}, {v(BS)}")
    gen_mat(a, AI, NF, BS, pc, TM)
    a.I("v_bfe_u32 v13, v0, 4, 1")
    a.I("v_lshlrev_b32 v13, 10, v13")
    a.I("v_lshrrev_b32 v14, 5, v0")
    a.I("v_lshl_add_u32 v13, v14, 8, v13")
    a.I("v_and_b32 v15, 15, v0")
    a.I("v_lshl_add_u32 v13, v15, 3, v13")
    a.I("v_add_u32 v13, s27, v13")
    a.I("s_waitcnt vmcnt(0)")
    for t in range(2):
        for h in range(2):
            a.I(f"ds_read_b64_tr_b16 {v(XF + 4 * t + 2 * h, 2)}, v13 offset:{t * 512 + h * 128}")
    a.I(f"v_mul_f32 {v(NF)}, {f32(1 / 512)}, v12")
    a.I(f"v_mul_f32 {v(BS)}, {v(NF)}, {v(HL)}")
    a.I(f"v_mul_f32 {v(BS)}, 4.0, {v(BS)}")
    a.I("s_waitcnt lgkmcnt(0)")
    for t in range(2):
        a.I(f"{MF} {v(D1R, 16)}, {v(XF + 4 * t, 4)}, {v(C32 + 4 * t, 4)}, {'0' if t == 0 else v(D1R, 16)}")
    for t in range(2):
        a.I(f"{MF} {v(D1I, 16)}, {v(XF + 4 * t, 4)}, {v(NS32 + 4 * t, 4)}, {'0' if t == 0 else v(D1I, 16)}")
    a.I("v_and_b32 v15, 31, v0")
    a.I("v_lshlrev_b32 v15, 4, v15")
    a.I("v_lshl_add_u32 v15, v14, 11, v15")
    a.I("s_lshl_b32 s25, s16, 2")
    a.I("s_add_u32 s25, s25, 8192")
    a.I("v_add_u32 v15, s25, v15")
    a.I("s_nop 7")
    twiddle(a, D1R, D1I, [[j, j + 8] for j in range(8)], NF, BS, pc, -1, TM)
    pack(a, TR, D1R, 8)
    pack(a, TI, D1I, 8)
    a.I("s_nop 1")
    for r in range(2):
        a.I(f"{MF} {v(D2 + 16 * r, 16)}, {v(AR, 4)}, {v(TR + 4 * r, 4)}, 0")
        a.I(f"{MF} {v(D2 + 16 * r, 16)}, {v(AI, 4)}, {v(TI + 4 * r, 4)}, {v(D2 + 16 * r, 16)}")
    a.I("s_nop 11")
    for c in range(2):
        for j in range(5):
            a.I(f"v_cvt_pk_bf16_f32 {v(TR + 5 * c + j)}, {v(D2 + 8 * c + j)}, {v(D2 + 16 + 8 * c + j)}")
    for c in range(2):
        for j in range(4):
            a.I(f"ds_write_b32 v15, {v(TR + 5 * c + j)} offset:{(c * 8 + j) * 512}")
    a.I("v_cmp_eq_u32 vcc, 0, v0")
    a.I("s_and_saveexec_b64 s[36:37], vcc")
    for c in range(2):
        a.I(f"ds_write_b32 v15, {v(TR + 5 * c + 4)} offset:{8192 + 16 * c}")
    a.I("s_mov_b64 exec, s[36:37]")
    a.I("v_lshlrev_b32 v14, 4, v2")
    a.I("s_waitcnt lgkmcnt(0)")
    a.I("s_barrier")
    a.I("ds_read_b128 v[16:19], v14 offset:8192")
    a.I(f"ds_read_b128 v[20:23], v14 offset:{8192 + 4096}")
    a.I(f"ds_read_b128 v[24:27], v14 offset:{8192 + 8192}")
    a.I("v_lshlrev_b32 v13, 12, v2")
    a.I(f"v_add_u32 v13, {256 * 8192}, v13")
    a.I("s_waitcnt lgkmcnt(0)")
    a.I("buffer_store_dwordx4 v[16:19], v3, s[32:35], s23 offen")
    a.I("buffer_store_dwordx4 v[20:23], v3, s[32:35], s24 offen")
    a.I("v_cmp_gt_u32 vcc, 2, v2")
    a.I("s_and_saveexec_b64 s[36:37], vcc")
    a.I(f"s_cbranch_execz {N}_end")
    a.I("buffer_store_dwordx4 v[24:27], v13, s[32:35], s23 offen")
    a.I("s_endpgm")
    a.label(f"{N}_filt")
    srd(a, 28, 10, 11, 2048 * 514)
    srd(a, 32, 12, 13, 2048 * 514)
    srd(a, 36, 4, 5, 257 * 8192, add=WS_WF)
    a.I("s_lshr_b32 s25, s21, 1")
    a.I("s_lshl_b32 s25, s25, 5")
    a.I("s_lshr_b32 s26, s20, 5")
    a.I("s_lshl_b32 s26, s26, 4")
    a.I("s_add_u32 s25, s25, s26")
    a.I("s_and_b32 s26, s21, 1")
    a.I("s_lshl_b32 s26, s26, 2")
    a.I("s_add_u32 s25, s25, s26")
    a.I("s_lshl_b32 s25, s25, 5")
    a.I("s_and_b32 s26, s20, 31")
    a.I("s_add_u32 s25, s25, s26")
    a.I("s_mul_i32 s25, s25, 514")
    for j in range(8):
        a.I(f"s_add_u32 s{40 + j}, s25, {PERMC(j) * 32 * 514}")
    a.I("v_lshlrev_b32 v4, 1, v2")
    a.I("v_mov_b32 v5, 512")
    for q, va in enumerate((4, 5)):
        for c in range(2):
            for j in range(8):
                a.I(f"buffer_load_ushort {v(32 + 16 * q + 8 * c + j)}, {v(va)}, s[{28 + 4 * c}:{31 + 4 * c}], s{40 + j} offen")
    a.I(f"v_mov_b32 v6, {256 * 8192}")
    a.I("s_waitcnt vmcnt(16)")
    for i in range(8):
        a.I(f"v_lshl_or_b32 {v(16 + i)}, {v(33 + 2 * i)}, 16, {v(32 + 2 * i)}")
    a.I("buffer_store_dwordx4 v[16:19], v3, s[36:39], s23 offen")
    a.I("buffer_store_dwordx4 v[20:23], v3, s[36:39], s24 offen")
    a.I("v_cmp_eq_u32 vcc, 0, v2")
    a.I("s_and_saveexec_b64 s[48:49], vcc")
    a.I(f"s_cbranch_execz {N}_end")
    a.I("s_waitcnt vmcnt(2)")
    for i in range(8):
        a.I(f"v_lshl_or_b32 {v(24 + i)}, {v(49 + 2 * i)}, 16, {v(48 + 2 * i)}")
    a.I("buffer_store_dwordx4 v[24:27], v6, s[36:39], s23 offen")
    a.I("buffer_store_dwordx4 v[28:31], v6, s[36:39], s24 offen")
    kend(a, N)
    return a, N, (256, 512, 20480)


def gen_b2():
    a = Asm()
    N = "b2_kernel"
    kstart(a, N, 257)
    a.I("s_load_dwordx2 s[4:5], s[0:1], 88")
    a.I("v_lshrrev_b32 v1, 6, v0")
    a.I("v_and_b32 v0, 63, v0")
    a.I("s_lshl_b32 s20, s2, 13")
    a.I("v_readfirstlane_b32 s16, v1")
    L16, HL, NF, BS, LF, XA, XB, TM = 1, 2, 3, 4, 5, 6, 7, 8
    YR, YI, WR, WI = 16, 24, 32, 40
    C32, S32, NS32, C64, S64 = 48, 56, 64, 72, 88
    DR, DI = 104, 120
    FR, FI, FN = 136, 152, 168
    a.I(f"v_lshlrev_b32 {v(L16)}, 4, v0")
    a.I("s_lshl_b32 s21, s16, 10")
    a.I("s_add_u32 s21, s21, s20")
    a.I("s_add_u32 s22, s21, 4096")
    a.I("s_lshl_b32 s23, s16, 11")
    a.I("s_add_u32 s23, s23, s20")
    a.I("s_add_u32 s24, s23, 4096")
    a.I("s_waitcnt lgkmcnt(0)")
    srd(a, 28, 4, 5, 257 * 8192, add=WS_Y)
    srd(a, 32, 4, 5, 257 * 8192, add=WS_WF)
    srd(a, 36, 4, 5, 257 * 8192, add=WS_Z)
    for c in range(2):
        for t in range(2):
            a.I(f"buffer_load_dwordx4 {v(YR + 8 * c + 4 * t, 4)}, {v(L16)}, s[28:31], s{21 + c} offen offset:{t * 2048}")
    for c in range(2):
        for h in range(2):
            a.I(f"buffer_load_dwordx4 {v(WR + 8 * c + 4 * h, 4)}, {v(L16)}, s[32:35], s{23 + c} offen offset:{h * 1024}")
    a.I(f"s_mov_b32 s25, {f32(2.0 ** -19)}")
    a.I("s_and_b32 s26, s2, 255")
    a.I("s_cmp_eq_u32 s26, 0")
    a.I(f"s_cselect_b32 s25, {f32(2.0 ** -20)}, s25")
    a.I(f"v_lshrrev_b32 {v(HL)}, 5, v0")
    a.I(f"v_cvt_f32_u32 {v(HL)}, {v(HL)}")
    a.I(f"v_mul_f32 {v(HL)}, 4.0, {v(HL)}")
    a.I(f"v_and_b32 {v(LF)}, 31, v0")
    a.I("s_lshl_b32 s26, s16, 5")
    a.I(f"v_add_u32 v12, s26, {v(LF)}")
    a.I(f"v_cvt_f32_u32 {v(LF)}, {v(LF)}")
    a.I("v_cvt_f32_u32 v12, v12")
    pc = lambda n: [16 * t + PERMC(j) for t in range(n) for j in range(8)]
    a.I(f"v_mul_f32 {v(NF)}, {f32(1 / 32)}, {v(LF)}")
    a.I(f"v_mul_f32 {v(BS)}, {v(NF)}, {v(HL)}")
    gen_mat(a, C32, NF, BS, pc(2), TM)
    a.I(f"v_add_f32 {v(BS)}, {f32(-0.25)}, {v(BS)}")
    gen_mat(a, S32, NF, BS, pc(2), TM)
    for i in range(8):
        a.I(f"v_xor_b32 {v(NS32 + i)}, 0x80008000, {v(S32 + i)}")
    a.I(f"v_mul_f32 {v(NF)}, {f32(1 / 64)}, v12")
    a.I(f"v_mul_f32 {v(BS)}, {v(NF)}, {v(HL)}")
    gen_mat(a, C64, NF, BS, pc(4), TM)
    a.I(f"v_add_f32 {v(BS)}, {f32(-0.25)}, {v(BS)}")
    gen_mat(a, S64, NF, BS, pc(4), TM)
    a.I("s_lshl_b32 s26, s16, 12")
    a.I(f"v_add_u32 {v(XA)}, s26, {v(L16)}")
    a.I(f"v_xor_b32 {v(XB)}, 0x1000, {v(XA)}")

    def mm(D, terms):
        first = True
        for A_, B_ in terms:
            a.I(f"{MF} {v(D, 16)}, {v(A_, 4)}, {v(B_, 4)}, {'0' if first else v(D, 16)}")
            first = False

    def exchange(own, neg_of, ldsoff):
        for c, F in enumerate((FR, FI)):
            for h in range(2):
                a.I(f"ds_write_b128 {v(XA)}, {v(F + 8 * own + 4 * h, 4)} offset:{ldsoff + (2 * c + h) * 1024}")
        a.I("s_waitcnt lgkmcnt(0)")
        a.I("s_barrier")
        for c, F in enumerate((FR, FI)):
            for h in range(2):
                a.I(f"ds_read_b128 {v(F + 8 * (1 - own) + 4 * h, 4)}, {v(XB)} offset:{ldsoff + (2 * c + h) * 1024}")
        for i in range(8):
            a.I(f"v_xor_b32 {v(FN + 8 * own + i)}, 0x80008000, {v(neg_of + 8 * own + i)}")
        a.I("s_waitcnt lgkmcnt(0)")
        for i in range(8):
            a.I(f"v_xor_b32 {v(FN + 8 * (1 - own) + i)}, 0x80008000, {v(neg_of + 8 * (1 - own) + i)}")
        a.I("s_nop 1")

    def rest(own):
        jc = [(j & 3) + 8 * (j >> 2) for j in range(16)]
        a.I(f"v_mul_f32 {v(NF)}, {f32(1 / 2048)}, {v(LF)}")
        a.I(f"v_add_f32 {v(BS)}, {f32(32.0 * own)}, {v(HL)}")
        a.I(f"v_mul_f32 {v(BS)}, {v(NF)}, {v(BS)}")
        a.I("s_waitcnt vmcnt(4)")
        mm(DR, [(YR, C32), (YR + 4, C32 + 4), (YI, S32), (YI + 4, S32 + 4)])
        mm(DI, [(YI, C32), (YI + 4, C32 + 4), (YR, NS32), (YR + 4, NS32 + 4)])
        a.I("s_nop 11")
        twiddle(a, DR, DI, [[j] for j in range(16)], NF, BS, jc, -1, TM)
        pack(a, FR + 8 * own, DR, 8)
        pack(a, FI + 8 * own, DI, 8)
        exchange(own, FR, 0)
        mm(DR, [(C64 + 4 * t, FR + 4 * t) for t in range(4)] + [(S64 + 4 * t, FI + 4 * t) for t in range(4)])
        mm(DI, [(C64 + 4 * t, FI + 4 * t) for t in range(4)] + [(S64 + 4 * t, FN + 4 * t) for t in range(4)])
        a.I("s_waitcnt vmcnt(0)")
        a.I("s_nop 11")
        for j in range(16):
            wr, wi, u = TM, TM + 1, TM + 2
            if j & 1:
                a.I(f"v_and_b32 {v(wr)}, 0xffff0000, {v(WR + j // 2)}")
                a.I(f"v_and_b32 {v(wi)}, 0xffff0000, {v(WI + j // 2)}")
            else:
                a.I(f"v_lshlrev_b32 {v(wr)}, 16, {v(WR + j // 2)}")
                a.I(f"v_lshlrev_b32 {v(wi)}, 16, {v(WI + j // 2)}")
            a.I(f"v_mul_f32 {v(wr)}, s25, {v(wr)}")
            a.I(f"v_mul_f32 {v(wi)}, s25, {v(wi)}")
            a.I(f"v_mul_f32 {v(u)}, {v(DR + j)}, {v(wi)}")
            a.I(f"v_mul_f32 {v(DR + j)}, {v(DR + j)}, {v(wr)}")
            a.I(f"v_fma_f32 {v(DR + j)}, -{v(DI + j)}, {v(wi)}, {v(DR + j)}")
            a.I(f"v_fma_f32 {v(DI + j)}, {v(DI + j)}, {v(wr)}, {v(u)}")
        pack(a, FR + 8 * own, DR, 8)
        pack(a, FI + 8 * own, DI, 8)
        exchange(own, FI, 8192)
        mm(DR, [(FR + 4 * t, C64 + 4 * t) for t in range(4)] + [(FN + 4 * t, S64 + 4 * t) for t in range(4)])
        mm(DI, [(FI + 4 * t, C64 + 4 * t) for t in range(4)] + [(FR + 4 * t, S64 + 4 * t) for t in range(4)])
        a.I(f"v_mul_f32 {v(NF)}, {f32(1 / 2048)}, v12")
        a.I(f"v_mul_f32 {v(BS)}, {v(NF)}, {v(HL)}")
        a.I("s_nop 11")
        twiddle(a, DR, DI, [[j] for j in range(16)], NF, BS, jc, +1, TM)
        pack(a, FR, DR, 8)
        pack(a, FI, DI, 8)
        a.I("s_nop 1")
        mm(DR, [(C32, FR), (C32 + 4, FR + 4), (NS32, FI), (NS32 + 4, FI + 4)])
        mm(DI, [(C32, FI), (C32 + 4, FI + 4), (S32, FR), (S32 + 4, FR + 4)])
        a.I("s_nop 7")
        pack(a, YR, DR, 8)
        a.I("s_nop 3")
        pack(a, YI, DI, 8)
        for c in range(2):
            for h in range(2):
                a.I(f"buffer_store_dwordx4 {v(YR + 8 * c + 4 * h, 4)}, {v(L16)}, s[36:39], s{23 + c} offen offset:{h * 1024}")
        a.I("s_endpgm")

    a.I("s_cmp_eq_u32 s16, 1")
    a.I(f"s_cbranch_scc1 {N}_w1")
    rest(0)
    a.label(f"{N}_w1")
    rest(1)
    kend(a, N)
    return a, N, (257, 128, 16384)


def gen_b3():
    a = Asm()
    N = "b3_kernel"
    kstart(a, N, 256)
    a.I("s_load_dwordx2 s[4:5], s[0:1], 88")
    a.I("s_load_dwordx2 s[6:7], s[0:1], 72")
    a.I("v_lshrrev_b32 v1, 6, v0")
    a.I("v_mov_b32 v2, v0")
    a.I("v_and_b32 v0, 63, v0")
    a.I("v_readfirstlane_b32 s16, v1")
    b_decode(a)
    a.I("s_lshr_b32 s23, s20, 5")
    a.I("s_lshl_b32 s23, s23, 11")
    a.I("s_lshl_b32 s24, s21, 9")
    a.I("s_add_u32 s23, s23, s24")
    a.I("s_and_b32 s24, s20, 31")
    a.I("s_lshl_b32 s24, s24, 4")
    a.I("s_add_u32 s23, s23, s24")
    a.I("s_add_u32 s24, s23, 4096")
    a.I("v_lshlrev_b32 v3, 13, v2")
    a.I(f"v_mov_b32 v4, {256 * 8192}")
    a.I("s_waitcnt lgkmcnt(0)")
    srd(a, 28, 4, 5, 257 * 8192, add=WS_Z)
    srd(a, 32, 6, 7, 4 * MB)
    a.I("buffer_load_dwordx4 v[16:19], v3, s[28:31], s23 offen")
    a.I("buffer_load_dwordx4 v[20:23], v3, s[28:31], s24 offen")
    a.I("buffer_load_dwordx4 v[24:27], v4, s[28:31], s23 offen")
    HL, NF, BS, AFL, TM = 5, 6, 7, 12, 8
    C32, NS32, BRE, BIM, MT, ZF, UR, UI, TR, TI = 32, 40, 48, 56, 64, 68, 80, 96, 112, 120
    a.I(f"v_lshrrev_b32 {v(HL)}, 5, v0")
    a.I(f"v_cvt_f32_u32 {v(HL)}, {v(HL)}")
    a.I("v_and_b32 v13, 31, v0")
    a.I("v_cvt_f32_u32 v13, v13")
    a.I(f"v_mul_f32 {v(NF)}, {f32(1 / 32)}, v13")
    a.I(f"v_mul_f32 {v(BS)}, {v(NF)}, {v(HL)}")
    a.I(f"v_mul_f32 {v(BS)}, 4.0, {v(BS)}")
    pc = [16 * t + PERMC(j) for t in range(2) for j in range(8)]
    gen_mat(a, C32, NF, BS, pc, TM)
    a.I(f"v_add_f32 {v(BS)}, {f32(0.25)}, {v(BS)}")
    gen_mat(a, NS32, NF, BS, pc, TM)
    a.I(f"v_and_b32 {v(AFL)}, 15, v0")
    a.I(f"v_cvt_f32_u32 {v(AFL)}, {v(AFL)}")
    a.I(f"v_mul_f32 {v(NF)}, {f32(1 / 16)}, {v(AFL)}")
    a.I(f"v_mul_f32 {v(BS)}, {f32(0.25)}, {v(HL)}")
    a.I("v_and_b32 v13, 16, v0")
    a.I("v_cmp_eq_u32 vcc, 0, v13")
    a.I("v_mov_b32 v14, 0")
    for B_, ph in ((BRE, None), (BIM, -0.25)):
        if ph:
            a.I(f"v_add_f32 {v(BS)}, {f32(ph)}, {v(BS)}")
        gen_mat(a, MT, NF, BS, list(range(8)), TM)
        for i in range(4):
            a.I(f"v_cndmask_b32 {v(B_ + i)}, v14, {v(MT + i)}, vcc")
            a.I(f"v_cndmask_b32 {v(B_ + 4 + i)}, {v(MT + i)}, v14, vcc")
    a.I("v_and_b32 v13, 31, v2")
    a.I("v_lshlrev_b32 v13, 4, v13")
    a.I("v_lshrrev_b32 v15, 5, v2")
    a.I("v_lshl_add_u32 v13, v15, 1, v13")
    a.I("v_cmp_eq_u32 vcc, 0, v2")
    a.I("v_mov_b32 v15, 8192")
    a.I("s_waitcnt vmcnt(0)")
    for i in range(4):
        a.I(f"v_cndmask_b32 {v(20 + i)}, {v(20 + i)}, v14, vcc")
    for c in range(2):
        for i in range(8):
            a.I(f"ds_write_b16{'_d16_hi' if i & 1 else ''} v13, {v(16 + 4 * c + i // 2)} offset:{i * 1024 + c * 512}")
    a.I("s_and_saveexec_b64 s[36:37], vcc")
    a.I("ds_write_b128 v15, v[24:27]")
    a.I("s_mov_b64 exec, s[36:37]")
    a.I("s_lshl_b32 s25, s16, 11")
    a.I("v_lshlrev_b32 v13, 4, v0")
    a.I("v_add_u32 v13, s25, v13")
    a.I("v_bfe_u32 v15, v0, 4, 1")
    a.I("s_lshl_b32 s25, s16, 2")
    a.I("s_add_u32 s25, s25, 8192")
    a.I("v_lshl_add_u32 v15, v15, 1, s25")
    for j in range(1, 16):
        a.I(f"v_mov_b32 {v(UR + j)}, 0")
    a.I("s_waitcnt lgkmcnt(0)")
    a.I("s_barrier")
    a.I(f"ds_read_u16 {v(UR)}, v15")
    a.I(f"ds_read_b128 {v(ZF, 4)}, v13")
    a.I(f"ds_read_b128 {v(ZF + 4, 4)}, v13 offset:1024")
    a.I("v_and_b32 v15, 1, v0")
    a.I("v_lshlrev_b32 v15, 31, v15")
    a.I("v_cmp_gt_u32 vcc, 32, v0")
    a.I(f"v_mul_f32 {v(NF)}, {f32(1 / 512)}, {v(AFL)}")
    a.I(f"v_mul_f32 {v(BS)}, {v(NF)}, {v(HL)}")
    a.I(f"v_mul_f32 {v(BS)}, 4.0, {v(BS)}")
    a.I("s_waitcnt lgkmcnt(2)")
    a.I(f"v_lshlrev_b32 {v(UR)}, 16, {v(UR)}")
    a.I(f"v_xor_b32 {v(UR)}, {v(UR)}, v15")
    a.I(f"v_cndmask_b32 {v(UR)}, v14, {v(UR)}, vcc")
    a.I("s_waitcnt lgkmcnt(0)")
    a.I("s_nop 0")
    for r in range(2):
        a.I(f"{MF} {v(UR, 16)}, {v(ZF + 4 * r, 4)}, {v(BRE + 4 * r, 4)}, {v(UR, 16)}")
    for r in range(2):
        a.I(f"{MF} {v(UI, 16)}, {v(ZF + 4 * r, 4)}, {v(BIM + 4 * r, 4)}, {'0' if r == 0 else v(UI, 16)}")
    a.I("s_lshr_b32 s25, s21, 1")
    a.I("s_lshl_b32 s25, s25, 4")
    a.I("s_and_b32 s26, s21, 1")
    a.I("s_lshl_b32 s26, s26, 2")
    a.I("s_add_u32 s25, s25, s26")
    a.I("s_lshr_b32 s26, s16, 1")
    a.I("s_lshl_b32 s26, s26, 3")
    a.I("s_add_u32 s25, s25, s26")
    a.I("s_and_b32 s26, s16, 1")
    a.I("s_lshl_b32 s26, s26, 1")
    a.I("s_add_u32 s25, s25, s26")
    a.I("s_lshl_b32 s25, s25, 6")
    a.I("s_add_u32 s25, s25, s20")
    a.I("s_lshl_b32 s25, s25, 11")
    a.I(f"s_add_u32 s26, s25, {64 * 2048}")
    jc = [(j & 3) + 8 * (j >> 2) for j in range(16)]
    twiddle(a, UR, UI, [[j] for j in range(16)], NF, BS, jc, +1, TM)
    pack(a, TR, UR, 8)
    pack(a, TI, UI, 8)
    a.I("v_and_b32 v13, 31, v0")
    a.I("v_lshlrev_b32 v13, 5, v13")
    terms = [(TR, C32), (TR + 4, C32 + 4), (TI, NS32), (TI + 4, NS32 + 4)]
    for i, (A_, B_) in enumerate(terms):
        a.I(f"{MF} {v(UR, 16)}, {v(A_, 4)}, {v(B_, 4)}, {'0' if i == 0 else v(UR, 16)}")
    a.I("v_lshrrev_b32 v15, 5, v0")
    a.I("v_lshl_add_u32 v13, v15, 4, v13")
    a.I("s_nop 9")
    pack(a, 16, UR, 8)
    a.I("s_nop 1")
    for r in range(2):
        a.I(f"v_permlane32_swap_b32 {v(16 + 4 * r)}, {v(18 + 4 * r)}")
        a.I(f"v_permlane32_swap_b32 {v(17 + 4 * r)}, {v(19 + 4 * r)}")
        a.I(f"buffer_store_dwordx4 {v(16 + 4 * r, 4)}, v13, s[32:35], s{25 + r} offen offset:1024")
    kend(a, N)
    return a, N, (256, 256, 8192 + 64)


KERNELS = [gen_b1, gen_qkv, gen_b2, gen_attn, gen_b3, gen_oproj]


def build(kernels, path):
    hdr = open(os.path.join(os.path.dirname(os.path.abspath(__file__)), "..", "cdna_kernels", NAME + ".s.ref")).read()
    head = [l for l in hdr.splitlines() if l.startswith(";") and "@launch" not in l and "Override" not in l
            and "grid=ceil" not in l]
    txt = []
    launches = []
    descs = []
    bad = 0
    for g in kernels:
        a, n, (grid, blk, lds) = g()
        bad += len(a.check())
        nv, ns = a.maxregs()
        print(f"{n}: {sum(1 for k, _ in a.items if k == 'i')} instrs, vgpr {nv}, sgpr {ns}")
        launches.append(f"; @launch kernel={n} grid=({grid},1,1) block=({blk},1,1) lds={lds}")
        txt.append(a.text())
        descs.append(kdesc(n, nv, ns))
    if bad:
        print("HAZARDS:", bad)
    out = "\n".join(head) + "\n" + "\n".join(launches) + "\n" + '.amdgcn_target "amdgcn-amd-amdhsa--gfx950"\n' + \
          "".join(txt) + "".join(descs)
    open(path, "w").write(out)
    return bad


if __name__ == "__main__":
    p = sys.argv[1] if len(sys.argv) > 1 else os.path.join(os.path.dirname(os.path.abspath(__file__)), "..",
                                                           "cdna_kernels", NAME + ".s")
    sys.exit(1 if build(KERNELS, p) else 0)
```

```python
import sys, os, math, struct
sys.path.insert(0, os.path.dirname(os.path.abspath(__file__)))
from asmlib import Asm, VM, LG, v, s

NAME = "concat_heads__compressed_kv_cla__spectral_gfnet__prompt"
MB = 1 << 20
WS_K, WS_V, WS_CTX, WS_Y, WS_WF, WS_Z, WS_Q = 0, 16 * MB, 32 * MB, 48 * MB, 52 * MB, 56 * MB, 64 * MB
KA = dict(x=0, ckv=8, wq=16, wuk=24, wuv=32, wo=40, bx=48, wr=56, wi=64, out=72, dbg=80, ws=88)
MF = "v_mfma_f32_32x32x16_bf16"


def f32(x):
    return "0x%08x" % struct.unpack("<I", struct.pack("<f", x))[0]


def srd(a, d, lo, hi, size, add=0):
    if add:
        a.I(f"s_add_u32 {s(d)}, {s(lo)}, {add if isinstance(add, str) else hex(add)}")
        a.I(f"s_addc_u32 {s(d + 1)}, {s(hi)}, 0")
    else:
        a.I(f"s_mov_b32 {s(d)}, {s(lo)}")
        a.I(f"s_mov_b32 {s(d + 1)}, {s(hi)}")
    a.I(f"s_mov_b32 {s(d + 2)}, {size if isinstance(size, str) else hex(size)}")
    a.I(f"s_mov_b32 {s(d + 3)}, 0x20000")


STAMPS = int(os.environ.get("STAMPS", "0"))
ST0 = 64


class Stamper:
    def __init__(self, a, name=""):
        self.a, self.n = a, 0
        self.on = STAMPS and os.environ.get("STAMPK", name) == name

    def __call__(self):
        if self.on and self.n < 15:
            if self.n == 0:
                self.a.I("s_memrealtime s[60:61]")
            self.a.I(f"s_memtime {s(ST0 + 2 * self.n, 2)}")
            self.n += 1

    def dump(self, wave_s, wslo, tmpv=8):
        if not self.on:
            return
        a = self.a
        a.I("s_waitcnt vmcnt(0) lgkmcnt(0)")
        a.I(f"s_memtime {s(ST0 + 2 * self.n, 2)}")
        a.I("s_memrealtime s[62:63]")
        self.n += 1
        srd(a, 96, wslo, wslo + 1, 1 * MB, add=128 * MB)
        a.I("s_lshl_b32 s100, s2, 3")
        a.I(f"s_add_u32 s100, s100, {s(wave_s)}")
        a.I("s_lshl_b32 s100, s100, 8")
        a.I("s_waitcnt lgkmcnt(0)")
        a.I(f"v_mov_b32 {v(tmpv + 1)}, 0")
        for i in range(self.n):
            a.I(f"v_mov_b32 {v(tmpv)}, {s(ST0 + 2 * i)}")
            a.I(f"buffer_store_dword {v(tmpv)}, {v(tmpv + 1)}, s[96:99], s100 offen offset:{4 * i}")
        for i, r in ((62, 60), (63, 62), (61, ST0 + 2 * (self.n - 1))):
            a.I(f"v_mov_b32 {v(tmpv)}, {s(r)}")
            a.I(f"buffer_store_dword {v(tmpv)}, {v(tmpv + 1)}, s[96:99], s100 offen offset:{4 * i}")
        a.I("s_waitcnt vmcnt(0)")


DBGT = int(os.environ.get("DBGT", "0"))
KIDX = [0]


def dbg_stamp(a, end):
    k = KIDX[0]
    a.I("s_load_dwordx2 s[92:93], s[90:91], 80")
    a.I("s_memrealtime s[94:95]")
    a.I("s_waitcnt vmcnt(0) lgkmcnt(0)")
    a.I(f"s_sub_u32 s96, s92, {k * 512}")
    a.I("s_subb_u32 s97, s93, 0")
    a.I("s_mov_b32 s98, 256")
    a.I("s_mov_b32 s99, 0x20000")
    if not end:
        a.I("s_sub_u32 s94, 0, s94")
    a.I("v_mov_b32 v254, s94")
    a.I("s_mov_b64 s[94:95], exec")
    a.I("s_mov_b64 exec, 1")
    a.I(f"buffer_atomic_umax v254, off, s[96:99], 0 offset:{8 * k + 4 * end}")
    a.I("s_mov_b64 exec, s[94:95]")


def kstart(a, name, nwg):
    a.raw(".text")
    a.raw(f".globl {name}")
    a.raw(".p2align 8")
    a.raw(f".type {name},@function")
    a.label(name)
    a.I(f"s_cmp_ge_u32 s2, {nwg}")
    a.I(f"s_cbranch_scc1 {name}_end")
    if DBGT:
        a.I("s_mov_b64 s[90:91], s[0:1]")
        dbg_stamp(a, 0)


def kend(a, name):
    a.label(name + "_end")
    a.I("s_endpgm")


def kdesc(name, nv, ns):
    nv = (nv + 7) // 8 * 8
    return f""".section .rodata,"a"
.p2align 6
.amdhsa_kernel {name}
  .amdhsa_next_free_vgpr {nv}
  .amdhsa_next_free_sgpr {max(ns, 16)}
  .amdhsa_accum_offset {nv}
  .amdhsa_group_segment_fixed_size 0
  .amdhsa_kernarg_size 96
  .amdhsa_user_sgpr_count 2
  .amdhsa_user_sgpr_kernarg_segment_ptr 1
  .amdhsa_system_sgpr_workgroup_id_x 1
  .amdhsa_float_denorm_mode_32 3
.end_amdhsa_kernel
"""


QSCALE = math.log2(math.e) / math.sqrt(128.0)


def gen_qkv():
    a = Asm()
    N = "qkvproj_kernel"
    kstart(a, N, 256)
    a.I("s_load_dwordx4 s[4:7], s[0:1], 0")
    a.I("s_load_dwordx4 s[8:11], s[0:1], 16")
    a.I("s_load_dwordx2 s[12:13], s[0:1], 32")
    a.I("s_load_dwordx2 s[14:15], s[0:1], 88")
    a.I("v_lshrrev_b32 v1, 6, v0")
    a.I("v_and_b32 v0, 63, v0")
    a.I("s_and_b32 s17, s2, 7")
    a.I("v_readfirstlane_b32 s16, v1")
    a.I("s_lshr_b32 s18, s2, 3")
    a.I("s_and_b32 s19, s18, 7")
    a.I("s_lshr_b32 s18, s18, 3")
    a.I("s_lshl_b32 s40, s17, 2")
    a.I("s_add_u32 s18, s18, s40")
    a.I("s_mov_b32 s41, 0")
    a.I("s_mul_i32 s42, s18, 6")
    a.I("s_cmp_ge_u32 s18, 11")
    a.I("s_cselect_b32 s41, 1, s41")
    a.I("s_cselect_b32 s40, 64, 0")
    a.I("s_cmp_ge_u32 s18, 21")
    a.I("s_cselect_b32 s41, 2, s41")
    a.I("s_cselect_b32 s40, 126, s40")
    a.I("s_sub_u32 s42, s42, s40")
    a.I("s_lshl_b32 s44, s19, 3")
    a.I("s_add_u32 s44, s44, s16")
    hl, b4, t1, t2 = 9, 10, 11, 12
    a.I(f"v_lshrrev_b32 {v(hl)}, 5, v0")
    a.I(f"v_bfe_u32 {v(b4)}, v0, 4, 1")
    a.I(f"v_lshrrev_b32 {v(t1)}, 3, v0")
    a.I(f"v_lshlrev_b32 {v(t1)}, 10, {v(t1)}")
    a.I("s_lshl_b32 s45, s44, 15")
    a.I(f"v_add_u32 {v(t1)}, s45, {v(t1)}")
    a.I(f"v_lshrrev_b32 {v(t2)}, 4, v0")
    a.I("v_and_b32 v13, 7, v0")
    a.I(f"v_xor_b32 {v(t2)}, {v(t2)}, v13")
    a.I(f"v_lshl_add_u32 v52, {v(t2)}, 4, {v(t1)}")
    a.I("v_xor_b32 v53, 64, v52")
    a.I(f"v_add_u32 v53, {8192 - 1024}, v53")
    a.I(f"v_add_u32 v54, {2 * (8192 - 1024)}, v52")
    a.I(f"v_add_u32 v55, {2 * (8192 - 1024)}, v53")
    a.I("v_and_b32 v13, 31, v0")
    a.I(f"v_bfe_u32 {v(t2)}, v0, 1, 3")
    a.I(f"v_xor_b32 {v(t2)}, {v(t2)}, {v(hl)}")
    a.I(f"v_lshlrev_b32 {v(t2)}, 4, {v(t2)}")
    a.I(f"v_lshl_add_u32 {v(t2)}, v13, 7, {v(t2)}")
    a.I("s_mul_i32 s46, s16, 12288")
    for t in range(4):
        a.I(f"v_xor_b32 {v(56 + t)}, {32 * t}, {v(t2)}")
    for t in range(4):
        a.I(f"v_add_u32 {v(56 + t)}, s46, {v(56 + t)}")
    a.I("v_lshrrev_b32 v2, 3, v0")
    a.I("v_lshlrev_b32 v2, 13, v2")
    a.I(f"v_lshlrev_b32 {v(t1)}, 2, {v(b4)}")
    a.I(f"v_and_b32 {v(t2)}, 7, v0")
    a.I(f"v_xor_b32 {v(t1)}, {v(t1)}, {v(t2)}")
    a.I(f"v_lshl_add_u32 v2, {v(t1)}, 4, v2")
    a.I("s_lshl_b32 s45, s16, 17")
    a.I("v_add_u32 v2, s45, v2")
    a.I(f"v_add_u32 v3, {65536 - 1024}, v2")
    a.I(f"v_bfe_u32 {v(t1)}, v0, 2, 2")
    a.I(f"v_lshl_add_u32 {v(t2)}, {v(hl)}, 3, {v(t1)}")
    a.I(f"v_lshlrev_b32 v4, 7, {v(t2)}")
    a.I(f"v_lshl_add_u32 v4, {v(b4)}, 5, v4")
    a.I(f"v_and_b32 {v(t2)}, 3, v0")
    a.I(f"v_lshl_add_u32 v4, {v(t2)}, 3, v4")
    a.I(f"v_bfe_u32 {v(t2)}, v0, 3, 1")
    a.I(f"v_lshl_add_u32 v4, {v(t2)}, 6, v4")
    a.I("v_xor_b32 v5, 64, v4")
    a.I("v_add_u32 v6, 0x10000, v4")
    a.I("v_add_u32 v7, 0x10000, v5")
    a.I("v_add_u32 v50, 0x20000, v4")
    a.I("v_add_u32 v51, 0x20000, v5")
    a.I("v_lshlrev_b32 v48, 4, v0")
    a.I("s_lshl_b32 s47, s16, 11")
    a.I("s_lshl_b32 s48, s42, 7")
    a.I("s_lshl_b32 s49, s44, 13")
    a.I("s_lshl_b32 s50, s42, 18")
    a.I("s_add_u32 s50, s50, s49")
    a.I("s_waitcnt lgkmcnt(0)")
    a.I("s_cmp_eq_u32 s41, 2")
    a.I("s_cselect_b32 s20, s4, s6")
    a.I("s_cselect_b32 s21, s5, s7")
    a.I("s_cselect_b32 s24, s8, s10")
    a.I("s_cselect_b32 s25, s9, s11")
    a.I(f"s_cselect_b32 s51, {hex(WS_Q)}, 0")
    a.I(f"s_cselect_b32 s52, {f32(QSCALE)}, 1.0")
    a.I(f"s_mov_b32 s22, {hex(2 * MB)}")
    a.I("s_mov_b32 s23, 0x20000")
    a.I(f"s_mov_b32 s26, {hex(4 * MB)}")
    a.I("s_mov_b32 s27, 0x20000")
    srd(a, 28, 14, 15, 16 * MB, add="s51")
    srd(a, 32, 12, 13, 4 * MB)
    srd(a, 36, 14, 15, 16 * MB, add=WS_V)
    srd(a, 56, 6, 7, 2 * MB)
    a.I("s_cmp_eq_u32 s18, 31")
    a.I(f"s_cbranch_scc1 {N}_D")
    a.I("s_cmp_eq_u32 s41, 1")
    a.I(f"s_cbranch_scc1 {N}_B")
    a.I("s_cmp_eq_u32 s18, 10")
    a.I(f"s_cbranch_scc1 {N}_C")

    AF, ACC, RING, PK = 64, 192, 8, 32
    LOOK = 6

    def body(passes, tag):
        vm, lg = VM(a), LG(a)
        st = Stamper(a, "qkv")
        st()
        NP = len(passes)
        NC = 4 * NP
        NM = 64 * NP
        restage = tag == "D"
        blk = {}
        free = [6, 7, 8, 9]
        nxt = [0]

        def dmaW():
            c = nxt[0]
            if c >= NC or not free:
                return False
            b = free.pop(0)
            blk[c] = b
            nxt[0] += 1
            pp, kc = divmod(c, 4)
            form, su, di = passes[pp]
            a.I(f"s_add_u32 m0, s47, {hex(b * 16384)}")
            if su is not None:
                a.I(f"s_mov_b32 s45, {hex((kc << 20) + su * 128)}")
            else:
                a.I(f"s_add_u32 s45, s48, {hex((kc << 20) + di * 128)}")
            sr = "s[32:35]" if form == "V" else "s[24:27]"
            vm.issue(f"buffer_load_dwordx4 v2, {sr}, s45 offen lds", ("W", c))
            vm.issue(f"buffer_load_dwordx4 v3, {sr}, s45 offen offset:1024 lds", ("W", c))
            return True

        def dmaA(j):
            sr = "s[56:59]" if (restage and j < 8) else "s[20:23]"
            a.I(f"s_add_u32 m0, s46, {hex((j % 3) * 4096)}")
            a.I(f"s_mov_b32 s45, {(j % 8) * 128}")
            for i in range(4):
                vm.issue(f"buffer_load_dwordx4 {v(52 + i)}, {sr}, s45 offen offset:{i * 1024} lds", ("A", j))

        def readA(j):
            vm.wait(("A", j))
            for t in range(4):
                lg.issue(f"ds_read_b128 {v(AF + 16 * (j % 8) + 4 * t, 4)}, {v(56 + t)} offset:{(j % 3) * 4096}", ("A", j))

        dmaW(); dmaA(0); dmaA(1); dmaW(); dmaA(2); dmaW(); dmaW()

        def reads(i):
            c, r = divmod(i, 16)
            t, cb = divmod(r, 2)
            b = blk[c]
            base = [4, 6, 50][b // 4] + cb
            off = (b % 4) * 16384 + t * 2048
            d = RING + 4 * (i % LOOK)
            lg.issue(f"ds_read_b64_tr_b16 {v(d, 2)}, {v(base)} offset:{off}", ("W", i))
            lg.issue(f"ds_read_b64_tr_b16 {v(d + 2, 2)}, {v(base)} offset:{off + 512}", ("W", i))

        def sync(c):
            vm.wait(("W", c))
            a.I("s_barrier")
            if c >= 2:
                free.append(blk[c - 2])
            if c == (10 if restage else 5):
                free.extend([0, 1, 2, 3, 4, 5])
            n = 0
            while n < 2 and dmaW():
                n += 1

        def epi(pp):
            out = []
            form, su, di = passes[pp]
            acc = ACC + 32 * (pp & 1)
            so = 54 + (pp & 1)
            if su is not None:
                out.append(lambda: a.I(f"s_add_u32 s{so}, s49, {hex((su >> 1) * 512 * 1024 + (su & 1) * 4096)}"))
            else:
                out.append(lambda: a.I(f"s_add_u32 s{so}, s50, {hex((di >> 1) * 512 * 1024 + (di & 1) * 4096)}"))
            sr = "s[36:39]" if form == "V" else "s[28:31]"
            for cb in range(2):
                for h in range(2):
                    q = 2 * cb + h
                    for i in range(4):
                        src = acc + 16 * cb + 8 * h + 2 * i
                        if form == "K" and tag in "AD":
                            out.append(lambda src=src: a.I(f"v_mul_f32 {v(src)}, s52, {v(src)}"))
                            out.append(lambda src=src: a.I(f"v_mul_f32 {v(src + 1)}, s52, {v(src + 1)}"))
                        out.append(lambda src=src, q=q, i=i: a.I(
                            f"v_cvt_pk_bf16_f32 {v(PK + 4 * q + i)}, {v(src)}, {v(src + 1)}"))
                    out.append(lambda q=q: vm.issue(
                        f"buffer_store_dwordx4 {v(PK + 4 * q, 4)}, v48, {sr}, s{so} offen offset:{q * 1024}", ("S", pp)))
            return out

        st()
        readA(0)
        sync(0)
        st()
        for i in range(LOOK - 2):
            reads(i)
        lg.wait(("A", 0))
        for i in range(LOOK - 2, LOOK):
            reads(i)
        pend = []
        for i in range(NM):
            c, r = divmod(i, 16)
            t, cb = divmod(r, 2)
            pp, kc = divmod(c, 4)
            k = 8 * kc + t
            if i % 2 == 0:
                lg.wait([("W", i), ("W", i + 1), ("A", i // 8)])
            if pp == 0 and i % 8 == 0 and i // 8 + 3 < (11 if restage else 8):
                dmaA(i // 8 + 3)
            if restage and 72 < i <= 128 + 8 and i % 8 == 4:
                jj = 8 + (i - 76) // 8
                lg.wait(("A", jj))
                if jj + 3 < 16:
                    dmaA(jj + 3)
            acc = v(ACC + 32 * (pp & 1) + 16 * cb, 16)
            wf = v(RING + 4 * (i % LOOK), 4)
            af = v(AF + 4 * k, 4)
            cin = "0" if k == 0 else acc
            if passes[pp][0] == "V":
                a.I(f"{MF} {acc}, {af}, {wf}, {cin}")
            else:
                a.I(f"{MF} {acc}, {wf}, {af}, {cin}")
            j = i + LOOK
            if j < NM:
                if j % 16 == 0:
                    sync(j // 16)
                if j < 64 and j % 8 == 0:
                    readA(j // 8)
                reads(j)
            if restage and 64 <= i < 128 and i % 8 == 7:
                readA(8 + (i - 64) // 8)
            if i % 64 == 63:
                st()
            if i % 64 == 6 and pp >= 1:
                pend = epi(pp - 1)
            if pend:
                pend.pop(0)()
        a.I("s_nop 11")
        for f in epi(NP - 1):
            f()
        st.dump(16, 14)
        a.I("s_endpgm")

    body([("K", None, i) for i in range(6)], "A")
    a.label(N + "_B")
    body([("V", None, i) for i in range(6)], "B")
    a.label(N + "_C")
    body([("K", None, i) for i in range(4)] + [("V", 0, 0), ("V", 1, 0)], "C")
    a.label(N + "_D")
    body([("V", 62, 0), ("V", 63, 0)] + [("K", None, i) for i in range(4)], "D")
    kend(a, N)
    return a, N, (256, 512, 163840)


def gen_attn():
    a = Asm()
    N = "attn_kernel"
    O, Q, S, P, NEGM, RING = 64, 128, [160, 176], [192, 200], 208, 224
    L16, VKA, VVA, VL, VLS, E, VDA, VDB, QREL, T0, T1, T2, NINF = 1, 2, 3, 4, 5, 6, 10, 11, 12, 13, 14, 15, 48
    PK = 16
    sW, sH, sP, sN, sC, sPH, sTHR, sBAR, sKO, sKM, sVM, sQS = 16, 17, 18, 19, 20, 21, 40, 41, 42, 43, 44, 45
    kstart(a, N, 256)
    a.I("s_load_dwordx2 s[4:5], s[0:1], 88")
    a.I("v_lshrrev_b32 v1, 6, v0")
    a.I("v_and_b32 v0, 63, v0")
    a.I("s_and_b32 s6, s2, 7")
    a.I(f"v_readfirstlane_b32 {s(sW)}, v1")
    a.I("s_lshr_b32 s7, s2, 3")
    a.I("s_and_b32 s8, s7, 3")
    a.I("s_lshl_b32 s6, s6, 2")
    a.I(f"s_add_u32 {s(sH)}, s6, s8")
    a.I(f"s_lshr_b32 {s(sP)}, s7, 2")
    a.I(f"s_lshl_b32 s6, {s(sP)}, 2")
    a.I(f"s_sub_u32 s7, 60, s6")
    a.I(f"s_add_u32 s7, s7, {s(sW)}")
    a.I(f"s_add_u32 s8, s6, 7")
    a.I(f"s_sub_u32 s8, s8, {s(sW)}")
    a.I(f"s_cmp_ge_u32 {s(sW)}, 4")
    a.I(f"s_cselect_b32 {s(sQS)}, s8, s7")
    a.I(f"s_add_u32 {s(sN)}, {s(sQS)}, 1")
    a.I("s_sub_u32 s9, 64, s6")
    a.I(f"s_lshr_b32 {s(sBAR)}, s9, 1")
    a.I("s_lshl_b32 s9, s9, 13")
    a.I(f"s_lshl_b32 s10, {s(sH)}, 19")
    a.I(f"v_lshlrev_b32 {v(L16)}, 4, v0")
    a.I(f"s_and_b32 s11, {s(sW)}, 3")
    a.I("s_lshl_b32 s11, s11, 11")
    a.I(f"v_add_u32 {v(VDA)}, s11, {v(L16)}")
    a.I(f"v_add_u32 {v(VDB)}, 0x2000, {v(VDA)}")
    a.I(f"v_and_b32 {v(T0)}, 31, v0")
    a.I(f"v_lshrrev_b32 {v(T1)}, 5, v0")
    a.I(f"v_lshlrev_b32 {v(T1)}, 2, {v(T1)}")
    a.I(f"v_sub_u32 {v(QREL)}, {v(T0)}, {v(T1)}")
    a.I(f"v_mov_b32 {v(NINF)}, 0xff800000")
    a.I(f"s_mov_b32 {s(sTHR)}, {f32(2.0 ** 14)}")
    a.I("s_waitcnt lgkmcnt(0)")
    srd(a, 24, 4, 5, "s9", add="s10")
    a.I(f"s_add_u32 s12, s10, {hex(WS_V - 3 * 8192)}")
    a.I(f"s_add_u32 s13, s9, {3 * 8192}")
    srd(a, 28, 4, 5, "s13", add="s12")
    srd(a, 32, 4, 5, 16 * MB, add=WS_Q)
    srd(a, 36, 4, 5, 16 * MB, add=WS_CTX)
    st = Stamper(a, "attn")
    st()
    a.I(f"s_lshl_b32 s12, {s(sQS)}, 13")
    a.I("s_add_u32 s12, s12, s10")
    a.I("s_add_u32 s13, s12, 4096")
    for t in range(8):
        a.I(f"buffer_load_dwordx4 {v(Q + 4 * t, 4)}, {v(L16)}, s[32:35], s{12 + t // 4} offen offset:{(t % 4) * 1024}")
    a.I(f"s_lshl_b32 s46, {s(sQS)}, 18")
    a.I(f"s_lshl_b32 s6, {s(sH)}, 13")
    a.I("s_add_u32 s46, s46, s6")
    a.I("s_add_u32 s47, s46, 4096")
    a.I(f"s_mov_b32 {s(sKM)}, s11")
    a.I(f"s_mov_b32 {s(sKO)}, 0")

    def dma_list(withV=True):
        l = []
        if withV:
            l += [f"s_mov_b32 m0, {s(sVM)}", None,
                  f"buffer_load_dwordx4 {v(VDA)}, s[28:31], {s(sKO)} offen lds",
                  f"buffer_load_dwordx4 {v(VDA)}, s[28:31], {s(sKO)} offen offset:1024 lds",
                  f"s_add_u32 m0, {s(sVM)}, 0x4000", None,
                  f"buffer_load_dwordx4 {v(VDB)}, s[28:31], {s(sKO)} offen lds",
                  f"buffer_load_dwordx4 {v(VDB)}, s[28:31], {s(sKO)} offen offset:1024 lds"]
        l += [f"s_mov_b32 m0, {s(sKM)}", f"s_add_u32 {s(sVM)}, {s(sKM)}, 0x2000",
              f"buffer_load_dwordx4 {v(VDA)}, s[24:27], {s(sKO)} offen lds",
              f"buffer_load_dwordx4 {v(VDA)}, s[24:27], {s(sKO)} offen offset:1024 lds",
              f"s_add_u32 m0, {s(sKM)}, 0x4000", f"s_add_u32 {s(sKM)}, {s(sKM)}, 0x8000",
              f"buffer_load_dwordx4 {v(VDB)}, s[24:27], {s(sKO)} offen lds",
              f"buffer_load_dwordx4 {v(VDB)}, s[24:27], {s(sKO)} offen offset:1024 lds",
              f"s_and_b32 {s(sKM)}, {s(sKM)}, 0x1ffff",
              f"s_add_u32 {s(sKO)}, {s(sKO)}, 0x4000"]
        return l

    def emit_dma(withV=True):
        for x in dma_list(withV):
            a.I(x or "s_nop 0")

    def mask_negm():
        for j in range(16):
            a.I(f"v_cmp_le_i32 vcc, {(j & 3) + 8 * (j >> 2)}, {v(QREL)}")
            a.I("s_nop 1")
            a.I(f"v_cndmask_b32 {v(NEGM + j)}, {v(NINF)}, {v(NEGM + j)}, vcc")
        a.I("s_nop 1")

    def rowmax(Sx, dst):
        a.I(f"v_max3_f32 {v(dst)}, {v(Sx)}, {v(Sx + 1)}, {v(Sx + 2)}")
        for j in range(3, 15, 2):
            a.I(f"v_max3_f32 {v(dst)}, {v(dst)}, {v(Sx + j)}, {v(Sx + j + 1)}")
        a.I(f"v_max_f32 {v(dst)}, {v(dst)}, {v(Sx + 15)}")
        a.I(f"v_mov_b32 {v(T2)}, {v(dst)}")
        a.I("s_nop 1")
        a.I(f"v_permlane32_swap_b32 {v(dst)}, {v(T2)}")
        a.I(f"v_max_f32 {v(dst)}, {v(dst)}, {v(T2)}")

    def role(ld):
        R = "S" if ld else "L"
        if ld:
            emit_dma(withV=False)
            emit_dma()
        for j in range(16):
            a.I(f"v_mov_b32 {v(NEGM + j)}, 0")
        a.I(f"s_cmp_lg_u32 {s(sN)}, 1")
        a.I(f"s_cbranch_scc1 {N}_{R}_nm1")
        mask_negm()
        a.label(f"{N}_{R}_nm1")
        for j in range(64):
            a.I(f"v_mov_b32 {v(O + j)}, 0")
        for j in range(8):
            a.I(f"v_mov_b32 {v(P[1] + j)}, 0")
        a.I(f"v_mov_b32 {v(VL)}, 0")
        a.I(f"v_mov_b32 {v(VLS)}, 0")
        a.I(f"v_mov_b32 {v(VKA)}, {v(L16)}")
        a.I(f"v_mov_b32 {v(VVA)}, {v(L16)}")
        a.I(f"s_waitcnt vmcnt({6 if ld else 0})")
        a.I("s_barrier")
        st()
        for t in range(8):
            a.I(f"ds_read_b128 {v(RING + 4 * t, 4)}, {v(L16)} offset:{t * 1024}")
        dl = [x or "s_nop 0" for x in dma_list()] if ld else []
        for t in range(8):
            if t % 4 == 0:
                a.I("s_waitcnt lgkmcnt(4)")
            a.I(f"{MF} {v(S[0], 16)}, {v(RING + 4 * t, 4)}, {v(Q + 4 * t, 4)}, {v(NEGM if t == 0 else S[0], 16)}")
            a.I(f"ds_read_b128 {v(RING + 4 * t, 4)}, {v(L16)} offset:{16384 + t * 1024}")
            for x in dl[:3]:
                a.I(x)
            dl = dl[3:]
        assert not dl
        if ld:
            emit_dma()
        else:
            a.I("s_nop 11")
        rowmax(S[0], T0)
        for j in range(16):
            a.I(f"v_sub_f32 {v(S[0] + j)}, {v(S[0] + j)}, {v(T0)}")
        for j in range(16):
            a.I(f"v_sub_f32 {v(NEGM + j)}, 0, {v(T0)}")
        a.I(f"s_mov_b32 {s(sPH)}, 0")
        a.I(f"s_sub_u32 {s(sC)}, {s(sN)}, 3")
        a.I(f"s_cbranch_scc0 {N}_{R}_it0")
        a.I(f"s_mov_b32 {s(sPH)}, 1")
        a.I(f"s_sub_u32 {s(sC)}, {s(sN)}, 1")
        a.I(f"s_cmp_lg_u32 {s(sN)}, 2")
        a.I(f"s_cbranch_scc1 {N}_{R}_it0")
        mask_negm()

        def iteration(par):
            gaps = [[] for _ in range(16)]
            pre = [[] for _ in range(16)]
            mf = []
            Sc, Sn, Pc, Pp = S[par], S[1 - par], P[par], P[1 - par]
            e = lambda j: v(E + (j & 3))
            for pos in range(16):
                r = v(RING + 4 * (pos & 7), 4)
                if pos < 8:
                    mf.append(f"{MF} {v(Sn, 16)}, {r}, {v(Q + 4 * pos, 4)}, {v(NEGM if pos == 0 else Sn, 16)}")
                    ks, dt = divmod(pos, 4)
                    gaps[pos].append(f"ds_read_b128 {r}, {v(VVA)} offset:{8192 + par * 16384 + (2 * dt + ks) * 1024}")
                else:
                    ks, dt = divmod(pos - 8, 4)
                    mf.append(f"{MF} {v(O + 16 * dt, 16)}, {r}, {v(Pp + 4 * ks, 4)}, {v(O + 16 * dt, 16)}")
                    gaps[pos].append(f"ds_read_b128 {r}, {v(VKA)} offset:{par * 16384 + (pos - 8) * 1024}")
                if pos % 4 == 0:
                    pre[pos].append("s_waitcnt lgkmcnt(4)")
            gaps[0] += [f"v_add_f32 {v(VL)}, {v(VL)}, {v(VLS)}", f"v_exp_f32 {e(0)}, {v(Sc)}", f"v_exp_f32 {e(1)}, {v(Sc + 1)}"]
            for g in range(1, 16):
                if g < 15:
                    gaps[g].append(f"v_exp_f32 {e(g + 1)}, {v(Sc + g + 1)}")
                if g == 1:
                    gaps[g].append(f"v_add_f32 {v(VLS)}, {e(0)}, {e(1)}")
                else:
                    gaps[g].append(f"v_add_f32 {v(VLS)}, {v(VLS)}, {e(g)}")
                if g % 2 == 1:
                    gaps[g].append(f"v_cvt_pk_bf16_f32 {v(Pc + g // 2)}, {e(g - 1)}, {e(g)}")
            if par == 0:
                gaps[2].append(f"v_add_u32 {v(VKA)}, 0x8000, {v(VKA)}")
                gaps[6].append(f"v_and_b32 {v(VKA)}, 0x1ffff, {v(VKA)}")
                bar = ["s_barrier", f"s_sub_u32 {s(sBAR)}, {s(sBAR)}, 1"]
                if ld:
                    bar = ["s_waitcnt vmcnt(14)"] + bar
                gaps[4] = bar + gaps[4]
                if ld:
                    d = [x for x in dma_list() if x]
                    m0a, l1, l2, m0b, l3, l4, m0c, svm, l5, l6, m0d, skm, l7, l8, sand, sko = d
                    gaps[5] = [m0a] + gaps[5] + [l1]
                    gaps[6] += [l2, m0b]
                    gaps[7] += [l3]
                    gaps[8] += [l4, m0c]
                    gaps[9] += [svm, l5]
                    gaps[10] += [l6, m0d]
                    gaps[11] += [l7]
                    gaps[12] += [l8, skm]
                    gaps[13] += [sand, sko]
            else:
                gaps[10].append(f"v_mov_b32 {v(VVA)}, {v(VKA)}")
            gaps[14].append(f"s_sub_u32 {s(sC)}, {s(sC)}, 1")
            gaps[15].append(f"v_cmp_nge_f32 vcc, {s(sTHR)}, {v(VLS)}")
            for pos in range(16):
                a.many(pre[pos])
                a.I(mf[pos])
                a.many(gaps[pos])
            a.I(f"s_cbranch_vccnz {N}_{R}_slow{par}")
            a.label(f"{N}_{R}_back{par}")
            a.I(f"s_cbranch_scc1 {N}_{R}_spec{par}")

        a.label(f"{N}_{R}_it0")
        iteration(0)
        a.label(f"{N}_{R}_it1")
        iteration(1)
        a.I(f"s_branch {N}_{R}_it0")

        def svc():
            lab = a.uid(f"{N}_{R}_svc")
            a.I(f"s_cmp_eq_u32 {s(sBAR)}, 0")
            a.I(f"s_cbranch_scc1 {lab}")
            if ld:
                a.I("s_waitcnt vmcnt(14)")
            a.I("s_barrier")
            a.I(f"s_sub_u32 {s(sBAR)}, {s(sBAR)}, 1")
            if ld:
                emit_dma()
            a.label(lab)

        for par in range(2):
            Sc, Sn, Pc = S[par], S[1 - par], P[par]
            a.label(f"{N}_{R}_slow{par}")
            a.I("s_nop 15")
            rowmax(Sc, T0)
            a.I(f"v_max_f32 {v(T0)}, 0, {v(T0)}")
            a.I(f"v_exp_f32_e64 {v(T1)}, -{v(T0)}")
            for j in range(16):
                a.I(f"v_sub_f32 {v(NEGM + j)}, {v(NEGM + j)}, {v(T0)}")
                a.I(f"v_sub_f32 {v(Sc + j)}, {v(Sc + j)}, {v(T0)}")
                a.I(f"v_sub_f32 {v(Sn + j)}, {v(Sn + j)}, {v(T0)}")
            for j in range(64):
                a.I(f"v_mul_f32 {v(O + j)}, {v(O + j)}, {v(T1)}")
            a.I(f"v_mul_f32 {v(VL)}, {v(VL)}, {v(T1)}")
            a.I(f"v_mov_b32 {v(VLS)}, 0")
            for i in range(8):
                a.I(f"v_exp_f32 {v(E)}, {v(Sc + 2 * i)}")
                a.I(f"v_exp_f32 {v(E + 1)}, {v(Sc + 2 * i + 1)}")
                a.I("s_nop 0")
                a.I(f"v_add_f32 {v(VLS)}, {v(VLS)}, {v(E)}")
                a.I(f"v_add_f32 {v(VLS)}, {v(VLS)}, {v(E + 1)}")
                a.I(f"v_cvt_pk_bf16_f32 {v(Pc + i)}, {v(E)}, {v(E + 1)}")
            a.I("s_nop 1")
            a.I(f"s_branch {N}_{R}_back{par}")
            a.label(f"{N}_{R}_spec{par}")
            a.I(f"s_cmp_lg_u32 {s(sPH)}, 0")
            a.I(f"s_cbranch_scc1 {N}_{R}_exit{par}")
            a.I(f"s_mov_b32 {s(sPH)}, 1")
            a.I(f"s_mov_b32 {s(sC)}, 1")
            mask_negm()
            a.I(f"s_branch {N}_{R}_it{1 - par}")
            a.label(f"{N}_{R}_exit{par}")
            a.I("s_waitcnt lgkmcnt(0)")
            for pos in range(8):
                ks, dt = divmod(pos, 4)
                a.I(f"ds_read_b128 {v(RING + 4 * pos, 4)}, {v(VVA)} offset:{8192 + (1 - par) * 16384 + (2 * dt + ks) * 1024}")
            a.I(f"v_add_f32 {v(VL)}, {v(VL)}, {v(VLS)}")
            for pos in range(8):
                ks, dt = divmod(pos, 4)
                a.I(f"s_waitcnt lgkmcnt({7 - pos})")
                a.I(f"{MF} {v(O + 16 * dt, 16)}, {v(RING + 4 * pos, 4)}, {v(Pc + 4 * ks, 4)}, {v(O + 16 * dt, 16)}")
            if par == 0:
                a.I(f"s_branch {N}_{R}_epi")
        a.label(f"{N}_{R}_epi")
        st()
        svc()
        a.I(f"v_mov_b32 {v(T2)}, {v(VL)}")
        a.I("s_nop 1")
        a.I(f"v_permlane32_swap_b32 {v(VL)}, {v(T2)}")
        a.I(f"v_add_f32 {v(VL)}, {v(VL)}, {v(T2)}")
        a.I(f"v_rcp_f32 {v(T0)}, {v(VL)}")
        a.I("s_nop 7")
        for dt in range(4):
            for h in range(2):
                q = 2 * dt + h
                for i in range(4):
                    src = O + 16 * dt + 8 * h + 2 * i
                    a.I(f"v_mul_f32 {v(src)}, {v(src)}, {v(T0)}")
                    a.I(f"v_mul_f32 {v(src + 1)}, {v(src + 1)}, {v(T0)}")
                    a.I(f"v_cvt_pk_bf16_f32 {v(PK + 4 * q + i)}, {v(src)}, {v(src + 1)}")
                a.I(f"buffer_store_dwordx4 {v(PK + 4 * q, 4)}, {v(L16)}, s[36:39], s{46 + q // 4} offen offset:{(q % 4) * 1024}")
            if dt == 1:
                svc()
        if ld:
            a.label(f"{N}_{R}_tail")
            a.I(f"s_cmp_eq_u32 {s(sBAR)}, 0")
            a.I(f"s_cbranch_scc1 {N}_{R}_done")
            a.I("s_waitcnt vmcnt(14)")
            a.I("s_barrier")
            a.I(f"s_sub_u32 {s(sBAR)}, {s(sBAR)}, 1")
            emit_dma()
            a.I(f"s_branch {N}_{R}_tail")
            a.label(f"{N}_{R}_done")
        n0 = st.n
        st.dump(sW, 4, tmpv=T0)
        st.n = n0 - 2
        a.I("s_endpgm")

    a.I(f"s_cmp_ge_u32 {s(sW)}, 4")
    a.I(f"s_cbranch_scc1 {N}_short")
    role(False)
    a.label(f"{N}_short")
    role(True)
    kend(a, N)
    return a, N, (256, 512, 131072)


def oproj_body(a, N, st):
    ACC, CR, AFR = 64, 128, 192
    DEPTH = 8
    L16, L16B, VD0, VD1, TB = 1, 2, 3, 4, 5
    a.I("s_and_b32 s10, s2, 7")
    a.I("s_lshr_b32 s11, s2, 3")
    a.I("s_and_b32 s12, s11, 3")
    a.I("s_lshl_b32 s10, s10, 2")
    a.I("s_add_u32 s17, s10, s12")
    a.I("s_lshr_b32 s18, s11, 2")
    a.I(f"v_lshlrev_b32 {v(L16)}, 4, v0")
    a.I(f"v_add_u32 {v(L16B)}, 0x40000, {v(L16)}")
    a.I("v_lshrrev_b32 v8, 3, v0")
    a.I("v_lshlrev_b32 v8, 10, v8")
    a.I("v_bfe_u32 v9, v0, 4, 1")
    a.I("v_lshlrev_b32 v10, 2, v9")
    a.I("v_and_b32 v11, 7, v0")
    a.I("v_xor_b32 v10, v10, v11")
    a.I(f"v_lshl_add_u32 {v(VD0)}, v10, 4, v8")
    a.I("s_lshl_b32 s10, s18, 7")
    a.I(f"v_add_u32 {v(VD0)}, s10, {v(VD0)}")
    a.I(f"v_add_u32 {v(VD1)}, {8192 - 1024}, {v(VD0)}")
    a.I("v_lshrrev_b32 v8, 5, v0")
    a.I("v_bfe_u32 v10, v0, 2, 2")
    a.I("v_lshl_add_u32 v8, v8, 2, v10")
    a.I(f"v_lshlrev_b32 {v(TB)}, 7, v8")
    a.I(f"v_lshl_add_u32 {v(TB)}, v9, 5, {v(TB)}")
    a.I("v_and_b32 v10, 3, v0")
    a.I(f"v_lshl_add_u32 {v(TB)}, v10, 3, {v(TB)}")
    a.I("v_bfe_u32 v10, v0, 3, 1")
    a.I(f"v_lshl_add_u32 {v(TB)}, v10, 6, {v(TB)}")
    a.I("s_lshl_b32 s19, s16, 14")
    a.I(f"v_add_u32 {v(TB)}, s19, {v(TB)}")
    a.I(f"v_xor_b32 {v(TB + 1)}, 64, {v(TB)}")
    a.I("s_lshl_b32 s40, s17, 19")
    a.I("s_lshl_b32 s10, s16, 16")
    a.I("s_add_u32 s40, s40, s10")
    a.I("s_lshl_b32 s41, s16, 20")
    a.I("s_waitcnt lgkmcnt(0)")
    srd(a, 20, 4, 5, 16 * MB, add=WS_CTX)
    srd(a, 24, 6, 7, 4 * MB)
    srd(a, 28, 8, 9, 4 * MB)
    vm, lg = VM(a), LG(a)
    st()

    def loads(g):
        sl = g % DEPTH
        a.I(f"s_add_u32 m0, s19, {sl * 2048}")
        a.I(f"s_add_u32 s42, s41, {hex(g * 16384)}")
        vm.issue(f"buffer_load_dwordx4 {v(VD0)}, s[24:27], s42 offen lds", g)
        vm.issue(f"buffer_load_dwordx4 {v(VD1)}, s[24:27], s42 offen offset:1024 lds", g)
        if g % 4 == 0:
            a.I(f"s_add_u32 s43, s40, {hex(g * 1024)}")
        vm.issue(f"buffer_load_dwordx4 {v(CR + 8 * sl, 4)}, {v(L16)}, s[20:23], s43 offen offset:{(g % 4) * 1024}", g)
        vm.issue(f"buffer_load_dwordx4 {v(CR + 8 * sl + 4, 4)}, {v(L16B)}, s[20:23], s43 offen offset:{(g % 4) * 1024}", g)

    def trs(g):
        sl = g % DEPTH
        vm.wait(g)
        for cb in range(2):
            d = AFR + 8 * (g & 1) + 4 * cb
            lg.issue(f"ds_read_b64_tr_b16 {v(d, 2)}, {v(TB + cb)} offset:{sl * 2048}", g)
            lg.issue(f"ds_read_b64_tr_b16 {v(d + 2, 2)}, {v(TB + cb)} offset:{sl * 2048 + 1024}", g)

    for g in range(DEPTH):
        loads(g)
    st()
    trs(0)
    st()
    for g in range(64):
        if g + 1 < 64:
            trs(g + 1)
        lg.wait(g)
        sl = g % DEPTH
        for qt in range(2):
            for cb in range(2):
                acc = v(ACC + 16 * (2 * qt + cb), 16)
                a.I(f"{MF} {acc}, {v(AFR + 8 * (g & 1) + 4 * cb, 4)}, {v(CR + 8 * sl + 4 * qt, 4)}, {'0' if g == 0 else acc}")
        if g + DEPTH < 64:
            loads(g + DEPTH)
    st()
    a.I(f"v_add_u32 v8, s19, {v(L16)}")
    a.I("s_nop 11")
    for tl in range(4):
        for jq in range(4):
            a.I(f"ds_write_b128 v8, {v(ACC + 16 * tl + 4 * jq, 4)} offset:{(tl * 4 + jq) * 1024}")
    a.I("v_lshrrev_b32 v9, 5, v0")
    a.I("v_and_b32 v10, 31, v0")
    a.I("v_lshlrev_b32 v10, 4, v10")
    a.I("v_lshl_add_u32 v9, v9, 13, v10")
    a.I("s_lshl_b32 s10, s16, 11")
    a.I("v_add_u32 v9, s10, v9")
    a.I("s_lshl_b32 s11, s17, 17")
    a.I("s_lshl_b32 s12, s18, 7")
    a.I("s_add_u32 s11, s11, s12")
    a.I("s_lshl_b32 s12, s16, 5")
    a.I("s_add_u32 s11, s11, s12")
    a.I("v_lshlrev_b32 v10, 11, v0")
    a.I("s_waitcnt lgkmcnt(0)")
    return ACC


def oproj_finish(a, ACC):
    for pw in range(4):
        for i in range(4):
            jq, hl = divmod(i, 2)
            a.I(f"ds_read_b128 {v(ACC + 16 * pw + 4 * i, 4)}, v9 offset:{pw * 16384 + jq * 1024 + hl * 512}")
        if pw == 1:
            a.I("s_waitcnt lgkmcnt(0)")
            for j in range(16):
                a.I(f"v_add_f32 {v(ACC + j)}, {v(ACC + j)}, {v(ACC + 16 + j)}")
    a.I("s_waitcnt lgkmcnt(0)")
    for j in range(16):
        a.I(f"v_add_f32 {v(ACC + 32 + j)}, {v(ACC + 32 + j)}, {v(ACC + 48 + j)}")
    for j in range(16):
        a.I(f"v_add_f32 {v(ACC + j)}, {v(ACC + j)}, {v(ACC + 32 + j)}")
    for i in range(8):
        a.I(f"v_cvt_pk_bf16_f32 {v(12 + i)}, {v(ACC + 2 * i)}, {v(ACC + 2 * i + 1)}")
    a.I("buffer_store_dwordx4 v[12:15], v10, s[28:31], s11 offen")
    a.I("buffer_store_dwordx4 v[16:19], v10, s[28:31], s11 offen offset:16")


def gen_oproj():
    a = Asm()
    N = "oproj_kernel"
    kstart(a, N, 256)
    a.I("s_load_dwordx2 s[4:5], s[0:1], 88")
    a.I("s_load_dwordx2 s[6:7], s[0:1], 40")
    a.I("s_load_dwordx2 s[8:9], s[0:1], 72")
    a.I("v_lshrrev_b32 v1, 6, v0")
    a.I("v_and_b32 v0, 63, v0")
    a.I("s_nop 0")
    a.I("v_readfirstlane_b32 s16, v1")
    a.I("s_nop 0")
    st = Stamper(a, "oproj")
    ACC = oproj_body(a, N, st)
    a.I("s_barrier")
    oproj_finish(a, ACC)
    st.dump(16, 4, tmpv=8)
    kend(a, N)
    return a, N, (256, 256, 65536)


def PERMC(j):
    return 8 * (j >> 2) + (j & 3)


def gen_mat(a, dst, nf, base, consts, tmp):
    n = len(consts)
    for i in range(0, n, 4):
        for q in range(4):
            a.I(f"v_fmamk_f32 {v(tmp + q)}, {v(nf)}, {f32(float(consts[i + q]))}, {v(base)}")
        for q in range(4):
            a.I(f"v_cos_f32 {v(tmp + q)}, {v(tmp + q)}")
        a.I("s_nop 0")
        for q in range(2):
            a.I(f"v_cvt_pk_bf16_f32 {v(dst + i // 2 + q)}, {v(tmp + 2 * q)}, {v(tmp + 2 * q + 1)}")


def twiddle(a, Dr, Di, regs, nf, base, consts, sign, tmp):
    for x, c in enumerate(consts):
        A, C, S_, U = tmp, tmp + 1, tmp + 2, tmp + 3
        a.I(f"v_fmamk_f32 {v(A)}, {v(nf)}, {f32(float(c))}, {v(base)}")
        a.I(f"v_cos_f32 {v(C)}, {v(A)}")
        a.I(f"v_sin_f32 {v(S_)}, {v(A)}")
        a.I("s_nop 0")
        for j in regs[x]:
            ng = "-" if sign > 0 else ""
            ps = "" if sign > 0 else "-"
            a.I(f"v_mul_f32 {v(U)}, {v(Dr + j)}, {v(S_)}")
            a.I(f"v_mul_f32 {v(Dr + j)}, {v(Dr + j)}, {v(C)}")
            a.I(f"v_fma_f32 {v(Dr + j)}, {ng}{v(Di + j)}, {v(S_)}, {v(Dr + j)}")
            a.I(f"v_fma_f32 {v(Di + j)}, {v(Di + j)}, {v(C)}, {ps}{v(U)}")


def pack(a, dst, src, n):
    for i in range(n):
        a.I(f"v_cvt_pk_bf16_f32 {v(dst + i)}, {v(src + 2 * i)}, {v(src + 2 * i + 1)}")


def b_decode(a):
    a.I("s_and_b32 s20, s2, 7")
    a.I("s_lshl_b32 s20, s20, 3")
    a.I("s_bfe_u32 s22, s2, 0x30003")
    a.I("s_or_b32 s20, s20, s22")
    a.I("s_lshr_b32 s21, s2, 6")


def gen_b1():
    a = Asm()
    N = "b1_kernel"
    kstart(a, N, 256)
    a.I("s_load_dwordx2 s[4:5], s[0:1], 88")
    a.I("s_load_dwordx4 s[8:11], s[0:1], 48")
    a.I("s_load_dwordx2 s[12:13], s[0:1], 64")
    a.I("v_lshrrev_b32 v1, 6, v0")
    a.I("v_and_b32 v2, 255, v0")
    a.I("v_and_b32 v0, 63, v0")
    a.I("v_readfirstlane_b32 s16, v1")
    b_decode(a)
    a.I("s_lshr_b32 s23, s21, 1")
    a.I("s_lshl_b32 s23, s23, 11")
    a.I("s_lshr_b32 s24, s20, 5")
    a.I("s_lshl_b32 s24, s24, 10")
    a.I("s_add_u32 s23, s23, s24")
    a.I("s_and_b32 s24, s20, 31")
    a.I("s_lshl_b32 s24, s24, 4")
    a.I("s_add_u32 s23, s23, s24")
    a.I("s_and_b32 s24, s21, 1")
    a.I("s_lshl_b32 s24, s24, 9")
    a.I("s_add_u32 s23, s23, s24")
    a.I("s_add_u32 s24, s23, 4096")
    a.I("v_lshlrev_b32 v3, 13, v2")
    a.I("s_cmp_ge_u32 s16, 4")
    a.I("s_waitcnt lgkmcnt(0)")
    a.I(f"s_cbranch_scc1 {N}_filt")
    srd(a, 28, 8, 9, 2 * MB)
    srd(a, 32, 4, 5, 257 * 8192, add=WS_Y)
    a.I("s_lshr_b32 s25, s21, 1")
    a.I("s_lshl_b32 s25, s25, 4")
    a.I("s_and_b32 s26, s21, 1")
    a.I("s_lshl_b32 s26, s26, 2")
    a.I("s_add_u32 s25, s25, s26")
    a.I("s_lshr_b32 s26, s16, 1")
    a.I("s_lshl_b32 s26, s26, 3")
    a.I("s_add_u32 s25, s25, s26")
    a.I("s_and_b32 s26, s16, 1")
    a.I("s_lshl_b32 s26, s26, 1")
    a.I("s_add_u32 s25, s25, s26")
    a.I("s_lshl_b32 s25, s25, 6")
    a.I("s_add_u32 s25, s25, s20")
    a.I("s_lshl_b32 s25, s25, 10")
    a.I(f"s_add_u32 s26, s25, {65536 - 1024}")
    a.I("s_lshl_b32 s27, s16, 11")
    a.I("s_mov_b32 m0, s27")
    a.I("v_lshlrev_b32 v4, 4, v0")
    a.I("buffer_load_dwordx4 v4, s[28:31], s25 offen lds")
    a.I("buffer_load_dwordx4 v4, s[28:31], s26 offen offset:1024 lds")
    HL, NF, BS, TM = 5, 6, 7, 8
    C32, NS32, AR, AI, XF, D1R, D1I, TR, TI, D2 = 16, 24, 32, 36, 40, 48, 64, 80, 88, 96
    a.I(f"v_lshrrev_b32 {v(HL)}, 5, v0")
    a.I(f"v_cvt_f32_u32 {v(HL)}, {v(HL)}")
    a.I("v_and_b32 v12, 31, v0")
    a.I("v_cvt_f32_u32 v12, v12")
    a.I(f"v_mul_f32 {v(NF)}, {f32(1 / 32)}, v12")
    a.I(f"v_mul_f32 {v(BS)}, {v(NF)}, {v(HL)}")
    a.I(f"v_mul_f32 {v(BS)}, {f32(8.0)}, {v(BS)}")
    nat = [16 * t + j for t in range(2) for j in range(8)]
    gen_mat(a, C32, NF, BS, nat, TM)
    a.I(f"v_add_f32 {v(BS)}, {f32(0.25)}, {v(BS)}")
    gen_mat(a, NS32, NF, BS, nat, TM)
    a.I("v_and_b32 v13, 15, v0")
    a.I("v_cvt_f32_u32 v13, v13")
    a.I(f"v_mul_f32 {v(NF)}, {f32(1 / 16)}, v13")
    a.I("v_bfe_u32 v13, v0, 4, 1")
    a.I("v_cvt_f32_u32 v13, v13")
    a.I(f"v_mul_f32 {v(BS)}, {v(NF)}, {v(HL)}")
    a.I(f"v_mul_f32 {v(BS)}, 4.0, {v(BS)}")
    a.I(f"v_fmamk_f32 {v(BS)}, v13, {f32(0.25)}, {v(BS)}")
    pc = [PERMC(j) for j in range(8)]
    gen_mat(a, AR, NF, BS, pc, TM)
    a.I(f"v_add_f32 {v(BS)}, {f32(-0.25)}, {v(BS)}")
    gen_mat(a, AI, NF, BS, pc, TM)
    a.I("v_bfe_u32 v13, v0, 4, 1")
    a.I("v_lshlrev_b32 v13, 10, v13")
    a.I("v_lshrrev_b32 v14, 5, v0")
    a.I("v_lshl_add_u32 v13, v14, 8, v13")
    a.I("v_and_b32 v15, 15, v0")
    a.I("v_lshl_add_u32 v13, v15, 3, v13")
    a.I("v_add_u32 v13, s27, v13")
    a.I("s_waitcnt vmcnt(0)")
    for t in range(2):
        for h in range(2):
            a.I(f"ds_read_b64_tr_b16 {v(XF + 4 * t + 2 * h, 2)}, v13 offset:{t * 512 + h * 128}")
    a.I(f"v_mul_f32 {v(NF)}, {f32(1 / 512)}, v12")
    a.I(f"v_mul_f32 {v(BS)}, {v(NF)}, {v(HL)}")
    a.I(f"v_mul_f32 {v(BS)}, 4.0, {v(BS)}")
    a.I("s_waitcnt lgkmcnt(0)")
    for t in range(2):
        a.I(f"{MF} {v(D1R, 16)}, {v(XF + 4 * t, 4)}, {v(C32 + 4 * t, 4)}, {'0' if t == 0 else v(D1R, 16)}")
    for t in range(2):
        a.I(f"{MF} {v(D1I, 16)}, {v(XF + 4 * t, 4)}, {v(NS32 + 4 * t, 4)}, {'0' if t == 0 else v(D1I, 16)}")
    a.I("v_and_b32 v15, 31, v0")
    a.I("v_lshlrev_b32 v15, 4, v15")
    a.I("v_lshl_add_u32 v15, v14, 11, v15")
    a.I("s_lshl_b32 s25, s16, 2")
    a.I("s_add_u32 s25, s25, 8192")
    a.I("v_add_u32 v15, s25, v15")
    a.I("s_nop 7")
    twiddle(a, D1R, D1I, [[j, j + 8] for j in range(8)], NF, BS, pc, -1, TM)
    pack(a, TR, D1R, 8)
    pack(a, TI, D1I, 8)
    a.I("s_nop 1")
    for r in range(2):
        a.I(f"{MF} {v(D2 + 16 * r, 16)}, {v(AR, 4)}, {v(TR + 4 * r, 4)}, 0")
        a.I(f"{MF} {v(D2 + 16 * r, 16)}, {v(AI, 4)}, {v(TI + 4 * r, 4)}, {v(D2 + 16 * r, 16)}")
    a.I("s_nop 11")
    for c in range(2):
        for j in range(5):
            a.I(f"v_cvt_pk_bf16_f32 {v(TR + 5 * c + j)}, {v(D2 + 8 * c + j)}, {v(D2 + 16 + 8 * c + j)}")
    for c in range(2):
        for j in range(4):
            a.I(f"ds_write_b32 v15, {v(TR + 5 * c + j)} offset:{(c * 8 + j) * 512}")
    a.I("v_cmp_eq_u32 vcc, 0, v0")
    a.I("s_and_saveexec_b64 s[36:37], vcc")
    for c in range(2):
        a.I(f"ds_write_b32 v15, {v(TR + 5 * c + 4)} offset:{8192 + 16 * c}")
    a.I("s_mov_b64 exec, s[36:37]")
    a.I("v_lshlrev_b32 v14, 4, v2")
    a.I("s_waitcnt lgkmcnt(0)")
    a.I("s_barrier")
    a.I("ds_read_b128 v[16:19], v14 offset:8192")
    a.I(f"ds_read_b128 v[20:23], v14 offset:{8192 + 4096}")
    a.I(f"ds_read_b128 v[24:27], v14 offset:{8192 + 8192}")
    a.I("v_lshlrev_b32 v13, 12, v2")
    a.I(f"v_add_u32 v13, {256 * 8192}, v13")
    a.I("s_waitcnt lgkmcnt(0)")
    a.I("buffer_store_dwordx4 v[16:19], v3, s[32:35], s23 offen")
    a.I("buffer_store_dwordx4 v[20:23], v3, s[32:35], s24 offen")
    a.I("v_cmp_gt_u32 vcc, 2, v2")
    a.I("s_and_saveexec_b64 s[36:37], vcc")
    a.I(f"s_cbranch_execz {N}_end")
    a.I("buffer_store_dwordx4 v[24:27], v13, s[32:35], s23 offen")
    a.I("s_endpgm")
    a.label(f"{N}_filt")
    srd(a, 28, 10, 11, 2048 * 514)
    srd(a, 32, 12, 13, 2048 * 514)
    srd(a, 36, 4, 5, 257 * 8192, add=WS_WF)
    a.I("s_lshr_b32 s25, s21, 1")
    a.I("s_lshl_b32 s25, s25, 5")
    a.I("s_lshr_b32 s26, s20, 5")
    a.I("s_lshl_b32 s26, s26, 4")
    a.I("s_add_u32 s25, s25, s26")
    a.I("s_and_b32 s26, s21, 1")
    a.I("s_lshl_b32 s26, s26, 2")
    a.I("s_add_u32 s25, s25, s26")
    a.I("s_lshl_b32 s25, s25, 5")
    a.I("s_and_b32 s26, s20, 31")
    a.I("s_add_u32 s25, s25, s26")
    a.I("s_mul_i32 s25, s25, 514")
    for j in range(8):
        a.I(f"s_add_u32 s{40 + j}, s25, {PERMC(j) * 32 * 514}")
    a.I("v_lshlrev_b32 v4, 1, v2")
    a.I("v_mov_b32 v5, 512")
    for q, va in enumerate((4, 5)):
        for c in range(2):
            for j in range(8):
                a.I(f"buffer_load_ushort {v(32 + 16 * q + 8 * c + j)}, {v(va)}, s[{28 + 4 * c}:{31 + 4 * c}], s{40 + j} offen")
    a.I(f"v_mov_b32 v6, {256 * 8192}")
    a.I("s_waitcnt vmcnt(16)")
    for i in range(8):
        a.I(f"v_lshl_or_b32 {v(16 + i)}, {v(33 + 2 * i)}, 16, {v(32 + 2 * i)}")
    a.I("buffer_store_dwordx4 v[16:19], v3, s[36:39], s23 offen")
    a.I("buffer_store_dwordx4 v[20:23], v3, s[36:39], s24 offen")
    a.I("v_cmp_eq_u32 vcc, 0, v2")
    a.I("s_and_saveexec_b64 s[48:49], vcc")
    a.I(f"s_cbranch_execz {N}_end")
    a.I("s_waitcnt vmcnt(2)")
    for i in range(8):
        a.I(f"v_lshl_or_b32 {v(24 + i)}, {v(49 + 2 * i)}, 16, {v(48 + 2 * i)}")
    a.I("buffer_store_dwordx4 v[24:27], v6, s[36:39], s23 offen")
    a.I("buffer_store_dwordx4 v[28:31], v6, s[36:39], s24 offen")
    kend(a, N)
    return a, N, (256, 512, 20480)


def gen_b2():
    a = Asm()
    N = "b2_kernel"
    kstart(a, N, 257)
    a.I("s_load_dwordx2 s[4:5], s[0:1], 88")
    a.I("v_lshrrev_b32 v1, 6, v0")
    a.I("v_and_b32 v0, 63, v0")
    a.I("s_lshl_b32 s20, s2, 13")
    a.I("v_readfirstlane_b32 s16, v1")
    L16, HL, NF, BS, LF, XA, XB, TM = 1, 2, 3, 4, 5, 6, 7, 8
    YR, YI, WR, WI = 16, 24, 32, 40
    C32, S32, NS32, C64, S64 = 48, 56, 64, 72, 88
    DR, DI = 104, 120
    FR, FI, FN = 136, 152, 168
    a.I(f"v_lshlrev_b32 {v(L16)}, 4, v0")
    a.I("s_lshl_b32 s21, s16, 10")
    a.I("s_add_u32 s21, s21, s20")
    a.I("s_add_u32 s22, s21, 4096")
    a.I("s_lshl_b32 s23, s16, 11")
    a.I("s_add_u32 s23, s23, s20")
    a.I("s_add_u32 s24, s23, 4096")
    a.I("s_waitcnt lgkmcnt(0)")
    srd(a, 28, 4, 5, 257 * 8192, add=WS_Y)
    srd(a, 32, 4, 5, 257 * 8192, add=WS_WF)
    srd(a, 36, 4, 5, 257 * 8192, add=WS_Z)
    for c in range(2):
        for t in range(2):
            a.I(f"buffer_load_dwordx4 {v(YR + 8 * c + 4 * t, 4)}, {v(L16)}, s[28:31], s{21 + c} offen offset:{t * 2048}")
    for c in range(2):
        for h in range(2):
            a.I(f"buffer_load_dwordx4 {v(WR + 8 * c + 4 * h, 4)}, {v(L16)}, s[32:35], s{23 + c} offen offset:{h * 1024}")
    a.I(f"s_mov_b32 s25, {f32(2.0 ** -19)}")
    a.I("s_and_b32 s26, s2, 255")
    a.I("s_cmp_eq_u32 s26, 0")
    a.I(f"s_cselect_b32 s25, {f32(2.0 ** -20)}, s25")
    a.I(f"v_lshrrev_b32 {v(HL)}, 5, v0")
    a.I(f"v_cvt_f32_u32 {v(HL)}, {v(HL)}")
    a.I(f"v_mul_f32 {v(HL)}, 4.0, {v(HL)}")
    a.I(f"v_and_b32 {v(LF)}, 31, v0")
    a.I("s_lshl_b32 s26, s16, 5")
    a.I(f"v_add_u32 v12, s26, {v(LF)}")
    a.I(f"v_cvt_f32_u32 {v(LF)}, {v(LF)}")
    a.I("v_cvt_f32_u32 v12, v12")
    pc = lambda n: [16 * t + PERMC(j) for t in range(n) for j in range(8)]
    a.I(f"v_mul_f32 {v(NF)}, {f32(1 / 32)}, {v(LF)}")
    a.I(f"v_mul_f32 {v(BS)}, {v(NF)}, {v(HL)}")
    gen_mat(a, C32, NF, BS, pc(2), TM)
    a.I(f"v_add_f32 {v(BS)}, {f32(-0.25)}, {v(BS)}")
    gen_mat(a, S32, NF, BS, pc(2), TM)
    for i in range(8):
        a.I(f"v_xor_b32 {v(NS32 + i)}, 0x80008000, {v(S32 + i)}")
    a.I(f"v_mul_f32 {v(NF)}, {f32(1 / 64)}, v12")
    a.I(f"v_mul_f32 {v(BS)}, {v(NF)}, {v(HL)}")
    gen_mat(a, C64, NF, BS, pc(4), TM)
    a.I(f"v_add_f32 {v(BS)}, {f32(-0.25)}, {v(BS)}")
    gen_mat(a, S64, NF, BS, pc(4), TM)
    a.I("s_lshl_b32 s26, s16, 12")
    a.I(f"v_add_u32 {v(XA)}, s26, {v(L16)}")
    a.I(f"v_xor_b32 {v(XB)}, 0x1000, {v(XA)}")

    def mm(D, terms):
        first = True
        for A_, B_ in terms:
            a.I(f"{MF} {v(D, 16)}, {v(A_, 4)}, {v(B_, 4)}, {'0' if first else v(D, 16)}")
            first = False

    def exchange(own, neg_of, ldsoff):
        for c, F in enumerate((FR, FI)):
            for h in range(2):
                a.I(f"ds_write_b128 {v(XA)}, {v(F + 8 * own + 4 * h, 4)} offset:{ldsoff + (2 * c + h) * 1024}")
        a.I("s_waitcnt lgkmcnt(0)")
        a.I("s_barrier")
        for c, F in enumerate((FR, FI)):
            for h in range(2):
                a.I(f"ds_read_b128 {v(F + 8 * (1 - own) + 4 * h, 4)}, {v(XB)} offset:{ldsoff + (2 * c + h) * 1024}")
        for i in range(8):
            a.I(f"v_xor_b32 {v(FN + 8 * own + i)}, 0x80008000, {v(neg_of + 8 * own + i)}")
        a.I("s_waitcnt lgkmcnt(0)")
        for i in range(8):
            a.I(f"v_xor_b32 {v(FN + 8 * (1 - own) + i)}, 0x80008000, {v(neg_of + 8 * (1 - own) + i)}")
        a.I("s_nop 1")

    def rest(own):
        jc = [(j & 3) + 8 * (j >> 2) for j in range(16)]
        a.I(f"v_mul_f32 {v(NF)}, {f32(1 / 2048)}, {v(LF)}")
        a.I(f"v_add_f32 {v(BS)}, {f32(32.0 * own)}, {v(HL)}")
        a.I(f"v_mul_f32 {v(BS)}, {v(NF)}, {v(BS)}")
        a.I("s_waitcnt vmcnt(4)")
        mm(DR, [(YR, C32), (YR + 4, C32 + 4), (YI, S32), (YI + 4, S32 + 4)])
        mm(DI, [(YI, C32), (YI + 4, C32 + 4), (YR, NS32), (YR + 4, NS32 + 4)])
        a.I("s_nop 11")
        twiddle(a, DR, DI, [[j] for j in range(16)], NF, BS, jc, -1, TM)
        pack(a, FR + 8 * own, DR, 8)
        pack(a, FI + 8 * own, DI, 8)
        exchange(own, FR, 0)
        mm(DR, [(C64 + 4 * t, FR + 4 * t) for t in range(4)] + [(S64 + 4 * t, FI + 4 * t) for t in range(4)])
        mm(DI, [(C64 + 4 * t, FI + 4 * t) for t in range(4)] + [(S64 + 4 * t, FN + 4 * t) for t in range(4)])
        a.I("s_waitcnt vmcnt(0)")
        a.I("s_nop 11")
        for j in range(16):
            wr, wi, u = TM, TM + 1, TM + 2
            if j & 1:
                a.I(f"v_and_b32 {v(wr)}, 0xffff0000, {v(WR + j // 2)}")
                a.I(f"v_and_b32 {v(wi)}, 0xffff0000, {v(WI + j // 2)}")
            else:
                a.I(f"v_lshlrev_b32 {v(wr)}, 16, {v(WR + j // 2)}")
                a.I(f"v_lshlrev_b32 {v(wi)}, 16, {v(WI + j // 2)}")
            a.I(f"v_mul_f32 {v(wr)}, s25, {v(wr)}")
            a.I(f"v_mul_f32 {v(wi)}, s25, {v(wi)}")
            a.I(f"v_mul_f32 {v(u)}, {v(DR + j)}, {v(wi)}")
            a.I(f"v_mul_f32 {v(DR + j)}, {v(DR + j)}, {v(wr)}")
            a.I(f"v_fma_f32 {v(DR + j)}, -{v(DI + j)}, {v(wi)}, {v(DR + j)}")
            a.I(f"v_fma_f32 {v(DI + j)}, {v(DI + j)}, {v(wr)}, {v(u)}")
        pack(a, FR + 8 * own, DR, 8)
        pack(a, FI + 8 * own, DI, 8)
        exchange(own, FI, 8192)
        mm(DR, [(FR + 4 * t, C64 + 4 * t) for t in range(4)] + [(FN + 4 * t, S64 + 4 * t) for t in range(4)])
        mm(DI, [(FI + 4 * t, C64 + 4 * t) for t in range(4)] + [(FR + 4 * t, S64 + 4 * t) for t in range(4)])
        a.I(f"v_mul_f32 {v(NF)}, {f32(1 / 2048)}, v12")
        a.I(f"v_mul_f32 {v(BS)}, {v(NF)}, {v(HL)}")
        a.I("s_nop 11")
        twiddle(a, DR, DI, [[j] for j in range(16)], NF, BS, jc, +1, TM)
        pack(a, FR, DR, 8)
        pack(a, FI, DI, 8)
        a.I("s_nop 1")
        mm(DR, [(C32, FR), (C32 + 4, FR + 4), (NS32, FI), (NS32 + 4, FI + 4)])
        mm(DI, [(C32, FI), (C32 + 4, FI + 4), (S32, FR), (S32 + 4, FR + 4)])
        a.I("s_nop 7")
        pack(a, YR, DR, 8)
        a.I("s_nop 3")
        pack(a, YI, DI, 8)
        for c in range(2):
            for h in range(2):
                a.I(f"buffer_store_dwordx4 {v(YR + 8 * c + 4 * h, 4)}, {v(L16)}, s[36:39], s{23 + c} offen offset:{h * 1024}")
        a.I("s_endpgm")

    a.I("s_cmp_eq_u32 s16, 1")
    a.I(f"s_cbranch_scc1 {N}_w1")
    rest(0)
    a.label(f"{N}_w1")
    rest(1)
    kend(a, N)
    return a, N, (257, 128, 16384)


def gen_b3():
    a = Asm()
    N = "b3_kernel"
    kstart(a, N, 256)
    a.I("s_load_dwordx2 s[4:5], s[0:1], 88")
    a.I("s_load_dwordx2 s[6:7], s[0:1], 72")
    a.I("v_lshrrev_b32 v1, 6, v0")
    a.I("v_mov_b32 v2, v0")
    a.I("v_and_b32 v0, 63, v0")
    a.I("v_readfirstlane_b32 s16, v1")
    b_decode(a)
    a.I("s_lshr_b32 s23, s20, 5")
    a.I("s_lshl_b32 s23, s23, 11")
    a.I("s_lshl_b32 s24, s21, 9")
    a.I("s_add_u32 s23, s23, s24")
    a.I("s_and_b32 s24, s20, 31")
    a.I("s_lshl_b32 s24, s24, 4")
    a.I("s_add_u32 s23, s23, s24")
    a.I("s_add_u32 s24, s23, 4096")
    a.I("v_lshlrev_b32 v3, 13, v2")
    a.I(f"v_mov_b32 v4, {256 * 8192}")
    a.I("s_waitcnt lgkmcnt(0)")
    srd(a, 28, 4, 5, 257 * 8192, add=WS_Z)
    srd(a, 32, 6, 7, 4 * MB)
    a.I("buffer_load_dwordx4 v[16:19], v3, s[28:31], s23 offen")
    a.I("buffer_load_dwordx4 v[20:23], v3, s[28:31], s24 offen")
    a.I("buffer_load_dwordx4 v[24:27], v4, s[28:31], s23 offen")
    HL, NF, BS, AFL, TM = 5, 6, 7, 12, 8
    C32, NS32, BRE, BIM, MT, ZF, UR, UI, TR, TI = 32, 40, 48, 56, 64, 68, 80, 96, 112, 120
    a.I(f"v_lshrrev_b32 {v(HL)}, 5, v0")
    a.I(f"v_cvt_f32_u32 {v(HL)}, {v(HL)}")
    a.I("v_and_b32 v13, 31, v0")
    a.I("v_cvt_f32_u32 v13, v13")
    a.I(f"v_mul_f32 {v(NF)}, {f32(1 / 32)}, v13")
    a.I(f"v_mul_f32 {v(BS)}, {v(NF)}, {v(HL)}")
    a.I(f"v_mul_f32 {v(BS)}, 4.0, {v(BS)}")
    pc = [16 * t + PERMC(j) for t in range(2) for j in range(8)]
    gen_mat(a, C32, NF, BS, pc, TM)
    a.I(f"v_add_f32 {v(BS)}, {f32(0.25)}, {v(BS)}")
    gen_mat(a, NS32, NF, BS, pc, TM)
    a.I(f"v_and_b32 {v(AFL)}, 15, v0")
    a.I(f"v_cvt_f32_u32 {v(AFL)}, {v(AFL)}")
    a.I(f"v_mul_f32 {v(NF)}, {f32(1 / 16)}, {v(AFL)}")
    a.I(f"v_mul_f32 {v(BS)}, {f32(0.25)}, {v(HL)}")
    a.I("v_and_b32 v13, 16, v0")
    a.I("v_cmp_eq_u32 vcc, 0, v13")
    a.I("v_mov_b32 v14, 0")
    for B_, ph in ((BRE, None), (BIM, -0.25)):
        if ph:
            a.I(f"v_add_f32 {v(BS)}, {f32(ph)}, {v(BS)}")
        gen_mat(a, MT, NF, BS, list(range(8)), TM)
        for i in range(4):
            a.I(f"v_cndmask_b32 {v(B_ + i)}, v14, {v(MT + i)}, vcc")
            a.I(f"v_cndmask_b32 {v(B_ + 4 + i)}, {v(MT + i)}, v14, vcc")
    a.I("v_and_b32 v13, 31, v2")
    a.I("v_lshlrev_b32 v13, 4, v13")
    a.I("v_lshrrev_b32 v15, 5, v2")
    a.I("v_lshl_add_u32 v13, v15, 1, v13")
    a.I("v_cmp_eq_u32 vcc, 0, v2")
    a.I("v_mov_b32 v15, 8192")
    a.I("s_waitcnt vmcnt(0)")
    for i in range(4):
        a.I(f"v_cndmask_b32 {v(20 + i)}, {v(20 + i)}, v14, vcc")
    for c in range(2):
        for i in range(8):
            a.I(f"ds_write_b16{'_d16_hi' if i & 1 else ''} v13, {v(16 + 4 * c + i // 2)} offset:{i * 1024 + c * 512}")
    a.I("s_and_saveexec_b64 s[36:37], vcc")
    a.I("ds_write_b128 v15, v[24:27]")
    a.I("s_mov_b64 exec, s[36:37]")
    a.I("s_lshl_b32 s25, s16, 11")
    a.I("v_lshlrev_b32 v13, 4, v0")
    a.I("v_add_u32 v13, s25, v13")
    a.I("v_bfe_u32 v15, v0, 4, 1")
    a.I("s_lshl_b32 s25, s16, 2")
    a.I("s_add_u32 s25, s25, 8192")
    a.I("v_lshl_add_u32 v15, v15, 1, s25")
    for j in range(1, 16):
        a.I(f"v_mov_b32 {v(UR + j)}, 0")
    a.I("s_waitcnt lgkmcnt(0)")
    a.I("s_barrier")
    a.I(f"ds_read_u16 {v(UR)}, v15")
    a.I(f"ds_read_b128 {v(ZF, 4)}, v13")
    a.I(f"ds_read_b128 {v(ZF + 4, 4)}, v13 offset:1024")
    a.I("v_and_b32 v15, 1, v0")
    a.I("v_lshlrev_b32 v15, 31, v15")
    a.I("v_cmp_gt_u32 vcc, 32, v0")
    a.I(f"v_mul_f32 {v(NF)}, {f32(1 / 512)}, {v(AFL)}")
    a.I(f"v_mul_f32 {v(BS)}, {v(NF)}, {v(HL)}")
    a.I(f"v_mul_f32 {v(BS)}, 4.0, {v(BS)}")
    a.I("s_waitcnt lgkmcnt(2)")
    a.I(f"v_lshlrev_b32 {v(UR)}, 16, {v(UR)}")
    a.I(f"v_xor_b32 {v(UR)}, {v(UR)}, v15")
    a.I(f"v_cndmask_b32 {v(UR)}, v14, {v(UR)}, vcc")
    a.I("s_waitcnt lgkmcnt(0)")
    a.I("s_nop 0")
    for r in range(2):
        a.I(f"{MF} {v(UR, 16)}, {v(ZF + 4 * r, 4)}, {v(BRE + 4 * r, 4)}, {v(UR, 16)}")
    for r in range(2):
        a.I(f"{MF} {v(UI, 16)}, {v(ZF + 4 * r, 4)}, {v(BIM + 4 * r, 4)}, {'0' if r == 0 else v(UI, 16)}")
    a.I("s_lshr_b32 s25, s21, 1")
    a.I("s_lshl_b32 s25, s25, 4")
    a.I("s_and_b32 s26, s21, 1")
    a.I("s_lshl_b32 s26, s26, 2")
    a.I("s_add_u32 s25, s25, s26")
    a.I("s_lshr_b32 s26, s16, 1")
    a.I("s_lshl_b32 s26, s26, 3")
    a.I("s_add_u32 s25, s25, s26")
    a.I("s_and_b32 s26, s16, 1")
    a.I("s_lshl_b32 s26, s26, 1")
    a.I("s_add_u32 s25, s25, s26")
    a.I("s_lshl_b32 s25, s25, 6")
    a.I("s_add_u32 s25, s25, s20")
    a.I("s_lshl_b32 s25, s25, 11")
    a.I(f"s_add_u32 s26, s25, {64 * 2048}")
    jc = [(j & 3) + 8 * (j >> 2) for j in range(16)]
    twiddle(a, UR, UI, [[j] for j in range(16)], NF, BS, jc, +1, TM)
    pack(a, TR, UR, 8)
    pack(a, TI, UI, 8)
    a.I("v_and_b32 v13, 31, v0")
    a.I("v_lshlrev_b32 v13, 5, v13")
    terms = [(TR, C32), (TR + 4, C32 + 4), (TI, NS32), (TI + 4, NS32 + 4)]
    for i, (A_, B_) in enumerate(terms):
        a.I(f"{MF} {v(UR, 16)}, {v(A_, 4)}, {v(B_, 4)}, {'0' if i == 0 else v(UR, 16)}")
    a.I("v_lshrrev_b32 v15, 5, v0")
    a.I("v_lshl_add_u32 v13, v15, 4, v13")
    a.I("s_nop 9")
    pack(a, 16, UR, 8)
    a.I("s_nop 1")
    for r in range(2):
        a.I(f"v_permlane32_swap_b32 {v(16 + 4 * r)}, {v(18 + 4 * r)}")
        a.I(f"v_permlane32_swap_b32 {v(17 + 4 * r)}, {v(19 + 4 * r)}")
        a.I(f"buffer_store_dwordx4 {v(16 + 4 * r, 4)}, v13, s[32:35], s{25 + r} offen offset:1024")
    kend(a, N)
    return a, N, (256, 256, 8192 + 64)


KERNELS = [gen_b1, gen_qkv, gen_b2, gen_attn, gen_b3, gen_oproj]


def build(kernels, path):
    hdr = open(os.path.join(os.path.dirname(os.path.abspath(__file__)), "..", "cdna_kernels", NAME + ".s.ref")).read()
    head = [l for l in hdr.splitlines() if l.startswith(";") and "@launch" not in l and "Override" not in l
            and "grid=ceil" not in l]
    txt = []
    launches = []
    descs = []
    bad = 0
    for g in kernels:
        KIDX[0] = len(launches)
        a, n, (grid, blk, lds) = g()
        if DBGT:
            items = []
            for it in a.items:
                if it[0] == "i" and it[1].mn == "s_endpgm" and not (items and items[-1][0] == "l" and items[-1][1] == n + "_end" and items[-2][1].mn == "s_endpgm"):
                    b = Asm()
                    lab = None
                    if items[-1][0] == "l" and items[-1][1] == n + "_end":
                        lab = items.pop()
                    dbg_stamp(b, 1)
                    items += b.items
                    if lab:
                        items.append(it)
                        items.append(lab)
                items.append(it)
            a.items = items
        bad += len(a.check())
        nv, ns = a.maxregs()
        print(f"{n}: {sum(1 for k, _ in a.items if k == 'i')} instrs, vgpr {nv}, sgpr {ns}")
        launches.append(f"; @launch kernel={n} grid=({grid},1,1) block=({blk},1,1) lds={lds}")
        txt.append(a.text())
        descs.append(kdesc(n, nv, ns))
    if bad:
        print("HAZARDS:", bad)
    out = "\n".join(head) + "\n" + "\n".join(launches) + "\n" + '.amdgcn_target "amdgcn-amd-amdhsa--gfx950"\n' + \
          "".join(txt) + "".join(descs)
    open(path, "w").write(out)
    return bad


if __name__ == "__main__":
    p = sys.argv[1] if len(sys.argv) > 1 else os.path.join(os.path.dirname(os.path.abspath(__file__)), "..",
                                                           "cdna_kernels", NAME + ".s")
    sys.exit(1 if build(KERNELS, p) else 0)
```

```python
import sys, os, math, struct
sys.path.insert(0, os.path.dirname(os.path.abspath(__file__)))
from asmlib import Asm, VM, LG, v, s

NAME = "concat_heads__compressed_kv_cla__spectral_gfnet__prompt"
MB = 1 << 20
WS_K, WS_V, WS_CTX, WS_Y, WS_WF, WS_Z, WS_Q = 0, 16 * MB, 32 * MB, 48 * MB, 52 * MB, 56 * MB, 64 * MB
KA = dict(x=0, ckv=8, wq=16, wuk=24, wuv=32, wo=40, bx=48, wr=56, wi=64, out=72, dbg=80, ws=88)
MF = "v_mfma_f32_32x32x16_bf16"


def f32(x):
    return "0x%08x" % struct.unpack("<I", struct.pack("<f", x))[0]


def srd(a, d, lo, hi, size, add=0):
    if add:
        a.I(f"s_add_u32 {s(d)}, {s(lo)}, {add if isinstance(add, str) else hex(add)}")
        a.I(f"s_addc_u32 {s(d + 1)}, {s(hi)}, 0")
    else:
        a.I(f"s_mov_b32 {s(d)}, {s(lo)}")
        a.I(f"s_mov_b32 {s(d + 1)}, {s(hi)}")
    a.I(f"s_mov_b32 {s(d + 2)}, {size if isinstance(size, str) else hex(size)}")
    a.I(f"s_mov_b32 {s(d + 3)}, 0x20000")


STAMPS = int(os.environ.get("STAMPS", "0"))
ST0 = 64


class Stamper:
    def __init__(self, a, name=""):
        self.a, self.n = a, 0
        self.on = STAMPS and os.environ.get("STAMPK", name) == name

    def __call__(self):
        if self.on and self.n < 15:
            if self.n == 0:
                self.a.I("s_memrealtime s[60:61]")
            self.a.I(f"s_memtime {s(ST0 + 2 * self.n, 2)}")
            self.n += 1

    def dump(self, wave_s, wslo, tmpv=8):
        if not self.on:
            return
        a = self.a
        a.I("s_waitcnt vmcnt(0) lgkmcnt(0)")
        a.I(f"s_memtime {s(ST0 + 2 * self.n, 2)}")
        a.I("s_memrealtime s[62:63]")
        self.n += 1
        srd(a, 96, wslo, wslo + 1, 1 * MB, add=128 * MB)
        a.I("s_lshl_b32 s100, s2, 3")
        a.I(f"s_add_u32 s100, s100, {s(wave_s)}")
        a.I("s_lshl_b32 s100, s100, 8")
        a.I("s_waitcnt lgkmcnt(0)")
        a.I(f"v_mov_b32 {v(tmpv + 1)}, 0")
        for i in range(self.n):
            a.I(f"v_mov_b32 {v(tmpv)}, {s(ST0 + 2 * i)}")
            a.I(f"buffer_store_dword {v(tmpv)}, {v(tmpv + 1)}, s[96:99], s100 offen offset:{4 * i}")
        for i, r in ((62, 60), (63, 62), (61, ST0 + 2 * (self.n - 1))):
            a.I(f"v_mov_b32 {v(tmpv)}, {s(r)}")
            a.I(f"buffer_store_dword {v(tmpv)}, {v(tmpv + 1)}, s[96:99], s100 offen offset:{4 * i}")
        a.I("s_waitcnt vmcnt(0)")


DBGT = int(os.environ.get("DBGT", "0"))
KIDX = [0, 0]


def dbg_stamp(a, end):
    k = KIDX[0]
    lab = a.uid("dbgskip%d_%d" % (k, KIDX[1]))
    KIDX[1] += 1
    if not end:
        a.I("v_readfirstlane_b32 s89, v0")
        a.I("s_nop 1")
        a.I("s_lshr_b32 s89, s89, 6")
        a.I("s_or_b32 s89, s89, s2")
    a.I("s_cmp_lg_u32 s89, 0")
    a.I(f"s_cbranch_scc1 {lab}")
    a.I("s_load_dwordx4 s[92:95], s[90:91], 80")
    a.I("s_waitcnt vmcnt(0) lgkmcnt(0)")
    a.I("s_memrealtime s[86:87]")
    a.I(f"s_add_u32 s96, s94, {hex(200 * MB)}")
    a.I("s_addc_u32 s97, s95, 0")
    a.I("s_mov_b32 s98, 256")
    a.I("s_mov_b32 s99, 0x20000")
    a.I("s_waitcnt lgkmcnt(0)")
    a.I("v_mov_b32 v254, s86")
    a.I(f"buffer_store_dword v254, off, s[96:99], 0 offset:{8 * k + 4 * end} sc0 sc1")
    a.I("s_waitcnt vmcnt(0)")
    if end and k == DBGT - 1:
        a.I("v_lshlrev_b32 v253, 2, v0")
        a.I("buffer_load_dword v254, v253, s[96:99], 0 offen sc0 sc1")
        a.I("s_mov_b32 s96, s92")
        a.I("s_mov_b32 s97, s93")
        a.I("s_waitcnt vmcnt(0)")
        a.I("buffer_store_dword v254, v253, s[96:99], 0 offen")
        a.I(f"s_sub_u32 s96, s92, {k * 512}")
        a.I("s_subb_u32 s97, s93, 0")
        a.I("s_nop 0")
        a.I("buffer_store_dword v254, v253, s[96:99], 0 offen")
    a.label(lab)


def kstart(a, name, nwg):
    a.raw(".text")
    a.raw(f".globl {name}")
    a.raw(".p2align 8")
    a.raw(f".type {name},@function")
    a.label(name)
    a.I(f"s_cmp_ge_u32 s2, {nwg}")
    a.I(f"s_cbranch_scc1 {name}_end")
    if DBGT:
        a.I("s_mov_b64 s[90:91], s[0:1]")
        dbg_stamp(a, 0)


def kend(a, name):
    a.label(name + "_end")
    a.I("s_endpgm")


def kdesc(name, nv, ns):
    nv = (nv + 7) // 8 * 8
    return f""".section .rodata,"a"
.p2align 6
.amdhsa_kernel {name}
  .amdhsa_next_free_vgpr {nv}
  .amdhsa_next_free_sgpr {max(ns, 16)}
  .amdhsa_accum_offset {nv}
  .amdhsa_group_segment_fixed_size 0
  .amdhsa_kernarg_size 96
  .amdhsa_user_sgpr_count 2
  .amdhsa_user_sgpr_kernarg_segment_ptr 1
  .amdhsa_system_sgpr_workgroup_id_x 1
  .amdhsa_float_denorm_mode_32 3
.end_amdhsa_kernel
"""


QSCALE = math.log2(math.e) / math.sqrt(128.0)


def gen_qkv():
    a = Asm()
    N = "qkvproj_kernel"
    kstart(a, N, 256)
    a.I("s_load_dwordx4 s[4:7], s[0:1], 0")
    a.I("s_load_dwordx4 s[8:11], s[0:1], 16")
    a.I("s_load_dwordx2 s[12:13], s[0:1], 32")
    a.I("s_load_dwordx2 s[14:15], s[0:1], 88")
    a.I("v_lshrrev_b32 v1, 6, v0")
    a.I("v_and_b32 v0, 63, v0")
    a.I("s_and_b32 s17, s2, 7")
    a.I("v_readfirstlane_b32 s16, v1")
    a.I("s_lshr_b32 s18, s2, 3")
    a.I("s_and_b32 s19, s18, 7")
    a.I("s_lshr_b32 s18, s18, 3")
    a.I("s_lshl_b32 s40, s17, 2")
    a.I("s_add_u32 s18, s18, s40")
    a.I("s_mov_b32 s41, 0")
    a.I("s_mul_i32 s42, s18, 6")
    a.I("s_cmp_ge_u32 s18, 11")
    a.I("s_cselect_b32 s41, 1, s41")
    a.I("s_cselect_b32 s40, 64, 0")
    a.I("s_cmp_ge_u32 s18, 21")
    a.I("s_cselect_b32 s41, 2, s41")
    a.I("s_cselect_b32 s40, 126, s40")
    a.I("s_sub_u32 s42, s42, s40")
    a.I("s_lshl_b32 s44, s19, 3")
    a.I("s_add_u32 s44, s44, s16")
    hl, b4, t1, t2 = 9, 10, 11, 12
    a.I(f"v_lshrrev_b32 {v(hl)}, 5, v0")
    a.I(f"v_bfe_u32 {v(b4)}, v0, 4, 1")
    a.I(f"v_lshrrev_b32 {v(t1)}, 3, v0")
    a.I(f"v_lshlrev_b32 {v(t1)}, 10, {v(t1)}")
    a.I("s_lshl_b32 s45, s44, 15")
    a.I(f"v_add_u32 {v(t1)}, s45, {v(t1)}")
    a.I(f"v_lshrrev_b32 {v(t2)}, 4, v0")
    a.I("v_and_b32 v13, 7, v0")
    a.I(f"v_xor_b32 {v(t2)}, {v(t2)}, v13")
    a.I(f"v_lshl_add_u32 v52, {v(t2)}, 4, {v(t1)}")
    a.I("v_xor_b32 v53, 64, v52")
    a.I(f"v_add_u32 v53, {8192 - 1024}, v53")
    a.I(f"v_add_u32 v54, {2 * (8192 - 1024)}, v52")
    a.I(f"v_add_u32 v55, {2 * (8192 - 1024)}, v53")
    a.I("v_and_b32 v13, 31, v0")
    a.I(f"v_bfe_u32 {v(t2)}, v0, 1, 3")
    a.I(f"v_xor_b32 {v(t2)}, {v(t2)}, {v(hl)}")
    a.I(f"v_lshlrev_b32 {v(t2)}, 4, {v(t2)}")
    a.I(f"v_lshl_add_u32 {v(t2)}, v13, 7, {v(t2)}")
    a.I("s_mul_i32 s46, s16, 12288")
    for t in range(4):
        a.I(f"v_xor_b32 {v(56 + t)}, {32 * t}, {v(t2)}")
    for t in range(4):
        a.I(f"v_add_u32 {v(56 + t)}, s46, {v(56 + t)}")
    a.I("v_lshrrev_b32 v2, 3, v0")
    a.I("v_lshlrev_b32 v2, 13, v2")
    a.I(f"v_lshlrev_b32 {v(t1)}, 2, {v(b4)}")
    a.I(f"v_and_b32 {v(t2)}, 7, v0")
    a.I(f"v_xor_b32 {v(t1)}, {v(t1)}, {v(t2)}")
    a.I(f"v_lshl_add_u32 v2, {v(t1)}, 4, v2")
    a.I("s_lshl_b32 s45, s16, 17")
    a.I("v_add_u32 v2, s45, v2")
    a.I(f"v_add_u32 v3, {65536 - 1024}, v2")
    a.I(f"v_bfe_u32 {v(t1)}, v0, 2, 2")
    a.I(f"v_lshl_add_u32 {v(t2)}, {v(hl)}, 3, {v(t1)}")
    a.I(f"v_lshlrev_b32 v4, 7, {v(t2)}")
    a.I(f"v_lshl_add_u32 v4, {v(b4)}, 5, v4")
    a.I(f"v_and_b32 {v(t2)}, 3, v0")
    a.I(f"v_lshl_add_u32 v4, {v(t2)}, 3, v4")
    a.I(f"v_bfe_u32 {v(t2)}, v0, 3, 1")
    a.I(f"v_lshl_add_u32 v4, {v(t2)}, 6, v4")
    a.I("v_xor_b32 v5, 64, v4")
    a.I("v_add_u32 v6, 0x10000, v4")
    a.I("v_add_u32 v7, 0x10000, v5")
    a.I("v_add_u32 v50, 0x20000, v4")
    a.I("v_add_u32 v51, 0x20000, v5")
    a.I("v_lshlrev_b32 v48, 4, v0")
    a.I("s_lshl_b32 s47, s16, 11")
    a.I("s_lshl_b32 s48, s42, 7")
    a.I("s_lshl_b32 s49, s44, 13")
    a.I("s_lshl_b32 s50, s42, 18")
    a.I("s_add_u32 s50, s50, s49")
    a.I("s_waitcnt lgkmcnt(0)")
    a.I("s_cmp_eq_u32 s41, 2")
    a.I("s_cselect_b32 s20, s4, s6")
    a.I("s_cselect_b32 s21, s5, s7")
    a.I("s_cselect_b32 s24, s8, s10")
    a.I("s_cselect_b32 s25, s9, s11")
    a.I(f"s_cselect_b32 s51, {hex(WS_Q)}, 0")
    a.I(f"s_cselect_b32 s52, {f32(QSCALE)}, 1.0")
    a.I(f"s_mov_b32 s22, {hex(2 * MB)}")
    a.I("s_mov_b32 s23, 0x20000")
    a.I(f"s_mov_b32 s26, {hex(4 * MB)}")
    a.I("s_mov_b32 s27, 0x20000")
    srd(a, 28, 14, 15, 16 * MB, add="s51")
    srd(a, 32, 12, 13, 4 * MB)
    srd(a, 36, 14, 15, 16 * MB, add=WS_V)
    srd(a, 56, 6, 7, 2 * MB)
    a.I("s_cmp_eq_u32 s18, 31")
    a.I(f"s_cbranch_scc1 {N}_D")
    a.I("s_cmp_eq_u32 s41, 1")
    a.I(f"s_cbranch_scc1 {N}_B")
    a.I("s_cmp_eq_u32 s18, 10")
    a.I(f"s_cbranch_scc1 {N}_C")

    AF, ACC, RING, PK = 64, 192, 8, 32
    LOOK = 6

    def body(passes, tag):
        vm, lg = VM(a), LG(a)
        st = Stamper(a, "qkv")
        st()
        NP = len(passes)
        NC = 4 * NP
        NM = 64 * NP
        restage = tag == "D"
        blk = {}
        free = [6, 7, 8, 9]
        nxt = [0]

        def dmaW():
            c = nxt[0]
            if c >= NC or not free:
                return False
            b = free.pop(0)
            blk[c] = b
            nxt[0] += 1
            pp, kc = divmod(c, 4)
            form, su, di = passes[pp]
            a.I(f"s_add_u32 m0, s47, {hex(b * 16384)}")
            if su is not None:
                a.I(f"s_mov_b32 s45, {hex((kc << 20) + su * 128)}")
            else:
                a.I(f"s_add_u32 s45, s48, {hex((kc << 20) + di * 128)}")
            sr = "s[32:35]" if form == "V" else "s[24:27]"
            vm.issue(f"buffer_load_dwordx4 v2, {sr}, s45 offen lds", ("W", c))
            vm.issue(f"buffer_load_dwordx4 v3, {sr}, s45 offen offset:1024 lds", ("W", c))
            return True

        def dmaA(j):
            sr = "s[56:59]" if (restage and j < 8) else "s[20:23]"
            a.I(f"s_add_u32 m0, s46, {hex((j % 3) * 4096)}")
            a.I(f"s_mov_b32 s45, {(j % 8) * 128}")
            for i in range(4):
                vm.issue(f"buffer_load_dwordx4 {v(52 + i)}, {sr}, s45 offen offset:{i * 1024} lds", ("A", j))

        def readA(j):
            vm.wait(("A", j))
            for t in range(4):
                lg.issue(f"ds_read_b128 {v(AF + 16 * (j % 8) + 4 * t, 4)}, {v(56 + t)} offset:{(j % 3) * 4096}", ("A", j))

        dmaW(); dmaA(0); dmaA(1); dmaW(); dmaA(2); dmaW(); dmaW()

        def reads(i):
            c, r = divmod(i, 16)
            t, cb = divmod(r, 2)
            b = blk[c]
            base = [4, 6, 50][b // 4] + cb
            off = (b % 4) * 16384 + t * 2048
            d = RING + 4 * (i % LOOK)
            lg.issue(f"ds_read_b64_tr_b16 {v(d, 2)}, {v(base)} offset:{off}", ("W", i))
            lg.issue(f"ds_read_b64_tr_b16 {v(d + 2, 2)}, {v(base)} offset:{off + 512}", ("W", i))

        def sync(c):
            vm.wait(("W", c))
            a.I("s_barrier")
            if c >= 2:
                free.append(blk[c - 2])
            if c == (10 if restage else 5):
                free.extend([0, 1, 2, 3, 4, 5])
            n = 0
            while n < 2 and dmaW():
                n += 1

        def epi(pp):
            out = []
            form, su, di = passes[pp]
            acc = ACC + 32 * (pp & 1)
            so = 54 + (pp & 1)
            if su is not None:
                out.append(lambda: a.I(f"s_add_u32 s{so}, s49, {hex((su >> 1) * 512 * 1024 + (su & 1) * 4096)}"))
            else:
                out.append(lambda: a.I(f"s_add_u32 s{so}, s50, {hex((di >> 1) * 512 * 1024 + (di & 1) * 4096)}"))
            sr = "s[36:39]" if form == "V" else "s[28:31]"
            for cb in range(2):
                for h in range(2):
                    q = 2 * cb + h
                    for i in range(4):
                        src = acc + 16 * cb + 8 * h + 2 * i
                        if form == "K" and tag in "AD":
                            out.append(lambda src=src: a.I(f"v_mul_f32 {v(src)}, s52, {v(src)}"))
                            out.append(lambda src=src: a.I(f"v_mul_f32 {v(src + 1)}, s52, {v(src + 1)}"))
                        out.append(lambda src=src, q=q, i=i: a.I(
                            f"v_cvt_pk_bf16_f32 {v(PK + 4 * q + i)}, {v(src)}, {v(src + 1)}"))
                    out.append(lambda q=q: vm.issue(
                        f"buffer_store_dwordx4 {v(PK + 4 * q, 4)}, v48, {sr}, s{so} offen offset:{q * 1024}", ("S", pp)))
            return out

        st()
        readA(0)
        sync(0)
        st()
        for i in range(LOOK - 2):
            reads(i)
        lg.wait(("A", 0))
        for i in range(LOOK - 2, LOOK):
            reads(i)
        pend = []
        for i in range(NM):
            c, r = divmod(i, 16)
            t, cb = divmod(r, 2)
            pp, kc = divmod(c, 4)
            k = 8 * kc + t
            if i % 2 == 0:
                lg.wait([("W", i), ("W", i + 1), ("A", i // 8)])
            if pp == 0 and i % 8 == 0 and i // 8 + 3 < (11 if restage else 8):
                dmaA(i // 8 + 3)
            if restage and 72 < i <= 128 + 8 and i % 8 == 4:
                jj = 8 + (i - 76) // 8
                lg.wait(("A", jj))
                if jj + 3 < 16:
                    dmaA(jj + 3)
            acc = v(ACC + 32 * (pp & 1) + 16 * cb, 16)
            wf = v(RING + 4 * (i % LOOK), 4)
            af = v(AF + 4 * k, 4)
            cin = "0" if k == 0 else acc
            if passes[pp][0] == "V":
                a.I(f"{MF} {acc}, {af}, {wf}, {cin}")
            else:
                a.I(f"{MF} {acc}, {wf}, {af}, {cin}")
            j = i + LOOK
            if j < NM:
                if j % 16 == 0:
                    sync(j // 16)
                if j < 64 and j % 8 == 0:
                    readA(j // 8)
                reads(j)
            if restage and 64 <= i < 128 and i % 8 == 7:
                readA(8 + (i - 64) // 8)
            if i % 64 == 63:
                st()
            if i % 64 == 6 and pp >= 1:
                pend = epi(pp - 1)
            if pend:
                pend.pop(0)()
        a.I("s_nop 11")
        for f in epi(NP - 1):
            f()
        st.dump(16, 14)
        a.I("s_endpgm")

    body([("K", None, i) for i in range(6)], "A")
    a.label(N + "_B")
    body([("V", None, i) for i in range(6)], "B")
    a.label(N + "_C")
    body([("K", None, i) for i in range(4)] + [("V", 0, 0), ("V", 1, 0)], "C")
    a.label(N + "_D")
    body([("V", 62, 0), ("V", 63, 0)] + [("K", None, i) for i in range(4)], "D")
    kend(a, N)
    return a, N, (256, 512, 163840)


def gen_attn():
    a = Asm()
    N = "attn_kernel"
    O, Q, S, P, NEGM, RING = 64, 128, [160, 176], [192, 200], 208, 224
    L16, VKA, VVA, VL, VLS, E, VDA, VDB, QREL, T0, T1, T2, NINF = 1, 2, 3, 4, 5, 6, 10, 11, 12, 13, 14, 15, 48
    PK = 16
    sW, sH, sP, sN, sC, sPH, sTHR, sBAR, sKO, sKM, sVM, sQS = 16, 17, 18, 19, 20, 21, 40, 41, 42, 43, 44, 45
    kstart(a, N, 256)
    a.I("s_load_dwordx2 s[4:5], s[0:1], 88")
    a.I("v_lshrrev_b32 v1, 6, v0")
    a.I("v_and_b32 v0, 63, v0")
    a.I("s_and_b32 s6, s2, 7")
    a.I(f"v_readfirstlane_b32 {s(sW)}, v1")
    a.I("s_lshr_b32 s7, s2, 3")
    a.I("s_and_b32 s8, s7, 3")
    a.I("s_lshl_b32 s6, s6, 2")
    a.I(f"s_add_u32 {s(sH)}, s6, s8")
    a.I(f"s_lshr_b32 {s(sP)}, s7, 2")
    a.I(f"s_lshl_b32 s6, {s(sP)}, 2")
    a.I(f"s_sub_u32 s7, 60, s6")
    a.I(f"s_add_u32 s7, s7, {s(sW)}")
    a.I(f"s_add_u32 s8, s6, 7")
    a.I(f"s_sub_u32 s8, s8, {s(sW)}")
    a.I(f"s_cmp_ge_u32 {s(sW)}, 4")
    a.I(f"s_cselect_b32 {s(sQS)}, s8, s7")
    a.I(f"s_add_u32 {s(sN)}, {s(sQS)}, 1")
    a.I("s_sub_u32 s9, 64, s6")
    a.I(f"s_lshr_b32 {s(sBAR)}, s9, 1")
    a.I("s_lshl_b32 s9, s9, 13")
    a.I(f"s_lshl_b32 s10, {s(sH)}, 19")
    a.I(f"v_lshlrev_b32 {v(L16)}, 4, v0")
    a.I(f"s_and_b32 s11, {s(sW)}, 3")
    a.I("s_lshl_b32 s11, s11, 11")
    a.I(f"v_add_u32 {v(VDA)}, s11, {v(L16)}")
    a.I(f"v_add_u32 {v(VDB)}, 0x2000, {v(VDA)}")
    a.I(f"v_and_b32 {v(T0)}, 31, v0")
    a.I(f"v_lshrrev_b32 {v(T1)}, 5, v0")
    a.I(f"v_lshlrev_b32 {v(T1)}, 2, {v(T1)}")
    a.I(f"v_sub_u32 {v(QREL)}, {v(T0)}, {v(T1)}")
    a.I(f"v_mov_b32 {v(NINF)}, 0xff800000")
    a.I(f"s_mov_b32 {s(sTHR)}, {f32(2.0 ** 14)}")
    a.I("s_waitcnt lgkmcnt(0)")
    srd(a, 24, 4, 5, "s9", add="s10")
    a.I(f"s_add_u32 s12, s10, {hex(WS_V - 3 * 8192)}")
    a.I(f"s_add_u32 s13, s9, {3 * 8192}")
    srd(a, 28, 4, 5, "s13", add="s12")
    srd(a, 32, 4, 5, 16 * MB, add=WS_Q)
    srd(a, 36, 4, 5, 16 * MB, add=WS_CTX)
    st = Stamper(a, "attn")
    st()
    a.I(f"s_lshl_b32 s12, {s(sQS)}, 13")
    a.I("s_add_u32 s12, s12, s10")
    a.I("s_add_u32 s13, s12, 4096")
    for t in range(8):
        a.I(f"buffer_load_dwordx4 {v(Q + 4 * t, 4)}, {v(L16)}, s[32:35], s{12 + t // 4} offen offset:{(t % 4) * 1024}")
    a.I(f"s_lshl_b32 s46, {s(sQS)}, 18")
    a.I(f"s_lshl_b32 s6, {s(sH)}, 13")
    a.I("s_add_u32 s46, s46, s6")
    a.I("s_add_u32 s47, s46, 4096")
    a.I(f"s_mov_b32 {s(sKM)}, s11")
    a.I(f"s_mov_b32 {s(sKO)}, 0")

    def dma_list(withV=True):
        l = []
        if withV:
            l += [f"s_mov_b32 m0, {s(sVM)}", None,
                  f"buffer_load_dwordx4 {v(VDA)}, s[28:31], {s(sKO)} offen lds",
                  f"buffer_load_dwordx4 {v(VDA)}, s[28:31], {s(sKO)} offen offset:1024 lds",
                  f"s_add_u32 m0, {s(sVM)}, 0x4000", None,
                  f"buffer_load_dwordx4 {v(VDB)}, s[28:31], {s(sKO)} offen lds",
                  f"buffer_load_dwordx4 {v(VDB)}, s[28:31], {s(sKO)} offen offset:1024 lds"]
        l += [f"s_mov_b32 m0, {s(sKM)}", f"s_add_u32 {s(sVM)}, {s(sKM)}, 0x2000",
              f"buffer_load_dwordx4 {v(VDA)}, s[24:27], {s(sKO)} offen lds",
              f"buffer_load_dwordx4 {v(VDA)}, s[24:27], {s(sKO)} offen offset:1024 lds",
              f"s_add_u32 m0, {s(sKM)}, 0x4000", f"s_add_u32 {s(sKM)}, {s(sKM)}, 0x8000",
              f"buffer_load_dwordx4 {v(VDB)}, s[24:27], {s(sKO)} offen lds",
              f"buffer_load_dwordx4 {v(VDB)}, s[24:27], {s(sKO)} offen offset:1024 lds",
              f"s_and_b32 {s(sKM)}, {s(sKM)}, 0x1ffff",
              f"s_add_u32 {s(sKO)}, {s(sKO)}, 0x4000"]
        return l

    def emit_dma(withV=True):
        for x in dma_list(withV):
            a.I(x or "s_nop 0")

    def mask_negm():
        for j in range(16):
            a.I(f"v_cmp_le_i32 vcc, {(j & 3) + 8 * (j >> 2)}, {v(QREL)}")
            a.I("s_nop 1")
            a.I(f"v_cndmask_b32 {v(NEGM + j)}, {v(NINF)}, {v(NEGM + j)}, vcc")
        a.I("s_nop 1")

    def rowmax(Sx, dst):
        a.I(f"v_max3_f32 {v(dst)}, {v(Sx)}, {v(Sx + 1)}, {v(Sx + 2)}")
        for j in range(3, 15, 2):
            a.I(f"v_max3_f32 {v(dst)}, {v(dst)}, {v(Sx + j)}, {v(Sx + j + 1)}")
        a.I(f"v_max_f32 {v(dst)}, {v(dst)}, {v(Sx + 15)}")
        a.I(f"v_mov_b32 {v(T2)}, {v(dst)}")
        a.I("s_nop 1")
        a.I(f"v_permlane32_swap_b32 {v(dst)}, {v(T2)}")
        a.I(f"v_max_f32 {v(dst)}, {v(dst)}, {v(T2)}")

    def role(ld):
        R = "S" if ld else "L"
        if ld:
            emit_dma(withV=False)
            emit_dma()
        for j in range(16):
            a.I(f"v_mov_b32 {v(NEGM + j)}, 0")
        a.I(f"s_cmp_lg_u32 {s(sN)}, 1")
        a.I(f"s_cbranch_scc1 {N}_{R}_nm1")
        mask_negm()
        a.label(f"{N}_{R}_nm1")
        for j in range(64):
            a.I(f"v_mov_b32 {v(O + j)}, 0")
        for j in range(8):
            a.I(f"v_mov_b32 {v(P[1] + j)}, 0")
        a.I(f"v_mov_b32 {v(VL)}, 0")
        a.I(f"v_mov_b32 {v(VLS)}, 0")
        a.I(f"v_mov_b32 {v(VKA)}, {v(L16)}")
        a.I(f"v_mov_b32 {v(VVA)}, {v(L16)}")
        a.I(f"s_waitcnt vmcnt({6 if ld else 0})")
        a.I("s_barrier")
        st()
        for t in range(8):
            a.I(f"ds_read_b128 {v(RING + 4 * t, 4)}, {v(L16)} offset:{t * 1024}")
        dl = [x or "s_nop 0" for x in dma_list()] if ld else []
        for t in range(8):
            if t % 4 == 0:
                a.I("s_waitcnt lgkmcnt(4)")
            a.I(f"{MF} {v(S[0], 16)}, {v(RING + 4 * t, 4)}, {v(Q + 4 * t, 4)}, {v(NEGM if t == 0 else S[0], 16)}")
            a.I(f"ds_read_b128 {v(RING + 4 * t, 4)}, {v(L16)} offset:{16384 + t * 1024}")
            for x in dl[:3]:
                a.I(x)
            dl = dl[3:]
        assert not dl
        if ld:
            emit_dma()
        else:
            a.I("s_nop 11")
        rowmax(S[0], T0)
        for j in range(16):
            a.I(f"v_sub_f32 {v(S[0] + j)}, {v(S[0] + j)}, {v(T0)}")
        for j in range(16):
            a.I(f"v_sub_f32 {v(NEGM + j)}, 0, {v(T0)}")
        a.I(f"s_mov_b32 {s(sPH)}, 0")
        a.I(f"s_sub_u32 {s(sC)}, {s(sN)}, 3")
        a.I(f"s_cbranch_scc0 {N}_{R}_it0")
        a.I(f"s_mov_b32 {s(sPH)}, 1")
        a.I(f"s_sub_u32 {s(sC)}, {s(sN)}, 1")
        a.I(f"s_cmp_lg_u32 {s(sN)}, 2")
        a.I(f"s_cbranch_scc1 {N}_{R}_it0")
        mask_negm()

        def iteration(par):
            gaps = [[] for _ in range(16)]
            pre = [[] for _ in range(16)]
            mf = []
            Sc, Sn, Pc, Pp = S[par], S[1 - par], P[par], P[1 - par]
            e = lambda j: v(E + (j & 3))
            for pos in range(16):
                r = v(RING + 4 * (pos & 7), 4)
                if pos < 8:
                    mf.append(f"{MF} {v(Sn, 16)}, {r}, {v(Q + 4 * pos, 4)}, {v(NEGM if pos == 0 else Sn, 16)}")
                    ks, dt = divmod(pos, 4)
                    gaps[pos].append(f"ds_read_b128 {r}, {v(VVA)} offset:{8192 + par * 16384 + (2 * dt + ks) * 1024}")
                else:
                    ks, dt = divmod(pos - 8, 4)
                    mf.append(f"{MF} {v(O + 16 * dt, 16)}, {r}, {v(Pp + 4 * ks, 4)}, {v(O + 16 * dt, 16)}")
                    gaps[pos].append(f"ds_read_b128 {r}, {v(VKA)} offset:{par * 16384 + (pos - 8) * 1024}")
                if pos % 4 == 0:
                    pre[pos].append("s_waitcnt lgkmcnt(4)")
            gaps[0] += [f"v_add_f32 {v(VL)}, {v(VL)}, {v(VLS)}", f"v_exp_f32 {e(0)}, {v(Sc)}", f"v_exp_f32 {e(1)}, {v(Sc + 1)}"]
            for g in range(1, 16):
                if g < 15:
                    gaps[g].append(f"v_exp_f32 {e(g + 1)}, {v(Sc + g + 1)}")
                if g == 1:
                    gaps[g].append(f"v_add_f32 {v(VLS)}, {e(0)}, {e(1)}")
                else:
                    gaps[g].append(f"v_add_f32 {v(VLS)}, {v(VLS)}, {e(g)}")
                if g % 2 == 1:
                    gaps[g].append(f"v_cvt_pk_bf16_f32 {v(Pc + g // 2)}, {e(g - 1)}, {e(g)}")
            if par == 0:
                gaps[2].append(f"v_add_u32 {v(VKA)}, 0x8000, {v(VKA)}")
                gaps[6].append(f"v_and_b32 {v(VKA)}, 0x1ffff, {v(VKA)}")
                bar = ["s_barrier", f"s_sub_u32 {s(sBAR)}, {s(sBAR)}, 1"]
                if ld:
                    bar = ["s_waitcnt vmcnt(14)"] + bar
                gaps[4] = bar + gaps[4]
                if ld:
                    d = [x for x in dma_list() if x]
                    m0a, l1, l2, m0b, l3, l4, m0c, svm, l5, l6, m0d, skm, l7, l8, sand, sko = d
                    gaps[5] = [m0a] + gaps[5] + [l1]
                    gaps[6] += [l2, m0b]
                    gaps[7] += [l3]
                    gaps[8] += [l4, m0c]
                    gaps[9] += [svm, l5]
                    gaps[10] += [l6, m0d]
                    gaps[11] += [l7]
                    gaps[12] += [l8, skm]
                    gaps[13] += [sand, sko]
            else:
                gaps[10].append(f"v_mov_b32 {v(VVA)}, {v(VKA)}")
            gaps[14].append(f"s_sub_u32 {s(sC)}, {s(sC)}, 1")
            gaps[15].append(f"v_cmp_nge_f32 vcc, {s(sTHR)}, {v(VLS)}")
            for pos in range(16):
                a.many(pre[pos])
                a.I(mf[pos])
                a.many(gaps[pos])
            a.I(f"s_cbranch_vccnz {N}_{R}_slow{par}")
            a.label(f"{N}_{R}_back{par}")
            a.I(f"s_cbranch_scc1 {N}_{R}_spec{par}")

        a.label(f"{N}_{R}_it0")
        iteration(0)
        a.label(f"{N}_{R}_it1")
        iteration(1)
        a.I(f"s_branch {N}_{R}_it0")

        def svc():
            lab = a.uid(f"{N}_{R}_svc")
            a.I(f"s_cmp_eq_u32 {s(sBAR)}, 0")
            a.I(f"s_cbranch_scc1 {lab}")
            if ld:
                a.I("s_waitcnt vmcnt(14)")
            a.I("s_barrier")
            a.I(f"s_sub_u32 {s(sBAR)}, {s(sBAR)}, 1")
            if ld:
                emit_dma()
            a.label(lab)

        for par in range(2):
            Sc, Sn, Pc = S[par], S[1 - par], P[par]
            a.label(f"{N}_{R}_slow{par}")
            a.I("s_nop 15")
            rowmax(Sc, T0)
            a.I(f"v_max_f32 {v(T0)}, 0, {v(T0)}")
            a.I(f"v_exp_f32_e64 {v(T1)}, -{v(T0)}")
            for j in range(16):
                a.I(f"v_sub_f32 {v(NEGM + j)}, {v(NEGM + j)}, {v(T0)}")
                a.I(f"v_sub_f32 {v(Sc + j)}, {v(Sc + j)}, {v(T0)}")
                a.I(f"v_sub_f32 {v(Sn + j)}, {v(Sn + j)}, {v(T0)}")
            for j in range(64):
                a.I(f"v_mul_f32 {v(O + j)}, {v(O + j)}, {v(T1)}")
            a.I(f"v_mul_f32 {v(VL)}, {v(VL)}, {v(T1)}")
            a.I(f"v_mov_b32 {v(VLS)}, 0")
            for i in range(8):
                a.I(f"v_exp_f32 {v(E)}, {v(Sc + 2 * i)}")
                a.I(f"v_exp_f32 {v(E + 1)}, {v(Sc + 2 * i + 1)}")
                a.I("s_nop 0")
                a.I(f"v_add_f32 {v(VLS)}, {v(VLS)}, {v(E)}")
                a.I(f"v_add_f32 {v(VLS)}, {v(VLS)}, {v(E + 1)}")
                a.I(f"v_cvt_pk_bf16_f32 {v(Pc + i)}, {v(E)}, {v(E + 1)}")
            a.I("s_nop 1")
            a.I(f"s_branch {N}_{R}_back{par}")
            a.label(f"{N}_{R}_spec{par}")
            a.I(f"s_cmp_lg_u32 {s(sPH)}, 0")
            a.I(f"s_cbranch_scc1 {N}_{R}_exit{par}")
            a.I(f"s_mov_b32 {s(sPH)}, 1")
            a.I(f"s_mov_b32 {s(sC)}, 1")
            mask_negm()
            a.I(f"s_branch {N}_{R}_it{1 - par}")
            a.label(f"{N}_{R}_exit{par}")
            a.I("s_waitcnt lgkmcnt(0)")
            for pos in range(8):
                ks, dt = divmod(pos, 4)
                a.I(f"ds_read_b128 {v(RING + 4 * pos, 4)}, {v(VVA)} offset:{8192 + (1 - par) * 16384 + (2 * dt + ks) * 1024}")
            a.I(f"v_add_f32 {v(VL)}, {v(VL)}, {v(VLS)}")
            for pos in range(8):
                ks, dt = divmod(pos, 4)
                a.I(f"s_waitcnt lgkmcnt({7 - pos})")
                a.I(f"{MF} {v(O + 16 * dt, 16)}, {v(RING + 4 * pos, 4)}, {v(Pc + 4 * ks, 4)}, {v(O + 16 * dt, 16)}")
            if par == 0:
                a.I(f"s_branch {N}_{R}_epi")
        a.label(f"{N}_{R}_epi")
        st()
        svc()
        a.I(f"v_mov_b32 {v(T2)}, {v(VL)}")
        a.I("s_nop 1")
        a.I(f"v_permlane32_swap_b32 {v(VL)}, {v(T2)}")
        a.I(f"v_add_f32 {v(VL)}, {v(VL)}, {v(T2)}")
        a.I(f"v_rcp_f32 {v(T0)}, {v(VL)}")
        a.I("s_nop 7")
        for dt in range(4):
            for h in range(2):
                q = 2 * dt + h
                for i in range(4):
                    src = O + 16 * dt + 8 * h + 2 * i
                    a.I(f"v_mul_f32 {v(src)}, {v(src)}, {v(T0)}")
                    a.I(f"v_mul_f32 {v(src + 1)}, {v(src + 1)}, {v(T0)}")
                    a.I(f"v_cvt_pk_bf16_f32 {v(PK + 4 * q + i)}, {v(src)}, {v(src + 1)}")
                a.I(f"buffer_store_dwordx4 {v(PK + 4 * q, 4)}, {v(L16)}, s[36:39], s{46 + q // 4} offen offset:{(q % 4) * 1024}")
            if dt == 1:
                svc()
        if ld:
            a.label(f"{N}_{R}_tail")
            a.I(f"s_cmp_eq_u32 {s(sBAR)}, 0")
            a.I(f"s_cbranch_scc1 {N}_{R}_done")
            a.I("s_waitcnt vmcnt(14)")
            a.I("s_barrier")
            a.I(f"s_sub_u32 {s(sBAR)}, {s(sBAR)}, 1")
            emit_dma()
            a.I(f"s_branch {N}_{R}_tail")
            a.label(f"{N}_{R}_done")
        n0 = st.n
        st.dump(sW, 4, tmpv=T0)
        st.n = n0 - 2
        a.I("s_endpgm")

    a.I(f"s_cmp_ge_u32 {s(sW)}, 4")
    a.I(f"s_cbranch_scc1 {N}_short")
    role(False)
    a.label(f"{N}_short")
    role(True)
    kend(a, N)
    return a, N, (256, 512, 131072)


def oproj_body(a, N, st):
    ACC, CR, AFR = 64, 128, 192
    DEPTH = 8
    L16, L16B, VD0, VD1, TB = 1, 2, 3, 4, 5
    a.I("s_and_b32 s10, s2, 7")
    a.I("s_lshr_b32 s11, s2, 3")
    a.I("s_and_b32 s12, s11, 3")
    a.I("s_lshl_b32 s10, s10, 2")
    a.I("s_add_u32 s17, s10, s12")
    a.I("s_lshr_b32 s18, s11, 2")
    a.I(f"v_lshlrev_b32 {v(L16)}, 4, v0")
    a.I(f"v_add_u32 {v(L16B)}, 0x40000, {v(L16)}")
    a.I("v_lshrrev_b32 v8, 3, v0")
    a.I("v_lshlrev_b32 v8, 10, v8")
    a.I("v_bfe_u32 v9, v0, 4, 1")
    a.I("v_lshlrev_b32 v10, 2, v9")
    a.I("v_and_b32 v11, 7, v0")
    a.I("v_xor_b32 v10, v10, v11")
    a.I(f"v_lshl_add_u32 {v(VD0)}, v10, 4, v8")
    a.I("s_lshl_b32 s10, s18, 7")
    a.I(f"v_add_u32 {v(VD0)}, s10, {v(VD0)}")
    a.I(f"v_add_u32 {v(VD1)}, {8192 - 1024}, {v(VD0)}")
    a.I("v_lshrrev_b32 v8, 5, v0")
    a.I("v_bfe_u32 v10, v0, 2, 2")
    a.I("v_lshl_add_u32 v8, v8, 2, v10")
    a.I(f"v_lshlrev_b32 {v(TB)}, 7, v8")
    a.I(f"v_lshl_add_u32 {v(TB)}, v9, 5, {v(TB)}")
    a.I("v_and_b32 v10, 3, v0")
    a.I(f"v_lshl_add_u32 {v(TB)}, v10, 3, {v(TB)}")
    a.I("v_bfe_u32 v10, v0, 3, 1")
    a.I(f"v_lshl_add_u32 {v(TB)}, v10, 6, {v(TB)}")
    a.I("s_lshl_b32 s19, s16, 14")
    a.I(f"v_add_u32 {v(TB)}, s19, {v(TB)}")
    a.I(f"v_xor_b32 {v(TB + 1)}, 64, {v(TB)}")
    a.I("s_lshl_b32 s40, s17, 19")
    a.I("s_lshl_b32 s10, s16, 16")
    a.I("s_add_u32 s40, s40, s10")
    a.I("s_lshl_b32 s41, s16, 20")
    a.I("s_waitcnt lgkmcnt(0)")
    srd(a, 20, 4, 5, 16 * MB, add=WS_CTX)
    srd(a, 24, 6, 7, 4 * MB)
    srd(a, 28, 8, 9, 4 * MB)
    vm, lg = VM(a), LG(a)
    st()

    def loads(g):
        sl = g % DEPTH
        a.I(f"s_add_u32 m0, s19, {sl * 2048}")
        a.I(f"s_add_u32 s42, s41, {hex(g * 16384)}")
        vm.issue(f"buffer_load_dwordx4 {v(VD0)}, s[24:27], s42 offen lds", g)
        vm.issue(f"buffer_load_dwordx4 {v(VD1)}, s[24:27], s42 offen offset:1024 lds", g)
        if g % 4 == 0:
            a.I(f"s_add_u32 s43, s40, {hex(g * 1024)}")
        vm.issue(f"buffer_load_dwordx4 {v(CR + 8 * sl, 4)}, {v(L16)}, s[20:23], s43 offen offset:{(g % 4) * 1024}", g)
        vm.issue(f"buffer_load_dwordx4 {v(CR + 8 * sl + 4, 4)}, {v(L16B)}, s[20:23], s43 offen offset:{(g % 4) * 1024}", g)

    def trs(g):
        sl = g % DEPTH
        vm.wait(g)
        for cb in range(2):
            d = AFR + 8 * (g & 1) + 4 * cb
            lg.issue(f"ds_read_b64_tr_b16 {v(d, 2)}, {v(TB + cb)} offset:{sl * 2048}", g)
            lg.issue(f"ds_read_b64_tr_b16 {v(d + 2, 2)}, {v(TB + cb)} offset:{sl * 2048 + 1024}", g)

    for g in range(DEPTH):
        loads(g)
    st()
    trs(0)
    st()
    for g in range(64):
        if g + 1 < 64:
            trs(g + 1)
        lg.wait(g)
        sl = g % DEPTH
        for qt in range(2):
            for cb in range(2):
                acc = v(ACC + 16 * (2 * qt + cb), 16)
                a.I(f"{MF} {acc}, {v(AFR + 8 * (g & 1) + 4 * cb, 4)}, {v(CR + 8 * sl + 4 * qt, 4)}, {'0' if g == 0 else acc}")
        if g + DEPTH < 64:
            loads(g + DEPTH)
    st()
    a.I(f"v_add_u32 v8, s19, {v(L16)}")
    a.I("s_nop 11")
    for tl in range(4):
        for jq in range(4):
            a.I(f"ds_write_b128 v8, {v(ACC + 16 * tl + 4 * jq, 4)} offset:{(tl * 4 + jq) * 1024}")
    a.I("v_lshrrev_b32 v9, 5, v0")
    a.I("v_and_b32 v10, 31, v0")
    a.I("v_lshlrev_b32 v10, 4, v10")
    a.I("v_lshl_add_u32 v9, v9, 13, v10")
    a.I("s_lshl_b32 s10, s16, 11")
    a.I("v_add_u32 v9, s10, v9")
    a.I("s_lshl_b32 s11, s17, 17")
    a.I("s_lshl_b32 s12, s18, 7")
    a.I("s_add_u32 s11, s11, s12")
    a.I("s_lshl_b32 s12, s16, 5")
    a.I("s_add_u32 s11, s11, s12")
    a.I("v_lshlrev_b32 v10, 11, v0")
    a.I("s_waitcnt lgkmcnt(0)")
    return ACC


def oproj_finish(a, ACC):
    for pw in range(4):
        for i in range(4):
            jq, hl = divmod(i, 2)
            a.I(f"ds_read_b128 {v(ACC + 16 * pw + 4 * i, 4)}, v9 offset:{pw * 16384 + jq * 1024 + hl * 512}")
        if pw == 1:
            a.I("s_waitcnt lgkmcnt(0)")
            for j in range(16):
                a.I(f"v_add_f32 {v(ACC + j)}, {v(ACC + j)}, {v(ACC + 16 + j)}")
    a.I("s_waitcnt lgkmcnt(0)")
    for j in range(16):
        a.I(f"v_add_f32 {v(ACC + 32 + j)}, {v(ACC + 32 + j)}, {v(ACC + 48 + j)}")
    for j in range(16):
        a.I(f"v_add_f32 {v(ACC + j)}, {v(ACC + j)}, {v(ACC + 32 + j)}")
    for i in range(8):
        a.I(f"v_cvt_pk_bf16_f32 {v(12 + i)}, {v(ACC + 2 * i)}, {v(ACC + 2 * i + 1)}")
    a.I("buffer_store_dwordx4 v[12:15], v10, s[28:31], s11 offen")
    a.I("buffer_store_dwordx4 v[16:19], v10, s[28:31], s11 offen offset:16")


def gen_oproj():
    a = Asm()
    N = "oproj_kernel"
    kstart(a, N, 256)
    a.I("s_load_dwordx2 s[4:5], s[0:1], 88")
    a.I("s_load_dwordx2 s[6:7], s[0:1], 40")
    a.I("s_load_dwordx2 s[8:9], s[0:1], 72")
    a.I("v_lshrrev_b32 v1, 6, v0")
    a.I("v_and_b32 v0, 63, v0")
    a.I("s_nop 0")
    a.I("v_readfirstlane_b32 s16, v1")
    a.I("s_nop 0")
    st = Stamper(a, "oproj")
    ACC = oproj_body(a, N, st)
    a.I("s_barrier")
    oproj_finish(a, ACC)
    st.dump(16, 4, tmpv=8)
    kend(a, N)
    return a, N, (256, 256, 65536)


def PERMC(j):
    return 8 * (j >> 2) + (j & 3)


def gen_mat(a, dst, nf, base, consts, tmp):
    n = len(consts)
    for i in range(0, n, 4):
        for q in range(4):
            a.I(f"v_fmamk_f32 {v(tmp + q)}, {v(nf)}, {f32(float(consts[i + q]))}, {v(base)}")
        for q in range(4):
            a.I(f"v_cos_f32 {v(tmp + q)}, {v(tmp + q)}")
        a.I("s_nop 0")
        for q in range(2):
            a.I(f"v_cvt_pk_bf16_f32 {v(dst + i // 2 + q)}, {v(tmp + 2 * q)}, {v(tmp + 2 * q + 1)}")


def twiddle(a, Dr, Di, regs, nf, base, consts, sign, tmp):
    for x, c in enumerate(consts):
        A, C, S_, U = tmp, tmp + 1, tmp + 2, tmp + 3
        a.I(f"v_fmamk_f32 {v(A)}, {v(nf)}, {f32(float(c))}, {v(base)}")
        a.I(f"v_cos_f32 {v(C)}, {v(A)}")
        a.I(f"v_sin_f32 {v(S_)}, {v(A)}")
        a.I("s_nop 0")
        for j in regs[x]:
            ng = "-" if sign > 0 else ""
            ps = "" if sign > 0 else "-"
            a.I(f"v_mul_f32 {v(U)}, {v(Dr + j)}, {v(S_)}")
            a.I(f"v_mul_f32 {v(Dr + j)}, {v(Dr + j)}, {v(C)}")
            a.I(f"v_fma_f32 {v(Dr + j)}, {ng}{v(Di + j)}, {v(S_)}, {v(Dr + j)}")
            a.I(f"v_fma_f32 {v(Di + j)}, {v(Di + j)}, {v(C)}, {ps}{v(U)}")


def pack(a, dst, src, n):
    for i in range(n):
        a.I(f"v_cvt_pk_bf16_f32 {v(dst + i)}, {v(src + 2 * i)}, {v(src + 2 * i + 1)}")


def b_decode(a):
    a.I("s_and_b32 s20, s2, 7")
    a.I("s_lshl_b32 s20, s20, 3")
    a.I("s_bfe_u32 s22, s2, 0x30003")
    a.I("s_or_b32 s20, s20, s22")
    a.I("s_lshr_b32 s21, s2, 6")


def gen_b1():
    a = Asm()
    N = "b1_kernel"
    kstart(a, N, 256)
    a.I("s_load_dwordx2 s[4:5], s[0:1], 88")
    a.I("s_load_dwordx4 s[8:11], s[0:1], 48")
    a.I("s_load_dwordx2 s[12:13], s[0:1], 64")
    a.I("v_lshrrev_b32 v1, 6, v0")
    a.I("v_and_b32 v2, 255, v0")
    a.I("v_and_b32 v0, 63, v0")
    a.I("v_readfirstlane_b32 s16, v1")
    b_decode(a)
    a.I("s_lshr_b32 s23, s21, 1")
    a.I("s_lshl_b32 s23, s23, 11")
    a.I("s_lshr_b32 s24, s20, 5")
    a.I("s_lshl_b32 s24, s24, 10")
    a.I("s_add_u32 s23, s23, s24")
    a.I("s_and_b32 s24, s20, 31")
    a.I("s_lshl_b32 s24, s24, 4")
    a.I("s_add_u32 s23, s23, s24")
    a.I("s_and_b32 s24, s21, 1")
    a.I("s_lshl_b32 s24, s24, 9")
    a.I("s_add_u32 s23, s23, s24")
    a.I("s_add_u32 s24, s23, 4096")
    a.I("v_lshlrev_b32 v3, 13, v2")
    a.I("s_cmp_ge_u32 s16, 4")
    a.I("s_waitcnt lgkmcnt(0)")
    a.I(f"s_cbranch_scc1 {N}_filt")
    srd(a, 28, 8, 9, 2 * MB)
    srd(a, 32, 4, 5, 257 * 8192, add=WS_Y)
    a.I("s_lshr_b32 s25, s21, 1")
    a.I("s_lshl_b32 s25, s25, 4")
    a.I("s_and_b32 s26, s21, 1")
    a.I("s_lshl_b32 s26, s26, 2")
    a.I("s_add_u32 s25, s25, s26")
    a.I("s_lshr_b32 s26, s16, 1")
    a.I("s_lshl_b32 s26, s26, 3")
    a.I("s_add_u32 s25, s25, s26")
    a.I("s_and_b32 s26, s16, 1")
    a.I("s_lshl_b32 s26, s26, 1")
    a.I("s_add_u32 s25, s25, s26")
    a.I("s_lshl_b32 s25, s25, 6")
    a.I("s_add_u32 s25, s25, s20")
    a.I("s_lshl_b32 s25, s25, 10")
    a.I(f"s_add_u32 s26, s25, {65536 - 1024}")
    a.I("s_lshl_b32 s27, s16, 11")
    a.I("s_mov_b32 m0, s27")
    a.I("v_lshlrev_b32 v4, 4, v0")
    a.I("buffer_load_dwordx4 v4, s[28:31], s25 offen lds")
    a.I("buffer_load_dwordx4 v4, s[28:31], s26 offen offset:1024 lds")
    HL, NF, BS, TM = 5, 6, 7, 8
    C32, NS32, AR, AI, XF, D1R, D1I, TR, TI, D2 = 16, 24, 32, 36, 40, 48, 64, 80, 88, 96
    a.I(f"v_lshrrev_b32 {v(HL)}, 5, v0")
    a.I(f"v_cvt_f32_u32 {v(HL)}, {v(HL)}")
    a.I("v_and_b32 v12, 31, v0")
    a.I("v_cvt_f32_u32 v12, v12")
    a.I(f"v_mul_f32 {v(NF)}, {f32(1 / 32)}, v12")
    a.I(f"v_mul_f32 {v(BS)}, {v(NF)}, {v(HL)}")
    a.I(f"v_mul_f32 {v(BS)}, {f32(8.0)}, {v(BS)}")
    nat = [16 * t + j for t in range(2) for j in range(8)]
    gen_mat(a, C32, NF, BS, nat, TM)
    a.I(f"v_add_f32 {v(BS)}, {f32(0.25)}, {v(BS)}")
    gen_mat(a, NS32, NF, BS, nat, TM)
    a.I("v_and_b32 v13, 15, v0")
    a.I("v_cvt_f32_u32 v13, v13")
    a.I(f"v_mul_f32 {v(NF)}, {f32(1 / 16)}, v13")
    a.I("v_bfe_u32 v13, v0, 4, 1")
    a.I("v_cvt_f32_u32 v13, v13")
    a.I(f"v_mul_f32 {v(BS)}, {v(NF)}, {v(HL)}")
    a.I(f"v_mul_f32 {v(BS)}, 4.0, {v(BS)}")
    a.I(f"v_fmamk_f32 {v(BS)}, v13, {f32(0.25)}, {v(BS)}")
    pc = [PERMC(j) for j in range(8)]
    gen_mat(a, AR, NF, BS, pc, TM)
    a.I(f"v_add_f32 {v(BS)}, {f32(-0.25)}, {v(BS)}")
    gen_mat(a, AI, NF, BS, pc, TM)
    a.I("v_bfe_u32 v13, v0, 4, 1")
    a.I("v_lshlrev_b32 v13, 10, v13")
    a.I("v_lshrrev_b32 v14, 5, v0")
    a.I("v_lshl_add_u32 v13, v14, 8, v13")
    a.I("v_and_b32 v15, 15, v0")
    a.I("v_lshl_add_u32 v13, v15, 3, v13")
    a.I("v_add_u32 v13, s27, v13")
    a.I("s_waitcnt vmcnt(0)")
    for t in range(2):
        for h in range(2):
            a.I(f"ds_read_b64_tr_b16 {v(XF + 4 * t + 2 * h, 2)}, v13 offset:{t * 512 + h * 128}")
    a.I(f"v_mul_f32 {v(NF)}, {f32(1 / 512)}, v12")
    a.I(f"v_mul_f32 {v(BS)}, {v(NF)}, {v(HL)}")
    a.I(f"v_mul_f32 {v(BS)}, 4.0, {v(BS)}")
    a.I("s_waitcnt lgkmcnt(0)")
    for t in range(2):
        a.I(f"{MF} {v(D1R, 16)}, {v(XF + 4 * t, 4)}, {v(C32 + 4 * t, 4)}, {'0' if t == 0 else v(D1R, 16)}")
    for t in range(2):
        a.I(f"{MF} {v(D1I, 16)}, {v(XF + 4 * t, 4)}, {v(NS32 + 4 * t, 4)}, {'0' if t == 0 else v(D1I, 16)}")
    a.I("v_and_b32 v15, 31, v0")
    a.I("v_lshlrev_b32 v15, 4, v15")
    a.I("v_lshl_add_u32 v15, v14, 11, v15")
    a.I("s_lshl_b32 s25, s16, 2")
    a.I("s_add_u32 s25, s25, 8192")
    a.I("v_add_u32 v15, s25, v15")
    a.I("s_nop 7")
    twiddle(a, D1R, D1I, [[j, j + 8] for j in range(8)], NF, BS, pc, -1, TM)
    pack(a, TR, D1R, 8)
    pack(a, TI, D1I, 8)
    a.I("s_nop 1")
    for r in range(2):
        a.I(f"{MF} {v(D2 + 16 * r, 16)}, {v(AR, 4)}, {v(TR + 4 * r, 4)}, 0")
        a.I(f"{MF} {v(D2 + 16 * r, 16)}, {v(AI, 4)}, {v(TI + 4 * r, 4)}, {v(D2 + 16 * r, 16)}")
    a.I("s_nop 11")
    for c in range(2):
        for j in range(5):
            a.I(f"v_cvt_pk_bf16_f32 {v(TR + 5 * c + j)}, {v(D2 + 8 * c + j)}, {v(D2 + 16 + 8 * c + j)}")
    for c in range(2):
        for j in range(4):
            a.I(f"ds_write_b32 v15, {v(TR + 5 * c + j)} offset:{(c * 8 + j) * 512}")
    a.I("v_cmp_eq_u32 vcc, 0, v0")
    a.I("s_and_saveexec_b64 s[36:37], vcc")
    for c in range(2):
        a.I(f"ds_write_b32 v15, {v(TR + 5 * c + 4)} offset:{8192 + 16 * c}")
    a.I("s_mov_b64 exec, s[36:37]")
    a.I("v_lshlrev_b32 v14, 4, v2")
    a.I("s_waitcnt lgkmcnt(0)")
    a.I("s_barrier")
    a.I("ds_read_b128 v[16:19], v14 offset:8192")
    a.I(f"ds_read_b128 v[20:23], v14 offset:{8192 + 4096}")
    a.I(f"ds_read_b128 v[24:27], v14 offset:{8192 + 8192}")
    a.I("v_lshlrev_b32 v13, 12, v2")
    a.I(f"v_add_u32 v13, {256 * 8192}, v13")
    a.I("s_waitcnt lgkmcnt(0)")
    a.I("buffer_store_dwordx4 v[16:19], v3, s[32:35], s23 offen")
    a.I("buffer_store_dwordx4 v[20:23], v3, s[32:35], s24 offen")
    a.I("v_cmp_gt_u32 vcc, 2, v2")
    a.I("s_and_saveexec_b64 s[36:37], vcc")
    a.I(f"s_cbranch_execz {N}_end")
    a.I("buffer_store_dwordx4 v[24:27], v13, s[32:35], s23 offen")
    a.I("s_endpgm")
    a.label(f"{N}_filt")
    srd(a, 28, 10, 11, 2048 * 514)
    srd(a, 32, 12, 13, 2048 * 514)
    srd(a, 36, 4, 5, 257 * 8192, add=WS_WF)
    a.I("s_lshr_b32 s25, s21, 1")
    a.I("s_lshl_b32 s25, s25, 5")
    a.I("s_lshr_b32 s26, s20, 5")
    a.I("s_lshl_b32 s26, s26, 4")
    a.I("s_add_u32 s25, s25, s26")
    a.I("s_and_b32 s26, s21, 1")
    a.I("s_lshl_b32 s26, s26, 2")
    a.I("s_add_u32 s25, s25, s26")
    a.I("s_lshl_b32 s25, s25, 5")
    a.I("s_and_b32 s26, s20, 31")
    a.I("s_add_u32 s25, s25, s26")
    a.I("s_mul_i32 s25, s25, 514")
    for j in range(8):
        a.I(f"s_add_u32 s{40 + j}, s25, {PERMC(j) * 32 * 514}")
    a.I("v_lshlrev_b32 v4, 1, v2")
    a.I("v_mov_b32 v5, 512")
    for q, va in enumerate((4, 5)):
        for c in range(2):
            for j in range(8):
                a.I(f"buffer_load_ushort {v(32 + 16 * q + 8 * c + j)}, {v(va)}, s[{28 + 4 * c}:{31 + 4 * c}], s{40 + j} offen")
    a.I(f"v_mov_b32 v6, {256 * 8192}")
    a.I("s_waitcnt vmcnt(16)")
    for i in range(8):
        a.I(f"v_lshl_or_b32 {v(16 + i)}, {v(33 + 2 * i)}, 16, {v(32 + 2 * i)}")
    a.I("buffer_store_dwordx4 v[16:19], v3, s[36:39], s23 offen")
    a.I("buffer_store_dwordx4 v[20:23], v3, s[36:39], s24 offen")
    a.I("v_cmp_eq_u32 vcc, 0, v2")
    a.I("s_and_saveexec_b64 s[48:49], vcc")
    a.I(f"s_cbranch_execz {N}_end")
    a.I("s_waitcnt vmcnt(2)")
    for i in range(8):
        a.I(f"v_lshl_or_b32 {v(24 + i)}, {v(49 + 2 * i)}, 16, {v(48 + 2 * i)}")
    a.I("buffer_store_dwordx4 v[24:27], v6, s[36:39], s23 offen")
    a.I("buffer_store_dwordx4 v[28:31], v6, s[36:39], s24 offen")
    kend(a, N)
    return a, N, (256, 512, 20480)


def gen_b2():
    a = Asm()
    N = "b2_kernel"
    kstart(a, N, 257)
    a.I("s_load_dwordx2 s[4:5], s[0:1], 88")
    a.I("v_lshrrev_b32 v1, 6, v0")
    a.I("v_and_b32 v0, 63, v0")
    a.I("s_lshl_b32 s20, s2, 13")
    a.I("v_readfirstlane_b32 s16, v1")
    L16, HL, NF, BS, LF, XA, XB, TM = 1, 2, 3, 4, 5, 6, 7, 8
    YR, YI, WR, WI = 16, 24, 32, 40
    C32, S32, NS32, C64, S64 = 48, 56, 64, 72, 88
    DR, DI = 104, 120
    FR, FI, FN = 136, 152, 168
    a.I(f"v_lshlrev_b32 {v(L16)}, 4, v0")
    a.I("s_lshl_b32 s21, s16, 10")
    a.I("s_add_u32 s21, s21, s20")
    a.I("s_add_u32 s22, s21, 4096")
    a.I("s_lshl_b32 s23, s16, 11")
    a.I("s_add_u32 s23, s23, s20")
    a.I("s_add_u32 s24, s23, 4096")
    a.I("s_waitcnt lgkmcnt(0)")
    srd(a, 28, 4, 5, 257 * 8192, add=WS_Y)
    srd(a, 32, 4, 5, 257 * 8192, add=WS_WF)
    srd(a, 36, 4, 5, 257 * 8192, add=WS_Z)
    for c in range(2):
        for t in range(2):
            a.I(f"buffer_load_dwordx4 {v(YR + 8 * c + 4 * t, 4)}, {v(L16)}, s[28:31], s{21 + c} offen offset:{t * 2048}")
    for c in range(2):
        for h in range(2):
            a.I(f"buffer_load_dwordx4 {v(WR + 8 * c + 4 * h, 4)}, {v(L16)}, s[32:35], s{23 + c} offen offset:{h * 1024}")
    a.I(f"s_mov_b32 s25, {f32(2.0 ** -19)}")
    a.I("s_and_b32 s26, s2, 255")
    a.I("s_cmp_eq_u32 s26, 0")
    a.I(f"s_cselect_b32 s25, {f32(2.0 ** -20)}, s25")
    a.I(f"v_lshrrev_b32 {v(HL)}, 5, v0")
    a.I(f"v_cvt_f32_u32 {v(HL)}, {v(HL)}")
    a.I(f"v_mul_f32 {v(HL)}, 4.0, {v(HL)}")
    a.I(f"v_and_b32 {v(LF)}, 31, v0")
    a.I("s_lshl_b32 s26, s16, 5")
    a.I(f"v_add_u32 v12, s26, {v(LF)}")
    a.I(f"v_cvt_f32_u32 {v(LF)}, {v(LF)}")
    a.I("v_cvt_f32_u32 v12, v12")
    pc = lambda n: [16 * t + PERMC(j) for t in range(n) for j in range(8)]
    a.I(f"v_mul_f32 {v(NF)}, {f32(1 / 32)}, {v(LF)}")
    a.I(f"v_mul_f32 {v(BS)}, {v(NF)}, {v(HL)}")
    gen_mat(a, C32, NF, BS, pc(2), TM)
    a.I(f"v_add_f32 {v(BS)}, {f32(-0.25)}, {v(BS)}")
    gen_mat(a, S32, NF, BS, pc(2), TM)
    for i in range(8):
        a.I(f"v_xor_b32 {v(NS32 + i)}, 0x80008000, {v(S32 + i)}")
    a.I(f"v_mul_f32 {v(NF)}, {f32(1 / 64)}, v12")
    a.I(f"v_mul_f32 {v(BS)}, {v(NF)}, {v(HL)}")
    gen_mat(a, C64, NF, BS, pc(4), TM)
    a.I(f"v_add_f32 {v(BS)}, {f32(-0.25)}, {v(BS)}")
    gen_mat(a, S64, NF, BS, pc(4), TM)
    a.I("s_lshl_b32 s26, s16, 12")
    a.I(f"v_add_u32 {v(XA)}, s26, {v(L16)}")
    a.I(f"v_xor_b32 {v(XB)}, 0x1000, {v(XA)}")

    def mm(D, terms):
        first = True
        for A_, B_ in terms:
            a.I(f"{MF} {v(D, 16)}, {v(A_, 4)}, {v(B_, 4)}, {'0' if first else v(D, 16)}")
            first = False

    def exchange(own, neg_of, ldsoff):
        for c, F in enumerate((FR, FI)):
            for h in range(2):
                a.I(f"ds_write_b128 {v(XA)}, {v(F + 8 * own + 4 * h, 4)} offset:{ldsoff + (2 * c + h) * 1024}")
        a.I("s_waitcnt lgkmcnt(0)")
        a.I("s_barrier")
        for c, F in enumerate((FR, FI)):
            for h in range(2):
                a.I(f"ds_read_b128 {v(F + 8 * (1 - own) + 4 * h, 4)}, {v(XB)} offset:{ldsoff + (2 * c + h) * 1024}")
        for i in range(8):
            a.I(f"v_xor_b32 {v(FN + 8 * own + i)}, 0x80008000, {v(neg_of + 8 * own + i)}")
        a.I("s_waitcnt lgkmcnt(0)")
        for i in range(8):
            a.I(f"v_xor_b32 {v(FN + 8 * (1 - own) + i)}, 0x80008000, {v(neg_of + 8 * (1 - own) + i)}")
        a.I("s_nop 1")

    def rest(own):
        jc = [(j & 3) + 8 * (j >> 2) for j in range(16)]
        a.I(f"v_mul_f32 {v(NF)}, {f32(1 / 2048)}, {v(LF)}")
        a.I(f"v_add_f32 {v(BS)}, {f32(32.0 * own)}, {v(HL)}")
        a.I(f"v_mul_f32 {v(BS)}, {v(NF)}, {v(BS)}")
        a.I("s_waitcnt vmcnt(4)")
        mm(DR, [(YR, C32), (YR + 4, C32 + 4), (YI, S32), (YI + 4, S32 + 4)])
        mm(DI, [(YI, C32), (YI + 4, C32 + 4), (YR, NS32), (YR + 4, NS32 + 4)])
        a.I("s_nop 11")
        twiddle(a, DR, DI, [[j] for j in range(16)], NF, BS, jc, -1, TM)
        pack(a, FR + 8 * own, DR, 8)
        pack(a, FI + 8 * own, DI, 8)
        exchange(own, FR, 0)
        mm(DR, [(C64 + 4 * t, FR + 4 * t) for t in range(4)] + [(S64 + 4 * t, FI + 4 * t) for t in range(4)])
        mm(DI, [(C64 + 4 * t, FI + 4 * t) for t in range(4)] + [(S64 + 4 * t, FN + 4 * t) for t in range(4)])
        a.I("s_waitcnt vmcnt(0)")
        a.I("s_nop 11")
        for j in range(16):
            wr, wi, u = TM, TM + 1, TM + 2
            if j & 1:
                a.I(f"v_and_b32 {v(wr)}, 0xffff0000, {v(WR + j // 2)}")
                a.I(f"v_and_b32 {v(wi)}, 0xffff0000, {v(WI + j // 2)}")
            else:
                a.I(f"v_lshlrev_b32 {v(wr)}, 16, {v(WR + j // 2)}")
                a.I(f"v_lshlrev_b32 {v(wi)}, 16, {v(WI + j // 2)}")
            a.I(f"v_mul_f32 {v(wr)}, s25, {v(wr)}")
            a.I(f"v_mul_f32 {v(wi)}, s25, {v(wi)}")
            a.I(f"v_mul_f32 {v(u)}, {v(DR + j)}, {v(wi)}")
            a.I(f"v_mul_f32 {v(DR + j)}, {v(DR + j)}, {v(wr)}")
            a.I(f"v_fma_f32 {v(DR + j)}, -{v(DI + j)}, {v(wi)}, {v(DR + j)}")
            a.I(f"v_fma_f32 {v(DI + j)}, {v(DI + j)}, {v(wr)}, {v(u)}")
        pack(a, FR + 8 * own, DR, 8)
        pack(a, FI + 8 * own, DI, 8)
        exchange(own, FI, 8192)
        mm(DR, [(FR + 4 * t, C64 + 4 * t) for t in range(4)] + [(FN + 4 * t, S64 + 4 * t) for t in range(4)])
        mm(DI, [(FI + 4 * t, C64 + 4 * t) for t in range(4)] + [(FR + 4 * t, S64 + 4 * t) for t in range(4)])
        a.I(f"v_mul_f32 {v(NF)}, {f32(1 / 2048)}, v12")
        a.I(f"v_mul_f32 {v(BS)}, {v(NF)}, {v(HL)}")
        a.I("s_nop 11")
        twiddle(a, DR, DI, [[j] for j in range(16)], NF, BS, jc, +1, TM)
        pack(a, FR, DR, 8)
        pack(a, FI, DI, 8)
        a.I("s_nop 1")
        mm(DR, [(C32, FR), (C32 + 4, FR + 4), (NS32, FI), (NS32 + 4, FI + 4)])
        mm(DI, [(C32, FI), (C32 + 4, FI + 4), (S32, FR), (S32 + 4, FR + 4)])
        a.I("s_nop 7")
        pack(a, YR, DR, 8)
        a.I("s_nop 3")
        pack(a, YI, DI, 8)
        for c in range(2):
            for h in range(2):
                a.I(f"buffer_store_dwordx4 {v(YR + 8 * c + 4 * h, 4)}, {v(L16)}, s[36:39], s{23 + c} offen offset:{h * 1024}")
        a.I("s_endpgm")

    a.I("s_cmp_eq_u32 s16, 1")
    a.I(f"s_cbranch_scc1 {N}_w1")
    rest(0)
    a.label(f"{N}_w1")
    rest(1)
    kend(a, N)
    return a, N, (257, 128, 16384)


def gen_b3():
    a = Asm()
    N = "b3_kernel"
    kstart(a, N, 256)
    a.I("s_load_dwordx2 s[4:5], s[0:1], 88")
    a.I("s_load_dwordx2 s[6:7], s[0:1], 72")
    a.I("v_lshrrev_b32 v1, 6, v0")
    a.I("v_mov_b32 v2, v0")
    a.I("v_and_b32 v0, 63, v0")
    a.I("v_readfirstlane_b32 s16, v1")
    b_decode(a)
    a.I("s_lshr_b32 s23, s20, 5")
    a.I("s_lshl_b32 s23, s23, 11")
    a.I("s_lshl_b32 s24, s21, 9")
    a.I("s_add_u32 s23, s23, s24")
    a.I("s_and_b32 s24, s20, 31")
    a.I("s_lshl_b32 s24, s24, 4")
    a.I("s_add_u32 s23, s23, s24")
    a.I("s_add_u32 s24, s23, 4096")
    a.I("v_lshlrev_b32 v3, 13, v2")
    a.I(f"v_mov_b32 v4, {256 * 8192}")
    a.I("s_waitcnt lgkmcnt(0)")
    srd(a, 28, 4, 5, 257 * 8192, add=WS_Z)
    srd(a, 32, 6, 7, 4 * MB)
    a.I("buffer_load_dwordx4 v[16:19], v3, s[28:31], s23 offen")
    a.I("buffer_load_dwordx4 v[20:23], v3, s[28:31], s24 offen")
    a.I("buffer_load_dwordx4 v[24:27], v4, s[28:31], s23 offen")
    HL, NF, BS, AFL, TM = 5, 6, 7, 12, 8
    C32, NS32, BRE, BIM, MT, ZF, UR, UI, TR, TI = 32, 40, 48, 56, 64, 68, 80, 96, 112, 120
    a.I(f"v_lshrrev_b32 {v(HL)}, 5, v0")
    a.I(f"v_cvt_f32_u32 {v(HL)}, {v(HL)}")
    a.I("v_and_b32 v13, 31, v0")
    a.I("v_cvt_f32_u32 v13, v13")
    a.I(f"v_mul_f32 {v(NF)}, {f32(1 / 32)}, v13")
    a.I(f"v_mul_f32 {v(BS)}, {v(NF)}, {v(HL)}")
    a.I(f"v_mul_f32 {v(BS)}, 4.0, {v(BS)}")
    pc = [16 * t + PERMC(j) for t in range(2) for j in range(8)]
    gen_mat(a, C32, NF, BS, pc, TM)
    a.I(f"v_add_f32 {v(BS)}, {f32(0.25)}, {v(BS)}")
    gen_mat(a, NS32, NF, BS, pc, TM)
    a.I(f"v_and_b32 {v(AFL)}, 15, v0")
    a.I(f"v_cvt_f32_u32 {v(AFL)}, {v(AFL)}")
    a.I(f"v_mul_f32 {v(NF)}, {f32(1 / 16)}, {v(AFL)}")
    a.I(f"v_mul_f32 {v(BS)}, {f32(0.25)}, {v(HL)}")
    a.I("v_and_b32 v13, 16, v0")
    a.I("v_cmp_eq_u32 vcc, 0, v13")
    a.I("v_mov_b32 v14, 0")
    for B_, ph in ((BRE, None), (BIM, -0.25)):
        if ph:
            a.I(f"v_add_f32 {v(BS)}, {f32(ph)}, {v(BS)}")
        gen_mat(a, MT, NF, BS, list(range(8)), TM)
        for i in range(4):
            a.I(f"v_cndmask_b32 {v(B_ + i)}, v14, {v(MT + i)}, vcc")
            a.I(f"v_cndmask_b32 {v(B_ + 4 + i)}, {v(MT + i)}, v14, vcc")
    a.I("v_and_b32 v13, 31, v2")
    a.I("v_lshlrev_b32 v13, 4, v13")
    a.I("v_lshrrev_b32 v15, 5, v2")
    a.I("v_lshl_add_u32 v13, v15, 1, v13")
    a.I("v_cmp_eq_u32 vcc, 0, v2")
    a.I("v_mov_b32 v15, 8192")
    a.I("s_waitcnt vmcnt(0)")
    for i in range(4):
        a.I(f"v_cndmask_b32 {v(20 + i)}, {v(20 + i)}, v14, vcc")
    for c in range(2):
        for i in range(8):
            a.I(f"ds_write_b16{'_d16_hi' if i & 1 else ''} v13, {v(16 + 4 * c + i // 2)} offset:{i * 1024 + c * 512}")
    a.I("s_and_saveexec_b64 s[36:37], vcc")
    a.I("ds_write_b128 v15, v[24:27]")
    a.I("s_mov_b64 exec, s[36:37]")
    a.I("s_lshl_b32 s25, s16, 11")
    a.I("v_lshlrev_b32 v13, 4, v0")
    a.I("v_add_u32 v13, s25, v13")
    a.I("v_bfe_u32 v15, v0, 4, 1")
    a.I("s_lshl_b32 s25, s16, 2")
    a.I("s_add_u32 s25, s25, 8192")
    a.I("v_lshl_add_u32 v15, v15, 1, s25")
    for j in range(1, 16):
        a.I(f"v_mov_b32 {v(UR + j)}, 0")
    a.I("s_waitcnt lgkmcnt(0)")
    a.I("s_barrier")
    a.I(f"ds_read_u16 {v(UR)}, v15")
    a.I(f"ds_read_b128 {v(ZF, 4)}, v13")
    a.I(f"ds_read_b128 {v(ZF + 4, 4)}, v13 offset:1024")
    a.I("v_and_b32 v15, 1, v0")
    a.I("v_lshlrev_b32 v15, 31, v15")
    a.I("v_cmp_gt_u32 vcc, 32, v0")
    a.I(f"v_mul_f32 {v(NF)}, {f32(1 / 512)}, {v(AFL)}")
    a.I(f"v_mul_f32 {v(BS)}, {v(NF)}, {v(HL)}")
    a.I(f"v_mul_f32 {v(BS)}, 4.0, {v(BS)}")
    a.I("s_waitcnt lgkmcnt(2)")
    a.I(f"v_lshlrev_b32 {v(UR)}, 16, {v(UR)}")
    a.I(f"v_xor_b32 {v(UR)}, {v(UR)}, v15")
    a.I(f"v_cndmask_b32 {v(UR)}, v14, {v(UR)}, vcc")
    a.I("s_waitcnt lgkmcnt(0)")
    a.I("s_nop 0")
    for r in range(2):
        a.I(f"{MF} {v(UR, 16)}, {v(ZF + 4 * r, 4)}, {v(BRE + 4 * r, 4)}, {v(UR, 16)}")
    for r in range(2):
        a.I(f"{MF} {v(UI, 16)}, {v(ZF + 4 * r, 4)}, {v(BIM + 4 * r, 4)}, {'0' if r == 0 else v(UI, 16)}")
    a.I("s_lshr_b32 s25, s21, 1")
    a.I("s_lshl_b32 s25, s25, 4")
    a.I("s_and_b32 s26, s21, 1")
    a.I("s_lshl_b32 s26, s26, 2")
    a.I("s_add_u32 s25, s25, s26")
    a.I("s_lshr_b32 s26, s16, 1")
    a.I("s_lshl_b32 s26, s26, 3")
    a.I("s_add_u32 s25, s25, s26")
    a.I("s_and_b32 s26, s16, 1")
    a.I("s_lshl_b32 s26, s26, 1")
    a.I("s_add_u32 s25, s25, s26")
    a.I("s_lshl_b32 s25, s25, 6")
    a.I("s_add_u32 s25, s25, s20")
    a.I("s_lshl_b32 s25, s25, 11")
    a.I(f"s_add_u32 s26, s25, {64 * 2048}")
    jc = [(j & 3) + 8 * (j >> 2) for j in range(16)]
    twiddle(a, UR, UI, [[j] for j in range(16)], NF, BS, jc, +1, TM)
    pack(a, TR, UR, 8)
    pack(a, TI, UI, 8)
    a.I("v_and_b32 v13, 31, v0")
    a.I("v_lshlrev_b32 v13, 5, v13")
    terms = [(TR, C32), (TR + 4, C32 + 4), (TI, NS32), (TI + 4, NS32 + 4)]
    for i, (A_, B_) in enumerate(terms):
        a.I(f"{MF} {v(UR, 16)}, {v(A_, 4)}, {v(B_, 4)}, {'0' if i == 0 else v(UR, 16)}")
    a.I("v_lshrrev_b32 v15, 5, v0")
    a.I("v_lshl_add_u32 v13, v15, 4, v13")
    a.I("s_nop 9")
    pack(a, 16, UR, 8)
    a.I("s_nop 1")
    for r in range(2):
        a.I(f"v_permlane32_swap_b32 {v(16 + 4 * r)}, {v(18 + 4 * r)}")
        a.I(f"v_permlane32_swap_b32 {v(17 + 4 * r)}, {v(19 + 4 * r)}")
        a.I(f"buffer_store_dwordx4 {v(16 + 4 * r, 4)}, v13, s[32:35], s{25 + r} offen offset:1024")
    kend(a, N)
    return a, N, (256, 256, 8192 + 64)


KERNELS = [gen_b1, gen_qkv, gen_b2, gen_attn, gen_b3, gen_oproj]


def build(kernels, path):
    hdr = open(os.path.join(os.path.dirname(os.path.abspath(__file__)), "..", "cdna_kernels", NAME + ".s.ref")).read()
    head = [l for l in hdr.splitlines() if l.startswith(";") and "@launch" not in l and "Override" not in l
            and "grid=ceil" not in l]
    txt = []
    launches = []
    descs = []
    bad = 0
    for g in kernels:
        KIDX[0] = len(launches)
        a, n, (grid, blk, lds) = g()
        if DBGT:
            items = []
            for it in a.items:
                if it[0] == "i" and it[1].mn == "s_endpgm" and not (items and items[-1][0] == "l" and items[-1][1] == n + "_end" and items[-2][1].mn == "s_endpgm"):
                    b = Asm()
                    lab = None
                    if items[-1][0] == "l" and items[-1][1] == n + "_end":
                        lab = items.pop()
                    dbg_stamp(b, 1)
                    items += b.items
                    if lab:
                        items.append(it)
                        items.append(lab)
                items.append(it)
            a.items = items
        bad += len(a.check())
        nv, ns = a.maxregs()
        print(f"{n}: {sum(1 for k, _ in a.items if k == 'i')} instrs, vgpr {nv}, sgpr {ns}")
        launches.append(f"; @launch kernel={n} grid=({grid},1,1) block=({blk},1,1) lds={lds}")
        txt.append(a.text())
        descs.append(kdesc(n, nv, ns))
    if bad:
        print("HAZARDS:", bad)
    out = "\n".join(head) + "\n" + "\n".join(launches) + "\n" + '.amdgcn_target "amdgcn-amd-amdhsa--gfx950"\n' + \
          "".join(txt) + "".join(descs)
    open(path, "w").write(out)
    return bad


if __name__ == "__main__":
    p = sys.argv[1] if len(sys.argv) > 1 else os.path.join(os.path.dirname(os.path.abspath(__file__)), "..",
                                                           "cdna_kernels", NAME + ".s")
    sys.exit(1 if build(KERNELS, p) else 0)
```

```python
import re

TRANS = ("v_exp_f32", "v_log_f32", "v_rcp_f32", "v_rsq_f32", "v_sqrt_f32", "v_sin_f32", "v_cos_f32",
         "v_rcp_iflag_f32")


def v(i, n=1):
    return f"v{i}" if n == 1 else f"v[{i}:{i + n - 1}]"


def ag(i, n=1):
    return f"a{i}" if n == 1 else f"a[{i}:{i + n - 1}]"


def s(i, n=1):
    return f"s{i}" if n == 1 else f"s[{i}:{i + n - 1}]"


_REG = re.compile(r"^-?(?:abs\()?\|?([vsa])(?:(\d+)|\[(\d+):(\d+)\])\)?\|?$")


def regs_of(op):
    op = op.strip()
    if op in ("vcc",):
        return {("vcc", 0)}
    if op in ("vcc_lo", "vcc_hi"):
        return {("vcc", 0)}
    if op in ("exec", "exec_lo", "exec_hi"):
        return {("exec", 0)}
    if op == "m0":
        return {("m0", 0)}
    m = _REG.match(op)
    if not m:
        return set()
    k = m.group(1)
    if m.group(2) is not None:
        return {(k, int(m.group(2)))}
    return {(k, i) for i in range(int(m.group(3)), int(m.group(4)) + 1)}


class Ins:
    __slots__ = ("text", "mn", "ops", "mods", "cls", "w", "r", "rA", "rC", "ws", "storewide", "line", "lds_dma")

    def __init__(self, text):
        self.text = text
        t = text.split(";")[0].strip()
        parts = t.split(None, 1)
        self.mn = parts[0]
        rest = parts[1] if len(parts) > 1 else ""
        ops, depth, cur = [], 0, ""
        for ch in rest:
            if ch in "[(":
                depth += 1
            if ch in "])":
                depth -= 1
            if ch == "," and depth == 0:
                ops.append(cur.strip())
                cur = ""
            else:
                cur += ch
        if cur.strip():
            ops.append(cur.strip())
        mods = []
        if ops:
            last = ops[-1].split()
            ops[-1] = last[0]
            mods = last[1:]
            if self.mn.startswith("s_"):
                mods = []
        self.ops, self.mods = ops, mods
        self.w, self.r, self.rA, self.rC = set(), set(), set(), set()
        self.ws = 1
        self.storewide = False
        self.lds_dma = False
        mn = self.mn
        R = regs_of
        if mn.startswith("v_mfma"):
            self.cls = "mfma"
            self.w = R(ops[0])
            self.rA = R(ops[1]) | R(ops[2])
            self.rC = R(ops[3])
            self.r = self.rA | self.rC
        elif mn.startswith("v_"):
            self.cls = "valu"
            base = mn.replace("_e32", "").replace("_e64", "")
            if base.startswith("v_cmp"):
                self.w = R(ops[0])
                for o in ops[1:]:
                    self.r |= R(o)
                if base.startswith("v_cmpx"):
                    self.w |= {("exec", 0)}
            elif (base.startswith("v_permlane") and "swap" in base) or base == "v_swap_b32":
                self.w = R(ops[0]) | R(ops[1])
                self.r = set(self.w)
            elif base in ("v_add_co_u32", "v_sub_co_u32", "v_subrev_co_u32", "v_addc_co_u32", "v_subb_co_u32"):
                self.w = R(ops[0]) | R(ops[1])
                for o in ops[2:]:
                    self.r |= R(o)
            elif base == "v_nop":
                pass
            else:
                self.w = R(ops[0])
                for o in ops[1:]:
                    self.r |= R(o)
                if base.startswith("v_fmac") or base.startswith("v_pk_fmac") or base.startswith("v_writelane"):
                    self.r |= self.w
        elif mn.startswith("ds_"):
            self.cls = "ds"
            if mn.startswith("ds_read") or mn.startswith("ds_bpermute") or mn.startswith("ds_permute") or \
                    mn.startswith("ds_swizzle") or "_rtn" in mn:
                self.w = R(ops[0])
                for o in ops[1:]:
                    self.r |= R(o)
                if "d16" in mn:
                    self.r |= self.w
            else:
                for o in ops:
                    self.r |= R(o)
        elif mn.startswith("buffer_") or mn.startswith("global_"):
            self.cls = "vmem"
            if mn in ("buffer_wbl2", "buffer_inv"):
                pass
            elif "lds" in mods or "_lds_" in mn:
                self.lds_dma = True
                for o in ops:
                    self.r |= R(o)
                self.r |= {("m0", 0)}
            elif "_load" in mn:
                self.w = R(ops[0])
                for o in ops[1:]:
                    self.r |= R(o)
                if "d16" in mn:
                    self.r |= self.w
            else:
                for o in ops:
                    self.r |= R(o)
                if "atomic" in mn and "sc0" in mods:
                    self.w = R(ops[0])
                if "x4" in mn or "x3" in mn:
                    self.storewide = True
        elif mn.startswith("s_"):
            self.cls = "salu"
            if mn == "s_nop":
                self.ws = int(ops[0], 0) + 1
            elif mn.startswith("s_cbranch") or mn in ("s_branch", "s_barrier", "s_waitcnt", "s_endpgm", "s_setprio",
                                                     "s_sleep"):
                pass
            elif mn.startswith("s_cmp") or mn.startswith("s_bitcmp"):
                for o in ops:
                    self.r |= R(o)
            else:
                if ops:
                    self.w = R(ops[0])
                for o in ops[1:]:
                    self.r |= R(o)
                if "saveexec" in mn:
                    self.w |= {("exec", 0)}
        else:
            raise ValueError("unknown instr " + text)

    def base(self):
        return self.mn.replace("_e32", "").replace("_e64", "")


def mfma_passes(i):
    if "32x32x16" in i.mn:
        return 8
    if "16x16x32" in i.mn:
        return 4
    raise ValueError(i.mn)


def required(p, c):
    need = 0
    vw = {x for x in p.w if x[0] in "va"}
    sw = {x for x in p.w if x[0] in ("s", "vcc")}
    if p.cls == "valu":
        if c.cls == "mfma" and (vw & c.r):
            need = max(need, 2)
        if c.cls == "valu":
            cb = c.base()
            if p.base() in TRANS and cb not in TRANS and (vw & c.r):
                need = max(need, 1)
            if p.base() in TRANS and cb in TRANS and (vw & c.r):
                need = max(need, 1)
            if cb.startswith("v_permlane") and (vw & c.r):
                need = max(need, 2)
            if cb in ("v_readlane_b32", "v_readfirstlane_b32") and (vw & c.r):
                need = max(need, 1)
            if sw & c.r:
                need = max(need, 2)
                if cb in ("v_readlane_b32", "v_writelane_b32"):
                    need = max(need, 4)
            if ("exec", 0) in p.w and cb in ("v_readlane_b32", "v_readfirstlane_b32", "v_writelane_b32"):
                need = max(need, 4)
            if any("dpp" in m or "row_" in m or "quad_perm" in m for m in c.mods) and (vw & c.r):
                need = max(need, 2)
        if c.cls == "mfma" and ("exec", 0) in p.w:
            need = max(need, 4)
        if c.cls == "vmem" and (sw & c.r):
            need = max(need, 5)
        if c.cls == "salu" and ((sw - {("vcc", 0)}) & c.r):
            need = max(need, 1)
    if p.cls == "salu":
        if ("m0", 0) in p.w and (c.lds_dma or "addtid" in c.mn):
            need = max(need, 1)
    if p.cls == "vmem" and p.storewide:
        data = regs_of(p.ops[0]) if p.mn.startswith("buffer_") else regs_of(p.ops[1])
        if data & c.w:
            need = max(need, 2 if c.cls in ("valu", "mfma") else 1)
    if p.cls == "mfma":
        n = mfma_passes(p)
        if c.cls == "mfma":
            if p.w & c.rC:
                if not (p.w == c.rC and mfma_passes(c) == n):
                    need = max(need, n + 2)
            if p.w & c.rA:
                need = max(need, n + 4)
            if (p.w & c.w) and not (p.w == c.rC):
                need = max(need, n + 2)
        else:
            if p.w & (c.r | c.w):
                need = max(need, n + 4)
            if c.cls == "valu" and (p.rC & c.w):
                need = max(need, n - 1)
            if c.cls in ("ds", "vmem") and (p.rC & c.w):
                need = max(need, n - 1)
    return need


class Asm:
    def __init__(self):
        self.items = []
        self._uid = 0

    def I(self, text):
        ins = Ins(text)
        self.items.append(("i", ins))
        return ins

    def many(self, lst):
        for t in lst:
            self.I(t)

    def label(self, name):
        self.items.append(("l", name))

    def raw(self, text):
        self.items.append(("t", text))

    def comment(self, text):
        self.items.append(("t", "    ; " + text))

    def uid(self, p="L"):
        self._uid += 1
        return f"{p}_{self._uid}"

    def text(self):
        out = []
        for k, x in self.items:
            if k == "i":
                out.append("    " + x.text)
            elif k == "l":
                out.append(x + ":")
            else:
                out.append(x)
        return "\n".join(out) + "\n"

    def check(self, maxback=22, verbose=True):
        ins = []
        labels = {}
        for k, x in self.items:
            if k == "i":
                ins.append(x)
            elif k == "l":
                labels[x] = len(ins)
        preds = [[] for _ in range(len(ins) + 1)]
        for i, x in enumerate(ins):
            if x.mn not in ("s_branch", "s_endpgm"):
                preds[i + 1].append(i)
            if x.mn == "s_branch" or x.mn.startswith("s_cbranch"):
                preds[labels[x.ops[0]]].append(i)
        problems = []
        for ci, c in enumerate(ins):
            if c.cls == "salu" and not c.r and not c.w:
                continue
            stack = [(p, 0) for p in preds[ci]]
            seen = {}
            while stack:
                pi, dist = stack.pop()
                if pi in seen and seen[pi] <= dist:
                    continue
                seen[pi] = dist
                p = ins[pi]
                need = required(p, c)
                if need > dist:
                    problems.append((pi, ci, need, dist))
                nd = dist + p.ws
                if nd < maxback:
                    for q in preds[pi]:
                        stack.append((q, nd))
        if verbose:
            for pi, ci, need, dist in problems[:40]:
                print(f"HAZARD need {need} have {dist}:\n   [{pi}] {ins[pi].text}\n   [{ci}] {ins[ci].text}")
        return problems

    def maxregs(self):
        mv = ms = ma = -1
        for k, x in self.items:
            if k == "i":
                for kind, idx in x.r | x.w:
                    if kind == "v":
                        mv = max(mv, idx)
                    if kind == "s":
                        ms = max(ms, idx)
                    if kind == "a":
                        ma = max(ma, idx)
        return mv + 1, ms + 1, ma + 1


class VM:
    def __init__(self, asm):
        self.a = asm
        self.q = []

    def issue(self, text, tag):
        self.a.I(text)
        self.q.append(tag)
        assert len(self.q) <= 63, "vmcnt overflow"

    def wait(self, tags, emit=True):
        if isinstance(tags, (str, int, tuple)):
            tags = [tags]
        last = -1
        for i, t in enumerate(self.q):
            if t in tags:
                last = i
        if last < 0:
            return None
        n = len(self.q) - 1 - last
        self.q = self.q[last + 1:]
        if emit:
            self.a.I(f"s_waitcnt vmcnt({n})")
        return n


class LG(VM):
    def issue(self, text, tag):
        if len(self.q) >= 15:
            self.a.I("s_waitcnt lgkmcnt(13)")
            self.q = self.q[-13:]
        self.a.I(text)
        self.q.append(tag)

    def wait(self, tags, emit=True):
        n = VM.wait(self, tags, emit=False)
        if n is not None and emit:
            self.a.I(f"s_waitcnt lgkmcnt({n})")
        return n


def interleave(a, mfmas, fillers_per_gap):
    for m, f in zip(mfmas, fillers_per_gap):
        a.I(m)
        for x in f:
            a.I(x)
```

```python
import sys, os, math, struct
sys.path.insert(0, os.path.dirname(os.path.abspath(__file__)))
from asmlib import Asm, VM, LG, v, s, ag

NAME = "concat_heads__compressed_kv_cla__spectral_gfnet__prompt"
MB = 1 << 20
WS_K, WS_V, WS_CTX, WS_Y, WS_WF, WS_Z, WS_Q = 0, 16 * MB, 32 * MB, 48 * MB, 52 * MB, 56 * MB, 64 * MB
KA = dict(x=0, ckv=8, wq=16, wuk=24, wuv=32, wo=40, bx=48, wr=56, wi=64, out=72, dbg=80, ws=88)
MF = "v_mfma_f32_32x32x16_bf16"
SP = os.environ.get("SP", "")


def f32(x):
    return "0x%08x" % struct.unpack("<I", struct.pack("<f", x))[0]


def srd(a, d, lo, hi, size, add=0):
    if add:
        a.I(f"s_add_u32 {s(d)}, {s(lo)}, {add if isinstance(add, str) else hex(add)}")
        a.I(f"s_addc_u32 {s(d + 1)}, {s(hi)}, 0")
    else:
        a.I(f"s_mov_b32 {s(d)}, {s(lo)}")
        a.I(f"s_mov_b32 {s(d + 1)}, {s(hi)}")
    a.I(f"s_mov_b32 {s(d + 2)}, {size if isinstance(size, str) else hex(size)}")
    a.I(f"s_mov_b32 {s(d + 3)}, 0x20000")


STAMPS = int(os.environ.get("STAMPS", "0"))
ST0 = 72


class Stamper:
    def __init__(self, a, name=""):
        self.a, self.n = a, 0
        self.on = STAMPS and os.environ.get("STAMPK", name) == name

    def __call__(self):
        if self.on and self.n < 11:
            if self.n == 0:
                self.a.I("s_memrealtime s[68:69]")
            self.a.I(f"s_memtime {s(ST0 + 2 * self.n, 2)}")
            self.n += 1

    def dump(self, wave_s, wslo, tmpv=8):
        if not self.on:
            return
        a = self.a
        a.I("s_waitcnt vmcnt(0) lgkmcnt(0)")
        a.I(f"s_memtime {s(ST0 + 2 * self.n, 2)}")
        a.I("s_memrealtime s[70:71]")
        self.n += 1
        srd(a, 96, wslo, wslo + 1, 1 * MB, add=128 * MB)
        a.I("s_lshl_b32 s100, s2, 3")
        a.I(f"s_add_u32 s100, s100, {s(wave_s)}")
        a.I("s_lshl_b32 s100, s100, 8")
        a.I("s_waitcnt lgkmcnt(0)")
        a.I(f"v_mov_b32 {v(tmpv + 1)}, 0")
        for i in range(self.n):
            a.I(f"v_mov_b32 {v(tmpv)}, {s(ST0 + 2 * i)}")
            a.I(f"buffer_store_dword {v(tmpv)}, {v(tmpv + 1)}, s[96:99], s100 offen offset:{4 * i}")
        for i, r in ((62, 68), (63, 70), (61, ST0 + 2 * (self.n - 1))):
            a.I(f"v_mov_b32 {v(tmpv)}, {s(r)}")
            a.I(f"buffer_store_dword {v(tmpv)}, {v(tmpv + 1)}, s[96:99], s100 offen offset:{4 * i}")
        a.I("s_waitcnt vmcnt(0)")


DBGT = int(os.environ.get("DBGT", "0"))
KIDX = [0, 0]


def dbg_stamp(a, end):
    k = KIDX[0]
    lab = a.uid("dbgskip%d_%d" % (k, KIDX[1]))
    KIDX[1] += 1
    if not end:
        a.I("v_readfirstlane_b32 s89, v0")
        a.I("s_nop 1")
        a.I("s_lshr_b32 s89, s89, 6")
        a.I("s_or_b32 s89, s89, s2")
    a.I("s_cmp_lg_u32 s89, 0")
    a.I(f"s_cbranch_scc1 {lab}")
    a.I("s_load_dwordx4 s[92:95], s[90:91], 80")
    a.I("s_waitcnt vmcnt(0) lgkmcnt(0)")
    a.I("s_memrealtime s[86:87]")
    a.I(f"s_add_u32 s96, s94, {hex(200 * MB)}")
    a.I("s_addc_u32 s97, s95, 0")
    a.I("s_mov_b32 s98, 256")
    a.I("s_mov_b32 s99, 0x20000")
    a.I("s_waitcnt lgkmcnt(0)")
    a.I("v_mov_b32 v254, s86")
    a.I(f"buffer_store_dword v254, off, s[96:99], 0 offset:{8 * k + 4 * end} sc0 sc1")
    a.I("s_waitcnt vmcnt(0)")
    if end and k == DBGT - 1:
        a.I("v_lshlrev_b32 v253, 2, v0")
        a.I("buffer_load_dword v254, v253, s[96:99], 0 offen sc0 sc1")
        a.I("s_mov_b32 s96, s92")
        a.I("s_mov_b32 s97, s93")
        a.I("s_waitcnt vmcnt(0)")
        a.I("buffer_store_dword v254, v253, s[96:99], 0 offen")
        a.I(f"s_sub_u32 s96, s92, {k * 512}")
        a.I("s_subb_u32 s97, s93, 0")
        a.I("s_nop 0")
        a.I("buffer_store_dword v254, v253, s[96:99], 0 offen")
    a.label(lab)


def kstart(a, name, nwg):
    a.raw(".text")
    a.raw(f".globl {name}")
    a.raw(".p2align 8")
    a.raw(f".type {name},@function")
    a.label(name)
    a.I(f"s_cmp_ge_u32 s2, {nwg}")
    a.I(f"s_cbranch_scc1 {name}_end")
    if DBGT:
        a.I("s_mov_b64 s[90:91], s[0:1]")
        dbg_stamp(a, 0)


def kend(a, name):
    a.label(name + "_end")
    a.I("s_endpgm")


def kdesc(name, nv, ns, na=0):
    nv = (nv + 7) // 8 * 8
    acc_off = nv
    nv = nv + (na + 7) // 8 * 8
    return f""".section .rodata,"a"
.p2align 6
.amdhsa_kernel {name}
  .amdhsa_next_free_vgpr {nv}
  .amdhsa_next_free_sgpr {max(ns, 16)}
  .amdhsa_accum_offset {acc_off}
  .amdhsa_group_segment_fixed_size 0
  .amdhsa_kernarg_size 96
  .amdhsa_user_sgpr_count 2
  .amdhsa_user_sgpr_kernarg_segment_ptr 1
  .amdhsa_system_sgpr_workgroup_id_x 1
  .amdhsa_float_denorm_mode_32 3
.end_amdhsa_kernel
"""


QSCALE = math.log2(math.e) / math.sqrt(128.0)


def gen_qkv():
    a = Asm()
    N = "qkvproj_kernel"
    kstart(a, N, 256)
    a.I("s_load_dwordx4 s[4:7], s[0:1], 0")
    a.I("s_load_dwordx4 s[8:11], s[0:1], 16")
    a.I("s_load_dwordx2 s[12:13], s[0:1], 32")
    a.I("s_load_dwordx2 s[14:15], s[0:1], 88")
    a.I("v_lshrrev_b32 v1, 6, v0")
    a.I("v_and_b32 v0, 63, v0")
    a.I("s_and_b32 s17, s2, 7")
    a.I("v_readfirstlane_b32 s16, v1")
    a.I("s_lshr_b32 s18, s2, 3")
    a.I("s_and_b32 s19, s18, 7")
    a.I("s_lshr_b32 s18, s18, 3")
    a.I("s_lshl_b32 s40, s17, 2")
    a.I("s_add_u32 s18, s18, s40")
    a.I("s_mov_b32 s41, 0")
    a.I("s_mul_i32 s42, s18, 6")
    a.I("s_cmp_ge_u32 s18, 11")
    a.I("s_cselect_b32 s41, 1, s41")
    a.I("s_cselect_b32 s40, 64, 0")
    a.I("s_cmp_ge_u32 s18, 21")
    a.I("s_cselect_b32 s41, 2, s41")
    a.I("s_cselect_b32 s40, 126, s40")
    a.I("s_sub_u32 s42, s42, s40")
    a.I("s_lshl_b32 s44, s19, 3")
    a.I("s_add_u32 s44, s44, s16")
    hl, b4, t1, t2 = 9, 10, 11, 12
    a.I(f"v_lshrrev_b32 {v(hl)}, 5, v0")
    a.I(f"v_bfe_u32 {v(b4)}, v0, 4, 1")
    a.I(f"v_lshrrev_b32 {v(t1)}, 3, v0")
    a.I(f"v_lshlrev_b32 {v(t1)}, 10, {v(t1)}")
    a.I("s_lshl_b32 s45, s44, 15")
    a.I(f"v_add_u32 {v(t1)}, s45, {v(t1)}")
    a.I(f"v_lshrrev_b32 {v(t2)}, 4, v0")
    a.I("v_and_b32 v13, 7, v0")
    a.I(f"v_xor_b32 {v(t2)}, {v(t2)}, v13")
    a.I(f"v_lshl_add_u32 v52, {v(t2)}, 4, {v(t1)}")
    a.I("v_xor_b32 v53, 64, v52")
    a.I(f"v_add_u32 v53, {8192 - 1024}, v53")
    a.I(f"v_add_u32 v54, {2 * (8192 - 1024)}, v52")
    a.I(f"v_add_u32 v55, {2 * (8192 - 1024)}, v53")
    a.I("v_and_b32 v13, 31, v0")
    a.I(f"v_bfe_u32 {v(t2)}, v0, 1, 3")
    a.I(f"v_xor_b32 {v(t2)}, {v(t2)}, {v(hl)}")
    a.I(f"v_lshlrev_b32 {v(t2)}, 4, {v(t2)}")
    a.I(f"v_lshl_add_u32 {v(t2)}, v13, 7, {v(t2)}")
    a.I("s_mul_i32 s46, s16, 12288")
    for t in range(4):
        a.I(f"v_xor_b32 {v(56 + t)}, {32 * t}, {v(t2)}")
    for t in range(4):
        a.I(f"v_add_u32 {v(56 + t)}, s46, {v(56 + t)}")
    a.I("v_lshrrev_b32 v2, 3, v0")
    a.I("v_lshlrev_b32 v2, 13, v2")
    a.I(f"v_lshlrev_b32 {v(t1)}, 2, {v(b4)}")
    a.I(f"v_and_b32 {v(t2)}, 7, v0")
    a.I(f"v_xor_b32 {v(t1)}, {v(t1)}, {v(t2)}")
    a.I(f"v_lshl_add_u32 v2, {v(t1)}, 4, v2")
    a.I("s_lshl_b32 s45, s16, 17")
    a.I("v_add_u32 v2, s45, v2")
    a.I(f"v_add_u32 v3, {65536 - 1024}, v2")
    a.I(f"v_bfe_u32 {v(t1)}, v0, 2, 2")
    a.I(f"v_lshl_add_u32 {v(t2)}, {v(hl)}, 3, {v(t1)}")
    a.I(f"v_lshlrev_b32 v4, 7, {v(t2)}")
    a.I(f"v_lshl_add_u32 v4, {v(b4)}, 5, v4")
    a.I(f"v_and_b32 {v(t2)}, 3, v0")
    a.I(f"v_lshl_add_u32 v4, {v(t2)}, 3, v4")
    a.I(f"v_bfe_u32 {v(t2)}, v0, 3, 1")
    a.I(f"v_lshl_add_u32 v4, {v(t2)}, 6, v4")
    a.I("v_xor_b32 v5, 64, v4")
    a.I("v_add_u32 v6, 0x10000, v4")
    a.I("v_add_u32 v7, 0x10000, v5")
    a.I("v_add_u32 v50, 0x20000, v4")
    a.I("v_add_u32 v51, 0x20000, v5")
    a.I("v_lshlrev_b32 v48, 4, v0")
    a.I("s_lshl_b32 s47, s16, 11")
    a.I("s_lshl_b32 s48, s42, 7")
    a.I("s_lshl_b32 s49, s44, 13")
    a.I("s_lshl_b32 s50, s42, 18")
    a.I("s_add_u32 s50, s50, s49")
    a.I("s_waitcnt lgkmcnt(0)")
    a.I("s_cmp_eq_u32 s41, 2")
    a.I("s_cselect_b32 s20, s4, s6")
    a.I("s_cselect_b32 s21, s5, s7")
    a.I("s_cselect_b32 s24, s8, s10")
    a.I("s_cselect_b32 s25, s9, s11")
    a.I(f"s_cselect_b32 s51, {hex(WS_Q)}, 0")
    a.I(f"s_cselect_b32 s52, {f32(QSCALE)}, 1.0")
    a.I(f"s_mov_b32 s22, {hex(2 * MB)}")
    a.I("s_mov_b32 s23, 0x20000")
    a.I(f"s_mov_b32 s26, {hex(4 * MB)}")
    a.I("s_mov_b32 s27, 0x20000")
    srd(a, 28, 14, 15, 16 * MB, add="s51")
    srd(a, 32, 12, 13, 4 * MB)
    srd(a, 36, 14, 15, 16 * MB, add=WS_V)
    srd(a, 56, 6, 7, 2 * MB)
    a.I("s_cmp_eq_u32 s18, 31")
    a.I(f"s_cbranch_scc1 {N}_D")
    a.I("s_cmp_eq_u32 s41, 1")
    a.I(f"s_cbranch_scc1 {N}_B")
    a.I("s_cmp_eq_u32 s18, 10")
    a.I(f"s_cbranch_scc1 {N}_C")

    AF, ACC, RING, PK = 64, 192, 8, 32
    LOOK = 6

    def body(passes, tag):
        vm, lg = VM(a), LG(a)
        st = Stamper(a, "qkv")
        st()
        NP = len(passes)
        NC = 4 * NP
        NM = 64 * NP
        restage = tag == "D"
        blk = {}
        free = [6, 7, 8, 9]
        nxt = [0]

        def dmaW():
            c = nxt[0]
            if c >= NC or not free:
                return False
            b = free.pop(0)
            blk[c] = b
            nxt[0] += 1
            pp, kc = divmod(c, 4)
            form, su, di = passes[pp]
            a.I(f"s_add_u32 m0, s47, {hex(b * 16384)}")
            if su is not None:
                a.I(f"s_mov_b32 s45, {hex((kc << 20) + su * 128)}")
            else:
                a.I(f"s_add_u32 s45, s48, {hex((kc << 20) + di * 128)}")
            sr = "s[32:35]" if form == "V" else "s[24:27]"
            vm.issue(f"buffer_load_dwordx4 v2, {sr}, s45 offen lds", ("W", c))
            vm.issue(f"buffer_load_dwordx4 v3, {sr}, s45 offen offset:1024 lds", ("W", c))
            return True

        def dmaA(j):
            sr = "s[56:59]" if (restage and j < 8) else "s[20:23]"
            a.I(f"s_add_u32 m0, s46, {hex((j % 3) * 4096)}")
            a.I(f"s_mov_b32 s45, {(j % 8) * 128}")
            for i in range(4):
                vm.issue(f"buffer_load_dwordx4 {v(52 + i)}, {sr}, s45 offen offset:{i * 1024} lds", ("A", j))

        def readA(j):
            vm.wait(("A", j))
            for t in range(4):
                lg.issue(f"ds_read_b128 {v(AF + 16 * (j % 8) + 4 * t, 4)}, {v(56 + t)} offset:{(j % 3) * 4096}", ("A", j))

        dmaW(); dmaA(0); dmaA(1); dmaW(); dmaA(2); dmaW(); dmaW()

        def reads(i):
            c, r = divmod(i, 16)
            t, cb = divmod(r, 2)
            b = blk[c]
            base = [4, 6, 50][b // 4] + cb
            off = (b % 4) * 16384 + t * 2048
            d = RING + 4 * (i % LOOK)
            lg.issue(f"ds_read_b64_tr_b16 {v(d, 2)}, {v(base)} offset:{off}", ("W", i))
            lg.issue(f"ds_read_b64_tr_b16 {v(d + 2, 2)}, {v(base)} offset:{off + 512}", ("W", i))

        def sync(c):
            vm.wait(("W", c))
            a.I("s_barrier")
            if c >= 2:
                free.append(blk[c - 2])
            if c == (10 if restage else 5):
                free.extend([0, 1, 2, 3, 4, 5])
            n = 0
            while n < 2 and dmaW():
                n += 1

        def epi(pp):
            out = []
            form, su, di = passes[pp]
            acc = ACC + 32 * (pp & 1)
            so = 54 + (pp & 1)
            if su is not None:
                out.append(lambda: a.I(f"s_add_u32 s{so}, s49, {hex((su >> 1) * 512 * 1024 + (su & 1) * 4096)}"))
            else:
                out.append(lambda: a.I(f"s_add_u32 s{so}, s50, {hex((di >> 1) * 512 * 1024 + (di & 1) * 4096)}"))
            sr = "s[36:39]" if form == "V" else "s[28:31]"
            for cb in range(2):
                for h in range(2):
                    q = 2 * cb + h
                    for i in range(4):
                        src = acc + 16 * cb + 8 * h + 2 * i
                        if form == "K" and tag in "AD":
                            out.append(lambda src=src: a.I(f"v_mul_f32 {v(src)}, s52, {v(src)}"))
                            out.append(lambda src=src: a.I(f"v_mul_f32 {v(src + 1)}, s52, {v(src + 1)}"))
                        out.append(lambda src=src, q=q, i=i: a.I(
                            f"v_cvt_pk_bf16_f32 {v(PK + 4 * q + i)}, {v(src)}, {v(src + 1)}"))
                    out.append(lambda q=q: vm.issue(
                        f"buffer_store_dwordx4 {v(PK + 4 * q, 4)}, v48, {sr}, s{so} offen offset:{q * 1024}{SP}", ("S", pp)))
            return out

        st()
        readA(0)
        sync(0)
        st()
        for i in range(LOOK - 2):
            reads(i)
        lg.wait(("A", 0))
        for i in range(LOOK - 2, LOOK):
            reads(i)
        pend = []
        for i in range(NM):
            c, r = divmod(i, 16)
            t, cb = divmod(r, 2)
            pp, kc = divmod(c, 4)
            k = 8 * kc + t
            if i % 2 == 0:
                lg.wait([("W", i), ("W", i + 1), ("A", i // 8)])
            if pp == 0 and i % 8 == 0 and i // 8 + 3 < (11 if restage else 8):
                dmaA(i // 8 + 3)
            if restage and 72 < i <= 128 + 8 and i % 8 == 4:
                jj = 8 + (i - 76) // 8
                lg.wait(("A", jj))
                if jj + 3 < 16:
                    dmaA(jj + 3)
            acc = v(ACC + 32 * (pp & 1) + 16 * cb, 16)
            wf = v(RING + 4 * (i % LOOK), 4)
            af = v(AF + 4 * k, 4)
            cin = "0" if k == 0 else acc
            if passes[pp][0] == "V":
                a.I(f"{MF} {acc}, {af}, {wf}, {cin}")
            else:
                a.I(f"{MF} {acc}, {wf}, {af}, {cin}")
            j = i + LOOK
            if j < NM:
                if j % 16 == 0:
                    sync(j // 16)
                if j < 64 and j % 8 == 0:
                    readA(j // 8)
                reads(j)
            if restage and 64 <= i < 128 and i % 8 == 7:
                readA(8 + (i - 64) // 8)
            if i % 64 == 63:
                st()
            if i % 64 == 6 and pp >= 1:
                pend = epi(pp - 1)
            if pend:
                pend.pop(0)()
        a.I("s_nop 11")
        for f in epi(NP - 1):
            f()
        st.dump(16, 14)
        a.I("s_endpgm")

    body([("K", None, i) for i in range(6)], "A")
    a.label(N + "_B")
    body([("V", None, i) for i in range(6)], "B")
    a.label(N + "_C")
    body([("K", None, i) for i in range(4)] + [("V", 0, 0), ("V", 1, 0)], "C")
    a.label(N + "_D")
    body([("V", 62, 0), ("V", 63, 0)] + [("K", None, i) for i in range(4)], "D")
    kend(a, N)
    return a, N, (256, 512, 163840)


def gen_attn(withb2=False):
    a = Asm()
    N = "attn_kernel"
    O, Q, S, P, NEGM, RING = 64, 128, [160, 176], [192, 200], 208, 224
    L16, VKA, VVA, VL, VLS, E, VDA, VDB, QREL, T0, T1, T2, NINF = 1, 2, 3, 4, 5, 6, 10, 11, 12, 13, 14, 15, 48
    PK = 16
    sW, sH, sP, sN, sC, sPH, sTHR, sBAR, sKO, sKM, sVM, sQS = 16, 17, 18, 19, 20, 21, 40, 41, 42, 43, 44, 45
    kstart(a, N, 256)
    a.I("s_load_dwordx2 s[4:5], s[0:1], 88")
    a.I("s_load_dwordx2 s[14:15], s[0:1], 40")
    a.I("v_lshrrev_b32 v1, 6, v0")
    a.I("v_and_b32 v0, 63, v0")
    a.I("s_and_b32 s6, s2, 7")
    a.I(f"v_readfirstlane_b32 {s(sW)}, v1")
    a.I("s_lshr_b32 s7, s2, 3")
    a.I("s_and_b32 s8, s7, 3")
    a.I("s_lshl_b32 s6, s6, 2")
    a.I(f"s_add_u32 {s(sH)}, s6, s8")
    a.I(f"s_lshr_b32 {s(sP)}, s7, 2")
    a.I(f"s_lshl_b32 s6, {s(sP)}, 2")
    a.I(f"s_sub_u32 s7, 60, s6")
    a.I(f"s_add_u32 s7, s7, {s(sW)}")
    a.I(f"s_add_u32 s8, s6, 7")
    a.I(f"s_sub_u32 s8, s8, {s(sW)}")
    a.I(f"s_cmp_ge_u32 {s(sW)}, 4")
    a.I(f"s_cselect_b32 {s(sQS)}, s8, s7")
    a.I(f"s_add_u32 {s(sN)}, {s(sQS)}, 1")
    a.I("s_sub_u32 s9, 64, s6")
    a.I(f"s_lshr_b32 {s(sBAR)}, s9, 1")
    a.I("s_lshl_b32 s9, s9, 13")
    a.I(f"s_lshl_b32 s10, {s(sH)}, 19")
    a.I(f"v_lshlrev_b32 {v(L16)}, 4, v0")
    a.I(f"s_and_b32 s11, {s(sW)}, 3")
    a.I("s_lshl_b32 s11, s11, 11")
    a.I(f"v_add_u32 {v(VDA)}, s11, {v(L16)}")
    a.I(f"v_add_u32 {v(VDB)}, 0x2000, {v(VDA)}")
    a.I(f"v_and_b32 {v(T0)}, 31, v0")
    a.I(f"v_lshrrev_b32 {v(T1)}, 5, v0")
    a.I(f"v_lshlrev_b32 {v(T1)}, 2, {v(T1)}")
    a.I(f"v_sub_u32 {v(QREL)}, {v(T0)}, {v(T1)}")
    a.I(f"v_mov_b32 {v(NINF)}, 0xff800000")
    a.I(f"s_mov_b32 {s(sTHR)}, {f32(2.0 ** 14)}")
    a.I("s_waitcnt lgkmcnt(0)")
    srd(a, 24, 4, 5, "s9", add="s10")
    a.I(f"s_add_u32 s12, s10, {hex(WS_V - 3 * 8192)}")
    a.I(f"s_add_u32 s13, s9, {3 * 8192}")
    srd(a, 28, 4, 5, "s13", add="s12")
    srd(a, 32, 4, 5, 16 * MB, add=WS_Q)
    srd(a, 36, 4, 5, 16 * MB, add=WS_CTX)
    st = Stamper(a, "attn")
    st()
    a.I(f"s_lshl_b32 s12, {s(sQS)}, 13")
    a.I("s_add_u32 s12, s12, s10")
    a.I("s_add_u32 s13, s12, 4096")
    for t in range(8):
        a.I(f"buffer_load_dwordx4 {v(Q + 4 * t, 4)}, {v(L16)}, s[32:35], s{12 + t // 4} offen offset:{(t % 4) * 1024}")
    a.I(f"s_lshl_b32 s46, {s(sQS)}, 18")
    a.I(f"s_lshl_b32 s6, {s(sH)}, 13")
    a.I("s_add_u32 s46, s46, s6")
    a.I("s_add_u32 s47, s46, 4096")
    a.I(f"s_mov_b32 {s(sKM)}, s11")
    a.I(f"s_mov_b32 {s(sKO)}, 0")

    def dma_list(withV=True):
        l = []
        if withV:
            l += [f"s_mov_b32 m0, {s(sVM)}", None,
                  f"buffer_load_dwordx4 {v(VDA)}, s[28:31], {s(sKO)} offen lds",
                  f"buffer_load_dwordx4 {v(VDA)}, s[28:31], {s(sKO)} offen offset:1024 lds",
                  f"s_add_u32 m0, {s(sVM)}, 0x4000", None,
                  f"buffer_load_dwordx4 {v(VDB)}, s[28:31], {s(sKO)} offen lds",
                  f"buffer_load_dwordx4 {v(VDB)}, s[28:31], {s(sKO)} offen offset:1024 lds"]
        l += [f"s_mov_b32 m0, {s(sKM)}", f"s_add_u32 {s(sVM)}, {s(sKM)}, 0x2000",
              f"buffer_load_dwordx4 {v(VDA)}, s[24:27], {s(sKO)} offen lds",
              f"buffer_load_dwordx4 {v(VDA)}, s[24:27], {s(sKO)} offen offset:1024 lds",
              f"s_add_u32 m0, {s(sKM)}, 0x4000", f"s_add_u32 {s(sKM)}, {s(sKM)}, 0x8000",
              f"buffer_load_dwordx4 {v(VDB)}, s[24:27], {s(sKO)} offen lds",
              f"buffer_load_dwordx4 {v(VDB)}, s[24:27], {s(sKO)} offen offset:1024 lds",
              f"s_and_b32 {s(sKM)}, {s(sKM)}, 0x1ffff",
              f"s_add_u32 {s(sKO)}, {s(sKO)}, 0x4000"]
        return l

    def emit_dma(withV=True):
        for x in dma_list(withV):
            a.I(x or "s_nop 0")

    def mask_negm():
        for j in range(16):
            a.I(f"v_cmp_le_i32 vcc, {(j & 3) + 8 * (j >> 2)}, {v(QREL)}")
            a.I("s_nop 1")
            a.I(f"v_cndmask_b32 {v(NEGM + j)}, {v(NINF)}, {v(NEGM + j)}, vcc")
        a.I("s_nop 1")

    def rowmax(Sx, dst):
        a.I(f"v_max3_f32 {v(dst)}, {v(Sx)}, {v(Sx + 1)}, {v(Sx + 2)}")
        for j in range(3, 15, 2):
            a.I(f"v_max3_f32 {v(dst)}, {v(dst)}, {v(Sx + j)}, {v(Sx + j + 1)}")
        a.I(f"v_max_f32 {v(dst)}, {v(dst)}, {v(Sx + 15)}")
        a.I(f"v_mov_b32 {v(T2)}, {v(dst)}")
        a.I("s_nop 1")
        a.I(f"v_permlane32_swap_b32 {v(dst)}, {v(T2)}")
        a.I(f"v_max_f32 {v(dst)}, {v(dst)}, {v(T2)}")

    def role(ld):
        R = "S" if ld else "L"
        if ld:
            emit_dma(withV=False)
            emit_dma()
        for j in range(16):
            a.I(f"v_mov_b32 {v(NEGM + j)}, 0")
        a.I(f"s_cmp_lg_u32 {s(sN)}, 1")
        a.I(f"s_cbranch_scc1 {N}_{R}_nm1")
        mask_negm()
        a.label(f"{N}_{R}_nm1")
        for j in range(64):
            a.I(f"v_mov_b32 {v(O + j)}, 0")
        for j in range(8):
            a.I(f"v_mov_b32 {v(P[1] + j)}, 0")
        a.I(f"v_mov_b32 {v(VL)}, 0")
        a.I(f"v_mov_b32 {v(VLS)}, 0")
        a.I(f"v_mov_b32 {v(VKA)}, {v(L16)}")
        a.I(f"v_mov_b32 {v(VVA)}, {v(L16)}")
        a.I(f"s_waitcnt vmcnt({6 if ld else 0})")
        a.I("s_barrier")
        st()
        for t in range(8):
            a.I(f"ds_read_b128 {v(RING + 4 * t, 4)}, {v(L16)} offset:{t * 1024}")
        dl = [x or "s_nop 0" for x in dma_list()] if ld else []
        for t in range(8):
            if t % 4 == 0:
                a.I("s_waitcnt lgkmcnt(4)")
            a.I(f"{MF} {v(S[0], 16)}, {v(RING + 4 * t, 4)}, {v(Q + 4 * t, 4)}, {v(NEGM if t == 0 else S[0], 16)}")
            a.I(f"ds_read_b128 {v(RING + 4 * t, 4)}, {v(L16)} offset:{16384 + t * 1024}")
            for x in dl[:3]:
                a.I(x)
            dl = dl[3:]
        assert not dl
        if ld:
            emit_dma()
        else:
            a.I("s_nop 11")
        rowmax(S[0], T0)
        for j in range(16):
            a.I(f"v_sub_f32 {v(S[0] + j)}, {v(S[0] + j)}, {v(T0)}")
        for j in range(16):
            a.I(f"v_sub_f32 {v(NEGM + j)}, 0, {v(T0)}")
        a.I(f"s_mov_b32 {s(sPH)}, 0")
        a.I(f"s_sub_u32 {s(sC)}, {s(sN)}, 3")
        a.I(f"s_cbranch_scc0 {N}_{R}_it0")
        a.I(f"s_mov_b32 {s(sPH)}, 1")
        a.I(f"s_sub_u32 {s(sC)}, {s(sN)}, 1")
        a.I(f"s_cmp_lg_u32 {s(sN)}, 2")
        a.I(f"s_cbranch_scc1 {N}_{R}_it0")
        mask_negm()

        def iteration(par):
            gaps = [[] for _ in range(16)]
            pre = [[] for _ in range(16)]
            mf = []
            Sc, Sn, Pc, Pp = S[par], S[1 - par], P[par], P[1 - par]
            e = lambda j: v(E + (j & 3))
            for pos in range(16):
                r = v(RING + 4 * (pos & 7), 4)
                if pos < 8:
                    mf.append(f"{MF} {v(Sn, 16)}, {r}, {v(Q + 4 * pos, 4)}, {v(NEGM if pos == 0 else Sn, 16)}")
                    ks, dt = divmod(pos, 4)
                    gaps[pos].append(f"ds_read_b128 {r}, {v(VVA)} offset:{8192 + par * 16384 + (2 * dt + ks) * 1024}")
                else:
                    ks, dt = divmod(pos - 8, 4)
                    mf.append(f"{MF} {v(O + 16 * dt, 16)}, {r}, {v(Pp + 4 * ks, 4)}, {v(O + 16 * dt, 16)}")
                    gaps[pos].append(f"ds_read_b128 {r}, {v(VKA)} offset:{par * 16384 + (pos - 8) * 1024}")
                if pos % 4 == 0:
                    pre[pos].append("s_waitcnt lgkmcnt(4)")
            gaps[0] += [f"v_add_f32 {v(VL)}, {v(VL)}, {v(VLS)}", f"v_exp_f32 {e(0)}, {v(Sc)}", f"v_exp_f32 {e(1)}, {v(Sc + 1)}"]
            for g in range(1, 16):
                if g < 15:
                    gaps[g].append(f"v_exp_f32 {e(g + 1)}, {v(Sc + g + 1)}")
                if g == 1:
                    gaps[g].append(f"v_add_f32 {v(VLS)}, {e(0)}, {e(1)}")
                else:
                    gaps[g].append(f"v_add_f32 {v(VLS)}, {v(VLS)}, {e(g)}")
                if g % 2 == 1:
                    gaps[g].append(f"v_cvt_pk_bf16_f32 {v(Pc + g // 2)}, {e(g - 1)}, {e(g)}")
            if par == 0:
                gaps[2].append(f"v_add_u32 {v(VKA)}, 0x8000, {v(VKA)}")
                gaps[6].append(f"v_and_b32 {v(VKA)}, 0x1ffff, {v(VKA)}")
                bar = ["s_barrier", f"s_sub_u32 {s(sBAR)}, {s(sBAR)}, 1"]
                if ld:
                    bar = ["s_waitcnt vmcnt(14)"] + bar
                gaps[4] = bar + gaps[4]
                if ld:
                    d = [x for x in dma_list() if x]
                    m0a, l1, l2, m0b, l3, l4, m0c, svm, l5, l6, m0d, skm, l7, l8, sand, sko = d
                    gaps[5] = [m0a] + gaps[5] + [l1]
                    gaps[6] += [l2, m0b]
                    gaps[7] += [l3]
                    gaps[8] += [l4, m0c]
                    gaps[9] += [svm, l5]
                    gaps[10] += [l6, m0d]
                    gaps[11] += [l7]
                    gaps[12] += [l8, skm]
                    gaps[13] += [sand, sko]
            else:
                gaps[10].append(f"v_mov_b32 {v(VVA)}, {v(VKA)}")
            gaps[14].append(f"s_sub_u32 {s(sC)}, {s(sC)}, 1")
            gaps[15].append(f"v_cmp_nge_f32 vcc, {s(sTHR)}, {v(VLS)}")
            for pos in range(16):
                a.many(pre[pos])
                a.I(mf[pos])
                a.many(gaps[pos])
            a.I(f"s_cbranch_vccnz {N}_{R}_slow{par}")
            a.label(f"{N}_{R}_back{par}")
            a.I(f"s_cbranch_scc1 {N}_{R}_spec{par}")

        a.label(f"{N}_{R}_it0")
        iteration(0)
        a.label(f"{N}_{R}_it1")
        iteration(1)
        a.I(f"s_branch {N}_{R}_it0")

        def svc():
            lab = a.uid(f"{N}_{R}_svc")
            a.I(f"s_cmp_eq_u32 {s(sBAR)}, 0")
            a.I(f"s_cbranch_scc1 {lab}")
            if ld:
                a.I("s_waitcnt vmcnt(14)")
            a.I("s_barrier")
            a.I(f"s_sub_u32 {s(sBAR)}, {s(sBAR)}, 1")
            if ld:
                emit_dma()
            a.label(lab)

        for par in range(2):
            Sc, Sn, Pc = S[par], S[1 - par], P[par]
            a.label(f"{N}_{R}_slow{par}")
            a.I("s_nop 15")
            rowmax(Sc, T0)
            a.I(f"v_max_f32 {v(T0)}, 0, {v(T0)}")
            a.I(f"v_exp_f32_e64 {v(T1)}, -{v(T0)}")
            for j in range(16):
                a.I(f"v_sub_f32 {v(NEGM + j)}, {v(NEGM + j)}, {v(T0)}")
                a.I(f"v_sub_f32 {v(Sc + j)}, {v(Sc + j)}, {v(T0)}")
                a.I(f"v_sub_f32 {v(Sn + j)}, {v(Sn + j)}, {v(T0)}")
            for j in range(64):
                a.I(f"v_mul_f32 {v(O + j)}, {v(O + j)}, {v(T1)}")
            a.I(f"v_mul_f32 {v(VL)}, {v(VL)}, {v(T1)}")
            a.I(f"v_mov_b32 {v(VLS)}, 0")
            for i in range(8):
                a.I(f"v_exp_f32 {v(E)}, {v(Sc + 2 * i)}")
                a.I(f"v_exp_f32 {v(E + 1)}, {v(Sc + 2 * i + 1)}")
                a.I("s_nop 0")
                a.I(f"v_add_f32 {v(VLS)}, {v(VLS)}, {v(E)}")
                a.I(f"v_add_f32 {v(VLS)}, {v(VLS)}, {v(E + 1)}")
                a.I(f"v_cvt_pk_bf16_f32 {v(Pc + i)}, {v(E)}, {v(E + 1)}")
            a.I("s_nop 1")
            a.I(f"s_branch {N}_{R}_back{par}")
            a.label(f"{N}_{R}_spec{par}")
            a.I(f"s_cmp_lg_u32 {s(sPH)}, 0")
            a.I(f"s_cbranch_scc1 {N}_{R}_exit{par}")
            a.I(f"s_mov_b32 {s(sPH)}, 1")
            a.I(f"s_mov_b32 {s(sC)}, 1")
            mask_negm()
            a.I(f"s_branch {N}_{R}_it{1 - par}")
            a.label(f"{N}_{R}_exit{par}")
            a.I("s_waitcnt lgkmcnt(0)")
            for pos in range(8):
                ks, dt = divmod(pos, 4)
                a.I(f"ds_read_b128 {v(RING + 4 * pos, 4)}, {v(VVA)} offset:{8192 + (1 - par) * 16384 + (2 * dt + ks) * 1024}")
            a.I(f"v_add_f32 {v(VL)}, {v(VL)}, {v(VLS)}")
            for pos in range(8):
                ks, dt = divmod(pos, 4)
                a.I(f"s_waitcnt lgkmcnt({7 - pos})")
                a.I(f"{MF} {v(O + 16 * dt, 16)}, {v(RING + 4 * pos, 4)}, {v(Pc + 4 * ks, 4)}, {v(O + 16 * dt, 16)}")
            if par == 0:
                a.I(f"s_branch {N}_{R}_epi")
        a.label(f"{N}_{R}_epi")
        st()
        svc()
        if ld and withb2:
            srd(a, 48, 14, 15, 4 * MB)
            a.I("s_lshl_b32 s52, s2, 14")
            a.I("s_lshl_b32 s53, s11, 1")
            a.I("s_add_u32 s52, s52, s53")
            for q in range(4):
                a.I(f"buffer_load_dwordx4 {v(RING + 4 * q, 4)}, {v(L16)}, s[48:51], s52 offen offset:{q * 1024}")
        a.I(f"v_mov_b32 {v(T2)}, {v(VL)}")
        a.I("s_nop 1")
        a.I(f"v_permlane32_swap_b32 {v(VL)}, {v(T2)}")
        a.I(f"v_add_f32 {v(VL)}, {v(VL)}, {v(T2)}")
        a.I(f"v_rcp_f32 {v(T0)}, {v(VL)}")
        a.I("s_nop 7")
        for dt in range(4):
            for h in range(2):
                q = 2 * dt + h
                for i in range(4):
                    src = O + 16 * dt + 8 * h + 2 * i
                    a.I(f"v_mul_f32 {v(src)}, {v(src)}, {v(T0)}")
                    a.I(f"v_mul_f32 {v(src + 1)}, {v(src + 1)}, {v(T0)}")
                    a.I(f"v_cvt_pk_bf16_f32 {v(PK + 4 * q + i)}, {v(src)}, {v(src + 1)}")
                a.I(f"buffer_store_dwordx4 {v(PK + 4 * q, 4)}, {v(L16)}, s[36:39], s{46 + q // 4} offen offset:{(q % 4) * 1024}{SP}")
            if dt == 1:
                svc()
        if ld and withb2:
            a.I(f"s_lshl_b32 s60, {s(sH)}, 2")
            a.I(f"s_add_u32 s60, s60, {s(sP)}")
            a.I("s_lshl_b32 s60, s60, 1")
            a.I(f"s_bfe_u32 s61, {s(sW)}, 0x10001")
            a.I("s_add_u32 s60, s60, s61")
            a.I(f"s_cmp_lt_u32 {s(sP)}, 4")
            a.I(f"s_cbranch_scc1 {N}_b2go")
            a.I("s_cmp_lg_u32 s60, 8")
            a.I(f"s_cbranch_scc1 {N}_{R}_tail")
            a.I(f"s_cmp_lg_u32 {s(sP)}, 4")
            a.I(f"s_cbranch_scc1 {N}_{R}_tail")
            a.I("s_movk_i32 s60, 0x100")
            a.label(f"{N}_b2go")
            a.I("s_lshl_b32 s61, s61, 14")
            a.I(f"s_add_u32 s61, s61, {131072}")
            a.I(f"s_lshl_b32 s62, {s(sP)}, 2")
            a.I("s_sub_u32 s62, 28, s62")
            a.label(f"{N}_b2al")
            a.I(f"s_cmp_le_u32 {s(sBAR)}, s62")
            a.I(f"s_cbranch_scc1 {N}_b2st")
            a.I("s_waitcnt vmcnt(14)")
            a.I("s_barrier")
            a.I(f"s_sub_u32 {s(sBAR)}, {s(sBAR)}, 1")
            emit_dma()
            a.I(f"s_branch {N}_b2al")
            a.label(f"{N}_b2st")
            a.I(f"s_bitcmp1_b32 {s(sW)}, 0")
            a.I(f"s_cbranch_scc1 {N}_b2w1")
            for own in range(2):
                vmb = VM(a)
                nsv = [0]

                def svcb():
                    nsv[0] += 1
                    a.I("s_waitcnt vmcnt(14)")
                    vmb.q = vmb.q[-14:]
                    a.I("s_barrier")
                    a.I(f"s_sub_u32 {s(sBAR)}, {s(sBAR)}, 1")
                    for x in dma_list():
                        if x and x.startswith("buffer"):
                            vmb.issue(x, "dma")
                        else:
                            a.I(x or "s_nop 0")
                if own:
                    a.label(f"{N}_b2w1")
                b2_body(a, own, 60, 61, svcb, vmb, R0=16, S0=62, SR=48)
                assert nsv[0] <= 12, nsv
                print("b2 svc slices", nsv[0])
                if not own:
                    a.I(f"s_branch {N}_{R}_tail")
        if ld:
            a.label(f"{N}_{R}_tail")
            a.I(f"s_cmp_eq_u32 {s(sBAR)}, 0")
            a.I(f"s_cbranch_scc1 {N}_{R}_done")
            a.I("s_waitcnt vmcnt(14)")
            a.I("s_barrier")
            a.I(f"s_sub_u32 {s(sBAR)}, {s(sBAR)}, 1")
            emit_dma()
            a.I(f"s_branch {N}_{R}_tail")
            a.label(f"{N}_{R}_done")
        n0 = st.n
        st.dump(sW, 4, tmpv=T0)
        st.n = n0 - 2
        a.I("s_endpgm")

    a.I(f"s_cmp_ge_u32 {s(sW)}, 4")
    a.I(f"s_cbranch_scc1 {N}_short")
    role(False)
    a.label(f"{N}_short")
    role(True)
    kend(a, N)
    return a, N, (256, 512, 163840 if withb2 else 131072)


def oproj_body(a, N, st, bar_at=None):
    ACC, CR, AFR = 64, 128, 192
    DEPTH = 8
    L16, L16B, VD0, VD1, TB = 1, 2, 3, 4, 5
    a.I("s_and_b32 s10, s2, 7")
    a.I("s_lshr_b32 s11, s2, 3")
    a.I("s_and_b32 s12, s11, 3")
    a.I("s_lshl_b32 s10, s10, 2")
    a.I("s_add_u32 s17, s10, s12")
    a.I("s_lshr_b32 s18, s11, 2")
    if os.environ.get("OPX") == "same":
        a.I("s_mov_b32 s17, 0")
        a.I("s_mov_b32 s18, 0")
    if os.environ.get("OPX") == "map2":
        a.I("s_and_b32 s10, s2, 3")
        a.I("s_lshl_b32 s10, s10, 3")
        a.I("s_and_b32 s12, s11, 7")
        a.I("s_add_u32 s17, s10, s12")
        a.I("s_bfe_u32 s10, s2, 0x10002")
        a.I("s_lshl_b32 s10, s10, 2")
        a.I("s_lshr_b32 s12, s11, 3")
        a.I("s_add_u32 s18, s10, s12")
    a.I(f"v_lshlrev_b32 {v(L16)}, 4, v0")
    a.I(f"v_add_u32 {v(L16B)}, 0x40000, {v(L16)}")
    a.I("v_lshrrev_b32 v8, 3, v0")
    a.I("v_lshlrev_b32 v8, 10, v8")
    a.I("v_bfe_u32 v9, v0, 4, 1")
    a.I("v_lshlrev_b32 v10, 2, v9")
    a.I("v_and_b32 v11, 7, v0")
    a.I("v_xor_b32 v10, v10, v11")
    a.I(f"v_lshl_add_u32 {v(VD0)}, v10, 4, v8")
    a.I("s_lshl_b32 s10, s18, 7")
    a.I(f"v_add_u32 {v(VD0)}, s10, {v(VD0)}")
    a.I(f"v_add_u32 {v(VD1)}, {8192 - 1024}, {v(VD0)}")
    a.I("v_lshrrev_b32 v8, 5, v0")
    a.I("v_bfe_u32 v10, v0, 2, 2")
    a.I("v_lshl_add_u32 v8, v8, 2, v10")
    a.I(f"v_lshlrev_b32 {v(TB)}, 7, v8")
    a.I(f"v_lshl_add_u32 {v(TB)}, v9, 5, {v(TB)}")
    a.I("v_and_b32 v10, 3, v0")
    a.I(f"v_lshl_add_u32 {v(TB)}, v10, 3, {v(TB)}")
    a.I("v_bfe_u32 v10, v0, 3, 1")
    a.I(f"v_lshl_add_u32 {v(TB)}, v10, 6, {v(TB)}")
    a.I("s_lshl_b32 s19, s16, 14")
    a.I(f"v_add_u32 {v(TB)}, s19, {v(TB)}")
    a.I(f"v_xor_b32 {v(TB + 1)}, 64, {v(TB)}")
    a.I("s_lshl_b32 s40, s17, 19")
    a.I("s_lshl_b32 s10, s16, 16")
    a.I("s_add_u32 s40, s40, s10")
    a.I("s_lshl_b32 s41, s16, 20")
    a.I("s_waitcnt lgkmcnt(0)")
    srd(a, 20, 4, 5, 16 * MB, add=WS_CTX)
    srd(a, 24, 6, 7, 4 * MB)
    srd(a, 28, 8, 9, 4 * MB)
    vm, lg = VM(a), LG(a)
    st()

    def loads(g):
        sl = g % DEPTH
        a.I(f"s_add_u32 m0, s19, {sl * 2048}")
        a.I(f"s_add_u32 s42, s41, {hex(g * 16384)}")
        vm.issue(f"buffer_load_dwordx4 {v(VD0)}, s[24:27], s42 offen lds", g)
        vm.issue(f"buffer_load_dwordx4 {v(VD1)}, s[24:27], s42 offen offset:1024 lds", g)
        if g % 4 == 0:
            a.I(f"s_add_u32 s43, s40, {hex(g * 1024)}")
        vm.issue(f"buffer_load_dwordx4 {v(CR + 8 * sl, 4)}, {v(L16)}, s[20:23], s43 offen offset:{(g % 4) * 1024}", g)
        vm.issue(f"buffer_load_dwordx4 {v(CR + 8 * sl + 4, 4)}, {v(L16B)}, s[20:23], s43 offen offset:{(g % 4) * 1024}", g)

    def trs(g):
        sl = g % DEPTH
        vm.wait(g)
        for cb in range(2):
            d = AFR + 8 * (g & 1) + 4 * cb
            lg.issue(f"ds_read_b64_tr_b16 {v(d, 2)}, {v(TB + cb)} offset:{sl * 2048}", g)
            lg.issue(f"ds_read_b64_tr_b16 {v(d + 2, 2)}, {v(TB + cb)} offset:{sl * 2048 + 1024}", g)

    for g in range(DEPTH):
        loads(g)
    st()
    trs(0)
    st()
    for g in range(64):
        if g + 1 < 64:
            trs(g + 1)
        lg.wait(g)
        sl = g % DEPTH
        for qt in range(2):
            for cb in range(2):
                acc = v(ACC + 16 * (2 * qt + cb), 16)
                a.I(f"{MF} {acc}, {v(AFR + 8 * (g & 1) + 4 * cb, 4)}, {v(CR + 8 * sl + 4 * qt, 4)}, {'0' if g == 0 else acc}")
        if g + DEPTH < 64:
            loads(g + DEPTH)
        if g == bar_at:
            a.I("s_barrier")
    st()
    a.I(f"v_add_u32 v8, s19, {v(L16)}")
    a.I("s_nop 11")
    for tl in range(4):
        for jq in range(4):
            a.I(f"ds_write_b128 v8, {v(ACC + 16 * tl + 4 * jq, 4)} offset:{(tl * 4 + jq) * 1024}")
    a.I("v_lshrrev_b32 v9, 5, v0")
    a.I("v_and_b32 v10, 31, v0")
    a.I("v_lshlrev_b32 v10, 4, v10")
    a.I("v_lshl_add_u32 v9, v9, 13, v10")
    a.I("s_lshl_b32 s10, s16, 11")
    a.I("v_add_u32 v9, s10, v9")
    a.I("s_lshl_b32 s11, s17, 17")
    a.I("s_lshl_b32 s12, s18, 7")
    a.I("s_add_u32 s11, s11, s12")
    a.I("s_lshl_b32 s12, s16, 5")
    a.I("s_add_u32 s11, s11, s12")
    a.I("v_lshlrev_b32 v10, 11, v0")
    a.I("s_waitcnt lgkmcnt(0)")
    return ACC


def oproj_finish(a, ACC):
    for pw in range(4):
        for i in range(4):
            jq, hl = divmod(i, 2)
            a.I(f"ds_read_b128 {v(ACC + 16 * pw + 4 * i, 4)}, v9 offset:{pw * 16384 + jq * 1024 + hl * 512}")
        if pw == 1:
            a.I("s_waitcnt lgkmcnt(0)")
            for j in range(16):
                a.I(f"v_add_f32 {v(ACC + j)}, {v(ACC + j)}, {v(ACC + 16 + j)}")
    a.I("s_waitcnt lgkmcnt(0)")
    for j in range(16):
        a.I(f"v_add_f32 {v(ACC + 32 + j)}, {v(ACC + 32 + j)}, {v(ACC + 48 + j)}")
    for j in range(16):
        a.I(f"v_add_f32 {v(ACC + j)}, {v(ACC + j)}, {v(ACC + 32 + j)}")
    for i in range(8):
        a.I(f"v_cvt_pk_bf16_f32 {v(12 + i)}, {v(ACC + 2 * i)}, {v(ACC + 2 * i + 1)}")
    a.I("buffer_store_dwordx4 v[12:15], v10, s[28:31], s11 offen")
    a.I("buffer_store_dwordx4 v[16:19], v10, s[28:31], s11 offen offset:16")


def gen_oproj():
    a = Asm()
    N = "oproj_kernel"
    kstart(a, N, 256)
    a.I("s_load_dwordx2 s[4:5], s[0:1], 88")
    a.I("s_load_dwordx2 s[6:7], s[0:1], 40")
    a.I("s_load_dwordx2 s[8:9], s[0:1], 72")
    a.I("v_lshrrev_b32 v1, 6, v0")
    a.I("v_and_b32 v0, 63, v0")
    a.I("s_nop 0")
    a.I("v_readfirstlane_b32 s16, v1")
    a.I("s_nop 0")
    st = Stamper(a, "oproj")
    ACC = oproj_body(a, N, st)
    a.I("s_barrier")
    oproj_finish(a, ACC)
    st.dump(16, 4, tmpv=8)
    kend(a, N)
    return a, N, (256, 256, 65536)


def PERMC(j):
    return 8 * (j >> 2) + (j & 3)


def gen_mat(a, dst, nf, base, consts, tmp):
    n = len(consts)
    for i in range(0, n, 4):
        for q in range(4):
            a.I(f"v_fmamk_f32 {v(tmp + q)}, {v(nf)}, {f32(float(consts[i + q]))}, {v(base)}")
        for q in range(4):
            a.I(f"v_cos_f32 {v(tmp + q)}, {v(tmp + q)}")
        a.I("s_nop 0")
        for q in range(2):
            a.I(f"v_cvt_pk_bf16_f32 {v(dst + i // 2 + q)}, {v(tmp + 2 * q)}, {v(tmp + 2 * q + 1)}")


def twiddle(a, Dr, Di, regs, nf, base, consts, sign, tmp):
    for x, c in enumerate(consts):
        A, C, S_, U = tmp, tmp + 1, tmp + 2, tmp + 3
        a.I(f"v_fmamk_f32 {v(A)}, {v(nf)}, {f32(float(c))}, {v(base)}")
        a.I(f"v_cos_f32 {v(C)}, {v(A)}")
        a.I(f"v_sin_f32 {v(S_)}, {v(A)}")
        a.I("s_nop 0")
        for j in regs[x]:
            ng = "-" if sign > 0 else ""
            ps = "" if sign > 0 else "-"
            a.I(f"v_mul_f32 {v(U)}, {v(Dr + j)}, {v(S_)}")
            a.I(f"v_mul_f32 {v(Dr + j)}, {v(Dr + j)}, {v(C)}")
            a.I(f"v_fma_f32 {v(Dr + j)}, {ng}{v(Di + j)}, {v(S_)}, {v(Dr + j)}")
            a.I(f"v_fma_f32 {v(Di + j)}, {v(Di + j)}, {v(C)}, {ps}{v(U)}")


def pack(a, dst, src, n):
    for i in range(n):
        a.I(f"v_cvt_pk_bf16_f32 {v(dst + i)}, {v(src + 2 * i)}, {v(src + 2 * i + 1)}")


def b_decode(a):
    a.I("s_and_b32 s20, s2, 7")
    a.I("s_lshl_b32 s20, s20, 3")
    a.I("s_bfe_u32 s22, s2, 0x30003")
    a.I("s_or_b32 s20, s20, s22")
    a.I("s_lshr_b32 s21, s2, 6")


def gen_b1():
    a = Asm()
    N = "b1_kernel"
    kstart(a, N, 256)
    a.I("s_load_dwordx2 s[4:5], s[0:1], 88")
    a.I("s_load_dwordx4 s[8:11], s[0:1], 48")
    a.I("s_load_dwordx2 s[12:13], s[0:1], 64")
    a.I("v_lshrrev_b32 v1, 6, v0")
    a.I("v_and_b32 v2, 255, v0")
    a.I("v_and_b32 v0, 63, v0")
    a.I("v_readfirstlane_b32 s16, v1")
    b_decode(a)
    a.I("s_lshr_b32 s23, s21, 1")
    a.I("s_lshl_b32 s23, s23, 11")
    a.I("s_lshr_b32 s24, s20, 5")
    a.I("s_lshl_b32 s24, s24, 10")
    a.I("s_add_u32 s23, s23, s24")
    a.I("s_and_b32 s24, s20, 31")
    a.I("s_lshl_b32 s24, s24, 4")
    a.I("s_add_u32 s23, s23, s24")
    a.I("s_and_b32 s24, s21, 1")
    a.I("s_lshl_b32 s24, s24, 9")
    a.I("s_add_u32 s23, s23, s24")
    a.I("s_add_u32 s24, s23, 4096")
    a.I("v_lshlrev_b32 v3, 13, v2")
    a.I("s_cmp_ge_u32 s16, 4")
    a.I("s_waitcnt lgkmcnt(0)")
    a.I(f"s_cbranch_scc1 {N}_filt")
    srd(a, 28, 8, 9, 2 * MB)
    srd(a, 32, 4, 5, 257 * 8192, add=WS_Y)
    a.I("s_lshr_b32 s25, s21, 1")
    a.I("s_lshl_b32 s25, s25, 4")
    a.I("s_and_b32 s26, s21, 1")
    a.I("s_lshl_b32 s26, s26, 2")
    a.I("s_add_u32 s25, s25, s26")
    a.I("s_lshr_b32 s26, s16, 1")
    a.I("s_lshl_b32 s26, s26, 3")
    a.I("s_add_u32 s25, s25, s26")
    a.I("s_and_b32 s26, s16, 1")
    a.I("s_lshl_b32 s26, s26, 1")
    a.I("s_add_u32 s25, s25, s26")
    a.I("s_lshl_b32 s25, s25, 6")
    a.I("s_add_u32 s25, s25, s20")
    a.I("s_lshl_b32 s25, s25, 10")
    a.I(f"s_add_u32 s26, s25, {65536 - 1024}")
    a.I("s_lshl_b32 s27, s16, 11")
    a.I("s_mov_b32 m0, s27")
    a.I("v_lshlrev_b32 v4, 4, v0")
    a.I("buffer_load_dwordx4 v4, s[28:31], s25 offen lds")
    a.I("buffer_load_dwordx4 v4, s[28:31], s26 offen offset:1024 lds")
    HL, NF, BS, TM = 5, 6, 7, 8
    C32, NS32, AR, AI, XF, D1R, D1I, TR, TI, D2 = 16, 24, 32, 36, 40, 48, 64, 80, 88, 96
    a.I(f"v_lshrrev_b32 {v(HL)}, 5, v0")
    a.I(f"v_cvt_f32_u32 {v(HL)}, {v(HL)}")
    a.I("v_and_b32 v12, 31, v0")
    a.I("v_cvt_f32_u32 v12, v12")
    a.I(f"v_mul_f32 {v(NF)}, {f32(1 / 32)}, v12")
    a.I(f"v_mul_f32 {v(BS)}, {v(NF)}, {v(HL)}")
    a.I(f"v_mul_f32 {v(BS)}, {f32(8.0)}, {v(BS)}")
    nat = [16 * t + j for t in range(2) for j in range(8)]
    gen_mat(a, C32, NF, BS, nat, TM)
    a.I(f"v_add_f32 {v(BS)}, {f32(0.25)}, {v(BS)}")
    gen_mat(a, NS32, NF, BS, nat, TM)
    a.I("v_and_b32 v13, 15, v0")
    a.I("v_cvt_f32_u32 v13, v13")
    a.I(f"v_mul_f32 {v(NF)}, {f32(1 / 16)}, v13")
    a.I("v_bfe_u32 v13, v0, 4, 1")
    a.I("v_cvt_f32_u32 v13, v13")
    a.I(f"v_mul_f32 {v(BS)}, {v(NF)}, {v(HL)}")
    a.I(f"v_mul_f32 {v(BS)}, 4.0, {v(BS)}")
    a.I(f"v_fmamk_f32 {v(BS)}, v13, {f32(0.25)}, {v(BS)}")
    pc = [PERMC(j) for j in range(8)]
    gen_mat(a, AR, NF, BS, pc, TM)
    a.I(f"v_add_f32 {v(BS)}, {f32(-0.25)}, {v(BS)}")
    gen_mat(a, AI, NF, BS, pc, TM)
    a.I("v_bfe_u32 v13, v0, 4, 1")
    a.I("v_lshlrev_b32 v13, 10, v13")
    a.I("v_lshrrev_b32 v14, 5, v0")
    a.I("v_lshl_add_u32 v13, v14, 8, v13")
    a.I("v_and_b32 v15, 15, v0")
    a.I("v_lshl_add_u32 v13, v15, 3, v13")
    a.I("v_add_u32 v13, s27, v13")
    a.I("s_waitcnt vmcnt(0)")
    for t in range(2):
        for h in range(2):
            a.I(f"ds_read_b64_tr_b16 {v(XF + 4 * t + 2 * h, 2)}, v13 offset:{t * 512 + h * 128}")
    a.I(f"v_mul_f32 {v(NF)}, {f32(1 / 512)}, v12")
    a.I(f"v_mul_f32 {v(BS)}, {v(NF)}, {v(HL)}")
    a.I(f"v_mul_f32 {v(BS)}, 4.0, {v(BS)}")
    a.I("s_waitcnt lgkmcnt(0)")
    for t in range(2):
        a.I(f"{MF} {v(D1R, 16)}, {v(XF + 4 * t, 4)}, {v(C32 + 4 * t, 4)}, {'0' if t == 0 else v(D1R, 16)}")
    for t in range(2):
        a.I(f"{MF} {v(D1I, 16)}, {v(XF + 4 * t, 4)}, {v(NS32 + 4 * t, 4)}, {'0' if t == 0 else v(D1I, 16)}")
    a.I("v_and_b32 v15, 31, v0")
    a.I("v_lshlrev_b32 v15, 4, v15")
    a.I("v_lshl_add_u32 v15, v14, 11, v15")
    a.I("s_lshl_b32 s25, s16, 2")
    a.I("s_add_u32 s25, s25, 8192")
    a.I("v_add_u32 v15, s25, v15")
    a.I("s_nop 7")
    twiddle(a, D1R, D1I, [[j, j + 8] for j in range(8)], NF, BS, pc, -1, TM)
    pack(a, TR, D1R, 8)
    pack(a, TI, D1I, 8)
    a.I("s_nop 1")
    for r in range(2):
        a.I(f"{MF} {v(D2 + 16 * r, 16)}, {v(AR, 4)}, {v(TR + 4 * r, 4)}, 0")
        a.I(f"{MF} {v(D2 + 16 * r, 16)}, {v(AI, 4)}, {v(TI + 4 * r, 4)}, {v(D2 + 16 * r, 16)}")
    a.I("s_nop 11")
    for c in range(2):
        for j in range(5):
            a.I(f"v_cvt_pk_bf16_f32 {v(TR + 5 * c + j)}, {v(D2 + 8 * c + j)}, {v(D2 + 16 + 8 * c + j)}")
    for c in range(2):
        for j in range(4):
            a.I(f"ds_write_b32 v15, {v(TR + 5 * c + j)} offset:{(c * 8 + j) * 512}")
    a.I("v_cmp_eq_u32 vcc, 0, v0")
    a.I("s_and_saveexec_b64 s[36:37], vcc")
    for c in range(2):
        a.I(f"ds_write_b32 v15, {v(TR + 5 * c + 4)} offset:{8192 + 16 * c}")
    a.I("s_mov_b64 exec, s[36:37]")
    a.I("v_lshlrev_b32 v14, 4, v2")
    a.I("s_waitcnt lgkmcnt(0)")
    a.I("s_barrier")
    a.I("ds_read_b128 v[16:19], v14 offset:8192")
    a.I(f"ds_read_b128 v[20:23], v14 offset:{8192 + 4096}")
    a.I(f"ds_read_b128 v[24:27], v14 offset:{8192 + 8192}")
    a.I("v_lshlrev_b32 v13, 12, v2")
    a.I(f"v_add_u32 v13, {256 * 8192}, v13")
    a.I("s_waitcnt lgkmcnt(0)")
    a.I("buffer_store_dwordx4 v[16:19], v3, s[32:35], s23 offen")
    a.I("buffer_store_dwordx4 v[20:23], v3, s[32:35], s24 offen")
    a.I("v_cmp_gt_u32 vcc, 2, v2")
    a.I("s_and_saveexec_b64 s[36:37], vcc")
    a.I(f"s_cbranch_execz {N}_end")
    a.I("buffer_store_dwordx4 v[24:27], v13, s[32:35], s23 offen")
    a.I("s_endpgm")
    a.label(f"{N}_filt")
    srd(a, 28, 10, 11, 2048 * 514)
    srd(a, 32, 12, 13, 2048 * 514)
    srd(a, 36, 4, 5, 257 * 8192, add=WS_WF)
    a.I("s_lshr_b32 s25, s21, 1")
    a.I("s_lshl_b32 s25, s25, 5")
    a.I("s_lshr_b32 s26, s20, 5")
    a.I("s_lshl_b32 s26, s26, 4")
    a.I("s_add_u32 s25, s25, s26")
    a.I("s_and_b32 s26, s21, 1")
    a.I("s_lshl_b32 s26, s26, 2")
    a.I("s_add_u32 s25, s25, s26")
    a.I("s_lshl_b32 s25, s25, 5")
    a.I("s_and_b32 s26, s20, 31")
    a.I("s_add_u32 s25, s25, s26")
    a.I("s_mul_i32 s25, s25, 514")
    for j in range(8):
        a.I(f"s_add_u32 s{40 + j}, s25, {PERMC(j) * 32 * 514}")
    a.I("v_lshlrev_b32 v4, 1, v2")
    a.I("v_mov_b32 v5, 512")
    for q, va in enumerate((4, 5)):
        for c in range(2):
            for j in range(8):
                a.I(f"buffer_load_ushort {v(32 + 16 * q + 8 * c + j)}, {v(va)}, s[{28 + 4 * c}:{31 + 4 * c}], s{40 + j} offen")
    a.I(f"v_mov_b32 v6, {256 * 8192}")
    a.I("s_waitcnt vmcnt(16)")
    for i in range(8):
        a.I(f"v_lshl_or_b32 {v(16 + i)}, {v(33 + 2 * i)}, 16, {v(32 + 2 * i)}")
    a.I("buffer_store_dwordx4 v[16:19], v3, s[36:39], s23 offen")
    a.I("buffer_store_dwordx4 v[20:23], v3, s[36:39], s24 offen")
    a.I("v_cmp_eq_u32 vcc, 0, v2")
    a.I("s_and_saveexec_b64 s[48:49], vcc")
    a.I(f"s_cbranch_execz {N}_end")
    a.I("s_waitcnt vmcnt(2)")
    for i in range(8):
        a.I(f"v_lshl_or_b32 {v(24 + i)}, {v(49 + 2 * i)}, 16, {v(48 + 2 * i)}")
    a.I("buffer_store_dwordx4 v[24:27], v6, s[36:39], s23 offen")
    a.I("buffer_store_dwordx4 v[28:31], v6, s[36:39], s24 offen")
    kend(a, N)
    return a, N, (256, 512, 20480)


def b2_body(a, own, col_s, lds_s, svc, vm, R0=0, S0=20, SR=28, slice_len=110):
    L16, HL, NF, BS, LF, XA, XB, TM, LB = [R0 + x for x in (1, 2, 3, 4, 5, 6, 7, 8, 12)]
    YR, YI, WR, WI = [R0 + x for x in (16, 24, 32, 40)]
    C32, S32, NS32, C64, S64 = [R0 + x for x in (48, 56, 64, 72, 88)]
    DR, DI = R0 + 104, R0 + 120
    FR, FI, FN = R0 + 136, R0 + 152, R0 + 168
    sY, sW, sSC, sT = S0, S0 + 2, S0 + 4, S0 + 5
    I0 = a.I
    cnt = [0]

    def I(text):
        r = I0(text)
        cnt[0] += 1
        if cnt[0] >= slice_len and text.startswith("v_cvt_pk") or cnt[0] >= slice_len and text.startswith("v_fma_f32"):
            dosvc()
        return r

    def dosvc():
        a.I = I0
        svc()
        a.I = I
        cnt[0] = 0

    a.I(f"v_lshlrev_b32 {v(L16)}, 4, v0")
    a.I(f"s_lshl_b32 {s(sT)}, {s(col_s)}, 13")
    a.I(f"s_add_u32 {s(sY)}, {s(sT)}, {own * 1024}")
    a.I(f"s_add_u32 {s(sY + 1)}, {s(sT)}, {own * 1024 + 4096}")
    a.I(f"s_add_u32 {s(sW)}, {s(sT)}, {own * 2048}")
    a.I(f"s_add_u32 {s(sW + 1)}, {s(sT)}, {own * 2048 + 4096}")
    srd(a, SR, 4, 5, 257 * 8192, add=WS_Y)
    srd(a, SR + 4, 4, 5, 257 * 8192, add=WS_WF)
    srd(a, SR + 8, 4, 5, 257 * 8192, add=WS_Z)
    for c in range(2):
        for t in range(2):
            vm.issue(f"buffer_load_dwordx4 {v(YR + 8 * c + 4 * t, 4)}, {v(L16)}, {s(SR, 4)}, {s(sY + c)} offen offset:{t * 2048}", "Y")
    for c in range(2):
        for h in range(2):
            vm.issue(f"buffer_load_dwordx4 {v(WR + 8 * c + 4 * h, 4)}, {v(L16)}, {s(SR + 4, 4)}, {s(sW + c)} offen offset:{h * 1024}", "WF")
    a.I = I
    a.I(f"s_mov_b32 {s(sSC)}, {f32(2.0 ** -19)}")
    a.I(f"s_and_b32 {s(sT)}, {s(col_s)}, 255")
    a.I(f"s_cmp_eq_u32 {s(sT)}, 0")
    a.I(f"s_cselect_b32 {s(sSC)}, {f32(2.0 ** -20)}, {s(sSC)}")
    a.I(f"v_lshrrev_b32 {v(HL)}, 5, v0")
    a.I(f"v_cvt_f32_u32 {v(HL)}, {v(HL)}")
    a.I(f"v_mul_f32 {v(HL)}, 4.0, {v(HL)}")
    a.I(f"v_and_b32 {v(LF)}, 31, v0")
    a.I(f"v_cvt_f32_u32 {v(LF)}, {v(LF)}")
    a.I(f"v_add_f32 {v(LB)}, {f32(32.0 * own)}, {v(LF)}")
    pc = lambda n: [16 * t + PERMC(j) for t in range(n) for j in range(8)]
    a.I(f"v_mul_f32 {v(NF)}, {f32(1 / 32)}, {v(LF)}")
    a.I(f"v_mul_f32 {v(BS)}, {v(NF)}, {v(HL)}")
    gen_mat(a, C32, NF, BS, pc(2), TM)
    a.I(f"v_add_f32 {v(BS)}, {f32(-0.25)}, {v(BS)}")
    gen_mat(a, S32, NF, BS, pc(2), TM)
    for i in range(8):
        a.I(f"v_xor_b32 {v(NS32 + i)}, 0x80008000, {v(S32 + i)}")
    a.I(f"v_mul_f32 {v(NF)}, {f32(1 / 64)}, {v(LB)}")
    a.I(f"v_mul_f32 {v(BS)}, {v(NF)}, {v(HL)}")
    gen_mat(a, C64, NF, BS, pc(4), TM)
    a.I(f"v_add_f32 {v(BS)}, {f32(-0.25)}, {v(BS)}")
    gen_mat(a, S64, NF, BS, pc(4), TM)
    a.I(f"v_add_u32 {v(XA)}, {s(lds_s)}, {v(L16)}")
    a.I(f"v_add_u32 {v(XB)}, {(1 - own) * 4096}, {v(XA)}")
    a.I(f"v_add_u32 {v(XA)}, {own * 4096}, {v(XA)}")

    def mm(D, terms):
        first = True
        for A_, B_ in terms:
            a.I(f"{MF} {v(D, 16)}, {v(A_, 4)}, {v(B_, 4)}, {'0' if first else v(D, 16)}")
            first = False
        cnt[0] += 6 * len(terms)

    def exchange(neg_of, ldsoff):
        for c, F in enumerate((FR, FI)):
            for h in range(2):
                a.I(f"ds_write_b128 {v(XA)}, {v(F + 8 * own + 4 * h, 4)} offset:{ldsoff + (2 * c + h) * 1024}")
        a.I("s_waitcnt lgkmcnt(0)")
        dosvc()
        for c, F in enumerate((FR, FI)):
            for h in range(2):
                a.I(f"ds_read_b128 {v(F + 8 * (1 - own) + 4 * h, 4)}, {v(XB)} offset:{ldsoff + (2 * c + h) * 1024}")
        for i in range(8):
            a.I(f"v_xor_b32 {v(FN + 8 * own + i)}, 0x80008000, {v(neg_of + 8 * own + i)}")
        a.I("s_waitcnt lgkmcnt(0)")
        for i in range(8):
            a.I(f"v_xor_b32 {v(FN + 8 * (1 - own) + i)}, 0x80008000, {v(neg_of + 8 * (1 - own) + i)}")
        a.I("s_nop 1")

    jc = [(j & 3) + 8 * (j >> 2) for j in range(16)]
    a.I(f"v_mul_f32 {v(NF)}, {f32(1 / 2048)}, {v(LF)}")
    a.I(f"v_add_f32 {v(BS)}, {f32(32.0 * own)}, {v(HL)}")
    a.I(f"v_mul_f32 {v(BS)}, {v(NF)}, {v(BS)}")
    vm.wait("Y")
    mm(DR, [(YR, C32), (YR + 4, C32 + 4), (YI, S32), (YI + 4, S32 + 4)])
    mm(DI, [(YI, C32), (YI + 4, C32 + 4), (YR, NS32), (YR + 4, NS32 + 4)])
    a.I("s_nop 11")
    twiddle(a, DR, DI, [[j] for j in range(16)], NF, BS, jc, -1, TM)
    pack(a, FR + 8 * own, DR, 8)
    pack(a, FI + 8 * own, DI, 8)
    exchange(FR, 0)
    mm(DR, [(C64 + 4 * t, FR + 4 * t) for t in range(4)] + [(S64 + 4 * t, FI + 4 * t) for t in range(4)])
    mm(DI, [(C64 + 4 * t, FI + 4 * t) for t in range(4)] + [(S64 + 4 * t, FN + 4 * t) for t in range(4)])
    vm.wait("WF")
    a.I("s_nop 11")
    for j in range(16):
        wr, wi, u = TM, TM + 1, TM + 2
        if j & 1:
            a.I(f"v_and_b32 {v(wr)}, 0xffff0000, {v(WR + j // 2)}")
            a.I(f"v_and_b32 {v(wi)}, 0xffff0000, {v(WI + j // 2)}")
        else:
            a.I(f"v_lshlrev_b32 {v(wr)}, 16, {v(WR + j // 2)}")
            a.I(f"v_lshlrev_b32 {v(wi)}, 16, {v(WI + j // 2)}")
        a.I(f"v_mul_f32 {v(wr)}, {s(sSC)}, {v(wr)}")
        a.I(f"v_mul_f32 {v(wi)}, {s(sSC)}, {v(wi)}")
        a.I(f"v_mul_f32 {v(u)}, {v(DR + j)}, {v(wi)}")
        a.I(f"v_mul_f32 {v(DR + j)}, {v(DR + j)}, {v(wr)}")
        a.I(f"v_fma_f32 {v(DR + j)}, -{v(DI + j)}, {v(wi)}, {v(DR + j)}")
        a.I(f"v_fma_f32 {v(DI + j)}, {v(DI + j)}, {v(wr)}, {v(u)}")
    pack(a, FR + 8 * own, DR, 8)
    pack(a, FI + 8 * own, DI, 8)
    exchange(FI, 8192)
    mm(DR, [(FR + 4 * t, C64 + 4 * t) for t in range(4)] + [(FN + 4 * t, S64 + 4 * t) for t in range(4)])
    mm(DI, [(FI + 4 * t, C64 + 4 * t) for t in range(4)] + [(FR + 4 * t, S64 + 4 * t) for t in range(4)])
    a.I(f"v_mul_f32 {v(NF)}, {f32(1 / 2048)}, {v(LB)}")
    a.I(f"v_mul_f32 {v(BS)}, {v(NF)}, {v(HL)}")
    a.I("s_nop 11")
    twiddle(a, DR, DI, [[j] for j in range(16)], NF, BS, jc, +1, TM)
    pack(a, FR, DR, 8)
    pack(a, FI, DI, 8)
    a.I("s_nop 1")
    mm(DR, [(C32, FR), (C32 + 4, FR + 4), (NS32, FI), (NS32 + 4, FI + 4)])
    mm(DI, [(C32, FI), (C32 + 4, FI + 4), (S32, FR), (S32 + 4, FR + 4)])
    a.I = I0
    a.I("s_nop 7")
    pack(a, YR, DR, 8)
    a.I("s_nop 3")
    pack(a, YI, DI, 8)
    for c in range(2):
        for h in range(2):
            vm.issue(f"buffer_store_dwordx4 {v(YR + 8 * c + 4 * h, 4)}, {v(L16)}, {s(SR + 8, 4)}, {s(sW + c)} offen offset:{h * 1024}", "Z")


def gen_b2():
    a = Asm()
    N = "b2_kernel"
    kstart(a, N, 257)
    a.I("s_load_dwordx2 s[4:5], s[0:1], 88")
    a.I("v_lshrrev_b32 v1, 6, v0")
    a.I("v_and_b32 v0, 63, v0")
    a.I("s_mov_b32 s17, 0")
    a.I("v_readfirstlane_b32 s16, v1")
    a.I("s_waitcnt lgkmcnt(0)")
    a.I("s_cmp_eq_u32 s16, 1")
    a.I(f"s_cbranch_scc1 {N}_w1")
    b2_body(a, 0, 2, 17, lambda: a.I("s_barrier"), VM(a), slice_len=10 ** 9)
    a.I("s_endpgm")
    a.label(f"{N}_w1")
    b2_body(a, 1, 2, 17, lambda: a.I("s_barrier"), VM(a), slice_len=10 ** 9)
    kend(a, N)
    return a, N, (257, 128, 16384)


def b3_body(a, LB=0, outp=6):
    b_decode(a)
    a.I("s_lshr_b32 s23, s20, 5")
    a.I("s_lshl_b32 s23, s23, 11")
    a.I("s_lshl_b32 s24, s21, 9")
    a.I("s_add_u32 s23, s23, s24")
    a.I("s_and_b32 s24, s20, 31")
    a.I("s_lshl_b32 s24, s24, 4")
    a.I("s_add_u32 s23, s23, s24")
    a.I("s_add_u32 s24, s23, 4096")
    a.I("v_lshlrev_b32 v3, 13, v2")
    a.I(f"v_mov_b32 v4, {256 * 8192}")
    a.I("s_waitcnt lgkmcnt(0)")
    srd(a, 28, 4, 5, 257 * 8192, add=WS_Z)
    srd(a, 32, outp, outp + 1, 4 * MB)
    a.I("buffer_load_dwordx4 v[16:19], v3, s[28:31], s23 offen")
    a.I("buffer_load_dwordx4 v[20:23], v3, s[28:31], s24 offen")
    a.I("buffer_load_dwordx4 v[24:27], v4, s[28:31], s23 offen")
    HL, NF, BS, AFL, TM = 5, 6, 7, 12, 8
    C32, NS32, BRE, BIM, MT, ZF, UR, UI, TR, TI = 32, 40, 48, 56, 64, 68, 80, 96, 112, 120
    a.I(f"v_lshrrev_b32 {v(HL)}, 5, v0")
    a.I(f"v_cvt_f32_u32 {v(HL)}, {v(HL)}")
    a.I("v_and_b32 v13, 31, v0")
    a.I("v_cvt_f32_u32 v13, v13")
    a.I(f"v_mul_f32 {v(NF)}, {f32(1 / 32)}, v13")
    a.I(f"v_mul_f32 {v(BS)}, {v(NF)}, {v(HL)}")
    a.I(f"v_mul_f32 {v(BS)}, 4.0, {v(BS)}")
    pc = [16 * t + PERMC(j) for t in range(2) for j in range(8)]
    gen_mat(a, C32, NF, BS, pc, TM)
    a.I(f"v_add_f32 {v(BS)}, {f32(0.25)}, {v(BS)}")
    gen_mat(a, NS32, NF, BS, pc, TM)
    a.I(f"v_and_b32 {v(AFL)}, 15, v0")
    a.I(f"v_cvt_f32_u32 {v(AFL)}, {v(AFL)}")
    a.I(f"v_mul_f32 {v(NF)}, {f32(1 / 16)}, {v(AFL)}")
    a.I(f"v_mul_f32 {v(BS)}, {f32(0.25)}, {v(HL)}")
    a.I("v_and_b32 v13, 16, v0")
    a.I("v_cmp_eq_u32 vcc, 0, v13")
    a.I("v_mov_b32 v14, 0")
    for B_, ph in ((BRE, None), (BIM, -0.25)):
        if ph:
            a.I(f"v_add_f32 {v(BS)}, {f32(ph)}, {v(BS)}")
        gen_mat(a, MT, NF, BS, list(range(8)), TM)
        for i in range(4):
            a.I(f"v_cndmask_b32 {v(B_ + i)}, v14, {v(MT + i)}, vcc")
            a.I(f"v_cndmask_b32 {v(B_ + 4 + i)}, {v(MT + i)}, v14, vcc")
    a.I("v_and_b32 v13, 31, v2")
    a.I("v_lshlrev_b32 v13, 4, v13")
    a.I("v_lshrrev_b32 v15, 5, v2")
    a.I("v_lshl_add_u32 v13, v15, 1, v13")
    a.I(f"v_add_u32 v13, {LB}, v13")
    a.I("v_cmp_eq_u32 vcc, 0, v2")
    a.I(f"v_mov_b32 v15, {LB + 8192}")
    a.I("s_waitcnt vmcnt(0)")
    for i in range(4):
        a.I(f"v_cndmask_b32 {v(20 + i)}, {v(20 + i)}, v14, vcc")
    for c in range(2):
        for i in range(8):
            a.I(f"ds_write_b16{'_d16_hi' if i & 1 else ''} v13, {v(16 + 4 * c + i // 2)} offset:{i * 1024 + c * 512}")
    a.I("s_and_saveexec_b64 s[36:37], vcc")
    a.I("ds_write_b128 v15, v[24:27]")
    a.I("s_mov_b64 exec, s[36:37]")
    a.I("s_lshl_b32 s25, s16, 11")
    a.I(f"s_add_u32 s25, s25, {LB}")
    a.I("v_lshlrev_b32 v13, 4, v0")
    a.I("v_add_u32 v13, s25, v13")
    a.I("v_bfe_u32 v15, v0, 4, 1")
    a.I("s_lshl_b32 s25, s16, 2")
    a.I(f"s_add_u32 s25, s25, {LB + 8192}")
    a.I("v_lshl_add_u32 v15, v15, 1, s25")
    for j in range(1, 16):
        a.I(f"v_mov_b32 {v(UR + j)}, 0")
    a.I("s_waitcnt lgkmcnt(0)")
    a.I("s_barrier")
    a.I(f"ds_read_u16 {v(UR)}, v15")
    a.I(f"ds_read_b128 {v(ZF, 4)}, v13")
    a.I(f"ds_read_b128 {v(ZF + 4, 4)}, v13 offset:1024")
    a.I("v_and_b32 v15, 1, v0")
    a.I("v_lshlrev_b32 v15, 31, v15")
    a.I("v_cmp_gt_u32 vcc, 32, v0")
    a.I(f"v_mul_f32 {v(NF)}, {f32(1 / 512)}, {v(AFL)}")
    a.I(f"v_mul_f32 {v(BS)}, {v(NF)}, {v(HL)}")
    a.I(f"v_mul_f32 {v(BS)}, 4.0, {v(BS)}")
    a.I("s_waitcnt lgkmcnt(2)")
    a.I(f"v_lshlrev_b32 {v(UR)}, 16, {v(UR)}")
    a.I(f"v_xor_b32 {v(UR)}, {v(UR)}, v15")
    a.I(f"v_cndmask_b32 {v(UR)}, v14, {v(UR)}, vcc")
    a.I("s_waitcnt lgkmcnt(0)")
    a.I("s_nop 0")
    for r in range(2):
        a.I(f"{MF} {v(UR, 16)}, {v(ZF + 4 * r, 4)}, {v(BRE + 4 * r, 4)}, {v(UR, 16)}")
    for r in range(2):
        a.I(f"{MF} {v(UI, 16)}, {v(ZF + 4 * r, 4)}, {v(BIM + 4 * r, 4)}, {'0' if r == 0 else v(UI, 16)}")
    a.I("s_lshr_b32 s25, s21, 1")
    a.I("s_lshl_b32 s25, s25, 4")
    a.I("s_and_b32 s26, s21, 1")
    a.I("s_lshl_b32 s26, s26, 2")
    a.I("s_add_u32 s25, s25, s26")
    a.I("s_lshr_b32 s26, s16, 1")
    a.I("s_lshl_b32 s26, s26, 3")
    a.I("s_add_u32 s25, s25, s26")
    a.I("s_and_b32 s26, s16, 1")
    a.I("s_lshl_b32 s26, s26, 1")
    a.I("s_add_u32 s25, s25, s26")
    a.I("s_lshl_b32 s25, s25, 6")
    a.I("s_add_u32 s25, s25, s20")
    a.I("s_lshl_b32 s25, s25, 11")
    a.I(f"s_add_u32 s26, s25, {64 * 2048}")
    jc = [(j & 3) + 8 * (j >> 2) for j in range(16)]
    twiddle(a, UR, UI, [[j] for j in range(16)], NF, BS, jc, +1, TM)
    pack(a, TR, UR, 8)
    pack(a, TI, UI, 8)
    a.I("v_and_b32 v13, 31, v0")
    a.I("v_lshlrev_b32 v13, 5, v13")
    terms = [(TR, C32), (TR + 4, C32 + 4), (TI, NS32), (TI + 4, NS32 + 4)]
    for i, (A_, B_) in enumerate(terms):
        a.I(f"{MF} {v(UR, 16)}, {v(A_, 4)}, {v(B_, 4)}, {'0' if i == 0 else v(UR, 16)}")
    a.I("v_lshrrev_b32 v15, 5, v0")
    a.I("v_lshl_add_u32 v13, v15, 4, v13")
    a.I("s_nop 9")
    pack(a, 16, UR, 8)
    a.I("s_nop 1")
    for r in range(2):
        a.I(f"v_permlane32_swap_b32 {v(16 + 4 * r)}, {v(18 + 4 * r)}")
        a.I(f"v_permlane32_swap_b32 {v(17 + 4 * r)}, {v(19 + 4 * r)}")
        a.I(f"buffer_store_dwordx4 {v(16 + 4 * r, 4)}, v13, s[32:35], s{25 + r} offen offset:1024")


def gen_b3():
    a = Asm()
    N = "b3_kernel"
    kstart(a, N, 256)
    a.I("s_load_dwordx2 s[4:5], s[0:1], 88")
    a.I("s_load_dwordx2 s[6:7], s[0:1], 72")
    a.I("v_lshrrev_b32 v1, 6, v0")
    a.I("v_mov_b32 v2, v0")
    a.I("v_and_b32 v0, 63, v0")
    a.I("v_readfirstlane_b32 s16, v1")
    b3_body(a)
    kend(a, N)
    return a, N, (256, 256, 8192 + 64)


KERNELS = [gen_b1, gen_qkv, gen_b2, gen_attn, gen_b3, gen_oproj]


ALIASES = [("v_mfma_f32_16x16x32_bf16", "mf16", 4), ("v_mfma_f32_32x32x16_bf16", "mf32", 4),
           ("v_cvt_pk_bf16_f32", "cvtpk", 3)]


def compact(txt):
    lines = txt.split("\n")
    out = []
    done = False
    for l in lines:
        if l.startswith("    "):
            l = l.strip()
            for full, short, n in ALIASES:
                if l.startswith(full + " "):
                    l = short + l[len(full):]
        out.append(l)
        if l.startswith(".amdgcn_target") and not done:
            done = True
            for full, short, n in ALIASES:
                args = ["p%d" % i for i in range(n)]
                out.append(f".macro {short} " + ", ".join(args))
                out.append(f"{full} " + ", ".join("\\" + x for x in args))
                out.append(".endm")
    return "\n".join(out)


def build(kernels, path):
    hdr = open(os.path.join(os.path.dirname(os.path.abspath(__file__)), "..", "cdna_kernels", NAME + ".s.ref")).read()
    head = [l for l in hdr.splitlines() if l.startswith(";") and "@launch" not in l and "Override" not in l
            and "grid=ceil" not in l]
    txt = []
    launches = []
    descs = []
    bad = 0
    for g in kernels:
        KIDX[0] = len(launches)
        a, n, (grid, blk, lds) = g()
        if DBGT:
            items = []
            for it in a.items:
                if it[0] == "i" and it[1].mn == "s_endpgm" and not (items and items[-1][0] == "l" and items[-1][1] == n + "_end" and items[-2][1].mn == "s_endpgm"):
                    b = Asm()
                    lab = None
                    if items[-1][0] == "l" and items[-1][1] == n + "_end":
                        lab = items.pop()
                    dbg_stamp(b, 1)
                    items += b.items
                    if lab:
                        items.append(it)
                        items.append(lab)
                items.append(it)
            a.items = items
        bad += len(a.check())
        nv, ns, na = a.maxregs()
        print(f"{n}: {sum(1 for k, _ in a.items if k == 'i')} instrs, vgpr {nv}, agpr {na}, sgpr {ns}")
        launches.append(f"; @launch kernel={n} grid=({grid},1,1) block=({blk},1,1) lds={lds}")
        txt.append(a.text())
        descs.append(kdesc(n, nv, ns, na))
    if bad:
        print("HAZARDS:", bad)
    out = "\n".join(head) + "\n" + "\n".join(launches) + "\n" + '.amdgcn_target "amdgcn-amd-amdhsa--gfx950"\n' + \
          "".join(txt) + "".join(descs)
    out = compact(out)
    open(path, "w").write(out)
    return bad


if __name__ == "__main__":
    p = sys.argv[1] if len(sys.argv) > 1 else os.path.join(os.path.dirname(os.path.abspath(__file__)), "..",
                                                           "cdna_kernels", NAME + ".s")
    sys.exit(1 if build(KERNELS, p) else 0)
```

```python
import sys, os
sys.path.insert(0, os.path.dirname(os.path.abspath(__file__)))
import gen
from gen import *

M16 = "v_mfma_f32_16x16x32_bf16"
SP = os.environ.get("SP", " sc1")
PUMP = int(os.environ.get("PUMP", "6"))


def gen_l1():
    a = Asm()
    N = "l1_kernel"
    kstart(a, N, 256)
    a.I("s_load_dwordx4 s[4:7], s[0:1], 0")
    a.I("s_load_dwordx4 s[8:11], s[0:1], 16")
    a.I("s_load_dwordx2 s[12:13], s[0:1], 32")
    a.I("s_load_dwordx2 s[14:15], s[0:1], 88")
    a.I("s_load_dwordx4 s[44:47], s[0:1], 48")
    a.I("s_load_dwordx2 s[48:49], s[0:1], 64")
    a.I("v_mov_b32 v1, v0")
    a.I("v_lshrrev_b32 v2, 6, v0")
    a.I("v_and_b32 v0, 63, v0")
    a.I("v_readfirstlane_b32 s16, v2")
    st = Stamper(a, "l1")
    st()
    b_decode(a)
    a.I("s_lshr_b32 s66, s21, 1")
    a.I("s_lshl_b32 s66, s66, 11")
    a.I("s_lshr_b32 s24, s20, 5")
    a.I("s_lshl_b32 s24, s24, 10")
    a.I("s_add_u32 s66, s66, s24")
    a.I("s_and_b32 s24, s20, 31")
    a.I("s_lshl_b32 s24, s24, 4")
    a.I("s_add_u32 s66, s66, s24")
    a.I("s_and_b32 s24, s21, 1")
    a.I("s_lshl_b32 s24, s24, 9")
    a.I("s_add_u32 s66, s66, s24")
    a.I("s_add_u32 s67, s66, 4096")
    a.I("s_lshr_b32 s25, s21, 1")
    a.I("s_lshl_b32 s25, s25, 4")
    a.I("s_and_b32 s26, s21, 1")
    a.I("s_lshl_b32 s26, s26, 2")
    a.I("s_add_u32 s25, s25, s26")
    a.I("s_lshl_b32 s27, s25, 1")
    a.I("s_sub_u32 s27, s27, s26")
    a.I("s_lshr_b32 s26, s16, 1")
    a.I("s_lshl_b32 s26, s26, 3")
    a.I("s_add_u32 s25, s25, s26")
    a.I("s_and_b32 s26, s16, 1")
    a.I("s_lshl_b32 s26, s26, 1")
    a.I("s_add_u32 s25, s25, s26")
    a.I("s_lshl_b32 s25, s25, 6")
    a.I("s_add_u32 s25, s25, s20")
    a.I("s_lshl_b32 s25, s25, 10")
    a.I(f"s_add_u32 s26, s25, {65536 - 1024}")
    a.I("s_lshr_b32 s28, s20, 5")
    a.I("s_lshl_b32 s28, s28, 4")
    a.I("s_add_u32 s27, s27, s28")
    a.I("s_lshl_b32 s27, s27, 5")
    a.I("s_and_b32 s28, s20, 31")
    a.I("s_add_u32 s27, s27, s28")
    a.I("s_mul_i32 s27, s27, 514")
    BLDS = 9 * 16384
    a.I("s_lshl_b32 s28, s16, 11")
    a.I(f"s_add_u32 s65, s28, {BLDS}")
    a.I("s_mov_b32 m0, s65")
    a.I("v_lshlrev_b32 v26, 4, v0")
    a.I("v_lshlrev_b32 v27, 1, v1")
    a.I("v_and_b32 v28, 3, v0")
    a.I("v_bfe_u32 v29, v0, 2, 1")
    a.I("v_lshl_add_u32 v28, v29, 3, v28")
    a.I(f"v_mul_u32_u24 v28, {32 * 514}, v28")
    a.I("v_add_u32 v28, 512, v28")
    vm, lg = VM(a), LG(a)
    a.I("s_waitcnt lgkmcnt(0)")
    srd(a, 60, 44, 45, 2 * MB)
    vm.issue("buffer_load_dwordx4 v26, s[60:63], s25 offen lds", "bx")
    vm.issue("buffer_load_dwordx4 v26, s[60:63], s26 offen offset:1024 lds", "bx")
    WFR = 96
    for c in range(2):
        srd(a, 60, 46 + 2 * c, 47 + 2 * c, 2048 * 514)
        for j in range(8):
            a.I(f"s_add_u32 s28, s27, {PERMC(j) * 32 * 514}")
            vm.issue(f"buffer_load_ushort {v(WFR + 8 * c + j)}, v27, s[60:63], s28 offen", "wf")
        vm.issue(f"buffer_load_ushort {v(WFR + 16 + c)}, v28, s[60:63], s27 offen", "wf")
    a.I("s_and_b32 s17, s2, 7")
    a.I("s_lshr_b32 s18, s2, 3")
    a.I("s_and_b32 s19, s18, 7")
    a.I("s_lshr_b32 s18, s18, 3")
    a.I("s_lshl_b32 s40, s17, 2")
    a.I("s_add_u32 s18, s18, s40")
    a.I("s_mov_b32 s41, 0")
    a.I("s_mul_i32 s42, s18, 6")
    a.I("s_cmp_ge_u32 s18, 11")
    a.I("s_cselect_b32 s41, 1, s41")
    a.I("s_cselect_b32 s40, 64, 0")
    a.I("s_cmp_ge_u32 s18, 21")
    a.I("s_cselect_b32 s41, 2, s41")
    a.I("s_cselect_b32 s40, 126, s40")
    a.I("s_sub_u32 s42, s42, s40")
    a.I("s_lshl_b32 s44, s19, 3")
    a.I("s_lshl_b32 s45, s16, 1")
    a.I("s_add_u32 s44, s44, s45")
    t1, t2, t3, G = 30, 31, 29, 28
    a.I(f"v_lshrrev_b32 {v(t1)}, 3, v0")
    a.I(f"v_lshlrev_b32 {v(t1)}, 13, {v(t1)}")
    a.I("s_lshl_b32 s45, s16, 18")
    a.I(f"v_add_u32 {v(t1)}, s45, {v(t1)}")
    a.I(f"v_bfe_u32 {v(t2)}, v0, 4, 1")
    a.I(f"v_lshlrev_b32 {v(t2)}, 1, {v(t2)}")
    a.I(f"v_and_b32 {v(t3)}, 7, v0")
    a.I(f"v_xor_b32 {v(t2)}, {v(t2)}, {v(t3)}")
    a.I(f"v_lshl_add_u32 v2, {v(t2)}, 4, {v(t1)}")
    a.I("v_xor_b32 v3, 64, v2")
    a.I(f"v_add_u32 v3, {65536 - 1024}, v3")
    a.I(f"v_add_u32 v4, {2 * (65536 - 1024)}, v2")
    a.I(f"v_add_u32 v5, {2 * (65536 - 1024)}, v3")
    a.I(f"v_lshrrev_b32 {v(t1)}, 3, v0")
    a.I(f"v_lshlrev_b32 {v(t1)}, 10, {v(t1)}")
    a.I("s_lshl_b32 s45, s44, 15")
    a.I(f"v_add_u32 {v(t1)}, s45, {v(t1)}")
    a.I(f"v_lshrrev_b32 {v(t2)}, 4, v0")
    a.I(f"v_xor_b32 {v(t2)}, {v(t2)}, {v(t3)}")
    a.I(f"v_lshl_add_u32 v6, {v(t2)}, 4, {v(t1)}")
    a.I("v_xor_b32 v7, 64, v6")
    a.I(f"v_add_u32 v7, {8192 - 1024}, v7")
    a.I(f"v_add_u32 v8, {2 * (8192 - 1024)}, v6")
    a.I(f"v_add_u32 v9, {2 * (8192 - 1024)}, v7")
    a.I("s_mul_i32 s46, s16, 24576")
    a.I("s_lshl_b32 s47, s16, 12")
    a.I("s_lshl_b32 s48, s42, 7")
    a.I("s_lshl_b32 s49, s44, 13")
    a.I("s_lshl_b32 s50, s42, 18")
    a.I("s_add_u32 s50, s50, s49")
    a.I("s_cmp_eq_u32 s41, 2")
    a.I("s_cselect_b32 s20, s4, s6")
    a.I("s_cselect_b32 s21, s5, s7")
    a.I("s_cselect_b32 s24, s8, s10")
    a.I("s_cselect_b32 s25, s9, s11")
    a.I(f"s_cselect_b32 s51, {hex(WS_Q)}, 0")
    a.I(f"s_cselect_b32 s52, {f32(QSCALE)}, 1.0")
    a.I("s_cmp_eq_u32 s41, 1")
    a.I("s_cselect_b32 s24, s12, s24")
    a.I("s_cselect_b32 s25, s13, s25")
    a.I(f"s_cselect_b32 s51, {hex(WS_V)}, s51")
    a.I("s_mov_b32 s32, s24")
    a.I("s_mov_b32 s33, s25")
    a.I("s_add_u32 s53, s48, 512")
    a.I("s_mov_b32 s43, s49")
    a.I(f"s_mov_b32 s40, {hex(WS_V)}")
    a.I("s_cmp_eq_u32 s18, 10")
    a.I("s_cselect_b32 s32, s12, s32")
    a.I("s_cselect_b32 s33, s13, s33")
    a.I("s_cselect_b32 s53, 0, s53")
    a.I("s_cmp_eq_u32 s18, 31")
    a.I("s_cselect_b32 s53, s48, s53")
    a.I("s_cselect_b32 s43, s50, s43")
    a.I(f"s_cselect_b32 s40, {hex(WS_Q)}, s40")
    a.I("s_cselect_b32 s24, s12, s24")
    a.I("s_cselect_b32 s25, s13, s25")
    a.I(f"s_cselect_b32 s48, {62 * 128}, s48")
    a.I(f"s_cselect_b32 s51, {hex(WS_V)}, s51")
    a.I("s_cselect_b32 s20, s6, s20")
    a.I("s_cselect_b32 s21, s7, s21")
    a.I(f"s_add_u32 s45, s49, {hex(31 << 19)}")
    a.I("s_cmp_eq_u32 s18, 31")
    a.I("s_cselect_b32 s50, s45, s50")
    a.I(f"s_mov_b32 s22, {hex(2 * MB)}")
    a.I("s_mov_b32 s23, 0x20000")
    a.I(f"s_mov_b32 s26, {hex(4 * MB)}")
    a.I("s_mov_b32 s27, 0x20000")
    a.I(f"s_mov_b32 s34, {hex(4 * MB)}")
    a.I("s_mov_b32 s35, 0x20000")
    srd(a, 28, 14, 15, 16 * MB, add="s51")
    srd(a, 36, 14, 15, 16 * MB, add="s40")
    srd(a, 56, 4, 5, 2 * MB)

    def addr_setup():
        a.I(f"v_lshrrev_b32 {v(G)}, 4, v0")
        a.I(f"v_bfe_u32 {v(t1)}, v0, 3, 1")
        a.I(f"v_lshlrev_b32 {v(t1)}, 4, {v(t1)}")
        a.I(f"v_and_b32 {v(t2)}, 7, v0")
        a.I(f"v_add_u32 {v(t1)}, {v(t1)}, {v(t2)}")
        a.I(f"v_bfe_u32 {v(t2)}, {v(t1)}, 1, 3")
        a.I(f"v_xor_b32 {v(t2)}, {v(t2)}, {v(G)}")
        a.I(f"v_lshlrev_b32 {v(t2)}, 4, {v(t2)}")
        a.I(f"v_lshl_add_u32 v10, {v(t1)}, 7, {v(t2)}")
        a.I("v_xor_b32 v11, 64, v10")
        a.I("v_add_u32 v10, s46, v10")
        a.I("v_add_u32 v11, s46, v11")
        a.I(f"v_lshlrev_b32 {v(t2)}, 9, {v(G)}")
        a.I(f"v_lshl_add_u32 v24, {v(t1)}, 4, {v(t2)}")
        a.I(f"v_and_b32 {v(t3)}, 15, v0")
        a.I(f"v_lshl_add_u32 v25, {v(t3)}, 4, {v(t2)}")
        a.I(f"v_bfe_u32 {v(t1)}, v0, 2, 2")
        a.I(f"v_lshl_add_u32 {v(t1)}, {v(G)}, 3, {v(t1)}")
        a.I(f"v_lshlrev_b32 {v(t1)}, 7, {v(t1)}")
        a.I(f"v_and_b32 {v(t2)}, 3, v0")
        a.I(f"v_lshl_add_u32 {v(t1)}, {v(t2)}, 3, {v(t1)}")
        a.I(f"v_bfe_u32 {v(t2)}, v0, 3, 2")
        a.I(f"v_lshl_add_u32 {v(t1)}, {v(t2)}, 5, {v(t1)}")
        for ct in range(4):
            a.I(f"v_xor_b32 {v(12 + ct)}, {32 * ct}, {v(t1)}")
        for ct in range(4):
            a.I(f"v_add_u32 {v(16 + ct)}, 0x10000, {v(12 + ct)}")
            a.I(f"v_add_u32 {v(20 + ct)}, 0x20000, {v(12 + ct)}")

    def b1_compute(vm):
        HL, NF, BS, TM, F2, X1, X2, X3 = 64, 65, 66, 68, 67, 72, 73, 74
        C32, NS32, AR, AI, XF, D1R, D1I, TR, TI, D2 = 128, 136, 144, 148, 152, 160, 176, 192, 204, 212
        a.I(f"v_lshrrev_b32 {v(X2)}, 5, v0")
        a.I(f"v_cvt_f32_u32 {v(HL)}, {v(X2)}")
        a.I(f"v_and_b32 {v(F2)}, 31, v0")
        a.I(f"v_cvt_f32_u32 {v(F2)}, {v(F2)}")
        a.I(f"v_mul_f32 {v(NF)}, {f32(1 / 32)}, {v(F2)}")
        a.I(f"v_mul_f32 {v(BS)}, {v(NF)}, {v(HL)}")
        a.I(f"v_mul_f32 {v(BS)}, {f32(8.0)}, {v(BS)}")
        nat = [16 * t + j for t in range(2) for j in range(8)]
        gen_mat(a, C32, NF, BS, nat, TM)
        a.I(f"v_add_f32 {v(BS)}, {f32(0.25)}, {v(BS)}")
        gen_mat(a, NS32, NF, BS, nat, TM)
        a.I(f"v_and_b32 {v(X1)}, 15, v0")
        a.I(f"v_cvt_f32_u32 {v(X1)}, {v(X1)}")
        a.I(f"v_mul_f32 {v(NF)}, {f32(1 / 16)}, {v(X1)}")
        a.I(f"v_bfe_u32 {v(X1)}, v0, 4, 1")
        a.I(f"v_cvt_f32_u32 {v(X1)}, {v(X1)}")
        a.I(f"v_mul_f32 {v(BS)}, {v(NF)}, {v(HL)}")
        a.I(f"v_mul_f32 {v(BS)}, 4.0, {v(BS)}")
        a.I(f"v_fmamk_f32 {v(BS)}, {v(X1)}, {f32(0.25)}, {v(BS)}")
        pc = [PERMC(j) for j in range(8)]
        gen_mat(a, AR, NF, BS, pc, TM)
        a.I(f"v_add_f32 {v(BS)}, {f32(-0.25)}, {v(BS)}")
        gen_mat(a, AI, NF, BS, pc, TM)
        a.I(f"v_bfe_u32 {v(X1)}, v0, 4, 1")
        a.I(f"v_lshlrev_b32 {v(X1)}, 10, {v(X1)}")
        a.I(f"v_lshl_add_u32 {v(X1)}, {v(X2)}, 8, {v(X1)}")
        a.I(f"v_and_b32 {v(X3)}, 15, v0")
        a.I(f"v_lshl_add_u32 {v(X1)}, {v(X3)}, 3, {v(X1)}")
        a.I(f"v_add_u32 {v(X1)}, s65, {v(X1)}")
        vm.wait("bx")
        for t in range(2):
            for h in range(2):
                a.I(f"ds_read_b64_tr_b16 {v(XF + 4 * t + 2 * h, 2)}, {v(X1)} offset:{t * 512 + h * 128}")
        a.I(f"v_mul_f32 {v(NF)}, {f32(1 / 512)}, {v(F2)}")
        a.I(f"v_mul_f32 {v(BS)}, {v(NF)}, {v(HL)}")
        a.I(f"v_mul_f32 {v(BS)}, 4.0, {v(BS)}")
        a.I("s_waitcnt lgkmcnt(0)")
        for t in range(2):
            a.I(f"{MF} {v(D1R, 16)}, {v(XF + 4 * t, 4)}, {v(C32 + 4 * t, 4)}, {'0' if t == 0 else v(D1R, 16)}")
        for t in range(2):
            a.I(f"{MF} {v(D1I, 16)}, {v(XF + 4 * t, 4)}, {v(NS32 + 4 * t, 4)}, {'0' if t == 0 else v(D1I, 16)}")
        srd(a, 60, 14, 15, 257 * 8192, add=WS_WF)
        a.I(f"v_lshlrev_b32 {v(X1)}, 13, v1")
        vm.wait("wf")
        for i in range(8):
            a.I(f"v_lshl_or_b32 {v(120 + i)}, {v(WFR + 1 + 2 * i)}, 16, {v(WFR + 2 * i)}")
        vm.issue(f"buffer_store_dwordx4 v[120:123], {v(X1)}, s[60:63], s66 offen", "bs")
        vm.issue(f"buffer_store_dwordx4 v[124:127], {v(X1)}, s[60:63], s67 offen", "bs")
        a.I(f"v_lshlrev_b32 {v(X3)}, 1, v0")
        a.I(f"v_add_u32 {v(X3)}, {256 * 8192}, {v(X3)}")
        a.I("s_mov_b64 exec, 0xff")
        vm.issue(f"buffer_store_short {v(WFR + 16)}, {v(X3)}, s[60:63], s66 offen", "bs")
        vm.issue(f"buffer_store_short {v(WFR + 17)}, {v(X3)}, s[60:63], s67 offen", "bs")
        a.I("s_mov_b64 exec, -1")
        a.I(f"v_and_b32 {v(X3)}, 31, v0")
        a.I(f"v_lshlrev_b32 {v(X3)}, 4, {v(X3)}")
        a.I(f"v_lshl_add_u32 {v(X3)}, {v(X2)}, 11, {v(X3)}")
        a.I("s_lshl_b32 s64, s16, 2")
        a.I(f"s_add_u32 s65, s64, {BLDS + 8192}")
        a.I(f"v_add_u32 {v(X3)}, s65, {v(X3)}")
        twiddle(a, D1R, D1I, [[j, j + 8] for j in range(8)], NF, BS, pc, -1, TM)
        pack(a, TR, D1R, 8)
        pack(a, TI, D1I, 8)
        a.I("s_nop 1")
        for r in range(2):
            a.I(f"{MF} {v(D2 + 16 * r, 16)}, {v(AR, 4)}, {v(TR + 4 * r, 4)}, 0")
            a.I(f"{MF} {v(D2 + 16 * r, 16)}, {v(AI, 4)}, {v(TI + 4 * r, 4)}, {v(D2 + 16 * r, 16)}")
        srd(a, 60, 14, 15, 257 * 8192, add=WS_Y)
        a.I(f"v_mov_b32 {v(X2)}, {256 * 8192}")
        a.I(f"v_add_u32 {v(X2)}, s64, {v(X2)}")
        a.I(f"v_lshlrev_b32 {v(F2)}, 4, v1")
        a.I(f"v_add_u32 {v(F2)}, {BLDS + 8192}, {v(F2)}")
        a.I("s_nop 3")
        for c in range(2):
            for j in range(5):
                a.I(f"v_cvt_pk_bf16_f32 {v(TR + 5 * c + j)}, {v(D2 + 8 * c + j)}, {v(D2 + 16 + 8 * c + j)}")
        for c in range(2):
            for j in range(4):
                a.I(f"ds_write_b32 {v(X3)}, {v(TR + 5 * c + j)} offset:{(c * 8 + j) * 512}")
        a.I("s_mov_b64 exec, 1")
        vm.issue(f"buffer_store_dword {v(TR + 4)}, {v(X2)}, s[60:63], s66 offen", "bs")
        vm.issue(f"buffer_store_dword {v(TR + 9)}, {v(X2)}, s[60:63], s67 offen", "bs")
        a.I("s_mov_b64 exec, -1")
        a.I("s_waitcnt lgkmcnt(0)")
        a.I("s_barrier")
        a.I(f"ds_read_b128 v[120:123], {v(F2)}")
        a.I(f"ds_read_b128 v[124:127], {v(F2)} offset:4096")
        a.I("s_waitcnt lgkmcnt(0)")
        vm.issue(f"buffer_store_dwordx4 v[120:123], {v(X1)}, s[60:63], s66 offen", "bs")
        vm.issue(f"buffer_store_dwordx4 v[124:127], {v(X1)}, s[60:63], s67 offen", "bs")

    ACC, RING, PK = 128, 32, 64
    LOOK = 6

    def AF(rt, k):
        return (rt * 16 + k) * 4

    class Gen:
        def __init__(self, passes, restage, vmq):
            self.passes, self.restage = passes, restage
            self.vm, self.lg = VM(a), LG(a)
            self.vm.q = list(vmq)
            self.NC = 4 * len(passes)
            self.busy = {9: -1} if True else {}
            self.nxt = 0
            self.dq = []

        def blk(self, c):
            lim = 12 if self.restage else 8
            if c < lim:
                return 6 + c % 4
            return (2 + c % 4) if (c - lim) % 8 < 4 else (6 + c % 4)

        def dmaW(self, now):
            c = self.nxt
            if c >= self.NC:
                return False
            b = self.blk(c)
            if b in self.busy and self.busy[b] > now - (2 if self.busy[b] >= 0 else 1):
                return False
            if b < 6 and now < (10 if self.restage else 5):
                return False
            if c > now + 6:
                return False
            self.busy[b] = c
            self.nxt += 1
            pp, kc = divmod(c, 4)
            form, wsel, wdi, osel, odi = self.passes[pp]
            sr = "s[32:35]" if wsel else "s[24:27]"
            for q in range(4):
                pre = [f"s_add_u32 m0, s47, {hex(b * 16384)}",
                       f"s_add_u32 s45, {'s53' if wsel else 's48'}, {hex((kc << 20) + wdi * 128)}"] if q == 0 else []
                self.dq.append((pre, f"buffer_load_dwordx4 {v(2 + q)}, {sr}, s45 offen offset:{q * 1024} lds", ("W", c)))
            return True

        def pump(self, n=1):
            for _ in range(n):
                if self.dq:
                    pre, ins, tag = self.dq.pop(0)
                    a.many(pre)
                    self.vm.issue(ins, tag)

        def flush(self, tag=None):
            while self.dq and (tag is None or any(x[2] == tag for x in self.dq)):
                self.pump()

        def dmaA(self, j):
            sr = "s[56:59]" if j >= 8 else "s[20:23]"
            for h in range(2):
                for i in range(4):
                    pre = [f"s_add_u32 m0, s46, {hex((j % 3) * 8192 + h * 4096)}",
                           f"s_mov_b32 s45, {(j % 8) * 128 + h * 32768}"] if i == 0 else []
                    self.dq.append((pre, f"buffer_load_dwordx4 {v(6 + i)}, {sr}, s45 offen offset:{i * 1024} lds", ("A", j)))

        def readA(self, j):
            self.flush(("A", j))
            self.vm.wait(("A", j))
            for ks in range(2):
                for rt in range(4):
                    sub, x = divmod(rt, 2)
                    self.lg.issue(f"ds_read_b128 {ag(AF(rt, 2 * (j % 8) + ks), 4)}, {v(10 + (ks ^ x))} "
                                  f"offset:{(j % 3) * 8192 + sub * 4096 + x * 1024}", ("A", j))

        def reads(self, i):
            c, r = divmod(i, 16)
            ks, ct = divmod(r, 4)
            b = self.blk(c)
            base = 12 + 4 * (b // 4) + ct
            off = (b % 4) * 16384 + ks * 4096
            d = RING + 4 * (i % LOOK if False else (i % 64) % LOOK if False else self.ring(i))
            self.lg.issue(f"ds_read_b64_tr_b16 {v(d, 2)}, {v(base)} offset:{off}", ("W", i))
            self.lg.issue(f"ds_read_b64_tr_b16 {v(d + 2, 2)}, {v(base)} offset:{off + 512}", ("W", i))

        def ring(self, i):
            return i % 8 if LOOK <= 8 else None

        def sync(self, c):
            self.flush(("W", c))
            self.vm.wait(("W", c))
            a.I("s_barrier")
            n = 0
            while n < 2 and self.dmaW(c):
                n += 1

        def acc(self, pp, rt, ct):
            return ACC + 64 * (pp & 1) + 4 * (4 * rt + ct)

        def epi(self, pp):
            out = []
            form, wsel, wdi, osel, u = self.passes[pp]
            so = 54 + (pp & 1)
            sr = "s[36:39]" if osel else "s[28:31]"
            for sub in range(2):
                out.append(lambda sub=sub: a.I(f"s_add_u32 s{so}, {'s43' if osel else 's50'}, "
                                               f"{hex(((u >> 1) * 512 * 1024 + (u & 1) * 4096 + sub * 8192) & 0xffffffff)}"))
                for q in range(4):
                    pk = PK + 4 * (4 * sub + q)
                    if form == "K":
                        x, cp = divmod(q, 2)
                        srcs = [self.acc(pp, 2 * sub + x, 2 * cp), self.acc(pp, 2 * sub + x, 2 * cp + 1)]
                        off, va = x * 128 + cp * 2048, 24
                    else:
                        srcs = [self.acc(pp, 2 * sub, q), self.acc(pp, 2 * sub + 1, q)]
                        off, va = (q >> 1) * 2048 + (q & 1) * 256, 25
                    for i in range(4):
                        src = srcs[i // 2] + 2 * (i % 2)
                        if form == "K":
                            out.append(lambda src=src: a.I(f"v_mul_f32 {v(src)}, s52, {v(src)}"))
                            out.append(lambda src=src: a.I(f"v_mul_f32 {v(src + 1)}, s52, {v(src + 1)}"))
                        out.append(lambda src=src, pk=pk, i=i: a.I(f"v_cvt_pk_bf16_f32 {v(pk + i)}, {v(src)}, {v(src + 1)}"))
                    out.append(lambda pk=pk, va=va, off=off: self.vm.issue(
                        f"buffer_store_dwordx4 {v(pk, 4)}, {v(va)}, {sr}, s{so} offen offset:{off}{SP}", ("S", pp)))
            return out

        def start(self):
            self.readA(0)
            self.sync(0)
            st()
            for i in range(LOOK):
                self.reads(i)

        def run(self, p0, p1):
            restage, lg = self.restage, self.lg
            NF_ = 16 * self.NC
            pend = []
            for i in range(64 * p0, 64 * p1):
                c, r = divmod(i, 16)
                ks, ct = divmod(r, 4)
                pp, kc = divmod(c, 4)
                k = 4 * kc + ks
                lg.wait([("W", i), ("A", i // 8)])
                if pp == 0 and i % 8 == 0 and i // 8 + 3 < (11 if restage else 8):
                    self.dmaA(i // 8 + 3)
                if restage and 72 < i <= 128 + 8 and i % 8 == 4:
                    jj = 8 + (i - 76) // 8
                    lg.wait(("A", jj))
                    if jj + 3 < 16:
                        self.dmaA(jj + 3)
                wf = v(RING + 4 * self.ring(i), 4)
                for rt in range(4):
                    ac = v(self.acc(pp, rt, ct), 4)
                    af = ag(AF(rt, k), 4)
                    cin = "0" if k == 0 else ac
                    if self.passes[pp][0] == "V":
                        a.I(f"{M16} {ac}, {af}, {wf}, {cin}")
                    else:
                        a.I(f"{M16} {ac}, {wf}, {af}, {cin}")
                    if rt < 2 and pend:
                        pend.pop(0)()
                    if rt == 2:
                        self.pump(2 if len(self.dq) > 4 else 1)
                j = i + LOOK
                if j < NF_:
                    if j % 16 == 0:
                        self.sync(j // 16)
                    if j < 64 and j % 8 == 0:
                        self.readA(j // 8)
                    self.reads(j)
                if restage and 64 <= i < 128 and i % 8 == 7:
                    self.readA(8 + (i - 64) // 8)
                if i % 64 == 63:
                    assert not pend
                if i % 64 == 1 and pp >= 1:
                    pend = self.epi(pp - 1)
            self.flush()

        def fin(self, pp):
            a.I("s_nop 7")
            for f in self.epi(pp):
                f()
            st.dump(16, 14, tmpv=30)
            a.I("s_endpgm")

    g0 = Gen([("K", 0, i, 0, i) for i in range(2)], False, vm.q)
    g0.dmaW(0); g0.dmaA(0); g0.dmaW(0); g0.dmaA(1); g0.dmaW(0); g0.dmaA(2)
    g0.pump(4)
    st()
    I0 = a.I
    cnt = [0]

    def Ipump(text):
        r = I0(text)
        if text.startswith("v_") and not text.startswith("v_mfma"):
            cnt[0] += 1
            if cnt[0] % PUMP == 0 and g0.dq:
                a.I = I0
                g0.pump()
                a.I = Ipump
        return r

    a.I = Ipump
    addr_setup()
    b1_compute(g0.vm)
    a.I = I0
    g0.flush()
    st()
    stn = st.n

    def mkgen(passes, restage=False):
        g = Gen(passes, restage, g0.vm.q)
        g.busy, g.nxt = dict(g0.busy), g0.nxt
        st.n = stn
        return g

    def capture(fn):
        n0 = len(a.items)
        fn()
        seg = a.items[n0:]
        del a.items[n0:]
        return seg

    def merge(s1, s2):
        import asmlib
        assert len(s1) == len(s2), (len(s1), len(s2))
        out = []
        for x, y in zip(s1, s2):
            if x[0] == "i" and x[1].text != y[1].text:
                assert x[1].text.startswith("s_waitcnt vmcnt") and y[1].text.startswith("s_waitcnt vmcnt"), (x[1].text, y[1].text)
                n = min(int(x[1].text[16:-1]), int(y[1].text[16:-1]))
                out.append(("i", asmlib.Ins(f"s_waitcnt vmcnt({n})")))
            else:
                out.append(x)
        return out

    def looped(F, lab):
        def plist(pair):
            L = []
            for pp in range(8):
                if pair == 0:
                    L.append((F, 0, pp, 0, pp))
                else:
                    rel = pp - pair
                    L.append((F, 1 if rel >= 2 else 0, rel - 2 if rel >= 2 else rel, 0, rel))
            return L
        g = mkgen(plist(0))
        g.start()
        g.run(0, 2)
        st()
        a.I("s_add_u32 s48, s48, 256")
        a.I(f"s_add_u32 s50, s50, {hex(512 * 1024)}")
        a.I("s_mov_b32 s44, 0")
        g.passes = plist(2)
        s1 = capture(lambda: g.run(2, 4))
        g.passes = plist(4)
        s2 = capture(lambda: g.run(4, 6))
        a.label(lab + "_loop")
        mg = merge(s1, s2)
        drop = os.environ.get("DROP", "").split(",")
        def keep(x):
            if x[0] != "i":
                return True
            tx = x[1].text
            if "dma" in drop and tx.endswith(" lds"):
                return False
            if "st" in drop and tx.startswith("buffer_store"):
                return False
            if "valu" in drop and x[1].cls == "valu":
                return False
            if "bar" in drop and tx == "s_barrier":
                return False
            if "rd" in drop and tx.startswith("ds_read"):
                return False
            if "vw" in drop and tx.startswith("s_waitcnt vm"):
                return False
            if "lw" in drop and tx.startswith("s_waitcnt lg"):
                return False
            return True
        a.items += [x for x in mg if keep(x)]
        if F == "K":
            a.I("s_cmp_eq_u32 s18, 10")
            a.I(f"s_cbranch_scc1 {N}_Ctail")
        a.I("s_mov_b32 s48, s53")
        a.I("s_mov_b32 s34, 0")
        a.I(f"s_add_u32 s50, s50, {hex(512 * 1024)}")
        a.I("s_add_u32 s44, s44, 1")
        a.I("s_cmp_lt_u32 s44, 2")
        a.I(f"s_cbranch_scc1 {lab}_loop")
        g.passes = plist(6)
        g.fin(5)
        return g

    a.I("s_cmp_eq_u32 s18, 31")
    a.I(f"s_cbranch_scc1 {N}_D")
    a.I("s_cmp_eq_u32 s41, 1")
    a.I(f"s_cbranch_scc1 {N}_B")
    looped("K", N + "_A")
    a.label(f"{N}_Ctail")
    gc = mkgen([("K", 0, pp, 0, pp) for pp in range(4)] + [("V", 1, 0, 1, 0), ("V", 1, 1, 1, 1)])
    capture(lambda: (gc.start(), gc.run(0, 4)))
    gc.vm.q = gc.vm.q
    gc.passes[3] = ("K", 0, 1, 0, 1)
    st.n = stn + 2
    gc.run(4, 6)
    gc.fin(5)
    a.label(N + "_B")
    looped("V", N + "_B2")
    a.label(N + "_D")
    gd = mkgen([("V", 0, 0, 0, 0), ("V", 0, 1, 0, 1)] + [("K", 1, i, 1, i) for i in range(4)], True)
    gd.start()
    gd.run(0, 2)
    st()
    gd.run(2, 6)
    gd.fin(5)
    kend(a, N)
    return a, N, (256, 256, 163840)


def gen_l3():
    a = Asm()
    N = "l3_kernel"
    kstart(a, N, 256)
    a.I("s_load_dwordx2 s[4:5], s[0:1], 88")
    a.I("s_load_dwordx2 s[6:7], s[0:1], 40")
    a.I("s_load_dwordx2 s[8:9], s[0:1], 72")
    a.I("v_lshrrev_b32 v1, 6, v0")
    a.I("v_and_b32 v2, 255, v0")
    a.I("v_and_b32 v0, 63, v0")
    a.I("v_readfirstlane_b32 s16, v1")
    a.I("s_nop 0")
    a.I("s_cmp_ge_u32 s16, 4")
    a.I(f"s_cbranch_scc1 {N}_b3")
    st = Stamper(a, "l3")
    ACC = oproj_body(a, N, st, bar_at=8)
    a.I("s_barrier")
    oproj_finish(a, ACC)
    st.dump(16, 4, tmpv=8)
    a.I("s_endpgm")
    a.label(f"{N}_b3")
    a.I("s_and_b32 s16, s16, 3")
    b3_body(a, 65536, 8)
    kend(a, N)
    return a, N, (256, 512, 65536 + 8192 + 64)


KERNELS = [gen_l1, lambda: gen_attn(True), gen_l3]

if __name__ == "__main__":
    p = sys.argv[1] if len(sys.argv) > 1 else os.path.join(os.path.dirname(os.path.abspath(__file__)), "..",
                                                           "cdna_kernels", NAME + ".s")
    sys.exit(1 if build(KERNELS, p) else 0)
```

```python
import sys, os, math, struct
sys.path.insert(0, os.path.dirname(os.path.abspath(__file__)))
from asmlib import Asm, VM, LG, v, s, ag

NAME = "concat_heads__compressed_kv_cla__spectral_gfnet__prompt"
MB = 1 << 20
WS_K, WS_V, WS_CTX, WS_Y, WS_WF, WS_Z, WS_Q = 0, 16 * MB, 32 * MB, 48 * MB, 52 * MB, 56 * MB, 64 * MB
WS_WO = 60 * MB
YSTR = 8320
KA = dict(x=0, ckv=8, wq=16, wuk=24, wuv=32, wo=40, bx=48, wr=56, wi=64, out=72, dbg=80, ws=88)
MF = "v_mfma_f32_32x32x16_bf16"
SP = os.environ.get("SP", " sc1")


def f32(x):
    return "0x%08x" % struct.unpack("<I", struct.pack("<f", x))[0]


def srd(a, d, lo, hi, size, add=0):
    if add:
        a.I(f"s_add_u32 {s(d)}, {s(lo)}, {add if isinstance(add, str) else hex(add)}")
        a.I(f"s_addc_u32 {s(d + 1)}, {s(hi)}, 0")
    else:
        a.I(f"s_mov_b32 {s(d)}, {s(lo)}")
        a.I(f"s_mov_b32 {s(d + 1)}, {s(hi)}")
    a.I(f"s_mov_b32 {s(d + 2)}, {size if isinstance(size, str) else hex(size)}")
    a.I(f"s_mov_b32 {s(d + 3)}, 0x20000")


STAMPS = int(os.environ.get("STAMPS", "0"))
ST0 = 72


class Stamper:
    def __init__(self, a, name=""):
        self.a, self.n = a, 0
        self.on = STAMPS and os.environ.get("STAMPK", name) == name

    def __call__(self):
        if self.on and self.n < 11:
            if self.n == 0:
                self.a.I("s_memrealtime s[68:69]")
            self.a.I(f"s_memtime {s(ST0 + 2 * self.n, 2)}")
            self.n += 1

    def dump(self, wave_s, wslo, tmpv=8):
        if not self.on:
            return
        a = self.a
        a.I("s_waitcnt vmcnt(0) lgkmcnt(0)")
        a.I(f"s_memtime {s(ST0 + 2 * self.n, 2)}")
        a.I("s_memrealtime s[70:71]")
        self.n += 1
        srd(a, 96, wslo, wslo + 1, 1 * MB, add=128 * MB)
        a.I("s_lshl_b32 s100, s2, 3")
        a.I(f"s_add_u32 s100, s100, {s(wave_s)}")
        a.I("s_lshl_b32 s100, s100, 8")
        a.I("s_waitcnt lgkmcnt(0)")
        a.I(f"v_mov_b32 {v(tmpv + 1)}, 0")
        for i in range(self.n):
            a.I(f"v_mov_b32 {v(tmpv)}, {s(ST0 + 2 * i)}")
            a.I(f"buffer_store_dword {v(tmpv)}, {v(tmpv + 1)}, s[96:99], s100 offen offset:{4 * i}")
        for i, r in ((62, 68), (63, 70), (61, ST0 + 2 * (self.n - 1))):
            a.I(f"v_mov_b32 {v(tmpv)}, {s(r)}")
            a.I(f"buffer_store_dword {v(tmpv)}, {v(tmpv + 1)}, s[96:99], s100 offen offset:{4 * i}")
        a.I("s_waitcnt vmcnt(0)")


DBGT = int(os.environ.get("DBGT", "0"))
KIDX = [0, 0]


def dbg_stamp(a, end):
    k = KIDX[0]
    lab = a.uid("dbgskip%d_%d" % (k, KIDX[1]))
    KIDX[1] += 1
    if not end:
        a.I("v_readfirstlane_b32 s89, v0")
        a.I("s_nop 1")
        a.I("s_lshr_b32 s89, s89, 6")
        a.I("s_or_b32 s89, s89, s2")
    a.I("s_cmp_lg_u32 s89, 0")
    a.I(f"s_cbranch_scc1 {lab}")
    a.I("s_load_dwordx4 s[92:95], s[90:91], 80")
    a.I("s_waitcnt vmcnt(0) lgkmcnt(0)")
    a.I("s_memrealtime s[86:87]")
    a.I(f"s_add_u32 s96, s94, {hex(200 * MB)}")
    a.I("s_addc_u32 s97, s95, 0")
    a.I("s_mov_b32 s98, 256")
    a.I("s_mov_b32 s99, 0x20000")
    a.I("s_waitcnt lgkmcnt(0)")
    a.I("v_mov_b32 v254, s86")
    a.I(f"buffer_store_dword v254, off, s[96:99], 0 offset:{8 * k + 4 * end} sc0 sc1")
    a.I("s_waitcnt vmcnt(0)")
    if end and k == DBGT - 1:
        a.I("v_lshlrev_b32 v253, 2, v0")
        a.I("buffer_load_dword v254, v253, s[96:99], 0 offen sc0 sc1")
        a.I("s_mov_b32 s96, s92")
        a.I("s_mov_b32 s97, s93")
        a.I("s_waitcnt vmcnt(0)")
        a.I("buffer_store_dword v254, v253, s[96:99], 0 offen")
        a.I(f"s_sub_u32 s96, s92, {k * 512}")
        a.I("s_subb_u32 s97, s93, 0")
        a.I("s_nop 0")
        a.I("buffer_store_dword v254, v253, s[96:99], 0 offen")
    a.label(lab)


def kstart(a, name, nwg):
    a.raw(".text")
    a.raw(f".globl {name}")
    a.raw(".p2align 8")
    a.raw(f".type {name},@function")
    a.label(name)
    a.I(f"s_cmp_ge_u32 s2, {nwg}")
    a.I(f"s_cbranch_scc1 {name}_end")
    if DBGT:
        a.I("s_mov_b64 s[90:91], s[0:1]")
        dbg_stamp(a, 0)


def kend(a, name):
    a.label(name + "_end")
    a.I("s_endpgm")


def kdesc(name, nv, ns, na=0):
    nv = (nv + 7) // 8 * 8
    acc_off = nv
    nv = nv + (na + 7) // 8 * 8
    return f""".section .rodata,"a"
.p2align 6
.amdhsa_kernel {name}
  .amdhsa_next_free_vgpr {nv}
  .amdhsa_next_free_sgpr {max(ns, 16)}
  .amdhsa_accum_offset {acc_off}
  .amdhsa_group_segment_fixed_size 0
  .amdhsa_kernarg_size 96
  .amdhsa_user_sgpr_count 2
  .amdhsa_user_sgpr_kernarg_segment_ptr 1
  .amdhsa_system_sgpr_workgroup_id_x 1
  .amdhsa_float_denorm_mode_32 3
.end_amdhsa_kernel
"""


QSCALE = math.log2(math.e) / math.sqrt(128.0)


def gen_qkv():
    a = Asm()
    N = "qkvproj_kernel"
    kstart(a, N, 256)
    a.I("s_load_dwordx4 s[4:7], s[0:1], 0")
    a.I("s_load_dwordx4 s[8:11], s[0:1], 16")
    a.I("s_load_dwordx2 s[12:13], s[0:1], 32")
    a.I("s_load_dwordx2 s[14:15], s[0:1], 88")
    a.I("v_lshrrev_b32 v1, 6, v0")
    a.I("v_and_b32 v0, 63, v0")
    a.I("s_and_b32 s17, s2, 7")
    a.I("v_readfirstlane_b32 s16, v1")
    a.I("s_lshr_b32 s18, s2, 3")
    a.I("s_and_b32 s19, s18, 7")
    a.I("s_lshr_b32 s18, s18, 3")
    a.I("s_lshl_b32 s40, s17, 2")
    a.I("s_add_u32 s18, s18, s40")
    a.I("s_mov_b32 s41, 0")
    a.I("s_mul_i32 s42, s18, 6")
    a.I("s_cmp_ge_u32 s18, 11")
    a.I("s_cselect_b32 s41, 1, s41")
    a.I("s_cselect_b32 s40, 64, 0")
    a.I("s_cmp_ge_u32 s18, 21")
    a.I("s_cselect_b32 s41, 2, s41")
    a.I("s_cselect_b32 s40, 126, s40")
    a.I("s_sub_u32 s42, s42, s40")
    a.I("s_lshl_b32 s44, s19, 3")
    a.I("s_add_u32 s44, s44, s16")
    hl, b4, t1, t2 = 9, 10, 11, 12
    a.I(f"v_lshrrev_b32 {v(hl)}, 5, v0")
    a.I(f"v_bfe_u32 {v(b4)}, v0, 4, 1")
    a.I(f"v_lshrrev_b32 {v(t1)}, 3, v0")
    a.I(f"v_lshlrev_b32 {v(t1)}, 10, {v(t1)}")
    a.I("s_lshl_b32 s45, s44, 15")
    a.I(f"v_add_u32 {v(t1)}, s45, {v(t1)}")
    a.I(f"v_lshrrev_b32 {v(t2)}, 4, v0")
    a.I("v_and_b32 v13, 7, v0")
    a.I(f"v_xor_b32 {v(t2)}, {v(t2)}, v13")
    a.I(f"v_lshl_add_u32 v52, {v(t2)}, 4, {v(t1)}")
    a.I("v_xor_b32 v53, 64, v52")
    a.I(f"v_add_u32 v53, {8192 - 1024}, v53")
    a.I(f"v_add_u32 v54, {2 * (8192 - 1024)}, v52")
    a.I(f"v_add_u32 v55, {2 * (8192 - 1024)}, v53")
    a.I("v_and_b32 v13, 31, v0")
    a.I(f"v_bfe_u32 {v(t2)}, v0, 1, 3")
    a.I(f"v_xor_b32 {v(t2)}, {v(t2)}, {v(hl)}")
    a.I(f"v_lshlrev_b32 {v(t2)}, 4, {v(t2)}")
    a.I(f"v_lshl_add_u32 {v(t2)}, v13, 7, {v(t2)}")
    a.I("s_mul_i32 s46, s16, 12288")
    for t in range(4):
        a.I(f"v_xor_b32 {v(56 + t)}, {32 * t}, {v(t2)}")
    for t in range(4):
        a.I(f"v_add_u32 {v(56 + t)}, s46, {v(56 + t)}")
    a.I("v_lshrrev_b32 v2, 3, v0")
    a.I("v_lshlrev_b32 v2, 13, v2")
    a.I(f"v_lshlrev_b32 {v(t1)}, 2, {v(b4)}")
    a.I(f"v_and_b32 {v(t2)}, 7, v0")
    a.I(f"v_xor_b32 {v(t1)}, {v(t1)}, {v(t2)}")
    a.I(f"v_lshl_add_u32 v2, {v(t1)}, 4, v2")
    a.I("s_lshl_b32 s45, s16, 17")
    a.I("v_add_u32 v2, s45, v2")
    a.I(f"v_add_u32 v3, {65536 - 1024}, v2")
    a.I(f"v_bfe_u32 {v(t1)}, v0, 2, 2")
    a.I(f"v_lshl_add_u32 {v(t2)}, {v(hl)}, 3, {v(t1)}")
    a.I(f"v_lshlrev_b32 v4, 7, {v(t2)}")
    a.I(f"v_lshl_add_u32 v4, {v(b4)}, 5, v4")
    a.I(f"v_and_b32 {v(t2)}, 3, v0")
    a.I(f"v_lshl_add_u32 v4, {v(t2)}, 3, v4")
    a.I(f"v_bfe_u32 {v(t2)}, v0, 3, 1")
    a.I(f"v_lshl_add_u32 v4, {v(t2)}, 6, v4")
    a.I("v_xor_b32 v5, 64, v4")
    a.I("v_add_u32 v6, 0x10000, v4")
    a.I("v_add_u32 v7, 0x10000, v5")
    a.I("v_add_u32 v50, 0x20000, v4")
    a.I("v_add_u32 v51, 0x20000, v5")
    a.I("v_lshlrev_b32 v48, 4, v0")
    a.I("s_lshl_b32 s47, s16, 11")
    a.I("s_lshl_b32 s48, s42, 7")
    a.I("s_lshl_b32 s49, s44, 13")
    a.I("s_lshl_b32 s50, s42, 18")
    a.I("s_add_u32 s50, s50, s49")
    a.I("s_waitcnt lgkmcnt(0)")
    a.I("s_cmp_eq_u32 s41, 2")
    a.I("s_cselect_b32 s20, s4, s6")
    a.I("s_cselect_b32 s21, s5, s7")
    a.I("s_cselect_b32 s24, s8, s10")
    a.I("s_cselect_b32 s25, s9, s11")
    a.I(f"s_cselect_b32 s51, {hex(WS_Q)}, 0")
    a.I(f"s_cselect_b32 s52, {f32(QSCALE)}, 1.0")
    a.I(f"s_mov_b32 s22, {hex(2 * MB)}")
    a.I("s_mov_b32 s23, 0x20000")
    a.I(f"s_mov_b32 s26, {hex(4 * MB)}")
    a.I("s_mov_b32 s27, 0x20000")
    srd(a, 28, 14, 15, 16 * MB, add="s51")
    srd(a, 32, 12, 13, 4 * MB)
    srd(a, 36, 14, 15, 16 * MB, add=WS_V)
    srd(a, 56, 6, 7, 2 * MB)
    a.I("s_cmp_eq_u32 s18, 31")
    a.I(f"s_cbranch_scc1 {N}_D")
    a.I("s_cmp_eq_u32 s41, 1")
    a.I(f"s_cbranch_scc1 {N}_B")
    a.I("s_cmp_eq_u32 s18, 10")
    a.I(f"s_cbranch_scc1 {N}_C")

    AF, ACC, RING, PK = 64, 192, 8, 32
    LOOK = 6

    def body(passes, tag):
        vm, lg = VM(a), LG(a)
        st = Stamper(a, "qkv")
        st()
        NP = len(passes)
        NC = 4 * NP
        NM = 64 * NP
        restage = tag == "D"
        blk = {}
        free = [6, 7, 8, 9]
        nxt = [0]

        def dmaW():
            c = nxt[0]
            if c >= NC or not free:
                return False
            b = free.pop(0)
            blk[c] = b
            nxt[0] += 1
            pp, kc = divmod(c, 4)
            form, su, di = passes[pp]
            a.I(f"s_add_u32 m0, s47, {hex(b * 16384)}")
            if su is not None:
                a.I(f"s_mov_b32 s45, {hex((kc << 20) + su * 128)}")
            else:
                a.I(f"s_add_u32 s45, s48, {hex((kc << 20) + di * 128)}")
            sr = "s[32:35]" if form == "V" else "s[24:27]"
            vm.issue(f"buffer_load_dwordx4 v2, {sr}, s45 offen lds", ("W", c))
            vm.issue(f"buffer_load_dwordx4 v3, {sr}, s45 offen offset:1024 lds", ("W", c))
            return True

        def dmaA(j):
            sr = "s[56:59]" if (restage and j < 8) else "s[20:23]"
            a.I(f"s_add_u32 m0, s46, {hex((j % 3) * 4096)}")
            a.I(f"s_mov_b32 s45, {(j % 8) * 128}")
            for i in range(4):
                vm.issue(f"buffer_load_dwordx4 {v(52 + i)}, {sr}, s45 offen offset:{i * 1024} lds", ("A", j))

        def readA(j):
            vm.wait(("A", j))
            for t in range(4):
                lg.issue(f"ds_read_b128 {v(AF + 16 * (j % 8) + 4 * t, 4)}, {v(56 + t)} offset:{(j % 3) * 4096}", ("A", j))

        dmaW(); dmaA(0); dmaA(1); dmaW(); dmaA(2); dmaW(); dmaW()

        def reads(i):
            c, r = divmod(i, 16)
            t, cb = divmod(r, 2)
            b = blk[c]
            base = [4, 6, 50][b // 4] + cb
            off = (b % 4) * 16384 + t * 2048
            d = RING + 4 * (i % LOOK)
            lg.issue(f"ds_read_b64_tr_b16 {v(d, 2)}, {v(base)} offset:{off}", ("W", i))
            lg.issue(f"ds_read_b64_tr_b16 {v(d + 2, 2)}, {v(base)} offset:{off + 512}", ("W", i))

        def sync(c):
            vm.wait(("W", c))
            a.I("s_barrier")
            if c >= 2:
                free.append(blk[c - 2])
            if c == (10 if restage else 5):
                free.extend([0, 1, 2, 3, 4, 5])
            n = 0
            while n < 2 and dmaW():
                n += 1

        def epi(pp):
            out = []
            form, su, di = passes[pp]
            acc = ACC + 32 * (pp & 1)
            so = 54 + (pp & 1)
            if su is not None:
                out.append(lambda: a.I(f"s_add_u32 s{so}, s49, {hex((su >> 1) * 512 * 1024 + (su & 1) * 4096)}"))
            else:
                out.append(lambda: a.I(f"s_add_u32 s{so}, s50, {hex((di >> 1) * 512 * 1024 + (di & 1) * 4096)}"))
            sr = "s[36:39]" if form == "V" else "s[28:31]"
            for cb in range(2):
                for h in range(2):
                    q = 2 * cb + h
                    for i in range(4):
                        src = acc + 16 * cb + 8 * h + 2 * i
                        if form == "K" and tag in "AD":
                            out.append(lambda src=src: a.I(f"v_mul_f32 {v(src)}, s52, {v(src)}"))
                            out.append(lambda src=src: a.I(f"v_mul_f32 {v(src + 1)}, s52, {v(src + 1)}"))
                        out.append(lambda src=src, q=q, i=i: a.I(
                            f"v_cvt_pk_bf16_f32 {v(PK + 4 * q + i)}, {v(src)}, {v(src + 1)}"))
                    out.append(lambda q=q: vm.issue(
                        f"buffer_store_dwordx4 {v(PK + 4 * q, 4)}, v48, {sr}, s{so} offen offset:{q * 1024}{SP}", ("S", pp)))
            return out

        st()
        readA(0)
        sync(0)
        st()
        for i in range(LOOK - 2):
            reads(i)
        lg.wait(("A", 0))
        for i in range(LOOK - 2, LOOK):
            reads(i)
        pend = []
        for i in range(NM):
            c, r = divmod(i, 16)
            t, cb = divmod(r, 2)
            pp, kc = divmod(c, 4)
            k = 8 * kc + t
            if i % 2 == 0:
                lg.wait([("W", i), ("W", i + 1), ("A", i // 8)])
            if pp == 0 and i % 8 == 0 and i // 8 + 3 < (11 if restage else 8):
                dmaA(i // 8 + 3)
            if restage and 72 < i <= 128 + 8 and i % 8 == 4:
                jj = 8 + (i - 76) // 8
                lg.wait(("A", jj))
                if jj + 3 < 16:
                    dmaA(jj + 3)
            acc = v(ACC + 32 * (pp & 1) + 16 * cb, 16)
            wf = v(RING + 4 * (i % LOOK), 4)
            af = v(AF + 4 * k, 4)
            cin = "0" if k == 0 else acc
            if passes[pp][0] == "V":
                a.I(f"{MF} {acc}, {af}, {wf}, {cin}")
            else:
                a.I(f"{MF} {acc}, {wf}, {af}, {cin}")
            j = i + LOOK
            if j < NM:
                if j % 16 == 0:
                    sync(j // 16)
                if j < 64 and j % 8 == 0:
                    readA(j // 8)
                reads(j)
            if restage and 64 <= i < 128 and i % 8 == 7:
                readA(8 + (i - 64) // 8)
            if i % 64 == 63:
                st()
            if i % 64 == 6 and pp >= 1:
                pend = epi(pp - 1)
            if pend:
                pend.pop(0)()
        a.I("s_nop 11")
        for f in epi(NP - 1):
            f()
        st.dump(16, 14)
        a.I("s_endpgm")

    body([("K", None, i) for i in range(6)], "A")
    a.label(N + "_B")
    body([("V", None, i) for i in range(6)], "B")
    a.label(N + "_C")
    body([("K", None, i) for i in range(4)] + [("V", 0, 0), ("V", 1, 0)], "C")
    a.label(N + "_D")
    body([("V", 62, 0), ("V", 63, 0)] + [("K", None, i) for i in range(4)], "D")
    kend(a, N)
    return a, N, (256, 512, 163840)


def gen_attn(withb2=False):
    a = Asm()
    N = "attn_kernel"
    O, Q, S, P, NEGM, RING = 64, 128, [160, 176], [192, 200], 208, 224
    L16, VKA, VVA, VL, VLS, E, VDA, VDB, QREL, T0, T1, T2, NINF = 1, 2, 3, 4, 5, 6, 10, 11, 12, 13, 14, 15, 48
    PK = 16
    EE = 50
    sW, sH, sP, sN, sC, sPH, sTHR, sBAR, sKO, sKM, sVM, sQS = 16, 17, 18, 19, 20, 21, 40, 41, 42, 43, 44, 45
    kstart(a, N, 256)
    a.I("s_load_dwordx2 s[4:5], s[0:1], 88")
    a.I("s_load_dwordx2 s[14:15], s[0:1], 40")
    a.I("v_lshrrev_b32 v1, 6, v0")
    a.I("v_and_b32 v0, 63, v0")
    a.I("s_and_b32 s6, s2, 7")
    a.I(f"v_readfirstlane_b32 {s(sW)}, v1")
    a.I("s_lshr_b32 s7, s2, 3")
    a.I("s_and_b32 s8, s7, 3")
    a.I("s_lshl_b32 s6, s6, 2")
    a.I(f"s_add_u32 {s(sH)}, s6, s8")
    a.I(f"s_lshr_b32 {s(sP)}, s7, 2")
    a.I(f"s_lshl_b32 s6, {s(sP)}, 2")
    a.I(f"s_sub_u32 s7, 60, s6")
    a.I(f"s_add_u32 s7, s7, {s(sW)}")
    a.I(f"s_add_u32 s8, s6, 7")
    a.I(f"s_sub_u32 s8, s8, {s(sW)}")
    a.I(f"s_cmp_ge_u32 {s(sW)}, 4")
    a.I(f"s_cselect_b32 {s(sQS)}, s8, s7")
    a.I(f"s_add_u32 {s(sN)}, {s(sQS)}, 1")
    a.I("s_sub_u32 s9, 64, s6")
    a.I(f"s_lshr_b32 {s(sBAR)}, s9, 1")
    a.I("s_lshl_b32 s9, s9, 13")
    a.I(f"s_lshl_b32 s10, {s(sH)}, 19")
    a.I(f"v_lshlrev_b32 {v(L16)}, 4, v0")
    a.I(f"s_and_b32 s11, {s(sW)}, 3")
    a.I("s_lshl_b32 s11, s11, 11")
    a.I(f"v_add_u32 {v(VDA)}, s11, {v(L16)}")
    a.I(f"v_add_u32 {v(VDB)}, 0x2000, {v(VDA)}")
    a.I(f"v_and_b32 {v(T0)}, 31, v0")
    a.I(f"v_lshrrev_b32 {v(T1)}, 5, v0")
    a.I(f"v_lshlrev_b32 {v(T1)}, 2, {v(T1)}")
    a.I(f"v_sub_u32 {v(QREL)}, {v(T0)}, {v(T1)}")
    a.I(f"v_mov_b32 {v(NINF)}, 0xff800000")
    a.I(f"s_mov_b32 {s(sTHR)}, {f32(2.0 ** 14)}")
    a.I("s_waitcnt lgkmcnt(0)")
    srd(a, 24, 4, 5, "s9", add="s10")
    a.I(f"s_add_u32 s12, s10, {hex(WS_V - 3 * 8192)}")
    a.I(f"s_add_u32 s13, s9, {3 * 8192}")
    srd(a, 28, 4, 5, "s13", add="s12")
    srd(a, 32, 4, 5, 16 * MB, add=WS_Q)
    srd(a, 36, 4, 5, 16 * MB, add=WS_CTX)
    st = Stamper(a, "attn")
    st()
    a.I(f"s_lshl_b32 s12, {s(sQS)}, 13")
    a.I("s_add_u32 s12, s12, s10")
    a.I("s_add_u32 s13, s12, 4096")
    for t in range(8):
        a.I(f"buffer_load_dwordx4 {v(Q + 4 * t, 4)}, {v(L16)}, s[32:35], s{12 + t // 4} offen offset:{(t % 4) * 1024}")
    a.I(f"s_lshl_b32 s46, {s(sQS)}, 18")
    a.I(f"s_lshl_b32 s6, {s(sH)}, 13")
    a.I("s_add_u32 s46, s46, s6")
    a.I("s_add_u32 s47, s46, 4096")
    a.I(f"s_mov_b32 {s(sKM)}, s11")
    a.I(f"s_mov_b32 {s(sKO)}, 0")

    def dma_list(withV=True):
        l = []
        if withV:
            l += [f"s_mov_b32 m0, {s(sVM)}", None,
                  f"buffer_load_dwordx4 {v(VDA)}, s[28:31], {s(sKO)} offen lds",
                  f"buffer_load_dwordx4 {v(VDA)}, s[28:31], {s(sKO)} offen offset:1024 lds",
                  f"s_add_u32 m0, {s(sVM)}, 0x4000", None,
                  f"buffer_load_dwordx4 {v(VDB)}, s[28:31], {s(sKO)} offen lds",
                  f"buffer_load_dwordx4 {v(VDB)}, s[28:31], {s(sKO)} offen offset:1024 lds"]
        l += [f"s_mov_b32 m0, {s(sKM)}", f"s_add_u32 {s(sVM)}, {s(sKM)}, 0x2000",
              f"buffer_load_dwordx4 {v(VDA)}, s[24:27], {s(sKO)} offen lds",
              f"buffer_load_dwordx4 {v(VDA)}, s[24:27], {s(sKO)} offen offset:1024 lds",
              f"s_add_u32 m0, {s(sKM)}, 0x4000", f"s_add_u32 {s(sKM)}, {s(sKM)}, 0x8000",
              f"buffer_load_dwordx4 {v(VDB)}, s[24:27], {s(sKO)} offen lds",
              f"buffer_load_dwordx4 {v(VDB)}, s[24:27], {s(sKO)} offen offset:1024 lds",
              f"s_and_b32 {s(sKM)}, {s(sKM)}, 0x1ffff",
              f"s_add_u32 {s(sKO)}, {s(sKO)}, 0x4000"]
        return l

    def emit_dma(withV=True):
        for x in dma_list(withV):
            if "dma" in os.environ.get("ADROP", "") and x and x.endswith(" lds"):
                continue
            a.I(x or "s_nop 0")

    def mask_negm():
        for j in range(16):
            a.I(f"v_cmp_le_i32 vcc, {(j & 3) + 8 * (j >> 2)}, {v(QREL)}")
            a.I("s_nop 1")
            a.I(f"v_cndmask_b32 {v(NEGM + j)}, {v(NINF)}, {v(NEGM + j)}, vcc")
        a.I("s_nop 1")

    def rowmax(Sx, dst):
        a.I(f"v_max3_f32 {v(dst)}, {v(Sx)}, {v(Sx + 1)}, {v(Sx + 2)}")
        for j in range(3, 15, 2):
            a.I(f"v_max3_f32 {v(dst)}, {v(dst)}, {v(Sx + j)}, {v(Sx + j + 1)}")
        a.I(f"v_max_f32 {v(dst)}, {v(dst)}, {v(Sx + 15)}")
        a.I(f"v_mov_b32 {v(T2)}, {v(dst)}")
        a.I("s_nop 1")
        a.I(f"v_permlane32_swap_b32 {v(dst)}, {v(T2)}")
        a.I(f"v_max_f32 {v(dst)}, {v(dst)}, {v(T2)}")

    def role(ld):
        R = "S" if ld else "L"
        if ld:
            emit_dma(withV=False)
            emit_dma()
        for j in range(16):
            a.I(f"v_mov_b32 {v(NEGM + j)}, 0")
        a.I(f"s_cmp_lg_u32 {s(sN)}, 1")
        a.I(f"s_cbranch_scc1 {N}_{R}_nm1")
        mask_negm()
        a.label(f"{N}_{R}_nm1")
        for j in range(64):
            a.I(f"v_mov_b32 {v(O + j)}, 0")
        for j in range(8):
            a.I(f"v_mov_b32 {v(P[1] + j)}, 0")
        a.I(f"v_mov_b32 {v(VL)}, 0")
        a.I(f"v_mov_b32 {v(VLS)}, 0")
        a.I(f"v_mov_b32 {v(VKA)}, {v(L16)}")
        a.I(f"v_mov_b32 {v(VVA)}, {v(L16)}")
        if os.environ.get("PRIO") and not ld:
            a.I(f"s_setprio {os.environ['PRIO']}")
        a.I(f"s_waitcnt vmcnt({6 if ld else 0})")
        a.I("s_barrier")
        st()
        for t in range(8):
            a.I(f"ds_read_b128 {v(RING + 4 * t, 4)}, {v(L16)} offset:{t * 1024}")
        dl = [x or "s_nop 0" for x in dma_list()] if ld else []
        for t in range(8):
            if t % 4 == 0:
                a.I("s_waitcnt lgkmcnt(4)")
            a.I(f"{MF} {v(S[0], 16)}, {v(RING + 4 * t, 4)}, {v(Q + 4 * t, 4)}, {v(NEGM if t == 0 else S[0], 16)}")
            a.I(f"ds_read_b128 {v(RING + 4 * t, 4)}, {v(L16)} offset:{16384 + t * 1024}")
            for x in dl[:3]:
                a.I(x)
            dl = dl[3:]
        assert not dl
        if ld:
            emit_dma()
        else:
            a.I("s_nop 11")
        rowmax(S[0], T0)
        for j in range(16):
            a.I(f"v_sub_f32 {v(S[0] + j)}, {v(S[0] + j)}, {v(T0)}")
        for j in range(16):
            a.I(f"v_sub_f32 {v(NEGM + j)}, 0, {v(T0)}")
        a.I(f"s_mov_b32 {s(sPH)}, 0")
        a.I(f"s_sub_u32 {s(sC)}, {s(sN)}, 3")
        a.I(f"s_cbranch_scc0 {N}_{R}_it0")
        a.I(f"s_mov_b32 {s(sPH)}, 1")
        a.I(f"s_sub_u32 {s(sC)}, {s(sN)}, 1")
        a.I(f"s_cmp_lg_u32 {s(sN)}, 2")
        a.I(f"s_cbranch_scc1 {N}_{R}_it0")
        mask_negm()

        def iteration(par):
            gaps = [[] for _ in range(16)]
            pre = [[] for _ in range(16)]
            mf = []
            Sc, Sn, Pc, Pp = S[par], S[1 - par], P[par], P[1 - par]
            e = lambda j: v(EE + (j % 6))
            for pos in range(16):
                r = v(RING + 4 * (pos & 7), 4)
                if pos < 8:
                    mf.append(f"{MF} {v(Sn, 16)}, {r}, {v(Q + 4 * pos, 4)}, {v(NEGM if pos == 0 else Sn, 16)}")
                    ks, dt = divmod(pos, 4)
                    gaps[pos].append(f"ds_read_b128 {r}, {v(VVA)} offset:{8192 + par * 16384 + (2 * dt + ks) * 1024}")
                else:
                    ks, dt = divmod(pos - 8, 4)
                    mf.append(f"{MF} {v(O + 16 * dt, 16)}, {r}, {v(Pp + 4 * ks, 4)}, {v(O + 16 * dt, 16)}")
                    gaps[pos].append(f"ds_read_b128 {r}, {v(VKA)} offset:{par * 16384 + (pos - 8) * 1024}")
                if pos % 4 == 0:
                    pre[pos].append("s_waitcnt lgkmcnt(4)")
            early = int(os.environ.get("EARLY", "1"))
            if early:
                eg = [0, 0, 1, 2, 2, 3, 4, 5, 6, 7, 8, 9, 10, 11, 12, 13]
            else:
                eg = [0] + list(range(15))
            gaps[0].append(f"v_add_f32 {v(VL)}, {v(VL)}, {v(VLS)}")
            for j in range(16):
                gaps[eg[j]].append(f"v_exp_f32 {e(j)}, {v(Sc + j)}")
            for j in range(1, 16):
                g = eg[j] + 1
                if j == 1:
                    gaps[g].append(f"v_add_f32 {v(VLS)}, {e(0)}, {e(1)}")
                else:
                    gaps[g].append(f"v_add_f32 {v(VLS)}, {v(VLS)}, {e(j)}")
                if j % 2 == 1:
                    gaps[g + (1 if (early and j == 15) else 0)].append(f"v_cvt_pk_bf16_f32 {v(Pc + j // 2)}, {e(j - 1)}, {e(j)}")
            if par == 0:
                gaps[2].append(f"v_add_u32 {v(VKA)}, 0x8000, {v(VKA)}")
                gaps[6].append(f"v_and_b32 {v(VKA)}, 0x1ffff, {v(VKA)}")
                bar = ["s_barrier", f"s_sub_u32 {s(sBAR)}, {s(sBAR)}, 1"]
                if ld:
                    bar = ["s_waitcnt vmcnt(14)"] + bar
                gaps[4] = bar + gaps[4]
                if ld:
                    d = [x for x in dma_list() if x]
                    m0a, l1, l2, m0b, l3, l4, m0c, svm, l5, l6, m0d, skm, l7, l8, sand, sko = d
                    gaps[5] = [m0a] + gaps[5] + [l1]
                    gaps[6] += [l2, m0b]
                    gaps[7] += [l3]
                    gaps[8] += [l4, m0c]
                    gaps[9] += [svm, l5]
                    gaps[10] += [l6, m0d]
                    gaps[11] += [l7]
                    gaps[12] += [l8, skm]
                    gaps[13] += [sand, sko]
            else:
                gaps[10].append(f"v_mov_b32 {v(VVA)}, {v(VKA)}")
            gaps[14].append(f"s_sub_u32 {s(sC)}, {s(sC)}, 1")
            gaps[14 if early else 15].append(f"v_cmp_nge_f32 vcc, {s(sTHR)}, {v(VLS)}")
            drop = os.environ.get("ADROP", "").split(",")
            for pos in range(16):
                if "bar" in drop:
                    gaps[pos] = [x for x in gaps[pos] if x != "s_barrier"]
                if "dma" in drop:
                    gaps[pos] = [x for x in gaps[pos] if not x.endswith(" lds")]
                if "rd" in drop:
                    gaps[pos] = [x for x in gaps[pos] if not x.startswith("ds_read")]
                if "valu" in drop:
                    gaps[pos] = [x for x in gaps[pos] if not (x.startswith("v_exp") or x.startswith("v_cvt") or x.startswith("v_add_f32"))]
                if "e64" in drop:
                    gaps[pos] = [x.replace("v_exp_f32 ", "v_exp_f32_e64 ").replace("v_add_f32 ", "v_add_f32_e64 ") for x in gaps[pos]]
                a.many(pre[pos])
                a.I(mf[pos])
                a.many(gaps[pos])
            if "br" not in drop:
                a.I(f"s_cbranch_vccnz {N}_{R}_slow{par}")
            a.label(f"{N}_{R}_back{par}")
            a.I(f"s_cbranch_scc1 {N}_{R}_spec{par}")

        if os.environ.get("PRIO") and not ld:
            pass
        if os.environ.get("AALIGN"):
            a.raw(".p2align 6")
            for _ in range(int(os.environ["AALIGN"]) - 1):
                a.I("s_nop 0")
        a.label(f"{N}_{R}_it0")
        iteration(0)
        a.label(f"{N}_{R}_it1")
        iteration(1)
        a.I(f"s_branch {N}_{R}_it0")

        def svc():
            lab = a.uid(f"{N}_{R}_svc")
            a.I(f"s_cmp_eq_u32 {s(sBAR)}, 0")
            a.I(f"s_cbranch_scc1 {lab}")
            if ld:
                a.I("s_waitcnt vmcnt(14)")
            if "bar" not in os.environ.get("ADROP", ""):
                a.I("s_barrier")
            a.I(f"s_sub_u32 {s(sBAR)}, {s(sBAR)}, 1")
            if ld:
                emit_dma()
            a.label(lab)

        for par in range(2):
            Sc, Sn, Pc = S[par], S[1 - par], P[par]
            a.label(f"{N}_{R}_slow{par}")
            a.I("s_nop 15")
            rowmax(Sc, T0)
            a.I(f"v_max_f32 {v(T0)}, 0, {v(T0)}")
            a.I(f"v_exp_f32_e64 {v(T1)}, -{v(T0)}")
            for j in range(16):
                a.I(f"v_sub_f32 {v(NEGM + j)}, {v(NEGM + j)}, {v(T0)}")
                a.I(f"v_sub_f32 {v(Sc + j)}, {v(Sc + j)}, {v(T0)}")
                a.I(f"v_sub_f32 {v(Sn + j)}, {v(Sn + j)}, {v(T0)}")
            for j in range(64):
                a.I(f"v_mul_f32 {v(O + j)}, {v(O + j)}, {v(T1)}")
            a.I(f"v_mul_f32 {v(VL)}, {v(VL)}, {v(T1)}")
            a.I(f"v_mov_b32 {v(VLS)}, 0")
            for i in range(8):
                a.I(f"v_exp_f32 {v(E)}, {v(Sc + 2 * i)}")
                a.I(f"v_exp_f32 {v(E + 1)}, {v(Sc + 2 * i + 1)}")
                a.I("s_nop 0")
                a.I(f"v_add_f32 {v(VLS)}, {v(VLS)}, {v(E)}")
                a.I(f"v_add_f32 {v(VLS)}, {v(VLS)}, {v(E + 1)}")
                a.I(f"v_cvt_pk_bf16_f32 {v(Pc + i)}, {v(E)}, {v(E + 1)}")
            a.I("s_nop 1")
            a.I(f"s_branch {N}_{R}_back{par}")
            a.label(f"{N}_{R}_spec{par}")
            a.I(f"s_cmp_lg_u32 {s(sPH)}, 0")
            a.I(f"s_cbranch_scc1 {N}_{R}_exit{par}")
            a.I(f"s_mov_b32 {s(sPH)}, 1")
            a.I(f"s_mov_b32 {s(sC)}, 1")
            mask_negm()
            a.I(f"s_branch {N}_{R}_it{1 - par}")
            a.label(f"{N}_{R}_exit{par}")
            a.I("s_waitcnt lgkmcnt(0)")
            for pos in range(8):
                ks, dt = divmod(pos, 4)
                a.I(f"ds_read_b128 {v(RING + 4 * pos, 4)}, {v(VVA)} offset:{8192 + (1 - par) * 16384 + (2 * dt + ks) * 1024}")
            a.I(f"v_add_f32 {v(VL)}, {v(VL)}, {v(VLS)}")
            for pos in range(8):
                ks, dt = divmod(pos, 4)
                a.I(f"s_waitcnt lgkmcnt({7 - pos})")
                a.I(f"{MF} {v(O + 16 * dt, 16)}, {v(RING + 4 * pos, 4)}, {v(Pc + 4 * ks, 4)}, {v(O + 16 * dt, 16)}")
            if par == 0:
                a.I(f"s_branch {N}_{R}_epi")
        a.label(f"{N}_{R}_epi")
        st()
        svc()
        if ld and withb2:
            srd(a, 48, 14, 15, 4 * MB)
            a.I("s_lshl_b32 s52, s2, 14")
            a.I("s_lshr_b32 s53, s11, 3")
            a.I("s_add_u32 s52, s52, s53")
            a.I("s_lshl_b32 s53, s11, 1")
            a.I(f"s_add_u32 s53, s53, {131072}")
            a.I("s_mov_b32 m0, s53")
            a.I(f"v_lshrrev_b32 {v(EE)}, 4, v0")
            a.I(f"v_lshlrev_b32 {v(EE)}, 10, {v(EE)}")
            a.I(f"v_and_b32 {v(EE + 1)}, 15, v0")
            a.I(f"v_lshl_add_u32 {v(EE)}, {v(EE + 1)}, 4, {v(EE)}")
            for q in range(4):
                a.I(f"buffer_load_dwordx4 {v(EE)}, s[48:51], s52 offen offset:{q * 1024} lds")
                if q < 3:
                    a.I(f"s_add_u32 s52, s52, {4096 - 1024}")
        a.I(f"v_mov_b32 {v(T2)}, {v(VL)}")
        a.I("s_nop 1")
        a.I(f"v_permlane32_swap_b32 {v(VL)}, {v(T2)}")
        a.I(f"v_add_f32 {v(VL)}, {v(VL)}, {v(T2)}")
        a.I(f"v_rcp_f32 {v(T0)}, {v(VL)}")
        a.I("s_nop 7")
        for dt in range(4):
            for h in range(2):
                q = 2 * dt + h
                for i in range(4):
                    src = O + 16 * dt + 8 * h + 2 * i
                    a.I(f"v_mul_f32 {v(src)}, {v(src)}, {v(T0)}")
                    a.I(f"v_mul_f32 {v(src + 1)}, {v(src + 1)}, {v(T0)}")
                    a.I(f"v_cvt_pk_bf16_f32 {v(PK + 4 * q + i)}, {v(src)}, {v(src + 1)}")
                a.I(f"buffer_store_dwordx4 {v(PK + 4 * q, 4)}, {v(L16)}, s[36:39], s{46 + q // 4} offen offset:{(q % 4) * 1024}{SP}")
            if dt == 1:
                svc()
        if ld and withb2:
            a.I(f"v_lshrrev_b32 {v(EE)}, 5, v0")
            a.I(f"v_bfe_u32 {v(EE + 1)}, v0, 2, 2")
            a.I(f"v_lshl_add_u32 {v(EE)}, {v(EE)}, 2, {v(EE + 1)}")
            a.I(f"v_lshlrev_b32 {v(EE)}, 8, {v(EE)}")
            a.I(f"v_bfe_u32 {v(EE + 1)}, v0, 4, 1")
            a.I(f"v_lshl_add_u32 {v(EE)}, {v(EE + 1)}, 5, {v(EE)}")
            a.I(f"v_and_b32 {v(EE + 1)}, 3, v0")
            a.I(f"v_lshl_add_u32 {v(EE)}, {v(EE + 1)}, 3, {v(EE)}")
            a.I(f"v_add_u32 {v(EE)}, s53, {v(EE)}")
            srd(a, 48, 4, 5, 4 * MB, add=WS_WO)
            a.I("s_lshl_b32 s52, s11, 9")
            a.I("s_lshl_b32 s54, s2, 11")
            a.I("s_add_u32 s52, s52, s54")
            a.I(f"s_add_u32 s54, s52, {hex(512 * 1024)}")
            a.I("s_waitcnt vmcnt(8)")
            for cb in range(4):
                for h in range(2):
                    a.I(f"ds_read_b64_tr_b16 {v(RING + 4 * cb + 2 * h, 2)}, {v(EE)} offset:{cb * 64 + h * 2048}")
            a.I("s_waitcnt lgkmcnt(0)")
            for cb in range(4):
                a.I(f"buffer_store_dwordx4 {v(RING + 4 * cb, 4)}, {v(L16)}, s[48:51], s{52 + 2 * (cb // 2)} offen offset:{(cb % 2) * 1024}{SP}")
            a.I(f"s_lshl_b32 s60, {s(sH)}, 2")
            a.I(f"s_add_u32 s60, s60, {s(sP)}")
            a.I("s_lshl_b32 s60, s60, 1")
            a.I(f"s_bfe_u32 s61, {s(sW)}, 0x10001")
            a.I("s_add_u32 s60, s60, s61")
            a.I(f"s_cmp_lt_u32 {s(sP)}, 4")
            a.I(f"s_cbranch_scc1 {N}_b2go")
            a.I("s_cmp_lg_u32 s60, 8")
            a.I(f"s_cbranch_scc1 {N}_{R}_tail")
            a.I(f"s_cmp_lg_u32 {s(sP)}, 4")
            a.I(f"s_cbranch_scc1 {N}_{R}_tail")
            a.I("s_movk_i32 s60, 0x100")
            a.label(f"{N}_b2go")
            a.I("s_lshl_b32 s61, s61, 14")
            a.I(f"s_add_u32 s61, s61, {131072}")
            a.I(f"s_lshl_b32 s62, {s(sP)}, 2")
            a.I("s_sub_u32 s62, 28, s62")
            a.label(f"{N}_b2al")
            a.I(f"s_cmp_le_u32 {s(sBAR)}, s62")
            a.I(f"s_cbranch_scc1 {N}_b2st")
            a.I("s_waitcnt vmcnt(14)")
            a.I("s_barrier")
            a.I(f"s_sub_u32 {s(sBAR)}, {s(sBAR)}, 1")
            emit_dma()
            a.I(f"s_branch {N}_b2al")
            a.label(f"{N}_b2st")
            a.I(f"s_bitcmp1_b32 {s(sW)}, 0")
            a.I(f"s_cbranch_scc1 {N}_b2w1")
            for own in range(2):
                vmb = VM(a)
                nsv = [0]

                def svcb():
                    nsv[0] += 1
                    a.I("s_waitcnt vmcnt(14)")
                    vmb.q = vmb.q[-14:]
                    a.I("s_barrier")
                    a.I(f"s_sub_u32 {s(sBAR)}, {s(sBAR)}, 1")
                    for x in dma_list():
                        if x and x.startswith("buffer"):
                            vmb.issue(x, "dma")
                        else:
                            a.I(x or "s_nop 0")
                if own:
                    a.label(f"{N}_b2w1")
                b2_body(a, own, 60, 61, svcb, vmb, R0=16, S0=62, SR=48)
                assert nsv[0] <= 12, nsv
                print("b2 svc slices", nsv[0])
                if not own:
                    a.I(f"s_branch {N}_{R}_tail")
        if ld:
            a.label(f"{N}_{R}_tail")
            a.I(f"s_cmp_eq_u32 {s(sBAR)}, 0")
            a.I(f"s_cbranch_scc1 {N}_{R}_done")
            a.I("s_waitcnt vmcnt(14)")
            if "bar" not in os.environ.get("ADROP", ""):
                a.I("s_barrier")
            a.I(f"s_sub_u32 {s(sBAR)}, {s(sBAR)}, 1")
            emit_dma()
            a.I(f"s_branch {N}_{R}_tail")
            a.label(f"{N}_{R}_done")
        n0 = st.n
        st.dump(sW, 4, tmpv=T0)
        st.n = n0 - 2
        a.I("s_endpgm")

    a.I(f"s_cmp_ge_u32 {s(sW)}, 4")
    a.I(f"s_cbranch_scc1 {N}_short")
    role(False)
    a.label(f"{N}_short")
    role(True)
    kend(a, N)
    return a, N, (256, 512, 163840 if withb2 else 131072)


def oproj_body(a, N, st, bar_at=None):
    ACC, CR, AFR = 64, 128, 192
    DEPTH = 8
    L16, L16B, VD0, VD1, TB = 1, 2, 3, 4, 5
    a.I("s_and_b32 s10, s2, 7")
    a.I("s_lshr_b32 s11, s2, 3")
    a.I("s_and_b32 s12, s11, 3")
    a.I("s_lshl_b32 s10, s10, 2")
    a.I("s_add_u32 s17, s10, s12")
    a.I("s_lshr_b32 s18, s11, 2")
    if os.environ.get("OPX") == "same":
        a.I("s_mov_b32 s17, 0")
        a.I("s_mov_b32 s18, 0")
    if os.environ.get("OPX") == "map2":
        a.I("s_and_b32 s10, s2, 3")
        a.I("s_lshl_b32 s10, s10, 3")
        a.I("s_and_b32 s12, s11, 7")
        a.I("s_add_u32 s17, s10, s12")
        a.I("s_bfe_u32 s10, s2, 0x10002")
        a.I("s_lshl_b32 s10, s10, 2")
        a.I("s_lshr_b32 s12, s11, 3")
        a.I("s_add_u32 s18, s10, s12")
    a.I(f"v_lshlrev_b32 {v(L16)}, 4, v0")
    a.I(f"v_add_u32 {v(L16B)}, 0x40000, {v(L16)}")
    a.I("v_lshrrev_b32 v8, 3, v0")
    a.I("v_lshlrev_b32 v8, 10, v8")
    a.I("v_bfe_u32 v9, v0, 4, 1")
    a.I("v_lshlrev_b32 v10, 2, v9")
    a.I("v_and_b32 v11, 7, v0")
    a.I("v_xor_b32 v10, v10, v11")
    a.I(f"v_lshl_add_u32 {v(VD0)}, v10, 4, v8")
    a.I("s_lshl_b32 s10, s18, 7")
    a.I(f"v_add_u32 {v(VD0)}, s10, {v(VD0)}")
    a.I(f"v_add_u32 {v(VD1)}, {8192 - 1024}, {v(VD0)}")
    a.I("v_lshrrev_b32 v8, 5, v0")
    a.I("v_bfe_u32 v10, v0, 2, 2")
    a.I("v_lshl_add_u32 v8, v8, 2, v10")
    a.I(f"v_lshlrev_b32 {v(TB)}, 7, v8")
    a.I(f"v_lshl_add_u32 {v(TB)}, v9, 5, {v(TB)}")
    a.I("v_and_b32 v10, 3, v0")
    a.I(f"v_lshl_add_u32 {v(TB)}, v10, 3, {v(TB)}")
    a.I("v_bfe_u32 v10, v0, 3, 1")
    a.I(f"v_lshl_add_u32 {v(TB)}, v10, 6, {v(TB)}")
    a.I("s_lshl_b32 s19, s16, 14")
    a.I(f"v_add_u32 {v(TB)}, s19, {v(TB)}")
    a.I(f"v_xor_b32 {v(TB + 1)}, 64, {v(TB)}")
    a.I("s_lshl_b32 s40, s17, 19")
    a.I("s_lshl_b32 s10, s16, 16")
    a.I("s_add_u32 s40, s40, s10")
    a.I("s_lshl_b32 s41, s16, 20")
    ROT = int(os.environ.get("ROT", "0"))
    if ROT:
        a.I("s_and_b32 s45, s2, 7")
        a.I(f"s_mul_i32 s45, s45, {ROT}")
    a.I("s_waitcnt lgkmcnt(0)")
    srd(a, 20, 4, 5, 16 * MB, add=WS_CTX)
    srd(a, 24, 6, 7, 4 * MB)
    srd(a, 28, 8, 9, 4 * MB)
    vm, lg = VM(a), LG(a)
    st()

    def loads(g):
        sl = g % DEPTH
        a.I(f"s_add_u32 m0, s19, {sl * 2048}")
        if ROT:
            if g % 4 == 0:
                a.I(f"s_add_u32 s44, s45, {g}")
                a.I("s_and_b32 s44, s44, 63")
                a.I("s_lshl_b32 s46, s44, 14")
                a.I("s_add_u32 s46, s46, s41")
                a.I("s_lshl_b32 s44, s44, 10")
            a.I(f"s_add_u32 s42, s46, {hex((g % 4) * 16384)}")
        else:
            a.I(f"s_add_u32 s42, s41, {hex(g * 16384)}")
        vm.issue(f"buffer_load_dwordx4 {v(VD0)}, s[24:27], s42 offen lds", g)
        vm.issue(f"buffer_load_dwordx4 {v(VD1)}, s[24:27], s42 offen offset:1024 lds", g)
        if g % 4 == 0:
            a.I(f"s_add_u32 s43, s40, {'s44' if ROT else hex(g * 1024)}")
        vm.issue(f"buffer_load_dwordx4 {v(CR + 8 * sl, 4)}, {v(L16)}, s[20:23], s43 offen offset:{(g % 4) * 1024}", g)
        vm.issue(f"buffer_load_dwordx4 {v(CR + 8 * sl + 4, 4)}, {v(L16B)}, s[20:23], s43 offen offset:{(g % 4) * 1024}", g)

    def trs(g):
        sl = g % DEPTH
        vm.wait(g)
        for cb in range(2):
            d = AFR + 8 * (g & 1) + 4 * cb
            lg.issue(f"ds_read_b64_tr_b16 {v(d, 2)}, {v(TB + cb)} offset:{sl * 2048}", g)
            lg.issue(f"ds_read_b64_tr_b16 {v(d + 2, 2)}, {v(TB + cb)} offset:{sl * 2048 + 1024}", g)

    for g in range(DEPTH):
        loads(g)
    st()
    trs(0)
    st()
    for g in range(64):
        if g + 1 < 64:
            trs(g + 1)
        lg.wait(g)
        sl = g % DEPTH
        for qt in range(2):
            for cb in range(2):
                acc = v(ACC + 16 * (2 * qt + cb), 16)
                a.I(f"{MF} {acc}, {v(AFR + 8 * (g & 1) + 4 * cb, 4)}, {v(CR + 8 * sl + 4 * qt, 4)}, {'0' if g == 0 else acc}")
        if g + DEPTH < 64:
            loads(g + DEPTH)
        if g == bar_at:
            a.I("s_barrier")
    st()
    a.I(f"v_add_u32 v8, s19, {v(L16)}")
    a.I("s_nop 11")
    for tl in range(4):
        for jq in range(4):
            a.I(f"ds_write_b128 v8, {v(ACC + 16 * tl + 4 * jq, 4)} offset:{(tl * 4 + jq) * 1024}")
    a.I("v_lshrrev_b32 v9, 5, v0")
    a.I("v_and_b32 v10, 31, v0")
    a.I("v_lshlrev_b32 v10, 4, v10")
    a.I("v_lshl_add_u32 v9, v9, 13, v10")
    a.I("s_lshl_b32 s10, s16, 11")
    a.I("v_add_u32 v9, s10, v9")
    a.I("s_lshl_b32 s11, s17, 17")
    a.I("s_lshl_b32 s12, s18, 7")
    a.I("s_add_u32 s11, s11, s12")
    a.I("s_lshl_b32 s12, s16, 5")
    a.I("s_add_u32 s11, s11, s12")
    a.I("v_lshlrev_b32 v10, 11, v0")
    a.I("s_waitcnt lgkmcnt(0)")
    return ACC


def oproj_body2(a, N, st, bar_at=None):
    DEPTH = int(os.environ.get("ODEPTH", "8"))
    ACC, CR = 192 - 16 * DEPTH, 256 - 16 * DEPTH
    L16, L16B = 1, 2
    a.I("s_and_b32 s10, s2, 7")
    a.I("s_lshr_b32 s11, s2, 3")
    a.I("s_and_b32 s12, s11, 3")
    a.I("s_lshl_b32 s10, s10, 2")
    a.I("s_add_u32 s17, s10, s12")
    a.I("s_lshr_b32 s18, s11, 2")
    if os.environ.get("OPX") == "same":
        a.I("s_mov_b32 s17, 0")
        a.I("s_mov_b32 s18, 0")
    if os.environ.get("OPX") == "sameq":
        a.I("s_and_b32 s17, s17, 3")
    if os.environ.get("OPX") == "map2":
        a.I("s_and_b32 s10, s2, 3")
        a.I("s_lshl_b32 s10, s10, 3")
        a.I("s_and_b32 s12, s11, 7")
        a.I("s_add_u32 s17, s10, s12")
        a.I("s_bfe_u32 s10, s2, 0x10002")
        a.I("s_lshl_b32 s10, s10, 2")
        a.I("s_lshr_b32 s12, s11, 3")
        a.I("s_add_u32 s18, s10, s12")
    a.I(f"v_lshlrev_b32 {v(L16)}, 4, v0")
    a.I(f"v_add_u32 {v(L16B)}, 0x40000, {v(L16)}")
    a.I("s_lshl_b32 s19, s16, 14")
    a.I("s_lshl_b32 s40, s17, 19")
    a.I("s_lshl_b32 s10, s16, 16")
    a.I("s_add_u32 s40, s40, s10")
    a.I("s_lshl_b32 s41, s18, 19")
    a.I("s_lshl_b32 s10, s16, 17")
    a.I("s_add_u32 s41, s41, s10")
    a.I("s_waitcnt lgkmcnt(0)")
    srd(a, 20, 4, 5, 16 * MB, add=WS_CTX)
    srd(a, 24, 4, 5, 4 * MB, add=WS_WO)
    srd(a, 28, 8, 9, 4 * MB)
    vm = VM(a)
    st()

    def loads(g):
        sl = g % DEPTH
        L = []
        if g % 2 == 0:
            L.append(lambda: a.I(f"s_add_u32 s42, s41, {hex(g * 2048)}"))
        if g % 4 == 0:
            L.append(lambda: a.I(f"s_add_u32 s43, s40, {hex(g * 1024)}"))
        for cb in range(2):
            L.append(lambda cb=cb: vm.issue(f"buffer_load_dwordx4 {v(CR + 16 * sl + 4 * cb, 4)}, {v(L16)}, s[24:27], s42 offen "
                                            f"offset:{(g % 2) * 2048 + cb * 1024}", g))
        for qt in range(2):
            L.append(lambda qt=qt: vm.issue(f"buffer_load_dwordx4 {v(CR + 16 * sl + 8 + 4 * qt, 4)}, {v(L16 + qt)}, s[20:23], s43 offen "
                                            f"offset:{(g % 4) * 1024}", g))
        return L

    for g in range(DEPTH):
        for f in loads(g):
            f()
    st()
    st()
    for g in range(64):
        vm.wait(g)
        sl = g % DEPTH
        for qt in range(2):
            for cb in range(2):
                acc = v(ACC + 16 * (2 * qt + cb), 16)
                a.I(f"{MF} {acc}, {v(CR + 16 * sl + 4 * cb, 4)}, {v(CR + 16 * sl + 8 + 4 * qt, 4)}, {'0' if g == 0 else acc}")
        if g + DEPTH < 64:
            for f in loads(g + DEPTH):
                f()
        if g == bar_at:
            a.I("s_barrier")
    st()
    a.I(f"v_add_u32 v8, s19, {v(L16)}")
    a.I("v_lshrrev_b32 v9, 5, v0")
    a.I("v_and_b32 v10, 31, v0")
    a.I("v_lshlrev_b32 v10, 4, v10")
    a.I("v_lshl_add_u32 v9, v9, 13, v10")
    a.I("s_lshl_b32 s10, s16, 11")
    a.I("v_add_u32 v9, s10, v9")
    a.I("s_lshl_b32 s11, s17, 17")
    a.I("s_lshl_b32 s12, s18, 7")
    a.I("s_add_u32 s11, s11, s12")
    a.I("s_lshl_b32 s12, s16, 5")
    a.I("s_add_u32 s11, s11, s12")
    a.I("v_lshlrev_b32 v10, 11, v0")
    for tl in range(4):
        for jq in range(4):
            a.I(f"ds_write_b128 v8, {v(ACC + 16 * tl + 4 * jq, 4)} offset:{(tl * 4 + jq) * 1024}")
    a.I("s_waitcnt lgkmcnt(0)")
    return ACC


def oproj_body3(a, N, st, bar_at=None):
    DEPTH = 8
    ACC, FR = 64, 128
    L16, L16B, LR = 1, 2, 3
    a.I("s_and_b32 s10, s2, 7")
    a.I("s_lshr_b32 s11, s2, 3")
    a.I("s_and_b32 s12, s11, 3")
    a.I("s_lshl_b32 s10, s10, 2")
    a.I("s_add_u32 s17, s10, s12")
    a.I("s_lshr_b32 s18, s11, 2")
    a.I(f"v_lshlrev_b32 {v(L16)}, 4, v0")
    a.I(f"v_add_u32 {v(L16B)}, {0x40000 - 1024}, {v(L16)}")
    a.I("s_lshl_b32 s19, s16, 15")
    a.I(f"v_add_u32 {v(LR)}, s19, {v(L16)}")
    a.I("s_lshl_b32 s42, s18, 19")
    a.I("s_lshl_b32 s10, s16, 17")
    a.I("s_add_u32 s42, s42, s10")
    a.I("s_lshl_b32 s43, s17, 19")
    a.I("s_lshl_b32 s10, s16, 16")
    a.I("s_add_u32 s43, s43, s10")
    a.I("s_waitcnt lgkmcnt(0)")
    srd(a, 20, 4, 5, 16 * MB + 2048, add=WS_CTX - 2048)
    srd(a, 24, 4, 5, 4 * MB, add=WS_WO)
    srd(a, 28, 8, 9, 4 * MB)
    vm, lg = VM(a), LG(a)
    st()

    def loads(g):
        sl = g % DEPTH
        return [lambda: a.I(f"s_add_u32 m0, s19, {sl * 4096}"),
                lambda: a.I("s_nop 0") if g < DEPTH else None,
                lambda: vm.issue(f"buffer_load_dwordx4 {v(L16)}, s[24:27], s42 offen lds", g),
                lambda: vm.issue(f"buffer_load_dwordx4 {v(L16)}, s[24:27], s42 offen offset:1024 lds", g),
                lambda: vm.issue(f"buffer_load_dwordx4 {v(L16)}, s[20:23], s43 offen offset:2048 lds", g),
                lambda: vm.issue(f"buffer_load_dwordx4 {v(L16B)}, s[20:23], s43 offen offset:3072 lds", g),
                lambda: a.I("s_add_u32 s42, s42, 2048"),
                lambda: a.I("s_add_u32 s43, s43, 1024")]

    def reads(g):
        vm.wait(g)
        for q in range(4):
            lg.issue(f"ds_read_b128 {v(FR + 16 * (g & 1) + 4 * q, 4)}, {v(LR)} offset:{(g % DEPTH) * 4096 + q * 1024}", g)

    for g in range(DEPTH):
        for f in loads(g):
            f()
    st()
    reads(0)
    st()
    for g in range(64):
        if g + 1 < 64:
            reads(g + 1)
        lg.wait(g)
        L = loads(g + DEPTH) if g + DEPTH < 64 else []
        fr = FR + 16 * (g & 1)
        for qt in range(2):
            for cb in range(2):
                acc = v(ACC + 16 * (2 * qt + cb), 16)
                if L:
                    L.pop(0)()
                a.I(f"{MF} {acc}, {v(fr + 4 * cb, 4)}, {v(fr + 8 + 4 * qt, 4)}, {'0' if g == 0 else acc}")
                if L:
                    L.pop(0)()
        if g == bar_at:
            a.I("s_barrier")
    st()
    a.I("v_lshrrev_b32 v9, 5, v0")
    a.I("v_and_b32 v10, 31, v0")
    a.I("v_lshlrev_b32 v10, 4, v10")
    a.I("v_lshl_add_u32 v9, v9, 13, v10")
    a.I("s_lshl_b32 s10, s16, 11")
    a.I("v_add_u32 v9, s10, v9")
    a.I("s_lshl_b32 s11, s17, 17")
    a.I("s_lshl_b32 s12, s18, 7")
    a.I("s_add_u32 s11, s11, s12")
    a.I("s_lshl_b32 s12, s16, 5")
    a.I("s_add_u32 s11, s11, s12")
    a.I("v_lshlrev_b32 v10, 11, v0")
    for tl in range(4):
        for jq in range(4):
            a.I(f"ds_write_b128 {v(LR)}, {v(ACC + 16 * tl + 4 * jq, 4)} offset:{(tl * 4 + jq) * 1024}")
    a.I("s_waitcnt lgkmcnt(0)")
    return ACC


def oproj_finish(a, ACC, PW=16384):
    for pw in range(4):
        for i in range(4):
            jq, hl = divmod(i, 2)
            if pw == 2 and i == 0 and PW > 16384:
                a.I("v_add_u32 v9, 0x10000, v9")
            a.I(f"ds_read_b128 {v(ACC + 16 * pw + 4 * i, 4)}, v9 offset:{(pw * PW) % 65536 + jq * 1024 + hl * 512}")
        if pw == 1:
            a.I("s_waitcnt lgkmcnt(0)")
            for j in range(16):
                a.I(f"v_add_f32 {v(ACC + j)}, {v(ACC + j)}, {v(ACC + 16 + j)}")
    a.I("s_waitcnt lgkmcnt(0)")
    for j in range(16):
        a.I(f"v_add_f32 {v(ACC + 32 + j)}, {v(ACC + 32 + j)}, {v(ACC + 48 + j)}")
    for j in range(16):
        a.I(f"v_add_f32 {v(ACC + j)}, {v(ACC + j)}, {v(ACC + 32 + j)}")
    for i in range(8):
        a.I(f"v_cvt_pk_bf16_f32 {v(12 + i)}, {v(ACC + 2 * i)}, {v(ACC + 2 * i + 1)}")
    a.I("buffer_store_dwordx4 v[12:15], v10, s[28:31], s11 offen")
    a.I("buffer_store_dwordx4 v[16:19], v10, s[28:31], s11 offen offset:16")


def gen_oproj():
    a = Asm()
    N = "oproj_kernel"
    kstart(a, N, 256)
    a.I("s_load_dwordx2 s[4:5], s[0:1], 88")
    a.I("s_load_dwordx2 s[6:7], s[0:1], 40")
    a.I("s_load_dwordx2 s[8:9], s[0:1], 72")
    a.I("v_lshrrev_b32 v1, 6, v0")
    a.I("v_and_b32 v0, 63, v0")
    a.I("s_nop 0")
    a.I("v_readfirstlane_b32 s16, v1")
    a.I("s_nop 0")
    st = Stamper(a, "oproj")
    ACC = oproj_body(a, N, st)
    a.I("s_barrier")
    oproj_finish(a, ACC)
    st.dump(16, 4, tmpv=8)
    kend(a, N)
    return a, N, (256, 256, 65536)


def PERMC(j):
    return 8 * (j >> 2) + (j & 3)


def gen_mat(a, dst, nf, base, consts, tmp):
    n = len(consts)
    for i in range(0, n, 4):
        for q in range(4):
            a.I(f"v_fmamk_f32 {v(tmp + q)}, {v(nf)}, {f32(float(consts[i + q]))}, {v(base)}")
        for q in range(4):
            a.I(f"v_cos_f32 {v(tmp + q)}, {v(tmp + q)}")
        a.I("s_nop 0")
        for q in range(2):
            a.I(f"v_cvt_pk_bf16_f32 {v(dst + i // 2 + q)}, {v(tmp + 2 * q)}, {v(tmp + 2 * q + 1)}")


def twiddle(a, Dr, Di, regs, nf, base, consts, sign, tmp):
    for x, c in enumerate(consts):
        A, C, S_, U = tmp, tmp + 1, tmp + 2, tmp + 3
        a.I(f"v_fmamk_f32 {v(A)}, {v(nf)}, {f32(float(c))}, {v(base)}")
        a.I(f"v_cos_f32 {v(C)}, {v(A)}")
        a.I(f"v_sin_f32 {v(S_)}, {v(A)}")
        a.I("s_nop 0")
        for j in regs[x]:
            ng = "-" if sign > 0 else ""
            ps = "" if sign > 0 else "-"
            a.I(f"v_mul_f32 {v(U)}, {v(Dr + j)}, {v(S_)}")
            a.I(f"v_mul_f32 {v(Dr + j)}, {v(Dr + j)}, {v(C)}")
            a.I(f"v_fma_f32 {v(Dr + j)}, {ng}{v(Di + j)}, {v(S_)}, {v(Dr + j)}")
            a.I(f"v_fma_f32 {v(Di + j)}, {v(Di + j)}, {v(C)}, {ps}{v(U)}")


def pack(a, dst, src, n):
    for i in range(n):
        a.I(f"v_cvt_pk_bf16_f32 {v(dst + i)}, {v(src + 2 * i)}, {v(src + 2 * i + 1)}")


def b_decode(a):
    a.I("s_and_b32 s20, s2, 7")
    a.I("s_lshl_b32 s20, s20, 3")
    a.I("s_bfe_u32 s22, s2, 0x30003")
    a.I("s_or_b32 s20, s20, s22")
    a.I("s_lshr_b32 s21, s2, 6")


def gen_b1():
    a = Asm()
    N = "b1_kernel"
    kstart(a, N, 256)
    a.I("s_load_dwordx2 s[4:5], s[0:1], 88")
    a.I("s_load_dwordx4 s[8:11], s[0:1], 48")
    a.I("s_load_dwordx2 s[12:13], s[0:1], 64")
    a.I("v_lshrrev_b32 v1, 6, v0")
    a.I("v_and_b32 v2, 255, v0")
    a.I("v_and_b32 v0, 63, v0")
    a.I("v_readfirstlane_b32 s16, v1")
    b_decode(a)
    a.I("s_lshr_b32 s23, s21, 1")
    a.I("s_lshl_b32 s23, s23, 11")
    a.I("s_lshr_b32 s24, s20, 5")
    a.I("s_lshl_b32 s24, s24, 10")
    a.I("s_add_u32 s23, s23, s24")
    a.I("s_and_b32 s24, s20, 31")
    a.I("s_lshl_b32 s24, s24, 4")
    a.I("s_add_u32 s23, s23, s24")
    a.I("s_and_b32 s24, s21, 1")
    a.I("s_lshl_b32 s24, s24, 9")
    a.I("s_add_u32 s23, s23, s24")
    a.I("s_add_u32 s24, s23, 4096")
    a.I("v_lshlrev_b32 v3, 13, v2")
    a.I("s_cmp_ge_u32 s16, 4")
    a.I("s_waitcnt lgkmcnt(0)")
    a.I(f"s_cbranch_scc1 {N}_filt")
    srd(a, 28, 8, 9, 2 * MB)
    srd(a, 32, 4, 5, 257 * 8192, add=WS_Y)
    a.I("s_lshr_b32 s25, s21, 1")
    a.I("s_lshl_b32 s25, s25, 4")
    a.I("s_and_b32 s26, s21, 1")
    a.I("s_lshl_b32 s26, s26, 2")
    a.I("s_add_u32 s25, s25, s26")
    a.I("s_lshr_b32 s26, s16, 1")
    a.I("s_lshl_b32 s26, s26, 3")
    a.I("s_add_u32 s25, s25, s26")
    a.I("s_and_b32 s26, s16, 1")
    a.I("s_lshl_b32 s26, s26, 1")
    a.I("s_add_u32 s25, s25, s26")
    a.I("s_lshl_b32 s25, s25, 6")
    a.I("s_add_u32 s25, s25, s20")
    a.I("s_lshl_b32 s25, s25, 10")
    a.I(f"s_add_u32 s26, s25, {65536 - 1024}")
    a.I("s_lshl_b32 s27, s16, 11")
    a.I("s_mov_b32 m0, s27")
    a.I("v_lshlrev_b32 v4, 4, v0")
    a.I("buffer_load_dwordx4 v4, s[28:31], s25 offen lds")
    a.I("buffer_load_dwordx4 v4, s[28:31], s26 offen offset:1024 lds")
    HL, NF, BS, TM = 5, 6, 7, 8
    C32, NS32, AR, AI, XF, D1R, D1I, TR, TI, D2 = 16, 24, 32, 36, 40, 48, 64, 80, 88, 96
    a.I(f"v_lshrrev_b32 {v(HL)}, 5, v0")
    a.I(f"v_cvt_f32_u32 {v(HL)}, {v(HL)}")
    a.I("v_and_b32 v12, 31, v0")
    a.I("v_cvt_f32_u32 v12, v12")
    a.I(f"v_mul_f32 {v(NF)}, {f32(1 / 32)}, v12")
    a.I(f"v_mul_f32 {v(BS)}, {v(NF)}, {v(HL)}")
    a.I(f"v_mul_f32 {v(BS)}, {f32(8.0)}, {v(BS)}")
    nat = [16 * t + j for t in range(2) for j in range(8)]
    gen_mat(a, C32, NF, BS, nat, TM)
    a.I(f"v_add_f32 {v(BS)}, {f32(0.25)}, {v(BS)}")
    gen_mat(a, NS32, NF, BS, nat, TM)
    a.I("v_and_b32 v13, 15, v0")
    a.I("v_cvt_f32_u32 v13, v13")
    a.I(f"v_mul_f32 {v(NF)}, {f32(1 / 16)}, v13")
    a.I("v_bfe_u32 v13, v0, 4, 1")
    a.I("v_cvt_f32_u32 v13, v13")
    a.I(f"v_mul_f32 {v(BS)}, {v(NF)}, {v(HL)}")
    a.I(f"v_mul_f32 {v(BS)}, 4.0, {v(BS)}")
    a.I(f"v_fmamk_f32 {v(BS)}, v13, {f32(0.25)}, {v(BS)}")
    pc = [PERMC(j) for j in range(8)]
    gen_mat(a, AR, NF, BS, pc, TM)
    a.I(f"v_add_f32 {v(BS)}, {f32(-0.25)}, {v(BS)}")
    gen_mat(a, AI, NF, BS, pc, TM)
    a.I("v_bfe_u32 v13, v0, 4, 1")
    a.I("v_lshlrev_b32 v13, 10, v13")
    a.I("v_lshrrev_b32 v14, 5, v0")
    a.I("v_lshl_add_u32 v13, v14, 8, v13")
    a.I("v_and_b32 v15, 15, v0")
    a.I("v_lshl_add_u32 v13, v15, 3, v13")
    a.I("v_add_u32 v13, s27, v13")
    a.I("s_waitcnt vmcnt(0)")
    for t in range(2):
        for h in range(2):
            a.I(f"ds_read_b64_tr_b16 {v(XF + 4 * t + 2 * h, 2)}, v13 offset:{t * 512 + h * 128}")
    a.I(f"v_mul_f32 {v(NF)}, {f32(1 / 512)}, v12")
    a.I(f"v_mul_f32 {v(BS)}, {v(NF)}, {v(HL)}")
    a.I(f"v_mul_f32 {v(BS)}, 4.0, {v(BS)}")
    a.I("s_waitcnt lgkmcnt(0)")
    for t in range(2):
        a.I(f"{MF} {v(D1R, 16)}, {v(XF + 4 * t, 4)}, {v(C32 + 4 * t, 4)}, {'0' if t == 0 else v(D1R, 16)}")
    for t in range(2):
        a.I(f"{MF} {v(D1I, 16)}, {v(XF + 4 * t, 4)}, {v(NS32 + 4 * t, 4)}, {'0' if t == 0 else v(D1I, 16)}")
    a.I("v_and_b32 v15, 31, v0")
    a.I("v_lshlrev_b32 v15, 4, v15")
    a.I("v_lshl_add_u32 v15, v14, 11, v15")
    a.I("s_lshl_b32 s25, s16, 2")
    a.I("s_add_u32 s25, s25, 8192")
    a.I("v_add_u32 v15, s25, v15")
    a.I("s_nop 7")
    twiddle(a, D1R, D1I, [[j, j + 8] for j in range(8)], NF, BS, pc, -1, TM)
    pack(a, TR, D1R, 8)
    pack(a, TI, D1I, 8)
    a.I("s_nop 1")
    for r in range(2):
        a.I(f"{MF} {v(D2 + 16 * r, 16)}, {v(AR, 4)}, {v(TR + 4 * r, 4)}, 0")
        a.I(f"{MF} {v(D2 + 16 * r, 16)}, {v(AI, 4)}, {v(TI + 4 * r, 4)}, {v(D2 + 16 * r, 16)}")
    a.I("s_nop 11")
    for c in range(2):
        for j in range(5):
            a.I(f"v_cvt_pk_bf16_f32 {v(TR + 5 * c + j)}, {v(D2 + 8 * c + j)}, {v(D2 + 16 + 8 * c + j)}")
    for c in range(2):
        for j in range(4):
            a.I(f"ds_write_b32 v15, {v(TR + 5 * c + j)} offset:{(c * 8 + j) * 512}")
    a.I("v_cmp_eq_u32 vcc, 0, v0")
    a.I("s_and_saveexec_b64 s[36:37], vcc")
    for c in range(2):
        a.I(f"ds_write_b32 v15, {v(TR + 5 * c + 4)} offset:{8192 + 16 * c}")
    a.I("s_mov_b64 exec, s[36:37]")
    a.I("v_lshlrev_b32 v14, 4, v2")
    a.I("s_waitcnt lgkmcnt(0)")
    a.I("s_barrier")
    a.I("ds_read_b128 v[16:19], v14 offset:8192")
    a.I(f"ds_read_b128 v[20:23], v14 offset:{8192 + 4096}")
    a.I(f"ds_read_b128 v[24:27], v14 offset:{8192 + 8192}")
    a.I("v_lshlrev_b32 v13, 12, v2")
    a.I(f"v_add_u32 v13, {256 * 8192}, v13")
    a.I("s_waitcnt lgkmcnt(0)")
    a.I("buffer_store_dwordx4 v[16:19], v3, s[32:35], s23 offen")
    a.I("buffer_store_dwordx4 v[20:23], v3, s[32:35], s24 offen")
    a.I("v_cmp_gt_u32 vcc, 2, v2")
    a.I("s_and_saveexec_b64 s[36:37], vcc")
    a.I(f"s_cbranch_execz {N}_end")
    a.I("buffer_store_dwordx4 v[24:27], v13, s[32:35], s23 offen")
    a.I("s_endpgm")
    a.label(f"{N}_filt")
    srd(a, 28, 10, 11, 2048 * 514)
    srd(a, 32, 12, 13, 2048 * 514)
    srd(a, 36, 4, 5, 257 * 8192, add=WS_WF)
    a.I("s_lshr_b32 s25, s21, 1")
    a.I("s_lshl_b32 s25, s25, 5")
    a.I("s_lshr_b32 s26, s20, 5")
    a.I("s_lshl_b32 s26, s26, 4")
    a.I("s_add_u32 s25, s25, s26")
    a.I("s_and_b32 s26, s21, 1")
    a.I("s_lshl_b32 s26, s26, 2")
    a.I("s_add_u32 s25, s25, s26")
    a.I("s_lshl_b32 s25, s25, 5")
    a.I("s_and_b32 s26, s20, 31")
    a.I("s_add_u32 s25, s25, s26")
    a.I("s_mul_i32 s25, s25, 514")
    for j in range(8):
        a.I(f"s_add_u32 s{40 + j}, s25, {PERMC(j) * 32 * 514}")
    a.I("v_lshlrev_b32 v4, 1, v2")
    a.I("v_mov_b32 v5, 512")
    for q, va in enumerate((4, 5)):
        for c in range(2):
            for j in range(8):
                a.I(f"buffer_load_ushort {v(32 + 16 * q + 8 * c + j)}, {v(va)}, s[{28 + 4 * c}:{31 + 4 * c}], s{40 + j} offen")
    a.I(f"v_mov_b32 v6, {256 * 8192}")
    a.I("s_waitcnt vmcnt(16)")
    for i in range(8):
        a.I(f"v_lshl_or_b32 {v(16 + i)}, {v(33 + 2 * i)}, 16, {v(32 + 2 * i)}")
    a.I("buffer_store_dwordx4 v[16:19], v3, s[36:39], s23 offen")
    a.I("buffer_store_dwordx4 v[20:23], v3, s[36:39], s24 offen")
    a.I("v_cmp_eq_u32 vcc, 0, v2")
    a.I("s_and_saveexec_b64 s[48:49], vcc")
    a.I(f"s_cbranch_execz {N}_end")
    a.I("s_waitcnt vmcnt(2)")
    for i in range(8):
        a.I(f"v_lshl_or_b32 {v(24 + i)}, {v(49 + 2 * i)}, 16, {v(48 + 2 * i)}")
    a.I("buffer_store_dwordx4 v[24:27], v6, s[36:39], s23 offen")
    a.I("buffer_store_dwordx4 v[28:31], v6, s[36:39], s24 offen")
    kend(a, N)
    return a, N, (256, 512, 20480)


def b2_body(a, own, col_s, lds_s, svc, vm, R0=0, S0=20, SR=28, slice_len=110):
    L16, HL, NF, BS, LF, XA, XB, TM, LB = [R0 + x for x in (1, 2, 3, 4, 5, 6, 7, 8, 12)]
    YR, YI, WR, WI = [R0 + x for x in (16, 24, 32, 40)]
    C32, S32, NS32, C64, S64 = [R0 + x for x in (48, 56, 64, 72, 88)]
    DR, DI = R0 + 104, R0 + 120
    FR, FI, FN = R0 + 136, R0 + 152, R0 + 168
    sY, sW, sSC, sT = S0, S0 + 2, S0 + 4, S0 + 5
    I0 = a.I
    cnt = [0]

    def I(text):
        r = I0(text)
        cnt[0] += 1
        if cnt[0] >= slice_len and text.startswith("v_cvt_pk") or cnt[0] >= slice_len and text.startswith("v_fma_f32"):
            dosvc()
        return r

    def dosvc():
        a.I = I0
        svc()
        a.I = I
        cnt[0] = 0

    a.I(f"v_lshlrev_b32 {v(L16)}, 4, v0")
    a.I(f"v_lshrrev_b32 {v(XA)}, 5, v0")
    a.I(f"v_lshlrev_b32 {v(XA)}, 5, {v(XA)}")
    a.I(f"v_add_u32 {v(XA)}, {v(XA)}, v0")
    a.I(f"v_mul_u32_u24 {v(XA)}, {YSTR}, {v(XA)}")
    a.I(f"s_lshl_b32 {s(sY)}, {s(col_s)}, 4")
    a.I(f"s_add_u32 {s(sY + 1)}, {s(sY)}, 4096")
    a.I(f"s_cmp_eq_u32 {s(col_s)}, 256")
    a.I(f"s_cselect_b32 {s(sY)}, 8192, {s(sY)}")
    a.I(f"s_cselect_b32 {s(sY + 1)}, {8192 + 16}, {s(sY + 1)}")
    srd(a, SR, 4, 5, 256 * YSTR, add=WS_Y)
    srd(a, SR + 4, 4, 5, 256 * YSTR, add=WS_WF)
    srd(a, SR + 8, 4, 5, 257 * 8192, add=WS_Z)
    for c in range(2):
        for t in range(2):
            a.I(f"s_add_u32 {s(sT)}, {s(sY + c)}, {(128 * t + 32 * own) * YSTR}")
            vm.issue(f"buffer_load_dwordx4 {v(YR + 8 * c + 4 * t, 4)}, {v(XA)}, {s(SR, 4)}, {s(sT)} offen", "Y")
    for c in range(2):
        for h in range(2):
            a.I(f"s_add_u32 {s(sT)}, {s(sY + c)}, {(128 * own + 32 * h) * YSTR}")
            vm.issue(f"buffer_load_dwordx4 {v(WR + 8 * c + 4 * h, 4)}, {v(XA)}, {s(SR + 4, 4)}, {s(sT)} offen", "WF")
    a.I(f"s_lshl_b32 {s(sT)}, {s(col_s)}, 13")
    a.I(f"s_add_u32 {s(sW)}, {s(sT)}, {own * 2048}")
    a.I(f"s_add_u32 {s(sW + 1)}, {s(sT)}, {own * 2048 + 4096}")
    a.I = I
    a.I(f"s_mov_b32 {s(sSC)}, {f32(2.0 ** -19)}")
    a.I(f"s_and_b32 {s(sT)}, {s(col_s)}, 255")
    a.I(f"s_cmp_eq_u32 {s(sT)}, 0")
    a.I(f"s_cselect_b32 {s(sSC)}, {f32(2.0 ** -20)}, {s(sSC)}")
    a.I(f"v_lshrrev_b32 {v(HL)}, 5, v0")
    a.I(f"v_cvt_f32_u32 {v(HL)}, {v(HL)}")
    a.I(f"v_mul_f32 {v(HL)}, 4.0, {v(HL)}")
    a.I(f"v_and_b32 {v(LF)}, 31, v0")
    a.I(f"v_cvt_f32_u32 {v(LF)}, {v(LF)}")
    a.I(f"v_add_f32 {v(LB)}, {f32(32.0 * own)}, {v(LF)}")
    pc = lambda n: [16 * t + PERMC(j) for t in range(n) for j in range(8)]
    a.I(f"v_mul_f32 {v(NF)}, {f32(1 / 32)}, {v(LF)}")
    a.I(f"v_mul_f32 {v(BS)}, {v(NF)}, {v(HL)}")
    gen_mat(a, C32, NF, BS, pc(2), TM)
    a.I(f"v_add_f32 {v(BS)}, {f32(-0.25)}, {v(BS)}")
    gen_mat(a, S32, NF, BS, pc(2), TM)
    for i in range(8):
        a.I(f"v_xor_b32 {v(NS32 + i)}, 0x80008000, {v(S32 + i)}")
    a.I(f"v_mul_f32 {v(NF)}, {f32(1 / 64)}, {v(LB)}")
    a.I(f"v_mul_f32 {v(BS)}, {v(NF)}, {v(HL)}")
    gen_mat(a, C64, NF, BS, pc(4), TM)
    a.I(f"v_add_f32 {v(BS)}, {f32(-0.25)}, {v(BS)}")
    gen_mat(a, S64, NF, BS, pc(4), TM)
    a.I(f"v_add_u32 {v(XA)}, {s(lds_s)}, {v(L16)}")
    a.I(f"v_add_u32 {v(XB)}, {(1 - own) * 4096}, {v(XA)}")
    a.I(f"v_add_u32 {v(XA)}, {own * 4096}, {v(XA)}")

    def mm(D, terms):
        first = True
        for A_, B_ in terms:
            a.I(f"{MF} {v(D, 16)}, {v(A_, 4)}, {v(B_, 4)}, {'0' if first else v(D, 16)}")
            first = False
        cnt[0] += 6 * len(terms)

    def exchange(neg_of, ldsoff):
        for c, F in enumerate((FR, FI)):
            for h in range(2):
                a.I(f"ds_write_b128 {v(XA)}, {v(F + 8 * own + 4 * h, 4)} offset:{ldsoff + (2 * c + h) * 1024}")
        a.I("s_waitcnt lgkmcnt(0)")
        dosvc()
        for c, F in enumerate((FR, FI)):
            for h in range(2):
                a.I(f"ds_read_b128 {v(F + 8 * (1 - own) + 4 * h, 4)}, {v(XB)} offset:{ldsoff + (2 * c + h) * 1024}")
        for i in range(8):
            a.I(f"v_xor_b32 {v(FN + 8 * own + i)}, 0x80008000, {v(neg_of + 8 * own + i)}")
        a.I("s_waitcnt lgkmcnt(0)")
        for i in range(8):
            a.I(f"v_xor_b32 {v(FN + 8 * (1 - own) + i)}, 0x80008000, {v(neg_of + 8 * (1 - own) + i)}")
        a.I("s_nop 1")

    jc = [(j & 3) + 8 * (j >> 2) for j in range(16)]
    a.I(f"v_mul_f32 {v(NF)}, {f32(1 / 2048)}, {v(LF)}")
    a.I(f"v_add_f32 {v(BS)}, {f32(32.0 * own)}, {v(HL)}")
    a.I(f"v_mul_f32 {v(BS)}, {v(NF)}, {v(BS)}")
    vm.wait("Y")
    mm(DR, [(YR, C32), (YR + 4, C32 + 4), (YI, S32), (YI + 4, S32 + 4)])
    mm(DI, [(YI, C32), (YI + 4, C32 + 4), (YR, NS32), (YR + 4, NS32 + 4)])
    a.I("s_nop 11")
    twiddle(a, DR, DI, [[j] for j in range(16)], NF, BS, jc, -1, TM)
    pack(a, FR + 8 * own, DR, 8)
    pack(a, FI + 8 * own, DI, 8)
    exchange(FR, 0)
    mm(DR, [(C64 + 4 * t, FR + 4 * t) for t in range(4)] + [(S64 + 4 * t, FI + 4 * t) for t in range(4)])
    mm(DI, [(C64 + 4 * t, FI + 4 * t) for t in range(4)] + [(S64 + 4 * t, FN + 4 * t) for t in range(4)])
    vm.wait("WF")
    a.I("s_nop 11")
    for j in range(16):
        wr, wi, u = TM, TM + 1, TM + 2
        if j & 1:
            a.I(f"v_and_b32 {v(wr)}, 0xffff0000, {v(WR + j // 2)}")
            a.I(f"v_and_b32 {v(wi)}, 0xffff0000, {v(WI + j // 2)}")
        else:
            a.I(f"v_lshlrev_b32 {v(wr)}, 16, {v(WR + j // 2)}")
            a.I(f"v_lshlrev_b32 {v(wi)}, 16, {v(WI + j // 2)}")
        a.I(f"v_mul_f32 {v(wr)}, {s(sSC)}, {v(wr)}")
        a.I(f"v_mul_f32 {v(wi)}, {s(sSC)}, {v(wi)}")
        a.I(f"v_mul_f32 {v(u)}, {v(DR + j)}, {v(wi)}")
        a.I(f"v_mul_f32 {v(DR + j)}, {v(DR + j)}, {v(wr)}")
        a.I(f"v_fma_f32 {v(DR + j)}, -{v(DI + j)}, {v(wi)}, {v(DR + j)}")
        a.I(f"v_fma_f32 {v(DI + j)}, {v(DI + j)}, {v(wr)}, {v(u)}")
    pack(a, FR + 8 * own, DR, 8)
    pack(a, FI + 8 * own, DI, 8)
    exchange(FI, 8192)
    mm(DR, [(FR + 4 * t, C64 + 4 * t) for t in range(4)] + [(FN + 4 * t, S64 + 4 * t) for t in range(4)])
    mm(DI, [(FI + 4 * t, C64 + 4 * t) for t in range(4)] + [(FR + 4 * t, S64 + 4 * t) for t in range(4)])
    a.I(f"v_mul_f32 {v(NF)}, {f32(1 / 2048)}, {v(LB)}")
    a.I(f"v_mul_f32 {v(BS)}, {v(NF)}, {v(HL)}")
    a.I("s_nop 11")
    twiddle(a, DR, DI, [[j] for j in range(16)], NF, BS, jc, +1, TM)
    pack(a, FR, DR, 8)
    pack(a, FI, DI, 8)
    a.I("s_nop 1")
    mm(DR, [(C32, FR), (C32 + 4, FR + 4), (NS32, FI), (NS32 + 4, FI + 4)])
    mm(DI, [(C32, FI), (C32 + 4, FI + 4), (S32, FR), (S32 + 4, FR + 4)])
    a.I = I0
    a.I("s_nop 7")
    pack(a, YR, DR, 8)
    a.I("s_nop 3")
    pack(a, YI, DI, 8)
    for c in range(2):
        for h in range(2):
            vm.issue(f"buffer_store_dwordx4 {v(YR + 8 * c + 4 * h, 4)}, {v(L16)}, {s(SR + 8, 4)}, {s(sW + c)} offen offset:{h * 1024}", "Z")


def gen_b2():
    a = Asm()
    N = "b2_kernel"
    kstart(a, N, 257)
    a.I("s_load_dwordx2 s[4:5], s[0:1], 88")
    a.I("v_lshrrev_b32 v1, 6, v0")
    a.I("v_and_b32 v0, 63, v0")
    a.I("s_mov_b32 s17, 0")
    a.I("v_readfirstlane_b32 s16, v1")
    a.I("s_waitcnt lgkmcnt(0)")
    a.I("s_cmp_eq_u32 s16, 1")
    a.I(f"s_cbranch_scc1 {N}_w1")
    b2_body(a, 0, 2, 17, lambda: a.I("s_barrier"), VM(a), slice_len=10 ** 9)
    a.I("s_endpgm")
    a.label(f"{N}_w1")
    b2_body(a, 1, 2, 17, lambda: a.I("s_barrier"), VM(a), slice_len=10 ** 9)
    kend(a, N)
    return a, N, (257, 128, 16384)


def b3_body(a, LB=0, outp=6):
    b_decode(a)
    a.I("s_lshr_b32 s23, s20, 5")
    a.I("s_lshl_b32 s23, s23, 11")
    a.I("s_lshl_b32 s24, s21, 9")
    a.I("s_add_u32 s23, s23, s24")
    a.I("s_and_b32 s24, s20, 31")
    a.I("s_lshl_b32 s24, s24, 4")
    a.I("s_add_u32 s23, s23, s24")
    a.I("s_add_u32 s24, s23, 4096")
    a.I("v_lshlrev_b32 v3, 13, v2")
    a.I(f"v_mov_b32 v4, {256 * 8192}")
    a.I("s_waitcnt lgkmcnt(0)")
    srd(a, 28, 4, 5, 257 * 8192, add=WS_Z)
    srd(a, 32, outp, outp + 1, 4 * MB)
    a.I("buffer_load_dwordx4 v[16:19], v3, s[28:31], s23 offen")
    a.I("buffer_load_dwordx4 v[20:23], v3, s[28:31], s24 offen")
    a.I("buffer_load_dwordx4 v[24:27], v4, s[28:31], s23 offen")
    HL, NF, BS, AFL, TM = 5, 6, 7, 12, 8
    C32, NS32, BRE, BIM, MT, ZF, UR, UI, TR, TI = 32, 40, 48, 56, 64, 68, 80, 96, 112, 120
    a.I(f"v_lshrrev_b32 {v(HL)}, 5, v0")
    a.I(f"v_cvt_f32_u32 {v(HL)}, {v(HL)}")
    a.I("v_and_b32 v13, 31, v0")
    a.I("v_cvt_f32_u32 v13, v13")
    a.I(f"v_mul_f32 {v(NF)}, {f32(1 / 32)}, v13")
    a.I(f"v_mul_f32 {v(BS)}, {v(NF)}, {v(HL)}")
    a.I(f"v_mul_f32 {v(BS)}, 4.0, {v(BS)}")
    pc = [16 * t + PERMC(j) for t in range(2) for j in range(8)]
    gen_mat(a, C32, NF, BS, pc, TM)
    a.I(f"v_add_f32 {v(BS)}, {f32(0.25)}, {v(BS)}")
    gen_mat(a, NS32, NF, BS, pc, TM)
    a.I(f"v_and_b32 {v(AFL)}, 15, v0")
    a.I(f"v_cvt_f32_u32 {v(AFL)}, {v(AFL)}")
    a.I(f"v_mul_f32 {v(NF)}, {f32(1 / 16)}, {v(AFL)}")
    a.I(f"v_mul_f32 {v(BS)}, {f32(0.25)}, {v(HL)}")
    a.I("v_and_b32 v13, 16, v0")
    a.I("v_cmp_eq_u32 vcc, 0, v13")
    a.I("v_mov_b32 v14, 0")
    for B_, ph in ((BRE, None), (BIM, -0.25)):
        if ph:
            a.I(f"v_add_f32 {v(BS)}, {f32(ph)}, {v(BS)}")
        gen_mat(a, MT, NF, BS, list(range(8)), TM)
        for i in range(4):
            a.I(f"v_cndmask_b32 {v(B_ + i)}, v14, {v(MT + i)}, vcc")
            a.I(f"v_cndmask_b32 {v(B_ + 4 + i)}, {v(MT + i)}, v14, vcc")
    a.I("v_and_b32 v13, 31, v2")
    a.I("v_lshlrev_b32 v13, 4, v13")
    a.I("v_lshrrev_b32 v15, 5, v2")
    a.I("v_lshl_add_u32 v13, v15, 1, v13")
    a.I(f"v_add_u32 v13, {LB}, v13")
    a.I("v_cmp_eq_u32 vcc, 0, v2")
    a.I(f"v_mov_b32 v15, {LB + 8192}")
    a.I("s_waitcnt vmcnt(0)")
    for i in range(4):
        a.I(f"v_cndmask_b32 {v(20 + i)}, {v(20 + i)}, v14, vcc")
    for c in range(2):
        for i in range(8):
            a.I(f"ds_write_b16{'_d16_hi' if i & 1 else ''} v13, {v(16 + 4 * c + i // 2)} offset:{i * 1024 + c * 512}")
    a.I("s_and_saveexec_b64 s[36:37], vcc")
    a.I("ds_write_b128 v15, v[24:27]")
    a.I("s_mov_b64 exec, s[36:37]")
    a.I("s_lshl_b32 s25, s16, 11")
    a.I(f"s_add_u32 s25, s25, {LB}")
    a.I("v_lshlrev_b32 v13, 4, v0")
    a.I("v_add_u32 v13, s25, v13")
    a.I("v_bfe_u32 v15, v0, 4, 1")
    a.I("s_lshl_b32 s25, s16, 2")
    a.I(f"s_add_u32 s25, s25, {LB + 8192}")
    a.I("v_lshl_add_u32 v15, v15, 1, s25")
    for j in range(1, 16):
        a.I(f"v_mov_b32 {v(UR + j)}, 0")
    a.I("s_waitcnt lgkmcnt(0)")
    a.I("s_barrier")
    a.I(f"ds_read_u16 {v(UR)}, v15")
    a.I(f"ds_read_b128 {v(ZF, 4)}, v13")
    a.I(f"ds_read_b128 {v(ZF + 4, 4)}, v13 offset:1024")
    a.I("v_and_b32 v15, 1, v0")
    a.I("v_lshlrev_b32 v15, 31, v15")
    a.I("v_cmp_gt_u32 vcc, 32, v0")
    a.I(f"v_mul_f32 {v(NF)}, {f32(1 / 512)}, {v(AFL)}")
    a.I(f"v_mul_f32 {v(BS)}, {v(NF)}, {v(HL)}")
    a.I(f"v_mul_f32 {v(BS)}, 4.0, {v(BS)}")
    a.I("s_waitcnt lgkmcnt(2)")
    a.I(f"v_lshlrev_b32 {v(UR)}, 16, {v(UR)}")
    a.I(f"v_xor_b32 {v(UR)}, {v(UR)}, v15")
    a.I(f"v_cndmask_b32 {v(UR)}, v14, {v(UR)}, vcc")
    a.I("s_waitcnt lgkmcnt(0)")
    a.I("s_nop 0")
    for r in range(2):
        a.I(f"{MF} {v(UR, 16)}, {v(ZF + 4 * r, 4)}, {v(BRE + 4 * r, 4)}, {v(UR, 16)}")
    for r in range(2):
        a.I(f"{MF} {v(UI, 16)}, {v(ZF + 4 * r, 4)}, {v(BIM + 4 * r, 4)}, {'0' if r == 0 else v(UI, 16)}")
    a.I("s_lshr_b32 s25, s21, 1")
    a.I("s_lshl_b32 s25, s25, 4")
    a.I("s_and_b32 s26, s21, 1")
    a.I("s_lshl_b32 s26, s26, 2")
    a.I("s_add_u32 s25, s25, s26")
    a.I("s_lshr_b32 s26, s16, 1")
    a.I("s_lshl_b32 s26, s26, 3")
    a.I("s_add_u32 s25, s25, s26")
    a.I("s_and_b32 s26, s16, 1")
    a.I("s_lshl_b32 s26, s26, 1")
    a.I("s_add_u32 s25, s25, s26")
    a.I("s_lshl_b32 s25, s25, 6")
    a.I("s_add_u32 s25, s25, s20")
    a.I("s_lshl_b32 s25, s25, 11")
    a.I(f"s_add_u32 s26, s25, {64 * 2048}")
    jc = [(j & 3) + 8 * (j >> 2) for j in range(16)]
    twiddle(a, UR, UI, [[j] for j in range(16)], NF, BS, jc, +1, TM)
    pack(a, TR, UR, 8)
    pack(a, TI, UI, 8)
    a.I("v_and_b32 v13, 31, v0")
    a.I("v_lshlrev_b32 v13, 5, v13")
    terms = [(TR, C32), (TR + 4, C32 + 4), (TI, NS32), (TI + 4, NS32 + 4)]
    for i, (A_, B_) in enumerate(terms):
        a.I(f"{MF} {v(UR, 16)}, {v(A_, 4)}, {v(B_, 4)}, {'0' if i == 0 else v(UR, 16)}")
    a.I("v_lshrrev_b32 v15, 5, v0")
    a.I("v_lshl_add_u32 v13, v15, 4, v13")
    a.I("s_nop 9")
    pack(a, 16, UR, 8)
    a.I("s_nop 1")
    for r in range(2):
        a.I(f"v_permlane32_swap_b32 {v(16 + 4 * r)}, {v(18 + 4 * r)}")
        a.I(f"v_permlane32_swap_b32 {v(17 + 4 * r)}, {v(19 + 4 * r)}")
        a.I(f"buffer_store_dwordx4 {v(16 + 4 * r, 4)}, v13, s[32:35], s{25 + r} offen offset:1024")


def gen_b3():
    a = Asm()
    N = "b3_kernel"
    kstart(a, N, 256)
    a.I("s_load_dwordx2 s[4:5], s[0:1], 88")
    a.I("s_load_dwordx2 s[6:7], s[0:1], 72")
    a.I("v_lshrrev_b32 v1, 6, v0")
    a.I("v_mov_b32 v2, v0")
    a.I("v_and_b32 v0, 63, v0")
    a.I("v_readfirstlane_b32 s16, v1")
    b3_body(a)
    kend(a, N)
    return a, N, (256, 256, 8192 + 64)


KERNELS = [gen_b1, gen_qkv, gen_b2, gen_attn, gen_b3, gen_oproj]


ALIASES = [("v_mfma_f32_16x16x32_bf16", "mf16", 4), ("v_mfma_f32_32x32x16_bf16", "mf32", 4),
           ("v_cvt_pk_bf16_f32", "cvtpk", 3)]


def compact(txt):
    lines = txt.split("\n")
    out = []
    done = False
    for l in lines:
        if l.startswith("    "):
            l = l.strip()
            for full, short, n in ALIASES:
                if l.startswith(full + " "):
                    l = short + l[len(full):]
        out.append(l)
        if l.startswith(".amdgcn_target") and not done:
            done = True
            for full, short, n in ALIASES:
                args = ["p%d" % i for i in range(n)]
                out.append(f".macro {short} " + ", ".join(args))
                out.append(f"{full} " + ", ".join("\\" + x for x in args))
                out.append(".endm")
    return "\n".join(out)


def build(kernels, path):
    hdr = open(os.path.join(os.path.dirname(os.path.abspath(__file__)), "..", "cdna_kernels", NAME + ".s.ref")).read()
    head = [l for l in hdr.splitlines() if l.startswith(";") and "@launch" not in l and "Override" not in l
            and "grid=ceil" not in l]
    txt = []
    launches = []
    descs = []
    bad = 0
    for g in kernels:
        KIDX[0] = len(launches)
        a, n, (grid, blk, lds) = g()
        if DBGT:
            items = []
            for it in a.items:
                if it[0] == "i" and it[1].mn == "s_endpgm" and not (items and items[-1][0] == "l" and items[-1][1] == n + "_end" and items[-2][1].mn == "s_endpgm"):
                    b = Asm()
                    lab = None
                    if items[-1][0] == "l" and items[-1][1] == n + "_end":
                        lab = items.pop()
                    dbg_stamp(b, 1)
                    items += b.items
                    if lab:
                        items.append(it)
                        items.append(lab)
                items.append(it)
            a.items = items
        bad += len(a.check())
        nv, ns, na = a.maxregs()
        print(f"{n}: {sum(1 for k, _ in a.items if k == 'i')} instrs, vgpr {nv}, agpr {na}, sgpr {ns}")
        launches.append(f"; @launch kernel={n} grid=({grid},1,1) block=({blk},1,1) lds={lds}")
        txt.append(a.text())
        descs.append(kdesc(n, nv, ns, na))
    if bad:
        print("HAZARDS:", bad)
    out = "\n".join(head) + "\n" + "\n".join(launches) + "\n" + '.amdgcn_target "amdgcn-amd-amdhsa--gfx950"\n' + \
          "".join(txt) + "".join(descs)
    out = compact(out)
    open(path, "w").write(out)
    return bad


if __name__ == "__main__":
    p = sys.argv[1] if len(sys.argv) > 1 else os.path.join(os.path.dirname(os.path.abspath(__file__)), "..",
                                                           "cdna_kernels", NAME + ".s")
    sys.exit(1 if build(KERNELS, p) else 0)
```

```python
import sys, os
sys.path.insert(0, os.path.dirname(os.path.abspath(__file__)))
import gen
from gen import *

M16 = "v_mfma_f32_16x16x32_bf16"
SP = os.environ.get("SP", " sc1")
PUMP = int(os.environ.get("PUMP", "5"))
GRP2 = int(os.environ.get("GRP2", "0"))
FILT_AT = int(os.environ.get("FILT_AT", "74"))
LATE_AT = int(os.environ.get("LATE_AT", "28"))
STF = eval(os.environ.get("STF", "(31, 63, 95)"))
B1START = int(os.environ.get("B1START", "6"))


def gen_l1():
    a = Asm()
    N = "l1_kernel"
    kstart(a, N, 256)
    a.I("s_load_dwordx4 s[4:7], s[0:1], 0")
    a.I("s_load_dwordx4 s[8:11], s[0:1], 16")
    a.I("s_load_dwordx2 s[12:13], s[0:1], 32")
    a.I("s_load_dwordx2 s[14:15], s[0:1], 88")
    a.I("s_load_dwordx4 s[60:63], s[0:1], 48")
    a.I("s_load_dwordx2 s[64:65], s[0:1], 64")
    TID, L16 = 64, 65
    a.I(f"v_and_b32 {v(TID)}, 255, v0")
    a.I("v_lshrrev_b32 v2, 6, v0")
    a.I("v_and_b32 v0, 63, v0")
    a.I("v_readfirstlane_b32 s16, v2")
    st = Stamper(a, "l1")
    st()
    BLDS = 9 * 16384
    a.I("s_and_b32 s17, s2, 7")
    a.I("s_lshr_b32 s18, s2, 3")
    a.I("s_and_b32 s19, s18, 7")
    a.I("s_lshr_b32 s18, s18, 3")
    a.I("s_lshl_b32 s40, s17, 2")
    a.I("s_add_u32 s18, s18, s40")
    if os.environ.get("L1MAP") == "4x8":
        a.I("s_lshr_b32 s18, s2, 3")
        a.I("s_and_b32 s19, s18, 3")
        a.I("s_and_b32 s40, s17, 1")
        a.I("s_lshl_b32 s40, s40, 2")
        a.I("s_add_u32 s19, s19, s40")
        a.I("s_lshr_b32 s18, s18, 2")
        a.I("s_lshr_b32 s40, s17, 1")
        a.I("s_lshl_b32 s40, s40, 3")
        a.I("s_add_u32 s18, s18, s40")
    a.I("s_mov_b32 s41, 0")
    a.I("s_mul_i32 s42, s18, 6")
    a.I("s_cmp_ge_u32 s18, 11")
    a.I("s_cselect_b32 s41, 1, s41")
    a.I("s_cselect_b32 s40, 64, 0")
    a.I("s_cmp_ge_u32 s18, 21")
    a.I("s_cselect_b32 s41, 2, s41")
    a.I("s_cselect_b32 s40, 126, s40")
    a.I("s_sub_u32 s42, s42, s40")
    a.I("s_lshl_b32 s44, s19, 3")
    a.I("s_add_u32 s44, s44, s16")
    t1, t2, t3, G = 66, 67, 68, 69
    WV, AV, AR_, TB, SK, SV = 1, 3, 7, 9, 21, 22
    a.I(f"v_lshrrev_b32 {v(t1)}, 3, v0")
    a.I(f"v_lshlrev_b32 {v(G)}, 10, {v(t1)}")
    a.I(f"v_lshlrev_b32 {v(t1)}, 13, {v(t1)}")
    a.I("s_lshl_b32 s45, s16, 17")
    a.I(f"v_add_u32 {v(t1)}, s45, {v(t1)}")
    a.I(f"v_bfe_u32 {v(t2)}, v0, 4, 1")
    a.I(f"v_lshlrev_b32 {v(t2)}, 1, {v(t2)}")
    a.I(f"v_and_b32 {v(t3)}, 7, v0")
    a.I(f"v_xor_b32 {v(t2)}, {v(t2)}, {v(t3)}")
    a.I(f"v_lshl_add_u32 {v(WV)}, {v(t2)}, 4, {v(t1)}")
    a.I(f"v_xor_b32 {v(WV + 1)}, 64, {v(WV)}")
    a.I(f"v_add_u32 {v(WV + 1)}, {65536 - 1024}, {v(WV + 1)}")
    a.I("s_lshl_b32 s45, s44, 15")
    a.I(f"v_add_u32 {v(t1)}, s45, {v(G)}")
    a.I(f"v_lshrrev_b32 {v(t2)}, 4, v0")
    a.I(f"v_xor_b32 {v(t2)}, {v(t2)}, {v(t3)}")
    a.I(f"v_lshl_add_u32 {v(AV)}, {v(t2)}, 4, {v(t1)}")
    a.I(f"v_xor_b32 {v(AV + 1)}, 64, {v(AV)}")
    a.I(f"v_add_u32 {v(AV + 1)}, {8192 - 1024}, {v(AV + 1)}")
    a.I(f"v_add_u32 {v(AV + 2)}, {2 * (8192 - 1024)}, {v(AV)}")
    a.I(f"v_add_u32 {v(AV + 3)}, {2 * (8192 - 1024)}, {v(AV + 1)}")
    a.I("s_lshl_b32 s46, s16, 13")
    a.I("s_lshl_b32 s47, s16, 11")
    a.I("s_lshl_b32 s48, s42, 7")
    a.I("s_lshl_b32 s49, s44, 13")
    a.I("s_lshl_b32 s50, s42, 18")
    a.I("s_add_u32 s50, s50, s49")
    a.I("s_add_u32 s53, s48, 512")
    a.I("s_mov_b32 s43, s49")
    a.I(f"v_lshlrev_b32 {v(L16)}, 4, v0")
    a.I("s_lshl_b32 s45, s44, 16")
    a.I("v_lshrrev_b32 v23, 1, v0")
    a.I("v_lshlrev_b32 v23, 13, v23")
    a.I(f"v_and_b32 {v(t1)}, 1, v0")
    a.I(f"v_lshl_add_u32 v23, {v(t1)}, 7, v23")
    a.I("v_add_u32 v23, s45, v23")
    a.I("s_waitcnt lgkmcnt(0)")
    a.I("s_cmp_eq_u32 s41, 2")
    a.I("s_cselect_b32 s20, s4, s6")
    a.I("s_cselect_b32 s21, s5, s7")
    a.I("s_cselect_b32 s24, s8, s10")
    a.I("s_cselect_b32 s25, s9, s11")
    a.I(f"s_cselect_b32 s51, {hex(WS_Q)}, 0")
    a.I(f"s_cselect_b32 s52, {f32(QSCALE)}, 1.0")
    a.I("s_cmp_eq_u32 s41, 1")
    a.I("s_cselect_b32 s24, s12, s24")
    a.I("s_cselect_b32 s25, s13, s25")
    a.I(f"s_cselect_b32 s51, {hex(WS_V)}, s51")
    a.I("s_mov_b32 s32, s24")
    a.I("s_mov_b32 s33, s25")
    a.I(f"s_mov_b32 s40, {hex(WS_V)}")
    a.I("s_cmp_eq_u32 s18, 10")
    a.I("s_cselect_b32 s32, s12, s32")
    a.I("s_cselect_b32 s33, s13, s33")
    a.I("s_cselect_b32 s53, 0, s53")
    a.I(f"s_add_u32 s45, s49, {hex(31 << 19)}")
    a.I("s_cmp_eq_u32 s18, 31")
    a.I("s_cselect_b32 s53, s48, s53")
    a.I("s_cselect_b32 s43, s50, s43")
    a.I(f"s_cselect_b32 s40, {hex(WS_Q)}, s40")
    a.I("s_cselect_b32 s24, s12, s24")
    a.I("s_cselect_b32 s25, s13, s25")
    a.I(f"s_cselect_b32 s48, {62 * 128}, s48")
    a.I(f"s_cselect_b32 s51, {hex(WS_V)}, s51")
    a.I("s_cselect_b32 s20, s6, s20")
    a.I("s_cselect_b32 s21, s7, s21")
    a.I("s_cselect_b32 s50, s45, s50")
    a.I(f"s_mov_b32 s22, {hex(2 * MB)}")
    a.I("s_mov_b32 s23, 0x20000")
    a.I(f"s_mov_b32 s26, {hex(4 * MB)}")
    a.I("s_mov_b32 s27, 0x20000")

    def late_setup():
        a.I(f"s_mov_b32 s34, {hex(4 * MB)}")
        a.I("s_mov_b32 s35, 0x20000")
        srd(a, 28, 14, 15, 16 * MB, add="s51")
        srd(a, 36, 14, 15, 16 * MB, add="s40")
        srd(a, 56, 4, 5, 2 * MB)
        a.I("s_add_u32 s13, s48, 256")
        a.I("s_add_u32 s17, s53, 256")
        a.I("s_cmp_eq_u32 s18, 31")
        a.I("s_cselect_b32 s4, s32, s24")
        a.I("s_cselect_b32 s5, s33, s25")
        a.I("s_cselect_b32 s13, s53, s13")
        a.I("s_cselect_b32 s17, s17, s53")
        a.I(f"s_mov_b32 s6, {hex(4 * MB)}")
        a.I("s_mov_b32 s7, 0x20000")

    def w_prefetch(g):
        for th, (col, sr) in enumerate([("s13", "s[4:7]"), ("s17", "s[32:35]")]):
            g.lq.append((["s_mov_b64 exec, 0xffff"], f"buffer_load_dword {v(61 + th)}, v23, {sr}, {col} offen", "pf"))

    def addr_setup():
        a.I(f"v_lshrrev_b32 {v(G)}, 4, v0")
        a.I(f"v_bfe_u32 {v(t1)}, v0, 3, 1")
        a.I(f"v_lshlrev_b32 {v(t1)}, 4, {v(t1)}")
        a.I(f"v_and_b32 {v(t2)}, 7, v0")
        a.I(f"v_add_u32 {v(t1)}, {v(t1)}, {v(t2)}")
        a.I(f"v_bfe_u32 {v(t2)}, {v(t1)}, 1, 3")
        a.I(f"v_xor_b32 {v(t2)}, {v(t2)}, {v(G)}")
        a.I(f"v_lshlrev_b32 {v(t2)}, 4, {v(t2)}")
        a.I(f"v_lshl_add_u32 {v(AR_)}, {v(t1)}, 7, {v(t2)}")
        a.I(f"v_xor_b32 {v(AR_ + 1)}, 64, {v(AR_)}")
        a.I(f"v_add_u32 {v(AR_)}, s46, {v(AR_)}")
        a.I(f"v_add_u32 {v(AR_ + 1)}, s46, {v(AR_ + 1)}")
        a.I(f"v_lshlrev_b32 {v(t2)}, 9, {v(G)}")
        a.I(f"v_lshl_add_u32 {v(SK)}, {v(t1)}, 4, {v(t2)}")
        a.I(f"v_and_b32 {v(t3)}, 15, v0")
        a.I(f"v_lshl_add_u32 {v(SV)}, {v(t3)}, 4, {v(t2)}")
        a.I(f"v_bfe_u32 {v(t1)}, v0, 2, 2")
        a.I(f"v_lshl_add_u32 {v(t1)}, {v(G)}, 3, {v(t1)}")
        a.I(f"v_lshlrev_b32 {v(t1)}, 7, {v(t1)}")
        a.I(f"v_and_b32 {v(t2)}, 3, v0")
        a.I(f"v_lshl_add_u32 {v(t1)}, {v(t2)}, 3, {v(t1)}")
        a.I(f"v_bfe_u32 {v(t2)}, v0, 3, 2")
        a.I(f"v_lshl_add_u32 {v(t1)}, {v(t2)}, 5, {v(t1)}")
        for ct in range(4):
            a.I(f"v_xor_b32 {v(TB + ct)}, {32 * ct}, {v(t1)}")
        for ct in range(4):
            a.I(f"v_add_u32 {v(TB + 4 + ct)}, 0x10000, {v(TB + ct)}")
            a.I(f"v_add_u32 {v(TB + 8 + ct)}, 0x20000, {v(TB + ct)}")

    def b_common():
        a.I("s_and_b32 s8, s2, 7")
        a.I("s_lshl_b32 s8, s8, 3")
        a.I("s_bfe_u32 s9, s2, 0x30003")
        a.I("s_or_b32 s8, s8, s9")
        a.I("s_lshr_b32 s9, s2, 6")
        a.I("s_lshl_b32 s66, s9, 6")
        a.I("s_add_u32 s66, s66, s8")
        a.I(f"s_mul_i32 s66, s66, {YSTR}")

    HL, NF, BS, F2, TM, X1, X2, X3 = 70, 71, 72, 73, 74, 78, 79, 80
    C32, NS32, AR, AI, XF, D1R, D1I, TR, TI, D2 = 84, 92, 100, 104, 108, 116, 132, 148, 158, 168
    pc8 = [PERMC(j) for j in range(8)]

    def fft_loads(vm):
        a.I("s_lshr_b32 s10, s9, 1")
        a.I("s_lshl_b32 s10, s10, 4")
        a.I("s_and_b32 s11, s9, 1")
        a.I("s_lshl_b32 s11, s11, 2")
        a.I("s_add_u32 s10, s10, s11")
        a.I("s_lshr_b32 s11, s16, 1")
        a.I("s_lshl_b32 s11, s11, 3")
        a.I("s_add_u32 s10, s10, s11")
        a.I("s_and_b32 s11, s16, 1")
        a.I("s_lshl_b32 s11, s11, 1")
        a.I("s_add_u32 s10, s10, s11")
        a.I("s_lshl_b32 s10, s10, 6")
        a.I("s_add_u32 s10, s10, s8")
        a.I("s_lshl_b32 s10, s10, 10")
        a.I(f"s_add_u32 s11, s10, {65536 - 1024}")
        a.I(f"s_add_u32 s3, s47, {BLDS}")
        a.I("s_mov_b32 m0, s3")
        a.I(f"s_mov_b32 s62, {hex(2 * MB)}")
        a.I("s_mov_b32 s63, 0x20000")
        vm.issue(f"buffer_load_dwordx4 {v(L16)}, s[60:63], s10 offen lds", "bx")
        vm.issue(f"buffer_load_dwordx4 {v(L16)}, s[60:63], s11 offen offset:1024 lds", "bx")

    def fft_compute(g):
        vm = g.vm
        a.I(f"v_lshrrev_b32 {v(X2)}, 5, v0")
        a.I(f"v_cvt_f32_u32 {v(HL)}, {v(X2)}")
        a.I(f"v_and_b32 {v(F2)}, 31, v0")
        a.I(f"v_cvt_f32_u32 {v(F2)}, {v(F2)}")
        a.I(f"v_mul_f32 {v(NF)}, {f32(1 / 32)}, {v(F2)}")
        a.I(f"v_mul_f32 {v(BS)}, {v(NF)}, {v(HL)}")
        a.I(f"v_mul_f32 {v(BS)}, {f32(8.0)}, {v(BS)}")
        nat = [16 * t + j for t in range(2) for j in range(8)]
        gen_mat(a, C32, NF, BS, nat, TM)
        a.I(f"v_add_f32 {v(BS)}, {f32(0.25)}, {v(BS)}")
        gen_mat(a, NS32, NF, BS, nat, TM)
        a.I(f"v_bfe_u32 {v(X1)}, v0, 4, 1")
        a.I(f"v_lshlrev_b32 {v(X1)}, 10, {v(X1)}")
        a.I(f"v_lshl_add_u32 {v(X1)}, {v(X2)}, 8, {v(X1)}")
        a.I(f"v_and_b32 {v(X3)}, 15, v0")
        a.I(f"v_lshl_add_u32 {v(X1)}, {v(X3)}, 3, {v(X1)}")
        a.I(f"v_add_u32 {v(X1)}, s3, {v(X1)}")
        vm.wait("bx")
        for t in range(2):
            for h in range(2):
                a.I(f"ds_read_b64_tr_b16 {v(XF + 4 * t + 2 * h, 2)}, {v(X1)} offset:{t * 512 + h * 128}")
        a.I(f"v_cvt_f32_u32 {v(X3)}, {v(X3)}")
        a.I(f"v_mul_f32 {v(NF)}, {f32(1 / 16)}, {v(X3)}")
        a.I(f"v_bfe_u32 {v(X1)}, v0, 4, 1")
        a.I(f"v_cvt_f32_u32 {v(X1)}, {v(X1)}")
        a.I(f"v_mul_f32 {v(BS)}, {v(NF)}, {v(HL)}")
        a.I(f"v_mul_f32 {v(BS)}, 4.0, {v(BS)}")
        a.I(f"v_fmamk_f32 {v(BS)}, {v(X1)}, {f32(0.25)}, {v(BS)}")
        a.I("s_waitcnt lgkmcnt(0)")
        for D, Mx in ((D1R, C32), (D1I, NS32)):
            for t in range(2):
                a.I(f"{MF} {v(D, 16)}, {v(XF + 4 * t, 4)}, {v(Mx + 4 * t, 4)}, {'0' if t == 0 else v(D, 16)}")
        gen_mat(a, AR, NF, BS, pc8, TM)
        a.I(f"v_add_f32 {v(BS)}, {f32(-0.25)}, {v(BS)}")
        gen_mat(a, AI, NF, BS, pc8, TM)
        a.I(f"v_mul_f32 {v(NF)}, {f32(1 / 512)}, {v(F2)}")
        a.I(f"v_mul_f32 {v(BS)}, {v(NF)}, {v(HL)}")
        a.I(f"v_mul_f32 {v(BS)}, 4.0, {v(BS)}")
        twiddle(a, D1R, D1I, [[j, j + 8] for j in range(8)], NF, BS, pc8, -1, TM)
        pack(a, TR, D1R, 8)
        pack(a, TI, D1I, 8)
        a.I(f"v_and_b32 {v(X3)}, 31, v0")
        a.I(f"v_lshlrev_b32 {v(X3)}, 4, {v(X3)}")
        for r in range(2):
            a.I(f"{MF} {v(D2 + 16 * r, 16)}, {v(AR, 4)}, {v(TR + 4 * r, 4)}, 0")
            a.I(f"{MF} {v(D2 + 16 * r, 16)}, {v(AI, 4)}, {v(TI + 4 * r, 4)}, {v(D2 + 16 * r, 16)}")
        a.I(f"v_lshl_add_u32 {v(X3)}, {v(X2)}, 11, {v(X3)}")
        a.I("s_lshl_b32 s10, s16, 2")
        a.I(f"s_add_u32 s11, s10, {BLDS + 8192}")
        a.I(f"v_add_u32 {v(X3)}, s11, {v(X3)}")
        a.I(f"v_mov_b32 {v(X2)}, s10")
        a.I("s_add_u32 s67, s66, 8192")
        srd(a, 60, 14, 15, 256 * YSTR, add=WS_Y)
        a.I("s_nop 1")
        for c in range(2):
            for j in range(5):
                a.I(f"v_cvt_pk_bf16_f32 {v(TR + 5 * c + j)}, {v(D2 + 8 * c + j)}, {v(D2 + 16 + 8 * c + j)}")
        for c in range(2):
            for j in range(4):
                a.I(f"ds_write_b32 {v(X3)}, {v(TR + 5 * c + j)} offset:{(c * 8 + j) * 512}")
        a.I = I0
        a.I("s_mov_b64 exec, 1")
        vm.issue(f"buffer_store_dword {v(TR + 4)}, {v(X2)}, s[60:63], s67 offen", "bs")
        vm.issue(f"buffer_store_dword {v(TR + 9)}, {v(X2)}, s[60:63], s67 offen offset:16", "bs")
        a.I("s_mov_b64 exec, -1")

    WFR, WFP, FX1, FX2 = 176, 188, 186, 187

    def filt_setup():
        a.I("s_lshr_b32 s10, s9, 1")
        a.I("s_lshl_b32 s10, s10, 5")
        a.I("s_lshr_b32 s11, s8, 5")
        a.I("s_lshl_b32 s11, s11, 4")
        a.I("s_add_u32 s10, s10, s11")
        a.I("s_and_b32 s11, s9, 1")
        a.I("s_lshl_b32 s11, s11, 2")
        a.I("s_add_u32 s10, s10, s11")
        a.I("s_lshl_b32 s10, s10, 5")
        a.I("s_and_b32 s11, s8, 31")
        a.I("s_add_u32 s10, s10, s11")
        a.I("s_mul_i32 s19, s10, 514")
        a.I(f"v_lshlrev_b32 {v(FX1)}, 1, {v(TID)}")
        a.I(f"v_and_b32 {v(FX2)}, 3, v0")
        a.I(f"v_bfe_u32 {v(t1)}, v0, 2, 1")
        a.I(f"v_lshl_add_u32 {v(FX2)}, {v(t1)}, 3, {v(FX2)}")
        a.I(f"v_mul_u32_u24 {v(FX2)}, {32 * 514}, {v(FX2)}")
        a.I(f"v_add_u32 {v(FX2)}, 512, {v(FX2)}")
        a.I("s_cmp_ge_u32 s16, 4")
        a.I("s_cselect_b32 s8, s64, s0")
        a.I("s_cselect_b32 s9, s65, s1")
        a.I(f"s_mov_b32 s10, {2048 * 514}")
        a.I("s_mov_b32 s11, 0x20000")

    def filt_loads(g):
        for j in range(8):
            g.lq.append(([f"s_add_u32 s12, s19, {PERMC(j) * 32 * 514}"],
                         f"buffer_load_ushort {v(WFR + j)}, {v(FX1)}, s[8:11], s12 offen", "wf"))
        g.lq.append(([], f"buffer_load_ushort {v(WFR + 8)}, {v(FX2)}, s[8:11], s19 offen", "wf"))

    def filt_finish(g):
        vm = g.vm
        L = [lambda: (g.flush("wf"), vm.wait("wf"))]
        L += [lambda: a.I(f"s_add_u32 s8, s14, {hex(WS_WF)}"), lambda: a.I("s_addc_u32 s9, s15, 0")]
        L = [L[0], lambda: (L1(), L2())]
        L1 = lambda: a.I(f"s_add_u32 s8, s14, {hex(WS_WF)}")
        L2 = lambda: a.I("s_addc_u32 s9, s15, 0")
        L.append(lambda: a.I(f"s_mov_b32 s10, {256 * YSTR}"))
        for i in range(4):
            L.append(lambda i=i: a.I(f"v_lshl_or_b32 {v(WFP + i)}, {v(WFR + 1 + 2 * i)}, 16, {v(WFR + 2 * i)}"))
        L.append(lambda: a.I(f"v_lshlrev_b32 {v(FX2)}, 1, v0"))

        L.append(lambda: vm.issue(f"buffer_store_dwordx4 {v(WFP, 4)}, {v(YA + 1)}, s[8:11], s66 offen", "bs"))
        L.append(lambda: (a.I("s_mov_b64 exec, 0xff"),
                          vm.issue(f"buffer_store_short {v(WFR + 8)}, {v(FX2)}, s[8:11], s67 offen", "bs"),
                          a.I("s_mov_b64 exec, -1")))
        return L

    YA, YD = 170, 172
    ACC, RING, PK, AFB = 192, 24, 56, 64
    LOOK = int(os.environ.get('LOOK', '6'))
    AHEAD = int(os.environ.get("AHEAD", "4"))

    def AF(rt, k):
        return AFB + (k * 2 + rt) * 4

    class Gen:
        def __init__(self, passes, nmerge, vmq):
            self.passes, self.nmerge = passes, nmerge
            self.vm, self.lg = VM(a), LG(a)
            self.vm.q = list(vmq)
            self.busy, self.nxt, self.dq, self.lq = {}, 0, [], []
            self.chunks, self.frags, self.groups = [], [], {}
            for pp in range(0, len(passes), 2):
                if pp // 2 < nmerge:
                    for kc in range(4):
                        c = len(self.chunks)
                        self.chunks += [(pp, kc), (pp + 1, kc)]
                        self.groups[len(self.frags)] = [c, c + 1]
                        for ks in range(4):
                            for h in range(2):
                                self.frags += [(c + h, ks, ct) for ct in range(4)]
                else:
                    for q in range(2):
                        for kc in range(4):
                            c = len(self.chunks)
                            self.chunks.append((pp + q, kc))
                            if GRP2 == 0:
                                self.groups[len(self.frags)] = [c]
                            elif kc % 2 == 0:
                                self.groups[len(self.frags)] = [c, c + 1]
                            self.frags += [(c, ks, ct) for ks in range(4) for ct in range(4)]
            self.prev = [[], []]
            self.b1busy = True
            self.skip_boundary = False

        def blk(self, c):
            nm = 8 * self.nmerge
            if c < nm:
                return 4 + 2 * ((c // 2) % 3) + (c & 1)
            if self.nmerge == 1:
                return [6, 7, 8, 9, 0, 1, 2, 3][(c - nm) % 8]
            return [8, 9, 4, 5, 0, 1, 2, 3][(c - nm) % 8]

        def dmaW(self, now, done):
            c = self.nxt
            if c >= len(self.chunks) or c > now + AHEAD:
                return False
            b = self.blk(c)
            if b in self.busy and self.busy[b] not in done:
                return False
            if b == 9 and self.b1busy:
                return False
            if b < 4 and now < 8 * self.nmerge:
                return False
            self.busy[b] = c
            self.nxt += 1
            pp, kc = self.chunks[c]
            form, wsel, wdi, osel, odi = self.passes[pp]
            sr = "s[32:35]" if wsel else "s[24:27]"
            for q in range(2):
                pre = [f"s_add_u32 m0, s47, {hex(b * 16384)}",
                       f"s_add_u32 s45, {'s53' if wsel else 's48'}, {hex((kc << 20) + wdi * 128)}"] if q == 0 else []
                self.dq.append((pre, f"buffer_load_dwordx4 {v(WV + q)}, {sr}, s45 offen offset:{q * 1024} lds", ("W", c)))
            return True

        def pump(self, n=1):
            for _ in range(n):
                q = self.dq or self.lq
                if q:
                    pre, ins, tag = q.pop(0)
                    a.many(pre)
                    self.vm.issue(ins, tag)
                    if tag == "pf":
                        a.I("s_mov_b64 exec, -1")

        def flush(self, tag=None):
            while any(tag is None or x[2] == tag for x in self.dq + self.lq):
                self.pump()

        def dmaA(self, j):
            sr = "s[56:59]" if j >= 8 else "s[20:23]"
            k = 0
            while k < len(self.dq) and not self.dq[k][0]:
                k += 1
            for i in range(4):
                pre = [f"s_add_u32 m0, s46, {hex((j % 2) * 4096)}", f"s_mov_b32 s45, {(j % 8) * 128}"] if i == 0 else []
                self.dq.insert(k + i, (pre, f"buffer_load_dwordx4 {v(AV + i)}, {sr}, s45 offen offset:{i * 1024} lds", ("A", j)))

        def readA(self, j):
            self.flush(("A", j))
            self.vm.wait(("A", j))
            for ks in range(2):
                for x in range(2):
                    self.lg.issue(f"ds_read_b128 {v(AF(x, 2 * (j % 8) + ks), 4)}, {v(AR_ + (ks ^ x))} "
                                  f"offset:{(j % 2) * 4096 + x * 1024}", ("A", j))

        def reads(self, i, halves=(0, 1)):
            c, ks, ct = self.frags[i]
            b = self.blk(c)
            base = TB + 4 * (b // 4) + ct
            off = (b % 4) * 16384 + ks * 4096
            d = RING + 4 * (i % RN)
            for h in halves:
                self.lg.issue(f"ds_read_b64_tr_b16 {v(d + 2 * h, 2)}, {v(base)} offset:{off + 512 * h}", ("W", i))

        def sync(self, grp):
            for c in grp:
                self.flush(("W", c))
            self.vm.wait([("W", c) for c in grp])
            a.I("s_barrier")
            lo = self.prev[1][0] if self.prev[1] else 0
            done = set(range(lo))
            if self.prev[1]:
                self.b1busy = False
            self.prev = [self.prev[1], grp]
            while self.dmaW(grp[0], done):
                pass

        def acc(self, pp, rt, ct):
            return ACC + 32 * (pp & 1) + 4 * (4 * rt + ct)

        def epi(self, pp):
            out = []
            form, wsel, wdi, osel, u = self.passes[pp]
            so = 54 + (pp & 1)
            sr = "s[36:39]" if osel else "s[28:31]"
            out.append(lambda: a.I(f"s_add_u32 s{so}, {'s43' if osel else 's50'}, "
                                   f"{hex(((u >> 1) * 512 * 1024 + (u & 1) * 4096) & 0xffffffff)}"))
            for q in range(4):
                pk = PK + 4 * (q % 2)
                if form == "K":
                    x, cp = divmod(q, 2)
                    srcs = [self.acc(pp, x, 2 * cp), self.acc(pp, x, 2 * cp + 1)]
                    off, va = x * 128 + cp * 2048, SK
                else:
                    srcs = [self.acc(pp, 0, q), self.acc(pp, 1, q)]
                    off, va = (q >> 1) * 2048 + (q & 1) * 256, SV
                for i in range(4):
                    src = srcs[i // 2] + 2 * (i % 2)
                    if form == "K":
                        out.append(lambda src=src: a.I(f"v_mul_f32 {v(src)}, s52, {v(src)}"))
                        out.append(lambda src=src: a.I(f"v_mul_f32 {v(src + 1)}, s52, {v(src + 1)}"))
                    out.append(lambda src=src, pk=pk, i=i: a.I(f"v_cvt_pk_bf16_f32 {v(pk + i)}, {v(src)}, {v(src + 1)}"))
                out.append(lambda pk=pk, va=va, off=off: self.vm.issue(
                    f"buffer_store_dwordx4 {v(pk, 4)}, {v(va)}, {sr}, s{so} offen offset:{off}{SP}", ("S", pp)))
            return out

        def boundary(self, pps):
            self.flush("pf")
            self.vm.wait("pf")
            a.I("s_nop 6")
            for pp in pps:
                for f in self.epi(pp):
                    f()

        def run(self, p0, p1):
            lg = self.lg
            NF_ = len(self.frags)
            NA = 8 * self.nmerge
            pend = []
            for i in range(64 * p0, 64 * p1):
                c, ks, ct = self.frags[i]
                pp, kc = self.chunks[c]
                k = 4 * kc + ks
                if i % 128 == 0 and 0 < i <= 128 * self.nmerge and not self.skip_boundary:
                    self.boundary([i // 64 - 2] + ([i // 64 - 1] if i < 128 * self.nmerge else []))
                if i % 2 == 0:
                    lg.wait([("W", i), ("W", i + 1), ("A", i // 16)])
                if i % 16 == 0 and i // 16 + 2 < NA:
                    self.dmaA(i // 16 + 2)
                wf = v(RING + 4 * (i % RN), 4)
                j = i + LOOK
                for rt in range(2):
                    ac = v(self.acc(pp, rt, ct), 4)
                    af = v(AF(rt, k), 4)
                    cin = "0" if k == 0 else ac
                    if self.passes[pp][0] == "V":
                        a.I(f"{M16} {ac}, {af}, {wf}, {cin}")
                    else:
                        a.I(f"{M16} {ac}, {wf}, {af}, {cin}")
                    if j < NF_:
                        if rt == 0 and j in self.groups:
                            self.sync(self.groups[j])
                        if rt == 0 and j % 16 == 0 and j // 16 < NA:
                            self.readA(j // 16)
                        self.reads(j, (rt,))
                    if rt == 0 and pend:
                        pend.pop(0)()
                    if rt == 1 and i % 2 == 0:
                        if self.dq or self.lq:
                            self.pump(1)
                        elif pend:
                            pend.pop(0)()
                if i % 64 == 63:
                    assert not pend
                if i % 64 == 3 and i >= 128 * self.nmerge:
                    pend = self.epi(i // 64 - 1)
                if i == LATE_AT:
                    w_prefetch(self)
                    filt_loads(self)
                if i == FILT_AT:
                    pend = filt_finish(self)
                if i in STF:
                    st()
            self.flush()

        def fin(self, pp):
            a.I("s_nop 7")
            for f in self.epi(pp):
                f()
            st.dump(16, 14, tmpv=24)
            a.I("s_endpgm")

    RN = 8
    I0 = a.I
    cnt = [0]
    gp = [None]

    def Ipump(text):
        r = I0(text)
        if text.startswith("v_") and not text.startswith("v_mfma"):
            cnt[0] += 1
            if cnt[0] % PUMP == 0 and gp[0].dq:
                a.I = I0
                gp[0].pump()
                a.I = Ipump
        return r

    b_common()
    a.I("s_mov_b64 s[0:1], s[62:63]")
    g0 = Gen([("K", 0, i, 0, i) for i in range(2)], 1, [])
    a.I("s_cmp_ge_u32 s16, 4")
    a.I(f"s_cbranch_scc1 {N}_nofl")
    fft_loads(VM(a))
    a.label(f"{N}_nofl")
    for _ in range(2):
        g0.dmaW(0, set())
    g0.dmaA(0)
    g0.flush()
    g0.dmaA(1)
    for _ in range(2):
        g0.dmaW(0, set())
    g0.flush()
    st()
    late_setup()
    addr_setup()
    g0.dmaW(0, set())
    a.I("s_cmp_ge_u32 s16, 4")
    a.I(f"s_cbranch_scc1 {N}_join")
    gf = Gen([("K", 0, i, 0, i) for i in range(2)], 1, ["bx", "bx"] + g0.vm.q)
    fft_compute(gf)
    a.label(f"{N}_join")
    filt_setup()
    if os.environ.get("L1PRIO"):
        a.I("s_cmp_lt_u32 s16, 4")
        a.I(f"s_cbranch_scc1 {N}_np")
        a.I(f"s_setprio {os.environ['L1PRIO']}")
        a.label(f"{N}_np")
    srd(a, 60, 14, 15, 256 * YSTR, add=WS_Y)
    vmq = list(g0.vm.q)
    st()
    stn = st.n
    def y_prep():
        a.I(f"v_lshlrev_b32 {v(YA + 1)}, 4, {v(TID)}")
        a.I("s_lshr_b32 s12, s16, 2")
        a.I("s_lshl_b32 s67, s12, 4")
        a.I("s_add_u32 s67, s67, s66")
        a.I("s_add_u32 s67, s67, 8192")
        a.I("s_lshl_b32 s12, s12, 12")
        a.I("s_add_u32 s66, s66, s12")
        a.I(f"s_add_u32 s12, s12, {BLDS + 8192}")
        a.I(f"v_add_u32 {v(YA)}, s12, {v(YA + 1)}")

    y_prep()

    def mkgen(passes, nmerge=1):
        g = Gen(passes, nmerge, vmq)
        g.busy, g.nxt, g.dq = dict(g0.busy), g0.nxt, list(g0.dq)
        st.n = stn
        return g

    def start(g):
        a.I("s_waitcnt lgkmcnt(0)")
        g.readA(0)
        g.sync(g.groups[0])
        st()
        g.lg.issue(f"ds_read_b128 {v(YD, 4)}, {v(YA)}", "y")
        for i in range(LOOK):
            g.reads(i)
        g.lg.wait("y")
        g.vm.issue(f"buffer_store_dwordx4 {v(YD, 4)}, {v(YA + 1)}, s[60:63], s66 offen", "bs")

    def capture(fn):
        n0 = len(a.items)
        fn()
        seg = a.items[n0:]
        del a.items[n0:]
        return seg

    def merge(s1, s2):
        import asmlib
        assert len(s1) == len(s2), (len(s1), len(s2))
        out = []
        for x, y in zip(s1, s2):
            if x[0] == "i" and x[1].text != y[1].text:
                assert x[1].text.startswith("s_waitcnt vmcnt") and y[1].text.startswith("s_waitcnt vmcnt"), (x[1].text, y[1].text)
                n = min(int(x[1].text[16:-1]), int(y[1].text[16:-1]))
                out.append(("i", asmlib.Ins(f"s_waitcnt vmcnt({n})")))
            else:
                out.append(x)
        return out

    def looped(F, lab):
        def plist(pair):
            L = []
            for pp in range(8):
                if pair == 0:
                    L.append((F, 0, pp, 0, pp))
                else:
                    rel = pp - pair
                    L.append((F, 1 if rel >= 2 else 0, rel - 2 if rel >= 2 else rel, 0, rel))
            return L
        g = mkgen(plist(0))
        start(g)
        g.run(0, 2)
        g.boundary([0])
        g.skip_boundary = True
        st()
        a.I("s_add_u32 s48, s48, 256")
        a.I(f"s_add_u32 s50, s50, {hex(512 * 1024)}")
        a.I("s_mov_b32 s44, 0")
        g.passes = plist(2)
        s1 = capture(lambda: g.run(2, 4))
        g.passes = plist(4)
        s2 = capture(lambda: g.run(4, 6))
        a.label(lab + "_loop")
        a.items += merge(s1, s2)
        if F == "K":
            a.I("s_cmp_eq_u32 s18, 10")
            a.I(f"s_cbranch_scc1 {N}_Ctail")
        a.I("s_mov_b32 s48, s53")
        a.I("s_mov_b32 s34, 0")
        a.I(f"s_add_u32 s50, s50, {hex(512 * 1024)}")
        a.I("s_add_u32 s44, s44, 1")
        a.I("s_cmp_lt_u32 s44, 2")
        a.I(f"s_cbranch_scc1 {lab}_loop")
        g.passes = plist(6)
        g.fin(5)
        return g

    a.I("s_cmp_eq_u32 s18, 31")
    a.I(f"s_cbranch_scc1 {N}_D")
    a.I("s_cmp_eq_u32 s41, 1")
    a.I(f"s_cbranch_scc1 {N}_B")
    looped("K", N + "_A")
    a.label(f"{N}_Ctail")
    gc = mkgen([("K", 0, pp, 0, pp) for pp in range(4)] + [("V", 1, 0, 1, 0), ("V", 1, 1, 1, 1)])
    capture(lambda: (start(gc), gc.run(0, 4)))
    gc.passes[3] = ("K", 0, 1, 0, 1)
    st.n = stn + 5
    gc.run(4, 6)
    gc.fin(5)
    a.label(N + "_B")
    looped("V", N + "_B2")
    a.label(N + "_D")
    gd = mkgen([("V", 0, 0, 0, 0), ("V", 0, 1, 0, 1)] + [("K", 1, i, 1, i) for i in range(4)], 2)
    start(gd)
    gd.run(0, 2)
    st()
    gd.run(2, 6)
    gd.fin(5)
    kend(a, N)
    return a, N, (256, 512, 163840)


def gen_l3():
    a = Asm()
    N = "l3_kernel"
    kstart(a, N, 256)
    a.I("s_load_dwordx2 s[4:5], s[0:1], 88")
    a.I("s_load_dwordx2 s[6:7], s[0:1], 40")
    a.I("s_load_dwordx2 s[8:9], s[0:1], 72")
    a.I("v_lshrrev_b32 v1, 6, v0")
    a.I("v_and_b32 v2, 255, v0")
    a.I("v_and_b32 v0, 63, v0")
    a.I("v_readfirstlane_b32 s16, v1")
    a.I("s_nop 0")
    a.I("s_cmp_ge_u32 s16, 4")
    a.I(f"s_cbranch_scc1 {N}_b3")
    st = Stamper(a, "l3")
    ACC = oproj_body3(a, N, st, bar_at=8)
    a.I("s_barrier")
    oproj_finish(a, ACC, 32768)
    st.dump(16, 4, tmpv=8)
    a.I("s_endpgm")
    a.label(f"{N}_b3")
    a.I("s_and_b32 s16, s16, 3")
    b3_body(a, 131072, 8)
    kend(a, N)
    return a, N, (256, 512, 131072 + 8192 + 64)


KERNELS = [gen_l1, lambda: gen_attn(True), gen_l3]

if __name__ == "__main__":
    p = sys.argv[1] if len(sys.argv) > 1 else os.path.join(os.path.dirname(os.path.abspath(__file__)), "..",
                                                           "cdna_kernels", NAME + ".s")
    sys.exit(1 if build(KERNELS, p) else 0)
```

```python
import sys, os, math, struct
sys.path.insert(0, os.path.dirname(os.path.abspath(__file__)))
from asmlib import Asm, VM, LG, v, s, ag

NAME = "concat_heads__compressed_kv_cla__spectral_gfnet__prompt"
MB = 1 << 20
WS_K, WS_V, WS_CTX, WS_Y, WS_WF, WS_Z, WS_Q = 0, 16 * MB, 32 * MB, 48 * MB, 52 * MB, 56 * MB, 64 * MB
WS_WO = 60 * MB
YSTR = 8320
KA = dict(x=0, ckv=8, wq=16, wuk=24, wuv=32, wo=40, bx=48, wr=56, wi=64, out=72, dbg=80, ws=88)
MF = "v_mfma_f32_32x32x16_bf16"
SP = os.environ.get("SP", " sc1")


def f32(x):
    return "0x%08x" % struct.unpack("<I", struct.pack("<f", x))[0]


def srd(a, d, lo, hi, size, add=0):
    if add:
        a.I(f"s_add_u32 {s(d)}, {s(lo)}, {add if isinstance(add, str) else hex(add)}")
        a.I(f"s_addc_u32 {s(d + 1)}, {s(hi)}, 0")
    else:
        a.I(f"s_mov_b32 {s(d)}, {s(lo)}")
        a.I(f"s_mov_b32 {s(d + 1)}, {s(hi)}")
    a.I(f"s_mov_b32 {s(d + 2)}, {size if isinstance(size, str) else hex(size)}")
    a.I(f"s_mov_b32 {s(d + 3)}, 0x20000")


STAMPS = int(os.environ.get("STAMPS", "0"))
ST0 = 72


class Stamper:
    def __init__(self, a, name=""):
        self.a, self.n = a, 0
        self.on = STAMPS and os.environ.get("STAMPK", name) == name

    def __call__(self):
        if self.on and self.n < 11:
            if self.n == 0:
                self.a.I("s_memrealtime s[68:69]")
            self.a.I(f"s_memtime {s(ST0 + 2 * self.n, 2)}")
            self.n += 1

    def dump(self, wave_s, wslo, tmpv=8):
        if not self.on:
            return
        a = self.a
        a.I("s_waitcnt vmcnt(0) lgkmcnt(0)")
        a.I(f"s_memtime {s(ST0 + 2 * self.n, 2)}")
        a.I("s_memrealtime s[70:71]")
        self.n += 1
        srd(a, 96, wslo, wslo + 1, 1 * MB, add=128 * MB)
        a.I("s_lshl_b32 s100, s2, 3")
        a.I(f"s_add_u32 s100, s100, {s(wave_s)}")
        a.I("s_lshl_b32 s100, s100, 8")
        a.I("s_waitcnt lgkmcnt(0)")
        a.I(f"v_mov_b32 {v(tmpv + 1)}, 0")
        for i in range(self.n):
            a.I(f"v_mov_b32 {v(tmpv)}, {s(ST0 + 2 * i)}")
            a.I(f"buffer_store_dword {v(tmpv)}, {v(tmpv + 1)}, s[96:99], s100 offen offset:{4 * i}")
        for i, r in ((62, 68), (63, 70), (61, ST0 + 2 * (self.n - 1))):
            a.I(f"v_mov_b32 {v(tmpv)}, {s(r)}")
            a.I(f"buffer_store_dword {v(tmpv)}, {v(tmpv + 1)}, s[96:99], s100 offen offset:{4 * i}")
        a.I("s_waitcnt vmcnt(0)")


DBGT = int(os.environ.get("DBGT", "0"))
KIDX = [0, 0]


def dbg_stamp(a, end):
    k = KIDX[0]
    lab = a.uid("dbgskip%d_%d" % (k, KIDX[1]))
    KIDX[1] += 1
    if not end:
        a.I("v_readfirstlane_b32 s89, v0")
        a.I("s_nop 1")
        a.I("s_lshr_b32 s89, s89, 6")
        a.I("s_or_b32 s89, s89, s2")
    a.I("s_cmp_lg_u32 s89, 0")
    a.I(f"s_cbranch_scc1 {lab}")
    a.I("s_load_dwordx4 s[92:95], s[90:91], 80")
    a.I("s_waitcnt vmcnt(0) lgkmcnt(0)")
    a.I("s_memrealtime s[86:87]")
    a.I(f"s_add_u32 s96, s94, {hex(200 * MB)}")
    a.I("s_addc_u32 s97, s95, 0")
    a.I("s_mov_b32 s98, 256")
    a.I("s_mov_b32 s99, 0x20000")
    a.I("s_waitcnt lgkmcnt(0)")
    a.I("v_mov_b32 v254, s86")
    a.I(f"buffer_store_dword v254, off, s[96:99], 0 offset:{8 * k + 4 * end} sc0 sc1")
    a.I("s_waitcnt vmcnt(0)")
    if end and k == DBGT - 1:
        a.I("v_lshlrev_b32 v253, 2, v0")
        a.I("buffer_load_dword v254, v253, s[96:99], 0 offen sc0 sc1")
        a.I("s_mov_b32 s96, s92")
        a.I("s_mov_b32 s97, s93")
        a.I("s_waitcnt vmcnt(0)")
        a.I("buffer_store_dword v254, v253, s[96:99], 0 offen")
        a.I(f"s_sub_u32 s96, s92, {k * 512}")
        a.I("s_subb_u32 s97, s93, 0")
        a.I("s_nop 0")
        a.I("buffer_store_dword v254, v253, s[96:99], 0 offen")
    a.label(lab)


def code_touch(a, kname, wave_s, sr, vt, nw_log=3):
    if os.environ.get("NOCP"):
        return
    ref = a.uid("pcref_" + kname)
    a.I(f"s_getpc_b64 {s(sr, 2)}")
    a.label(ref)
    a.I(f"s_add_u32 {s(sr)}, {s(sr)}, {kname} - {ref}")
    a.I(f"s_addc_u32 {s(sr + 1)}, {s(sr + 1)}, ({kname} - {ref}) >> 32")
    a.I(f"s_mov_b32 {s(sr + 2)}, {kname}_end - {kname}")
    a.I(f"s_mov_b32 {s(sr + 3)}, 0x20000")
    a.I(f"s_lshr_b32 {s(sr + 4)}, s2, 3")
    a.I(f"s_lshl_b32 {s(sr + 4)}, {s(sr + 4)}, {nw_log}")
    a.I(f"s_add_u32 {s(sr + 4)}, {s(sr + 4)}, {s(wave_s)}")
    a.I(f"s_lshl_b32 {s(sr + 4)}, {s(sr + 4)}, {12 - nw_log}")
    a.I(f"v_lshlrev_b32 {v(vt)}, 7, v0")
    a.I(f"s_mov_b64 exec, {(1 << (32 >> nw_log)) - 1}")
    a.I(f"buffer_load_dword {v(vt + 1)}, {v(vt)}, {s(sr, 4)}, {s(sr + 4)} offen")
    a.I("s_mov_b64 exec, -1")


def kstart(a, name, nwg):
    a.raw(".text")
    a.raw(f".globl {name}")
    a.raw(".p2align 8")
    a.raw(f".type {name},@function")
    a.label(name)
    a.I(f"s_cmp_ge_u32 s2, {nwg}")
    a.I(f"s_cbranch_scc1 {name}_end")
    if DBGT:
        a.I("s_mov_b64 s[90:91], s[0:1]")
        dbg_stamp(a, 0)


def kend(a, name):
    a.label(name + "_end")
    a.I("s_endpgm")


def kdesc(name, nv, ns, na=0):
    nv = (nv + 7) // 8 * 8
    acc_off = nv
    nv = nv + (na + 7) // 8 * 8
    return f""".section .rodata,"a"
.p2align 6
.amdhsa_kernel {name}
  .amdhsa_next_free_vgpr {nv}
  .amdhsa_next_free_sgpr {max(ns, 16)}
  .amdhsa_accum_offset {acc_off}
  .amdhsa_group_segment_fixed_size 0
  .amdhsa_kernarg_size 96
  .amdhsa_user_sgpr_count 2
  .amdhsa_user_sgpr_kernarg_segment_ptr 1
  .amdhsa_system_sgpr_workgroup_id_x 1
  .amdhsa_float_denorm_mode_32 3
.end_amdhsa_kernel
"""


QSCALE = math.log2(math.e) / math.sqrt(128.0)


def gen_qkv():
    a = Asm()
    N = "qkvproj_kernel"
    kstart(a, N, 256)
    a.I("s_load_dwordx4 s[4:7], s[0:1], 0")
    a.I("s_load_dwordx4 s[8:11], s[0:1], 16")
    a.I("s_load_dwordx2 s[12:13], s[0:1], 32")
    a.I("s_load_dwordx2 s[14:15], s[0:1], 88")
    a.I("v_lshrrev_b32 v1, 6, v0")
    a.I("v_and_b32 v0, 63, v0")
    a.I("s_and_b32 s17, s2, 7")
    a.I("v_readfirstlane_b32 s16, v1")
    a.I("s_lshr_b32 s18, s2, 3")
    a.I("s_and_b32 s19, s18, 7")
    a.I("s_lshr_b32 s18, s18, 3")
    a.I("s_lshl_b32 s40, s17, 2")
    a.I("s_add_u32 s18, s18, s40")
    a.I("s_mov_b32 s41, 0")
    a.I("s_mul_i32 s42, s18, 6")
    a.I("s_cmp_ge_u32 s18, 11")
    a.I("s_cselect_b32 s41, 1, s41")
    a.I("s_cselect_b32 s40, 64, 0")
    a.I("s_cmp_ge_u32 s18, 21")
    a.I("s_cselect_b32 s41, 2, s41")
    a.I("s_cselect_b32 s40, 126, s40")
    a.I("s_sub_u32 s42, s42, s40")
    a.I("s_lshl_b32 s44, s19, 3")
    a.I("s_add_u32 s44, s44, s16")
    hl, b4, t1, t2 = 9, 10, 11, 12
    a.I(f"v_lshrrev_b32 {v(hl)}, 5, v0")
    a.I(f"v_bfe_u32 {v(b4)}, v0, 4, 1")
    a.I(f"v_lshrrev_b32 {v(t1)}, 3, v0")
    a.I(f"v_lshlrev_b32 {v(t1)}, 10, {v(t1)}")
    a.I("s_lshl_b32 s45, s44, 15")
    a.I(f"v_add_u32 {v(t1)}, s45, {v(t1)}")
    a.I(f"v_lshrrev_b32 {v(t2)}, 4, v0")
    a.I("v_and_b32 v13, 7, v0")
    a.I(f"v_xor_b32 {v(t2)}, {v(t2)}, v13")
    a.I(f"v_lshl_add_u32 v52, {v(t2)}, 4, {v(t1)}")
    a.I("v_xor_b32 v53, 64, v52")
    a.I(f"v_add_u32 v53, {8192 - 1024}, v53")
    a.I(f"v_add_u32 v54, {2 * (8192 - 1024)}, v52")
    a.I(f"v_add_u32 v55, {2 * (8192 - 1024)}, v53")
    a.I("v_and_b32 v13, 31, v0")
    a.I(f"v_bfe_u32 {v(t2)}, v0, 1, 3")
    a.I(f"v_xor_b32 {v(t2)}, {v(t2)}, {v(hl)}")
    a.I(f"v_lshlrev_b32 {v(t2)}, 4, {v(t2)}")
    a.I(f"v_lshl_add_u32 {v(t2)}, v13, 7, {v(t2)}")
    a.I("s_mul_i32 s46, s16, 12288")
    for t in range(4):
        a.I(f"v_xor_b32 {v(56 + t)}, {32 * t}, {v(t2)}")
    for t in range(4):
        a.I(f"v_add_u32 {v(56 + t)}, s46, {v(56 + t)}")
    a.I("v_lshrrev_b32 v2, 3, v0")
    a.I("v_lshlrev_b32 v2, 13, v2")
    a.I(f"v_lshlrev_b32 {v(t1)}, 2, {v(b4)}")
    a.I(f"v_and_b32 {v(t2)}, 7, v0")
    a.I(f"v_xor_b32 {v(t1)}, {v(t1)}, {v(t2)}")
    a.I(f"v_lshl_add_u32 v2, {v(t1)}, 4, v2")
    a.I("s_lshl_b32 s45, s16, 17")
    a.I("v_add_u32 v2, s45, v2")
    a.I(f"v_add_u32 v3, {65536 - 1024}, v2")
    a.I(f"v_bfe_u32 {v(t1)}, v0, 2, 2")
    a.I(f"v_lshl_add_u32 {v(t2)}, {v(hl)}, 3, {v(t1)}")
    a.I(f"v_lshlrev_b32 v4, 7, {v(t2)}")
    a.I(f"v_lshl_add_u32 v4, {v(b4)}, 5, v4")
    a.I(f"v_and_b32 {v(t2)}, 3, v0")
    a.I(f"v_lshl_add_u32 v4, {v(t2)}, 3, v4")
    a.I(f"v_bfe_u32 {v(t2)}, v0, 3, 1")
    a.I(f"v_lshl_add_u32 v4, {v(t2)}, 6, v4")
    a.I("v_xor_b32 v5, 64, v4")
    a.I("v_add_u32 v6, 0x10000, v4")
    a.I("v_add_u32 v7, 0x10000, v5")
    a.I("v_add_u32 v50, 0x20000, v4")
    a.I("v_add_u32 v51, 0x20000, v5")
    a.I("v_lshlrev_b32 v48, 4, v0")
    a.I("s_lshl_b32 s47, s16, 11")
    a.I("s_lshl_b32 s48, s42, 7")
    a.I("s_lshl_b32 s49, s44, 13")
    a.I("s_lshl_b32 s50, s42, 18")
    a.I("s_add_u32 s50, s50, s49")
    a.I("s_waitcnt lgkmcnt(0)")
    a.I("s_cmp_eq_u32 s41, 2")
    a.I("s_cselect_b32 s20, s4, s6")
    a.I("s_cselect_b32 s21, s5, s7")
    a.I("s_cselect_b32 s24, s8, s10")
    a.I("s_cselect_b32 s25, s9, s11")
    a.I(f"s_cselect_b32 s51, {hex(WS_Q)}, 0")
    a.I(f"s_cselect_b32 s52, {f32(QSCALE)}, 1.0")
    a.I(f"s_mov_b32 s22, {hex(2 * MB)}")
    a.I("s_mov_b32 s23, 0x20000")
    a.I(f"s_mov_b32 s26, {hex(4 * MB)}")
    a.I("s_mov_b32 s27, 0x20000")
    srd(a, 28, 14, 15, 16 * MB, add="s51")
    srd(a, 32, 12, 13, 4 * MB)
    srd(a, 36, 14, 15, 16 * MB, add=WS_V)
    srd(a, 56, 6, 7, 2 * MB)
    a.I("s_cmp_eq_u32 s18, 31")
    a.I(f"s_cbranch_scc1 {N}_D")
    a.I("s_cmp_eq_u32 s41, 1")
    a.I(f"s_cbranch_scc1 {N}_B")
    a.I("s_cmp_eq_u32 s18, 10")
    a.I(f"s_cbranch_scc1 {N}_C")

    AF, ACC, RING, PK = 64, 192, 8, 32
    LOOK = 6

    def body(passes, tag):
        vm, lg = VM(a), LG(a)
        st = Stamper(a, "qkv")
        st()
        NP = len(passes)
        NC = 4 * NP
        NM = 64 * NP
        restage = tag == "D"
        blk = {}
        free = [6, 7, 8, 9]
        nxt = [0]

        def dmaW():
            c = nxt[0]
            if c >= NC or not free:
                return False
            b = free.pop(0)
            blk[c] = b
            nxt[0] += 1
            pp, kc = divmod(c, 4)
            form, su, di = passes[pp]
            a.I(f"s_add_u32 m0, s47, {hex(b * 16384)}")
            if su is not None:
                a.I(f"s_mov_b32 s45, {hex((kc << 20) + su * 128)}")
            else:
                a.I(f"s_add_u32 s45, s48, {hex((kc << 20) + di * 128)}")
            sr = "s[32:35]" if form == "V" else "s[24:27]"
            vm.issue(f"buffer_load_dwordx4 v2, {sr}, s45 offen lds", ("W", c))
            vm.issue(f"buffer_load_dwordx4 v3, {sr}, s45 offen offset:1024 lds", ("W", c))
            return True

        def dmaA(j):
            sr = "s[56:59]" if (restage and j < 8) else "s[20:23]"
            a.I(f"s_add_u32 m0, s46, {hex((j % 3) * 4096)}")
            a.I(f"s_mov_b32 s45, {(j % 8) * 128}")
            for i in range(4):
                vm.issue(f"buffer_load_dwordx4 {v(52 + i)}, {sr}, s45 offen offset:{i * 1024} lds", ("A", j))

        def readA(j):
            vm.wait(("A", j))
            for t in range(4):
                lg.issue(f"ds_read_b128 {v(AF + 16 * (j % 8) + 4 * t, 4)}, {v(56 + t)} offset:{(j % 3) * 4096}", ("A", j))

        dmaW(); dmaA(0); dmaA(1); dmaW(); dmaA(2); dmaW(); dmaW()

        def reads(i):
            c, r = divmod(i, 16)
            t, cb = divmod(r, 2)
            b = blk[c]
            base = [4, 6, 50][b // 4] + cb
            off = (b % 4) * 16384 + t * 2048
            d = RING + 4 * (i % LOOK)
            lg.issue(f"ds_read_b64_tr_b16 {v(d, 2)}, {v(base)} offset:{off}", ("W", i))
            lg.issue(f"ds_read_b64_tr_b16 {v(d + 2, 2)}, {v(base)} offset:{off + 512}", ("W", i))

        def sync(c):
            vm.wait(("W", c))
            a.I("s_barrier")
            if c >= 2:
                free.append(blk[c - 2])
            if c == (10 if restage else 5):
                free.extend([0, 1, 2, 3, 4, 5])
            n = 0
            while n < 2 and dmaW():
                n += 1

        def epi(pp):
            out = []
            form, su, di = passes[pp]
            acc = ACC + 32 * (pp & 1)
            so = 54 + (pp & 1)
            if su is not None:
                out.append(lambda: a.I(f"s_add_u32 s{so}, s49, {hex((su >> 1) * 512 * 1024 + (su & 1) * 4096)}"))
            else:
                out.append(lambda: a.I(f"s_add_u32 s{so}, s50, {hex((di >> 1) * 512 * 1024 + (di & 1) * 4096)}"))
            sr = "s[36:39]" if form == "V" else "s[28:31]"
            for cb in range(2):
                for h in range(2):
                    q = 2 * cb + h
                    for i in range(4):
                        src = acc + 16 * cb + 8 * h + 2 * i
                        if form == "K" and tag in "AD":
                            out.append(lambda src=src: a.I(f"v_mul_f32 {v(src)}, s52, {v(src)}"))
                            out.append(lambda src=src: a.I(f"v_mul_f32 {v(src + 1)}, s52, {v(src + 1)}"))
                        out.append(lambda src=src, q=q, i=i: a.I(
                            f"v_cvt_pk_bf16_f32 {v(PK + 4 * q + i)}, {v(src)}, {v(src + 1)}"))
                    out.append(lambda q=q: vm.issue(
                        f"buffer_store_dwordx4 {v(PK + 4 * q, 4)}, v48, {sr}, s{so} offen offset:{q * 1024}{SP}", ("S", pp)))
            return out

        st()
        readA(0)
        sync(0)
        st()
        for i in range(LOOK - 2):
            reads(i)
        lg.wait(("A", 0))
        for i in range(LOOK - 2, LOOK):
            reads(i)
        pend = []
        for i in range(NM):
            c, r = divmod(i, 16)
            t, cb = divmod(r, 2)
            pp, kc = divmod(c, 4)
            k = 8 * kc + t
            if i % 2 == 0:
                lg.wait([("W", i), ("W", i + 1), ("A", i // 8)])
            if pp == 0 and i % 8 == 0 and i // 8 + 3 < (11 if restage else 8):
                dmaA(i // 8 + 3)
            if restage and 72 < i <= 128 + 8 and i % 8 == 4:
                jj = 8 + (i - 76) // 8
                lg.wait(("A", jj))
                if jj + 3 < 16:
                    dmaA(jj + 3)
            acc = v(ACC + 32 * (pp & 1) + 16 * cb, 16)
            wf = v(RING + 4 * (i % LOOK), 4)
            af = v(AF + 4 * k, 4)
            cin = "0" if k == 0 else acc
            if passes[pp][0] == "V":
                a.I(f"{MF} {acc}, {af}, {wf}, {cin}")
            else:
                a.I(f"{MF} {acc}, {wf}, {af}, {cin}")
            j = i + LOOK
            if j < NM:
                if j % 16 == 0:
                    sync(j // 16)
                if j < 64 and j % 8 == 0:
                    readA(j // 8)
                reads(j)
            if restage and 64 <= i < 128 and i % 8 == 7:
                readA(8 + (i - 64) // 8)
            if i % 64 == 63:
                st()
            if i % 64 == 6 and pp >= 1:
                pend = epi(pp - 1)
            if pend:
                pend.pop(0)()
        a.I("s_nop 11")
        for f in epi(NP - 1):
            f()
        st.dump(16, 14)
        a.I("s_endpgm")

    body([("K", None, i) for i in range(6)], "A")
    a.label(N + "_B")
    body([("V", None, i) for i in range(6)], "B")
    a.label(N + "_C")
    body([("K", None, i) for i in range(4)] + [("V", 0, 0), ("V", 1, 0)], "C")
    a.label(N + "_D")
    body([("V", 62, 0), ("V", 63, 0)] + [("K", None, i) for i in range(4)], "D")
    kend(a, N)
    return a, N, (256, 512, 163840)


def gen_attn(withb2=False):
    a = Asm()
    N = "attn_kernel"
    O, Q, S, P, NEGM, RING = 64, 128, [160, 176], [192, 200], 208, 224
    L16, VKA, VVA, VL, VLS, E, VDA, VDB, QREL, T0, T1, T2, NINF = 1, 2, 3, 4, 5, 6, 10, 11, 12, 13, 14, 15, 48
    PK = 16
    EE = 50
    sW, sH, sP, sN, sC, sPH, sTHR, sBAR, sKO, sKM, sVM, sQS = 16, 17, 18, 19, 20, 21, 40, 41, 42, 43, 44, 45
    kstart(a, N, 256)
    a.I("s_load_dwordx2 s[4:5], s[0:1], 88")
    a.I("s_load_dwordx2 s[14:15], s[0:1], 40")
    a.I("v_lshrrev_b32 v1, 6, v0")
    a.I("v_and_b32 v0, 63, v0")
    a.I("s_and_b32 s6, s2, 7")
    a.I(f"v_readfirstlane_b32 {s(sW)}, v1")
    a.I("s_lshr_b32 s7, s2, 3")
    a.I("s_and_b32 s8, s7, 3")
    a.I("s_lshl_b32 s6, s6, 2")
    a.I(f"s_add_u32 {s(sH)}, s6, s8")
    a.I(f"s_lshr_b32 {s(sP)}, s7, 2")
    a.I(f"s_lshl_b32 s6, {s(sP)}, 2")
    a.I(f"s_sub_u32 s7, 60, s6")
    a.I(f"s_add_u32 s7, s7, {s(sW)}")
    a.I(f"s_add_u32 s8, s6, 7")
    a.I(f"s_sub_u32 s8, s8, {s(sW)}")
    a.I(f"s_cmp_ge_u32 {s(sW)}, 4")
    a.I(f"s_cselect_b32 {s(sQS)}, s8, s7")
    a.I(f"s_add_u32 {s(sN)}, {s(sQS)}, 1")
    a.I("s_sub_u32 s9, 64, s6")
    a.I(f"s_lshr_b32 {s(sBAR)}, s9, 1")
    a.I("s_lshl_b32 s9, s9, 13")
    a.I(f"s_lshl_b32 s10, {s(sH)}, 19")
    a.I(f"v_lshlrev_b32 {v(L16)}, 4, v0")
    a.I(f"s_and_b32 s11, {s(sW)}, 3")
    a.I("s_lshl_b32 s11, s11, 11")
    a.I(f"v_add_u32 {v(VDA)}, s11, {v(L16)}")
    a.I(f"v_add_u32 {v(VDB)}, 0x2000, {v(VDA)}")
    a.I(f"v_and_b32 {v(T0)}, 31, v0")
    a.I(f"v_lshrrev_b32 {v(T1)}, 5, v0")
    a.I(f"v_lshlrev_b32 {v(T1)}, 2, {v(T1)}")
    a.I(f"v_sub_u32 {v(QREL)}, {v(T0)}, {v(T1)}")
    a.I(f"v_mov_b32 {v(NINF)}, 0xff800000")
    a.I(f"s_mov_b32 {s(sTHR)}, {f32(2.0 ** 14)}")
    FLG = 7 * 16384 + 8192
    if withb2:
        a.I(f"v_mov_b32 v124, {FLG}")
        for i in range(4):
            a.I(f"v_mov_b32 {v(56 + i)}, 0")
        a.I("ds_write_b128 v124, v[56:59]")
        a.I("s_and_b32 s60, s2, 7")
        a.I("s_lshl_b32 s60, s60, 5")
        a.I("s_lshr_b32 s61, s2, 3")
        a.I("s_add_u32 s60, s60, s61")
        a.I("s_cmp_eq_u32 s2, 0")
        a.I("s_cselect_b32 s61, 4, 2")
        a.I(f"s_cmp_lt_u32 {s(sW)}, s61")
        a.I("s_cselect_b32 s23, 1, 0")
        a.I(f"s_cmp_ge_u32 {s(sW)}, 2")
        a.I("s_cselect_b32 s60, 0x100, s60")
        a.I(f"s_mov_b32 s61, {131072}")
        a.I(f"s_cselect_b32 s61, {131072 + 16384}, s61")
        a.I(f"s_and_b32 s67, {s(sW)}, 1")
    a.I("s_waitcnt lgkmcnt(0)")
    srd(a, 24, 4, 5, "s9", add="s10")
    a.I(f"s_add_u32 s12, s10, {hex(WS_V - 3 * 8192)}")
    a.I(f"s_add_u32 s13, s9, {3 * 8192}")
    srd(a, 28, 4, 5, "s13", add="s12")
    srd(a, 32, 4, 5, 16 * MB, add=WS_Q)
    srd(a, 36, 4, 5, 16 * MB, add=WS_CTX)
    st = Stamper(a, "attn")
    st()
    a.I(f"s_lshl_b32 s12, {s(sQS)}, 13")
    a.I("s_add_u32 s12, s12, s10")
    a.I("s_add_u32 s13, s12, 4096")

    def q_loads(vm=None):
        for t in range(8):
            x = f"buffer_load_dwordx4 {v(Q + 4 * t, 4)}, {v(L16)}, s[32:35], s{12 + t // 4} offen offset:{(t % 4) * 1024}"
            vm.issue(x, "Q") if vm else a.I(x)

    if withb2:
        a.I("s_cmp_eq_u32 s23, 0")
        a.I(f"s_cbranch_scc1 {N}_nob2l")
        b2_loads(a, VM(a), 60, 67, L16, 16, 32, 62, 48)
        q_loads()
        a.label(f"{N}_nob2l")
        a.I("s_barrier")
    a.I(f"s_lshl_b32 s46, {s(sQS)}, 18")
    a.I(f"s_lshl_b32 s6, {s(sH)}, 13")
    a.I("s_add_u32 s46, s46, s6")
    a.I("s_add_u32 s47, s46, 4096")
    a.I(f"s_mov_b32 {s(sKM)}, s11")
    a.I(f"s_mov_b32 {s(sKO)}, 0")

    def dma_list(withV=True):
        l = []
        if withV:
            l += [f"s_mov_b32 m0, {s(sVM)}", None,
                  f"buffer_load_dwordx4 {v(VDA)}, s[28:31], {s(sKO)} offen lds",
                  f"buffer_load_dwordx4 {v(VDA)}, s[28:31], {s(sKO)} offen offset:1024 lds",
                  f"s_add_u32 m0, {s(sVM)}, 0x4000", None,
                  f"buffer_load_dwordx4 {v(VDB)}, s[28:31], {s(sKO)} offen lds",
                  f"buffer_load_dwordx4 {v(VDB)}, s[28:31], {s(sKO)} offen offset:1024 lds"]
        l += [f"s_mov_b32 m0, {s(sKM)}", f"s_add_u32 {s(sVM)}, {s(sKM)}, 0x2000",
              f"buffer_load_dwordx4 {v(VDA)}, s[24:27], {s(sKO)} offen lds",
              f"buffer_load_dwordx4 {v(VDA)}, s[24:27], {s(sKO)} offen offset:1024 lds",
              f"s_add_u32 m0, {s(sKM)}, 0x4000", f"s_add_u32 {s(sKM)}, {s(sKM)}, 0x8000",
              f"buffer_load_dwordx4 {v(VDB)}, s[24:27], {s(sKO)} offen lds",
              f"buffer_load_dwordx4 {v(VDB)}, s[24:27], {s(sKO)} offen offset:1024 lds",
              f"s_and_b32 {s(sKM)}, {s(sKM)}, 0x1ffff",
              f"s_add_u32 {s(sKO)}, {s(sKO)}, 0x4000"]
        return l

    def emit_dma(withV=True):
        for x in dma_list(withV):
            if "dma" in os.environ.get("ADROP", "") and x and x.endswith(" lds"):
                continue
            a.I(x or "s_nop 0")

    def mask_negm():
        for j in range(16):
            a.I(f"v_cmp_le_i32 vcc, {(j & 3) + 8 * (j >> 2)}, {v(QREL)}")
            a.I("s_nop 1")
            a.I(f"v_cndmask_b32 {v(NEGM + j)}, {v(NINF)}, {v(NEGM + j)}, vcc")
        a.I("s_nop 1")

    def rowmax(Sx, dst):
        a.I(f"v_max3_f32 {v(dst)}, {v(Sx)}, {v(Sx + 1)}, {v(Sx + 2)}")
        for j in range(3, 15, 2):
            a.I(f"v_max3_f32 {v(dst)}, {v(dst)}, {v(Sx + j)}, {v(Sx + j + 1)}")
        a.I(f"v_max_f32 {v(dst)}, {v(dst)}, {v(Sx + 15)}")
        a.I(f"v_mov_b32 {v(T2)}, {v(dst)}")
        a.I("s_nop 1")
        a.I(f"v_permlane32_swap_b32 {v(dst)}, {v(T2)}")
        a.I(f"v_max_f32 {v(dst)}, {v(dst)}, {v(T2)}")

    def role(ld):
        R = "S" if ld else "L"
        if withb2 and not ld:
            a.I("s_cmp_eq_u32 s23, 0")
            a.I(f"s_cbranch_scc1 {N}_b2no")
            a.I(f"s_and_b32 s67, {s(sW)}, 2")
            a.I("s_lshl_b32 s67, s67, 2")
            a.I(f"s_add_u32 s67, s67, {FLG}")
            a.I("v_mov_b32 v124, s67")
            a.I(f"s_bitcmp1_b32 {s(sW)}, 0")
            a.I(f"s_cbranch_scc1 {N}_b2w1")
            rmap = [56, 57, 58, 59, 60, 61, 62, 120, 63, 16, 24, 32, 40, 64, 72, 80, 88, 104, 160, 176, 192, 208, 224]
            for own in range(2):
                vmb = VM(a)
                if own:
                    a.label(f"{N}_b2w1")
                ex = [0]

                def pair_sync():
                    ex[0] += 1
                    lab = a.uid(f"{N}_spin")
                    a.I(f"v_mov_b32 v125, {ex[0]}")
                    a.I(f"ds_write_b32 v124, v125 offset:{4 * own}")
                    a.label(lab)
                    a.I(f"ds_read_b32 v126, v124 offset:{4 * (1 - own)}")
                    a.I("s_waitcnt lgkmcnt(0)")
                    a.I("v_readfirstlane_b32 s67, v126")
                    a.I("s_nop 0")
                    a.I(f"s_cmp_lt_u32 s67, {ex[0]}")
                    a.I(f"s_cbranch_scc1 {lab}")
                b2_body(a, own, 60, 61, pair_sync, vmb, S0=62, SR=48, slice_len=10 ** 9, rmap=rmap, preloaded=True,
                        st=st if os.environ.get("B2ST") else (lambda: None))
                if os.environ.get("B2ST"):
                    st()
                    st.n -= 5 * (1 - own)
                assert vmb.q[-5:] == ["Q", "Z", "Z", "Z", "Z"] or "Q" not in vmb.q
                a.I(f"s_branch {N}_b2done")
            a.label(f"{N}_b2no")
        def inits(tag):
            for j in range(16):
                a.I(f"v_mov_b32 {v(NEGM + j)}, 0")
            a.I(f"s_cmp_lg_u32 {s(sN)}, 1")
            a.I(f"s_cbranch_scc1 {N}_{R}_nm1{tag}")
            mask_negm()
            a.label(f"{N}_{R}_nm1{tag}")
            for j in range(64):
                a.I(f"v_mov_b32 {v(O + j)}, 0")
            for j in range(8):
                a.I(f"v_mov_b32 {v(P[1] + j)}, 0")

        inits("a")
        q_loads()
        if ld:
            emit_dma(withV=False)
            emit_dma()
        if withb2 and not ld:
            a.I("s_waitcnt vmcnt(0)")
            a.I(f"s_branch {N}_b2join")
            a.label(f"{N}_b2done")
            inits("b")
            a.I("s_waitcnt vmcnt(4)")
            a.label(f"{N}_b2join")
        a.I(f"v_mov_b32 {v(VL)}, 0")
        a.I(f"v_mov_b32 {v(VLS)}, 0")
        a.I(f"v_mov_b32 {v(VKA)}, {v(L16)}")
        a.I(f"v_mov_b32 {v(VVA)}, {v(L16)}")
        if os.environ.get("PRIO") and not ld:
            a.I(f"s_setprio {os.environ['PRIO']}")
        if ld or not withb2:
            a.I(f"s_waitcnt vmcnt({6 if ld else 0})")
        a.I("s_barrier")
        st()
        for t in range(8):
            a.I(f"ds_read_b128 {v(RING + 4 * t, 4)}, {v(L16)} offset:{t * 1024}")
        dl = [x or "s_nop 0" for x in dma_list()] if ld else []
        for t in range(8):
            if t % 4 == 0:
                a.I("s_waitcnt lgkmcnt(4)")
            a.I(f"{MF} {v(S[0], 16)}, {v(RING + 4 * t, 4)}, {v(Q + 4 * t, 4)}, {v(NEGM if t == 0 else S[0], 16)}")
            a.I(f"ds_read_b128 {v(RING + 4 * t, 4)}, {v(L16)} offset:{16384 + t * 1024}")
            for x in dl[:3]:
                a.I(x)
            dl = dl[3:]
        assert not dl
        if ld:
            emit_dma()
        else:
            a.I("s_nop 11")
        rowmax(S[0], T0)
        for j in range(16):
            a.I(f"v_sub_f32 {v(S[0] + j)}, {v(S[0] + j)}, {v(T0)}")
        for j in range(16):
            a.I(f"v_sub_f32 {v(NEGM + j)}, 0, {v(T0)}")
        a.I(f"s_mov_b32 {s(sPH)}, 0")
        a.I(f"s_sub_u32 {s(sC)}, {s(sN)}, 3")
        a.I(f"s_cbranch_scc0 {N}_{R}_it0")
        a.I(f"s_mov_b32 {s(sPH)}, 1")
        a.I(f"s_sub_u32 {s(sC)}, {s(sN)}, 1")
        a.I(f"s_cmp_lg_u32 {s(sN)}, 2")
        a.I(f"s_cbranch_scc1 {N}_{R}_it0")
        mask_negm()

        def iteration(par):
            gaps = [[] for _ in range(16)]
            pre = [[] for _ in range(16)]
            mf = []
            Sc, Sn, Pc, Pp = S[par], S[1 - par], P[par], P[1 - par]
            e = lambda j: v(EE + (j % 6))
            for pos in range(16):
                r = v(RING + 4 * (pos & 7), 4)
                if pos < 8:
                    mf.append(f"{MF} {v(Sn, 16)}, {r}, {v(Q + 4 * pos, 4)}, {v(NEGM if pos == 0 else Sn, 16)}")
                    ks, dt = divmod(pos, 4)
                    gaps[pos].append(f"ds_read_b128 {r}, {v(VVA)} offset:{8192 + par * 16384 + (2 * dt + ks) * 1024}")
                else:
                    ks, dt = divmod(pos - 8, 4)
                    mf.append(f"{MF} {v(O + 16 * dt, 16)}, {r}, {v(Pp + 4 * ks, 4)}, {v(O + 16 * dt, 16)}")
                    gaps[pos].append(f"ds_read_b128 {r}, {v(VKA)} offset:{par * 16384 + (pos - 8) * 1024}")
                if pos % 4 == 0:
                    pre[pos].append("s_waitcnt lgkmcnt(4)")
            early = int(os.environ.get("EARLY", "1"))
            if early:
                eg = [0, 0, 1, 2, 2, 3, 4, 5, 6, 7, 8, 9, 10, 11, 12, 13]
            else:
                eg = [0] + list(range(15))
            gaps[0].append(f"v_add_f32 {v(VL)}, {v(VL)}, {v(VLS)}")
            for j in range(16):
                gaps[eg[j]].append(f"v_exp_f32 {e(j)}, {v(Sc + j)}")
            for j in range(1, 16):
                g = eg[j] + 1
                if j == 1:
                    gaps[g].append(f"v_add_f32 {v(VLS)}, {e(0)}, {e(1)}")
                else:
                    gaps[g].append(f"v_add_f32 {v(VLS)}, {v(VLS)}, {e(j)}")
                if j % 2 == 1:
                    gaps[g + (1 if (early and j == 15) else 0)].append(f"v_cvt_pk_bf16_f32 {v(Pc + j // 2)}, {e(j - 1)}, {e(j)}")
            if par == 0:
                gaps[2].append(f"v_add_u32 {v(VKA)}, 0x8000, {v(VKA)}")
                gaps[6].append(f"v_and_b32 {v(VKA)}, 0x1ffff, {v(VKA)}")
                bar = ["s_barrier", f"s_sub_u32 {s(sBAR)}, {s(sBAR)}, 1"]
                if ld:
                    bar = ["s_waitcnt vmcnt(14)"] + bar
                gaps[4] = bar + gaps[4]
                if ld:
                    d = [x for x in dma_list() if x]
                    m0a, l1, l2, m0b, l3, l4, m0c, svm, l5, l6, m0d, skm, l7, l8, sand, sko = d
                    gaps[5] = [m0a] + gaps[5] + [l1]
                    gaps[6] += [l2, m0b]
                    gaps[7] += [l3]
                    gaps[8] += [l4, m0c]
                    gaps[9] += [svm, l5]
                    gaps[10] += [l6, m0d]
                    gaps[11] += [l7]
                    gaps[12] += [l8, skm]
                    gaps[13] += [sand, sko]
            else:
                gaps[10].append(f"v_mov_b32 {v(VVA)}, {v(VKA)}")
            gaps[14].append(f"s_sub_u32 {s(sC)}, {s(sC)}, 1")
            gaps[14 if early else 15].append(f"v_cmp_nge_f32 vcc, {s(sTHR)}, {v(VLS)}")
            drop = os.environ.get("ADROP", "").split(",")
            for pos in range(16):
                if "bar" in drop:
                    gaps[pos] = [x for x in gaps[pos] if x != "s_barrier"]
                if "dma" in drop:
                    gaps[pos] = [x for x in gaps[pos] if not x.endswith(" lds")]
                if "rd" in drop:
                    gaps[pos] = [x for x in gaps[pos] if not x.startswith("ds_read")]
                if "valu" in drop:
                    gaps[pos] = [x for x in gaps[pos] if not (x.startswith("v_exp") or x.startswith("v_cvt") or x.startswith("v_add_f32"))]
                if "e64" in drop:
                    gaps[pos] = [x.replace("v_exp_f32 ", "v_exp_f32_e64 ").replace("v_add_f32 ", "v_add_f32_e64 ") for x in gaps[pos]]
                a.many(pre[pos])
                a.I(mf[pos])
                a.many(gaps[pos])
            if "br" not in drop:
                a.I(f"s_cbranch_vccnz {N}_{R}_slow{par}")
            a.label(f"{N}_{R}_back{par}")
            a.I(f"s_cbranch_scc1 {N}_{R}_spec{par}")

        if os.environ.get("PRIO") and not ld:
            pass
        if os.environ.get("AALIGN"):
            a.raw(".p2align 6")
            for _ in range(int(os.environ["AALIGN"]) - 1):
                a.I("s_nop 0")
        a.label(f"{N}_{R}_it0")
        iteration(0)
        a.label(f"{N}_{R}_it1")
        iteration(1)
        a.I(f"s_branch {N}_{R}_it0")

        def svc():
            lab = a.uid(f"{N}_{R}_svc")
            a.I(f"s_cmp_eq_u32 {s(sBAR)}, 0")
            a.I(f"s_cbranch_scc1 {lab}")
            if ld:
                a.I("s_waitcnt vmcnt(14)")
            if "bar" not in os.environ.get("ADROP", ""):
                a.I("s_barrier")
            a.I(f"s_sub_u32 {s(sBAR)}, {s(sBAR)}, 1")
            if ld:
                emit_dma()
            a.label(lab)

        for par in range(2):
            Sc, Sn, Pc = S[par], S[1 - par], P[par]
            a.label(f"{N}_{R}_slow{par}")
            a.I("s_nop 15")
            rowmax(Sc, T0)
            a.I(f"v_max_f32 {v(T0)}, 0, {v(T0)}")
            a.I(f"v_exp_f32_e64 {v(T1)}, -{v(T0)}")
            for j in range(16):
                a.I(f"v_sub_f32 {v(NEGM + j)}, {v(NEGM + j)}, {v(T0)}")
                a.I(f"v_sub_f32 {v(Sc + j)}, {v(Sc + j)}, {v(T0)}")
                a.I(f"v_sub_f32 {v(Sn + j)}, {v(Sn + j)}, {v(T0)}")
            for j in range(64):
                a.I(f"v_mul_f32 {v(O + j)}, {v(O + j)}, {v(T1)}")
            a.I(f"v_mul_f32 {v(VL)}, {v(VL)}, {v(T1)}")
            a.I(f"v_mov_b32 {v(VLS)}, 0")
            for i in range(8):
                a.I(f"v_exp_f32 {v(E)}, {v(Sc + 2 * i)}")
                a.I(f"v_exp_f32 {v(E + 1)}, {v(Sc + 2 * i + 1)}")
                a.I("s_nop 0")
                a.I(f"v_add_f32 {v(VLS)}, {v(VLS)}, {v(E)}")
                a.I(f"v_add_f32 {v(VLS)}, {v(VLS)}, {v(E + 1)}")
                a.I(f"v_cvt_pk_bf16_f32 {v(Pc + i)}, {v(E)}, {v(E + 1)}")
            a.I("s_nop 1")
            a.I(f"s_branch {N}_{R}_back{par}")
            a.label(f"{N}_{R}_spec{par}")
            a.I(f"s_cmp_lg_u32 {s(sPH)}, 0")
            a.I(f"s_cbranch_scc1 {N}_{R}_exit{par}")
            a.I(f"s_mov_b32 {s(sPH)}, 1")
            a.I(f"s_mov_b32 {s(sC)}, 1")
            mask_negm()
            a.I(f"s_branch {N}_{R}_it{1 - par}")
            a.label(f"{N}_{R}_exit{par}")
            a.I("s_waitcnt lgkmcnt(0)")
            for pos in range(8):
                ks, dt = divmod(pos, 4)
                a.I(f"ds_read_b128 {v(RING + 4 * pos, 4)}, {v(VVA)} offset:{8192 + (1 - par) * 16384 + (2 * dt + ks) * 1024}")
            a.I(f"v_add_f32 {v(VL)}, {v(VL)}, {v(VLS)}")
            for pos in range(8):
                ks, dt = divmod(pos, 4)
                a.I(f"s_waitcnt lgkmcnt({7 - pos})")
                a.I(f"{MF} {v(O + 16 * dt, 16)}, {v(RING + 4 * pos, 4)}, {v(Pc + 4 * ks, 4)}, {v(O + 16 * dt, 16)}")
            if par == 0:
                a.I(f"s_branch {N}_{R}_epi")
        a.label(f"{N}_{R}_epi")
        st()
        svc()
        if ld and withb2:
            a.I(f"s_and_b32 s53, {s(sW)}, 3")
            code_touch(a, "l3_kernel", 53, 48, EE + 2, nw_log=2)
            srd(a, 48, 14, 15, 4 * MB)
            a.I("s_lshl_b32 s52, s2, 14")
            a.I("s_lshr_b32 s53, s11, 3")
            a.I("s_add_u32 s52, s52, s53")
            a.I("s_lshl_b32 s53, s11, 1")
            a.I(f"s_add_u32 s53, s53, {131072}")
            a.I("s_mov_b32 m0, s53")
            a.I(f"v_lshrrev_b32 {v(EE)}, 4, v0")
            a.I(f"v_lshlrev_b32 {v(EE)}, 10, {v(EE)}")
            a.I(f"v_and_b32 {v(EE + 1)}, 15, v0")
            a.I(f"v_lshl_add_u32 {v(EE)}, {v(EE + 1)}, 4, {v(EE)}")
            for q in range(4):
                a.I(f"buffer_load_dwordx4 {v(EE)}, s[48:51], s52 offen offset:{q * 1024} lds")
                if q < 3:
                    a.I(f"s_add_u32 s52, s52, {4096 - 1024}")
        a.I(f"v_mov_b32 {v(T2)}, {v(VL)}")
        a.I("s_nop 1")
        a.I(f"v_permlane32_swap_b32 {v(VL)}, {v(T2)}")
        a.I(f"v_add_f32 {v(VL)}, {v(VL)}, {v(T2)}")
        a.I(f"v_rcp_f32 {v(T0)}, {v(VL)}")
        a.I("s_nop 7")
        for dt in range(4):
            for h in range(2):
                q = 2 * dt + h
                for i in range(4):
                    src = O + 16 * dt + 8 * h + 2 * i
                    a.I(f"v_mul_f32 {v(src)}, {v(src)}, {v(T0)}")
                    a.I(f"v_mul_f32 {v(src + 1)}, {v(src + 1)}, {v(T0)}")
                    a.I(f"v_cvt_pk_bf16_f32 {v(PK + 4 * q + i)}, {v(src)}, {v(src + 1)}")
                a.I(f"buffer_store_dwordx4 {v(PK + 4 * q, 4)}, {v(L16)}, s[36:39], s{46 + q // 4} offen offset:{(q % 4) * 1024}{SP}")
            if dt == 1:
                svc()
        if ld and withb2:
            a.I(f"v_lshrrev_b32 {v(EE)}, 5, v0")
            a.I(f"v_bfe_u32 {v(EE + 1)}, v0, 2, 2")
            a.I(f"v_lshl_add_u32 {v(EE)}, {v(EE)}, 2, {v(EE + 1)}")
            a.I(f"v_lshlrev_b32 {v(EE)}, 8, {v(EE)}")
            a.I(f"v_bfe_u32 {v(EE + 1)}, v0, 4, 1")
            a.I(f"v_lshl_add_u32 {v(EE)}, {v(EE + 1)}, 5, {v(EE)}")
            a.I(f"v_and_b32 {v(EE + 1)}, 3, v0")
            a.I(f"v_lshl_add_u32 {v(EE)}, {v(EE + 1)}, 3, {v(EE)}")
            a.I(f"v_add_u32 {v(EE)}, s53, {v(EE)}")
            srd(a, 48, 4, 5, 4 * MB, add=WS_WO)
            a.I("s_lshl_b32 s52, s11, 9")
            a.I("s_lshl_b32 s54, s2, 11")
            a.I("s_add_u32 s52, s52, s54")
            a.I(f"s_add_u32 s54, s52, {hex(512 * 1024)}")
            a.I("s_waitcnt vmcnt(8)")
            for cb in range(4):
                for h in range(2):
                    a.I(f"ds_read_b64_tr_b16 {v(RING + 4 * cb + 2 * h, 2)}, {v(EE)} offset:{cb * 64 + h * 2048}")
            a.I("s_waitcnt lgkmcnt(0)")
            for cb in range(4):
                a.I(f"buffer_store_dwordx4 {v(RING + 4 * cb, 4)}, {v(L16)}, s[48:51], s{52 + 2 * (cb // 2)} offen offset:{(cb % 2) * 1024}{SP}")
        if ld:
            a.label(f"{N}_{R}_tail")
            a.I(f"s_cmp_eq_u32 {s(sBAR)}, 0")
            a.I(f"s_cbranch_scc1 {N}_{R}_done")
            a.I("s_waitcnt vmcnt(14)")
            if "bar" not in os.environ.get("ADROP", ""):
                a.I("s_barrier")
            a.I(f"s_sub_u32 {s(sBAR)}, {s(sBAR)}, 1")
            emit_dma()
            a.I(f"s_branch {N}_{R}_tail")
            a.label(f"{N}_{R}_done")
        n0 = st.n
        st.dump(sW, 4, tmpv=T0)
        st.n = n0 - 2
        a.I("s_endpgm")

    a.I(f"s_cmp_ge_u32 {s(sW)}, 4")
    a.I(f"s_cbranch_scc1 {N}_short")
    role(False)
    a.label(f"{N}_short")
    role(True)
    kend(a, N)
    return a, N, (256, 512, 163840 if withb2 else 131072)


def oproj_body(a, N, st, bar_at=None):
    ACC, CR, AFR = 64, 128, 192
    DEPTH = 8
    L16, L16B, VD0, VD1, TB = 1, 2, 3, 4, 5
    a.I("s_and_b32 s10, s2, 7")
    a.I("s_lshr_b32 s11, s2, 3")
    a.I("s_and_b32 s12, s11, 3")
    a.I("s_lshl_b32 s10, s10, 2")
    a.I("s_add_u32 s17, s10, s12")
    a.I("s_lshr_b32 s18, s11, 2")
    if os.environ.get("OPX") == "same":
        a.I("s_mov_b32 s17, 0")
        a.I("s_mov_b32 s18, 0")
    if os.environ.get("OPX") == "map2":
        a.I("s_and_b32 s10, s2, 3")
        a.I("s_lshl_b32 s10, s10, 3")
        a.I("s_and_b32 s12, s11, 7")
        a.I("s_add_u32 s17, s10, s12")
        a.I("s_bfe_u32 s10, s2, 0x10002")
        a.I("s_lshl_b32 s10, s10, 2")
        a.I("s_lshr_b32 s12, s11, 3")
        a.I("s_add_u32 s18, s10, s12")
    a.I(f"v_lshlrev_b32 {v(L16)}, 4, v0")
    a.I(f"v_add_u32 {v(L16B)}, 0x40000, {v(L16)}")
    a.I("v_lshrrev_b32 v8, 3, v0")
    a.I("v_lshlrev_b32 v8, 10, v8")
    a.I("v_bfe_u32 v9, v0, 4, 1")
    a.I("v_lshlrev_b32 v10, 2, v9")
    a.I("v_and_b32 v11, 7, v0")
    a.I("v_xor_b32 v10, v10, v11")
    a.I(f"v_lshl_add_u32 {v(VD0)}, v10, 4, v8")
    a.I("s_lshl_b32 s10, s18, 7")
    a.I(f"v_add_u32 {v(VD0)}, s10, {v(VD0)}")
    a.I(f"v_add_u32 {v(VD1)}, {8192 - 1024}, {v(VD0)}")
    a.I("v_lshrrev_b32 v8, 5, v0")
    a.I("v_bfe_u32 v10, v0, 2, 2")
    a.I("v_lshl_add_u32 v8, v8, 2, v10")
    a.I(f"v_lshlrev_b32 {v(TB)}, 7, v8")
    a.I(f"v_lshl_add_u32 {v(TB)}, v9, 5, {v(TB)}")
    a.I("v_and_b32 v10, 3, v0")
    a.I(f"v_lshl_add_u32 {v(TB)}, v10, 3, {v(TB)}")
    a.I("v_bfe_u32 v10, v0, 3, 1")
    a.I(f"v_lshl_add_u32 {v(TB)}, v10, 6, {v(TB)}")
    a.I("s_lshl_b32 s19, s16, 14")
    a.I(f"v_add_u32 {v(TB)}, s19, {v(TB)}")
    a.I(f"v_xor_b32 {v(TB + 1)}, 64, {v(TB)}")
    a.I("s_lshl_b32 s40, s17, 19")
    a.I("s_lshl_b32 s10, s16, 16")
    a.I("s_add_u32 s40, s40, s10")
    a.I("s_lshl_b32 s41, s16, 20")
    ROT = int(os.environ.get("ROT", "0"))
    if ROT:
        a.I("s_and_b32 s45, s2, 7")
        a.I(f"s_mul_i32 s45, s45, {ROT}")
    a.I("s_waitcnt lgkmcnt(0)")
    srd(a, 20, 4, 5, 16 * MB, add=WS_CTX)
    srd(a, 24, 6, 7, 4 * MB)
    srd(a, 28, 8, 9, 4 * MB)
    vm, lg = VM(a), LG(a)
    st()

    def loads(g):
        sl = g % DEPTH
        a.I(f"s_add_u32 m0, s19, {sl * 2048}")
        if ROT:
            if g % 4 == 0:
                a.I(f"s_add_u32 s44, s45, {g}")
                a.I("s_and_b32 s44, s44, 63")
                a.I("s_lshl_b32 s46, s44, 14")
                a.I("s_add_u32 s46, s46, s41")
                a.I("s_lshl_b32 s44, s44, 10")
            a.I(f"s_add_u32 s42, s46, {hex((g % 4) * 16384)}")
        else:
            a.I(f"s_add_u32 s42, s41, {hex(g * 16384)}")
        vm.issue(f"buffer_load_dwordx4 {v(VD0)}, s[24:27], s42 offen lds", g)
        vm.issue(f"buffer_load_dwordx4 {v(VD1)}, s[24:27], s42 offen offset:1024 lds", g)
        if g % 4 == 0:
            a.I(f"s_add_u32 s43, s40, {'s44' if ROT else hex(g * 1024)}")
        vm.issue(f"buffer_load_dwordx4 {v(CR + 8 * sl, 4)}, {v(L16)}, s[20:23], s43 offen offset:{(g % 4) * 1024}", g)
        vm.issue(f"buffer_load_dwordx4 {v(CR + 8 * sl + 4, 4)}, {v(L16B)}, s[20:23], s43 offen offset:{(g % 4) * 1024}", g)

    def trs(g):
        sl = g % DEPTH
        vm.wait(g)
        for cb in range(2):
            d = AFR + 8 * (g & 1) + 4 * cb
            lg.issue(f"ds_read_b64_tr_b16 {v(d, 2)}, {v(TB + cb)} offset:{sl * 2048}", g)
            lg.issue(f"ds_read_b64_tr_b16 {v(d + 2, 2)}, {v(TB + cb)} offset:{sl * 2048 + 1024}", g)

    for g in range(DEPTH):
        loads(g)
    st()
    trs(0)
    st()
    for g in range(64):
        if g + 1 < 64:
            trs(g + 1)
        lg.wait(g)
        sl = g % DEPTH
        for qt in range(2):
            for cb in range(2):
                acc = v(ACC + 16 * (2 * qt + cb), 16)
                a.I(f"{MF} {acc}, {v(AFR + 8 * (g & 1) + 4 * cb, 4)}, {v(CR + 8 * sl + 4 * qt, 4)}, {'0' if g == 0 else acc}")
        if g + DEPTH < 64:
            loads(g + DEPTH)
        if g == bar_at:
            a.I("s_barrier")
    st()
    a.I(f"v_add_u32 v8, s19, {v(L16)}")
    a.I("s_nop 11")
    for tl in range(4):
        for jq in range(4):
            a.I(f"ds_write_b128 v8, {v(ACC + 16 * tl + 4 * jq, 4)} offset:{(tl * 4 + jq) * 1024}")
    a.I("v_lshrrev_b32 v9, 5, v0")
    a.I("v_and_b32 v10, 31, v0")
    a.I("v_lshlrev_b32 v10, 4, v10")
    a.I("v_lshl_add_u32 v9, v9, 13, v10")
    a.I("s_lshl_b32 s10, s16, 11")
    a.I("v_add_u32 v9, s10, v9")
    a.I("s_lshl_b32 s11, s17, 17")
    a.I("s_lshl_b32 s12, s18, 7")
    a.I("s_add_u32 s11, s11, s12")
    a.I("s_lshl_b32 s12, s16, 5")
    a.I("s_add_u32 s11, s11, s12")
    a.I("v_lshlrev_b32 v10, 11, v0")
    a.I("s_waitcnt lgkmcnt(0)")
    return ACC


def oproj_body2(a, N, st, bar_at=None):
    DEPTH = int(os.environ.get("ODEPTH", "8"))
    ACC, CR = 192 - 16 * DEPTH, 256 - 16 * DEPTH
    L16, L16B = 1, 2
    a.I("s_and_b32 s10, s2, 7")
    a.I("s_lshr_b32 s11, s2, 3")
    a.I("s_and_b32 s12, s11, 3")
    a.I("s_lshl_b32 s10, s10, 2")
    a.I("s_add_u32 s17, s10, s12")
    a.I("s_lshr_b32 s18, s11, 2")
    if os.environ.get("OPX") == "same":
        a.I("s_mov_b32 s17, 0")
        a.I("s_mov_b32 s18, 0")
    if os.environ.get("OPX") == "sameq":
        a.I("s_and_b32 s17, s17, 3")
    if os.environ.get("OPX") == "map2":
        a.I("s_and_b32 s10, s2, 3")
        a.I("s_lshl_b32 s10, s10, 3")
        a.I("s_and_b32 s12, s11, 7")
        a.I("s_add_u32 s17, s10, s12")
        a.I("s_bfe_u32 s10, s2, 0x10002")
        a.I("s_lshl_b32 s10, s10, 2")
        a.I("s_lshr_b32 s12, s11, 3")
        a.I("s_add_u32 s18, s10, s12")
    a.I(f"v_lshlrev_b32 {v(L16)}, 4, v0")
    a.I(f"v_add_u32 {v(L16B)}, 0x40000, {v(L16)}")
    a.I("s_lshl_b32 s19, s16, 14")
    a.I("s_lshl_b32 s40, s17, 19")
    a.I("s_lshl_b32 s10, s16, 16")
    a.I("s_add_u32 s40, s40, s10")
    a.I("s_lshl_b32 s41, s18, 19")
    a.I("s_lshl_b32 s10, s16, 17")
    a.I("s_add_u32 s41, s41, s10")
    a.I("s_waitcnt lgkmcnt(0)")
    srd(a, 20, 4, 5, 16 * MB, add=WS_CTX)
    srd(a, 24, 4, 5, 4 * MB, add=WS_WO)
    srd(a, 28, 8, 9, 4 * MB)
    vm = VM(a)
    st()

    def loads(g):
        sl = g % DEPTH
        L = []
        if g % 2 == 0:
            L.append(lambda: a.I(f"s_add_u32 s42, s41, {hex(g * 2048)}"))
        if g % 4 == 0:
            L.append(lambda: a.I(f"s_add_u32 s43, s40, {hex(g * 1024)}"))
        for cb in range(2):
            L.append(lambda cb=cb: vm.issue(f"buffer_load_dwordx4 {v(CR + 16 * sl + 4 * cb, 4)}, {v(L16)}, s[24:27], s42 offen "
                                            f"offset:{(g % 2) * 2048 + cb * 1024}", g))
        for qt in range(2):
            L.append(lambda qt=qt: vm.issue(f"buffer_load_dwordx4 {v(CR + 16 * sl + 8 + 4 * qt, 4)}, {v(L16 + qt)}, s[20:23], s43 offen "
                                            f"offset:{(g % 4) * 1024}", g))
        return L

    for g in range(DEPTH):
        for f in loads(g):
            f()
    st()
    st()
    for g in range(64):
        vm.wait(g)
        sl = g % DEPTH
        for qt in range(2):
            for cb in range(2):
                acc = v(ACC + 16 * (2 * qt + cb), 16)
                a.I(f"{MF} {acc}, {v(CR + 16 * sl + 4 * cb, 4)}, {v(CR + 16 * sl + 8 + 4 * qt, 4)}, {'0' if g == 0 else acc}")
        if g + DEPTH < 64:
            for f in loads(g + DEPTH):
                f()
        if g == bar_at:
            a.I("s_barrier")
    st()
    a.I(f"v_add_u32 v8, s19, {v(L16)}")
    a.I("v_lshrrev_b32 v9, 5, v0")
    a.I("v_and_b32 v10, 31, v0")
    a.I("v_lshlrev_b32 v10, 4, v10")
    a.I("v_lshl_add_u32 v9, v9, 13, v10")
    a.I("s_lshl_b32 s10, s16, 11")
    a.I("v_add_u32 v9, s10, v9")
    a.I("s_lshl_b32 s11, s17, 17")
    a.I("s_lshl_b32 s12, s18, 7")
    a.I("s_add_u32 s11, s11, s12")
    a.I("s_lshl_b32 s12, s16, 5")
    a.I("s_add_u32 s11, s11, s12")
    a.I("v_lshlrev_b32 v10, 11, v0")
    for tl in range(4):
        for jq in range(4):
            a.I(f"ds_write_b128 v8, {v(ACC + 16 * tl + 4 * jq, 4)} offset:{(tl * 4 + jq) * 1024}")
    a.I("s_waitcnt lgkmcnt(0)")
    return ACC


def oproj_body3(a, N, st, bar_at=None):
    DEPTH = 8
    ACC, FR = 64, 128
    L16, L16B, LR = 1, 2, 3
    a.I("s_and_b32 s10, s2, 7")
    a.I("s_lshr_b32 s11, s2, 3")
    a.I("s_and_b32 s12, s11, 3")
    a.I("s_lshl_b32 s10, s10, 2")
    a.I("s_add_u32 s17, s10, s12")
    a.I("s_lshr_b32 s18, s11, 2")
    a.I(f"v_lshlrev_b32 {v(L16)}, 4, v0")
    a.I(f"v_add_u32 {v(L16B)}, {0x40000 - 1024}, {v(L16)}")
    a.I("s_lshl_b32 s19, s16, 15")
    a.I(f"v_add_u32 {v(LR)}, s19, {v(L16)}")
    a.I("s_lshl_b32 s42, s18, 19")
    a.I("s_lshl_b32 s10, s16, 17")
    a.I("s_add_u32 s42, s42, s10")
    a.I("s_lshl_b32 s43, s17, 19")
    a.I("s_lshl_b32 s10, s16, 16")
    a.I("s_add_u32 s43, s43, s10")
    a.I("s_waitcnt lgkmcnt(0)")
    srd(a, 20, 4, 5, 16 * MB + 2048, add=WS_CTX - 2048)
    srd(a, 24, 4, 5, 4 * MB, add=WS_WO)
    srd(a, 28, 8, 9, 4 * MB)
    vm, lg = VM(a), LG(a)
    st()

    def loads(g):
        sl = g % DEPTH
        return [lambda: a.I(f"s_add_u32 m0, s19, {sl * 4096}"),
                lambda: a.I("s_nop 0") if g < DEPTH else None,
                lambda: vm.issue(f"buffer_load_dwordx4 {v(L16)}, s[24:27], s42 offen lds", g),
                lambda: vm.issue(f"buffer_load_dwordx4 {v(L16)}, s[24:27], s42 offen offset:1024 lds", g),
                lambda: vm.issue(f"buffer_load_dwordx4 {v(L16)}, s[20:23], s43 offen offset:2048 lds", g),
                lambda: vm.issue(f"buffer_load_dwordx4 {v(L16B)}, s[20:23], s43 offen offset:3072 lds", g),
                lambda: a.I("s_add_u32 s42, s42, 2048"),
                lambda: a.I("s_add_u32 s43, s43, 1024")]

    def reads(g):
        vm.wait(g)
        for q in range(4):
            lg.issue(f"ds_read_b128 {v(FR + 16 * (g & 1) + 4 * q, 4)}, {v(LR)} offset:{(g % DEPTH) * 4096 + q * 1024}", g)

    for g in range(DEPTH):
        for f in loads(g):
            f()
    st()
    reads(0)
    st()
    for g in range(64):
        if g + 1 < 64:
            reads(g + 1)
        lg.wait(g)
        L = loads(g + DEPTH) if g + DEPTH < 64 else []
        fr = FR + 16 * (g & 1)
        for qt in range(2):
            for cb in range(2):
                acc = v(ACC + 16 * (2 * qt + cb), 16)
                if L:
                    L.pop(0)()
                a.I(f"{MF} {acc}, {v(fr + 4 * cb, 4)}, {v(fr + 8 + 4 * qt, 4)}, {'0' if g == 0 else acc}")
                if L:
                    L.pop(0)()
        if g == bar_at:
            a.I("s_barrier")
    st()
    a.I("v_lshrrev_b32 v9, 5, v0")
    a.I("v_and_b32 v10, 31, v0")
    a.I("v_lshlrev_b32 v10, 4, v10")
    a.I("v_lshl_add_u32 v9, v9, 13, v10")
    a.I("s_lshl_b32 s10, s16, 11")
    a.I("v_add_u32 v9, s10, v9")
    a.I("s_lshl_b32 s11, s17, 17")
    a.I("s_lshl_b32 s12, s18, 7")
    a.I("s_add_u32 s11, s11, s12")
    a.I("s_lshl_b32 s12, s16, 5")
    a.I("s_add_u32 s11, s11, s12")
    a.I("v_lshlrev_b32 v10, 11, v0")
    for tl in range(4):
        for jq in range(4):
            a.I(f"ds_write_b128 {v(LR)}, {v(ACC + 16 * tl + 4 * jq, 4)} offset:{(tl * 4 + jq) * 1024}")
    a.I("s_waitcnt lgkmcnt(0)")
    return ACC


def oproj_finish(a, ACC, PW=16384):
    for pw in range(4):
        for i in range(4):
            jq, hl = divmod(i, 2)
            if pw == 2 and i == 0 and PW > 16384:
                a.I("v_add_u32 v9, 0x10000, v9")
            a.I(f"ds_read_b128 {v(ACC + 16 * pw + 4 * i, 4)}, v9 offset:{(pw * PW) % 65536 + jq * 1024 + hl * 512}")
        if pw == 1:
            a.I("s_waitcnt lgkmcnt(0)")
            for j in range(16):
                a.I(f"v_add_f32 {v(ACC + j)}, {v(ACC + j)}, {v(ACC + 16 + j)}")
    a.I("s_waitcnt lgkmcnt(0)")
    for j in range(16):
        a.I(f"v_add_f32 {v(ACC + 32 + j)}, {v(ACC + 32 + j)}, {v(ACC + 48 + j)}")
    for j in range(16):
        a.I(f"v_add_f32 {v(ACC + j)}, {v(ACC + j)}, {v(ACC + 32 + j)}")
    for i in range(8):
        a.I(f"v_cvt_pk_bf16_f32 {v(12 + i)}, {v(ACC + 2 * i)}, {v(ACC + 2 * i + 1)}")
    a.I("buffer_store_dwordx4 v[12:15], v10, s[28:31], s11 offen")
    a.I("buffer_store_dwordx4 v[16:19], v10, s[28:31], s11 offen offset:16")


def gen_oproj():
    a = Asm()
    N = "oproj_kernel"
    kstart(a, N, 256)
    a.I("s_load_dwordx2 s[4:5], s[0:1], 88")
    a.I("s_load_dwordx2 s[6:7], s[0:1], 40")
    a.I("s_load_dwordx2 s[8:9], s[0:1], 72")
    a.I("v_lshrrev_b32 v1, 6, v0")
    a.I("v_and_b32 v0, 63, v0")
    a.I("s_nop 0")
    a.I("v_readfirstlane_b32 s16, v1")
    a.I("s_nop 0")
    st = Stamper(a, "oproj")
    ACC = oproj_body(a, N, st)
    a.I("s_barrier")
    oproj_finish(a, ACC)
    st.dump(16, 4, tmpv=8)
    kend(a, N)
    return a, N, (256, 256, 65536)


def PERMC(j):
    return 8 * (j >> 2) + (j & 3)


def gen_mat(a, dst, nf, base, consts, tmp):
    n = len(consts)
    for i in range(0, n, 4):
        for q in range(4):
            a.I(f"v_fmamk_f32 {v(tmp + q)}, {v(nf)}, {f32(float(consts[i + q]))}, {v(base)}")
        for q in range(4):
            a.I(f"v_cos_f32 {v(tmp + q)}, {v(tmp + q)}")
        a.I("s_nop 0")
        for q in range(2):
            a.I(f"v_cvt_pk_bf16_f32 {v(dst + i // 2 + q)}, {v(tmp + 2 * q)}, {v(tmp + 2 * q + 1)}")


def twiddle(a, Dr, Di, regs, nf, base, consts, sign, tmp):
    for x, c in enumerate(consts):
        A, C, S_, U = tmp, tmp + 1, tmp + 2, tmp + 3
        a.I(f"v_fmamk_f32 {v(A)}, {v(nf)}, {f32(float(c))}, {v(base)}")
        a.I(f"v_cos_f32 {v(C)}, {v(A)}")
        a.I(f"v_sin_f32 {v(S_)}, {v(A)}")
        a.I("s_nop 0")
        for j in regs[x]:
            ng = "-" if sign > 0 else ""
            ps = "" if sign > 0 else "-"
            a.I(f"v_mul_f32 {v(U)}, {v(Dr + j)}, {v(S_)}")
            a.I(f"v_mul_f32 {v(Dr + j)}, {v(Dr + j)}, {v(C)}")
            a.I(f"v_fma_f32 {v(Dr + j)}, {ng}{v(Di + j)}, {v(S_)}, {v(Dr + j)}")
            a.I(f"v_fma_f32 {v(Di + j)}, {v(Di + j)}, {v(C)}, {ps}{v(U)}")


def trig(a, j, C, S_, nf, base, c, tmp, scale=None):
    L = [f"v_fmamk_f32 {v(tmp)}, {v(nf)}, {f32(float(c))}, {v(base)}",
         f"v_cos_f32 {v(C)}, {v(tmp)}", f"v_sin_f32 {v(S_)}, {v(tmp)}"]
    return L


def cmul(a, Dr, Di, C, S_, sign, U):
    ng = "-" if sign > 0 else ""
    ps = "" if sign > 0 else "-"
    a.I(f"v_mul_f32 {v(U)}, {v(Dr)}, {v(S_)}")
    a.I(f"v_mul_f32 {v(Dr)}, {v(Dr)}, {v(C)}")
    a.I(f"v_fma_f32 {v(Dr)}, {ng}{v(Di)}, {v(S_)}, {v(Dr)}")
    a.I(f"v_fma_f32 {v(Di)}, {v(Di)}, {v(C)}, {ps}{v(U)}")


def pack(a, dst, src, n):
    for i in range(n):
        a.I(f"v_cvt_pk_bf16_f32 {v(dst + i)}, {v(src + 2 * i)}, {v(src + 2 * i + 1)}")


def b_decode(a):
    a.I("s_and_b32 s20, s2, 7")
    a.I("s_lshl_b32 s20, s20, 3")
    a.I("s_bfe_u32 s22, s2, 0x30003")
    a.I("s_or_b32 s20, s20, s22")
    a.I("s_lshr_b32 s21, s2, 6")


def gen_b1():
    a = Asm()
    N = "b1_kernel"
    kstart(a, N, 256)
    a.I("s_load_dwordx2 s[4:5], s[0:1], 88")
    a.I("s_load_dwordx4 s[8:11], s[0:1], 48")
    a.I("s_load_dwordx2 s[12:13], s[0:1], 64")
    a.I("v_lshrrev_b32 v1, 6, v0")
    a.I("v_and_b32 v2, 255, v0")
    a.I("v_and_b32 v0, 63, v0")
    a.I("v_readfirstlane_b32 s16, v1")
    b_decode(a)
    a.I("s_lshr_b32 s23, s21, 1")
    a.I("s_lshl_b32 s23, s23, 11")
    a.I("s_lshr_b32 s24, s20, 5")
    a.I("s_lshl_b32 s24, s24, 10")
    a.I("s_add_u32 s23, s23, s24")
    a.I("s_and_b32 s24, s20, 31")
    a.I("s_lshl_b32 s24, s24, 4")
    a.I("s_add_u32 s23, s23, s24")
    a.I("s_and_b32 s24, s21, 1")
    a.I("s_lshl_b32 s24, s24, 9")
    a.I("s_add_u32 s23, s23, s24")
    a.I("s_add_u32 s24, s23, 4096")
    a.I("v_lshlrev_b32 v3, 13, v2")
    a.I("s_cmp_ge_u32 s16, 4")
    a.I("s_waitcnt lgkmcnt(0)")
    a.I(f"s_cbranch_scc1 {N}_filt")
    srd(a, 28, 8, 9, 2 * MB)
    srd(a, 32, 4, 5, 257 * 8192, add=WS_Y)
    a.I("s_lshr_b32 s25, s21, 1")
    a.I("s_lshl_b32 s25, s25, 4")
    a.I("s_and_b32 s26, s21, 1")
    a.I("s_lshl_b32 s26, s26, 2")
    a.I("s_add_u32 s25, s25, s26")
    a.I("s_lshr_b32 s26, s16, 1")
    a.I("s_lshl_b32 s26, s26, 3")
    a.I("s_add_u32 s25, s25, s26")
    a.I("s_and_b32 s26, s16, 1")
    a.I("s_lshl_b32 s26, s26, 1")
    a.I("s_add_u32 s25, s25, s26")
    a.I("s_lshl_b32 s25, s25, 6")
    a.I("s_add_u32 s25, s25, s20")
    a.I("s_lshl_b32 s25, s25, 10")
    a.I(f"s_add_u32 s26, s25, {65536 - 1024}")
    a.I("s_lshl_b32 s27, s16, 11")
    a.I("s_mov_b32 m0, s27")
    a.I("v_lshlrev_b32 v4, 4, v0")
    a.I("buffer_load_dwordx4 v4, s[28:31], s25 offen lds")
    a.I("buffer_load_dwordx4 v4, s[28:31], s26 offen offset:1024 lds")
    HL, NF, BS, TM = 5, 6, 7, 8
    C32, NS32, AR, AI, XF, D1R, D1I, TR, TI, D2 = 16, 24, 32, 36, 40, 48, 64, 80, 88, 96
    a.I(f"v_lshrrev_b32 {v(HL)}, 5, v0")
    a.I(f"v_cvt_f32_u32 {v(HL)}, {v(HL)}")
    a.I("v_and_b32 v12, 31, v0")
    a.I("v_cvt_f32_u32 v12, v12")
    a.I(f"v_mul_f32 {v(NF)}, {f32(1 / 32)}, v12")
    a.I(f"v_mul_f32 {v(BS)}, {v(NF)}, {v(HL)}")
    a.I(f"v_mul_f32 {v(BS)}, {f32(8.0)}, {v(BS)}")
    nat = [16 * t + j for t in range(2) for j in range(8)]
    gen_mat(a, C32, NF, BS, nat, TM)
    a.I(f"v_add_f32 {v(BS)}, {f32(0.25)}, {v(BS)}")
    gen_mat(a, NS32, NF, BS, nat, TM)
    a.I("v_and_b32 v13, 15, v0")
    a.I("v_cvt_f32_u32 v13, v13")
    a.I(f"v_mul_f32 {v(NF)}, {f32(1 / 16)}, v13")
    a.I("v_bfe_u32 v13, v0, 4, 1")
    a.I("v_cvt_f32_u32 v13, v13")
    a.I(f"v_mul_f32 {v(BS)}, {v(NF)}, {v(HL)}")
    a.I(f"v_mul_f32 {v(BS)}, 4.0, {v(BS)}")
    a.I(f"v_fmamk_f32 {v(BS)}, v13, {f32(0.25)}, {v(BS)}")
    pc = [PERMC(j) for j in range(8)]
    gen_mat(a, AR, NF, BS, pc, TM)
    a.I(f"v_add_f32 {v(BS)}, {f32(-0.25)}, {v(BS)}")
    gen_mat(a, AI, NF, BS, pc, TM)
    a.I("v_bfe_u32 v13, v0, 4, 1")
    a.I("v_lshlrev_b32 v13, 10, v13")
    a.I("v_lshrrev_b32 v14, 5, v0")
    a.I("v_lshl_add_u32 v13, v14, 8, v13")
    a.I("v_and_b32 v15, 15, v0")
    a.I("v_lshl_add_u32 v13, v15, 3, v13")
    a.I("v_add_u32 v13, s27, v13")
    a.I("s_waitcnt vmcnt(0)")
    for t in range(2):
        for h in range(2):
            a.I(f"ds_read_b64_tr_b16 {v(XF + 4 * t + 2 * h, 2)}, v13 offset:{t * 512 + h * 128}")
    a.I(f"v_mul_f32 {v(NF)}, {f32(1 / 512)}, v12")
    a.I(f"v_mul_f32 {v(BS)}, {v(NF)}, {v(HL)}")
    a.I(f"v_mul_f32 {v(BS)}, 4.0, {v(BS)}")
    a.I("s_waitcnt lgkmcnt(0)")
    for t in range(2):
        a.I(f"{MF} {v(D1R, 16)}, {v(XF + 4 * t, 4)}, {v(C32 + 4 * t, 4)}, {'0' if t == 0 else v(D1R, 16)}")
    for t in range(2):
        a.I(f"{MF} {v(D1I, 16)}, {v(XF + 4 * t, 4)}, {v(NS32 + 4 * t, 4)}, {'0' if t == 0 else v(D1I, 16)}")
    a.I("v_and_b32 v15, 31, v0")
    a.I("v_lshlrev_b32 v15, 4, v15")
    a.I("v_lshl_add_u32 v15, v14, 11, v15")
    a.I("s_lshl_b32 s25, s16, 2")
    a.I("s_add_u32 s25, s25, 8192")
    a.I("v_add_u32 v15, s25, v15")
    a.I("s_nop 7")
    twiddle(a, D1R, D1I, [[j, j + 8] for j in range(8)], NF, BS, pc, -1, TM)
    pack(a, TR, D1R, 8)
    pack(a, TI, D1I, 8)
    a.I("s_nop 1")
    for r in range(2):
        a.I(f"{MF} {v(D2 + 16 * r, 16)}, {v(AR, 4)}, {v(TR + 4 * r, 4)}, 0")
        a.I(f"{MF} {v(D2 + 16 * r, 16)}, {v(AI, 4)}, {v(TI + 4 * r, 4)}, {v(D2 + 16 * r, 16)}")
    a.I("s_nop 11")
    for c in range(2):
        for j in range(5):
            a.I(f"v_cvt_pk_bf16_f32 {v(TR + 5 * c + j)}, {v(D2 + 8 * c + j)}, {v(D2 + 16 + 8 * c + j)}")
    for c in range(2):
        for j in range(4):
            a.I(f"ds_write_b32 v15, {v(TR + 5 * c + j)} offset:{(c * 8 + j) * 512}")
    a.I("v_cmp_eq_u32 vcc, 0, v0")
    a.I("s_and_saveexec_b64 s[36:37], vcc")
    for c in range(2):
        a.I(f"ds_write_b32 v15, {v(TR + 5 * c + 4)} offset:{8192 + 16 * c}")
    a.I("s_mov_b64 exec, s[36:37]")
    a.I("v_lshlrev_b32 v14, 4, v2")
    a.I("s_waitcnt lgkmcnt(0)")
    a.I("s_barrier")
    a.I("ds_read_b128 v[16:19], v14 offset:8192")
    a.I(f"ds_read_b128 v[20:23], v14 offset:{8192 + 4096}")
    a.I(f"ds_read_b128 v[24:27], v14 offset:{8192 + 8192}")
    a.I("v_lshlrev_b32 v13, 12, v2")
    a.I(f"v_add_u32 v13, {256 * 8192}, v13")
    a.I("s_waitcnt lgkmcnt(0)")
    a.I("buffer_store_dwordx4 v[16:19], v3, s[32:35], s23 offen")
    a.I("buffer_store_dwordx4 v[20:23], v3, s[32:35], s24 offen")
    a.I("v_cmp_gt_u32 vcc, 2, v2")
    a.I("s_and_saveexec_b64 s[36:37], vcc")
    a.I(f"s_cbranch_execz {N}_end")
    a.I("buffer_store_dwordx4 v[24:27], v13, s[32:35], s23 offen")
    a.I("s_endpgm")
    a.label(f"{N}_filt")
    srd(a, 28, 10, 11, 2048 * 514)
    srd(a, 32, 12, 13, 2048 * 514)
    srd(a, 36, 4, 5, 257 * 8192, add=WS_WF)
    a.I("s_lshr_b32 s25, s21, 1")
    a.I("s_lshl_b32 s25, s25, 5")
    a.I("s_lshr_b32 s26, s20, 5")
    a.I("s_lshl_b32 s26, s26, 4")
    a.I("s_add_u32 s25, s25, s26")
    a.I("s_and_b32 s26, s21, 1")
    a.I("s_lshl_b32 s26, s26, 2")
    a.I("s_add_u32 s25, s25, s26")
    a.I("s_lshl_b32 s25, s25, 5")
    a.I("s_and_b32 s26, s20, 31")
    a.I("s_add_u32 s25, s25, s26")
    a.I("s_mul_i32 s25, s25, 514")
    for j in range(8):
        a.I(f"s_add_u32 s{40 + j}, s25, {PERMC(j) * 32 * 514}")
    a.I("v_lshlrev_b32 v4, 1, v2")
    a.I("v_mov_b32 v5, 512")
    for q, va in enumerate((4, 5)):
        for c in range(2):
            for j in range(8):
                a.I(f"buffer_load_ushort {v(32 + 16 * q + 8 * c + j)}, {v(va)}, s[{28 + 4 * c}:{31 + 4 * c}], s{40 + j} offen")
    a.I(f"v_mov_b32 v6, {256 * 8192}")
    a.I("s_waitcnt vmcnt(16)")
    for i in range(8):
        a.I(f"v_lshl_or_b32 {v(16 + i)}, {v(33 + 2 * i)}, 16, {v(32 + 2 * i)}")
    a.I("buffer_store_dwordx4 v[16:19], v3, s[36:39], s23 offen")
    a.I("buffer_store_dwordx4 v[20:23], v3, s[36:39], s24 offen")
    a.I("v_cmp_eq_u32 vcc, 0, v2")
    a.I("s_and_saveexec_b64 s[48:49], vcc")
    a.I(f"s_cbranch_execz {N}_end")
    a.I("s_waitcnt vmcnt(2)")
    for i in range(8):
        a.I(f"v_lshl_or_b32 {v(24 + i)}, {v(49 + 2 * i)}, 16, {v(48 + 2 * i)}")
    a.I("buffer_store_dwordx4 v[24:27], v6, s[36:39], s23 offen")
    a.I("buffer_store_dwordx4 v[28:31], v6, s[36:39], s24 offen")
    kend(a, N)
    return a, N, (256, 512, 20480)


def b2_loads(a, vm, col_s, own_s, L16, YR, WR, S0, SR):
    sY, sW = S0, S0 + 2
    a.I(f"s_lshl_b32 {s(sY)}, {s(col_s)}, 13")
    a.I(f"s_lshl_b32 {s(own_s)}, {s(own_s)}, 10")
    a.I(f"s_add_u32 {s(sY)}, {s(sY)}, {s(own_s)}")
    a.I(f"s_add_u32 {s(sY + 1)}, {s(sY)}, 4096")
    a.I(f"s_add_u32 {s(sW)}, {s(sY)}, {s(own_s)}")
    a.I(f"s_add_u32 {s(sW + 1)}, {s(sW)}, 4096")
    srd(a, SR, 4, 5, 257 * 8192, add=WS_Y)
    for c in range(2):
        for t in range(2):
            vm.issue(f"buffer_load_dwordx4 {v(YR + 8 * c + 4 * t, 4)}, {v(L16)}, {s(SR, 4)}, {s(sY + c)} offen offset:{t * 2048}", "Y")
    srd(a, SR + 4, 4, 5, 257 * 8192, add=WS_WF)
    for c in range(2):
        for h in range(2):
            vm.issue(f"buffer_load_dwordx4 {v(WR + 8 * c + 4 * h, 4)}, {v(L16)}, {s(SR + 4, 4)}, {s(sW + c)} offen offset:{h * 1024}", "WF")


def b2_body(a, own, col_s, lds_s, svc, vm, R0=0, S0=20, SR=28, slice_len=110, rmap=None, after_loads=None, st=lambda: None, preloaded=False):
    L16, HL, NF, BS, LF, XA, XB, TM, LB = [R0 + x for x in (1, 2, 3, 4, 5, 6, 7, 8, 12)]
    YR, YI, WR, WI = [R0 + x for x in (16, 24, 32, 40)]
    C32, S32, NS32, C64, S64 = [R0 + x for x in (48, 56, 64, 72, 88)]
    DR, DI = R0 + 104, R0 + 120
    FR, FI, FN = R0 + 136, R0 + 152, R0 + 168
    XT = 240
    if rmap:
        L16, HL, NF, BS, LF, XA, XB, TM, LB, YR, YI, WR, WI, C32, S32, NS32, C64, S64, DR, DI, FR, FI, FN = rmap
    sY, sW, sSC, sT = S0, S0 + 2, S0 + 4, S0 + 5
    I0 = a.I
    cnt = [0]

    def I(text):
        r = I0(text)
        cnt[0] += 1
        if cnt[0] >= slice_len and text.startswith("v_cvt_pk") or cnt[0] >= slice_len and text.startswith("v_fma_f32"):
            dosvc()
        return r

    def dosvc():
        a.I = I0
        svc()
        a.I = I
        cnt[0] = 0

    a.I(f"v_lshlrev_b32 {v(L16)}, 4, v0")
    if preloaded:
        vm.q += ["Y"] * 4 + ["WF"] * 4 + ["Q"] * 8
    else:
        a.I(f"s_mov_b32 {s(sT)}, {own}")
        b2_loads(a, vm, col_s, sT, L16, YR, WR, S0, SR)
    srd(a, SR + 8, 4, 5, 257 * 8192, add=WS_Z)
    a.I = I
    a.I(f"s_mov_b32 {s(sSC)}, {f32(2.0 ** -19)}")
    a.I(f"s_and_b32 {s(sT)}, {s(col_s)}, 255")
    a.I(f"s_cmp_eq_u32 {s(sT)}, 0")
    a.I(f"s_cselect_b32 {s(sSC)}, {f32(2.0 ** -20)}, {s(sSC)}")
    a.I(f"v_lshrrev_b32 {v(HL)}, 5, v0")
    a.I(f"v_cvt_f32_u32 {v(HL)}, {v(HL)}")
    a.I(f"v_mul_f32 {v(HL)}, 4.0, {v(HL)}")
    a.I(f"v_and_b32 {v(LF)}, 31, v0")
    a.I(f"v_cvt_f32_u32 {v(LF)}, {v(LF)}")
    a.I(f"v_add_f32 {v(LB)}, {f32(32.0 * own)}, {v(LF)}")
    pc = lambda n: [16 * t + PERMC(j) for t in range(n) for j in range(8)]
    a.I(f"v_mul_f32 {v(NF)}, {f32(1 / 32)}, {v(LF)}")
    a.I(f"v_mul_f32 {v(BS)}, {v(NF)}, {v(HL)}")
    gen_mat(a, C32, NF, BS, pc(2), TM)
    a.I(f"v_add_f32 {v(BS)}, {f32(-0.25)}, {v(BS)}")
    gen_mat(a, S32, NF, BS, pc(2), TM)
    for i in range(8):
        a.I(f"v_xor_b32 {v(NS32 + i)}, 0x80008000, {v(S32 + i)}")
    a.I(f"v_mul_f32 {v(NF)}, {f32(1 / 64)}, {v(LB)}")
    a.I(f"v_mul_f32 {v(BS)}, {v(NF)}, {v(HL)}")
    gen_mat(a, C64, NF, BS, pc(4), TM)
    a.I(f"v_add_f32 {v(BS)}, {f32(-0.25)}, {v(BS)}")
    gen_mat(a, S64, NF, BS, pc(4), TM)
    a.I(f"v_add_u32 {v(XA)}, {s(lds_s)}, {v(L16)}")
    a.I(f"v_add_u32 {v(XB)}, {(1 - own) * 4096}, {v(XA)}")
    a.I(f"v_add_u32 {v(XA)}, {own * 4096}, {v(XA)}")

    def mm(D, terms, fill=None, per=3):
        first = True
        for A_, B_ in terms:
            a.I(f"{MF} {v(D, 16)}, {v(A_, 4)}, {v(B_, 4)}, {'0' if first else v(D, 16)}")
            first = False
            if fill:
                for x in fill[:per]:
                    a.I(x)
                del fill[:per]

    def exchange(neg_of, ldsoff):
        for c, F in enumerate((FR, FI)):
            for h in range(2):
                a.I(f"ds_write_b128 {v(XA)}, {v(F + 8 * own + 4 * h, 4)} offset:{ldsoff + (2 * c + h) * 1024}")
        a.I("s_waitcnt lgkmcnt(0)")
        dosvc()
        for c, F in enumerate((FR, FI)):
            for h in range(2):
                a.I(f"ds_read_b128 {v(F + 8 * (1 - own) + 4 * h, 4)}, {v(XB)} offset:{ldsoff + (2 * c + h) * 1024}")
        for i in range(8):
            a.I(f"v_xor_b32 {v(FN + 8 * own + i)}, 0x80008000, {v(neg_of + 8 * own + i)}")
        a.I("s_waitcnt lgkmcnt(0)")
        for i in range(8):
            a.I(f"v_xor_b32 {v(FN + 8 * (1 - own) + i)}, 0x80008000, {v(neg_of + 8 * (1 - own) + i)}")
        a.I("s_nop 1")

    jc = [(j & 3) + 8 * (j >> 2) for j in range(16)]
    o = 8 * (1 - own)
    T1C = [FN + j for j in range(16)]
    T1S = [FR + o + j for j in range(8)] + [FI + o + j for j in range(8)]
    a.I(f"v_mul_f32 {v(NF)}, {f32(1 / 2048)}, {v(LF)}")
    a.I(f"v_add_f32 {v(BS)}, {f32(32.0 * own)}, {v(HL)}")
    a.I(f"v_mul_f32 {v(BS)}, {v(NF)}, {v(BS)}")
    for j in range(16):
        a.many(trig(a, j, T1C[j], T1S[j], NF, BS, jc[j], TM + (j & 1)))
    a.I(f"v_mul_f32 {v(NF)}, {f32(1 / 2048)}, {v(LB)}")
    a.I(f"v_mul_f32 {v(BS)}, {v(NF)}, {v(HL)}")
    st()
    vm.wait("Y")
    st()
    mm(DR, [(YR, C32), (YR + 4, C32 + 4), (YI, S32), (YI + 4, S32 + 4)])
    mm(DI, [(YI, C32), (YI + 4, C32 + 4), (YR, NS32), (YR + 4, NS32 + 4)])
    a.I("s_nop 11")
    for j in range(16):
        cmul(a, DR + j, DI + j, T1C[j], T1S[j], -1, TM)
    pack(a, FR + 8 * own, DR, 8)
    pack(a, FI + 8 * own, DI, 8)
    exchange(FR, 0)
    st()
    if after_loads:
        after_loads()
    T2C = [YR + j for j in range(8)] + [YI + j for j in range(8)]
    fill = []
    for j in range(16):
        fill += trig(a, j, T2C[j], XT + j, NF, BS, jc[j], TM + (j & 1))
    mm(DR, [(C64 + 4 * t, FR + 4 * t) for t in range(4)] + [(S64 + 4 * t, FI + 4 * t) for t in range(4)], fill)
    mm(DI, [(C64 + 4 * t, FI + 4 * t) for t in range(4)] + [(S64 + 4 * t, FN + 4 * t) for t in range(4)], fill)
    assert not fill
    vm.wait("WF")
    for j in range(12):
        a.I(f"v_mul_f32 {v(T2C[j])}, {s(sSC)}, {v(T2C[j])}")
    for j in range(16):
        wr, wi, u = TM, TM + 1, TM + 2
        if j & 1:
            a.I(f"v_and_b32 {v(wr)}, 0xffff0000, {v(WR + j // 2)}")
            a.I(f"v_and_b32 {v(wi)}, 0xffff0000, {v(WI + j // 2)}")
        else:
            a.I(f"v_lshlrev_b32 {v(wr)}, 16, {v(WR + j // 2)}")
            a.I(f"v_lshlrev_b32 {v(wi)}, 16, {v(WI + j // 2)}")
        cmul(a, DR + j, DI + j, wr, wi, +1, u)
    pack(a, FR + 8 * own, DR, 8)
    pack(a, FI + 8 * own, DI, 8)
    exchange(FI, 8192)
    st()
    fill = [f"v_mul_f32 {v(T2C[j])}, {s(sSC)}, {v(T2C[j])}" for j in range(12, 16)]
    fill += [f"v_mul_f32 {v(XT + j)}, {s(sSC)}, {v(XT + j)}" for j in range(16)]
    mm(DR, [(FR + 4 * t, C64 + 4 * t) for t in range(4)] + [(FN + 4 * t, S64 + 4 * t) for t in range(4)], fill)
    mm(DI, [(FI + 4 * t, C64 + 4 * t) for t in range(4)] + [(FR + 4 * t, S64 + 4 * t) for t in range(4)], fill)
    a.I("s_nop 11")
    for j in range(16):
        cmul(a, DR + j, DI + j, T2C[j], XT + j, +1, TM)
    pack(a, FR, DR, 8)
    pack(a, FI, DI, 8)
    a.I("s_nop 1")
    mm(DR, [(C32, FR), (C32 + 4, FR + 4), (NS32, FI), (NS32 + 4, FI + 4)])
    mm(DI, [(C32, FI), (C32 + 4, FI + 4), (S32, FR), (S32 + 4, FR + 4)])
    a.I = I0
    a.I("s_nop 7")
    pack(a, YR, DR, 8)
    a.I("s_nop 3")
    pack(a, YI, DI, 8)
    for c in range(2):
        for h in range(2):
            vm.issue(f"buffer_store_dwordx4 {v(YR + 8 * c + 4 * h, 4)}, {v(L16)}, {s(SR + 8, 4)}, {s(sW + c)} offen offset:{h * 1024}", "Z")


def gen_b2():
    a = Asm()
    N = "b2_kernel"
    kstart(a, N, 257)
    a.I("s_load_dwordx2 s[4:5], s[0:1], 88")
    a.I("v_lshrrev_b32 v1, 6, v0")
    a.I("v_and_b32 v0, 63, v0")
    a.I("s_mov_b32 s17, 0")
    a.I("v_readfirstlane_b32 s16, v1")
    a.I("s_waitcnt lgkmcnt(0)")
    a.I("s_cmp_eq_u32 s16, 1")
    a.I(f"s_cbranch_scc1 {N}_w1")
    b2_body(a, 0, 2, 17, lambda: a.I("s_barrier"), VM(a), slice_len=10 ** 9)
    a.I("s_endpgm")
    a.label(f"{N}_w1")
    b2_body(a, 1, 2, 17, lambda: a.I("s_barrier"), VM(a), slice_len=10 ** 9)
    kend(a, N)
    return a, N, (257, 128, 16384)


def b3_body(a, LB=0, outp=6):
    b_decode(a)
    a.I("s_lshr_b32 s23, s20, 5")
    a.I("s_lshl_b32 s23, s23, 11")
    a.I("s_lshl_b32 s24, s21, 9")
    a.I("s_add_u32 s23, s23, s24")
    a.I("s_and_b32 s24, s20, 31")
    a.I("s_lshl_b32 s24, s24, 4")
    a.I("s_add_u32 s23, s23, s24")
    a.I("s_add_u32 s24, s23, 4096")
    a.I("v_lshlrev_b32 v3, 13, v2")
    a.I(f"v_mov_b32 v4, {256 * 8192}")
    a.I("s_waitcnt lgkmcnt(0)")
    srd(a, 28, 4, 5, 257 * 8192, add=WS_Z)
    srd(a, 32, outp, outp + 1, 4 * MB)
    a.I("buffer_load_dwordx4 v[16:19], v3, s[28:31], s23 offen")
    a.I("buffer_load_dwordx4 v[20:23], v3, s[28:31], s24 offen")
    a.I("buffer_load_dwordx4 v[24:27], v4, s[28:31], s23 offen")
    HL, NF, BS, AFL, TM = 5, 6, 7, 12, 8
    C32, NS32, BRE, BIM, MT, ZF, UR, UI, TR, TI = 32, 40, 48, 56, 64, 68, 80, 96, 112, 120
    a.I(f"v_lshrrev_b32 {v(HL)}, 5, v0")
    a.I(f"v_cvt_f32_u32 {v(HL)}, {v(HL)}")
    a.I("v_and_b32 v13, 31, v0")
    a.I("v_cvt_f32_u32 v13, v13")
    a.I(f"v_mul_f32 {v(NF)}, {f32(1 / 32)}, v13")
    a.I(f"v_mul_f32 {v(BS)}, {v(NF)}, {v(HL)}")
    a.I(f"v_mul_f32 {v(BS)}, 4.0, {v(BS)}")
    pc = [16 * t + PERMC(j) for t in range(2) for j in range(8)]
    gen_mat(a, C32, NF, BS, pc, TM)
    a.I(f"v_add_f32 {v(BS)}, {f32(0.25)}, {v(BS)}")
    gen_mat(a, NS32, NF, BS, pc, TM)
    a.I(f"v_and_b32 {v(AFL)}, 15, v0")
    a.I(f"v_cvt_f32_u32 {v(AFL)}, {v(AFL)}")
    a.I(f"v_mul_f32 {v(NF)}, {f32(1 / 16)}, {v(AFL)}")
    a.I(f"v_mul_f32 {v(BS)}, {f32(0.25)}, {v(HL)}")
    a.I("v_and_b32 v13, 16, v0")
    a.I("v_cmp_eq_u32 vcc, 0, v13")
    a.I("v_mov_b32 v14, 0")
    for B_, ph in ((BRE, None), (BIM, -0.25)):
        if ph:
            a.I(f"v_add_f32 {v(BS)}, {f32(ph)}, {v(BS)}")
        gen_mat(a, MT, NF, BS, list(range(8)), TM)
        for i in range(4):
            a.I(f"v_cndmask_b32 {v(B_ + i)}, v14, {v(MT + i)}, vcc")
            a.I(f"v_cndmask_b32 {v(B_ + 4 + i)}, {v(MT + i)}, v14, vcc")
    a.I("v_and_b32 v13, 31, v2")
    a.I("v_lshlrev_b32 v13, 4, v13")
    a.I("v_lshrrev_b32 v15, 5, v2")
    a.I("v_lshl_add_u32 v13, v15, 1, v13")
    a.I(f"v_add_u32 v13, {LB}, v13")
    a.I("v_cmp_eq_u32 vcc, 0, v2")
    a.I(f"v_mov_b32 v15, {LB + 8192}")
    a.I("s_waitcnt vmcnt(0)")
    for i in range(4):
        a.I(f"v_cndmask_b32 {v(20 + i)}, {v(20 + i)}, v14, vcc")
    for c in range(2):
        for i in range(8):
            a.I(f"ds_write_b16{'_d16_hi' if i & 1 else ''} v13, {v(16 + 4 * c + i // 2)} offset:{i * 1024 + c * 512}")
    a.I("s_and_saveexec_b64 s[36:37], vcc")
    a.I("ds_write_b128 v15, v[24:27]")
    a.I("s_mov_b64 exec, s[36:37]")
    a.I("s_lshl_b32 s25, s16, 11")
    a.I(f"s_add_u32 s25, s25, {LB}")
    a.I("v_lshlrev_b32 v13, 4, v0")
    a.I("v_add_u32 v13, s25, v13")
    a.I("v_bfe_u32 v15, v0, 4, 1")
    a.I("s_lshl_b32 s25, s16, 2")
    a.I(f"s_add_u32 s25, s25, {LB + 8192}")
    a.I("v_lshl_add_u32 v15, v15, 1, s25")
    for j in range(1, 16):
        a.I(f"v_mov_b32 {v(UR + j)}, 0")
    a.I("s_waitcnt lgkmcnt(0)")
    a.I("s_barrier")
    a.I(f"ds_read_u16 {v(UR)}, v15")
    a.I(f"ds_read_b128 {v(ZF, 4)}, v13")
    a.I(f"ds_read_b128 {v(ZF + 4, 4)}, v13 offset:1024")
    a.I("v_and_b32 v15, 1, v0")
    a.I("v_lshlrev_b32 v15, 31, v15")
    a.I("v_cmp_gt_u32 vcc, 32, v0")
    a.I(f"v_mul_f32 {v(NF)}, {f32(1 / 512)}, {v(AFL)}")
    a.I(f"v_mul_f32 {v(BS)}, {v(NF)}, {v(HL)}")
    a.I(f"v_mul_f32 {v(BS)}, 4.0, {v(BS)}")
    a.I("s_waitcnt lgkmcnt(2)")
    a.I(f"v_lshlrev_b32 {v(UR)}, 16, {v(UR)}")
    a.I(f"v_xor_b32 {v(UR)}, {v(UR)}, v15")
    a.I(f"v_cndmask_b32 {v(UR)}, v14, {v(UR)}, vcc")
    a.I("s_waitcnt lgkmcnt(0)")
    a.I("s_nop 0")
    for r in range(2):
        a.I(f"{MF} {v(UR, 16)}, {v(ZF + 4 * r, 4)}, {v(BRE + 4 * r, 4)}, {v(UR, 16)}")
    for r in range(2):
        a.I(f"{MF} {v(UI, 16)}, {v(ZF + 4 * r, 4)}, {v(BIM + 4 * r, 4)}, {'0' if r == 0 else v(UI, 16)}")
    a.I("s_lshr_b32 s25, s21, 1")
    a.I("s_lshl_b32 s25, s25, 4")
    a.I("s_and_b32 s26, s21, 1")
    a.I("s_lshl_b32 s26, s26, 2")
    a.I("s_add_u32 s25, s25, s26")
    a.I("s_lshr_b32 s26, s16, 1")
    a.I("s_lshl_b32 s26, s26, 3")
    a.I("s_add_u32 s25, s25, s26")
    a.I("s_and_b32 s26, s16, 1")
    a.I("s_lshl_b32 s26, s26, 1")
    a.I("s_add_u32 s25, s25, s26")
    a.I("s_lshl_b32 s25, s25, 6")
    a.I("s_add_u32 s25, s25, s20")
    a.I("s_lshl_b32 s25, s25, 11")
    a.I(f"s_add_u32 s26, s25, {64 * 2048}")
    jc = [(j & 3) + 8 * (j >> 2) for j in range(16)]
    twiddle(a, UR, UI, [[j] for j in range(16)], NF, BS, jc, +1, TM)
    pack(a, TR, UR, 8)
    pack(a, TI, UI, 8)
    a.I("v_and_b32 v13, 31, v0")
    a.I("v_lshlrev_b32 v13, 5, v13")
    terms = [(TR, C32), (TR + 4, C32 + 4), (TI, NS32), (TI + 4, NS32 + 4)]
    for i, (A_, B_) in enumerate(terms):
        a.I(f"{MF} {v(UR, 16)}, {v(A_, 4)}, {v(B_, 4)}, {'0' if i == 0 else v(UR, 16)}")
    a.I("v_lshrrev_b32 v15, 5, v0")
    a.I("v_lshl_add_u32 v13, v15, 4, v13")
    a.I("s_nop 9")
    pack(a, 16, UR, 8)
    a.I("s_nop 1")
    for r in range(2):
        a.I(f"v_permlane32_swap_b32 {v(16 + 4 * r)}, {v(18 + 4 * r)}")
        a.I(f"v_permlane32_swap_b32 {v(17 + 4 * r)}, {v(19 + 4 * r)}")
        a.I(f"buffer_store_dwordx4 {v(16 + 4 * r, 4)}, v13, s[32:35], s{25 + r} offen offset:1024")


def gen_b3():
    a = Asm()
    N = "b3_kernel"
    kstart(a, N, 256)
    a.I("s_load_dwordx2 s[4:5], s[0:1], 88")
    a.I("s_load_dwordx2 s[6:7], s[0:1], 72")
    a.I("v_lshrrev_b32 v1, 6, v0")
    a.I("v_mov_b32 v2, v0")
    a.I("v_and_b32 v0, 63, v0")
    a.I("v_readfirstlane_b32 s16, v1")
    b3_body(a)
    kend(a, N)
    return a, N, (256, 256, 8192 + 64)


KERNELS = [gen_b1, gen_qkv, gen_b2, gen_attn, gen_b3, gen_oproj]


ALIASES = [("v_mfma_f32_16x16x32_bf16", "mf16", 4), ("v_mfma_f32_32x32x16_bf16", "mf32", 4),
           ("v_cvt_pk_bf16_f32", "cvtpk", 3)]


def compact(txt):
    lines = txt.split("\n")
    out = []
    done = False
    for l in lines:
        if l.startswith("    "):
            l = l.strip()
            for full, short, n in ALIASES:
                if l.startswith(full + " "):
                    l = short + l[len(full):]
        out.append(l)
        if l.startswith(".amdgcn_target") and not done:
            done = True
            for full, short, n in ALIASES:
                args = ["p%d" % i for i in range(n)]
                out.append(f".macro {short} " + ", ".join(args))
                out.append(f"{full} " + ", ".join("\\" + x for x in args))
                out.append(".endm")
    return "\n".join(out)


def build(kernels, path):
    hdr = open(os.path.join(os.path.dirname(os.path.abspath(__file__)), "..", "cdna_kernels", NAME + ".s.ref")).read()
    head = [l for l in hdr.splitlines() if l.startswith(";") and "@launch" not in l and "Override" not in l
            and "grid=ceil" not in l]
    txt = []
    launches = []
    descs = []
    bad = 0
    for g in kernels:
        KIDX[0] = len(launches)
        a, n, (grid, blk, lds) = g()
        if DBGT:
            items = []
            for it in a.items:
                if it[0] == "i" and it[1].mn == "s_endpgm" and not (items and items[-1][0] == "l" and items[-1][1] == n + "_end" and items[-2][1].mn == "s_endpgm"):
                    b = Asm()
                    lab = None
                    if items[-1][0] == "l" and items[-1][1] == n + "_end":
                        lab = items.pop()
                    dbg_stamp(b, 1)
                    items += b.items
                    if lab:
                        items.append(it)
                        items.append(lab)
                items.append(it)
            a.items = items
        bad += len(a.check())
        nv, ns, na = a.maxregs()
        print(f"{n}: {sum(1 for k, _ in a.items if k == 'i')} instrs, vgpr {nv}, agpr {na}, sgpr {ns}")
        launches.append(f"; @launch kernel={n} grid=({grid},1,1) block=({blk},1,1) lds={lds}")
        txt.append(a.text())
        descs.append(kdesc(n, nv, ns, na))
    if bad:
        print("HAZARDS:", bad)
    out = "\n".join(head) + "\n" + "\n".join(launches) + "\n" + '.amdgcn_target "amdgcn-amd-amdhsa--gfx950"\n' + \
          "".join(txt) + "".join(descs)
    out = compact(out)
    open(path, "w").write(out)
    return bad


if __name__ == "__main__":
    p = sys.argv[1] if len(sys.argv) > 1 else os.path.join(os.path.dirname(os.path.abspath(__file__)), "..",
                                                           "cdna_kernels", NAME + ".s")
    sys.exit(1 if build(KERNELS, p) else 0)
```

```python
import sys, os
sys.path.insert(0, os.path.dirname(os.path.abspath(__file__)))
import gen
from gen import *

M16 = "v_mfma_f32_16x16x32_bf16"
SP = os.environ.get("SP", " sc1")
PUMP = int(os.environ.get("PUMP", "5"))
SCAT_AT = int(os.environ.get("SCAT_AT", "52"))
GRP2 = int(os.environ.get("GRP2", "0"))
FILT_AT = int(os.environ.get("FILT_AT", "74"))
LATE_AT = int(os.environ.get("LATE_AT", "28"))
STF = eval(os.environ.get("STF", "(31, 63, 95)"))
B1START = int(os.environ.get("B1START", "6"))


def gen_l1():
    a = Asm()
    N = "l1_kernel"
    kstart(a, N, 256)
    a.I("s_load_dwordx4 s[4:7], s[0:1], 0")
    a.I("s_load_dwordx4 s[8:11], s[0:1], 16")
    a.I("s_load_dwordx2 s[12:13], s[0:1], 32")
    a.I("s_load_dwordx2 s[14:15], s[0:1], 88")
    a.I("s_load_dwordx4 s[60:63], s[0:1], 48")
    a.I("s_load_dwordx2 s[64:65], s[0:1], 64")
    TID, L16 = 64, 65
    a.I(f"v_and_b32 {v(TID)}, 255, v0")
    a.I("v_lshrrev_b32 v2, 6, v0")
    a.I("v_and_b32 v0, 63, v0")
    a.I("v_readfirstlane_b32 s16, v2")
    st = Stamper(a, "l1")
    st()
    BLDS = 9 * 16384
    a.I("s_nop 0")
    code_touch(a, N, 16, 24, 60)
    a.I("s_and_b32 s17, s2, 7")
    a.I("s_lshr_b32 s18, s2, 3")
    a.I("s_and_b32 s19, s18, 7")
    a.I("s_lshr_b32 s18, s18, 3")
    a.I("s_lshl_b32 s40, s17, 2")
    a.I("s_add_u32 s18, s18, s40")
    if os.environ.get("L1MAP", "4x8") == "4x8":
        a.I("s_lshr_b32 s18, s2, 3")
        a.I("s_and_b32 s19, s18, 3")
        a.I("s_and_b32 s40, s17, 1")
        a.I("s_lshl_b32 s40, s40, 2")
        a.I("s_add_u32 s19, s19, s40")
        a.I("s_lshr_b32 s18, s18, 2")
        a.I("s_lshr_b32 s40, s17, 1")
        a.I("s_lshl_b32 s40, s40, 3")
        a.I("s_add_u32 s18, s18, s40")
    a.I("s_mov_b32 s41, 0")
    a.I("s_mul_i32 s42, s18, 6")
    a.I("s_cmp_ge_u32 s18, 11")
    a.I("s_cselect_b32 s41, 1, s41")
    a.I("s_cselect_b32 s40, 64, 0")
    a.I("s_cmp_ge_u32 s18, 21")
    a.I("s_cselect_b32 s41, 2, s41")
    a.I("s_cselect_b32 s40, 126, s40")
    a.I("s_sub_u32 s42, s42, s40")
    a.I("s_lshl_b32 s44, s19, 3")
    a.I("s_add_u32 s44, s44, s16")
    t1, t2, t3, G = 66, 67, 68, 69
    WV, AV, AR_, TB, SK, SV = 1, 3, 7, 9, 21, 22
    a.I(f"v_lshrrev_b32 {v(t1)}, 3, v0")
    a.I(f"v_lshlrev_b32 {v(G)}, 10, {v(t1)}")
    a.I(f"v_lshlrev_b32 {v(t1)}, 13, {v(t1)}")
    a.I("s_lshl_b32 s45, s16, 17")
    a.I(f"v_add_u32 {v(t1)}, s45, {v(t1)}")
    a.I(f"v_bfe_u32 {v(t2)}, v0, 4, 1")
    a.I(f"v_lshlrev_b32 {v(t2)}, 1, {v(t2)}")
    a.I(f"v_and_b32 {v(t3)}, 7, v0")
    a.I(f"v_xor_b32 {v(t2)}, {v(t2)}, {v(t3)}")
    a.I(f"v_lshl_add_u32 {v(WV)}, {v(t2)}, 4, {v(t1)}")
    a.I(f"v_xor_b32 {v(WV + 1)}, 64, {v(WV)}")
    a.I(f"v_add_u32 {v(WV + 1)}, {65536 - 1024}, {v(WV + 1)}")
    a.I("s_lshl_b32 s45, s44, 15")
    a.I(f"v_add_u32 {v(t1)}, s45, {v(G)}")
    a.I(f"v_lshrrev_b32 {v(t2)}, 4, v0")
    a.I(f"v_xor_b32 {v(t2)}, {v(t2)}, {v(t3)}")
    a.I(f"v_lshl_add_u32 {v(AV)}, {v(t2)}, 4, {v(t1)}")
    a.I(f"v_xor_b32 {v(AV + 1)}, 64, {v(AV)}")
    a.I(f"v_add_u32 {v(AV + 1)}, {8192 - 1024}, {v(AV + 1)}")
    a.I(f"v_add_u32 {v(AV + 2)}, {2 * (8192 - 1024)}, {v(AV)}")
    a.I(f"v_add_u32 {v(AV + 3)}, {2 * (8192 - 1024)}, {v(AV + 1)}")
    a.I("s_lshl_b32 s46, s16, 13")
    a.I("s_lshl_b32 s47, s16, 11")
    a.I("s_lshl_b32 s48, s42, 7")
    a.I("s_lshl_b32 s49, s44, 13")
    a.I("s_lshl_b32 s50, s42, 18")
    a.I("s_add_u32 s50, s50, s49")
    a.I("s_add_u32 s53, s48, 512")
    a.I("s_mov_b32 s43, s49")
    a.I(f"v_lshlrev_b32 {v(L16)}, 4, v0")
    a.I("s_lshl_b32 s45, s44, 16")
    a.I("v_lshrrev_b32 v23, 1, v0")
    a.I("v_lshlrev_b32 v23, 13, v23")
    a.I(f"v_and_b32 {v(t1)}, 1, v0")
    a.I(f"v_lshl_add_u32 v23, {v(t1)}, 7, v23")
    a.I("v_add_u32 v23, s45, v23")
    a.I("s_waitcnt lgkmcnt(0)")
    a.I("s_cmp_eq_u32 s41, 2")
    a.I("s_cselect_b32 s20, s4, s6")
    a.I("s_cselect_b32 s21, s5, s7")
    a.I("s_cselect_b32 s24, s8, s10")
    a.I("s_cselect_b32 s25, s9, s11")
    a.I(f"s_cselect_b32 s51, {hex(WS_Q)}, 0")
    a.I(f"s_cselect_b32 s52, {f32(QSCALE)}, 1.0")
    a.I("s_cmp_eq_u32 s41, 1")
    a.I("s_cselect_b32 s24, s12, s24")
    a.I("s_cselect_b32 s25, s13, s25")
    a.I(f"s_cselect_b32 s51, {hex(WS_V)}, s51")
    a.I("s_mov_b32 s32, s24")
    a.I("s_mov_b32 s33, s25")
    a.I(f"s_mov_b32 s40, {hex(WS_V)}")
    a.I("s_cmp_eq_u32 s18, 10")
    a.I("s_cselect_b32 s32, s12, s32")
    a.I("s_cselect_b32 s33, s13, s33")
    a.I("s_cselect_b32 s53, 0, s53")
    a.I(f"s_add_u32 s45, s49, {hex(31 << 19)}")
    a.I("s_cmp_eq_u32 s18, 31")
    a.I("s_cselect_b32 s53, s48, s53")
    a.I("s_cselect_b32 s43, s50, s43")
    a.I(f"s_cselect_b32 s40, {hex(WS_Q)}, s40")
    a.I("s_cselect_b32 s24, s12, s24")
    a.I("s_cselect_b32 s25, s13, s25")
    a.I(f"s_cselect_b32 s48, {62 * 128}, s48")
    a.I(f"s_cselect_b32 s51, {hex(WS_V)}, s51")
    a.I("s_cselect_b32 s20, s6, s20")
    a.I("s_cselect_b32 s21, s7, s21")
    a.I("s_cselect_b32 s50, s45, s50")
    a.I(f"s_mov_b32 s22, {hex(2 * MB)}")
    a.I("s_mov_b32 s23, 0x20000")
    a.I(f"s_mov_b32 s26, {hex(4 * MB)}")
    a.I("s_mov_b32 s27, 0x20000")

    def late_setup():
        a.I(f"s_mov_b32 s34, {hex(4 * MB)}")
        a.I("s_mov_b32 s35, 0x20000")
        srd(a, 28, 14, 15, 16 * MB, add="s51")
        srd(a, 36, 14, 15, 16 * MB, add="s40")
        srd(a, 56, 4, 5, 2 * MB)
        a.I("s_add_u32 s13, s48, 256")
        a.I("s_add_u32 s17, s53, 256")
        a.I("s_cmp_eq_u32 s18, 31")
        a.I("s_cselect_b32 s4, s32, s24")
        a.I("s_cselect_b32 s5, s33, s25")
        a.I("s_cselect_b32 s13, s53, s13")
        a.I("s_cselect_b32 s17, s17, s53")
        a.I(f"s_mov_b32 s6, {hex(4 * MB)}")
        a.I("s_mov_b32 s7, 0x20000")

    def w_prefetch(g):
        for th, (col, sr) in enumerate([("s13", "s[4:7]"), ("s17", "s[32:35]")]):
            g.lq.append((["s_mov_b64 exec, 0xffff"], f"buffer_load_dword {v(61 + th)}, v23, {sr}, {col} offen", "pf"))

    def addr_setup():
        a.I(f"v_lshrrev_b32 {v(G)}, 4, v0")
        a.I(f"v_bfe_u32 {v(t1)}, v0, 3, 1")
        a.I(f"v_lshlrev_b32 {v(t1)}, 4, {v(t1)}")
        a.I(f"v_and_b32 {v(t2)}, 7, v0")
        a.I(f"v_add_u32 {v(t1)}, {v(t1)}, {v(t2)}")
        a.I(f"v_bfe_u32 {v(t2)}, {v(t1)}, 1, 3")
        a.I(f"v_xor_b32 {v(t2)}, {v(t2)}, {v(G)}")
        a.I(f"v_lshlrev_b32 {v(t2)}, 4, {v(t2)}")
        a.I(f"v_lshl_add_u32 {v(AR_)}, {v(t1)}, 7, {v(t2)}")
        a.I(f"v_xor_b32 {v(AR_ + 1)}, 64, {v(AR_)}")
        a.I(f"v_add_u32 {v(AR_)}, s46, {v(AR_)}")
        a.I(f"v_add_u32 {v(AR_ + 1)}, s46, {v(AR_ + 1)}")
        a.I(f"v_lshlrev_b32 {v(t2)}, 9, {v(G)}")
        a.I(f"v_lshl_add_u32 {v(SK)}, {v(t1)}, 4, {v(t2)}")
        a.I(f"v_and_b32 {v(t3)}, 15, v0")
        a.I(f"v_lshl_add_u32 {v(SV)}, {v(t3)}, 4, {v(t2)}")
        a.I(f"v_bfe_u32 {v(t1)}, v0, 2, 2")
        a.I(f"v_lshl_add_u32 {v(t1)}, {v(G)}, 3, {v(t1)}")
        a.I(f"v_lshlrev_b32 {v(t1)}, 7, {v(t1)}")
        a.I(f"v_and_b32 {v(t2)}, 3, v0")
        a.I(f"v_lshl_add_u32 {v(t1)}, {v(t2)}, 3, {v(t1)}")
        a.I(f"v_bfe_u32 {v(t2)}, v0, 3, 2")
        a.I(f"v_lshl_add_u32 {v(t1)}, {v(t2)}, 5, {v(t1)}")
        for ct in range(4):
            a.I(f"v_xor_b32 {v(TB + ct)}, {32 * ct}, {v(t1)}")
        for ct in range(4):
            a.I(f"v_add_u32 {v(TB + 4 + ct)}, 0x10000, {v(TB + ct)}")
            a.I(f"v_add_u32 {v(TB + 8 + ct)}, 0x20000, {v(TB + ct)}")

    def b_common():
        a.I("s_and_b32 s8, s2, 7")
        a.I("s_lshl_b32 s8, s8, 3")
        a.I("s_bfe_u32 s9, s2, 0x30003")
        a.I("s_or_b32 s8, s8, s9")
        a.I("s_lshr_b32 s9, s2, 6")
        a.I("s_lshr_b32 s66, s9, 1")
        a.I("s_lshl_b32 s66, s66, 11")
        a.I("s_lshr_b32 s10, s8, 5")
        a.I("s_lshl_b32 s10, s10, 10")
        a.I("s_add_u32 s66, s66, s10")
        a.I("s_and_b32 s10, s8, 31")
        a.I("s_lshl_b32 s10, s10, 4")
        a.I("s_add_u32 s66, s66, s10")
        a.I("s_and_b32 s10, s9, 1")
        a.I("s_lshl_b32 s10, s10, 9")
        a.I("s_add_u32 s66, s66, s10")

    HL, NF, BS, F2, TM, X1, X2, X3 = 70, 71, 72, 73, 74, 78, 79, 80
    C32, NS32, AR, AI, XF, D1R, D1I, TR, TI, D2 = 84, 92, 100, 104, 108, 116, 132, 148, 158, 168
    pc8 = [PERMC(j) for j in range(8)]

    def fft_loads(vm):
        a.I("s_lshr_b32 s10, s9, 1")
        a.I("s_lshl_b32 s10, s10, 4")
        a.I("s_and_b32 s11, s9, 1")
        a.I("s_lshl_b32 s11, s11, 2")
        a.I("s_add_u32 s10, s10, s11")
        a.I("s_lshr_b32 s11, s16, 1")
        a.I("s_lshl_b32 s11, s11, 3")
        a.I("s_add_u32 s10, s10, s11")
        a.I("s_and_b32 s11, s16, 1")
        a.I("s_lshl_b32 s11, s11, 1")
        a.I("s_add_u32 s10, s10, s11")
        a.I("s_lshl_b32 s10, s10, 6")
        a.I("s_add_u32 s10, s10, s8")
        a.I("s_lshl_b32 s10, s10, 10")
        a.I(f"s_add_u32 s11, s10, {65536 - 1024}")
        a.I(f"s_add_u32 s3, s47, {BLDS}")
        a.I("s_mov_b32 m0, s3")
        a.I(f"s_mov_b32 s62, {hex(2 * MB)}")
        a.I("s_mov_b32 s63, 0x20000")
        vm.issue(f"buffer_load_dwordx4 {v(L16)}, s[60:63], s10 offen lds", "bx")
        vm.issue(f"buffer_load_dwordx4 {v(L16)}, s[60:63], s11 offen offset:1024 lds", "bx")

    def fft_compute(g):
        vm = g.vm
        a.I(f"v_lshrrev_b32 {v(X2)}, 5, v0")
        a.I(f"v_cvt_f32_u32 {v(HL)}, {v(X2)}")
        a.I(f"v_and_b32 {v(F2)}, 31, v0")
        a.I(f"v_cvt_f32_u32 {v(F2)}, {v(F2)}")
        a.I(f"v_mul_f32 {v(NF)}, {f32(1 / 32)}, {v(F2)}")
        a.I(f"v_mul_f32 {v(BS)}, {v(NF)}, {v(HL)}")
        a.I(f"v_mul_f32 {v(BS)}, {f32(8.0)}, {v(BS)}")
        nat = [16 * t + j for t in range(2) for j in range(8)]
        gen_mat(a, C32, NF, BS, nat, TM)
        a.I(f"v_add_f32 {v(BS)}, {f32(0.25)}, {v(BS)}")
        gen_mat(a, NS32, NF, BS, nat, TM)
        a.I(f"v_bfe_u32 {v(X1)}, v0, 4, 1")
        a.I(f"v_lshlrev_b32 {v(X1)}, 10, {v(X1)}")
        a.I(f"v_lshl_add_u32 {v(X1)}, {v(X2)}, 8, {v(X1)}")
        a.I(f"v_and_b32 {v(X3)}, 15, v0")
        a.I(f"v_lshl_add_u32 {v(X1)}, {v(X3)}, 3, {v(X1)}")
        a.I(f"v_add_u32 {v(X1)}, s3, {v(X1)}")
        vm.wait("bx")
        for t in range(2):
            for h in range(2):
                a.I(f"ds_read_b64_tr_b16 {v(XF + 4 * t + 2 * h, 2)}, {v(X1)} offset:{t * 512 + h * 128}")
        a.I(f"v_cvt_f32_u32 {v(X3)}, {v(X3)}")
        a.I(f"v_mul_f32 {v(NF)}, {f32(1 / 16)}, {v(X3)}")
        a.I(f"v_bfe_u32 {v(X1)}, v0, 4, 1")
        a.I(f"v_cvt_f32_u32 {v(X1)}, {v(X1)}")
        a.I(f"v_mul_f32 {v(BS)}, {v(NF)}, {v(HL)}")
        a.I(f"v_mul_f32 {v(BS)}, 4.0, {v(BS)}")
        a.I(f"v_fmamk_f32 {v(BS)}, {v(X1)}, {f32(0.25)}, {v(BS)}")
        a.I("s_waitcnt lgkmcnt(0)")
        for D, Mx in ((D1R, C32), (D1I, NS32)):
            for t in range(2):
                a.I(f"{MF} {v(D, 16)}, {v(XF + 4 * t, 4)}, {v(Mx + 4 * t, 4)}, {'0' if t == 0 else v(D, 16)}")
        gen_mat(a, AR, NF, BS, pc8, TM)
        a.I(f"v_add_f32 {v(BS)}, {f32(-0.25)}, {v(BS)}")
        gen_mat(a, AI, NF, BS, pc8, TM)
        a.I(f"v_mul_f32 {v(NF)}, {f32(1 / 512)}, {v(F2)}")
        a.I(f"v_mul_f32 {v(BS)}, {v(NF)}, {v(HL)}")
        a.I(f"v_mul_f32 {v(BS)}, 4.0, {v(BS)}")
        twiddle(a, D1R, D1I, [[j, j + 8] for j in range(8)], NF, BS, pc8, -1, TM)
        pack(a, TR, D1R, 8)
        pack(a, TI, D1I, 8)
        a.I(f"v_and_b32 {v(X3)}, 31, v0")
        a.I(f"v_lshlrev_b32 {v(X3)}, 4, {v(X3)}")
        for r in range(2):
            a.I(f"{MF} {v(D2 + 16 * r, 16)}, {v(AR, 4)}, {v(TR + 4 * r, 4)}, 0")
            a.I(f"{MF} {v(D2 + 16 * r, 16)}, {v(AI, 4)}, {v(TI + 4 * r, 4)}, {v(D2 + 16 * r, 16)}")
        a.I(f"v_lshl_add_u32 {v(X3)}, {v(X2)}, 11, {v(X3)}")
        a.I("s_lshl_b32 s10, s16, 2")
        a.I(f"s_add_u32 s11, s10, {BLDS + 8192}")
        a.I(f"v_add_u32 {v(X3)}, s11, {v(X3)}")
        a.I(f"v_mov_b32 {v(X2)}, s10")
        a.I(f"s_add_u32 s67, s66, {256 * 8192}")
        a.I(f"s_add_u32 s11, s66, {256 * 8192 + 4096}")
        srd(a, 60, 14, 15, 8 * MB, add=WS_Y)
        a.I("s_nop 1")
        for c in range(2):
            for j in range(5):
                a.I(f"v_cvt_pk_bf16_f32 {v(TR + 5 * c + j)}, {v(D2 + 8 * c + j)}, {v(D2 + 16 + 8 * c + j)}")
        for c in range(2):
            for j in range(4):
                a.I(f"ds_write_b32 {v(X3)}, {v(TR + 5 * c + j)} offset:{(c * 8 + j) * 512}")
        a.I = I0
        a.I("s_mov_b64 exec, 1")
        vm.issue(f"buffer_store_dword {v(TR + 4)}, {v(X2)}, s[60:63], s67 offen", "bs")
        vm.issue(f"buffer_store_dword {v(TR + 9)}, {v(X2)}, s[60:63], s11 offen", "bs")
        a.I("s_mov_b64 exec, -1")

    WFR, WFP, FX1, FX2 = 176, 52, 186, 187

    def filt_setup():
        a.I("s_lshr_b32 s10, s9, 1")
        a.I("s_lshl_b32 s10, s10, 5")
        a.I("s_lshr_b32 s11, s8, 5")
        a.I("s_lshl_b32 s11, s11, 4")
        a.I("s_add_u32 s10, s10, s11")
        a.I("s_and_b32 s11, s9, 1")
        a.I("s_lshl_b32 s11, s11, 2")
        a.I("s_add_u32 s10, s10, s11")
        a.I("s_lshl_b32 s10, s10, 5")
        a.I("s_and_b32 s11, s8, 31")
        a.I("s_add_u32 s10, s10, s11")
        a.I("s_mul_i32 s19, s10, 514")
        a.I(f"v_lshlrev_b32 {v(FX1)}, 1, {v(TID)}")
        a.I(f"v_and_b32 {v(FX2)}, 3, v0")
        a.I(f"v_bfe_u32 {v(t1)}, v0, 2, 1")
        a.I(f"v_lshl_add_u32 {v(FX2)}, {v(t1)}, 3, {v(FX2)}")
        a.I(f"v_mul_u32_u24 {v(FX2)}, {32 * 514}, {v(FX2)}")
        a.I(f"v_add_u32 {v(FX2)}, 512, {v(FX2)}")
        a.I("s_cmp_ge_u32 s16, 4")
        a.I("s_cselect_b32 s8, s64, s0")
        a.I("s_cselect_b32 s9, s65, s1")
        a.I(f"s_mov_b32 s10, {2048 * 514}")
        a.I("s_mov_b32 s11, 0x20000")

    def filt_loads(g):
        for j in range(8):
            g.lq.append(([f"s_add_u32 s12, s19, {PERMC(j) * 32 * 514}"],
                         f"buffer_load_ushort {v(WFR + j)}, {v(FX1)}, s[8:11], s12 offen", "wf"))
        g.lq.append(([], f"buffer_load_ushort {v(WFR + 8)}, {v(FX2)}, s[8:11], s19 offen", "wf"))

    def filt_finish(g):
        vm = g.vm
        L = [lambda: (g.flush("wf"), vm.wait("wf"))]
        for i in range(4):
            L.append(lambda i=i: a.I(f"v_lshl_or_b32 {v(WFP + i)}, {v(WFR + 1 + 2 * i)}, 16, {v(WFR + 2 * i)}"))
        L.append(lambda: a.I(f"v_lshlrev_b32 {v(YS)}, 12, {v(FX1)}"))
        L.append(lambda: a.I(f"v_lshlrev_b32 {v(FX2)}, 1, v0"))
        L.append(lambda: (a.I("s_mov_b64 exec, 0xff"),
                          vm.issue(f"buffer_store_short {v(WFR + 8)}, {v(FX2)}, s[60:63], s67 offen", "bs"),
                          a.I("s_mov_b64 exec, -1")))
        return L

    def scat(g):
        g.vm.issue(f"buffer_store_dwordx4 {v(YD, 4)}, {v(YS)}, s[60:63], s66 offen", "bs")

    def scat_next():
        for i in range(4):
            a.I(f"v_mov_b32 {v(YD + i)}, {v(WFP + i)}")
        a.I(f"s_add_u32 s66, s66, {hex(WS_WF - WS_Y)}")

    YA, YD, YS = 56, 48, 23
    ACC, RING, PK, AFB = 192, 24, 56, 64
    LOOK = 4
    AHEAD = int(os.environ.get("AHEAD", "4"))

    def AF(rt, k):
        return AFB + (k * 2 + rt) * 4

    class Gen:
        def __init__(self, passes, nmerge, vmq):
            self.passes, self.nmerge = passes, nmerge
            self.vm, self.lg = VM(a), LG(a)
            self.vm.q = list(vmq)
            self.busy, self.nxt, self.dq, self.lq = {}, 0, [], []
            self.chunks, self.frags, self.groups = [], [], {}
            for pp in range(0, len(passes), 2):
                if pp // 2 < nmerge:
                    for kc in range(4):
                        c = len(self.chunks)
                        self.chunks += [(pp, kc), (pp + 1, kc)]
                        self.groups[len(self.frags)] = [c, c + 1]
                        for ks in range(4):
                            for h in range(2):
                                self.frags += [(c + h, ks, ct) for ct in range(4)]
                else:
                    for q in range(2):
                        for kc in range(4):
                            c = len(self.chunks)
                            self.chunks.append((pp + q, kc))
                            if GRP2 == 0:
                                self.groups[len(self.frags)] = [c]
                            elif kc % 2 == 0:
                                self.groups[len(self.frags)] = [c, c + 1]
                            self.frags += [(c, ks, ct) for ks in range(4) for ct in range(4)]
            self.prev = [[], []]
            self.b1busy = True
            self.skip_boundary = False

        def blk(self, c):
            nm = 8 * self.nmerge
            if c < nm:
                return 4 + 2 * ((c // 2) % 3) + (c & 1)
            if self.nmerge == 1:
                return [6, 7, 8, 9, 0, 1, 2, 3][(c - nm) % 8]
            return [8, 9, 4, 5, 0, 1, 2, 3][(c - nm) % 8]

        def dmaW(self, now, done):
            c = self.nxt
            if c >= len(self.chunks) or c > now + AHEAD:
                return False
            b = self.blk(c)
            if b in self.busy and self.busy[b] not in done:
                return False
            if b == 9 and self.b1busy:
                return False
            if b < 4 and now < 8 * self.nmerge:
                return False
            self.busy[b] = c
            self.nxt += 1
            pp, kc = self.chunks[c]
            form, wsel, wdi, osel, odi = self.passes[pp]
            sr = "s[32:35]" if wsel else "s[24:27]"
            for q in range(2):
                pre = [f"s_add_u32 m0, s47, {hex(b * 16384)}",
                       f"s_add_u32 s45, {'s53' if wsel else 's48'}, {hex((kc << 20) + wdi * 128)}"] if q == 0 else []
                self.dq.append((pre, f"buffer_load_dwordx4 {v(WV + q)}, {sr}, s45 offen offset:{q * 1024} lds", ("W", c)))
            return True

        def pump(self, n=1):
            for _ in range(n):
                q = self.dq or self.lq
                if q:
                    pre, ins, tag = q.pop(0)
                    a.many(pre)
                    self.vm.issue(ins, tag)
                    if tag == "pf":
                        a.I("s_mov_b64 exec, -1")

        def flush(self, tag=None):
            while any(tag is None or x[2] == tag for x in self.dq + self.lq):
                self.pump()

        def dmaA(self, j):
            sr = "s[56:59]" if j >= 8 else "s[20:23]"
            k = 0
            while k < len(self.dq) and not self.dq[k][0]:
                k += 1
            for i in range(4):
                pre = [f"s_add_u32 m0, s46, {hex((j % 2) * 4096)}", f"s_mov_b32 s45, {(j % 8) * 128}"] if i == 0 else []
                self.dq.insert(k + i, (pre, f"buffer_load_dwordx4 {v(AV + i)}, {sr}, s45 offen offset:{i * 1024} lds", ("A", j)))

        def readA(self, j):
            self.flush(("A", j))
            self.vm.wait(("A", j))
            for ks in range(2):
                for x in range(2):
                    self.lg.issue(f"ds_read_b128 {v(AF(x, 2 * (j % 8) + ks), 4)}, {v(AR_ + (ks ^ x))} "
                                  f"offset:{(j % 2) * 4096 + x * 1024}", ("A", j))

        def reads(self, i, halves=(0, 1)):
            c, ks, ct = self.frags[i]
            b = self.blk(c)
            base = TB + 4 * (b // 4) + ct
            off = (b % 4) * 16384 + ks * 4096
            d = RING + 4 * slot(i)
            for h in halves:
                self.lg.issue(f"ds_read_b64_tr_b16 {v(d + 2 * h, 2)}, {v(base)} offset:{off + 512 * h}", ("W", i))

        def sync(self, grp):
            for c in grp:
                self.flush(("W", c))
            self.vm.wait([("W", c) for c in grp])
            a.I("s_barrier")
            lo = self.prev[1][0] if self.prev[1] else 0
            done = set(range(lo))
            if self.prev[1]:
                self.b1busy = False
            self.prev = [self.prev[1], grp]
            while self.dmaW(grp[0], done):
                pass

        def acc(self, pp, rt, ct):
            return ACC + 32 * (pp & 1) + 4 * (4 * rt + ct)

        def epi(self, pp):
            out = []
            form, wsel, wdi, osel, u = self.passes[pp]
            so = 54 + (pp & 1)
            sr = "s[36:39]" if osel else "s[28:31]"
            out.append(lambda: a.I(f"s_add_u32 s{so}, {'s43' if osel else 's50'}, "
                                   f"{hex(((u >> 1) * 512 * 1024 + (u & 1) * 4096) & 0xffffffff)}"))
            for q in range(4):
                pk = PK + 4 * (q % 2)
                if form == "K":
                    x, cp = divmod(q, 2)
                    srcs = [self.acc(pp, x, 2 * cp), self.acc(pp, x, 2 * cp + 1)]
                    off, va = x * 128 + cp * 2048, SK
                else:
                    srcs = [self.acc(pp, 0, q), self.acc(pp, 1, q)]
                    off, va = (q >> 1) * 2048 + (q & 1) * 256, SV
                for i in range(4):
                    src = srcs[i // 2] + 2 * (i % 2)
                    if form == "K":
                        out.append(lambda src=src: a.I(f"v_mul_f32 {v(src)}, s52, {v(src)}"))
                        out.append(lambda src=src: a.I(f"v_mul_f32 {v(src + 1)}, s52, {v(src + 1)}"))
                    out.append(lambda src=src, pk=pk, i=i: a.I(f"v_cvt_pk_bf16_f32 {v(pk + i)}, {v(src)}, {v(src + 1)}"))
                out.append(lambda pk=pk, va=va, off=off: self.vm.issue(
                    f"buffer_store_dwordx4 {v(pk, 4)}, {v(va)}, {sr}, s{so} offen offset:{off}{SP}", ("S", pp)))
            return out

        def boundary(self, pps):
            self.flush("pf")
            self.vm.wait("pf")
            a.I("s_nop 6")
            for pp in pps:
                for f in self.epi(pp):
                    f()

        def run(self, p0, p1):
            lg = self.lg
            NF_ = len(self.frags)
            NA = 8 * self.nmerge
            pend = []
            for i in range(64 * p0, 64 * p1):
                c, ks, ct = self.frags[i]
                pp, kc = self.chunks[c]
                k = 4 * kc + ks
                if i % 128 == 0 and 0 < i <= 128 * self.nmerge and not self.skip_boundary:
                    self.boundary([i // 64 - 2] + ([i // 64 - 1] if i < 128 * self.nmerge else []))
                if i % 2 == 0:
                    lg.wait([("W", i), ("W", i + 1), ("A", i // 16)])
                if i % 16 == 0 and i // 16 + 2 < NA:
                    self.dmaA(i // 16 + 2)
                wf = v(RING + 4 * slot(i), 4)
                j = i + LOOK
                for rt in range(2):
                    ac = v(self.acc(pp, rt, ct), 4)
                    af = v(AF(rt, k), 4)
                    cin = "0" if k == 0 else ac
                    if self.passes[pp][0] == "V":
                        a.I(f"{M16} {ac}, {af}, {wf}, {cin}")
                    else:
                        a.I(f"{M16} {ac}, {wf}, {af}, {cin}")
                    if j < NF_:
                        if rt == 0 and j in self.groups:
                            self.sync(self.groups[j])
                        if rt == 0 and j % 16 == 0 and j // 16 < NA:
                            self.readA(j // 16)
                        self.reads(j, (rt,))
                    if rt == 0 and pend:
                        pend.pop(0)()
                    if rt == 1 and i % 2 == 0:
                        if self.dq or self.lq:
                            self.pump(1)
                        elif pend:
                            pend.pop(0)()
                if i % 64 == 63:
                    assert not pend
                if i % 64 == 3 and i >= 128 * self.nmerge:
                    pend = self.epi(i // 64 - 1)
                if i == LATE_AT:
                    w_prefetch(self)
                    filt_loads(self)
                if i == FILT_AT:
                    pend = filt_finish(self)
                if i >= 128 and i % 128 == SCAT_AT:
                    scat(self)
                if i >= 128 and i % 128 == 127:
                    scat_next()
                if i in STF:
                    st()
            self.flush()

        def fin(self, pp):
            code_touch(a, "attn_kernel", 16, 20, 24)
            for f in self.epi(pp):
                f()
            st.dump(16, 14, tmpv=24)
            a.I("s_endpgm")


    def slot(i):
        j = i % 128
        return j % 6 if j < 108 else (j - 108) % 5

    I0 = a.I
    cnt = [0]
    gp = [None]

    def Ipump(text):
        r = I0(text)
        if text.startswith("v_") and not text.startswith("v_mfma"):
            cnt[0] += 1
            if cnt[0] % PUMP == 0 and gp[0].dq:
                a.I = I0
                gp[0].pump()
                a.I = Ipump
        return r

    b_common()
    a.I("s_mov_b64 s[0:1], s[62:63]")
    g0 = Gen([("K", 0, i, 0, i) for i in range(2)], 1, [])
    a.I("s_cmp_ge_u32 s16, 4")
    a.I(f"s_cbranch_scc1 {N}_nofl")
    fft_loads(VM(a))
    a.label(f"{N}_nofl")
    for _ in range(2):
        g0.dmaW(0, set())
    g0.dmaA(0)
    g0.flush()
    g0.dmaA(1)
    for _ in range(2):
        g0.dmaW(0, set())
    g0.flush()
    st()
    late_setup()
    addr_setup()
    g0.dmaW(0, set())
    a.I("s_cmp_ge_u32 s16, 4")
    a.I(f"s_cbranch_scc1 {N}_join")
    gf = Gen([("K", 0, i, 0, i) for i in range(2)], 1, ["bx", "bx"] + g0.vm.q)
    fft_compute(gf)
    a.label(f"{N}_join")
    filt_setup()
    if os.environ.get("L1PRIO"):
        a.I("s_cmp_lt_u32 s16, 4")
        a.I(f"s_cbranch_scc1 {N}_np")
        a.I(f"s_setprio {os.environ['L1PRIO']}")
        a.label(f"{N}_np")
    srd(a, 60, 14, 15, 8 * MB, add=WS_Y)
    vmq = list(g0.vm.q)
    st()
    stn = st.n
    def y_prep():
        a.I(f"v_lshlrev_b32 {v(YA)}, 4, {v(TID)}")
        a.I("s_lshr_b32 s12, s16, 2")
        a.I("s_lshl_b32 s12, s12, 12")
        a.I("s_add_u32 s66, s66, s12")
        a.I(f"s_add_u32 s67, s66, {256 * 8192 + WS_WF - WS_Y}")
        a.I(f"s_add_u32 s12, s12, {BLDS + 8192}")
        a.I(f"v_add_u32 {v(YA)}, s12, {v(YA)}")

    y_prep()

    def mkgen(passes, nmerge=1):
        g = Gen(passes, nmerge, vmq)
        g.busy, g.nxt, g.dq = dict(g0.busy), g0.nxt, list(g0.dq)
        st.n = stn
        return g

    def start(g):
        a.I("s_waitcnt lgkmcnt(0)")
        g.readA(0)
        g.sync(g.groups[0])
        st()
        g.lg.issue(f"ds_read_b128 {v(YD, 4)}, {v(YA)}", "y")
        for i in range(LOOK):
            g.reads(i)

    def capture(fn):
        n0 = len(a.items)
        fn()
        seg = a.items[n0:]
        del a.items[n0:]
        return seg

    def merge(s1, s2):
        import asmlib
        assert len(s1) == len(s2), (len(s1), len(s2))
        out = []
        for x, y in zip(s1, s2):
            if x[0] == "i" and x[1].text != y[1].text:
                assert x[1].text.startswith("s_waitcnt vmcnt") and y[1].text.startswith("s_waitcnt vmcnt"), (x[1].text, y[1].text)
                n = min(int(x[1].text[16:-1]), int(y[1].text[16:-1]))
                out.append(("i", asmlib.Ins(f"s_waitcnt vmcnt({n})")))
            else:
                out.append(x)
        return out

    def looped(F, lab):
        def plist(pair):
            L = []
            for pp in range(8):
                if pair == 0:
                    L.append((F, 0, pp, 0, pp))
                else:
                    rel = pp - pair
                    L.append((F, 1 if rel >= 2 else 0, rel - 2 if rel >= 2 else rel, 0, rel))
            return L
        g = mkgen(plist(0))
        start(g)
        g.run(0, 2)
        g.boundary([0])
        g.skip_boundary = True
        st()
        a.I("s_add_u32 s48, s48, 256")
        a.I(f"s_add_u32 s50, s50, {hex(512 * 1024)}")
        a.I("s_mov_b32 s44, 0")
        g.passes = plist(2)
        s1 = capture(lambda: g.run(2, 4))
        g.passes = plist(4)
        s2 = capture(lambda: g.run(4, 6))
        a.label(lab + "_loop")
        a.items += merge(s1, s2)
        if F == "K":
            a.I("s_cmp_eq_u32 s18, 10")
            a.I(f"s_cbranch_scc1 {N}_Ctail")
        a.I("s_mov_b32 s48, s53")
        a.I("s_mov_b32 s34, 0")
        a.I(f"s_add_u32 s50, s50, {hex(512 * 1024)}")
        a.I("s_add_u32 s44, s44, 1")
        a.I("s_cmp_lt_u32 s44, 2")
        a.I(f"s_cbranch_scc1 {lab}_loop")
        g.passes = plist(6)
        g.fin(5)
        return g

    a.I("s_cmp_eq_u32 s18, 31")
    a.I(f"s_cbranch_scc1 {N}_D")
    a.I("s_cmp_eq_u32 s41, 1")
    a.I(f"s_cbranch_scc1 {N}_B")
    looped("K", N + "_A")
    a.label(f"{N}_Ctail")
    gc = mkgen([("K", 0, pp, 0, pp) for pp in range(4)] + [("V", 1, 0, 1, 0), ("V", 1, 1, 1, 1)])
    capture(lambda: (start(gc), gc.run(0, 4)))
    gc.passes[3] = ("K", 0, 1, 0, 1)
    st.n = stn + 5
    gc.run(4, 6)
    gc.fin(5)
    a.label(N + "_B")
    looped("V", N + "_B2")
    a.label(N + "_D")
    gd = mkgen([("V", 0, 0, 0, 0), ("V", 0, 1, 0, 1)] + [("K", 1, i, 1, i) for i in range(4)], 2)
    start(gd)
    gd.run(0, 2)
    st()
    gd.run(2, 6)
    gd.fin(5)
    kend(a, N)
    return a, N, (256, 512, 163840)


def gen_l3():
    a = Asm()
    N = "l3_kernel"
    kstart(a, N, 256)
    a.I("s_load_dwordx2 s[4:5], s[0:1], 88")
    a.I("s_load_dwordx2 s[6:7], s[0:1], 40")
    a.I("s_load_dwordx2 s[8:9], s[0:1], 72")
    a.I("v_lshrrev_b32 v1, 6, v0")
    a.I("v_and_b32 v2, 255, v0")
    a.I("v_and_b32 v0, 63, v0")
    a.I("v_readfirstlane_b32 s16, v1")
    a.I("s_nop 0")
    a.I("s_cmp_ge_u32 s16, 4")
    a.I(f"s_cbranch_scc1 {N}_b3")
    st = Stamper(a, "l3")
    OB = int(os.environ.get('OB', '3'))
    ACC = (oproj_body3 if OB == 3 else oproj_body2)(a, N, st, bar_at=8)
    a.I("s_barrier")
    oproj_finish(a, ACC, 32768 if OB == 3 else 16384)
    st.dump(16, 4, tmpv=8)
    a.I("s_endpgm")
    a.label(f"{N}_b3")
    a.I("s_and_b32 s16, s16, 3")
    b3_body(a, 131072, 8)
    kend(a, N)
    return a, N, (256, 512, 131072 + 8192 + 64)


KERNELS = [gen_l1, lambda: gen_attn(not os.environ.get('NOB2')), gen_l3]

if __name__ == "__main__":
    p = sys.argv[1] if len(sys.argv) > 1 else os.path.join(os.path.dirname(os.path.abspath(__file__)), "..",
                                                           "cdna_kernels", NAME + ".s")
    sys.exit(1 if build(KERNELS, p) else 0)
```

```python
import sys, os, math, struct
sys.path.insert(0, os.path.dirname(os.path.abspath(__file__)))
from asmlib import Asm, VM, LG, v, s, ag

NAME = "concat_heads__compressed_kv_cla__spectral_gfnet__prompt"
MB = 1 << 20
WS_K, WS_V, WS_CTX, WS_Y, WS_WF, WS_Z, WS_Q = 0, 16 * MB, 32 * MB, 48 * MB, 52 * MB, 56 * MB, 64 * MB
WS_WO = 60 * MB
if os.environ.get('ALIAS'):
    WS_Q = WS_CTX
WS_PART = 0
WS_FLAG = 56 * MB + 2560 * 1024
YSTR = 8320
KA = dict(x=0, ckv=8, wq=16, wuk=24, wuv=32, wo=40, bx=48, wr=56, wi=64, out=72, dbg=80, ws=88)
MF = "v_mfma_f32_32x32x16_bf16"
SP = os.environ.get("SP", " sc1")


def f32(x):
    return "0x%08x" % struct.unpack("<I", struct.pack("<f", x))[0]


def srd(a, d, lo, hi, size, add=0):
    if add:
        a.I(f"s_add_u32 {s(d)}, {s(lo)}, {add if isinstance(add, str) else hex(add)}")
        a.I(f"s_addc_u32 {s(d + 1)}, {s(hi)}, 0")
    else:
        a.I(f"s_mov_b32 {s(d)}, {s(lo)}")
        a.I(f"s_mov_b32 {s(d + 1)}, {s(hi)}")
    a.I(f"s_mov_b32 {s(d + 2)}, {size if isinstance(size, str) else hex(size)}")
    a.I(f"s_mov_b32 {s(d + 3)}, 0x20000")


STAMPS = int(os.environ.get("STAMPS", "0"))
ST0 = 72


class Stamper:
    def __init__(self, a, name=""):
        self.a, self.n = a, 0
        self.on = STAMPS and os.environ.get("STAMPK", name) == name

    def __call__(self):
        if self.on and self.n < 11:
            if self.n == 0:
                self.a.I("s_memrealtime s[68:69]")
            self.a.I(f"s_memtime {s(ST0 + 2 * self.n, 2)}")
            self.n += 1

    def dump(self, wave_s, wslo, tmpv=8):
        if not self.on:
            return
        a = self.a
        a.I("s_waitcnt vmcnt(0) lgkmcnt(0)")
        a.I(f"s_memtime {s(ST0 + 2 * self.n, 2)}")
        a.I("s_memrealtime s[70:71]")
        self.n += 1
        srd(a, 96, wslo, wslo + 1, 1 * MB, add=128 * MB)
        a.I("s_lshl_b32 s100, s2, 3")
        a.I(f"s_add_u32 s100, s100, {s(wave_s)}")
        a.I("s_lshl_b32 s100, s100, 8")
        a.I("s_waitcnt lgkmcnt(0)")
        a.I(f"v_mov_b32 {v(tmpv + 1)}, 0")
        for i in range(self.n):
            a.I(f"v_mov_b32 {v(tmpv)}, {s(ST0 + 2 * i)}")
            a.I(f"buffer_store_dword {v(tmpv)}, {v(tmpv + 1)}, s[96:99], s100 offen offset:{4 * i}")
        for i, r in ((62, 68), (63, 70), (61, ST0 + 2 * (self.n - 1))):
            a.I(f"v_mov_b32 {v(tmpv)}, {s(r)}")
            a.I(f"buffer_store_dword {v(tmpv)}, {v(tmpv + 1)}, s[96:99], s100 offen offset:{4 * i}")
        a.I("s_waitcnt vmcnt(0)")


DBGT = int(os.environ.get("DBGT", "0"))
KIDX = [0, 0]


def dbg_stamp(a, end):
    k = KIDX[0]
    lab = a.uid("dbgskip%d_%d" % (k, KIDX[1]))
    KIDX[1] += 1
    if not end:
        a.I("v_readfirstlane_b32 s89, v0")
        a.I("s_nop 1")
        a.I("s_lshr_b32 s89, s89, 6")
        a.I("s_or_b32 s89, s89, s2")
    a.I("s_cmp_lg_u32 s89, 0")
    a.I(f"s_cbranch_scc1 {lab}")
    a.I("s_load_dwordx4 s[92:95], s[90:91], 80")
    a.I("s_waitcnt vmcnt(0) lgkmcnt(0)")
    a.I("s_memrealtime s[86:87]")
    a.I(f"s_add_u32 s96, s94, {hex(200 * MB)}")
    a.I("s_addc_u32 s97, s95, 0")
    a.I("s_mov_b32 s98, 256")
    a.I("s_mov_b32 s99, 0x20000")
    a.I("s_waitcnt lgkmcnt(0)")
    a.I("v_mov_b32 v254, s86")
    a.I(f"buffer_store_dword v254, off, s[96:99], 0 offset:{8 * k + 4 * end} sc0 sc1")
    a.I("s_waitcnt vmcnt(0)")
    if end and k == DBGT - 1:
        a.I("v_lshlrev_b32 v253, 2, v0")
        a.I("buffer_load_dword v254, v253, s[96:99], 0 offen sc0 sc1")
        a.I("s_mov_b32 s96, s92")
        a.I("s_mov_b32 s97, s93")
        a.I("s_waitcnt vmcnt(0)")
        a.I("buffer_store_dword v254, v253, s[96:99], 0 offen")
        a.I(f"s_sub_u32 s96, s92, {k * 512}")
        a.I("s_subb_u32 s97, s93, 0")
        a.I("s_nop 0")
        a.I("buffer_store_dword v254, v253, s[96:99], 0 offen")
    a.label(lab)


def code_touch(a, kname, wave_s, sr, vt, nw_log=3):
    if os.environ.get("NOCP"):
        return
    ref = a.uid("pcref_" + kname)
    a.I(f"s_getpc_b64 {s(sr, 2)}")
    a.label(ref)
    a.I(f"s_add_u32 {s(sr)}, {s(sr)}, {kname} - {ref}")
    a.I(f"s_addc_u32 {s(sr + 1)}, {s(sr + 1)}, ({kname} - {ref}) >> 32")
    a.I(f"s_mov_b32 {s(sr + 2)}, {kname}_end - {kname}")
    a.I(f"s_mov_b32 {s(sr + 3)}, 0x20000")
    a.I(f"s_lshr_b32 {s(sr + 4)}, s2, 3")
    a.I(f"s_lshl_b32 {s(sr + 4)}, {s(sr + 4)}, {nw_log}")
    a.I(f"s_add_u32 {s(sr + 4)}, {s(sr + 4)}, {s(wave_s)}")
    a.I(f"s_lshl_b32 {s(sr + 4)}, {s(sr + 4)}, {12 - nw_log}")
    a.I(f"v_lshlrev_b32 {v(vt)}, 7, v0")
    a.I(f"s_mov_b64 exec, {(1 << (32 >> nw_log)) - 1}")
    a.I(f"buffer_load_dword {v(vt + 1)}, {v(vt)}, {s(sr, 4)}, {s(sr + 4)} offen")
    a.I("s_mov_b64 exec, -1")


def kstart(a, name, nwg):
    a.raw(".text")
    a.raw(f".globl {name}")
    a.raw(".p2align 8")
    a.raw(f".type {name},@function")
    a.label(name)
    a.I(f"s_cmp_ge_u32 s2, {nwg}")
    a.I(f"s_cbranch_scc1 {name}_end")
    if DBGT:
        a.I("s_mov_b64 s[90:91], s[0:1]")
        dbg_stamp(a, 0)


def kend(a, name):
    a.label(name + "_end")
    a.I("s_endpgm")


def kdesc(name, nv, ns, na=0):
    nv = (nv + 7) // 8 * 8
    acc_off = nv
    nv = nv + (na + 7) // 8 * 8
    return f""".section .rodata,"a"
.p2align 6
.amdhsa_kernel {name}
  .amdhsa_next_free_vgpr {nv}
  .amdhsa_next_free_sgpr {max(ns, 16)}
  .amdhsa_accum_offset {acc_off}
  .amdhsa_group_segment_fixed_size 0
  .amdhsa_kernarg_size 96
  .amdhsa_user_sgpr_count 2
  .amdhsa_user_sgpr_kernarg_segment_ptr 1
  .amdhsa_system_sgpr_workgroup_id_x 1
  .amdhsa_float_denorm_mode_32 3
.end_amdhsa_kernel
"""


QSCALE = math.log2(math.e) / math.sqrt(128.0)


def gen_qkv():
    a = Asm()
    N = "qkvproj_kernel"
    kstart(a, N, 256)
    a.I("s_load_dwordx4 s[4:7], s[0:1], 0")
    a.I("s_load_dwordx4 s[8:11], s[0:1], 16")
    a.I("s_load_dwordx2 s[12:13], s[0:1], 32")
    a.I("s_load_dwordx2 s[14:15], s[0:1], 88")
    a.I("v_lshrrev_b32 v1, 6, v0")
    a.I("v_and_b32 v0, 63, v0")
    a.I("s_and_b32 s17, s2, 7")
    a.I("v_readfirstlane_b32 s16, v1")
    a.I("s_lshr_b32 s18, s2, 3")
    a.I("s_and_b32 s19, s18, 7")
    a.I("s_lshr_b32 s18, s18, 3")
    a.I("s_lshl_b32 s40, s17, 2")
    a.I("s_add_u32 s18, s18, s40")
    a.I("s_mov_b32 s41, 0")
    a.I("s_mul_i32 s42, s18, 6")
    a.I("s_cmp_ge_u32 s18, 11")
    a.I("s_cselect_b32 s41, 1, s41")
    a.I("s_cselect_b32 s40, 64, 0")
    a.I("s_cmp_ge_u32 s18, 21")
    a.I("s_cselect_b32 s41, 2, s41")
    a.I("s_cselect_b32 s40, 126, s40")
    a.I("s_sub_u32 s42, s42, s40")
    a.I("s_lshl_b32 s44, s19, 3")
    a.I("s_add_u32 s44, s44, s16")
    hl, b4, t1, t2 = 9, 10, 11, 12
    a.I(f"v_lshrrev_b32 {v(hl)}, 5, v0")
    a.I(f"v_bfe_u32 {v(b4)}, v0, 4, 1")
    a.I(f"v_lshrrev_b32 {v(t1)}, 3, v0")
    a.I(f"v_lshlrev_b32 {v(t1)}, 10, {v(t1)}")
    a.I("s_lshl_b32 s45, s44, 15")
    a.I(f"v_add_u32 {v(t1)}, s45, {v(t1)}")
    a.I(f"v_lshrrev_b32 {v(t2)}, 4, v0")
    a.I("v_and_b32 v13, 7, v0")
    a.I(f"v_xor_b32 {v(t2)}, {v(t2)}, v13")
    a.I(f"v_lshl_add_u32 v52, {v(t2)}, 4, {v(t1)}")
    a.I("v_xor_b32 v53, 64, v52")
    a.I(f"v_add_u32 v53, {8192 - 1024}, v53")
    a.I(f"v_add_u32 v54, {2 * (8192 - 1024)}, v52")
    a.I(f"v_add_u32 v55, {2 * (8192 - 1024)}, v53")
    a.I("v_and_b32 v13, 31, v0")
    a.I(f"v_bfe_u32 {v(t2)}, v0, 1, 3")
    a.I(f"v_xor_b32 {v(t2)}, {v(t2)}, {v(hl)}")
    a.I(f"v_lshlrev_b32 {v(t2)}, 4, {v(t2)}")
    a.I(f"v_lshl_add_u32 {v(t2)}, v13, 7, {v(t2)}")
    a.I("s_mul_i32 s46, s16, 12288")
    for t in range(4):
        a.I(f"v_xor_b32 {v(56 + t)}, {32 * t}, {v(t2)}")
    for t in range(4):
        a.I(f"v_add_u32 {v(56 + t)}, s46, {v(56 + t)}")
    a.I("v_lshrrev_b32 v2, 3, v0")
    a.I("v_lshlrev_b32 v2, 13, v2")
    a.I(f"v_lshlrev_b32 {v(t1)}, 2, {v(b4)}")
    a.I(f"v_and_b32 {v(t2)}, 7, v0")
    a.I(f"v_xor_b32 {v(t1)}, {v(t1)}, {v(t2)}")
    a.I(f"v_lshl_add_u32 v2, {v(t1)}, 4, v2")
    a.I("s_lshl_b32 s45, s16, 17")
    a.I("v_add_u32 v2, s45, v2")
    a.I(f"v_add_u32 v3, {65536 - 1024}, v2")
    a.I(f"v_bfe_u32 {v(t1)}, v0, 2, 2")
    a.I(f"v_lshl_add_u32 {v(t2)}, {v(hl)}, 3, {v(t1)}")
    a.I(f"v_lshlrev_b32 v4, 7, {v(t2)}")
    a.I(f"v_lshl_add_u32 v4, {v(b4)}, 5, v4")
    a.I(f"v_and_b32 {v(t2)}, 3, v0")
    a.I(f"v_lshl_add_u32 v4, {v(t2)}, 3, v4")
    a.I(f"v_bfe_u32 {v(t2)}, v0, 3, 1")
    a.I(f"v_lshl_add_u32 v4, {v(t2)}, 6, v4")
    a.I("v_xor_b32 v5, 64, v4")
    a.I("v_add_u32 v6, 0x10000, v4")
    a.I("v_add_u32 v7, 0x10000, v5")
    a.I("v_add_u32 v50, 0x20000, v4")
    a.I("v_add_u32 v51, 0x20000, v5")
    a.I("v_lshlrev_b32 v48, 4, v0")
    a.I("s_lshl_b32 s47, s16, 11")
    a.I("s_lshl_b32 s48, s42, 7")
    a.I("s_lshl_b32 s49, s44, 13")
    a.I("s_lshl_b32 s50, s42, 18")
    a.I("s_add_u32 s50, s50, s49")
    a.I("s_waitcnt lgkmcnt(0)")
    a.I("s_cmp_eq_u32 s41, 2")
    a.I("s_cselect_b32 s20, s4, s6")
    a.I("s_cselect_b32 s21, s5, s7")
    a.I("s_cselect_b32 s24, s8, s10")
    a.I("s_cselect_b32 s25, s9, s11")
    a.I(f"s_cselect_b32 s51, {hex(WS_Q)}, 0")
    a.I(f"s_cselect_b32 s52, {f32(QSCALE)}, 1.0")
    a.I(f"s_mov_b32 s22, {hex(2 * MB)}")
    a.I("s_mov_b32 s23, 0x20000")
    a.I(f"s_mov_b32 s26, {hex(4 * MB)}")
    a.I("s_mov_b32 s27, 0x20000")
    srd(a, 28, 14, 15, 16 * MB, add="s51")
    srd(a, 32, 12, 13, 4 * MB)
    srd(a, 36, 14, 15, 16 * MB, add=WS_V)
    srd(a, 56, 6, 7, 2 * MB)
    a.I("s_cmp_eq_u32 s18, 31")
    a.I(f"s_cbranch_scc1 {N}_D")
    a.I("s_cmp_eq_u32 s41, 1")
    a.I(f"s_cbranch_scc1 {N}_B")
    a.I("s_cmp_eq_u32 s18, 10")
    a.I(f"s_cbranch_scc1 {N}_C")

    AF, ACC, RING, PK = 64, 192, 8, 32
    LOOK = 6

    def body(passes, tag):
        vm, lg = VM(a), LG(a)
        st = Stamper(a, "qkv")
        st()
        NP = len(passes)
        NC = 4 * NP
        NM = 64 * NP
        restage = tag == "D"
        blk = {}
        free = [6, 7, 8, 9]
        nxt = [0]

        def dmaW():
            c = nxt[0]
            if c >= NC or not free:
                return False
            b = free.pop(0)
            blk[c] = b
            nxt[0] += 1
            pp, kc = divmod(c, 4)
            form, su, di = passes[pp]
            a.I(f"s_add_u32 m0, s47, {hex(b * 16384)}")
            if su is not None:
                a.I(f"s_mov_b32 s45, {hex((kc << 20) + su * 128)}")
            else:
                a.I(f"s_add_u32 s45, s48, {hex((kc << 20) + di * 128)}")
            sr = "s[32:35]" if form == "V" else "s[24:27]"
            vm.issue(f"buffer_load_dwordx4 v2, {sr}, s45 offen lds", ("W", c))
            vm.issue(f"buffer_load_dwordx4 v3, {sr}, s45 offen offset:1024 lds", ("W", c))
            return True

        def dmaA(j):
            sr = "s[56:59]" if (restage and j < 8) else "s[20:23]"
            a.I(f"s_add_u32 m0, s46, {hex((j % 3) * 4096)}")
            a.I(f"s_mov_b32 s45, {(j % 8) * 128}")
            for i in range(4):
                vm.issue(f"buffer_load_dwordx4 {v(52 + i)}, {sr}, s45 offen offset:{i * 1024} lds", ("A", j))

        def readA(j):
            vm.wait(("A", j))
            for t in range(4):
                lg.issue(f"ds_read_b128 {v(AF + 16 * (j % 8) + 4 * t, 4)}, {v(56 + t)} offset:{(j % 3) * 4096}", ("A", j))

        dmaW(); dmaA(0); dmaA(1); dmaW(); dmaA(2); dmaW(); dmaW()

        def reads(i):
            c, r = divmod(i, 16)
            t, cb = divmod(r, 2)
            b = blk[c]
            base = [4, 6, 50][b // 4] + cb
            off = (b % 4) * 16384 + t * 2048
            d = RING + 4 * (i % LOOK)
            lg.issue(f"ds_read_b64_tr_b16 {v(d, 2)}, {v(base)} offset:{off}", ("W", i))
            lg.issue(f"ds_read_b64_tr_b16 {v(d + 2, 2)}, {v(base)} offset:{off + 512}", ("W", i))

        def sync(c):
            vm.wait(("W", c))
            a.I("s_barrier")
            if c >= 2:
                free.append(blk[c - 2])
            if c == (10 if restage else 5):
                free.extend([0, 1, 2, 3, 4, 5])
            n = 0
            while n < 2 and dmaW():
                n += 1

        def epi(pp):
            out = []
            form, su, di = passes[pp]
            acc = ACC + 32 * (pp & 1)
            so = 54 + (pp & 1)
            if su is not None:
                out.append(lambda: a.I(f"s_add_u32 s{so}, s49, {hex((su >> 1) * 512 * 1024 + (su & 1) * 4096)}"))
            else:
                out.append(lambda: a.I(f"s_add_u32 s{so}, s50, {hex((di >> 1) * 512 * 1024 + (di & 1) * 4096)}"))
            sr = "s[36:39]" if form == "V" else "s[28:31]"
            for cb in range(2):
                for h in range(2):
                    q = 2 * cb + h
                    for i in range(4):
                        src = acc + 16 * cb + 8 * h + 2 * i
                        if form == "K" and tag in "AD":
                            out.append(lambda src=src: a.I(f"v_mul_f32 {v(src)}, s52, {v(src)}"))
                            out.append(lambda src=src: a.I(f"v_mul_f32 {v(src + 1)}, s52, {v(src + 1)}"))
                        out.append(lambda src=src, q=q, i=i: a.I(
                            f"v_cvt_pk_bf16_f32 {v(PK + 4 * q + i)}, {v(src)}, {v(src + 1)}"))
                    out.append(lambda q=q: vm.issue(
                        f"buffer_store_dwordx4 {v(PK + 4 * q, 4)}, v48, {sr}, s{so} offen offset:{q * 1024}{SP}", ("S", pp)))
            return out

        st()
        readA(0)
        sync(0)
        st()
        for i in range(LOOK - 2):
            reads(i)
        lg.wait(("A", 0))
        for i in range(LOOK - 2, LOOK):
            reads(i)
        pend = []
        for i in range(NM):
            c, r = divmod(i, 16)
            t, cb = divmod(r, 2)
            pp, kc = divmod(c, 4)
            k = 8 * kc + t
            if i % 2 == 0:
                lg.wait([("W", i), ("W", i + 1), ("A", i // 8)])
            if pp == 0 and i % 8 == 0 and i // 8 + 3 < (11 if restage else 8):
                dmaA(i // 8 + 3)
            if restage and 72 < i <= 128 + 8 and i % 8 == 4:
                jj = 8 + (i - 76) // 8
                lg.wait(("A", jj))
                if jj + 3 < 16:
                    dmaA(jj + 3)
            acc = v(ACC + 32 * (pp & 1) + 16 * cb, 16)
            wf = v(RING + 4 * (i % LOOK), 4)
            af = v(AF + 4 * k, 4)
            cin = "0" if k == 0 else acc
            if passes[pp][0] == "V":
                a.I(f"{MF} {acc}, {af}, {wf}, {cin}")
            else:
                a.I(f"{MF} {acc}, {wf}, {af}, {cin}")
            j = i + LOOK
            if j < NM:
                if j % 16 == 0:
                    sync(j // 16)
                if j < 64 and j % 8 == 0:
                    readA(j // 8)
                reads(j)
            if restage and 64 <= i < 128 and i % 8 == 7:
                readA(8 + (i - 64) // 8)
            if i % 64 == 63:
                st()
            if i % 64 == 6 and pp >= 1:
                pend = epi(pp - 1)
            if pend:
                pend.pop(0)()
        a.I("s_nop 11")
        for f in epi(NP - 1):
            f()
        st.dump(16, 14)
        a.I("s_endpgm")

    body([("K", None, i) for i in range(6)], "A")
    a.label(N + "_B")
    body([("V", None, i) for i in range(6)], "B")
    a.label(N + "_C")
    body([("K", None, i) for i in range(4)] + [("V", 0, 0), ("V", 1, 0)], "C")
    a.label(N + "_D")
    body([("V", 62, 0), ("V", 63, 0)] + [("K", None, i) for i in range(4)], "D")
    kend(a, N)
    return a, N, (256, 512, 163840)


def gen_attn(withb2=False):
    b2tail = withb2 and os.environ.get("B2MODE", "start") == "tail"
    if b2tail:
        withb2 = False
    a = Asm()
    N = "attn_kernel"
    O, Q, S, P, NEGM, RING = 64, 128, [160, 176], [192, 200], 208, 224
    L16, VKA, VVA, VL, VLS, E, VDA, VDB, QREL, T0, T1, T2, NINF = 1, 2, 3, 4, 5, 6, 10, 11, 12, 13, 14, 15, 48
    PK = 16
    EE = 50
    sW, sH, sP, sN, sC, sPH, sTHR, sBAR, sKO, sKM, sVM, sQS = 16, 17, 18, 19, 20, 21, 40, 41, 42, 43, 44, 45
    kstart(a, N, 256)
    a.I("s_load_dwordx2 s[4:5], s[0:1], 88")
    a.I("s_load_dwordx2 s[14:15], s[0:1], 40")
    a.I("v_lshrrev_b32 v1, 6, v0")
    a.I("v_and_b32 v0, 63, v0")
    a.I("s_and_b32 s6, s2, 7")
    a.I(f"v_readfirstlane_b32 {s(sW)}, v1")
    a.I("s_lshr_b32 s7, s2, 3")
    a.I("s_and_b32 s8, s7, 3")
    a.I("s_lshl_b32 s6, s6, 2")
    a.I(f"s_add_u32 {s(sH)}, s6, s8")
    a.I(f"s_lshr_b32 {s(sP)}, s7, 2")
    a.I(f"s_lshl_b32 s6, {s(sP)}, 2")
    a.I(f"s_sub_u32 s7, 60, s6")
    a.I(f"s_add_u32 s7, s7, {s(sW)}")
    a.I(f"s_add_u32 s8, s6, 7")
    a.I(f"s_sub_u32 s8, s8, {s(sW)}")
    a.I(f"s_cmp_ge_u32 {s(sW)}, 4")
    a.I(f"s_cselect_b32 {s(sQS)}, s8, s7")
    a.I(f"s_add_u32 {s(sN)}, {s(sQS)}, 1")
    a.I("s_sub_u32 s9, 64, s6")
    a.I(f"s_lshr_b32 {s(sBAR)}, s9, 1")
    a.I("s_lshl_b32 s9, s9, 13")
    a.I(f"s_lshl_b32 s10, {s(sH)}, 19")
    a.I(f"v_lshlrev_b32 {v(L16)}, 4, v0")
    a.I(f"s_and_b32 s11, {s(sW)}, 3")
    a.I("s_lshl_b32 s11, s11, 11")
    a.I(f"v_add_u32 {v(VDA)}, s11, {v(L16)}")
    a.I(f"v_add_u32 {v(VDB)}, 0x2000, {v(VDA)}")
    a.I(f"v_and_b32 {v(T0)}, 31, v0")
    a.I(f"v_lshrrev_b32 {v(T1)}, 5, v0")
    a.I(f"v_lshlrev_b32 {v(T1)}, 2, {v(T1)}")
    a.I(f"v_sub_u32 {v(QREL)}, {v(T0)}, {v(T1)}")
    a.I(f"v_mov_b32 {v(NINF)}, 0xff800000")
    a.I(f"s_mov_b32 {s(sTHR)}, {f32(2.0 ** 14)}")
    FLG = 7 * 16384 + 8192
    if withb2:
        a.I(f"v_mov_b32 v124, {FLG}")
        for i in range(4):
            a.I(f"v_mov_b32 {v(56 + i)}, 0")
        a.I("ds_write_b128 v124, v[56:59]")
        a.I("s_and_b32 s60, s2, 7")
        a.I("s_lshl_b32 s60, s60, 5")
        a.I("s_lshr_b32 s61, s2, 3")
        a.I("s_add_u32 s60, s60, s61")
        a.I("s_cmp_eq_u32 s2, 248")
        a.I("s_cselect_b32 s61, 4, 2")
        a.I(f"s_cmp_lt_u32 {s(sW)}, s61")
        a.I("s_cselect_b32 s23, 1, 0")
        a.I(f"s_cmp_ge_u32 {s(sW)}, 2")
        a.I("s_cselect_b32 s60, 0x100, s60")
        a.I(f"s_mov_b32 s61, {131072}")
        a.I(f"s_cselect_b32 s61, {131072 + 16384}, s61")
        a.I(f"s_and_b32 s67, {s(sW)}, 1")
    a.I("s_waitcnt lgkmcnt(0)")
    srd(a, 24, 4, 5, "s9", add="s10")
    a.I(f"s_add_u32 s12, s10, {hex(WS_V - 3 * 8192)}")
    a.I(f"s_add_u32 s13, s9, {3 * 8192}")
    srd(a, 28, 4, 5, "s13", add="s12")
    srd(a, 32, 4, 5, 16 * MB, add=WS_Q)
    srd(a, 36, 4, 5, 16 * MB, add=WS_CTX)
    st = Stamper(a, "attn")
    st()
    a.I(f"s_lshl_b32 s12, {s(sQS)}, 18")
    a.I(f"s_lshl_b32 s13, {s(sH)}, 13")
    a.I("s_add_u32 s12, s12, s13")
    a.I("s_add_u32 s13, s12, 4096")

    def q_loads(vm=None):
        for t in range(8):
            x = f"buffer_load_dwordx4 {v(Q + 4 * t, 4)}, {v(L16)}, s[32:35], s{12 + t // 4} offen offset:{(t % 4) * 1024}{os.environ.get('QP', '')}"
            vm.issue(x, "Q") if vm else a.I(x)

    if withb2:
        a.I("s_cmp_eq_u32 s23, 0")
        a.I(f"s_cbranch_scc1 {N}_nob2l")
        b2_loads(a, VM(a), 60, 67, L16, 16, 32, 62, 48)
        q_loads()
        a.label(f"{N}_nob2l")
        a.I("s_barrier")
    a.I(f"s_lshl_b32 s46, {s(sQS)}, 18")
    a.I(f"s_lshl_b32 s6, {s(sH)}, 13")
    a.I("s_add_u32 s46, s46, s6")
    a.I("s_add_u32 s47, s46, 4096")
    a.I(f"s_mov_b32 {s(sKM)}, s11")
    a.I(f"s_mov_b32 {s(sKO)}, 0")

    def dma_list(withV=True):
        l = []
        if withV:
            l += [f"s_mov_b32 m0, {s(sVM)}", None,
                  f"buffer_load_dwordx4 {v(VDA)}, s[28:31], {s(sKO)} offen lds",
                  f"buffer_load_dwordx4 {v(VDA)}, s[28:31], {s(sKO)} offen offset:1024 lds",
                  f"s_add_u32 m0, {s(sVM)}, 0x4000", None,
                  f"buffer_load_dwordx4 {v(VDB)}, s[28:31], {s(sKO)} offen lds",
                  f"buffer_load_dwordx4 {v(VDB)}, s[28:31], {s(sKO)} offen offset:1024 lds"]
        l += [f"s_mov_b32 m0, {s(sKM)}", f"s_add_u32 {s(sVM)}, {s(sKM)}, 0x2000",
              f"buffer_load_dwordx4 {v(VDA)}, s[24:27], {s(sKO)} offen lds",
              f"buffer_load_dwordx4 {v(VDA)}, s[24:27], {s(sKO)} offen offset:1024 lds",
              f"s_add_u32 m0, {s(sKM)}, 0x4000", f"s_add_u32 {s(sKM)}, {s(sKM)}, 0x8000",
              f"buffer_load_dwordx4 {v(VDB)}, s[24:27], {s(sKO)} offen lds",
              f"buffer_load_dwordx4 {v(VDB)}, s[24:27], {s(sKO)} offen offset:1024 lds",
              f"s_and_b32 {s(sKM)}, {s(sKM)}, 0x1ffff",
              f"s_add_u32 {s(sKO)}, {s(sKO)}, 0x4000"]
        return l

    def emit_dma(withV=True):
        for x in dma_list(withV):
            if "dma" in os.environ.get("ADROP", "") and x and x.endswith(" lds"):
                continue
            a.I(x or "s_nop 0")

    def mask_negm():
        for j in range(16):
            a.I(f"v_cmp_le_i32 vcc, {(j & 3) + 8 * (j >> 2)}, {v(QREL)}")
            a.I("s_nop 1")
            a.I(f"v_cndmask_b32 {v(NEGM + j)}, {v(NINF)}, {v(NEGM + j)}, vcc")
        a.I("s_nop 1")

    def rowmax(Sx, dst):
        a.I(f"v_max3_f32 {v(dst)}, {v(Sx)}, {v(Sx + 1)}, {v(Sx + 2)}")
        for j in range(3, 15, 2):
            a.I(f"v_max3_f32 {v(dst)}, {v(dst)}, {v(Sx + j)}, {v(Sx + j + 1)}")
        a.I(f"v_max_f32 {v(dst)}, {v(dst)}, {v(Sx + 15)}")
        a.I(f"v_mov_b32 {v(T2)}, {v(dst)}")
        a.I("s_nop 1")
        a.I(f"v_permlane32_swap_b32 {v(dst)}, {v(T2)}")
        a.I(f"v_max_f32 {v(dst)}, {v(dst)}, {v(T2)}")

    def role(ld):
        R = "S" if ld else "L"
        if withb2 and not ld:
            a.I("s_cmp_eq_u32 s23, 0")
            a.I(f"s_cbranch_scc1 {N}_b2no")
            a.I(f"s_and_b32 s67, {s(sW)}, 2")
            a.I("s_lshl_b32 s67, s67, 2")
            a.I(f"s_add_u32 s67, s67, {FLG}")
            a.I("v_mov_b32 v124, s67")
            a.I(f"s_bitcmp1_b32 {s(sW)}, 0")
            a.I(f"s_cbranch_scc1 {N}_b2w1")
            rmap = [56, 57, 58, 59, 60, 61, 62, 120, 63, 16, 24, 32, 40, 64, 72, 80, 88, 104, 160, 176, 192, 208, 224]
            for own in range(2):
                vmb = VM(a)
                if own:
                    a.label(f"{N}_b2w1")
                ex = [0]

                def pair_sync():
                    ex[0] += 1
                    lab = a.uid(f"{N}_spin")
                    a.I(f"v_mov_b32 v125, {ex[0]}")
                    a.I(f"ds_write_b32 v124, v125 offset:{4 * own}")
                    a.label(lab)
                    a.I(f"ds_read_b32 v126, v124 offset:{4 * (1 - own)}")
                    a.I("s_waitcnt lgkmcnt(0)")
                    a.I("v_readfirstlane_b32 s67, v126")
                    a.I("s_nop 0")
                    a.I(f"s_cmp_lt_u32 s67, {ex[0]}")
                    a.I(f"s_cbranch_scc1 {lab}")
                b2_body(a, own, 60, 61, pair_sync, vmb, S0=62, SR=48, slice_len=10 ** 9, rmap=rmap, preloaded=True,
                        st=st if os.environ.get("B2ST") else (lambda: None))
                if os.environ.get("B2ST"):
                    st()
                    st.n -= 5 * (1 - own)
                assert vmb.q[-5:] == ["Q", "Z", "Z", "Z", "Z"] or "Q" not in vmb.q
                a.I(f"s_branch {N}_b2done")
            a.label(f"{N}_b2no")
        def inits(tag):
            for j in range(16):
                a.I(f"v_mov_b32 {v(NEGM + j)}, 0")
            a.I(f"s_cmp_lg_u32 {s(sN)}, 1")
            a.I(f"s_cbranch_scc1 {N}_{R}_nm1{tag}")
            mask_negm()
            a.label(f"{N}_{R}_nm1{tag}")
            for j in range(64):
                a.I(f"v_mov_b32 {v(O + j)}, 0")
            for j in range(8):
                a.I(f"v_mov_b32 {v(P[1] + j)}, 0")

        inits("a")
        q_loads()
        if ld:
            emit_dma(withV=False)
            emit_dma()
        if withb2 and not ld:
            a.I("s_waitcnt vmcnt(0)")
            a.I(f"s_branch {N}_b2join")
            a.label(f"{N}_b2done")
            inits("b")
            a.I("s_waitcnt vmcnt(4)")
            a.label(f"{N}_b2join")
        a.I(f"v_mov_b32 {v(VL)}, 0")
        a.I(f"v_mov_b32 {v(VLS)}, 0")
        a.I(f"v_mov_b32 {v(VKA)}, {v(L16)}")
        a.I(f"v_mov_b32 {v(VVA)}, {v(L16)}")
        if os.environ.get("PRIO") and not ld:
            a.I(f"s_setprio {os.environ['PRIO']}")
        if ld or not withb2:
            a.I(f"s_waitcnt vmcnt({6 if ld else 0})")
        a.I("s_barrier")
        st()
        for t in range(8):
            a.I(f"ds_read_b128 {v(RING + 4 * t, 4)}, {v(L16)} offset:{t * 1024}")
        dl = [x or "s_nop 0" for x in dma_list()] if ld else []
        for t in range(8):
            if t % 4 == 0:
                a.I("s_waitcnt lgkmcnt(4)")
            a.I(f"{MF} {v(S[0], 16)}, {v(RING + 4 * t, 4)}, {v(Q + 4 * t, 4)}, {v(NEGM if t == 0 else S[0], 16)}")
            a.I(f"ds_read_b128 {v(RING + 4 * t, 4)}, {v(L16)} offset:{16384 + t * 1024}")
            for x in dl[:3]:
                a.I(x)
            dl = dl[3:]
        assert not dl
        if ld:
            emit_dma()
        else:
            a.I("s_nop 11")
        rowmax(S[0], T0)
        for j in range(16):
            a.I(f"v_sub_f32 {v(S[0] + j)}, {v(S[0] + j)}, {v(T0)}")
        for j in range(16):
            a.I(f"v_sub_f32 {v(NEGM + j)}, 0, {v(T0)}")
        a.I(f"s_mov_b32 {s(sPH)}, 0")
        a.I(f"s_sub_u32 {s(sC)}, {s(sN)}, 3")
        a.I(f"s_cbranch_scc0 {N}_{R}_it0")
        a.I(f"s_mov_b32 {s(sPH)}, 1")
        a.I(f"s_sub_u32 {s(sC)}, {s(sN)}, 1")
        a.I(f"s_cmp_lg_u32 {s(sN)}, 2")
        a.I(f"s_cbranch_scc1 {N}_{R}_it0")
        mask_negm()

        def iteration(par):
            gaps = [[] for _ in range(16)]
            pre = [[] for _ in range(16)]
            mf = []
            Sc, Sn, Pc, Pp = S[par], S[1 - par], P[par], P[1 - par]
            e = lambda j: v(EE + (j % 6))
            for pos in range(16):
                r = v(RING + 4 * (pos & 7), 4)
                if pos < 8:
                    mf.append(f"{MF} {v(Sn, 16)}, {r}, {v(Q + 4 * pos, 4)}, {v(NEGM if pos == 0 else Sn, 16)}")
                    ks, dt = divmod(pos, 4)
                    gaps[pos].append(f"ds_read_b128 {r}, {v(VVA)} offset:{8192 + par * 16384 + (2 * dt + ks) * 1024}")
                else:
                    ks, dt = divmod(pos - 8, 4)
                    mf.append(f"{MF} {v(O + 16 * dt, 16)}, {r}, {v(Pp + 4 * ks, 4)}, {v(O + 16 * dt, 16)}")
                    gaps[pos].append(f"ds_read_b128 {r}, {v(VKA)} offset:{par * 16384 + (pos - 8) * 1024}")
                if pos % 4 == 0:
                    pre[pos].append("s_waitcnt lgkmcnt(4)")
            early = int(os.environ.get("EARLY", "1"))
            if early:
                eg = [0, 0, 1, 2, 2, 3, 4, 5, 6, 7, 8, 9, 10, 11, 12, 13]
            else:
                eg = [0] + list(range(15))
            gaps[0].append(f"v_add_f32 {v(VL)}, {v(VL)}, {v(VLS)}")
            for j in range(16):
                gaps[eg[j]].append(f"v_exp_f32 {e(j)}, {v(Sc + j)}")
            for j in range(1, 16):
                g = eg[j] + 1
                if j == 1:
                    gaps[g].append(f"v_add_f32 {v(VLS)}, {e(0)}, {e(1)}")
                else:
                    gaps[g].append(f"v_add_f32 {v(VLS)}, {v(VLS)}, {e(j)}")
                if j % 2 == 1:
                    gaps[g + (1 if (early and j == 15) else 0)].append(f"v_cvt_pk_bf16_f32 {v(Pc + j // 2)}, {e(j - 1)}, {e(j)}")
            if par == 0:
                gaps[2].append(f"v_add_u32 {v(VKA)}, 0x8000, {v(VKA)}")
                gaps[6].append(f"v_and_b32 {v(VKA)}, 0x1ffff, {v(VKA)}")
                bar = ["s_barrier", f"s_sub_u32 {s(sBAR)}, {s(sBAR)}, 1"]
                if ld:
                    bar = ["s_waitcnt vmcnt(14)"] + bar
                gaps[4] = bar + gaps[4]
                if ld:
                    d = [x for x in dma_list() if x]
                    m0a, l1, l2, m0b, l3, l4, m0c, svm, l5, l6, m0d, skm, l7, l8, sand, sko = d
                    gaps[5] = [m0a] + gaps[5] + [l1]
                    gaps[6] += [l2, m0b]
                    gaps[7] += [l3]
                    gaps[8] += [l4, m0c]
                    gaps[9] += [svm, l5]
                    gaps[10] += [l6, m0d]
                    gaps[11] += [l7]
                    gaps[12] += [l8, skm]
                    gaps[13] += [sand, sko]
            else:
                gaps[10].append(f"v_mov_b32 {v(VVA)}, {v(VKA)}")
            gaps[14].append(f"s_sub_u32 {s(sC)}, {s(sC)}, 1")
            gaps[14 if early else 15].append(f"v_cmp_nge_f32 vcc, {s(sTHR)}, {v(VLS)}")
            drop = os.environ.get("ADROP", "").split(",")
            for pos in range(16):
                if "bar" in drop:
                    gaps[pos] = [x for x in gaps[pos] if x != "s_barrier"]
                if "dma" in drop:
                    gaps[pos] = [x for x in gaps[pos] if not x.endswith(" lds")]
                if "rd" in drop:
                    gaps[pos] = [x for x in gaps[pos] if not x.startswith("ds_read")]
                if "valu" in drop:
                    gaps[pos] = [x for x in gaps[pos] if not (x.startswith("v_exp") or x.startswith("v_cvt") or x.startswith("v_add_f32"))]
                if "e64" in drop:
                    gaps[pos] = [x.replace("v_exp_f32 ", "v_exp_f32_e64 ").replace("v_add_f32 ", "v_add_f32_e64 ") for x in gaps[pos]]
                a.many(pre[pos])
                a.I(mf[pos])
                a.many(gaps[pos])
            if "br" not in drop:
                a.I(f"s_cbranch_vccnz {N}_{R}_slow{par}")
            a.label(f"{N}_{R}_back{par}")
            a.I(f"s_cbranch_scc1 {N}_{R}_spec{par}")

        if os.environ.get("PRIO") and not ld:
            pass
        if os.environ.get("AALIGN"):
            a.raw(".p2align 6")
            for _ in range(int(os.environ["AALIGN"]) - 1):
                a.I("s_nop 0")
        a.label(f"{N}_{R}_it0")
        iteration(0)
        a.label(f"{N}_{R}_it1")
        iteration(1)
        a.I(f"s_branch {N}_{R}_it0")

        def svc():
            lab = a.uid(f"{N}_{R}_svc")
            a.I(f"s_cmp_eq_u32 {s(sBAR)}, 0")
            a.I(f"s_cbranch_scc1 {lab}")
            if ld:
                a.I("s_waitcnt vmcnt(14)")
            if "bar" not in os.environ.get("ADROP", ""):
                a.I("s_barrier")
            a.I(f"s_sub_u32 {s(sBAR)}, {s(sBAR)}, 1")
            if ld:
                emit_dma()
            a.label(lab)

        for par in range(2):
            Sc, Sn, Pc = S[par], S[1 - par], P[par]
            a.label(f"{N}_{R}_slow{par}")
            a.I("s_nop 15")
            rowmax(Sc, T0)
            a.I(f"v_max_f32 {v(T0)}, 0, {v(T0)}")
            a.I(f"v_exp_f32_e64 {v(T1)}, -{v(T0)}")
            for j in range(16):
                a.I(f"v_sub_f32 {v(NEGM + j)}, {v(NEGM + j)}, {v(T0)}")
                a.I(f"v_sub_f32 {v(Sc + j)}, {v(Sc + j)}, {v(T0)}")
                a.I(f"v_sub_f32 {v(Sn + j)}, {v(Sn + j)}, {v(T0)}")
            for j in range(64):
                a.I(f"v_mul_f32 {v(O + j)}, {v(O + j)}, {v(T1)}")
            a.I(f"v_mul_f32 {v(VL)}, {v(VL)}, {v(T1)}")
            a.I(f"v_mov_b32 {v(VLS)}, 0")
            for i in range(8):
                a.I(f"v_exp_f32 {v(E)}, {v(Sc + 2 * i)}")
                a.I(f"v_exp_f32 {v(E + 1)}, {v(Sc + 2 * i + 1)}")
                a.I("s_nop 0")
                a.I(f"v_add_f32 {v(VLS)}, {v(VLS)}, {v(E)}")
                a.I(f"v_add_f32 {v(VLS)}, {v(VLS)}, {v(E + 1)}")
                a.I(f"v_cvt_pk_bf16_f32 {v(Pc + i)}, {v(E)}, {v(E + 1)}")
            a.I("s_nop 1")
            a.I(f"s_branch {N}_{R}_back{par}")
            a.label(f"{N}_{R}_spec{par}")
            a.I(f"s_cmp_lg_u32 {s(sPH)}, 0")
            a.I(f"s_cbranch_scc1 {N}_{R}_exit{par}")
            a.I(f"s_mov_b32 {s(sPH)}, 1")
            a.I(f"s_mov_b32 {s(sC)}, 1")
            mask_negm()
            a.I(f"s_branch {N}_{R}_it{1 - par}")
            a.label(f"{N}_{R}_exit{par}")
            a.I("s_waitcnt lgkmcnt(0)")
            for pos in range(8):
                ks, dt = divmod(pos, 4)
                a.I(f"ds_read_b128 {v(RING + 4 * pos, 4)}, {v(VVA)} offset:{8192 + (1 - par) * 16384 + (2 * dt + ks) * 1024}")
            a.I(f"v_add_f32 {v(VL)}, {v(VL)}, {v(VLS)}")
            for pos in range(8):
                ks, dt = divmod(pos, 4)
                a.I(f"s_waitcnt lgkmcnt({7 - pos})")
                a.I(f"{MF} {v(O + 16 * dt, 16)}, {v(RING + 4 * pos, 4)}, {v(Pc + 4 * ks, 4)}, {v(O + 16 * dt, 16)}")
            if par == 0:
                a.I(f"s_branch {N}_{R}_epi")
        a.label(f"{N}_{R}_epi")
        st()
        svc()
        if ld and (withb2 or b2tail):
            a.I(f"s_and_b32 s53, {s(sW)}, 3")
            code_touch(a, "l3_kernel", 53, 48, EE + 2, nw_log=2)
            srd(a, 48, 4, 5, 64 * 128, add=WS_FLAG)
            a.I("s_lshl_b32 s52, s2, 7")
            a.I(f"v_lshlrev_b32 {v(EE)}, 2, v0")
            a.I(f"v_mov_b32 {v(EE + 1)}, 0")
            a.I("s_mov_b64 exec, 15")
            a.I(f"buffer_store_dword {v(EE + 1)}, {v(EE)}, s[48:51], s52 offen")
            a.I("s_mov_b64 exec, -1")
        a.I(f"v_mov_b32 {v(T2)}, {v(VL)}")
        a.I("s_nop 1")
        a.I(f"v_permlane32_swap_b32 {v(VL)}, {v(T2)}")
        a.I(f"v_add_f32 {v(VL)}, {v(VL)}, {v(T2)}")
        a.I(f"v_rcp_f32 {v(T0)}, {v(VL)}")
        a.I("s_nop 7")
        for dt in range(4):
            for h in range(2):
                q = 2 * dt + h
                for i in range(4):
                    src = O + 16 * dt + 8 * h + 2 * i
                    a.I(f"v_mul_f32 {v(src)}, {v(src)}, {v(T0)}")
                    a.I(f"v_mul_f32 {v(src + 1)}, {v(src + 1)}, {v(T0)}")
                    a.I(f"v_cvt_pk_bf16_f32 {v(PK + 4 * q + i)}, {v(src)}, {v(src + 1)}")
                a.I(f"buffer_store_dwordx4 {v(PK + 4 * q, 4)}, {v(L16)}, s[36:39], s{46 + q // 4} offen offset:{(q % 4) * 1024}{SP}")
            if dt == 1:
                svc()
        if ld and b2tail:
            a.I(f"s_lshl_b32 s60, {s(sH)}, 2")
            a.I(f"s_add_u32 s60, s60, {s(sP)}")
            a.I("s_lshl_b32 s60, s60, 1")
            a.I(f"s_bfe_u32 s61, {s(sW)}, 0x10001")
            a.I("s_add_u32 s60, s60, s61")
            a.I(f"s_cmp_lt_u32 {s(sP)}, 4")
            a.I(f"s_cbranch_scc1 {N}_b2go")
            a.I("s_cmp_lg_u32 s60, 8")
            a.I(f"s_cbranch_scc1 {N}_{R}_tail")
            a.I("s_movk_i32 s60, 0x100")
            a.label(f"{N}_b2go")
            a.I("s_lshl_b32 s61, s61, 14")
            a.I(f"s_add_u32 s61, s61, {131072}")
            a.I(f"s_lshl_b32 s62, {s(sP)}, 2")
            a.I("s_sub_u32 s62, 28, s62")
            a.label(f"{N}_b2al")
            a.I(f"s_cmp_le_u32 {s(sBAR)}, s62")
            a.I(f"s_cbranch_scc1 {N}_b2st")
            a.I("s_waitcnt vmcnt(14)")
            a.I("s_barrier")
            a.I(f"s_sub_u32 {s(sBAR)}, {s(sBAR)}, 1")
            emit_dma()
            a.I(f"s_branch {N}_b2al")
            a.label(f"{N}_b2st")
            a.I(f"s_bitcmp1_b32 {s(sW)}, 0")
            a.I(f"s_cbranch_scc1 {N}_b2w1")
            for own in range(2):
                vmb = VM(a)
                nsv = [0]

                def svcb():
                    nsv[0] += 1
                    a.I("s_waitcnt vmcnt(14)")
                    vmb.q = vmb.q[-14:]
                    a.I("s_barrier")
                    a.I(f"s_sub_u32 {s(sBAR)}, {s(sBAR)}, 1")
                    for x in dma_list():
                        if x and x.startswith("buffer"):
                            vmb.issue(x, "dma")
                        else:
                            a.I(x or "s_nop 0")
                if own:
                    a.label(f"{N}_b2w1")
                b2_body(a, own, 60, 61, svcb, vmb, R0=16, S0=62, SR=48, slice_len=int(os.environ.get("SLICE", "90")))
                assert nsv[0] <= 12, nsv
                print("b2 svc slices", nsv[0])
                if not own:
                    a.I(f"s_branch {N}_{R}_tail")
        if ld:
            WT = int(os.environ.get("WOT", "0"))
            if withb2 and WT:
                srd(a, 48, 4, 5, 4 * MB, add=WS_WO)
                a.I("s_lshr_b32 s52, s2, 3")
                a.I("s_lshl_b32 s52, s52, 17")
                a.I("s_lshl_b32 s53, s11, 4")
                a.I("s_add_u32 s52, s52, s53")
                a.I("s_add_u32 s53, s52, 0x8000")
                a.I(f"v_lshlrev_b32 {v(EE)}, 7, v0")
            a.label(f"{N}_{R}_tail")
            if withb2 and WT:
                a.I(f"s_cmp_gt_u32 {s(sBAR)}, {WT}")
                a.I(f"s_cbranch_scc1 {N}_notouch")
                a.label(f"{N}_touch")
                a.I("s_cmp_ge_u32 s52, s53")
                a.I(f"s_cbranch_scc1 {N}_notouch")
                a.I(f"buffer_load_dword {v(EE + 1)}, {v(EE)}, s[48:51], s52 offen")
                a.I("s_add_u32 s52, s52, 0x2000")
                a.I(f"s_cmp_eq_u32 {s(sBAR)}, 0")
                a.I(f"s_cbranch_scc1 {N}_touch")
                a.label(f"{N}_notouch")
            a.I(f"s_cmp_eq_u32 {s(sBAR)}, 0")
            a.I(f"s_cbranch_scc1 {N}_{R}_done")
            a.I("s_waitcnt vmcnt(14)")
            a.I("s_barrier")
            a.I(f"s_sub_u32 {s(sBAR)}, {s(sBAR)}, 1")
            emit_dma()
            a.I(f"s_branch {N}_{R}_tail")
            a.label(f"{N}_{R}_done")
        n0 = st.n
        st.dump(sW, 4, tmpv=T0)
        st.n = n0 - 2
        a.I("s_endpgm")

    a.I(f"s_cmp_ge_u32 {s(sW)}, 4")
    a.I(f"s_cbranch_scc1 {N}_short")
    role(False)
    a.label(f"{N}_short")
    role(True)
    kend(a, N)
    return a, N, (256, 512, 163840 if (withb2 or b2tail) else 131072)


def oproj_body(a, N, st, bar_at=None):
    ACC, CR, AFR = 64, 128, 192
    DEPTH = 8
    L16, L16B, VD0, VD1, TB = 1, 2, 3, 4, 5
    a.I("s_and_b32 s10, s2, 7")
    a.I("s_lshr_b32 s11, s2, 3")
    a.I("s_and_b32 s12, s11, 3")
    a.I("s_lshl_b32 s10, s10, 2")
    a.I("s_add_u32 s17, s10, s12")
    a.I("s_lshr_b32 s18, s11, 2")
    if os.environ.get("OPX") == "same":
        a.I("s_mov_b32 s17, 0")
        a.I("s_mov_b32 s18, 0")
    if os.environ.get("OPX") == "map2":
        a.I("s_and_b32 s10, s2, 3")
        a.I("s_lshl_b32 s10, s10, 3")
        a.I("s_and_b32 s12, s11, 7")
        a.I("s_add_u32 s17, s10, s12")
        a.I("s_bfe_u32 s10, s2, 0x10002")
        a.I("s_lshl_b32 s10, s10, 2")
        a.I("s_lshr_b32 s12, s11, 3")
        a.I("s_add_u32 s18, s10, s12")
    a.I(f"v_lshlrev_b32 {v(L16)}, 4, v0")
    a.I(f"v_add_u32 {v(L16B)}, 0x40000, {v(L16)}")
    a.I("v_lshrrev_b32 v8, 3, v0")
    a.I("v_lshlrev_b32 v8, 10, v8")
    a.I("v_bfe_u32 v9, v0, 4, 1")
    a.I("v_lshlrev_b32 v10, 2, v9")
    a.I("v_and_b32 v11, 7, v0")
    a.I("v_xor_b32 v10, v10, v11")
    a.I(f"v_lshl_add_u32 {v(VD0)}, v10, 4, v8")
    a.I("s_lshl_b32 s10, s18, 7")
    a.I(f"v_add_u32 {v(VD0)}, s10, {v(VD0)}")
    a.I(f"v_add_u32 {v(VD1)}, {8192 - 1024}, {v(VD0)}")
    a.I("v_lshrrev_b32 v8, 5, v0")
    a.I("v_bfe_u32 v10, v0, 2, 2")
    a.I("v_lshl_add_u32 v8, v8, 2, v10")
    a.I(f"v_lshlrev_b32 {v(TB)}, 7, v8")
    a.I(f"v_lshl_add_u32 {v(TB)}, v9, 5, {v(TB)}")
    a.I("v_and_b32 v10, 3, v0")
    a.I(f"v_lshl_add_u32 {v(TB)}, v10, 3, {v(TB)}")
    a.I("v_bfe_u32 v10, v0, 3, 1")
    a.I(f"v_lshl_add_u32 {v(TB)}, v10, 6, {v(TB)}")
    a.I("s_lshl_b32 s19, s16, 14")
    a.I(f"v_add_u32 {v(TB)}, s19, {v(TB)}")
    a.I(f"v_xor_b32 {v(TB + 1)}, 64, {v(TB)}")
    a.I("s_lshl_b32 s40, s17, 19")
    a.I("s_lshl_b32 s10, s16, 16")
    a.I("s_add_u32 s40, s40, s10")
    a.I("s_lshl_b32 s41, s16, 20")
    ROT = int(os.environ.get("ROT", "0"))
    if ROT:
        a.I("s_and_b32 s45, s2, 7")
        a.I(f"s_mul_i32 s45, s45, {ROT}")
    a.I("s_waitcnt lgkmcnt(0)")
    srd(a, 20, 4, 5, 16 * MB, add=WS_CTX)
    srd(a, 24, 6, 7, 4 * MB)
    srd(a, 28, 8, 9, 4 * MB)
    vm, lg = VM(a), LG(a)
    st()

    def loads(g):
        sl = g % DEPTH
        a.I(f"s_add_u32 m0, s19, {sl * 2048}")
        if ROT:
            if g % 4 == 0:
                a.I(f"s_add_u32 s44, s45, {g}")
                a.I("s_and_b32 s44, s44, 63")
                a.I("s_lshl_b32 s46, s44, 14")
                a.I("s_add_u32 s46, s46, s41")
                a.I("s_lshl_b32 s44, s44, 10")
            a.I(f"s_add_u32 s42, s46, {hex((g % 4) * 16384)}")
        else:
            a.I(f"s_add_u32 s42, s41, {hex(g * 16384)}")
        vm.issue(f"buffer_load_dwordx4 {v(VD0)}, s[24:27], s42 offen lds", g)
        vm.issue(f"buffer_load_dwordx4 {v(VD1)}, s[24:27], s42 offen offset:1024 lds", g)
        if g % 4 == 0:
            a.I(f"s_add_u32 s43, s40, {'s44' if ROT else hex(g * 1024)}")
        vm.issue(f"buffer_load_dwordx4 {v(CR + 8 * sl, 4)}, {v(L16)}, s[20:23], s43 offen offset:{(g % 4) * 1024}", g)
        vm.issue(f"buffer_load_dwordx4 {v(CR + 8 * sl + 4, 4)}, {v(L16B)}, s[20:23], s43 offen offset:{(g % 4) * 1024}", g)

    def trs(g):
        sl = g % DEPTH
        vm.wait(g)
        for cb in range(2):
            d = AFR + 8 * (g & 1) + 4 * cb
            lg.issue(f"ds_read_b64_tr_b16 {v(d, 2)}, {v(TB + cb)} offset:{sl * 2048}", g)
            lg.issue(f"ds_read_b64_tr_b16 {v(d + 2, 2)}, {v(TB + cb)} offset:{sl * 2048 + 1024}", g)

    for g in range(DEPTH):
        loads(g)
    st()
    trs(0)
    st()
    for g in range(64):
        if g + 1 < 64:
            trs(g + 1)
        lg.wait(g)
        sl = g % DEPTH
        for qt in range(2):
            for cb in range(2):
                acc = v(ACC + 16 * (2 * qt + cb), 16)
                a.I(f"{MF} {acc}, {v(AFR + 8 * (g & 1) + 4 * cb, 4)}, {v(CR + 8 * sl + 4 * qt, 4)}, {'0' if g == 0 else acc}")
        if g + DEPTH < 64:
            loads(g + DEPTH)
        if g == bar_at:
            a.I("s_barrier")
    st()
    a.I(f"v_add_u32 v8, s19, {v(L16)}")
    a.I("s_nop 11")
    for tl in range(4):
        for jq in range(4):
            a.I(f"ds_write_b128 v8, {v(ACC + 16 * tl + 4 * jq, 4)} offset:{(tl * 4 + jq) * 1024}")
    a.I("v_lshrrev_b32 v9, 5, v0")
    a.I("v_and_b32 v10, 31, v0")
    a.I("v_lshlrev_b32 v10, 4, v10")
    a.I("v_lshl_add_u32 v9, v9, 13, v10")
    a.I("s_lshl_b32 s10, s16, 11")
    a.I("v_add_u32 v9, s10, v9")
    a.I("s_lshl_b32 s11, s17, 17")
    a.I("s_lshl_b32 s12, s18, 7")
    a.I("s_add_u32 s11, s11, s12")
    a.I("s_lshl_b32 s12, s16, 5")
    a.I("s_add_u32 s11, s11, s12")
    a.I("v_lshlrev_b32 v10, 11, v0")
    a.I("s_waitcnt lgkmcnt(0)")
    return ACC


def oproj_body2(a, N, st, bar_at=None):
    DEPTH = int(os.environ.get("ODEPTH", "8"))
    ACC, CR = 192 - 16 * DEPTH, 256 - 16 * DEPTH
    L16, L16B = 1, 2
    a.I("s_and_b32 s10, s2, 7")
    a.I("s_lshr_b32 s11, s2, 3")
    a.I("s_and_b32 s12, s11, 3")
    a.I("s_lshl_b32 s10, s10, 2")
    a.I("s_add_u32 s17, s10, s12")
    a.I("s_lshr_b32 s18, s11, 2")
    if os.environ.get("OPX") == "same":
        a.I("s_mov_b32 s17, 0")
        a.I("s_mov_b32 s18, 0")
    if os.environ.get("OPX") == "sameq":
        a.I("s_and_b32 s17, s17, 3")
    if os.environ.get("OPX") == "map2":
        a.I("s_and_b32 s10, s2, 3")
        a.I("s_lshl_b32 s10, s10, 3")
        a.I("s_and_b32 s12, s11, 7")
        a.I("s_add_u32 s17, s10, s12")
        a.I("s_bfe_u32 s10, s2, 0x10002")
        a.I("s_lshl_b32 s10, s10, 2")
        a.I("s_lshr_b32 s12, s11, 3")
        a.I("s_add_u32 s18, s10, s12")
    a.I(f"v_lshlrev_b32 {v(L16)}, 4, v0")
    a.I(f"v_add_u32 {v(L16B)}, 0x40000, {v(L16)}")
    a.I("s_lshl_b32 s19, s16, 14")
    a.I("s_lshl_b32 s40, s17, 19")
    a.I("s_lshl_b32 s10, s16, 16")
    a.I("s_add_u32 s40, s40, s10")
    a.I("s_lshl_b32 s41, s18, 19")
    a.I("s_lshl_b32 s10, s16, 17")
    a.I("s_add_u32 s41, s41, s10")
    a.I("s_waitcnt lgkmcnt(0)")
    srd(a, 20, 4, 5, 16 * MB, add=WS_CTX)
    srd(a, 24, 4, 5, 4 * MB, add=WS_WO)
    srd(a, 28, 8, 9, 4 * MB)
    vm = VM(a)
    st()

    def loads(g):
        sl = g % DEPTH
        L = []
        if g % 2 == 0:
            L.append(lambda: a.I(f"s_add_u32 s42, s41, {hex(g * 2048)}"))
        if g % 4 == 0:
            L.append(lambda: a.I(f"s_add_u32 s43, s40, {hex(g * 1024)}"))
        for cb in range(2):
            L.append(lambda cb=cb: vm.issue(f"buffer_load_dwordx4 {v(CR + 16 * sl + 4 * cb, 4)}, {v(L16)}, s[24:27], s42 offen "
                                            f"offset:{(g % 2) * 2048 + cb * 1024}", g))
        for qt in range(2):
            L.append(lambda qt=qt: vm.issue(f"buffer_load_dwordx4 {v(CR + 16 * sl + 8 + 4 * qt, 4)}, {v(L16 + qt)}, s[20:23], s43 offen "
                                            f"offset:{(g % 4) * 1024}", g))
        return L

    for g in range(DEPTH):
        for f in loads(g):
            f()
    st()
    st()
    for g in range(64):
        vm.wait(g)
        sl = g % DEPTH
        for qt in range(2):
            for cb in range(2):
                acc = v(ACC + 16 * (2 * qt + cb), 16)
                a.I(f"{MF} {acc}, {v(CR + 16 * sl + 4 * cb, 4)}, {v(CR + 16 * sl + 8 + 4 * qt, 4)}, {'0' if g == 0 else acc}")
        if g + DEPTH < 64:
            for f in loads(g + DEPTH):
                f()
        if g == bar_at:
            a.I("s_barrier")
    st()
    a.I(f"v_add_u32 v8, s19, {v(L16)}")
    a.I("v_lshrrev_b32 v9, 5, v0")
    a.I("v_and_b32 v10, 31, v0")
    a.I("v_lshlrev_b32 v10, 4, v10")
    a.I("v_lshl_add_u32 v9, v9, 13, v10")
    a.I("s_lshl_b32 s10, s16, 11")
    a.I("v_add_u32 v9, s10, v9")
    a.I("s_lshl_b32 s11, s17, 17")
    a.I("s_lshl_b32 s12, s18, 7")
    a.I("s_add_u32 s11, s11, s12")
    a.I("s_lshl_b32 s12, s16, 5")
    a.I("s_add_u32 s11, s11, s12")
    a.I("v_lshlrev_b32 v10, 11, v0")
    for tl in range(4):
        for jq in range(4):
            a.I(f"ds_write_b128 v8, {v(ACC + 16 * tl + 4 * jq, 4)} offset:{(tl * 4 + jq) * 1024}")
    a.I("s_waitcnt lgkmcnt(0)")
    return ACC


def oproj_body3(a, N, st, bar_at=None):
    DEPTH = 8
    ACC, FR = 64, 128
    L16, L16B, LR = 1, 2, 3
    a.I("s_and_b32 s10, s2, 7")
    a.I("s_lshr_b32 s11, s2, 3")
    a.I("s_and_b32 s12, s11, 3")
    a.I("s_lshl_b32 s10, s10, 2")
    a.I("s_add_u32 s17, s10, s12")
    a.I("s_lshr_b32 s18, s11, 2")
    a.I(f"v_lshlrev_b32 {v(L16)}, 4, v0")
    a.I(f"v_add_u32 {v(L16B)}, {0x40000 - 1024}, {v(L16)}")
    a.I("s_lshl_b32 s19, s16, 15")
    a.I(f"v_add_u32 {v(LR)}, s19, {v(L16)}")
    a.I("s_lshl_b32 s42, s18, 19")
    a.I("s_lshl_b32 s10, s16, 17")
    a.I("s_add_u32 s42, s42, s10")
    a.I("s_lshl_b32 s43, s17, 19")
    a.I("s_lshl_b32 s10, s16, 16")
    a.I("s_add_u32 s43, s43, s10")
    RB = int(os.environ.get("RB", "0"))
    if RB:
        a.I("s_lshl1_add_u32 s45, s12, s18")
        a.I("s_and_b32 s45, s45, 7")
        a.I(f"s_mul_i32 s45, s45, {RB // 8 * 1024}")
        a.I("s_mov_b32 s40, s43")
        a.I("s_mov_b32 s41, s42")
        a.I("s_add_u32 s43, s40, s45")
        a.I("s_lshl1_add_u32 s42, s45, s41")
    a.I("s_waitcnt lgkmcnt(0)")
    srd(a, 20, 4, 5, 16 * MB + 2048, add=WS_CTX - 2048)
    srd(a, 24, 4, 5, 4 * MB, add=WS_WO)
    srd(a, 28, 8, 9, 4 * MB)
    vm, lg = VM(a), LG(a)
    st()

    def loads(g):
        sl = g % DEPTH
        return [lambda: a.I(f"s_add_u32 m0, s19, {sl * 4096}"),
                lambda: a.I("s_nop 0") if g < DEPTH else None,
                lambda: vm.issue(f"buffer_load_dwordx4 {v(L16)}, s[24:27], s42 offen lds", g),
                lambda: vm.issue(f"buffer_load_dwordx4 {v(L16)}, s[24:27], s42 offen offset:1024 lds", g),
                lambda: vm.issue(f"buffer_load_dwordx4 {v(L16)}, s[20:23], s43 offen offset:2048 lds", g),
                lambda: vm.issue(f"buffer_load_dwordx4 {v(L16B)}, s[20:23], s43 offen offset:3072 lds", g),
                lambda: nxt(g), lambda: None]

    def nxt(g):
        if not RB:
            a.I("s_add_u32 s42, s42, 2048")
            a.I("s_add_u32 s43, s43, 1024")
            return
        a.I("s_add_u32 s45, s45, 1024")
        a.I(f"s_and_b32 s45, s45, {RB * 1024 - 1}")
        if (g + 1) % RB == 0:
            a.I(f"s_add_u32 s40, s40, {RB * 1024}")
            a.I(f"s_add_u32 s41, s41, {RB * 2048}")
        a.I("s_add_u32 s43, s40, s45")
        a.I("s_lshl1_add_u32 s42, s45, s41")

    def reads(g):
        vm.wait(g)
        for q in range(4):
            lg.issue(f"ds_read_b128 {v(FR + 16 * (g & 1) + 4 * q, 4)}, {v(LR)} offset:{(g % DEPTH) * 4096 + q * 1024}", g)

    for g in range(DEPTH):
        for f in loads(g):
            f()
    st()
    reads(0)
    st()
    for g in range(64):
        if g + 1 < 64:
            reads(g + 1)
        lg.wait(g)
        L = loads(g + DEPTH) if g + DEPTH < 64 else []
        fr = FR + 16 * (g & 1)
        for qt in range(2):
            for cb in range(2):
                acc = v(ACC + 16 * (2 * qt + cb), 16)
                if L:
                    L.pop(0)()
                a.I(f"{MF} {acc}, {v(fr + 4 * cb, 4)}, {v(fr + 8 + 4 * qt, 4)}, {'0' if g == 0 else acc}")
                if L:
                    L.pop(0)()
        if g == bar_at:
            a.I("s_barrier")
    st()
    a.I("v_lshrrev_b32 v9, 5, v0")
    a.I("v_and_b32 v10, 31, v0")
    a.I("v_lshlrev_b32 v10, 4, v10")
    a.I("v_lshl_add_u32 v9, v9, 13, v10")
    a.I("s_lshl_b32 s10, s16, 11")
    a.I("v_add_u32 v9, s10, v9")
    a.I("s_lshl_b32 s11, s17, 17")
    a.I("s_lshl_b32 s12, s18, 7")
    a.I("s_add_u32 s11, s11, s12")
    a.I("s_lshl_b32 s12, s16, 5")
    a.I("s_add_u32 s11, s11, s12")
    a.I("v_lshlrev_b32 v10, 11, v0")
    for tl in range(4):
        for jq in range(4):
            a.I(f"ds_write_b128 {v(LR)}, {v(ACC + 16 * tl + 4 * jq, 4)} offset:{(tl * 4 + jq) * 1024}")
    a.I("s_waitcnt lgkmcnt(0)")
    return ACC


def oproj_body4(a, N, st, bar_at=None):
    DEPTH = 4
    ACC, FR = 32, 96
    L16, L16B, LR = 1, 2, 3
    a.I("s_and_b32 s10, s2, 7")
    a.I("s_lshr_b32 s11, s2, 3")
    a.I("s_and_b32 s12, s11, 3")
    a.I("s_lshl_b32 s10, s10, 2")
    a.I("s_add_u32 s17, s10, s12")
    a.I("s_lshr_b32 s18, s11, 2")
    a.I(f"v_lshlrev_b32 {v(L16)}, 4, v0")
    a.I(f"v_add_u32 {v(L16B)}, {0x40000 - 1024}, {v(L16)}")
    a.I("s_lshl_b32 s19, s16, 14")
    a.I(f"v_add_u32 {v(LR)}, s19, {v(L16)}")
    a.I("s_lshl_b32 s42, s18, 19")
    a.I("s_lshl_b32 s10, s16, 16")
    a.I("s_add_u32 s42, s42, s10")
    a.I("s_lshl_b32 s43, s17, 19")
    a.I("s_lshl_b32 s10, s16, 15")
    a.I("s_add_u32 s43, s43, s10")
    a.I("s_waitcnt lgkmcnt(0)")
    srd(a, 20, 4, 5, 16 * MB + 2048, add=WS_CTX - 2048)
    srd(a, 24, 4, 5, 4 * MB, add=WS_WO)
    vm, lg = VM(a), LG(a)
    st()

    def loads(g):
        sl = g % DEPTH
        return [lambda: a.I(f"s_add_u32 m0, s19, {sl * 4096}"),
                lambda: a.I("s_nop 0") if g < DEPTH else None,
                lambda: vm.issue(f"buffer_load_dwordx4 {v(L16)}, s[24:27], s42 offen lds", g),
                lambda: vm.issue(f"buffer_load_dwordx4 {v(L16)}, s[24:27], s42 offen offset:1024 lds", g),
                lambda: vm.issue(f"buffer_load_dwordx4 {v(L16)}, s[20:23], s43 offen offset:2048 lds", g),
                lambda: vm.issue(f"buffer_load_dwordx4 {v(L16B)}, s[20:23], s43 offen offset:3072 lds", g),
                lambda: a.I("s_add_u32 s42, s42, 2048"),
                lambda: a.I("s_add_u32 s43, s43, 1024")]

    def reads(g):
        vm.wait(g)
        for q in range(4):
            lg.issue(f"ds_read_b128 {v(FR + 16 * (g & 1) + 4 * q, 4)}, {v(LR)} offset:{(g % DEPTH) * 4096 + q * 1024}", g)

    for g in range(DEPTH):
        for f in loads(g):
            f()
    srd(a, 28, 8, 9, 4 * MB)
    a.I("v_lshrrev_b32 v9, 5, v0")
    a.I("v_and_b32 v10, 31, v0")
    a.I("v_lshlrev_b32 v10, 4, v10")
    a.I("v_lshl_add_u32 v9, v9, 13, v10")
    a.I("s_lshl_b32 s10, s16, 10")
    a.I("v_add_u32 v9, s10, v9")
    a.I("v_add_u32 v11, 0x10000, v9")
    a.I("s_lshl_b32 s11, s17, 17")
    a.I("s_lshl_b32 s12, s18, 7")
    a.I("s_add_u32 s11, s11, s12")
    a.I("s_lshl_b32 s12, s16, 4")
    a.I("s_add_u32 s11, s11, s12")
    a.I("v_lshlrev_b32 v10, 11, v0")
    st()
    reads(0)
    st()
    NG = 32
    for g in range(NG):
        if g + 1 < NG:
            reads(g + 1)
        lg.wait(g)
        L = loads(g + DEPTH) if g + DEPTH < NG else []
        fr = FR + 16 * (g & 1)
        for qt in range(2):
            for cb in range(2):
                acc = v(ACC + 16 * (2 * qt + cb), 16)
                if L:
                    L.pop(0)()
                a.I(f"{MF} {acc}, {v(fr + 4 * cb, 4)}, {v(fr + 8 + 4 * qt, 4)}, {'0' if g == 0 else acc}")
                if L:
                    L.pop(0)()
        if g == bar_at:
            a.I("s_barrier")
    st()
    a.I("s_nop 8")
    for tl in range(4):
        for jq in range(4):
            a.I(f"ds_write_b128 {v(LR)}, {v(ACC + 16 * tl + 4 * jq, 4)} offset:{(tl * 4 + jq) * 1024}")
    a.I("s_waitcnt lgkmcnt(0)")
    a.I("s_barrier")
    for pw in range(8):
        for hl in range(2):
            a.I(f"ds_read_b128 {v(ACC + 8 * pw + 4 * hl, 4)}, {v(9 if pw < 4 else 11)} offset:{(pw % 4) * 16384 + hl * 512}")
        if pw == 6:
            a.I("s_waitcnt lgkmcnt(6)")
    for j in range(8):
        a.I(f"v_add_f32 {v(ACC + j)}, {v(ACC + j)}, {v(ACC + 8 + j)}")
        a.I(f"v_add_f32 {v(ACC + 16 + j)}, {v(ACC + 16 + j)}, {v(ACC + 24 + j)}")
    a.I("s_waitcnt lgkmcnt(0)")
    for j in range(8):
        a.I(f"v_add_f32 {v(ACC + 32 + j)}, {v(ACC + 32 + j)}, {v(ACC + 40 + j)}")
        a.I(f"v_add_f32 {v(ACC + 48 + j)}, {v(ACC + 48 + j)}, {v(ACC + 56 + j)}")
    for j in range(8):
        a.I(f"v_add_f32 {v(ACC + j)}, {v(ACC + j)}, {v(ACC + 16 + j)}")
        a.I(f"v_add_f32 {v(ACC + 32 + j)}, {v(ACC + 32 + j)}, {v(ACC + 48 + j)}")
    for j in range(8):
        a.I(f"v_add_f32 {v(ACC + j)}, {v(ACC + j)}, {v(ACC + 32 + j)}")
    for i in range(4):
        a.I(f"v_cvt_pk_bf16_f32 {v(12 + i)}, {v(ACC + 2 * i)}, {v(ACC + 2 * i + 1)}")
    a.I("buffer_store_dwordx4 v[12:15], v10, s[28:31], s11 offen")


def oproj_finish(a, ACC, PW=16384):
    for pw in range(4):
        for i in range(4):
            jq, hl = divmod(i, 2)
            if pw == 2 and i == 0 and PW > 16384:
                a.I("v_add_u32 v9, 0x10000, v9")
            a.I(f"ds_read_b128 {v(ACC + 16 * pw + 4 * i, 4)}, v9 offset:{(pw * PW) % 65536 + jq * 1024 + hl * 512}")
        if pw == 1:
            a.I("s_waitcnt lgkmcnt(0)")
            for j in range(16):
                a.I(f"v_add_f32 {v(ACC + j)}, {v(ACC + j)}, {v(ACC + 16 + j)}")
    a.I("s_waitcnt lgkmcnt(0)")
    for j in range(16):
        a.I(f"v_add_f32 {v(ACC + 32 + j)}, {v(ACC + 32 + j)}, {v(ACC + 48 + j)}")
    for j in range(16):
        a.I(f"v_add_f32 {v(ACC + j)}, {v(ACC + j)}, {v(ACC + 32 + j)}")
    for i in range(8):
        a.I(f"v_cvt_pk_bf16_f32 {v(12 + i)}, {v(ACC + 2 * i)}, {v(ACC + 2 * i + 1)}")
    a.I("buffer_store_dwordx4 v[12:15], v10, s[28:31], s11 offen")
    a.I("buffer_store_dwordx4 v[16:19], v10, s[28:31], s11 offen offset:16")


def gen_oproj():
    a = Asm()
    N = "oproj_kernel"
    kstart(a, N, 256)
    a.I("s_load_dwordx2 s[4:5], s[0:1], 88")
    a.I("s_load_dwordx2 s[6:7], s[0:1], 40")
    a.I("s_load_dwordx2 s[8:9], s[0:1], 72")
    a.I("v_lshrrev_b32 v1, 6, v0")
    a.I("v_and_b32 v0, 63, v0")
    a.I("s_nop 0")
    a.I("v_readfirstlane_b32 s16, v1")
    a.I("s_nop 0")
    st = Stamper(a, "oproj")
    ACC = oproj_body(a, N, st)
    a.I("s_barrier")
    oproj_finish(a, ACC)
    st.dump(16, 4, tmpv=8)
    kend(a, N)
    return a, N, (256, 256, 65536)


def PERMC(j):
    return 8 * (j >> 2) + (j & 3)


def gen_mat(a, dst, nf, base, consts, tmp):
    n = len(consts)
    for i in range(0, n, 4):
        for q in range(4):
            a.I(f"v_fmamk_f32 {v(tmp + q)}, {v(nf)}, {f32(float(consts[i + q]))}, {v(base)}")
        for q in range(4):
            a.I(f"v_cos_f32 {v(tmp + q)}, {v(tmp + q)}")
        a.I("s_nop 0")
        for q in range(2):
            a.I(f"v_cvt_pk_bf16_f32 {v(dst + i // 2 + q)}, {v(tmp + 2 * q)}, {v(tmp + 2 * q + 1)}")


def twiddle(a, Dr, Di, regs, nf, base, consts, sign, tmp):
    for x, c in enumerate(consts):
        A, C, S_, U = tmp, tmp + 1, tmp + 2, tmp + 3
        a.I(f"v_fmamk_f32 {v(A)}, {v(nf)}, {f32(float(c))}, {v(base)}")
        a.I(f"v_cos_f32 {v(C)}, {v(A)}")
        a.I(f"v_sin_f32 {v(S_)}, {v(A)}")
        a.I("s_nop 0")
        for j in regs[x]:
            ng = "-" if sign > 0 else ""
            ps = "" if sign > 0 else "-"
            a.I(f"v_mul_f32 {v(U)}, {v(Dr + j)}, {v(S_)}")
            a.I(f"v_mul_f32 {v(Dr + j)}, {v(Dr + j)}, {v(C)}")
            a.I(f"v_fma_f32 {v(Dr + j)}, {ng}{v(Di + j)}, {v(S_)}, {v(Dr + j)}")
            a.I(f"v_fma_f32 {v(Di + j)}, {v(Di + j)}, {v(C)}, {ps}{v(U)}")


def trig(a, j, C, S_, nf, base, c, tmp, scale=None):
    L = [f"v_fmamk_f32 {v(tmp)}, {v(nf)}, {f32(float(c))}, {v(base)}",
         f"v_cos_f32 {v(C)}, {v(tmp)}", f"v_sin_f32 {v(S_)}, {v(tmp)}"]
    return L


def cmul(a, Dr, Di, C, S_, sign, U):
    ng = "-" if sign > 0 else ""
    ps = "" if sign > 0 else "-"
    a.I(f"v_mul_f32 {v(U)}, {v(Dr)}, {v(S_)}")
    a.I(f"v_mul_f32 {v(Dr)}, {v(Dr)}, {v(C)}")
    a.I(f"v_fma_f32 {v(Dr)}, {ng}{v(Di)}, {v(S_)}, {v(Dr)}")
    a.I(f"v_fma_f32 {v(Di)}, {v(Di)}, {v(C)}, {ps}{v(U)}")


def pack(a, dst, src, n):
    for i in range(n):
        a.I(f"v_cvt_pk_bf16_f32 {v(dst + i)}, {v(src + 2 * i)}, {v(src + 2 * i + 1)}")


def b_decode(a):
    a.I("s_and_b32 s20, s2, 7")
    a.I("s_lshl_b32 s20, s20, 3")
    a.I("s_bfe_u32 s22, s2, 0x30003")
    a.I("s_or_b32 s20, s20, s22")
    a.I("s_lshr_b32 s21, s2, 6")


def gen_b1():
    a = Asm()
    N = "b1_kernel"
    kstart(a, N, 256)
    a.I("s_load_dwordx2 s[4:5], s[0:1], 88")
    a.I("s_load_dwordx4 s[8:11], s[0:1], 48")
    a.I("s_load_dwordx2 s[12:13], s[0:1], 64")
    a.I("v_lshrrev_b32 v1, 6, v0")
    a.I("v_and_b32 v2, 255, v0")
    a.I("v_and_b32 v0, 63, v0")
    a.I("v_readfirstlane_b32 s16, v1")
    b_decode(a)
    a.I("s_lshr_b32 s23, s21, 1")
    a.I("s_lshl_b32 s23, s23, 11")
    a.I("s_lshr_b32 s24, s20, 5")
    a.I("s_lshl_b32 s24, s24, 10")
    a.I("s_add_u32 s23, s23, s24")
    a.I("s_and_b32 s24, s20, 31")
    a.I("s_lshl_b32 s24, s24, 4")
    a.I("s_add_u32 s23, s23, s24")
    a.I("s_and_b32 s24, s21, 1")
    a.I("s_lshl_b32 s24, s24, 9")
    a.I("s_add_u32 s23, s23, s24")
    a.I("s_add_u32 s24, s23, 4096")
    a.I("v_lshlrev_b32 v3, 13, v2")
    a.I("s_cmp_ge_u32 s16, 4")
    a.I("s_waitcnt lgkmcnt(0)")
    a.I(f"s_cbranch_scc1 {N}_filt")
    srd(a, 28, 8, 9, 2 * MB)
    srd(a, 32, 4, 5, 257 * 8192, add=WS_Y)
    a.I("s_lshr_b32 s25, s21, 1")
    a.I("s_lshl_b32 s25, s25, 4")
    a.I("s_and_b32 s26, s21, 1")
    a.I("s_lshl_b32 s26, s26, 2")
    a.I("s_add_u32 s25, s25, s26")
    a.I("s_lshr_b32 s26, s16, 1")
    a.I("s_lshl_b32 s26, s26, 3")
    a.I("s_add_u32 s25, s25, s26")
    a.I("s_and_b32 s26, s16, 1")
    a.I("s_lshl_b32 s26, s26, 1")
    a.I("s_add_u32 s25, s25, s26")
    a.I("s_lshl_b32 s25, s25, 6")
    a.I("s_add_u32 s25, s25, s20")
    a.I("s_lshl_b32 s25, s25, 10")
    a.I(f"s_add_u32 s26, s25, {65536 - 1024}")
    a.I("s_lshl_b32 s27, s16, 11")
    a.I("s_mov_b32 m0, s27")
    a.I("v_lshlrev_b32 v4, 4, v0")
    a.I("buffer_load_dwordx4 v4, s[28:31], s25 offen lds")
    a.I("buffer_load_dwordx4 v4, s[28:31], s26 offen offset:1024 lds")
    HL, NF, BS, TM = 5, 6, 7, 8
    C32, NS32, AR, AI, XF, D1R, D1I, TR, TI, D2 = 16, 24, 32, 36, 40, 48, 64, 80, 88, 96
    a.I(f"v_lshrrev_b32 {v(HL)}, 5, v0")
    a.I(f"v_cvt_f32_u32 {v(HL)}, {v(HL)}")
    a.I("v_and_b32 v12, 31, v0")
    a.I("v_cvt_f32_u32 v12, v12")
    a.I(f"v_mul_f32 {v(NF)}, {f32(1 / 32)}, v12")
    a.I(f"v_mul_f32 {v(BS)}, {v(NF)}, {v(HL)}")
    a.I(f"v_mul_f32 {v(BS)}, {f32(8.0)}, {v(BS)}")
    nat = [16 * t + j for t in range(2) for j in range(8)]
    gen_mat(a, C32, NF, BS, nat, TM)
    a.I(f"v_add_f32 {v(BS)}, {f32(0.25)}, {v(BS)}")
    gen_mat(a, NS32, NF, BS, nat, TM)
    a.I("v_and_b32 v13, 15, v0")
    a.I("v_cvt_f32_u32 v13, v13")
    a.I(f"v_mul_f32 {v(NF)}, {f32(1 / 16)}, v13")
    a.I("v_bfe_u32 v13, v0, 4, 1")
    a.I("v_cvt_f32_u32 v13, v13")
    a.I(f"v_mul_f32 {v(BS)}, {v(NF)}, {v(HL)}")
    a.I(f"v_mul_f32 {v(BS)}, 4.0, {v(BS)}")
    a.I(f"v_fmamk_f32 {v(BS)}, v13, {f32(0.25)}, {v(BS)}")
    pc = [PERMC(j) for j in range(8)]
    gen_mat(a, AR, NF, BS, pc, TM)
    a.I(f"v_add_f32 {v(BS)}, {f32(-0.25)}, {v(BS)}")
    gen_mat(a, AI, NF, BS, pc, TM)
    a.I("v_bfe_u32 v13, v0, 4, 1")
    a.I("v_lshlrev_b32 v13, 10, v13")
    a.I("v_lshrrev_b32 v14, 5, v0")
    a.I("v_lshl_add_u32 v13, v14, 8, v13")
    a.I("v_and_b32 v15, 15, v0")
    a.I("v_lshl_add_u32 v13, v15, 3, v13")
    a.I("v_add_u32 v13, s27, v13")
    a.I("s_waitcnt vmcnt(0)")
    for t in range(2):
        for h in range(2):
            a.I(f"ds_read_b64_tr_b16 {v(XF + 4 * t + 2 * h, 2)}, v13 offset:{t * 512 + h * 128}")
    a.I(f"v_mul_f32 {v(NF)}, {f32(1 / 512)}, v12")
    a.I(f"v_mul_f32 {v(BS)}, {v(NF)}, {v(HL)}")
    a.I(f"v_mul_f32 {v(BS)}, 4.0, {v(BS)}")
    a.I("s_waitcnt lgkmcnt(0)")
    for t in range(2):
        a.I(f"{MF} {v(D1R, 16)}, {v(XF + 4 * t, 4)}, {v(C32 + 4 * t, 4)}, {'0' if t == 0 else v(D1R, 16)}")
    for t in range(2):
        a.I(f"{MF} {v(D1I, 16)}, {v(XF + 4 * t, 4)}, {v(NS32 + 4 * t, 4)}, {'0' if t == 0 else v(D1I, 16)}")
    a.I("v_and_b32 v15, 31, v0")
    a.I("v_lshlrev_b32 v15, 4, v15")
    a.I("v_lshl_add_u32 v15, v14, 11, v15")
    a.I("s_lshl_b32 s25, s16, 2")
    a.I("s_add_u32 s25, s25, 8192")
    a.I("v_add_u32 v15, s25, v15")
    a.I("s_nop 7")
    twiddle(a, D1R, D1I, [[j, j + 8] for j in range(8)], NF, BS, pc, -1, TM)
    pack(a, TR, D1R, 8)
    pack(a, TI, D1I, 8)
    a.I("s_nop 1")
    for r in range(2):
        a.I(f"{MF} {v(D2 + 16 * r, 16)}, {v(AR, 4)}, {v(TR + 4 * r, 4)}, 0")
        a.I(f"{MF} {v(D2 + 16 * r, 16)}, {v(AI, 4)}, {v(TI + 4 * r, 4)}, {v(D2 + 16 * r, 16)}")
    a.I("s_nop 11")
    for c in range(2):
        for j in range(5):
            a.I(f"v_cvt_pk_bf16_f32 {v(TR + 5 * c + j)}, {v(D2 + 8 * c + j)}, {v(D2 + 16 + 8 * c + j)}")
    for c in range(2):
        for j in range(4):
            a.I(f"ds_write_b32 v15, {v(TR + 5 * c + j)} offset:{(c * 8 + j) * 512}")
    a.I("v_cmp_eq_u32 vcc, 0, v0")
    a.I("s_and_saveexec_b64 s[36:37], vcc")
    for c in range(2):
        a.I(f"ds_write_b32 v15, {v(TR + 5 * c + 4)} offset:{8192 + 16 * c}")
    a.I("s_mov_b64 exec, s[36:37]")
    a.I("v_lshlrev_b32 v14, 4, v2")
    a.I("s_waitcnt lgkmcnt(0)")
    a.I("s_barrier")
    a.I("ds_read_b128 v[16:19], v14 offset:8192")
    a.I(f"ds_read_b128 v[20:23], v14 offset:{8192 + 4096}")
    a.I(f"ds_read_b128 v[24:27], v14 offset:{8192 + 8192}")
    a.I("v_lshlrev_b32 v13, 12, v2")
    a.I(f"v_add_u32 v13, {256 * 8192}, v13")
    a.I("s_waitcnt lgkmcnt(0)")
    a.I("buffer_store_dwordx4 v[16:19], v3, s[32:35], s23 offen")
    a.I("buffer_store_dwordx4 v[20:23], v3, s[32:35], s24 offen")
    a.I("v_cmp_gt_u32 vcc, 2, v2")
    a.I("s_and_saveexec_b64 s[36:37], vcc")
    a.I(f"s_cbranch_execz {N}_end")
    a.I("buffer_store_dwordx4 v[24:27], v13, s[32:35], s23 offen")
    a.I("s_endpgm")
    a.label(f"{N}_filt")
    srd(a, 28, 10, 11, 2048 * 514)
    srd(a, 32, 12, 13, 2048 * 514)
    srd(a, 36, 4, 5, 257 * 8192, add=WS_WF)
    a.I("s_lshr_b32 s25, s21, 1")
    a.I("s_lshl_b32 s25, s25, 5")
    a.I("s_lshr_b32 s26, s20, 5")
    a.I("s_lshl_b32 s26, s26, 4")
    a.I("s_add_u32 s25, s25, s26")
    a.I("s_and_b32 s26, s21, 1")
    a.I("s_lshl_b32 s26, s26, 2")
    a.I("s_add_u32 s25, s25, s26")
    a.I("s_lshl_b32 s25, s25, 5")
    a.I("s_and_b32 s26, s20, 31")
    a.I("s_add_u32 s25, s25, s26")
    a.I("s_mul_i32 s25, s25, 514")
    for j in range(8):
        a.I(f"s_add_u32 s{40 + j}, s25, {PERMC(j) * 32 * 514}")
    a.I("v_lshlrev_b32 v4, 1, v2")
    a.I("v_mov_b32 v5, 512")
    for q, va in enumerate((4, 5)):
        for c in range(2):
            for j in range(8):
                a.I(f"buffer_load_ushort {v(32 + 16 * q + 8 * c + j)}, {v(va)}, s[{28 + 4 * c}:{31 + 4 * c}], s{40 + j} offen")
    a.I(f"v_mov_b32 v6, {256 * 8192}")
    a.I("s_waitcnt vmcnt(16)")
    for i in range(8):
        a.I(f"v_lshl_or_b32 {v(16 + i)}, {v(33 + 2 * i)}, 16, {v(32 + 2 * i)}")
    a.I("buffer_store_dwordx4 v[16:19], v3, s[36:39], s23 offen")
    a.I("buffer_store_dwordx4 v[20:23], v3, s[36:39], s24 offen")
    a.I("v_cmp_eq_u32 vcc, 0, v2")
    a.I("s_and_saveexec_b64 s[48:49], vcc")
    a.I(f"s_cbranch_execz {N}_end")
    a.I("s_waitcnt vmcnt(2)")
    for i in range(8):
        a.I(f"v_lshl_or_b32 {v(24 + i)}, {v(49 + 2 * i)}, 16, {v(48 + 2 * i)}")
    a.I("buffer_store_dwordx4 v[24:27], v6, s[36:39], s23 offen")
    a.I("buffer_store_dwordx4 v[28:31], v6, s[36:39], s24 offen")
    kend(a, N)
    return a, N, (256, 512, 20480)


def b2_loads(a, vm, col_s, own_s, L16, YR, WR, S0, SR):
    sY, sW = S0, S0 + 2
    a.I(f"s_lshl_b32 {s(sY)}, {s(col_s)}, 13")
    a.I(f"s_lshl_b32 {s(own_s)}, {s(own_s)}, 10")
    a.I(f"s_add_u32 {s(sY)}, {s(sY)}, {s(own_s)}")
    a.I(f"s_add_u32 {s(sY + 1)}, {s(sY)}, 4096")
    a.I(f"s_add_u32 {s(sW)}, {s(sY)}, {s(own_s)}")
    a.I(f"s_add_u32 {s(sW + 1)}, {s(sW)}, 4096")
    srd(a, SR, 4, 5, 257 * 8192, add=WS_Y)
    for c in range(2):
        for t in range(2):
            vm.issue(f"buffer_load_dwordx4 {v(YR + 8 * c + 4 * t, 4)}, {v(L16)}, {s(SR, 4)}, {s(sY + c)} offen offset:{t * 2048}", "Y")
    srd(a, SR + 4, 4, 5, 257 * 8192, add=WS_WF)
    for c in range(2):
        for h in range(2):
            vm.issue(f"buffer_load_dwordx4 {v(WR + 8 * c + 4 * h, 4)}, {v(L16)}, {s(SR + 4, 4)}, {s(sW + c)} offen offset:{h * 1024}", "WF")


def b2_body(a, own, col_s, lds_s, svc, vm, R0=0, S0=20, SR=28, slice_len=110, rmap=None, after_loads=None, st=lambda: None, preloaded=False, compact_ex=False, newer=8):
    L16, HL, NF, BS, LF, XA, XB, TM, LB = [R0 + x for x in (1, 2, 3, 4, 5, 6, 7, 8, 12)]
    YR, YI, WR, WI = [R0 + x for x in (16, 24, 32, 40)]
    C32, S32, NS32, C64, S64 = [R0 + x for x in (48, 56, 64, 72, 88)]
    DR, DI = R0 + 104, R0 + 120
    FR, FI, FN = R0 + 136, R0 + 152, R0 + 168
    XT = 240
    if rmap:
        L16, HL, NF, BS, LF, XA, XB, TM, LB, YR, YI, WR, WI, C32, S32, NS32, C64, S64, DR, DI, FR, FI, FN = rmap
    sY, sW, sSC, sT = S0, S0 + 2, S0 + 4, S0 + 5
    I0 = a.I
    cnt = [0]

    def I(text):
        r = I0(text)
        cnt[0] += 1
        if cnt[0] >= slice_len and (text.startswith("v_cvt_pk") or text.startswith("v_fma_f32") or text.startswith("v_sin")):
            dosvc()
        return r

    def dosvc():
        a.I = I0
        svc()
        a.I = I
        cnt[0] = 0

    a.I(f"v_lshlrev_b32 {v(L16)}, 4, v0")
    if preloaded:
        vm.q += ["Y"] * 4 + ["WF"] * 4 + ["Q"] * newer
    else:
        a.I(f"s_mov_b32 {s(sT)}, {own}")
        b2_loads(a, vm, col_s, sT, L16, YR, WR, S0, SR)
    srd(a, SR + 8, 4, 5, 257 * 8192, add=WS_Z)
    a.I = I
    a.I(f"s_mov_b32 {s(sSC)}, {f32(2.0 ** -19)}")
    a.I(f"s_and_b32 {s(sT)}, {s(col_s)}, 255")
    a.I(f"s_cmp_eq_u32 {s(sT)}, 0")
    a.I(f"s_cselect_b32 {s(sSC)}, {f32(2.0 ** -20)}, {s(sSC)}")
    a.I(f"v_lshrrev_b32 {v(HL)}, 5, v0")
    a.I(f"v_cvt_f32_u32 {v(HL)}, {v(HL)}")
    a.I(f"v_mul_f32 {v(HL)}, 4.0, {v(HL)}")
    a.I(f"v_and_b32 {v(LF)}, 31, v0")
    a.I(f"v_cvt_f32_u32 {v(LF)}, {v(LF)}")
    a.I(f"v_add_f32 {v(LB)}, {f32(32.0 * own)}, {v(LF)}")
    pc = lambda n: [16 * t + PERMC(j) for t in range(n) for j in range(8)]
    a.I(f"v_mul_f32 {v(NF)}, {f32(1 / 32)}, {v(LF)}")
    a.I(f"v_mul_f32 {v(BS)}, {v(NF)}, {v(HL)}")
    gen_mat(a, C32, NF, BS, pc(2), TM)
    a.I(f"v_add_f32 {v(BS)}, {f32(-0.25)}, {v(BS)}")
    gen_mat(a, S32, NF, BS, pc(2), TM)
    for i in range(8):
        a.I(f"v_xor_b32 {v(NS32 + i)}, 0x80008000, {v(S32 + i)}")
    a.I(f"v_mul_f32 {v(NF)}, {f32(1 / 64)}, {v(LB)}")
    a.I(f"v_mul_f32 {v(BS)}, {v(NF)}, {v(HL)}")
    gen_mat(a, C64, NF, BS, pc(4), TM)
    a.I(f"v_add_f32 {v(BS)}, {f32(-0.25)}, {v(BS)}")
    gen_mat(a, S64, NF, BS, pc(4), TM)
    a.I(f"v_add_u32 {v(XA)}, {s(lds_s)}, {v(L16)}")
    a.I(f"v_add_u32 {v(XB)}, {(1 - own) * 4096}, {v(XA)}")
    a.I(f"v_add_u32 {v(XA)}, {own * 4096}, {v(XA)}")

    def mm(D, terms, fill=None, per=3):
        first = True
        for A_, B_ in terms:
            a.I(f"{MF} {v(D, 16)}, {v(A_, 4)}, {v(B_, 4)}, {'0' if first else v(D, 16)}")
            first = False
            if fill:
                for x in fill[:per]:
                    a.I(x)
                del fill[:per]

    def exchange(neg_of, ldsoff):
        nonlocal XA, XB
        if compact_ex and ldsoff:
            XA, XB, ldsoff = XB, XA, 0
        for c, F in enumerate((FR, FI)):
            for h in range(2):
                a.I(f"ds_write_b128 {v(XA)}, {v(F + 8 * own + 4 * h, 4)} offset:{ldsoff + (2 * c + h) * 1024}")
        a.I("s_waitcnt lgkmcnt(0)")
        dosvc()
        for c, F in enumerate((FR, FI)):
            for h in range(2):
                a.I(f"ds_read_b128 {v(F + 8 * (1 - own) + 4 * h, 4)}, {v(XB)} offset:{ldsoff + (2 * c + h) * 1024}")
        for i in range(8):
            a.I(f"v_xor_b32 {v(FN + 8 * own + i)}, 0x80008000, {v(neg_of + 8 * own + i)}")
        a.I("s_waitcnt lgkmcnt(0)")
        for i in range(8):
            a.I(f"v_xor_b32 {v(FN + 8 * (1 - own) + i)}, 0x80008000, {v(neg_of + 8 * (1 - own) + i)}")
        a.I("s_nop 1")

    jc = [(j & 3) + 8 * (j >> 2) for j in range(16)]
    o = 8 * (1 - own)
    T1C = [FN + j for j in range(16)]
    T1S = [FR + o + j for j in range(8)] + [FI + o + j for j in range(8)]
    a.I(f"v_mul_f32 {v(NF)}, {f32(1 / 2048)}, {v(LF)}")
    a.I(f"v_add_f32 {v(BS)}, {f32(32.0 * own)}, {v(HL)}")
    a.I(f"v_mul_f32 {v(BS)}, {v(NF)}, {v(BS)}")
    for j in range(16):
        a.many(trig(a, j, T1C[j], T1S[j], NF, BS, jc[j], TM + (j & 1)))
    a.I(f"v_mul_f32 {v(NF)}, {f32(1 / 2048)}, {v(LB)}")
    a.I(f"v_mul_f32 {v(BS)}, {v(NF)}, {v(HL)}")
    st()
    vm.wait("Y")
    st()
    mm(DR, [(YR, C32), (YR + 4, C32 + 4), (YI, S32), (YI + 4, S32 + 4)])
    mm(DI, [(YI, C32), (YI + 4, C32 + 4), (YR, NS32), (YR + 4, NS32 + 4)])
    a.I("s_nop 11")
    for j in range(16):
        cmul(a, DR + j, DI + j, T1C[j], T1S[j], -1, TM)
    pack(a, FR + 8 * own, DR, 8)
    pack(a, FI + 8 * own, DI, 8)
    exchange(FR, 0)
    st()
    if after_loads:
        after_loads()
    T2C = [YR + j for j in range(8)] + [YI + j for j in range(8)]
    fill = []
    for j in range(16):
        fill += trig(a, j, T2C[j], XT + j, NF, BS, jc[j], TM + (j & 1))
    mm(DR, [(C64 + 4 * t, FR + 4 * t) for t in range(4)] + [(S64 + 4 * t, FI + 4 * t) for t in range(4)], fill)
    mm(DI, [(C64 + 4 * t, FI + 4 * t) for t in range(4)] + [(S64 + 4 * t, FN + 4 * t) for t in range(4)], fill)
    assert not fill
    vm.wait("WF")
    for j in range(12):
        a.I(f"v_mul_f32 {v(T2C[j])}, {s(sSC)}, {v(T2C[j])}")
    for j in range(16):
        wr, wi, u = TM, TM + 1, TM + 2
        if j & 1:
            a.I(f"v_and_b32 {v(wr)}, 0xffff0000, {v(WR + j // 2)}")
            a.I(f"v_and_b32 {v(wi)}, 0xffff0000, {v(WI + j // 2)}")
        else:
            a.I(f"v_lshlrev_b32 {v(wr)}, 16, {v(WR + j // 2)}")
            a.I(f"v_lshlrev_b32 {v(wi)}, 16, {v(WI + j // 2)}")
        cmul(a, DR + j, DI + j, wr, wi, +1, u)
    pack(a, FR + 8 * own, DR, 8)
    pack(a, FI + 8 * own, DI, 8)
    exchange(FI, 8192)
    st()
    fill = [f"v_mul_f32 {v(T2C[j])}, {s(sSC)}, {v(T2C[j])}" for j in range(12, 16)]
    fill += [f"v_mul_f32 {v(XT + j)}, {s(sSC)}, {v(XT + j)}" for j in range(16)]
    mm(DR, [(FR + 4 * t, C64 + 4 * t) for t in range(4)] + [(FN + 4 * t, S64 + 4 * t) for t in range(4)], fill)
    mm(DI, [(FI + 4 * t, C64 + 4 * t) for t in range(4)] + [(FR + 4 * t, S64 + 4 * t) for t in range(4)], fill)
    a.I("s_nop 11")
    for j in range(16):
        cmul(a, DR + j, DI + j, T2C[j], XT + j, +1, TM)
    pack(a, FR, DR, 8)
    pack(a, FI, DI, 8)
    a.I("s_nop 1")
    mm(DR, [(C32, FR), (C32 + 4, FR + 4), (NS32, FI), (NS32 + 4, FI + 4)])
    mm(DI, [(C32, FI), (C32 + 4, FI + 4), (S32, FR), (S32 + 4, FR + 4)])
    a.I = I0
    a.I("s_nop 7")
    pack(a, YR, DR, 8)
    a.I("s_nop 3")
    pack(a, YI, DI, 8)
    for c in range(2):
        for h in range(2):
            vm.issue(f"buffer_store_dwordx4 {v(YR + 8 * c + 4 * h, 4)}, {v(L16)}, {s(SR + 8, 4)}, {s(sW + c)} offen offset:{h * 1024}", "Z")


def gen_b2():
    a = Asm()
    N = "b2_kernel"
    kstart(a, N, 257)
    a.I("s_load_dwordx2 s[4:5], s[0:1], 88")
    a.I("v_lshrrev_b32 v1, 6, v0")
    a.I("v_and_b32 v0, 63, v0")
    a.I("s_mov_b32 s17, 0")
    a.I("v_readfirstlane_b32 s16, v1")
    a.I("s_waitcnt lgkmcnt(0)")
    a.I("s_cmp_eq_u32 s16, 1")
    a.I(f"s_cbranch_scc1 {N}_w1")
    b2_body(a, 0, 2, 17, lambda: a.I("s_barrier"), VM(a), slice_len=10 ** 9)
    a.I("s_endpgm")
    a.label(f"{N}_w1")
    b2_body(a, 1, 2, 17, lambda: a.I("s_barrier"), VM(a), slice_len=10 ** 9)
    kend(a, N)
    return a, N, (257, 128, 16384)


def b3_loads(a, outp=6):
    b_decode(a)
    a.I("s_lshr_b32 s23, s20, 5")
    a.I("s_lshl_b32 s23, s23, 11")
    a.I("s_lshl_b32 s24, s21, 9")
    a.I("s_add_u32 s23, s23, s24")
    a.I("s_and_b32 s24, s20, 31")
    a.I("s_lshl_b32 s24, s24, 4")
    a.I("s_add_u32 s23, s23, s24")
    a.I("s_add_u32 s24, s23, 4096")
    a.I("v_lshlrev_b32 v3, 13, v2")
    a.I(f"v_mov_b32 v4, {256 * 8192}")
    a.I("s_waitcnt lgkmcnt(0)")
    srd(a, 28, 4, 5, 257 * 8192, add=WS_Z)
    srd(a, 32, outp, outp + 1, 4 * MB)
    a.I("buffer_load_dwordx4 v[16:19], v3, s[28:31], s23 offen")
    a.I("buffer_load_dwordx4 v[20:23], v3, s[28:31], s24 offen")
    a.I("buffer_load_dwordx4 v[24:27], v4, s[28:31], s23 offen")


def b3_body(a, LB=0, outp=6, nafter=0, loaded=False, mid=None, part=0):
    if not loaded:
        b3_loads(a, outp)
    n0 = len(a.items)
    HL, NF, BS, AFL, TM = 5, 6, 7, 12, 8
    C32, NS32, BRE, BIM, MT, ZF, UR, UI, TR, TI = 32, 40, 48, 56, 64, 68, 76, 92, 108, 116
    a.I(f"v_lshrrev_b32 {v(HL)}, 5, v0")
    a.I(f"v_cvt_f32_u32 {v(HL)}, {v(HL)}")
    a.I("v_and_b32 v13, 31, v0")
    a.I("v_cvt_f32_u32 v13, v13")
    a.I(f"v_mul_f32 {v(NF)}, {f32(1 / 32)}, v13")
    a.I(f"v_mul_f32 {v(BS)}, {v(NF)}, {v(HL)}")
    a.I(f"v_mul_f32 {v(BS)}, 4.0, {v(BS)}")
    pc = [16 * t + PERMC(j) for t in range(2) for j in range(8)]
    gen_mat(a, C32, NF, BS, pc, TM)
    a.I(f"v_add_f32 {v(BS)}, {f32(0.25)}, {v(BS)}")
    gen_mat(a, NS32, NF, BS, pc, TM)
    a.I(f"v_and_b32 {v(AFL)}, 15, v0")
    a.I(f"v_cvt_f32_u32 {v(AFL)}, {v(AFL)}")
    a.I(f"v_mul_f32 {v(NF)}, {f32(1 / 16)}, {v(AFL)}")
    a.I(f"v_mul_f32 {v(BS)}, {f32(0.25)}, {v(HL)}")
    a.I("v_and_b32 v13, 16, v0")
    a.I("v_cmp_eq_u32 vcc, 0, v13")
    a.I("v_mov_b32 v14, 0")
    for B_, ph in ((BRE, None), (BIM, -0.25)):
        if ph:
            a.I(f"v_add_f32 {v(BS)}, {f32(ph)}, {v(BS)}")
        gen_mat(a, MT, NF, BS, list(range(8)), TM)
        for i in range(4):
            a.I(f"v_cndmask_b32 {v(B_ + i)}, v14, {v(MT + i)}, vcc")
            a.I(f"v_cndmask_b32 {v(B_ + 4 + i)}, {v(MT + i)}, v14, vcc")
    if part == 1:
        return
    if part == 2:
        del a.items[n0:]
    if mid:
        mid()
    a.I("v_and_b32 v13, 31, v2")
    a.I("v_lshlrev_b32 v13, 4, v13")
    a.I("v_lshrrev_b32 v15, 5, v2")
    a.I("v_lshl_add_u32 v13, v15, 1, v13")
    a.I(f"v_add_u32 v13, {LB}, v13")
    a.I("v_cmp_eq_u32 vcc, 0, v2")
    a.I(f"v_mov_b32 v15, {LB + 8192}")
    a.I(f"s_waitcnt vmcnt({nafter})")
    for i in range(4):
        a.I(f"v_cndmask_b32 {v(20 + i)}, {v(20 + i)}, v14, vcc")
    for c in range(2):
        for i in range(8):
            a.I(f"ds_write_b16{'_d16_hi' if i & 1 else ''} v13, {v(16 + 4 * c + i // 2)} offset:{i * 1024 + c * 512}")
    a.I("s_and_saveexec_b64 s[36:37], vcc")
    a.I("ds_write_b128 v15, v[24:27]")
    a.I("s_mov_b64 exec, s[36:37]")
    a.I("s_lshl_b32 s25, s16, 11")
    a.I(f"s_add_u32 s25, s25, {LB}")
    a.I("v_lshlrev_b32 v13, 4, v0")
    a.I("v_add_u32 v13, s25, v13")
    a.I("v_bfe_u32 v15, v0, 4, 1")
    a.I("s_lshl_b32 s25, s16, 2")
    a.I(f"s_add_u32 s25, s25, {LB + 8192}")
    a.I("v_lshl_add_u32 v15, v15, 1, s25")
    for j in range(1, 16):
        a.I(f"v_mov_b32 {v(UR + j)}, 0")
    a.I("s_waitcnt lgkmcnt(0)")
    a.I("s_barrier")
    a.I(f"ds_read_u16 {v(UR)}, v15")
    a.I(f"ds_read_b128 {v(ZF, 4)}, v13")
    a.I(f"ds_read_b128 {v(ZF + 4, 4)}, v13 offset:1024")
    a.I("v_and_b32 v15, 1, v0")
    a.I("v_lshlrev_b32 v15, 31, v15")
    a.I("v_cmp_gt_u32 vcc, 32, v0")
    a.I(f"v_mul_f32 {v(NF)}, {f32(1 / 512)}, {v(AFL)}")
    a.I(f"v_mul_f32 {v(BS)}, {v(NF)}, {v(HL)}")
    a.I(f"v_mul_f32 {v(BS)}, 4.0, {v(BS)}")
    a.I("s_waitcnt lgkmcnt(2)")
    a.I(f"v_lshlrev_b32 {v(UR)}, 16, {v(UR)}")
    a.I(f"v_xor_b32 {v(UR)}, {v(UR)}, v15")
    a.I(f"v_cndmask_b32 {v(UR)}, v14, {v(UR)}, vcc")
    a.I("s_waitcnt lgkmcnt(0)")
    a.I("s_nop 0")
    for r in range(2):
        a.I(f"{MF} {v(UR, 16)}, {v(ZF + 4 * r, 4)}, {v(BRE + 4 * r, 4)}, {v(UR, 16)}")
    for r in range(2):
        a.I(f"{MF} {v(UI, 16)}, {v(ZF + 4 * r, 4)}, {v(BIM + 4 * r, 4)}, {'0' if r == 0 else v(UI, 16)}")
    a.I("s_lshr_b32 s25, s21, 1")
    a.I("s_lshl_b32 s25, s25, 4")
    a.I("s_and_b32 s26, s21, 1")
    a.I("s_lshl_b32 s26, s26, 2")
    a.I("s_add_u32 s25, s25, s26")
    a.I("s_lshr_b32 s26, s16, 1")
    a.I("s_lshl_b32 s26, s26, 3")
    a.I("s_add_u32 s25, s25, s26")
    a.I("s_and_b32 s26, s16, 1")
    a.I("s_lshl_b32 s26, s26, 1")
    a.I("s_add_u32 s25, s25, s26")
    a.I("s_lshl_b32 s25, s25, 6")
    a.I("s_add_u32 s25, s25, s20")
    a.I("s_lshl_b32 s25, s25, 11")
    a.I(f"s_add_u32 s26, s25, {64 * 2048}")
    jc = [(j & 3) + 8 * (j >> 2) for j in range(16)]
    twiddle(a, UR, UI, [[j] for j in range(16)], NF, BS, jc, +1, TM)
    pack(a, TR, UR, 8)
    pack(a, TI, UI, 8)
    a.I("v_and_b32 v13, 31, v0")
    a.I("v_lshlrev_b32 v13, 5, v13")
    terms = [(TR, C32), (TR + 4, C32 + 4), (TI, NS32), (TI + 4, NS32 + 4)]
    for i, (A_, B_) in enumerate(terms):
        a.I(f"{MF} {v(UR, 16)}, {v(A_, 4)}, {v(B_, 4)}, {'0' if i == 0 else v(UR, 16)}")
    a.I("v_lshrrev_b32 v15, 5, v0")
    a.I("v_lshl_add_u32 v13, v15, 4, v13")
    a.I("s_nop 9")
    pack(a, 16, UR, 8)
    a.I("s_nop 1")
    for r in range(2):
        a.I(f"v_permlane32_swap_b32 {v(16 + 4 * r)}, {v(18 + 4 * r)}")
        a.I(f"v_permlane32_swap_b32 {v(17 + 4 * r)}, {v(19 + 4 * r)}")
        a.I(f"buffer_store_dwordx4 {v(16 + 4 * r, 4)}, v13, s[32:35], s{25 + r} offen offset:1024")


def gen_b3():
    a = Asm()
    N = "b3_kernel"
    kstart(a, N, 256)
    a.I("s_load_dwordx2 s[4:5], s[0:1], 88")
    a.I("s_load_dwordx2 s[6:7], s[0:1], 72")
    a.I("v_lshrrev_b32 v1, 6, v0")
    a.I("v_mov_b32 v2, v0")
    a.I("v_and_b32 v0, 63, v0")
    a.I("v_readfirstlane_b32 s16, v1")
    b3_body(a)
    kend(a, N)
    return a, N, (256, 256, 8192 + 64)


KERNELS = [gen_b1, gen_qkv, gen_b2, gen_attn, gen_b3, gen_oproj]


ALIASES = [("v_mfma_f32_16x16x32_bf16", "mf16", 4), ("v_mfma_f32_32x32x16_bf16", "mf32", 4),
           ("v_cvt_pk_bf16_f32", "cvtpk", 3)]


def compact(txt):
    lines = txt.split("\n")
    out = []
    done = False
    for l in lines:
        if l.startswith("    "):
            l = l.strip()
            for full, short, n in ALIASES:
                if l.startswith(full + " "):
                    l = short + l[len(full):]
        out.append(l)
        if l.startswith(".amdgcn_target") and not done:
            done = True
            for full, short, n in ALIASES:
                args = ["p%d" % i for i in range(n)]
                out.append(f".macro {short} " + ", ".join(args))
                out.append(f"{full} " + ", ".join("\\" + x for x in args))
                out.append(".endm")
    return "\n".join(out)


def build(kernels, path):
    hdr = open(os.path.join(os.path.dirname(os.path.abspath(__file__)), "..", "cdna_kernels", NAME + ".s.ref")).read()
    head = [l for l in hdr.splitlines() if l.startswith(";") and "@launch" not in l and "Override" not in l
            and "grid=ceil" not in l]
    txt = []
    launches = []
    descs = []
    bad = 0
    for g in kernels:
        KIDX[0] = len(launches)
        a, n, (grid, blk, lds) = g()
        if DBGT:
            items = []
            for it in a.items:
                if it[0] == "i" and it[1].mn == "s_endpgm" and not (items and items[-1][0] == "l" and items[-1][1] == n + "_end" and items[-2][1].mn == "s_endpgm"):
                    b = Asm()
                    lab = None
                    if items[-1][0] == "l" and items[-1][1] == n + "_end":
                        lab = items.pop()
                    dbg_stamp(b, 1)
                    items += b.items
                    if lab:
                        items.append(it)
                        items.append(lab)
                items.append(it)
            a.items = items
        bad += len(a.check())
        nv, ns, na = a.maxregs()
        print(f"{n}: {sum(1 for k, _ in a.items if k == 'i')} instrs, vgpr {nv}, agpr {na}, sgpr {ns}")
        launches.append(f"; @launch kernel={n} grid=({grid},1,1) block=({blk},1,1) lds={lds}")
        txt.append(a.text())
        descs.append(kdesc(n, nv, ns, na))
    if bad:
        print("HAZARDS:", bad)
    out = "\n".join(head) + "\n" + "\n".join(launches) + "\n" + '.amdgcn_target "amdgcn-amd-amdhsa--gfx950"\n' + \
          "".join(txt) + "".join(descs)
    out = compact(out)
    open(path, "w").write(out)
    return bad


if __name__ == "__main__":
    p = sys.argv[1] if len(sys.argv) > 1 else os.path.join(os.path.dirname(os.path.abspath(__file__)), "..",
                                                           "cdna_kernels", NAME + ".s")
    sys.exit(1 if build(KERNELS, p) else 0)
```

```python
import sys, os
sys.path.insert(0, os.path.dirname(os.path.abspath(__file__)))
import gen
from gen import *

M16 = "v_mfma_f32_16x16x32_bf16"
SP = os.environ.get("SP", " sc1")
PUMP = int(os.environ.get("PUMP", "5"))
SCAT_AT = int(os.environ.get("SCAT_AT", "52"))
PRE3 = int(os.environ.get("PRE3", "12"))
PF_AT = int(os.environ.get("PF_AT", "66"))
BP = os.environ.get("BP", " nt")
PP = os.environ.get("PP", "")
AP = os.environ.get("AP", "")
LP = os.environ.get("LP", "")
GRP2 = int(os.environ.get("GRP2", "0"))
FILT_AT = int(os.environ.get("FILT_AT", "74"))
LATE_AT = int(os.environ.get("LATE_AT", "50"))
STF = eval(os.environ.get("STF", "(31, 63, 95)"))
B1START = int(os.environ.get("B1START", "6"))


def gen_l1():
    a = Asm()
    N = "l1_kernel"
    kstart(a, N, 256)
    a.I("s_load_dwordx4 s[4:7], s[0:1], 0")
    a.I("s_load_dwordx4 s[8:11], s[0:1], 16")
    a.I("s_load_dwordx2 s[12:13], s[0:1], 32")
    a.I("s_load_dwordx2 s[14:15], s[0:1], 88")
    a.I("s_load_dwordx4 s[60:63], s[0:1], 48")
    a.I("s_load_dwordx2 s[64:65], s[0:1], 64")
    a.I("s_load_dwordx2 s[90:91], s[0:1], 40")
    TID, L16 = 64, 65
    a.I(f"v_and_b32 {v(TID)}, 255, v0")
    a.I("v_lshrrev_b32 v2, 6, v0")
    a.I("v_and_b32 v0, 63, v0")
    a.I("v_readfirstlane_b32 s16, v2")
    st = Stamper(a, "l1")
    st()
    BLDS = 9 * 16384
    a.I("s_nop 0")
    code_touch(a, N, 16, 24, 60, kd=False)
    a.I("s_and_b32 s17, s2, 7")
    a.I("s_lshr_b32 s18, s2, 3")
    a.I("s_and_b32 s19, s18, 7")
    a.I("s_lshr_b32 s18, s18, 3")
    a.I("s_lshl_b32 s40, s17, 2")
    a.I("s_add_u32 s18, s18, s40")
    if os.environ.get("L1MAP", "4x8") == "4x8":
        a.I("s_lshr_b32 s18, s2, 3")
        a.I("s_and_b32 s19, s18, 3")
        a.I("s_and_b32 s40, s17, 1")
        a.I("s_lshl_b32 s40, s40, 2")
        a.I("s_add_u32 s19, s19, s40")
        a.I("s_lshr_b32 s18, s18, 2")
        a.I("s_lshr_b32 s40, s17, 1")
        a.I("s_lshl_b32 s40, s40, 3")
        a.I("s_add_u32 s18, s18, s40")
    a.I("s_mov_b32 s41, 0")
    a.I("s_mul_i32 s42, s18, 6")
    a.I("s_cmp_ge_u32 s18, 11")
    a.I("s_cselect_b32 s41, 1, s41")
    a.I("s_cselect_b32 s40, 64, 0")
    a.I("s_cmp_ge_u32 s18, 21")
    a.I("s_cselect_b32 s41, 2, s41")
    a.I("s_cselect_b32 s40, 126, s40")
    a.I("s_sub_u32 s42, s42, s40")
    a.I("s_lshl_b32 s44, s19, 3")
    a.I("s_add_u32 s44, s44, s16")
    t1, t2, t3, G = 66, 67, 68, 69
    WV, AV, AR_, TB, SK, SV = 1, 3, 7, 9, 21, 22
    a.I(f"v_lshrrev_b32 {v(t1)}, 3, v0")
    a.I(f"v_lshlrev_b32 {v(G)}, 10, {v(t1)}")
    a.I(f"v_lshlrev_b32 {v(t1)}, 13, {v(t1)}")
    a.I("s_lshl_b32 s45, s16, 17")
    a.I(f"v_add_u32 {v(t1)}, s45, {v(t1)}")
    a.I(f"v_bfe_u32 {v(t2)}, v0, 4, 1")
    a.I(f"v_lshlrev_b32 {v(t2)}, 1, {v(t2)}")
    a.I(f"v_and_b32 {v(t3)}, 7, v0")
    a.I(f"v_xor_b32 {v(t2)}, {v(t2)}, {v(t3)}")
    a.I(f"v_lshl_add_u32 {v(WV)}, {v(t2)}, 4, {v(t1)}")
    a.I(f"v_xor_b32 {v(WV + 1)}, 64, {v(WV)}")
    a.I(f"v_add_u32 {v(WV + 1)}, {65536 - 1024}, {v(WV + 1)}")
    a.I("s_lshl_b32 s45, s44, 15")
    a.I(f"v_add_u32 {v(t1)}, s45, {v(G)}")
    a.I(f"v_lshrrev_b32 {v(t2)}, 4, v0")
    a.I(f"v_xor_b32 {v(t2)}, {v(t2)}, {v(t3)}")
    a.I(f"v_lshl_add_u32 {v(AV)}, {v(t2)}, 4, {v(t1)}")
    a.I(f"v_xor_b32 {v(AV + 1)}, 64, {v(AV)}")
    a.I(f"v_add_u32 {v(AV + 1)}, {8192 - 1024}, {v(AV + 1)}")
    a.I(f"v_add_u32 {v(AV + 2)}, {2 * (8192 - 1024)}, {v(AV)}")
    a.I(f"v_add_u32 {v(AV + 3)}, {2 * (8192 - 1024)}, {v(AV + 1)}")
    a.I("s_lshl_b32 s46, s16, 13")
    a.I("s_lshl_b32 s47, s16, 11")
    a.I("s_lshl_b32 s48, s42, 7")
    a.I("s_lshl_b32 s49, s44, 13")
    a.I("s_lshl_b32 s50, s42, 18")
    a.I("s_add_u32 s50, s50, s49")
    a.I("s_add_u32 s53, s48, 512")
    a.I("s_mov_b32 s43, s49")
    a.I(f"v_lshlrev_b32 {v(L16)}, 4, v0")
    a.I("s_lshl_b32 s45, s44, 16")
    a.I("v_lshrrev_b32 v23, 1, v0")
    a.I("v_lshlrev_b32 v23, 13, v23")
    a.I(f"v_and_b32 {v(t1)}, 1, v0")
    a.I(f"v_lshl_add_u32 v23, {v(t1)}, 7, v23")
    a.I("v_add_u32 v23, s45, v23")
    a.I("s_waitcnt lgkmcnt(0)")
    WT0 = os.environ.get("WT0", "0")
    if WT0 != "0":
        a.I("s_cmp_ge_u32 s16, 6")
        a.I(f"s_cbranch_scc1 {N}_nwt")
        a.I("s_lshr_b32 s40, s16, 1")
        a.I("s_cmp_eq_u32 s40, 1")
        a.I("s_cselect_b32 s20, s8, s10")
        a.I("s_cselect_b32 s21, s9, s11")
        a.I("s_cmp_eq_u32 s40, 2")
        a.I("s_cselect_b32 s20, s12, s20")
        a.I("s_cselect_b32 s21, s13, s21")
        a.I(f"s_mov_b32 s22, {hex(4 * MB)}")
        a.I("s_mov_b32 s23, 0x20000")
        a.I("s_and_b32 s40, s16, 1")
        a.I("s_lshl1_add_u32 s40, s2, s40")
        a.I("s_lshl_b32 s40, s40, 13")
        a.I(f"v_lshlrev_b32 {v(t1)}, 7, v0")
        a.I(f"buffer_load_dword v59, {v(t1)}, s[20:23], s40 offen")
        a.label(f"{N}_nwt")
    a.I("s_lshl_b32 s45, s44, 18")
    a.I("s_lshl_b32 s40, s42, 12")
    a.I("s_add_u32 s45, s45, s40")
    a.I(f"s_mov_b32 s92, {hex(512 * 1024)}")
    a.I("s_cmp_eq_u32 s41, 2")
    a.I("s_cselect_b32 s50, s45, s50")
    a.I("s_cselect_b32 s92, 0x2000, s92")
    a.I("s_cselect_b32 s20, s4, s6")
    a.I("s_cselect_b32 s21, s5, s7")
    a.I("s_cselect_b32 s24, s8, s10")
    a.I("s_cselect_b32 s25, s9, s11")
    a.I(f"s_cselect_b32 s51, {hex(WS_Q)}, 0")
    a.I(f"s_cselect_b32 s52, {f32(QSCALE)}, 1.0")
    a.I("s_cmp_eq_u32 s41, 1")
    a.I("s_cselect_b32 s24, s12, s24")
    a.I("s_cselect_b32 s25, s13, s25")
    a.I(f"s_cselect_b32 s51, {hex(WS_V)}, s51")
    a.I("s_mov_b32 s32, s24")
    a.I("s_mov_b32 s33, s25")
    a.I(f"s_mov_b32 s40, {hex(WS_V)}")
    a.I("s_cmp_eq_u32 s18, 10")
    a.I("s_cselect_b32 s32, s12, s32")
    a.I("s_cselect_b32 s33, s13, s33")
    a.I("s_cselect_b32 s53, 0, s53")
    a.I(f"s_add_u32 s45, s49, {hex(31 << 19)}")
    a.I("s_cmp_eq_u32 s18, 31")
    a.I("s_cselect_b32 s53, s48, s53")
    a.I("s_cselect_b32 s43, s50, s43")
    a.I(f"s_cselect_b32 s40, {hex(WS_Q)}, s40")
    a.I("s_cselect_b32 s24, s12, s24")
    a.I("s_cselect_b32 s25, s13, s25")
    a.I(f"s_cselect_b32 s48, {62 * 128}, s48")
    a.I(f"s_cselect_b32 s51, {hex(WS_V)}, s51")
    a.I("s_cselect_b32 s20, s6, s20")
    a.I("s_cselect_b32 s21, s7, s21")
    a.I("s_cselect_b32 s50, s45, s50")
    a.I(f"s_mov_b32 s22, {hex(2 * MB)}")
    a.I("s_mov_b32 s23, 0x20000")
    a.I(f"s_mov_b32 s26, {hex(4 * MB)}")
    a.I("s_mov_b32 s27, 0x20000")

    def late_setup():
        a.I(f"s_mov_b32 s34, {hex(4 * MB)}")
        a.I("s_mov_b32 s35, 0x20000")
        srd(a, 28, 14, 15, 16 * MB, add="s51")
        srd(a, 36, 14, 15, 16 * MB, add="s40")
        srd(a, 56, 4, 5, 2 * MB)
        if os.environ.get("XDROP") == "q":
            a.I("s_cmp_eq_u32 s41, 2")
            a.I("s_cselect_b32 s30, 0, s30")
        if os.environ.get("XDROP") == "all":
            a.I("s_mov_b32 s30, 0")
            a.I("s_mov_b32 s38, 0")
        a.I("s_add_u32 s13, s48, 256")
        a.I("s_add_u32 s17, s53, 256")
        a.I("s_cmp_eq_u32 s18, 31")
        a.I("s_cselect_b32 s4, s32, s24")
        a.I("s_cselect_b32 s5, s33, s25")
        a.I("s_cselect_b32 s13, s53, s13")
        a.I("s_cselect_b32 s17, s17, s53")
        a.I(f"s_mov_b32 s6, {hex(4 * MB)}")
        a.I("s_mov_b32 s7, 0x20000")

    def w_prefetch(g):
        for th, (col, sr) in enumerate([("s13", "s[4:7]"), ("s17", "s[32:35]")]):
            g.lq.append((["s_mov_b64 exec, 0xffff"], f"buffer_load_dword {v(61 + th)}, v23, {sr}, {col} offen{PP}", "pf"))

    def addr_setup():
        a.I(f"v_lshrrev_b32 {v(G)}, 4, v0")
        a.I(f"v_bfe_u32 {v(t1)}, v0, 3, 1")
        a.I(f"v_lshlrev_b32 {v(t1)}, 4, {v(t1)}")
        a.I(f"v_and_b32 {v(t2)}, 7, v0")
        a.I(f"v_add_u32 {v(t1)}, {v(t1)}, {v(t2)}")
        a.I(f"v_bfe_u32 {v(t2)}, {v(t1)}, 1, 3")
        a.I(f"v_xor_b32 {v(t2)}, {v(t2)}, {v(G)}")
        a.I(f"v_lshlrev_b32 {v(t2)}, 4, {v(t2)}")
        a.I(f"v_lshl_add_u32 {v(AR_)}, {v(t1)}, 7, {v(t2)}")
        a.I(f"v_xor_b32 {v(AR_ + 1)}, 64, {v(AR_)}")
        a.I(f"v_add_u32 {v(AR_)}, s46, {v(AR_)}")
        a.I(f"v_add_u32 {v(AR_ + 1)}, s46, {v(AR_ + 1)}")
        a.I(f"v_lshlrev_b32 {v(t2)}, 9, {v(G)}")
        a.I(f"v_lshl_add_u32 {v(SK)}, {v(t1)}, 4, {v(t2)}")
        a.I(f"v_and_b32 {v(t3)}, 15, v0")
        a.I(f"v_lshl_add_u32 {v(SV)}, {v(t3)}, 4, {v(t2)}")
        a.I(f"v_bfe_u32 {v(t1)}, v0, 2, 2")
        a.I(f"v_lshl_add_u32 {v(t1)}, {v(G)}, 3, {v(t1)}")
        a.I(f"v_lshlrev_b32 {v(t1)}, 7, {v(t1)}")
        a.I(f"v_and_b32 {v(t2)}, 3, v0")
        a.I(f"v_lshl_add_u32 {v(t1)}, {v(t2)}, 3, {v(t1)}")
        a.I(f"v_bfe_u32 {v(t2)}, v0, 3, 2")
        a.I(f"v_lshl_add_u32 {v(t1)}, {v(t2)}, 5, {v(t1)}")
        for ct in range(4):
            a.I(f"v_xor_b32 {v(TB + ct)}, {32 * ct}, {v(t1)}")
        for ct in range(4):
            a.I(f"v_add_u32 {v(TB + 4 + ct)}, 0x10000, {v(TB + ct)}")
            a.I(f"v_add_u32 {v(TB + 8 + ct)}, 0x20000, {v(TB + ct)}")

    def b_common():
        a.I("s_and_b32 s8, s2, 7")
        a.I("s_lshl_b32 s8, s8, 3")
        a.I("s_bfe_u32 s9, s2, 0x30003")
        a.I("s_or_b32 s8, s8, s9")
        a.I("s_lshr_b32 s9, s2, 6")
        a.I("s_lshr_b32 s66, s9, 1")
        a.I("s_lshl_b32 s66, s66, 11")
        a.I("s_lshr_b32 s10, s8, 5")
        a.I("s_lshl_b32 s10, s10, 10")
        a.I("s_add_u32 s66, s66, s10")
        a.I("s_and_b32 s10, s8, 31")
        a.I("s_lshl_b32 s10, s10, 4")
        a.I("s_add_u32 s66, s66, s10")
        a.I("s_and_b32 s10, s9, 1")
        a.I("s_lshl_b32 s10, s10, 9")
        a.I("s_add_u32 s66, s66, s10")

    HL, NF, BS, F2, TM, X1, X2, X3 = 70, 71, 72, 73, 74, 78, 79, 80
    C32, NS32, AR, AI, XF, D1R, D1I, TR, TI, D2 = 84, 92, 100, 104, 108, 116, 132, 148, 158, 168
    pc8 = [PERMC(j) for j in range(8)]

    def fft_loads(vm):
        a.I("s_lshr_b32 s10, s9, 1")
        a.I("s_lshl_b32 s10, s10, 4")
        a.I("s_and_b32 s11, s9, 1")
        a.I("s_lshl_b32 s11, s11, 2")
        a.I("s_add_u32 s10, s10, s11")
        a.I("s_lshr_b32 s11, s16, 1")
        a.I("s_lshl_b32 s11, s11, 3")
        a.I("s_add_u32 s10, s10, s11")
        a.I("s_and_b32 s11, s16, 1")
        a.I("s_lshl_b32 s11, s11, 1")
        a.I("s_add_u32 s10, s10, s11")
        a.I("s_lshl_b32 s10, s10, 6")
        a.I("s_add_u32 s10, s10, s8")
        a.I("s_lshl_b32 s10, s10, 10")
        a.I(f"s_add_u32 s11, s10, {65536 - 1024}")
        a.I(f"s_add_u32 s3, s47, {BLDS}")
        a.I("s_mov_b32 m0, s3")
        a.I(f"s_mov_b32 s62, {hex(2 * MB)}")
        a.I("s_mov_b32 s63, 0x20000")
        vm.issue(f"buffer_load_dwordx4 {v(L16)}, s[60:63], s10 offen{BP} lds", "bx")
        vm.issue(f"buffer_load_dwordx4 {v(L16)}, s[60:63], s11 offen offset:1024{BP} lds", "bx")

    def fft_compute(g):
        vm = g.vm
        a.I(f"v_lshrrev_b32 {v(X2)}, 5, v0")
        a.I(f"v_cvt_f32_u32 {v(HL)}, {v(X2)}")
        a.I(f"v_and_b32 {v(F2)}, 31, v0")
        a.I(f"v_cvt_f32_u32 {v(F2)}, {v(F2)}")
        a.I(f"v_mul_f32 {v(NF)}, {f32(1 / 32)}, {v(F2)}")
        a.I(f"v_mul_f32 {v(BS)}, {v(NF)}, {v(HL)}")
        a.I(f"v_mul_f32 {v(BS)}, {f32(8.0)}, {v(BS)}")
        nat = [16 * t + j for t in range(2) for j in range(8)]
        gen_mat(a, C32, NF, BS, nat, TM)
        a.I(f"v_add_f32 {v(BS)}, {f32(0.25)}, {v(BS)}")
        gen_mat(a, NS32, NF, BS, nat, TM)
        a.I(f"v_bfe_u32 {v(X1)}, v0, 4, 1")
        a.I(f"v_lshlrev_b32 {v(X1)}, 10, {v(X1)}")
        a.I(f"v_lshl_add_u32 {v(X1)}, {v(X2)}, 8, {v(X1)}")
        a.I(f"v_and_b32 {v(X3)}, 15, v0")
        a.I(f"v_lshl_add_u32 {v(X1)}, {v(X3)}, 3, {v(X1)}")
        a.I(f"v_add_u32 {v(X1)}, s3, {v(X1)}")
        vm.wait("bx")
        for t in range(2):
            for h in range(2):
                a.I(f"ds_read_b64_tr_b16 {v(XF + 4 * t + 2 * h, 2)}, {v(X1)} offset:{t * 512 + h * 128}")
        a.I(f"v_cvt_f32_u32 {v(X3)}, {v(X3)}")
        a.I(f"v_mul_f32 {v(NF)}, {f32(1 / 16)}, {v(X3)}")
        a.I(f"v_bfe_u32 {v(X1)}, v0, 4, 1")
        a.I(f"v_cvt_f32_u32 {v(X1)}, {v(X1)}")
        a.I(f"v_mul_f32 {v(BS)}, {v(NF)}, {v(HL)}")
        a.I(f"v_mul_f32 {v(BS)}, 4.0, {v(BS)}")
        a.I(f"v_fmamk_f32 {v(BS)}, {v(X1)}, {f32(0.25)}, {v(BS)}")
        a.I("s_waitcnt lgkmcnt(0)")
        for D, Mx in ((D1R, C32), (D1I, NS32)):
            for t in range(2):
                a.I(f"{MF} {v(D, 16)}, {v(XF + 4 * t, 4)}, {v(Mx + 4 * t, 4)}, {'0' if t == 0 else v(D, 16)}")
        gen_mat(a, AR, NF, BS, pc8, TM)
        a.I(f"v_add_f32 {v(BS)}, {f32(-0.25)}, {v(BS)}")
        gen_mat(a, AI, NF, BS, pc8, TM)
        a.I(f"v_mul_f32 {v(NF)}, {f32(1 / 512)}, {v(F2)}")
        a.I(f"v_mul_f32 {v(BS)}, {v(NF)}, {v(HL)}")
        a.I(f"v_mul_f32 {v(BS)}, 4.0, {v(BS)}")
        twiddle(a, D1R, D1I, [[j, j + 8] for j in range(8)], NF, BS, pc8, -1, TM)
        pack(a, TR, D1R, 8)
        pack(a, TI, D1I, 8)
        a.I(f"v_and_b32 {v(X3)}, 31, v0")
        a.I(f"v_lshlrev_b32 {v(X3)}, 4, {v(X3)}")
        for r in range(2):
            a.I(f"{MF} {v(D2 + 16 * r, 16)}, {v(AR, 4)}, {v(TR + 4 * r, 4)}, 0")
            a.I(f"{MF} {v(D2 + 16 * r, 16)}, {v(AI, 4)}, {v(TI + 4 * r, 4)}, {v(D2 + 16 * r, 16)}")
        a.I(f"v_lshl_add_u32 {v(X3)}, {v(X2)}, 11, {v(X3)}")
        a.I("s_lshl_b32 s10, s16, 2")
        a.I(f"s_add_u32 s11, s10, {BLDS + 8192}")
        a.I(f"v_add_u32 {v(X3)}, s11, {v(X3)}")
        a.I(f"v_mov_b32 {v(X2)}, s10")
        a.I(f"s_add_u32 s67, s66, {256 * 8192}")
        a.I(f"s_add_u32 s11, s66, {256 * 8192 + 4096}")
        srd(a, 60, 14, 15, 8 * MB, add=WS_Y)
        a.I("s_nop 1")
        for c in range(2):
            for j in range(5):
                a.I(f"v_cvt_pk_bf16_f32 {v(TR + 5 * c + j)}, {v(D2 + 8 * c + j)}, {v(D2 + 16 + 8 * c + j)}")
        for c in range(2):
            for j in range(4):
                a.I(f"ds_write_b32 {v(X3)}, {v(TR + 5 * c + j)} offset:{(c * 8 + j) * 512}")
        a.I = I0
        a.I("s_mov_b64 exec, 1")
        vm.issue(f"buffer_store_dword {v(TR + 4)}, {v(X2)}, s[60:63], s67 offen", "bs")
        vm.issue(f"buffer_store_dword {v(TR + 9)}, {v(X2)}, s[60:63], s11 offen", "bs")
        a.I("s_mov_b64 exec, -1")

    WFR, WFP, FX1, FX2 = 176, 52, 186, 187

    def filt_setup():
        a.I("s_lshr_b32 s10, s9, 1")
        a.I("s_lshl_b32 s10, s10, 5")
        a.I("s_lshr_b32 s11, s8, 5")
        a.I("s_lshl_b32 s11, s11, 4")
        a.I("s_add_u32 s10, s10, s11")
        a.I("s_and_b32 s11, s9, 1")
        a.I("s_lshl_b32 s11, s11, 2")
        a.I("s_add_u32 s10, s10, s11")
        a.I("s_lshl_b32 s10, s10, 5")
        a.I("s_and_b32 s11, s8, 31")
        a.I("s_add_u32 s10, s10, s11")
        a.I("s_mul_i32 s19, s10, 514")
        a.I(f"v_lshlrev_b32 {v(FX1)}, 1, {v(TID)}")
        a.I(f"v_and_b32 {v(FX2)}, 3, v0")
        a.I(f"v_bfe_u32 {v(t1)}, v0, 2, 1")
        a.I(f"v_lshl_add_u32 {v(FX2)}, {v(t1)}, 3, {v(FX2)}")
        a.I(f"v_mul_u32_u24 {v(FX2)}, {32 * 514}, {v(FX2)}")
        a.I(f"v_add_u32 {v(FX2)}, 512, {v(FX2)}")
        a.I("s_cmp_ge_u32 s16, 4")
        a.I("s_cselect_b32 s8, s64, s0")
        a.I("s_cselect_b32 s9, s65, s1")
        a.I(f"s_mov_b32 s10, {2048 * 514}")
        a.I("s_mov_b32 s11, 0x20000")

    def filt_loads(g):
        for j in range(8):
            g.lq.append(([f"s_add_u32 s12, s19, {PERMC(j) * 32 * 514}"],
                         f"buffer_load_ushort {v(WFR + j)}, {v(FX1)}, s[8:11], s12 offen{BP}", "wf"))
        g.lq.append(([], f"buffer_load_ushort {v(WFR + 8)}, {v(FX2)}, s[8:11], s19 offen{BP}", "wf"))

    def filt_finish(g):
        vm = g.vm
        L = [lambda: (g.flush("wf"), vm.wait("wf"))]
        for i in range(4):
            L.append(lambda i=i: a.I(f"v_lshl_or_b32 {v(WFP + i)}, {v(WFR + 1 + 2 * i)}, 16, {v(WFR + 2 * i)}"))
        L.append(lambda: a.I(f"v_lshlrev_b32 {v(YS)}, 12, {v(FX1)}"))
        L.append(lambda: a.I(f"v_lshlrev_b32 {v(FX2)}, 1, v0"))
        L.append(lambda: (a.I("s_mov_b64 exec, 0xff"),
                          vm.issue(f"buffer_store_short {v(WFR + 8)}, {v(FX2)}, s[60:63], s67 offen", "bs"),
                          a.I("s_mov_b64 exec, -1")))
        return L

    def scat(g):
        g.vm.issue(f"buffer_store_dwordx4 {v(YD, 4)}, {v(YS)}, s[60:63], s66 offen", "bs")

    def scat_next():
        for i in range(4):
            a.I(f"v_mov_b32 {v(YD + i)}, {v(WFP + i)}")
        a.I(f"s_add_u32 s66, s66, {hex(WS_WF - WS_Y)}")

    YA, YD, YS = 56, 48, 23
    ACC, RING, PK, AFB = 192, 24, 56, 64
    LOOK = 4
    AHEAD = int(os.environ.get("AHEAD", "4"))

    def AF(rt, k):
        return AFB + (k * 2 + rt) * 4

    class Gen:
        def __init__(self, passes, nmerge, vmq):
            self.passes, self.nmerge = passes, nmerge
            self.vm, self.lg = VM(a), LG(a)
            self.vm.q = list(vmq)
            self.busy, self.nxt, self.dq, self.lq = {}, 0, [], []
            self.chunks, self.frags, self.groups = [], [], {}
            for pp in range(0, len(passes), 2):
                if pp // 2 < nmerge:
                    for kc in range(4):
                        c = len(self.chunks)
                        self.chunks += [(pp, kc), (pp + 1, kc)]
                        self.groups[len(self.frags)] = [c, c + 1]
                        for ks in range(4):
                            for h in range(2):
                                self.frags += [(c + h, ks, ct) for ct in range(4)]
                else:
                    for q in range(2):
                        for kc in range(4):
                            c = len(self.chunks)
                            self.chunks.append((pp + q, kc))
                            if GRP2 == 0:
                                self.groups[len(self.frags)] = [c]
                            elif kc % 2 == 0:
                                self.groups[len(self.frags)] = [c, c + 1]
                            self.frags += [(c, ks, ct) for ks in range(4) for ct in range(4)]
            self.prev = [[], []]
            self.b1busy = True
            self.skip_boundary = False

        def blk(self, c):
            nm = 8 * self.nmerge
            if c < nm:
                return 4 + 2 * ((c // 2) % 3) + (c & 1)
            if self.nmerge == 1:
                return [6, 7, 8, 9, 0, 1, 2, 3][(c - nm) % 8]
            return [8, 9, 4, 5, 0, 1, 2, 3][(c - nm) % 8]

        def dmaW(self, now, done):
            c = self.nxt
            if c >= len(self.chunks) or c > now + AHEAD:
                return False
            b = self.blk(c)
            if b in self.busy and self.busy[b] not in done:
                return False
            if b == 9 and self.b1busy:
                return False
            if b < 4 and now < 8 * self.nmerge:
                return False
            self.busy[b] = c
            self.nxt += 1
            pp, kc = self.chunks[c]
            form, wsel, wdi, osel, odi = self.passes[pp]
            sr = "s[32:35]" if wsel else "s[24:27]"
            for q in range(2):
                pre = [f"s_add_u32 m0, s47, {hex(b * 16384)}",
                       f"s_add_u32 s45, {'s53' if wsel else 's48'}, {hex((kc << 20) + wdi * 128)}"] if q == 0 else []
                self.dq.append((pre, f"buffer_load_dwordx4 {v(WV + q)}, {sr}, s45 offen offset:{q * 1024}{LP} lds", ("W", c)))
            return True

        def pump(self, n=1):
            for _ in range(n):
                q = self.dq or self.lq
                if q:
                    pre, ins, tag = q.pop(0)
                    a.many(pre)
                    self.vm.issue(ins, tag)
                    if tag == "pf":
                        a.I("s_mov_b64 exec, -1")

        def flush(self, tag=None):
            while any(tag is None or x[2] == tag for x in self.dq + self.lq):
                self.pump()

        def dmaA(self, j):
            sr = "s[56:59]" if j >= 8 else "s[20:23]"
            k = 0
            while k < len(self.dq) and not self.dq[k][0]:
                k += 1
            for i in range(4):
                pre = [f"s_add_u32 m0, s46, {hex((j % 2) * 4096)}", f"s_mov_b32 s45, {(j % 8) * 128}"] if i == 0 else []
                self.dq.insert(k + i, (pre, f"buffer_load_dwordx4 {v(AV + i)}, {sr}, s45 offen offset:{i * 1024}{AP} lds", ("A", j)))

        def readA(self, j):
            self.flush(("A", j))
            self.vm.wait(("A", j))
            for ks in range(2):
                for x in range(2):
                    self.lg.issue(f"ds_read_b128 {v(AF(x, 2 * (j % 8) + ks), 4)}, {v(AR_ + (ks ^ x))} "
                                  f"offset:{(j % 2) * 4096 + x * 1024}", ("A", j))

        def reads(self, i, halves=(0, 1)):
            c, ks, ct = self.frags[i]
            b = self.blk(c)
            base = TB + 4 * (b // 4) + ct
            off = (b % 4) * 16384 + ks * 4096
            d = RING + 4 * slot(i)
            for h in halves:
                self.lg.issue(f"ds_read_b64_tr_b16 {v(d + 2 * h, 2)}, {v(base)} offset:{off + 512 * h}", ("W", i))

        def sync(self, grp):
            for c in grp:
                self.flush(("W", c))
            self.vm.wait([("W", c) for c in grp])
            a.I("s_barrier")
            lo = self.prev[1][0] if self.prev[1] else 0
            done = set(range(lo))
            if self.prev[1]:
                self.b1busy = False
            self.prev = [self.prev[1], grp]
            while self.dmaW(grp[0], done):
                pass

        def acc(self, pp, rt, ct):
            return ACC + 32 * (pp & 1) + 4 * (4 * rt + ct)

        def epi(self, pp):
            out = []
            form, wsel, wdi, osel, u = self.passes[pp]
            so = 54 + (pp & 1)
            sr = "s[36:39]" if osel else "s[28:31]"
            def so_calc():
                a.I(f"s_add_u32 s{so}, {'s43' if osel else 's50'}, {(u & 1) * 4096}")
                assert (u >> 1) in (-1, 0, 1)
                if u >> 1:
                    a.I(f"s_{'add' if (u >> 1) > 0 else 'sub'}_u32 s{so}, s{so}, s92")
            out.append(so_calc)
            for q in range(4):
                pk = PK + 4 * (q % 2)
                if form == "K":
                    x, cp = divmod(q, 2)
                    srcs = [self.acc(pp, x, 2 * cp), self.acc(pp, x, 2 * cp + 1)]
                    off, va = x * 128 + cp * 2048, SK
                else:
                    srcs = [self.acc(pp, 0, q), self.acc(pp, 1, q)]
                    off, va = (q >> 1) * 2048 + (q & 1) * 256, SV
                for i in range(4):
                    src = srcs[i // 2] + 2 * (i % 2)
                    if form == "K":
                        out.append(lambda src=src: a.I(f"v_mul_f32 {v(src)}, s52, {v(src)}"))
                        out.append(lambda src=src: a.I(f"v_mul_f32 {v(src + 1)}, s52, {v(src + 1)}"))
                    out.append(lambda src=src, pk=pk, i=i: a.I(f"v_cvt_pk_bf16_f32 {v(pk + i)}, {v(src)}, {v(src + 1)}"))
                out.append(lambda pk=pk, va=va, off=off: self.vm.issue(
                    f"buffer_store_dwordx4 {v(pk, 4)}, {v(va)}, {sr}, s{so} offen offset:{off}{SP}", ("S", pp)))
            return out

        def boundary(self, pps):
            self.flush("pf")
            self.vm.wait("pf")
            a.I("s_nop 6")
            for pp in pps:
                for f in self.epi(pp):
                    f()

        def run(self, p0, p1):
            lg = self.lg
            NF_ = len(self.frags)
            NA = 8 * self.nmerge
            pend = []
            for i in range(64 * p0, 64 * p1):
                c, ks, ct = self.frags[i]
                pp, kc = self.chunks[c]
                k = 4 * kc + ks
                if i % 128 == 0 and 0 < i <= 128 * self.nmerge and not self.skip_boundary:
                    self.boundary([i // 64 - 2] + ([i // 64 - 1] if i < 128 * self.nmerge else []))
                if i % 2 == 0:
                    lg.wait([("W", i), ("W", i + 1), ("A", i // 16)])
                if i % 16 == 0 and i // 16 + 2 < NA:
                    self.dmaA(i // 16 + 2)
                wf = v(RING + 4 * slot(i), 4)
                j = i + LOOK
                for rt in range(2):
                    ac = v(self.acc(pp, rt, ct), 4)
                    af = v(AF(rt, k), 4)
                    cin = "0" if k == 0 else ac
                    if self.passes[pp][0] == "V":
                        a.I(f"{M16} {ac}, {af}, {wf}, {cin}")
                    else:
                        a.I(f"{M16} {ac}, {wf}, {af}, {cin}")
                    if j < NF_:
                        if rt == 0 and j in self.groups:
                            self.sync(self.groups[j])
                        if rt == 0 and j % 16 == 0 and j // 16 < NA:
                            self.readA(j // 16)
                        self.reads(j, (rt,))
                    if rt == 0 and pend:
                        pend.pop(0)()
                    if rt == 1 and i % 2 == 0:
                        if self.dq or self.lq:
                            self.pump(1)
                        elif pend:
                            pend.pop(0)()
                if i % 64 == 63:
                    assert not pend
                if i % 64 == 3 and i >= 128 * self.nmerge:
                    pend = self.epi(i // 64 - 1)
                if i == PF_AT:
                    w_prefetch(self)
                if i == LATE_AT:
                    filt_loads(self)
                if i == FILT_AT:
                    pend = filt_finish(self)
                if i >= 128 and i % 128 == SCAT_AT:
                    scat(self)
                if i >= 128 and i % 128 == 127:
                    scat_next()
                if i in STF:
                    st()
            self.flush()

        def wo_load(self):
            blk = 4 if self.nmerge == 1 else 6
            srd(a, 8, 90, 91, 4 * MB)
            a.I("s_lshl_b32 s12, s2, 14")
            a.I("s_lshl_b32 s13, s16, 7")
            a.I("s_add_u32 s12, s12, s13")
            a.I(f"s_add_u32 s13, s12, {8192 - 1024}")
            a.I(f"s_add_u32 s17, s47, {blk * 16384}")
            a.I("s_mov_b32 m0, s17")
            a.I(f"v_lshrrev_b32 {v(AV)}, 3, v0")
            a.I(f"v_lshlrev_b32 {v(AV)}, 10, {v(AV)}")
            a.I(f"v_and_b32 {v(AV + 1)}, 7, v0")
            a.I(f"v_lshl_add_u32 {v(AV)}, {v(AV + 1)}, 4, {v(AV)}")
            self.vm.issue(f"buffer_load_dwordx4 {v(AV)}, s[8:11], s12 offen{BP} lds", "wo")
            self.vm.issue(f"buffer_load_dwordx4 {v(AV)}, s[8:11], s13 offen offset:1024{BP} lds", "wo")
            a.I(f"v_lshrrev_b32 {v(AV + 1)}, 5, v0")
            a.I(f"v_bfe_u32 {v(AV + 2)}, v0, 2, 2")
            a.I(f"v_lshl_add_u32 {v(AV + 1)}, {v(AV + 1)}, 2, {v(AV + 2)}")
            a.I(f"v_lshlrev_b32 {v(AV + 1)}, 7, {v(AV + 1)}")
            a.I(f"v_bfe_u32 {v(AV + 2)}, v0, 4, 1")
            a.I(f"v_lshl_add_u32 {v(AV + 1)}, {v(AV + 2)}, 5, {v(AV + 1)}")
            a.I(f"v_and_b32 {v(AV + 2)}, 3, v0")
            a.I(f"v_lshl_add_u32 {v(AV + 1)}, {v(AV + 2)}, 3, {v(AV + 1)}")
            a.I(f"v_add_u32 {v(AV + 1)}, s17, {v(AV + 1)}")
            a.I(f"v_lshlrev_b32 {v(AV + 2)}, 4, v0")
            a.I("s_lshl_b32 s17, s16, 19")
            a.I("s_lshl_b32 s13, s2, 11")
            a.I("s_add_u32 s17, s17, s13")

        def fin(self, pp):
            self.vm.wait("wo")
            for cb in range(2):
                for h in range(2):
                    a.I(f"ds_read_b64_tr_b16 {v(RING + 4 * cb + 2 * h, 2)}, {v(AV + 1)} offset:{cb * 64 + h * 1024}")
            srd(a, 8, 14, 15, 4 * MB, add=WS_WO)
            a.I("s_waitcnt lgkmcnt(0)")
            for cb in range(2):
                a.I(f"buffer_store_dwordx4 {v(RING + 4 * cb, 4)}, {v(AV + 2)}, s[8:11], s17 offen offset:{cb * 1024}{SP}")
            code_touch(a, "attn_kernel", 16, 20, 32)
            for f in self.epi(pp):
                f()
            st.dump(16, 14, tmpv=24)
            a.I("s_endpgm")


    def slot(i):
        j = i % 128
        return j % 6 if j < 108 else (j - 108) % 5

    I0 = a.I
    cnt = [0]
    gp = [None]

    def Ipump(text):
        r = I0(text)
        if text.startswith("v_") and not text.startswith("v_mfma"):
            cnt[0] += 1
            if cnt[0] % PUMP == 0 and gp[0].dq:
                a.I = I0
                gp[0].pump()
                a.I = Ipump
        return r

    b_common()
    a.I("s_mov_b64 s[0:1], s[62:63]")
    g0 = Gen([("K", 0, i, 0, i) for i in range(2)], 1, [])
    a.I("s_cmp_ge_u32 s16, 4")
    a.I(f"s_cbranch_scc1 {N}_nofl")
    fft_loads(VM(a))
    a.label(f"{N}_nofl")
    for _ in range(2):
        g0.dmaW(0, set())
    g0.dmaA(0)
    g0.flush()
    g0.dmaA(1)
    for _ in range(2):
        g0.dmaW(0, set())
    g0.flush()
    st()
    late_setup()
    addr_setup()
    g0.dmaW(0, set())
    a.I("s_cmp_ge_u32 s16, 4")
    a.I(f"s_cbranch_scc1 {N}_join")
    gf = Gen([("K", 0, i, 0, i) for i in range(2)], 1, ["bx", "bx"] + g0.vm.q)
    fft_compute(gf)
    a.label(f"{N}_join")
    filt_setup()
    if os.environ.get("L1PRIO"):
        a.I("s_cmp_lt_u32 s16, 4")
        a.I(f"s_cbranch_scc1 {N}_np")
        a.I(f"s_setprio {os.environ['L1PRIO']}")
        a.label(f"{N}_np")
    srd(a, 60, 14, 15, 8 * MB, add=WS_Y)
    vmq = list(g0.vm.q)
    st()
    stn = st.n
    def y_prep():
        a.I(f"v_lshlrev_b32 {v(YA)}, 4, {v(TID)}")
        a.I("s_lshr_b32 s12, s16, 2")
        a.I("s_lshl_b32 s12, s12, 12")
        a.I("s_add_u32 s66, s66, s12")
        a.I(f"s_add_u32 s67, s66, {256 * 8192 + WS_WF - WS_Y}")
        a.I(f"s_add_u32 s12, s12, {BLDS + 8192}")
        a.I(f"v_add_u32 {v(YA)}, s12, {v(YA)}")

    y_prep()

    def mkgen(passes, nmerge=1):
        g = Gen(passes, nmerge, vmq)
        g.busy, g.nxt, g.dq = dict(g0.busy), g0.nxt, list(g0.dq)
        st.n = stn
        return g

    def start(g):
        a.I("s_waitcnt lgkmcnt(0)")
        g.readA(0)
        g.sync(g.groups[0])
        st()
        g.lg.issue(f"ds_read_b128 {v(YD, 4)}, {v(YA)}", "y")
        for i in range(LOOK):
            g.reads(i)

    def capture(fn):
        n0 = len(a.items)
        fn()
        seg = a.items[n0:]
        del a.items[n0:]
        return seg

    def merge(s1, s2):
        import asmlib
        assert len(s1) == len(s2), (len(s1), len(s2))
        out = []
        for x, y in zip(s1, s2):
            if x[0] == "i" and x[1].text != y[1].text:
                assert x[1].text.startswith("s_waitcnt vmcnt") and y[1].text.startswith("s_waitcnt vmcnt"), (x[1].text, y[1].text)
                n = min(int(x[1].text[16:-1]), int(y[1].text[16:-1]))
                out.append(("i", asmlib.Ins(f"s_waitcnt vmcnt({n})")))
            else:
                out.append(x)
        return out

    def looped(F, lab):
        def plist(pair):
            L = []
            for pp in range(8):
                if pair == 0:
                    L.append((F, 0, pp, 0, pp))
                else:
                    rel = pp - pair
                    L.append((F, 1 if rel >= 2 else 0, rel - 2 if rel >= 2 else rel, 0, rel))
            return L
        g = mkgen(plist(0))
        start(g)
        g.run(0, 2)
        g.boundary([0])
        g.skip_boundary = True
        g.wo_load()
        st()
        a.I("s_add_u32 s48, s48, 256")
        a.I("s_add_u32 s50, s50, s92")
        a.I("s_mov_b32 s44, 0")
        g.passes = plist(2)
        s1 = capture(lambda: g.run(2, 4))
        g.passes = plist(4)
        s2 = capture(lambda: g.run(4, 6))
        a.label(lab + "_loop")
        a.items += merge(s1, s2)
        if F == "K":
            a.I("s_cmp_eq_u32 s18, 10")
            a.I(f"s_cbranch_scc1 {N}_Ctail")
        a.I("s_mov_b32 s48, s53")
        a.I("s_mov_b32 s34, 0")
        a.I("s_add_u32 s50, s50, s92")
        a.I("s_add_u32 s44, s44, 1")
        a.I("s_cmp_lt_u32 s44, 2")
        a.I(f"s_cbranch_scc1 {lab}_loop")
        g.passes = plist(6)
        g.fin(5)
        return g

    a.I("s_cmp_eq_u32 s18, 31")
    a.I(f"s_cbranch_scc1 {N}_D")
    a.I("s_cmp_eq_u32 s41, 1")
    a.I(f"s_cbranch_scc1 {N}_B")
    looped("K", N + "_A")
    a.label(f"{N}_Ctail")
    gc = mkgen([("K", 0, pp, 0, pp) for pp in range(4)] + [("V", 1, 0, 1, 0), ("V", 1, 1, 1, 1)])
    capture(lambda: (start(gc), gc.run(0, 2), gc.wo_load(), gc.run(2, 4)))
    gc.passes[3] = ("K", 0, 1, 0, 1)
    st.n = stn + 5
    gc.run(4, 6)
    gc.fin(5)
    a.label(N + "_B")
    looped("V", N + "_B2")
    a.label(N + "_D")
    gd = mkgen([("V", 0, 0, 0, 0), ("V", 0, 1, 0, 1)] + [("K", 1, i, 1, i) for i in range(4)], 2)
    start(gd)
    gd.run(0, 2)
    st()
    gd.run(2, 5)
    gd.wo_load()
    gd.run(5, 6)
    gd.fin(5)
    kend(a, N)
    return a, N, (256, 512, 163840)


def gen_l3():
    a = Asm()
    N = "l3_kernel"
    kstart(a, N, 256)
    a.I("s_load_dwordx2 s[4:5], s[0:1], 88")
    a.I("s_load_dwordx2 s[8:9], s[0:1], 72")
    a.I("v_lshrrev_b32 v1, 6, v0")
    a.I("v_and_b32 v2, 255, v0")
    a.I("v_and_b32 v0, 63, v0")
    a.I("v_readfirstlane_b32 s17, v1")
    st = Stamper(a, "l3")
    WF, ACCS, RING, L16, LR, CMB = 128, [68, 84], 100, 124, 125, 127
    LOOK = 5
    a.I("s_bfe_u32 s40, s2, 0x20001")
    a.I("s_and_b32 s43, s2, 1")
    a.I("s_lshl_b32 s43, s43, 5")
    a.I("s_lshr_b32 s44, s2, 3")
    a.I("s_add_u32 s43, s43, s44")
    a.I("s_lshr_b32 s41, s43, 2")
    a.I("s_and_b32 s42, s43, 3")
    a.I("s_and_b32 s16, s17, 3")
    a.I("s_lshr_b32 s18, s17, 2")
    a.I(f"v_lshlrev_b32 {v(L16)}, 4, v0")
    a.I("s_lshl_b32 s45, s42, 1")
    a.I("s_lshr_b32 s46, s16, 1")
    a.I("s_add_u32 s45, s45, s46")
    a.I("s_lshl_b32 s45, s45, 19")
    a.I("s_lshl1_add_u32 s46, s40, s18")
    a.I("s_lshl_b32 s46, s46, 16")
    a.I("s_add_u32 s45, s45, s46")
    a.I("s_and_b32 s46, s16, 1")
    a.I("s_lshl_b32 s46, s46, 10")
    a.I("s_add_u32 s45, s45, s46")
    a.I(f"s_add_u32 s45, s45, {hex(WS_WO)}")
    a.I("s_lshl_b32 s47, s18, 15")
    a.I("s_lshl_b32 s48, s16, 10")
    a.I("s_add_u32 s47, s47, s48")
    a.I("s_lshl_b32 s46, s41, 20")
    a.I("s_lshl_b32 s48, s40, 16")
    a.I("s_add_u32 s46, s46, s48")
    a.I("s_add_u32 s46, s46, s47")
    a.I(f"s_add_u32 s46, s46, {hex(WS_CTX)}")
    a.I("s_lshl_b32 s48, s18, 15")
    a.I(f"v_add_u32 {v(LR)}, s48, {v(L16)}")
    a.I(f"v_add_u32 {v(LR + 1)}, 0x10000, {v(LR)}")
    a.I("s_lshl_b32 s48, s16, 12")
    a.I(f"s_add_u32 s48, s48, {131072}")
    a.I(f"v_add_u32 {v(CMB)}, s48, {v(L16)}")
    a.I("s_waitcnt lgkmcnt(0)")
    srd(a, 52, 4, 5, 64 * MB)
    st()
    vm, lg = VM(a), LG(a)

    def sub_off(n, dst):
        a.I(f"s_add_u32 {s(dst)}, s40, {n + 1}")
        a.I(f"s_and_b32 {s(dst)}, {s(dst)}, 3")
        a.I(f"s_lshl_b32 {s(dst)}, {s(dst)}, 18")
        a.I(f"s_add_u32 {s(dst)}, {s(dst)}, s46")

    for n in range(4):
        sub_off(n, 36 + n)

    def cdma(n, i):
        return [lambda: (a.I(f"s_add_u32 m0, s47, {(n & 1) * 65536 + i * 4096}"),
                         a.I(f"s_add_u32 s49, s{36 + n}, {i * 4096}"),
                         vm.issue(f"buffer_load_dwordx4 {v(L16)}, s[52:55], s49 offen lds", ("C", n, i // 2)))]

    def wload(g):
        def f():
            if g % 2 == 0 and g:
                a.I("s_add_u32 s45, s45, 4096")
            vm.issue(f"buffer_load_dwordx4 {v(WF + 4 * g, 4)}, {v(L16)}, s[52:55], s45 offen offset:{(g % 2) * 2048}", ("W", g))
        return [f]

    pend = []
    for c in range(4):
        for i in (2 * c, 2 * c + 1):
            pend += cdma(0, i) + cdma(1, i)
        for g in range(8 * c, 8 * c + 8):
            pend += wload(g)
    tags = []
    for c in range(4):
        tags += [("C", 0, c), ("C", 1, c)] * 2 + [("W", g) for g in range(8 * c, 8 * c + 8)]
    ptag = list(tags)

    def pump(k=1):
        for _ in range(k):
            if pend:
                pend.pop(0)()
                ptag.pop(0)

    def need(tg):
        while any(x in ptag for x in tg):
            pump()

    pump(PRE3)
    b3_loads(a, 8)
    srd(a, 56, 4, 5, 16 * MB, add=WS_PART)
    srd(a, 60, 4, 5, 64 * 128, add=WS_FLAG)
    a.I("s_lshl_b32 s64, s43, 7")
    a.I("s_lshl2_add_u32 s67, s40, s64")
    LA, LB_ = 28, 29
    a.I("s_lshl_b32 s48, s18, 16")
    a.I(f"v_add_u32 {v(LA)}, s48, {v(LR)}")
    a.I(f"v_xor_b32 {v(LB_)}, 0x10000, {v(LA)}")
    st()
    AC = [68, 84, 32]
    sched = []
    for g in range(32):
        sched += [(AC[0], LA, g), (AC[1], LB_, g)]
    sched += [(AC[2], LR, g) for g in range(32)] + [(AC[1], LR + 1, g) for g in range(32)]

    def read(i):
        lg.issue(f"ds_read_b128 {v(RING + 4 * (i % 6), 4)}, {v(sched[i][1])} offset:{sched[i][2] * 1024}", i)

    def sync(tg):
        need(tg)
        vm.wait(tg)
        a.I("s_barrier")

    TMP = 48

    def slot_calc(own_expr):
        a.I(own_expr)
        a.I("s_and_b32 s50, s50, 3")
        a.I("s_lshl2_add_u32 s50, s43, s50")
        a.I("s_lshl2_add_u32 s50, s50, s40")
        a.I("s_lshl2_add_u32 s50, s50, s16")
        a.I("s_lshl_b32 s50, s50, 12")

    def give_l(A, addr, off):
        for q in range(4):
            a.I(f"ds_write_b128 {v(addr)}, {v(A + 4 * q, 4)} offset:{off + q * 1024}")

    def take_l(A, addr, off, model=False):
        for q in range(4):
            a.I(f"ds_read_b128 {v(TMP + 4 * q, 4)}, {v(addr)} offset:{off + q * 1024}")
        a.I("s_waitcnt lgkmcnt(0)")
        for j in range(16):
            a.I(f"v_add_f32 {v(A + j)}, {v(A + j)}, {v(TMP + j)}")
        for q in range(4):
            x = f"buffer_store_dwordx4 {v(A + 4 * q, 4)}, {v(L16)}, s[56:59], s50 offen offset:{q * 1024} sc1"
            vm.issue(x, "P") if model else a.I(x)

    def give(n):
        lab = a.uid(f"{N}_g")
        a.I(f"s_cmp_eq_u32 s18, {n & 1}")
        a.I(f"s_cbranch_scc1 {lab}")
        give_l(AC[2] if n == 2 else AC[1], CMB, (n & 1) * 16384)
        a.label(lab)
        a.I("s_waitcnt lgkmcnt(0)")
        lg.q = []

    sync([("C", 0, 0), ("C", 1, 0)])
    st()
    for i in range(LOOK):
        read(i)
    for i in range(128):
        ac, _, g = sched[i]
        lg.wait(i)
        if i < 64:
            need([("W", g)])
            vm.wait(("W", g))
        first = g == 0
        a.I(f"{MF} {v(ac, 16)}, {v(WF + 4 * g, 4)}, {v(RING + 4 * (i % 6), 4)}, {'0' if first else v(ac, 16)}")
        j = i + LOOK
        if j < 128:
            if j < 64 and j % 16 == 0:
                c = j // 16
                sync([("C", 0, c), ("C", 1, c)])
                if c >= 2:
                    for n in (2, 3):
                        for k in (2 * (c - 2), 2 * (c - 2) + 1):
                            pend.extend(cdma(n, k))
                            ptag.append(("C", n, c - 2))
            elif j >= 64 and j % 16 == 0:
                sync([("C", j // 32, (j % 32) // 8 + c) for c in range(2)])
            read(j)
        if i in (31, 63, 75, 95, 107):
            st()
        if j == 64:
            for n in (2, 3):
                for k in (4, 5):
                    pend.extend(cdma(n, k))
                    ptag.append(("C", n, 2))
        if i == 64 + 5:
            a.I("s_lshl_b32 s48, s18, 14")
            a.I(f"v_add_u32 v30, s48, {v(CMB)}")
            a.I("v_xor_b32 v31, 0x4000, v30")
            give_l(AC[1], 31, 0)
            a.I("s_add_u32 s51, s18, 1")
            slot_calc("s_add_u32 s50, s40, s51")
            a.I("s_waitcnt lgkmcnt(0)")
            lg.q = []
            a.I("s_barrier")
            for n in (2, 3):
                for k in (6, 7):
                    pend.extend(cdma(n, k))
                    ptag.append(("C", n, 3))
            need([("C", 3, 3)])
            take_l(AC[0], 30, 0, True)
        if i == 96 + 5:
            vm.wait([("C", 3, 2), ("C", 3, 3)])
            give(2)
            a.I("s_barrier")
            a.I("s_cmp_lg_u32 s18, 0")
            a.I(f"s_cbranch_scc1 {N}_t2")
            slot_calc("s_add_u32 s50, s40, 3")
            take_l(AC[2], CMB, 0)
            a.label(f"{N}_t2")
        pump(2 if i < 64 else 1)
    st()
    LW = 32768
    a.I("v_mov_b32 v1, 0")
    a.I("v_mov_b32 v30, %d" % LW)
    a.I("ds_write_b32 v30, v1")
    a.I("v_mov_b32 v1, 1")
    a.I("s_nop 7")
    give(3)
    a.I("s_waitcnt vmcnt(0)")
    a.I("s_barrier")
    a.I("s_cmp_eq_u32 s18, 1")
    a.I(f"s_cbranch_scc1 {N}_fin")
    a.I("s_cmp_lg_u32 s17, 0")
    a.I(f"s_cbranch_scc1 {N}_nosig")
    a.I("s_mov_b64 exec, 1")
    a.I("buffer_store_dword v1, off, s[60:63], s67 sc1")
    a.I("s_mov_b64 exec, -1")
    a.label(f"{N}_nosig")
    b3_body(a, 0, 8, loaded=True)
    a.I("s_endpgm")
    a.label(f"{N}_fin")
    A = ACCS[1]
    a.I("s_lshl2_add_u32 s50, s43, s40")
    a.I("s_lshl_b32 s50, s50, 4")
    a.I("s_add_u32 s50, s50, s16")
    a.I("s_lshl_b32 s50, s50, 12")
    a.I("v_and_b32 v3, 31, v0")
    a.I("v_lshlrev_b32 v3, 11, v3")
    a.I("v_lshrrev_b32 v4, 5, v0")
    a.I("v_lshl_add_u32 v3, v4, 4, v3")
    a.I("s_lshl2_add_u32 s65, s41, s40")
    a.I("s_lshl_b32 s65, s65, 16")
    a.I("s_lshl_b32 s66, s42, 8")
    a.I("s_add_u32 s65, s65, s66")
    a.I("s_lshl_b32 s66, s16, 6")
    a.I("s_add_u32 s65, s65, s66")
    srd(a, 52, 8, 9, 4 * MB)
    a.I(f"v_mov_b32 v5, {LW}")
    for q in range(4):
        a.I(f"ds_read_b128 {v(WF + 4 * q, 4)}, {v(CMB)} offset:{16384 + q * 1024}")
    POLL = os.environ.get("POLL", "1")
    if POLL == "1":
        a.I("s_cmp_lg_u32 s17, 4")
        a.I(f"s_cbranch_scc1 {N}_lspin")
    a.label(f"{N}_spin")
    a.I("buffer_load_dwordx4 v[4:7], off, s[60:63], s64 sc1")
    a.I("s_waitcnt vmcnt(0)")
    a.I("v_and_b32 v4, v4, v5")
    a.I("v_and_b32 v6, v6, v7")
    a.I("v_and_b32 v4, v4, v6")
    a.I("s_nop 0")
    a.I("v_readfirstlane_b32 s66, v4")
    a.I("s_nop 0")
    a.I("s_cmp_eq_u32 s66, 1")
    a.I(f"s_cbranch_scc1 {N}_got")
    a.I("s_sleep 2")
    a.I(f"s_branch {N}_spin")
    if POLL == "1":
        a.label(f"{N}_lspin")
        a.I("ds_read_b32 v4, v5")
        a.I("s_waitcnt lgkmcnt(0)")
        a.I("v_readfirstlane_b32 s66, v4")
        a.I("s_nop 0")
        a.I("s_cmp_eq_u32 s66, 1")
        a.I(f"s_cbranch_scc1 {N}_got2")
        a.I("s_sleep 1")
        a.I(f"s_branch {N}_lspin")
    a.label(f"{N}_got")
    if POLL == "1":
        a.I(f"v_mov_b32 v5, {LW}")
        a.I("ds_write_b32 v5, v1")
        a.label(f"{N}_got2")
    st()
    for k in range(1, 4):
        a.I(f"s_add_u32 s66, s40, {k}")
        a.I("s_and_b32 s66, s66, 3")
        a.I("s_lshl_b32 s66, s66, 14")
        a.I("s_add_u32 s66, s66, s50")
        for q in range(4):
            a.I(f"buffer_load_dwordx4 {v(WF + 16 * k + 4 * q, 4)}, {v(L16)}, s[56:59], s66 offen offset:{q * 1024} sc1")
    a.I("s_waitcnt lgkmcnt(0)")
    a.I("s_barrier")
    for k in range(4):
        if k:
            a.I(f"s_waitcnt vmcnt({4 * (3 - k)})")
        for j in range(16):
            a.I(f"v_add_f32 {v(A + j)}, {v(A + j)}, {v(WF + 16 * k + j)}")
    pack(a, 8, A, 8)
    a.I("s_nop 1")
    for h in range(2):
        a.I(f"v_permlane32_swap_b32 {v(8 + 4 * h)}, {v(10 + 4 * h)}")
        a.I(f"v_permlane32_swap_b32 {v(9 + 4 * h)}, {v(11 + 4 * h)}")
        a.I(f"buffer_store_dwordx4 {v(8 + 4 * h, 4)}, v3, s[52:55], s65 offen offset:{32 * h}")
    st.dump(17, 4, tmpv=16)
    kend(a, N)
    return a, N, (256, 512, 163840)


def gen_l3_s4():
    a = Asm()
    N = "l3_kernel"
    kstart(a, N, 256)
    a.I("s_load_dwordx2 s[4:5], s[0:1], 88")
    a.I("s_load_dwordx2 s[8:9], s[0:1], 72")
    a.I("v_lshrrev_b32 v1, 6, v0")
    a.I("v_and_b32 v0, 63, v0")
    a.I("s_nop 0")
    a.I("v_readfirstlane_b32 s17, v1")
    st = Stamper(a, "l3")
    L16, RA, RB_, ACC, FR = 128, 129, 130, 132, 164
    PB16 = int(os.environ.get("PB16", "0"))
    NST, STG = 4, 4
    a.I("s_bfe_u32 s40, s2, 0x20001")
    a.I("s_and_b32 s43, s2, 1")
    a.I("s_lshl_b32 s43, s43, 5")
    a.I("s_lshr_b32 s44, s2, 3")
    a.I("s_add_u32 s43, s43, s44")
    a.I("s_lshr_b32 s41, s43, 2")
    a.I("s_and_b32 s42, s43, 3")
    a.I(f"v_lshlrev_b32 {v(L16)}, 4, v0")
    a.I("s_lshl_b32 s45, s41, 2")
    a.I("s_add_u32 s45, s45, s17")
    a.I("s_lshl_b32 s45, s45, 18")
    a.I("s_lshl_b32 s46, s40, 16")
    a.I("s_add_u32 s45, s45, s46")
    a.I(f"s_add_u32 s45, s45, {hex(WS_CTX)}")
    a.I("s_lshl_b32 s46, s42, 1")
    a.I("s_bfe_u32 s47, s17, 0x10001")
    a.I("s_add_u32 s46, s46, s47")
    a.I("s_lshl_b32 s46, s46, 19")
    a.I("s_lshl_b32 s47, s40, 17")
    a.I("s_add_u32 s46, s46, s47")
    a.I("s_and_b32 s47, s17, 1")
    a.I("s_lshl_b32 s47, s47, 10")
    a.I("s_add_u32 s46, s46, s47")
    a.I(f"s_add_u32 s46, s46, {hex(WS_WO)}")
    a.I("s_cmp_lt_u32 s17, 4")
    a.I("s_cselect_b32 s45, s45, s46")
    a.I("s_movk_i32 s46, 0x800")
    a.I("s_cselect_b32 s46, 1024, s46")
    a.I("s_lshl_b32 s47, s17, 10")
    a.I("s_and_b32 s48, s17, 1")
    a.I("s_lshl_b32 s48, s48, 11")
    a.I(f"v_add_u32 {v(RA)}, s48, {v(L16)}")
    a.I("s_lshr_b32 s48, s17, 1")
    a.I("s_lshl_b32 s48, s48, 10")
    a.I("s_add_u32 s48, s48, 4096")
    a.I(f"v_add_u32 {v(RB_)}, s48, {v(L16)}")
    a.I(f"v_add_u32 {v(RB_ + 1)}, 0x10000, {v(RA)}")
    a.I(f"v_add_u32 v127, 0x10000, {v(RB_)}") if False else None
    a.I("s_waitcnt lgkmcnt(0)")
    srd(a, 52, 4, 5, 64 * MB)
    st()
    vm, lg = VM(a), LG(a)

    def dma(g, emit=True):
        L = [lambda: a.I(f"s_add_u32 m0, s47, {(g % (NST * STG)) * 8192}"),
             lambda: a.I("s_add_u32 s49, s45, s46") if False else a.I("s_nop 0"),
             lambda: vm.issue(f"buffer_load_dwordx4 {v(L16)}, s[52:55], s45 offen lds", g),
             lambda: a.I("s_add_u32 s45, s45, s46")]
        return L

    def first_loads():
        for g in range((NST - 1) * STG):
            for f in dma(g):
                f()
        return (NST - 1) * STG

    first_loads()
    a.I("s_and_b32 s18, s17, 1")
    a.I("s_lshr_b32 s19, s40, 1")
    a.I("s_cmp_eq_u32 s18, s19")
    a.I("s_cselect_b32 s18, 1, 0")
    a.I("s_lshr_b32 s16, s17, 1")
    a.I("s_lshl_b32 s19, s16, 6")
    a.I("v_add_u32 v2, s19, v0")
    a.I("s_cmp_eq_u32 s18, 1")
    a.I(f"s_cbranch_scc1 {N}_nob3l")
    b3_loads(a, 8)
    a.label(f"{N}_nob3l")
    st()
    RA2, RB2 = RB_ + 1, 127
    a.I(f"v_add_u32 {v(RB2)}, 0x10000, {v(RB_)}")
    NG = 64

    def reads(g):
        sl = g % (NST * STG)
        ra, rb = (RA, RB_) if sl < 8 else (RA2, RB2)
        off = (sl % 8) * 8192
        d = FR + 12 * (g % 3)
        lg.issue(f"ds_read_b128 {v(d, 4)}, {v(rb)} offset:{off}", g)
        lg.issue(f"ds_read_b128 {v(d + 4, 4)}, {v(ra)} offset:{off}", g)
        lg.issue(f"ds_read_b128 {v(d + 8, 4)}, {v(ra)} offset:{off + 1024}", g)

    pend = []

    def sync(stg):
        vm.wait(list(range(stg * STG, (stg + 1) * STG)))
        a.I("s_barrier")
        nxt = stg + NST - 2
        if stg >= 1 and (nxt + 1) * STG <= NG and nxt >= NST - 1:
            for g in range(nxt * STG, (nxt + 1) * STG):
                pend.extend(dma(g))

    sync(0)
    st()
    reads(0)
    reads(1)
    for g in range(NG):
        j = g + 2
        if j < NG and j % STG == 0:
            while pend:
                pend.pop(0)()
            sync(j // STG)
        lg.wait(g)
        d = FR + 12 * (g % 3)
        for i in range(2):
            acc = v(ACC + 16 * i, 16)
            a.I(f"{MF} {acc}, {v(d, 4)}, {v(d + 4 + 4 * i, 4)}, {'0' if g == 0 else acc}")
            if i == 0 and j < NG:
                reads(j)
            for _ in range(2 + i):
                if pend:
                    pend.pop(0)()
    st()
    srd(a, 56, 4, 5, 16 * MB, add=WS_PART)
    a.I("s_lshr_b32 s48, s17, 1")
    a.I("s_and_b32 s49, s17, 1")
    a.I("s_lshl_b32 s50, s43, 2")
    a.I("s_lshl1_add_u32 s50, s49, s50")
    a.I("s_lshl_b32 s50, s50, 2")
    a.I("s_add_u32 s50, s50, s40")
    a.I("s_lshl_b32 s50, s50, 2")
    a.I("s_add_u32 s50, s50, s48")
    a.I("s_lshl_b32 s50, s50, 12")
    a.I("s_add_u32 s51, s50, 0x10000")
    a.I("s_lshl_b32 s49, s49, 1")
    for i in range(2):
        lab = f"{N}_keep{i}"
        a.I("s_cmp_eq_u32 s49, s40")
        a.I(f"s_cbranch_scc1 {lab}")
        if PB16:
            pack(a, FR + 8 * i, ACC + 16 * i, 8)
            for q in range(2):
                a.I(f"buffer_store_dwordx4 {v(FR + 8 * i + 4 * q, 4)}, {v(L16)}, s[56:59], s{50 + i} offen offset:{q * 1024} sc1")
        else:
            for q in range(4):
                a.I(f"buffer_store_dwordx4 {v(ACC + 16 * i + 4 * q, 4)}, {v(L16)}, s[56:59], s{50 + i} offen offset:{q * 1024} sc1")
        a.label(lab)
        a.I("s_add_u32 s49, s49, 1")
    srd(a, 60, 4, 5, 64 * 128, add=WS_FLAG)
    a.I("s_lshl_b32 s64, s43, 7")
    a.I("s_lshl2_add_u32 s67, s40, s64")

    def signal():
        a.I("v_mov_b32 v1, 1")
        a.I("s_waitcnt vmcnt(0)")
        a.I("s_barrier")
        a.I("s_cmp_lg_u32 s17, 7")
        lab = a.uid(f"{N}_nosig")
        a.I(f"s_cbranch_scc1 {lab}")
        a.I("s_mov_b64 exec, 1")
        a.I("buffer_store_dword v1, off, s[60:63], s67 sc1")
        a.I("s_mov_b64 exec, -1")
        a.label(lab)

    a.I("s_cmp_eq_u32 s18, 1")
    a.I(f"s_cbranch_scc1 {N}_nob3")
    b3_body(a, 131072, 8, loaded=True, mid=signal)
    a.I("s_endpgm")
    a.label(f"{N}_nob3")
    a.I("s_bitcmp0_b32 s40, 0")
    a.I(f"s_cbranch_scc1 {N}_own0")
    for j in range(16):
        a.I(f"v_mov_b32 {v(ACC + j)}, {v(ACC + 16 + j)}")
    a.label(f"{N}_own0")
    a.I("s_lshl_b32 s50, s43, 2")
    a.I("s_add_u32 s50, s50, s40")
    a.I("s_lshl_b32 s50, s50, 4")
    a.I("s_add_u32 s50, s50, s48")
    a.I("s_lshl_b32 s50, s50, 12")
    a.I("v_and_b32 v3, 31, v0")
    a.I("v_lshlrev_b32 v3, 11, v3")
    a.I("v_lshrrev_b32 v4, 5, v0")
    a.I("v_lshl_add_u32 v3, v4, 4, v3")
    a.I("s_lshl_b32 s65, s41, 2")
    a.I("s_add_u32 s65, s65, s40")
    a.I("s_lshl_b32 s65, s65, 16")
    a.I("s_lshl_b32 s66, s42, 8")
    a.I("s_add_u32 s65, s65, s66")
    a.I("s_lshl_b32 s66, s48, 6")
    a.I("s_add_u32 s65, s65, s66")
    srd(a, 52, 8, 9, 4 * MB)
    signal()
    a.I("s_barrier")
    st()
    a.label(f"{N}_spin")
    a.I("buffer_load_dwordx4 v[4:7], off, s[60:63], s64 sc1")
    a.I("s_waitcnt vmcnt(0)")
    a.I("v_and_b32 v4, v4, v5")
    a.I("v_and_b32 v6, v6, v7")
    a.I("v_and_b32 v4, v4, v6")
    a.I("s_nop 0")
    a.I("v_readfirstlane_b32 s66, v4")
    a.I("s_nop 0")
    a.I("s_cmp_lg_u32 s66, 1")
    a.I(f"s_cbranch_scc1 {N}_spin")
    st()
    for k in range(1, 4):
        a.I(f"s_add_u32 s66, s40, {k}")
        a.I("s_and_b32 s66, s66, 3")
        a.I("s_lshl_b32 s66, s66, 14")
        a.I("s_add_u32 s66, s66, s50")
        for q in range(2 if PB16 else 4):
            a.I(f"buffer_load_dwordx4 {v(16 * k + 4 * q, 4)}, {v(L16)}, s[56:59], s66 offen offset:{q * 1024} sc1")
    for k in range(1, 4):
        a.I(f"s_waitcnt vmcnt({(2 if PB16 else 4) * (3 - k)})")
        for j in range(16):
            if PB16:
                if j & 1:
                    a.I(f"v_and_b32 v64, 0xffff0000, {v(16 * k + j // 2)}")
                else:
                    a.I(f"v_lshlrev_b32 v64, 16, {v(16 * k + j // 2)}")
                a.I(f"v_add_f32 {v(ACC + j)}, {v(ACC + j)}, v64")
            else:
                a.I(f"v_add_f32 {v(ACC + j)}, {v(ACC + j)}, {v(16 * k + j)}")
    pack(a, 8, ACC, 8)
    a.I("s_nop 1")
    for h in range(2):
        a.I(f"v_permlane32_swap_b32 {v(8 + 4 * h)}, {v(10 + 4 * h)}")
        a.I(f"v_permlane32_swap_b32 {v(9 + 4 * h)}, {v(11 + 4 * h)}")
        a.I(f"buffer_store_dwordx4 {v(8 + 4 * h, 4)}, v3, s[52:55], s65 offen offset:{32 * h}")
    st.dump(17, 4, tmpv=16)
    kend(a, N)
    return a, N, (256, 512, 131072 + 8192 + 64)


def gen_l3_old():
    a = Asm()
    N = "l3_kernel"
    kstart(a, N, 256)
    a.I("s_load_dwordx2 s[4:5], s[0:1], 88")
    a.I("s_load_dwordx2 s[6:7], s[0:1], 40")
    a.I("s_load_dwordx2 s[8:9], s[0:1], 72")
    a.I("v_lshrrev_b32 v1, 6, v0")
    a.I("v_and_b32 v2, 255, v0")
    a.I("v_and_b32 v0, 63, v0")
    a.I("v_readfirstlane_b32 s16, v1")
    a.I("s_nop 0")
    a.I("s_cmp_ge_u32 s16, 4")
    a.I(f"s_cbranch_scc1 {N}_b3")
    st = Stamper(a, "l3")
    OB = int(os.environ.get('OB', '3'))
    ACC = (oproj_body3 if OB == 3 else oproj_body2)(a, N, st, bar_at=8)
    a.I("s_barrier")
    oproj_finish(a, ACC, 32768 if OB == 3 else 16384)
    st.dump(16, 4, tmpv=8)
    a.I("s_endpgm")
    a.label(f"{N}_b3")
    a.I("s_and_b32 s16, s16, 3")
    b3_body(a, 131072, 8)
    kend(a, N)
    return a, N, (256, 512, 131072 + 8192 + 64)


KERNELS = [gen_l1, lambda: gen_attn(not os.environ.get('NOB2')), {'new': gen_l3, 's4': gen_l3_s4, 'old': gen_l3_old}[os.environ.get('L3V', 'old')]]

if __name__ == "__main__":
    p = sys.argv[1] if len(sys.argv) > 1 else os.path.join(os.path.dirname(os.path.abspath(__file__)), "..",
                                                           "cdna_kernels", NAME + ".s")
    sys.exit(1 if build(KERNELS, p) else 0)
```

```python
import sys, os, math, struct
sys.path.insert(0, os.path.dirname(os.path.abspath(__file__)))
from asmlib import Asm, VM, LG, v, s, ag

NAME = "concat_heads__compressed_kv_cla__spectral_gfnet__prompt"
MB = 1 << 20
WS_K, WS_V, WS_CTX, WS_Y, WS_WF, WS_Z, WS_Q = 0, 16 * MB, 32 * MB, 48 * MB, 52 * MB, 56 * MB, 64 * MB
WS_WO = 60 * MB
if os.environ.get('ALIAS'):
    WS_Q = WS_CTX
WS_PART = 0
WS_FLAG = 56 * MB + 2560 * 1024
YSTR = 8320
KA = dict(x=0, ckv=8, wq=16, wuk=24, wuv=32, wo=40, bx=48, wr=56, wi=64, out=72, dbg=80, ws=88)
MF = "v_mfma_f32_32x32x16_bf16"
SP = os.environ.get("SP", " sc1")


def f32(x):
    return "0x%08x" % struct.unpack("<I", struct.pack("<f", x))[0]


def srd(a, d, lo, hi, size, add=0):
    if add:
        a.I(f"s_add_u32 {s(d)}, {s(lo)}, {add if isinstance(add, str) else hex(add)}")
        a.I(f"s_addc_u32 {s(d + 1)}, {s(hi)}, 0")
    else:
        a.I(f"s_mov_b32 {s(d)}, {s(lo)}")
        a.I(f"s_mov_b32 {s(d + 1)}, {s(hi)}")
    a.I(f"s_mov_b32 {s(d + 2)}, {size if isinstance(size, str) else hex(size)}")
    a.I(f"s_mov_b32 {s(d + 3)}, 0x20000")


STAMPS = int(os.environ.get("STAMPS", "0"))
ST0 = 72


class Stamper:
    def __init__(self, a, name=""):
        self.a, self.n = a, 0
        self.on = STAMPS and os.environ.get("STAMPK", name) == name

    def __call__(self):
        if self.on and self.n < 11:
            if self.n == 0:
                self.a.I("s_memrealtime s[68:69]")
            self.a.I(f"s_memtime {s(ST0 + 2 * self.n, 2)}")
            self.n += 1

    def dump(self, wave_s, wslo, tmpv=8):
        if not self.on:
            return
        a = self.a
        a.I("s_waitcnt vmcnt(0) lgkmcnt(0)")
        a.I(f"s_memtime {s(ST0 + 2 * self.n, 2)}")
        a.I("s_memrealtime s[70:71]")
        self.n += 1
        srd(a, 96, wslo, wslo + 1, 1 * MB, add=128 * MB)
        a.I("s_lshl_b32 s100, s2, 3")
        a.I(f"s_add_u32 s100, s100, {s(wave_s)}")
        a.I("s_lshl_b32 s100, s100, 8")
        a.I("s_waitcnt lgkmcnt(0)")
        a.I(f"v_mov_b32 {v(tmpv + 1)}, 0")
        for i in range(self.n):
            a.I(f"v_mov_b32 {v(tmpv)}, {s(ST0 + 2 * i)}")
            a.I(f"buffer_store_dword {v(tmpv)}, {v(tmpv + 1)}, s[96:99], s100 offen offset:{4 * i}")
        for i, r in ((62, 68), (63, 70), (61, ST0 + 2 * (self.n - 1))):
            a.I(f"v_mov_b32 {v(tmpv)}, {s(r)}")
            a.I(f"buffer_store_dword {v(tmpv)}, {v(tmpv + 1)}, s[96:99], s100 offen offset:{4 * i}")
        a.I("s_waitcnt vmcnt(0)")


DBGT = int(os.environ.get("DBGT", "0"))
KIDX = [0, 0]


def dbg_stamp(a, end):
    k = KIDX[0]
    lab = a.uid("dbgskip%d_%d" % (k, KIDX[1]))
    KIDX[1] += 1
    if not end:
        a.I("v_readfirstlane_b32 s89, v0")
        a.I("s_nop 1")
        a.I("s_lshr_b32 s89, s89, 6")
        a.I("s_or_b32 s89, s89, s2")
    a.I("s_cmp_lg_u32 s89, 0")
    a.I(f"s_cbranch_scc1 {lab}")
    a.I("s_load_dwordx4 s[92:95], s[90:91], 80")
    a.I("s_waitcnt vmcnt(0) lgkmcnt(0)")
    a.I("s_memrealtime s[86:87]")
    a.I(f"s_add_u32 s96, s94, {hex(200 * MB)}")
    a.I("s_addc_u32 s97, s95, 0")
    a.I("s_mov_b32 s98, 256")
    a.I("s_mov_b32 s99, 0x20000")
    a.I("s_waitcnt lgkmcnt(0)")
    a.I("v_mov_b32 v254, s86")
    a.I(f"buffer_store_dword v254, off, s[96:99], 0 offset:{8 * k + 4 * end} sc0 sc1")
    a.I("s_waitcnt vmcnt(0)")
    if end and k == DBGT - 1:
        a.I("v_lshlrev_b32 v253, 2, v0")
        a.I("buffer_load_dword v254, v253, s[96:99], 0 offen sc0 sc1")
        a.I("s_mov_b32 s96, s92")
        a.I("s_mov_b32 s97, s93")
        a.I("s_waitcnt vmcnt(0)")
        a.I("buffer_store_dword v254, v253, s[96:99], 0 offen")
        a.I(f"s_sub_u32 s96, s92, {k * 512}")
        a.I("s_subb_u32 s97, s93, 0")
        a.I("s_nop 0")
        a.I("buffer_store_dword v254, v253, s[96:99], 0 offen")
    a.label(lab)


def code_touch(a, kname, wave_s, sr, vt, nw_log=3, kd=True):
    if os.environ.get("NOCP"):
        return
    ref = a.uid("pcref_" + kname)
    a.I(f"s_getpc_b64 {s(sr, 2)}")
    a.label(ref)
    a.I(f"s_add_u32 {s(sr)}, {s(sr)}, {kname} - {ref}")
    a.I(f"s_addc_u32 {s(sr + 1)}, {s(sr + 1)}, ({kname} - {ref}) >> 32")
    a.I(f"s_mov_b32 {s(sr + 2)}, {kname}_end - {kname}")
    a.I(f"s_mov_b32 {s(sr + 3)}, 0x20000")
    a.I(f"s_lshr_b32 {s(sr + 4)}, s2, 3")
    a.I(f"s_lshl_b32 {s(sr + 4)}, {s(sr + 4)}, {nw_log}")
    a.I(f"s_add_u32 {s(sr + 4)}, {s(sr + 4)}, {s(wave_s)}")
    a.I(f"s_lshl_b32 {s(sr + 4)}, {s(sr + 4)}, {12 - nw_log}")
    a.I(f"v_lshlrev_b32 {v(vt)}, 7, v0")
    a.I(f"s_mov_b64 exec, {(1 << (32 >> nw_log)) - 1}")
    a.I(f"buffer_load_dword {v(vt + 1)}, {v(vt)}, {s(sr, 4)}, {s(sr + 4)} offen")
    if kd and not os.environ.get("NOKD"):
        a.I(f"s_getpc_b64 {s(sr, 2)}")
        a.I(f"s_add_u32 {s(sr)}, {s(sr)}, kdl_{kname}@rel32@lo+4")
        a.I(f"s_addc_u32 {s(sr + 1)}, {s(sr + 1)}, kdl_{kname}@rel32@hi+12")
        a.I(f"s_mov_b32 {s(sr + 2)}, 64")
        a.I("s_mov_b64 exec, 1")
        a.I(f"buffer_load_dword {v(vt + 1)}, off, {s(sr, 4)}, 0")
    a.I("s_mov_b64 exec, -1")


def kstart(a, name, nwg):
    a.raw(".text")
    a.raw(f".globl {name}")
    a.raw(".p2align 8")
    a.raw(f".type {name},@function")
    a.label(name)
    a.I(f"s_cmp_ge_u32 s2, {nwg}")
    a.I(f"s_cbranch_scc1 {name}_end")
    if DBGT:
        a.I("s_mov_b64 s[90:91], s[0:1]")
        dbg_stamp(a, 0)


def kend(a, name):
    a.label(name + "_end")
    a.I("s_endpgm")


def kdesc(name, nv, ns, na=0):
    nv = (nv + 7) // 8 * 8
    acc_off = nv
    nv = nv + (na + 7) // 8 * 8
    return f""".section .rodata,"a"
.p2align 6
kdl_{name}:
.amdhsa_kernel {name}
  .amdhsa_next_free_vgpr {nv}
  .amdhsa_next_free_sgpr {max(ns, 16)}
  .amdhsa_accum_offset {acc_off}
  .amdhsa_group_segment_fixed_size 0
  .amdhsa_kernarg_size 96
  .amdhsa_user_sgpr_count 2
  .amdhsa_user_sgpr_kernarg_segment_ptr 1
  .amdhsa_system_sgpr_workgroup_id_x 1
  .amdhsa_float_denorm_mode_32 3
.end_amdhsa_kernel
"""


QSCALE = math.log2(math.e) / math.sqrt(128.0)


def gen_qkv():
    a = Asm()
    N = "qkvproj_kernel"
    kstart(a, N, 256)
    a.I("s_load_dwordx4 s[4:7], s[0:1], 0")
    a.I("s_load_dwordx4 s[8:11], s[0:1], 16")
    a.I("s_load_dwordx2 s[12:13], s[0:1], 32")
    a.I("s_load_dwordx2 s[14:15], s[0:1], 88")
    a.I("v_lshrrev_b32 v1, 6, v0")
    a.I("v_and_b32 v0, 63, v0")
    a.I("s_and_b32 s17, s2, 7")
    a.I("v_readfirstlane_b32 s16, v1")
    a.I("s_lshr_b32 s18, s2, 3")
    a.I("s_and_b32 s19, s18, 7")
    a.I("s_lshr_b32 s18, s18, 3")
    a.I("s_lshl_b32 s40, s17, 2")
    a.I("s_add_u32 s18, s18, s40")
    a.I("s_mov_b32 s41, 0")
    a.I("s_mul_i32 s42, s18, 6")
    a.I("s_cmp_ge_u32 s18, 11")
    a.I("s_cselect_b32 s41, 1, s41")
    a.I("s_cselect_b32 s40, 64, 0")
    a.I("s_cmp_ge_u32 s18, 21")
    a.I("s_cselect_b32 s41, 2, s41")
    a.I("s_cselect_b32 s40, 126, s40")
    a.I("s_sub_u32 s42, s42, s40")
    a.I("s_lshl_b32 s44, s19, 3")
    a.I("s_add_u32 s44, s44, s16")
    hl, b4, t1, t2 = 9, 10, 11, 12
    a.I(f"v_lshrrev_b32 {v(hl)}, 5, v0")
    a.I(f"v_bfe_u32 {v(b4)}, v0, 4, 1")
    a.I(f"v_lshrrev_b32 {v(t1)}, 3, v0")
    a.I(f"v_lshlrev_b32 {v(t1)}, 10, {v(t1)}")
    a.I("s_lshl_b32 s45, s44, 15")
    a.I(f"v_add_u32 {v(t1)}, s45, {v(t1)}")
    a.I(f"v_lshrrev_b32 {v(t2)}, 4, v0")
    a.I("v_and_b32 v13, 7, v0")
    a.I(f"v_xor_b32 {v(t2)}, {v(t2)}, v13")
    a.I(f"v_lshl_add_u32 v52, {v(t2)}, 4, {v(t1)}")
    a.I("v_xor_b32 v53, 64, v52")
    a.I(f"v_add_u32 v53, {8192 - 1024}, v53")
    a.I(f"v_add_u32 v54, {2 * (8192 - 1024)}, v52")
    a.I(f"v_add_u32 v55, {2 * (8192 - 1024)}, v53")
    a.I("v_and_b32 v13, 31, v0")
    a.I(f"v_bfe_u32 {v(t2)}, v0, 1, 3")
    a.I(f"v_xor_b32 {v(t2)}, {v(t2)}, {v(hl)}")
    a.I(f"v_lshlrev_b32 {v(t2)}, 4, {v(t2)}")
    a.I(f"v_lshl_add_u32 {v(t2)}, v13, 7, {v(t2)}")
    a.I("s_mul_i32 s46, s16, 12288")
    for t in range(4):
        a.I(f"v_xor_b32 {v(56 + t)}, {32 * t}, {v(t2)}")
    for t in range(4):
        a.I(f"v_add_u32 {v(56 + t)}, s46, {v(56 + t)}")
    a.I("v_lshrrev_b32 v2, 3, v0")
    a.I("v_lshlrev_b32 v2, 13, v2")
    a.I(f"v_lshlrev_b32 {v(t1)}, 2, {v(b4)}")
    a.I(f"v_and_b32 {v(t2)}, 7, v0")
    a.I(f"v_xor_b32 {v(t1)}, {v(t1)}, {v(t2)}")
    a.I(f"v_lshl_add_u32 v2, {v(t1)}, 4, v2")
    a.I("s_lshl_b32 s45, s16, 17")
    a.I("v_add_u32 v2, s45, v2")
    a.I(f"v_add_u32 v3, {65536 - 1024}, v2")
    a.I(f"v_bfe_u32 {v(t1)}, v0, 2, 2")
    a.I(f"v_lshl_add_u32 {v(t2)}, {v(hl)}, 3, {v(t1)}")
    a.I(f"v_lshlrev_b32 v4, 7, {v(t2)}")
    a.I(f"v_lshl_add_u32 v4, {v(b4)}, 5, v4")
    a.I(f"v_and_b32 {v(t2)}, 3, v0")
    a.I(f"v_lshl_add_u32 v4, {v(t2)}, 3, v4")
    a.I(f"v_bfe_u32 {v(t2)}, v0, 3, 1")
    a.I(f"v_lshl_add_u32 v4, {v(t2)}, 6, v4")
    a.I("v_xor_b32 v5, 64, v4")
    a.I("v_add_u32 v6, 0x10000, v4")
    a.I("v_add_u32 v7, 0x10000, v5")
    a.I("v_add_u32 v50, 0x20000, v4")
    a.I("v_add_u32 v51, 0x20000, v5")
    a.I("v_lshlrev_b32 v48, 4, v0")
    a.I("s_lshl_b32 s47, s16, 11")
    a.I("s_lshl_b32 s48, s42, 7")
    a.I("s_lshl_b32 s49, s44, 13")
    a.I("s_lshl_b32 s50, s42, 18")
    a.I("s_add_u32 s50, s50, s49")
    a.I("s_waitcnt lgkmcnt(0)")
    a.I("s_cmp_eq_u32 s41, 2")
    a.I("s_cselect_b32 s20, s4, s6")
    a.I("s_cselect_b32 s21, s5, s7")
    a.I("s_cselect_b32 s24, s8, s10")
    a.I("s_cselect_b32 s25, s9, s11")
    a.I(f"s_cselect_b32 s51, {hex(WS_Q)}, 0")
    a.I(f"s_cselect_b32 s52, {f32(QSCALE)}, 1.0")
    a.I(f"s_mov_b32 s22, {hex(2 * MB)}")
    a.I("s_mov_b32 s23, 0x20000")
    a.I(f"s_mov_b32 s26, {hex(4 * MB)}")
    a.I("s_mov_b32 s27, 0x20000")
    srd(a, 28, 14, 15, 16 * MB, add="s51")
    srd(a, 32, 12, 13, 4 * MB)
    srd(a, 36, 14, 15, 16 * MB, add=WS_V)
    srd(a, 56, 6, 7, 2 * MB)
    a.I("s_cmp_eq_u32 s18, 31")
    a.I(f"s_cbranch_scc1 {N}_D")
    a.I("s_cmp_eq_u32 s41, 1")
    a.I(f"s_cbranch_scc1 {N}_B")
    a.I("s_cmp_eq_u32 s18, 10")
    a.I(f"s_cbranch_scc1 {N}_C")

    AF, ACC, RING, PK = 64, 192, 8, 32
    LOOK = 6

    def body(passes, tag):
        vm, lg = VM(a), LG(a)
        st = Stamper(a, "qkv")
        st()
        NP = len(passes)
        NC = 4 * NP
        NM = 64 * NP
        restage = tag == "D"
        blk = {}
        free = [6, 7, 8, 9]
        nxt = [0]

        def dmaW():
            c = nxt[0]
            if c >= NC or not free:
                return False
            b = free.pop(0)
            blk[c] = b
            nxt[0] += 1
            pp, kc = divmod(c, 4)
            form, su, di = passes[pp]
            a.I(f"s_add_u32 m0, s47, {hex(b * 16384)}")
            if su is not None:
                a.I(f"s_mov_b32 s45, {hex((kc << 20) + su * 128)}")
            else:
                a.I(f"s_add_u32 s45, s48, {hex((kc << 20) + di * 128)}")
            sr = "s[32:35]" if form == "V" else "s[24:27]"
            vm.issue(f"buffer_load_dwordx4 v2, {sr}, s45 offen lds", ("W", c))
            vm.issue(f"buffer_load_dwordx4 v3, {sr}, s45 offen offset:1024 lds", ("W", c))
            return True

        def dmaA(j):
            sr = "s[56:59]" if (restage and j < 8) else "s[20:23]"
            a.I(f"s_add_u32 m0, s46, {hex((j % 3) * 4096)}")
            a.I(f"s_mov_b32 s45, {(j % 8) * 128}")
            for i in range(4):
                vm.issue(f"buffer_load_dwordx4 {v(52 + i)}, {sr}, s45 offen offset:{i * 1024} lds", ("A", j))

        def readA(j):
            vm.wait(("A", j))
            for t in range(4):
                lg.issue(f"ds_read_b128 {v(AF + 16 * (j % 8) + 4 * t, 4)}, {v(56 + t)} offset:{(j % 3) * 4096}", ("A", j))

        dmaW(); dmaA(0); dmaA(1); dmaW(); dmaA(2); dmaW(); dmaW()

        def reads(i):
            c, r = divmod(i, 16)
            t, cb = divmod(r, 2)
            b = blk[c]
            base = [4, 6, 50][b // 4] + cb
            off = (b % 4) * 16384 + t * 2048
            d = RING + 4 * (i % LOOK)
            lg.issue(f"ds_read_b64_tr_b16 {v(d, 2)}, {v(base)} offset:{off}", ("W", i))
            lg.issue(f"ds_read_b64_tr_b16 {v(d + 2, 2)}, {v(base)} offset:{off + 512}", ("W", i))

        def sync(c):
            vm.wait(("W", c))
            a.I("s_barrier")
            if c >= 2:
                free.append(blk[c - 2])
            if c == (10 if restage else 5):
                free.extend([0, 1, 2, 3, 4, 5])
            n = 0
            while n < 2 and dmaW():
                n += 1

        def epi(pp):
            out = []
            form, su, di = passes[pp]
            acc = ACC + 32 * (pp & 1)
            so = 54 + (pp & 1)
            if su is not None:
                out.append(lambda: a.I(f"s_add_u32 s{so}, s49, {hex((su >> 1) * 512 * 1024 + (su & 1) * 4096)}"))
            else:
                out.append(lambda: a.I(f"s_add_u32 s{so}, s50, {hex((di >> 1) * 512 * 1024 + (di & 1) * 4096)}"))
            sr = "s[36:39]" if form == "V" else "s[28:31]"
            for cb in range(2):
                for h in range(2):
                    q = 2 * cb + h
                    for i in range(4):
                        src = acc + 16 * cb + 8 * h + 2 * i
                        if form == "K" and tag in "AD":
                            out.append(lambda src=src: a.I(f"v_mul_f32 {v(src)}, s52, {v(src)}"))
                            out.append(lambda src=src: a.I(f"v_mul_f32 {v(src + 1)}, s52, {v(src + 1)}"))
                        out.append(lambda src=src, q=q, i=i: a.I(
                            f"v_cvt_pk_bf16_f32 {v(PK + 4 * q + i)}, {v(src)}, {v(src + 1)}"))
                    out.append(lambda q=q: vm.issue(
                        f"buffer_store_dwordx4 {v(PK + 4 * q, 4)}, v48, {sr}, s{so} offen offset:{q * 1024}{SP}", ("S", pp)))
            return out

        st()
        readA(0)
        sync(0)
        st()
        for i in range(LOOK - 2):
            reads(i)
        lg.wait(("A", 0))
        for i in range(LOOK - 2, LOOK):
            reads(i)
        pend = []
        for i in range(NM):
            c, r = divmod(i, 16)
            t, cb = divmod(r, 2)
            pp, kc = divmod(c, 4)
            k = 8 * kc + t
            if i % 2 == 0:
                lg.wait([("W", i), ("W", i + 1), ("A", i // 8)])
            if pp == 0 and i % 8 == 0 and i // 8 + 3 < (11 if restage else 8):
                dmaA(i // 8 + 3)
            if restage and 72 < i <= 128 + 8 and i % 8 == 4:
                jj = 8 + (i - 76) // 8
                lg.wait(("A", jj))
                if jj + 3 < 16:
                    dmaA(jj + 3)
            acc = v(ACC + 32 * (pp & 1) + 16 * cb, 16)
            wf = v(RING + 4 * (i % LOOK), 4)
            af = v(AF + 4 * k, 4)
            cin = "0" if k == 0 else acc
            if passes[pp][0] == "V":
                a.I(f"{MF} {acc}, {af}, {wf}, {cin}")
            else:
                a.I(f"{MF} {acc}, {wf}, {af}, {cin}")
            j = i + LOOK
            if j < NM:
                if j % 16 == 0:
                    sync(j // 16)
                if j < 64 and j % 8 == 0:
                    readA(j // 8)
                reads(j)
            if restage and 64 <= i < 128 and i % 8 == 7:
                readA(8 + (i - 64) // 8)
            if i % 64 == 63:
                st()
            if i % 64 == 6 and pp >= 1:
                pend = epi(pp - 1)
            if pend:
                pend.pop(0)()
        a.I("s_nop 11")
        for f in epi(NP - 1):
            f()
        st.dump(16, 14)
        a.I("s_endpgm")

    body([("K", None, i) for i in range(6)], "A")
    a.label(N + "_B")
    body([("V", None, i) for i in range(6)], "B")
    a.label(N + "_C")
    body([("K", None, i) for i in range(4)] + [("V", 0, 0), ("V", 1, 0)], "C")
    a.label(N + "_D")
    body([("V", 62, 0), ("V", 63, 0)] + [("K", None, i) for i in range(4)], "D")
    kend(a, N)
    return a, N, (256, 512, 163840)


def gen_attn(withb2=False):
    b2tail = withb2 and os.environ.get("B2MODE", "start") == "tail"
    if b2tail:
        withb2 = False
    a = Asm()
    N = "attn_kernel"
    O, Q, S, P, NEGM, RING = 64, 128, [160, 176], [192, 200], 208, 224
    L16, VKA, VVA, VL, VLS, E, VDA, VDB, QREL, T0, T1, T2, NINF = 1, 2, 3, 4, 5, 6, 10, 11, 12, 13, 14, 15, 48
    PK = 16
    EE = 50
    sW, sH, sP, sN, sC, sPH, sTHR, sBAR, sKO, sKM, sVM, sQS = 16, 17, 18, 19, 20, 21, 40, 41, 42, 43, 44, 45
    kstart(a, N, 256)
    a.I("s_load_dwordx2 s[4:5], s[0:1], 88")
    a.I("s_load_dwordx2 s[14:15], s[0:1], 40")
    a.I("v_lshrrev_b32 v1, 6, v0")
    a.I("v_and_b32 v0, 63, v0")
    a.I("s_and_b32 s6, s2, 7")
    a.I(f"v_readfirstlane_b32 {s(sW)}, v1")
    a.I("s_lshr_b32 s7, s2, 3")
    a.I("s_and_b32 s8, s7, 3")
    a.I("s_lshl_b32 s6, s6, 2")
    a.I(f"s_add_u32 {s(sH)}, s6, s8")
    a.I(f"s_lshr_b32 {s(sP)}, s7, 2")
    a.I(f"s_lshl_b32 s6, {s(sP)}, 2")
    a.I(f"s_sub_u32 s7, 60, s6")
    a.I(f"s_add_u32 s7, s7, {s(sW)}")
    a.I(f"s_add_u32 s8, s6, 7")
    a.I(f"s_sub_u32 s8, s8, {s(sW)}")
    a.I(f"s_cmp_ge_u32 {s(sW)}, 4")
    a.I(f"s_cselect_b32 {s(sQS)}, s8, s7")
    a.I(f"s_add_u32 {s(sN)}, {s(sQS)}, 1")
    a.I("s_sub_u32 s9, 64, s6")
    a.I(f"s_lshr_b32 {s(sBAR)}, s9, 1")
    a.I("s_lshl_b32 s9, s9, 13")
    a.I(f"s_lshl_b32 s10, {s(sH)}, 19")
    a.I(f"v_lshlrev_b32 {v(L16)}, 4, v0")
    a.I(f"s_and_b32 s11, {s(sW)}, 3")
    a.I("s_lshl_b32 s11, s11, 11")
    a.I(f"v_add_u32 {v(VDA)}, s11, {v(L16)}")
    a.I(f"v_add_u32 {v(VDB)}, 0x2000, {v(VDA)}")
    a.I(f"v_and_b32 {v(T0)}, 31, v0")
    a.I(f"v_lshrrev_b32 {v(T1)}, 5, v0")
    a.I(f"v_lshlrev_b32 {v(T1)}, 2, {v(T1)}")
    a.I(f"v_sub_u32 {v(QREL)}, {v(T0)}, {v(T1)}")
    a.I(f"v_mov_b32 {v(NINF)}, 0xff800000")
    a.I(f"s_mov_b32 {s(sTHR)}, {f32(2.0 ** 14)}")
    FLG = 7 * 16384 + 8192
    if withb2:
        a.I(f"v_mov_b32 v124, {FLG}")
        for i in range(4):
            a.I(f"v_mov_b32 {v(56 + i)}, 0")
        a.I("ds_write_b128 v124, v[56:59]")
        a.I("s_and_b32 s60, s2, 7")
        a.I("s_lshl_b32 s60, s60, 5")
        a.I("s_lshr_b32 s61, s2, 3")
        a.I("s_add_u32 s60, s60, s61")
        a.I("s_cmp_eq_u32 s2, 248")
        a.I("s_cselect_b32 s61, 4, 2")
        a.I(f"s_cmp_lt_u32 {s(sW)}, s61")
        a.I("s_cselect_b32 s23, 1, 0")
        a.I(f"s_cmp_ge_u32 {s(sW)}, 2")
        a.I("s_cselect_b32 s60, 0x100, s60")
        a.I(f"s_mov_b32 s61, {131072}")
        a.I(f"s_cselect_b32 s61, {131072 + 16384}, s61")
        a.I(f"s_and_b32 s67, {s(sW)}, 1")
    a.I("s_waitcnt lgkmcnt(0)")
    srd(a, 24, 4, 5, "s9", add="s10")
    a.I(f"s_add_u32 s12, s10, {hex(WS_V - 3 * 8192)}")
    a.I(f"s_add_u32 s13, s9, {3 * 8192}")
    srd(a, 28, 4, 5, "s13", add="s12")
    srd(a, 32, 4, 5, 16 * MB, add=WS_Q)
    srd(a, 36, 4, 5, 16 * MB, add=WS_CTX)
    st = Stamper(a, "attn")
    st()
    a.I(f"s_lshl_b32 s12, {s(sQS)}, 18")
    a.I(f"s_lshl_b32 s13, {s(sH)}, 13")
    a.I("s_add_u32 s12, s12, s13")
    a.I("s_add_u32 s13, s12, 4096")

    def q_loads(vm=None):
        for t in range(8):
            x = f"buffer_load_dwordx4 {v(Q + 4 * t, 4)}, {v(L16)}, s[32:35], s{12 + t // 4} offen offset:{(t % 4) * 1024}{os.environ.get('QP', '')}"
            vm.issue(x, "Q") if vm else a.I(x)

    if withb2:
        a.I("s_cmp_eq_u32 s23, 0")
        a.I(f"s_cbranch_scc1 {N}_nob2l")
        b2_loads(a, VM(a), 60, 67, L16, 16, 32, 62, 48)
        q_loads()
        a.label(f"{N}_nob2l")
        a.I("s_barrier")
    a.I(f"s_lshl_b32 s46, {s(sQS)}, 18")
    a.I(f"s_lshl_b32 s6, {s(sH)}, 13")
    a.I("s_add_u32 s46, s46, s6")
    a.I("s_add_u32 s47, s46, 4096")
    a.I(f"s_mov_b32 {s(sKM)}, s11")
    a.I(f"s_mov_b32 {s(sKO)}, 0")

    def dma_list(withV=True):
        l = []
        if withV:
            l += [f"s_mov_b32 m0, {s(sVM)}", None,
                  f"buffer_load_dwordx4 {v(VDA)}, s[28:31], {s(sKO)} offen lds",
                  f"buffer_load_dwordx4 {v(VDA)}, s[28:31], {s(sKO)} offen offset:1024 lds",
                  f"s_add_u32 m0, {s(sVM)}, 0x4000", None,
                  f"buffer_load_dwordx4 {v(VDB)}, s[28:31], {s(sKO)} offen lds",
                  f"buffer_load_dwordx4 {v(VDB)}, s[28:31], {s(sKO)} offen offset:1024 lds"]
        l += [f"s_mov_b32 m0, {s(sKM)}", f"s_add_u32 {s(sVM)}, {s(sKM)}, 0x2000",
              f"buffer_load_dwordx4 {v(VDA)}, s[24:27], {s(sKO)} offen lds",
              f"buffer_load_dwordx4 {v(VDA)}, s[24:27], {s(sKO)} offen offset:1024 lds",
              f"s_add_u32 m0, {s(sKM)}, 0x4000", f"s_add_u32 {s(sKM)}, {s(sKM)}, 0x8000",
              f"buffer_load_dwordx4 {v(VDB)}, s[24:27], {s(sKO)} offen lds",
              f"buffer_load_dwordx4 {v(VDB)}, s[24:27], {s(sKO)} offen offset:1024 lds",
              f"s_and_b32 {s(sKM)}, {s(sKM)}, 0x1ffff",
              f"s_add_u32 {s(sKO)}, {s(sKO)}, 0x4000"]
        return l

    def emit_dma(withV=True):
        for x in dma_list(withV):
            if "dma" in os.environ.get("ADROP", "") and x and x.endswith(" lds"):
                continue
            a.I(x or "s_nop 0")

    def mask_negm():
        for j in range(16):
            a.I(f"v_cmp_le_i32 vcc, {(j & 3) + 8 * (j >> 2)}, {v(QREL)}")
            a.I("s_nop 1")
            a.I(f"v_cndmask_b32 {v(NEGM + j)}, {v(NINF)}, {v(NEGM + j)}, vcc")
        a.I("s_nop 1")

    def rowmax(Sx, dst):
        a.I(f"v_max3_f32 {v(dst)}, {v(Sx)}, {v(Sx + 1)}, {v(Sx + 2)}")
        for j in range(3, 15, 2):
            a.I(f"v_max3_f32 {v(dst)}, {v(dst)}, {v(Sx + j)}, {v(Sx + j + 1)}")
        a.I(f"v_max_f32 {v(dst)}, {v(dst)}, {v(Sx + 15)}")
        a.I(f"v_mov_b32 {v(T2)}, {v(dst)}")
        a.I("s_nop 1")
        a.I(f"v_permlane32_swap_b32 {v(dst)}, {v(T2)}")
        a.I(f"v_max_f32 {v(dst)}, {v(dst)}, {v(T2)}")

    def role(ld):
        R = "S" if ld else "L"
        if withb2 and not ld:
            a.I("s_cmp_eq_u32 s23, 0")
            a.I(f"s_cbranch_scc1 {N}_b2no")
            a.I(f"s_and_b32 s67, {s(sW)}, 2")
            a.I("s_lshl_b32 s67, s67, 2")
            a.I(f"s_add_u32 s67, s67, {FLG}")
            a.I("v_mov_b32 v124, s67")
            a.I(f"s_bitcmp1_b32 {s(sW)}, 0")
            a.I(f"s_cbranch_scc1 {N}_b2w1")
            rmap = [56, 57, 58, 59, 60, 61, 62, 120, 63, 16, 24, 32, 40, 64, 72, 80, 88, 104, 160, 176, 192, 208, 224]
            for own in range(2):
                vmb = VM(a)
                if own:
                    a.label(f"{N}_b2w1")
                ex = [0]

                def pair_sync():
                    ex[0] += 1
                    lab = a.uid(f"{N}_spin")
                    a.I(f"v_mov_b32 v125, {ex[0]}")
                    a.I(f"ds_write_b32 v124, v125 offset:{4 * own}")
                    a.label(lab)
                    a.I(f"ds_read_b32 v126, v124 offset:{4 * (1 - own)}")
                    a.I("s_waitcnt lgkmcnt(0)")
                    a.I("v_readfirstlane_b32 s67, v126")
                    a.I("s_nop 0")
                    a.I(f"s_cmp_lt_u32 s67, {ex[0]}")
                    a.I(f"s_cbranch_scc1 {lab}")
                b2_body(a, own, 60, 61, pair_sync, vmb, S0=62, SR=48, slice_len=10 ** 9, rmap=rmap, preloaded=True,
                        st=st if os.environ.get("B2ST") else (lambda: None))
                if os.environ.get("B2ST"):
                    st()
                    st.n -= 5 * (1 - own)
                assert vmb.q[-5:] == ["Q", "Z", "Z", "Z", "Z"] or "Q" not in vmb.q
                a.I(f"s_branch {N}_b2done")
            a.label(f"{N}_b2no")
        def inits(tag):
            for j in range(16):
                a.I(f"v_mov_b32 {v(NEGM + j)}, 0")
            a.I(f"s_cmp_lg_u32 {s(sN)}, 1")
            a.I(f"s_cbranch_scc1 {N}_{R}_nm1{tag}")
            mask_negm()
            a.label(f"{N}_{R}_nm1{tag}")
            for j in range(64):
                a.I(f"v_mov_b32 {v(O + j)}, 0")
            for j in range(8):
                a.I(f"v_mov_b32 {v(P[1] + j)}, 0")

        inits("a")
        q_loads()
        if ld:
            emit_dma(withV=False)
            emit_dma()
        if withb2 and not ld:
            a.I("s_waitcnt vmcnt(0)")
            a.I(f"s_branch {N}_b2join")
            a.label(f"{N}_b2done")
            inits("b")
            a.I("s_waitcnt vmcnt(4)")
            a.label(f"{N}_b2join")
        a.I(f"v_mov_b32 {v(VL)}, 0")
        a.I(f"v_mov_b32 {v(VLS)}, 0")
        a.I(f"v_mov_b32 {v(VKA)}, {v(L16)}")
        a.I(f"v_mov_b32 {v(VVA)}, {v(L16)}")
        if os.environ.get("PRIO") and not ld:
            a.I(f"s_setprio {os.environ['PRIO']}")
        if ld or not withb2:
            a.I(f"s_waitcnt vmcnt({6 if ld else 0})")
        a.I("s_barrier")
        st()
        for t in range(8):
            a.I(f"ds_read_b128 {v(RING + 4 * t, 4)}, {v(L16)} offset:{t * 1024}")
        dl = [x or "s_nop 0" for x in dma_list()] if ld else []
        for t in range(8):
            if t % 4 == 0:
                a.I("s_waitcnt lgkmcnt(4)")
            a.I(f"{MF} {v(S[0], 16)}, {v(RING + 4 * t, 4)}, {v(Q + 4 * t, 4)}, {v(NEGM if t == 0 else S[0], 16)}")
            a.I(f"ds_read_b128 {v(RING + 4 * t, 4)}, {v(L16)} offset:{16384 + t * 1024}")
            for x in dl[:3]:
                a.I(x)
            dl = dl[3:]
        assert not dl
        if ld:
            emit_dma()
        else:
            a.I("s_nop 11")
        rowmax(S[0], T0)
        for j in range(16):
            a.I(f"v_sub_f32 {v(S[0] + j)}, {v(S[0] + j)}, {v(T0)}")
        for j in range(16):
            a.I(f"v_sub_f32 {v(NEGM + j)}, 0, {v(T0)}")
        a.I(f"s_mov_b32 {s(sPH)}, 0")
        a.I(f"s_sub_u32 {s(sC)}, {s(sN)}, 3")
        a.I(f"s_cbranch_scc0 {N}_{R}_it0")
        a.I(f"s_mov_b32 {s(sPH)}, 1")
        a.I(f"s_sub_u32 {s(sC)}, {s(sN)}, 1")
        a.I(f"s_cmp_lg_u32 {s(sN)}, 2")
        a.I(f"s_cbranch_scc1 {N}_{R}_it0")
        mask_negm()

        def iteration(par):
            gaps = [[] for _ in range(16)]
            pre = [[] for _ in range(16)]
            mf = []
            Sc, Sn, Pc, Pp = S[par], S[1 - par], P[par], P[1 - par]
            e = lambda j: v(EE + (j % 6))
            for pos in range(16):
                r = v(RING + 4 * (pos & 7), 4)
                if pos < 8:
                    mf.append(f"{MF} {v(Sn, 16)}, {r}, {v(Q + 4 * pos, 4)}, {v(NEGM if pos == 0 else Sn, 16)}")
                    ks, dt = divmod(pos, 4)
                    gaps[pos].append(f"ds_read_b128 {r}, {v(VVA)} offset:{8192 + par * 16384 + (2 * dt + ks) * 1024}")
                else:
                    ks, dt = divmod(pos - 8, 4)
                    mf.append(f"{MF} {v(O + 16 * dt, 16)}, {r}, {v(Pp + 4 * ks, 4)}, {v(O + 16 * dt, 16)}")
                    gaps[pos].append(f"ds_read_b128 {r}, {v(VKA)} offset:{par * 16384 + (pos - 8) * 1024}")
                if pos % 4 == 0:
                    pre[pos].append("s_waitcnt lgkmcnt(4)")
            early = int(os.environ.get("EARLY", "1"))
            if early:
                eg = [0, 0, 1, 2, 2, 3, 4, 5, 6, 7, 8, 9, 10, 11, 12, 13]
            else:
                eg = [0] + list(range(15))
            gaps[0].append(f"v_add_f32 {v(VL)}, {v(VL)}, {v(VLS)}")
            for j in range(16):
                gaps[eg[j]].append(f"v_exp_f32 {e(j)}, {v(Sc + j)}")
            for j in range(1, 16):
                g = eg[j] + 1
                if j == 1:
                    gaps[g].append(f"v_add_f32 {v(VLS)}, {e(0)}, {e(1)}")
                else:
                    gaps[g].append(f"v_add_f32 {v(VLS)}, {v(VLS)}, {e(j)}")
                if j % 2 == 1:
                    gaps[g + (1 if (early and j == 15) else 0)].append(f"v_cvt_pk_bf16_f32 {v(Pc + j // 2)}, {e(j - 1)}, {e(j)}")
            if par == 0:
                gaps[2].append(f"v_add_u32 {v(VKA)}, 0x8000, {v(VKA)}")
                gaps[6].append(f"v_and_b32 {v(VKA)}, 0x1ffff, {v(VKA)}")
                bar = ["s_barrier", f"s_sub_u32 {s(sBAR)}, {s(sBAR)}, 1"]
                if ld:
                    bar = ["s_waitcnt vmcnt(14)"] + bar
                gaps[4] = bar + gaps[4]
                if ld:
                    d = [x for x in dma_list() if x]
                    m0a, l1, l2, m0b, l3, l4, m0c, svm, l5, l6, m0d, skm, l7, l8, sand, sko = d
                    gaps[5] = [m0a] + gaps[5] + [l1]
                    gaps[6] += [l2, m0b]
                    gaps[7] += [l3]
                    gaps[8] += [l4, m0c]
                    gaps[9] += [svm, l5]
                    gaps[10] += [l6, m0d]
                    gaps[11] += [l7]
                    gaps[12] += [l8, skm]
                    gaps[13] += [sand, sko]
            else:
                gaps[10].append(f"v_mov_b32 {v(VVA)}, {v(VKA)}")
            gaps[14].append(f"s_sub_u32 {s(sC)}, {s(sC)}, 1")
            gaps[14 if early else 15].append(f"v_cmp_nge_f32 vcc, {s(sTHR)}, {v(VLS)}")
            drop = os.environ.get("ADROP", "").split(",")
            for pos in range(16):
                if "bar" in drop:
                    gaps[pos] = [x for x in gaps[pos] if x != "s_barrier"]
                if "dma" in drop:
                    gaps[pos] = [x for x in gaps[pos] if not x.endswith(" lds")]
                if "rd" in drop:
                    gaps[pos] = [x for x in gaps[pos] if not x.startswith("ds_read")]
                if "valu" in drop:
                    gaps[pos] = [x for x in gaps[pos] if not (x.startswith("v_exp") or x.startswith("v_cvt") or x.startswith("v_add_f32"))]
                if "e64" in drop:
                    gaps[pos] = [x.replace("v_exp_f32 ", "v_exp_f32_e64 ").replace("v_add_f32 ", "v_add_f32_e64 ") for x in gaps[pos]]
                a.many(pre[pos])
                a.I(mf[pos])
                a.many(gaps[pos])
            if "br" not in drop:
                a.I(f"s_cbranch_vccnz {N}_{R}_slow{par}")
            a.label(f"{N}_{R}_back{par}")
            a.I(f"s_cbranch_scc1 {N}_{R}_spec{par}")

        if os.environ.get("PRIO") and not ld:
            pass
        if os.environ.get("AALIGN"):
            a.raw(".p2align 6")
            for _ in range(int(os.environ["AALIGN"]) - 1):
                a.I("s_nop 0")
        a.label(f"{N}_{R}_it0")
        iteration(0)
        a.label(f"{N}_{R}_it1")
        iteration(1)
        a.I(f"s_branch {N}_{R}_it0")

        def svc():
            lab = a.uid(f"{N}_{R}_svc")
            a.I(f"s_cmp_eq_u32 {s(sBAR)}, 0")
            a.I(f"s_cbranch_scc1 {lab}")
            if ld:
                a.I("s_waitcnt vmcnt(14)")
            if "bar" not in os.environ.get("ADROP", ""):
                a.I("s_barrier")
            a.I(f"s_sub_u32 {s(sBAR)}, {s(sBAR)}, 1")
            if ld:
                emit_dma()
            a.label(lab)

        for par in range(2):
            Sc, Sn, Pc = S[par], S[1 - par], P[par]
            a.label(f"{N}_{R}_slow{par}")
            a.I("s_nop 15")
            rowmax(Sc, T0)
            a.I(f"v_max_f32 {v(T0)}, 0, {v(T0)}")
            a.I(f"v_exp_f32_e64 {v(T1)}, -{v(T0)}")
            for j in range(16):
                a.I(f"v_sub_f32 {v(NEGM + j)}, {v(NEGM + j)}, {v(T0)}")
                a.I(f"v_sub_f32 {v(Sc + j)}, {v(Sc + j)}, {v(T0)}")
                a.I(f"v_sub_f32 {v(Sn + j)}, {v(Sn + j)}, {v(T0)}")
            for j in range(64):
                a.I(f"v_mul_f32 {v(O + j)}, {v(O + j)}, {v(T1)}")
            a.I(f"v_mul_f32 {v(VL)}, {v(VL)}, {v(T1)}")
            a.I(f"v_mov_b32 {v(VLS)}, 0")
            for i in range(8):
                a.I(f"v_exp_f32 {v(E)}, {v(Sc + 2 * i)}")
                a.I(f"v_exp_f32 {v(E + 1)}, {v(Sc + 2 * i + 1)}")
                a.I("s_nop 0")
                a.I(f"v_add_f32 {v(VLS)}, {v(VLS)}, {v(E)}")
                a.I(f"v_add_f32 {v(VLS)}, {v(VLS)}, {v(E + 1)}")
                a.I(f"v_cvt_pk_bf16_f32 {v(Pc + i)}, {v(E)}, {v(E + 1)}")
            a.I("s_nop 1")
            a.I(f"s_branch {N}_{R}_back{par}")
            a.label(f"{N}_{R}_spec{par}")
            a.I(f"s_cmp_lg_u32 {s(sPH)}, 0")
            a.I(f"s_cbranch_scc1 {N}_{R}_exit{par}")
            a.I(f"s_mov_b32 {s(sPH)}, 1")
            a.I(f"s_mov_b32 {s(sC)}, 1")
            mask_negm()
            a.I(f"s_branch {N}_{R}_it{1 - par}")
            a.label(f"{N}_{R}_exit{par}")
            a.I("s_waitcnt lgkmcnt(0)")
            for pos in range(8):
                ks, dt = divmod(pos, 4)
                a.I(f"ds_read_b128 {v(RING + 4 * pos, 4)}, {v(VVA)} offset:{8192 + (1 - par) * 16384 + (2 * dt + ks) * 1024}")
            a.I(f"v_add_f32 {v(VL)}, {v(VL)}, {v(VLS)}")
            for pos in range(8):
                ks, dt = divmod(pos, 4)
                a.I(f"s_waitcnt lgkmcnt({7 - pos})")
                a.I(f"{MF} {v(O + 16 * dt, 16)}, {v(RING + 4 * pos, 4)}, {v(Pc + 4 * ks, 4)}, {v(O + 16 * dt, 16)}")
            if par == 0:
                a.I(f"s_branch {N}_{R}_epi")
        a.label(f"{N}_{R}_epi")
        st()
        svc()
        if ld and (withb2 or b2tail):
            a.I(f"s_and_b32 s53, {s(sW)}, 3")
            code_touch(a, "l3_kernel", 53, 48, EE + 2, nw_log=2)
            srd(a, 48, 4, 5, 64 * 128, add=WS_FLAG)
            a.I("s_lshl_b32 s52, s2, 7")
            a.I(f"v_lshlrev_b32 {v(EE)}, 2, v0")
            a.I(f"v_mov_b32 {v(EE + 1)}, 0")
            a.I("s_mov_b64 exec, 15")
            a.I(f"buffer_store_dword {v(EE + 1)}, {v(EE)}, s[48:51], s52 offen")
            a.I("s_mov_b64 exec, -1")
        a.I(f"v_mov_b32 {v(T2)}, {v(VL)}")
        a.I("s_nop 1")
        a.I(f"v_permlane32_swap_b32 {v(VL)}, {v(T2)}")
        a.I(f"v_add_f32 {v(VL)}, {v(VL)}, {v(T2)}")
        a.I(f"v_rcp_f32 {v(T0)}, {v(VL)}")
        a.I("s_nop 7")
        for dt in range(4):
            for h in range(2):
                q = 2 * dt + h
                for i in range(4):
                    src = O + 16 * dt + 8 * h + 2 * i
                    a.I(f"v_mul_f32 {v(src)}, {v(src)}, {v(T0)}")
                    a.I(f"v_mul_f32 {v(src + 1)}, {v(src + 1)}, {v(T0)}")
                    a.I(f"v_cvt_pk_bf16_f32 {v(PK + 4 * q + i)}, {v(src)}, {v(src + 1)}")
                a.I(f"buffer_store_dwordx4 {v(PK + 4 * q, 4)}, {v(L16)}, s[36:39], s{46 + q // 4} offen offset:{(q % 4) * 1024}{SP}")
            if dt == 1:
                svc()
        if ld and b2tail:
            a.I(f"s_lshl_b32 s60, {s(sH)}, 2")
            a.I(f"s_add_u32 s60, s60, {s(sP)}")
            a.I("s_lshl_b32 s60, s60, 1")
            a.I(f"s_bfe_u32 s61, {s(sW)}, 0x10001")
            a.I("s_add_u32 s60, s60, s61")
            a.I(f"s_cmp_lt_u32 {s(sP)}, 4")
            a.I(f"s_cbranch_scc1 {N}_b2go")
            a.I("s_cmp_lg_u32 s60, 8")
            a.I(f"s_cbranch_scc1 {N}_{R}_tail")
            a.I("s_movk_i32 s60, 0x100")
            a.label(f"{N}_b2go")
            a.I("s_lshl_b32 s61, s61, 14")
            a.I(f"s_add_u32 s61, s61, {131072}")
            a.I(f"s_lshl_b32 s62, {s(sP)}, 2")
            a.I("s_sub_u32 s62, 28, s62")
            a.label(f"{N}_b2al")
            a.I(f"s_cmp_le_u32 {s(sBAR)}, s62")
            a.I(f"s_cbranch_scc1 {N}_b2st")
            a.I("s_waitcnt vmcnt(14)")
            a.I("s_barrier")
            a.I(f"s_sub_u32 {s(sBAR)}, {s(sBAR)}, 1")
            emit_dma()
            a.I(f"s_branch {N}_b2al")
            a.label(f"{N}_b2st")
            a.I(f"s_bitcmp1_b32 {s(sW)}, 0")
            a.I(f"s_cbranch_scc1 {N}_b2w1")
            for own in range(2):
                vmb = VM(a)
                nsv = [0]

                def svcb():
                    nsv[0] += 1
                    a.I("s_waitcnt vmcnt(14)")
                    vmb.q = vmb.q[-14:]
                    a.I("s_barrier")
                    a.I(f"s_sub_u32 {s(sBAR)}, {s(sBAR)}, 1")
                    for x in dma_list():
                        if x and x.startswith("buffer"):
                            vmb.issue(x, "dma")
                        else:
                            a.I(x or "s_nop 0")
                if own:
                    a.label(f"{N}_b2w1")
                b2_body(a, own, 60, 61, svcb, vmb, R0=16, S0=62, SR=48, slice_len=int(os.environ.get("SLICE", "90")))
                assert nsv[0] <= 12, nsv
                print("b2 svc slices", nsv[0])
                if not own:
                    a.I(f"s_branch {N}_{R}_tail")
        if ld:
            WT = int(os.environ.get("WOT", "0"))
            if withb2 and WT:
                srd(a, 48, 4, 5, 4 * MB, add=WS_WO)
                a.I("s_lshr_b32 s52, s2, 3")
                a.I("s_lshl_b32 s52, s52, 17")
                a.I("s_lshl_b32 s53, s11, 4")
                a.I("s_add_u32 s52, s52, s53")
                a.I("s_add_u32 s53, s52, 0x8000")
                a.I(f"v_lshlrev_b32 {v(EE)}, 7, v0")
            a.label(f"{N}_{R}_tail")
            if withb2 and WT:
                a.I(f"s_cmp_gt_u32 {s(sBAR)}, {WT}")
                a.I(f"s_cbranch_scc1 {N}_notouch")
                a.label(f"{N}_touch")
                a.I("s_cmp_ge_u32 s52, s53")
                a.I(f"s_cbranch_scc1 {N}_notouch")
                a.I(f"buffer_load_dword {v(EE + 1)}, {v(EE)}, s[48:51], s52 offen")
                a.I("s_add_u32 s52, s52, 0x2000")
                a.I(f"s_cmp_eq_u32 {s(sBAR)}, 0")
                a.I(f"s_cbranch_scc1 {N}_touch")
                a.label(f"{N}_notouch")
            a.I(f"s_cmp_eq_u32 {s(sBAR)}, 0")
            a.I(f"s_cbranch_scc1 {N}_{R}_done")
            a.I("s_waitcnt vmcnt(14)")
            a.I("s_barrier")
            a.I(f"s_sub_u32 {s(sBAR)}, {s(sBAR)}, 1")
            emit_dma()
            a.I(f"s_branch {N}_{R}_tail")
            a.label(f"{N}_{R}_done")
        n0 = st.n
        st.dump(sW, 4, tmpv=T0)
        st.n = n0 - 2
        a.I("s_endpgm")

    a.I(f"s_cmp_ge_u32 {s(sW)}, 4")
    a.I(f"s_cbranch_scc1 {N}_short")
    role(False)
    a.label(f"{N}_short")
    role(True)
    kend(a, N)
    return a, N, (256, 512, 163840 if (withb2 or b2tail) else 131072)


def oproj_body(a, N, st, bar_at=None):
    ACC, CR, AFR = 64, 128, 192
    DEPTH = 8
    L16, L16B, VD0, VD1, TB = 1, 2, 3, 4, 5
    a.I("s_and_b32 s10, s2, 7")
    a.I("s_lshr_b32 s11, s2, 3")
    a.I("s_and_b32 s12, s11, 3")
    a.I("s_lshl_b32 s10, s10, 2")
    a.I("s_add_u32 s17, s10, s12")
    a.I("s_lshr_b32 s18, s11, 2")
    if os.environ.get("OPX") == "same":
        a.I("s_mov_b32 s17, 0")
        a.I("s_mov_b32 s18, 0")
    if os.environ.get("OPX") == "map2":
        a.I("s_and_b32 s10, s2, 3")
        a.I("s_lshl_b32 s10, s10, 3")
        a.I("s_and_b32 s12, s11, 7")
        a.I("s_add_u32 s17, s10, s12")
        a.I("s_bfe_u32 s10, s2, 0x10002")
        a.I("s_lshl_b32 s10, s10, 2")
        a.I("s_lshr_b32 s12, s11, 3")
        a.I("s_add_u32 s18, s10, s12")
    a.I(f"v_lshlrev_b32 {v(L16)}, 4, v0")
    a.I(f"v_add_u32 {v(L16B)}, 0x40000, {v(L16)}")
    a.I("v_lshrrev_b32 v8, 3, v0")
    a.I("v_lshlrev_b32 v8, 10, v8")
    a.I("v_bfe_u32 v9, v0, 4, 1")
    a.I("v_lshlrev_b32 v10, 2, v9")
    a.I("v_and_b32 v11, 7, v0")
    a.I("v_xor_b32 v10, v10, v11")
    a.I(f"v_lshl_add_u32 {v(VD0)}, v10, 4, v8")
    a.I("s_lshl_b32 s10, s18, 7")
    a.I(f"v_add_u32 {v(VD0)}, s10, {v(VD0)}")
    a.I(f"v_add_u32 {v(VD1)}, {8192 - 1024}, {v(VD0)}")
    a.I("v_lshrrev_b32 v8, 5, v0")
    a.I("v_bfe_u32 v10, v0, 2, 2")
    a.I("v_lshl_add_u32 v8, v8, 2, v10")
    a.I(f"v_lshlrev_b32 {v(TB)}, 7, v8")
    a.I(f"v_lshl_add_u32 {v(TB)}, v9, 5, {v(TB)}")
    a.I("v_and_b32 v10, 3, v0")
    a.I(f"v_lshl_add_u32 {v(TB)}, v10, 3, {v(TB)}")
    a.I("v_bfe_u32 v10, v0, 3, 1")
    a.I(f"v_lshl_add_u32 {v(TB)}, v10, 6, {v(TB)}")
    a.I("s_lshl_b32 s19, s16, 14")
    a.I(f"v_add_u32 {v(TB)}, s19, {v(TB)}")
    a.I(f"v_xor_b32 {v(TB + 1)}, 64, {v(TB)}")
    a.I("s_lshl_b32 s40, s17, 19")
    a.I("s_lshl_b32 s10, s16, 16")
    a.I("s_add_u32 s40, s40, s10")
    a.I("s_lshl_b32 s41, s16, 20")
    ROT = int(os.environ.get("ROT", "0"))
    if ROT:
        a.I("s_and_b32 s45, s2, 7")
        a.I(f"s_mul_i32 s45, s45, {ROT}")
    a.I("s_waitcnt lgkmcnt(0)")
    srd(a, 20, 4, 5, 16 * MB, add=WS_CTX)
    srd(a, 24, 6, 7, 4 * MB)
    srd(a, 28, 8, 9, 4 * MB)
    vm, lg = VM(a), LG(a)
    st()

    def loads(g):
        sl = g % DEPTH
        a.I(f"s_add_u32 m0, s19, {sl * 2048}")
        if ROT:
            if g % 4 == 0:
                a.I(f"s_add_u32 s44, s45, {g}")
                a.I("s_and_b32 s44, s44, 63")
                a.I("s_lshl_b32 s46, s44, 14")
                a.I("s_add_u32 s46, s46, s41")
                a.I("s_lshl_b32 s44, s44, 10")
            a.I(f"s_add_u32 s42, s46, {hex((g % 4) * 16384)}")
        else:
            a.I(f"s_add_u32 s42, s41, {hex(g * 16384)}")
        vm.issue(f"buffer_load_dwordx4 {v(VD0)}, s[24:27], s42 offen lds", g)
        vm.issue(f"buffer_load_dwordx4 {v(VD1)}, s[24:27], s42 offen offset:1024 lds", g)
        if g % 4 == 0:
            a.I(f"s_add_u32 s43, s40, {'s44' if ROT else hex(g * 1024)}")
        vm.issue(f"buffer_load_dwordx4 {v(CR + 8 * sl, 4)}, {v(L16)}, s[20:23], s43 offen offset:{(g % 4) * 1024}", g)
        vm.issue(f"buffer_load_dwordx4 {v(CR + 8 * sl + 4, 4)}, {v(L16B)}, s[20:23], s43 offen offset:{(g % 4) * 1024}", g)

    def trs(g):
        sl = g % DEPTH
        vm.wait(g)
        for cb in range(2):
            d = AFR + 8 * (g & 1) + 4 * cb
            lg.issue(f"ds_read_b64_tr_b16 {v(d, 2)}, {v(TB + cb)} offset:{sl * 2048}", g)
            lg.issue(f"ds_read_b64_tr_b16 {v(d + 2, 2)}, {v(TB + cb)} offset:{sl * 2048 + 1024}", g)

    for g in range(DEPTH):
        loads(g)
    st()
    trs(0)
    st()
    for g in range(64):
        if g + 1 < 64:
            trs(g + 1)
        lg.wait(g)
        sl = g % DEPTH
        for qt in range(2):
            for cb in range(2):
                acc = v(ACC + 16 * (2 * qt + cb), 16)
                a.I(f"{MF} {acc}, {v(AFR + 8 * (g & 1) + 4 * cb, 4)}, {v(CR + 8 * sl + 4 * qt, 4)}, {'0' if g == 0 else acc}")
        if g + DEPTH < 64:
            loads(g + DEPTH)
        if g == bar_at:
            a.I("s_barrier")
    st()
    a.I(f"v_add_u32 v8, s19, {v(L16)}")
    a.I("s_nop 11")
    for tl in range(4):
        for jq in range(4):
            a.I(f"ds_write_b128 v8, {v(ACC + 16 * tl + 4 * jq, 4)} offset:{(tl * 4 + jq) * 1024}")
    a.I("v_lshrrev_b32 v9, 5, v0")
    a.I("v_and_b32 v10, 31, v0")
    a.I("v_lshlrev_b32 v10, 4, v10")
    a.I("v_lshl_add_u32 v9, v9, 13, v10")
    a.I("s_lshl_b32 s10, s16, 11")
    a.I("v_add_u32 v9, s10, v9")
    a.I("s_lshl_b32 s11, s17, 17")
    a.I("s_lshl_b32 s12, s18, 7")
    a.I("s_add_u32 s11, s11, s12")
    a.I("s_lshl_b32 s12, s16, 5")
    a.I("s_add_u32 s11, s11, s12")
    a.I("v_lshlrev_b32 v10, 11, v0")
    a.I("s_waitcnt lgkmcnt(0)")
    return ACC


def oproj_body2(a, N, st, bar_at=None):
    DEPTH = int(os.environ.get("ODEPTH", "8"))
    ACC, CR = 192 - 16 * DEPTH, 256 - 16 * DEPTH
    L16, L16B = 1, 2
    a.I("s_and_b32 s10, s2, 7")
    a.I("s_lshr_b32 s11, s2, 3")
    a.I("s_and_b32 s12, s11, 3")
    a.I("s_lshl_b32 s10, s10, 2")
    a.I("s_add_u32 s17, s10, s12")
    a.I("s_lshr_b32 s18, s11, 2")
    if os.environ.get("OPX") == "same":
        a.I("s_mov_b32 s17, 0")
        a.I("s_mov_b32 s18, 0")
    if os.environ.get("OPX") == "sameq":
        a.I("s_and_b32 s17, s17, 3")
    if os.environ.get("OPX") == "map2":
        a.I("s_and_b32 s10, s2, 3")
        a.I("s_lshl_b32 s10, s10, 3")
        a.I("s_and_b32 s12, s11, 7")
        a.I("s_add_u32 s17, s10, s12")
        a.I("s_bfe_u32 s10, s2, 0x10002")
        a.I("s_lshl_b32 s10, s10, 2")
        a.I("s_lshr_b32 s12, s11, 3")
        a.I("s_add_u32 s18, s10, s12")
    a.I(f"v_lshlrev_b32 {v(L16)}, 4, v0")
    a.I(f"v_add_u32 {v(L16B)}, 0x40000, {v(L16)}")
    a.I("s_lshl_b32 s19, s16, 14")
    a.I("s_lshl_b32 s40, s17, 19")
    a.I("s_lshl_b32 s10, s16, 16")
    a.I("s_add_u32 s40, s40, s10")
    a.I("s_lshl_b32 s41, s18, 19")
    a.I("s_lshl_b32 s10, s16, 17")
    a.I("s_add_u32 s41, s41, s10")
    a.I("s_waitcnt lgkmcnt(0)")
    srd(a, 20, 4, 5, 16 * MB, add=WS_CTX)
    srd(a, 24, 4, 5, 4 * MB, add=WS_WO)
    srd(a, 28, 8, 9, 4 * MB)
    vm = VM(a)
    st()

    def loads(g):
        sl = g % DEPTH
        L = []
        if g % 2 == 0:
            L.append(lambda: a.I(f"s_add_u32 s42, s41, {hex(g * 2048)}"))
        if g % 4 == 0:
            L.append(lambda: a.I(f"s_add_u32 s43, s40, {hex(g * 1024)}"))
        for cb in range(2):
            L.append(lambda cb=cb: vm.issue(f"buffer_load_dwordx4 {v(CR + 16 * sl + 4 * cb, 4)}, {v(L16)}, s[24:27], s42 offen "
                                            f"offset:{(g % 2) * 2048 + cb * 1024}", g))
        for qt in range(2):
            L.append(lambda qt=qt: vm.issue(f"buffer_load_dwordx4 {v(CR + 16 * sl + 8 + 4 * qt, 4)}, {v(L16 + qt)}, s[20:23], s43 offen "
                                            f"offset:{(g % 4) * 1024}", g))
        return L

    for g in range(DEPTH):
        for f in loads(g):
            f()
    st()
    st()
    for g in range(64):
        vm.wait(g)
        sl = g % DEPTH
        for qt in range(2):
            for cb in range(2):
                acc = v(ACC + 16 * (2 * qt + cb), 16)
                a.I(f"{MF} {acc}, {v(CR + 16 * sl + 4 * cb, 4)}, {v(CR + 16 * sl + 8 + 4 * qt, 4)}, {'0' if g == 0 else acc}")
        if g + DEPTH < 64:
            for f in loads(g + DEPTH):
                f()
        if g == bar_at:
            a.I("s_barrier")
    st()
    a.I(f"v_add_u32 v8, s19, {v(L16)}")
    a.I("v_lshrrev_b32 v9, 5, v0")
    a.I("v_and_b32 v10, 31, v0")
    a.I("v_lshlrev_b32 v10, 4, v10")
    a.I("v_lshl_add_u32 v9, v9, 13, v10")
    a.I("s_lshl_b32 s10, s16, 11")
    a.I("v_add_u32 v9, s10, v9")
    a.I("s_lshl_b32 s11, s17, 17")
    a.I("s_lshl_b32 s12, s18, 7")
    a.I("s_add_u32 s11, s11, s12")
    a.I("s_lshl_b32 s12, s16, 5")
    a.I("s_add_u32 s11, s11, s12")
    a.I("v_lshlrev_b32 v10, 11, v0")
    for tl in range(4):
        for jq in range(4):
            a.I(f"ds_write_b128 v8, {v(ACC + 16 * tl + 4 * jq, 4)} offset:{(tl * 4 + jq) * 1024}")
    a.I("s_waitcnt lgkmcnt(0)")
    return ACC


def oproj_body3(a, N, st, bar_at=None):
    DEPTH = 8
    ACC, FR = 64, 128
    L16, L16B, LR = 1, 2, 3
    a.I("s_and_b32 s10, s2, 7")
    a.I("s_lshr_b32 s11, s2, 3")
    a.I("s_and_b32 s12, s11, 3")
    a.I("s_lshl_b32 s10, s10, 2")
    a.I("s_add_u32 s17, s10, s12")
    a.I("s_lshr_b32 s18, s11, 2")
    a.I(f"v_lshlrev_b32 {v(L16)}, 4, v0")
    a.I(f"v_add_u32 {v(L16B)}, {0x40000 - 1024}, {v(L16)}")
    a.I("s_lshl_b32 s19, s16, 15")
    a.I(f"v_add_u32 {v(LR)}, s19, {v(L16)}")
    a.I("s_lshl_b32 s42, s18, 19")
    a.I("s_lshl_b32 s10, s16, 17")
    a.I("s_add_u32 s42, s42, s10")
    a.I("s_lshl_b32 s43, s17, 19")
    a.I("s_lshl_b32 s10, s16, 16")
    a.I("s_add_u32 s43, s43, s10")
    RB = int(os.environ.get("RB", "0"))
    if RB:
        a.I("s_lshl1_add_u32 s45, s12, s18")
        a.I("s_and_b32 s45, s45, 7")
        a.I(f"s_mul_i32 s45, s45, {RB // 8 * 1024}")
        a.I("s_mov_b32 s40, s43")
        a.I("s_mov_b32 s41, s42")
        a.I("s_add_u32 s43, s40, s45")
        a.I("s_lshl1_add_u32 s42, s45, s41")
    a.I("s_waitcnt lgkmcnt(0)")
    srd(a, 20, 4, 5, 16 * MB + 2048, add=WS_CTX - 2048)
    srd(a, 24, 4, 5, 4 * MB, add=WS_WO)
    srd(a, 28, 8, 9, 4 * MB)
    vm, lg = VM(a), LG(a)
    st()

    def loads(g):
        sl = g % DEPTH
        return [lambda: a.I(f"s_add_u32 m0, s19, {sl * 4096}"),
                lambda: a.I("s_nop 0") if g < DEPTH else None,
                lambda: vm.issue(f"buffer_load_dwordx4 {v(L16)}, s[24:27], s42 offen lds", g),
                lambda: vm.issue(f"buffer_load_dwordx4 {v(L16)}, s[24:27], s42 offen offset:1024 lds", g),
                lambda: vm.issue(f"buffer_load_dwordx4 {v(L16)}, s[20:23], s43 offen offset:2048 lds", g),
                lambda: vm.issue(f"buffer_load_dwordx4 {v(L16B)}, s[20:23], s43 offen offset:3072 lds", g),
                lambda: nxt(g), lambda: None]

    def nxt(g):
        if not RB:
            a.I("s_add_u32 s42, s42, 2048")
            a.I("s_add_u32 s43, s43, 1024")
            return
        a.I("s_add_u32 s45, s45, 1024")
        a.I(f"s_and_b32 s45, s45, {RB * 1024 - 1}")
        if (g + 1) % RB == 0:
            a.I(f"s_add_u32 s40, s40, {RB * 1024}")
            a.I(f"s_add_u32 s41, s41, {RB * 2048}")
        a.I("s_add_u32 s43, s40, s45")
        a.I("s_lshl1_add_u32 s42, s45, s41")

    def reads(g):
        vm.wait(g)
        for q in range(4):
            lg.issue(f"ds_read_b128 {v(FR + 16 * (g & 1) + 4 * q, 4)}, {v(LR)} offset:{(g % DEPTH) * 4096 + q * 1024}", g)

    for g in range(DEPTH):
        for f in loads(g):
            f()
    st()
    reads(0)
    st()
    for g in range(64):
        if g + 1 < 64:
            reads(g + 1)
        lg.wait(g)
        L = loads(g + DEPTH) if g + DEPTH < 64 else []
        fr = FR + 16 * (g & 1)
        for qt in range(2):
            for cb in range(2):
                acc = v(ACC + 16 * (2 * qt + cb), 16)
                if L:
                    L.pop(0)()
                a.I(f"{MF} {acc}, {v(fr + 4 * cb, 4)}, {v(fr + 8 + 4 * qt, 4)}, {'0' if g == 0 else acc}")
                if L:
                    L.pop(0)()
        if g == bar_at:
            a.I("s_barrier")
    st()
    a.I("v_lshrrev_b32 v9, 5, v0")
    a.I("v_and_b32 v10, 31, v0")
    a.I("v_lshlrev_b32 v10, 4, v10")
    a.I("v_lshl_add_u32 v9, v9, 13, v10")
    a.I("s_lshl_b32 s10, s16, 11")
    a.I("v_add_u32 v9, s10, v9")
    a.I("s_lshl_b32 s11, s17, 17")
    a.I("s_lshl_b32 s12, s18, 7")
    a.I("s_add_u32 s11, s11, s12")
    a.I("s_lshl_b32 s12, s16, 5")
    a.I("s_add_u32 s11, s11, s12")
    a.I("v_lshlrev_b32 v10, 11, v0")
    for tl in range(4):
        for jq in range(4):
            a.I(f"ds_write_b128 {v(LR)}, {v(ACC + 16 * tl + 4 * jq, 4)} offset:{(tl * 4 + jq) * 1024}")
    a.I("s_waitcnt lgkmcnt(0)")
    return ACC


def oproj_body4(a, N, st, bar_at=None):
    DEPTH = 4
    ACC, FR = 32, 96
    L16, L16B, LR = 1, 2, 3
    a.I("s_and_b32 s10, s2, 7")
    a.I("s_lshr_b32 s11, s2, 3")
    a.I("s_and_b32 s12, s11, 3")
    a.I("s_lshl_b32 s10, s10, 2")
    a.I("s_add_u32 s17, s10, s12")
    a.I("s_lshr_b32 s18, s11, 2")
    a.I(f"v_lshlrev_b32 {v(L16)}, 4, v0")
    a.I(f"v_add_u32 {v(L16B)}, {0x40000 - 1024}, {v(L16)}")
    a.I("s_lshl_b32 s19, s16, 14")
    a.I(f"v_add_u32 {v(LR)}, s19, {v(L16)}")
    a.I("s_lshl_b32 s42, s18, 19")
    a.I("s_lshl_b32 s10, s16, 16")
    a.I("s_add_u32 s42, s42, s10")
    a.I("s_lshl_b32 s43, s17, 19")
    a.I("s_lshl_b32 s10, s16, 15")
    a.I("s_add_u32 s43, s43, s10")
    a.I("s_waitcnt lgkmcnt(0)")
    srd(a, 20, 4, 5, 16 * MB + 2048, add=WS_CTX - 2048)
    srd(a, 24, 4, 5, 4 * MB, add=WS_WO)
    vm, lg = VM(a), LG(a)
    st()

    def loads(g):
        sl = g % DEPTH
        return [lambda: a.I(f"s_add_u32 m0, s19, {sl * 4096}"),
                lambda: a.I("s_nop 0") if g < DEPTH else None,
                lambda: vm.issue(f"buffer_load_dwordx4 {v(L16)}, s[24:27], s42 offen lds", g),
                lambda: vm.issue(f"buffer_load_dwordx4 {v(L16)}, s[24:27], s42 offen offset:1024 lds", g),
                lambda: vm.issue(f"buffer_load_dwordx4 {v(L16)}, s[20:23], s43 offen offset:2048 lds", g),
                lambda: vm.issue(f"buffer_load_dwordx4 {v(L16B)}, s[20:23], s43 offen offset:3072 lds", g),
                lambda: a.I("s_add_u32 s42, s42, 2048"),
                lambda: a.I("s_add_u32 s43, s43, 1024")]

    def reads(g):
        vm.wait(g)
        for q in range(4):
            lg.issue(f"ds_read_b128 {v(FR + 16 * (g & 1) + 4 * q, 4)}, {v(LR)} offset:{(g % DEPTH) * 4096 + q * 1024}", g)

    for g in range(DEPTH):
        for f in loads(g):
            f()
    srd(a, 28, 8, 9, 4 * MB)
    a.I("v_lshrrev_b32 v9, 5, v0")
    a.I("v_and_b32 v10, 31, v0")
    a.I("v_lshlrev_b32 v10, 4, v10")
    a.I("v_lshl_add_u32 v9, v9, 13, v10")
    a.I("s_lshl_b32 s10, s16, 10")
    a.I("v_add_u32 v9, s10, v9")
    a.I("v_add_u32 v11, 0x10000, v9")
    a.I("s_lshl_b32 s11, s17, 17")
    a.I("s_lshl_b32 s12, s18, 7")
    a.I("s_add_u32 s11, s11, s12")
    a.I("s_lshl_b32 s12, s16, 4")
    a.I("s_add_u32 s11, s11, s12")
    a.I("v_lshlrev_b32 v10, 11, v0")
    st()
    reads(0)
    st()
    NG = 32
    for g in range(NG):
        if g + 1 < NG:
            reads(g + 1)
        lg.wait(g)
        L = loads(g + DEPTH) if g + DEPTH < NG else []
        fr = FR + 16 * (g & 1)
        for qt in range(2):
            for cb in range(2):
                acc = v(ACC + 16 * (2 * qt + cb), 16)
                if L:
                    L.pop(0)()
                a.I(f"{MF} {acc}, {v(fr + 4 * cb, 4)}, {v(fr + 8 + 4 * qt, 4)}, {'0' if g == 0 else acc}")
                if L:
                    L.pop(0)()
        if g == bar_at:
            a.I("s_barrier")
    st()
    a.I("s_nop 8")
    for tl in range(4):
        for jq in range(4):
            a.I(f"ds_write_b128 {v(LR)}, {v(ACC + 16 * tl + 4 * jq, 4)} offset:{(tl * 4 + jq) * 1024}")
    a.I("s_waitcnt lgkmcnt(0)")
    a.I("s_barrier")
    for pw in range(8):
        for hl in range(2):
            a.I(f"ds_read_b128 {v(ACC + 8 * pw + 4 * hl, 4)}, {v(9 if pw < 4 else 11)} offset:{(pw % 4) * 16384 + hl * 512}")
        if pw == 6:
            a.I("s_waitcnt lgkmcnt(6)")
    for j in range(8):
        a.I(f"v_add_f32 {v(ACC + j)}, {v(ACC + j)}, {v(ACC + 8 + j)}")
        a.I(f"v_add_f32 {v(ACC + 16 + j)}, {v(ACC + 16 + j)}, {v(ACC + 24 + j)}")
    a.I("s_waitcnt lgkmcnt(0)")
    for j in range(8):
        a.I(f"v_add_f32 {v(ACC + 32 + j)}, {v(ACC + 32 + j)}, {v(ACC + 40 + j)}")
        a.I(f"v_add_f32 {v(ACC + 48 + j)}, {v(ACC + 48 + j)}, {v(ACC + 56 + j)}")
    for j in range(8):
        a.I(f"v_add_f32 {v(ACC + j)}, {v(ACC + j)}, {v(ACC + 16 + j)}")
        a.I(f"v_add_f32 {v(ACC + 32 + j)}, {v(ACC + 32 + j)}, {v(ACC + 48 + j)}")
    for j in range(8):
        a.I(f"v_add_f32 {v(ACC + j)}, {v(ACC + j)}, {v(ACC + 32 + j)}")
    for i in range(4):
        a.I(f"v_cvt_pk_bf16_f32 {v(12 + i)}, {v(ACC + 2 * i)}, {v(ACC + 2 * i + 1)}")
    a.I("buffer_store_dwordx4 v[12:15], v10, s[28:31], s11 offen")


def oproj_finish(a, ACC, PW=16384):
    for pw in range(4):
        for i in range(4):
            jq, hl = divmod(i, 2)
            if pw == 2 and i == 0 and PW > 16384:
                a.I("v_add_u32 v9, 0x10000, v9")
            a.I(f"ds_read_b128 {v(ACC + 16 * pw + 4 * i, 4)}, v9 offset:{(pw * PW) % 65536 + jq * 1024 + hl * 512}")
        if pw == 1:
            a.I("s_waitcnt lgkmcnt(0)")
            for j in range(16):
                a.I(f"v_add_f32 {v(ACC + j)}, {v(ACC + j)}, {v(ACC + 16 + j)}")
    a.I("s_waitcnt lgkmcnt(0)")
    for j in range(16):
        a.I(f"v_add_f32 {v(ACC + 32 + j)}, {v(ACC + 32 + j)}, {v(ACC + 48 + j)}")
    for j in range(16):
        a.I(f"v_add_f32 {v(ACC + j)}, {v(ACC + j)}, {v(ACC + 32 + j)}")
    for i in range(8):
        a.I(f"v_cvt_pk_bf16_f32 {v(12 + i)}, {v(ACC + 2 * i)}, {v(ACC + 2 * i + 1)}")
    a.I("buffer_store_dwordx4 v[12:15], v10, s[28:31], s11 offen")
    a.I("buffer_store_dwordx4 v[16:19], v10, s[28:31], s11 offen offset:16")


def gen_oproj():
    a = Asm()
    N = "oproj_kernel"
    kstart(a, N, 256)
    a.I("s_load_dwordx2 s[4:5], s[0:1], 88")
    a.I("s_load_dwordx2 s[6:7], s[0:1], 40")
    a.I("s_load_dwordx2 s[8:9], s[0:1], 72")
    a.I("v_lshrrev_b32 v1, 6, v0")
    a.I("v_and_b32 v0, 63, v0")
    a.I("s_nop 0")
    a.I("v_readfirstlane_b32 s16, v1")
    a.I("s_nop 0")
    st = Stamper(a, "oproj")
    ACC = oproj_body(a, N, st)
    a.I("s_barrier")
    oproj_finish(a, ACC)
    st.dump(16, 4, tmpv=8)
    kend(a, N)
    return a, N, (256, 256, 65536)


def PERMC(j):
    return 8 * (j >> 2) + (j & 3)


def gen_mat(a, dst, nf, base, consts, tmp):
    n = len(consts)
    for i in range(0, n, 4):
        for q in range(4):
            a.I(f"v_fmamk_f32 {v(tmp + q)}, {v(nf)}, {f32(float(consts[i + q]))}, {v(base)}")
        for q in range(4):
            a.I(f"v_cos_f32 {v(tmp + q)}, {v(tmp + q)}")
        a.I("s_nop 0")
        for q in range(2):
            a.I(f"v_cvt_pk_bf16_f32 {v(dst + i // 2 + q)}, {v(tmp + 2 * q)}, {v(tmp + 2 * q + 1)}")


def twiddle(a, Dr, Di, regs, nf, base, consts, sign, tmp):
    for x, c in enumerate(consts):
        A, C, S_, U = tmp, tmp + 1, tmp + 2, tmp + 3
        a.I(f"v_fmamk_f32 {v(A)}, {v(nf)}, {f32(float(c))}, {v(base)}")
        a.I(f"v_cos_f32 {v(C)}, {v(A)}")
        a.I(f"v_sin_f32 {v(S_)}, {v(A)}")
        a.I("s_nop 0")
        for j in regs[x]:
            ng = "-" if sign > 0 else ""
            ps = "" if sign > 0 else "-"
            a.I(f"v_mul_f32 {v(U)}, {v(Dr + j)}, {v(S_)}")
            a.I(f"v_mul_f32 {v(Dr + j)}, {v(Dr + j)}, {v(C)}")
            a.I(f"v_fma_f32 {v(Dr + j)}, {ng}{v(Di + j)}, {v(S_)}, {v(Dr + j)}")
            a.I(f"v_fma_f32 {v(Di + j)}, {v(Di + j)}, {v(C)}, {ps}{v(U)}")


def trig(a, j, C, S_, nf, base, c, tmp, scale=None):
    L = [f"v_fmamk_f32 {v(tmp)}, {v(nf)}, {f32(float(c))}, {v(base)}",
         f"v_cos_f32 {v(C)}, {v(tmp)}", f"v_sin_f32 {v(S_)}, {v(tmp)}"]
    return L


def cmul(a, Dr, Di, C, S_, sign, U):
    ng = "-" if sign > 0 else ""
    ps = "" if sign > 0 else "-"
    a.I(f"v_mul_f32 {v(U)}, {v(Dr)}, {v(S_)}")
    a.I(f"v_mul_f32 {v(Dr)}, {v(Dr)}, {v(C)}")
    a.I(f"v_fma_f32 {v(Dr)}, {ng}{v(Di)}, {v(S_)}, {v(Dr)}")
    a.I(f"v_fma_f32 {v(Di)}, {v(Di)}, {v(C)}, {ps}{v(U)}")


def pack(a, dst, src, n):
    for i in range(n):
        a.I(f"v_cvt_pk_bf16_f32 {v(dst + i)}, {v(src + 2 * i)}, {v(src + 2 * i + 1)}")


def b_decode(a):
    a.I("s_and_b32 s20, s2, 7")
    a.I("s_lshl_b32 s20, s20, 3")
    a.I("s_bfe_u32 s22, s2, 0x30003")
    a.I("s_or_b32 s20, s20, s22")
    a.I("s_lshr_b32 s21, s2, 6")


def gen_b1():
    a = Asm()
    N = "b1_kernel"
    kstart(a, N, 256)
    a.I("s_load_dwordx2 s[4:5], s[0:1], 88")
    a.I("s_load_dwordx4 s[8:11], s[0:1], 48")
    a.I("s_load_dwordx2 s[12:13], s[0:1], 64")
    a.I("v_lshrrev_b32 v1, 6, v0")
    a.I("v_and_b32 v2, 255, v0")
    a.I("v_and_b32 v0, 63, v0")
    a.I("v_readfirstlane_b32 s16, v1")
    b_decode(a)
    a.I("s_lshr_b32 s23, s21, 1")
    a.I("s_lshl_b32 s23, s23, 11")
    a.I("s_lshr_b32 s24, s20, 5")
    a.I("s_lshl_b32 s24, s24, 10")
    a.I("s_add_u32 s23, s23, s24")
    a.I("s_and_b32 s24, s20, 31")
    a.I("s_lshl_b32 s24, s24, 4")
    a.I("s_add_u32 s23, s23, s24")
    a.I("s_and_b32 s24, s21, 1")
    a.I("s_lshl_b32 s24, s24, 9")
    a.I("s_add_u32 s23, s23, s24")
    a.I("s_add_u32 s24, s23, 4096")
    a.I("v_lshlrev_b32 v3, 13, v2")
    a.I("s_cmp_ge_u32 s16, 4")
    a.I("s_waitcnt lgkmcnt(0)")
    a.I(f"s_cbranch_scc1 {N}_filt")
    srd(a, 28, 8, 9, 2 * MB)
    srd(a, 32, 4, 5, 257 * 8192, add=WS_Y)
    a.I("s_lshr_b32 s25, s21, 1")
    a.I("s_lshl_b32 s25, s25, 4")
    a.I("s_and_b32 s26, s21, 1")
    a.I("s_lshl_b32 s26, s26, 2")
    a.I("s_add_u32 s25, s25, s26")
    a.I("s_lshr_b32 s26, s16, 1")
    a.I("s_lshl_b32 s26, s26, 3")
    a.I("s_add_u32 s25, s25, s26")
    a.I("s_and_b32 s26, s16, 1")
    a.I("s_lshl_b32 s26, s26, 1")
    a.I("s_add_u32 s25, s25, s26")
    a.I("s_lshl_b32 s25, s25, 6")
    a.I("s_add_u32 s25, s25, s20")
    a.I("s_lshl_b32 s25, s25, 10")
    a.I(f"s_add_u32 s26, s25, {65536 - 1024}")
    a.I("s_lshl_b32 s27, s16, 11")
    a.I("s_mov_b32 m0, s27")
    a.I("v_lshlrev_b32 v4, 4, v0")
    a.I("buffer_load_dwordx4 v4, s[28:31], s25 offen lds")
    a.I("buffer_load_dwordx4 v4, s[28:31], s26 offen offset:1024 lds")
    HL, NF, BS, TM = 5, 6, 7, 8
    C32, NS32, AR, AI, XF, D1R, D1I, TR, TI, D2 = 16, 24, 32, 36, 40, 48, 64, 80, 88, 96
    a.I(f"v_lshrrev_b32 {v(HL)}, 5, v0")
    a.I(f"v_cvt_f32_u32 {v(HL)}, {v(HL)}")
    a.I("v_and_b32 v12, 31, v0")
    a.I("v_cvt_f32_u32 v12, v12")
    a.I(f"v_mul_f32 {v(NF)}, {f32(1 / 32)}, v12")
    a.I(f"v_mul_f32 {v(BS)}, {v(NF)}, {v(HL)}")
    a.I(f"v_mul_f32 {v(BS)}, {f32(8.0)}, {v(BS)}")
    nat = [16 * t + j for t in range(2) for j in range(8)]
    gen_mat(a, C32, NF, BS, nat, TM)
    a.I(f"v_add_f32 {v(BS)}, {f32(0.25)}, {v(BS)}")
    gen_mat(a, NS32, NF, BS, nat, TM)
    a.I("v_and_b32 v13, 15, v0")
    a.I("v_cvt_f32_u32 v13, v13")
    a.I(f"v_mul_f32 {v(NF)}, {f32(1 / 16)}, v13")
    a.I("v_bfe_u32 v13, v0, 4, 1")
    a.I("v_cvt_f32_u32 v13, v13")
    a.I(f"v_mul_f32 {v(BS)}, {v(NF)}, {v(HL)}")
    a.I(f"v_mul_f32 {v(BS)}, 4.0, {v(BS)}")
    a.I(f"v_fmamk_f32 {v(BS)}, v13, {f32(0.25)}, {v(BS)}")
    pc = [PERMC(j) for j in range(8)]
    gen_mat(a, AR, NF, BS, pc, TM)
    a.I(f"v_add_f32 {v(BS)}, {f32(-0.25)}, {v(BS)}")
    gen_mat(a, AI, NF, BS, pc, TM)
    a.I("v_bfe_u32 v13, v0, 4, 1")
    a.I("v_lshlrev_b32 v13, 10, v13")
    a.I("v_lshrrev_b32 v14, 5, v0")
    a.I("v_lshl_add_u32 v13, v14, 8, v13")
    a.I("v_and_b32 v15, 15, v0")
    a.I("v_lshl_add_u32 v13, v15, 3, v13")
    a.I("v_add_u32 v13, s27, v13")
    a.I("s_waitcnt vmcnt(0)")
    for t in range(2):
        for h in range(2):
            a.I(f"ds_read_b64_tr_b16 {v(XF + 4 * t + 2 * h, 2)}, v13 offset:{t * 512 + h * 128}")
    a.I(f"v_mul_f32 {v(NF)}, {f32(1 / 512)}, v12")
    a.I(f"v_mul_f32 {v(BS)}, {v(NF)}, {v(HL)}")
    a.I(f"v_mul_f32 {v(BS)}, 4.0, {v(BS)}")
    a.I("s_waitcnt lgkmcnt(0)")
    for t in range(2):
        a.I(f"{MF} {v(D1R, 16)}, {v(XF + 4 * t, 4)}, {v(C32 + 4 * t, 4)}, {'0' if t == 0 else v(D1R, 16)}")
    for t in range(2):
        a.I(f"{MF} {v(D1I, 16)}, {v(XF + 4 * t, 4)}, {v(NS32 + 4 * t, 4)}, {'0' if t == 0 else v(D1I, 16)}")
    a.I("v_and_b32 v15, 31, v0")
    a.I("v_lshlrev_b32 v15, 4, v15")
    a.I("v_lshl_add_u32 v15, v14, 11, v15")
    a.I("s_lshl_b32 s25, s16, 2")
    a.I("s_add_u32 s25, s25, 8192")
    a.I("v_add_u32 v15, s25, v15")
    a.I("s_nop 7")
    twiddle(a, D1R, D1I, [[j, j + 8] for j in range(8)], NF, BS, pc, -1, TM)
    pack(a, TR, D1R, 8)
    pack(a, TI, D1I, 8)
    a.I("s_nop 1")
    for r in range(2):
        a.I(f"{MF} {v(D2 + 16 * r, 16)}, {v(AR, 4)}, {v(TR + 4 * r, 4)}, 0")
        a.I(f"{MF} {v(D2 + 16 * r, 16)}, {v(AI, 4)}, {v(TI + 4 * r, 4)}, {v(D2 + 16 * r, 16)}")
    a.I("s_nop 11")
    for c in range(2):
        for j in range(5):
            a.I(f"v_cvt_pk_bf16_f32 {v(TR + 5 * c + j)}, {v(D2 + 8 * c + j)}, {v(D2 + 16 + 8 * c + j)}")
    for c in range(2):
        for j in range(4):
            a.I(f"ds_write_b32 v15, {v(TR + 5 * c + j)} offset:{(c * 8 + j) * 512}")
    a.I("v_cmp_eq_u32 vcc, 0, v0")
    a.I("s_and_saveexec_b64 s[36:37], vcc")
    for c in range(2):
        a.I(f"ds_write_b32 v15, {v(TR + 5 * c + 4)} offset:{8192 + 16 * c}")
    a.I("s_mov_b64 exec, s[36:37]")
    a.I("v_lshlrev_b32 v14, 4, v2")
    a.I("s_waitcnt lgkmcnt(0)")
    a.I("s_barrier")
    a.I("ds_read_b128 v[16:19], v14 offset:8192")
    a.I(f"ds_read_b128 v[20:23], v14 offset:{8192 + 4096}")
    a.I(f"ds_read_b128 v[24:27], v14 offset:{8192 + 8192}")
    a.I("v_lshlrev_b32 v13, 12, v2")
    a.I(f"v_add_u32 v13, {256 * 8192}, v13")
    a.I("s_waitcnt lgkmcnt(0)")
    a.I("buffer_store_dwordx4 v[16:19], v3, s[32:35], s23 offen")
    a.I("buffer_store_dwordx4 v[20:23], v3, s[32:35], s24 offen")
    a.I("v_cmp_gt_u32 vcc, 2, v2")
    a.I("s_and_saveexec_b64 s[36:37], vcc")
    a.I(f"s_cbranch_execz {N}_end")
    a.I("buffer_store_dwordx4 v[24:27], v13, s[32:35], s23 offen")
    a.I("s_endpgm")
    a.label(f"{N}_filt")
    srd(a, 28, 10, 11, 2048 * 514)
    srd(a, 32, 12, 13, 2048 * 514)
    srd(a, 36, 4, 5, 257 * 8192, add=WS_WF)
    a.I("s_lshr_b32 s25, s21, 1")
    a.I("s_lshl_b32 s25, s25, 5")
    a.I("s_lshr_b32 s26, s20, 5")
    a.I("s_lshl_b32 s26, s26, 4")
    a.I("s_add_u32 s25, s25, s26")
    a.I("s_and_b32 s26, s21, 1")
    a.I("s_lshl_b32 s26, s26, 2")
    a.I("s_add_u32 s25, s25, s26")
    a.I("s_lshl_b32 s25, s25, 5")
    a.I("s_and_b32 s26, s20, 31")
    a.I("s_add_u32 s25, s25, s26")
    a.I("s_mul_i32 s25, s25, 514")
    for j in range(8):
        a.I(f"s_add_u32 s{40 + j}, s25, {PERMC(j) * 32 * 514}")
    a.I("v_lshlrev_b32 v4, 1, v2")
    a.I("v_mov_b32 v5, 512")
    for q, va in enumerate((4, 5)):
        for c in range(2):
            for j in range(8):
                a.I(f"buffer_load_ushort {v(32 + 16 * q + 8 * c + j)}, {v(va)}, s[{28 + 4 * c}:{31 + 4 * c}], s{40 + j} offen")
    a.I(f"v_mov_b32 v6, {256 * 8192}")
    a.I("s_waitcnt vmcnt(16)")
    for i in range(8):
        a.I(f"v_lshl_or_b32 {v(16 + i)}, {v(33 + 2 * i)}, 16, {v(32 + 2 * i)}")
    a.I("buffer_store_dwordx4 v[16:19], v3, s[36:39], s23 offen")
    a.I("buffer_store_dwordx4 v[20:23], v3, s[36:39], s24 offen")
    a.I("v_cmp_eq_u32 vcc, 0, v2")
    a.I("s_and_saveexec_b64 s[48:49], vcc")
    a.I(f"s_cbranch_execz {N}_end")
    a.I("s_waitcnt vmcnt(2)")
    for i in range(8):
        a.I(f"v_lshl_or_b32 {v(24 + i)}, {v(49 + 2 * i)}, 16, {v(48 + 2 * i)}")
    a.I("buffer_store_dwordx4 v[24:27], v6, s[36:39], s23 offen")
    a.I("buffer_store_dwordx4 v[28:31], v6, s[36:39], s24 offen")
    kend(a, N)
    return a, N, (256, 512, 20480)


def b2_loads(a, vm, col_s, own_s, L16, YR, WR, S0, SR):
    sY, sW = S0, S0 + 2
    a.I(f"s_lshl_b32 {s(sY)}, {s(col_s)}, 13")
    a.I(f"s_lshl_b32 {s(own_s)}, {s(own_s)}, 10")
    a.I(f"s_add_u32 {s(sY)}, {s(sY)}, {s(own_s)}")
    a.I(f"s_add_u32 {s(sY + 1)}, {s(sY)}, 4096")
    a.I(f"s_add_u32 {s(sW)}, {s(sY)}, {s(own_s)}")
    a.I(f"s_add_u32 {s(sW + 1)}, {s(sW)}, 4096")
    srd(a, SR, 4, 5, 257 * 8192, add=WS_Y)
    for c in range(2):
        for t in range(2):
            vm.issue(f"buffer_load_dwordx4 {v(YR + 8 * c + 4 * t, 4)}, {v(L16)}, {s(SR, 4)}, {s(sY + c)} offen offset:{t * 2048}", "Y")
    srd(a, SR + 4, 4, 5, 257 * 8192, add=WS_WF)
    for c in range(2):
        for h in range(2):
            vm.issue(f"buffer_load_dwordx4 {v(WR + 8 * c + 4 * h, 4)}, {v(L16)}, {s(SR + 4, 4)}, {s(sW + c)} offen offset:{h * 1024}", "WF")


def b2_body(a, own, col_s, lds_s, svc, vm, R0=0, S0=20, SR=28, slice_len=110, rmap=None, after_loads=None, st=lambda: None, preloaded=False, compact_ex=False, newer=8):
    L16, HL, NF, BS, LF, XA, XB, TM, LB = [R0 + x for x in (1, 2, 3, 4, 5, 6, 7, 8, 12)]
    YR, YI, WR, WI = [R0 + x for x in (16, 24, 32, 40)]
    C32, S32, NS32, C64, S64 = [R0 + x for x in (48, 56, 64, 72, 88)]
    DR, DI = R0 + 104, R0 + 120
    FR, FI, FN = R0 + 136, R0 + 152, R0 + 168
    XT = 240
    if rmap:
        L16, HL, NF, BS, LF, XA, XB, TM, LB, YR, YI, WR, WI, C32, S32, NS32, C64, S64, DR, DI, FR, FI, FN = rmap
    sY, sW, sSC, sT = S0, S0 + 2, S0 + 4, S0 + 5
    I0 = a.I
    cnt = [0]

    def I(text):
        r = I0(text)
        cnt[0] += 1
        if cnt[0] >= slice_len and (text.startswith("v_cvt_pk") or text.startswith("v_fma_f32") or text.startswith("v_sin")):
            dosvc()
        return r

    def dosvc():
        a.I = I0
        svc()
        a.I = I
        cnt[0] = 0

    a.I(f"v_lshlrev_b32 {v(L16)}, 4, v0")
    if preloaded:
        vm.q += ["Y"] * 4 + ["WF"] * 4 + ["Q"] * newer
    else:
        a.I(f"s_mov_b32 {s(sT)}, {own}")
        b2_loads(a, vm, col_s, sT, L16, YR, WR, S0, SR)
    srd(a, SR + 8, 4, 5, 257 * 8192, add=WS_Z)
    a.I = I
    a.I(f"s_mov_b32 {s(sSC)}, {f32(2.0 ** -19)}")
    a.I(f"s_and_b32 {s(sT)}, {s(col_s)}, 255")
    a.I(f"s_cmp_eq_u32 {s(sT)}, 0")
    a.I(f"s_cselect_b32 {s(sSC)}, {f32(2.0 ** -20)}, {s(sSC)}")
    a.I(f"v_lshrrev_b32 {v(HL)}, 5, v0")
    a.I(f"v_cvt_f32_u32 {v(HL)}, {v(HL)}")
    a.I(f"v_mul_f32 {v(HL)}, 4.0, {v(HL)}")
    a.I(f"v_and_b32 {v(LF)}, 31, v0")
    a.I(f"v_cvt_f32_u32 {v(LF)}, {v(LF)}")
    a.I(f"v_add_f32 {v(LB)}, {f32(32.0 * own)}, {v(LF)}")
    pc = lambda n: [16 * t + PERMC(j) for t in range(n) for j in range(8)]
    a.I(f"v_mul_f32 {v(NF)}, {f32(1 / 32)}, {v(LF)}")
    a.I(f"v_mul_f32 {v(BS)}, {v(NF)}, {v(HL)}")
    gen_mat(a, C32, NF, BS, pc(2), TM)
    a.I(f"v_add_f32 {v(BS)}, {f32(-0.25)}, {v(BS)}")
    gen_mat(a, S32, NF, BS, pc(2), TM)
    for i in range(8):
        a.I(f"v_xor_b32 {v(NS32 + i)}, 0x80008000, {v(S32 + i)}")
    a.I(f"v_mul_f32 {v(NF)}, {f32(1 / 64)}, {v(LB)}")
    a.I(f"v_mul_f32 {v(BS)}, {v(NF)}, {v(HL)}")
    gen_mat(a, C64, NF, BS, pc(4), TM)
    a.I(f"v_add_f32 {v(BS)}, {f32(-0.25)}, {v(BS)}")
    gen_mat(a, S64, NF, BS, pc(4), TM)
    a.I(f"v_add_u32 {v(XA)}, {s(lds_s)}, {v(L16)}")
    a.I(f"v_add_u32 {v(XB)}, {(1 - own) * 4096}, {v(XA)}")
    a.I(f"v_add_u32 {v(XA)}, {own * 4096}, {v(XA)}")

    def mm(D, terms, fill=None, per=3):
        first = True
        for A_, B_ in terms:
            a.I(f"{MF} {v(D, 16)}, {v(A_, 4)}, {v(B_, 4)}, {'0' if first else v(D, 16)}")
            first = False
            if fill:
                for x in fill[:per]:
                    a.I(x)
                del fill[:per]

    def exchange(neg_of, ldsoff):
        nonlocal XA, XB
        if compact_ex and ldsoff:
            XA, XB, ldsoff = XB, XA, 0
        for c, F in enumerate((FR, FI)):
            for h in range(2):
                a.I(f"ds_write_b128 {v(XA)}, {v(F + 8 * own + 4 * h, 4)} offset:{ldsoff + (2 * c + h) * 1024}")
        a.I("s_waitcnt lgkmcnt(0)")
        dosvc()
        for c, F in enumerate((FR, FI)):
            for h in range(2):
                a.I(f"ds_read_b128 {v(F + 8 * (1 - own) + 4 * h, 4)}, {v(XB)} offset:{ldsoff + (2 * c + h) * 1024}")
        for i in range(8):
            a.I(f"v_xor_b32 {v(FN + 8 * own + i)}, 0x80008000, {v(neg_of + 8 * own + i)}")
        a.I("s_waitcnt lgkmcnt(0)")
        for i in range(8):
            a.I(f"v_xor_b32 {v(FN + 8 * (1 - own) + i)}, 0x80008000, {v(neg_of + 8 * (1 - own) + i)}")
        a.I("s_nop 1")

    jc = [(j & 3) + 8 * (j >> 2) for j in range(16)]
    o = 8 * (1 - own)
    T1C = [FN + j for j in range(16)]
    T1S = [FR + o + j for j in range(8)] + [FI + o + j for j in range(8)]
    a.I(f"v_mul_f32 {v(NF)}, {f32(1 / 2048)}, {v(LF)}")
    a.I(f"v_add_f32 {v(BS)}, {f32(32.0 * own)}, {v(HL)}")
    a.I(f"v_mul_f32 {v(BS)}, {v(NF)}, {v(BS)}")
    for j in range(16):
        a.many(trig(a, j, T1C[j], T1S[j], NF, BS, jc[j], TM + (j & 1)))
    a.I(f"v_mul_f32 {v(NF)}, {f32(1 / 2048)}, {v(LB)}")
    a.I(f"v_mul_f32 {v(BS)}, {v(NF)}, {v(HL)}")
    st()
    vm.wait("Y")
    st()
    mm(DR, [(YR, C32), (YR + 4, C32 + 4), (YI, S32), (YI + 4, S32 + 4)])
    mm(DI, [(YI, C32), (YI + 4, C32 + 4), (YR, NS32), (YR + 4, NS32 + 4)])
    a.I("s_nop 11")
    for j in range(16):
        cmul(a, DR + j, DI + j, T1C[j], T1S[j], -1, TM)
    pack(a, FR + 8 * own, DR, 8)
    pack(a, FI + 8 * own, DI, 8)
    exchange(FR, 0)
    st()
    if after_loads:
        after_loads()
    T2C = [YR + j for j in range(8)] + [YI + j for j in range(8)]
    fill = []
    for j in range(16):
        fill += trig(a, j, T2C[j], XT + j, NF, BS, jc[j], TM + (j & 1))
    mm(DR, [(C64 + 4 * t, FR + 4 * t) for t in range(4)] + [(S64 + 4 * t, FI + 4 * t) for t in range(4)], fill)
    mm(DI, [(C64 + 4 * t, FI + 4 * t) for t in range(4)] + [(S64 + 4 * t, FN + 4 * t) for t in range(4)], fill)
    assert not fill
    vm.wait("WF")
    for j in range(12):
        a.I(f"v_mul_f32 {v(T2C[j])}, {s(sSC)}, {v(T2C[j])}")
    for j in range(16):
        wr, wi, u = TM, TM + 1, TM + 2
        if j & 1:
            a.I(f"v_and_b32 {v(wr)}, 0xffff0000, {v(WR + j // 2)}")
            a.I(f"v_and_b32 {v(wi)}, 0xffff0000, {v(WI + j // 2)}")
        else:
            a.I(f"v_lshlrev_b32 {v(wr)}, 16, {v(WR + j // 2)}")
            a.I(f"v_lshlrev_b32 {v(wi)}, 16, {v(WI + j // 2)}")
        cmul(a, DR + j, DI + j, wr, wi, +1, u)
    pack(a, FR + 8 * own, DR, 8)
    pack(a, FI + 8 * own, DI, 8)
    exchange(FI, 8192)
    st()
    fill = [f"v_mul_f32 {v(T2C[j])}, {s(sSC)}, {v(T2C[j])}" for j in range(12, 16)]
    fill += [f"v_mul_f32 {v(XT + j)}, {s(sSC)}, {v(XT + j)}" for j in range(16)]
    mm(DR, [(FR + 4 * t, C64 + 4 * t) for t in range(4)] + [(FN + 4 * t, S64 + 4 * t) for t in range(4)], fill)
    mm(DI, [(FI + 4 * t, C64 + 4 * t) for t in range(4)] + [(FR + 4 * t, S64 + 4 * t) for t in range(4)], fill)
    a.I("s_nop 11")
    for j in range(16):
        cmul(a, DR + j, DI + j, T2C[j], XT + j, +1, TM)
    pack(a, FR, DR, 8)
    pack(a, FI, DI, 8)
    a.I("s_nop 1")
    mm(DR, [(C32, FR), (C32 + 4, FR + 4), (NS32, FI), (NS32 + 4, FI + 4)])
    mm(DI, [(C32, FI), (C32 + 4, FI + 4), (S32, FR), (S32 + 4, FR + 4)])
    a.I = I0
    a.I("s_nop 7")
    pack(a, YR, DR, 8)
    a.I("s_nop 3")
    pack(a, YI, DI, 8)
    for c in range(2):
        for h in range(2):
            vm.issue(f"buffer_store_dwordx4 {v(YR + 8 * c + 4 * h, 4)}, {v(L16)}, {s(SR + 8, 4)}, {s(sW + c)} offen offset:{h * 1024}", "Z")


def gen_b2():
    a = Asm()
    N = "b2_kernel"
    kstart(a, N, 257)
    a.I("s_load_dwordx2 s[4:5], s[0:1], 88")
    a.I("v_lshrrev_b32 v1, 6, v0")
    a.I("v_and_b32 v0, 63, v0")
    a.I("s_mov_b32 s17, 0")
    a.I("v_readfirstlane_b32 s16, v1")
    a.I("s_waitcnt lgkmcnt(0)")
    a.I("s_cmp_eq_u32 s16, 1")
    a.I(f"s_cbranch_scc1 {N}_w1")
    b2_body(a, 0, 2, 17, lambda: a.I("s_barrier"), VM(a), slice_len=10 ** 9)
    a.I("s_endpgm")
    a.label(f"{N}_w1")
    b2_body(a, 1, 2, 17, lambda: a.I("s_barrier"), VM(a), slice_len=10 ** 9)
    kend(a, N)
    return a, N, (257, 128, 16384)


def b3_loads(a, outp=6):
    b_decode(a)
    a.I("s_lshr_b32 s23, s20, 5")
    a.I("s_lshl_b32 s23, s23, 11")
    a.I("s_lshl_b32 s24, s21, 9")
    a.I("s_add_u32 s23, s23, s24")
    a.I("s_and_b32 s24, s20, 31")
    a.I("s_lshl_b32 s24, s24, 4")
    a.I("s_add_u32 s23, s23, s24")
    a.I("s_add_u32 s24, s23, 4096")
    a.I("v_lshlrev_b32 v3, 13, v2")
    a.I(f"v_mov_b32 v4, {256 * 8192}")
    a.I("s_waitcnt lgkmcnt(0)")
    srd(a, 28, 4, 5, 257 * 8192, add=WS_Z)
    srd(a, 32, outp, outp + 1, 4 * MB)
    a.I("buffer_load_dwordx4 v[16:19], v3, s[28:31], s23 offen")
    a.I("buffer_load_dwordx4 v[20:23], v3, s[28:31], s24 offen")
    a.I("buffer_load_dwordx4 v[24:27], v4, s[28:31], s23 offen")


def b3_body(a, LB=0, outp=6, nafter=0, loaded=False, mid=None, part=0):
    if not loaded:
        b3_loads(a, outp)
    n0 = len(a.items)
    HL, NF, BS, AFL, TM = 5, 6, 7, 12, 8
    C32, NS32, BRE, BIM, MT, ZF, UR, UI, TR, TI = 32, 40, 48, 56, 64, 68, 76, 92, 108, 116
    a.I(f"v_lshrrev_b32 {v(HL)}, 5, v0")
    a.I(f"v_cvt_f32_u32 {v(HL)}, {v(HL)}")
    a.I("v_and_b32 v13, 31, v0")
    a.I("v_cvt_f32_u32 v13, v13")
    a.I(f"v_mul_f32 {v(NF)}, {f32(1 / 32)}, v13")
    a.I(f"v_mul_f32 {v(BS)}, {v(NF)}, {v(HL)}")
    a.I(f"v_mul_f32 {v(BS)}, 4.0, {v(BS)}")
    pc = [16 * t + PERMC(j) for t in range(2) for j in range(8)]
    gen_mat(a, C32, NF, BS, pc, TM)
    a.I(f"v_add_f32 {v(BS)}, {f32(0.25)}, {v(BS)}")
    gen_mat(a, NS32, NF, BS, pc, TM)
    a.I(f"v_and_b32 {v(AFL)}, 15, v0")
    a.I(f"v_cvt_f32_u32 {v(AFL)}, {v(AFL)}")
    a.I(f"v_mul_f32 {v(NF)}, {f32(1 / 16)}, {v(AFL)}")
    a.I(f"v_mul_f32 {v(BS)}, {f32(0.25)}, {v(HL)}")
    a.I("v_and_b32 v13, 16, v0")
    a.I("v_cmp_eq_u32 vcc, 0, v13")
    a.I("v_mov_b32 v14, 0")
    for B_, ph in ((BRE, None), (BIM, -0.25)):
        if ph:
            a.I(f"v_add_f32 {v(BS)}, {f32(ph)}, {v(BS)}")
        gen_mat(a, MT, NF, BS, list(range(8)), TM)
        for i in range(4):
            a.I(f"v_cndmask_b32 {v(B_ + i)}, v14, {v(MT + i)}, vcc")
            a.I(f"v_cndmask_b32 {v(B_ + 4 + i)}, {v(MT + i)}, v14, vcc")
    if part == 1:
        return
    if part == 2:
        del a.items[n0:]
    if mid:
        mid()
    a.I("v_and_b32 v13, 31, v2")
    a.I("v_lshlrev_b32 v13, 4, v13")
    a.I("v_lshrrev_b32 v15, 5, v2")
    a.I("v_lshl_add_u32 v13, v15, 1, v13")
    a.I(f"v_add_u32 v13, {LB}, v13")
    a.I("v_cmp_eq_u32 vcc, 0, v2")
    a.I(f"v_mov_b32 v15, {LB + 8192}")
    a.I(f"s_waitcnt vmcnt({nafter})")
    for i in range(4):
        a.I(f"v_cndmask_b32 {v(20 + i)}, {v(20 + i)}, v14, vcc")
    for c in range(2):
        for i in range(8):
            a.I(f"ds_write_b16{'_d16_hi' if i & 1 else ''} v13, {v(16 + 4 * c + i // 2)} offset:{i * 1024 + c * 512}")
    a.I("s_and_saveexec_b64 s[36:37], vcc")
    a.I("ds_write_b128 v15, v[24:27]")
    a.I("s_mov_b64 exec, s[36:37]")
    a.I("s_lshl_b32 s25, s16, 11")
    a.I(f"s_add_u32 s25, s25, {LB}")
    a.I("v_lshlrev_b32 v13, 4, v0")
    a.I("v_add_u32 v13, s25, v13")
    a.I("v_bfe_u32 v15, v0, 4, 1")
    a.I("s_lshl_b32 s25, s16, 2")
    a.I(f"s_add_u32 s25, s25, {LB + 8192}")
    a.I("v_lshl_add_u32 v15, v15, 1, s25")
    for j in range(1, 16):
        a.I(f"v_mov_b32 {v(UR + j)}, 0")
    a.I("s_waitcnt lgkmcnt(0)")
    a.I("s_barrier")
    a.I(f"ds_read_u16 {v(UR)}, v15")
    a.I(f"ds_read_b128 {v(ZF, 4)}, v13")
    a.I(f"ds_read_b128 {v(ZF + 4, 4)}, v13 offset:1024")
    a.I("v_and_b32 v15, 1, v0")
    a.I("v_lshlrev_b32 v15, 31, v15")
    a.I("v_cmp_gt_u32 vcc, 32, v0")
    a.I(f"v_mul_f32 {v(NF)}, {f32(1 / 512)}, {v(AFL)}")
    a.I(f"v_mul_f32 {v(BS)}, {v(NF)}, {v(HL)}")
    a.I(f"v_mul_f32 {v(BS)}, 4.0, {v(BS)}")
    a.I("s_waitcnt lgkmcnt(2)")
    a.I(f"v_lshlrev_b32 {v(UR)}, 16, {v(UR)}")
    a.I(f"v_xor_b32 {v(UR)}, {v(UR)}, v15")
    a.I(f"v_cndmask_b32 {v(UR)}, v14, {v(UR)}, vcc")
    a.I("s_waitcnt lgkmcnt(0)")
    a.I("s_nop 0")
    for r in range(2):
        a.I(f"{MF} {v(UR, 16)}, {v(ZF + 4 * r, 4)}, {v(BRE + 4 * r, 4)}, {v(UR, 16)}")
    for r in range(2):
        a.I(f"{MF} {v(UI, 16)}, {v(ZF + 4 * r, 4)}, {v(BIM + 4 * r, 4)}, {'0' if r == 0 else v(UI, 16)}")
    a.I("s_lshr_b32 s25, s21, 1")
    a.I("s_lshl_b32 s25, s25, 4")
    a.I("s_and_b32 s26, s21, 1")
    a.I("s_lshl_b32 s26, s26, 2")
    a.I("s_add_u32 s25, s25, s26")
    a.I("s_lshr_b32 s26, s16, 1")
    a.I("s_lshl_b32 s26, s26, 3")
    a.I("s_add_u32 s25, s25, s26")
    a.I("s_and_b32 s26, s16, 1")
    a.I("s_lshl_b32 s26, s26, 1")
    a.I("s_add_u32 s25, s25, s26")
    a.I("s_lshl_b32 s25, s25, 6")
    a.I("s_add_u32 s25, s25, s20")
    a.I("s_lshl_b32 s25, s25, 11")
    a.I(f"s_add_u32 s26, s25, {64 * 2048}")
    jc = [(j & 3) + 8 * (j >> 2) for j in range(16)]
    twiddle(a, UR, UI, [[j] for j in range(16)], NF, BS, jc, +1, TM)
    pack(a, TR, UR, 8)
    pack(a, TI, UI, 8)
    a.I("v_and_b32 v13, 31, v0")
    a.I("v_lshlrev_b32 v13, 5, v13")
    terms = [(TR, C32), (TR + 4, C32 + 4), (TI, NS32), (TI + 4, NS32 + 4)]
    for i, (A_, B_) in enumerate(terms):
        a.I(f"{MF} {v(UR, 16)}, {v(A_, 4)}, {v(B_, 4)}, {'0' if i == 0 else v(UR, 16)}")
    a.I("v_lshrrev_b32 v15, 5, v0")
    a.I("v_lshl_add_u32 v13, v15, 4, v13")
    a.I("s_nop 9")
    pack(a, 16, UR, 8)
    a.I("s_nop 1")
    for r in range(2):
        a.I(f"v_permlane32_swap_b32 {v(16 + 4 * r)}, {v(18 + 4 * r)}")
        a.I(f"v_permlane32_swap_b32 {v(17 + 4 * r)}, {v(19 + 4 * r)}")
        a.I(f"buffer_store_dwordx4 {v(16 + 4 * r, 4)}, v13, s[32:35], s{25 + r} offen offset:1024")


def gen_b3():
    a = Asm()
    N = "b3_kernel"
    kstart(a, N, 256)
    a.I("s_load_dwordx2 s[4:5], s[0:1], 88")
    a.I("s_load_dwordx2 s[6:7], s[0:1], 72")
    a.I("v_lshrrev_b32 v1, 6, v0")
    a.I("v_mov_b32 v2, v0")
    a.I("v_and_b32 v0, 63, v0")
    a.I("v_readfirstlane_b32 s16, v1")
    b3_body(a)
    kend(a, N)
    return a, N, (256, 256, 8192 + 64)


KERNELS = [gen_b1, gen_qkv, gen_b2, gen_attn, gen_b3, gen_oproj]


ALIASES = [("v_mfma_f32_16x16x32_bf16", "mf16", 4), ("v_mfma_f32_32x32x16_bf16", "mf32", 4),
           ("v_cvt_pk_bf16_f32", "cvtpk", 3)]


def compact(txt):
    lines = txt.split("\n")
    out = []
    done = False
    for l in lines:
        if l.startswith("    "):
            l = l.strip()
            for full, short, n in ALIASES:
                if l.startswith(full + " "):
                    l = short + l[len(full):]
        out.append(l)
        if l.startswith(".amdgcn_target") and not done:
            done = True
            for full, short, n in ALIASES:
                args = ["p%d" % i for i in range(n)]
                out.append(f".macro {short} " + ", ".join(args))
                out.append(f"{full} " + ", ".join("\\" + x for x in args))
                out.append(".endm")
    return "\n".join(out)


def build(kernels, path):
    hdr = open(os.path.join(os.path.dirname(os.path.abspath(__file__)), "..", "cdna_kernels", NAME + ".s.ref")).read()
    head = [l for l in hdr.splitlines() if l.startswith(";") and "@launch" not in l and "Override" not in l
            and "grid=ceil" not in l]
    txt = []
    launches = []
    descs = []
    bad = 0
    for g in kernels:
        KIDX[0] = len(launches)
        a, n, (grid, blk, lds) = g()
        if os.environ.get("PADK") == n:
            items = []
            cnt = 0
            for it in a.items:
                if it[0] == "i" and it[1].text == f"s_cbranch_scc1 {n}_end" and cnt == 0:
                    items.append(it)
                    b = Asm()
                    b.I("s_memrealtime s[98:99]")
                    items += b.items
                    cnt = 1
                    continue
                if it[0] == "i" and it[1].mn == "s_endpgm" and not (items[-1][0] == "l" and items[-1][1] == n + "_end" and items[-2][1].mn == "s_endpgm"):
                    b = Asm()
                    lab = None
                    if items[-1][0] == "l" and items[-1][1] == n + "_end":
                        lab = items.pop()
                    cnt += 1
                    b.I("s_waitcnt vmcnt(0) lgkmcnt(0)")
                    b.label(f"pad_{cnt}")
                    b.I("s_memrealtime s[96:97]")
                    b.I("s_waitcnt lgkmcnt(0)")
                    b.I("s_sub_u32 s96, s96, s98")
                    b.I(f"s_cmp_lt_u32 s96, {os.environ['PADT']}")
                    b.I(f"s_cbranch_scc1 pad_{cnt}")
                    items += b.items
                    if lab:
                        items.append(it)
                        items.append(lab)
                items.append(it)
            a.items = items
        if DBGT:
            items = []
            for it in a.items:
                if it[0] == "i" and it[1].mn == "s_endpgm" and not (items and items[-1][0] == "l" and items[-1][1] == n + "_end" and items[-2][1].mn == "s_endpgm"):
                    b = Asm()
                    lab = None
                    if items[-1][0] == "l" and items[-1][1] == n + "_end":
                        lab = items.pop()
                    dbg_stamp(b, 1)
                    items += b.items
                    if lab:
                        items.append(it)
                        items.append(lab)
                items.append(it)
            a.items = items
        bad += len(a.check())
        nv, ns, na = a.maxregs()
        print(f"{n}: {sum(1 for k, _ in a.items if k == 'i')} instrs, vgpr {nv}, agpr {na}, sgpr {ns}")
        launches.append(f"; @launch kernel={n} grid=({grid},1,1) block=({blk},1,1) lds={lds}")
        txt.append(a.text())
        descs.append(kdesc(n, nv, ns, na))
    if bad:
        print("HAZARDS:", bad)
    out = "\n".join(head) + "\n" + "\n".join(launches) + "\n" + '.amdgcn_target "amdgcn-amd-amdhsa--gfx950"\n' + \
          "".join(txt) + "".join(descs)
    out = compact(out)
    open(path, "w").write(out)
    return bad


if __name__ == "__main__":
    p = sys.argv[1] if len(sys.argv) > 1 else os.path.join(os.path.dirname(os.path.abspath(__file__)), "..",
                                                           "cdna_kernels", NAME + ".s")
    sys.exit(1 if build(KERNELS, p) else 0)
```

```python
import sys, os, math, struct
sys.path.insert(0, os.path.dirname(os.path.abspath(__file__)))
from asmlib import Asm, VM, LG, v, s, ag

NAME = "concat_heads__compressed_kv_cla__spectral_gfnet__prompt"
MB = 1 << 20
WS_K, WS_V, WS_CTX, WS_Y, WS_WF, WS_Z, WS_Q = 0, 16 * MB, 32 * MB, 48 * MB, 52 * MB, 56 * MB, 64 * MB
WS_WO = 60 * MB
if os.environ.get('ALIAS'):
    WS_Q = WS_CTX
WS_PART = 0
WS_FLAG = 56 * MB + 2560 * 1024
YSTR = 8320
KA = dict(x=0, ckv=8, wq=16, wuk=24, wuv=32, wo=40, bx=48, wr=56, wi=64, out=72, dbg=80, ws=88)
MF = "v_mfma_f32_32x32x16_bf16"
SP = os.environ.get("SP", " sc1")


def f32(x):
    return "0x%08x" % struct.unpack("<I", struct.pack("<f", x))[0]


def srd(a, d, lo, hi, size, add=0):
    if add:
        a.I(f"s_add_u32 {s(d)}, {s(lo)}, {add if isinstance(add, str) else hex(add)}")
        a.I(f"s_addc_u32 {s(d + 1)}, {s(hi)}, 0")
    else:
        a.I(f"s_mov_b32 {s(d)}, {s(lo)}")
        a.I(f"s_mov_b32 {s(d + 1)}, {s(hi)}")
    a.I(f"s_mov_b32 {s(d + 2)}, {size if isinstance(size, str) else hex(size)}")
    a.I(f"s_mov_b32 {s(d + 3)}, 0x20000")


STAMPS = int(os.environ.get("STAMPS", "0"))
ST0 = 72


class Stamper:
    def __init__(self, a, name=""):
        self.a, self.n = a, 0
        self.on = STAMPS and os.environ.get("STAMPK", name) == name

    def __call__(self):
        if self.on and self.n < 11:
            if self.n == 0:
                self.a.I("s_memrealtime s[68:69]")
            self.a.I(f"s_memtime {s(ST0 + 2 * self.n, 2)}")
            self.n += 1

    def dump(self, wave_s, wslo, tmpv=8):
        if not self.on:
            return
        a = self.a
        a.I("s_waitcnt vmcnt(0) lgkmcnt(0)")
        a.I(f"s_memtime {s(ST0 + 2 * self.n, 2)}")
        a.I("s_memrealtime s[70:71]")
        self.n += 1
        srd(a, 96, wslo, wslo + 1, 1 * MB, add=128 * MB)
        a.I("s_lshl_b32 s100, s2, 3")
        a.I(f"s_add_u32 s100, s100, {s(wave_s)}")
        a.I("s_lshl_b32 s100, s100, 8")
        a.I("s_waitcnt lgkmcnt(0)")
        a.I(f"v_mov_b32 {v(tmpv + 1)}, 0")
        for i in range(self.n):
            a.I(f"v_mov_b32 {v(tmpv)}, {s(ST0 + 2 * i)}")
            a.I(f"buffer_store_dword {v(tmpv)}, {v(tmpv + 1)}, s[96:99], s100 offen offset:{4 * i}")
        for i, r in ((62, 68), (63, 70), (61, ST0 + 2 * (self.n - 1))):
            a.I(f"v_mov_b32 {v(tmpv)}, {s(r)}")
            a.I(f"buffer_store_dword {v(tmpv)}, {v(tmpv + 1)}, s[96:99], s100 offen offset:{4 * i}")
        a.I("s_waitcnt vmcnt(0)")


DBGT = int(os.environ.get("DBGT", "0"))
KIDX = [0, 0]


def dbg_stamp(a, end):
    k = KIDX[0]
    lab = a.uid("dbgskip%d_%d" % (k, KIDX[1]))
    KIDX[1] += 1
    if not end:
        a.I("v_readfirstlane_b32 s89, v0")
        a.I("s_nop 1")
        a.I("s_lshr_b32 s89, s89, 6")
        a.I("s_or_b32 s89, s89, s2")
    a.I("s_cmp_lg_u32 s89, 0")
    a.I(f"s_cbranch_scc1 {lab}")
    a.I("s_load_dwordx4 s[92:95], s[90:91], 80")
    a.I("s_waitcnt vmcnt(0) lgkmcnt(0)")
    a.I("s_memrealtime s[86:87]")
    a.I(f"s_add_u32 s96, s94, {hex(200 * MB)}")
    a.I("s_addc_u32 s97, s95, 0")
    a.I("s_mov_b32 s98, 256")
    a.I("s_mov_b32 s99, 0x20000")
    a.I("s_waitcnt lgkmcnt(0)")
    a.I("v_mov_b32 v254, s86")
    a.I(f"buffer_store_dword v254, off, s[96:99], 0 offset:{8 * k + 4 * end} sc0 sc1")
    a.I("s_waitcnt vmcnt(0)")
    if end and k == DBGT - 1:
        a.I("v_lshlrev_b32 v253, 2, v0")
        a.I("buffer_load_dword v254, v253, s[96:99], 0 offen sc0 sc1")
        a.I("s_mov_b32 s96, s92")
        a.I("s_mov_b32 s97, s93")
        a.I("s_waitcnt vmcnt(0)")
        a.I("buffer_store_dword v254, v253, s[96:99], 0 offen")
        a.I(f"s_sub_u32 s96, s92, {k * 512}")
        a.I("s_subb_u32 s97, s93, 0")
        a.I("s_nop 0")
        a.I("buffer_store_dword v254, v253, s[96:99], 0 offen")
    a.label(lab)


def code_touch(a, kname, wave_s, sr, vt, nw_log=3, kd=True):
    if os.environ.get("NOCP"):
        return
    ref = a.uid("pcref_" + kname)
    a.I(f"s_getpc_b64 {s(sr, 2)}")
    a.label(ref)
    a.I(f"s_add_u32 {s(sr)}, {s(sr)}, {kname} - {ref}")
    a.I(f"s_addc_u32 {s(sr + 1)}, {s(sr + 1)}, ({kname} - {ref}) >> 32")
    a.I(f"s_mov_b32 {s(sr + 2)}, {kname}_end - {kname}")
    a.I(f"s_mov_b32 {s(sr + 3)}, 0x20000")
    a.I(f"s_lshr_b32 {s(sr + 4)}, s2, 3")
    a.I(f"s_lshl_b32 {s(sr + 4)}, {s(sr + 4)}, {nw_log}")
    a.I(f"s_add_u32 {s(sr + 4)}, {s(sr + 4)}, {s(wave_s)}")
    a.I(f"s_lshl_b32 {s(sr + 4)}, {s(sr + 4)}, {12 - nw_log}")
    a.I(f"v_lshlrev_b32 {v(vt)}, 7, v0")
    a.I(f"s_mov_b64 exec, {(1 << (32 >> nw_log)) - 1}")
    a.I(f"buffer_load_dword {v(vt + 1)}, {v(vt)}, {s(sr, 4)}, {s(sr + 4)} offen")
    if kd and not os.environ.get("NOKD"):
        a.I(f"s_getpc_b64 {s(sr, 2)}")
        a.I(f"s_add_u32 {s(sr)}, {s(sr)}, kdl_{kname}@rel32@lo+4")
        a.I(f"s_addc_u32 {s(sr + 1)}, {s(sr + 1)}, kdl_{kname}@rel32@hi+12")
        a.I(f"s_mov_b32 {s(sr + 2)}, 64")
        a.I("s_mov_b64 exec, 1")
        a.I(f"buffer_load_dword {v(vt + 1)}, off, {s(sr, 4)}, 0")
    a.I("s_mov_b64 exec, -1")


def kstart(a, name, nwg):
    a.raw(".text")
    a.raw(f".globl {name}")
    a.raw(".p2align 8")
    a.raw(f".type {name},@function")
    a.label(name)
    a.I(f"s_cmp_ge_u32 s2, {nwg}")
    a.I(f"s_cbranch_scc1 {name}_end")
    if DBGT:
        a.I("s_mov_b64 s[90:91], s[0:1]")
        dbg_stamp(a, 0)


def kend(a, name):
    a.label(name + "_end")
    a.I("s_endpgm")


def kdesc(name, nv, ns, na=0):
    nv = (nv + 7) // 8 * 8
    acc_off = nv
    nv = nv + (na + 7) // 8 * 8
    return f""".section .rodata,"a"
.p2align 6
kdl_{name}:
.amdhsa_kernel {name}
  .amdhsa_next_free_vgpr {nv}
  .amdhsa_next_free_sgpr {max(ns, 16)}
  .amdhsa_accum_offset {acc_off}
  .amdhsa_group_segment_fixed_size 0
  .amdhsa_kernarg_size 96
  .amdhsa_user_sgpr_count 2
  .amdhsa_user_sgpr_kernarg_segment_ptr 1
  .amdhsa_system_sgpr_workgroup_id_x 1
  .amdhsa_float_denorm_mode_32 3
.end_amdhsa_kernel
"""


QSCALE = math.log2(math.e) / math.sqrt(128.0)


def gen_qkv():
    a = Asm()
    N = "qkvproj_kernel"
    kstart(a, N, 256)
    a.I("s_load_dwordx4 s[4:7], s[0:1], 0")
    a.I("s_load_dwordx4 s[8:11], s[0:1], 16")
    a.I("s_load_dwordx2 s[12:13], s[0:1], 32")
    a.I("s_load_dwordx2 s[14:15], s[0:1], 88")
    a.I("v_lshrrev_b32 v1, 6, v0")
    a.I("v_and_b32 v0, 63, v0")
    a.I("s_and_b32 s17, s2, 7")
    a.I("v_readfirstlane_b32 s16, v1")
    a.I("s_lshr_b32 s18, s2, 3")
    a.I("s_and_b32 s19, s18, 7")
    a.I("s_lshr_b32 s18, s18, 3")
    a.I("s_lshl_b32 s40, s17, 2")
    a.I("s_add_u32 s18, s18, s40")
    a.I("s_mov_b32 s41, 0")
    a.I("s_mul_i32 s42, s18, 6")
    a.I("s_cmp_ge_u32 s18, 11")
    a.I("s_cselect_b32 s41, 1, s41")
    a.I("s_cselect_b32 s40, 64, 0")
    a.I("s_cmp_ge_u32 s18, 21")
    a.I("s_cselect_b32 s41, 2, s41")
    a.I("s_cselect_b32 s40, 126, s40")
    a.I("s_sub_u32 s42, s42, s40")
    a.I("s_lshl_b32 s44, s19, 3")
    a.I("s_add_u32 s44, s44, s16")
    hl, b4, t1, t2 = 9, 10, 11, 12
    a.I(f"v_lshrrev_b32 {v(hl)}, 5, v0")
    a.I(f"v_bfe_u32 {v(b4)}, v0, 4, 1")
    a.I(f"v_lshrrev_b32 {v(t1)}, 3, v0")
    a.I(f"v_lshlrev_b32 {v(t1)}, 10, {v(t1)}")
    a.I("s_lshl_b32 s45, s44, 15")
    a.I(f"v_add_u32 {v(t1)}, s45, {v(t1)}")
    a.I(f"v_lshrrev_b32 {v(t2)}, 4, v0")
    a.I("v_and_b32 v13, 7, v0")
    a.I(f"v_xor_b32 {v(t2)}, {v(t2)}, v13")
    a.I(f"v_lshl_add_u32 v52, {v(t2)}, 4, {v(t1)}")
    a.I("v_xor_b32 v53, 64, v52")
    a.I(f"v_add_u32 v53, {8192 - 1024}, v53")
    a.I(f"v_add_u32 v54, {2 * (8192 - 1024)}, v52")
    a.I(f"v_add_u32 v55, {2 * (8192 - 1024)}, v53")
    a.I("v_and_b32 v13, 31, v0")
    a.I(f"v_bfe_u32 {v(t2)}, v0, 1, 3")
    a.I(f"v_xor_b32 {v(t2)}, {v(t2)}, {v(hl)}")
    a.I(f"v_lshlrev_b32 {v(t2)}, 4, {v(t2)}")
    a.I(f"v_lshl_add_u32 {v(t2)}, v13, 7, {v(t2)}")
    a.I("s_mul_i32 s46, s16, 12288")
    for t in range(4):
        a.I(f"v_xor_b32 {v(56 + t)}, {32 * t}, {v(t2)}")
    for t in range(4):
        a.I(f"v_add_u32 {v(56 + t)}, s46, {v(56 + t)}")
    a.I("v_lshrrev_b32 v2, 3, v0")
    a.I("v_lshlrev_b32 v2, 13, v2")
    a.I(f"v_lshlrev_b32 {v(t1)}, 2, {v(b4)}")
    a.I(f"v_and_b32 {v(t2)}, 7, v0")
    a.I(f"v_xor_b32 {v(t1)}, {v(t1)}, {v(t2)}")
    a.I(f"v_lshl_add_u32 v2, {v(t1)}, 4, v2")
    a.I("s_lshl_b32 s45, s16, 17")
    a.I("v_add_u32 v2, s45, v2")
    a.I(f"v_add_u32 v3, {65536 - 1024}, v2")
    a.I(f"v_bfe_u32 {v(t1)}, v0, 2, 2")
    a.I(f"v_lshl_add_u32 {v(t2)}, {v(hl)}, 3, {v(t1)}")
    a.I(f"v_lshlrev_b32 v4, 7, {v(t2)}")
    a.I(f"v_lshl_add_u32 v4, {v(b4)}, 5, v4")
    a.I(f"v_and_b32 {v(t2)}, 3, v0")
    a.I(f"v_lshl_add_u32 v4, {v(t2)}, 3, v4")
    a.I(f"v_bfe_u32 {v(t2)}, v0, 3, 1")
    a.I(f"v_lshl_add_u32 v4, {v(t2)}, 6, v4")
    a.I("v_xor_b32 v5, 64, v4")
    a.I("v_add_u32 v6, 0x10000, v4")
    a.I("v_add_u32 v7, 0x10000, v5")
    a.I("v_add_u32 v50, 0x20000, v4")
    a.I("v_add_u32 v51, 0x20000, v5")
    a.I("v_lshlrev_b32 v48, 4, v0")
    a.I("s_lshl_b32 s47, s16, 11")
    a.I("s_lshl_b32 s48, s42, 7")
    a.I("s_lshl_b32 s49, s44, 13")
    a.I("s_lshl_b32 s50, s42, 18")
    a.I("s_add_u32 s50, s50, s49")
    a.I("s_waitcnt lgkmcnt(0)")
    a.I("s_cmp_eq_u32 s41, 2")
    a.I("s_cselect_b32 s20, s4, s6")
    a.I("s_cselect_b32 s21, s5, s7")
    a.I("s_cselect_b32 s24, s8, s10")
    a.I("s_cselect_b32 s25, s9, s11")
    a.I(f"s_cselect_b32 s51, {hex(WS_Q)}, 0")
    a.I(f"s_cselect_b32 s52, {f32(QSCALE)}, 1.0")
    a.I(f"s_mov_b32 s22, {hex(2 * MB)}")
    a.I("s_mov_b32 s23, 0x20000")
    a.I(f"s_mov_b32 s26, {hex(4 * MB)}")
    a.I("s_mov_b32 s27, 0x20000")
    srd(a, 28, 14, 15, 16 * MB, add="s51")
    srd(a, 32, 12, 13, 4 * MB)
    srd(a, 36, 14, 15, 16 * MB, add=WS_V)
    srd(a, 56, 6, 7, 2 * MB)
    a.I("s_cmp_eq_u32 s18, 31")
    a.I(f"s_cbranch_scc1 {N}_D")
    a.I("s_cmp_eq_u32 s41, 1")
    a.I(f"s_cbranch_scc1 {N}_B")
    a.I("s_cmp_eq_u32 s18, 10")
    a.I(f"s_cbranch_scc1 {N}_C")

    AF, ACC, RING, PK = 64, 192, 8, 32
    LOOK = 6

    def body(passes, tag):
        vm, lg = VM(a), LG(a)
        st = Stamper(a, "qkv")
        st()
        NP = len(passes)
        NC = 4 * NP
        NM = 64 * NP
        restage = tag == "D"
        blk = {}
        free = [6, 7, 8, 9]
        nxt = [0]

        def dmaW():
            c = nxt[0]
            if c >= NC or not free:
                return False
            b = free.pop(0)
            blk[c] = b
            nxt[0] += 1
            pp, kc = divmod(c, 4)
            form, su, di = passes[pp]
            a.I(f"s_add_u32 m0, s47, {hex(b * 16384)}")
            if su is not None:
                a.I(f"s_mov_b32 s45, {hex((kc << 20) + su * 128)}")
            else:
                a.I(f"s_add_u32 s45, s48, {hex((kc << 20) + di * 128)}")
            sr = "s[32:35]" if form == "V" else "s[24:27]"
            vm.issue(f"buffer_load_dwordx4 v2, {sr}, s45 offen lds", ("W", c))
            vm.issue(f"buffer_load_dwordx4 v3, {sr}, s45 offen offset:1024 lds", ("W", c))
            return True

        def dmaA(j):
            sr = "s[56:59]" if (restage and j < 8) else "s[20:23]"
            a.I(f"s_add_u32 m0, s46, {hex((j % 3) * 4096)}")
            a.I(f"s_mov_b32 s45, {(j % 8) * 128}")
            for i in range(4):
                vm.issue(f"buffer_load_dwordx4 {v(52 + i)}, {sr}, s45 offen offset:{i * 1024} lds", ("A", j))

        def readA(j):
            vm.wait(("A", j))
            for t in range(4):
                lg.issue(f"ds_read_b128 {v(AF + 16 * (j % 8) + 4 * t, 4)}, {v(56 + t)} offset:{(j % 3) * 4096}", ("A", j))

        dmaW(); dmaA(0); dmaA(1); dmaW(); dmaA(2); dmaW(); dmaW()

        def reads(i):
            c, r = divmod(i, 16)
            t, cb = divmod(r, 2)
            b = blk[c]
            base = [4, 6, 50][b // 4] + cb
            off = (b % 4) * 16384 + t * 2048
            d = RING + 4 * (i % LOOK)
            lg.issue(f"ds_read_b64_tr_b16 {v(d, 2)}, {v(base)} offset:{off}", ("W", i))
            lg.issue(f"ds_read_b64_tr_b16 {v(d + 2, 2)}, {v(base)} offset:{off + 512}", ("W", i))

        def sync(c):
            vm.wait(("W", c))
            a.I("s_barrier")
            if c >= 2:
                free.append(blk[c - 2])
            if c == (10 if restage else 5):
                free.extend([0, 1, 2, 3, 4, 5])
            n = 0
            while n < 2 and dmaW():
                n += 1

        def epi(pp):
            out = []
            form, su, di = passes[pp]
            acc = ACC + 32 * (pp & 1)
            so = 54 + (pp & 1)
            if su is not None:
                out.append(lambda: a.I(f"s_add_u32 s{so}, s49, {hex((su >> 1) * 512 * 1024 + (su & 1) * 4096)}"))
            else:
                out.append(lambda: a.I(f"s_add_u32 s{so}, s50, {hex((di >> 1) * 512 * 1024 + (di & 1) * 4096)}"))
            sr = "s[36:39]" if form == "V" else "s[28:31]"
            for cb in range(2):
                for h in range(2):
                    q = 2 * cb + h
                    for i in range(4):
                        src = acc + 16 * cb + 8 * h + 2 * i
                        if form == "K" and tag in "AD":
                            out.append(lambda src=src: a.I(f"v_mul_f32 {v(src)}, s52, {v(src)}"))
                            out.append(lambda src=src: a.I(f"v_mul_f32 {v(src + 1)}, s52, {v(src + 1)}"))
                        out.append(lambda src=src, q=q, i=i: a.I(
                            f"v_cvt_pk_bf16_f32 {v(PK + 4 * q + i)}, {v(src)}, {v(src + 1)}"))
                    out.append(lambda q=q: vm.issue(
                        f"buffer_store_dwordx4 {v(PK + 4 * q, 4)}, v48, {sr}, s{so} offen offset:{q * 1024}{SP}", ("S", pp)))
            return out

        st()
        readA(0)
        sync(0)
        st()
        for i in range(LOOK - 2):
            reads(i)
        lg.wait(("A", 0))
        for i in range(LOOK - 2, LOOK):
            reads(i)
        pend = []
        for i in range(NM):
            c, r = divmod(i, 16)
            t, cb = divmod(r, 2)
            pp, kc = divmod(c, 4)
            k = 8 * kc + t
            if i % 2 == 0:
                lg.wait([("W", i), ("W", i + 1), ("A", i // 8)])
            if pp == 0 and i % 8 == 0 and i // 8 + 3 < (11 if restage else 8):
                dmaA(i // 8 + 3)
            if restage and 72 < i <= 128 + 8 and i % 8 == 4:
                jj = 8 + (i - 76) // 8
                lg.wait(("A", jj))
                if jj + 3 < 16:
                    dmaA(jj + 3)
            acc = v(ACC + 32 * (pp & 1) + 16 * cb, 16)
            wf = v(RING + 4 * (i % LOOK), 4)
            af = v(AF + 4 * k, 4)
            cin = "0" if k == 0 else acc
            if passes[pp][0] == "V":
                a.I(f"{MF} {acc}, {af}, {wf}, {cin}")
            else:
                a.I(f"{MF} {acc}, {wf}, {af}, {cin}")
            j = i + LOOK
            if j < NM:
                if j % 16 == 0:
                    sync(j // 16)
                if j < 64 and j % 8 == 0:
                    readA(j // 8)
                reads(j)
            if restage and 64 <= i < 128 and i % 8 == 7:
                readA(8 + (i - 64) // 8)
            if i % 64 == 63:
                st()
            if i % 64 == 6 and pp >= 1:
                pend = epi(pp - 1)
            if pend:
                pend.pop(0)()
        a.I("s_nop 11")
        for f in epi(NP - 1):
            f()
        st.dump(16, 14)
        a.I("s_endpgm")

    body([("K", None, i) for i in range(6)], "A")
    a.label(N + "_B")
    body([("V", None, i) for i in range(6)], "B")
    a.label(N + "_C")
    body([("K", None, i) for i in range(4)] + [("V", 0, 0), ("V", 1, 0)], "C")
    a.label(N + "_D")
    body([("V", 62, 0), ("V", 63, 0)] + [("K", None, i) for i in range(4)], "D")
    kend(a, N)
    return a, N, (256, 512, 163840)


def gen_attn(withb2=False):
    b2tail = withb2 and os.environ.get("B2MODE", "start") == "tail"
    if b2tail:
        withb2 = False
    a = Asm()
    N = "attn_kernel"
    O, Q, S, P, NEGM, RING = 64, 128, [160, 176], [192, 200], 208, 224
    L16, VKA, VVA, VL, VLS, E, VDA, VDB, QREL, T0, T1, T2, NINF = 1, 2, 3, 4, 5, 6, 10, 11, 12, 13, 14, 15, 48
    PK = 16
    EE = 50
    sW, sH, sP, sN, sC, sPH, sTHR, sBAR, sKO, sKM, sVM, sQS = 16, 17, 18, 19, 20, 21, 40, 41, 42, 43, 44, 45
    kstart(a, N, 256)
    a.I("s_load_dwordx2 s[4:5], s[0:1], 88")
    a.I("s_load_dwordx2 s[14:15], s[0:1], 40")
    a.I("v_lshrrev_b32 v1, 6, v0")
    a.I("v_and_b32 v0, 63, v0")
    a.I("s_and_b32 s6, s2, 7")
    a.I(f"v_readfirstlane_b32 {s(sW)}, v1")
    a.I("s_lshr_b32 s7, s2, 3")
    a.I("s_and_b32 s8, s7, 3")
    a.I("s_lshl_b32 s6, s6, 2")
    a.I(f"s_add_u32 {s(sH)}, s6, s8")
    a.I(f"s_lshr_b32 {s(sP)}, s7, 2")
    a.I(f"s_lshl_b32 s6, {s(sP)}, 2")
    a.I(f"s_sub_u32 s7, 60, s6")
    a.I(f"s_add_u32 s7, s7, {s(sW)}")
    a.I(f"s_add_u32 s8, s6, 7")
    a.I(f"s_sub_u32 s8, s8, {s(sW)}")
    a.I(f"s_cmp_ge_u32 {s(sW)}, 4")
    a.I(f"s_cselect_b32 {s(sQS)}, s8, s7")
    a.I(f"s_add_u32 {s(sN)}, {s(sQS)}, 1")
    a.I("s_sub_u32 s9, 64, s6")
    a.I(f"s_lshr_b32 {s(sBAR)}, s9, 1")
    a.I("s_lshl_b32 s9, s9, 13")
    a.I(f"s_lshl_b32 s10, {s(sH)}, 19")
    a.I(f"v_lshlrev_b32 {v(L16)}, 4, v0")
    a.I(f"s_and_b32 s11, {s(sW)}, 3")
    a.I("s_lshl_b32 s11, s11, 11")
    a.I(f"v_add_u32 {v(VDA)}, s11, {v(L16)}")
    a.I(f"v_add_u32 {v(VDB)}, 0x2000, {v(VDA)}")
    a.I(f"v_and_b32 {v(T0)}, 31, v0")
    a.I(f"v_lshrrev_b32 {v(T1)}, 5, v0")
    a.I(f"v_lshlrev_b32 {v(T1)}, 2, {v(T1)}")
    a.I(f"v_sub_u32 {v(QREL)}, {v(T0)}, {v(T1)}")
    a.I(f"v_mov_b32 {v(NINF)}, 0xff800000")
    a.I(f"s_mov_b32 {s(sTHR)}, {f32(2.0 ** 14)}")
    FLG = 7 * 16384 + 8192
    if withb2:
        a.I(f"v_mov_b32 v124, {FLG}")
        for i in range(4):
            a.I(f"v_mov_b32 {v(56 + i)}, 0")
        a.I("ds_write_b128 v124, v[56:59]")
        a.I("s_and_b32 s60, s2, 7")
        a.I("s_lshl_b32 s60, s60, 5")
        a.I("s_lshr_b32 s61, s2, 3")
        a.I("s_add_u32 s60, s60, s61")
        a.I("s_cmp_eq_u32 s2, 248")
        a.I("s_cselect_b32 s61, 4, 2")
        a.I(f"s_cmp_lt_u32 {s(sW)}, s61")
        a.I("s_cselect_b32 s23, 1, 0")
        a.I(f"s_cmp_ge_u32 {s(sW)}, 2")
        a.I("s_cselect_b32 s60, 0x100, s60")
        a.I(f"s_mov_b32 s61, {131072}")
        a.I(f"s_cselect_b32 s61, {131072 + 16384}, s61")
        a.I(f"s_and_b32 s67, {s(sW)}, 1")
    a.I("s_waitcnt lgkmcnt(0)")
    srd(a, 24, 4, 5, "s9", add="s10")
    a.I(f"s_add_u32 s12, s10, {hex(WS_V - 3 * 8192)}")
    a.I(f"s_add_u32 s13, s9, {3 * 8192}")
    srd(a, 28, 4, 5, "s13", add="s12")
    srd(a, 32, 4, 5, 16 * MB, add=WS_Q)
    srd(a, 36, 4, 5, 16 * MB, add=WS_CTX)
    st = Stamper(a, "attn")
    st()
    a.I(f"s_lshl_b32 s12, {s(sQS)}, 18")
    a.I(f"s_lshl_b32 s13, {s(sH)}, 13")
    a.I("s_add_u32 s12, s12, s13")
    a.I("s_add_u32 s13, s12, 4096")

    def q_loads(vm=None):
        for t in range(8):
            x = f"buffer_load_dwordx4 {v(Q + 4 * t, 4)}, {v(L16)}, s[32:35], s{12 + t // 4} offen offset:{(t % 4) * 1024}{os.environ.get('QP', '')}"
            vm.issue(x, "Q") if vm else a.I(x)

    if withb2:
        a.I("s_cmp_eq_u32 s23, 0")
        a.I(f"s_cbranch_scc1 {N}_nob2l")
        b2_loads(a, VM(a), 60, 67, L16, 16, 32, 62, 48)
        q_loads()
        a.label(f"{N}_nob2l")
        a.I("s_barrier")
    a.I(f"s_lshl_b32 s46, {s(sQS)}, 18")
    a.I(f"s_lshl_b32 s6, {s(sH)}, 13")
    a.I("s_add_u32 s46, s46, s6")
    a.I("s_add_u32 s47, s46, 4096")
    a.I(f"s_mov_b32 {s(sKM)}, s11")
    a.I(f"s_mov_b32 {s(sKO)}, 0")

    def dma_list(withV=True):
        l = []
        if withV:
            l += [f"s_mov_b32 m0, {s(sVM)}", None,
                  f"buffer_load_dwordx4 {v(VDA)}, s[28:31], {s(sKO)} offen lds",
                  f"buffer_load_dwordx4 {v(VDA)}, s[28:31], {s(sKO)} offen offset:1024 lds",
                  f"s_add_u32 m0, {s(sVM)}, 0x4000", None,
                  f"buffer_load_dwordx4 {v(VDB)}, s[28:31], {s(sKO)} offen lds",
                  f"buffer_load_dwordx4 {v(VDB)}, s[28:31], {s(sKO)} offen offset:1024 lds"]
        l += [f"s_mov_b32 m0, {s(sKM)}", f"s_add_u32 {s(sVM)}, {s(sKM)}, 0x2000",
              f"buffer_load_dwordx4 {v(VDA)}, s[24:27], {s(sKO)} offen lds",
              f"buffer_load_dwordx4 {v(VDA)}, s[24:27], {s(sKO)} offen offset:1024 lds",
              f"s_add_u32 m0, {s(sKM)}, 0x4000", f"s_add_u32 {s(sKM)}, {s(sKM)}, 0x8000",
              f"buffer_load_dwordx4 {v(VDB)}, s[24:27], {s(sKO)} offen lds",
              f"buffer_load_dwordx4 {v(VDB)}, s[24:27], {s(sKO)} offen offset:1024 lds",
              f"s_and_b32 {s(sKM)}, {s(sKM)}, 0x1ffff",
              f"s_add_u32 {s(sKO)}, {s(sKO)}, 0x4000"]
        return l

    def emit_dma(withV=True):
        for x in dma_list(withV):
            if "dma" in os.environ.get("ADROP", "") and x and x.endswith(" lds"):
                continue
            a.I(x or "s_nop 0")

    def mask_negm():
        for j in range(16):
            a.I(f"v_cmp_le_i32 vcc, {(j & 3) + 8 * (j >> 2)}, {v(QREL)}")
            a.I("s_nop 1")
            a.I(f"v_cndmask_b32 {v(NEGM + j)}, {v(NINF)}, {v(NEGM + j)}, vcc")
        a.I("s_nop 1")

    def rowmax(Sx, dst):
        a.I(f"v_max3_f32 {v(dst)}, {v(Sx)}, {v(Sx + 1)}, {v(Sx + 2)}")
        for j in range(3, 15, 2):
            a.I(f"v_max3_f32 {v(dst)}, {v(dst)}, {v(Sx + j)}, {v(Sx + j + 1)}")
        a.I(f"v_max_f32 {v(dst)}, {v(dst)}, {v(Sx + 15)}")
        a.I(f"v_mov_b32 {v(T2)}, {v(dst)}")
        a.I("s_nop 1")
        a.I(f"v_permlane32_swap_b32 {v(dst)}, {v(T2)}")
        a.I(f"v_max_f32 {v(dst)}, {v(dst)}, {v(T2)}")

    def role(ld):
        R = "S" if ld else "L"
        if withb2 and not ld:
            a.I("s_cmp_eq_u32 s23, 0")
            a.I(f"s_cbranch_scc1 {N}_b2no")
            a.I(f"s_and_b32 s67, {s(sW)}, 2")
            a.I("s_lshl_b32 s67, s67, 2")
            a.I(f"s_add_u32 s67, s67, {FLG}")
            a.I("v_mov_b32 v124, s67")
            a.I(f"s_bitcmp1_b32 {s(sW)}, 0")
            a.I(f"s_cbranch_scc1 {N}_b2w1")
            rmap = [56, 57, 58, 59, 60, 61, 62, 120, 63, 16, 24, 32, 40, 64, 72, 80, 88, 104, 160, 176, 192, 208, 224]
            for own in range(2):
                vmb = VM(a)
                if own:
                    a.label(f"{N}_b2w1")
                ex = [0]

                def pair_sync():
                    ex[0] += 1
                    lab = a.uid(f"{N}_spin")
                    a.I(f"v_mov_b32 v125, {ex[0]}")
                    a.I(f"ds_write_b32 v124, v125 offset:{4 * own}")
                    a.label(lab)
                    a.I(f"ds_read_b32 v126, v124 offset:{4 * (1 - own)}")
                    a.I("s_waitcnt lgkmcnt(0)")
                    a.I("v_readfirstlane_b32 s67, v126")
                    a.I("s_nop 0")
                    a.I(f"s_cmp_lt_u32 s67, {ex[0]}")
                    a.I(f"s_cbranch_scc1 {lab}")
                b2_body(a, own, 60, 61, pair_sync, vmb, S0=62, SR=48, slice_len=10 ** 9, rmap=rmap, preloaded=True,
                        st=st if os.environ.get("B2ST") else (lambda: None))
                if os.environ.get("B2ST"):
                    st()
                    st.n -= 5 * (1 - own)
                assert vmb.q[-5:] == ["Q", "Z", "Z", "Z", "Z"] or "Q" not in vmb.q
                a.I(f"s_branch {N}_b2done")
            a.label(f"{N}_b2no")
        def inits(tag):
            for j in range(16):
                a.I(f"v_mov_b32 {v(NEGM + j)}, 0")
            a.I(f"s_cmp_lg_u32 {s(sN)}, 1")
            a.I(f"s_cbranch_scc1 {N}_{R}_nm1{tag}")
            mask_negm()
            a.label(f"{N}_{R}_nm1{tag}")
            for j in range(64):
                a.I(f"v_mov_b32 {v(O + j)}, 0")
            for j in range(8):
                a.I(f"v_mov_b32 {v(P[1] + j)}, 0")

        inits("a")
        q_loads()
        if ld:
            emit_dma(withV=False)
            emit_dma()
        if withb2 and not ld:
            a.I("s_waitcnt vmcnt(0)")
            a.I(f"s_branch {N}_b2join")
            a.label(f"{N}_b2done")
            inits("b")
            a.I("s_waitcnt vmcnt(4)")
            a.label(f"{N}_b2join")
        a.I(f"v_mov_b32 {v(VL)}, 0")
        a.I(f"v_mov_b32 {v(VLS)}, 0")
        a.I(f"v_mov_b32 {v(VKA)}, {v(L16)}")
        a.I(f"v_mov_b32 {v(VVA)}, {v(L16)}")
        if os.environ.get("PRIO") and not ld:
            a.I(f"s_setprio {os.environ['PRIO']}")
        if ld or not withb2:
            a.I(f"s_waitcnt vmcnt({6 if ld else 0})")
        a.I("s_barrier")
        st()
        for t in range(8):
            a.I(f"ds_read_b128 {v(RING + 4 * t, 4)}, {v(L16)} offset:{t * 1024}")
        dl = [x or "s_nop 0" for x in dma_list()] if ld else []
        for t in range(8):
            if t % 4 == 0:
                a.I("s_waitcnt lgkmcnt(4)")
            a.I(f"{MF} {v(S[0], 16)}, {v(RING + 4 * t, 4)}, {v(Q + 4 * t, 4)}, {v(NEGM if t == 0 else S[0], 16)}")
            a.I(f"ds_read_b128 {v(RING + 4 * t, 4)}, {v(L16)} offset:{16384 + t * 1024}")
            for x in dl[:3]:
                a.I(x)
            dl = dl[3:]
        assert not dl
        if ld:
            emit_dma()
        else:
            a.I("s_nop 11")
        rowmax(S[0], T0)
        for j in range(16):
            a.I(f"v_sub_f32 {v(S[0] + j)}, {v(S[0] + j)}, {v(T0)}")
        for j in range(16):
            a.I(f"v_sub_f32 {v(NEGM + j)}, 0, {v(T0)}")
        a.I(f"s_mov_b32 {s(sPH)}, 0")
        a.I(f"s_sub_u32 {s(sC)}, {s(sN)}, 3")
        a.I(f"s_cbranch_scc0 {N}_{R}_it0")
        a.I(f"s_mov_b32 {s(sPH)}, 1")
        a.I(f"s_sub_u32 {s(sC)}, {s(sN)}, 1")
        a.I(f"s_cmp_lg_u32 {s(sN)}, 2")
        a.I(f"s_cbranch_scc1 {N}_{R}_it0")
        mask_negm()

        def iteration(par):
            gaps = [[] for _ in range(16)]
            pre = [[] for _ in range(16)]
            mf = []
            Sc, Sn, Pc, Pp = S[par], S[1 - par], P[par], P[1 - par]
            e = lambda j: v(EE + (j % 6))
            for pos in range(16):
                r = v(RING + 4 * (pos & 7), 4)
                if pos < 8:
                    mf.append(f"{MF} {v(Sn, 16)}, {r}, {v(Q + 4 * pos, 4)}, {v(NEGM if pos == 0 else Sn, 16)}")
                    ks, dt = divmod(pos, 4)
                    gaps[pos].append(f"ds_read_b128 {r}, {v(VVA)} offset:{8192 + par * 16384 + (2 * dt + ks) * 1024}")
                else:
                    ks, dt = divmod(pos - 8, 4)
                    mf.append(f"{MF} {v(O + 16 * dt, 16)}, {r}, {v(Pp + 4 * ks, 4)}, {v(O + 16 * dt, 16)}")
                    gaps[pos].append(f"ds_read_b128 {r}, {v(VKA)} offset:{par * 16384 + (pos - 8) * 1024}")
                if pos % 4 == 0:
                    pre[pos].append("s_waitcnt lgkmcnt(4)")
            early = int(os.environ.get("EARLY", "1"))
            if early:
                eg = [0, 0, 1, 2, 2, 3, 4, 5, 6, 7, 8, 9, 10, 11, 12, 13]
            else:
                eg = [0] + list(range(15))
            gaps[0].append(f"v_add_f32 {v(VL)}, {v(VL)}, {v(VLS)}")
            for j in range(16):
                gaps[eg[j]].append(f"v_exp_f32 {e(j)}, {v(Sc + j)}")
            for j in range(1, 16):
                g = eg[j] + 1
                if j == 1:
                    gaps[g].append(f"v_add_f32 {v(VLS)}, {e(0)}, {e(1)}")
                else:
                    gaps[g].append(f"v_add_f32 {v(VLS)}, {v(VLS)}, {e(j)}")
                if j % 2 == 1:
                    gaps[g + (1 if (early and j == 15) else 0)].append(f"v_cvt_pk_bf16_f32 {v(Pc + j // 2)}, {e(j - 1)}, {e(j)}")
            if par == 0:
                gaps[2].append(f"v_add_u32 {v(VKA)}, 0x8000, {v(VKA)}")
                gaps[6].append(f"v_and_b32 {v(VKA)}, 0x1ffff, {v(VKA)}")
                bar = ["s_barrier", f"s_sub_u32 {s(sBAR)}, {s(sBAR)}, 1"]
                if ld:
                    bar = ["s_waitcnt vmcnt(14)"] + bar
                gaps[4] = bar + gaps[4]
                if ld:
                    d = [x for x in dma_list() if x]
                    m0a, l1, l2, m0b, l3, l4, m0c, svm, l5, l6, m0d, skm, l7, l8, sand, sko = d
                    gaps[5] = [m0a] + gaps[5] + [l1]
                    gaps[6] += [l2, m0b]
                    gaps[7] += [l3]
                    gaps[8] += [l4, m0c]
                    gaps[9] += [svm, l5]
                    gaps[10] += [l6, m0d]
                    gaps[11] += [l7]
                    gaps[12] += [l8, skm]
                    gaps[13] += [sand, sko]
            else:
                gaps[10].append(f"v_mov_b32 {v(VVA)}, {v(VKA)}")
            gaps[14].append(f"s_sub_u32 {s(sC)}, {s(sC)}, 1")
            gaps[14 if early else 15].append(f"v_cmp_nge_f32 vcc, {s(sTHR)}, {v(VLS)}")
            drop = os.environ.get("ADROP", "").split(",")
            for pos in range(16):
                if "bar" in drop:
                    gaps[pos] = [x for x in gaps[pos] if x != "s_barrier"]
                if "dma" in drop:
                    gaps[pos] = [x for x in gaps[pos] if not x.endswith(" lds")]
                if "rd" in drop:
                    gaps[pos] = [x for x in gaps[pos] if not x.startswith("ds_read")]
                if "valu" in drop:
                    gaps[pos] = [x for x in gaps[pos] if not (x.startswith("v_exp") or x.startswith("v_cvt") or x.startswith("v_add_f32"))]
                if "e64" in drop:
                    gaps[pos] = [x.replace("v_exp_f32 ", "v_exp_f32_e64 ").replace("v_add_f32 ", "v_add_f32_e64 ") for x in gaps[pos]]
                a.many(pre[pos])
                a.I(mf[pos])
                a.many(gaps[pos])
            if "br" not in drop:
                a.I(f"s_cbranch_vccnz {N}_{R}_slow{par}")
            a.label(f"{N}_{R}_back{par}")
            a.I(f"s_cbranch_scc1 {N}_{R}_spec{par}")

        if os.environ.get("PRIO") and not ld:
            pass
        if os.environ.get("AALIGN"):
            a.raw(".p2align 6")
            for _ in range(int(os.environ["AALIGN"]) - 1):
                a.I("s_nop 0")
        a.label(f"{N}_{R}_it0")
        iteration(0)
        a.label(f"{N}_{R}_it1")
        iteration(1)
        a.I(f"s_branch {N}_{R}_it0")

        def svc():
            lab = a.uid(f"{N}_{R}_svc")
            a.I(f"s_cmp_eq_u32 {s(sBAR)}, 0")
            a.I(f"s_cbranch_scc1 {lab}")
            if ld:
                a.I("s_waitcnt vmcnt(14)")
            if "bar" not in os.environ.get("ADROP", ""):
                a.I("s_barrier")
            a.I(f"s_sub_u32 {s(sBAR)}, {s(sBAR)}, 1")
            if ld:
                emit_dma()
            a.label(lab)

        for par in range(2):
            Sc, Sn, Pc = S[par], S[1 - par], P[par]
            a.label(f"{N}_{R}_slow{par}")
            a.I("s_nop 15")
            rowmax(Sc, T0)
            a.I(f"v_max_f32 {v(T0)}, 0, {v(T0)}")
            a.I(f"v_exp_f32_e64 {v(T1)}, -{v(T0)}")
            for j in range(16):
                a.I(f"v_sub_f32 {v(NEGM + j)}, {v(NEGM + j)}, {v(T0)}")
                a.I(f"v_sub_f32 {v(Sc + j)}, {v(Sc + j)}, {v(T0)}")
                a.I(f"v_sub_f32 {v(Sn + j)}, {v(Sn + j)}, {v(T0)}")
            for j in range(64):
                a.I(f"v_mul_f32 {v(O + j)}, {v(O + j)}, {v(T1)}")
            a.I(f"v_mul_f32 {v(VL)}, {v(VL)}, {v(T1)}")
            a.I(f"v_mov_b32 {v(VLS)}, 0")
            for i in range(8):
                a.I(f"v_exp_f32 {v(E)}, {v(Sc + 2 * i)}")
                a.I(f"v_exp_f32 {v(E + 1)}, {v(Sc + 2 * i + 1)}")
                a.I("s_nop 0")
                a.I(f"v_add_f32 {v(VLS)}, {v(VLS)}, {v(E)}")
                a.I(f"v_add_f32 {v(VLS)}, {v(VLS)}, {v(E + 1)}")
                a.I(f"v_cvt_pk_bf16_f32 {v(Pc + i)}, {v(E)}, {v(E + 1)}")
            a.I("s_nop 1")
            a.I(f"s_branch {N}_{R}_back{par}")
            a.label(f"{N}_{R}_spec{par}")
            a.I(f"s_cmp_lg_u32 {s(sPH)}, 0")
            a.I(f"s_cbranch_scc1 {N}_{R}_exit{par}")
            a.I(f"s_mov_b32 {s(sPH)}, 1")
            a.I(f"s_mov_b32 {s(sC)}, 1")
            mask_negm()
            a.I(f"s_branch {N}_{R}_it{1 - par}")
            a.label(f"{N}_{R}_exit{par}")
            a.I("s_waitcnt lgkmcnt(0)")
            for pos in range(8):
                ks, dt = divmod(pos, 4)
                a.I(f"ds_read_b128 {v(RING + 4 * pos, 4)}, {v(VVA)} offset:{8192 + (1 - par) * 16384 + (2 * dt + ks) * 1024}")
            a.I(f"v_add_f32 {v(VL)}, {v(VL)}, {v(VLS)}")
            for pos in range(8):
                ks, dt = divmod(pos, 4)
                a.I(f"s_waitcnt lgkmcnt({7 - pos})")
                a.I(f"{MF} {v(O + 16 * dt, 16)}, {v(RING + 4 * pos, 4)}, {v(Pc + 4 * ks, 4)}, {v(O + 16 * dt, 16)}")
            if par == 0:
                a.I(f"s_branch {N}_{R}_epi")
        a.label(f"{N}_{R}_epi")
        st()
        svc()
        if ld and (withb2 or b2tail):
            a.I(f"s_and_b32 s53, {s(sW)}, 3")
            code_touch(a, "l3_kernel", 53, 48, EE + 2, nw_log=2)
            srd(a, 48, 4, 5, 64 * 128, add=WS_FLAG)
            a.I("s_lshl_b32 s52, s2, 7")
            a.I(f"v_lshlrev_b32 {v(EE)}, 2, v0")
            a.I(f"v_mov_b32 {v(EE + 1)}, 0")
            a.I("s_mov_b64 exec, 15")
            a.I(f"buffer_store_dword {v(EE + 1)}, {v(EE)}, s[48:51], s52 offen")
            a.I("s_mov_b64 exec, -1")
        a.I(f"v_mov_b32 {v(T2)}, {v(VL)}")
        a.I("s_nop 1")
        a.I(f"v_permlane32_swap_b32 {v(VL)}, {v(T2)}")
        a.I(f"v_add_f32 {v(VL)}, {v(VL)}, {v(T2)}")
        a.I(f"v_rcp_f32 {v(T0)}, {v(VL)}")
        a.I("s_nop 7")
        for dt in range(4):
            for h in range(2):
                q = 2 * dt + h
                for i in range(4):
                    src = O + 16 * dt + 8 * h + 2 * i
                    a.I(f"v_mul_f32 {v(src)}, {v(src)}, {v(T0)}")
                    a.I(f"v_mul_f32 {v(src + 1)}, {v(src + 1)}, {v(T0)}")
                    a.I(f"v_cvt_pk_bf16_f32 {v(PK + 4 * q + i)}, {v(src)}, {v(src + 1)}")
                a.I(f"buffer_store_dwordx4 {v(PK + 4 * q, 4)}, {v(L16)}, s[36:39], s{46 + q // 4} offen offset:{(q % 4) * 1024}{SP}")
            if dt == 1:
                svc()
        if ld and b2tail:
            a.I(f"s_lshl_b32 s60, {s(sH)}, 2")
            a.I(f"s_add_u32 s60, s60, {s(sP)}")
            a.I("s_lshl_b32 s60, s60, 1")
            a.I(f"s_bfe_u32 s61, {s(sW)}, 0x10001")
            a.I("s_add_u32 s60, s60, s61")
            a.I(f"s_cmp_lt_u32 {s(sP)}, 4")
            a.I(f"s_cbranch_scc1 {N}_b2go")
            a.I("s_cmp_lg_u32 s60, 8")
            a.I(f"s_cbranch_scc1 {N}_{R}_tail")
            a.I("s_movk_i32 s60, 0x100")
            a.label(f"{N}_b2go")
            a.I("s_lshl_b32 s61, s61, 14")
            a.I(f"s_add_u32 s61, s61, {131072}")
            a.I(f"s_lshl_b32 s62, {s(sP)}, 2")
            a.I("s_sub_u32 s62, 28, s62")
            a.label(f"{N}_b2al")
            a.I(f"s_cmp_le_u32 {s(sBAR)}, s62")
            a.I(f"s_cbranch_scc1 {N}_b2st")
            a.I("s_waitcnt vmcnt(14)")
            a.I("s_barrier")
            a.I(f"s_sub_u32 {s(sBAR)}, {s(sBAR)}, 1")
            emit_dma()
            a.I(f"s_branch {N}_b2al")
            a.label(f"{N}_b2st")
            a.I(f"s_bitcmp1_b32 {s(sW)}, 0")
            a.I(f"s_cbranch_scc1 {N}_b2w1")
            for own in range(2):
                vmb = VM(a)
                nsv = [0]

                def svcb():
                    nsv[0] += 1
                    a.I("s_waitcnt vmcnt(14)")
                    vmb.q = vmb.q[-14:]
                    a.I("s_barrier")
                    a.I(f"s_sub_u32 {s(sBAR)}, {s(sBAR)}, 1")
                    for x in dma_list():
                        if x and x.startswith("buffer"):
                            vmb.issue(x, "dma")
                        else:
                            a.I(x or "s_nop 0")
                if own:
                    a.label(f"{N}_b2w1")
                b2_body(a, own, 60, 61, svcb, vmb, R0=16, S0=62, SR=48, slice_len=int(os.environ.get("SLICE", "90")))
                assert nsv[0] <= 12, nsv
                print("b2 svc slices", nsv[0])
                if not own:
                    a.I(f"s_branch {N}_{R}_tail")
        if ld:
            WT = int(os.environ.get("WOT", "0"))
            if withb2 and WT:
                srd(a, 48, 4, 5, 4 * MB, add=WS_WO)
                a.I("s_lshr_b32 s52, s2, 3")
                a.I("s_lshl_b32 s52, s52, 17")
                a.I("s_lshl_b32 s53, s11, 4")
                a.I("s_add_u32 s52, s52, s53")
                a.I("s_add_u32 s53, s52, 0x8000")
                a.I(f"v_lshlrev_b32 {v(EE)}, 7, v0")
            a.label(f"{N}_{R}_tail")
            if withb2 and WT:
                a.I(f"s_cmp_gt_u32 {s(sBAR)}, {WT}")
                a.I(f"s_cbranch_scc1 {N}_notouch")
                a.label(f"{N}_touch")
                a.I("s_cmp_ge_u32 s52, s53")
                a.I(f"s_cbranch_scc1 {N}_notouch")
                a.I(f"buffer_load_dword {v(EE + 1)}, {v(EE)}, s[48:51], s52 offen")
                a.I("s_add_u32 s52, s52, 0x2000")
                a.I(f"s_cmp_eq_u32 {s(sBAR)}, 0")
                a.I(f"s_cbranch_scc1 {N}_touch")
                a.label(f"{N}_notouch")
            a.I(f"s_cmp_eq_u32 {s(sBAR)}, 0")
            a.I(f"s_cbranch_scc1 {N}_{R}_done")
            a.I("s_waitcnt vmcnt(14)")
            a.I("s_barrier")
            a.I(f"s_sub_u32 {s(sBAR)}, {s(sBAR)}, 1")
            emit_dma()
            a.I(f"s_branch {N}_{R}_tail")
            a.label(f"{N}_{R}_done")
        n0 = st.n
        st.dump(sW, 4, tmpv=T0)
        st.n = n0 - 2
        a.I("s_endpgm")

    a.I(f"s_cmp_ge_u32 {s(sW)}, 4")
    a.I(f"s_cbranch_scc1 {N}_short")
    role(False)
    a.label(f"{N}_short")
    role(True)
    kend(a, N)
    return a, N, (256, 512, 163840 if (withb2 or b2tail) else 131072)


def oproj_body(a, N, st, bar_at=None):
    ACC, CR, AFR = 64, 128, 192
    DEPTH = 8
    L16, L16B, VD0, VD1, TB = 1, 2, 3, 4, 5
    a.I("s_and_b32 s10, s2, 7")
    a.I("s_lshr_b32 s11, s2, 3")
    a.I("s_and_b32 s12, s11, 3")
    a.I("s_lshl_b32 s10, s10, 2")
    a.I("s_add_u32 s17, s10, s12")
    a.I("s_lshr_b32 s18, s11, 2")
    if os.environ.get("OPX") == "same":
        a.I("s_mov_b32 s17, 0")
        a.I("s_mov_b32 s18, 0")
    if os.environ.get("OPX") == "map2":
        a.I("s_and_b32 s10, s2, 3")
        a.I("s_lshl_b32 s10, s10, 3")
        a.I("s_and_b32 s12, s11, 7")
        a.I("s_add_u32 s17, s10, s12")
        a.I("s_bfe_u32 s10, s2, 0x10002")
        a.I("s_lshl_b32 s10, s10, 2")
        a.I("s_lshr_b32 s12, s11, 3")
        a.I("s_add_u32 s18, s10, s12")
    a.I(f"v_lshlrev_b32 {v(L16)}, 4, v0")
    a.I(f"v_add_u32 {v(L16B)}, 0x40000, {v(L16)}")
    a.I("v_lshrrev_b32 v8, 3, v0")
    a.I("v_lshlrev_b32 v8, 10, v8")
    a.I("v_bfe_u32 v9, v0, 4, 1")
    a.I("v_lshlrev_b32 v10, 2, v9")
    a.I("v_and_b32 v11, 7, v0")
    a.I("v_xor_b32 v10, v10, v11")
    a.I(f"v_lshl_add_u32 {v(VD0)}, v10, 4, v8")
    a.I("s_lshl_b32 s10, s18, 7")
    a.I(f"v_add_u32 {v(VD0)}, s10, {v(VD0)}")
    a.I(f"v_add_u32 {v(VD1)}, {8192 - 1024}, {v(VD0)}")
    a.I("v_lshrrev_b32 v8, 5, v0")
    a.I("v_bfe_u32 v10, v0, 2, 2")
    a.I("v_lshl_add_u32 v8, v8, 2, v10")
    a.I(f"v_lshlrev_b32 {v(TB)}, 7, v8")
    a.I(f"v_lshl_add_u32 {v(TB)}, v9, 5, {v(TB)}")
    a.I("v_and_b32 v10, 3, v0")
    a.I(f"v_lshl_add_u32 {v(TB)}, v10, 3, {v(TB)}")
    a.I("v_bfe_u32 v10, v0, 3, 1")
    a.I(f"v_lshl_add_u32 {v(TB)}, v10, 6, {v(TB)}")
    a.I("s_lshl_b32 s19, s16, 14")
    a.I(f"v_add_u32 {v(TB)}, s19, {v(TB)}")
    a.I(f"v_xor_b32 {v(TB + 1)}, 64, {v(TB)}")
    a.I("s_lshl_b32 s40, s17, 19")
    a.I("s_lshl_b32 s10, s16, 16")
    a.I("s_add_u32 s40, s40, s10")
    a.I("s_lshl_b32 s41, s16, 20")
    ROT = int(os.environ.get("ROT", "0"))
    if ROT:
        a.I("s_and_b32 s45, s2, 7")
        a.I(f"s_mul_i32 s45, s45, {ROT}")
    a.I("s_waitcnt lgkmcnt(0)")
    srd(a, 20, 4, 5, 16 * MB, add=WS_CTX)
    srd(a, 24, 6, 7, 4 * MB)
    srd(a, 28, 8, 9, 4 * MB)
    vm, lg = VM(a), LG(a)
    st()

    def loads(g):
        sl = g % DEPTH
        a.I(f"s_add_u32 m0, s19, {sl * 2048}")
        if ROT:
            if g % 4 == 0:
                a.I(f"s_add_u32 s44, s45, {g}")
                a.I("s_and_b32 s44, s44, 63")
                a.I("s_lshl_b32 s46, s44, 14")
                a.I("s_add_u32 s46, s46, s41")
                a.I("s_lshl_b32 s44, s44, 10")
            a.I(f"s_add_u32 s42, s46, {hex((g % 4) * 16384)}")
        else:
            a.I(f"s_add_u32 s42, s41, {hex(g * 16384)}")
        vm.issue(f"buffer_load_dwordx4 {v(VD0)}, s[24:27], s42 offen lds", g)
        vm.issue(f"buffer_load_dwordx4 {v(VD1)}, s[24:27], s42 offen offset:1024 lds", g)
        if g % 4 == 0:
            a.I(f"s_add_u32 s43, s40, {'s44' if ROT else hex(g * 1024)}")
        vm.issue(f"buffer_load_dwordx4 {v(CR + 8 * sl, 4)}, {v(L16)}, s[20:23], s43 offen offset:{(g % 4) * 1024}", g)
        vm.issue(f"buffer_load_dwordx4 {v(CR + 8 * sl + 4, 4)}, {v(L16B)}, s[20:23], s43 offen offset:{(g % 4) * 1024}", g)

    def trs(g):
        sl = g % DEPTH
        vm.wait(g)
        for cb in range(2):
            d = AFR + 8 * (g & 1) + 4 * cb
            lg.issue(f"ds_read_b64_tr_b16 {v(d, 2)}, {v(TB + cb)} offset:{sl * 2048}", g)
            lg.issue(f"ds_read_b64_tr_b16 {v(d + 2, 2)}, {v(TB + cb)} offset:{sl * 2048 + 1024}", g)

    for g in range(DEPTH):
        loads(g)
    st()
    trs(0)
    st()
    for g in range(64):
        if g + 1 < 64:
            trs(g + 1)
        lg.wait(g)
        sl = g % DEPTH
        for qt in range(2):
            for cb in range(2):
                acc = v(ACC + 16 * (2 * qt + cb), 16)
                a.I(f"{MF} {acc}, {v(AFR + 8 * (g & 1) + 4 * cb, 4)}, {v(CR + 8 * sl + 4 * qt, 4)}, {'0' if g == 0 else acc}")
        if g + DEPTH < 64:
            loads(g + DEPTH)
        if g == bar_at:
            a.I("s_barrier")
    st()
    a.I(f"v_add_u32 v8, s19, {v(L16)}")
    a.I("s_nop 11")
    for tl in range(4):
        for jq in range(4):
            a.I(f"ds_write_b128 v8, {v(ACC + 16 * tl + 4 * jq, 4)} offset:{(tl * 4 + jq) * 1024}")
    a.I("v_lshrrev_b32 v9, 5, v0")
    a.I("v_and_b32 v10, 31, v0")
    a.I("v_lshlrev_b32 v10, 4, v10")
    a.I("v_lshl_add_u32 v9, v9, 13, v10")
    a.I("s_lshl_b32 s10, s16, 11")
    a.I("v_add_u32 v9, s10, v9")
    a.I("s_lshl_b32 s11, s17, 17")
    a.I("s_lshl_b32 s12, s18, 7")
    a.I("s_add_u32 s11, s11, s12")
    a.I("s_lshl_b32 s12, s16, 5")
    a.I("s_add_u32 s11, s11, s12")
    a.I("v_lshlrev_b32 v10, 11, v0")
    a.I("s_waitcnt lgkmcnt(0)")
    return ACC


def oproj_body2(a, N, st, bar_at=None):
    DEPTH = int(os.environ.get("ODEPTH", "8"))
    ACC, CR = 192 - 16 * DEPTH, 256 - 16 * DEPTH
    L16, L16B = 1, 2
    a.I("s_and_b32 s10, s2, 7")
    a.I("s_lshr_b32 s11, s2, 3")
    a.I("s_and_b32 s12, s11, 3")
    a.I("s_lshl_b32 s10, s10, 2")
    a.I("s_add_u32 s17, s10, s12")
    a.I("s_lshr_b32 s18, s11, 2")
    if os.environ.get("OPX") == "same":
        a.I("s_mov_b32 s17, 0")
        a.I("s_mov_b32 s18, 0")
    if os.environ.get("OPX") == "sameq":
        a.I("s_and_b32 s17, s17, 3")
    if os.environ.get("OPX") == "map2":
        a.I("s_and_b32 s10, s2, 3")
        a.I("s_lshl_b32 s10, s10, 3")
        a.I("s_and_b32 s12, s11, 7")
        a.I("s_add_u32 s17, s10, s12")
        a.I("s_bfe_u32 s10, s2, 0x10002")
        a.I("s_lshl_b32 s10, s10, 2")
        a.I("s_lshr_b32 s12, s11, 3")
        a.I("s_add_u32 s18, s10, s12")
    a.I(f"v_lshlrev_b32 {v(L16)}, 4, v0")
    a.I(f"v_add_u32 {v(L16B)}, 0x40000, {v(L16)}")
    a.I("s_lshl_b32 s19, s16, 14")
    a.I("s_lshl_b32 s40, s17, 19")
    a.I("s_lshl_b32 s10, s16, 16")
    a.I("s_add_u32 s40, s40, s10")
    a.I("s_lshl_b32 s41, s18, 19")
    a.I("s_lshl_b32 s10, s16, 17")
    a.I("s_add_u32 s41, s41, s10")
    a.I("s_waitcnt lgkmcnt(0)")
    srd(a, 20, 4, 5, 16 * MB, add=WS_CTX)
    srd(a, 24, 4, 5, 4 * MB, add=WS_WO)
    srd(a, 28, 8, 9, 4 * MB)
    vm = VM(a)
    st()

    def loads(g):
        sl = g % DEPTH
        L = []
        if g % 2 == 0:
            L.append(lambda: a.I(f"s_add_u32 s42, s41, {hex(g * 2048)}"))
        if g % 4 == 0:
            L.append(lambda: a.I(f"s_add_u32 s43, s40, {hex(g * 1024)}"))
        for cb in range(2):
            L.append(lambda cb=cb: vm.issue(f"buffer_load_dwordx4 {v(CR + 16 * sl + 4 * cb, 4)}, {v(L16)}, s[24:27], s42 offen "
                                            f"offset:{(g % 2) * 2048 + cb * 1024}", g))
        for qt in range(2):
            L.append(lambda qt=qt: vm.issue(f"buffer_load_dwordx4 {v(CR + 16 * sl + 8 + 4 * qt, 4)}, {v(L16 + qt)}, s[20:23], s43 offen "
                                            f"offset:{(g % 4) * 1024}", g))
        return L

    for g in range(DEPTH):
        for f in loads(g):
            f()
    st()
    st()
    for g in range(64):
        vm.wait(g)
        sl = g % DEPTH
        for qt in range(2):
            for cb in range(2):
                acc = v(ACC + 16 * (2 * qt + cb), 16)
                a.I(f"{MF} {acc}, {v(CR + 16 * sl + 4 * cb, 4)}, {v(CR + 16 * sl + 8 + 4 * qt, 4)}, {'0' if g == 0 else acc}")
        if g + DEPTH < 64:
            for f in loads(g + DEPTH):
                f()
        if g == bar_at:
            a.I("s_barrier")
    st()
    a.I(f"v_add_u32 v8, s19, {v(L16)}")
    a.I("v_lshrrev_b32 v9, 5, v0")
    a.I("v_and_b32 v10, 31, v0")
    a.I("v_lshlrev_b32 v10, 4, v10")
    a.I("v_lshl_add_u32 v9, v9, 13, v10")
    a.I("s_lshl_b32 s10, s16, 11")
    a.I("v_add_u32 v9, s10, v9")
    a.I("s_lshl_b32 s11, s17, 17")
    a.I("s_lshl_b32 s12, s18, 7")
    a.I("s_add_u32 s11, s11, s12")
    a.I("s_lshl_b32 s12, s16, 5")
    a.I("s_add_u32 s11, s11, s12")
    a.I("v_lshlrev_b32 v10, 11, v0")
    for tl in range(4):
        for jq in range(4):
            a.I(f"ds_write_b128 v8, {v(ACC + 16 * tl + 4 * jq, 4)} offset:{(tl * 4 + jq) * 1024}")
    a.I("s_waitcnt lgkmcnt(0)")
    return ACC


def oproj_body3(a, N, st, bar_at=None):
    DEPTH = 8
    ACC, FR = 64, 128
    L16, L16B, LR = 1, 2, 3
    a.I("s_and_b32 s10, s2, 7")
    a.I("s_lshr_b32 s11, s2, 3")
    a.I("s_and_b32 s12, s11, 3")
    a.I("s_lshl_b32 s10, s10, 2")
    a.I("s_add_u32 s17, s10, s12")
    a.I("s_lshr_b32 s18, s11, 2")
    a.I(f"v_lshlrev_b32 {v(L16)}, 4, v0")
    a.I(f"v_add_u32 {v(L16B)}, {0x40000 - 1024}, {v(L16)}")
    a.I("s_lshl_b32 s19, s16, 15")
    a.I(f"v_add_u32 {v(LR)}, s19, {v(L16)}")
    a.I("s_lshl_b32 s42, s18, 19")
    a.I("s_lshl_b32 s10, s16, 17")
    a.I("s_add_u32 s42, s42, s10")
    a.I("s_lshl_b32 s43, s17, 19")
    a.I("s_lshl_b32 s10, s16, 16")
    a.I("s_add_u32 s43, s43, s10")
    RB = int(os.environ.get("RB", "0"))
    if RB:
        a.I("s_lshl1_add_u32 s45, s12, s18")
        a.I("s_and_b32 s45, s45, 7")
        a.I(f"s_mul_i32 s45, s45, {RB // 8 * 1024}")
        a.I("s_mov_b32 s40, s43")
        a.I("s_mov_b32 s41, s42")
        a.I("s_add_u32 s43, s40, s45")
        a.I("s_lshl1_add_u32 s42, s45, s41")
    a.I("s_waitcnt lgkmcnt(0)")
    srd(a, 20, 4, 5, 16 * MB + 2048, add=WS_CTX - 2048)
    srd(a, 24, 4, 5, 4 * MB, add=WS_WO)
    srd(a, 28, 8, 9, 4 * MB)
    vm, lg = VM(a), LG(a)
    st()

    def loads(g):
        sl = g % DEPTH
        return [lambda: a.I(f"s_add_u32 m0, s19, {sl * 4096}"),
                lambda: a.I("s_nop 0") if g < DEPTH else None,
                lambda: vm.issue(f"buffer_load_dwordx4 {v(L16)}, s[24:27], s42 offen lds", g),
                lambda: vm.issue(f"buffer_load_dwordx4 {v(L16)}, s[24:27], s42 offen offset:1024 lds", g),
                lambda: vm.issue(f"buffer_load_dwordx4 {v(L16)}, s[20:23], s43 offen offset:2048 lds", g),
                lambda: vm.issue(f"buffer_load_dwordx4 {v(L16B)}, s[20:23], s43 offen offset:3072 lds", g),
                lambda: nxt(g), lambda: None]

    def nxt(g):
        if not RB:
            a.I("s_add_u32 s42, s42, 2048")
            a.I("s_add_u32 s43, s43, 1024")
            return
        a.I("s_add_u32 s45, s45, 1024")
        a.I(f"s_and_b32 s45, s45, {RB * 1024 - 1}")
        if (g + 1) % RB == 0:
            a.I(f"s_add_u32 s40, s40, {RB * 1024}")
            a.I(f"s_add_u32 s41, s41, {RB * 2048}")
        a.I("s_add_u32 s43, s40, s45")
        a.I("s_lshl1_add_u32 s42, s45, s41")

    def reads(g):
        vm.wait(g)
        for q in range(4):
            lg.issue(f"ds_read_b128 {v(FR + 16 * (g & 1) + 4 * q, 4)}, {v(LR)} offset:{(g % DEPTH) * 4096 + q * 1024}", g)

    for g in range(DEPTH):
        for f in loads(g):
            f()
    st()
    reads(0)
    st()
    for g in range(64):
        if g + 1 < 64:
            reads(g + 1)
        lg.wait(g)
        L = loads(g + DEPTH) if g + DEPTH < 64 else []
        fr = FR + 16 * (g & 1)
        for qt in range(2):
            for cb in range(2):
                acc = v(ACC + 16 * (2 * qt + cb), 16)
                if L:
                    L.pop(0)()
                a.I(f"{MF} {acc}, {v(fr + 4 * cb, 4)}, {v(fr + 8 + 4 * qt, 4)}, {'0' if g == 0 else acc}")
                if L:
                    L.pop(0)()
        if g == bar_at:
            a.I("s_barrier")
    st()
    a.I("v_lshrrev_b32 v9, 5, v0")
    a.I("v_and_b32 v10, 31, v0")
    a.I("v_lshlrev_b32 v10, 4, v10")
    a.I("v_lshl_add_u32 v9, v9, 13, v10")
    a.I("s_lshl_b32 s10, s16, 11")
    a.I("v_add_u32 v9, s10, v9")
    a.I("s_lshl_b32 s11, s17, 17")
    a.I("s_lshl_b32 s12, s18, 7")
    a.I("s_add_u32 s11, s11, s12")
    a.I("s_lshl_b32 s12, s16, 5")
    a.I("s_add_u32 s11, s11, s12")
    a.I("v_lshlrev_b32 v10, 11, v0")
    for tl in range(4):
        for jq in range(4):
            a.I(f"ds_write_b128 {v(LR)}, {v(ACC + 16 * tl + 4 * jq, 4)} offset:{(tl * 4 + jq) * 1024}")
    a.I("s_waitcnt lgkmcnt(0)")
    return ACC


def oproj_body4(a, N, st, bar_at=None):
    DEPTH = 4
    ACC, FR = 32, 96
    L16, L16B, LR = 1, 2, 3
    a.I("s_and_b32 s10, s2, 7")
    a.I("s_lshr_b32 s11, s2, 3")
    a.I("s_and_b32 s12, s11, 3")
    a.I("s_lshl_b32 s10, s10, 2")
    a.I("s_add_u32 s17, s10, s12")
    a.I("s_lshr_b32 s18, s11, 2")
    a.I(f"v_lshlrev_b32 {v(L16)}, 4, v0")
    a.I(f"v_add_u32 {v(L16B)}, {0x40000 - 1024}, {v(L16)}")
    a.I("s_lshl_b32 s19, s16, 14")
    a.I(f"v_add_u32 {v(LR)}, s19, {v(L16)}")
    a.I("s_lshl_b32 s42, s18, 19")
    a.I("s_lshl_b32 s10, s16, 16")
    a.I("s_add_u32 s42, s42, s10")
    a.I("s_lshl_b32 s43, s17, 19")
    a.I("s_lshl_b32 s10, s16, 15")
    a.I("s_add_u32 s43, s43, s10")
    a.I("s_waitcnt lgkmcnt(0)")
    srd(a, 20, 4, 5, 16 * MB + 2048, add=WS_CTX - 2048)
    srd(a, 24, 4, 5, 4 * MB, add=WS_WO)
    vm, lg = VM(a), LG(a)
    st()

    def loads(g):
        sl = g % DEPTH
        return [lambda: a.I(f"s_add_u32 m0, s19, {sl * 4096}"),
                lambda: a.I("s_nop 0") if g < DEPTH else None,
                lambda: vm.issue(f"buffer_load_dwordx4 {v(L16)}, s[24:27], s42 offen lds", g),
                lambda: vm.issue(f"buffer_load_dwordx4 {v(L16)}, s[24:27], s42 offen offset:1024 lds", g),
                lambda: vm.issue(f"buffer_load_dwordx4 {v(L16)}, s[20:23], s43 offen offset:2048 lds", g),
                lambda: vm.issue(f"buffer_load_dwordx4 {v(L16B)}, s[20:23], s43 offen offset:3072 lds", g),
                lambda: a.I("s_add_u32 s42, s42, 2048"),
                lambda: a.I("s_add_u32 s43, s43, 1024")]

    def reads(g):
        vm.wait(g)
        for q in range(4):
            lg.issue(f"ds_read_b128 {v(FR + 16 * (g & 1) + 4 * q, 4)}, {v(LR)} offset:{(g % DEPTH) * 4096 + q * 1024}", g)

    for g in range(DEPTH):
        for f in loads(g):
            f()
    srd(a, 28, 8, 9, 4 * MB)
    a.I("v_lshrrev_b32 v9, 5, v0")
    a.I("v_and_b32 v10, 31, v0")
    a.I("v_lshlrev_b32 v10, 4, v10")
    a.I("v_lshl_add_u32 v9, v9, 13, v10")
    a.I("s_lshl_b32 s10, s16, 10")
    a.I("v_add_u32 v9, s10, v9")
    a.I("v_add_u32 v11, 0x10000, v9")
    a.I("s_lshl_b32 s11, s17, 17")
    a.I("s_lshl_b32 s12, s18, 7")
    a.I("s_add_u32 s11, s11, s12")
    a.I("s_lshl_b32 s12, s16, 4")
    a.I("s_add_u32 s11, s11, s12")
    a.I("v_lshlrev_b32 v10, 11, v0")
    st()
    reads(0)
    st()
    NG = 32
    for g in range(NG):
        if g + 1 < NG:
            reads(g + 1)
        lg.wait(g)
        L = loads(g + DEPTH) if g + DEPTH < NG else []
        fr = FR + 16 * (g & 1)
        for qt in range(2):
            for cb in range(2):
                acc = v(ACC + 16 * (2 * qt + cb), 16)
                if L:
                    L.pop(0)()
                a.I(f"{MF} {acc}, {v(fr + 4 * cb, 4)}, {v(fr + 8 + 4 * qt, 4)}, {'0' if g == 0 else acc}")
                if L:
                    L.pop(0)()
        if g == bar_at:
            a.I("s_barrier")
    st()
    a.I("s_nop 8")
    for tl in range(4):
        for jq in range(4):
            a.I(f"ds_write_b128 {v(LR)}, {v(ACC + 16 * tl + 4 * jq, 4)} offset:{(tl * 4 + jq) * 1024}")
    a.I("s_waitcnt lgkmcnt(0)")
    a.I("s_barrier")
    for pw in range(8):
        for hl in range(2):
            a.I(f"ds_read_b128 {v(ACC + 8 * pw + 4 * hl, 4)}, {v(9 if pw < 4 else 11)} offset:{(pw % 4) * 16384 + hl * 512}")
        if pw == 6:
            a.I("s_waitcnt lgkmcnt(6)")
    for j in range(8):
        a.I(f"v_add_f32 {v(ACC + j)}, {v(ACC + j)}, {v(ACC + 8 + j)}")
        a.I(f"v_add_f32 {v(ACC + 16 + j)}, {v(ACC + 16 + j)}, {v(ACC + 24 + j)}")
    a.I("s_waitcnt lgkmcnt(0)")
    for j in range(8):
        a.I(f"v_add_f32 {v(ACC + 32 + j)}, {v(ACC + 32 + j)}, {v(ACC + 40 + j)}")
        a.I(f"v_add_f32 {v(ACC + 48 + j)}, {v(ACC + 48 + j)}, {v(ACC + 56 + j)}")
    for j in range(8):
        a.I(f"v_add_f32 {v(ACC + j)}, {v(ACC + j)}, {v(ACC + 16 + j)}")
        a.I(f"v_add_f32 {v(ACC + 32 + j)}, {v(ACC + 32 + j)}, {v(ACC + 48 + j)}")
    for j in range(8):
        a.I(f"v_add_f32 {v(ACC + j)}, {v(ACC + j)}, {v(ACC + 32 + j)}")
    for i in range(4):
        a.I(f"v_cvt_pk_bf16_f32 {v(12 + i)}, {v(ACC + 2 * i)}, {v(ACC + 2 * i + 1)}")
    a.I("buffer_store_dwordx4 v[12:15], v10, s[28:31], s11 offen")


def oproj_finish(a, ACC, PW=16384):
    for pw in range(4):
        for i in range(4):
            jq, hl = divmod(i, 2)
            if pw == 2 and i == 0 and PW > 16384:
                a.I("v_add_u32 v9, 0x10000, v9")
            a.I(f"ds_read_b128 {v(ACC + 16 * pw + 4 * i, 4)}, v9 offset:{(pw * PW) % 65536 + jq * 1024 + hl * 512}")
        if pw == 1:
            a.I("s_waitcnt lgkmcnt(0)")
            for j in range(16):
                a.I(f"v_add_f32 {v(ACC + j)}, {v(ACC + j)}, {v(ACC + 16 + j)}")
    a.I("s_waitcnt lgkmcnt(0)")
    for j in range(16):
        a.I(f"v_add_f32 {v(ACC + 32 + j)}, {v(ACC + 32 + j)}, {v(ACC + 48 + j)}")
    for j in range(16):
        a.I(f"v_add_f32 {v(ACC + j)}, {v(ACC + j)}, {v(ACC + 32 + j)}")
    for i in range(8):
        a.I(f"v_cvt_pk_bf16_f32 {v(12 + i)}, {v(ACC + 2 * i)}, {v(ACC + 2 * i + 1)}")
    a.I("buffer_store_dwordx4 v[12:15], v10, s[28:31], s11 offen")
    a.I("buffer_store_dwordx4 v[16:19], v10, s[28:31], s11 offen offset:16")


def gen_oproj():
    a = Asm()
    N = "oproj_kernel"
    kstart(a, N, 256)
    a.I("s_load_dwordx2 s[4:5], s[0:1], 88")
    a.I("s_load_dwordx2 s[6:7], s[0:1], 40")
    a.I("s_load_dwordx2 s[8:9], s[0:1], 72")
    a.I("v_lshrrev_b32 v1, 6, v0")
    a.I("v_and_b32 v0, 63, v0")
    a.I("s_nop 0")
    a.I("v_readfirstlane_b32 s16, v1")
    a.I("s_nop 0")
    st = Stamper(a, "oproj")
    ACC = oproj_body(a, N, st)
    a.I("s_barrier")
    oproj_finish(a, ACC)
    st.dump(16, 4, tmpv=8)
    kend(a, N)
    return a, N, (256, 256, 65536)


def PERMC(j):
    return 8 * (j >> 2) + (j & 3)


def gen_mat(a, dst, nf, base, consts, tmp):
    n = len(consts)
    for i in range(0, n, 4):
        for q in range(4):
            a.I(f"v_fmamk_f32 {v(tmp + q)}, {v(nf)}, {f32(float(consts[i + q]))}, {v(base)}")
        for q in range(4):
            a.I(f"v_cos_f32 {v(tmp + q)}, {v(tmp + q)}")
        a.I("s_nop 0")
        for q in range(2):
            a.I(f"v_cvt_pk_bf16_f32 {v(dst + i // 2 + q)}, {v(tmp + 2 * q)}, {v(tmp + 2 * q + 1)}")


def twiddle(a, Dr, Di, regs, nf, base, consts, sign, tmp):
    for x, c in enumerate(consts):
        A, C, S_, U = tmp, tmp + 1, tmp + 2, tmp + 3
        a.I(f"v_fmamk_f32 {v(A)}, {v(nf)}, {f32(float(c))}, {v(base)}")
        a.I(f"v_cos_f32 {v(C)}, {v(A)}")
        a.I(f"v_sin_f32 {v(S_)}, {v(A)}")
        a.I("s_nop 0")
        for j in regs[x]:
            ng = "-" if sign > 0 else ""
            ps = "" if sign > 0 else "-"
            a.I(f"v_mul_f32 {v(U)}, {v(Dr + j)}, {v(S_)}")
            a.I(f"v_mul_f32 {v(Dr + j)}, {v(Dr + j)}, {v(C)}")
            a.I(f"v_fma_f32 {v(Dr + j)}, {ng}{v(Di + j)}, {v(S_)}, {v(Dr + j)}")
            a.I(f"v_fma_f32 {v(Di + j)}, {v(Di + j)}, {v(C)}, {ps}{v(U)}")


def trig(a, j, C, S_, nf, base, c, tmp, scale=None):
    L = [f"v_fmamk_f32 {v(tmp)}, {v(nf)}, {f32(float(c))}, {v(base)}",
         f"v_cos_f32 {v(C)}, {v(tmp)}", f"v_sin_f32 {v(S_)}, {v(tmp)}"]
    return L


def cmul(a, Dr, Di, C, S_, sign, U):
    ng = "-" if sign > 0 else ""
    ps = "" if sign > 0 else "-"
    a.I(f"v_mul_f32 {v(U)}, {v(Dr)}, {v(S_)}")
    a.I(f"v_mul_f32 {v(Dr)}, {v(Dr)}, {v(C)}")
    a.I(f"v_fma_f32 {v(Dr)}, {ng}{v(Di)}, {v(S_)}, {v(Dr)}")
    a.I(f"v_fma_f32 {v(Di)}, {v(Di)}, {v(C)}, {ps}{v(U)}")


def pack(a, dst, src, n):
    for i in range(n):
        a.I(f"v_cvt_pk_bf16_f32 {v(dst + i)}, {v(src + 2 * i)}, {v(src + 2 * i + 1)}")


def b_decode(a):
    a.I("s_and_b32 s20, s2, 7")
    a.I("s_lshl_b32 s20, s20, 3")
    a.I("s_bfe_u32 s22, s2, 0x30003")
    a.I("s_or_b32 s20, s20, s22")
    a.I("s_lshr_b32 s21, s2, 6")


def gen_b1():
    a = Asm()
    N = "b1_kernel"
    kstart(a, N, 256)
    a.I("s_load_dwordx2 s[4:5], s[0:1], 88")
    a.I("s_load_dwordx4 s[8:11], s[0:1], 48")
    a.I("s_load_dwordx2 s[12:13], s[0:1], 64")
    a.I("v_lshrrev_b32 v1, 6, v0")
    a.I("v_and_b32 v2, 255, v0")
    a.I("v_and_b32 v0, 63, v0")
    a.I("v_readfirstlane_b32 s16, v1")
    b_decode(a)
    a.I("s_lshr_b32 s23, s21, 1")
    a.I("s_lshl_b32 s23, s23, 11")
    a.I("s_lshr_b32 s24, s20, 5")
    a.I("s_lshl_b32 s24, s24, 10")
    a.I("s_add_u32 s23, s23, s24")
    a.I("s_and_b32 s24, s20, 31")
    a.I("s_lshl_b32 s24, s24, 4")
    a.I("s_add_u32 s23, s23, s24")
    a.I("s_and_b32 s24, s21, 1")
    a.I("s_lshl_b32 s24, s24, 9")
    a.I("s_add_u32 s23, s23, s24")
    a.I("s_add_u32 s24, s23, 4096")
    a.I("v_lshlrev_b32 v3, 13, v2")
    a.I("s_cmp_ge_u32 s16, 4")
    a.I("s_waitcnt lgkmcnt(0)")
    a.I(f"s_cbranch_scc1 {N}_filt")
    srd(a, 28, 8, 9, 2 * MB)
    srd(a, 32, 4, 5, 257 * 8192, add=WS_Y)
    a.I("s_lshr_b32 s25, s21, 1")
    a.I("s_lshl_b32 s25, s25, 4")
    a.I("s_and_b32 s26, s21, 1")
    a.I("s_lshl_b32 s26, s26, 2")
    a.I("s_add_u32 s25, s25, s26")
    a.I("s_lshr_b32 s26, s16, 1")
    a.I("s_lshl_b32 s26, s26, 3")
    a.I("s_add_u32 s25, s25, s26")
    a.I("s_and_b32 s26, s16, 1")
    a.I("s_lshl_b32 s26, s26, 1")
    a.I("s_add_u32 s25, s25, s26")
    a.I("s_lshl_b32 s25, s25, 6")
    a.I("s_add_u32 s25, s25, s20")
    a.I("s_lshl_b32 s25, s25, 10")
    a.I(f"s_add_u32 s26, s25, {65536 - 1024}")
    a.I("s_lshl_b32 s27, s16, 11")
    a.I("s_mov_b32 m0, s27")
    a.I("v_lshlrev_b32 v4, 4, v0")
    a.I("buffer_load_dwordx4 v4, s[28:31], s25 offen lds")
    a.I("buffer_load_dwordx4 v4, s[28:31], s26 offen offset:1024 lds")
    HL, NF, BS, TM = 5, 6, 7, 8
    C32, NS32, AR, AI, XF, D1R, D1I, TR, TI, D2 = 16, 24, 32, 36, 40, 48, 64, 80, 88, 96
    a.I(f"v_lshrrev_b32 {v(HL)}, 5, v0")
    a.I(f"v_cvt_f32_u32 {v(HL)}, {v(HL)}")
    a.I("v_and_b32 v12, 31, v0")
    a.I("v_cvt_f32_u32 v12, v12")
    a.I(f"v_mul_f32 {v(NF)}, {f32(1 / 32)}, v12")
    a.I(f"v_mul_f32 {v(BS)}, {v(NF)}, {v(HL)}")
    a.I(f"v_mul_f32 {v(BS)}, {f32(8.0)}, {v(BS)}")
    nat = [16 * t + j for t in range(2) for j in range(8)]
    gen_mat(a, C32, NF, BS, nat, TM)
    a.I(f"v_add_f32 {v(BS)}, {f32(0.25)}, {v(BS)}")
    gen_mat(a, NS32, NF, BS, nat, TM)
    a.I("v_and_b32 v13, 15, v0")
    a.I("v_cvt_f32_u32 v13, v13")
    a.I(f"v_mul_f32 {v(NF)}, {f32(1 / 16)}, v13")
    a.I("v_bfe_u32 v13, v0, 4, 1")
    a.I("v_cvt_f32_u32 v13, v13")
    a.I(f"v_mul_f32 {v(BS)}, {v(NF)}, {v(HL)}")
    a.I(f"v_mul_f32 {v(BS)}, 4.0, {v(BS)}")
    a.I(f"v_fmamk_f32 {v(BS)}, v13, {f32(0.25)}, {v(BS)}")
    pc = [PERMC(j) for j in range(8)]
    gen_mat(a, AR, NF, BS, pc, TM)
    a.I(f"v_add_f32 {v(BS)}, {f32(-0.25)}, {v(BS)}")
    gen_mat(a, AI, NF, BS, pc, TM)
    a.I("v_bfe_u32 v13, v0, 4, 1")
    a.I("v_lshlrev_b32 v13, 10, v13")
    a.I("v_lshrrev_b32 v14, 5, v0")
    a.I("v_lshl_add_u32 v13, v14, 8, v13")
    a.I("v_and_b32 v15, 15, v0")
    a.I("v_lshl_add_u32 v13, v15, 3, v13")
    a.I("v_add_u32 v13, s27, v13")
    a.I("s_waitcnt vmcnt(0)")
    for t in range(2):
        for h in range(2):
            a.I(f"ds_read_b64_tr_b16 {v(XF + 4 * t + 2 * h, 2)}, v13 offset:{t * 512 + h * 128}")
    a.I(f"v_mul_f32 {v(NF)}, {f32(1 / 512)}, v12")
    a.I(f"v_mul_f32 {v(BS)}, {v(NF)}, {v(HL)}")
    a.I(f"v_mul_f32 {v(BS)}, 4.0, {v(BS)}")
    a.I("s_waitcnt lgkmcnt(0)")
    for t in range(2):
        a.I(f"{MF} {v(D1R, 16)}, {v(XF + 4 * t, 4)}, {v(C32 + 4 * t, 4)}, {'0' if t == 0 else v(D1R, 16)}")
    for t in range(2):
        a.I(f"{MF} {v(D1I, 16)}, {v(XF + 4 * t, 4)}, {v(NS32 + 4 * t, 4)}, {'0' if t == 0 else v(D1I, 16)}")
    a.I("v_and_b32 v15, 31, v0")
    a.I("v_lshlrev_b32 v15, 4, v15")
    a.I("v_lshl_add_u32 v15, v14, 11, v15")
    a.I("s_lshl_b32 s25, s16, 2")
    a.I("s_add_u32 s25, s25, 8192")
    a.I("v_add_u32 v15, s25, v15")
    a.I("s_nop 7")
    twiddle(a, D1R, D1I, [[j, j + 8] for j in range(8)], NF, BS, pc, -1, TM)
    pack(a, TR, D1R, 8)
    pack(a, TI, D1I, 8)
    a.I("s_nop 1")
    for r in range(2):
        a.I(f"{MF} {v(D2 + 16 * r, 16)}, {v(AR, 4)}, {v(TR + 4 * r, 4)}, 0")
        a.I(f"{MF} {v(D2 + 16 * r, 16)}, {v(AI, 4)}, {v(TI + 4 * r, 4)}, {v(D2 + 16 * r, 16)}")
    a.I("s_nop 11")
    for c in range(2):
        for j in range(5):
            a.I(f"v_cvt_pk_bf16_f32 {v(TR + 5 * c + j)}, {v(D2 + 8 * c + j)}, {v(D2 + 16 + 8 * c + j)}")
    for c in range(2):
        for j in range(4):
            a.I(f"ds_write_b32 v15, {v(TR + 5 * c + j)} offset:{(c * 8 + j) * 512}")
    a.I("v_cmp_eq_u32 vcc, 0, v0")
    a.I("s_and_saveexec_b64 s[36:37], vcc")
    for c in range(2):
        a.I(f"ds_write_b32 v15, {v(TR + 5 * c + 4)} offset:{8192 + 16 * c}")
    a.I("s_mov_b64 exec, s[36:37]")
    a.I("v_lshlrev_b32 v14, 4, v2")
    a.I("s_waitcnt lgkmcnt(0)")
    a.I("s_barrier")
    a.I("ds_read_b128 v[16:19], v14 offset:8192")
    a.I(f"ds_read_b128 v[20:23], v14 offset:{8192 + 4096}")
    a.I(f"ds_read_b128 v[24:27], v14 offset:{8192 + 8192}")
    a.I("v_lshlrev_b32 v13, 12, v2")
    a.I(f"v_add_u32 v13, {256 * 8192}, v13")
    a.I("s_waitcnt lgkmcnt(0)")
    a.I("buffer_store_dwordx4 v[16:19], v3, s[32:35], s23 offen")
    a.I("buffer_store_dwordx4 v[20:23], v3, s[32:35], s24 offen")
    a.I("v_cmp_gt_u32 vcc, 2, v2")
    a.I("s_and_saveexec_b64 s[36:37], vcc")
    a.I(f"s_cbranch_execz {N}_end")
    a.I("buffer_store_dwordx4 v[24:27], v13, s[32:35], s23 offen")
    a.I("s_endpgm")
    a.label(f"{N}_filt")
    srd(a, 28, 10, 11, 2048 * 514)
    srd(a, 32, 12, 13, 2048 * 514)
    srd(a, 36, 4, 5, 257 * 8192, add=WS_WF)
    a.I("s_lshr_b32 s25, s21, 1")
    a.I("s_lshl_b32 s25, s25, 5")
    a.I("s_lshr_b32 s26, s20, 5")
    a.I("s_lshl_b32 s26, s26, 4")
    a.I("s_add_u32 s25, s25, s26")
    a.I("s_and_b32 s26, s21, 1")
    a.I("s_lshl_b32 s26, s26, 2")
    a.I("s_add_u32 s25, s25, s26")
    a.I("s_lshl_b32 s25, s25, 5")
    a.I("s_and_b32 s26, s20, 31")
    a.I("s_add_u32 s25, s25, s26")
    a.I("s_mul_i32 s25, s25, 514")
    for j in range(8):
        a.I(f"s_add_u32 s{40 + j}, s25, {PERMC(j) * 32 * 514}")
    a.I("v_lshlrev_b32 v4, 1, v2")
    a.I("v_mov_b32 v5, 512")
    for q, va in enumerate((4, 5)):
        for c in range(2):
            for j in range(8):
                a.I(f"buffer_load_ushort {v(32 + 16 * q + 8 * c + j)}, {v(va)}, s[{28 + 4 * c}:{31 + 4 * c}], s{40 + j} offen")
    a.I(f"v_mov_b32 v6, {256 * 8192}")
    a.I("s_waitcnt vmcnt(16)")
    for i in range(8):
        a.I(f"v_lshl_or_b32 {v(16 + i)}, {v(33 + 2 * i)}, 16, {v(32 + 2 * i)}")
    a.I("buffer_store_dwordx4 v[16:19], v3, s[36:39], s23 offen")
    a.I("buffer_store_dwordx4 v[20:23], v3, s[36:39], s24 offen")
    a.I("v_cmp_eq_u32 vcc, 0, v2")
    a.I("s_and_saveexec_b64 s[48:49], vcc")
    a.I(f"s_cbranch_execz {N}_end")
    a.I("s_waitcnt vmcnt(2)")
    for i in range(8):
        a.I(f"v_lshl_or_b32 {v(24 + i)}, {v(49 + 2 * i)}, 16, {v(48 + 2 * i)}")
    a.I("buffer_store_dwordx4 v[24:27], v6, s[36:39], s23 offen")
    a.I("buffer_store_dwordx4 v[28:31], v6, s[36:39], s24 offen")
    kend(a, N)
    return a, N, (256, 512, 20480)


def b2_loads(a, vm, col_s, own_s, L16, YR, WR, S0, SR):
    sY, sW = S0, S0 + 2
    a.I(f"s_lshl_b32 {s(sY)}, {s(col_s)}, 13")
    a.I(f"s_lshl_b32 {s(own_s)}, {s(own_s)}, 10")
    a.I(f"s_add_u32 {s(sY)}, {s(sY)}, {s(own_s)}")
    a.I(f"s_add_u32 {s(sY + 1)}, {s(sY)}, 4096")
    a.I(f"s_add_u32 {s(sW)}, {s(sY)}, {s(own_s)}")
    a.I(f"s_add_u32 {s(sW + 1)}, {s(sW)}, 4096")
    srd(a, SR, 4, 5, 257 * 8192, add=WS_Y)
    for c in range(2):
        for t in range(2):
            vm.issue(f"buffer_load_dwordx4 {v(YR + 8 * c + 4 * t, 4)}, {v(L16)}, {s(SR, 4)}, {s(sY + c)} offen offset:{t * 2048}", "Y")
    srd(a, SR + 4, 4, 5, 257 * 8192, add=WS_WF)
    for c in range(2):
        for h in range(2):
            vm.issue(f"buffer_load_dwordx4 {v(WR + 8 * c + 4 * h, 4)}, {v(L16)}, {s(SR + 4, 4)}, {s(sW + c)} offen offset:{h * 1024}", "WF")


def b2_body(a, own, col_s, lds_s, svc, vm, R0=0, S0=20, SR=28, slice_len=110, rmap=None, after_loads=None, st=lambda: None, preloaded=False, compact_ex=False, newer=8):
    L16, HL, NF, BS, LF, XA, XB, TM, LB = [R0 + x for x in (1, 2, 3, 4, 5, 6, 7, 8, 12)]
    YR, YI, WR, WI = [R0 + x for x in (16, 24, 32, 40)]
    C32, S32, NS32, C64, S64 = [R0 + x for x in (48, 56, 64, 72, 88)]
    DR, DI = R0 + 104, R0 + 120
    FR, FI, FN = R0 + 136, R0 + 152, R0 + 168
    XT = 240
    if rmap:
        L16, HL, NF, BS, LF, XA, XB, TM, LB, YR, YI, WR, WI, C32, S32, NS32, C64, S64, DR, DI, FR, FI, FN = rmap
    sY, sW, sSC, sT = S0, S0 + 2, S0 + 4, S0 + 5
    I0 = a.I
    cnt = [0]

    def I(text):
        r = I0(text)
        cnt[0] += 1
        if cnt[0] >= slice_len and (text.startswith("v_cvt_pk") or text.startswith("v_fma_f32") or text.startswith("v_sin")):
            dosvc()
        return r

    def dosvc():
        a.I = I0
        svc()
        a.I = I
        cnt[0] = 0

    a.I(f"v_lshlrev_b32 {v(L16)}, 4, v0")
    if preloaded:
        vm.q += ["Y"] * 4 + ["WF"] * 4 + ["Q"] * newer
    else:
        a.I(f"s_mov_b32 {s(sT)}, {own}")
        b2_loads(a, vm, col_s, sT, L16, YR, WR, S0, SR)
    srd(a, SR + 8, 4, 5, 257 * 8192, add=WS_Z)
    a.I = I
    a.I(f"s_mov_b32 {s(sSC)}, {f32(2.0 ** -19)}")
    a.I(f"s_and_b32 {s(sT)}, {s(col_s)}, 255")
    a.I(f"s_cmp_eq_u32 {s(sT)}, 0")
    a.I(f"s_cselect_b32 {s(sSC)}, {f32(2.0 ** -20)}, {s(sSC)}")
    a.I(f"v_lshrrev_b32 {v(HL)}, 5, v0")
    a.I(f"v_cvt_f32_u32 {v(HL)}, {v(HL)}")
    a.I(f"v_mul_f32 {v(HL)}, 4.0, {v(HL)}")
    a.I(f"v_and_b32 {v(LF)}, 31, v0")
    a.I(f"v_cvt_f32_u32 {v(LF)}, {v(LF)}")
    a.I(f"v_add_f32 {v(LB)}, {f32(32.0 * own)}, {v(LF)}")
    pc = lambda n: [16 * t + PERMC(j) for t in range(n) for j in range(8)]
    a.I(f"v_mul_f32 {v(NF)}, {f32(1 / 32)}, {v(LF)}")
    a.I(f"v_mul_f32 {v(BS)}, {v(NF)}, {v(HL)}")
    gen_mat(a, C32, NF, BS, pc(2), TM)
    a.I(f"v_add_f32 {v(BS)}, {f32(-0.25)}, {v(BS)}")
    gen_mat(a, S32, NF, BS, pc(2), TM)
    for i in range(8):
        a.I(f"v_xor_b32 {v(NS32 + i)}, 0x80008000, {v(S32 + i)}")
    a.I(f"v_mul_f32 {v(NF)}, {f32(1 / 64)}, {v(LB)}")
    a.I(f"v_mul_f32 {v(BS)}, {v(NF)}, {v(HL)}")
    gen_mat(a, C64, NF, BS, pc(4), TM)
    a.I(f"v_add_f32 {v(BS)}, {f32(-0.25)}, {v(BS)}")
    gen_mat(a, S64, NF, BS, pc(4), TM)
    a.I(f"v_add_u32 {v(XA)}, {s(lds_s)}, {v(L16)}")
    a.I(f"v_add_u32 {v(XB)}, {(1 - own) * 4096}, {v(XA)}")
    a.I(f"v_add_u32 {v(XA)}, {own * 4096}, {v(XA)}")

    def mm(D, terms, fill=None, per=3):
        first = True
        for A_, B_ in terms:
            a.I(f"{MF} {v(D, 16)}, {v(A_, 4)}, {v(B_, 4)}, {'0' if first else v(D, 16)}")
            first = False
            if fill:
                for x in fill[:per]:
                    a.I(x)
                del fill[:per]

    def exchange(neg_of, ldsoff):
        nonlocal XA, XB
        if compact_ex and ldsoff:
            XA, XB, ldsoff = XB, XA, 0
        for c, F in enumerate((FR, FI)):
            for h in range(2):
                a.I(f"ds_write_b128 {v(XA)}, {v(F + 8 * own + 4 * h, 4)} offset:{ldsoff + (2 * c + h) * 1024}")
        a.I("s_waitcnt lgkmcnt(0)")
        dosvc()
        for c, F in enumerate((FR, FI)):
            for h in range(2):
                a.I(f"ds_read_b128 {v(F + 8 * (1 - own) + 4 * h, 4)}, {v(XB)} offset:{ldsoff + (2 * c + h) * 1024}")
        for i in range(8):
            a.I(f"v_xor_b32 {v(FN + 8 * own + i)}, 0x80008000, {v(neg_of + 8 * own + i)}")
        a.I("s_waitcnt lgkmcnt(0)")
        for i in range(8):
            a.I(f"v_xor_b32 {v(FN + 8 * (1 - own) + i)}, 0x80008000, {v(neg_of + 8 * (1 - own) + i)}")
        a.I("s_nop 1")

    jc = [(j & 3) + 8 * (j >> 2) for j in range(16)]
    o = 8 * (1 - own)
    T1C = [FN + j for j in range(16)]
    T1S = [FR + o + j for j in range(8)] + [FI + o + j for j in range(8)]
    a.I(f"v_mul_f32 {v(NF)}, {f32(1 / 2048)}, {v(LF)}")
    a.I(f"v_add_f32 {v(BS)}, {f32(32.0 * own)}, {v(HL)}")
    a.I(f"v_mul_f32 {v(BS)}, {v(NF)}, {v(BS)}")
    for j in range(16):
        a.many(trig(a, j, T1C[j], T1S[j], NF, BS, jc[j], TM + (j & 1)))
    a.I(f"v_mul_f32 {v(NF)}, {f32(1 / 2048)}, {v(LB)}")
    a.I(f"v_mul_f32 {v(BS)}, {v(NF)}, {v(HL)}")
    st()
    vm.wait("Y")
    st()
    mm(DR, [(YR, C32), (YR + 4, C32 + 4), (YI, S32), (YI + 4, S32 + 4)])
    mm(DI, [(YI, C32), (YI + 4, C32 + 4), (YR, NS32), (YR + 4, NS32 + 4)])
    a.I("s_nop 11")
    for j in range(16):
        cmul(a, DR + j, DI + j, T1C[j], T1S[j], -1, TM)
    pack(a, FR + 8 * own, DR, 8)
    pack(a, FI + 8 * own, DI, 8)
    exchange(FR, 0)
    st()
    if after_loads:
        after_loads()
    T2C = [YR + j for j in range(8)] + [YI + j for j in range(8)]
    fill = []
    for j in range(16):
        fill += trig(a, j, T2C[j], XT + j, NF, BS, jc[j], TM + (j & 1))
    mm(DR, [(C64 + 4 * t, FR + 4 * t) for t in range(4)] + [(S64 + 4 * t, FI + 4 * t) for t in range(4)], fill)
    mm(DI, [(C64 + 4 * t, FI + 4 * t) for t in range(4)] + [(S64 + 4 * t, FN + 4 * t) for t in range(4)], fill)
    assert not fill
    vm.wait("WF")
    for j in range(12):
        a.I(f"v_mul_f32 {v(T2C[j])}, {s(sSC)}, {v(T2C[j])}")
    for j in range(16):
        wr, wi, u = TM, TM + 1, TM + 2
        if j & 1:
            a.I(f"v_and_b32 {v(wr)}, 0xffff0000, {v(WR + j // 2)}")
            a.I(f"v_and_b32 {v(wi)}, 0xffff0000, {v(WI + j // 2)}")
        else:
            a.I(f"v_lshlrev_b32 {v(wr)}, 16, {v(WR + j // 2)}")
            a.I(f"v_lshlrev_b32 {v(wi)}, 16, {v(WI + j // 2)}")
        cmul(a, DR + j, DI + j, wr, wi, +1, u)
    pack(a, FR + 8 * own, DR, 8)
    pack(a, FI + 8 * own, DI, 8)
    exchange(FI, 8192)
    st()
    fill = [f"v_mul_f32 {v(T2C[j])}, {s(sSC)}, {v(T2C[j])}" for j in range(12, 16)]
    fill += [f"v_mul_f32 {v(XT + j)}, {s(sSC)}, {v(XT + j)}" for j in range(16)]
    mm(DR, [(FR + 4 * t, C64 + 4 * t) for t in range(4)] + [(FN + 4 * t, S64 + 4 * t) for t in range(4)], fill)
    mm(DI, [(FI + 4 * t, C64 + 4 * t) for t in range(4)] + [(FR + 4 * t, S64 + 4 * t) for t in range(4)], fill)
    a.I("s_nop 11")
    for j in range(16):
        cmul(a, DR + j, DI + j, T2C[j], XT + j, +1, TM)
    pack(a, FR, DR, 8)
    pack(a, FI, DI, 8)
    a.I("s_nop 1")
    mm(DR, [(C32, FR), (C32 + 4, FR + 4), (NS32, FI), (NS32 + 4, FI + 4)])
    mm(DI, [(C32, FI), (C32 + 4, FI + 4), (S32, FR), (S32 + 4, FR + 4)])
    a.I = I0
    a.I("s_nop 7")
    pack(a, YR, DR, 8)
    a.I("s_nop 3")
    pack(a, YI, DI, 8)
    for c in range(2):
        for h in range(2):
            vm.issue(f"buffer_store_dwordx4 {v(YR + 8 * c + 4 * h, 4)}, {v(L16)}, {s(SR + 8, 4)}, {s(sW + c)} offen offset:{h * 1024}", "Z")


def gen_b2():
    a = Asm()
    N = "b2_kernel"
    kstart(a, N, 257)
    a.I("s_load_dwordx2 s[4:5], s[0:1], 88")
    a.I("v_lshrrev_b32 v1, 6, v0")
    a.I("v_and_b32 v0, 63, v0")
    a.I("s_mov_b32 s17, 0")
    a.I("v_readfirstlane_b32 s16, v1")
    a.I("s_waitcnt lgkmcnt(0)")
    a.I("s_cmp_eq_u32 s16, 1")
    a.I(f"s_cbranch_scc1 {N}_w1")
    b2_body(a, 0, 2, 17, lambda: a.I("s_barrier"), VM(a), slice_len=10 ** 9)
    a.I("s_endpgm")
    a.label(f"{N}_w1")
    b2_body(a, 1, 2, 17, lambda: a.I("s_barrier"), VM(a), slice_len=10 ** 9)
    kend(a, N)
    return a, N, (257, 128, 16384)


def b3_loads(a, outp=6):
    b_decode(a)
    a.I("s_lshr_b32 s23, s20, 5")
    a.I("s_lshl_b32 s23, s23, 11")
    a.I("s_lshl_b32 s24, s21, 9")
    a.I("s_add_u32 s23, s23, s24")
    a.I("s_and_b32 s24, s20, 31")
    a.I("s_lshl_b32 s24, s24, 4")
    a.I("s_add_u32 s23, s23, s24")
    a.I("s_add_u32 s24, s23, 4096")
    a.I("v_lshlrev_b32 v3, 13, v2")
    a.I(f"v_mov_b32 v4, {256 * 8192}")
    a.I("s_waitcnt lgkmcnt(0)")
    srd(a, 28, 4, 5, 257 * 8192, add=WS_Z)
    srd(a, 32, outp, outp + 1, 4 * MB)
    a.I("buffer_load_dwordx4 v[16:19], v3, s[28:31], s23 offen")
    a.I("buffer_load_dwordx4 v[20:23], v3, s[28:31], s24 offen")
    a.I("buffer_load_dwordx4 v[24:27], v4, s[28:31], s23 offen")


def b3_body(a, LB=0, outp=6, nafter=0, loaded=False, mid=None, part=0):
    if not loaded:
        b3_loads(a, outp)
    n0 = len(a.items)
    HL, NF, BS, AFL, TM = 5, 6, 7, 12, 8
    C32, NS32, BRE, BIM, MT, ZF, UR, UI, TR, TI = 32, 40, 48, 56, 64, 68, 76, 92, 108, 116
    a.I(f"v_lshrrev_b32 {v(HL)}, 5, v0")
    a.I(f"v_cvt_f32_u32 {v(HL)}, {v(HL)}")
    a.I("v_and_b32 v13, 31, v0")
    a.I("v_cvt_f32_u32 v13, v13")
    a.I(f"v_mul_f32 {v(NF)}, {f32(1 / 32)}, v13")
    a.I(f"v_mul_f32 {v(BS)}, {v(NF)}, {v(HL)}")
    a.I(f"v_mul_f32 {v(BS)}, 4.0, {v(BS)}")
    pc = [16 * t + PERMC(j) for t in range(2) for j in range(8)]
    gen_mat(a, C32, NF, BS, pc, TM)
    a.I(f"v_add_f32 {v(BS)}, {f32(0.25)}, {v(BS)}")
    gen_mat(a, NS32, NF, BS, pc, TM)
    a.I(f"v_and_b32 {v(AFL)}, 15, v0")
    a.I(f"v_cvt_f32_u32 {v(AFL)}, {v(AFL)}")
    a.I(f"v_mul_f32 {v(NF)}, {f32(1 / 16)}, {v(AFL)}")
    a.I(f"v_mul_f32 {v(BS)}, {f32(0.25)}, {v(HL)}")
    a.I("v_and_b32 v13, 16, v0")
    a.I("v_cmp_eq_u32 vcc, 0, v13")
    a.I("v_mov_b32 v14, 0")
    for B_, ph in ((BRE, None), (BIM, -0.25)):
        if ph:
            a.I(f"v_add_f32 {v(BS)}, {f32(ph)}, {v(BS)}")
        gen_mat(a, MT, NF, BS, list(range(8)), TM)
        for i in range(4):
            a.I(f"v_cndmask_b32 {v(B_ + i)}, v14, {v(MT + i)}, vcc")
            a.I(f"v_cndmask_b32 {v(B_ + 4 + i)}, {v(MT + i)}, v14, vcc")
    if part == 1:
        return
    if part == 2:
        del a.items[n0:]
    if mid:
        mid()
    a.I("v_and_b32 v13, 31, v2")
    a.I("v_lshlrev_b32 v13, 4, v13")
    a.I("v_lshrrev_b32 v15, 5, v2")
    a.I("v_lshl_add_u32 v13, v15, 1, v13")
    a.I(f"v_add_u32 v13, {LB}, v13")
    a.I("v_cmp_eq_u32 vcc, 0, v2")
    a.I(f"v_mov_b32 v15, {LB + 8192}")
    a.I(f"s_waitcnt vmcnt({nafter})")
    for i in range(4):
        a.I(f"v_cndmask_b32 {v(20 + i)}, {v(20 + i)}, v14, vcc")
    for c in range(2):
        for i in range(8):
            a.I(f"ds_write_b16{'_d16_hi' if i & 1 else ''} v13, {v(16 + 4 * c + i // 2)} offset:{i * 1024 + c * 512}")
    a.I("s_and_saveexec_b64 s[36:37], vcc")
    a.I("ds_write_b128 v15, v[24:27]")
    a.I("s_mov_b64 exec, s[36:37]")
    a.I("s_lshl_b32 s25, s16, 11")
    a.I(f"s_add_u32 s25, s25, {LB}")
    a.I("v_lshlrev_b32 v13, 4, v0")
    a.I("v_add_u32 v13, s25, v13")
    a.I("v_bfe_u32 v15, v0, 4, 1")
    a.I("s_lshl_b32 s25, s16, 2")
    a.I(f"s_add_u32 s25, s25, {LB + 8192}")
    a.I("v_lshl_add_u32 v15, v15, 1, s25")
    for j in range(1, 16):
        a.I(f"v_mov_b32 {v(UR + j)}, 0")
    a.I("s_waitcnt lgkmcnt(0)")
    a.I("s_barrier")
    a.I(f"ds_read_u16 {v(UR)}, v15")
    a.I(f"ds_read_b128 {v(ZF, 4)}, v13")
    a.I(f"ds_read_b128 {v(ZF + 4, 4)}, v13 offset:1024")
    a.I("v_and_b32 v15, 1, v0")
    a.I("v_lshlrev_b32 v15, 31, v15")
    a.I("v_cmp_gt_u32 vcc, 32, v0")
    a.I(f"v_mul_f32 {v(NF)}, {f32(1 / 512)}, {v(AFL)}")
    a.I(f"v_mul_f32 {v(BS)}, {v(NF)}, {v(HL)}")
    a.I(f"v_mul_f32 {v(BS)}, 4.0, {v(BS)}")
    a.I("s_waitcnt lgkmcnt(2)")
    a.I(f"v_lshlrev_b32 {v(UR)}, 16, {v(UR)}")
    a.I(f"v_xor_b32 {v(UR)}, {v(UR)}, v15")
    a.I(f"v_cndmask_b32 {v(UR)}, v14, {v(UR)}, vcc")
    a.I("s_waitcnt lgkmcnt(0)")
    a.I("s_nop 0")
    for r in range(2):
        a.I(f"{MF} {v(UR, 16)}, {v(ZF + 4 * r, 4)}, {v(BRE + 4 * r, 4)}, {v(UR, 16)}")
    for r in range(2):
        a.I(f"{MF} {v(UI, 16)}, {v(ZF + 4 * r, 4)}, {v(BIM + 4 * r, 4)}, {'0' if r == 0 else v(UI, 16)}")
    a.I("s_lshr_b32 s25, s21, 1")
    a.I("s_lshl_b32 s25, s25, 4")
    a.I("s_and_b32 s26, s21, 1")
    a.I("s_lshl_b32 s26, s26, 2")
    a.I("s_add_u32 s25, s25, s26")
    a.I("s_lshr_b32 s26, s16, 1")
    a.I("s_lshl_b32 s26, s26, 3")
    a.I("s_add_u32 s25, s25, s26")
    a.I("s_and_b32 s26, s16, 1")
    a.I("s_lshl_b32 s26, s26, 1")
    a.I("s_add_u32 s25, s25, s26")
    a.I("s_lshl_b32 s25, s25, 6")
    a.I("s_add_u32 s25, s25, s20")
    a.I("s_lshl_b32 s25, s25, 11")
    a.I(f"s_add_u32 s26, s25, {64 * 2048}")
    jc = [(j & 3) + 8 * (j >> 2) for j in range(16)]
    twiddle(a, UR, UI, [[j] for j in range(16)], NF, BS, jc, +1, TM)
    pack(a, TR, UR, 8)
    pack(a, TI, UI, 8)
    a.I("v_and_b32 v13, 31, v0")
    a.I("v_lshlrev_b32 v13, 5, v13")
    terms = [(TR, C32), (TR + 4, C32 + 4), (TI, NS32), (TI + 4, NS32 + 4)]
    for i, (A_, B_) in enumerate(terms):
        a.I(f"{MF} {v(UR, 16)}, {v(A_, 4)}, {v(B_, 4)}, {'0' if i == 0 else v(UR, 16)}")
    a.I("v_lshrrev_b32 v15, 5, v0")
    a.I("v_lshl_add_u32 v13, v15, 4, v13")
    a.I("s_nop 9")
    pack(a, 16, UR, 8)
    a.I("s_nop 1")
    for r in range(2):
        a.I(f"v_permlane32_swap_b32 {v(16 + 4 * r)}, {v(18 + 4 * r)}")
        a.I(f"v_permlane32_swap_b32 {v(17 + 4 * r)}, {v(19 + 4 * r)}")
        a.I(f"buffer_store_dwordx4 {v(16 + 4 * r, 4)}, v13, s[32:35], s{25 + r} offen offset:1024")


def gen_b3():
    a = Asm()
    N = "b3_kernel"
    kstart(a, N, 256)
    a.I("s_load_dwordx2 s[4:5], s[0:1], 88")
    a.I("s_load_dwordx2 s[6:7], s[0:1], 72")
    a.I("v_lshrrev_b32 v1, 6, v0")
    a.I("v_mov_b32 v2, v0")
    a.I("v_and_b32 v0, 63, v0")
    a.I("v_readfirstlane_b32 s16, v1")
    b3_body(a)
    kend(a, N)
    return a, N, (256, 256, 8192 + 64)


KERNELS = [gen_b1, gen_qkv, gen_b2, gen_attn, gen_b3, gen_oproj]


ALIASES = [("v_mfma_f32_16x16x32_bf16", "mf16", 4), ("v_mfma_f32_32x32x16_bf16", "mf32", 4),
           ("v_cvt_pk_bf16_f32", "cvtpk", 3)]


def compact(txt):
    lines = txt.split("\n")
    out = []
    done = False
    for l in lines:
        if l.startswith("    "):
            l = l.strip()
            for full, short, n in ALIASES:
                if l.startswith(full + " "):
                    l = short + l[len(full):]
        out.append(l)
        if l.startswith(".amdgcn_target") and not done:
            done = True
            for full, short, n in ALIASES:
                args = ["p%d" % i for i in range(n)]
                out.append(f".macro {short} " + ", ".join(args))
                out.append(f"{full} " + ", ".join("\\" + x for x in args))
                out.append(".endm")
    return "\n".join(out)


def build(kernels, path):
    hdr = open(os.path.join(os.path.dirname(os.path.abspath(__file__)), "..", "cdna_kernels", NAME + ".s.ref")).read()
    head = [l for l in hdr.splitlines() if l.startswith(";") and "@launch" not in l and "Override" not in l
            and "grid=ceil" not in l]
    txt = []
    launches = []
    descs = []
    bad = 0
    for g in kernels:
        KIDX[0] = len(launches)
        a, n, (grid, blk, lds) = g()
        if os.environ.get("PADREF") == n:
            items = []
            done = False
            for it in a.items:
                items.append(it)
                if it[0] == "i" and it[1].text == f"s_cbranch_scc1 {n}_end" and not done:
                    done = True
                    b = Asm()
                    b.I("s_memrealtime s[98:99]")
                    b.I("s_load_dwordx2 s[96:97], s[0:1], 88")
                    b.I("s_cmp_lg_u32 s2, 0")
                    b.I("s_cbranch_scc1 padref_skip")
                    b.I("s_waitcnt lgkmcnt(0)")
                    b.I(f"s_add_u32 s84, s96, {hex(200 * MB)}")
                    b.I("s_addc_u32 s85, s97, 0")
                    b.I("s_mov_b32 s86, 64")
                    b.I("s_mov_b32 s87, 0x20000")
                    b.I("v_mov_b32 v254, s98")
                    b.I("buffer_store_dword v254, off, s[84:87], 0 sc0 sc1")
                    b.label("padref_skip")
                    b.I("s_waitcnt lgkmcnt(0)")
                    items += b.items
            a.items = items
        if os.environ.get("PADK") == n:
            items = []
            cnt = 0
            for it in a.items:
                if it[0] == "i" and it[1].text == f"s_cbranch_scc1 {n}_end" and cnt == 0:
                    items.append(it)
                    b = Asm()
                    b.I("s_memrealtime s[98:99]")
                    if os.environ.get("PADREF"):
                        b.I("s_load_dwordx2 s[96:97], s[0:1], 88")
                        b.I("s_waitcnt lgkmcnt(0)")
                        b.I(f"s_add_u32 s84, s96, {hex(200 * MB)}")
                        b.I("s_addc_u32 s85, s97, 0")
                        b.I("s_mov_b32 s86, 64")
                        b.I("s_mov_b32 s87, 0x20000")
                        b.I("buffer_load_dword v254, off, s[84:87], 0 sc0 sc1")
                        b.I("s_waitcnt vmcnt(0)")
                        b.I("v_readfirstlane_b32 s98, v254")
                    items += b.items
                    cnt = 1
                    continue
                if it[0] == "i" and it[1].mn == "s_endpgm" and not (items[-1][0] == "l" and items[-1][1] == n + "_end" and items[-2][1].mn == "s_endpgm"):
                    b = Asm()
                    lab = None
                    if items[-1][0] == "l" and items[-1][1] == n + "_end":
                        lab = items.pop()
                    cnt += 1
                    b.I("s_waitcnt vmcnt(0) lgkmcnt(0)")
                    b.label(f"pad_{cnt}")
                    b.I("s_memrealtime s[96:97]")
                    b.I("s_waitcnt lgkmcnt(0)")
                    b.I("s_sub_u32 s96, s96, s98")
                    b.I(f"s_cmp_lt_u32 s96, {os.environ['PADT']}")
                    b.I(f"s_cbranch_scc1 pad_{cnt}")
                    items += b.items
                    if lab:
                        items.append(it)
                        items.append(lab)
                items.append(it)
            a.items = items
        if DBGT:
            items = []
            for it in a.items:
                if it[0] == "i" and it[1].mn == "s_endpgm" and not (items and items[-1][0] == "l" and items[-1][1] == n + "_end" and items[-2][1].mn == "s_endpgm"):
                    b = Asm()
                    lab = None
                    if items[-1][0] == "l" and items[-1][1] == n + "_end":
                        lab = items.pop()
                    dbg_stamp(b, 1)
                    items += b.items
                    if lab:
                        items.append(it)
                        items.append(lab)
                items.append(it)
            a.items = items
        bad += len(a.check())
        nv, ns, na = a.maxregs()
        print(f"{n}: {sum(1 for k, _ in a.items if k == 'i')} instrs, vgpr {nv}, agpr {na}, sgpr {ns}")
        launches.append(f"; @launch kernel={n} grid=({grid},1,1) block=({blk},1,1) lds={lds}")
        txt.append(a.text())
        descs.append(kdesc(n, nv, ns, na))
    if bad:
        print("HAZARDS:", bad)
    out = "\n".join(head) + "\n" + "\n".join(launches) + "\n" + '.amdgcn_target "amdgcn-amd-amdhsa--gfx950"\n' + \
          "".join(txt) + "".join(descs)
    out = compact(out)
    open(path, "w").write(out)
    return bad


if __name__ == "__main__":
    p = sys.argv[1] if len(sys.argv) > 1 else os.path.join(os.path.dirname(os.path.abspath(__file__)), "..",
                                                           "cdna_kernels", NAME + ".s")
    sys.exit(1 if build(KERNELS, p) else 0)
```

```python
import sys, os
import gen3
from gen3 import *

def g():
    a = Asm()
    N = "touch_kernel"
    kstart(a, N, 256)
    a.I("v_mov_b32 v1, 0")
    kend(a, N)
    return a, N, (256, 64, 0)

mode = sys.argv[2]
ks = gen3.KERNELS
build(([g] + ks) if mode == "front" else (ks + [g]), sys.argv[1])
```

```python
import sys, os, math, struct
sys.path.insert(0, os.path.dirname(os.path.abspath(__file__)))
from asmlib import Asm, VM, LG, v, s, ag

NAME = "concat_heads__compressed_kv_cla__spectral_gfnet__prompt"
MB = 1 << 20
WS_K, WS_V, WS_CTX, WS_Y, WS_WF, WS_Z, WS_Q = 0, 16 * MB, 32 * MB, 48 * MB, 52 * MB, 56 * MB, 64 * MB
WS_WO = 60 * MB
if os.environ.get('ALIAS'):
    WS_Q = WS_CTX
WS_PART = 0
WS_FLAG = 56 * MB + 2560 * 1024
YSTR = 8320
KA = dict(x=0, ckv=8, wq=16, wuk=24, wuv=32, wo=40, bx=48, wr=56, wi=64, out=72, dbg=80, ws=88)
MF = "v_mfma_f32_32x32x16_bf16"
SP = os.environ.get("SP", " sc1")


def f32(x):
    return "0x%08x" % struct.unpack("<I", struct.pack("<f", x))[0]


def srd(a, d, lo, hi, size, add=0):
    if add:
        a.I(f"s_add_u32 {s(d)}, {s(lo)}, {add if isinstance(add, str) else hex(add)}")
        a.I(f"s_addc_u32 {s(d + 1)}, {s(hi)}, 0")
    else:
        a.I(f"s_mov_b32 {s(d)}, {s(lo)}")
        a.I(f"s_mov_b32 {s(d + 1)}, {s(hi)}")
    a.I(f"s_mov_b32 {s(d + 2)}, {size if isinstance(size, str) else hex(size)}")
    a.I(f"s_mov_b32 {s(d + 3)}, 0x20000")


STAMPS = int(os.environ.get("STAMPS", "0"))
ST0 = 72


class Stamper:
    def __init__(self, a, name=""):
        self.a, self.n = a, 0
        self.on = STAMPS and os.environ.get("STAMPK", name) == name

    def __call__(self):
        if self.on and self.n < 11:
            if self.n == 0:
                self.a.I("s_memrealtime s[68:69]")
            self.a.I(f"s_memtime {s(ST0 + 2 * self.n, 2)}")
            self.n += 1

    def dump(self, wave_s, wslo, tmpv=8):
        if not self.on:
            return
        a = self.a
        a.I("s_waitcnt vmcnt(0) lgkmcnt(0)")
        a.I(f"s_memtime {s(ST0 + 2 * self.n, 2)}")
        a.I("s_memrealtime s[70:71]")
        self.n += 1
        srd(a, 96, wslo, wslo + 1, 1 * MB, add=128 * MB)
        a.I("s_lshl_b32 s100, s2, 3")
        a.I(f"s_add_u32 s100, s100, {s(wave_s)}")
        a.I("s_lshl_b32 s100, s100, 8")
        a.I("s_waitcnt lgkmcnt(0)")
        a.I(f"v_mov_b32 {v(tmpv + 1)}, 0")
        for i in range(self.n):
            a.I(f"v_mov_b32 {v(tmpv)}, {s(ST0 + 2 * i)}")
            a.I(f"buffer_store_dword {v(tmpv)}, {v(tmpv + 1)}, s[96:99], s100 offen offset:{4 * i}")
        for i, r in ((62, 68), (63, 70), (61, ST0 + 2 * (self.n - 1))):
            a.I(f"v_mov_b32 {v(tmpv)}, {s(r)}")
            a.I(f"buffer_store_dword {v(tmpv)}, {v(tmpv + 1)}, s[96:99], s100 offen offset:{4 * i}")
        a.I("s_waitcnt vmcnt(0)")


DBGT = int(os.environ.get("DBGT", "0"))
KIDX = [0, 0]


def dbg_stamp(a, end):
    k = KIDX[0]
    lab = a.uid("dbgskip%d_%d" % (k, KIDX[1]))
    KIDX[1] += 1
    if not end:
        a.I("v_readfirstlane_b32 s89, v0")
        a.I("s_nop 1")
        a.I("s_lshr_b32 s89, s89, 6")
        a.I("s_or_b32 s89, s89, s2")
    a.I("s_cmp_lg_u32 s89, 0")
    a.I(f"s_cbranch_scc1 {lab}")
    a.I("s_load_dwordx4 s[92:95], s[90:91], 80")
    a.I("s_waitcnt vmcnt(0) lgkmcnt(0)")
    a.I("s_memrealtime s[86:87]")
    a.I(f"s_add_u32 s96, s94, {hex(200 * MB)}")
    a.I("s_addc_u32 s97, s95, 0")
    a.I("s_mov_b32 s98, 256")
    a.I("s_mov_b32 s99, 0x20000")
    a.I("s_waitcnt lgkmcnt(0)")
    a.I("v_mov_b32 v254, s86")
    a.I(f"buffer_store_dword v254, off, s[96:99], 0 offset:{8 * k + 4 * end} sc0 sc1")
    a.I("s_waitcnt vmcnt(0)")
    if end and k == DBGT - 1:
        a.I("v_lshlrev_b32 v253, 2, v0")
        a.I("buffer_load_dword v254, v253, s[96:99], 0 offen sc0 sc1")
        a.I("s_mov_b32 s96, s92")
        a.I("s_mov_b32 s97, s93")
        a.I("s_waitcnt vmcnt(0)")
        a.I("buffer_store_dword v254, v253, s[96:99], 0 offen")
        a.I(f"s_sub_u32 s96, s92, {k * 512}")
        a.I("s_subb_u32 s97, s93, 0")
        a.I("s_nop 0")
        a.I("buffer_store_dword v254, v253, s[96:99], 0 offen")
    a.label(lab)


def code_touch(a, kname, wave_s, sr, vt, nw_log=3, kd=True):
    if os.environ.get("NOCP"):
        return
    ref = a.uid("pcref_" + kname)
    a.I(f"s_getpc_b64 {s(sr, 2)}")
    a.label(ref)
    a.I(f"s_add_u32 {s(sr)}, {s(sr)}, {kname} - {ref}")
    a.I(f"s_addc_u32 {s(sr + 1)}, {s(sr + 1)}, ({kname} - {ref}) >> 32")
    a.I(f"s_mov_b32 {s(sr + 2)}, {kname}_end - {kname}")
    a.I(f"s_mov_b32 {s(sr + 3)}, 0x20000")
    a.I(f"s_lshr_b32 {s(sr + 4)}, s2, 3")
    a.I(f"s_lshl_b32 {s(sr + 4)}, {s(sr + 4)}, {nw_log}")
    a.I(f"s_add_u32 {s(sr + 4)}, {s(sr + 4)}, {s(wave_s)}")
    a.I(f"s_lshl_b32 {s(sr + 4)}, {s(sr + 4)}, {12 - nw_log}")
    a.I(f"v_lshlrev_b32 {v(vt)}, 7, v0")
    a.I(f"s_mov_b64 exec, {(1 << (32 >> nw_log)) - 1}")
    a.I(f"buffer_load_dword {v(vt + 1)}, {v(vt)}, {s(sr, 4)}, {s(sr + 4)} offen")
    if kd and not os.environ.get("NOKD"):
        a.I(f"s_getpc_b64 {s(sr, 2)}")
        a.I(f"s_add_u32 {s(sr)}, {s(sr)}, kdl_{kname}@rel32@lo+4")
        a.I(f"s_addc_u32 {s(sr + 1)}, {s(sr + 1)}, kdl_{kname}@rel32@hi+12")
        a.I(f"s_mov_b32 {s(sr + 2)}, 64")
        a.I("s_mov_b64 exec, 1")
        a.I(f"buffer_load_dword {v(vt + 1)}, off, {s(sr, 4)}, 0")
    a.I("s_mov_b64 exec, -1")


def kstart(a, name, nwg):
    a.raw(".text")
    a.raw(f".globl {name}")
    a.raw(".p2align 8")
    a.raw(f".type {name},@function")
    a.label(name)
    a.I(f"s_cmp_ge_u32 s2, {nwg}")
    a.I(f"s_cbranch_scc1 {name}_end")
    if DBGT:
        a.I("s_mov_b64 s[90:91], s[0:1]")
        dbg_stamp(a, 0)


def kend(a, name):
    a.label(name + "_end")
    a.I("s_endpgm")


def kdesc(name, nv, ns, na=0):
    nv = (nv + 7) // 8 * 8
    acc_off = nv
    nv = nv + (na + 7) // 8 * 8
    return f""".section .rodata,"a"
.p2align 6
kdl_{name}:
.amdhsa_kernel {name}
  .amdhsa_next_free_vgpr {nv}
  .amdhsa_next_free_sgpr {max(ns, 16)}
  .amdhsa_accum_offset {acc_off}
  .amdhsa_group_segment_fixed_size 0
  .amdhsa_kernarg_size 96
  .amdhsa_user_sgpr_count 2
  .amdhsa_user_sgpr_kernarg_segment_ptr 1
  .amdhsa_system_sgpr_workgroup_id_x 1
  .amdhsa_float_denorm_mode_32 3
.end_amdhsa_kernel
"""


QSCALE = math.log2(math.e) / math.sqrt(128.0)


def gen_qkv():
    a = Asm()
    N = "qkvproj_kernel"
    kstart(a, N, 256)
    a.I("s_load_dwordx4 s[4:7], s[0:1], 0")
    a.I("s_load_dwordx4 s[8:11], s[0:1], 16")
    a.I("s_load_dwordx2 s[12:13], s[0:1], 32")
    a.I("s_load_dwordx2 s[14:15], s[0:1], 88")
    a.I("v_lshrrev_b32 v1, 6, v0")
    a.I("v_and_b32 v0, 63, v0")
    a.I("s_and_b32 s17, s2, 7")
    a.I("v_readfirstlane_b32 s16, v1")
    a.I("s_lshr_b32 s18, s2, 3")
    a.I("s_and_b32 s19, s18, 7")
    a.I("s_lshr_b32 s18, s18, 3")
    a.I("s_lshl_b32 s40, s17, 2")
    a.I("s_add_u32 s18, s18, s40")
    a.I("s_mov_b32 s41, 0")
    a.I("s_mul_i32 s42, s18, 6")
    a.I("s_cmp_ge_u32 s18, 11")
    a.I("s_cselect_b32 s41, 1, s41")
    a.I("s_cselect_b32 s40, 64, 0")
    a.I("s_cmp_ge_u32 s18, 21")
    a.I("s_cselect_b32 s41, 2, s41")
    a.I("s_cselect_b32 s40, 126, s40")
    a.I("s_sub_u32 s42, s42, s40")
    a.I("s_lshl_b32 s44, s19, 3")
    a.I("s_add_u32 s44, s44, s16")
    hl, b4, t1, t2 = 9, 10, 11, 12
    a.I(f"v_lshrrev_b32 {v(hl)}, 5, v0")
    a.I(f"v_bfe_u32 {v(b4)}, v0, 4, 1")
    a.I(f"v_lshrrev_b32 {v(t1)}, 3, v0")
    a.I(f"v_lshlrev_b32 {v(t1)}, 10, {v(t1)}")
    a.I("s_lshl_b32 s45, s44, 15")
    a.I(f"v_add_u32 {v(t1)}, s45, {v(t1)}")
    a.I(f"v_lshrrev_b32 {v(t2)}, 4, v0")
    a.I("v_and_b32 v13, 7, v0")
    a.I(f"v_xor_b32 {v(t2)}, {v(t2)}, v13")
    a.I(f"v_lshl_add_u32 v52, {v(t2)}, 4, {v(t1)}")
    a.I("v_xor_b32 v53, 64, v52")
    a.I(f"v_add_u32 v53, {8192 - 1024}, v53")
    a.I(f"v_add_u32 v54, {2 * (8192 - 1024)}, v52")
    a.I(f"v_add_u32 v55, {2 * (8192 - 1024)}, v53")
    a.I("v_and_b32 v13, 31, v0")
    a.I(f"v_bfe_u32 {v(t2)}, v0, 1, 3")
    a.I(f"v_xor_b32 {v(t2)}, {v(t2)}, {v(hl)}")
    a.I(f"v_lshlrev_b32 {v(t2)}, 4, {v(t2)}")
    a.I(f"v_lshl_add_u32 {v(t2)}, v13, 7, {v(t2)}")
    a.I("s_mul_i32 s46, s16, 12288")
    for t in range(4):
        a.I(f"v_xor_b32 {v(56 + t)}, {32 * t}, {v(t2)}")
    for t in range(4):
        a.I(f"v_add_u32 {v(56 + t)}, s46, {v(56 + t)}")
    a.I("v_lshrrev_b32 v2, 3, v0")
    a.I("v_lshlrev_b32 v2, 13, v2")
    a.I(f"v_lshlrev_b32 {v(t1)}, 2, {v(b4)}")
    a.I(f"v_and_b32 {v(t2)}, 7, v0")
    a.I(f"v_xor_b32 {v(t1)}, {v(t1)}, {v(t2)}")
    a.I(f"v_lshl_add_u32 v2, {v(t1)}, 4, v2")
    a.I("s_lshl_b32 s45, s16, 17")
    a.I("v_add_u32 v2, s45, v2")
    a.I(f"v_add_u32 v3, {65536 - 1024}, v2")
    a.I(f"v_bfe_u32 {v(t1)}, v0, 2, 2")
    a.I(f"v_lshl_add_u32 {v(t2)}, {v(hl)}, 3, {v(t1)}")
    a.I(f"v_lshlrev_b32 v4, 7, {v(t2)}")
    a.I(f"v_lshl_add_u32 v4, {v(b4)}, 5, v4")
    a.I(f"v_and_b32 {v(t2)}, 3, v0")
    a.I(f"v_lshl_add_u32 v4, {v(t2)}, 3, v4")
    a.I(f"v_bfe_u32 {v(t2)}, v0, 3, 1")
    a.I(f"v_lshl_add_u32 v4, {v(t2)}, 6, v4")
    a.I("v_xor_b32 v5, 64, v4")
    a.I("v_add_u32 v6, 0x10000, v4")
    a.I("v_add_u32 v7, 0x10000, v5")
    a.I("v_add_u32 v50, 0x20000, v4")
    a.I("v_add_u32 v51, 0x20000, v5")
    a.I("v_lshlrev_b32 v48, 4, v0")
    a.I("s_lshl_b32 s47, s16, 11")
    a.I("s_lshl_b32 s48, s42, 7")
    a.I("s_lshl_b32 s49, s44, 13")
    a.I("s_lshl_b32 s50, s42, 18")
    a.I("s_add_u32 s50, s50, s49")
    a.I("s_waitcnt lgkmcnt(0)")
    a.I("s_cmp_eq_u32 s41, 2")
    a.I("s_cselect_b32 s20, s4, s6")
    a.I("s_cselect_b32 s21, s5, s7")
    a.I("s_cselect_b32 s24, s8, s10")
    a.I("s_cselect_b32 s25, s9, s11")
    a.I(f"s_cselect_b32 s51, {hex(WS_Q)}, 0")
    a.I(f"s_cselect_b32 s52, {f32(QSCALE)}, 1.0")
    a.I(f"s_mov_b32 s22, {hex(2 * MB)}")
    a.I("s_mov_b32 s23, 0x20000")
    a.I(f"s_mov_b32 s26, {hex(4 * MB)}")
    a.I("s_mov_b32 s27, 0x20000")
    srd(a, 28, 14, 15, 16 * MB, add="s51")
    srd(a, 32, 12, 13, 4 * MB)
    srd(a, 36, 14, 15, 16 * MB, add=WS_V)
    srd(a, 56, 6, 7, 2 * MB)
    a.I("s_cmp_eq_u32 s18, 31")
    a.I(f"s_cbranch_scc1 {N}_D")
    a.I("s_cmp_eq_u32 s41, 1")
    a.I(f"s_cbranch_scc1 {N}_B")
    a.I("s_cmp_eq_u32 s18, 10")
    a.I(f"s_cbranch_scc1 {N}_C")

    AF, ACC, RING, PK = 64, 192, 8, 32
    LOOK = 6

    def body(passes, tag):
        vm, lg = VM(a), LG(a)
        st = Stamper(a, "qkv")
        st()
        NP = len(passes)
        NC = 4 * NP
        NM = 64 * NP
        restage = tag == "D"
        blk = {}
        free = [6, 7, 8, 9]
        nxt = [0]

        def dmaW():
            c = nxt[0]
            if c >= NC or not free:
                return False
            b = free.pop(0)
            blk[c] = b
            nxt[0] += 1
            pp, kc = divmod(c, 4)
            form, su, di = passes[pp]
            a.I(f"s_add_u32 m0, s47, {hex(b * 16384)}")
            if su is not None:
                a.I(f"s_mov_b32 s45, {hex((kc << 20) + su * 128)}")
            else:
                a.I(f"s_add_u32 s45, s48, {hex((kc << 20) + di * 128)}")
            sr = "s[32:35]" if form == "V" else "s[24:27]"
            vm.issue(f"buffer_load_dwordx4 v2, {sr}, s45 offen lds", ("W", c))
            vm.issue(f"buffer_load_dwordx4 v3, {sr}, s45 offen offset:1024 lds", ("W", c))
            return True

        def dmaA(j):
            sr = "s[56:59]" if (restage and j < 8) else "s[20:23]"
            a.I(f"s_add_u32 m0, s46, {hex((j % 3) * 4096)}")
            a.I(f"s_mov_b32 s45, {(j % 8) * 128}")
            for i in range(4):
                vm.issue(f"buffer_load_dwordx4 {v(52 + i)}, {sr}, s45 offen offset:{i * 1024} lds", ("A", j))

        def readA(j):
            vm.wait(("A", j))
            for t in range(4):
                lg.issue(f"ds_read_b128 {v(AF + 16 * (j % 8) + 4 * t, 4)}, {v(56 + t)} offset:{(j % 3) * 4096}", ("A", j))

        dmaW(); dmaA(0); dmaA(1); dmaW(); dmaA(2); dmaW(); dmaW()

        def reads(i):
            c, r = divmod(i, 16)
            t, cb = divmod(r, 2)
            b = blk[c]
            base = [4, 6, 50][b // 4] + cb
            off = (b % 4) * 16384 + t * 2048
            d = RING + 4 * (i % LOOK)
            lg.issue(f"ds_read_b64_tr_b16 {v(d, 2)}, {v(base)} offset:{off}", ("W", i))
            lg.issue(f"ds_read_b64_tr_b16 {v(d + 2, 2)}, {v(base)} offset:{off + 512}", ("W", i))

        def sync(c):
            vm.wait(("W", c))
            a.I("s_barrier")
            if c >= 2:
                free.append(blk[c - 2])
            if c == (10 if restage else 5):
                free.extend([0, 1, 2, 3, 4, 5])
            n = 0
            while n < 2 and dmaW():
                n += 1

        def epi(pp):
            out = []
            form, su, di = passes[pp]
            acc = ACC + 32 * (pp & 1)
            so = 54 + (pp & 1)
            if su is not None:
                out.append(lambda: a.I(f"s_add_u32 s{so}, s49, {hex((su >> 1) * 512 * 1024 + (su & 1) * 4096)}"))
            else:
                out.append(lambda: a.I(f"s_add_u32 s{so}, s50, {hex((di >> 1) * 512 * 1024 + (di & 1) * 4096)}"))
            sr = "s[36:39]" if form == "V" else "s[28:31]"
            for cb in range(2):
                for h in range(2):
                    q = 2 * cb + h
                    for i in range(4):
                        src = acc + 16 * cb + 8 * h + 2 * i
                        if form == "K" and tag in "AD":
                            out.append(lambda src=src: a.I(f"v_mul_f32 {v(src)}, s52, {v(src)}"))
                            out.append(lambda src=src: a.I(f"v_mul_f32 {v(src + 1)}, s52, {v(src + 1)}"))
                        out.append(lambda src=src, q=q, i=i: a.I(
                            f"v_cvt_pk_bf16_f32 {v(PK + 4 * q + i)}, {v(src)}, {v(src + 1)}"))
                    out.append(lambda q=q: vm.issue(
                        f"buffer_store_dwordx4 {v(PK + 4 * q, 4)}, v48, {sr}, s{so} offen offset:{q * 1024}{SP}", ("S", pp)))
            return out

        st()
        readA(0)
        sync(0)
        st()
        for i in range(LOOK - 2):
            reads(i)
        lg.wait(("A", 0))
        for i in range(LOOK - 2, LOOK):
            reads(i)
        pend = []
        for i in range(NM):
            c, r = divmod(i, 16)
            t, cb = divmod(r, 2)
            pp, kc = divmod(c, 4)
            k = 8 * kc + t
            if i % 2 == 0:
                lg.wait([("W", i), ("W", i + 1), ("A", i // 8)])
            if pp == 0 and i % 8 == 0 and i // 8 + 3 < (11 if restage else 8):
                dmaA(i // 8 + 3)
            if restage and 72 < i <= 128 + 8 and i % 8 == 4:
                jj = 8 + (i - 76) // 8
                lg.wait(("A", jj))
                if jj + 3 < 16:
                    dmaA(jj + 3)
            acc = v(ACC + 32 * (pp & 1) + 16 * cb, 16)
            wf = v(RING + 4 * (i % LOOK), 4)
            af = v(AF + 4 * k, 4)
            cin = "0" if k == 0 else acc
            if passes[pp][0] == "V":
                a.I(f"{MF} {acc}, {af}, {wf}, {cin}")
            else:
                a.I(f"{MF} {acc}, {wf}, {af}, {cin}")
            j = i + LOOK
            if j < NM:
                if j % 16 == 0:
                    sync(j // 16)
                if j < 64 and j % 8 == 0:
                    readA(j // 8)
                reads(j)
            if restage and 64 <= i < 128 and i % 8 == 7:
                readA(8 + (i - 64) // 8)
            if i % 64 == 63:
                st()
            if i % 64 == 6 and pp >= 1:
                pend = epi(pp - 1)
            if pend:
                pend.pop(0)()
        a.I("s_nop 11")
        for f in epi(NP - 1):
            f()
        st.dump(16, 14)
        a.I("s_endpgm")

    body([("K", None, i) for i in range(6)], "A")
    a.label(N + "_B")
    body([("V", None, i) for i in range(6)], "B")
    a.label(N + "_C")
    body([("K", None, i) for i in range(4)] + [("V", 0, 0), ("V", 1, 0)], "C")
    a.label(N + "_D")
    body([("V", 62, 0), ("V", 63, 0)] + [("K", None, i) for i in range(4)], "D")
    kend(a, N)
    return a, N, (256, 512, 163840)


def gen_attn(withb2=False):
    b2tail = withb2 and os.environ.get("B2MODE", "start") == "tail"
    if b2tail:
        withb2 = False
    a = Asm()
    N = "attn_kernel"
    O, Q, S, P, NEGM, RING = 64, 128, [160, 176], [192, 200], 208, 224
    L16, VKA, VVA, VL, VLS, E, VDA, VDB, QREL, T0, T1, T2, NINF = 1, 2, 3, 4, 5, 6, 10, 11, 12, 13, 14, 15, 48
    PK = 16
    EE = 50
    sW, sH, sP, sN, sC, sPH, sTHR, sBAR, sKO, sKM, sVM, sQS = 16, 17, 18, 19, 20, 21, 40, 41, 42, 43, 44, 45
    kstart(a, N, 256)
    a.I("s_load_dwordx2 s[4:5], s[0:1], 88")
    a.I("s_load_dwordx2 s[14:15], s[0:1], 40")
    a.I("v_lshrrev_b32 v1, 6, v0")
    a.I("v_and_b32 v0, 63, v0")
    a.I("s_and_b32 s6, s2, 7")
    a.I(f"v_readfirstlane_b32 {s(sW)}, v1")
    a.I("s_lshr_b32 s7, s2, 3")
    a.I("s_and_b32 s8, s7, 3")
    a.I("s_lshl_b32 s6, s6, 2")
    a.I(f"s_add_u32 {s(sH)}, s6, s8")
    a.I(f"s_lshr_b32 {s(sP)}, s7, 2")
    a.I(f"s_lshl_b32 s6, {s(sP)}, 2")
    a.I(f"s_sub_u32 s7, 60, s6")
    a.I(f"s_add_u32 s7, s7, {s(sW)}")
    a.I(f"s_add_u32 s8, s6, 7")
    a.I(f"s_sub_u32 s8, s8, {s(sW)}")
    a.I(f"s_cmp_ge_u32 {s(sW)}, 4")
    a.I(f"s_cselect_b32 {s(sQS)}, s8, s7")
    a.I(f"s_add_u32 {s(sN)}, {s(sQS)}, 1")
    a.I("s_sub_u32 s9, 64, s6")
    a.I(f"s_lshr_b32 {s(sBAR)}, s9, 1")
    a.I("s_lshl_b32 s9, s9, 13")
    a.I(f"s_lshl_b32 s10, {s(sH)}, 19")
    a.I(f"v_lshlrev_b32 {v(L16)}, 4, v0")
    a.I(f"s_and_b32 s11, {s(sW)}, 3")
    a.I("s_lshl_b32 s11, s11, 11")
    a.I(f"v_add_u32 {v(VDA)}, s11, {v(L16)}")
    a.I(f"v_add_u32 {v(VDB)}, 0x2000, {v(VDA)}")
    a.I(f"v_and_b32 {v(T0)}, 31, v0")
    a.I(f"v_lshrrev_b32 {v(T1)}, 5, v0")
    a.I(f"v_lshlrev_b32 {v(T1)}, 2, {v(T1)}")
    a.I(f"v_sub_u32 {v(QREL)}, {v(T0)}, {v(T1)}")
    a.I(f"v_mov_b32 {v(NINF)}, 0xff800000")
    a.I(f"s_mov_b32 {s(sTHR)}, {f32(2.0 ** 14)}")
    FLG = 7 * 16384 + 8192
    if withb2:
        a.I(f"v_mov_b32 v124, {FLG}")
        for i in range(4):
            a.I(f"v_mov_b32 {v(56 + i)}, 0")
        a.I("ds_write_b128 v124, v[56:59]")
        a.I("s_and_b32 s60, s2, 7")
        a.I("s_lshl_b32 s60, s60, 5")
        a.I("s_lshr_b32 s61, s2, 3")
        a.I("s_add_u32 s60, s60, s61")
        a.I("s_cmp_eq_u32 s2, 248")
        a.I("s_cselect_b32 s61, 4, 2")
        a.I(f"s_cmp_lt_u32 {s(sW)}, s61")
        a.I("s_cselect_b32 s23, 1, 0")
        a.I(f"s_cmp_ge_u32 {s(sW)}, 2")
        a.I("s_cselect_b32 s60, 0x100, s60")
        a.I(f"s_mov_b32 s61, {131072}")
        a.I(f"s_cselect_b32 s61, {131072 + 16384}, s61")
        a.I(f"s_and_b32 s67, {s(sW)}, 1")
    a.I("s_waitcnt lgkmcnt(0)")
    srd(a, 24, 4, 5, "s9", add="s10")
    a.I(f"s_add_u32 s12, s10, {hex(WS_V - 3 * 8192)}")
    a.I(f"s_add_u32 s13, s9, {3 * 8192}")
    srd(a, 28, 4, 5, "s13", add="s12")
    srd(a, 32, 4, 5, 16 * MB, add=WS_Q)
    srd(a, 36, 4, 5, 16 * MB, add=WS_CTX)
    st = Stamper(a, "attn")
    st()
    a.I(f"s_lshl_b32 s12, {s(sQS)}, 18")
    a.I(f"s_lshl_b32 s13, {s(sH)}, 13")
    a.I("s_add_u32 s12, s12, s13")
    a.I("s_add_u32 s13, s12, 4096")

    def q_loads(vm=None):
        for t in range(8):
            x = f"buffer_load_dwordx4 {v(Q + 4 * t, 4)}, {v(L16)}, s[32:35], s{12 + t // 4} offen offset:{(t % 4) * 1024}{os.environ.get('QP', '')}"
            vm.issue(x, "Q") if vm else a.I(x)

    if withb2:
        a.I("s_cmp_eq_u32 s23, 0")
        a.I(f"s_cbranch_scc1 {N}_nob2l")
        b2_loads(a, VM(a), 60, 67, L16, 16, 32, 62, 48)
        q_loads()
        a.label(f"{N}_nob2l")
        a.I("s_barrier")
    a.I(f"s_lshl_b32 s46, {s(sQS)}, 18")
    a.I(f"s_lshl_b32 s6, {s(sH)}, 13")
    a.I("s_add_u32 s46, s46, s6")
    a.I("s_add_u32 s47, s46, 4096")
    a.I(f"s_mov_b32 {s(sKM)}, s11")
    a.I(f"s_mov_b32 {s(sKO)}, 0")

    def dma_list(withV=True):
        l = []
        if withV:
            l += [f"s_mov_b32 m0, {s(sVM)}", None,
                  f"buffer_load_dwordx4 {v(VDA)}, s[28:31], {s(sKO)} offen lds",
                  f"buffer_load_dwordx4 {v(VDA)}, s[28:31], {s(sKO)} offen offset:1024 lds",
                  f"s_add_u32 m0, {s(sVM)}, 0x4000", None,
                  f"buffer_load_dwordx4 {v(VDB)}, s[28:31], {s(sKO)} offen lds",
                  f"buffer_load_dwordx4 {v(VDB)}, s[28:31], {s(sKO)} offen offset:1024 lds"]
        l += [f"s_mov_b32 m0, {s(sKM)}", f"s_add_u32 {s(sVM)}, {s(sKM)}, 0x2000",
              f"buffer_load_dwordx4 {v(VDA)}, s[24:27], {s(sKO)} offen lds",
              f"buffer_load_dwordx4 {v(VDA)}, s[24:27], {s(sKO)} offen offset:1024 lds",
              f"s_add_u32 m0, {s(sKM)}, 0x4000", f"s_add_u32 {s(sKM)}, {s(sKM)}, 0x8000",
              f"buffer_load_dwordx4 {v(VDB)}, s[24:27], {s(sKO)} offen lds",
              f"buffer_load_dwordx4 {v(VDB)}, s[24:27], {s(sKO)} offen offset:1024 lds",
              f"s_and_b32 {s(sKM)}, {s(sKM)}, 0x1ffff",
              f"s_add_u32 {s(sKO)}, {s(sKO)}, 0x4000"]
        return l

    def emit_dma(withV=True):
        for x in dma_list(withV):
            if "dma" in os.environ.get("ADROP", "") and x and x.endswith(" lds"):
                continue
            a.I(x or "s_nop 0")

    def mask_negm():
        for j in range(16):
            a.I(f"v_cmp_le_i32 vcc, {(j & 3) + 8 * (j >> 2)}, {v(QREL)}")
            a.I("s_nop 1")
            a.I(f"v_cndmask_b32 {v(NEGM + j)}, {v(NINF)}, {v(NEGM + j)}, vcc")
        a.I("s_nop 1")

    def rowmax(Sx, dst):
        a.I(f"v_max3_f32 {v(dst)}, {v(Sx)}, {v(Sx + 1)}, {v(Sx + 2)}")
        for j in range(3, 15, 2):
            a.I(f"v_max3_f32 {v(dst)}, {v(dst)}, {v(Sx + j)}, {v(Sx + j + 1)}")
        a.I(f"v_max_f32 {v(dst)}, {v(dst)}, {v(Sx + 15)}")
        a.I(f"v_mov_b32 {v(T2)}, {v(dst)}")
        a.I("s_nop 1")
        a.I(f"v_permlane32_swap_b32 {v(dst)}, {v(T2)}")
        a.I(f"v_max_f32 {v(dst)}, {v(dst)}, {v(T2)}")

    def role(ld):
        R = "S" if ld else "L"
        if withb2 and not ld:
            a.I("s_cmp_eq_u32 s23, 0")
            a.I(f"s_cbranch_scc1 {N}_b2no")
            a.I(f"s_and_b32 s67, {s(sW)}, 2")
            a.I("s_lshl_b32 s67, s67, 2")
            a.I(f"s_add_u32 s67, s67, {FLG}")
            a.I("v_mov_b32 v124, s67")
            a.I(f"s_bitcmp1_b32 {s(sW)}, 0")
            a.I(f"s_cbranch_scc1 {N}_b2w1")
            rmap = [56, 57, 58, 59, 60, 61, 62, 120, 63, 16, 24, 32, 40, 64, 72, 80, 88, 104, 160, 176, 192, 208, 224]
            for own in range(2):
                vmb = VM(a)
                if own:
                    a.label(f"{N}_b2w1")
                ex = [0]

                def pair_sync():
                    ex[0] += 1
                    lab = a.uid(f"{N}_spin")
                    a.I(f"v_mov_b32 v125, {ex[0]}")
                    a.I(f"ds_write_b32 v124, v125 offset:{4 * own}")
                    a.label(lab)
                    a.I(f"ds_read_b32 v126, v124 offset:{4 * (1 - own)}")
                    a.I("s_waitcnt lgkmcnt(0)")
                    a.I("v_readfirstlane_b32 s67, v126")
                    a.I("s_nop 0")
                    a.I(f"s_cmp_lt_u32 s67, {ex[0]}")
                    a.I(f"s_cbranch_scc1 {lab}")
                b2_body(a, own, 60, 61, pair_sync, vmb, S0=62, SR=48, slice_len=10 ** 9, rmap=rmap, preloaded=True,
                        st=st if os.environ.get("B2ST") else (lambda: None))
                if os.environ.get("B2ST"):
                    st()
                    st.n -= 5 * (1 - own)
                assert vmb.q[-5:] == ["Q", "Z", "Z", "Z", "Z"] or "Q" not in vmb.q
                a.I(f"s_branch {N}_b2done")
            a.label(f"{N}_b2no")
        def inits(tag):
            for j in range(16):
                a.I(f"v_mov_b32 {v(NEGM + j)}, 0")
            a.I(f"s_cmp_lg_u32 {s(sN)}, 1")
            a.I(f"s_cbranch_scc1 {N}_{R}_nm1{tag}")
            mask_negm()
            a.label(f"{N}_{R}_nm1{tag}")
            for j in range(64):
                a.I(f"v_mov_b32 {v(O + j)}, 0")

        inits("a")
        q_loads()
        if ld:
            emit_dma(withV=False)
            emit_dma()
        if withb2 and not ld:
            a.I("s_waitcnt vmcnt(0)")
            a.I(f"s_branch {N}_b2join")
            a.label(f"{N}_b2done")
            inits("b")
            a.I("s_waitcnt vmcnt(4)")
            a.label(f"{N}_b2join")
        a.I(f"v_mov_b32 {v(VL)}, 0")
        a.I(f"v_mov_b32 {v(VLS)}, 0")
        a.I(f"v_add_u32 {v(VKA)}, 0x8000, {v(L16)}")
        a.I(f"v_mov_b32 {v(VVA)}, {v(L16)}")
        if os.environ.get("PRIO") and not ld:
            a.I(f"s_setprio {os.environ['PRIO']}")
        if ld or not withb2:
            a.I(f"s_waitcnt vmcnt({6 if ld else 0})")
        a.I("s_barrier")
        st()
        for t in range(8):
            a.I(f"ds_read_b128 {v(RING + 4 * t, 4)}, {v(L16)} offset:{t * 1024}")
        dl = [x or "s_nop 0" for x in dma_list()] if ld else []
        for t in range(8):
            if t % 4 == 0:
                a.I("s_waitcnt lgkmcnt(4)")
            a.I(f"{MF} {v(S[0], 16)}, {v(RING + 4 * t, 4)}, {v(Q + 4 * t, 4)}, {v(NEGM if t == 0 else S[0], 16)}")
            a.I(f"ds_read_b128 {v(RING + 4 * t, 4)}, {v(L16)} offset:{16384 + t * 1024}")
            for x in dl[:3]:
                a.I(x)
            dl = dl[3:]
        assert not dl
        if ld:
            emit_dma()
        else:
            a.I("s_nop 11")
        rowmax(S[0], T0)
        for j in range(16):
            a.I(f"v_sub_f32 {v(S[0] + j)}, {v(S[0] + j)}, {v(T0)}")
        for j in range(16):
            a.I(f"v_sub_f32 {v(NEGM + j)}, 0, {v(T0)}")
        a.I(f"s_mov_b32 {s(sPH)}, 0")
        a.I(f"s_sub_u32 {s(sC)}, {s(sN)}, 3")
        a.I(f"s_cbranch_scc0 {N}_{R}_first")
        a.I(f"s_mov_b32 {s(sPH)}, 3")
        a.I(f"s_mov_b32 {s(sC)}, 0")
        a.I(f"s_cmp_lg_u32 {s(sN)}, 2")
        a.I(f"s_cbranch_scc1 {N}_{R}_first")
        a.I(f"s_mov_b32 {s(sPH)}, 1")
        mask_negm()
        a.label(f"{N}_{R}_first")
        e = lambda j: v(EE + (j % 6))
        if ld:
            a.I("s_waitcnt vmcnt(14)")
        a.I("s_waitcnt lgkmcnt(0)")
        a.I("s_barrier")
        a.I(f"s_sub_u32 {s(sBAR)}, {s(sBAR)}, 1")
        dl = [x or "s_nop 0" for x in dma_list()] if ld else []
        for pos in range(8):
            r = v(RING + 4 * pos, 4)
            a.I(f"{MF} {v(S[1], 16)}, {r}, {v(Q + 4 * pos, 4)}, {v(NEGM if pos == 0 else S[1], 16)}")
            a.I(f"ds_read_b128 {r}, {v(VKA)} offset:{pos * 1024}")
            a.I(f"v_exp_f32 {e(2 * pos)}, {v(S[0] + 2 * pos)}")
            a.I(f"v_exp_f32 {e(2 * pos + 1)}, {v(S[0] + 2 * pos + 1)}")
            a.many(dl[:3] or ["s_nop 0"])
            dl = dl[3:]
            a.I(f"v_add_f32 {v(VLS)}, {v(VLS)}, {e(2 * pos)}")
            a.I(f"v_add_f32 {v(VLS)}, {v(VLS)}, {e(2 * pos + 1)}")
            a.I(f"v_cvt_pk_bf16_f32 {v(P[0] + pos)}, {e(2 * pos)}, {e(2 * pos + 1)}")
        assert not dl
        a.I("s_nop 4")
        a.I(f"s_sub_u32 {s(sC)}, {s(sC)}, 1")
        a.I(f"s_branch {N}_{R}_back0")

        def iteration(par):
            gaps = [[] for _ in range(16)]
            pre = [[] for _ in range(16)]
            mf = []
            Sc, Sn, Pc, Pp = S[par], S[1 - par], P[par], P[1 - par]
            e = lambda j: v(EE + (j % 6))
            for pos in range(16):
                r = v(RING + 4 * (pos & 7), 4)
                if pos < 8:
                    mf.append(f"{MF} {v(Sn, 16)}, {r}, {v(Q + 4 * pos, 4)}, {v(NEGM if pos == 0 else Sn, 16)}")
                    ks, dt = divmod(pos, 4)
                    gaps[pos].append(f"ds_read_b128 {r}, {v(VVA)} offset:{8192 + par * 16384 + (2 * dt + ks) * 1024}")
                else:
                    ks, dt = divmod(pos - 8, 4)
                    mf.append(f"{MF} {v(O + 16 * dt, 16)}, {r}, {v(Pp + 4 * ks, 4)}, {v(O + 16 * dt, 16)}")
                    gaps[pos].append(f"ds_read_b128 {r}, {v(VKA)} offset:{par * 16384 + (pos - 8) * 1024}")
                if pos % 4 == 0:
                    pre[pos].append("s_waitcnt lgkmcnt(4)")
            early = int(os.environ.get("EARLY", "1"))
            if early:
                eg = [0, 0, 1, 2, 2, 3, 4, 5, 6, 7, 8, 9, 10, 11, 12, 13]
            else:
                eg = [0] + list(range(15))
            gaps[0].append(f"v_add_f32 {v(VL)}, {v(VL)}, {v(VLS)}")
            for j in range(16):
                gaps[eg[j]].append(f"v_exp_f32 {e(j)}, {v(Sc + j)}")
            for j in range(1, 16):
                g = eg[j] + 1
                if j == 1:
                    gaps[g].append(f"v_add_f32 {v(VLS)}, {e(0)}, {e(1)}")
                else:
                    gaps[g].append(f"v_add_f32 {v(VLS)}, {v(VLS)}, {e(j)}")
                if j % 2 == 1:
                    gaps[g + (1 if (early and j == 15) else 0)].append(f"v_cvt_pk_bf16_f32 {v(Pc + j // 2)}, {e(j - 1)}, {e(j)}")
            if par == 0:
                gaps[2].append(f"v_add_u32 {v(VKA)}, 0x8000, {v(VKA)}")
                gaps[6].append(f"v_and_b32 {v(VKA)}, 0x1ffff, {v(VKA)}")
                bar = ["s_barrier", f"s_sub_u32 {s(sBAR)}, {s(sBAR)}, 1"]
                if ld:
                    bar = ["s_waitcnt vmcnt(14)"] + bar
                gaps[4] = bar + gaps[4]
                if ld:
                    d = [x for x in dma_list() if x]
                    m0a, l1, l2, m0b, l3, l4, m0c, svm, l5, l6, m0d, skm, l7, l8, sand, sko = d
                    gaps[5] = [m0a] + gaps[5] + [l1]
                    gaps[6] += [l2, m0b]
                    gaps[7] += [l3]
                    gaps[8] += [l4, m0c]
                    gaps[9] += [svm, l5]
                    gaps[10] += [l6, m0d]
                    gaps[11] += [l7]
                    gaps[12] += [l8, skm]
                    gaps[13] += [sand, sko]
            else:
                gaps[10].append(f"v_mov_b32 {v(VVA)}, {v(VKA)}")
            gaps[14].append(f"s_sub_u32 {s(sC)}, {s(sC)}, 1")
            gaps[14 if early else 15].append(f"v_cmp_nge_f32 vcc, {s(sTHR)}, {v(VLS)}")
            drop = os.environ.get("ADROP", "").split(",")
            for pos in range(16):
                if "bar" in drop:
                    gaps[pos] = [x for x in gaps[pos] if x != "s_barrier"]
                if "dma" in drop:
                    gaps[pos] = [x for x in gaps[pos] if not x.endswith(" lds")]
                if "rd" in drop:
                    gaps[pos] = [x for x in gaps[pos] if not x.startswith("ds_read")]
                if "valu" in drop:
                    gaps[pos] = [x for x in gaps[pos] if not (x.startswith("v_exp") or x.startswith("v_cvt") or x.startswith("v_add_f32"))]
                if "e64" in drop:
                    gaps[pos] = [x.replace("v_exp_f32 ", "v_exp_f32_e64 ").replace("v_add_f32 ", "v_add_f32_e64 ") for x in gaps[pos]]
                a.many(pre[pos])
                a.I(mf[pos])
                a.many(gaps[pos])
            if "br" not in drop:
                a.I(f"s_cbranch_vccnz {N}_{R}_slow{par}")
            a.label(f"{N}_{R}_back{par}")
            a.I(f"s_cbranch_scc1 {N}_{R}_spec{par}")

        if os.environ.get("PRIO") and not ld:
            pass
        if os.environ.get("AALIGN"):
            a.raw(".p2align 6")
            for _ in range(int(os.environ["AALIGN"]) - 1):
                a.I("s_nop 0")
        a.label(f"{N}_{R}_it0")
        iteration(0)
        a.label(f"{N}_{R}_it1")
        iteration(1)
        a.I(f"s_branch {N}_{R}_it0")

        def svc():
            lab = a.uid(f"{N}_{R}_svc")
            a.I(f"s_cmp_eq_u32 {s(sBAR)}, 0")
            a.I(f"s_cbranch_scc1 {lab}")
            if ld:
                a.I("s_waitcnt vmcnt(14)")
            if "bar" not in os.environ.get("ADROP", ""):
                a.I("s_barrier")
            a.I(f"s_sub_u32 {s(sBAR)}, {s(sBAR)}, 1")
            if ld:
                emit_dma()
            a.label(lab)

        for par in range(2):
            Sc, Sn, Pc = S[par], S[1 - par], P[par]
            a.label(f"{N}_{R}_slow{par}")
            a.I("s_cselect_b32 s22, 1, 0")
            a.I("s_nop 15")
            rowmax(Sc, T0)
            a.I(f"v_max_f32 {v(T0)}, 0, {v(T0)}")
            a.I(f"v_exp_f32_e64 {v(T1)}, -{v(T0)}")
            for j in range(16):
                a.I(f"v_sub_f32 {v(NEGM + j)}, {v(NEGM + j)}, {v(T0)}")
                a.I(f"v_sub_f32 {v(Sc + j)}, {v(Sc + j)}, {v(T0)}")
                a.I(f"v_sub_f32 {v(Sn + j)}, {v(Sn + j)}, {v(T0)}")
            for j in range(64):
                a.I(f"v_mul_f32 {v(O + j)}, {v(O + j)}, {v(T1)}")
            a.I(f"v_mul_f32 {v(VL)}, {v(VL)}, {v(T1)}")
            a.I(f"v_mov_b32 {v(VLS)}, 0")
            for i in range(8):
                a.I(f"v_exp_f32 {v(E)}, {v(Sc + 2 * i)}")
                a.I(f"v_exp_f32 {v(E + 1)}, {v(Sc + 2 * i + 1)}")
                a.I("s_nop 0")
                a.I(f"v_add_f32 {v(VLS)}, {v(VLS)}, {v(E)}")
                a.I(f"v_add_f32 {v(VLS)}, {v(VLS)}, {v(E + 1)}")
                a.I(f"v_cvt_pk_bf16_f32 {v(Pc + i)}, {v(E)}, {v(E + 1)}")
            a.I(f"s_cmp_eq_u32 {s(sPH)}, 2")
            a.I(f"s_cbranch_scc1 {N}_{R}_lback{par}")
            a.I("s_cmp_lg_u32 s22, 0")
            a.I(f"s_branch {N}_{R}_back{par}")
            a.label(f"{N}_{R}_spec{par}")
            a.I(f"s_cmp_eq_u32 {s(sPH)}, 1")
            a.I(f"s_cbranch_scc1 {N}_{R}_last{1 - par}")
            if par == 0:
                a.I(f"s_cmp_eq_u32 {s(sPH)}, 3")
                a.I(f"s_cbranch_scc1 {N}_{R}_exit0")
            a.I(f"s_mov_b32 {s(sPH)}, 1")
            a.I(f"s_mov_b32 {s(sC)}, 0")
            mask_negm()
            a.I(f"s_branch {N}_{R}_it{1 - par}")
            Pp = P[1 - par]
            a.label(f"{N}_{R}_last{par}")
            a.I(f"s_mov_b32 {s(sPH)}, 2")
            a.I("s_waitcnt lgkmcnt(0)")
            voff = lambda pos: (2 * (pos % 4) + pos // 4) * 1024
            for pos in range(8):
                a.I(f"ds_read_b128 {v(RING + 4 * pos, 4)}, {v(VVA)} offset:{8192 + par * 16384 + voff(pos)}")
            a.I(f"v_add_f32 {v(VL)}, {v(VL)}, {v(VLS)}")
            a.I(f"v_mov_b32 {v(VLS)}, 0")
            dl = []
            if par == 0:
                if ld:
                    a.I("s_waitcnt vmcnt(14)")
                a.I("s_barrier")
                a.I(f"s_sub_u32 {s(sBAR)}, {s(sBAR)}, 1")
                dl = [x or "s_nop 0" for x in dma_list()] if ld else []
            for pos in range(8):
                ks, dt = divmod(pos, 4)
                a.I(f"v_exp_f32 {e(2 * pos)}, {v(Sc + 2 * pos)}")
                a.I(f"v_exp_f32 {e(2 * pos + 1)}, {v(Sc + 2 * pos + 1)}")
                a.I("s_waitcnt lgkmcnt(7)")
                a.I(f"{MF} {v(O + 16 * dt, 16)}, {v(RING + 4 * pos, 4)}, {v(Pp + 4 * ks, 4)}, {v(O + 16 * dt, 16)}")
                if par == 0:
                    a.I(f"ds_read_b128 {v(RING + 4 * pos, 4)}, {v(VVA)} offset:{8192 + 16384 + voff(pos)}")
                else:
                    a.I(f"ds_read_b128 {v(RING + 4 * pos, 4)}, {v(VKA)} offset:{8192 + voff(pos)}")
                a.I(f"v_add_f32 {v(VLS)}, {v(VLS)}, {e(2 * pos)}")
                a.I(f"v_add_f32 {v(VLS)}, {v(VLS)}, {e(2 * pos + 1)}")
                a.I(f"v_cvt_pk_bf16_f32 {v(Pc + pos)}, {e(2 * pos)}, {e(2 * pos + 1)}")
                a.many(dl[:3])
                dl = dl[3:]
            assert not dl
            a.I(f"v_cmp_nge_f32 vcc, {s(sTHR)}, {v(VLS)}")
            a.I(f"s_cbranch_vccnz {N}_{R}_slow{par}")
            a.label(f"{N}_{R}_lback{par}")
            if par == 0:
                a.I(f"s_branch {N}_{R}_fin0")
                a.label(f"{N}_{R}_exit0")
                a.I("s_waitcnt lgkmcnt(0)")
                for pos in range(8):
                    a.I(f"ds_read_b128 {v(RING + 4 * pos, 4)}, {v(VVA)} offset:{8192 + 16384 + voff(pos)}")
                a.label(f"{N}_{R}_fin0")
            a.I(f"v_add_f32 {v(VL)}, {v(VL)}, {v(VLS)}")
            for pos in range(8):
                ks, dt = divmod(pos, 4)
                a.I(f"s_waitcnt lgkmcnt({7 - pos})")
                a.I(f"{MF} {v(O + 16 * dt, 16)}, {v(RING + 4 * pos, 4)}, {v(Pc + 4 * ks, 4)}, {v(O + 16 * dt, 16)}")
            if par == 0:
                a.I(f"s_branch {N}_{R}_epi")
        a.label(f"{N}_{R}_epi")
        st()
        svc()
        if ld and (withb2 or b2tail):
            a.I(f"s_and_b32 s53, {s(sW)}, 3")
            code_touch(a, "l3_kernel", 53, 48, EE + 2, nw_log=2)
            srd(a, 48, 4, 5, 64 * 128, add=WS_FLAG)
            a.I("s_lshl_b32 s52, s2, 7")
            a.I(f"v_lshlrev_b32 {v(EE)}, 2, v0")
            a.I(f"v_mov_b32 {v(EE + 1)}, 0")
            a.I("s_mov_b64 exec, 15")
            a.I(f"buffer_store_dword {v(EE + 1)}, {v(EE)}, s[48:51], s52 offen")
            a.I("s_mov_b64 exec, -1")
        a.I(f"v_mov_b32 {v(T2)}, {v(VL)}")
        a.I("s_nop 1")
        a.I(f"v_permlane32_swap_b32 {v(VL)}, {v(T2)}")
        a.I(f"v_add_f32 {v(VL)}, {v(VL)}, {v(T2)}")
        a.I(f"v_rcp_f32 {v(T0)}, {v(VL)}")
        a.I("s_nop 7")
        for dt in range(4):
            for h in range(2):
                q = 2 * dt + h
                for i in range(4):
                    src = O + 16 * dt + 8 * h + 2 * i
                    a.I(f"v_mul_f32 {v(src)}, {v(src)}, {v(T0)}")
                    a.I(f"v_mul_f32 {v(src + 1)}, {v(src + 1)}, {v(T0)}")
                    a.I(f"v_cvt_pk_bf16_f32 {v(PK + 4 * q + i)}, {v(src)}, {v(src + 1)}")
                a.I(f"buffer_store_dwordx4 {v(PK + 4 * q, 4)}, {v(L16)}, s[36:39], s{46 + q // 4} offen offset:{(q % 4) * 1024}{SP}")
            if dt == 1:
                svc()
        if ld and b2tail:
            a.I(f"s_lshl_b32 s60, {s(sH)}, 2")
            a.I(f"s_add_u32 s60, s60, {s(sP)}")
            a.I("s_lshl_b32 s60, s60, 1")
            a.I(f"s_bfe_u32 s61, {s(sW)}, 0x10001")
            a.I("s_add_u32 s60, s60, s61")
            a.I(f"s_cmp_lt_u32 {s(sP)}, 4")
            a.I(f"s_cbranch_scc1 {N}_b2go")
            a.I("s_cmp_lg_u32 s60, 8")
            a.I(f"s_cbranch_scc1 {N}_{R}_tail")
            a.I("s_movk_i32 s60, 0x100")
            a.label(f"{N}_b2go")
            a.I("s_lshl_b32 s61, s61, 14")
            a.I(f"s_add_u32 s61, s61, {131072}")
            a.I(f"s_lshl_b32 s62, {s(sP)}, 2")
            a.I("s_sub_u32 s62, 28, s62")
            a.label(f"{N}_b2al")
            a.I(f"s_cmp_le_u32 {s(sBAR)}, s62")
            a.I(f"s_cbranch_scc1 {N}_b2st")
            a.I("s_waitcnt vmcnt(14)")
            a.I("s_barrier")
            a.I(f"s_sub_u32 {s(sBAR)}, {s(sBAR)}, 1")
            emit_dma()
            a.I(f"s_branch {N}_b2al")
            a.label(f"{N}_b2st")
            a.I(f"s_bitcmp1_b32 {s(sW)}, 0")
            a.I(f"s_cbranch_scc1 {N}_b2w1")
            for own in range(2):
                vmb = VM(a)
                nsv = [0]

                def svcb():
                    nsv[0] += 1
                    a.I("s_waitcnt vmcnt(14)")
                    vmb.q = vmb.q[-14:]
                    a.I("s_barrier")
                    a.I(f"s_sub_u32 {s(sBAR)}, {s(sBAR)}, 1")
                    for x in dma_list():
                        if x and x.startswith("buffer"):
                            vmb.issue(x, "dma")
                        else:
                            a.I(x or "s_nop 0")
                if own:
                    a.label(f"{N}_b2w1")
                b2_body(a, own, 60, 61, svcb, vmb, R0=16, S0=62, SR=48, slice_len=int(os.environ.get("SLICE", "90")))
                assert nsv[0] <= 12, nsv
                print("b2 svc slices", nsv[0])
                if not own:
                    a.I(f"s_branch {N}_{R}_tail")
        if ld:
            WT = int(os.environ.get("WOT", "0"))
            if withb2 and WT:
                srd(a, 48, 4, 5, 4 * MB, add=WS_WO)
                a.I("s_lshr_b32 s52, s2, 3")
                a.I("s_lshl_b32 s52, s52, 17")
                a.I("s_lshl_b32 s53, s11, 4")
                a.I("s_add_u32 s52, s52, s53")
                a.I("s_add_u32 s53, s52, 0x8000")
                a.I(f"v_lshlrev_b32 {v(EE)}, 7, v0")
            a.label(f"{N}_{R}_tail")
            if withb2 and WT:
                a.I(f"s_cmp_gt_u32 {s(sBAR)}, {WT}")
                a.I(f"s_cbranch_scc1 {N}_notouch")
                a.label(f"{N}_touch")
                a.I("s_cmp_ge_u32 s52, s53")
                a.I(f"s_cbranch_scc1 {N}_notouch")
                a.I(f"buffer_load_dword {v(EE + 1)}, {v(EE)}, s[48:51], s52 offen")
                a.I("s_add_u32 s52, s52, 0x2000")
                a.I(f"s_cmp_eq_u32 {s(sBAR)}, 0")
                a.I(f"s_cbranch_scc1 {N}_touch")
                a.label(f"{N}_notouch")
            a.I(f"s_cmp_eq_u32 {s(sBAR)}, 0")
            a.I(f"s_cbranch_scc1 {N}_{R}_done")
            a.I("s_waitcnt vmcnt(14)")
            a.I("s_barrier")
            a.I(f"s_sub_u32 {s(sBAR)}, {s(sBAR)}, 1")
            emit_dma()
            a.I(f"s_branch {N}_{R}_tail")
            a.label(f"{N}_{R}_done")
        n0 = st.n
        st.dump(sW, 4, tmpv=T0)
        st.n = n0 - 2
        a.I("s_endpgm")

    a.I(f"s_cmp_ge_u32 {s(sW)}, 4")
    a.I(f"s_cbranch_scc1 {N}_short")
    role(False)
    a.label(f"{N}_short")
    role(True)
    kend(a, N)
    return a, N, (256, 512, 163840 if (withb2 or b2tail) else 131072)


def oproj_body(a, N, st, bar_at=None):
    ACC, CR, AFR = 64, 128, 192
    DEPTH = 8
    L16, L16B, VD0, VD1, TB = 1, 2, 3, 4, 5
    a.I("s_and_b32 s10, s2, 7")
    a.I("s_lshr_b32 s11, s2, 3")
    a.I("s_and_b32 s12, s11, 3")
    a.I("s_lshl_b32 s10, s10, 2")
    a.I("s_add_u32 s17, s10, s12")
    a.I("s_lshr_b32 s18, s11, 2")
    if os.environ.get("OPX") == "same":
        a.I("s_mov_b32 s17, 0")
        a.I("s_mov_b32 s18, 0")
    if os.environ.get("OPX") == "map2":
        a.I("s_and_b32 s10, s2, 3")
        a.I("s_lshl_b32 s10, s10, 3")
        a.I("s_and_b32 s12, s11, 7")
        a.I("s_add_u32 s17, s10, s12")
        a.I("s_bfe_u32 s10, s2, 0x10002")
        a.I("s_lshl_b32 s10, s10, 2")
        a.I("s_lshr_b32 s12, s11, 3")
        a.I("s_add_u32 s18, s10, s12")
    a.I(f"v_lshlrev_b32 {v(L16)}, 4, v0")
    a.I(f"v_add_u32 {v(L16B)}, 0x40000, {v(L16)}")
    a.I("v_lshrrev_b32 v8, 3, v0")
    a.I("v_lshlrev_b32 v8, 10, v8")
    a.I("v_bfe_u32 v9, v0, 4, 1")
    a.I("v_lshlrev_b32 v10, 2, v9")
    a.I("v_and_b32 v11, 7, v0")
    a.I("v_xor_b32 v10, v10, v11")
    a.I(f"v_lshl_add_u32 {v(VD0)}, v10, 4, v8")
    a.I("s_lshl_b32 s10, s18, 7")
    a.I(f"v_add_u32 {v(VD0)}, s10, {v(VD0)}")
    a.I(f"v_add_u32 {v(VD1)}, {8192 - 1024}, {v(VD0)}")
    a.I("v_lshrrev_b32 v8, 5, v0")
    a.I("v_bfe_u32 v10, v0, 2, 2")
    a.I("v_lshl_add_u32 v8, v8, 2, v10")
    a.I(f"v_lshlrev_b32 {v(TB)}, 7, v8")
    a.I(f"v_lshl_add_u32 {v(TB)}, v9, 5, {v(TB)}")
    a.I("v_and_b32 v10, 3, v0")
    a.I(f"v_lshl_add_u32 {v(TB)}, v10, 3, {v(TB)}")
    a.I("v_bfe_u32 v10, v0, 3, 1")
    a.I(f"v_lshl_add_u32 {v(TB)}, v10, 6, {v(TB)}")
    a.I("s_lshl_b32 s19, s16, 14")
    a.I(f"v_add_u32 {v(TB)}, s19, {v(TB)}")
    a.I(f"v_xor_b32 {v(TB + 1)}, 64, {v(TB)}")
    a.I("s_lshl_b32 s40, s17, 19")
    a.I("s_lshl_b32 s10, s16, 16")
    a.I("s_add_u32 s40, s40, s10")
    a.I("s_lshl_b32 s41, s16, 20")
    ROT = int(os.environ.get("ROT", "0"))
    if ROT:
        a.I("s_and_b32 s45, s2, 7")
        a.I(f"s_mul_i32 s45, s45, {ROT}")
    a.I("s_waitcnt lgkmcnt(0)")
    srd(a, 20, 4, 5, 16 * MB, add=WS_CTX)
    srd(a, 24, 6, 7, 4 * MB)
    srd(a, 28, 8, 9, 4 * MB)
    vm, lg = VM(a), LG(a)
    st()

    def loads(g):
        sl = g % DEPTH
        a.I(f"s_add_u32 m0, s19, {sl * 2048}")
        if ROT:
            if g % 4 == 0:
                a.I(f"s_add_u32 s44, s45, {g}")
                a.I("s_and_b32 s44, s44, 63")
                a.I("s_lshl_b32 s46, s44, 14")
                a.I("s_add_u32 s46, s46, s41")
                a.I("s_lshl_b32 s44, s44, 10")
            a.I(f"s_add_u32 s42, s46, {hex((g % 4) * 16384)}")
        else:
            a.I(f"s_add_u32 s42, s41, {hex(g * 16384)}")
        vm.issue(f"buffer_load_dwordx4 {v(VD0)}, s[24:27], s42 offen lds", g)
        vm.issue(f"buffer_load_dwordx4 {v(VD1)}, s[24:27], s42 offen offset:1024 lds", g)
        if g % 4 == 0:
            a.I(f"s_add_u32 s43, s40, {'s44' if ROT else hex(g * 1024)}")
        vm.issue(f"buffer_load_dwordx4 {v(CR + 8 * sl, 4)}, {v(L16)}, s[20:23], s43 offen offset:{(g % 4) * 1024}", g)
        vm.issue(f"buffer_load_dwordx4 {v(CR + 8 * sl + 4, 4)}, {v(L16B)}, s[20:23], s43 offen offset:{(g % 4) * 1024}", g)

    def trs(g):
        sl = g % DEPTH
        vm.wait(g)
        for cb in range(2):
            d = AFR + 8 * (g & 1) + 4 * cb
            lg.issue(f"ds_read_b64_tr_b16 {v(d, 2)}, {v(TB + cb)} offset:{sl * 2048}", g)
            lg.issue(f"ds_read_b64_tr_b16 {v(d + 2, 2)}, {v(TB + cb)} offset:{sl * 2048 + 1024}", g)

    for g in range(DEPTH):
        loads(g)
    st()
    trs(0)
    st()
    for g in range(64):
        if g + 1 < 64:
            trs(g + 1)
        lg.wait(g)
        sl = g % DEPTH
        for qt in range(2):
            for cb in range(2):
                acc = v(ACC + 16 * (2 * qt + cb), 16)
                a.I(f"{MF} {acc}, {v(AFR + 8 * (g & 1) + 4 * cb, 4)}, {v(CR + 8 * sl + 4 * qt, 4)}, {'0' if g == 0 else acc}")
        if g + DEPTH < 64:
            loads(g + DEPTH)
        if g == bar_at:
            a.I("s_barrier")
    st()
    a.I(f"v_add_u32 v8, s19, {v(L16)}")
    a.I("s_nop 11")
    for tl in range(4):
        for jq in range(4):
            a.I(f"ds_write_b128 v8, {v(ACC + 16 * tl + 4 * jq, 4)} offset:{(tl * 4 + jq) * 1024}")
    a.I("v_lshrrev_b32 v9, 5, v0")
    a.I("v_and_b32 v10, 31, v0")
    a.I("v_lshlrev_b32 v10, 4, v10")
    a.I("v_lshl_add_u32 v9, v9, 13, v10")
    a.I("s_lshl_b32 s10, s16, 11")
    a.I("v_add_u32 v9, s10, v9")
    a.I("s_lshl_b32 s11, s17, 17")
    a.I("s_lshl_b32 s12, s18, 7")
    a.I("s_add_u32 s11, s11, s12")
    a.I("s_lshl_b32 s12, s16, 5")
    a.I("s_add_u32 s11, s11, s12")
    a.I("v_lshlrev_b32 v10, 11, v0")
    a.I("s_waitcnt lgkmcnt(0)")
    return ACC


def oproj_body2(a, N, st, bar_at=None):
    DEPTH = int(os.environ.get("ODEPTH", "8"))
    ACC, CR = 192 - 16 * DEPTH, 256 - 16 * DEPTH
    L16, L16B = 1, 2
    a.I("s_and_b32 s10, s2, 7")
    a.I("s_lshr_b32 s11, s2, 3")
    a.I("s_and_b32 s12, s11, 3")
    a.I("s_lshl_b32 s10, s10, 2")
    a.I("s_add_u32 s17, s10, s12")
    a.I("s_lshr_b32 s18, s11, 2")
    if os.environ.get("OPX") == "same":
        a.I("s_mov_b32 s17, 0")
        a.I("s_mov_b32 s18, 0")
    if os.environ.get("OPX") == "sameq":
        a.I("s_and_b32 s17, s17, 3")
    if os.environ.get("OPX") == "map2":
        a.I("s_and_b32 s10, s2, 3")
        a.I("s_lshl_b32 s10, s10, 3")
        a.I("s_and_b32 s12, s11, 7")
        a.I("s_add_u32 s17, s10, s12")
        a.I("s_bfe_u32 s10, s2, 0x10002")
        a.I("s_lshl_b32 s10, s10, 2")
        a.I("s_lshr_b32 s12, s11, 3")
        a.I("s_add_u32 s18, s10, s12")
    a.I(f"v_lshlrev_b32 {v(L16)}, 4, v0")
    a.I(f"v_add_u32 {v(L16B)}, 0x40000, {v(L16)}")
    a.I("s_lshl_b32 s19, s16, 14")
    a.I("s_lshl_b32 s40, s17, 19")
    a.I("s_lshl_b32 s10, s16, 16")
    a.I("s_add_u32 s40, s40, s10")
    a.I("s_lshl_b32 s41, s18, 19")
    a.I("s_lshl_b32 s10, s16, 17")
    a.I("s_add_u32 s41, s41, s10")
    a.I("s_waitcnt lgkmcnt(0)")
    srd(a, 20, 4, 5, 16 * MB, add=WS_CTX)
    srd(a, 24, 4, 5, 4 * MB, add=WS_WO)
    srd(a, 28, 8, 9, 4 * MB)
    vm = VM(a)
    st()

    def loads(g):
        sl = g % DEPTH
        L = []
        if g % 2 == 0:
            L.append(lambda: a.I(f"s_add_u32 s42, s41, {hex(g * 2048)}"))
        if g % 4 == 0:
            L.append(lambda: a.I(f"s_add_u32 s43, s40, {hex(g * 1024)}"))
        for cb in range(2):
            L.append(lambda cb=cb: vm.issue(f"buffer_load_dwordx4 {v(CR + 16 * sl + 4 * cb, 4)}, {v(L16)}, s[24:27], s42 offen "
                                            f"offset:{(g % 2) * 2048 + cb * 1024}", g))
        for qt in range(2):
            L.append(lambda qt=qt: vm.issue(f"buffer_load_dwordx4 {v(CR + 16 * sl + 8 + 4 * qt, 4)}, {v(L16 + qt)}, s[20:23], s43 offen "
                                            f"offset:{(g % 4) * 1024}", g))
        return L

    for g in range(DEPTH):
        for f in loads(g):
            f()
    st()
    st()
    for g in range(64):
        vm.wait(g)
        sl = g % DEPTH
        for qt in range(2):
            for cb in range(2):
                acc = v(ACC + 16 * (2 * qt + cb), 16)
                a.I(f"{MF} {acc}, {v(CR + 16 * sl + 4 * cb, 4)}, {v(CR + 16 * sl + 8 + 4 * qt, 4)}, {'0' if g == 0 else acc}")
        if g + DEPTH < 64:
            for f in loads(g + DEPTH):
                f()
        if g == bar_at:
            a.I("s_barrier")
    st()
    a.I(f"v_add_u32 v8, s19, {v(L16)}")
    a.I("v_lshrrev_b32 v9, 5, v0")
    a.I("v_and_b32 v10, 31, v0")
    a.I("v_lshlrev_b32 v10, 4, v10")
    a.I("v_lshl_add_u32 v9, v9, 13, v10")
    a.I("s_lshl_b32 s10, s16, 11")
    a.I("v_add_u32 v9, s10, v9")
    a.I("s_lshl_b32 s11, s17, 17")
    a.I("s_lshl_b32 s12, s18, 7")
    a.I("s_add_u32 s11, s11, s12")
    a.I("s_lshl_b32 s12, s16, 5")
    a.I("s_add_u32 s11, s11, s12")
    a.I("v_lshlrev_b32 v10, 11, v0")
    for tl in range(4):
        for jq in range(4):
            a.I(f"ds_write_b128 v8, {v(ACC + 16 * tl + 4 * jq, 4)} offset:{(tl * 4 + jq) * 1024}")
    a.I("s_waitcnt lgkmcnt(0)")
    return ACC


def oproj_body3(a, N, st, bar_at=None):
    DEPTH = 8
    ACC, FR = 64, 128
    L16, L16B, LR = 1, 2, 3
    a.I("s_and_b32 s10, s2, 7")
    a.I("s_lshr_b32 s11, s2, 3")
    a.I("s_and_b32 s12, s11, 3")
    a.I("s_lshl_b32 s10, s10, 2")
    a.I("s_add_u32 s17, s10, s12")
    a.I("s_lshr_b32 s18, s11, 2")
    a.I(f"v_lshlrev_b32 {v(L16)}, 4, v0")
    a.I(f"v_add_u32 {v(L16B)}, {0x40000 - 1024}, {v(L16)}")
    a.I("s_lshl_b32 s19, s16, 15")
    a.I(f"v_add_u32 {v(LR)}, s19, {v(L16)}")
    a.I("s_lshl_b32 s42, s18, 19")
    a.I("s_lshl_b32 s10, s16, 17")
    a.I("s_add_u32 s42, s42, s10")
    a.I("s_lshl_b32 s43, s17, 19")
    a.I("s_lshl_b32 s10, s16, 16")
    a.I("s_add_u32 s43, s43, s10")
    RB = int(os.environ.get("RB", "0"))
    if RB:
        a.I("s_lshl1_add_u32 s45, s12, s18")
        a.I("s_and_b32 s45, s45, 7")
        a.I(f"s_mul_i32 s45, s45, {RB // 8 * 1024}")
        a.I("s_mov_b32 s40, s43")
        a.I("s_mov_b32 s41, s42")
        a.I("s_add_u32 s43, s40, s45")
        a.I("s_lshl1_add_u32 s42, s45, s41")
    a.I("s_waitcnt lgkmcnt(0)")
    srd(a, 20, 4, 5, 16 * MB + 2048, add=WS_CTX - 2048)
    srd(a, 24, 4, 5, 4 * MB, add=WS_WO)
    srd(a, 28, 8, 9, 4 * MB)
    vm, lg = VM(a), LG(a)
    st()

    def loads(g):
        sl = g % DEPTH
        return [lambda: a.I(f"s_add_u32 m0, s19, {sl * 4096}"),
                lambda: a.I("s_nop 0") if g < DEPTH else None,
                lambda: vm.issue(f"buffer_load_dwordx4 {v(L16)}, s[24:27], s42 offen lds", g),
                lambda: vm.issue(f"buffer_load_dwordx4 {v(L16)}, s[24:27], s42 offen offset:1024 lds", g),
                lambda: vm.issue(f"buffer_load_dwordx4 {v(L16)}, s[20:23], s43 offen offset:2048 lds", g),
                lambda: vm.issue(f"buffer_load_dwordx4 {v(L16B)}, s[20:23], s43 offen offset:3072 lds", g),
                lambda: nxt(g), lambda: None]

    def nxt(g):
        if not RB:
            a.I("s_add_u32 s42, s42, 2048")
            a.I("s_add_u32 s43, s43, 1024")
            return
        a.I("s_add_u32 s45, s45, 1024")
        a.I(f"s_and_b32 s45, s45, {RB * 1024 - 1}")
        if (g + 1) % RB == 0:
            a.I(f"s_add_u32 s40, s40, {RB * 1024}")
            a.I(f"s_add_u32 s41, s41, {RB * 2048}")
        a.I("s_add_u32 s43, s40, s45")
        a.I("s_lshl1_add_u32 s42, s45, s41")

    def reads(g):
        vm.wait(g)
        for q in range(4):
            lg.issue(f"ds_read_b128 {v(FR + 16 * (g & 1) + 4 * q, 4)}, {v(LR)} offset:{(g % DEPTH) * 4096 + q * 1024}", g)

    for g in range(DEPTH):
        for f in loads(g):
            f()
    st()
    reads(0)
    st()
    for g in range(64):
        if g + 1 < 64:
            reads(g + 1)
        lg.wait(g)
        L = loads(g + DEPTH) if g + DEPTH < 64 else []
        fr = FR + 16 * (g & 1)
        for qt in range(2):
            for cb in range(2):
                acc = v(ACC + 16 * (2 * qt + cb), 16)
                if L:
                    L.pop(0)()
                a.I(f"{MF} {acc}, {v(fr + 4 * cb, 4)}, {v(fr + 8 + 4 * qt, 4)}, {'0' if g == 0 else acc}")
                if L:
                    L.pop(0)()
        if g == bar_at:
            a.I("s_barrier")
    st()
    a.I("v_lshrrev_b32 v9, 5, v0")
    a.I("v_and_b32 v10, 31, v0")
    a.I("v_lshlrev_b32 v10, 4, v10")
    a.I("v_lshl_add_u32 v9, v9, 13, v10")
    a.I("s_lshl_b32 s10, s16, 11")
    a.I("v_add_u32 v9, s10, v9")
    a.I("s_lshl_b32 s11, s17, 17")
    a.I("s_lshl_b32 s12, s18, 7")
    a.I("s_add_u32 s11, s11, s12")
    a.I("s_lshl_b32 s12, s16, 5")
    a.I("s_add_u32 s11, s11, s12")
    a.I("v_lshlrev_b32 v10, 11, v0")
    for tl in range(4):
        for jq in range(4):
            a.I(f"ds_write_b128 {v(LR)}, {v(ACC + 16 * tl + 4 * jq, 4)} offset:{(tl * 4 + jq) * 1024}")
    a.I("s_waitcnt lgkmcnt(0)")
    return ACC


def oproj_body4(a, N, st, bar_at=None):
    DEPTH = 4
    ACC, FR = 32, 96
    L16, L16B, LR = 1, 2, 3
    a.I("s_and_b32 s10, s2, 7")
    a.I("s_lshr_b32 s11, s2, 3")
    a.I("s_and_b32 s12, s11, 3")
    a.I("s_lshl_b32 s10, s10, 2")
    a.I("s_add_u32 s17, s10, s12")
    a.I("s_lshr_b32 s18, s11, 2")
    a.I(f"v_lshlrev_b32 {v(L16)}, 4, v0")
    a.I(f"v_add_u32 {v(L16B)}, {0x40000 - 1024}, {v(L16)}")
    a.I("s_lshl_b32 s19, s16, 14")
    a.I(f"v_add_u32 {v(LR)}, s19, {v(L16)}")
    a.I("s_lshl_b32 s42, s18, 19")
    a.I("s_lshl_b32 s10, s16, 16")
    a.I("s_add_u32 s42, s42, s10")
    a.I("s_lshl_b32 s43, s17, 19")
    a.I("s_lshl_b32 s10, s16, 15")
    a.I("s_add_u32 s43, s43, s10")
    a.I("s_waitcnt lgkmcnt(0)")
    srd(a, 20, 4, 5, 16 * MB + 2048, add=WS_CTX - 2048)
    srd(a, 24, 4, 5, 4 * MB, add=WS_WO)
    vm, lg = VM(a), LG(a)
    st()

    def loads(g):
        sl = g % DEPTH
        return [lambda: a.I(f"s_add_u32 m0, s19, {sl * 4096}"),
                lambda: a.I("s_nop 0") if g < DEPTH else None,
                lambda: vm.issue(f"buffer_load_dwordx4 {v(L16)}, s[24:27], s42 offen lds", g),
                lambda: vm.issue(f"buffer_load_dwordx4 {v(L16)}, s[24:27], s42 offen offset:1024 lds", g),
                lambda: vm.issue(f"buffer_load_dwordx4 {v(L16)}, s[20:23], s43 offen offset:2048 lds", g),
                lambda: vm.issue(f"buffer_load_dwordx4 {v(L16B)}, s[20:23], s43 offen offset:3072 lds", g),
                lambda: a.I("s_add_u32 s42, s42, 2048"),
                lambda: a.I("s_add_u32 s43, s43, 1024")]

    def reads(g):
        vm.wait(g)
        for q in range(4):
            lg.issue(f"ds_read_b128 {v(FR + 16 * (g & 1) + 4 * q, 4)}, {v(LR)} offset:{(g % DEPTH) * 4096 + q * 1024}", g)

    for g in range(DEPTH):
        for f in loads(g):
            f()
    srd(a, 28, 8, 9, 4 * MB)
    a.I("v_lshrrev_b32 v9, 5, v0")
    a.I("v_and_b32 v10, 31, v0")
    a.I("v_lshlrev_b32 v10, 4, v10")
    a.I("v_lshl_add_u32 v9, v9, 13, v10")
    a.I("s_lshl_b32 s10, s16, 10")
    a.I("v_add_u32 v9, s10, v9")
    a.I("v_add_u32 v11, 0x10000, v9")
    a.I("s_lshl_b32 s11, s17, 17")
    a.I("s_lshl_b32 s12, s18, 7")
    a.I("s_add_u32 s11, s11, s12")
    a.I("s_lshl_b32 s12, s16, 4")
    a.I("s_add_u32 s11, s11, s12")
    a.I("v_lshlrev_b32 v10, 11, v0")
    st()
    reads(0)
    st()
    NG = 32
    for g in range(NG):
        if g + 1 < NG:
            reads(g + 1)
        lg.wait(g)
        L = loads(g + DEPTH) if g + DEPTH < NG else []
        fr = FR + 16 * (g & 1)
        for qt in range(2):
            for cb in range(2):
                acc = v(ACC + 16 * (2 * qt + cb), 16)
                if L:
                    L.pop(0)()
                a.I(f"{MF} {acc}, {v(fr + 4 * cb, 4)}, {v(fr + 8 + 4 * qt, 4)}, {'0' if g == 0 else acc}")
                if L:
                    L.pop(0)()
        if g == bar_at:
            a.I("s_barrier")
    st()
    a.I("s_nop 8")
    for tl in range(4):
        for jq in range(4):
            a.I(f"ds_write_b128 {v(LR)}, {v(ACC + 16 * tl + 4 * jq, 4)} offset:{(tl * 4 + jq) * 1024}")
    a.I("s_waitcnt lgkmcnt(0)")
    a.I("s_barrier")
    for pw in range(8):
        for hl in range(2):
            a.I(f"ds_read_b128 {v(ACC + 8 * pw + 4 * hl, 4)}, {v(9 if pw < 4 else 11)} offset:{(pw % 4) * 16384 + hl * 512}")
        if pw == 6:
            a.I("s_waitcnt lgkmcnt(6)")
    for j in range(8):
        a.I(f"v_add_f32 {v(ACC + j)}, {v(ACC + j)}, {v(ACC + 8 + j)}")
        a.I(f"v_add_f32 {v(ACC + 16 + j)}, {v(ACC + 16 + j)}, {v(ACC + 24 + j)}")
    a.I("s_waitcnt lgkmcnt(0)")
    for j in range(8):
        a.I(f"v_add_f32 {v(ACC + 32 + j)}, {v(ACC + 32 + j)}, {v(ACC + 40 + j)}")
        a.I(f"v_add_f32 {v(ACC + 48 + j)}, {v(ACC + 48 + j)}, {v(ACC + 56 + j)}")
    for j in range(8):
        a.I(f"v_add_f32 {v(ACC + j)}, {v(ACC + j)}, {v(ACC + 16 + j)}")
        a.I(f"v_add_f32 {v(ACC + 32 + j)}, {v(ACC + 32 + j)}, {v(ACC + 48 + j)}")
    for j in range(8):
        a.I(f"v_add_f32 {v(ACC + j)}, {v(ACC + j)}, {v(ACC + 32 + j)}")
    for i in range(4):
        a.I(f"v_cvt_pk_bf16_f32 {v(12 + i)}, {v(ACC + 2 * i)}, {v(ACC + 2 * i + 1)}")
    a.I("buffer_store_dwordx4 v[12:15], v10, s[28:31], s11 offen")


def oproj_finish(a, ACC, PW=16384):
    for pw in range(4):
        for i in range(4):
            jq, hl = divmod(i, 2)
            if pw == 2 and i == 0 and PW > 16384:
                a.I("v_add_u32 v9, 0x10000, v9")
            a.I(f"ds_read_b128 {v(ACC + 16 * pw + 4 * i, 4)}, v9 offset:{(pw * PW) % 65536 + jq * 1024 + hl * 512}")
        if pw == 1:
            a.I("s_waitcnt lgkmcnt(0)")
            for j in range(16):
                a.I(f"v_add_f32 {v(ACC + j)}, {v(ACC + j)}, {v(ACC + 16 + j)}")
    a.I("s_waitcnt lgkmcnt(0)")
    for j in range(16):
        a.I(f"v_add_f32 {v(ACC + 32 + j)}, {v(ACC + 32 + j)}, {v(ACC + 48 + j)}")
    for j in range(16):
        a.I(f"v_add_f32 {v(ACC + j)}, {v(ACC + j)}, {v(ACC + 32 + j)}")
    for i in range(8):
        a.I(f"v_cvt_pk_bf16_f32 {v(12 + i)}, {v(ACC + 2 * i)}, {v(ACC + 2 * i + 1)}")
    a.I("buffer_store_dwordx4 v[12:15], v10, s[28:31], s11 offen")
    a.I("buffer_store_dwordx4 v[16:19], v10, s[28:31], s11 offen offset:16")


def gen_oproj():
    a = Asm()
    N = "oproj_kernel"
    kstart(a, N, 256)
    a.I("s_load_dwordx2 s[4:5], s[0:1], 88")
    a.I("s_load_dwordx2 s[6:7], s[0:1], 40")
    a.I("s_load_dwordx2 s[8:9], s[0:1], 72")
    a.I("v_lshrrev_b32 v1, 6, v0")
    a.I("v_and_b32 v0, 63, v0")
    a.I("s_nop 0")
    a.I("v_readfirstlane_b32 s16, v1")
    a.I("s_nop 0")
    st = Stamper(a, "oproj")
    ACC = oproj_body(a, N, st)
    a.I("s_barrier")
    oproj_finish(a, ACC)
    st.dump(16, 4, tmpv=8)
    kend(a, N)
    return a, N, (256, 256, 65536)


def PERMC(j):
    return 8 * (j >> 2) + (j & 3)


def gen_mat(a, dst, nf, base, consts, tmp):
    n = len(consts)
    for i in range(0, n, 4):
        for q in range(4):
            a.I(f"v_fmamk_f32 {v(tmp + q)}, {v(nf)}, {f32(float(consts[i + q]))}, {v(base)}")
        for q in range(4):
            a.I(f"v_cos_f32 {v(tmp + q)}, {v(tmp + q)}")
        a.I("s_nop 0")
        for q in range(2):
            a.I(f"v_cvt_pk_bf16_f32 {v(dst + i // 2 + q)}, {v(tmp + 2 * q)}, {v(tmp + 2 * q + 1)}")


def twiddle(a, Dr, Di, regs, nf, base, consts, sign, tmp):
    for x, c in enumerate(consts):
        A, C, S_, U = tmp, tmp + 1, tmp + 2, tmp + 3
        a.I(f"v_fmamk_f32 {v(A)}, {v(nf)}, {f32(float(c))}, {v(base)}")
        a.I(f"v_cos_f32 {v(C)}, {v(A)}")
        a.I(f"v_sin_f32 {v(S_)}, {v(A)}")
        a.I("s_nop 0")
        for j in regs[x]:
            ng = "-" if sign > 0 else ""
            ps = "" if sign > 0 else "-"
            a.I(f"v_mul_f32 {v(U)}, {v(Dr + j)}, {v(S_)}")
            a.I(f"v_mul_f32 {v(Dr + j)}, {v(Dr + j)}, {v(C)}")
            a.I(f"v_fma_f32 {v(Dr + j)}, {ng}{v(Di + j)}, {v(S_)}, {v(Dr + j)}")
            a.I(f"v_fma_f32 {v(Di + j)}, {v(Di + j)}, {v(C)}, {ps}{v(U)}")


def trig(a, j, C, S_, nf, base, c, tmp, scale=None):
    L = [f"v_fmamk_f32 {v(tmp)}, {v(nf)}, {f32(float(c))}, {v(base)}",
         f"v_cos_f32 {v(C)}, {v(tmp)}", f"v_sin_f32 {v(S_)}, {v(tmp)}"]
    return L


def cmul(a, Dr, Di, C, S_, sign, U):
    ng = "-" if sign > 0 else ""
    ps = "" if sign > 0 else "-"
    a.I(f"v_mul_f32 {v(U)}, {v(Dr)}, {v(S_)}")
    a.I(f"v_mul_f32 {v(Dr)}, {v(Dr)}, {v(C)}")
    a.I(f"v_fma_f32 {v(Dr)}, {ng}{v(Di)}, {v(S_)}, {v(Dr)}")
    a.I(f"v_fma_f32 {v(Di)}, {v(Di)}, {v(C)}, {ps}{v(U)}")


def pack(a, dst, src, n):
    for i in range(n):
        a.I(f"v_cvt_pk_bf16_f32 {v(dst + i)}, {v(src + 2 * i)}, {v(src + 2 * i + 1)}")


def b_decode(a):
    a.I("s_and_b32 s20, s2, 7")
    a.I("s_lshl_b32 s20, s20, 3")
    a.I("s_bfe_u32 s22, s2, 0x30003")
    a.I("s_or_b32 s20, s20, s22")
    a.I("s_lshr_b32 s21, s2, 6")


def gen_b1():
    a = Asm()
    N = "b1_kernel"
    kstart(a, N, 256)
    a.I("s_load_dwordx2 s[4:5], s[0:1], 88")
    a.I("s_load_dwordx4 s[8:11], s[0:1], 48")
    a.I("s_load_dwordx2 s[12:13], s[0:1], 64")
    a.I("v_lshrrev_b32 v1, 6, v0")
    a.I("v_and_b32 v2, 255, v0")
    a.I("v_and_b32 v0, 63, v0")
    a.I("v_readfirstlane_b32 s16, v1")
    b_decode(a)
    a.I("s_lshr_b32 s23, s21, 1")
    a.I("s_lshl_b32 s23, s23, 11")
    a.I("s_lshr_b32 s24, s20, 5")
    a.I("s_lshl_b32 s24, s24, 10")
    a.I("s_add_u32 s23, s23, s24")
    a.I("s_and_b32 s24, s20, 31")
    a.I("s_lshl_b32 s24, s24, 4")
    a.I("s_add_u32 s23, s23, s24")
    a.I("s_and_b32 s24, s21, 1")
    a.I("s_lshl_b32 s24, s24, 9")
    a.I("s_add_u32 s23, s23, s24")
    a.I("s_add_u32 s24, s23, 4096")
    a.I("v_lshlrev_b32 v3, 13, v2")
    a.I("s_cmp_ge_u32 s16, 4")
    a.I("s_waitcnt lgkmcnt(0)")
    a.I(f"s_cbranch_scc1 {N}_filt")
    srd(a, 28, 8, 9, 2 * MB)
    srd(a, 32, 4, 5, 257 * 8192, add=WS_Y)
    a.I("s_lshr_b32 s25, s21, 1")
    a.I("s_lshl_b32 s25, s25, 4")
    a.I("s_and_b32 s26, s21, 1")
    a.I("s_lshl_b32 s26, s26, 2")
    a.I("s_add_u32 s25, s25, s26")
    a.I("s_lshr_b32 s26, s16, 1")
    a.I("s_lshl_b32 s26, s26, 3")
    a.I("s_add_u32 s25, s25, s26")
    a.I("s_and_b32 s26, s16, 1")
    a.I("s_lshl_b32 s26, s26, 1")
    a.I("s_add_u32 s25, s25, s26")
    a.I("s_lshl_b32 s25, s25, 6")
    a.I("s_add_u32 s25, s25, s20")
    a.I("s_lshl_b32 s25, s25, 10")
    a.I(f"s_add_u32 s26, s25, {65536 - 1024}")
    a.I("s_lshl_b32 s27, s16, 11")
    a.I("s_mov_b32 m0, s27")
    a.I("v_lshlrev_b32 v4, 4, v0")
    a.I("buffer_load_dwordx4 v4, s[28:31], s25 offen lds")
    a.I("buffer_load_dwordx4 v4, s[28:31], s26 offen offset:1024 lds")
    HL, NF, BS, TM = 5, 6, 7, 8
    C32, NS32, AR, AI, XF, D1R, D1I, TR, TI, D2 = 16, 24, 32, 36, 40, 48, 64, 80, 88, 96
    a.I(f"v_lshrrev_b32 {v(HL)}, 5, v0")
    a.I(f"v_cvt_f32_u32 {v(HL)}, {v(HL)}")
    a.I("v_and_b32 v12, 31, v0")
    a.I("v_cvt_f32_u32 v12, v12")
    a.I(f"v_mul_f32 {v(NF)}, {f32(1 / 32)}, v12")
    a.I(f"v_mul_f32 {v(BS)}, {v(NF)}, {v(HL)}")
    a.I(f"v_mul_f32 {v(BS)}, {f32(8.0)}, {v(BS)}")
    nat = [16 * t + j for t in range(2) for j in range(8)]
    gen_mat(a, C32, NF, BS, nat, TM)
    a.I(f"v_add_f32 {v(BS)}, {f32(0.25)}, {v(BS)}")
    gen_mat(a, NS32, NF, BS, nat, TM)
    a.I("v_and_b32 v13, 15, v0")
    a.I("v_cvt_f32_u32 v13, v13")
    a.I(f"v_mul_f32 {v(NF)}, {f32(1 / 16)}, v13")
    a.I("v_bfe_u32 v13, v0, 4, 1")
    a.I("v_cvt_f32_u32 v13, v13")
    a.I(f"v_mul_f32 {v(BS)}, {v(NF)}, {v(HL)}")
    a.I(f"v_mul_f32 {v(BS)}, 4.0, {v(BS)}")
    a.I(f"v_fmamk_f32 {v(BS)}, v13, {f32(0.25)}, {v(BS)}")
    pc = [PERMC(j) for j in range(8)]
    gen_mat(a, AR, NF, BS, pc, TM)
    a.I(f"v_add_f32 {v(BS)}, {f32(-0.25)}, {v(BS)}")
    gen_mat(a, AI, NF, BS, pc, TM)
    a.I("v_bfe_u32 v13, v0, 4, 1")
    a.I("v_lshlrev_b32 v13, 10, v13")
    a.I("v_lshrrev_b32 v14, 5, v0")
    a.I("v_lshl_add_u32 v13, v14, 8, v13")
    a.I("v_and_b32 v15, 15, v0")
    a.I("v_lshl_add_u32 v13, v15, 3, v13")
    a.I("v_add_u32 v13, s27, v13")
    a.I("s_waitcnt vmcnt(0)")
    for t in range(2):
        for h in range(2):
            a.I(f"ds_read_b64_tr_b16 {v(XF + 4 * t + 2 * h, 2)}, v13 offset:{t * 512 + h * 128}")
    a.I(f"v_mul_f32 {v(NF)}, {f32(1 / 512)}, v12")
    a.I(f"v_mul_f32 {v(BS)}, {v(NF)}, {v(HL)}")
    a.I(f"v_mul_f32 {v(BS)}, 4.0, {v(BS)}")
    a.I("s_waitcnt lgkmcnt(0)")
    for t in range(2):
        a.I(f"{MF} {v(D1R, 16)}, {v(XF + 4 * t, 4)}, {v(C32 + 4 * t, 4)}, {'0' if t == 0 else v(D1R, 16)}")
    for t in range(2):
        a.I(f"{MF} {v(D1I, 16)}, {v(XF + 4 * t, 4)}, {v(NS32 + 4 * t, 4)}, {'0' if t == 0 else v(D1I, 16)}")
    a.I("v_and_b32 v15, 31, v0")
    a.I("v_lshlrev_b32 v15, 4, v15")
    a.I("v_lshl_add_u32 v15, v14, 11, v15")
    a.I("s_lshl_b32 s25, s16, 2")
    a.I("s_add_u32 s25, s25, 8192")
    a.I("v_add_u32 v15, s25, v15")
    a.I("s_nop 7")
    twiddle(a, D1R, D1I, [[j, j + 8] for j in range(8)], NF, BS, pc, -1, TM)
    pack(a, TR, D1R, 8)
    pack(a, TI, D1I, 8)
    a.I("s_nop 1")
    for r in range(2):
        a.I(f"{MF} {v(D2 + 16 * r, 16)}, {v(AR, 4)}, {v(TR + 4 * r, 4)}, 0")
        a.I(f"{MF} {v(D2 + 16 * r, 16)}, {v(AI, 4)}, {v(TI + 4 * r, 4)}, {v(D2 + 16 * r, 16)}")
    a.I("s_nop 11")
    for c in range(2):
        for j in range(5):
            a.I(f"v_cvt_pk_bf16_f32 {v(TR + 5 * c + j)}, {v(D2 + 8 * c + j)}, {v(D2 + 16 + 8 * c + j)}")
    for c in range(2):
        for j in range(4):
            a.I(f"ds_write_b32 v15, {v(TR + 5 * c + j)} offset:{(c * 8 + j) * 512}")
    a.I("v_cmp_eq_u32 vcc, 0, v0")
    a.I("s_and_saveexec_b64 s[36:37], vcc")
    for c in range(2):
        a.I(f"ds_write_b32 v15, {v(TR + 5 * c + 4)} offset:{8192 + 16 * c}")
    a.I("s_mov_b64 exec, s[36:37]")
    a.I("v_lshlrev_b32 v14, 4, v2")
    a.I("s_waitcnt lgkmcnt(0)")
    a.I("s_barrier")
    a.I("ds_read_b128 v[16:19], v14 offset:8192")
    a.I(f"ds_read_b128 v[20:23], v14 offset:{8192 + 4096}")
    a.I(f"ds_read_b128 v[24:27], v14 offset:{8192 + 8192}")
    a.I("v_lshlrev_b32 v13, 12, v2")
    a.I(f"v_add_u32 v13, {256 * 8192}, v13")
    a.I("s_waitcnt lgkmcnt(0)")
    a.I("buffer_store_dwordx4 v[16:19], v3, s[32:35], s23 offen")
    a.I("buffer_store_dwordx4 v[20:23], v3, s[32:35], s24 offen")
    a.I("v_cmp_gt_u32 vcc, 2, v2")
    a.I("s_and_saveexec_b64 s[36:37], vcc")
    a.I(f"s_cbranch_execz {N}_end")
    a.I("buffer_store_dwordx4 v[24:27], v13, s[32:35], s23 offen")
    a.I("s_endpgm")
    a.label(f"{N}_filt")
    srd(a, 28, 10, 11, 2048 * 514)
    srd(a, 32, 12, 13, 2048 * 514)
    srd(a, 36, 4, 5, 257 * 8192, add=WS_WF)
    a.I("s_lshr_b32 s25, s21, 1")
    a.I("s_lshl_b32 s25, s25, 5")
    a.I("s_lshr_b32 s26, s20, 5")
    a.I("s_lshl_b32 s26, s26, 4")
    a.I("s_add_u32 s25, s25, s26")
    a.I("s_and_b32 s26, s21, 1")
    a.I("s_lshl_b32 s26, s26, 2")
    a.I("s_add_u32 s25, s25, s26")
    a.I("s_lshl_b32 s25, s25, 5")
    a.I("s_and_b32 s26, s20, 31")
    a.I("s_add_u32 s25, s25, s26")
    a.I("s_mul_i32 s25, s25, 514")
    for j in range(8):
        a.I(f"s_add_u32 s{40 + j}, s25, {PERMC(j) * 32 * 514}")
    a.I("v_lshlrev_b32 v4, 1, v2")
    a.I("v_mov_b32 v5, 512")
    for q, va in enumerate((4, 5)):
        for c in range(2):
            for j in range(8):
                a.I(f"buffer_load_ushort {v(32 + 16 * q + 8 * c + j)}, {v(va)}, s[{28 + 4 * c}:{31 + 4 * c}], s{40 + j} offen")
    a.I(f"v_mov_b32 v6, {256 * 8192}")
    a.I("s_waitcnt vmcnt(16)")
    for i in range(8):
        a.I(f"v_lshl_or_b32 {v(16 + i)}, {v(33 + 2 * i)}, 16, {v(32 + 2 * i)}")
    a.I("buffer_store_dwordx4 v[16:19], v3, s[36:39], s23 offen")
    a.I("buffer_store_dwordx4 v[20:23], v3, s[36:39], s24 offen")
    a.I("v_cmp_eq_u32 vcc, 0, v2")
    a.I("s_and_saveexec_b64 s[48:49], vcc")
    a.I(f"s_cbranch_execz {N}_end")
    a.I("s_waitcnt vmcnt(2)")
    for i in range(8):
        a.I(f"v_lshl_or_b32 {v(24 + i)}, {v(49 + 2 * i)}, 16, {v(48 + 2 * i)}")
    a.I("buffer_store_dwordx4 v[24:27], v6, s[36:39], s23 offen")
    a.I("buffer_store_dwordx4 v[28:31], v6, s[36:39], s24 offen")
    kend(a, N)
    return a, N, (256, 512, 20480)


def b2_loads(a, vm, col_s, own_s, L16, YR, WR, S0, SR):
    sY, sW = S0, S0 + 2
    a.I(f"s_lshl_b32 {s(sY)}, {s(col_s)}, 13")
    a.I(f"s_lshl_b32 {s(own_s)}, {s(own_s)}, 10")
    a.I(f"s_add_u32 {s(sY)}, {s(sY)}, {s(own_s)}")
    a.I(f"s_add_u32 {s(sY + 1)}, {s(sY)}, 4096")
    a.I(f"s_add_u32 {s(sW)}, {s(sY)}, {s(own_s)}")
    a.I(f"s_add_u32 {s(sW + 1)}, {s(sW)}, 4096")
    srd(a, SR, 4, 5, 257 * 8192, add=WS_Y)
    for c in range(2):
        for t in range(2):
            vm.issue(f"buffer_load_dwordx4 {v(YR + 8 * c + 4 * t, 4)}, {v(L16)}, {s(SR, 4)}, {s(sY + c)} offen offset:{t * 2048}", "Y")
    srd(a, SR + 4, 4, 5, 257 * 8192, add=WS_WF)
    for c in range(2):
        for h in range(2):
            vm.issue(f"buffer_load_dwordx4 {v(WR + 8 * c + 4 * h, 4)}, {v(L16)}, {s(SR + 4, 4)}, {s(sW + c)} offen offset:{h * 1024}", "WF")


def b2_body(a, own, col_s, lds_s, svc, vm, R0=0, S0=20, SR=28, slice_len=110, rmap=None, after_loads=None, st=lambda: None, preloaded=False, compact_ex=False, newer=8):
    L16, HL, NF, BS, LF, XA, XB, TM, LB = [R0 + x for x in (1, 2, 3, 4, 5, 6, 7, 8, 12)]
    YR, YI, WR, WI = [R0 + x for x in (16, 24, 32, 40)]
    C32, S32, NS32, C64, S64 = [R0 + x for x in (48, 56, 64, 72, 88)]
    DR, DI = R0 + 104, R0 + 120
    FR, FI, FN = R0 + 136, R0 + 152, R0 + 168
    XT = 240
    if rmap:
        L16, HL, NF, BS, LF, XA, XB, TM, LB, YR, YI, WR, WI, C32, S32, NS32, C64, S64, DR, DI, FR, FI, FN = rmap
    sY, sW, sSC, sT = S0, S0 + 2, S0 + 4, S0 + 5
    I0 = a.I
    cnt = [0]

    def I(text):
        r = I0(text)
        cnt[0] += 1
        if cnt[0] >= slice_len and (text.startswith("v_cvt_pk") or text.startswith("v_fma_f32") or text.startswith("v_sin")):
            dosvc()
        return r

    def dosvc():
        a.I = I0
        svc()
        a.I = I
        cnt[0] = 0

    a.I(f"v_lshlrev_b32 {v(L16)}, 4, v0")
    if preloaded:
        vm.q += ["Y"] * 4 + ["WF"] * 4 + ["Q"] * newer
    else:
        a.I(f"s_mov_b32 {s(sT)}, {own}")
        b2_loads(a, vm, col_s, sT, L16, YR, WR, S0, SR)
    srd(a, SR + 8, 4, 5, 257 * 8192, add=WS_Z)
    a.I = I
    a.I(f"s_mov_b32 {s(sSC)}, {f32(2.0 ** -19)}")
    a.I(f"s_and_b32 {s(sT)}, {s(col_s)}, 255")
    a.I(f"s_cmp_eq_u32 {s(sT)}, 0")
    a.I(f"s_cselect_b32 {s(sSC)}, {f32(2.0 ** -20)}, {s(sSC)}")
    a.I(f"v_lshrrev_b32 {v(HL)}, 5, v0")
    a.I(f"v_cvt_f32_u32 {v(HL)}, {v(HL)}")
    a.I(f"v_mul_f32 {v(HL)}, 4.0, {v(HL)}")
    a.I(f"v_and_b32 {v(LF)}, 31, v0")
    a.I(f"v_cvt_f32_u32 {v(LF)}, {v(LF)}")
    a.I(f"v_add_f32 {v(LB)}, {f32(32.0 * own)}, {v(LF)}")
    pc = lambda n: [16 * t + PERMC(j) for t in range(n) for j in range(8)]
    a.I(f"v_mul_f32 {v(NF)}, {f32(1 / 32)}, {v(LF)}")
    a.I(f"v_mul_f32 {v(BS)}, {v(NF)}, {v(HL)}")
    gen_mat(a, C32, NF, BS, pc(2), TM)
    a.I(f"v_add_f32 {v(BS)}, {f32(-0.25)}, {v(BS)}")
    gen_mat(a, S32, NF, BS, pc(2), TM)
    for i in range(8):
        a.I(f"v_xor_b32 {v(NS32 + i)}, 0x80008000, {v(S32 + i)}")
    a.I(f"v_mul_f32 {v(NF)}, {f32(1 / 64)}, {v(LB)}")
    a.I(f"v_mul_f32 {v(BS)}, {v(NF)}, {v(HL)}")
    gen_mat(a, C64, NF, BS, pc(4), TM)
    a.I(f"v_add_f32 {v(BS)}, {f32(-0.25)}, {v(BS)}")
    gen_mat(a, S64, NF, BS, pc(4), TM)
    a.I(f"v_add_u32 {v(XA)}, {s(lds_s)}, {v(L16)}")
    a.I(f"v_add_u32 {v(XB)}, {(1 - own) * 4096}, {v(XA)}")
    a.I(f"v_add_u32 {v(XA)}, {own * 4096}, {v(XA)}")

    def mm(D, terms, fill=None, per=3):
        first = True
        for A_, B_ in terms:
            a.I(f"{MF} {v(D, 16)}, {v(A_, 4)}, {v(B_, 4)}, {'0' if first else v(D, 16)}")
            first = False
            if fill:
                for x in fill[:per]:
                    a.I(x)
                del fill[:per]

    def exchange(neg_of, ldsoff):
        nonlocal XA, XB
        if compact_ex and ldsoff:
            XA, XB, ldsoff = XB, XA, 0
        for c, F in enumerate((FR, FI)):
            for h in range(2):
                a.I(f"ds_write_b128 {v(XA)}, {v(F + 8 * own + 4 * h, 4)} offset:{ldsoff + (2 * c + h) * 1024}")
        a.I("s_waitcnt lgkmcnt(0)")
        dosvc()
        for c, F in enumerate((FR, FI)):
            for h in range(2):
                a.I(f"ds_read_b128 {v(F + 8 * (1 - own) + 4 * h, 4)}, {v(XB)} offset:{ldsoff + (2 * c + h) * 1024}")
        for i in range(8):
            a.I(f"v_xor_b32 {v(FN + 8 * own + i)}, 0x80008000, {v(neg_of + 8 * own + i)}")
        a.I("s_waitcnt lgkmcnt(0)")
        for i in range(8):
            a.I(f"v_xor_b32 {v(FN + 8 * (1 - own) + i)}, 0x80008000, {v(neg_of + 8 * (1 - own) + i)}")
        a.I("s_nop 1")

    jc = [(j & 3) + 8 * (j >> 2) for j in range(16)]
    o = 8 * (1 - own)
    T1C = [FN + j for j in range(16)]
    T1S = [FR + o + j for j in range(8)] + [FI + o + j for j in range(8)]
    a.I(f"v_mul_f32 {v(NF)}, {f32(1 / 2048)}, {v(LF)}")
    a.I(f"v_add_f32 {v(BS)}, {f32(32.0 * own)}, {v(HL)}")
    a.I(f"v_mul_f32 {v(BS)}, {v(NF)}, {v(BS)}")
    for j in range(16):
        a.many(trig(a, j, T1C[j], T1S[j], NF, BS, jc[j], TM + (j & 1)))
    a.I(f"v_mul_f32 {v(NF)}, {f32(1 / 2048)}, {v(LB)}")
    a.I(f"v_mul_f32 {v(BS)}, {v(NF)}, {v(HL)}")
    st()
    vm.wait("Y")
    st()
    mm(DR, [(YR, C32), (YR + 4, C32 + 4), (YI, S32), (YI + 4, S32 + 4)])
    mm(DI, [(YI, C32), (YI + 4, C32 + 4), (YR, NS32), (YR + 4, NS32 + 4)])
    a.I("s_nop 11")
    for j in range(16):
        cmul(a, DR + j, DI + j, T1C[j], T1S[j], -1, TM)
    pack(a, FR + 8 * own, DR, 8)
    pack(a, FI + 8 * own, DI, 8)
    exchange(FR, 0)
    st()
    if after_loads:
        after_loads()
    T2C = [YR + j for j in range(8)] + [YI + j for j in range(8)]
    fill = []
    for j in range(16):
        fill += trig(a, j, T2C[j], XT + j, NF, BS, jc[j], TM + (j & 1))
    mm(DR, [(C64 + 4 * t, FR + 4 * t) for t in range(4)] + [(S64 + 4 * t, FI + 4 * t) for t in range(4)], fill)
    mm(DI, [(C64 + 4 * t, FI + 4 * t) for t in range(4)] + [(S64 + 4 * t, FN + 4 * t) for t in range(4)], fill)
    assert not fill
    vm.wait("WF")
    for j in range(12):
        a.I(f"v_mul_f32 {v(T2C[j])}, {s(sSC)}, {v(T2C[j])}")
    for j in range(16):
        wr, wi, u = TM, TM + 1, TM + 2
        if j & 1:
            a.I(f"v_and_b32 {v(wr)}, 0xffff0000, {v(WR + j // 2)}")
            a.I(f"v_and_b32 {v(wi)}, 0xffff0000, {v(WI + j // 2)}")
        else:
            a.I(f"v_lshlrev_b32 {v(wr)}, 16, {v(WR + j // 2)}")
            a.I(f"v_lshlrev_b32 {v(wi)}, 16, {v(WI + j // 2)}")
        cmul(a, DR + j, DI + j, wr, wi, +1, u)
    pack(a, FR + 8 * own, DR, 8)
    pack(a, FI + 8 * own, DI, 8)
    exchange(FI, 8192)
    st()
    fill = [f"v_mul_f32 {v(T2C[j])}, {s(sSC)}, {v(T2C[j])}" for j in range(12, 16)]
    fill += [f"v_mul_f32 {v(XT + j)}, {s(sSC)}, {v(XT + j)}" for j in range(16)]
    mm(DR, [(FR + 4 * t, C64 + 4 * t) for t in range(4)] + [(FN + 4 * t, S64 + 4 * t) for t in range(4)], fill)
    mm(DI, [(FI + 4 * t, C64 + 4 * t) for t in range(4)] + [(FR + 4 * t, S64 + 4 * t) for t in range(4)], fill)
    a.I("s_nop 11")
    for j in range(16):
        cmul(a, DR + j, DI + j, T2C[j], XT + j, +1, TM)
    pack(a, FR, DR, 8)
    pack(a, FI, DI, 8)
    a.I("s_nop 1")
    mm(DR, [(C32, FR), (C32 + 4, FR + 4), (NS32, FI), (NS32 + 4, FI + 4)])
    mm(DI, [(C32, FI), (C32 + 4, FI + 4), (S32, FR), (S32 + 4, FR + 4)])
    a.I = I0
    a.I("s_nop 7")
    pack(a, YR, DR, 8)
    a.I("s_nop 3")
    pack(a, YI, DI, 8)
    for c in range(2):
        for h in range(2):
            vm.issue(f"buffer_store_dwordx4 {v(YR + 8 * c + 4 * h, 4)}, {v(L16)}, {s(SR + 8, 4)}, {s(sW + c)} offen offset:{h * 1024}", "Z")


def gen_b2():
    a = Asm()
    N = "b2_kernel"
    kstart(a, N, 257)
    a.I("s_load_dwordx2 s[4:5], s[0:1], 88")
    a.I("v_lshrrev_b32 v1, 6, v0")
    a.I("v_and_b32 v0, 63, v0")
    a.I("s_mov_b32 s17, 0")
    a.I("v_readfirstlane_b32 s16, v1")
    a.I("s_waitcnt lgkmcnt(0)")
    a.I("s_cmp_eq_u32 s16, 1")
    a.I(f"s_cbranch_scc1 {N}_w1")
    b2_body(a, 0, 2, 17, lambda: a.I("s_barrier"), VM(a), slice_len=10 ** 9)
    a.I("s_endpgm")
    a.label(f"{N}_w1")
    b2_body(a, 1, 2, 17, lambda: a.I("s_barrier"), VM(a), slice_len=10 ** 9)
    kend(a, N)
    return a, N, (257, 128, 16384)


def b3_loads(a, outp=6):
    b_decode(a)
    a.I("s_lshr_b32 s23, s20, 5")
    a.I("s_lshl_b32 s23, s23, 11")
    a.I("s_lshl_b32 s24, s21, 9")
    a.I("s_add_u32 s23, s23, s24")
    a.I("s_and_b32 s24, s20, 31")
    a.I("s_lshl_b32 s24, s24, 4")
    a.I("s_add_u32 s23, s23, s24")
    a.I("s_add_u32 s24, s23, 4096")
    a.I("v_lshlrev_b32 v3, 13, v2")
    a.I(f"v_mov_b32 v4, {256 * 8192}")
    a.I("s_waitcnt lgkmcnt(0)")
    srd(a, 28, 4, 5, 257 * 8192, add=WS_Z)
    srd(a, 32, outp, outp + 1, 4 * MB)
    a.I("buffer_load_dwordx4 v[16:19], v3, s[28:31], s23 offen")
    a.I("buffer_load_dwordx4 v[20:23], v3, s[28:31], s24 offen")
    a.I("buffer_load_dwordx4 v[24:27], v4, s[28:31], s23 offen")


def b3_body(a, LB=0, outp=6, nafter=0, loaded=False, mid=None, part=0):
    if not loaded:
        b3_loads(a, outp)
    n0 = len(a.items)
    HL, NF, BS, AFL, TM = 5, 6, 7, 12, 8
    C32, NS32, BRE, BIM, MT, ZF, UR, UI, TR, TI = 32, 40, 48, 56, 64, 68, 76, 92, 108, 116
    a.I(f"v_lshrrev_b32 {v(HL)}, 5, v0")
    a.I(f"v_cvt_f32_u32 {v(HL)}, {v(HL)}")
    a.I("v_and_b32 v13, 31, v0")
    a.I("v_cvt_f32_u32 v13, v13")
    a.I(f"v_mul_f32 {v(NF)}, {f32(1 / 32)}, v13")
    a.I(f"v_mul_f32 {v(BS)}, {v(NF)}, {v(HL)}")
    a.I(f"v_mul_f32 {v(BS)}, 4.0, {v(BS)}")
    pc = [16 * t + PERMC(j) for t in range(2) for j in range(8)]
    gen_mat(a, C32, NF, BS, pc, TM)
    a.I(f"v_add_f32 {v(BS)}, {f32(0.25)}, {v(BS)}")
    gen_mat(a, NS32, NF, BS, pc, TM)
    a.I(f"v_and_b32 {v(AFL)}, 15, v0")
    a.I(f"v_cvt_f32_u32 {v(AFL)}, {v(AFL)}")
    a.I(f"v_mul_f32 {v(NF)}, {f32(1 / 16)}, {v(AFL)}")
    a.I(f"v_mul_f32 {v(BS)}, {f32(0.25)}, {v(HL)}")
    a.I("v_and_b32 v13, 16, v0")
    a.I("v_cmp_eq_u32 vcc, 0, v13")
    a.I("v_mov_b32 v14, 0")
    for B_, ph in ((BRE, None), (BIM, -0.25)):
        if ph:
            a.I(f"v_add_f32 {v(BS)}, {f32(ph)}, {v(BS)}")
        gen_mat(a, MT, NF, BS, list(range(8)), TM)
        for i in range(4):
            a.I(f"v_cndmask_b32 {v(B_ + i)}, v14, {v(MT + i)}, vcc")
            a.I(f"v_cndmask_b32 {v(B_ + 4 + i)}, {v(MT + i)}, v14, vcc")
    if part == 1:
        return
    if part == 2:
        del a.items[n0:]
    if mid:
        mid()
    a.I("v_and_b32 v13, 31, v2")
    a.I("v_lshlrev_b32 v13, 4, v13")
    a.I("v_lshrrev_b32 v15, 5, v2")
    a.I("v_lshl_add_u32 v13, v15, 1, v13")
    a.I(f"v_add_u32 v13, {LB}, v13")
    a.I("v_cmp_eq_u32 vcc, 0, v2")
    a.I(f"v_mov_b32 v15, {LB + 8192}")
    a.I(f"s_waitcnt vmcnt({nafter})")
    for i in range(4):
        a.I(f"v_cndmask_b32 {v(20 + i)}, {v(20 + i)}, v14, vcc")
    for c in range(2):
        for i in range(8):
            a.I(f"ds_write_b16{'_d16_hi' if i & 1 else ''} v13, {v(16 + 4 * c + i // 2)} offset:{i * 1024 + c * 512}")
    a.I("s_and_saveexec_b64 s[36:37], vcc")
    a.I("ds_write_b128 v15, v[24:27]")
    a.I("s_mov_b64 exec, s[36:37]")
    a.I("s_lshl_b32 s25, s16, 11")
    a.I(f"s_add_u32 s25, s25, {LB}")
    a.I("v_lshlrev_b32 v13, 4, v0")
    a.I("v_add_u32 v13, s25, v13")
    a.I("v_bfe_u32 v15, v0, 4, 1")
    a.I("s_lshl_b32 s25, s16, 2")
    a.I(f"s_add_u32 s25, s25, {LB + 8192}")
    a.I("v_lshl_add_u32 v15, v15, 1, s25")
    for j in range(1, 16):
        a.I(f"v_mov_b32 {v(UR + j)}, 0")
    a.I("s_waitcnt lgkmcnt(0)")
    a.I("s_barrier")
    a.I(f"ds_read_u16 {v(UR)}, v15")
    a.I(f"ds_read_b128 {v(ZF, 4)}, v13")
    a.I(f"ds_read_b128 {v(ZF + 4, 4)}, v13 offset:1024")
    a.I("v_and_b32 v15, 1, v0")
    a.I("v_lshlrev_b32 v15, 31, v15")
    a.I("v_cmp_gt_u32 vcc, 32, v0")
    a.I(f"v_mul_f32 {v(NF)}, {f32(1 / 512)}, {v(AFL)}")
    a.I(f"v_mul_f32 {v(BS)}, {v(NF)}, {v(HL)}")
    a.I(f"v_mul_f32 {v(BS)}, 4.0, {v(BS)}")
    a.I("s_waitcnt lgkmcnt(2)")
    a.I(f"v_lshlrev_b32 {v(UR)}, 16, {v(UR)}")
    a.I(f"v_xor_b32 {v(UR)}, {v(UR)}, v15")
    a.I(f"v_cndmask_b32 {v(UR)}, v14, {v(UR)}, vcc")
    a.I("s_waitcnt lgkmcnt(0)")
    a.I("s_nop 0")
    for r in range(2):
        a.I(f"{MF} {v(UR, 16)}, {v(ZF + 4 * r, 4)}, {v(BRE + 4 * r, 4)}, {v(UR, 16)}")
    for r in range(2):
        a.I(f"{MF} {v(UI, 16)}, {v(ZF + 4 * r, 4)}, {v(BIM + 4 * r, 4)}, {'0' if r == 0 else v(UI, 16)}")
    a.I("s_lshr_b32 s25, s21, 1")
    a.I("s_lshl_b32 s25, s25, 4")
    a.I("s_and_b32 s26, s21, 1")
    a.I("s_lshl_b32 s26, s26, 2")
    a.I("s_add_u32 s25, s25, s26")
    a.I("s_lshr_b32 s26, s16, 1")
    a.I("s_lshl_b32 s26, s26, 3")
    a.I("s_add_u32 s25, s25, s26")
    a.I("s_and_b32 s26, s16, 1")
    a.I("s_lshl_b32 s26, s26, 1")
    a.I("s_add_u32 s25, s25, s26")
    a.I("s_lshl_b32 s25, s25, 6")
    a.I("s_add_u32 s25, s25, s20")
    a.I("s_lshl_b32 s25, s25, 11")
    a.I(f"s_add_u32 s26, s25, {64 * 2048}")
    jc = [(j & 3) + 8 * (j >> 2) for j in range(16)]
    twiddle(a, UR, UI, [[j] for j in range(16)], NF, BS, jc, +1, TM)
    pack(a, TR, UR, 8)
    pack(a, TI, UI, 8)
    a.I("v_and_b32 v13, 31, v0")
    a.I("v_lshlrev_b32 v13, 5, v13")
    terms = [(TR, C32), (TR + 4, C32 + 4), (TI, NS32), (TI + 4, NS32 + 4)]
    for i, (A_, B_) in enumerate(terms):
        a.I(f"{MF} {v(UR, 16)}, {v(A_, 4)}, {v(B_, 4)}, {'0' if i == 0 else v(UR, 16)}")
    a.I("v_lshrrev_b32 v15, 5, v0")
    a.I("v_lshl_add_u32 v13, v15, 4, v13")
    a.I("s_nop 9")
    pack(a, 16, UR, 8)
    a.I("s_nop 1")
    for r in range(2):
        a.I(f"v_permlane32_swap_b32 {v(16 + 4 * r)}, {v(18 + 4 * r)}")
        a.I(f"v_permlane32_swap_b32 {v(17 + 4 * r)}, {v(19 + 4 * r)}")
        a.I(f"buffer_store_dwordx4 {v(16 + 4 * r, 4)}, v13, s[32:35], s{25 + r} offen offset:1024")


def gen_b3():
    a = Asm()
    N = "b3_kernel"
    kstart(a, N, 256)
    a.I("s_load_dwordx2 s[4:5], s[0:1], 88")
    a.I("s_load_dwordx2 s[6:7], s[0:1], 72")
    a.I("v_lshrrev_b32 v1, 6, v0")
    a.I("v_mov_b32 v2, v0")
    a.I("v_and_b32 v0, 63, v0")
    a.I("v_readfirstlane_b32 s16, v1")
    b3_body(a)
    kend(a, N)
    return a, N, (256, 256, 8192 + 64)


KERNELS = [gen_b1, gen_qkv, gen_b2, gen_attn, gen_b3, gen_oproj]


ALIASES = [("v_mfma_f32_16x16x32_bf16", "mf16", 4), ("v_mfma_f32_32x32x16_bf16", "mf32", 4),
           ("v_cvt_pk_bf16_f32", "cvtpk", 3)]


def compact(txt):
    lines = txt.split("\n")
    out = []
    done = False
    for l in lines:
        if l.startswith("    "):
            l = l.strip()
            for full, short, n in ALIASES:
                if l.startswith(full + " "):
                    l = short + l[len(full):]
        out.append(l)
        if l.startswith(".amdgcn_target") and not done:
            done = True
            for full, short, n in ALIASES:
                args = ["p%d" % i for i in range(n)]
                out.append(f".macro {short} " + ", ".join(args))
                out.append(f"{full} " + ", ".join("\\" + x for x in args))
                out.append(".endm")
    return "\n".join(out)


def build(kernels, path):
    hdr = open(os.path.join(os.path.dirname(os.path.abspath(__file__)), "..", "cdna_kernels", NAME + ".s.ref")).read()
    head = [l for l in hdr.splitlines() if l.startswith(";") and "@launch" not in l and "Override" not in l
            and "grid=ceil" not in l]
    txt = []
    launches = []
    descs = []
    bad = 0
    for g in kernels:
        KIDX[0] = len(launches)
        a, n, (grid, blk, lds) = g()
        if os.environ.get("PADREF") == n:
            items = []
            done = False
            for it in a.items:
                items.append(it)
                if it[0] == "i" and it[1].text == f"s_cbranch_scc1 {n}_end" and not done:
                    done = True
                    b = Asm()
                    b.I("s_memrealtime s[98:99]")
                    b.I("s_load_dwordx2 s[96:97], s[0:1], 88")
                    b.I("s_cmp_lg_u32 s2, 0")
                    b.I("s_cbranch_scc1 padref_skip")
                    b.I("s_waitcnt lgkmcnt(0)")
                    b.I(f"s_add_u32 s84, s96, {hex(200 * MB)}")
                    b.I("s_addc_u32 s85, s97, 0")
                    b.I("s_mov_b32 s86, 64")
                    b.I("s_mov_b32 s87, 0x20000")
                    b.I("v_mov_b32 v254, s98")
                    b.I("buffer_store_dword v254, off, s[84:87], 0 sc0 sc1")
                    b.label("padref_skip")
                    b.I("s_waitcnt lgkmcnt(0)")
                    items += b.items
            a.items = items
        if os.environ.get("PADK") == n:
            items = []
            cnt = 0
            for it in a.items:
                if it[0] == "i" and it[1].text == f"s_cbranch_scc1 {n}_end" and cnt == 0:
                    items.append(it)
                    b = Asm()
                    b.I("s_memrealtime s[98:99]")
                    if os.environ.get("PADREF"):
                        b.I("s_load_dwordx2 s[96:97], s[0:1], 88")
                        b.I("s_waitcnt lgkmcnt(0)")
                        b.I(f"s_add_u32 s84, s96, {hex(200 * MB)}")
                        b.I("s_addc_u32 s85, s97, 0")
                        b.I("s_mov_b32 s86, 64")
                        b.I("s_mov_b32 s87, 0x20000")
                        b.I("buffer_load_dword v254, off, s[84:87], 0 sc0 sc1")
                        b.I("s_waitcnt vmcnt(0)")
                        b.I("v_readfirstlane_b32 s98, v254")
                    items += b.items
                    cnt = 1
                    continue
                if it[0] == "i" and it[1].mn == "s_endpgm" and not (items[-1][0] == "l" and items[-1][1] == n + "_end" and items[-2][1].mn == "s_endpgm"):
                    b = Asm()
                    lab = None
                    if items[-1][0] == "l" and items[-1][1] == n + "_end":
                        lab = items.pop()
                    cnt += 1
                    b.I("s_waitcnt vmcnt(0) lgkmcnt(0)")
                    b.label(f"pad_{cnt}")
                    b.I("s_memrealtime s[96:97]")
                    b.I("s_waitcnt lgkmcnt(0)")
                    b.I("s_sub_u32 s96, s96, s98")
                    b.I(f"s_cmp_lt_u32 s96, {os.environ['PADT']}")
                    b.I(f"s_cbranch_scc1 pad_{cnt}")
                    items += b.items
                    if lab:
                        items.append(it)
                        items.append(lab)
                items.append(it)
            a.items = items
        if DBGT:
            items = []
            for it in a.items:
                if it[0] == "i" and it[1].mn == "s_endpgm" and not (items and items[-1][0] == "l" and items[-1][1] == n + "_end" and items[-2][1].mn == "s_endpgm"):
                    b = Asm()
                    lab = None
                    if items[-1][0] == "l" and items[-1][1] == n + "_end":
                        lab = items.pop()
                    dbg_stamp(b, 1)
                    items += b.items
                    if lab:
                        items.append(it)
                        items.append(lab)
                items.append(it)
            a.items = items
        bad += len(a.check())
        nv, ns, na = a.maxregs()
        print(f"{n}: {sum(1 for k, _ in a.items if k == 'i')} instrs, vgpr {nv}, agpr {na}, sgpr {ns}")
        launches.append(f"; @launch kernel={n} grid=({grid},1,1) block=({blk},1,1) lds={lds}")
        txt.append(a.text())
        descs.append(kdesc(n, nv, ns, na))
    if bad:
        print("HAZARDS:", bad)
    out = "\n".join(head) + "\n" + "\n".join(launches) + "\n" + '.amdgcn_target "amdgcn-amd-amdhsa--gfx950"\n' + \
          "".join(txt) + "".join(descs)
    out = compact(out)
    open(path, "w").write(out)
    return bad


if __name__ == "__main__":
    p = sys.argv[1] if len(sys.argv) > 1 else os.path.join(os.path.dirname(os.path.abspath(__file__)), "..",
                                                           "cdna_kernels", NAME + ".s")
    sys.exit(1 if build(KERNELS, p) else 0)
```

```python
import sys, os
sys.path.insert(0, os.path.dirname(os.path.abspath(__file__)))
import gen
from gen import *

M16 = "v_mfma_f32_16x16x32_bf16"
SP = os.environ.get("SP", " sc1")
PUMP = int(os.environ.get("PUMP", "5"))
SCAT_AT = int(os.environ.get("SCAT_AT", "52"))
PRE3 = int(os.environ.get("PRE3", "12"))
PF_AT = int(os.environ.get("PF_AT", "66"))
BP = os.environ.get("BP", " nt")
PP = os.environ.get("PP", "")
AP = os.environ.get("AP", "")
LP = os.environ.get("LP", "")
GRP2 = int(os.environ.get("GRP2", "0"))
FILT_AT = int(os.environ.get("FILT_AT", "74"))
LATE_AT = int(os.environ.get("LATE_AT", "50"))
STF = eval(os.environ.get("STF", "(31, 63, 95)"))
B1START = int(os.environ.get("B1START", "6"))


def gen_l1():
    a = Asm()
    N = "l1_kernel"
    kstart(a, N, 256)
    a.I("s_load_dwordx4 s[4:7], s[0:1], 0")
    a.I("s_load_dwordx4 s[8:11], s[0:1], 16")
    a.I("s_load_dwordx2 s[12:13], s[0:1], 32")
    a.I("s_load_dwordx2 s[14:15], s[0:1], 88")
    a.I("s_load_dwordx4 s[60:63], s[0:1], 48")
    a.I("s_load_dwordx2 s[64:65], s[0:1], 64")
    a.I("s_load_dwordx2 s[90:91], s[0:1], 40")
    TID, L16 = 64, 65
    a.I(f"v_and_b32 {v(TID)}, 255, v0")
    a.I("v_lshrrev_b32 v2, 6, v0")
    a.I("v_and_b32 v0, 63, v0")
    a.I("v_readfirstlane_b32 s16, v2")
    st = Stamper(a, "l1")
    st()
    BLDS = 9 * 16384
    a.I("s_nop 0")
    code_touch(a, N, 16, 24, 60, kd=False)
    a.I("s_and_b32 s17, s2, 7")
    a.I("s_lshr_b32 s18, s2, 3")
    a.I("s_and_b32 s19, s18, 7")
    a.I("s_lshr_b32 s18, s18, 3")
    a.I("s_lshl_b32 s40, s17, 2")
    a.I("s_add_u32 s18, s18, s40")
    if os.environ.get("L1MAP", "4x8") == "4x8":
        a.I("s_lshr_b32 s18, s2, 3")
        a.I("s_and_b32 s19, s18, 3")
        a.I("s_and_b32 s40, s17, 1")
        a.I("s_lshl_b32 s40, s40, 2")
        a.I("s_add_u32 s19, s19, s40")
        a.I("s_lshr_b32 s18, s18, 2")
        a.I("s_lshr_b32 s40, s17, 1")
        a.I("s_lshl_b32 s40, s40, 3")
        a.I("s_add_u32 s18, s18, s40")
    a.I("s_mov_b32 s41, 0")
    a.I("s_mul_i32 s42, s18, 6")
    a.I("s_cmp_ge_u32 s18, 11")
    a.I("s_cselect_b32 s41, 1, s41")
    a.I("s_cselect_b32 s40, 64, 0")
    a.I("s_cmp_ge_u32 s18, 21")
    a.I("s_cselect_b32 s41, 2, s41")
    a.I("s_cselect_b32 s40, 126, s40")
    a.I("s_sub_u32 s42, s42, s40")
    a.I("s_lshl_b32 s44, s19, 3")
    a.I("s_add_u32 s44, s44, s16")
    t1, t2, t3, G = 66, 67, 68, 69
    WV, AV, AR_, TB, SK, SV = 1, 3, 7, 9, 21, 22
    a.I(f"v_lshrrev_b32 {v(t1)}, 3, v0")
    a.I(f"v_lshlrev_b32 {v(G)}, 10, {v(t1)}")
    a.I(f"v_lshlrev_b32 {v(t1)}, 13, {v(t1)}")
    a.I("s_lshl_b32 s45, s16, 17")
    a.I(f"v_add_u32 {v(t1)}, s45, {v(t1)}")
    a.I(f"v_bfe_u32 {v(t2)}, v0, 4, 1")
    a.I(f"v_lshlrev_b32 {v(t2)}, 1, {v(t2)}")
    a.I(f"v_and_b32 {v(t3)}, 7, v0")
    a.I(f"v_xor_b32 {v(t2)}, {v(t2)}, {v(t3)}")
    a.I(f"v_lshl_add_u32 {v(WV)}, {v(t2)}, 4, {v(t1)}")
    a.I(f"v_xor_b32 {v(WV + 1)}, 64, {v(WV)}")
    a.I(f"v_add_u32 {v(WV + 1)}, {65536 - 1024}, {v(WV + 1)}")
    a.I("s_lshl_b32 s45, s44, 15")
    a.I(f"v_add_u32 {v(t1)}, s45, {v(G)}")
    a.I(f"v_lshrrev_b32 {v(t2)}, 4, v0")
    a.I(f"v_xor_b32 {v(t2)}, {v(t2)}, {v(t3)}")
    a.I(f"v_lshl_add_u32 {v(AV)}, {v(t2)}, 4, {v(t1)}")
    a.I(f"v_xor_b32 {v(AV + 1)}, 64, {v(AV)}")
    a.I(f"v_add_u32 {v(AV + 1)}, {8192 - 1024}, {v(AV + 1)}")
    a.I(f"v_add_u32 {v(AV + 2)}, {2 * (8192 - 1024)}, {v(AV)}")
    a.I(f"v_add_u32 {v(AV + 3)}, {2 * (8192 - 1024)}, {v(AV + 1)}")
    a.I("s_lshl_b32 s46, s16, 13")
    a.I("s_lshl_b32 s47, s16, 11")
    a.I("s_lshl_b32 s48, s42, 7")
    a.I("s_lshl_b32 s49, s44, 13")
    a.I("s_lshl_b32 s50, s42, 18")
    a.I("s_add_u32 s50, s50, s49")
    a.I("s_add_u32 s53, s48, 512")
    a.I("s_mov_b32 s43, s49")
    a.I(f"v_lshlrev_b32 {v(L16)}, 4, v0")
    a.I("s_lshl_b32 s45, s44, 16")
    a.I("v_lshrrev_b32 v23, 1, v0")
    a.I("v_lshlrev_b32 v23, 13, v23")
    a.I(f"v_and_b32 {v(t1)}, 1, v0")
    a.I(f"v_lshl_add_u32 v23, {v(t1)}, 7, v23")
    a.I("v_add_u32 v23, s45, v23")
    a.I("s_waitcnt lgkmcnt(0)")
    WT0 = os.environ.get("WT0", "0")
    if WT0 != "0":
        a.I("s_cmp_ge_u32 s16, 6")
        a.I(f"s_cbranch_scc1 {N}_nwt")
        a.I("s_lshr_b32 s40, s16, 1")
        a.I("s_cmp_eq_u32 s40, 1")
        a.I("s_cselect_b32 s20, s8, s10")
        a.I("s_cselect_b32 s21, s9, s11")
        a.I("s_cmp_eq_u32 s40, 2")
        a.I("s_cselect_b32 s20, s12, s20")
        a.I("s_cselect_b32 s21, s13, s21")
        a.I(f"s_mov_b32 s22, {hex(4 * MB)}")
        a.I("s_mov_b32 s23, 0x20000")
        a.I("s_and_b32 s40, s16, 1")
        a.I("s_lshl1_add_u32 s40, s2, s40")
        a.I("s_lshl_b32 s40, s40, 13")
        a.I(f"v_lshlrev_b32 {v(t1)}, 7, v0")
        a.I(f"buffer_load_dword v59, {v(t1)}, s[20:23], s40 offen")
        a.label(f"{N}_nwt")
    a.I("s_lshl_b32 s45, s44, 18")
    a.I("s_lshl_b32 s40, s42, 12")
    a.I("s_add_u32 s45, s45, s40")
    a.I(f"s_mov_b32 s92, {hex(512 * 1024)}")
    a.I("s_cmp_eq_u32 s41, 2")
    a.I("s_cselect_b32 s50, s45, s50")
    a.I("s_cselect_b32 s92, 0x2000, s92")
    a.I("s_cselect_b32 s20, s4, s6")
    a.I("s_cselect_b32 s21, s5, s7")
    a.I("s_cselect_b32 s24, s8, s10")
    a.I("s_cselect_b32 s25, s9, s11")
    a.I(f"s_cselect_b32 s51, {hex(WS_Q)}, 0")
    a.I(f"s_cselect_b32 s52, {f32(QSCALE)}, 1.0")
    a.I("s_cmp_eq_u32 s41, 1")
    a.I("s_cselect_b32 s24, s12, s24")
    a.I("s_cselect_b32 s25, s13, s25")
    a.I(f"s_cselect_b32 s51, {hex(WS_V)}, s51")
    a.I("s_mov_b32 s32, s24")
    a.I("s_mov_b32 s33, s25")
    a.I(f"s_mov_b32 s40, {hex(WS_V)}")
    a.I("s_cmp_eq_u32 s18, 10")
    a.I("s_cselect_b32 s32, s12, s32")
    a.I("s_cselect_b32 s33, s13, s33")
    a.I("s_cselect_b32 s53, 0, s53")
    a.I(f"s_add_u32 s45, s49, {hex(31 << 19)}")
    a.I("s_cmp_eq_u32 s18, 31")
    a.I("s_cselect_b32 s53, s48, s53")
    a.I("s_cselect_b32 s43, s50, s43")
    a.I(f"s_cselect_b32 s40, {hex(WS_Q)}, s40")
    a.I("s_cselect_b32 s24, s12, s24")
    a.I("s_cselect_b32 s25, s13, s25")
    a.I(f"s_cselect_b32 s48, {62 * 128}, s48")
    a.I(f"s_cselect_b32 s51, {hex(WS_V)}, s51")
    a.I("s_cselect_b32 s20, s6, s20")
    a.I("s_cselect_b32 s21, s7, s21")
    a.I("s_cselect_b32 s50, s45, s50")
    a.I(f"s_mov_b32 s22, {hex(2 * MB)}")
    a.I("s_mov_b32 s23, 0x20000")
    a.I(f"s_mov_b32 s26, {hex(4 * MB)}")
    a.I("s_mov_b32 s27, 0x20000")

    def late_setup():
        a.I(f"s_mov_b32 s34, {hex(4 * MB)}")
        a.I("s_mov_b32 s35, 0x20000")
        srd(a, 28, 14, 15, 16 * MB, add="s51")
        srd(a, 36, 14, 15, 16 * MB, add="s40")
        srd(a, 56, 4, 5, 2 * MB)
        if os.environ.get("XDROP") == "q":
            a.I("s_cmp_eq_u32 s41, 2")
            a.I("s_cselect_b32 s30, 0, s30")
        if os.environ.get("XDROP") == "all":
            a.I("s_mov_b32 s30, 0")
            a.I("s_mov_b32 s38, 0")
        a.I("s_add_u32 s13, s48, 256")
        a.I("s_add_u32 s17, s53, 256")
        a.I("s_cmp_eq_u32 s18, 31")
        a.I("s_cselect_b32 s4, s32, s24")
        a.I("s_cselect_b32 s5, s33, s25")
        a.I("s_cselect_b32 s13, s53, s13")
        a.I("s_cselect_b32 s17, s17, s53")
        a.I(f"s_mov_b32 s6, {hex(4 * MB)}")
        a.I("s_mov_b32 s7, 0x20000")

    def w_prefetch(g):
        for th, (col, sr) in enumerate([("s13", "s[4:7]"), ("s17", "s[32:35]")]):
            g.lq.append((["s_mov_b64 exec, 0xffff"], f"buffer_load_dword {v(61 + th)}, v23, {sr}, {col} offen{PP}", "pf"))

    def addr_setup():
        a.I(f"v_lshrrev_b32 {v(G)}, 4, v0")
        a.I(f"v_bfe_u32 {v(t1)}, v0, 3, 1")
        a.I(f"v_lshlrev_b32 {v(t1)}, 4, {v(t1)}")
        a.I(f"v_and_b32 {v(t2)}, 7, v0")
        a.I(f"v_add_u32 {v(t1)}, {v(t1)}, {v(t2)}")
        a.I(f"v_bfe_u32 {v(t2)}, {v(t1)}, 1, 3")
        a.I(f"v_xor_b32 {v(t2)}, {v(t2)}, {v(G)}")
        a.I(f"v_lshlrev_b32 {v(t2)}, 4, {v(t2)}")
        a.I(f"v_lshl_add_u32 {v(AR_)}, {v(t1)}, 7, {v(t2)}")
        a.I(f"v_xor_b32 {v(AR_ + 1)}, 64, {v(AR_)}")
        a.I(f"v_add_u32 {v(AR_)}, s46, {v(AR_)}")
        a.I(f"v_add_u32 {v(AR_ + 1)}, s46, {v(AR_ + 1)}")
        a.I(f"v_lshlrev_b32 {v(t2)}, 9, {v(G)}")
        a.I(f"v_lshl_add_u32 {v(SK)}, {v(t1)}, 4, {v(t2)}")
        a.I(f"v_and_b32 {v(t3)}, 15, v0")
        a.I(f"v_lshl_add_u32 {v(SV)}, {v(t3)}, 4, {v(t2)}")
        a.I(f"v_bfe_u32 {v(t1)}, v0, 2, 2")
        a.I(f"v_lshl_add_u32 {v(t1)}, {v(G)}, 3, {v(t1)}")
        a.I(f"v_lshlrev_b32 {v(t1)}, 7, {v(t1)}")
        a.I(f"v_and_b32 {v(t2)}, 3, v0")
        a.I(f"v_lshl_add_u32 {v(t1)}, {v(t2)}, 3, {v(t1)}")
        a.I(f"v_bfe_u32 {v(t2)}, v0, 3, 2")
        a.I(f"v_lshl_add_u32 {v(t1)}, {v(t2)}, 5, {v(t1)}")
        for ct in range(4):
            a.I(f"v_xor_b32 {v(TB + ct)}, {32 * ct}, {v(t1)}")
        for ct in range(4):
            a.I(f"v_add_u32 {v(TB + 4 + ct)}, 0x10000, {v(TB + ct)}")
            a.I(f"v_add_u32 {v(TB + 8 + ct)}, 0x20000, {v(TB + ct)}")

    def b_common():
        a.I("s_and_b32 s8, s2, 7")
        a.I("s_lshl_b32 s8, s8, 3")
        a.I("s_bfe_u32 s9, s2, 0x30003")
        a.I("s_or_b32 s8, s8, s9")
        a.I("s_lshr_b32 s9, s2, 6")
        a.I("s_lshr_b32 s66, s9, 1")
        a.I("s_lshl_b32 s66, s66, 11")
        a.I("s_lshr_b32 s10, s8, 5")
        a.I("s_lshl_b32 s10, s10, 10")
        a.I("s_add_u32 s66, s66, s10")
        a.I("s_and_b32 s10, s8, 31")
        a.I("s_lshl_b32 s10, s10, 4")
        a.I("s_add_u32 s66, s66, s10")
        a.I("s_and_b32 s10, s9, 1")
        a.I("s_lshl_b32 s10, s10, 9")
        a.I("s_add_u32 s66, s66, s10")

    HL, NF, BS, F2, TM, X1, X2, X3 = 70, 71, 72, 73, 74, 78, 79, 80
    C32, NS32, AR, AI, XF, D1R, D1I, TR, TI, D2 = 84, 92, 100, 104, 108, 116, 132, 148, 158, 168
    pc8 = [PERMC(j) for j in range(8)]

    def fft_loads(vm):
        a.I("s_lshr_b32 s10, s9, 1")
        a.I("s_lshl_b32 s10, s10, 4")
        a.I("s_and_b32 s11, s9, 1")
        a.I("s_lshl_b32 s11, s11, 2")
        a.I("s_add_u32 s10, s10, s11")
        a.I("s_lshr_b32 s11, s16, 1")
        a.I("s_lshl_b32 s11, s11, 3")
        a.I("s_add_u32 s10, s10, s11")
        a.I("s_and_b32 s11, s16, 1")
        a.I("s_lshl_b32 s11, s11, 1")
        a.I("s_add_u32 s10, s10, s11")
        a.I("s_lshl_b32 s10, s10, 6")
        a.I("s_add_u32 s10, s10, s8")
        a.I("s_lshl_b32 s10, s10, 10")
        a.I(f"s_add_u32 s11, s10, {65536 - 1024}")
        a.I(f"s_add_u32 s3, s47, {BLDS}")
        a.I("s_mov_b32 m0, s3")
        a.I(f"s_mov_b32 s62, {hex(2 * MB)}")
        a.I("s_mov_b32 s63, 0x20000")
        vm.issue(f"buffer_load_dwordx4 {v(L16)}, s[60:63], s10 offen{BP} lds", "bx")
        vm.issue(f"buffer_load_dwordx4 {v(L16)}, s[60:63], s11 offen offset:1024{BP} lds", "bx")

    def fft_compute(g):
        vm = g.vm
        a.I(f"v_lshrrev_b32 {v(X2)}, 5, v0")
        a.I(f"v_cvt_f32_u32 {v(HL)}, {v(X2)}")
        a.I(f"v_and_b32 {v(F2)}, 31, v0")
        a.I(f"v_cvt_f32_u32 {v(F2)}, {v(F2)}")
        a.I(f"v_mul_f32 {v(NF)}, {f32(1 / 32)}, {v(F2)}")
        a.I(f"v_mul_f32 {v(BS)}, {v(NF)}, {v(HL)}")
        a.I(f"v_mul_f32 {v(BS)}, {f32(8.0)}, {v(BS)}")
        nat = [16 * t + j for t in range(2) for j in range(8)]
        gen_mat(a, C32, NF, BS, nat, TM)
        a.I(f"v_add_f32 {v(BS)}, {f32(0.25)}, {v(BS)}")
        gen_mat(a, NS32, NF, BS, nat, TM)
        a.I(f"v_bfe_u32 {v(X1)}, v0, 4, 1")
        a.I(f"v_lshlrev_b32 {v(X1)}, 10, {v(X1)}")
        a.I(f"v_lshl_add_u32 {v(X1)}, {v(X2)}, 8, {v(X1)}")
        a.I(f"v_and_b32 {v(X3)}, 15, v0")
        a.I(f"v_lshl_add_u32 {v(X1)}, {v(X3)}, 3, {v(X1)}")
        a.I(f"v_add_u32 {v(X1)}, s3, {v(X1)}")
        vm.wait("bx")
        for t in range(2):
            for h in range(2):
                a.I(f"ds_read_b64_tr_b16 {v(XF + 4 * t + 2 * h, 2)}, {v(X1)} offset:{t * 512 + h * 128}")
        a.I(f"v_cvt_f32_u32 {v(X3)}, {v(X3)}")
        a.I(f"v_mul_f32 {v(NF)}, {f32(1 / 16)}, {v(X3)}")
        a.I(f"v_bfe_u32 {v(X1)}, v0, 4, 1")
        a.I(f"v_cvt_f32_u32 {v(X1)}, {v(X1)}")
        a.I(f"v_mul_f32 {v(BS)}, {v(NF)}, {v(HL)}")
        a.I(f"v_mul_f32 {v(BS)}, 4.0, {v(BS)}")
        a.I(f"v_fmamk_f32 {v(BS)}, {v(X1)}, {f32(0.25)}, {v(BS)}")
        a.I("s_waitcnt lgkmcnt(0)")
        for D, Mx in ((D1R, C32), (D1I, NS32)):
            for t in range(2):
                a.I(f"{MF} {v(D, 16)}, {v(XF + 4 * t, 4)}, {v(Mx + 4 * t, 4)}, {'0' if t == 0 else v(D, 16)}")
        gen_mat(a, AR, NF, BS, pc8, TM)
        a.I(f"v_add_f32 {v(BS)}, {f32(-0.25)}, {v(BS)}")
        gen_mat(a, AI, NF, BS, pc8, TM)
        a.I(f"v_mul_f32 {v(NF)}, {f32(1 / 512)}, {v(F2)}")
        a.I(f"v_mul_f32 {v(BS)}, {v(NF)}, {v(HL)}")
        a.I(f"v_mul_f32 {v(BS)}, 4.0, {v(BS)}")
        twiddle(a, D1R, D1I, [[j, j + 8] for j in range(8)], NF, BS, pc8, -1, TM)
        pack(a, TR, D1R, 8)
        pack(a, TI, D1I, 8)
        a.I(f"v_and_b32 {v(X3)}, 31, v0")
        a.I(f"v_lshlrev_b32 {v(X3)}, 4, {v(X3)}")
        for r in range(2):
            a.I(f"{MF} {v(D2 + 16 * r, 16)}, {v(AR, 4)}, {v(TR + 4 * r, 4)}, 0")
            a.I(f"{MF} {v(D2 + 16 * r, 16)}, {v(AI, 4)}, {v(TI + 4 * r, 4)}, {v(D2 + 16 * r, 16)}")
        a.I(f"v_lshl_add_u32 {v(X3)}, {v(X2)}, 11, {v(X3)}")
        a.I("s_lshl_b32 s10, s16, 2")
        a.I(f"s_add_u32 s11, s10, {BLDS + 8192}")
        a.I(f"v_add_u32 {v(X3)}, s11, {v(X3)}")
        a.I(f"v_mov_b32 {v(X2)}, s10")
        a.I(f"s_add_u32 s67, s66, {256 * 8192}")
        a.I(f"s_add_u32 s11, s66, {256 * 8192 + 4096}")
        srd(a, 60, 14, 15, 8 * MB, add=WS_Y)
        a.I("s_nop 1")
        for c in range(2):
            for j in range(5):
                a.I(f"v_cvt_pk_bf16_f32 {v(TR + 5 * c + j)}, {v(D2 + 8 * c + j)}, {v(D2 + 16 + 8 * c + j)}")
        for c in range(2):
            for j in range(4):
                a.I(f"ds_write_b32 {v(X3)}, {v(TR + 5 * c + j)} offset:{(c * 8 + j) * 512}")
        a.I = I0
        a.I("s_mov_b64 exec, 1")
        vm.issue(f"buffer_store_dword {v(TR + 4)}, {v(X2)}, s[60:63], s67 offen", "bs")
        vm.issue(f"buffer_store_dword {v(TR + 9)}, {v(X2)}, s[60:63], s11 offen", "bs")
        a.I("s_mov_b64 exec, -1")

    WFR, WFP, FX1, FX2 = 176, 52, 186, 187

    def filt_setup():
        a.I("s_lshr_b32 s10, s9, 1")
        a.I("s_lshl_b32 s10, s10, 5")
        a.I("s_lshr_b32 s11, s8, 5")
        a.I("s_lshl_b32 s11, s11, 4")
        a.I("s_add_u32 s10, s10, s11")
        a.I("s_and_b32 s11, s9, 1")
        a.I("s_lshl_b32 s11, s11, 2")
        a.I("s_add_u32 s10, s10, s11")
        a.I("s_lshl_b32 s10, s10, 5")
        a.I("s_and_b32 s11, s8, 31")
        a.I("s_add_u32 s10, s10, s11")
        a.I("s_mul_i32 s19, s10, 514")
        a.I(f"v_lshlrev_b32 {v(FX1)}, 1, {v(TID)}")
        a.I(f"v_and_b32 {v(FX2)}, 3, v0")
        a.I(f"v_bfe_u32 {v(t1)}, v0, 2, 1")
        a.I(f"v_lshl_add_u32 {v(FX2)}, {v(t1)}, 3, {v(FX2)}")
        a.I(f"v_mul_u32_u24 {v(FX2)}, {32 * 514}, {v(FX2)}")
        a.I(f"v_add_u32 {v(FX2)}, 512, {v(FX2)}")
        a.I("s_cmp_ge_u32 s16, 4")
        a.I("s_cselect_b32 s8, s64, s0")
        a.I("s_cselect_b32 s9, s65, s1")
        a.I(f"s_mov_b32 s10, {2048 * 514}")
        a.I("s_mov_b32 s11, 0x20000")

    def filt_loads(g):
        for j in range(8):
            g.lq.append(([f"s_add_u32 s12, s19, {PERMC(j) * 32 * 514}"],
                         f"buffer_load_ushort {v(WFR + j)}, {v(FX1)}, s[8:11], s12 offen{BP}", "wf"))
        g.lq.append(([], f"buffer_load_ushort {v(WFR + 8)}, {v(FX2)}, s[8:11], s19 offen{BP}", "wf"))

    def filt_finish(g):
        vm = g.vm
        L = [lambda: (g.flush("wf"), vm.wait("wf"))]
        for i in range(4):
            L.append(lambda i=i: a.I(f"v_lshl_or_b32 {v(WFP + i)}, {v(WFR + 1 + 2 * i)}, 16, {v(WFR + 2 * i)}"))
        L.append(lambda: a.I(f"v_lshlrev_b32 {v(YS)}, 12, {v(FX1)}"))
        L.append(lambda: a.I(f"v_lshlrev_b32 {v(FX2)}, 1, v0"))
        L.append(lambda: (a.I("s_mov_b64 exec, 0xff"),
                          vm.issue(f"buffer_store_short {v(WFR + 8)}, {v(FX2)}, s[60:63], s67 offen", "bs"),
                          a.I("s_mov_b64 exec, -1")))
        return L

    def scat(g):
        g.vm.issue(f"buffer_store_dwordx4 {v(YD, 4)}, {v(YS)}, s[60:63], s66 offen", "bs")

    def scat_next():
        for i in range(4):
            a.I(f"v_mov_b32 {v(YD + i)}, {v(WFP + i)}")
        a.I(f"s_add_u32 s66, s66, {hex(WS_WF - WS_Y)}")

    YA, YD, YS = 56, 48, 23
    ACC, RING, PK, AFB = 192, 24, 56, 64
    LOOK = 4
    AHEAD = int(os.environ.get("AHEAD", "4"))

    def AF(rt, k):
        return AFB + (k * 2 + rt) * 4

    class Gen:
        def __init__(self, passes, nmerge, vmq):
            self.passes, self.nmerge = passes, nmerge
            self.vm, self.lg = VM(a), LG(a)
            self.vm.q = list(vmq)
            self.busy, self.nxt, self.dq, self.lq = {}, 0, [], []
            self.chunks, self.frags, self.groups = [], [], {}
            for pp in range(0, len(passes), 2):
                if pp // 2 < nmerge:
                    for kc in range(4):
                        c = len(self.chunks)
                        self.chunks += [(pp, kc), (pp + 1, kc)]
                        self.groups[len(self.frags)] = [c, c + 1]
                        for ks in range(4):
                            for h in range(2):
                                self.frags += [(c + h, ks, ct) for ct in range(4)]
                else:
                    for q in range(2):
                        for kc in range(4):
                            c = len(self.chunks)
                            self.chunks.append((pp + q, kc))
                            if GRP2 == 0:
                                self.groups[len(self.frags)] = [c]
                            elif kc % 2 == 0:
                                self.groups[len(self.frags)] = [c, c + 1]
                            self.frags += [(c, ks, ct) for ks in range(4) for ct in range(4)]
            self.prev = [[], []]
            self.b1busy = True
            self.skip_boundary = False

        def blk(self, c):
            nm = 8 * self.nmerge
            if c < nm:
                return 4 + 2 * ((c // 2) % 3) + (c & 1)
            if self.nmerge == 1:
                return [6, 7, 8, 9, 0, 1, 2, 3][(c - nm) % 8]
            return [8, 9, 4, 5, 0, 1, 2, 3][(c - nm) % 8]

        def dmaW(self, now, done):
            c = self.nxt
            if c >= len(self.chunks) or c > now + AHEAD:
                return False
            b = self.blk(c)
            if b in self.busy and self.busy[b] not in done:
                return False
            if b == 9 and self.b1busy:
                return False
            if b < 4 and now < 8 * self.nmerge:
                return False
            self.busy[b] = c
            self.nxt += 1
            pp, kc = self.chunks[c]
            form, wsel, wdi, osel, odi = self.passes[pp]
            sr = "s[32:35]" if wsel else "s[24:27]"
            for q in range(2):
                pre = [f"s_add_u32 m0, s47, {hex(b * 16384)}",
                       f"s_add_u32 s45, {'s53' if wsel else 's48'}, {hex((kc << 20) + wdi * 128)}"] if q == 0 else []
                self.dq.append((pre, f"buffer_load_dwordx4 {v(WV + q)}, {sr}, s45 offen offset:{q * 1024}{LP} lds", ("W", c)))
            return True

        def pump(self, n=1):
            for _ in range(n):
                q = self.dq or self.lq
                if q:
                    pre, ins, tag = q.pop(0)
                    a.many(pre)
                    self.vm.issue(ins, tag)
                    if tag == "pf":
                        a.I("s_mov_b64 exec, -1")

        def flush(self, tag=None):
            while any(tag is None or x[2] == tag for x in self.dq + self.lq):
                self.pump()

        def dmaA(self, j):
            sr = "s[56:59]" if j >= 8 else "s[20:23]"
            k = 0
            while k < len(self.dq) and not self.dq[k][0]:
                k += 1
            for i in range(4):
                pre = [f"s_add_u32 m0, s46, {hex((j % 2) * 4096)}", f"s_mov_b32 s45, {(j % 8) * 128}"] if i == 0 else []
                self.dq.insert(k + i, (pre, f"buffer_load_dwordx4 {v(AV + i)}, {sr}, s45 offen offset:{i * 1024}{AP} lds", ("A", j)))

        def readA(self, j):
            self.flush(("A", j))
            self.vm.wait(("A", j))
            for ks in range(2):
                for x in range(2):
                    self.lg.issue(f"ds_read_b128 {v(AF(x, 2 * (j % 8) + ks), 4)}, {v(AR_ + (ks ^ x))} "
                                  f"offset:{(j % 2) * 4096 + x * 1024}", ("A", j))

        def reads(self, i, halves=(0, 1)):
            c, ks, ct = self.frags[i]
            b = self.blk(c)
            base = TB + 4 * (b // 4) + ct
            off = (b % 4) * 16384 + ks * 4096
            d = RING + 4 * slot(i)
            for h in halves:
                self.lg.issue(f"ds_read_b64_tr_b16 {v(d + 2 * h, 2)}, {v(base)} offset:{off + 512 * h}", ("W", i))

        def sync(self, grp):
            for c in grp:
                self.flush(("W", c))
            self.vm.wait([("W", c) for c in grp])
            a.I("s_barrier")
            lo = self.prev[1][0] if self.prev[1] else 0
            done = set(range(lo))
            if self.prev[1]:
                self.b1busy = False
            self.prev = [self.prev[1], grp]
            while self.dmaW(grp[0], done):
                pass

        def acc(self, pp, rt, ct):
            return ACC + 32 * (pp & 1) + 4 * (4 * rt + ct)

        def epi(self, pp):
            out = []
            form, wsel, wdi, osel, u = self.passes[pp]
            so = 54 + (pp & 1)
            sr = "s[36:39]" if osel else "s[28:31]"
            def so_calc():
                a.I(f"s_add_u32 s{so}, {'s43' if osel else 's50'}, {(u & 1) * 4096}")
                assert (u >> 1) in (-1, 0, 1)
                if u >> 1:
                    a.I(f"s_{'add' if (u >> 1) > 0 else 'sub'}_u32 s{so}, s{so}, s92")
            out.append(so_calc)
            for q in range(4):
                pk = PK + 4 * (q % 2)
                if form == "K":
                    x, cp = divmod(q, 2)
                    srcs = [self.acc(pp, x, 2 * cp), self.acc(pp, x, 2 * cp + 1)]
                    off, va = x * 128 + cp * 2048, SK
                else:
                    srcs = [self.acc(pp, 0, q), self.acc(pp, 1, q)]
                    off, va = (q >> 1) * 2048 + (q & 1) * 256, SV
                for i in range(4):
                    src = srcs[i // 2] + 2 * (i % 2)
                    if form == "K":
                        out.append(lambda src=src: a.I(f"v_mul_f32 {v(src)}, s52, {v(src)}"))
                        out.append(lambda src=src: a.I(f"v_mul_f32 {v(src + 1)}, s52, {v(src + 1)}"))
                    out.append(lambda src=src, pk=pk, i=i: a.I(f"v_cvt_pk_bf16_f32 {v(pk + i)}, {v(src)}, {v(src + 1)}"))
                out.append(lambda pk=pk, va=va, off=off: self.vm.issue(
                    f"buffer_store_dwordx4 {v(pk, 4)}, {v(va)}, {sr}, s{so} offen offset:{off}{SP}", ("S", pp)))
            return out

        def boundary(self, pps):
            self.flush("pf")
            self.vm.wait("pf")
            a.I("s_nop 6")
            for pp in pps:
                for f in self.epi(pp):
                    f()

        def run(self, p0, p1):
            lg = self.lg
            NF_ = len(self.frags)
            NA = 8 * self.nmerge
            pend = []
            for i in range(64 * p0, 64 * p1):
                c, ks, ct = self.frags[i]
                pp, kc = self.chunks[c]
                k = 4 * kc + ks
                if i % 128 == 0 and 0 < i <= 128 * self.nmerge and not self.skip_boundary:
                    self.boundary([i // 64 - 2] + ([i // 64 - 1] if i < 128 * self.nmerge else []))
                if i % 2 == 0:
                    lg.wait([("W", i), ("W", i + 1), ("A", i // 16)])
                if i % 16 == 0 and i // 16 + 2 < NA:
                    self.dmaA(i // 16 + 2)
                wf = v(RING + 4 * slot(i), 4)
                j = i + LOOK
                for rt in range(2):
                    ac = v(self.acc(pp, rt, ct), 4)
                    af = v(AF(rt, k), 4)
                    cin = "0" if k == 0 else ac
                    if self.passes[pp][0] == "V":
                        a.I(f"{M16} {ac}, {af}, {wf}, {cin}")
                    else:
                        a.I(f"{M16} {ac}, {wf}, {af}, {cin}")
                    if j < NF_:
                        if rt == 0 and j in self.groups:
                            self.sync(self.groups[j])
                        if rt == 0 and j % 16 == 0 and j // 16 < NA:
                            self.readA(j // 16)
                        self.reads(j, (rt,))
                    if rt == 0 and pend:
                        pend.pop(0)()
                    if rt == 1 and i % 2 == 0:
                        if self.dq or self.lq:
                            self.pump(1)
                        elif pend:
                            pend.pop(0)()
                if i % 64 == 63:
                    assert not pend
                if i % 64 == 3 and i >= 128 * self.nmerge:
                    pend = self.epi(i // 64 - 1)
                if i == PF_AT:
                    w_prefetch(self)
                if i == LATE_AT:
                    filt_loads(self)
                if i == FILT_AT:
                    pend = filt_finish(self)
                if i >= 128 and i % 128 == SCAT_AT:
                    scat(self)
                if i >= 128 and i % 128 == 127:
                    scat_next()
                if i in STF:
                    st()
            self.flush()

        def wo_load(self):
            blk = 4 if self.nmerge == 1 else 6
            srd(a, 8, 90, 91, 4 * MB)
            a.I("s_lshl_b32 s12, s2, 14")
            a.I("s_lshl_b32 s13, s16, 7")
            a.I("s_add_u32 s12, s12, s13")
            a.I(f"s_add_u32 s13, s12, {8192 - 1024}")
            a.I(f"s_add_u32 s17, s47, {blk * 16384}")
            a.I("s_mov_b32 m0, s17")
            a.I(f"v_lshrrev_b32 {v(AV)}, 3, v0")
            a.I(f"v_lshlrev_b32 {v(AV)}, 10, {v(AV)}")
            a.I(f"v_and_b32 {v(AV + 1)}, 7, v0")
            a.I(f"v_lshl_add_u32 {v(AV)}, {v(AV + 1)}, 4, {v(AV)}")
            self.vm.issue(f"buffer_load_dwordx4 {v(AV)}, s[8:11], s12 offen{BP} lds", "wo")
            self.vm.issue(f"buffer_load_dwordx4 {v(AV)}, s[8:11], s13 offen offset:1024{BP} lds", "wo")
            a.I(f"v_lshrrev_b32 {v(AV + 1)}, 5, v0")
            a.I(f"v_bfe_u32 {v(AV + 2)}, v0, 2, 2")
            a.I(f"v_lshl_add_u32 {v(AV + 1)}, {v(AV + 1)}, 2, {v(AV + 2)}")
            a.I(f"v_lshlrev_b32 {v(AV + 1)}, 7, {v(AV + 1)}")
            a.I(f"v_bfe_u32 {v(AV + 2)}, v0, 4, 1")
            a.I(f"v_lshl_add_u32 {v(AV + 1)}, {v(AV + 2)}, 5, {v(AV + 1)}")
            a.I(f"v_and_b32 {v(AV + 2)}, 3, v0")
            a.I(f"v_lshl_add_u32 {v(AV + 1)}, {v(AV + 2)}, 3, {v(AV + 1)}")
            a.I(f"v_add_u32 {v(AV + 1)}, s17, {v(AV + 1)}")
            a.I(f"v_lshlrev_b32 {v(AV + 2)}, 4, v0")
            a.I("s_lshl_b32 s17, s16, 19")
            a.I("s_lshl_b32 s13, s2, 11")
            a.I("s_add_u32 s17, s17, s13")

        def fin(self, pp):
            self.vm.wait("wo")
            for cb in range(2):
                for h in range(2):
                    a.I(f"ds_read_b64_tr_b16 {v(RING + 4 * cb + 2 * h, 2)}, {v(AV + 1)} offset:{cb * 64 + h * 1024}")
            srd(a, 8, 14, 15, 4 * MB, add=WS_WO)
            a.I("s_waitcnt lgkmcnt(0)")
            for cb in range(2):
                a.I(f"buffer_store_dwordx4 {v(RING + 4 * cb, 4)}, {v(AV + 2)}, s[8:11], s17 offen offset:{cb * 1024}{SP}")
            code_touch(a, "attn_kernel", 16, 20, 32)
            for f in self.epi(pp):
                f()
            st.dump(16, 14, tmpv=24)
            a.I("s_endpgm")


    def slot(i):
        j = i % 128
        return j % 6 if j < 108 else (j - 108) % 5

    I0 = a.I
    cnt = [0]
    gp = [None]

    def Ipump(text):
        r = I0(text)
        if text.startswith("v_") and not text.startswith("v_mfma"):
            cnt[0] += 1
            if cnt[0] % PUMP == 0 and gp[0].dq:
                a.I = I0
                gp[0].pump()
                a.I = Ipump
        return r

    b_common()
    a.I("s_mov_b64 s[0:1], s[62:63]")
    g0 = Gen([("K", 0, i, 0, i) for i in range(2)], 1, [])
    a.I("s_cmp_ge_u32 s16, 4")
    a.I(f"s_cbranch_scc1 {N}_nofl")
    fft_loads(VM(a))
    a.label(f"{N}_nofl")
    for _ in range(2):
        g0.dmaW(0, set())
    g0.dmaA(0)
    g0.flush()
    g0.dmaA(1)
    for _ in range(2):
        g0.dmaW(0, set())
    g0.flush()
    st()
    late_setup()
    addr_setup()
    g0.dmaW(0, set())
    a.I("s_cmp_ge_u32 s16, 4")
    a.I(f"s_cbranch_scc1 {N}_join")
    gf = Gen([("K", 0, i, 0, i) for i in range(2)], 1, ["bx", "bx"] + g0.vm.q)
    fft_compute(gf)
    a.label(f"{N}_join")
    filt_setup()
    if os.environ.get("L1PRIO"):
        a.I("s_cmp_lt_u32 s16, 4")
        a.I(f"s_cbranch_scc1 {N}_np")
        a.I(f"s_setprio {os.environ['L1PRIO']}")
        a.label(f"{N}_np")
    srd(a, 60, 14, 15, 8 * MB, add=WS_Y)
    vmq = list(g0.vm.q)
    st()
    stn = st.n
    def y_prep():
        a.I(f"v_lshlrev_b32 {v(YA)}, 4, {v(TID)}")
        a.I("s_lshr_b32 s12, s16, 2")
        a.I("s_lshl_b32 s12, s12, 12")
        a.I("s_add_u32 s66, s66, s12")
        a.I(f"s_add_u32 s67, s66, {256 * 8192 + WS_WF - WS_Y}")
        a.I(f"s_add_u32 s12, s12, {BLDS + 8192}")
        a.I(f"v_add_u32 {v(YA)}, s12, {v(YA)}")

    y_prep()

    def mkgen(passes, nmerge=1):
        g = Gen(passes, nmerge, vmq)
        g.busy, g.nxt, g.dq = dict(g0.busy), g0.nxt, list(g0.dq)
        st.n = stn
        return g

    def start(g):
        a.I("s_waitcnt lgkmcnt(0)")
        g.readA(0)
        g.sync(g.groups[0])
        st()
        g.lg.issue(f"ds_read_b128 {v(YD, 4)}, {v(YA)}", "y")
        for i in range(LOOK):
            g.reads(i)

    def capture(fn):
        n0 = len(a.items)
        fn()
        seg = a.items[n0:]
        del a.items[n0:]
        return seg

    def merge(s1, s2):
        import asmlib
        assert len(s1) == len(s2), (len(s1), len(s2))
        out = []
        for x, y in zip(s1, s2):
            if x[0] == "i" and x[1].text != y[1].text:
                assert x[1].text.startswith("s_waitcnt vmcnt") and y[1].text.startswith("s_waitcnt vmcnt"), (x[1].text, y[1].text)
                n = min(int(x[1].text[16:-1]), int(y[1].text[16:-1]))
                out.append(("i", asmlib.Ins(f"s_waitcnt vmcnt({n})")))
            else:
                out.append(x)
        return out

    def looped(F, lab):
        def plist(pair):
            L = []
            for pp in range(8):
                if pair == 0:
                    L.append((F, 0, pp, 0, pp))
                else:
                    rel = pp - pair
                    L.append((F, 1 if rel >= 2 else 0, rel - 2 if rel >= 2 else rel, 0, rel))
            return L
        g = mkgen(plist(0))
        start(g)
        g.run(0, 2)
        g.boundary([0])
        g.skip_boundary = True
        g.wo_load()
        st()
        a.I("s_add_u32 s48, s48, 256")
        a.I("s_add_u32 s50, s50, s92")
        a.I("s_mov_b32 s44, 0")
        g.passes = plist(2)
        s1 = capture(lambda: g.run(2, 4))
        g.passes = plist(4)
        s2 = capture(lambda: g.run(4, 6))
        a.label(lab + "_loop")
        mg = merge(s1, s2)
        drop = os.environ.get("DROP", "").split(",")

        def keep(x):
            if x[0] != "i":
                return True
            tx = x[1].text
            if "dma" in drop and tx.endswith(" lds"):
                return False
            if "st" in drop and tx.startswith("buffer_store"):
                return False
            if "valu" in drop and x[1].cls == "valu":
                return False
            if "bar" in drop and tx == "s_barrier":
                return False
            if "rd" in drop and tx.startswith("ds_read"):
                return False
            if "vw" in drop and tx.startswith("s_waitcnt vm"):
                return False
            if "lw" in drop and tx.startswith("s_waitcnt lg"):
                return False
            return True
        a.items += [x for x in mg if keep(x)]
        if F == "K":
            a.I("s_cmp_eq_u32 s18, 10")
            a.I(f"s_cbranch_scc1 {N}_Ctail")
        a.I("s_mov_b32 s48, s53")
        a.I("s_mov_b32 s34, 0")
        a.I("s_add_u32 s50, s50, s92")
        a.I("s_add_u32 s44, s44, 1")
        a.I("s_cmp_lt_u32 s44, 2")
        a.I(f"s_cbranch_scc1 {lab}_loop")
        g.passes = plist(6)
        g.fin(5)
        return g

    a.I("s_cmp_eq_u32 s18, 31")
    a.I(f"s_cbranch_scc1 {N}_D")
    a.I("s_cmp_eq_u32 s41, 1")
    a.I(f"s_cbranch_scc1 {N}_B")
    looped("K", N + "_A")
    a.label(f"{N}_Ctail")
    gc = mkgen([("K", 0, pp, 0, pp) for pp in range(4)] + [("V", 1, 0, 1, 0), ("V", 1, 1, 1, 1)])
    capture(lambda: (start(gc), gc.run(0, 2), gc.wo_load(), gc.run(2, 4)))
    gc.passes[3] = ("K", 0, 1, 0, 1)
    st.n = stn + 5
    gc.run(4, 6)
    gc.fin(5)
    a.label(N + "_B")
    looped("V", N + "_B2")
    a.label(N + "_D")
    gd = mkgen([("V", 0, 0, 0, 0), ("V", 0, 1, 0, 1)] + [("K", 1, i, 1, i) for i in range(4)], 2)
    start(gd)
    gd.run(0, 2)
    st()
    gd.run(2, 5)
    gd.wo_load()
    gd.run(5, 6)
    gd.fin(5)
    kend(a, N)
    return a, N, (256, 512, 163840)


def gen_l3():
    a = Asm()
    N = "l3_kernel"
    kstart(a, N, 256)
    a.I("s_load_dwordx2 s[4:5], s[0:1], 88")
    a.I("s_load_dwordx2 s[8:9], s[0:1], 72")
    a.I("v_lshrrev_b32 v1, 6, v0")
    a.I("v_and_b32 v2, 255, v0")
    a.I("v_and_b32 v0, 63, v0")
    a.I("v_readfirstlane_b32 s17, v1")
    st = Stamper(a, "l3")
    WF, ACCS, RING, L16, LR, CMB = 128, [68, 84], 100, 124, 125, 127
    LOOK = 5
    a.I("s_bfe_u32 s40, s2, 0x20001")
    a.I("s_and_b32 s43, s2, 1")
    a.I("s_lshl_b32 s43, s43, 5")
    a.I("s_lshr_b32 s44, s2, 3")
    a.I("s_add_u32 s43, s43, s44")
    a.I("s_lshr_b32 s41, s43, 2")
    a.I("s_and_b32 s42, s43, 3")
    a.I("s_and_b32 s16, s17, 3")
    a.I("s_lshr_b32 s18, s17, 2")
    a.I(f"v_lshlrev_b32 {v(L16)}, 4, v0")
    a.I("s_lshl_b32 s45, s42, 1")
    a.I("s_lshr_b32 s46, s16, 1")
    a.I("s_add_u32 s45, s45, s46")
    a.I("s_lshl_b32 s45, s45, 19")
    a.I("s_lshl1_add_u32 s46, s40, s18")
    a.I("s_lshl_b32 s46, s46, 16")
    a.I("s_add_u32 s45, s45, s46")
    a.I("s_and_b32 s46, s16, 1")
    a.I("s_lshl_b32 s46, s46, 10")
    a.I("s_add_u32 s45, s45, s46")
    a.I(f"s_add_u32 s45, s45, {hex(WS_WO)}")
    a.I("s_lshl_b32 s47, s18, 15")
    a.I("s_lshl_b32 s48, s16, 10")
    a.I("s_add_u32 s47, s47, s48")
    a.I("s_lshl_b32 s46, s41, 20")
    a.I("s_lshl_b32 s48, s40, 16")
    a.I("s_add_u32 s46, s46, s48")
    a.I("s_add_u32 s46, s46, s47")
    a.I(f"s_add_u32 s46, s46, {hex(WS_CTX)}")
    a.I("s_lshl_b32 s48, s18, 15")
    a.I(f"v_add_u32 {v(LR)}, s48, {v(L16)}")
    a.I(f"v_add_u32 {v(LR + 1)}, 0x10000, {v(LR)}")
    a.I("s_lshl_b32 s48, s16, 12")
    a.I(f"s_add_u32 s48, s48, {131072}")
    a.I(f"v_add_u32 {v(CMB)}, s48, {v(L16)}")
    a.I("s_waitcnt lgkmcnt(0)")
    srd(a, 52, 4, 5, 64 * MB)
    st()
    vm, lg = VM(a), LG(a)

    def sub_off(n, dst):
        a.I(f"s_add_u32 {s(dst)}, s40, {n + 1}")
        a.I(f"s_and_b32 {s(dst)}, {s(dst)}, 3")
        a.I(f"s_lshl_b32 {s(dst)}, {s(dst)}, 18")
        a.I(f"s_add_u32 {s(dst)}, {s(dst)}, s46")

    for n in range(4):
        sub_off(n, 36 + n)

    def cdma(n, i):
        return [lambda: (a.I(f"s_add_u32 m0, s47, {(n & 1) * 65536 + i * 4096}"),
                         a.I(f"s_add_u32 s49, s{36 + n}, {i * 4096}"),
                         vm.issue(f"buffer_load_dwordx4 {v(L16)}, s[52:55], s49 offen lds", ("C", n, i // 2)))]

    def wload(g):
        def f():
            if g % 2 == 0 and g:
                a.I("s_add_u32 s45, s45, 4096")
            vm.issue(f"buffer_load_dwordx4 {v(WF + 4 * g, 4)}, {v(L16)}, s[52:55], s45 offen offset:{(g % 2) * 2048}", ("W", g))
        return [f]

    pend = []
    for c in range(4):
        for i in (2 * c, 2 * c + 1):
            pend += cdma(0, i) + cdma(1, i)
        for g in range(8 * c, 8 * c + 8):
            pend += wload(g)
    tags = []
    for c in range(4):
        tags += [("C", 0, c), ("C", 1, c)] * 2 + [("W", g) for g in range(8 * c, 8 * c + 8)]
    ptag = list(tags)

    def pump(k=1):
        for _ in range(k):
            if pend:
                pend.pop(0)()
                ptag.pop(0)

    def need(tg):
        while any(x in ptag for x in tg):
            pump()

    pump(PRE3)
    b3_loads(a, 8)
    srd(a, 56, 4, 5, 16 * MB, add=WS_PART)
    srd(a, 60, 4, 5, 64 * 128, add=WS_FLAG)
    a.I("s_lshl_b32 s64, s43, 7")
    a.I("s_lshl2_add_u32 s67, s40, s64")
    LA, LB_ = 28, 29
    a.I("s_lshl_b32 s48, s18, 16")
    a.I(f"v_add_u32 {v(LA)}, s48, {v(LR)}")
    a.I(f"v_xor_b32 {v(LB_)}, 0x10000, {v(LA)}")
    st()
    AC = [68, 84, 32]
    sched = []
    for g in range(32):
        sched += [(AC[0], LA, g), (AC[1], LB_, g)]
    sched += [(AC[2], LR, g) for g in range(32)] + [(AC[1], LR + 1, g) for g in range(32)]

    def read(i):
        lg.issue(f"ds_read_b128 {v(RING + 4 * (i % 6), 4)}, {v(sched[i][1])} offset:{sched[i][2] * 1024}", i)

    def sync(tg):
        need(tg)
        vm.wait(tg)
        a.I("s_barrier")

    TMP = 48

    def slot_calc(own_expr):
        a.I(own_expr)
        a.I("s_and_b32 s50, s50, 3")
        a.I("s_lshl2_add_u32 s50, s43, s50")
        a.I("s_lshl2_add_u32 s50, s50, s40")
        a.I("s_lshl2_add_u32 s50, s50, s16")
        a.I("s_lshl_b32 s50, s50, 12")

    def give_l(A, addr, off):
        for q in range(4):
            a.I(f"ds_write_b128 {v(addr)}, {v(A + 4 * q, 4)} offset:{off + q * 1024}")

    def take_l(A, addr, off, model=False):
        for q in range(4):
            a.I(f"ds_read_b128 {v(TMP + 4 * q, 4)}, {v(addr)} offset:{off + q * 1024}")
        a.I("s_waitcnt lgkmcnt(0)")
        for j in range(16):
            a.I(f"v_add_f32 {v(A + j)}, {v(A + j)}, {v(TMP + j)}")
        for q in range(4):
            x = f"buffer_store_dwordx4 {v(A + 4 * q, 4)}, {v(L16)}, s[56:59], s50 offen offset:{q * 1024} sc1"
            vm.issue(x, "P") if model else a.I(x)

    def give(n):
        lab = a.uid(f"{N}_g")
        a.I(f"s_cmp_eq_u32 s18, {n & 1}")
        a.I(f"s_cbranch_scc1 {lab}")
        give_l(AC[2] if n == 2 else AC[1], CMB, (n & 1) * 16384)
        a.label(lab)
        a.I("s_waitcnt lgkmcnt(0)")
        lg.q = []

    sync([("C", 0, 0), ("C", 1, 0)])
    st()
    for i in range(LOOK):
        read(i)
    for i in range(128):
        ac, _, g = sched[i]
        lg.wait(i)
        if i < 64:
            need([("W", g)])
            vm.wait(("W", g))
        first = g == 0
        a.I(f"{MF} {v(ac, 16)}, {v(WF + 4 * g, 4)}, {v(RING + 4 * (i % 6), 4)}, {'0' if first else v(ac, 16)}")
        j = i + LOOK
        if j < 128:
            if j < 64 and j % 16 == 0:
                c = j // 16
                sync([("C", 0, c), ("C", 1, c)])
                if c >= 2:
                    for n in (2, 3):
                        for k in (2 * (c - 2), 2 * (c - 2) + 1):
                            pend.extend(cdma(n, k))
                            ptag.append(("C", n, c - 2))
            elif j >= 64 and j % 16 == 0:
                sync([("C", j // 32, (j % 32) // 8 + c) for c in range(2)])
            read(j)
        if i in (31, 63, 75, 95, 107):
            st()
        if j == 64:
            for n in (2, 3):
                for k in (4, 5):
                    pend.extend(cdma(n, k))
                    ptag.append(("C", n, 2))
        if i == 64 + 5:
            a.I("s_lshl_b32 s48, s18, 14")
            a.I(f"v_add_u32 v30, s48, {v(CMB)}")
            a.I("v_xor_b32 v31, 0x4000, v30")
            give_l(AC[1], 31, 0)
            a.I("s_add_u32 s51, s18, 1")
            slot_calc("s_add_u32 s50, s40, s51")
            a.I("s_waitcnt lgkmcnt(0)")
            lg.q = []
            a.I("s_barrier")
            for n in (2, 3):
                for k in (6, 7):
                    pend.extend(cdma(n, k))
                    ptag.append(("C", n, 3))
            need([("C", 3, 3)])
            take_l(AC[0], 30, 0, True)
        if i == 96 + 5:
            vm.wait([("C", 3, 2), ("C", 3, 3)])
            give(2)
            a.I("s_barrier")
            a.I("s_cmp_lg_u32 s18, 0")
            a.I(f"s_cbranch_scc1 {N}_t2")
            slot_calc("s_add_u32 s50, s40, 3")
            take_l(AC[2], CMB, 0)
            a.label(f"{N}_t2")
        pump(2 if i < 64 else 1)
    st()
    LW = 32768
    a.I("v_mov_b32 v1, 0")
    a.I("v_mov_b32 v30, %d" % LW)
    a.I("ds_write_b32 v30, v1")
    a.I("v_mov_b32 v1, 1")
    a.I("s_nop 7")
    give(3)
    a.I("s_waitcnt vmcnt(0)")
    a.I("s_barrier")
    a.I("s_cmp_eq_u32 s18, 1")
    a.I(f"s_cbranch_scc1 {N}_fin")
    a.I("s_cmp_lg_u32 s17, 0")
    a.I(f"s_cbranch_scc1 {N}_nosig")
    a.I("s_mov_b64 exec, 1")
    a.I("buffer_store_dword v1, off, s[60:63], s67 sc1")
    a.I("s_mov_b64 exec, -1")
    a.label(f"{N}_nosig")
    b3_body(a, 0, 8, loaded=True)
    a.I("s_endpgm")
    a.label(f"{N}_fin")
    A = ACCS[1]
    a.I("s_lshl2_add_u32 s50, s43, s40")
    a.I("s_lshl_b32 s50, s50, 4")
    a.I("s_add_u32 s50, s50, s16")
    a.I("s_lshl_b32 s50, s50, 12")
    a.I("v_and_b32 v3, 31, v0")
    a.I("v_lshlrev_b32 v3, 11, v3")
    a.I("v_lshrrev_b32 v4, 5, v0")
    a.I("v_lshl_add_u32 v3, v4, 4, v3")
    a.I("s_lshl2_add_u32 s65, s41, s40")
    a.I("s_lshl_b32 s65, s65, 16")
    a.I("s_lshl_b32 s66, s42, 8")
    a.I("s_add_u32 s65, s65, s66")
    a.I("s_lshl_b32 s66, s16, 6")
    a.I("s_add_u32 s65, s65, s66")
    srd(a, 52, 8, 9, 4 * MB)
    a.I(f"v_mov_b32 v5, {LW}")
    for q in range(4):
        a.I(f"ds_read_b128 {v(WF + 4 * q, 4)}, {v(CMB)} offset:{16384 + q * 1024}")
    POLL = os.environ.get("POLL", "1")
    if POLL == "1":
        a.I("s_cmp_lg_u32 s17, 4")
        a.I(f"s_cbranch_scc1 {N}_lspin")
    a.label(f"{N}_spin")
    a.I("buffer_load_dwordx4 v[4:7], off, s[60:63], s64 sc1")
    a.I("s_waitcnt vmcnt(0)")
    a.I("v_and_b32 v4, v4, v5")
    a.I("v_and_b32 v6, v6, v7")
    a.I("v_and_b32 v4, v4, v6")
    a.I("s_nop 0")
    a.I("v_readfirstlane_b32 s66, v4")
    a.I("s_nop 0")
    a.I("s_cmp_eq_u32 s66, 1")
    a.I(f"s_cbranch_scc1 {N}_got")
    a.I("s_sleep 2")
    a.I(f"s_branch {N}_spin")
    if POLL == "1":
        a.label(f"{N}_lspin")
        a.I("ds_read_b32 v4, v5")
        a.I("s_waitcnt lgkmcnt(0)")
        a.I("v_readfirstlane_b32 s66, v4")
        a.I("s_nop 0")
        a.I("s_cmp_eq_u32 s66, 1")
        a.I(f"s_cbranch_scc1 {N}_got2")
        a.I("s_sleep 1")
        a.I(f"s_branch {N}_lspin")
    a.label(f"{N}_got")
    if POLL == "1":
        a.I(f"v_mov_b32 v5, {LW}")
        a.I("ds_write_b32 v5, v1")
        a.label(f"{N}_got2")
    st()
    for k in range(1, 4):
        a.I(f"s_add_u32 s66, s40, {k}")
        a.I("s_and_b32 s66, s66, 3")
        a.I("s_lshl_b32 s66, s66, 14")
        a.I("s_add_u32 s66, s66, s50")
        for q in range(4):
            a.I(f"buffer_load_dwordx4 {v(WF + 16 * k + 4 * q, 4)}, {v(L16)}, s[56:59], s66 offen offset:{q * 1024} sc1")
    a.I("s_waitcnt lgkmcnt(0)")
    a.I("s_barrier")
    for k in range(4):
        if k:
            a.I(f"s_waitcnt vmcnt({4 * (3 - k)})")
        for j in range(16):
            a.I(f"v_add_f32 {v(A + j)}, {v(A + j)}, {v(WF + 16 * k + j)}")
    pack(a, 8, A, 8)
    a.I("s_nop 1")
    for h in range(2):
        a.I(f"v_permlane32_swap_b32 {v(8 + 4 * h)}, {v(10 + 4 * h)}")
        a.I(f"v_permlane32_swap_b32 {v(9 + 4 * h)}, {v(11 + 4 * h)}")
        a.I(f"buffer_store_dwordx4 {v(8 + 4 * h, 4)}, v3, s[52:55], s65 offen offset:{32 * h}")
    st.dump(17, 4, tmpv=16)
    kend(a, N)
    return a, N, (256, 512, 163840)


def gen_l3_s4():
    a = Asm()
    N = "l3_kernel"
    kstart(a, N, 256)
    a.I("s_load_dwordx2 s[4:5], s[0:1], 88")
    a.I("s_load_dwordx2 s[8:9], s[0:1], 72")
    a.I("v_lshrrev_b32 v1, 6, v0")
    a.I("v_and_b32 v0, 63, v0")
    a.I("s_nop 0")
    a.I("v_readfirstlane_b32 s17, v1")
    st = Stamper(a, "l3")
    L16, RA, RB_, ACC, FR = 128, 129, 130, 132, 164
    PB16 = int(os.environ.get("PB16", "0"))
    NST, STG = 4, 4
    a.I("s_bfe_u32 s40, s2, 0x20001")
    a.I("s_and_b32 s43, s2, 1")
    a.I("s_lshl_b32 s43, s43, 5")
    a.I("s_lshr_b32 s44, s2, 3")
    a.I("s_add_u32 s43, s43, s44")
    a.I("s_lshr_b32 s41, s43, 2")
    a.I("s_and_b32 s42, s43, 3")
    a.I(f"v_lshlrev_b32 {v(L16)}, 4, v0")
    a.I("s_lshl_b32 s45, s41, 2")
    a.I("s_add_u32 s45, s45, s17")
    a.I("s_lshl_b32 s45, s45, 18")
    a.I("s_lshl_b32 s46, s40, 16")
    a.I("s_add_u32 s45, s45, s46")
    a.I(f"s_add_u32 s45, s45, {hex(WS_CTX)}")
    a.I("s_lshl_b32 s46, s42, 1")
    a.I("s_bfe_u32 s47, s17, 0x10001")
    a.I("s_add_u32 s46, s46, s47")
    a.I("s_lshl_b32 s46, s46, 19")
    a.I("s_lshl_b32 s47, s40, 17")
    a.I("s_add_u32 s46, s46, s47")
    a.I("s_and_b32 s47, s17, 1")
    a.I("s_lshl_b32 s47, s47, 10")
    a.I("s_add_u32 s46, s46, s47")
    a.I(f"s_add_u32 s46, s46, {hex(WS_WO)}")
    a.I("s_cmp_lt_u32 s17, 4")
    a.I("s_cselect_b32 s45, s45, s46")
    a.I("s_movk_i32 s46, 0x800")
    a.I("s_cselect_b32 s46, 1024, s46")
    a.I("s_lshl_b32 s47, s17, 10")
    a.I("s_and_b32 s48, s17, 1")
    a.I("s_lshl_b32 s48, s48, 11")
    a.I(f"v_add_u32 {v(RA)}, s48, {v(L16)}")
    a.I("s_lshr_b32 s48, s17, 1")
    a.I("s_lshl_b32 s48, s48, 10")
    a.I("s_add_u32 s48, s48, 4096")
    a.I(f"v_add_u32 {v(RB_)}, s48, {v(L16)}")
    a.I(f"v_add_u32 {v(RB_ + 1)}, 0x10000, {v(RA)}")
    a.I(f"v_add_u32 v127, 0x10000, {v(RB_)}") if False else None
    a.I("s_waitcnt lgkmcnt(0)")
    srd(a, 52, 4, 5, 64 * MB)
    st()
    vm, lg = VM(a), LG(a)

    def dma(g, emit=True):
        L = [lambda: a.I(f"s_add_u32 m0, s47, {(g % (NST * STG)) * 8192}"),
             lambda: a.I("s_add_u32 s49, s45, s46") if False else a.I("s_nop 0"),
             lambda: vm.issue(f"buffer_load_dwordx4 {v(L16)}, s[52:55], s45 offen lds", g),
             lambda: a.I("s_add_u32 s45, s45, s46")]
        return L

    def first_loads():
        for g in range((NST - 1) * STG):
            for f in dma(g):
                f()
        return (NST - 1) * STG

    first_loads()
    a.I("s_and_b32 s18, s17, 1")
    a.I("s_lshr_b32 s19, s40, 1")
    a.I("s_cmp_eq_u32 s18, s19")
    a.I("s_cselect_b32 s18, 1, 0")
    a.I("s_lshr_b32 s16, s17, 1")
    a.I("s_lshl_b32 s19, s16, 6")
    a.I("v_add_u32 v2, s19, v0")
    a.I("s_cmp_eq_u32 s18, 1")
    a.I(f"s_cbranch_scc1 {N}_nob3l")
    b3_loads(a, 8)
    a.label(f"{N}_nob3l")
    st()
    RA2, RB2 = RB_ + 1, 127
    a.I(f"v_add_u32 {v(RB2)}, 0x10000, {v(RB_)}")
    NG = 64

    def reads(g):
        sl = g % (NST * STG)
        ra, rb = (RA, RB_) if sl < 8 else (RA2, RB2)
        off = (sl % 8) * 8192
        d = FR + 12 * (g % 3)
        lg.issue(f"ds_read_b128 {v(d, 4)}, {v(rb)} offset:{off}", g)
        lg.issue(f"ds_read_b128 {v(d + 4, 4)}, {v(ra)} offset:{off}", g)
        lg.issue(f"ds_read_b128 {v(d + 8, 4)}, {v(ra)} offset:{off + 1024}", g)

    pend = []

    def sync(stg):
        vm.wait(list(range(stg * STG, (stg + 1) * STG)))
        a.I("s_barrier")
        nxt = stg + NST - 2
        if stg >= 1 and (nxt + 1) * STG <= NG and nxt >= NST - 1:
            for g in range(nxt * STG, (nxt + 1) * STG):
                pend.extend(dma(g))

    sync(0)
    st()
    reads(0)
    reads(1)
    for g in range(NG):
        j = g + 2
        if j < NG and j % STG == 0:
            while pend:
                pend.pop(0)()
            sync(j // STG)
        lg.wait(g)
        d = FR + 12 * (g % 3)
        for i in range(2):
            acc = v(ACC + 16 * i, 16)
            a.I(f"{MF} {acc}, {v(d, 4)}, {v(d + 4 + 4 * i, 4)}, {'0' if g == 0 else acc}")
            if i == 0 and j < NG:
                reads(j)
            for _ in range(2 + i):
                if pend:
                    pend.pop(0)()
    st()
    srd(a, 56, 4, 5, 16 * MB, add=WS_PART)
    a.I("s_lshr_b32 s48, s17, 1")
    a.I("s_and_b32 s49, s17, 1")
    a.I("s_lshl_b32 s50, s43, 2")
    a.I("s_lshl1_add_u32 s50, s49, s50")
    a.I("s_lshl_b32 s50, s50, 2")
    a.I("s_add_u32 s50, s50, s40")
    a.I("s_lshl_b32 s50, s50, 2")
    a.I("s_add_u32 s50, s50, s48")
    a.I("s_lshl_b32 s50, s50, 12")
    a.I("s_add_u32 s51, s50, 0x10000")
    a.I("s_lshl_b32 s49, s49, 1")
    for i in range(2):
        lab = f"{N}_keep{i}"
        a.I("s_cmp_eq_u32 s49, s40")
        a.I(f"s_cbranch_scc1 {lab}")
        if PB16:
            pack(a, FR + 8 * i, ACC + 16 * i, 8)
            for q in range(2):
                a.I(f"buffer_store_dwordx4 {v(FR + 8 * i + 4 * q, 4)}, {v(L16)}, s[56:59], s{50 + i} offen offset:{q * 1024} sc1")
        else:
            for q in range(4):
                a.I(f"buffer_store_dwordx4 {v(ACC + 16 * i + 4 * q, 4)}, {v(L16)}, s[56:59], s{50 + i} offen offset:{q * 1024} sc1")
        a.label(lab)
        a.I("s_add_u32 s49, s49, 1")
    srd(a, 60, 4, 5, 64 * 128, add=WS_FLAG)
    a.I("s_lshl_b32 s64, s43, 7")
    a.I("s_lshl2_add_u32 s67, s40, s64")

    def signal():
        a.I("v_mov_b32 v1, 1")
        a.I("s_waitcnt vmcnt(0)")
        a.I("s_barrier")
        a.I("s_cmp_lg_u32 s17, 7")
        lab = a.uid(f"{N}_nosig")
        a.I(f"s_cbranch_scc1 {lab}")
        a.I("s_mov_b64 exec, 1")
        a.I("buffer_store_dword v1, off, s[60:63], s67 sc1")
        a.I("s_mov_b64 exec, -1")
        a.label(lab)

    a.I("s_cmp_eq_u32 s18, 1")
    a.I(f"s_cbranch_scc1 {N}_nob3")
    b3_body(a, 131072, 8, loaded=True, mid=signal)
    a.I("s_endpgm")
    a.label(f"{N}_nob3")
    a.I("s_bitcmp0_b32 s40, 0")
    a.I(f"s_cbranch_scc1 {N}_own0")
    for j in range(16):
        a.I(f"v_mov_b32 {v(ACC + j)}, {v(ACC + 16 + j)}")
    a.label(f"{N}_own0")
    a.I("s_lshl_b32 s50, s43, 2")
    a.I("s_add_u32 s50, s50, s40")
    a.I("s_lshl_b32 s50, s50, 4")
    a.I("s_add_u32 s50, s50, s48")
    a.I("s_lshl_b32 s50, s50, 12")
    a.I("v_and_b32 v3, 31, v0")
    a.I("v_lshlrev_b32 v3, 11, v3")
    a.I("v_lshrrev_b32 v4, 5, v0")
    a.I("v_lshl_add_u32 v3, v4, 4, v3")
    a.I("s_lshl_b32 s65, s41, 2")
    a.I("s_add_u32 s65, s65, s40")
    a.I("s_lshl_b32 s65, s65, 16")
    a.I("s_lshl_b32 s66, s42, 8")
    a.I("s_add_u32 s65, s65, s66")
    a.I("s_lshl_b32 s66, s48, 6")
    a.I("s_add_u32 s65, s65, s66")
    srd(a, 52, 8, 9, 4 * MB)
    signal()
    a.I("s_barrier")
    st()
    a.label(f"{N}_spin")
    a.I("buffer_load_dwordx4 v[4:7], off, s[60:63], s64 sc1")
    a.I("s_waitcnt vmcnt(0)")
    a.I("v_and_b32 v4, v4, v5")
    a.I("v_and_b32 v6, v6, v7")
    a.I("v_and_b32 v4, v4, v6")
    a.I("s_nop 0")
    a.I("v_readfirstlane_b32 s66, v4")
    a.I("s_nop 0")
    a.I("s_cmp_lg_u32 s66, 1")
    a.I(f"s_cbranch_scc1 {N}_spin")
    st()
    for k in range(1, 4):
        a.I(f"s_add_u32 s66, s40, {k}")
        a.I("s_and_b32 s66, s66, 3")
        a.I("s_lshl_b32 s66, s66, 14")
        a.I("s_add_u32 s66, s66, s50")
        for q in range(2 if PB16 else 4):
            a.I(f"buffer_load_dwordx4 {v(16 * k + 4 * q, 4)}, {v(L16)}, s[56:59], s66 offen offset:{q * 1024} sc1")
    for k in range(1, 4):
        a.I(f"s_waitcnt vmcnt({(2 if PB16 else 4) * (3 - k)})")
        for j in range(16):
            if PB16:
                if j & 1:
                    a.I(f"v_and_b32 v64, 0xffff0000, {v(16 * k + j // 2)}")
                else:
                    a.I(f"v_lshlrev_b32 v64, 16, {v(16 * k + j // 2)}")
                a.I(f"v_add_f32 {v(ACC + j)}, {v(ACC + j)}, v64")
            else:
                a.I(f"v_add_f32 {v(ACC + j)}, {v(ACC + j)}, {v(16 * k + j)}")
    pack(a, 8, ACC, 8)
    a.I("s_nop 1")
    for h in range(2):
        a.I(f"v_permlane32_swap_b32 {v(8 + 4 * h)}, {v(10 + 4 * h)}")
        a.I(f"v_permlane32_swap_b32 {v(9 + 4 * h)}, {v(11 + 4 * h)}")
        a.I(f"buffer_store_dwordx4 {v(8 + 4 * h, 4)}, v3, s[52:55], s65 offen offset:{32 * h}")
    st.dump(17, 4, tmpv=16)
    kend(a, N)
    return a, N, (256, 512, 131072 + 8192 + 64)


def gen_l3_old():
    a = Asm()
    N = "l3_kernel"
    kstart(a, N, 256)
    a.I("s_load_dwordx2 s[4:5], s[0:1], 88")
    a.I("s_load_dwordx2 s[6:7], s[0:1], 40")
    a.I("s_load_dwordx2 s[8:9], s[0:1], 72")
    a.I("v_lshrrev_b32 v1, 6, v0")
    a.I("v_and_b32 v2, 255, v0")
    a.I("v_and_b32 v0, 63, v0")
    a.I("v_readfirstlane_b32 s16, v1")
    a.I("s_nop 0")
    a.I("s_cmp_ge_u32 s16, 4")
    a.I(f"s_cbranch_scc1 {N}_b3")
    st = Stamper(a, "l3")
    OB = int(os.environ.get('OB', '3'))
    ACC = (oproj_body3 if OB == 3 else oproj_body2)(a, N, st, bar_at=8)
    a.I("s_barrier")
    oproj_finish(a, ACC, 32768 if OB == 3 else 16384)
    st.dump(16, 4, tmpv=8)
    a.I("s_endpgm")
    a.label(f"{N}_b3")
    a.I("s_and_b32 s16, s16, 3")
    b3_body(a, 131072, 8)
    kend(a, N)
    return a, N, (256, 512, 131072 + 8192 + 64)


KERNELS = [gen_l1, lambda: gen_attn(not os.environ.get('NOB2')), {'new': gen_l3, 's4': gen_l3_s4, 'old': gen_l3_old}[os.environ.get('L3V', 'old')]]

if __name__ == "__main__":
    p = sys.argv[1] if len(sys.argv) > 1 else os.path.join(os.path.dirname(os.path.abspath(__file__)), "..",
                                                           "cdna_kernels", NAME + ".s")
    sys.exit(1 if build(KERNELS, p) else 0)
```

```python
import sys, os, math, struct
sys.path.insert(0, os.path.dirname(os.path.abspath(__file__)))
from asmlib import Asm, VM, LG, v, s, ag

NAME = "concat_heads__compressed_kv_cla__spectral_gfnet__prompt"
MB = 1 << 20
WS_K, WS_V, WS_CTX, WS_Y, WS_WF, WS_Z, WS_Q = 0, 16 * MB, 32 * MB, 48 * MB, 52 * MB, 56 * MB, 64 * MB
WS_WO = 60 * MB
if os.environ.get('ALIAS'):
    WS_Q = WS_CTX
WS_PART = 0
WS_FLAG = 56 * MB + 2560 * 1024
YSTR = 8320
KA = dict(x=0, ckv=8, wq=16, wuk=24, wuv=32, wo=40, bx=48, wr=56, wi=64, out=72, dbg=80, ws=88)
MF = "v_mfma_f32_32x32x16_bf16"
SP = os.environ.get("SP", " sc1")


def f32(x):
    return "0x%08x" % struct.unpack("<I", struct.pack("<f", x))[0]


def srd(a, d, lo, hi, size, add=0):
    if add:
        a.I(f"s_add_u32 {s(d)}, {s(lo)}, {add if isinstance(add, str) else hex(add)}")
        a.I(f"s_addc_u32 {s(d + 1)}, {s(hi)}, 0")
    else:
        a.I(f"s_mov_b32 {s(d)}, {s(lo)}")
        a.I(f"s_mov_b32 {s(d + 1)}, {s(hi)}")
    a.I(f"s_mov_b32 {s(d + 2)}, {size if isinstance(size, str) else hex(size)}")
    a.I(f"s_mov_b32 {s(d + 3)}, 0x20000")


STAMPS = int(os.environ.get("STAMPS", "0"))
ST0 = 72


class Stamper:
    def __init__(self, a, name=""):
        self.a, self.n = a, 0
        self.on = STAMPS and os.environ.get("STAMPK", name) == name

    def __call__(self):
        if self.on and self.n < 11:
            if self.n == 0:
                self.a.I("s_memrealtime s[68:69]")
            self.a.I(f"s_memtime {s(ST0 + 2 * self.n, 2)}")
            self.n += 1

    def dump(self, wave_s, wslo, tmpv=8):
        if not self.on:
            return
        a = self.a
        a.I("s_waitcnt vmcnt(0) lgkmcnt(0)")
        a.I(f"s_memtime {s(ST0 + 2 * self.n, 2)}")
        a.I("s_memrealtime s[70:71]")
        self.n += 1
        srd(a, 96, wslo, wslo + 1, 1 * MB, add=128 * MB)
        a.I("s_lshl_b32 s100, s2, 3")
        a.I(f"s_add_u32 s100, s100, {s(wave_s)}")
        a.I("s_lshl_b32 s100, s100, 8")
        a.I("s_waitcnt lgkmcnt(0)")
        a.I(f"v_mov_b32 {v(tmpv + 1)}, 0")
        for i in range(self.n):
            a.I(f"v_mov_b32 {v(tmpv)}, {s(ST0 + 2 * i)}")
            a.I(f"buffer_store_dword {v(tmpv)}, {v(tmpv + 1)}, s[96:99], s100 offen offset:{4 * i}")
        for i, r in ((62, 68), (63, 70), (61, ST0 + 2 * (self.n - 1))):
            a.I(f"v_mov_b32 {v(tmpv)}, {s(r)}")
            a.I(f"buffer_store_dword {v(tmpv)}, {v(tmpv + 1)}, s[96:99], s100 offen offset:{4 * i}")
        a.I("s_waitcnt vmcnt(0)")


DBGT = int(os.environ.get("DBGT", "0"))
KIDX = [0, 0]


def dbg_stamp(a, end):
    k = KIDX[0]
    lab = a.uid("dbgskip%d_%d" % (k, KIDX[1]))
    KIDX[1] += 1
    if not end:
        a.I("v_readfirstlane_b32 s89, v0")
        a.I("s_nop 1")
        a.I("s_lshr_b32 s89, s89, 6")
        a.I("s_or_b32 s89, s89, s2")
    a.I("s_cmp_lg_u32 s89, 0")
    a.I(f"s_cbranch_scc1 {lab}")
    a.I("s_load_dwordx4 s[92:95], s[90:91], 80")
    a.I("s_waitcnt vmcnt(0) lgkmcnt(0)")
    a.I("s_memrealtime s[86:87]")
    a.I(f"s_add_u32 s96, s94, {hex(200 * MB)}")
    a.I("s_addc_u32 s97, s95, 0")
    a.I("s_mov_b32 s98, 256")
    a.I("s_mov_b32 s99, 0x20000")
    a.I("s_waitcnt lgkmcnt(0)")
    a.I("v_mov_b32 v254, s86")
    a.I(f"buffer_store_dword v254, off, s[96:99], 0 offset:{8 * k + 4 * end} sc0 sc1")
    a.I("s_waitcnt vmcnt(0)")
    if end and k == DBGT - 1:
        a.I("v_lshlrev_b32 v253, 2, v0")
        a.I("buffer_load_dword v254, v253, s[96:99], 0 offen sc0 sc1")
        a.I("s_mov_b32 s96, s92")
        a.I("s_mov_b32 s97, s93")
        a.I("s_waitcnt vmcnt(0)")
        a.I("buffer_store_dword v254, v253, s[96:99], 0 offen")
        a.I(f"s_sub_u32 s96, s92, {k * 512}")
        a.I("s_subb_u32 s97, s93, 0")
        a.I("s_nop 0")
        a.I("buffer_store_dword v254, v253, s[96:99], 0 offen")
    a.label(lab)


def code_touch(a, kname, wave_s, sr, vt, nw_log=3, kd=True):
    if os.environ.get("NOCP"):
        return
    ref = a.uid("pcref_" + kname)
    a.I(f"s_getpc_b64 {s(sr, 2)}")
    a.label(ref)
    a.I(f"s_add_u32 {s(sr)}, {s(sr)}, {kname} - {ref}")
    a.I(f"s_addc_u32 {s(sr + 1)}, {s(sr + 1)}, ({kname} - {ref}) >> 32")
    a.I(f"s_mov_b32 {s(sr + 2)}, {kname}_end - {kname}")
    a.I(f"s_mov_b32 {s(sr + 3)}, 0x20000")
    a.I(f"s_lshr_b32 {s(sr + 4)}, s2, 3")
    a.I(f"s_lshl_b32 {s(sr + 4)}, {s(sr + 4)}, {nw_log}")
    a.I(f"s_add_u32 {s(sr + 4)}, {s(sr + 4)}, {s(wave_s)}")
    a.I(f"s_lshl_b32 {s(sr + 4)}, {s(sr + 4)}, {12 - nw_log}")
    a.I(f"v_lshlrev_b32 {v(vt)}, 7, v0")
    a.I(f"s_mov_b64 exec, {(1 << (32 >> nw_log)) - 1}")
    a.I(f"buffer_load_dword {v(vt + 1)}, {v(vt)}, {s(sr, 4)}, {s(sr + 4)} offen")
    if kd and not os.environ.get("NOKD"):
        a.I(f"s_getpc_b64 {s(sr, 2)}")
        a.I(f"s_add_u32 {s(sr)}, {s(sr)}, kdl_{kname}@rel32@lo+4")
        a.I(f"s_addc_u32 {s(sr + 1)}, {s(sr + 1)}, kdl_{kname}@rel32@hi+12")
        a.I(f"s_mov_b32 {s(sr + 2)}, 64")
        a.I("s_mov_b64 exec, 1")
        a.I(f"buffer_load_dword {v(vt + 1)}, off, {s(sr, 4)}, 0")
    a.I("s_mov_b64 exec, -1")


def kstart(a, name, nwg):
    a.raw(".text")
    a.raw(f".globl {name}")
    a.raw(".p2align 8")
    a.raw(f".type {name},@function")
    a.label(name)
    a.I(f"s_cmp_ge_u32 s2, {nwg}")
    a.I(f"s_cbranch_scc1 {name}_end")
    if DBGT:
        a.I("s_mov_b64 s[90:91], s[0:1]")
        dbg_stamp(a, 0)


def kend(a, name):
    a.label(name + "_end")
    a.I("s_endpgm")


def kdesc(name, nv, ns, na=0):
    nv = (nv + 7) // 8 * 8
    acc_off = nv
    nv = nv + (na + 7) // 8 * 8
    return f""".section .rodata,"a"
.p2align 6
kdl_{name}:
.amdhsa_kernel {name}
  .amdhsa_next_free_vgpr {nv}
  .amdhsa_next_free_sgpr {max(ns, 16)}
  .amdhsa_accum_offset {acc_off}
  .amdhsa_group_segment_fixed_size 0
  .amdhsa_kernarg_size 96
  .amdhsa_user_sgpr_count 2
  .amdhsa_user_sgpr_kernarg_segment_ptr 1
  .amdhsa_system_sgpr_workgroup_id_x 1
  .amdhsa_float_denorm_mode_32 3
.end_amdhsa_kernel
"""


QSCALE = math.log2(math.e) / math.sqrt(128.0)


def gen_qkv():
    a = Asm()
    N = "qkvproj_kernel"
    kstart(a, N, 256)
    a.I("s_load_dwordx4 s[4:7], s[0:1], 0")
    a.I("s_load_dwordx4 s[8:11], s[0:1], 16")
    a.I("s_load_dwordx2 s[12:13], s[0:1], 32")
    a.I("s_load_dwordx2 s[14:15], s[0:1], 88")
    a.I("v_lshrrev_b32 v1, 6, v0")
    a.I("v_and_b32 v0, 63, v0")
    a.I("s_and_b32 s17, s2, 7")
    a.I("v_readfirstlane_b32 s16, v1")
    a.I("s_lshr_b32 s18, s2, 3")
    a.I("s_and_b32 s19, s18, 7")
    a.I("s_lshr_b32 s18, s18, 3")
    a.I("s_lshl_b32 s40, s17, 2")
    a.I("s_add_u32 s18, s18, s40")
    a.I("s_mov_b32 s41, 0")
    a.I("s_mul_i32 s42, s18, 6")
    a.I("s_cmp_ge_u32 s18, 11")
    a.I("s_cselect_b32 s41, 1, s41")
    a.I("s_cselect_b32 s40, 64, 0")
    a.I("s_cmp_ge_u32 s18, 21")
    a.I("s_cselect_b32 s41, 2, s41")
    a.I("s_cselect_b32 s40, 126, s40")
    a.I("s_sub_u32 s42, s42, s40")
    a.I("s_lshl_b32 s44, s19, 3")
    a.I("s_add_u32 s44, s44, s16")
    hl, b4, t1, t2 = 9, 10, 11, 12
    a.I(f"v_lshrrev_b32 {v(hl)}, 5, v0")
    a.I(f"v_bfe_u32 {v(b4)}, v0, 4, 1")
    a.I(f"v_lshrrev_b32 {v(t1)}, 3, v0")
    a.I(f"v_lshlrev_b32 {v(t1)}, 10, {v(t1)}")
    a.I("s_lshl_b32 s45, s44, 15")
    a.I(f"v_add_u32 {v(t1)}, s45, {v(t1)}")
    a.I(f"v_lshrrev_b32 {v(t2)}, 4, v0")
    a.I("v_and_b32 v13, 7, v0")
    a.I(f"v_xor_b32 {v(t2)}, {v(t2)}, v13")
    a.I(f"v_lshl_add_u32 v52, {v(t2)}, 4, {v(t1)}")
    a.I("v_xor_b32 v53, 64, v52")
    a.I(f"v_add_u32 v53, {8192 - 1024}, v53")
    a.I(f"v_add_u32 v54, {2 * (8192 - 1024)}, v52")
    a.I(f"v_add_u32 v55, {2 * (8192 - 1024)}, v53")
    a.I("v_and_b32 v13, 31, v0")
    a.I(f"v_bfe_u32 {v(t2)}, v0, 1, 3")
    a.I(f"v_xor_b32 {v(t2)}, {v(t2)}, {v(hl)}")
    a.I(f"v_lshlrev_b32 {v(t2)}, 4, {v(t2)}")
    a.I(f"v_lshl_add_u32 {v(t2)}, v13, 7, {v(t2)}")
    a.I("s_mul_i32 s46, s16, 12288")
    for t in range(4):
        a.I(f"v_xor_b32 {v(56 + t)}, {32 * t}, {v(t2)}")
    for t in range(4):
        a.I(f"v_add_u32 {v(56 + t)}, s46, {v(56 + t)}")
    a.I("v_lshrrev_b32 v2, 3, v0")
    a.I("v_lshlrev_b32 v2, 13, v2")
    a.I(f"v_lshlrev_b32 {v(t1)}, 2, {v(b4)}")
    a.I(f"v_and_b32 {v(t2)}, 7, v0")
    a.I(f"v_xor_b32 {v(t1)}, {v(t1)}, {v(t2)}")
    a.I(f"v_lshl_add_u32 v2, {v(t1)}, 4, v2")
    a.I("s_lshl_b32 s45, s16, 17")
    a.I("v_add_u32 v2, s45, v2")
    a.I(f"v_add_u32 v3, {65536 - 1024}, v2")
    a.I(f"v_bfe_u32 {v(t1)}, v0, 2, 2")
    a.I(f"v_lshl_add_u32 {v(t2)}, {v(hl)}, 3, {v(t1)}")
    a.I(f"v_lshlrev_b32 v4, 7, {v(t2)}")
    a.I(f"v_lshl_add_u32 v4, {v(b4)}, 5, v4")
    a.I(f"v_and_b32 {v(t2)}, 3, v0")
    a.I(f"v_lshl_add_u32 v4, {v(t2)}, 3, v4")
    a.I(f"v_bfe_u32 {v(t2)}, v0, 3, 1")
    a.I(f"v_lshl_add_u32 v4, {v(t2)}, 6, v4")
    a.I("v_xor_b32 v5, 64, v4")
    a.I("v_add_u32 v6, 0x10000, v4")
    a.I("v_add_u32 v7, 0x10000, v5")
    a.I("v_add_u32 v50, 0x20000, v4")
    a.I("v_add_u32 v51, 0x20000, v5")
    a.I("v_lshlrev_b32 v48, 4, v0")
    a.I("s_lshl_b32 s47, s16, 11")
    a.I("s_lshl_b32 s48, s42, 7")
    a.I("s_lshl_b32 s49, s44, 13")
    a.I("s_lshl_b32 s50, s42, 18")
    a.I("s_add_u32 s50, s50, s49")
    a.I("s_waitcnt lgkmcnt(0)")
    a.I("s_cmp_eq_u32 s41, 2")
    a.I("s_cselect_b32 s20, s4, s6")
    a.I("s_cselect_b32 s21, s5, s7")
    a.I("s_cselect_b32 s24, s8, s10")
    a.I("s_cselect_b32 s25, s9, s11")
    a.I(f"s_cselect_b32 s51, {hex(WS_Q)}, 0")
    a.I(f"s_cselect_b32 s52, {f32(QSCALE)}, 1.0")
    a.I(f"s_mov_b32 s22, {hex(2 * MB)}")
    a.I("s_mov_b32 s23, 0x20000")
    a.I(f"s_mov_b32 s26, {hex(4 * MB)}")
    a.I("s_mov_b32 s27, 0x20000")
    srd(a, 28, 14, 15, 16 * MB, add="s51")
    srd(a, 32, 12, 13, 4 * MB)
    srd(a, 36, 14, 15, 16 * MB, add=WS_V)
    srd(a, 56, 6, 7, 2 * MB)
    a.I("s_cmp_eq_u32 s18, 31")
    a.I(f"s_cbranch_scc1 {N}_D")
    a.I("s_cmp_eq_u32 s41, 1")
    a.I(f"s_cbranch_scc1 {N}_B")
    a.I("s_cmp_eq_u32 s18, 10")
    a.I(f"s_cbranch_scc1 {N}_C")

    AF, ACC, RING, PK = 64, 192, 8, 32
    LOOK = 6

    def body(passes, tag):
        vm, lg = VM(a), LG(a)
        st = Stamper(a, "qkv")
        st()
        NP = len(passes)
        NC = 4 * NP
        NM = 64 * NP
        restage = tag == "D"
        blk = {}
        free = [6, 7, 8, 9]
        nxt = [0]

        def dmaW():
            c = nxt[0]
            if c >= NC or not free:
                return False
            b = free.pop(0)
            blk[c] = b
            nxt[0] += 1
            pp, kc = divmod(c, 4)
            form, su, di = passes[pp]
            a.I(f"s_add_u32 m0, s47, {hex(b * 16384)}")
            if su is not None:
                a.I(f"s_mov_b32 s45, {hex((kc << 20) + su * 128)}")
            else:
                a.I(f"s_add_u32 s45, s48, {hex((kc << 20) + di * 128)}")
            sr = "s[32:35]" if form == "V" else "s[24:27]"
            vm.issue(f"buffer_load_dwordx4 v2, {sr}, s45 offen lds", ("W", c))
            vm.issue(f"buffer_load_dwordx4 v3, {sr}, s45 offen offset:1024 lds", ("W", c))
            return True

        def dmaA(j):
            sr = "s[56:59]" if (restage and j < 8) else "s[20:23]"
            a.I(f"s_add_u32 m0, s46, {hex((j % 3) * 4096)}")
            a.I(f"s_mov_b32 s45, {(j % 8) * 128}")
            for i in range(4):
                vm.issue(f"buffer_load_dwordx4 {v(52 + i)}, {sr}, s45 offen offset:{i * 1024} lds", ("A", j))

        def readA(j):
            vm.wait(("A", j))
            for t in range(4):
                lg.issue(f"ds_read_b128 {v(AF + 16 * (j % 8) + 4 * t, 4)}, {v(56 + t)} offset:{(j % 3) * 4096}", ("A", j))

        dmaW(); dmaA(0); dmaA(1); dmaW(); dmaA(2); dmaW(); dmaW()

        def reads(i):
            c, r = divmod(i, 16)
            t, cb = divmod(r, 2)
            b = blk[c]
            base = [4, 6, 50][b // 4] + cb
            off = (b % 4) * 16384 + t * 2048
            d = RING + 4 * (i % LOOK)
            lg.issue(f"ds_read_b64_tr_b16 {v(d, 2)}, {v(base)} offset:{off}", ("W", i))
            lg.issue(f"ds_read_b64_tr_b16 {v(d + 2, 2)}, {v(base)} offset:{off + 512}", ("W", i))

        def sync(c):
            vm.wait(("W", c))
            a.I("s_barrier")
            if c >= 2:
                free.append(blk[c - 2])
            if c == (10 if restage else 5):
                free.extend([0, 1, 2, 3, 4, 5])
            n = 0
            while n < 2 and dmaW():
                n += 1

        def epi(pp):
            out = []
            form, su, di = passes[pp]
            acc = ACC + 32 * (pp & 1)
            so = 54 + (pp & 1)
            if su is not None:
                out.append(lambda: a.I(f"s_add_u32 s{so}, s49, {hex((su >> 1) * 512 * 1024 + (su & 1) * 4096)}"))
            else:
                out.append(lambda: a.I(f"s_add_u32 s{so}, s50, {hex((di >> 1) * 512 * 1024 + (di & 1) * 4096)}"))
            sr = "s[36:39]" if form == "V" else "s[28:31]"
            for cb in range(2):
                for h in range(2):
                    q = 2 * cb + h
                    for i in range(4):
                        src = acc + 16 * cb + 8 * h + 2 * i
                        if form == "K" and tag in "AD":
                            out.append(lambda src=src: a.I(f"v_mul_f32 {v(src)}, s52, {v(src)}"))
                            out.append(lambda src=src: a.I(f"v_mul_f32 {v(src + 1)}, s52, {v(src + 1)}"))
                        out.append(lambda src=src, q=q, i=i: a.I(
                            f"v_cvt_pk_bf16_f32 {v(PK + 4 * q + i)}, {v(src)}, {v(src + 1)}"))
                    out.append(lambda q=q: vm.issue(
                        f"buffer_store_dwordx4 {v(PK + 4 * q, 4)}, v48, {sr}, s{so} offen offset:{q * 1024}{SP}", ("S", pp)))
            return out

        st()
        readA(0)
        sync(0)
        st()
        for i in range(LOOK - 2):
            reads(i)
        lg.wait(("A", 0))
        for i in range(LOOK - 2, LOOK):
            reads(i)
        pend = []
        for i in range(NM):
            c, r = divmod(i, 16)
            t, cb = divmod(r, 2)
            pp, kc = divmod(c, 4)
            k = 8 * kc + t
            if i % 2 == 0:
                lg.wait([("W", i), ("W", i + 1), ("A", i // 8)])
            if pp == 0 and i % 8 == 0 and i // 8 + 3 < (11 if restage else 8):
                dmaA(i // 8 + 3)
            if restage and 72 < i <= 128 + 8 and i % 8 == 4:
                jj = 8 + (i - 76) // 8
                lg.wait(("A", jj))
                if jj + 3 < 16:
                    dmaA(jj + 3)
            acc = v(ACC + 32 * (pp & 1) + 16 * cb, 16)
            wf = v(RING + 4 * (i % LOOK), 4)
            af = v(AF + 4 * k, 4)
            cin = "0" if k == 0 else acc
            if passes[pp][0] == "V":
                a.I(f"{MF} {acc}, {af}, {wf}, {cin}")
            else:
                a.I(f"{MF} {acc}, {wf}, {af}, {cin}")
            j = i + LOOK
            if j < NM:
                if j % 16 == 0:
                    sync(j // 16)
                if j < 64 and j % 8 == 0:
                    readA(j // 8)
                reads(j)
            if restage and 64 <= i < 128 and i % 8 == 7:
                readA(8 + (i - 64) // 8)
            if i % 64 == 63:
                st()
            if i % 64 == 6 and pp >= 1:
                pend = epi(pp - 1)
            if pend:
                pend.pop(0)()
        a.I("s_nop 11")
        for f in epi(NP - 1):
            f()
        st.dump(16, 14)
        a.I("s_endpgm")

    body([("K", None, i) for i in range(6)], "A")
    a.label(N + "_B")
    body([("V", None, i) for i in range(6)], "B")
    a.label(N + "_C")
    body([("K", None, i) for i in range(4)] + [("V", 0, 0), ("V", 1, 0)], "C")
    a.label(N + "_D")
    body([("V", 62, 0), ("V", 63, 0)] + [("K", None, i) for i in range(4)], "D")
    kend(a, N)
    return a, N, (256, 512, 163840)


def gen_attn(withb2=False):
    b2tail = withb2 and os.environ.get("B2MODE", "start") == "tail"
    if b2tail:
        withb2 = False
    a = Asm()
    N = "attn_kernel"
    O, Q, S, P, NEGM, RING = 64, 128, [160, 176], [192, 200], 208, 224
    L16, VKA, VVA, VL, VLS, E, VDA, VDB, QREL, T0, T1, T2, NINF = 1, 2, 3, 4, 5, 6, 10, 11, 12, 13, 14, 15, 48
    PK = 16
    EE = 50
    sW, sH, sP, sN, sC, sPH, sTHR, sBAR, sKO, sKM, sVM, sQS = 16, 17, 18, 19, 20, 21, 40, 41, 42, 43, 44, 45
    kstart(a, N, 256)
    a.I("s_load_dwordx2 s[4:5], s[0:1], 88")
    a.I("s_load_dwordx2 s[14:15], s[0:1], 40")
    a.I("v_lshrrev_b32 v1, 6, v0")
    a.I("v_and_b32 v0, 63, v0")
    a.I("s_and_b32 s6, s2, 7")
    a.I(f"v_readfirstlane_b32 {s(sW)}, v1")
    a.I("s_lshr_b32 s7, s2, 3")
    a.I("s_and_b32 s8, s7, 3")
    a.I("s_lshl_b32 s6, s6, 2")
    a.I(f"s_add_u32 {s(sH)}, s6, s8")
    a.I(f"s_lshr_b32 {s(sP)}, s7, 2")
    a.I(f"s_lshl_b32 s6, {s(sP)}, 2")
    a.I(f"s_sub_u32 s7, 60, s6")
    a.I(f"s_add_u32 s7, s7, {s(sW)}")
    a.I(f"s_add_u32 s8, s6, 7")
    a.I(f"s_sub_u32 s8, s8, {s(sW)}")
    a.I(f"s_cmp_ge_u32 {s(sW)}, 4")
    a.I(f"s_cselect_b32 {s(sQS)}, s8, s7")
    a.I(f"s_add_u32 {s(sN)}, {s(sQS)}, 1")
    a.I("s_sub_u32 s9, 64, s6")
    a.I(f"s_lshr_b32 {s(sBAR)}, s9, 1")
    a.I("s_lshl_b32 s9, s9, 13")
    a.I(f"s_lshl_b32 s10, {s(sH)}, 19")
    a.I(f"v_lshlrev_b32 {v(L16)}, 4, v0")
    a.I(f"s_and_b32 s11, {s(sW)}, 3")
    a.I("s_lshl_b32 s11, s11, 11")
    a.I(f"v_add_u32 {v(VDA)}, s11, {v(L16)}")
    a.I(f"v_add_u32 {v(VDB)}, 0x2000, {v(VDA)}")
    a.I(f"v_and_b32 {v(T0)}, 31, v0")
    a.I(f"v_lshrrev_b32 {v(T1)}, 5, v0")
    a.I(f"v_lshlrev_b32 {v(T1)}, 2, {v(T1)}")
    a.I(f"v_sub_u32 {v(QREL)}, {v(T0)}, {v(T1)}")
    a.I(f"v_mov_b32 {v(NINF)}, 0xff800000")
    a.I(f"s_mov_b32 {s(sTHR)}, {f32(2.0 ** 14)}")
    FLG = 7 * 16384 + 8192
    if withb2:
        a.I(f"v_mov_b32 v124, {FLG}")
        for i in range(4):
            a.I(f"v_mov_b32 {v(56 + i)}, 0")
        a.I("ds_write_b128 v124, v[56:59]")
        a.I("s_and_b32 s60, s2, 7")
        a.I("s_lshl_b32 s60, s60, 5")
        a.I("s_lshr_b32 s61, s2, 3")
        a.I("s_add_u32 s60, s60, s61")
        a.I("s_cmp_eq_u32 s2, 248")
        a.I("s_cselect_b32 s61, 4, 2")
        a.I(f"s_cmp_lt_u32 {s(sW)}, s61")
        a.I("s_cselect_b32 s23, 1, 0")
        a.I(f"s_cmp_ge_u32 {s(sW)}, 2")
        a.I("s_cselect_b32 s60, 0x100, s60")
        a.I(f"s_mov_b32 s61, {131072}")
        a.I(f"s_cselect_b32 s61, {131072 + 16384}, s61")
        a.I(f"s_and_b32 s67, {s(sW)}, 1")
    a.I("s_waitcnt lgkmcnt(0)")
    srd(a, 24, 4, 5, "s9", add="s10")
    a.I(f"s_add_u32 s12, s10, {hex(WS_V - 3 * 8192)}")
    a.I(f"s_add_u32 s13, s9, {3 * 8192}")
    srd(a, 28, 4, 5, "s13", add="s12")
    srd(a, 32, 4, 5, 16 * MB, add=WS_Q)
    srd(a, 36, 4, 5, 16 * MB, add=WS_CTX)
    st = Stamper(a, "attn")
    st()
    a.I(f"s_lshl_b32 s12, {s(sQS)}, 18")
    a.I(f"s_lshl_b32 s13, {s(sH)}, 13")
    a.I("s_add_u32 s12, s12, s13")
    a.I("s_add_u32 s13, s12, 4096")

    def q_loads(vm=None):
        for t in range(8):
            x = f"buffer_load_dwordx4 {v(Q + 4 * t, 4)}, {v(L16)}, s[32:35], s{12 + t // 4} offen offset:{(t % 4) * 1024}{os.environ.get('QP', '')}"
            vm.issue(x, "Q") if vm else a.I(x)

    if withb2:
        a.I("s_cmp_eq_u32 s23, 0")
        a.I(f"s_cbranch_scc1 {N}_nob2l")
        b2_loads(a, VM(a), 60, 67, L16, 16, 32, 62, 48)
        q_loads()
        a.label(f"{N}_nob2l")
        a.I("s_barrier")
    a.I(f"s_lshl_b32 s46, {s(sQS)}, 18")
    a.I(f"s_lshl_b32 s6, {s(sH)}, 13")
    a.I("s_add_u32 s46, s46, s6")
    a.I("s_add_u32 s47, s46, 4096")
    a.I(f"s_mov_b32 {s(sKM)}, s11")
    a.I(f"s_mov_b32 {s(sKO)}, 0")

    def dma_list(withV=True):
        l = []
        if withV:
            l += [f"s_mov_b32 m0, {s(sVM)}", None,
                  f"buffer_load_dwordx4 {v(VDA)}, s[28:31], {s(sKO)} offen lds",
                  f"buffer_load_dwordx4 {v(VDA)}, s[28:31], {s(sKO)} offen offset:1024 lds",
                  f"s_add_u32 m0, {s(sVM)}, 0x4000", None,
                  f"buffer_load_dwordx4 {v(VDB)}, s[28:31], {s(sKO)} offen lds",
                  f"buffer_load_dwordx4 {v(VDB)}, s[28:31], {s(sKO)} offen offset:1024 lds"]
        l += [f"s_mov_b32 m0, {s(sKM)}", f"s_add_u32 {s(sVM)}, {s(sKM)}, 0x2000",
              f"buffer_load_dwordx4 {v(VDA)}, s[24:27], {s(sKO)} offen lds",
              f"buffer_load_dwordx4 {v(VDA)}, s[24:27], {s(sKO)} offen offset:1024 lds",
              f"s_add_u32 m0, {s(sKM)}, 0x4000", f"s_add_u32 {s(sKM)}, {s(sKM)}, 0x8000",
              f"buffer_load_dwordx4 {v(VDB)}, s[24:27], {s(sKO)} offen lds",
              f"buffer_load_dwordx4 {v(VDB)}, s[24:27], {s(sKO)} offen offset:1024 lds",
              f"s_and_b32 {s(sKM)}, {s(sKM)}, 0x1ffff",
              f"s_add_u32 {s(sKO)}, {s(sKO)}, 0x4000"]
        return l

    def emit_dma(withV=True):
        for x in dma_list(withV):
            if "dma" in os.environ.get("ADROP", "") and x and x.endswith(" lds"):
                continue
            a.I(x or "s_nop 0")

    def mask_negm():
        for j in range(16):
            a.I(f"v_cmp_le_i32 vcc, {(j & 3) + 8 * (j >> 2)}, {v(QREL)}")
            a.I("s_nop 1")
            a.I(f"v_cndmask_b32 {v(NEGM + j)}, {v(NINF)}, {v(NEGM + j)}, vcc")
        a.I("s_nop 1")

    def rowmax(Sx, dst):
        a.I(f"v_max3_f32 {v(dst)}, {v(Sx)}, {v(Sx + 1)}, {v(Sx + 2)}")
        for j in range(3, 15, 2):
            a.I(f"v_max3_f32 {v(dst)}, {v(dst)}, {v(Sx + j)}, {v(Sx + j + 1)}")
        a.I(f"v_max_f32 {v(dst)}, {v(dst)}, {v(Sx + 15)}")
        a.I(f"v_mov_b32 {v(T2)}, {v(dst)}")
        a.I("s_nop 1")
        a.I(f"v_permlane32_swap_b32 {v(dst)}, {v(T2)}")
        a.I(f"v_max_f32 {v(dst)}, {v(dst)}, {v(T2)}")

    def role(ld):
        R = "S" if ld else "L"
        if withb2 and not ld:
            a.I("s_cmp_eq_u32 s23, 0")
            a.I(f"s_cbranch_scc1 {N}_b2no")
            a.I(f"s_and_b32 s67, {s(sW)}, 2")
            a.I("s_lshl_b32 s67, s67, 2")
            a.I(f"s_add_u32 s67, s67, {FLG}")
            a.I("v_mov_b32 v124, s67")
            a.I(f"s_bitcmp1_b32 {s(sW)}, 0")
            a.I(f"s_cbranch_scc1 {N}_b2w1")
            rmap = [56, 57, 58, 59, 60, 61, 62, 120, 63, 16, 24, 32, 40, 64, 72, 80, 88, 104, 160, 176, 192, 208, 224]
            for own in range(2):
                vmb = VM(a)
                if own:
                    a.label(f"{N}_b2w1")
                ex = [0]

                def pair_sync():
                    ex[0] += 1
                    lab = a.uid(f"{N}_spin")
                    a.I(f"v_mov_b32 v125, {ex[0]}")
                    a.I(f"ds_write_b32 v124, v125 offset:{4 * own}")
                    a.label(lab)
                    a.I(f"ds_read_b32 v126, v124 offset:{4 * (1 - own)}")
                    a.I("s_waitcnt lgkmcnt(0)")
                    a.I("v_readfirstlane_b32 s67, v126")
                    a.I("s_nop 0")
                    a.I(f"s_cmp_lt_u32 s67, {ex[0]}")
                    a.I(f"s_cbranch_scc1 {lab}")
                b2_body(a, own, 60, 61, pair_sync, vmb, S0=62, SR=48, slice_len=10 ** 9, rmap=rmap, preloaded=True,
                        st=st if os.environ.get("B2ST") else (lambda: None))
                if os.environ.get("B2ST"):
                    st()
                    st.n -= 5 * (1 - own)
                assert vmb.q[-5:] == ["Q", "Z", "Z", "Z", "Z"] or "Q" not in vmb.q
                a.I(f"s_branch {N}_b2done")
            a.label(f"{N}_b2no")
        def inits(tag):
            for j in range(16):
                a.I(f"v_mov_b32 {v(NEGM + j)}, 0")
            a.I(f"s_cmp_lg_u32 {s(sN)}, 1")
            a.I(f"s_cbranch_scc1 {N}_{R}_nm1{tag}")
            mask_negm()
            a.label(f"{N}_{R}_nm1{tag}")
            for j in range(64):
                a.I(f"v_mov_b32 {v(O + j)}, 0")

        inits("a")
        q_loads()
        if ld:
            emit_dma(withV=False)
            emit_dma()
        if withb2 and not ld:
            a.I("s_waitcnt vmcnt(0)")
            a.I(f"s_branch {N}_b2join")
            a.label(f"{N}_b2done")
            inits("b")
            a.I("s_waitcnt vmcnt(4)")
            a.label(f"{N}_b2join")
        a.I(f"v_mov_b32 {v(VL)}, 0")
        a.I(f"v_mov_b32 {v(VLS)}, 0")
        a.I(f"v_add_u32 {v(VKA)}, 0x8000, {v(L16)}")
        a.I(f"v_mov_b32 {v(VVA)}, {v(L16)}")
        if os.environ.get("PRIO") and not ld:
            a.I(f"s_setprio {os.environ['PRIO']}")
        if ld or not withb2:
            a.I(f"s_waitcnt vmcnt({6 if ld else 0})")
        a.I("s_barrier")
        st()
        for t in range(8):
            a.I(f"ds_read_b128 {v(RING + 4 * t, 4)}, {v(L16)} offset:{t * 1024}")
        dl = [x or "s_nop 0" for x in dma_list()] if ld else []
        for t in range(8):
            if t % 4 == 0:
                a.I("s_waitcnt lgkmcnt(4)")
            a.I(f"{MF} {v(S[0], 16)}, {v(RING + 4 * t, 4)}, {v(Q + 4 * t, 4)}, {v(NEGM if t == 0 else S[0], 16)}")
            a.I(f"ds_read_b128 {v(RING + 4 * t, 4)}, {v(L16)} offset:{16384 + t * 1024}")
            for x in dl[:3]:
                a.I(x)
            dl = dl[3:]
        assert not dl
        if ld:
            emit_dma()
        else:
            a.I("s_nop 11")
        rowmax(S[0], T0)
        for j in range(16):
            a.I(f"v_sub_f32 {v(S[0] + j)}, {v(S[0] + j)}, {v(T0)}")
        for j in range(16):
            a.I(f"v_sub_f32 {v(NEGM + j)}, 0, {v(T0)}")
        a.I(f"s_mov_b32 {s(sPH)}, 0")
        a.I(f"s_sub_u32 {s(sC)}, {s(sN)}, 3")
        a.I(f"s_cbranch_scc0 {N}_{R}_first")
        a.I(f"s_mov_b32 {s(sPH)}, 3")
        a.I(f"s_mov_b32 {s(sC)}, 0")
        a.I(f"s_cmp_lg_u32 {s(sN)}, 2")
        a.I(f"s_cbranch_scc1 {N}_{R}_first")
        a.I(f"s_mov_b32 {s(sPH)}, 1")
        mask_negm()
        a.label(f"{N}_{R}_first")
        e = lambda j: v(EE + (j % 6))
        if ld:
            a.I("s_waitcnt vmcnt(14)")
        a.I("s_waitcnt lgkmcnt(0)")
        a.I("s_barrier")
        a.I(f"s_sub_u32 {s(sBAR)}, {s(sBAR)}, 1")
        dl = [x or "s_nop 0" for x in dma_list()] if ld else []
        for pos in range(8):
            r = v(RING + 4 * pos, 4)
            a.I(f"{MF} {v(S[1], 16)}, {r}, {v(Q + 4 * pos, 4)}, {v(NEGM if pos == 0 else S[1], 16)}")
            a.I(f"ds_read_b128 {r}, {v(VKA)} offset:{pos * 1024}")
            a.I(f"v_exp_f32 {e(2 * pos)}, {v(S[0] + 2 * pos)}")
            a.I(f"v_exp_f32 {e(2 * pos + 1)}, {v(S[0] + 2 * pos + 1)}")
            a.many(dl[:3] or ["s_nop 0"])
            dl = dl[3:]
            a.I(f"v_add_f32 {v(VLS)}, {v(VLS)}, {e(2 * pos)}")
            a.I(f"v_add_f32 {v(VLS)}, {v(VLS)}, {e(2 * pos + 1)}")
            a.I(f"v_cvt_pk_bf16_f32 {v(P[0] + pos)}, {e(2 * pos)}, {e(2 * pos + 1)}")
        assert not dl
        a.I("s_nop 4")
        a.I(f"s_sub_u32 {s(sC)}, {s(sC)}, 1")
        a.I(f"s_branch {N}_{R}_back0")

        def iteration(par):
            gaps = [[] for _ in range(16)]
            pre = [[] for _ in range(16)]
            mf = []
            Sc, Sn, Pc, Pp = S[par], S[1 - par], P[par], P[1 - par]
            e = lambda j: v(EE + (j % 6))
            for pos in range(16):
                r = v(RING + 4 * (pos & 7), 4)
                if pos < 8:
                    mf.append(f"{MF} {v(Sn, 16)}, {r}, {v(Q + 4 * pos, 4)}, {v(NEGM if pos == 0 else Sn, 16)}")
                    ks, dt = divmod(pos, 4)
                    gaps[pos].append(f"ds_read_b128 {r}, {v(VVA)} offset:{8192 + par * 16384 + (2 * dt + ks) * 1024}")
                else:
                    ks, dt = divmod(pos - 8, 4)
                    mf.append(f"{MF} {v(O + 16 * dt, 16)}, {r}, {v(Pp + 4 * ks, 4)}, {v(O + 16 * dt, 16)}")
                    gaps[pos].append(f"ds_read_b128 {r}, {v(VKA)} offset:{par * 16384 + (pos - 8) * 1024}")
                if pos % 4 == 0:
                    pre[pos].append("s_waitcnt lgkmcnt(4)")
            early = int(os.environ.get("EARLY", "1"))
            if early:
                eg = [0, 0, 1, 2, 2, 3, 4, 5, 6, 7, 8, 9, 10, 11, 12, 13]
            else:
                eg = [0] + list(range(15))
            gaps[0].append(f"v_add_f32 {v(VL)}, {v(VL)}, {v(VLS)}")
            for j in range(16):
                gaps[eg[j]].append(f"v_exp_f32 {e(j)}, {v(Sc + j)}")
            for j in range(1, 16):
                g = eg[j] + 1
                if j == 1:
                    gaps[g].append(f"v_add_f32 {v(VLS)}, {e(0)}, {e(1)}")
                else:
                    gaps[g].append(f"v_add_f32 {v(VLS)}, {v(VLS)}, {e(j)}")
                if j % 2 == 1:
                    gaps[g + (1 if (early and j == 15) else 0)].append(f"v_cvt_pk_bf16_f32 {v(Pc + j // 2)}, {e(j - 1)}, {e(j)}")
            if par == 0:
                gaps[2].append(f"v_add_u32 {v(VKA)}, 0x8000, {v(VKA)}")
                gaps[6].append(f"v_and_b32 {v(VKA)}, 0x1ffff, {v(VKA)}")
                bar = ["s_barrier", f"s_sub_u32 {s(sBAR)}, {s(sBAR)}, 1"]
                if ld:
                    bar = ["s_waitcnt vmcnt(14)"] + bar
                gaps[4] = bar + gaps[4]
                if ld:
                    d = [x for x in dma_list() if x]
                    m0a, l1, l2, m0b, l3, l4, m0c, svm, l5, l6, m0d, skm, l7, l8, sand, sko = d
                    gaps[5] = [m0a] + gaps[5] + [l1]
                    gaps[6] += [l2, m0b]
                    gaps[7] += [l3]
                    gaps[8] += [l4, m0c]
                    gaps[9] += [svm, l5]
                    gaps[10] += [l6, m0d]
                    gaps[11] += [l7]
                    gaps[12] += [l8, skm]
                    gaps[13] += [sand, sko]
            else:
                gaps[10].append(f"v_mov_b32 {v(VVA)}, {v(VKA)}")
            gaps[14].append(f"s_sub_u32 {s(sC)}, {s(sC)}, 1")
            gaps[14 if early else 15].append(f"v_cmp_nge_f32 vcc, {s(sTHR)}, {v(VLS)}")
            drop = os.environ.get("ADROP", "").split(",")
            for pos in range(16):
                if "bar" in drop:
                    gaps[pos] = [x for x in gaps[pos] if x != "s_barrier"]
                if "dma" in drop:
                    gaps[pos] = [x for x in gaps[pos] if not x.endswith(" lds")]
                if "rd" in drop:
                    gaps[pos] = [x for x in gaps[pos] if not x.startswith("ds_read")]
                if "valu" in drop:
                    gaps[pos] = [x for x in gaps[pos] if not (x.startswith("v_exp") or x.startswith("v_cvt") or x.startswith("v_add_f32"))]
                if "e64" in drop:
                    gaps[pos] = [x.replace("v_exp_f32 ", "v_exp_f32_e64 ").replace("v_add_f32 ", "v_add_f32_e64 ") for x in gaps[pos]]
                a.many(pre[pos])
                a.I(mf[pos])
                a.many(gaps[pos])
            if "br" not in drop:
                a.I(f"s_cbranch_vccnz {N}_{R}_slow{par}")
            a.label(f"{N}_{R}_back{par}")
            a.I(f"s_cbranch_scc1 {N}_{R}_spec{par}")

        if os.environ.get("PRIO") and not ld:
            pass
        if os.environ.get("AALIGN"):
            a.raw(".p2align 6")
            for _ in range(int(os.environ["AALIGN"]) - 1):
                a.I("s_nop 0")
        a.label(f"{N}_{R}_it0")
        iteration(0)
        a.label(f"{N}_{R}_it1")
        iteration(1)
        a.I(f"s_branch {N}_{R}_it0")

        def svc():
            lab = a.uid(f"{N}_{R}_svc")
            a.I(f"s_cmp_eq_u32 {s(sBAR)}, 0")
            a.I(f"s_cbranch_scc1 {lab}")
            if ld:
                a.I("s_waitcnt vmcnt(14)")
            if "bar" not in os.environ.get("ADROP", ""):
                a.I("s_barrier")
            a.I(f"s_sub_u32 {s(sBAR)}, {s(sBAR)}, 1")
            if ld:
                emit_dma()
            a.label(lab)

        for par in range(2):
            Sc, Sn, Pc = S[par], S[1 - par], P[par]
            a.label(f"{N}_{R}_slow{par}")
            a.I("s_cselect_b32 s22, 1, 0")
            a.I("s_nop 15")
            rowmax(Sc, T0)
            a.I(f"v_max_f32 {v(T0)}, 0, {v(T0)}")
            a.I(f"v_exp_f32_e64 {v(T1)}, -{v(T0)}")
            for j in range(16):
                a.I(f"v_sub_f32 {v(NEGM + j)}, {v(NEGM + j)}, {v(T0)}")
                a.I(f"v_sub_f32 {v(Sc + j)}, {v(Sc + j)}, {v(T0)}")
                a.I(f"v_sub_f32 {v(Sn + j)}, {v(Sn + j)}, {v(T0)}")
            for j in range(64):
                a.I(f"v_mul_f32 {v(O + j)}, {v(O + j)}, {v(T1)}")
            a.I(f"v_mul_f32 {v(VL)}, {v(VL)}, {v(T1)}")
            a.I(f"v_mov_b32 {v(VLS)}, 0")
            for i in range(8):
                a.I(f"v_exp_f32 {v(E)}, {v(Sc + 2 * i)}")
                a.I(f"v_exp_f32 {v(E + 1)}, {v(Sc + 2 * i + 1)}")
                a.I("s_nop 0")
                a.I(f"v_add_f32 {v(VLS)}, {v(VLS)}, {v(E)}")
                a.I(f"v_add_f32 {v(VLS)}, {v(VLS)}, {v(E + 1)}")
                a.I(f"v_cvt_pk_bf16_f32 {v(Pc + i)}, {v(E)}, {v(E + 1)}")
            a.I(f"s_cmp_eq_u32 {s(sPH)}, 2")
            a.I(f"s_cbranch_scc1 {N}_{R}_lback{par}")
            a.I("s_cmp_lg_u32 s22, 0")
            a.I(f"s_branch {N}_{R}_back{par}")
            a.label(f"{N}_{R}_spec{par}")
            a.I(f"s_cmp_eq_u32 {s(sPH)}, 1")
            a.I(f"s_cbranch_scc1 {N}_{R}_last{1 - par}")
            if par == 0:
                a.I(f"s_cmp_eq_u32 {s(sPH)}, 3")
                a.I(f"s_cbranch_scc1 {N}_{R}_exit0")
            a.I(f"s_mov_b32 {s(sPH)}, 1")
            a.I(f"s_mov_b32 {s(sC)}, 0")
            mask_negm()
            a.I(f"s_branch {N}_{R}_it{1 - par}")
            Pp = P[1 - par]
            a.label(f"{N}_{R}_last{par}")
            a.I(f"s_mov_b32 {s(sPH)}, 2")
            a.I("s_waitcnt lgkmcnt(0)")
            voff = lambda pos: (2 * (pos % 4) + pos // 4) * 1024
            for pos in range(8):
                a.I(f"ds_read_b128 {v(RING + 4 * pos, 4)}, {v(VVA)} offset:{8192 + par * 16384 + voff(pos)}")
            a.I(f"v_add_f32 {v(VL)}, {v(VL)}, {v(VLS)}")
            a.I(f"v_mov_b32 {v(VLS)}, 0")
            dl = []
            if par == 0:
                if ld:
                    a.I("s_waitcnt vmcnt(14)")
                a.I("s_barrier")
                a.I(f"s_sub_u32 {s(sBAR)}, {s(sBAR)}, 1")
                dl = [x or "s_nop 0" for x in dma_list()] if ld else []
            for pos in range(8):
                ks, dt = divmod(pos, 4)
                a.I(f"v_exp_f32 {e(2 * pos)}, {v(Sc + 2 * pos)}")
                a.I(f"v_exp_f32 {e(2 * pos + 1)}, {v(Sc + 2 * pos + 1)}")
                a.I("s_waitcnt lgkmcnt(7)")
                a.I(f"{MF} {v(O + 16 * dt, 16)}, {v(RING + 4 * pos, 4)}, {v(Pp + 4 * ks, 4)}, {v(O + 16 * dt, 16)}")
                if par == 0:
                    a.I(f"ds_read_b128 {v(RING + 4 * pos, 4)}, {v(VVA)} offset:{8192 + 16384 + voff(pos)}")
                else:
                    a.I(f"ds_read_b128 {v(RING + 4 * pos, 4)}, {v(VKA)} offset:{8192 + voff(pos)}")
                a.I(f"v_add_f32 {v(VLS)}, {v(VLS)}, {e(2 * pos)}")
                a.I(f"v_add_f32 {v(VLS)}, {v(VLS)}, {e(2 * pos + 1)}")
                a.I(f"v_cvt_pk_bf16_f32 {v(Pc + pos)}, {e(2 * pos)}, {e(2 * pos + 1)}")
                a.many(dl[:3])
                dl = dl[3:]
            assert not dl
            a.I(f"v_cmp_nge_f32 vcc, {s(sTHR)}, {v(VLS)}")
            a.I(f"s_cbranch_vccnz {N}_{R}_slow{par}")
            a.label(f"{N}_{R}_lback{par}")
            if par == 0:
                a.I(f"s_branch {N}_{R}_fin0")
                a.label(f"{N}_{R}_exit0")
                a.I("s_waitcnt lgkmcnt(0)")
                for pos in range(8):
                    a.I(f"ds_read_b128 {v(RING + 4 * pos, 4)}, {v(VVA)} offset:{8192 + 16384 + voff(pos)}")
                a.label(f"{N}_{R}_fin0")
            a.I(f"v_add_f32 {v(VL)}, {v(VL)}, {v(VLS)}")
            for pos in range(8):
                ks, dt = divmod(pos, 4)
                a.I(f"s_waitcnt lgkmcnt({7 - pos})")
                a.I(f"{MF} {v(O + 16 * dt, 16)}, {v(RING + 4 * pos, 4)}, {v(Pc + 4 * ks, 4)}, {v(O + 16 * dt, 16)}")
            if par == 0:
                a.I(f"s_branch {N}_{R}_epi")
        a.label(f"{N}_{R}_epi")
        st()
        svc()
        if ld and (withb2 or b2tail):
            a.I(f"s_and_b32 s53, {s(sW)}, 3")
            code_touch(a, "l3_kernel", 53, 48, EE + 2, nw_log=2)
            srd(a, 48, 4, 5, 64 * 128, add=WS_FLAG)
            a.I("s_lshl_b32 s52, s2, 7")
            a.I(f"v_lshlrev_b32 {v(EE)}, 2, v0")
            a.I(f"v_mov_b32 {v(EE + 1)}, 0")
            a.I("s_mov_b64 exec, 15")
            a.I(f"buffer_store_dword {v(EE + 1)}, {v(EE)}, s[48:51], s52 offen")
            a.I("s_mov_b64 exec, -1")
        a.I(f"v_mov_b32 {v(T2)}, {v(VL)}")
        a.I("s_nop 1")
        a.I(f"v_permlane32_swap_b32 {v(VL)}, {v(T2)}")
        a.I(f"v_add_f32 {v(VL)}, {v(VL)}, {v(T2)}")
        a.I(f"v_rcp_f32 {v(T0)}, {v(VL)}")
        a.I("s_nop 7")
        for dt in range(4):
            for h in range(2):
                q = 2 * dt + h
                for i in range(4):
                    src = O + 16 * dt + 8 * h + 2 * i
                    a.I(f"v_mul_f32 {v(src)}, {v(src)}, {v(T0)}")
                    a.I(f"v_mul_f32 {v(src + 1)}, {v(src + 1)}, {v(T0)}")
                    a.I(f"v_cvt_pk_bf16_f32 {v(PK + 4 * q + i)}, {v(src)}, {v(src + 1)}")
                a.I(f"buffer_store_dwordx4 {v(PK + 4 * q, 4)}, {v(L16)}, s[36:39], s{46 + q // 4} offen offset:{(q % 4) * 1024}{SP}")
            if dt == 1:
                svc()
        if ld and b2tail:
            a.I(f"s_lshl_b32 s60, {s(sH)}, 2")
            a.I(f"s_add_u32 s60, s60, {s(sP)}")
            a.I("s_lshl_b32 s60, s60, 1")
            a.I(f"s_bfe_u32 s61, {s(sW)}, 0x10001")
            a.I("s_add_u32 s60, s60, s61")
            a.I(f"s_cmp_lt_u32 {s(sP)}, 4")
            a.I(f"s_cbranch_scc1 {N}_b2go")
            a.I("s_cmp_lg_u32 s60, 8")
            a.I(f"s_cbranch_scc1 {N}_{R}_tail")
            a.I("s_movk_i32 s60, 0x100")
            a.label(f"{N}_b2go")
            a.I("s_lshl_b32 s61, s61, 14")
            a.I(f"s_add_u32 s61, s61, {131072}")
            a.I(f"s_lshl_b32 s62, {s(sP)}, 2")
            a.I("s_sub_u32 s62, 28, s62")
            a.label(f"{N}_b2al")
            a.I(f"s_cmp_le_u32 {s(sBAR)}, s62")
            a.I(f"s_cbranch_scc1 {N}_b2st")
            a.I("s_waitcnt vmcnt(14)")
            a.I("s_barrier")
            a.I(f"s_sub_u32 {s(sBAR)}, {s(sBAR)}, 1")
            emit_dma()
            a.I(f"s_branch {N}_b2al")
            a.label(f"{N}_b2st")
            a.I(f"s_bitcmp1_b32 {s(sW)}, 0")
            a.I(f"s_cbranch_scc1 {N}_b2w1")
            for own in range(2):
                vmb = VM(a)
                nsv = [0]

                def svcb():
                    nsv[0] += 1
                    a.I("s_waitcnt vmcnt(14)")
                    vmb.q = vmb.q[-14:]
                    a.I("s_barrier")
                    a.I(f"s_sub_u32 {s(sBAR)}, {s(sBAR)}, 1")
                    for x in dma_list():
                        if x and x.startswith("buffer"):
                            vmb.issue(x, "dma")
                        else:
                            a.I(x or "s_nop 0")
                if own:
                    a.label(f"{N}_b2w1")
                b2_body(a, own, 60, 61, svcb, vmb, R0=16, S0=62, SR=48, slice_len=int(os.environ.get("SLICE", "90")))
                assert nsv[0] <= 12, nsv
                print("b2 svc slices", nsv[0])
                if not own:
                    a.I(f"s_branch {N}_{R}_tail")
        if ld:
            WT = int(os.environ.get("WOT", "0"))
            if withb2 and WT:
                srd(a, 48, 4, 5, 4 * MB, add=WS_WO)
                a.I("s_lshr_b32 s52, s2, 3")
                a.I("s_lshl_b32 s52, s52, 17")
                a.I("s_lshl_b32 s53, s11, 4")
                a.I("s_add_u32 s52, s52, s53")
                a.I("s_add_u32 s53, s52, 0x8000")
                a.I(f"v_lshlrev_b32 {v(EE)}, 7, v0")
            a.label(f"{N}_{R}_tail")
            if withb2 and WT:
                a.I(f"s_cmp_gt_u32 {s(sBAR)}, {WT}")
                a.I(f"s_cbranch_scc1 {N}_notouch")
                a.label(f"{N}_touch")
                a.I("s_cmp_ge_u32 s52, s53")
                a.I(f"s_cbranch_scc1 {N}_notouch")
                a.I(f"buffer_load_dword {v(EE + 1)}, {v(EE)}, s[48:51], s52 offen")
                a.I("s_add_u32 s52, s52, 0x2000")
                a.I(f"s_cmp_eq_u32 {s(sBAR)}, 0")
                a.I(f"s_cbranch_scc1 {N}_touch")
                a.label(f"{N}_notouch")
            a.I(f"s_cmp_eq_u32 {s(sBAR)}, 0")
            a.I(f"s_cbranch_scc1 {N}_{R}_done")
            a.I("s_waitcnt vmcnt(14)")
            a.I("s_barrier")
            a.I(f"s_sub_u32 {s(sBAR)}, {s(sBAR)}, 1")
            emit_dma()
            a.I(f"s_branch {N}_{R}_tail")
            a.label(f"{N}_{R}_done")
        n0 = st.n
        st.dump(sW, 4, tmpv=T0)
        st.n = n0 - 2
        a.I("s_endpgm")

    a.I(f"s_cmp_ge_u32 {s(sW)}, 4")
    a.I(f"s_cbranch_scc1 {N}_short")
    role(False)
    a.label(f"{N}_short")
    role(True)
    kend(a, N)
    return a, N, (256, 512, 163840 if (withb2 or b2tail) else 131072)


def oproj_body(a, N, st, bar_at=None):
    ACC, CR, AFR = 64, 128, 192
    DEPTH = 8
    L16, L16B, VD0, VD1, TB = 1, 2, 3, 4, 5
    a.I("s_and_b32 s10, s2, 7")
    a.I("s_lshr_b32 s11, s2, 3")
    a.I("s_and_b32 s12, s11, 3")
    a.I("s_lshl_b32 s10, s10, 2")
    a.I("s_add_u32 s17, s10, s12")
    a.I("s_lshr_b32 s18, s11, 2")
    if os.environ.get("OPX") == "same":
        a.I("s_mov_b32 s17, 0")
        a.I("s_mov_b32 s18, 0")
    if os.environ.get("OPX") == "map2":
        a.I("s_and_b32 s10, s2, 3")
        a.I("s_lshl_b32 s10, s10, 3")
        a.I("s_and_b32 s12, s11, 7")
        a.I("s_add_u32 s17, s10, s12")
        a.I("s_bfe_u32 s10, s2, 0x10002")
        a.I("s_lshl_b32 s10, s10, 2")
        a.I("s_lshr_b32 s12, s11, 3")
        a.I("s_add_u32 s18, s10, s12")
    a.I(f"v_lshlrev_b32 {v(L16)}, 4, v0")
    a.I(f"v_add_u32 {v(L16B)}, 0x40000, {v(L16)}")
    a.I("v_lshrrev_b32 v8, 3, v0")
    a.I("v_lshlrev_b32 v8, 10, v8")
    a.I("v_bfe_u32 v9, v0, 4, 1")
    a.I("v_lshlrev_b32 v10, 2, v9")
    a.I("v_and_b32 v11, 7, v0")
    a.I("v_xor_b32 v10, v10, v11")
    a.I(f"v_lshl_add_u32 {v(VD0)}, v10, 4, v8")
    a.I("s_lshl_b32 s10, s18, 7")
    a.I(f"v_add_u32 {v(VD0)}, s10, {v(VD0)}")
    a.I(f"v_add_u32 {v(VD1)}, {8192 - 1024}, {v(VD0)}")
    a.I("v_lshrrev_b32 v8, 5, v0")
    a.I("v_bfe_u32 v10, v0, 2, 2")
    a.I("v_lshl_add_u32 v8, v8, 2, v10")
    a.I(f"v_lshlrev_b32 {v(TB)}, 7, v8")
    a.I(f"v_lshl_add_u32 {v(TB)}, v9, 5, {v(TB)}")
    a.I("v_and_b32 v10, 3, v0")
    a.I(f"v_lshl_add_u32 {v(TB)}, v10, 3, {v(TB)}")
    a.I("v_bfe_u32 v10, v0, 3, 1")
    a.I(f"v_lshl_add_u32 {v(TB)}, v10, 6, {v(TB)}")
    a.I("s_lshl_b32 s19, s16, 14")
    a.I(f"v_add_u32 {v(TB)}, s19, {v(TB)}")
    a.I(f"v_xor_b32 {v(TB + 1)}, 64, {v(TB)}")
    a.I("s_lshl_b32 s40, s17, 19")
    a.I("s_lshl_b32 s10, s16, 16")
    a.I("s_add_u32 s40, s40, s10")
    a.I("s_lshl_b32 s41, s16, 20")
    ROT = int(os.environ.get("ROT", "0"))
    if ROT:
        a.I("s_and_b32 s45, s2, 7")
        a.I(f"s_mul_i32 s45, s45, {ROT}")
    a.I("s_waitcnt lgkmcnt(0)")
    srd(a, 20, 4, 5, 16 * MB, add=WS_CTX)
    srd(a, 24, 6, 7, 4 * MB)
    srd(a, 28, 8, 9, 4 * MB)
    vm, lg = VM(a), LG(a)
    st()

    def loads(g):
        sl = g % DEPTH
        a.I(f"s_add_u32 m0, s19, {sl * 2048}")
        if ROT:
            if g % 4 == 0:
                a.I(f"s_add_u32 s44, s45, {g}")
                a.I("s_and_b32 s44, s44, 63")
                a.I("s_lshl_b32 s46, s44, 14")
                a.I("s_add_u32 s46, s46, s41")
                a.I("s_lshl_b32 s44, s44, 10")
            a.I(f"s_add_u32 s42, s46, {hex((g % 4) * 16384)}")
        else:
            a.I(f"s_add_u32 s42, s41, {hex(g * 16384)}")
        vm.issue(f"buffer_load_dwordx4 {v(VD0)}, s[24:27], s42 offen lds", g)
        vm.issue(f"buffer_load_dwordx4 {v(VD1)}, s[24:27], s42 offen offset:1024 lds", g)
        if g % 4 == 0:
            a.I(f"s_add_u32 s43, s40, {'s44' if ROT else hex(g * 1024)}")
        vm.issue(f"buffer_load_dwordx4 {v(CR + 8 * sl, 4)}, {v(L16)}, s[20:23], s43 offen offset:{(g % 4) * 1024}", g)
        vm.issue(f"buffer_load_dwordx4 {v(CR + 8 * sl + 4, 4)}, {v(L16B)}, s[20:23], s43 offen offset:{(g % 4) * 1024}", g)

    def trs(g):
        sl = g % DEPTH
        vm.wait(g)
        for cb in range(2):
            d = AFR + 8 * (g & 1) + 4 * cb
            lg.issue(f"ds_read_b64_tr_b16 {v(d, 2)}, {v(TB + cb)} offset:{sl * 2048}", g)
            lg.issue(f"ds_read_b64_tr_b16 {v(d + 2, 2)}, {v(TB + cb)} offset:{sl * 2048 + 1024}", g)

    for g in range(DEPTH):
        loads(g)
    st()
    trs(0)
    st()
    for g in range(64):
        if g + 1 < 64:
            trs(g + 1)
        lg.wait(g)
        sl = g % DEPTH
        for qt in range(2):
            for cb in range(2):
                acc = v(ACC + 16 * (2 * qt + cb), 16)
                a.I(f"{MF} {acc}, {v(AFR + 8 * (g & 1) + 4 * cb, 4)}, {v(CR + 8 * sl + 4 * qt, 4)}, {'0' if g == 0 else acc}")
        if g + DEPTH < 64:
            loads(g + DEPTH)
        if g == bar_at:
            a.I("s_barrier")
    st()
    a.I(f"v_add_u32 v8, s19, {v(L16)}")
    a.I("s_nop 11")
    for tl in range(4):
        for jq in range(4):
            a.I(f"ds_write_b128 v8, {v(ACC + 16 * tl + 4 * jq, 4)} offset:{(tl * 4 + jq) * 1024}")
    a.I("v_lshrrev_b32 v9, 5, v0")
    a.I("v_and_b32 v10, 31, v0")
    a.I("v_lshlrev_b32 v10, 4, v10")
    a.I("v_lshl_add_u32 v9, v9, 13, v10")
    a.I("s_lshl_b32 s10, s16, 11")
    a.I("v_add_u32 v9, s10, v9")
    a.I("s_lshl_b32 s11, s17, 17")
    a.I("s_lshl_b32 s12, s18, 7")
    a.I("s_add_u32 s11, s11, s12")
    a.I("s_lshl_b32 s12, s16, 5")
    a.I("s_add_u32 s11, s11, s12")
    a.I("v_lshlrev_b32 v10, 11, v0")
    a.I("s_waitcnt lgkmcnt(0)")
    return ACC


def oproj_body2(a, N, st, bar_at=None):
    DEPTH = int(os.environ.get("ODEPTH", "8"))
    ACC, CR = 192 - 16 * DEPTH, 256 - 16 * DEPTH
    L16, L16B = 1, 2
    a.I("s_and_b32 s10, s2, 7")
    a.I("s_lshr_b32 s11, s2, 3")
    a.I("s_and_b32 s12, s11, 3")
    a.I("s_lshl_b32 s10, s10, 2")
    a.I("s_add_u32 s17, s10, s12")
    a.I("s_lshr_b32 s18, s11, 2")
    if os.environ.get("OPX") == "same":
        a.I("s_mov_b32 s17, 0")
        a.I("s_mov_b32 s18, 0")
    if os.environ.get("OPX") == "sameq":
        a.I("s_and_b32 s17, s17, 3")
    if os.environ.get("OPX") == "map2":
        a.I("s_and_b32 s10, s2, 3")
        a.I("s_lshl_b32 s10, s10, 3")
        a.I("s_and_b32 s12, s11, 7")
        a.I("s_add_u32 s17, s10, s12")
        a.I("s_bfe_u32 s10, s2, 0x10002")
        a.I("s_lshl_b32 s10, s10, 2")
        a.I("s_lshr_b32 s12, s11, 3")
        a.I("s_add_u32 s18, s10, s12")
    a.I(f"v_lshlrev_b32 {v(L16)}, 4, v0")
    a.I(f"v_add_u32 {v(L16B)}, 0x40000, {v(L16)}")
    a.I("s_lshl_b32 s19, s16, 14")
    a.I("s_lshl_b32 s40, s17, 19")
    a.I("s_lshl_b32 s10, s16, 16")
    a.I("s_add_u32 s40, s40, s10")
    a.I("s_lshl_b32 s41, s18, 19")
    a.I("s_lshl_b32 s10, s16, 17")
    a.I("s_add_u32 s41, s41, s10")
    a.I("s_waitcnt lgkmcnt(0)")
    srd(a, 20, 4, 5, 16 * MB, add=WS_CTX)
    srd(a, 24, 4, 5, 4 * MB, add=WS_WO)
    srd(a, 28, 8, 9, 4 * MB)
    vm = VM(a)
    st()

    def loads(g):
        sl = g % DEPTH
        L = []
        if g % 2 == 0:
            L.append(lambda: a.I(f"s_add_u32 s42, s41, {hex(g * 2048)}"))
        if g % 4 == 0:
            L.append(lambda: a.I(f"s_add_u32 s43, s40, {hex(g * 1024)}"))
        for cb in range(2):
            L.append(lambda cb=cb: vm.issue(f"buffer_load_dwordx4 {v(CR + 16 * sl + 4 * cb, 4)}, {v(L16)}, s[24:27], s42 offen "
                                            f"offset:{(g % 2) * 2048 + cb * 1024}", g))
        for qt in range(2):
            L.append(lambda qt=qt: vm.issue(f"buffer_load_dwordx4 {v(CR + 16 * sl + 8 + 4 * qt, 4)}, {v(L16 + qt)}, s[20:23], s43 offen "
                                            f"offset:{(g % 4) * 1024}", g))
        return L

    for g in range(DEPTH):
        for f in loads(g):
            f()
    st()
    st()
    for g in range(64):
        vm.wait(g)
        sl = g % DEPTH
        for qt in range(2):
            for cb in range(2):
                acc = v(ACC + 16 * (2 * qt + cb), 16)
                a.I(f"{MF} {acc}, {v(CR + 16 * sl + 4 * cb, 4)}, {v(CR + 16 * sl + 8 + 4 * qt, 4)}, {'0' if g == 0 else acc}")
        if g + DEPTH < 64:
            for f in loads(g + DEPTH):
                f()
        if g == bar_at:
            a.I("s_barrier")
    st()
    a.I(f"v_add_u32 v8, s19, {v(L16)}")
    a.I("v_lshrrev_b32 v9, 5, v0")
    a.I("v_and_b32 v10, 31, v0")
    a.I("v_lshlrev_b32 v10, 4, v10")
    a.I("v_lshl_add_u32 v9, v9, 13, v10")
    a.I("s_lshl_b32 s10, s16, 11")
    a.I("v_add_u32 v9, s10, v9")
    a.I("s_lshl_b32 s11, s17, 17")
    a.I("s_lshl_b32 s12, s18, 7")
    a.I("s_add_u32 s11, s11, s12")
    a.I("s_lshl_b32 s12, s16, 5")
    a.I("s_add_u32 s11, s11, s12")
    a.I("v_lshlrev_b32 v10, 11, v0")
    for tl in range(4):
        for jq in range(4):
            a.I(f"ds_write_b128 v8, {v(ACC + 16 * tl + 4 * jq, 4)} offset:{(tl * 4 + jq) * 1024}")
    a.I("s_waitcnt lgkmcnt(0)")
    return ACC


def oproj_body3(a, N, st, bar_at=None):
    DEPTH = 8
    ACC, FR = 64, 128
    L16, L16B, LR = 1, 2, 3
    a.I("s_and_b32 s10, s2, 7")
    a.I("s_lshr_b32 s11, s2, 3")
    a.I("s_and_b32 s12, s11, 3")
    a.I("s_lshl_b32 s10, s10, 2")
    a.I("s_add_u32 s17, s10, s12")
    a.I("s_lshr_b32 s18, s11, 2")
    a.I(f"v_lshlrev_b32 {v(L16)}, 4, v0")
    a.I(f"v_add_u32 {v(L16B)}, {0x40000 - 1024}, {v(L16)}")
    a.I("s_lshl_b32 s19, s16, 15")
    a.I(f"v_add_u32 {v(LR)}, s19, {v(L16)}")
    a.I("s_lshl_b32 s42, s18, 19")
    a.I("s_lshl_b32 s10, s16, 17")
    a.I("s_add_u32 s42, s42, s10")
    a.I("s_lshl_b32 s43, s17, 19")
    a.I("s_lshl_b32 s10, s16, 16")
    a.I("s_add_u32 s43, s43, s10")
    RB = int(os.environ.get("RB", "0"))
    if RB:
        a.I("s_lshl1_add_u32 s45, s12, s18")
        a.I("s_and_b32 s45, s45, 7")
        a.I(f"s_mul_i32 s45, s45, {RB // 8 * 1024}")
        a.I("s_mov_b32 s40, s43")
        a.I("s_mov_b32 s41, s42")
        a.I("s_add_u32 s43, s40, s45")
        a.I("s_lshl1_add_u32 s42, s45, s41")
    a.I("s_waitcnt lgkmcnt(0)")
    srd(a, 20, 4, 5, 16 * MB + 2048, add=WS_CTX - 2048)
    srd(a, 24, 4, 5, 4 * MB, add=WS_WO)
    srd(a, 28, 8, 9, 4 * MB)
    vm, lg = VM(a), LG(a)
    st()

    def loads(g):
        sl = g % DEPTH
        return [lambda: a.I(f"s_add_u32 m0, s19, {sl * 4096}"),
                lambda: a.I("s_nop 0") if g < DEPTH else None,
                lambda: vm.issue(f"buffer_load_dwordx4 {v(L16)}, s[24:27], s42 offen lds", g),
                lambda: vm.issue(f"buffer_load_dwordx4 {v(L16)}, s[24:27], s42 offen offset:1024 lds", g),
                lambda: vm.issue(f"buffer_load_dwordx4 {v(L16)}, s[20:23], s43 offen offset:2048 lds", g),
                lambda: vm.issue(f"buffer_load_dwordx4 {v(L16B)}, s[20:23], s43 offen offset:3072 lds", g),
                lambda: nxt(g), lambda: None]

    def nxt(g):
        if not RB:
            a.I("s_add_u32 s42, s42, 2048")
            a.I("s_add_u32 s43, s43, 1024")
            return
        a.I("s_add_u32 s45, s45, 1024")
        a.I(f"s_and_b32 s45, s45, {RB * 1024 - 1}")
        if (g + 1) % RB == 0:
            a.I(f"s_add_u32 s40, s40, {RB * 1024}")
            a.I(f"s_add_u32 s41, s41, {RB * 2048}")
        a.I("s_add_u32 s43, s40, s45")
        a.I("s_lshl1_add_u32 s42, s45, s41")

    def reads(g):
        vm.wait(g)
        for q in range(4):
            lg.issue(f"ds_read_b128 {v(FR + 16 * (g & 1) + 4 * q, 4)}, {v(LR)} offset:{(g % DEPTH) * 4096 + q * 1024}", g)

    for g in range(DEPTH):
        for f in loads(g):
            f()
    st()
    reads(0)
    st()
    for g in range(64):
        if g + 1 < 64:
            reads(g + 1)
        lg.wait(g)
        L = loads(g + DEPTH) if g + DEPTH < 64 else []
        fr = FR + 16 * (g & 1)
        for qt in range(2):
            for cb in range(2):
                acc = v(ACC + 16 * (2 * qt + cb), 16)
                if L:
                    L.pop(0)()
                a.I(f"{MF} {acc}, {v(fr + 4 * cb, 4)}, {v(fr + 8 + 4 * qt, 4)}, {'0' if g == 0 else acc}")
                if L:
                    L.pop(0)()
        if g == bar_at:
            a.I("s_barrier")
    st()
    a.I("v_lshrrev_b32 v9, 5, v0")
    a.I("v_and_b32 v10, 31, v0")
    a.I("v_lshlrev_b32 v10, 4, v10")
    a.I("v_lshl_add_u32 v9, v9, 13, v10")
    a.I("s_lshl_b32 s10, s16, 11")
    a.I("v_add_u32 v9, s10, v9")
    a.I("s_lshl_b32 s11, s17, 17")
    a.I("s_lshl_b32 s12, s18, 7")
    a.I("s_add_u32 s11, s11, s12")
    a.I("s_lshl_b32 s12, s16, 5")
    a.I("s_add_u32 s11, s11, s12")
    a.I("v_lshlrev_b32 v10, 11, v0")
    for tl in range(4):
        for jq in range(4):
            a.I(f"ds_write_b128 {v(LR)}, {v(ACC + 16 * tl + 4 * jq, 4)} offset:{(tl * 4 + jq) * 1024}")
    a.I("s_waitcnt lgkmcnt(0)")
    return ACC


def oproj_body4(a, N, st, bar_at=None):
    DEPTH = 4
    ACC, FR = 32, 96
    L16, L16B, LR = 1, 2, 3
    a.I("s_and_b32 s10, s2, 7")
    a.I("s_lshr_b32 s11, s2, 3")
    a.I("s_and_b32 s12, s11, 3")
    a.I("s_lshl_b32 s10, s10, 2")
    a.I("s_add_u32 s17, s10, s12")
    a.I("s_lshr_b32 s18, s11, 2")
    a.I(f"v_lshlrev_b32 {v(L16)}, 4, v0")
    a.I(f"v_add_u32 {v(L16B)}, {0x40000 - 1024}, {v(L16)}")
    a.I("s_lshl_b32 s19, s16, 14")
    a.I(f"v_add_u32 {v(LR)}, s19, {v(L16)}")
    a.I("s_lshl_b32 s42, s18, 19")
    a.I("s_lshl_b32 s10, s16, 16")
    a.I("s_add_u32 s42, s42, s10")
    a.I("s_lshl_b32 s43, s17, 19")
    a.I("s_lshl_b32 s10, s16, 15")
    a.I("s_add_u32 s43, s43, s10")
    a.I("s_waitcnt lgkmcnt(0)")
    srd(a, 20, 4, 5, 16 * MB + 2048, add=WS_CTX - 2048)
    srd(a, 24, 4, 5, 4 * MB, add=WS_WO)
    vm, lg = VM(a), LG(a)
    st()

    def loads(g):
        sl = g % DEPTH
        return [lambda: a.I(f"s_add_u32 m0, s19, {sl * 4096}"),
                lambda: a.I("s_nop 0") if g < DEPTH else None,
                lambda: vm.issue(f"buffer_load_dwordx4 {v(L16)}, s[24:27], s42 offen lds", g),
                lambda: vm.issue(f"buffer_load_dwordx4 {v(L16)}, s[24:27], s42 offen offset:1024 lds", g),
                lambda: vm.issue(f"buffer_load_dwordx4 {v(L16)}, s[20:23], s43 offen offset:2048 lds", g),
                lambda: vm.issue(f"buffer_load_dwordx4 {v(L16B)}, s[20:23], s43 offen offset:3072 lds", g),
                lambda: a.I("s_add_u32 s42, s42, 2048"),
                lambda: a.I("s_add_u32 s43, s43, 1024")]

    def reads(g):
        vm.wait(g)
        for q in range(4):
            lg.issue(f"ds_read_b128 {v(FR + 16 * (g & 1) + 4 * q, 4)}, {v(LR)} offset:{(g % DEPTH) * 4096 + q * 1024}", g)

    for g in range(DEPTH):
        for f in loads(g):
            f()
    srd(a, 28, 8, 9, 4 * MB)
    a.I("v_lshrrev_b32 v9, 5, v0")
    a.I("v_and_b32 v10, 31, v0")
    a.I("v_lshlrev_b32 v10, 4, v10")
    a.I("v_lshl_add_u32 v9, v9, 13, v10")
    a.I("s_lshl_b32 s10, s16, 10")
    a.I("v_add_u32 v9, s10, v9")
    a.I("v_add_u32 v11, 0x10000, v9")
    a.I("s_lshl_b32 s11, s17, 17")
    a.I("s_lshl_b32 s12, s18, 7")
    a.I("s_add_u32 s11, s11, s12")
    a.I("s_lshl_b32 s12, s16, 4")
    a.I("s_add_u32 s11, s11, s12")
    a.I("v_lshlrev_b32 v10, 11, v0")
    st()
    reads(0)
    st()
    NG = 32
    for g in range(NG):
        if g + 1 < NG:
            reads(g + 1)
        lg.wait(g)
        L = loads(g + DEPTH) if g + DEPTH < NG else []
        fr = FR + 16 * (g & 1)
        for qt in range(2):
            for cb in range(2):
                acc = v(ACC + 16 * (2 * qt + cb), 16)
                if L:
                    L.pop(0)()
                a.I(f"{MF} {acc}, {v(fr + 4 * cb, 4)}, {v(fr + 8 + 4 * qt, 4)}, {'0' if g == 0 else acc}")
                if L:
                    L.pop(0)()
        if g == bar_at:
            a.I("s_barrier")
    st()
    a.I("s_nop 8")
    for tl in range(4):
        for jq in range(4):
            a.I(f"ds_write_b128 {v(LR)}, {v(ACC + 16 * tl + 4 * jq, 4)} offset:{(tl * 4 + jq) * 1024}")
    a.I("s_waitcnt lgkmcnt(0)")
    a.I("s_barrier")
    for pw in range(8):
        for hl in range(2):
            a.I(f"ds_read_b128 {v(ACC + 8 * pw + 4 * hl, 4)}, {v(9 if pw < 4 else 11)} offset:{(pw % 4) * 16384 + hl * 512}")
        if pw == 6:
            a.I("s_waitcnt lgkmcnt(6)")
    for j in range(8):
        a.I(f"v_add_f32 {v(ACC + j)}, {v(ACC + j)}, {v(ACC + 8 + j)}")
        a.I(f"v_add_f32 {v(ACC + 16 + j)}, {v(ACC + 16 + j)}, {v(ACC + 24 + j)}")
    a.I("s_waitcnt lgkmcnt(0)")
    for j in range(8):
        a.I(f"v_add_f32 {v(ACC + 32 + j)}, {v(ACC + 32 + j)}, {v(ACC + 40 + j)}")
        a.I(f"v_add_f32 {v(ACC + 48 + j)}, {v(ACC + 48 + j)}, {v(ACC + 56 + j)}")
    for j in range(8):
        a.I(f"v_add_f32 {v(ACC + j)}, {v(ACC + j)}, {v(ACC + 16 + j)}")
        a.I(f"v_add_f32 {v(ACC + 32 + j)}, {v(ACC + 32 + j)}, {v(ACC + 48 + j)}")
    for j in range(8):
        a.I(f"v_add_f32 {v(ACC + j)}, {v(ACC + j)}, {v(ACC + 32 + j)}")
    for i in range(4):
        a.I(f"v_cvt_pk_bf16_f32 {v(12 + i)}, {v(ACC + 2 * i)}, {v(ACC + 2 * i + 1)}")
    a.I("buffer_store_dwordx4 v[12:15], v10, s[28:31], s11 offen")


def oproj_finish(a, ACC, PW=16384):
    for pw in range(4):
        for i in range(4):
            jq, hl = divmod(i, 2)
            if pw == 2 and i == 0 and PW > 16384:
                a.I("v_add_u32 v9, 0x10000, v9")
            a.I(f"ds_read_b128 {v(ACC + 16 * pw + 4 * i, 4)}, v9 offset:{(pw * PW) % 65536 + jq * 1024 + hl * 512}")
        if pw == 1:
            a.I("s_waitcnt lgkmcnt(0)")
            for j in range(16):
                a.I(f"v_add_f32 {v(ACC + j)}, {v(ACC + j)}, {v(ACC + 16 + j)}")
    a.I("s_waitcnt lgkmcnt(0)")
    for j in range(16):
        a.I(f"v_add_f32 {v(ACC + 32 + j)}, {v(ACC + 32 + j)}, {v(ACC + 48 + j)}")
    for j in range(16):
        a.I(f"v_add_f32 {v(ACC + j)}, {v(ACC + j)}, {v(ACC + 32 + j)}")
    for i in range(8):
        a.I(f"v_cvt_pk_bf16_f32 {v(12 + i)}, {v(ACC + 2 * i)}, {v(ACC + 2 * i + 1)}")
    a.I("buffer_store_dwordx4 v[12:15], v10, s[28:31], s11 offen")
    a.I("buffer_store_dwordx4 v[16:19], v10, s[28:31], s11 offen offset:16")


def gen_oproj():
    a = Asm()
    N = "oproj_kernel"
    kstart(a, N, 256)
    a.I("s_load_dwordx2 s[4:5], s[0:1], 88")
    a.I("s_load_dwordx2 s[6:7], s[0:1], 40")
    a.I("s_load_dwordx2 s[8:9], s[0:1], 72")
    a.I("v_lshrrev_b32 v1, 6, v0")
    a.I("v_and_b32 v0, 63, v0")
    a.I("s_nop 0")
    a.I("v_readfirstlane_b32 s16, v1")
    a.I("s_nop 0")
    st = Stamper(a, "oproj")
    ACC = oproj_body(a, N, st)
    a.I("s_barrier")
    oproj_finish(a, ACC)
    st.dump(16, 4, tmpv=8)
    kend(a, N)
    return a, N, (256, 256, 65536)


def PERMC(j):
    return 8 * (j >> 2) + (j & 3)


def gen_mat(a, dst, nf, base, consts, tmp):
    n = len(consts)
    for i in range(0, n, 4):
        for q in range(4):
            a.I(f"v_fmamk_f32 {v(tmp + q)}, {v(nf)}, {f32(float(consts[i + q]))}, {v(base)}")
        for q in range(4):
            a.I(f"v_cos_f32 {v(tmp + q)}, {v(tmp + q)}")
        a.I("s_nop 0")
        for q in range(2):
            a.I(f"v_cvt_pk_bf16_f32 {v(dst + i // 2 + q)}, {v(tmp + 2 * q)}, {v(tmp + 2 * q + 1)}")


def twiddle(a, Dr, Di, regs, nf, base, consts, sign, tmp):
    for x, c in enumerate(consts):
        A, C, S_, U = tmp, tmp + 1, tmp + 2, tmp + 3
        a.I(f"v_fmamk_f32 {v(A)}, {v(nf)}, {f32(float(c))}, {v(base)}")
        a.I(f"v_cos_f32 {v(C)}, {v(A)}")
        a.I(f"v_sin_f32 {v(S_)}, {v(A)}")
        a.I("s_nop 0")
        for j in regs[x]:
            ng = "-" if sign > 0 else ""
            ps = "" if sign > 0 else "-"
            a.I(f"v_mul_f32 {v(U)}, {v(Dr + j)}, {v(S_)}")
            a.I(f"v_mul_f32 {v(Dr + j)}, {v(Dr + j)}, {v(C)}")
            a.I(f"v_fma_f32 {v(Dr + j)}, {ng}{v(Di + j)}, {v(S_)}, {v(Dr + j)}")
            a.I(f"v_fma_f32 {v(Di + j)}, {v(Di + j)}, {v(C)}, {ps}{v(U)}")


def trig(a, j, C, S_, nf, base, c, tmp, scale=None):
    L = [f"v_fmamk_f32 {v(tmp)}, {v(nf)}, {f32(float(c))}, {v(base)}",
         f"v_cos_f32 {v(C)}, {v(tmp)}", f"v_sin_f32 {v(S_)}, {v(tmp)}"]
    return L


def cmul(a, Dr, Di, C, S_, sign, U):
    ng = "-" if sign > 0 else ""
    ps = "" if sign > 0 else "-"
    a.I(f"v_mul_f32 {v(U)}, {v(Dr)}, {v(S_)}")
    a.I(f"v_mul_f32 {v(Dr)}, {v(Dr)}, {v(C)}")
    a.I(f"v_fma_f32 {v(Dr)}, {ng}{v(Di)}, {v(S_)}, {v(Dr)}")
    a.I(f"v_fma_f32 {v(Di)}, {v(Di)}, {v(C)}, {ps}{v(U)}")


def pack(a, dst, src, n):
    for i in range(n):
        a.I(f"v_cvt_pk_bf16_f32 {v(dst + i)}, {v(src + 2 * i)}, {v(src + 2 * i + 1)}")


def b_decode(a):
    a.I("s_and_b32 s20, s2, 7")
    a.I("s_lshl_b32 s20, s20, 3")
    a.I("s_bfe_u32 s22, s2, 0x30003")
    a.I("s_or_b32 s20, s20, s22")
    a.I("s_lshr_b32 s21, s2, 6")


def gen_b1():
    a = Asm()
    N = "b1_kernel"
    kstart(a, N, 256)
    a.I("s_load_dwordx2 s[4:5], s[0:1], 88")
    a.I("s_load_dwordx4 s[8:11], s[0:1], 48")
    a.I("s_load_dwordx2 s[12:13], s[0:1], 64")
    a.I("v_lshrrev_b32 v1, 6, v0")
    a.I("v_and_b32 v2, 255, v0")
    a.I("v_and_b32 v0, 63, v0")
    a.I("v_readfirstlane_b32 s16, v1")
    b_decode(a)
    a.I("s_lshr_b32 s23, s21, 1")
    a.I("s_lshl_b32 s23, s23, 11")
    a.I("s_lshr_b32 s24, s20, 5")
    a.I("s_lshl_b32 s24, s24, 10")
    a.I("s_add_u32 s23, s23, s24")
    a.I("s_and_b32 s24, s20, 31")
    a.I("s_lshl_b32 s24, s24, 4")
    a.I("s_add_u32 s23, s23, s24")
    a.I("s_and_b32 s24, s21, 1")
    a.I("s_lshl_b32 s24, s24, 9")
    a.I("s_add_u32 s23, s23, s24")
    a.I("s_add_u32 s24, s23, 4096")
    a.I("v_lshlrev_b32 v3, 13, v2")
    a.I("s_cmp_ge_u32 s16, 4")
    a.I("s_waitcnt lgkmcnt(0)")
    a.I(f"s_cbranch_scc1 {N}_filt")
    srd(a, 28, 8, 9, 2 * MB)
    srd(a, 32, 4, 5, 257 * 8192, add=WS_Y)
    a.I("s_lshr_b32 s25, s21, 1")
    a.I("s_lshl_b32 s25, s25, 4")
    a.I("s_and_b32 s26, s21, 1")
    a.I("s_lshl_b32 s26, s26, 2")
    a.I("s_add_u32 s25, s25, s26")
    a.I("s_lshr_b32 s26, s16, 1")
    a.I("s_lshl_b32 s26, s26, 3")
    a.I("s_add_u32 s25, s25, s26")
    a.I("s_and_b32 s26, s16, 1")
    a.I("s_lshl_b32 s26, s26, 1")
    a.I("s_add_u32 s25, s25, s26")
    a.I("s_lshl_b32 s25, s25, 6")
    a.I("s_add_u32 s25, s25, s20")
    a.I("s_lshl_b32 s25, s25, 10")
    a.I(f"s_add_u32 s26, s25, {65536 - 1024}")
    a.I("s_lshl_b32 s27, s16, 11")
    a.I("s_mov_b32 m0, s27")
    a.I("v_lshlrev_b32 v4, 4, v0")
    a.I("buffer_load_dwordx4 v4, s[28:31], s25 offen lds")
    a.I("buffer_load_dwordx4 v4, s[28:31], s26 offen offset:1024 lds")
    HL, NF, BS, TM = 5, 6, 7, 8
    C32, NS32, AR, AI, XF, D1R, D1I, TR, TI, D2 = 16, 24, 32, 36, 40, 48, 64, 80, 88, 96
    a.I(f"v_lshrrev_b32 {v(HL)}, 5, v0")
    a.I(f"v_cvt_f32_u32 {v(HL)}, {v(HL)}")
    a.I("v_and_b32 v12, 31, v0")
    a.I("v_cvt_f32_u32 v12, v12")
    a.I(f"v_mul_f32 {v(NF)}, {f32(1 / 32)}, v12")
    a.I(f"v_mul_f32 {v(BS)}, {v(NF)}, {v(HL)}")
    a.I(f"v_mul_f32 {v(BS)}, {f32(8.0)}, {v(BS)}")
    nat = [16 * t + j for t in range(2) for j in range(8)]
    gen_mat(a, C32, NF, BS, nat, TM)
    a.I(f"v_add_f32 {v(BS)}, {f32(0.25)}, {v(BS)}")
    gen_mat(a, NS32, NF, BS, nat, TM)
    a.I("v_and_b32 v13, 15, v0")
    a.I("v_cvt_f32_u32 v13, v13")
    a.I(f"v_mul_f32 {v(NF)}, {f32(1 / 16)}, v13")
    a.I("v_bfe_u32 v13, v0, 4, 1")
    a.I("v_cvt_f32_u32 v13, v13")
    a.I(f"v_mul_f32 {v(BS)}, {v(NF)}, {v(HL)}")
    a.I(f"v_mul_f32 {v(BS)}, 4.0, {v(BS)}")
    a.I(f"v_fmamk_f32 {v(BS)}, v13, {f32(0.25)}, {v(BS)}")
    pc = [PERMC(j) for j in range(8)]
    gen_mat(a, AR, NF, BS, pc, TM)
    a.I(f"v_add_f32 {v(BS)}, {f32(-0.25)}, {v(BS)}")
    gen_mat(a, AI, NF, BS, pc, TM)
    a.I("v_bfe_u32 v13, v0, 4, 1")
    a.I("v_lshlrev_b32 v13, 10, v13")
    a.I("v_lshrrev_b32 v14, 5, v0")
    a.I("v_lshl_add_u32 v13, v14, 8, v13")
    a.I("v_and_b32 v15, 15, v0")
    a.I("v_lshl_add_u32 v13, v15, 3, v13")
    a.I("v_add_u32 v13, s27, v13")
    a.I("s_waitcnt vmcnt(0)")
    for t in range(2):
        for h in range(2):
            a.I(f"ds_read_b64_tr_b16 {v(XF + 4 * t + 2 * h, 2)}, v13 offset:{t * 512 + h * 128}")
    a.I(f"v_mul_f32 {v(NF)}, {f32(1 / 512)}, v12")
    a.I(f"v_mul_f32 {v(BS)}, {v(NF)}, {v(HL)}")
    a.I(f"v_mul_f32 {v(BS)}, 4.0, {v(BS)}")
    a.I("s_waitcnt lgkmcnt(0)")
    for t in range(2):
        a.I(f"{MF} {v(D1R, 16)}, {v(XF + 4 * t, 4)}, {v(C32 + 4 * t, 4)}, {'0' if t == 0 else v(D1R, 16)}")
    for t in range(2):
        a.I(f"{MF} {v(D1I, 16)}, {v(XF + 4 * t, 4)}, {v(NS32 + 4 * t, 4)}, {'0' if t == 0 else v(D1I, 16)}")
    a.I("v_and_b32 v15, 31, v0")
    a.I("v_lshlrev_b32 v15, 4, v15")
    a.I("v_lshl_add_u32 v15, v14, 11, v15")
    a.I("s_lshl_b32 s25, s16, 2")
    a.I("s_add_u32 s25, s25, 8192")
    a.I("v_add_u32 v15, s25, v15")
    a.I("s_nop 7")
    twiddle(a, D1R, D1I, [[j, j + 8] for j in range(8)], NF, BS, pc, -1, TM)
    pack(a, TR, D1R, 8)
    pack(a, TI, D1I, 8)
    a.I("s_nop 1")
    for r in range(2):
        a.I(f"{MF} {v(D2 + 16 * r, 16)}, {v(AR, 4)}, {v(TR + 4 * r, 4)}, 0")
        a.I(f"{MF} {v(D2 + 16 * r, 16)}, {v(AI, 4)}, {v(TI + 4 * r, 4)}, {v(D2 + 16 * r, 16)}")
    a.I("s_nop 11")
    for c in range(2):
        for j in range(5):
            a.I(f"v_cvt_pk_bf16_f32 {v(TR + 5 * c + j)}, {v(D2 + 8 * c + j)}, {v(D2 + 16 + 8 * c + j)}")
    for c in range(2):
        for j in range(4):
            a.I(f"ds_write_b32 v15, {v(TR + 5 * c + j)} offset:{(c * 8 + j) * 512}")
    a.I("v_cmp_eq_u32 vcc, 0, v0")
    a.I("s_and_saveexec_b64 s[36:37], vcc")
    for c in range(2):
        a.I(f"ds_write_b32 v15, {v(TR + 5 * c + 4)} offset:{8192 + 16 * c}")
    a.I("s_mov_b64 exec, s[36:37]")
    a.I("v_lshlrev_b32 v14, 4, v2")
    a.I("s_waitcnt lgkmcnt(0)")
    a.I("s_barrier")
    a.I("ds_read_b128 v[16:19], v14 offset:8192")
    a.I(f"ds_read_b128 v[20:23], v14 offset:{8192 + 4096}")
    a.I(f"ds_read_b128 v[24:27], v14 offset:{8192 + 8192}")
    a.I("v_lshlrev_b32 v13, 12, v2")
    a.I(f"v_add_u32 v13, {256 * 8192}, v13")
    a.I("s_waitcnt lgkmcnt(0)")
    a.I("buffer_store_dwordx4 v[16:19], v3, s[32:35], s23 offen")
    a.I("buffer_store_dwordx4 v[20:23], v3, s[32:35], s24 offen")
    a.I("v_cmp_gt_u32 vcc, 2, v2")
    a.I("s_and_saveexec_b64 s[36:37], vcc")
    a.I(f"s_cbranch_execz {N}_end")
    a.I("buffer_store_dwordx4 v[24:27], v13, s[32:35], s23 offen")
    a.I("s_endpgm")
    a.label(f"{N}_filt")
    srd(a, 28, 10, 11, 2048 * 514)
    srd(a, 32, 12, 13, 2048 * 514)
    srd(a, 36, 4, 5, 257 * 8192, add=WS_WF)
    a.I("s_lshr_b32 s25, s21, 1")
    a.I("s_lshl_b32 s25, s25, 5")
    a.I("s_lshr_b32 s26, s20, 5")
    a.I("s_lshl_b32 s26, s26, 4")
    a.I("s_add_u32 s25, s25, s26")
    a.I("s_and_b32 s26, s21, 1")
    a.I("s_lshl_b32 s26, s26, 2")
    a.I("s_add_u32 s25, s25, s26")
    a.I("s_lshl_b32 s25, s25, 5")
    a.I("s_and_b32 s26, s20, 31")
    a.I("s_add_u32 s25, s25, s26")
    a.I("s_mul_i32 s25, s25, 514")
    for j in range(8):
        a.I(f"s_add_u32 s{40 + j}, s25, {PERMC(j) * 32 * 514}")
    a.I("v_lshlrev_b32 v4, 1, v2")
    a.I("v_mov_b32 v5, 512")
    for q, va in enumerate((4, 5)):
        for c in range(2):
            for j in range(8):
                a.I(f"buffer_load_ushort {v(32 + 16 * q + 8 * c + j)}, {v(va)}, s[{28 + 4 * c}:{31 + 4 * c}], s{40 + j} offen")
    a.I(f"v_mov_b32 v6, {256 * 8192}")
    a.I("s_waitcnt vmcnt(16)")
    for i in range(8):
        a.I(f"v_lshl_or_b32 {v(16 + i)}, {v(33 + 2 * i)}, 16, {v(32 + 2 * i)}")
    a.I("buffer_store_dwordx4 v[16:19], v3, s[36:39], s23 offen")
    a.I("buffer_store_dwordx4 v[20:23], v3, s[36:39], s24 offen")
    a.I("v_cmp_eq_u32 vcc, 0, v2")
    a.I("s_and_saveexec_b64 s[48:49], vcc")
    a.I(f"s_cbranch_execz {N}_end")
    a.I("s_waitcnt vmcnt(2)")
    for i in range(8):
        a.I(f"v_lshl_or_b32 {v(24 + i)}, {v(49 + 2 * i)}, 16, {v(48 + 2 * i)}")
    a.I("buffer_store_dwordx4 v[24:27], v6, s[36:39], s23 offen")
    a.I("buffer_store_dwordx4 v[28:31], v6, s[36:39], s24 offen")
    kend(a, N)
    return a, N, (256, 512, 20480)


def b2_loads(a, vm, col_s, own_s, L16, YR, WR, S0, SR):
    sY, sW = S0, S0 + 2
    a.I(f"s_lshl_b32 {s(sY)}, {s(col_s)}, 13")
    a.I(f"s_lshl_b32 {s(own_s)}, {s(own_s)}, 10")
    a.I(f"s_add_u32 {s(sY)}, {s(sY)}, {s(own_s)}")
    a.I(f"s_add_u32 {s(sY + 1)}, {s(sY)}, 4096")
    a.I(f"s_add_u32 {s(sW)}, {s(sY)}, {s(own_s)}")
    a.I(f"s_add_u32 {s(sW + 1)}, {s(sW)}, 4096")
    srd(a, SR, 4, 5, 257 * 8192, add=WS_Y)
    for c in range(2):
        for t in range(2):
            vm.issue(f"buffer_load_dwordx4 {v(YR + 8 * c + 4 * t, 4)}, {v(L16)}, {s(SR, 4)}, {s(sY + c)} offen offset:{t * 2048}", "Y")
    srd(a, SR + 4, 4, 5, 257 * 8192, add=WS_WF)
    for c in range(2):
        for h in range(2):
            vm.issue(f"buffer_load_dwordx4 {v(WR + 8 * c + 4 * h, 4)}, {v(L16)}, {s(SR + 4, 4)}, {s(sW + c)} offen offset:{h * 1024}", "WF")


def b2_body(a, own, col_s, lds_s, svc, vm, R0=0, S0=20, SR=28, slice_len=110, rmap=None, after_loads=None, st=lambda: None, preloaded=False, compact_ex=False, newer=8, zpol=''):
    L16, HL, NF, BS, LF, XA, XB, TM, LB = [R0 + x for x in (1, 2, 3, 4, 5, 6, 7, 8, 12)]
    YR, YI, WR, WI = [R0 + x for x in (16, 24, 32, 40)]
    C32, S32, NS32, C64, S64 = [R0 + x for x in (48, 56, 64, 72, 88)]
    DR, DI = R0 + 104, R0 + 120
    FR, FI, FN = R0 + 136, R0 + 152, R0 + 168
    XT = 240
    if rmap:
        L16, HL, NF, BS, LF, XA, XB, TM, LB, YR, YI, WR, WI, C32, S32, NS32, C64, S64, DR, DI, FR, FI, FN = rmap
    sY, sW, sSC, sT = S0, S0 + 2, S0 + 4, S0 + 5
    I0 = a.I
    cnt = [0]

    def I(text):
        r = I0(text)
        cnt[0] += 1
        if cnt[0] >= slice_len and (text.startswith("v_cvt_pk") or text.startswith("v_fma_f32") or text.startswith("v_sin")):
            dosvc()
        return r

    def dosvc():
        a.I = I0
        svc()
        a.I = I
        cnt[0] = 0

    a.I(f"v_lshlrev_b32 {v(L16)}, 4, v0")
    if preloaded:
        vm.q += ["Y"] * 4 + ["WF"] * 4 + ["Q"] * newer
    else:
        a.I(f"s_mov_b32 {s(sT)}, {own}")
        b2_loads(a, vm, col_s, sT, L16, YR, WR, S0, SR)
    srd(a, SR + 8, 4, 5, 257 * 8192, add=WS_Z)
    a.I = I
    a.I(f"s_mov_b32 {s(sSC)}, {f32(2.0 ** -19)}")
    a.I(f"s_and_b32 {s(sT)}, {s(col_s)}, 255")
    a.I(f"s_cmp_eq_u32 {s(sT)}, 0")
    a.I(f"s_cselect_b32 {s(sSC)}, {f32(2.0 ** -20)}, {s(sSC)}")
    a.I(f"v_lshrrev_b32 {v(HL)}, 5, v0")
    a.I(f"v_cvt_f32_u32 {v(HL)}, {v(HL)}")
    a.I(f"v_mul_f32 {v(HL)}, 4.0, {v(HL)}")
    a.I(f"v_and_b32 {v(LF)}, 31, v0")
    a.I(f"v_cvt_f32_u32 {v(LF)}, {v(LF)}")
    a.I(f"v_add_f32 {v(LB)}, {f32(32.0 * own)}, {v(LF)}")
    pc = lambda n: [16 * t + PERMC(j) for t in range(n) for j in range(8)]
    a.I(f"v_mul_f32 {v(NF)}, {f32(1 / 32)}, {v(LF)}")
    a.I(f"v_mul_f32 {v(BS)}, {v(NF)}, {v(HL)}")
    gen_mat(a, C32, NF, BS, pc(2), TM)
    a.I(f"v_add_f32 {v(BS)}, {f32(-0.25)}, {v(BS)}")
    gen_mat(a, S32, NF, BS, pc(2), TM)
    for i in range(8):
        a.I(f"v_xor_b32 {v(NS32 + i)}, 0x80008000, {v(S32 + i)}")
    a.I(f"v_mul_f32 {v(NF)}, {f32(1 / 64)}, {v(LB)}")
    a.I(f"v_mul_f32 {v(BS)}, {v(NF)}, {v(HL)}")
    gen_mat(a, C64, NF, BS, pc(4), TM)
    a.I(f"v_add_f32 {v(BS)}, {f32(-0.25)}, {v(BS)}")
    gen_mat(a, S64, NF, BS, pc(4), TM)
    a.I(f"v_add_u32 {v(XA)}, {s(lds_s)}, {v(L16)}")
    a.I(f"v_add_u32 {v(XB)}, {(1 - own) * 4096}, {v(XA)}")
    a.I(f"v_add_u32 {v(XA)}, {own * 4096}, {v(XA)}")

    def mm(D, terms, fill=None, per=3):
        first = True
        for A_, B_ in terms:
            a.I(f"{MF} {v(D, 16)}, {v(A_, 4)}, {v(B_, 4)}, {'0' if first else v(D, 16)}")
            first = False
            if fill:
                for x in fill[:per]:
                    a.I(x)
                del fill[:per]

    def exchange(neg_of, ldsoff):
        nonlocal XA, XB
        if compact_ex and ldsoff:
            XA, XB, ldsoff = XB, XA, 0
        for c, F in enumerate((FR, FI)):
            for h in range(2):
                a.I(f"ds_write_b128 {v(XA)}, {v(F + 8 * own + 4 * h, 4)} offset:{ldsoff + (2 * c + h) * 1024}")
        a.I("s_waitcnt lgkmcnt(0)")
        dosvc()
        for c, F in enumerate((FR, FI)):
            for h in range(2):
                a.I(f"ds_read_b128 {v(F + 8 * (1 - own) + 4 * h, 4)}, {v(XB)} offset:{ldsoff + (2 * c + h) * 1024}")
        for i in range(8):
            a.I(f"v_xor_b32 {v(FN + 8 * own + i)}, 0x80008000, {v(neg_of + 8 * own + i)}")
        a.I("s_waitcnt lgkmcnt(0)")
        for i in range(8):
            a.I(f"v_xor_b32 {v(FN + 8 * (1 - own) + i)}, 0x80008000, {v(neg_of + 8 * (1 - own) + i)}")
        a.I("s_nop 1")

    jc = [(j & 3) + 8 * (j >> 2) for j in range(16)]
    o = 8 * (1 - own)
    T1C = [FN + j for j in range(16)]
    T1S = [FR + o + j for j in range(8)] + [FI + o + j for j in range(8)]
    a.I(f"v_mul_f32 {v(NF)}, {f32(1 / 2048)}, {v(LF)}")
    a.I(f"v_add_f32 {v(BS)}, {f32(32.0 * own)}, {v(HL)}")
    a.I(f"v_mul_f32 {v(BS)}, {v(NF)}, {v(BS)}")
    for j in range(16):
        a.many(trig(a, j, T1C[j], T1S[j], NF, BS, jc[j], TM + (j & 1)))
    a.I(f"v_mul_f32 {v(NF)}, {f32(1 / 2048)}, {v(LB)}")
    a.I(f"v_mul_f32 {v(BS)}, {v(NF)}, {v(HL)}")
    st()
    vm.wait("Y")
    st()
    mm(DR, [(YR, C32), (YR + 4, C32 + 4), (YI, S32), (YI + 4, S32 + 4)])
    mm(DI, [(YI, C32), (YI + 4, C32 + 4), (YR, NS32), (YR + 4, NS32 + 4)])
    a.I("s_nop 11")
    for j in range(16):
        cmul(a, DR + j, DI + j, T1C[j], T1S[j], -1, TM)
    pack(a, FR + 8 * own, DR, 8)
    pack(a, FI + 8 * own, DI, 8)
    exchange(FR, 0)
    st()
    if after_loads:
        after_loads()
    T2C = [YR + j for j in range(8)] + [YI + j for j in range(8)]
    fill = []
    for j in range(16):
        fill += trig(a, j, T2C[j], XT + j, NF, BS, jc[j], TM + (j & 1))
    mm(DR, [(C64 + 4 * t, FR + 4 * t) for t in range(4)] + [(S64 + 4 * t, FI + 4 * t) for t in range(4)], fill)
    mm(DI, [(C64 + 4 * t, FI + 4 * t) for t in range(4)] + [(S64 + 4 * t, FN + 4 * t) for t in range(4)], fill)
    assert not fill
    vm.wait("WF")
    for j in range(12):
        a.I(f"v_mul_f32 {v(T2C[j])}, {s(sSC)}, {v(T2C[j])}")
    for j in range(16):
        wr, wi, u = TM, TM + 1, TM + 2
        if j & 1:
            a.I(f"v_and_b32 {v(wr)}, 0xffff0000, {v(WR + j // 2)}")
            a.I(f"v_and_b32 {v(wi)}, 0xffff0000, {v(WI + j // 2)}")
        else:
            a.I(f"v_lshlrev_b32 {v(wr)}, 16, {v(WR + j // 2)}")
            a.I(f"v_lshlrev_b32 {v(wi)}, 16, {v(WI + j // 2)}")
        cmul(a, DR + j, DI + j, wr, wi, +1, u)
    pack(a, FR + 8 * own, DR, 8)
    pack(a, FI + 8 * own, DI, 8)
    exchange(FI, 8192)
    st()
    fill = [f"v_mul_f32 {v(T2C[j])}, {s(sSC)}, {v(T2C[j])}" for j in range(12, 16)]
    fill += [f"v_mul_f32 {v(XT + j)}, {s(sSC)}, {v(XT + j)}" for j in range(16)]
    mm(DR, [(FR + 4 * t, C64 + 4 * t) for t in range(4)] + [(FN + 4 * t, S64 + 4 * t) for t in range(4)], fill)
    mm(DI, [(FI + 4 * t, C64 + 4 * t) for t in range(4)] + [(FR + 4 * t, S64 + 4 * t) for t in range(4)], fill)
    a.I("s_nop 11")
    for j in range(16):
        cmul(a, DR + j, DI + j, T2C[j], XT + j, +1, TM)
    pack(a, FR, DR, 8)
    pack(a, FI, DI, 8)
    a.I("s_nop 1")
    mm(DR, [(C32, FR), (C32 + 4, FR + 4), (NS32, FI), (NS32 + 4, FI + 4)])
    mm(DI, [(C32, FI), (C32 + 4, FI + 4), (S32, FR), (S32 + 4, FR + 4)])
    a.I = I0
    a.I("s_nop 7")
    pack(a, YR, DR, 8)
    a.I("s_nop 3")
    pack(a, YI, DI, 8)
    for c in range(2):
        for h in range(2):
            vm.issue(f"buffer_store_dwordx4 {v(YR + 8 * c + 4 * h, 4)}, {v(L16)}, {s(SR + 8, 4)}, {s(sW + c)} offen offset:{h * 1024}{zpol}", "Z")


def gen_b2():
    a = Asm()
    N = "b2_kernel"
    kstart(a, N, 257)
    a.I("s_load_dwordx2 s[4:5], s[0:1], 88")
    a.I("v_lshrrev_b32 v1, 6, v0")
    a.I("v_and_b32 v0, 63, v0")
    a.I("s_mov_b32 s17, 0")
    a.I("v_readfirstlane_b32 s16, v1")
    a.I("s_waitcnt lgkmcnt(0)")
    a.I("s_cmp_eq_u32 s16, 1")
    a.I(f"s_cbranch_scc1 {N}_w1")
    b2_body(a, 0, 2, 17, lambda: a.I("s_barrier"), VM(a), slice_len=10 ** 9)
    a.I("s_endpgm")
    a.label(f"{N}_w1")
    b2_body(a, 1, 2, 17, lambda: a.I("s_barrier"), VM(a), slice_len=10 ** 9)
    kend(a, N)
    return a, N, (257, 128, 16384)


def b3_loads(a, outp=6, pol='', before=None):
    b_decode(a)
    a.I("s_lshr_b32 s23, s20, 5")
    a.I("s_lshl_b32 s23, s23, 11")
    a.I("s_lshl_b32 s24, s21, 9")
    a.I("s_add_u32 s23, s23, s24")
    a.I("s_and_b32 s24, s20, 31")
    a.I("s_lshl_b32 s24, s24, 4")
    a.I("s_add_u32 s23, s23, s24")
    a.I("s_add_u32 s24, s23, 4096")
    a.I("v_lshlrev_b32 v3, 13, v2")
    a.I(f"v_mov_b32 v4, {256 * 8192}")
    a.I("s_waitcnt lgkmcnt(0)")
    srd(a, 28, 4, 5, 257 * 8192, add=WS_Z)
    srd(a, 32, outp, outp + 1, 4 * MB)
    if before:
        before()
    a.I(f"buffer_load_dwordx4 v[16:19], v3, s[28:31], s23 offen{pol}")
    a.I(f"buffer_load_dwordx4 v[20:23], v3, s[28:31], s24 offen{pol}")
    a.I(f"buffer_load_dwordx4 v[24:27], v4, s[28:31], s23 offen{pol}")


def b3_body(a, LB=0, outp=6, nafter=0, loaded=False, mid=None, part=0, bar=None):
    if not loaded:
        b3_loads(a, outp)
    n0 = len(a.items)
    HL, NF, BS, AFL, TM = 5, 6, 7, 12, 8
    C32, NS32, BRE, BIM, MT, ZF, UR, UI, TR, TI = 32, 40, 48, 56, 64, 68, 76, 92, 108, 116
    a.I(f"v_lshrrev_b32 {v(HL)}, 5, v0")
    a.I(f"v_cvt_f32_u32 {v(HL)}, {v(HL)}")
    a.I("v_and_b32 v13, 31, v0")
    a.I("v_cvt_f32_u32 v13, v13")
    a.I(f"v_mul_f32 {v(NF)}, {f32(1 / 32)}, v13")
    a.I(f"v_mul_f32 {v(BS)}, {v(NF)}, {v(HL)}")
    a.I(f"v_mul_f32 {v(BS)}, 4.0, {v(BS)}")
    pc = [16 * t + PERMC(j) for t in range(2) for j in range(8)]
    gen_mat(a, C32, NF, BS, pc, TM)
    a.I(f"v_add_f32 {v(BS)}, {f32(0.25)}, {v(BS)}")
    gen_mat(a, NS32, NF, BS, pc, TM)
    a.I(f"v_and_b32 {v(AFL)}, 15, v0")
    a.I(f"v_cvt_f32_u32 {v(AFL)}, {v(AFL)}")
    a.I(f"v_mul_f32 {v(NF)}, {f32(1 / 16)}, {v(AFL)}")
    a.I(f"v_mul_f32 {v(BS)}, {f32(0.25)}, {v(HL)}")
    a.I("v_and_b32 v13, 16, v0")
    a.I("v_cmp_eq_u32 vcc, 0, v13")
    a.I("v_mov_b32 v14, 0")
    for B_, ph in ((BRE, None), (BIM, -0.25)):
        if ph:
            a.I(f"v_add_f32 {v(BS)}, {f32(ph)}, {v(BS)}")
        gen_mat(a, MT, NF, BS, list(range(8)), TM)
        for i in range(4):
            a.I(f"v_cndmask_b32 {v(B_ + i)}, v14, {v(MT + i)}, vcc")
            a.I(f"v_cndmask_b32 {v(B_ + 4 + i)}, {v(MT + i)}, v14, vcc")
    if part == 1:
        return
    if part == 2:
        del a.items[n0:]
    if mid:
        mid()
    a.I("v_and_b32 v13, 31, v2")
    a.I("v_lshlrev_b32 v13, 4, v13")
    a.I("v_lshrrev_b32 v15, 5, v2")
    a.I("v_lshl_add_u32 v13, v15, 1, v13")
    a.I(f"v_add_u32 v13, {LB}, v13")
    a.I("v_cmp_eq_u32 vcc, 0, v2")
    a.I(f"v_mov_b32 v15, {LB + 8192}")
    a.I(f"s_waitcnt vmcnt({nafter})")
    for i in range(4):
        a.I(f"v_cndmask_b32 {v(20 + i)}, {v(20 + i)}, v14, vcc")
    for c in range(2):
        for i in range(8):
            a.I(f"ds_write_b16{'_d16_hi' if i & 1 else ''} v13, {v(16 + 4 * c + i // 2)} offset:{i * 1024 + c * 512}")
    a.I("s_and_saveexec_b64 s[36:37], vcc")
    a.I("ds_write_b128 v15, v[24:27]")
    a.I("s_mov_b64 exec, s[36:37]")
    a.I("s_lshl_b32 s25, s16, 11")
    a.I(f"s_add_u32 s25, s25, {LB}")
    a.I("v_lshlrev_b32 v13, 4, v0")
    a.I("v_add_u32 v13, s25, v13")
    a.I("v_bfe_u32 v15, v0, 4, 1")
    a.I("s_lshl_b32 s25, s16, 2")
    a.I(f"s_add_u32 s25, s25, {LB + 8192}")
    a.I("v_lshl_add_u32 v15, v15, 1, s25")
    for j in range(1, 16):
        a.I(f"v_mov_b32 {v(UR + j)}, 0")
    a.I("s_waitcnt lgkmcnt(0)")
    if bar:
        bar()
    else:
        a.I("s_barrier")
    a.I(f"ds_read_u16 {v(UR)}, v15")
    a.I(f"ds_read_b128 {v(ZF, 4)}, v13")
    a.I(f"ds_read_b128 {v(ZF + 4, 4)}, v13 offset:1024")
    a.I("v_and_b32 v15, 1, v0")
    a.I("v_lshlrev_b32 v15, 31, v15")
    a.I("v_cmp_gt_u32 vcc, 32, v0")
    a.I(f"v_mul_f32 {v(NF)}, {f32(1 / 512)}, {v(AFL)}")
    a.I(f"v_mul_f32 {v(BS)}, {v(NF)}, {v(HL)}")
    a.I(f"v_mul_f32 {v(BS)}, 4.0, {v(BS)}")
    a.I("s_waitcnt lgkmcnt(2)")
    a.I(f"v_lshlrev_b32 {v(UR)}, 16, {v(UR)}")
    a.I(f"v_xor_b32 {v(UR)}, {v(UR)}, v15")
    a.I(f"v_cndmask_b32 {v(UR)}, v14, {v(UR)}, vcc")
    a.I("s_waitcnt lgkmcnt(0)")
    a.I("s_nop 0")
    for r in range(2):
        a.I(f"{MF} {v(UR, 16)}, {v(ZF + 4 * r, 4)}, {v(BRE + 4 * r, 4)}, {v(UR, 16)}")
    for r in range(2):
        a.I(f"{MF} {v(UI, 16)}, {v(ZF + 4 * r, 4)}, {v(BIM + 4 * r, 4)}, {'0' if r == 0 else v(UI, 16)}")
    a.I("s_lshr_b32 s25, s21, 1")
    a.I("s_lshl_b32 s25, s25, 4")
    a.I("s_and_b32 s26, s21, 1")
    a.I("s_lshl_b32 s26, s26, 2")
    a.I("s_add_u32 s25, s25, s26")
    a.I("s_lshr_b32 s26, s16, 1")
    a.I("s_lshl_b32 s26, s26, 3")
    a.I("s_add_u32 s25, s25, s26")
    a.I("s_and_b32 s26, s16, 1")
    a.I("s_lshl_b32 s26, s26, 1")
    a.I("s_add_u32 s25, s25, s26")
    a.I("s_lshl_b32 s25, s25, 6")
    a.I("s_add_u32 s25, s25, s20")
    a.I("s_lshl_b32 s25, s25, 11")
    a.I(f"s_add_u32 s26, s25, {64 * 2048}")
    jc = [(j & 3) + 8 * (j >> 2) for j in range(16)]
    twiddle(a, UR, UI, [[j] for j in range(16)], NF, BS, jc, +1, TM)
    pack(a, TR, UR, 8)
    pack(a, TI, UI, 8)
    a.I("v_and_b32 v13, 31, v0")
    a.I("v_lshlrev_b32 v13, 5, v13")
    terms = [(TR, C32), (TR + 4, C32 + 4), (TI, NS32), (TI + 4, NS32 + 4)]
    for i, (A_, B_) in enumerate(terms):
        a.I(f"{MF} {v(UR, 16)}, {v(A_, 4)}, {v(B_, 4)}, {'0' if i == 0 else v(UR, 16)}")
    a.I("v_lshrrev_b32 v15, 5, v0")
    a.I("v_lshl_add_u32 v13, v15, 4, v13")
    a.I("s_nop 9")
    pack(a, 16, UR, 8)
    a.I("s_nop 1")
    for r in range(2):
        a.I(f"v_permlane32_swap_b32 {v(16 + 4 * r)}, {v(18 + 4 * r)}")
        a.I(f"v_permlane32_swap_b32 {v(17 + 4 * r)}, {v(19 + 4 * r)}")
        a.I(f"buffer_store_dwordx4 {v(16 + 4 * r, 4)}, v13, s[32:35], s{25 + r} offen offset:1024")


def gen_b3():
    a = Asm()
    N = "b3_kernel"
    kstart(a, N, 256)
    a.I("s_load_dwordx2 s[4:5], s[0:1], 88")
    a.I("s_load_dwordx2 s[6:7], s[0:1], 72")
    a.I("v_lshrrev_b32 v1, 6, v0")
    a.I("v_mov_b32 v2, v0")
    a.I("v_and_b32 v0, 63, v0")
    a.I("v_readfirstlane_b32 s16, v1")
    b3_body(a)
    kend(a, N)
    return a, N, (256, 256, 8192 + 64)


KERNELS = [gen_b1, gen_qkv, gen_b2, gen_attn, gen_b3, gen_oproj]


ALIASES = [("v_mfma_f32_16x16x32_bf16", "mf16", 4), ("v_mfma_f32_32x32x16_bf16", "mf32", 4),
           ("v_cvt_pk_bf16_f32", "cvtpk", 3)]


def compact(txt):
    lines = txt.split("\n")
    out = []
    done = False
    for l in lines:
        if l.startswith("    "):
            l = l.strip()
            for full, short, n in ALIASES:
                if l.startswith(full + " "):
                    l = short + l[len(full):]
        out.append(l)
        if l.startswith(".amdgcn_target") and not done:
            done = True
            for full, short, n in ALIASES:
                args = ["p%d" % i for i in range(n)]
                out.append(f".macro {short} " + ", ".join(args))
                out.append(f"{full} " + ", ".join("\\" + x for x in args))
                out.append(".endm")
    return "\n".join(out)


def build(kernels, path):
    hdr = open(os.path.join(os.path.dirname(os.path.abspath(__file__)), "..", "cdna_kernels", NAME + ".s.ref")).read()
    head = [l for l in hdr.splitlines() if l.startswith(";") and "@launch" not in l and "Override" not in l
            and "grid=ceil" not in l]
    txt = []
    launches = []
    descs = []
    bad = 0
    for g in kernels:
        KIDX[0] = len(launches)
        a, n, (grid, blk, lds) = g()
        if os.environ.get("PADREF") == n:
            items = []
            done = False
            for it in a.items:
                items.append(it)
                if it[0] == "i" and it[1].text == f"s_cbranch_scc1 {n}_end" and not done:
                    done = True
                    b = Asm()
                    b.I("s_memrealtime s[98:99]")
                    b.I("s_load_dwordx2 s[96:97], s[0:1], 88")
                    b.I("s_cmp_lg_u32 s2, 0")
                    b.I("s_cbranch_scc1 padref_skip")
                    b.I("s_waitcnt lgkmcnt(0)")
                    b.I(f"s_add_u32 s84, s96, {hex(200 * MB)}")
                    b.I("s_addc_u32 s85, s97, 0")
                    b.I("s_mov_b32 s86, 64")
                    b.I("s_mov_b32 s87, 0x20000")
                    b.I("v_mov_b32 v254, s98")
                    b.I("buffer_store_dword v254, off, s[84:87], 0 sc0 sc1")
                    b.label("padref_skip")
                    b.I("s_waitcnt lgkmcnt(0)")
                    items += b.items
            a.items = items
        if os.environ.get("PADK") == n:
            items = []
            cnt = 0
            for it in a.items:
                if it[0] == "i" and it[1].text == f"s_cbranch_scc1 {n}_end" and cnt == 0:
                    items.append(it)
                    b = Asm()
                    b.I("s_memrealtime s[98:99]")
                    if os.environ.get("PADREF"):
                        b.I("s_load_dwordx2 s[96:97], s[0:1], 88")
                        b.I("s_waitcnt lgkmcnt(0)")
                        b.I(f"s_add_u32 s84, s96, {hex(200 * MB)}")
                        b.I("s_addc_u32 s85, s97, 0")
                        b.I("s_mov_b32 s86, 64")
                        b.I("s_mov_b32 s87, 0x20000")
                        b.I("buffer_load_dword v254, off, s[84:87], 0 sc0 sc1")
                        b.I("s_waitcnt vmcnt(0)")
                        b.I("v_readfirstlane_b32 s98, v254")
                    items += b.items
                    cnt = 1
                    continue
                if it[0] == "i" and it[1].mn == "s_endpgm" and not (items[-1][0] == "l" and items[-1][1] == n + "_end" and items[-2][1].mn == "s_endpgm"):
                    b = Asm()
                    lab = None
                    if items[-1][0] == "l" and items[-1][1] == n + "_end":
                        lab = items.pop()
                    cnt += 1
                    b.I("s_waitcnt vmcnt(0) lgkmcnt(0)")
                    b.label(f"pad_{cnt}")
                    b.I("s_memrealtime s[96:97]")
                    b.I("s_waitcnt lgkmcnt(0)")
                    b.I("s_sub_u32 s96, s96, s98")
                    b.I(f"s_cmp_lt_u32 s96, {os.environ['PADT']}")
                    b.I(f"s_cbranch_scc1 pad_{cnt}")
                    items += b.items
                    if lab:
                        items.append(it)
                        items.append(lab)
                items.append(it)
            a.items = items
        if DBGT:
            items = []
            for it in a.items:
                if it[0] == "i" and it[1].mn == "s_endpgm" and not (items and items[-1][0] == "l" and items[-1][1] == n + "_end" and items[-2][1].mn == "s_endpgm"):
                    b = Asm()
                    lab = None
                    if items[-1][0] == "l" and items[-1][1] == n + "_end":
                        lab = items.pop()
                    dbg_stamp(b, 1)
                    items += b.items
                    if lab:
                        items.append(it)
                        items.append(lab)
                items.append(it)
            a.items = items
        bad += len(a.check())
        nv, ns, na = a.maxregs()
        print(f"{n}: {sum(1 for k, _ in a.items if k == 'i')} instrs, vgpr {nv}, agpr {na}, sgpr {ns}")
        launches.append(f"; @launch kernel={n} grid=({grid},1,1) block=({blk},1,1) lds={lds}")
        txt.append(a.text())
        descs.append(kdesc(n, nv, ns, na))
    if bad:
        print("HAZARDS:", bad)
    out = "\n".join(head) + "\n" + "\n".join(launches) + "\n" + '.amdgcn_target "amdgcn-amd-amdhsa--gfx950"\n' + \
          "".join(txt) + "".join(descs)
    out = compact(out)
    open(path, "w").write(out)
    return bad


if __name__ == "__main__":
    p = sys.argv[1] if len(sys.argv) > 1 else os.path.join(os.path.dirname(os.path.abspath(__file__)), "..",
                                                           "cdna_kernels", NAME + ".s")
    sys.exit(1 if build(KERNELS, p) else 0)
```

```python
import sys, os
sys.path.insert(0, os.path.dirname(os.path.abspath(__file__)))
import gen
from gen import *

M16 = "v_mfma_f32_16x16x32_bf16"
SP = os.environ.get("SP", " sc1")
PUMP = int(os.environ.get("PUMP", "5"))
SCAT_AT = int(os.environ.get("SCAT_AT", "52"))
PRE3 = int(os.environ.get("PRE3", "20"))
PF_AT = int(os.environ.get("PF_AT", "80"))
BP = os.environ.get("BP", " nt")
PP = os.environ.get("PP", "")
AP = os.environ.get("AP", "")
LP = os.environ.get("LP", "")
MULM = os.environ.get("MULM", "")
SIG3 = int(os.environ.get("SIG3", "123"))
B3AT = int(os.environ.get("B3AT", "93"))
GRP2 = int(os.environ.get("GRP2", "0"))
FILT_AT = int(os.environ.get("FILT_AT", "118"))
LATE_AT = int(os.environ.get("LATE_AT", "81"))
STF = eval(os.environ.get("STF", "(31, 63, 95)"))
B1START = int(os.environ.get("B1START", "6"))


def gen_l1():
    a = Asm()
    N = "l1_kernel"
    kstart(a, N, 256)
    a.I("s_load_dwordx4 s[4:7], s[0:1], 0")
    a.I("s_load_dwordx4 s[8:11], s[0:1], 16")
    a.I("s_load_dwordx2 s[12:13], s[0:1], 32")
    a.I("s_load_dwordx2 s[14:15], s[0:1], 88")
    a.I("s_load_dwordx4 s[60:63], s[0:1], 48")
    a.I("s_load_dwordx2 s[64:65], s[0:1], 64")
    a.I("s_load_dwordx2 s[90:91], s[0:1], 40")
    TID, L16 = 64, 65
    a.I(f"v_and_b32 {v(TID)}, 255, v0")
    a.I("v_lshrrev_b32 v2, 6, v0")
    a.I("v_and_b32 v0, 63, v0")
    a.I("v_readfirstlane_b32 s16, v2")
    st = Stamper(a, "l1")
    st()
    BLDS = 9 * 16384
    a.I("s_nop 0")
    if os.environ.get("CT0", "1") == "1":
        code_touch(a, N, 16, 24, 60, kd=False)
    a.I("s_and_b32 s17, s2, 7")
    a.I("s_lshr_b32 s18, s2, 3")
    a.I("s_and_b32 s19, s18, 7")
    a.I("s_lshr_b32 s18, s18, 3")
    a.I("s_lshl_b32 s40, s17, 2")
    a.I("s_add_u32 s18, s18, s40")
    if os.environ.get("L1MAP", "4x8") == "4x8":
        a.I("s_lshr_b32 s18, s2, 3")
        a.I("s_and_b32 s19, s18, 3")
        a.I("s_and_b32 s40, s17, 1")
        a.I("s_lshl_b32 s40, s40, 2")
        a.I("s_add_u32 s19, s19, s40")
        a.I("s_lshr_b32 s18, s18, 2")
        a.I("s_lshr_b32 s40, s17, 1")
        a.I("s_lshl_b32 s40, s40, 3")
        a.I("s_add_u32 s18, s18, s40")
    a.I("s_mov_b32 s41, 0")
    a.I("s_mul_i32 s42, s18, 6")
    a.I("s_cmp_ge_u32 s18, 11")
    a.I("s_cselect_b32 s41, 1, s41")
    a.I("s_cselect_b32 s40, 64, 0")
    a.I("s_cmp_ge_u32 s18, 21")
    a.I("s_cselect_b32 s41, 2, s41")
    a.I("s_cselect_b32 s40, 126, s40")
    a.I("s_sub_u32 s42, s42, s40")
    a.I("s_lshl_b32 s44, s19, 3")
    a.I("s_add_u32 s44, s44, s16")
    t1, t2, t3, G = 66, 67, 68, 69
    WV, AV, AR_, TB, SK, SV = 1, 3, 7, 9, 21, 22
    a.I(f"v_lshrrev_b32 {v(t1)}, 3, v0")
    a.I(f"v_lshlrev_b32 {v(G)}, 10, {v(t1)}")
    a.I(f"v_lshlrev_b32 {v(t1)}, 13, {v(t1)}")
    a.I("s_lshl_b32 s45, s16, 17")
    a.I(f"v_add_u32 {v(t1)}, s45, {v(t1)}")
    a.I(f"v_bfe_u32 {v(t2)}, v0, 4, 1")
    a.I(f"v_lshlrev_b32 {v(t2)}, 1, {v(t2)}")
    a.I(f"v_and_b32 {v(t3)}, 7, v0")
    a.I(f"v_xor_b32 {v(t2)}, {v(t2)}, {v(t3)}")
    a.I(f"v_lshl_add_u32 {v(WV)}, {v(t2)}, 4, {v(t1)}")
    a.I(f"v_xor_b32 {v(WV + 1)}, 64, {v(WV)}")
    a.I(f"v_add_u32 {v(WV + 1)}, {65536 - 1024}, {v(WV + 1)}")
    a.I("s_lshl_b32 s45, s44, 15")
    a.I(f"v_add_u32 {v(t1)}, s45, {v(G)}")
    a.I(f"v_lshrrev_b32 {v(t2)}, 4, v0")
    a.I(f"v_xor_b32 {v(t2)}, {v(t2)}, {v(t3)}")
    a.I(f"v_lshl_add_u32 {v(AV)}, {v(t2)}, 4, {v(t1)}")
    a.I(f"v_xor_b32 {v(AV + 1)}, 64, {v(AV)}")
    a.I(f"v_add_u32 {v(AV + 1)}, {8192 - 1024}, {v(AV + 1)}")
    a.I(f"v_add_u32 {v(AV + 2)}, {2 * (8192 - 1024)}, {v(AV)}")
    a.I(f"v_add_u32 {v(AV + 3)}, {2 * (8192 - 1024)}, {v(AV + 1)}")
    a.I("s_lshl_b32 s46, s16, 13")
    a.I("s_lshl_b32 s47, s16, 11")
    a.I("s_lshl_b32 s48, s42, 7")
    a.I("s_lshl_b32 s49, s44, 13")
    a.I("s_lshl_b32 s50, s42, 18")
    a.I("s_add_u32 s50, s50, s49")
    a.I("s_add_u32 s53, s48, 512")
    a.I("s_mov_b32 s43, s49")
    a.I(f"v_lshlrev_b32 {v(L16)}, 4, v0")
    a.I("s_lshl_b32 s45, s44, 16")
    a.I("v_lshrrev_b32 v23, 1, v0")
    a.I("v_lshlrev_b32 v23, 13, v23")
    a.I(f"v_and_b32 {v(t1)}, 1, v0")
    a.I(f"v_lshl_add_u32 v23, {v(t1)}, 7, v23")
    a.I("v_add_u32 v23, s45, v23")
    a.I("s_waitcnt lgkmcnt(0)")
    WT0 = os.environ.get("WT0", "0")
    if WT0 != "0":
        a.I("s_cmp_ge_u32 s16, 6")
        a.I(f"s_cbranch_scc1 {N}_nwt")
        a.I("s_lshr_b32 s40, s16, 1")
        a.I("s_cmp_eq_u32 s40, 1")
        a.I("s_cselect_b32 s20, s8, s10")
        a.I("s_cselect_b32 s21, s9, s11")
        a.I("s_cmp_eq_u32 s40, 2")
        a.I("s_cselect_b32 s20, s12, s20")
        a.I("s_cselect_b32 s21, s13, s21")
        a.I(f"s_mov_b32 s22, {hex(4 * MB)}")
        a.I("s_mov_b32 s23, 0x20000")
        a.I("s_and_b32 s40, s16, 1")
        a.I("s_lshl1_add_u32 s40, s2, s40")
        a.I("s_lshl_b32 s40, s40, 13")
        a.I(f"v_lshlrev_b32 {v(t1)}, 7, v0")
        a.I(f"buffer_load_dword v59, {v(t1)}, s[20:23], s40 offen")
        a.label(f"{N}_nwt")
    a.I("s_lshl_b32 s45, s44, 18")
    a.I("s_lshl_b32 s40, s42, 12")
    a.I("s_add_u32 s45, s45, s40")
    a.I(f"s_mov_b32 s92, {hex(512 * 1024)}")
    a.I("s_cmp_eq_u32 s41, 2")
    a.I("s_cselect_b32 s50, s45, s50")
    a.I("s_cselect_b32 s92, 0x2000, s92")
    a.I("s_cselect_b32 s20, s4, s6")
    a.I("s_cselect_b32 s21, s5, s7")
    a.I("s_cselect_b32 s24, s8, s10")
    a.I("s_cselect_b32 s25, s9, s11")
    a.I(f"s_cselect_b32 s51, {hex(WS_Q)}, 0")
    a.I(f"s_cselect_b32 s52, {f32(QSCALE)}, 1.0")
    a.I("s_cmp_eq_u32 s41, 1")
    a.I("s_cselect_b32 s24, s12, s24")
    a.I("s_cselect_b32 s25, s13, s25")
    a.I(f"s_cselect_b32 s51, {hex(WS_V)}, s51")
    a.I("s_mov_b32 s32, s24")
    a.I("s_mov_b32 s33, s25")
    a.I(f"s_mov_b32 s40, {hex(WS_V)}")
    a.I("s_cmp_eq_u32 s18, 10")
    a.I("s_cselect_b32 s32, s12, s32")
    a.I("s_cselect_b32 s33, s13, s33")
    a.I("s_cselect_b32 s53, 0, s53")
    a.I(f"s_add_u32 s45, s49, {hex(31 << 19)}")
    a.I("s_cmp_eq_u32 s18, 31")
    a.I("s_cselect_b32 s53, s48, s53")
    a.I("s_cselect_b32 s43, s50, s43")
    a.I(f"s_cselect_b32 s40, {hex(WS_Q)}, s40")
    a.I("s_cselect_b32 s24, s12, s24")
    a.I("s_cselect_b32 s25, s13, s25")
    a.I(f"s_cselect_b32 s48, {62 * 128}, s48")
    a.I(f"s_cselect_b32 s51, {hex(WS_V)}, s51")
    a.I("s_cselect_b32 s20, s6, s20")
    a.I("s_cselect_b32 s21, s7, s21")
    a.I("s_cselect_b32 s50, s45, s50")
    a.I(f"s_mov_b32 s22, {hex(2 * MB)}")
    a.I("s_mov_b32 s23, 0x20000")
    a.I(f"s_mov_b32 s26, {hex(4 * MB)}")
    a.I("s_mov_b32 s27, 0x20000")

    def late_setup():
        a.I("s_mov_b32 s94, s52")
        a.I("s_mov_b32 s95, s52")
        a.I(f"s_mov_b32 s34, {hex(4 * MB)}")
        a.I("s_mov_b32 s35, 0x20000")
        srd(a, 28, 14, 15, 16 * MB, add="s51")
        srd(a, 36, 14, 15, 16 * MB, add="s40")
        srd(a, 56, 4, 5, 2 * MB)
        if os.environ.get("XDROP") == "q":
            a.I("s_cmp_eq_u32 s41, 2")
            a.I("s_cselect_b32 s30, 0, s30")
        if os.environ.get("XDROP") == "all":
            a.I("s_mov_b32 s30, 0")
            a.I("s_mov_b32 s38, 0")
        a.I("s_add_u32 s13, s48, 256")
        a.I("s_add_u32 s17, s53, 256")
        a.I("s_cmp_eq_u32 s18, 31")
        a.I("s_cselect_b32 s4, s32, s24")
        a.I("s_cselect_b32 s5, s33, s25")
        a.I("s_cselect_b32 s13, s53, s13")
        a.I("s_cselect_b32 s17, s17, s53")
        a.I(f"s_mov_b32 s6, {hex(4 * MB)}")
        a.I("s_mov_b32 s7, 0x20000")

    def w_prefetch(g):
        for th, (col, sr) in enumerate([("s13", "s[4:7]"), ("s17", "s[32:35]")]):
            g.lq.append((["s_mov_b64 exec, 0xffff"], f"buffer_load_dword {v(56 + th)}, v23, {sr}, {col} offen{PP}", "pf"))

    def addr_setup():
        a.I(f"v_lshrrev_b32 {v(G)}, 4, v0")
        a.I(f"v_bfe_u32 {v(t1)}, v0, 3, 1")
        a.I(f"v_lshlrev_b32 {v(t1)}, 4, {v(t1)}")
        a.I(f"v_and_b32 {v(t2)}, 7, v0")
        a.I(f"v_add_u32 {v(t1)}, {v(t1)}, {v(t2)}")
        a.I(f"v_bfe_u32 {v(t2)}, {v(t1)}, 1, 3")
        a.I(f"v_xor_b32 {v(t2)}, {v(t2)}, {v(G)}")
        a.I(f"v_lshlrev_b32 {v(t2)}, 4, {v(t2)}")
        a.I(f"v_lshl_add_u32 {v(AR_)}, {v(t1)}, 7, {v(t2)}")
        a.I(f"v_xor_b32 {v(AR_ + 1)}, 64, {v(AR_)}")
        a.I(f"v_add_u32 {v(AR_)}, s46, {v(AR_)}")
        a.I(f"v_add_u32 {v(AR_ + 1)}, s46, {v(AR_ + 1)}")
        a.I(f"v_lshlrev_b32 {v(t2)}, 9, {v(G)}")
        a.I(f"v_lshl_add_u32 {v(SK)}, {v(t1)}, 4, {v(t2)}")
        a.I(f"v_and_b32 {v(t3)}, 15, v0")
        a.I(f"v_lshl_add_u32 {v(SV)}, {v(t3)}, 4, {v(t2)}")
        a.I(f"v_bfe_u32 {v(t1)}, v0, 2, 2")
        a.I(f"v_lshl_add_u32 {v(t1)}, {v(G)}, 3, {v(t1)}")
        a.I(f"v_lshlrev_b32 {v(t1)}, 7, {v(t1)}")
        a.I(f"v_and_b32 {v(t2)}, 3, v0")
        a.I(f"v_lshl_add_u32 {v(t1)}, {v(t2)}, 3, {v(t1)}")
        a.I(f"v_bfe_u32 {v(t2)}, v0, 3, 2")
        a.I(f"v_lshl_add_u32 {v(t1)}, {v(t2)}, 5, {v(t1)}")
        for ct in range(4):
            a.I(f"v_xor_b32 {v(TB + ct)}, {32 * ct}, {v(t1)}")
        for ct in range(4):
            a.I(f"v_add_u32 {v(TB + 4 + ct)}, 0x10000, {v(TB + ct)}")
            a.I(f"v_add_u32 {v(TB + 8 + ct)}, 0x20000, {v(TB + ct)}")

    def b_common():
        a.I("s_and_b32 s8, s2, 7")
        a.I("s_lshl_b32 s8, s8, 3")
        a.I("s_bfe_u32 s9, s2, 0x30003")
        a.I("s_or_b32 s8, s8, s9")
        a.I("s_lshr_b32 s9, s2, 6")
        a.I("s_lshr_b32 s66, s9, 1")
        a.I("s_lshl_b32 s66, s66, 11")
        a.I("s_lshr_b32 s10, s8, 5")
        a.I("s_lshl_b32 s10, s10, 10")
        a.I("s_add_u32 s66, s66, s10")
        a.I("s_and_b32 s10, s8, 31")
        a.I("s_lshl_b32 s10, s10, 4")
        a.I("s_add_u32 s66, s66, s10")
        a.I("s_and_b32 s10, s9, 1")
        a.I("s_lshl_b32 s10, s10, 9")
        a.I("s_add_u32 s66, s66, s10")

    HL, NF, BS, F2, TM, X1, X2, X3 = 70, 71, 72, 73, 74, 78, 79, 80
    C32, NS32, AR, AI, XF, D1R, D1I, TR, TI, D2 = 84, 92, 100, 104, 108, 116, 132, 148, 158, 168
    pc8 = [PERMC(j) for j in range(8)]

    def fft_loads(vm):
        a.I("s_lshr_b32 s10, s9, 1")
        a.I("s_lshl_b32 s10, s10, 4")
        a.I("s_and_b32 s11, s9, 1")
        a.I("s_lshl_b32 s11, s11, 2")
        a.I("s_add_u32 s10, s10, s11")
        a.I("s_lshr_b32 s11, s16, 1")
        a.I("s_lshl_b32 s11, s11, 3")
        a.I("s_add_u32 s10, s10, s11")
        a.I("s_and_b32 s11, s16, 1")
        a.I("s_lshl_b32 s11, s11, 1")
        a.I("s_add_u32 s10, s10, s11")
        a.I("s_lshl_b32 s10, s10, 6")
        a.I("s_add_u32 s10, s10, s8")
        a.I("s_lshl_b32 s10, s10, 10")
        a.I(f"s_add_u32 s11, s10, {65536 - 1024}")
        a.I(f"s_add_u32 s3, s47, {BLDS}")
        a.I("s_mov_b32 m0, s3")
        a.I(f"s_mov_b32 s62, {hex(2 * MB)}")
        a.I("s_mov_b32 s63, 0x20000")
        vm.issue(f"buffer_load_dwordx4 {v(L16)}, s[60:63], s10 offen{BP} lds", "bx")
        vm.issue(f"buffer_load_dwordx4 {v(L16)}, s[60:63], s11 offen offset:1024{BP} lds", "bx")

    def fft_compute(g):
        vm = g.vm
        a.I(f"v_lshrrev_b32 {v(X2)}, 5, v0")
        a.I(f"v_cvt_f32_u32 {v(HL)}, {v(X2)}")
        a.I(f"v_and_b32 {v(F2)}, 31, v0")
        a.I(f"v_cvt_f32_u32 {v(F2)}, {v(F2)}")
        a.I(f"v_mul_f32 {v(NF)}, {f32(1 / 32)}, {v(F2)}")
        a.I(f"v_mul_f32 {v(BS)}, {v(NF)}, {v(HL)}")
        a.I(f"v_mul_f32 {v(BS)}, {f32(8.0)}, {v(BS)}")
        nat = [16 * t + j for t in range(2) for j in range(8)]
        gen_mat(a, C32, NF, BS, nat, TM)
        a.I(f"v_add_f32 {v(BS)}, {f32(0.25)}, {v(BS)}")
        gen_mat(a, NS32, NF, BS, nat, TM)
        a.I(f"v_bfe_u32 {v(X1)}, v0, 4, 1")
        a.I(f"v_lshlrev_b32 {v(X1)}, 10, {v(X1)}")
        a.I(f"v_lshl_add_u32 {v(X1)}, {v(X2)}, 8, {v(X1)}")
        a.I(f"v_and_b32 {v(X3)}, 15, v0")
        a.I(f"v_lshl_add_u32 {v(X1)}, {v(X3)}, 3, {v(X1)}")
        a.I(f"v_add_u32 {v(X1)}, s3, {v(X1)}")
        vm.wait("bx")
        for t in range(2):
            for h in range(2):
                a.I(f"ds_read_b64_tr_b16 {v(XF + 4 * t + 2 * h, 2)}, {v(X1)} offset:{t * 512 + h * 128}")
        a.I(f"v_cvt_f32_u32 {v(X3)}, {v(X3)}")
        a.I(f"v_mul_f32 {v(NF)}, {f32(1 / 16)}, {v(X3)}")
        a.I(f"v_bfe_u32 {v(X1)}, v0, 4, 1")
        a.I(f"v_cvt_f32_u32 {v(X1)}, {v(X1)}")
        a.I(f"v_mul_f32 {v(BS)}, {v(NF)}, {v(HL)}")
        a.I(f"v_mul_f32 {v(BS)}, 4.0, {v(BS)}")
        a.I(f"v_fmamk_f32 {v(BS)}, {v(X1)}, {f32(0.25)}, {v(BS)}")
        a.I("s_waitcnt lgkmcnt(0)")
        for D, Mx in ((D1R, C32), (D1I, NS32)):
            for t in range(2):
                a.I(f"{MF} {v(D, 16)}, {v(XF + 4 * t, 4)}, {v(Mx + 4 * t, 4)}, {'0' if t == 0 else v(D, 16)}")
        gen_mat(a, AR, NF, BS, pc8, TM)
        a.I(f"v_add_f32 {v(BS)}, {f32(-0.25)}, {v(BS)}")
        gen_mat(a, AI, NF, BS, pc8, TM)
        a.I(f"v_mul_f32 {v(NF)}, {f32(1 / 512)}, {v(F2)}")
        a.I(f"v_mul_f32 {v(BS)}, {v(NF)}, {v(HL)}")
        a.I(f"v_mul_f32 {v(BS)}, 4.0, {v(BS)}")
        twiddle(a, D1R, D1I, [[j, j + 8] for j in range(8)], NF, BS, pc8, -1, TM)
        pack(a, TR, D1R, 8)
        pack(a, TI, D1I, 8)
        a.I(f"v_and_b32 {v(X3)}, 31, v0")
        a.I(f"v_lshlrev_b32 {v(X3)}, 4, {v(X3)}")
        for r in range(2):
            a.I(f"{MF} {v(D2 + 16 * r, 16)}, {v(AR, 4)}, {v(TR + 4 * r, 4)}, 0")
            a.I(f"{MF} {v(D2 + 16 * r, 16)}, {v(AI, 4)}, {v(TI + 4 * r, 4)}, {v(D2 + 16 * r, 16)}")
        a.I(f"v_lshl_add_u32 {v(X3)}, {v(X2)}, 11, {v(X3)}")
        a.I("s_lshl_b32 s10, s16, 2")
        a.I(f"s_add_u32 s11, s10, {BLDS + 8192}")
        a.I(f"v_add_u32 {v(X3)}, s11, {v(X3)}")
        a.I(f"v_mov_b32 {v(X2)}, s10")
        a.I(f"s_add_u32 s67, s66, {256 * 8192}")
        a.I(f"s_add_u32 s11, s66, {256 * 8192 + 4096}")
        srd(a, 60, 14, 15, 8 * MB, add=WS_Y)
        a.I("s_nop 1")
        for c in range(2):
            for j in range(5):
                a.I(f"v_cvt_pk_bf16_f32 {v(TR + 5 * c + j)}, {v(D2 + 8 * c + j)}, {v(D2 + 16 + 8 * c + j)}")
        for c in range(2):
            for j in range(4):
                a.I(f"ds_write_b32 {v(X3)}, {v(TR + 5 * c + j)} offset:{(c * 8 + j) * 512}")
        a.I = I0
        a.I("s_mov_b64 exec, 1")
        vm.issue(f"buffer_store_dword {v(TR + 4)}, {v(X2)}, s[60:63], s67 offen", "bs")
        vm.issue(f"buffer_store_dword {v(TR + 9)}, {v(X2)}, s[60:63], s11 offen", "bs")
        a.I("s_mov_b64 exec, -1")

    WFR, WFP, FX1, FX2, WF9 = 56, 52, 52, 53, 23

    def filt_setup():
        a.I("s_lshr_b32 s10, s9, 1")
        a.I("s_lshl_b32 s10, s10, 5")
        a.I("s_lshr_b32 s11, s8, 5")
        a.I("s_lshl_b32 s11, s11, 4")
        a.I("s_add_u32 s10, s10, s11")
        a.I("s_and_b32 s11, s9, 1")
        a.I("s_lshl_b32 s11, s11, 2")
        a.I("s_add_u32 s10, s10, s11")
        a.I("s_lshl_b32 s10, s10, 5")
        a.I("s_and_b32 s11, s8, 31")
        a.I("s_add_u32 s10, s10, s11")
        a.I("s_mul_i32 s19, s10, 514")
        a.I(f"v_lshlrev_b32 {v(FX1)}, 1, {v(TID)}")
        a.I(f"v_and_b32 {v(FX2)}, 3, v0")
        a.I(f"v_bfe_u32 {v(t1)}, v0, 2, 1")
        a.I(f"v_lshl_add_u32 {v(FX2)}, {v(t1)}, 3, {v(FX2)}")
        a.I(f"v_mul_u32_u24 {v(FX2)}, {32 * 514}, {v(FX2)}")
        a.I(f"v_add_u32 {v(FX2)}, 512, {v(FX2)}")
        a.I("s_cmp_ge_u32 s16, 4")
        a.I("s_cselect_b32 s8, s64, s0")
        a.I("s_cselect_b32 s9, s65, s1")
        a.I(f"s_mov_b32 s10, {2048 * 514}")
        a.I("s_mov_b32 s11, 0x20000")

    def filt_loads(g):
        for j in range(8):
            g.lq.append(([f"s_add_u32 s12, s19, {PERMC(j) * 32 * 514}"],
                         f"buffer_load_ushort {v(WFR + j)}, {v(FX1)}, s[8:11], s12 offen{BP}", "wf"))
        g.lq.append(([], f"buffer_load_ushort {v(WF9)}, {v(FX2)}, s[8:11], s19 offen{BP}", "wf"))

    def filt_finish(g):
        vm = g.vm
        L = [lambda: (g.flush("wf"), vm.wait("wf"), a.I(f"v_lshlrev_b32 {v(54)}, 12, {v(FX1)}"))]
        L.append(lambda: a.I(f"v_lshlrev_b32 {v(55)}, 1, v0"))
        L.append(lambda: (a.I("s_mov_b64 exec, 0xff"),
                          vm.issue(f"buffer_store_short {v(WF9)}, {v(55)}, s[60:63], s67 offen", "bs"),
                          a.I("s_mov_b64 exec, -1")))
        L.append(lambda: a.I(f"v_mov_b32 {v(YS)}, {v(54)}"))
        for i in range(4):
            L.append(lambda i=i: a.I(f"v_lshl_or_b32 {v(WFP + i)}, {v(WFR + 1 + 2 * i)}, 16, {v(WFR + 2 * i)}"))
        return L

    def scat(g):
        g.vm.issue(f"buffer_store_dwordx4 {v(YD, 4)}, {v(YS)}, s[60:63], s66 offen", "bs")

    def scat_next():
        for i in range(4):
            a.I(f"v_mov_b32 {v(YD + i)}, {v(WFP + i)}")
        a.I(f"s_add_u32 s66, s66, {hex(WS_WF - WS_Y)}")

    YA, YD, YS = 56, 48, 23
    ACC, RING, PK, AFB = 192, 24, 56, 64
    LOOK = 4
    AHEAD = int(os.environ.get("AHEAD", "4"))

    def AF(rt, k):
        return AFB + (k * 2 + rt) * 4

    class Gen:
        def __init__(self, passes, nmerge, vmq):
            self.passes, self.nmerge = passes, nmerge
            self.vm, self.lg = VM(a), LG(a)
            self.vm.q = list(vmq)
            self.busy, self.nxt, self.dq, self.lq = {}, 0, [], []
            self.chunks, self.frags, self.groups = [], [], {}
            for pp in range(0, len(passes), 2):
                if pp // 2 < nmerge:
                    for kc in range(4):
                        c = len(self.chunks)
                        self.chunks += [(pp, kc), (pp + 1, kc)]
                        self.groups[len(self.frags)] = [c, c + 1]
                        for ks in range(4):
                            for h in range(2):
                                self.frags += [(c + h, ks, ct) for ct in range(4)]
                else:
                    for q in range(2):
                        for kc in range(4):
                            c = len(self.chunks)
                            self.chunks.append((pp + q, kc))
                            if GRP2 == 0:
                                self.groups[len(self.frags)] = [c]
                            elif kc % 2 == 0:
                                self.groups[len(self.frags)] = [c, c + 1]
                            self.frags += [(c, ks, ct) for ks in range(4) for ct in range(4)]
            self.prev = [[], []]
            self.b1busy = True
            self.skip_boundary = False

        def blk(self, c):
            nm = 8 * self.nmerge
            if c < nm:
                return 4 + 2 * ((c // 2) % 3) + (c & 1)
            if self.nmerge == 1:
                return [6, 7, 8, 9, 0, 1, 2, 3][(c - nm) % 8]
            return [8, 9, 4, 5, 0, 1, 2, 3][(c - nm) % 8]

        def dmaW(self, now, done):
            c = self.nxt
            if c >= len(self.chunks) or c > now + AHEAD:
                return False
            b = self.blk(c)
            if b in self.busy and self.busy[b] not in done:
                return False
            if b == 9 and self.b1busy:
                return False
            if b < 4 and now < 8 * self.nmerge:
                return False
            self.busy[b] = c
            self.nxt += 1
            pp, kc = self.chunks[c]
            form, wsel, wdi, osel, odi = self.passes[pp]
            sr = "s[32:35]" if wsel else "s[24:27]"
            for q in range(2):
                pre = [f"s_add_u32 m0, s47, {hex(b * 16384)}",
                       f"s_add_u32 s45, {'s53' if wsel else 's48'}, {hex((kc << 20) + wdi * 128)}"] if q == 0 else []
                self.dq.append((pre, f"buffer_load_dwordx4 {v(WV + q)}, {sr}, s45 offen offset:{q * 1024}{LP} lds", ("W", c)))
            return True

        def pump(self, n=1):
            for _ in range(n):
                q = self.dq or self.lq
                if q:
                    pre, ins, tag = q.pop(0)
                    a.many(pre)
                    self.vm.issue(ins, tag)
                    if tag == "pf":
                        a.I("s_mov_b64 exec, -1")

        def flush(self, tag=None):
            while any(tag is None or x[2] == tag for x in self.dq + self.lq):
                self.pump()

        def dmaA(self, j):
            sr = "s[56:59]" if j >= 8 else "s[20:23]"
            k = 0
            while k < len(self.dq) and not self.dq[k][0]:
                k += 1
            for i in range(4):
                pre = [f"s_add_u32 m0, s46, {hex((j % 2) * 4096)}", f"s_mov_b32 s45, {(j % 8) * 128}"] if i == 0 else []
                self.dq.insert(k + i, (pre, f"buffer_load_dwordx4 {v(AV + i)}, {sr}, s45 offen offset:{i * 1024}{AP} lds", ("A", j)))

        def readA(self, j):
            self.flush(("A", j))
            self.vm.wait(("A", j))
            for ks in range(2):
                for x in range(2):
                    self.lg.issue(f"ds_read_b128 {v(AF(x, 2 * (j % 8) + ks), 4)}, {v(AR_ + (ks ^ x))} "
                                  f"offset:{(j % 2) * 4096 + x * 1024}", ("A", j))

        def reads(self, i, halves=(0, 1)):
            c, ks, ct = self.frags[i]
            b = self.blk(c)
            base = TB + 4 * (b // 4) + ct
            off = (b % 4) * 16384 + ks * 4096
            d = RING + 4 * slot(i)
            for h in halves:
                self.lg.issue(f"ds_read_b64_tr_b16 {v(d + 2 * h, 2)}, {v(base)} offset:{off + 512 * h}", ("W", i))

        def sync(self, grp):
            for c in grp:
                self.flush(("W", c))
            self.vm.wait([("W", c) for c in grp])
            a.I("s_barrier")
            lo = self.prev[1][0] if self.prev[1] else 0
            done = set(range(lo))
            if self.prev[1]:
                self.b1busy = False
            self.prev = [self.prev[1], grp]
            while self.dmaW(grp[0], done):
                pass

        def acc(self, pp, rt, ct):
            return ACC + 32 * (pp & 1) + 4 * (4 * rt + ct)

        def epi(self, pp):
            out = []
            form, wsel, wdi, osel, u = self.passes[pp]
            so = 54 + (pp & 1)
            sr = "s[36:39]" if osel else "s[28:31]"
            def so_calc():
                a.I(f"s_add_u32 s{so}, {'s43' if osel else 's50'}, {(u & 1) * 4096}")
                assert (u >> 1) in (-1, 0, 1)
                if u >> 1:
                    a.I(f"s_{'add' if (u >> 1) > 0 else 'sub'}_u32 s{so}, s{so}, s92")
            out.append(so_calc)
            for q in range(4):
                pk = PK + 4 * (q % 2)
                if form == "K":
                    x, cp = divmod(q, 2)
                    srcs = [self.acc(pp, x, 2 * cp), self.acc(pp, x, 2 * cp + 1)]
                    off, va = x * 128 + cp * 2048, SK
                else:
                    srcs = [self.acc(pp, 0, q), self.acc(pp, 1, q)]
                    off, va = (q >> 1) * 2048 + (q & 1) * 256, SV
                for i in range(4):
                    src = srcs[i // 2] + 2 * (i % 2)
                    if form == "K" and MULM == "pk":
                        out.append(lambda src=src: a.I(f"v_pk_mul_f32 {v(src, 2)}, {v(src, 2)}, s[94:95]"))
                    elif form == "K" and MULM != "none":
                        out.append(lambda src=src: a.I(f"v_mul_f32 {v(src)}, s52, {v(src)}"))
                        out.append(lambda src=src: a.I(f"v_mul_f32 {v(src + 1)}, s52, {v(src + 1)}"))
                    out.append(lambda src=src, pk=pk, i=i: a.I(f"v_cvt_pk_bf16_f32 {v(pk + i)}, {v(src)}, {v(src + 1)}"))
                out.append(lambda pk=pk, va=va, off=off: self.vm.issue(
                    f"buffer_store_dwordx4 {v(pk, 4)}, {v(va)}, {sr}, s{so} offen offset:{off}{SP}", ("S", pp)))
            return out

        def boundary(self, pps):
            self.flush("pf")
            self.vm.wait("pf")
            a.I("s_nop 6")
            for pp in pps:
                for f in self.epi(pp):
                    f()

        def run(self, p0, p1):
            lg = self.lg
            NF_ = len(self.frags)
            NA = 8 * self.nmerge
            pend = []
            for i in range(64 * p0, 64 * p1):
                c, ks, ct = self.frags[i]
                pp, kc = self.chunks[c]
                k = 4 * kc + ks
                if i % 128 == 0 and 0 < i <= 128 * self.nmerge and not self.skip_boundary:
                    self.boundary([i // 64 - 2] + ([i // 64 - 1] if i < 128 * self.nmerge else []))
                if i % 2 == 0:
                    lg.wait([("W", i), ("W", i + 1), ("A", i // 16)])
                if i % 16 == 0 and i // 16 + 2 < NA:
                    self.dmaA(i // 16 + 2)
                wf = v(RING + 4 * slot(i), 4)
                j = i + LOOK
                for rt in range(2):
                    ac = v(self.acc(pp, rt, ct), 4)
                    af = v(AF(rt, k), 4)
                    cin = "0" if k == 0 else ac
                    if self.passes[pp][0] == "V":
                        a.I(f"{M16} {ac}, {af}, {wf}, {cin}")
                    else:
                        a.I(f"{M16} {ac}, {wf}, {af}, {cin}")
                    if j < NF_:
                        if rt == 0 and j in self.groups:
                            self.sync(self.groups[j])
                        if rt == 0 and j % 16 == 0 and j // 16 < NA:
                            self.readA(j // 16)
                        self.reads(j, (rt,))
                    if rt == 0 and pend:
                        pend.pop(0)()
                    if rt == 1 and i % 2 == 0:
                        if self.dq or self.lq:
                            self.pump(1)
                        elif pend:
                            pend.pop(0)()
                if i % 64 == 63:
                    assert not pend
                if i % 64 == 3 and i >= 128 * self.nmerge:
                    pend = self.epi(i // 64 - 1)
                if i == PF_AT:
                    w_prefetch(self)
                if i == LATE_AT:
                    filt_loads(self)
                if i == FILT_AT:
                    pend = filt_finish(self)
                if i >= 128 and i % 128 == SCAT_AT:
                    scat(self)
                if i >= 128 and i % 128 == 127:
                    scat_next()
                if i in STF:
                    st()
            self.flush()

        def wo_load(self):
            blk = 4 if self.nmerge == 1 else 6
            srd(a, 8, 90, 91, 4 * MB)
            a.I("s_lshl_b32 s12, s2, 14")
            a.I("s_lshl_b32 s13, s16, 7")
            a.I("s_add_u32 s12, s12, s13")
            a.I(f"s_add_u32 s13, s12, {8192 - 1024}")
            a.I(f"s_add_u32 s17, s47, {blk * 16384}")
            a.I("s_mov_b32 m0, s17")
            a.I(f"v_lshrrev_b32 {v(AV)}, 3, v0")
            a.I(f"v_lshlrev_b32 {v(AV)}, 10, {v(AV)}")
            a.I(f"v_and_b32 {v(AV + 1)}, 7, v0")
            a.I(f"v_lshl_add_u32 {v(AV)}, {v(AV + 1)}, 4, {v(AV)}")
            self.vm.issue(f"buffer_load_dwordx4 {v(AV)}, s[8:11], s12 offen{BP} lds", "wo")
            self.vm.issue(f"buffer_load_dwordx4 {v(AV)}, s[8:11], s13 offen offset:1024{BP} lds", "wo")
            a.I(f"v_lshrrev_b32 {v(AV + 1)}, 5, v0")
            a.I(f"v_bfe_u32 {v(AV + 2)}, v0, 2, 2")
            a.I(f"v_lshl_add_u32 {v(AV + 1)}, {v(AV + 1)}, 2, {v(AV + 2)}")
            a.I(f"v_lshlrev_b32 {v(AV + 1)}, 7, {v(AV + 1)}")
            a.I(f"v_bfe_u32 {v(AV + 2)}, v0, 4, 1")
            a.I(f"v_lshl_add_u32 {v(AV + 1)}, {v(AV + 2)}, 5, {v(AV + 1)}")
            a.I(f"v_and_b32 {v(AV + 2)}, 3, v0")
            a.I(f"v_lshl_add_u32 {v(AV + 1)}, {v(AV + 2)}, 3, {v(AV + 1)}")
            a.I(f"v_add_u32 {v(AV + 1)}, s17, {v(AV + 1)}")
            a.I(f"v_lshlrev_b32 {v(AV + 2)}, 4, v0")
            a.I("s_lshl_b32 s17, s16, 19")
            a.I("s_lshl_b32 s13, s2, 11")
            a.I("s_add_u32 s17, s17, s13")

        def fin(self, pp):
            self.vm.wait("wo")
            for cb in range(2):
                for h in range(2):
                    a.I(f"ds_read_b64_tr_b16 {v(RING + 4 * cb + 2 * h, 2)}, {v(AV + 1)} offset:{cb * 64 + h * 1024}")
            srd(a, 8, 14, 15, 4 * MB, add=WS_WO)
            a.I("s_waitcnt lgkmcnt(0)")
            for cb in range(2):
                a.I(f"buffer_store_dwordx4 {v(RING + 4 * cb, 4)}, {v(AV + 2)}, s[8:11], s17 offen offset:{cb * 1024}{SP}")
            code_touch(a, "attn_kernel", 16, 20, 32)
            for f in self.epi(pp):
                f()
            st.dump(16, 14, tmpv=24)
            a.I("s_endpgm")


    def slot(i):
        j = i % 128
        return j % 6 if j < 108 else (j - 108) % 5

    I0 = a.I
    cnt = [0]
    gp = [None]

    def Ipump(text):
        r = I0(text)
        if text.startswith("v_") and not text.startswith("v_mfma"):
            cnt[0] += 1
            if cnt[0] % PUMP == 0 and gp[0].dq:
                a.I = I0
                gp[0].pump()
                a.I = Ipump
        return r

    b_common()
    a.I("s_mov_b64 s[0:1], s[62:63]")
    g0 = Gen([("K", 0, i, 0, i) for i in range(2)], 1, [])
    a.I("s_cmp_ge_u32 s16, 4")
    a.I(f"s_cbranch_scc1 {N}_nofl")
    fft_loads(VM(a))
    a.label(f"{N}_nofl")
    for _ in range(2):
        g0.dmaW(0, set())
    g0.dmaA(0)
    g0.flush()
    g0.dmaA(1)
    for _ in range(2):
        g0.dmaW(0, set())
    g0.flush()
    if os.environ.get("CT0", "1") != "1":
        code_touch(a, N, 16, 36, 60, kd=False)
    st()
    late_setup()
    addr_setup()
    g0.dmaW(0, set())
    a.I("s_cmp_ge_u32 s16, 4")
    a.I(f"s_cbranch_scc1 {N}_join")
    gf = Gen([("K", 0, i, 0, i) for i in range(2)], 1, ["bx", "bx"] + g0.vm.q)
    fft_compute(gf)
    a.label(f"{N}_join")
    filt_setup()
    if os.environ.get("L1PRIO"):
        a.I("s_cmp_lt_u32 s16, 4")
        a.I(f"s_cbranch_scc1 {N}_np")
        a.I(f"s_setprio {os.environ['L1PRIO']}")
        a.label(f"{N}_np")
    srd(a, 60, 14, 15, 8 * MB, add=WS_Y)
    vmq = list(g0.vm.q)
    st()
    stn = st.n
    def y_prep():
        a.I(f"v_lshlrev_b32 {v(YA)}, 4, {v(TID)}")
        a.I("s_lshr_b32 s12, s16, 2")
        a.I("s_lshl_b32 s12, s12, 12")
        a.I("s_add_u32 s66, s66, s12")
        a.I(f"s_add_u32 s67, s66, {256 * 8192 + WS_WF - WS_Y}")
        a.I(f"s_add_u32 s12, s12, {BLDS + 8192}")
        a.I(f"v_add_u32 {v(YA)}, s12, {v(YA)}")

    y_prep()

    def mkgen(passes, nmerge=1):
        g = Gen(passes, nmerge, vmq)
        g.busy, g.nxt, g.dq = dict(g0.busy), g0.nxt, list(g0.dq)
        st.n = stn
        return g

    def start(g):
        a.I("s_waitcnt lgkmcnt(0)")
        g.readA(0)
        g.sync(g.groups[0])
        st()
        g.lg.issue(f"ds_read_b128 {v(YD, 4)}, {v(YA)}", "y")
        for i in range(LOOK):
            g.reads(i)

    def capture(fn):
        n0 = len(a.items)
        fn()
        seg = a.items[n0:]
        del a.items[n0:]
        return seg

    def merge(s1, s2):
        import asmlib
        isv = lambda x: x[0] == "i" and x[1].text.startswith("s_waitcnt vmcnt")
        out, i, j = [], 0, 0
        while i < len(s1) or j < len(s2):
            x = s1[i] if i < len(s1) else None
            y = s2[j] if j < len(s2) else None
            if x is not None and y is not None and isv(x) and isv(y):
                n = min(int(x[1].text[16:-1]), int(y[1].text[16:-1]))
                out.append(("i", asmlib.Ins(f"s_waitcnt vmcnt({n})")))
                i += 1
                j += 1
            elif x is not None and isv(x):
                out.append(x)
                i += 1
            elif y is not None and isv(y):
                out.append(y)
                j += 1
            else:
                assert x[1].text == y[1].text, (x[1].text, y[1].text)
                out.append(x)
                i += 1
                j += 1
        return out

    def looped(F, lab):
        def plist(pair):
            L = []
            for pp in range(8):
                if pair == 0:
                    L.append((F, 0, pp, 0, pp))
                else:
                    rel = pp - pair
                    L.append((F, 1 if rel >= 2 else 0, rel - 2 if rel >= 2 else rel, 0, rel))
            return L
        g = mkgen(plist(0))
        start(g)
        g.run(0, 2)
        g.boundary([0])
        g.skip_boundary = True
        g.wo_load()
        st()
        a.I("s_add_u32 s48, s48, 256")
        a.I("s_add_u32 s50, s50, s92")
        a.I("s_mov_b32 s44, 0")
        g.passes = plist(2)
        s1 = capture(lambda: g.run(2, 4))
        g.passes = plist(4)
        s2 = capture(lambda: g.run(4, 6))
        a.label(lab + "_loop")
        mg = merge(s1, s2)
        drop = os.environ.get("DROP", "").split(",")

        def keep(x):
            if x[0] != "i":
                return True
            tx = x[1].text
            if "dma" in drop and tx.endswith(" lds"):
                return False
            if "st" in drop and tx.startswith("buffer_store"):
                return False
            if "valu" in drop and x[1].cls == "valu":
                return False
            if "bar" in drop and tx == "s_barrier":
                return False
            if "rd" in drop and tx.startswith("ds_read"):
                return False
            if "vw" in drop and tx.startswith("s_waitcnt vm"):
                return False
            if "lw" in drop and tx.startswith("s_waitcnt lg"):
                return False
            return True
        a.items += [x for x in mg if keep(x)]
        if F == "K":
            a.I("s_cmp_eq_u32 s18, 10")
            a.I(f"s_cbranch_scc1 {N}_Ctail")
        a.I("s_mov_b32 s48, s53")
        a.I("s_mov_b32 s34, 0")
        a.I("s_add_u32 s50, s50, s92")
        a.I("s_add_u32 s44, s44, 1")
        a.I("s_cmp_lt_u32 s44, 2")
        a.I(f"s_cbranch_scc1 {lab}_loop")
        g.passes = plist(6)
        g.fin(5)
        return g

    a.I("s_cmp_eq_u32 s18, 31")
    a.I(f"s_cbranch_scc1 {N}_D")
    a.I("s_cmp_eq_u32 s41, 1")
    a.I(f"s_cbranch_scc1 {N}_B")
    looped("K", N + "_A")
    a.label(f"{N}_Ctail")
    gc = mkgen([("K", 0, pp, 0, pp) for pp in range(4)] + [("V", 1, 0, 1, 0), ("V", 1, 1, 1, 1)])
    capture(lambda: (start(gc), gc.run(0, 2), gc.wo_load(), gc.run(2, 4)))
    gc.passes[3] = ("K", 0, 1, 0, 1)
    st.n = stn + 5
    gc.run(4, 6)
    gc.fin(5)
    a.label(N + "_B")
    looped("V", N + "_B2")
    a.label(N + "_D")
    gd = mkgen([("V", 0, 0, 0, 0), ("V", 0, 1, 0, 1)] + [("K", 1, i, 1, i) for i in range(4)], 2)
    start(gd)
    gd.run(0, 2)
    st()
    gd.run(2, 5)
    gd.wo_load()
    gd.run(5, 6)
    gd.fin(5)
    kend(a, N)
    return a, N, (256, 512, 163840)


def gen_l3():
    a = Asm()
    N = "l3_kernel"
    kstart(a, N, 256)
    a.I("s_load_dwordx2 s[4:5], s[0:1], 88")
    a.I("s_load_dwordx2 s[8:9], s[0:1], 72")
    a.I("v_lshrrev_b32 v1, 6, v0")
    a.I("v_and_b32 v2, 255, v0")
    a.I("v_and_b32 v0, 63, v0")
    a.I("v_readfirstlane_b32 s17, v1")
    st = Stamper(a, "l3")
    WF, ACCS, RING, L16, LR, CMB = 128, [68, 84], 100, 124, 125, 127
    LOOK = 5
    a.I("s_bfe_u32 s40, s2, 0x20001")
    a.I("s_and_b32 s43, s2, 1")
    a.I("s_lshl_b32 s43, s43, 5")
    a.I("s_lshr_b32 s44, s2, 3")
    a.I("s_add_u32 s43, s43, s44")
    a.I("s_lshr_b32 s41, s43, 2")
    a.I("s_and_b32 s42, s43, 3")
    a.I("s_and_b32 s16, s17, 3")
    a.I("s_lshr_b32 s18, s17, 2")
    a.I(f"v_lshlrev_b32 {v(L16)}, 4, v0")
    a.I("s_lshl_b32 s45, s42, 1")
    a.I("s_lshr_b32 s46, s16, 1")
    a.I("s_add_u32 s45, s45, s46")
    a.I("s_lshl_b32 s45, s45, 19")
    a.I("s_lshl1_add_u32 s46, s40, s18")
    a.I("s_lshl_b32 s46, s46, 16")
    a.I("s_add_u32 s45, s45, s46")
    a.I("s_and_b32 s46, s16, 1")
    a.I("s_lshl_b32 s46, s46, 10")
    a.I("s_add_u32 s45, s45, s46")
    a.I(f"s_add_u32 s45, s45, {hex(WS_WO)}")
    a.I("s_lshl_b32 s47, s18, 15")
    a.I("s_lshl_b32 s48, s16, 10")
    a.I("s_add_u32 s47, s47, s48")
    a.I("s_lshl_b32 s46, s41, 20")
    a.I("s_lshl_b32 s48, s40, 16")
    a.I("s_add_u32 s46, s46, s48")
    a.I("s_add_u32 s46, s46, s47")
    a.I(f"s_add_u32 s46, s46, {hex(WS_CTX)}")
    a.I("s_lshl_b32 s48, s18, 15")
    a.I(f"v_add_u32 {v(LR)}, s48, {v(L16)}")
    a.I(f"v_add_u32 {v(LR + 1)}, 0x10000, {v(LR)}")
    a.I("s_lshl_b32 s48, s16, 12")
    a.I(f"s_add_u32 s48, s48, {131072}")
    a.I(f"v_add_u32 {v(CMB)}, s48, {v(L16)}")
    a.I("s_waitcnt lgkmcnt(0)")
    srd(a, 52, 4, 5, 64 * MB)
    st()
    vm, lg = VM(a), LG(a)

    def sub_off(n, dst):
        a.I(f"s_add_u32 {s(dst)}, s40, {n + 1}")
        a.I(f"s_and_b32 {s(dst)}, {s(dst)}, 3")
        a.I(f"s_lshl_b32 {s(dst)}, {s(dst)}, 18")
        a.I(f"s_add_u32 {s(dst)}, {s(dst)}, s46")

    for n in range(4):
        sub_off(n, 36 + n)

    def cdma(n, i):
        return [lambda: (a.I(f"s_add_u32 m0, s47, {(n & 1) * 65536 + i * 4096}"),
                         a.I(f"s_add_u32 s49, s{36 + n}, {i * 4096}"),
                         vm.issue(f"buffer_load_dwordx4 {v(L16)}, s[52:55], s49 offen lds", ("C", n, i // 2)))]

    def wload(g):
        def f():
            if g % 2 == 0 and g:
                a.I("s_add_u32 s45, s45, 4096")
            vm.issue(f"buffer_load_dwordx4 {v(WF + 4 * g, 4)}, {v(L16)}, s[52:55], s45 offen offset:{(g % 2) * 2048}", ("W", g))
        return [f]

    pend = []
    for c in range(4):
        for i in (2 * c, 2 * c + 1):
            pend += cdma(0, i) + cdma(1, i)
        for g in range(8 * c, 8 * c + 8):
            pend += wload(g)
    tags = []
    for c in range(4):
        tags += [("C", 0, c), ("C", 1, c)] * 2 + [("W", g) for g in range(8 * c, 8 * c + 8)]
    ptag = list(tags)

    def pump(k=1):
        for _ in range(k):
            if pend:
                pend.pop(0)()
                ptag.pop(0)

    def need(tg):
        while any(x in ptag for x in tg):
            pump()

    pump(PRE3)
    b3_loads(a, 8)
    srd(a, 56, 4, 5, 16 * MB, add=WS_PART)
    srd(a, 60, 4, 5, 64 * 128, add=WS_FLAG)
    a.I("s_lshl_b32 s64, s43, 7")
    a.I("s_lshl2_add_u32 s67, s40, s64")
    LA, LB_ = 28, 29
    a.I("s_lshl_b32 s48, s18, 16")
    a.I(f"v_add_u32 {v(LA)}, s48, {v(LR)}")
    a.I(f"v_xor_b32 {v(LB_)}, 0x10000, {v(LA)}")
    st()
    AC = [68, 84, 32]
    sched = []
    for g in range(32):
        sched += [(AC[0], LA, g), (AC[1], LB_, g)]
    sched += [(AC[2], LR, g) for g in range(32)] + [(AC[1], LR + 1, g) for g in range(32)]

    def read(i):
        lg.issue(f"ds_read_b128 {v(RING + 4 * (i % 6), 4)}, {v(sched[i][1])} offset:{sched[i][2] * 1024}", i)

    def sync(tg):
        need(tg)
        vm.wait(tg)
        a.I("s_barrier")

    TMP = 48

    def slot_calc(own_expr):
        a.I(own_expr)
        a.I("s_and_b32 s50, s50, 3")
        a.I("s_lshl2_add_u32 s50, s43, s50")
        a.I("s_lshl2_add_u32 s50, s50, s40")
        a.I("s_lshl2_add_u32 s50, s50, s16")
        a.I("s_lshl_b32 s50, s50, 12")

    def give_l(A, addr, off):
        for q in range(4):
            a.I(f"ds_write_b128 {v(addr)}, {v(A + 4 * q, 4)} offset:{off + q * 1024}")

    def take_l(A, addr, off, model=False):
        for q in range(4):
            a.I(f"ds_read_b128 {v(TMP + 4 * q, 4)}, {v(addr)} offset:{off + q * 1024}")
        a.I("s_waitcnt lgkmcnt(0)")
        for j in range(16):
            a.I(f"v_add_f32 {v(A + j)}, {v(A + j)}, {v(TMP + j)}")
        for q in range(4):
            x = f"buffer_store_dwordx4 {v(A + 4 * q, 4)}, {v(L16)}, s[56:59], s50 offen offset:{q * 1024} sc1"
            vm.issue(x, "P") if model else a.I(x)

    def give(n):
        lab = a.uid(f"{N}_g")
        a.I(f"s_cmp_eq_u32 s18, {n & 1}")
        a.I(f"s_cbranch_scc1 {lab}")
        give_l(AC[2] if n == 2 else AC[1], CMB, (n & 1) * 16384)
        a.label(lab)
        a.I("s_waitcnt lgkmcnt(0)")
        lg.q = []

    sync([("C", 0, 0), ("C", 1, 0)])
    st()
    for i in range(LOOK):
        read(i)
    for i in range(128):
        ac, _, g = sched[i]
        lg.wait(i)
        if i < 64:
            need([("W", g)])
            vm.wait(("W", g))
        first = g == 0
        a.I(f"{MF} {v(ac, 16)}, {v(WF + 4 * g, 4)}, {v(RING + 4 * (i % 6), 4)}, {'0' if first else v(ac, 16)}")
        j = i + LOOK
        if j < 128:
            if j < 64 and j % 16 == 0:
                c = j // 16
                sync([("C", 0, c), ("C", 1, c)])
                if c >= 2:
                    for n in (2, 3):
                        for k in (2 * (c - 2), 2 * (c - 2) + 1):
                            pend.extend(cdma(n, k))
                            ptag.append(("C", n, c - 2))
            elif j >= 64 and j % 16 == 0:
                sync([("C", j // 32, (j % 32) // 8 + c) for c in range(2)])
            read(j)
        if i in (31, 63, 75, 95, 107):
            st()
        if j == 64:
            for n in (2, 3):
                for k in (4, 5):
                    pend.extend(cdma(n, k))
                    ptag.append(("C", n, 2))
        if i == 64 + 5:
            a.I("s_lshl_b32 s48, s18, 14")
            a.I(f"v_add_u32 v30, s48, {v(CMB)}")
            a.I("v_xor_b32 v31, 0x4000, v30")
            give_l(AC[1], 31, 0)
            a.I("s_add_u32 s51, s18, 1")
            slot_calc("s_add_u32 s50, s40, s51")
            a.I("s_waitcnt lgkmcnt(0)")
            lg.q = []
            a.I("s_barrier")
            for n in (2, 3):
                for k in (6, 7):
                    pend.extend(cdma(n, k))
                    ptag.append(("C", n, 3))
            need([("C", 3, 3)])
            take_l(AC[0], 30, 0, True)
        if i == 96 + 5:
            vm.wait([("C", 3, 2), ("C", 3, 3)])
            give(2)
            a.I("s_barrier")
            a.I("s_cmp_lg_u32 s18, 0")
            a.I(f"s_cbranch_scc1 {N}_t2")
            slot_calc("s_add_u32 s50, s40, 3")
            take_l(AC[2], CMB, 0)
            a.label(f"{N}_t2")
        pump(2 if i < 64 else 1)
    st()
    LW = 32768
    a.I("v_mov_b32 v1, 0")
    a.I("v_mov_b32 v30, %d" % LW)
    a.I("ds_write_b32 v30, v1")
    a.I("v_mov_b32 v1, 1")
    a.I("s_nop 7")
    give(3)
    a.I("s_waitcnt vmcnt(0)")
    a.I("s_barrier")
    a.I("s_cmp_eq_u32 s18, 1")
    a.I(f"s_cbranch_scc1 {N}_fin")
    a.I("s_cmp_lg_u32 s17, 0")
    a.I(f"s_cbranch_scc1 {N}_nosig")
    a.I("s_mov_b64 exec, 1")
    a.I("buffer_store_dword v1, off, s[60:63], s67 sc1")
    a.I("s_mov_b64 exec, -1")
    a.label(f"{N}_nosig")
    b3_body(a, 0, 8, loaded=True)
    a.I("s_endpgm")
    a.label(f"{N}_fin")
    A = ACCS[1]
    a.I("s_lshl2_add_u32 s50, s43, s40")
    a.I("s_lshl_b32 s50, s50, 4")
    a.I("s_add_u32 s50, s50, s16")
    a.I("s_lshl_b32 s50, s50, 12")
    a.I("v_and_b32 v3, 31, v0")
    a.I("v_lshlrev_b32 v3, 11, v3")
    a.I("v_lshrrev_b32 v4, 5, v0")
    a.I("v_lshl_add_u32 v3, v4, 4, v3")
    a.I("s_lshl2_add_u32 s65, s41, s40")
    a.I("s_lshl_b32 s65, s65, 16")
    a.I("s_lshl_b32 s66, s42, 8")
    a.I("s_add_u32 s65, s65, s66")
    a.I("s_lshl_b32 s66, s16, 6")
    a.I("s_add_u32 s65, s65, s66")
    srd(a, 52, 8, 9, 4 * MB)
    a.I(f"v_mov_b32 v5, {LW}")
    for q in range(4):
        a.I(f"ds_read_b128 {v(WF + 4 * q, 4)}, {v(CMB)} offset:{16384 + q * 1024}")
    POLL = os.environ.get("POLL", "1")
    if POLL == "1":
        a.I("s_cmp_lg_u32 s17, 4")
        a.I(f"s_cbranch_scc1 {N}_lspin")
    a.label(f"{N}_spin")
    a.I("buffer_load_dwordx4 v[4:7], off, s[60:63], s64 sc1")
    a.I("s_waitcnt vmcnt(0)")
    a.I("v_and_b32 v4, v4, v5")
    a.I("v_and_b32 v6, v6, v7")
    a.I("v_and_b32 v4, v4, v6")
    a.I("s_nop 0")
    a.I("v_readfirstlane_b32 s66, v4")
    a.I("s_nop 0")
    a.I("s_cmp_eq_u32 s66, 1")
    a.I(f"s_cbranch_scc1 {N}_got")
    a.I("s_sleep 2")
    a.I(f"s_branch {N}_spin")
    if POLL == "1":
        a.label(f"{N}_lspin")
        a.I("ds_read_b32 v4, v5")
        a.I("s_waitcnt lgkmcnt(0)")
        a.I("v_readfirstlane_b32 s66, v4")
        a.I("s_nop 0")
        a.I("s_cmp_eq_u32 s66, 1")
        a.I(f"s_cbranch_scc1 {N}_got2")
        a.I("s_sleep 1")
        a.I(f"s_branch {N}_lspin")
    a.label(f"{N}_got")
    if POLL == "1":
        a.I(f"v_mov_b32 v5, {LW}")
        a.I("ds_write_b32 v5, v1")
        a.label(f"{N}_got2")
    st()
    for k in range(1, 4):
        a.I(f"s_add_u32 s66, s40, {k}")
        a.I("s_and_b32 s66, s66, 3")
        a.I("s_lshl_b32 s66, s66, 14")
        a.I("s_add_u32 s66, s66, s50")
        for q in range(4):
            a.I(f"buffer_load_dwordx4 {v(WF + 16 * k + 4 * q, 4)}, {v(L16)}, s[56:59], s66 offen offset:{q * 1024} sc1")
    a.I("s_waitcnt lgkmcnt(0)")
    a.I("s_barrier")
    for k in range(4):
        if k:
            a.I(f"s_waitcnt vmcnt({4 * (3 - k)})")
        for j in range(16):
            a.I(f"v_add_f32 {v(A + j)}, {v(A + j)}, {v(WF + 16 * k + j)}")
    pack(a, 8, A, 8)
    a.I("s_nop 1")
    for h in range(2):
        a.I(f"v_permlane32_swap_b32 {v(8 + 4 * h)}, {v(10 + 4 * h)}")
        a.I(f"v_permlane32_swap_b32 {v(9 + 4 * h)}, {v(11 + 4 * h)}")
        a.I(f"buffer_store_dwordx4 {v(8 + 4 * h, 4)}, v3, s[52:55], s65 offen offset:{32 * h}")
    st.dump(17, 4, tmpv=16)
    kend(a, N)
    return a, N, (256, 512, 163840)


def gen_l3v3():
    a = Asm()
    N = "l3_kernel"
    kstart(a, N, 256)
    a.I("s_load_dwordx2 s[4:5], s[0:1], 88")
    a.I("s_load_dwordx2 s[8:9], s[0:1], 72")
    a.I("v_lshrrev_b32 v1, 6, v0")
    a.I("v_and_b32 v2, 255, v0")
    a.I("v_and_b32 v0, 63, v0")
    a.I("v_readfirstlane_b32 s17, v1")
    st = Stamper(a, "l3")
    WF, ACCS, RING, L16, LR, CMB = 128, [68, 84], 100, 124, 125, 127
    LOOK = 5
    a.I("s_bfe_u32 s40, s2, 0x20001")
    a.I("s_and_b32 s43, s2, 1")
    a.I("s_lshl_b32 s43, s43, 5")
    a.I("s_lshr_b32 s44, s2, 3")
    a.I("s_add_u32 s43, s43, s44")
    a.I("s_lshr_b32 s41, s43, 2")
    a.I("s_and_b32 s42, s43, 3")
    a.I("s_and_b32 s16, s17, 3")
    a.I("s_lshr_b32 s18, s17, 2")
    a.I(f"v_lshlrev_b32 {v(L16)}, 4, v0")
    a.I("s_lshl_b32 s45, s42, 1")
    a.I("s_lshr_b32 s46, s16, 1")
    a.I("s_add_u32 s45, s45, s46")
    a.I("s_lshl_b32 s45, s45, 19")
    a.I("s_lshl1_add_u32 s46, s40, s18")
    a.I("s_lshl_b32 s46, s46, 16")
    a.I("s_add_u32 s45, s45, s46")
    a.I("s_and_b32 s46, s16, 1")
    a.I("s_lshl_b32 s46, s46, 10")
    a.I("s_add_u32 s45, s45, s46")
    a.I(f"s_add_u32 s45, s45, {hex(WS_WO)}")
    a.I("s_lshl_b32 s47, s18, 15")
    a.I("s_lshl_b32 s48, s16, 10")
    a.I("s_add_u32 s47, s47, s48")
    a.I("s_lshl_b32 s46, s41, 20")
    a.I("s_lshl_b32 s48, s40, 16")
    a.I("s_add_u32 s46, s46, s48")
    a.I("s_add_u32 s46, s46, s47")
    a.I(f"s_add_u32 s46, s46, {hex(WS_CTX)}")
    a.I("s_lshl_b32 s47, s18, 13")
    a.I("s_lshl_b32 s48, s16, 10")
    a.I("s_add_u32 s47, s47, s48")
    a.I("s_lshl_b32 s48, s18, 13")
    a.I(f"v_add_u32 {v(LR)}, s48, {v(L16)}")
    a.I(f"v_add_u32 {v(LR + 1)}, 0x10000, {v(LR)}")
    a.I("s_lshl_b32 s48, s16, 12")
    a.I(f"v_add_u32 {v(CMB)}, s48, {v(L16)}")
    a.I("s_waitcnt lgkmcnt(0)")
    srd(a, 52, 4, 5, 64 * MB)
    st()
    vm, lg = VM(a), LG(a)

    def sub_off(n, dst):
        a.I(f"s_add_u32 {s(dst)}, s40, {n + 1}")
        a.I(f"s_and_b32 {s(dst)}, {s(dst)}, 3")
        a.I(f"s_lshl_b32 {s(dst)}, {s(dst)}, 18")
        a.I(f"s_add_u32 {s(dst)}, {s(dst)}, s46")

    PB16 = int(os.environ.get("PB16", "1"))
    for n in range(4):
        sub_off(n, 36 + n)

    def cslot(n, c):
        return (n * 2 + c % 2) * 16384 if n < 3 else 98304 + c * 16384

    pend, ptag = [], []

    def cdma(n, i):
        pend.append(lambda: (a.I(f"s_add_u32 m0, s47, {cslot(n, i // 2) + (i % 2) * 4096}"),
                             a.I(f"s_add_u32 s49, s{36 + n}, {i * 4096}"),
                             vm.issue(f"buffer_load_dwordx4 {v(L16)}, s[52:55], s49 offen lds", ("C", n, i // 2))))
        ptag.append(("C", n, i // 2))

    def wload(g):
        def f():
            if g % 2 == 0 and g:
                a.I("s_add_u32 s45, s45, 4096")
            vm.issue(f"buffer_load_dwordx4 {v(WF + 4 * g, 4)}, {v(L16)}, s[52:55], s45 offen offset:{(g % 2) * 2048}", ("W", g))
        pend.append(f)
        ptag.append(("W", g))

    def pump(k=1):
        for _ in range(k):
            if pend:
                pend.pop(0)()
                ptag.pop(0)

    def need(tg):
        while any(x in ptag for x in tg):
            pump()

    for c in range(2):
        for n in range(3):
            cdma(n, 2 * c)
            cdma(n, 2 * c + 1)
        for g in range(8 * c, 8 * c + 8):
            wload(g)
    for g in range(16, 24):
        wload(g)
    pump(PRE3)
    srd(a, 56, 4, 5, 16 * MB, add=WS_PART)
    srd(a, 60, 4, 5, 64 * 128, add=WS_FLAG)
    a.I("s_lshl_b32 s64, s43, 7")
    a.I("s_lshl2_add_u32 s67, s40, s64")
    LA, LB_, LO = 28, 29, 30
    a.I("s_lshl_b32 s48, s18, 15")
    a.I(f"v_add_u32 {v(LA)}, s48, {v(LR)}")
    a.I(f"v_xor_b32 {v(LB_)}, 0x8000, {v(LA)}")
    a.I(f"v_add_u32 {v(LO)}, {98304}, {v(LR)}")
    st()
    AC = [68, 84, 32]
    sched = []
    for g in range(32):
        o = ((g // 8) % 2) * 16384 + (g % 8) * 1024
        sched += [(AC[0], LA, o, g), (AC[1], LB_, o, g), (AC[2], LR + 1, o, g)]
    OWN = 48
    sched += [(OWN, LO, (g // 8) * 16384 + (g % 8) * 1024, g) for g in range(32)]

    def read(i):
        lg.issue(f"ds_read_b128 {v(RING + 4 * (i % 6), 4)}, {v(sched[i][1])} offset:{sched[i][2]}", i)

    def sync(tg):
        need(tg)
        vm.wait(tg)
        a.I("s_barrier")

    def slot_calc(dst, own_expr):
        a.I(own_expr)
        a.I(f"s_and_b32 {s(dst)}, {s(dst)}, 3")
        a.I(f"s_lshl2_add_u32 {s(dst)}, s43, {s(dst)}")
        a.I(f"s_lshl2_add_u32 {s(dst)}, {s(dst)}, s40")
        a.I(f"s_lshl2_add_u32 {s(dst)}, {s(dst)}, s16")
        a.I(f"s_lshl_b32 {s(dst)}, {s(dst)}, 12")

    def give_l(A, addr, off):
        for q in range(4):
            a.I(f"ds_write_b128 {v(addr)}, {v(A + 4 * q, 4)} offset:{off + q * 1024}")

    def take_l(A, T, addr, off, so):
        for q in range(4):
            a.I(f"ds_read_b128 {v(T + 4 * q, 4)}, {v(addr)} offset:{off + q * 1024}")
        a.I("s_waitcnt lgkmcnt(0)")
        for j in range(16):
            a.I(f"v_add_f32 {v(A + j)}, {v(A + j)}, {v(T + j)}")
        if PB16:
            pack(a, T, A, 8)
            for q in range(2):
                a.I(f"buffer_store_dwordx4 {v(T + 4 * q, 4)}, {v(L16)}, s[56:59], {s(so)} offen offset:{q * 1024} sc1")
        else:
            for q in range(4):
                a.I(f"buffer_store_dwordx4 {v(A + 4 * q, 4)}, {v(L16)}, s[56:59], {s(so)} offen offset:{q * 1024} sc1")

    sync([("C", n, 0) for n in range(3)])
    st()
    for i in range(LOOK):
        read(i)
    NM = 128
    for i in range(NM):
        ac, _, _, g = sched[i]
        lg.wait(i)
        if i < 96:
            need([("W", g)])
            vm.wait(("W", g))
        a.I(f"{MF} {v(ac, 16)}, {v(WF + 4 * g, 4)}, {v(RING + 4 * (i % 6), 4)}, {'0' if g == 0 else v(ac, 16)}")
        j = i + LOOK
        if j < NM:
            if j < 96 and j % 24 == 0:
                sync([("C", n, j // 24) for n in range(3)])
            elif j == 96:
                sync([("C", 3, c) for c in range(4)])
            read(j)
        if i in (25, 49):
            c = i // 24
            a.I("s_barrier")
            for n in range(3):
                cdma(n, 2 * (c + 1))
                cdma(n, 2 * (c + 1) + 1)
            if c == 1:
                for g2 in range(24, 32):
                    wload(g2)
            else:
                for k in range(8):
                    cdma(3, k)
        if i == B3AT:
            n0 = len(a.items)
            b3_loads(a, 8, before=lambda: (a.I("s_cmp_lg_u32 s18, 0"), a.I(f"s_cbranch_scc1 {N}_nb3l")))
            a.items[n0:] = [x for x in a.items[n0:] if not (x[0] == "i" and x[1].text == "s_waitcnt lgkmcnt(0)")]
            a.label(f"{N}_nb3l")
        if i in (47, 95, 107):
            st()
        if i == 96 + 4:
            a.I("s_lshl_b32 s48, s18, 15")
            a.I(f"v_add_u32 {v(LA)}, s48, {v(CMB)}")
            a.I(f"v_xor_b32 {v(LB_)}, 0x8000, {v(LA)}")
            a.I(f"v_add_u32 v31, 0x10000, {v(CMB)}")
            give_l(AC[1], LB_, 0)
            a.I("s_cmp_eq_u32 s18, 0")
            a.I(f"s_cbranch_scc1 {N}_g2")
            give_l(AC[2], 31, 0)
            a.label(f"{N}_g2")
            a.I("s_add_u32 s51, s18, 1")
            slot_calc(50, "s_add_u32 s50, s40, s51")
            slot_calc(51, "s_add_u32 s51, s40, 3")
            a.I("s_waitcnt lgkmcnt(0)")
            lg.q = []
            a.I("s_barrier")
            take_l(AC[0], AC[1], LA, 0, 50)
            a.I("s_cmp_lg_u32 s18, 0")
            a.I(f"s_cbranch_scc1 {N}_t2")
            take_l(AC[2], AC[0], 31, 0, 51)
            a.label(f"{N}_t2")
        if i == SIG3:
            a.I("v_mov_b32 v1, 1")
            a.I("s_waitcnt vmcnt(0)")
            a.I("s_barrier")
            a.I("s_cmp_lg_u32 s17, 0")
            a.I(f"s_cbranch_scc1 {N}_nosig")
            a.I("s_mov_b64 exec, 1")
            a.I("buffer_store_dword v1, off, s[60:63], s67 sc1")
            a.I("s_mov_b64 exec, -1")
            a.label(f"{N}_nosig")
        pump(2 if i < 96 else 1)

    def give(n):
        lab = a.uid(f"{N}_g")
        a.I("s_cmp_eq_u32 s18, 1")
        a.I(f"s_cbranch_scc1 {lab}")
        give_l(OWN, CMB, 49152)
        a.label(lab)
        a.I("s_waitcnt lgkmcnt(0)")

    st()
    LW = 65536 + 16384
    a.I("v_mov_b32 v1, 0")
    a.I("v_mov_b32 v30, %d" % LW)
    a.I("ds_write_b32 v30, v1")
    a.I("v_mov_b32 v1, 1")
    a.I("s_nop 7")
    give(3)
    a.I("s_barrier")
    a.I("s_cmp_eq_u32 s18, 1")
    a.I(f"s_cbranch_scc1 {N}_fin")
    b3_body(a, 65536, 8, loaded=True)
    a.I("s_endpgm")
    a.label(f"{N}_fin")
    A = OWN
    a.I("s_lshl2_add_u32 s50, s43, s40")
    a.I("s_lshl_b32 s50, s50, 4")
    a.I("s_add_u32 s50, s50, s16")
    a.I("s_lshl_b32 s50, s50, 12")
    a.I("v_and_b32 v3, 31, v0")
    a.I("v_lshlrev_b32 v3, 11, v3")
    a.I("v_lshrrev_b32 v4, 5, v0")
    a.I("v_lshl_add_u32 v3, v4, 4, v3")
    a.I("s_lshl2_add_u32 s65, s41, s40")
    a.I("s_lshl_b32 s65, s65, 16")
    a.I("s_lshl_b32 s66, s42, 8")
    a.I("s_add_u32 s65, s65, s66")
    a.I("s_lshl_b32 s66, s16, 6")
    a.I("s_add_u32 s65, s65, s66")
    srd(a, 52, 8, 9, 4 * MB)
    a.I(f"v_mov_b32 v5, {LW}")
    for q in range(4):
        a.I(f"ds_read_b128 {v(WF + 4 * q, 4)}, {v(CMB)} offset:{49152 + q * 1024}")
    POLL = os.environ.get("POLL", "1")
    if POLL == "1":
        a.I("s_cmp_lg_u32 s17, 4")
        a.I(f"s_cbranch_scc1 {N}_lspin")
    a.label(f"{N}_spin")
    a.I("buffer_load_dwordx4 v[4:7], off, s[60:63], s64 sc1")
    a.I("s_waitcnt vmcnt(0)")
    a.I("v_and_b32 v4, v4, v5")
    a.I("v_and_b32 v6, v6, v7")
    a.I("v_and_b32 v4, v4, v6")
    a.I("s_nop 0")
    a.I("v_readfirstlane_b32 s66, v4")
    a.I("s_nop 0")
    a.I("s_cmp_eq_u32 s66, 1")
    a.I(f"s_cbranch_scc1 {N}_got")
    a.I("s_sleep 2")
    a.I(f"s_branch {N}_spin")
    if POLL == "1":
        a.label(f"{N}_lspin")
        a.I("ds_read_b32 v4, v5")
        a.I("s_waitcnt lgkmcnt(0)")
        a.I("v_readfirstlane_b32 s66, v4")
        a.I("s_nop 0")
        a.I("s_cmp_eq_u32 s66, 1")
        a.I(f"s_cbranch_scc1 {N}_got2")
        a.I("s_sleep 1")
        a.I(f"s_branch {N}_lspin")
    a.label(f"{N}_got")
    if POLL == "1":
        a.I(f"v_mov_b32 v5, {LW}")
        a.I("ds_write_b32 v5, v1")
        a.label(f"{N}_got2")
    st()
    for k in range(1, 4):
        a.I(f"s_add_u32 s66, s40, {k}")
        a.I("s_and_b32 s66, s66, 3")
        a.I("s_lshl_b32 s66, s66, 14")
        a.I("s_add_u32 s66, s66, s50")
        for q in range(2 if PB16 else 4):
            a.I(f"buffer_load_dwordx4 {v(WF + 16 * k + 4 * q, 4)}, {v(L16)}, s[56:59], s66 offen offset:{q * 1024} sc1")
    a.I("s_waitcnt lgkmcnt(0)")
    a.I("s_barrier")
    for k in range(4):
        if k:
            a.I(f"s_waitcnt vmcnt({(2 if PB16 else 4) * (3 - k)})")
        for j in range(16):
            if PB16 and k:
                if j & 1:
                    a.I(f"v_and_b32 v64, 0xffff0000, {v(WF + 16 * k + j // 2)}")
                else:
                    a.I(f"v_lshlrev_b32 v64, 16, {v(WF + 16 * k + j // 2)}")
                a.I(f"v_add_f32 {v(A + j)}, {v(A + j)}, v64")
            else:
                a.I(f"v_add_f32 {v(A + j)}, {v(A + j)}, {v(WF + 16 * k + j)}")
    pack(a, 8, A, 8)
    a.I("s_nop 1")
    for h in range(2):
        a.I(f"v_permlane32_swap_b32 {v(8 + 4 * h)}, {v(10 + 4 * h)}")
        a.I(f"v_permlane32_swap_b32 {v(9 + 4 * h)}, {v(11 + 4 * h)}")
        a.I(f"buffer_store_dwordx4 {v(8 + 4 * h, 4)}, v3, s[52:55], s65 offen offset:{32 * h}")
    st.dump(17, 4, tmpv=16)
    kend(a, N)
    return a, N, (256, 512, 163840)


def gen_l3_s4():
    a = Asm()
    N = "l3_kernel"
    kstart(a, N, 256)
    a.I("s_load_dwordx2 s[4:5], s[0:1], 88")
    a.I("s_load_dwordx2 s[8:9], s[0:1], 72")
    a.I("v_lshrrev_b32 v1, 6, v0")
    a.I("v_and_b32 v0, 63, v0")
    a.I("s_nop 0")
    a.I("v_readfirstlane_b32 s17, v1")
    st = Stamper(a, "l3")
    L16, RA, RB_, ACC, FR = 128, 129, 130, 132, 164
    PB16 = int(os.environ.get("PB16", "0"))
    NST, STG = 4, 4
    a.I("s_bfe_u32 s40, s2, 0x20001")
    a.I("s_and_b32 s43, s2, 1")
    a.I("s_lshl_b32 s43, s43, 5")
    a.I("s_lshr_b32 s44, s2, 3")
    a.I("s_add_u32 s43, s43, s44")
    a.I("s_lshr_b32 s41, s43, 2")
    a.I("s_and_b32 s42, s43, 3")
    a.I(f"v_lshlrev_b32 {v(L16)}, 4, v0")
    a.I("s_lshl_b32 s45, s41, 2")
    a.I("s_add_u32 s45, s45, s17")
    a.I("s_lshl_b32 s45, s45, 18")
    a.I("s_lshl_b32 s46, s40, 16")
    a.I("s_add_u32 s45, s45, s46")
    a.I(f"s_add_u32 s45, s45, {hex(WS_CTX)}")
    a.I("s_lshl_b32 s46, s42, 1")
    a.I("s_bfe_u32 s47, s17, 0x10001")
    a.I("s_add_u32 s46, s46, s47")
    a.I("s_lshl_b32 s46, s46, 19")
    a.I("s_lshl_b32 s47, s40, 17")
    a.I("s_add_u32 s46, s46, s47")
    a.I("s_and_b32 s47, s17, 1")
    a.I("s_lshl_b32 s47, s47, 10")
    a.I("s_add_u32 s46, s46, s47")
    a.I(f"s_add_u32 s46, s46, {hex(WS_WO)}")
    a.I("s_cmp_lt_u32 s17, 4")
    a.I("s_cselect_b32 s45, s45, s46")
    a.I("s_movk_i32 s46, 0x800")
    a.I("s_cselect_b32 s46, 1024, s46")
    a.I("s_lshl_b32 s47, s17, 10")
    a.I("s_and_b32 s48, s17, 1")
    a.I("s_lshl_b32 s48, s48, 11")
    a.I(f"v_add_u32 {v(RA)}, s48, {v(L16)}")
    a.I("s_lshr_b32 s48, s17, 1")
    a.I("s_lshl_b32 s48, s48, 10")
    a.I("s_add_u32 s48, s48, 4096")
    a.I(f"v_add_u32 {v(RB_)}, s48, {v(L16)}")
    a.I(f"v_add_u32 {v(RB_ + 1)}, 0x10000, {v(RA)}")
    a.I(f"v_add_u32 v127, 0x10000, {v(RB_)}") if False else None
    a.I("s_waitcnt lgkmcnt(0)")
    srd(a, 52, 4, 5, 64 * MB)
    st()
    vm, lg = VM(a), LG(a)

    def dma(g, emit=True):
        L = [lambda: a.I(f"s_add_u32 m0, s47, {(g % (NST * STG)) * 8192}"),
             lambda: a.I("s_add_u32 s49, s45, s46") if False else a.I("s_nop 0"),
             lambda: vm.issue(f"buffer_load_dwordx4 {v(L16)}, s[52:55], s45 offen lds", g),
             lambda: a.I("s_add_u32 s45, s45, s46")]
        return L

    def first_loads():
        for g in range((NST - 1) * STG):
            for f in dma(g):
                f()
        return (NST - 1) * STG

    first_loads()
    a.I("s_and_b32 s18, s17, 1")
    a.I("s_lshr_b32 s19, s40, 1")
    a.I("s_cmp_eq_u32 s18, s19")
    a.I("s_cselect_b32 s18, 1, 0")
    a.I("s_lshr_b32 s16, s17, 1")
    a.I("s_lshl_b32 s19, s16, 6")
    a.I("v_add_u32 v2, s19, v0")
    a.I("s_cmp_eq_u32 s18, 1")
    a.I(f"s_cbranch_scc1 {N}_nob3l")
    b3_loads(a, 8)
    a.label(f"{N}_nob3l")
    st()
    RA2, RB2 = RB_ + 1, 127
    a.I(f"v_add_u32 {v(RB2)}, 0x10000, {v(RB_)}")
    NG = 64

    def reads(g):
        sl = g % (NST * STG)
        ra, rb = (RA, RB_) if sl < 8 else (RA2, RB2)
        off = (sl % 8) * 8192
        d = FR + 12 * (g % 3)
        lg.issue(f"ds_read_b128 {v(d, 4)}, {v(rb)} offset:{off}", g)
        lg.issue(f"ds_read_b128 {v(d + 4, 4)}, {v(ra)} offset:{off}", g)
        lg.issue(f"ds_read_b128 {v(d + 8, 4)}, {v(ra)} offset:{off + 1024}", g)

    pend = []

    def sync(stg):
        vm.wait(list(range(stg * STG, (stg + 1) * STG)))
        a.I("s_barrier")
        nxt = stg + NST - 2
        if stg >= 1 and (nxt + 1) * STG <= NG and nxt >= NST - 1:
            for g in range(nxt * STG, (nxt + 1) * STG):
                pend.extend(dma(g))

    sync(0)
    st()
    reads(0)
    reads(1)
    for g in range(NG):
        j = g + 2
        if j < NG and j % STG == 0:
            while pend:
                pend.pop(0)()
            sync(j // STG)
        lg.wait(g)
        d = FR + 12 * (g % 3)
        for i in range(2):
            acc = v(ACC + 16 * i, 16)
            a.I(f"{MF} {acc}, {v(d, 4)}, {v(d + 4 + 4 * i, 4)}, {'0' if g == 0 else acc}")
            if i == 0 and j < NG:
                reads(j)
            for _ in range(2 + i):
                if pend:
                    pend.pop(0)()
    st()
    srd(a, 56, 4, 5, 16 * MB, add=WS_PART)
    a.I("s_lshr_b32 s48, s17, 1")
    a.I("s_and_b32 s49, s17, 1")
    a.I("s_lshl_b32 s50, s43, 2")
    a.I("s_lshl1_add_u32 s50, s49, s50")
    a.I("s_lshl_b32 s50, s50, 2")
    a.I("s_add_u32 s50, s50, s40")
    a.I("s_lshl_b32 s50, s50, 2")
    a.I("s_add_u32 s50, s50, s48")
    a.I("s_lshl_b32 s50, s50, 12")
    a.I("s_add_u32 s51, s50, 0x10000")
    a.I("s_lshl_b32 s49, s49, 1")
    for i in range(2):
        lab = f"{N}_keep{i}"
        a.I("s_cmp_eq_u32 s49, s40")
        a.I(f"s_cbranch_scc1 {lab}")
        if PB16:
            pack(a, FR + 8 * i, ACC + 16 * i, 8)
            for q in range(2):
                a.I(f"buffer_store_dwordx4 {v(FR + 8 * i + 4 * q, 4)}, {v(L16)}, s[56:59], s{50 + i} offen offset:{q * 1024} sc1")
        else:
            for q in range(4):
                a.I(f"buffer_store_dwordx4 {v(ACC + 16 * i + 4 * q, 4)}, {v(L16)}, s[56:59], s{50 + i} offen offset:{q * 1024} sc1")
        a.label(lab)
        a.I("s_add_u32 s49, s49, 1")
    srd(a, 60, 4, 5, 64 * 128, add=WS_FLAG)
    a.I("s_lshl_b32 s64, s43, 7")
    a.I("s_lshl2_add_u32 s67, s40, s64")

    def signal():
        a.I("v_mov_b32 v1, 1")
        a.I("s_waitcnt vmcnt(0)")
        a.I("s_barrier")
        a.I("s_cmp_lg_u32 s17, 7")
        lab = a.uid(f"{N}_nosig")
        a.I(f"s_cbranch_scc1 {lab}")
        a.I("s_mov_b64 exec, 1")
        a.I("buffer_store_dword v1, off, s[60:63], s67 sc1")
        a.I("s_mov_b64 exec, -1")
        a.label(lab)

    a.I("s_cmp_eq_u32 s18, 1")
    a.I(f"s_cbranch_scc1 {N}_nob3")
    b3_body(a, 131072, 8, loaded=True, mid=signal)
    a.I("s_endpgm")
    a.label(f"{N}_nob3")
    a.I("s_bitcmp0_b32 s40, 0")
    a.I(f"s_cbranch_scc1 {N}_own0")
    for j in range(16):
        a.I(f"v_mov_b32 {v(ACC + j)}, {v(ACC + 16 + j)}")
    a.label(f"{N}_own0")
    a.I("s_lshl_b32 s50, s43, 2")
    a.I("s_add_u32 s50, s50, s40")
    a.I("s_lshl_b32 s50, s50, 4")
    a.I("s_add_u32 s50, s50, s48")
    a.I("s_lshl_b32 s50, s50, 12")
    a.I("v_and_b32 v3, 31, v0")
    a.I("v_lshlrev_b32 v3, 11, v3")
    a.I("v_lshrrev_b32 v4, 5, v0")
    a.I("v_lshl_add_u32 v3, v4, 4, v3")
    a.I("s_lshl_b32 s65, s41, 2")
    a.I("s_add_u32 s65, s65, s40")
    a.I("s_lshl_b32 s65, s65, 16")
    a.I("s_lshl_b32 s66, s42, 8")
    a.I("s_add_u32 s65, s65, s66")
    a.I("s_lshl_b32 s66, s48, 6")
    a.I("s_add_u32 s65, s65, s66")
    srd(a, 52, 8, 9, 4 * MB)
    signal()
    a.I("s_barrier")
    st()
    a.label(f"{N}_spin")
    a.I("buffer_load_dwordx4 v[4:7], off, s[60:63], s64 sc1")
    a.I("s_waitcnt vmcnt(0)")
    a.I("v_and_b32 v4, v4, v5")
    a.I("v_and_b32 v6, v6, v7")
    a.I("v_and_b32 v4, v4, v6")
    a.I("s_nop 0")
    a.I("v_readfirstlane_b32 s66, v4")
    a.I("s_nop 0")
    a.I("s_cmp_lg_u32 s66, 1")
    a.I(f"s_cbranch_scc1 {N}_spin")
    st()
    for k in range(1, 4):
        a.I(f"s_add_u32 s66, s40, {k}")
        a.I("s_and_b32 s66, s66, 3")
        a.I("s_lshl_b32 s66, s66, 14")
        a.I("s_add_u32 s66, s66, s50")
        for q in range(2 if PB16 else 4):
            a.I(f"buffer_load_dwordx4 {v(16 * k + 4 * q, 4)}, {v(L16)}, s[56:59], s66 offen offset:{q * 1024} sc1")
    for k in range(1, 4):
        a.I(f"s_waitcnt vmcnt({(2 if PB16 else 4) * (3 - k)})")
        for j in range(16):
            if PB16:
                if j & 1:
                    a.I(f"v_and_b32 v64, 0xffff0000, {v(16 * k + j // 2)}")
                else:
                    a.I(f"v_lshlrev_b32 v64, 16, {v(16 * k + j // 2)}")
                a.I(f"v_add_f32 {v(ACC + j)}, {v(ACC + j)}, v64")
            else:
                a.I(f"v_add_f32 {v(ACC + j)}, {v(ACC + j)}, {v(16 * k + j)}")
    pack(a, 8, ACC, 8)
    a.I("s_nop 1")
    for h in range(2):
        a.I(f"v_permlane32_swap_b32 {v(8 + 4 * h)}, {v(10 + 4 * h)}")
        a.I(f"v_permlane32_swap_b32 {v(9 + 4 * h)}, {v(11 + 4 * h)}")
        a.I(f"buffer_store_dwordx4 {v(8 + 4 * h, 4)}, v3, s[52:55], s65 offen offset:{32 * h}")
    st.dump(17, 4, tmpv=16)
    kend(a, N)
    return a, N, (256, 512, 131072 + 8192 + 64)


def gen_l3_old():
    a = Asm()
    N = "l3_kernel"
    kstart(a, N, 256)
    a.I("s_load_dwordx2 s[4:5], s[0:1], 88")
    a.I("s_load_dwordx2 s[6:7], s[0:1], 40")
    a.I("s_load_dwordx2 s[8:9], s[0:1], 72")
    a.I("v_lshrrev_b32 v1, 6, v0")
    a.I("v_and_b32 v2, 255, v0")
    a.I("v_and_b32 v0, 63, v0")
    a.I("v_readfirstlane_b32 s16, v1")
    a.I("s_nop 0")
    a.I("s_cmp_ge_u32 s16, 4")
    a.I(f"s_cbranch_scc1 {N}_b3")
    st = Stamper(a, "l3")
    OB = int(os.environ.get('OB', '3'))
    ACC = (oproj_body3 if OB == 3 else oproj_body2)(a, N, st, bar_at=8)
    a.I("s_barrier")
    oproj_finish(a, ACC, 32768 if OB == 3 else 16384)
    st.dump(16, 4, tmpv=8)
    a.I("s_endpgm")
    a.label(f"{N}_b3")
    a.I("s_and_b32 s16, s16, 3")
    b3_body(a, 131072, 8)
    kend(a, N)
    return a, N, (256, 512, 131072 + 8192 + 64)


KERNELS = [gen_l1, lambda: gen_attn(not os.environ.get('NOB2')), {'v3': gen_l3v3, 'new': gen_l3, 's4': gen_l3_s4, 'old': gen_l3_old}[os.environ.get('L3V', 'v3')]]

if __name__ == "__main__":
    p = sys.argv[1] if len(sys.argv) > 1 else os.path.join(os.path.dirname(os.path.abspath(__file__)), "..",
                                                           "cdna_kernels", NAME + ".s")
    sys.exit(1 if build(KERNELS, p) else 0)
```

```python
import sys, os, math, struct
sys.path.insert(0, os.path.dirname(os.path.abspath(__file__)))
from asmlib import Asm, VM, LG, v, s, ag

NAME = "concat_heads__compressed_kv_cla__spectral_gfnet__prompt"
MB = 1 << 20
WS_K, WS_V, WS_CTX, WS_Y, WS_WF, WS_Z, WS_Q = 0, 16 * MB, 32 * MB, 48 * MB, 52 * MB, 56 * MB, 64 * MB
WS_WO = 60 * MB
if os.environ.get('ALIAS'):
    WS_Q = WS_CTX
WS_PART = 0
WS_FLAG = 56 * MB + 2560 * 1024
YSTR = 8320
KA = dict(x=0, ckv=8, wq=16, wuk=24, wuv=32, wo=40, bx=48, wr=56, wi=64, out=72, dbg=80, ws=88)
MF = "v_mfma_f32_32x32x16_bf16"
SP = os.environ.get("SP", " sc1")


def f32(x):
    return "0x%08x" % struct.unpack("<I", struct.pack("<f", x))[0]


def srd(a, d, lo, hi, size, add=0):
    if add:
        a.I(f"s_add_u32 {s(d)}, {s(lo)}, {add if isinstance(add, str) else hex(add)}")
        a.I(f"s_addc_u32 {s(d + 1)}, {s(hi)}, 0")
    else:
        a.I(f"s_mov_b32 {s(d)}, {s(lo)}")
        a.I(f"s_mov_b32 {s(d + 1)}, {s(hi)}")
    a.I(f"s_mov_b32 {s(d + 2)}, {size if isinstance(size, str) else hex(size)}")
    a.I(f"s_mov_b32 {s(d + 3)}, 0x20000")


STAMPS = int(os.environ.get("STAMPS", "0"))
ST0 = 72


class Stamper:
    def __init__(self, a, name=""):
        self.a, self.n = a, 0
        self.on = STAMPS and os.environ.get("STAMPK", name) == name

    def __call__(self):
        if self.on and self.n < 11:
            if self.n == 0:
                self.a.I("s_memrealtime s[68:69]")
            self.a.I(f"s_memtime {s(ST0 + 2 * self.n, 2)}")
            self.n += 1

    def dump(self, wave_s, wslo, tmpv=8):
        if not self.on:
            return
        a = self.a
        a.I("s_waitcnt vmcnt(0) lgkmcnt(0)")
        a.I(f"s_memtime {s(ST0 + 2 * self.n, 2)}")
        a.I("s_memrealtime s[70:71]")
        self.n += 1
        srd(a, 96, wslo, wslo + 1, 1 * MB, add=128 * MB)
        a.I("s_lshl_b32 s100, s2, 3")
        a.I(f"s_add_u32 s100, s100, {s(wave_s)}")
        a.I("s_lshl_b32 s100, s100, 8")
        a.I("s_waitcnt lgkmcnt(0)")
        a.I(f"v_mov_b32 {v(tmpv + 1)}, 0")
        for i in range(self.n):
            a.I(f"v_mov_b32 {v(tmpv)}, {s(ST0 + 2 * i)}")
            a.I(f"buffer_store_dword {v(tmpv)}, {v(tmpv + 1)}, s[96:99], s100 offen offset:{4 * i}")
        for i, r in ((62, 68), (63, 70), (61, ST0 + 2 * (self.n - 1))):
            a.I(f"v_mov_b32 {v(tmpv)}, {s(r)}")
            a.I(f"buffer_store_dword {v(tmpv)}, {v(tmpv + 1)}, s[96:99], s100 offen offset:{4 * i}")
        a.I("s_waitcnt vmcnt(0)")


DBGT = int(os.environ.get("DBGT", "0"))
KIDX = [0, 0]


def dbg_stamp(a, end):
    k = KIDX[0]
    lab = a.uid("dbgskip%d_%d" % (k, KIDX[1]))
    KIDX[1] += 1
    if not end:
        a.I("v_readfirstlane_b32 s89, v0")
        a.I("s_nop 1")
        a.I("s_lshr_b32 s89, s89, 6")
        a.I("s_or_b32 s89, s89, s2")
    a.I("s_cmp_lg_u32 s89, 0")
    a.I(f"s_cbranch_scc1 {lab}")
    a.I("s_load_dwordx4 s[92:95], s[90:91], 80")
    a.I("s_waitcnt vmcnt(0) lgkmcnt(0)")
    a.I("s_memrealtime s[86:87]")
    a.I(f"s_add_u32 s96, s94, {hex(200 * MB)}")
    a.I("s_addc_u32 s97, s95, 0")
    a.I("s_mov_b32 s98, 256")
    a.I("s_mov_b32 s99, 0x20000")
    a.I("s_waitcnt lgkmcnt(0)")
    a.I("v_mov_b32 v254, s86")
    a.I(f"buffer_store_dword v254, off, s[96:99], 0 offset:{8 * k + 4 * end} sc0 sc1")
    a.I("s_waitcnt vmcnt(0)")
    if end and k == DBGT - 1:
        a.I("v_lshlrev_b32 v253, 2, v0")
        a.I("buffer_load_dword v254, v253, s[96:99], 0 offen sc0 sc1")
        a.I("s_mov_b32 s96, s92")
        a.I("s_mov_b32 s97, s93")
        a.I("s_waitcnt vmcnt(0)")
        a.I("buffer_store_dword v254, v253, s[96:99], 0 offen")
        a.I(f"s_sub_u32 s96, s92, {k * 512}")
        a.I("s_subb_u32 s97, s93, 0")
        a.I("s_nop 0")
        a.I("buffer_store_dword v254, v253, s[96:99], 0 offen")
    a.label(lab)


def code_touch(a, kname, wave_s, sr, vt, nw_log=3, kd=True):
    if os.environ.get("NOCP"):
        return
    ref = a.uid("pcref_" + kname)
    a.I(f"s_getpc_b64 {s(sr, 2)}")
    a.label(ref)
    a.I(f"s_add_u32 {s(sr)}, {s(sr)}, {kname} - {ref}")
    a.I(f"s_addc_u32 {s(sr + 1)}, {s(sr + 1)}, ({kname} - {ref}) >> 32")
    a.I(f"s_mov_b32 {s(sr + 2)}, {kname}_end - {kname}")
    a.I(f"s_mov_b32 {s(sr + 3)}, 0x20000")
    a.I(f"s_lshr_b32 {s(sr + 4)}, s2, 3")
    a.I(f"s_lshl_b32 {s(sr + 4)}, {s(sr + 4)}, {nw_log}")
    a.I(f"s_add_u32 {s(sr + 4)}, {s(sr + 4)}, {s(wave_s)}")
    a.I(f"s_lshl_b32 {s(sr + 4)}, {s(sr + 4)}, {12 - nw_log}")
    a.I(f"v_lshlrev_b32 {v(vt)}, 7, v0")
    a.I(f"s_mov_b64 exec, {(1 << (32 >> nw_log)) - 1}")
    a.I(f"buffer_load_dword {v(vt + 1)}, {v(vt)}, {s(sr, 4)}, {s(sr + 4)} offen")
    if kd and not os.environ.get("NOKD"):
        a.I(f"s_getpc_b64 {s(sr, 2)}")
        a.I(f"s_add_u32 {s(sr)}, {s(sr)}, kdl_{kname}@rel32@lo+4")
        a.I(f"s_addc_u32 {s(sr + 1)}, {s(sr + 1)}, kdl_{kname}@rel32@hi+12")
        a.I(f"s_mov_b32 {s(sr + 2)}, 64")
        a.I("s_mov_b64 exec, 1")
        a.I(f"buffer_load_dword {v(vt + 1)}, off, {s(sr, 4)}, 0")
    a.I("s_mov_b64 exec, -1")


def kstart(a, name, nwg):
    a.raw(".text")
    a.raw(f".globl {name}")
    a.raw(".p2align 8")
    a.raw(f".type {name},@function")
    a.label(name)
    a.I(f"s_cmp_ge_u32 s2, {nwg}")
    a.I(f"s_cbranch_scc1 {name}_end")
    if DBGT:
        a.I("s_mov_b64 s[90:91], s[0:1]")
        dbg_stamp(a, 0)


def kend(a, name):
    a.label(name + "_end")
    a.I("s_endpgm")


def kdesc(name, nv, ns, na=0):
    nv = (nv + 7) // 8 * 8
    acc_off = nv
    nv = nv + (na + 7) // 8 * 8
    return f""".section .rodata,"a"
.p2align 6
kdl_{name}:
.amdhsa_kernel {name}
  .amdhsa_next_free_vgpr {nv}
  .amdhsa_next_free_sgpr {max(ns, 16)}
  .amdhsa_accum_offset {acc_off}
  .amdhsa_group_segment_fixed_size 0
  .amdhsa_kernarg_size 96
  .amdhsa_user_sgpr_count 2
  .amdhsa_user_sgpr_kernarg_segment_ptr 1
  .amdhsa_system_sgpr_workgroup_id_x 1
  .amdhsa_float_denorm_mode_32 3
.end_amdhsa_kernel
"""


QSCALE = math.log2(math.e) / math.sqrt(128.0)


def gen_qkv():
    a = Asm()
    N = "qkvproj_kernel"
    kstart(a, N, 256)
    a.I("s_load_dwordx4 s[4:7], s[0:1], 0")
    a.I("s_load_dwordx4 s[8:11], s[0:1], 16")
    a.I("s_load_dwordx2 s[12:13], s[0:1], 32")
    a.I("s_load_dwordx2 s[14:15], s[0:1], 88")
    a.I("v_lshrrev_b32 v1, 6, v0")
    a.I("v_and_b32 v0, 63, v0")
    a.I("s_and_b32 s17, s2, 7")
    a.I("v_readfirstlane_b32 s16, v1")
    a.I("s_lshr_b32 s18, s2, 3")
    a.I("s_and_b32 s19, s18, 7")
    a.I("s_lshr_b32 s18, s18, 3")
    a.I("s_lshl_b32 s40, s17, 2")
    a.I("s_add_u32 s18, s18, s40")
    a.I("s_mov_b32 s41, 0")
    a.I("s_mul_i32 s42, s18, 6")
    a.I("s_cmp_ge_u32 s18, 11")
    a.I("s_cselect_b32 s41, 1, s41")
    a.I("s_cselect_b32 s40, 64, 0")
    a.I("s_cmp_ge_u32 s18, 21")
    a.I("s_cselect_b32 s41, 2, s41")
    a.I("s_cselect_b32 s40, 126, s40")
    a.I("s_sub_u32 s42, s42, s40")
    a.I("s_lshl_b32 s44, s19, 3")
    a.I("s_add_u32 s44, s44, s16")
    hl, b4, t1, t2 = 9, 10, 11, 12
    a.I(f"v_lshrrev_b32 {v(hl)}, 5, v0")
    a.I(f"v_bfe_u32 {v(b4)}, v0, 4, 1")
    a.I(f"v_lshrrev_b32 {v(t1)}, 3, v0")
    a.I(f"v_lshlrev_b32 {v(t1)}, 10, {v(t1)}")
    a.I("s_lshl_b32 s45, s44, 15")
    a.I(f"v_add_u32 {v(t1)}, s45, {v(t1)}")
    a.I(f"v_lshrrev_b32 {v(t2)}, 4, v0")
    a.I("v_and_b32 v13, 7, v0")
    a.I(f"v_xor_b32 {v(t2)}, {v(t2)}, v13")
    a.I(f"v_lshl_add_u32 v52, {v(t2)}, 4, {v(t1)}")
    a.I("v_xor_b32 v53, 64, v52")
    a.I(f"v_add_u32 v53, {8192 - 1024}, v53")
    a.I(f"v_add_u32 v54, {2 * (8192 - 1024)}, v52")
    a.I(f"v_add_u32 v55, {2 * (8192 - 1024)}, v53")
    a.I("v_and_b32 v13, 31, v0")
    a.I(f"v_bfe_u32 {v(t2)}, v0, 1, 3")
    a.I(f"v_xor_b32 {v(t2)}, {v(t2)}, {v(hl)}")
    a.I(f"v_lshlrev_b32 {v(t2)}, 4, {v(t2)}")
    a.I(f"v_lshl_add_u32 {v(t2)}, v13, 7, {v(t2)}")
    a.I("s_mul_i32 s46, s16, 12288")
    for t in range(4):
        a.I(f"v_xor_b32 {v(56 + t)}, {32 * t}, {v(t2)}")
    for t in range(4):
        a.I(f"v_add_u32 {v(56 + t)}, s46, {v(56 + t)}")
    a.I("v_lshrrev_b32 v2, 3, v0")
    a.I("v_lshlrev_b32 v2, 13, v2")
    a.I(f"v_lshlrev_b32 {v(t1)}, 2, {v(b4)}")
    a.I(f"v_and_b32 {v(t2)}, 7, v0")
    a.I(f"v_xor_b32 {v(t1)}, {v(t1)}, {v(t2)}")
    a.I(f"v_lshl_add_u32 v2, {v(t1)}, 4, v2")
    a.I("s_lshl_b32 s45, s16, 17")
    a.I("v_add_u32 v2, s45, v2")
    a.I(f"v_add_u32 v3, {65536 - 1024}, v2")
    a.I(f"v_bfe_u32 {v(t1)}, v0, 2, 2")
    a.I(f"v_lshl_add_u32 {v(t2)}, {v(hl)}, 3, {v(t1)}")
    a.I(f"v_lshlrev_b32 v4, 7, {v(t2)}")
    a.I(f"v_lshl_add_u32 v4, {v(b4)}, 5, v4")
    a.I(f"v_and_b32 {v(t2)}, 3, v0")
    a.I(f"v_lshl_add_u32 v4, {v(t2)}, 3, v4")
    a.I(f"v_bfe_u32 {v(t2)}, v0, 3, 1")
    a.I(f"v_lshl_add_u32 v4, {v(t2)}, 6, v4")
    a.I("v_xor_b32 v5, 64, v4")
    a.I("v_add_u32 v6, 0x10000, v4")
    a.I("v_add_u32 v7, 0x10000, v5")
    a.I("v_add_u32 v50, 0x20000, v4")
    a.I("v_add_u32 v51, 0x20000, v5")
    a.I("v_lshlrev_b32 v48, 4, v0")
    a.I("s_lshl_b32 s47, s16, 11")
    a.I("s_lshl_b32 s48, s42, 7")
    a.I("s_lshl_b32 s49, s44, 13")
    a.I("s_lshl_b32 s50, s42, 18")
    a.I("s_add_u32 s50, s50, s49")
    a.I("s_waitcnt lgkmcnt(0)")
    a.I("s_cmp_eq_u32 s41, 2")
    a.I("s_cselect_b32 s20, s4, s6")
    a.I("s_cselect_b32 s21, s5, s7")
    a.I("s_cselect_b32 s24, s8, s10")
    a.I("s_cselect_b32 s25, s9, s11")
    a.I(f"s_cselect_b32 s51, {hex(WS_Q)}, 0")
    a.I(f"s_cselect_b32 s52, {f32(QSCALE)}, 1.0")
    a.I(f"s_mov_b32 s22, {hex(2 * MB)}")
    a.I("s_mov_b32 s23, 0x20000")
    a.I(f"s_mov_b32 s26, {hex(4 * MB)}")
    a.I("s_mov_b32 s27, 0x20000")
    srd(a, 28, 14, 15, 16 * MB, add="s51")
    srd(a, 32, 12, 13, 4 * MB)
    srd(a, 36, 14, 15, 16 * MB, add=WS_V)
    srd(a, 56, 6, 7, 2 * MB)
    a.I("s_cmp_eq_u32 s18, 31")
    a.I(f"s_cbranch_scc1 {N}_D")
    a.I("s_cmp_eq_u32 s41, 1")
    a.I(f"s_cbranch_scc1 {N}_B")
    a.I("s_cmp_eq_u32 s18, 10")
    a.I(f"s_cbranch_scc1 {N}_C")

    AF, ACC, RING, PK = 64, 192, 8, 32
    LOOK = 6

    def body(passes, tag):
        vm, lg = VM(a), LG(a)
        st = Stamper(a, "qkv")
        st()
        NP = len(passes)
        NC = 4 * NP
        NM = 64 * NP
        restage = tag == "D"
        blk = {}
        free = [6, 7, 8, 9]
        nxt = [0]

        def dmaW():
            c = nxt[0]
            if c >= NC or not free:
                return False
            b = free.pop(0)
            blk[c] = b
            nxt[0] += 1
            pp, kc = divmod(c, 4)
            form, su, di = passes[pp]
            a.I(f"s_add_u32 m0, s47, {hex(b * 16384)}")
            if su is not None:
                a.I(f"s_mov_b32 s45, {hex((kc << 20) + su * 128)}")
            else:
                a.I(f"s_add_u32 s45, s48, {hex((kc << 20) + di * 128)}")
            sr = "s[32:35]" if form == "V" else "s[24:27]"
            vm.issue(f"buffer_load_dwordx4 v2, {sr}, s45 offen lds", ("W", c))
            vm.issue(f"buffer_load_dwordx4 v3, {sr}, s45 offen offset:1024 lds", ("W", c))
            return True

        def dmaA(j):
            sr = "s[56:59]" if (restage and j < 8) else "s[20:23]"
            a.I(f"s_add_u32 m0, s46, {hex((j % 3) * 4096)}")
            a.I(f"s_mov_b32 s45, {(j % 8) * 128}")
            for i in range(4):
                vm.issue(f"buffer_load_dwordx4 {v(52 + i)}, {sr}, s45 offen offset:{i * 1024} lds", ("A", j))

        def readA(j):
            vm.wait(("A", j))
            for t in range(4):
                lg.issue(f"ds_read_b128 {v(AF + 16 * (j % 8) + 4 * t, 4)}, {v(56 + t)} offset:{(j % 3) * 4096}", ("A", j))

        dmaW(); dmaA(0); dmaA(1); dmaW(); dmaA(2); dmaW(); dmaW()

        def reads(i):
            c, r = divmod(i, 16)
            t, cb = divmod(r, 2)
            b = blk[c]
            base = [4, 6, 50][b // 4] + cb
            off = (b % 4) * 16384 + t * 2048
            d = RING + 4 * (i % LOOK)
            lg.issue(f"ds_read_b64_tr_b16 {v(d, 2)}, {v(base)} offset:{off}", ("W", i))
            lg.issue(f"ds_read_b64_tr_b16 {v(d + 2, 2)}, {v(base)} offset:{off + 512}", ("W", i))

        def sync(c):
            vm.wait(("W", c))
            a.I("s_barrier")
            if c >= 2:
                free.append(blk[c - 2])
            if c == (10 if restage else 5):
                free.extend([0, 1, 2, 3, 4, 5])
            n = 0
            while n < 2 and dmaW():
                n += 1

        def epi(pp):
            out = []
            form, su, di = passes[pp]
            acc = ACC + 32 * (pp & 1)
            so = 54 + (pp & 1)
            if su is not None:
                out.append(lambda: a.I(f"s_add_u32 s{so}, s49, {hex((su >> 1) * 512 * 1024 + (su & 1) * 4096)}"))
            else:
                out.append(lambda: a.I(f"s_add_u32 s{so}, s50, {hex((di >> 1) * 512 * 1024 + (di & 1) * 4096)}"))
            sr = "s[36:39]" if form == "V" else "s[28:31]"
            for cb in range(2):
                for h in range(2):
                    q = 2 * cb + h
                    for i in range(4):
                        src = acc + 16 * cb + 8 * h + 2 * i
                        if form == "K" and tag in "AD":
                            out.append(lambda src=src: a.I(f"v_mul_f32 {v(src)}, s52, {v(src)}"))
                            out.append(lambda src=src: a.I(f"v_mul_f32 {v(src + 1)}, s52, {v(src + 1)}"))
                        out.append(lambda src=src, q=q, i=i: a.I(
                            f"v_cvt_pk_bf16_f32 {v(PK + 4 * q + i)}, {v(src)}, {v(src + 1)}"))
                    out.append(lambda q=q: vm.issue(
                        f"buffer_store_dwordx4 {v(PK + 4 * q, 4)}, v48, {sr}, s{so} offen offset:{q * 1024}{SP}", ("S", pp)))
            return out

        st()
        readA(0)
        sync(0)
        st()
        for i in range(LOOK - 2):
            reads(i)
        lg.wait(("A", 0))
        for i in range(LOOK - 2, LOOK):
            reads(i)
        pend = []
        for i in range(NM):
            c, r = divmod(i, 16)
            t, cb = divmod(r, 2)
            pp, kc = divmod(c, 4)
            k = 8 * kc + t
            if i % 2 == 0:
                lg.wait([("W", i), ("W", i + 1), ("A", i // 8)])
            if pp == 0 and i % 8 == 0 and i // 8 + 3 < (11 if restage else 8):
                dmaA(i // 8 + 3)
            if restage and 72 < i <= 128 + 8 and i % 8 == 4:
                jj = 8 + (i - 76) // 8
                lg.wait(("A", jj))
                if jj + 3 < 16:
                    dmaA(jj + 3)
            acc = v(ACC + 32 * (pp & 1) + 16 * cb, 16)
            wf = v(RING + 4 * (i % LOOK), 4)
            af = v(AF + 4 * k, 4)
            cin = "0" if k == 0 else acc
            if passes[pp][0] == "V":
                a.I(f"{MF} {acc}, {af}, {wf}, {cin}")
            else:
                a.I(f"{MF} {acc}, {wf}, {af}, {cin}")
            j = i + LOOK
            if j < NM:
                if j % 16 == 0:
                    sync(j // 16)
                if j < 64 and j % 8 == 0:
                    readA(j // 8)
                reads(j)
            if restage and 64 <= i < 128 and i % 8 == 7:
                readA(8 + (i - 64) // 8)
            if i % 64 == 63:
                st()
            if i % 64 == 6 and pp >= 1:
                pend = epi(pp - 1)
            if pend:
                pend.pop(0)()
        a.I("s_nop 11")
        for f in epi(NP - 1):
            f()
        st.dump(16, 14)
        a.I("s_endpgm")

    body([("K", None, i) for i in range(6)], "A")
    a.label(N + "_B")
    body([("V", None, i) for i in range(6)], "B")
    a.label(N + "_C")
    body([("K", None, i) for i in range(4)] + [("V", 0, 0), ("V", 1, 0)], "C")
    a.label(N + "_D")
    body([("V", 62, 0), ("V", 63, 0)] + [("K", None, i) for i in range(4)], "D")
    kend(a, N)
    return a, N, (256, 512, 163840)


def gen_attn(withb2=False):
    b2tail = withb2 and os.environ.get("B2MODE", "start") == "tail"
    if b2tail:
        withb2 = False
    a = Asm()
    N = "attn_kernel"
    O, Q, S, P, NEGM, RING = 64, 128, [160, 176], [192, 200], 208, 224
    L16, VKA, VVA, VL, VLS, E, VDA, VDB, QREL, T0, T1, T2, NINF = 1, 2, 3, 4, 5, 6, 10, 11, 12, 13, 14, 15, 48
    PK = 16
    EE = 50
    sW, sH, sP, sN, sC, sPH, sTHR, sBAR, sKO, sKM, sVM, sQS = 16, 17, 18, 19, 20, 21, 40, 41, 42, 43, 44, 45
    kstart(a, N, 256)
    a.I("s_load_dwordx2 s[4:5], s[0:1], 88")
    a.I("s_load_dwordx2 s[14:15], s[0:1], 40")
    a.I("v_lshrrev_b32 v1, 6, v0")
    a.I("v_and_b32 v0, 63, v0")
    a.I("s_and_b32 s6, s2, 7")
    a.I(f"v_readfirstlane_b32 {s(sW)}, v1")
    a.I("s_lshr_b32 s7, s2, 3")
    a.I("s_and_b32 s8, s7, 3")
    a.I("s_lshl_b32 s6, s6, 2")
    a.I(f"s_add_u32 {s(sH)}, s6, s8")
    a.I(f"s_lshr_b32 {s(sP)}, s7, 2")
    a.I(f"s_lshl_b32 s6, {s(sP)}, 2")
    a.I(f"s_sub_u32 s7, 60, s6")
    a.I(f"s_add_u32 s7, s7, {s(sW)}")
    a.I(f"s_add_u32 s8, s6, 7")
    a.I(f"s_sub_u32 s8, s8, {s(sW)}")
    a.I(f"s_cmp_ge_u32 {s(sW)}, 4")
    a.I(f"s_cselect_b32 {s(sQS)}, s8, s7")
    a.I(f"s_add_u32 {s(sN)}, {s(sQS)}, 1")
    a.I("s_sub_u32 s9, 64, s6")
    a.I(f"s_lshr_b32 {s(sBAR)}, s9, 1")
    a.I("s_lshl_b32 s9, s9, 13")
    a.I(f"s_lshl_b32 s10, {s(sH)}, 19")
    a.I(f"v_lshlrev_b32 {v(L16)}, 4, v0")
    a.I(f"s_and_b32 s11, {s(sW)}, 3")
    a.I("s_lshl_b32 s11, s11, 11")
    a.I(f"v_add_u32 {v(VDA)}, s11, {v(L16)}")
    a.I(f"v_add_u32 {v(VDB)}, 0x2000, {v(VDA)}")
    a.I(f"v_and_b32 {v(T0)}, 31, v0")
    a.I(f"v_lshrrev_b32 {v(T1)}, 5, v0")
    a.I(f"v_lshlrev_b32 {v(T1)}, 2, {v(T1)}")
    a.I(f"v_sub_u32 {v(QREL)}, {v(T0)}, {v(T1)}")
    a.I(f"v_mov_b32 {v(NINF)}, 0xff800000")
    a.I(f"s_mov_b32 {s(sTHR)}, {f32(2.0 ** 14)}")
    FLG = 7 * 16384 + 8192
    if withb2:
        a.I(f"v_mov_b32 v124, {FLG}")
        for i in range(4):
            a.I(f"v_mov_b32 {v(56 + i)}, 0")
        a.I("ds_write_b128 v124, v[56:59]")
        a.I("s_and_b32 s60, s2, 7")
        a.I("s_lshl_b32 s60, s60, 5")
        a.I("s_lshr_b32 s61, s2, 3")
        a.I("s_add_u32 s60, s60, s61")
        a.I("s_cmp_eq_u32 s2, 248")
        a.I("s_cselect_b32 s61, 4, 2")
        a.I(f"s_cmp_lt_u32 {s(sW)}, s61")
        a.I("s_cselect_b32 s23, 1, 0")
        a.I(f"s_cmp_ge_u32 {s(sW)}, 2")
        a.I("s_cselect_b32 s60, 0x100, s60")
        a.I(f"s_mov_b32 s61, {131072}")
        a.I(f"s_cselect_b32 s61, {131072 + 16384}, s61")
        a.I(f"s_and_b32 s67, {s(sW)}, 1")
    a.I("s_waitcnt lgkmcnt(0)")
    srd(a, 24, 4, 5, "s9", add="s10")
    a.I(f"s_add_u32 s12, s10, {hex(WS_V - 3 * 8192)}")
    a.I(f"s_add_u32 s13, s9, {3 * 8192}")
    srd(a, 28, 4, 5, "s13", add="s12")
    srd(a, 32, 4, 5, 16 * MB, add=WS_Q)
    srd(a, 36, 4, 5, 16 * MB, add=WS_CTX)
    st = Stamper(a, "attn")
    st()
    a.I(f"s_lshl_b32 s12, {s(sQS)}, 18")
    a.I(f"s_lshl_b32 s13, {s(sH)}, 13")
    a.I("s_add_u32 s12, s12, s13")
    a.I("s_add_u32 s13, s12, 4096")

    def q_loads(vm=None):
        for t in range(8):
            x = f"buffer_load_dwordx4 {v(Q + 4 * t, 4)}, {v(L16)}, s[32:35], s{12 + t // 4} offen offset:{(t % 4) * 1024}{os.environ.get('QP', '')}"
            vm.issue(x, "Q") if vm else a.I(x)

    if withb2:
        a.I("s_cmp_eq_u32 s23, 0")
        a.I(f"s_cbranch_scc1 {N}_nob2l")
        b2_loads(a, VM(a), 60, 67, L16, 16, 32, 62, 48)
        q_loads()
        a.label(f"{N}_nob2l")
        a.I("s_barrier")
    a.I(f"s_lshl_b32 s46, {s(sQS)}, 18")
    a.I(f"s_lshl_b32 s6, {s(sH)}, 13")
    a.I("s_add_u32 s46, s46, s6")
    a.I("s_add_u32 s47, s46, 4096")
    a.I(f"s_mov_b32 {s(sKM)}, s11")
    a.I(f"s_mov_b32 {s(sKO)}, 0")

    def dma_list(withV=True):
        l = []
        if withV:
            l += [f"s_mov_b32 m0, {s(sVM)}", None,
                  f"buffer_load_dwordx4 {v(VDA)}, s[28:31], {s(sKO)} offen lds",
                  f"buffer_load_dwordx4 {v(VDA)}, s[28:31], {s(sKO)} offen offset:1024 lds",
                  f"s_add_u32 m0, {s(sVM)}, 0x4000", None,
                  f"buffer_load_dwordx4 {v(VDB)}, s[28:31], {s(sKO)} offen lds",
                  f"buffer_load_dwordx4 {v(VDB)}, s[28:31], {s(sKO)} offen offset:1024 lds"]
        l += [f"s_mov_b32 m0, {s(sKM)}", f"s_add_u32 {s(sVM)}, {s(sKM)}, 0x2000",
              f"buffer_load_dwordx4 {v(VDA)}, s[24:27], {s(sKO)} offen lds",
              f"buffer_load_dwordx4 {v(VDA)}, s[24:27], {s(sKO)} offen offset:1024 lds",
              f"s_add_u32 m0, {s(sKM)}, 0x4000", f"s_add_u32 {s(sKM)}, {s(sKM)}, 0x8000",
              f"buffer_load_dwordx4 {v(VDB)}, s[24:27], {s(sKO)} offen lds",
              f"buffer_load_dwordx4 {v(VDB)}, s[24:27], {s(sKO)} offen offset:1024 lds",
              f"s_and_b32 {s(sKM)}, {s(sKM)}, 0x1ffff",
              f"s_add_u32 {s(sKO)}, {s(sKO)}, 0x4000"]
        return l

    def emit_dma(withV=True):
        for x in dma_list(withV):
            if "dma" in os.environ.get("ADROP", "") and x and x.endswith(" lds"):
                continue
            a.I(x or "s_nop 0")

    def mask_negm():
        for j in range(16):
            a.I(f"v_cmp_le_i32 vcc, {(j & 3) + 8 * (j >> 2)}, {v(QREL)}")
            a.I("s_nop 1")
            a.I(f"v_cndmask_b32 {v(NEGM + j)}, {v(NINF)}, {v(NEGM + j)}, vcc")
        a.I("s_nop 1")

    def rowmax(Sx, dst):
        a.I(f"v_max3_f32 {v(dst)}, {v(Sx)}, {v(Sx + 1)}, {v(Sx + 2)}")
        for j in range(3, 15, 2):
            a.I(f"v_max3_f32 {v(dst)}, {v(dst)}, {v(Sx + j)}, {v(Sx + j + 1)}")
        a.I(f"v_max_f32 {v(dst)}, {v(dst)}, {v(Sx + 15)}")
        a.I(f"v_mov_b32 {v(T2)}, {v(dst)}")
        a.I("s_nop 1")
        a.I(f"v_permlane32_swap_b32 {v(dst)}, {v(T2)}")
        a.I(f"v_max_f32 {v(dst)}, {v(dst)}, {v(T2)}")

    def role(ld):
        R = "S" if ld else "L"
        if withb2 and not ld:
            a.I("s_cmp_eq_u32 s23, 0")
            a.I(f"s_cbranch_scc1 {N}_b2no")
            a.I(f"s_and_b32 s67, {s(sW)}, 2")
            a.I("s_lshl_b32 s67, s67, 2")
            a.I(f"s_add_u32 s67, s67, {FLG}")
            a.I("v_mov_b32 v124, s67")
            a.I(f"s_bitcmp1_b32 {s(sW)}, 0")
            a.I(f"s_cbranch_scc1 {N}_b2w1")
            rmap = [56, 57, 58, 59, 60, 61, 62, 120, 63, 16, 24, 32, 40, 64, 72, 80, 88, 104, 160, 176, 192, 208, 224]
            for own in range(2):
                vmb = VM(a)
                if own:
                    a.label(f"{N}_b2w1")
                ex = [0]

                def pair_sync():
                    ex[0] += 1
                    lab = a.uid(f"{N}_spin")
                    a.I(f"v_mov_b32 v125, {ex[0]}")
                    a.I(f"ds_write_b32 v124, v125 offset:{4 * own}")
                    a.label(lab)
                    a.I(f"ds_read_b32 v126, v124 offset:{4 * (1 - own)}")
                    a.I("s_waitcnt lgkmcnt(0)")
                    a.I("v_readfirstlane_b32 s67, v126")
                    a.I("s_nop 0")
                    a.I(f"s_cmp_lt_u32 s67, {ex[0]}")
                    a.I(f"s_cbranch_scc1 {lab}")
                b2_body(a, own, 60, 61, pair_sync, vmb, S0=62, SR=48, slice_len=10 ** 9, rmap=rmap, preloaded=True,
                        st=st if os.environ.get("B2ST") else (lambda: None))
                if os.environ.get("B2ST"):
                    st()
                    st.n -= 5 * (1 - own)
                assert vmb.q[-5:] == ["Q", "Z", "Z", "Z", "Z"] or "Q" not in vmb.q
                a.I(f"s_branch {N}_b2done")
            a.label(f"{N}_b2no")
        def inits(tag):
            for j in range(16):
                a.I(f"v_mov_b32 {v(NEGM + j)}, 0")
            a.I(f"s_cmp_lg_u32 {s(sN)}, 1")
            a.I(f"s_cbranch_scc1 {N}_{R}_nm1{tag}")
            mask_negm()
            a.label(f"{N}_{R}_nm1{tag}")

        inits("a")
        q_loads()
        if ld:
            emit_dma(withV=False)
            emit_dma()
        if withb2 and not ld:
            a.I("s_waitcnt vmcnt(0)")
            a.I(f"s_branch {N}_b2join")
            a.label(f"{N}_b2done")
            inits("b")
            a.I("s_waitcnt vmcnt(4)")
            a.label(f"{N}_b2join")
        a.I(f"v_mov_b32 {v(VL)}, 0")
        a.I(f"v_mov_b32 {v(VLS)}, 0")
        a.I(f"v_add_u32 {v(VKA)}, 0x8000, {v(L16)}")
        a.I(f"v_mov_b32 {v(VVA)}, {v(L16)}")
        if os.environ.get("PRIO") and not ld:
            a.I(f"s_setprio {os.environ['PRIO']}")
        if ld or not withb2:
            a.I(f"s_waitcnt vmcnt({6 if ld else 0})")
        a.I("s_barrier")
        st()
        for t in range(8):
            a.I(f"ds_read_b128 {v(RING + 4 * t, 4)}, {v(L16)} offset:{t * 1024}")
        dl = [x or "s_nop 0" for x in dma_list()] if ld else []
        for t in range(8):
            if t % 4 == 0:
                a.I("s_waitcnt lgkmcnt(4)")
            a.I(f"{MF} {v(S[0], 16)}, {v(RING + 4 * t, 4)}, {v(Q + 4 * t, 4)}, {v(NEGM if t == 0 else S[0], 16)}")
            a.I(f"ds_read_b128 {v(RING + 4 * t, 4)}, {v(L16)} offset:{16384 + t * 1024}")
            for x in dl[:3]:
                a.I(x)
            dl = dl[3:]
            for j in range(5):
                a.I(f"v_mov_b32 {v(O + 5 * t + j)}, 0")
        assert not dl
        for j in range(40, 64):
            a.I(f"v_mov_b32 {v(O + j)}, 0")
        if ld:
            emit_dma()
        rowmax(S[0], T0)
        for j in range(16):
            a.I(f"v_sub_f32 {v(S[0] + j)}, {v(S[0] + j)}, {v(T0)}")
        for j in range(16):
            a.I(f"v_sub_f32 {v(NEGM + j)}, 0, {v(T0)}")
        a.I(f"s_mov_b32 {s(sPH)}, 0")
        a.I(f"s_sub_u32 {s(sC)}, {s(sN)}, 3")
        a.I(f"s_cbranch_scc0 {N}_{R}_first")
        a.I(f"s_mov_b32 {s(sPH)}, 3")
        a.I(f"s_mov_b32 {s(sC)}, 0")
        a.I(f"s_cmp_lg_u32 {s(sN)}, 2")
        a.I(f"s_cbranch_scc1 {N}_{R}_first")
        a.I(f"s_mov_b32 {s(sPH)}, 1")
        mask_negm()
        a.label(f"{N}_{R}_first")
        e = lambda j: v(EE + (j % 6))
        if ld:
            a.I("s_waitcnt vmcnt(14)")
        a.I("s_waitcnt lgkmcnt(0)")
        a.I("s_barrier")
        a.I(f"s_sub_u32 {s(sBAR)}, {s(sBAR)}, 1")
        dl = [x or "s_nop 0" for x in dma_list()] if ld else []
        for pos in range(8):
            r = v(RING + 4 * pos, 4)
            a.I(f"{MF} {v(S[1], 16)}, {r}, {v(Q + 4 * pos, 4)}, {v(NEGM if pos == 0 else S[1], 16)}")
            a.I(f"ds_read_b128 {r}, {v(VKA)} offset:{pos * 1024}")
            a.I(f"v_exp_f32 {e(2 * pos)}, {v(S[0] + 2 * pos)}")
            a.I(f"v_exp_f32 {e(2 * pos + 1)}, {v(S[0] + 2 * pos + 1)}")
            a.many(dl[:3] or ["s_nop 0"])
            dl = dl[3:]
            a.I(f"v_add_f32 {v(VLS)}, {v(VLS)}, {e(2 * pos)}")
            a.I(f"v_add_f32 {v(VLS)}, {v(VLS)}, {e(2 * pos + 1)}")
            a.I(f"v_cvt_pk_bf16_f32 {v(P[0] + pos)}, {e(2 * pos)}, {e(2 * pos + 1)}")
        assert not dl
        a.I("s_nop 4")
        a.I(f"s_sub_u32 {s(sC)}, {s(sC)}, 1")
        a.I(f"s_branch {N}_{R}_back0")

        def iteration(par):
            gaps = [[] for _ in range(16)]
            pre = [[] for _ in range(16)]
            mf = []
            Sc, Sn, Pc, Pp = S[par], S[1 - par], P[par], P[1 - par]
            e = lambda j: v(EE + (j % 6))
            for pos in range(16):
                r = v(RING + 4 * (pos & 7), 4)
                if pos < 8:
                    mf.append(f"{MF} {v(Sn, 16)}, {r}, {v(Q + 4 * pos, 4)}, {v(NEGM if pos == 0 else Sn, 16)}")
                    ks, dt = divmod(pos, 4)
                    gaps[pos].append(f"ds_read_b128 {r}, {v(VVA)} offset:{8192 + par * 16384 + (2 * dt + ks) * 1024}")
                else:
                    ks, dt = divmod(pos - 8, 4)
                    mf.append(f"{MF} {v(O + 16 * dt, 16)}, {r}, {v(Pp + 4 * ks, 4)}, {v(O + 16 * dt, 16)}")
                    gaps[pos].append(f"ds_read_b128 {r}, {v(VKA)} offset:{par * 16384 + (pos - 8) * 1024}")
                if pos % 4 == 0:
                    pre[pos].append("s_waitcnt lgkmcnt(4)")
            early = int(os.environ.get("EARLY", "1"))
            if early:
                eg = [0, 0, 1, 2, 2, 3, 4, 5, 6, 7, 8, 9, 10, 11, 12, 13]
            else:
                eg = [0] + list(range(15))
            gaps[0].append(f"v_add_f32 {v(VL)}, {v(VL)}, {v(VLS)}")
            for j in range(16):
                gaps[eg[j]].append(f"v_exp_f32 {e(j)}, {v(Sc + j)}")
            pka = os.environ.get("PKADD")
            for j in range(1, 16):
                g = eg[j] + 1
                if pka:
                    if j == 3:
                        gaps[g].append(f"v_pk_add_f32 v[8:9], {v(EE, 2)}, {v(EE + 2, 2)}")
                    elif j % 2 == 1 and j > 3:
                        gaps[g].append(f"v_pk_add_f32 v[8:9], v[8:9], {v(EE + (j - 1) % 6, 2)}")
                    if j == 15:
                        gaps[g].append(f"v_add_f32 {v(VLS)}, v8, v9")
                elif j == 1:
                    gaps[g].append(f"v_add_f32 {v(VLS)}, {e(0)}, {e(1)}")
                else:
                    gaps[g].append(f"v_add_f32 {v(VLS)}, {v(VLS)}, {e(j)}")
                if j % 2 == 1:
                    gaps[g + (1 if (early and j == 15) else 0)].append(f"v_cvt_pk_bf16_f32 {v(Pc + j // 2)}, {e(j - 1)}, {e(j)}")
            if par == 0:
                gaps[2].append(f"v_add_u32 {v(VKA)}, 0x8000, {v(VKA)}")
                gaps[6].append(f"v_and_b32 {v(VKA)}, 0x1ffff, {v(VKA)}")
                bar = ["s_barrier", f"s_sub_u32 {s(sBAR)}, {s(sBAR)}, 1"]
                if ld:
                    bar = ["s_waitcnt vmcnt(14)"] + bar
                gaps[4] = bar + gaps[4]
                if ld:
                    d = [x for x in dma_list() if x]
                    m0a, l1, l2, m0b, l3, l4, m0c, svm, l5, l6, m0d, skm, l7, l8, sand, sko = d
                    gaps[5] = [m0a] + gaps[5] + [l1]
                    gaps[6] += [l2, m0b]
                    gaps[7] += [l3]
                    gaps[8] += [l4, m0c]
                    gaps[9] += [svm, l5]
                    gaps[10] += [l6, m0d]
                    gaps[11] += [l7]
                    gaps[12] += [l8, skm]
                    gaps[13] += [sand, sko]
            else:
                gaps[10].append(f"v_mov_b32 {v(VVA)}, {v(VKA)}")
            gaps[14].append(f"s_sub_u32 {s(sC)}, {s(sC)}, 1")
            gaps[14 if early else 15].append(f"v_cmp_nge_f32 vcc, {s(sTHR)}, {v(VLS)}")
            drop = os.environ.get("ADROP", "").split(",")
            for pos in range(16):
                if "bar" in drop:
                    gaps[pos] = [x for x in gaps[pos] if x != "s_barrier"]
                if "dma" in drop:
                    gaps[pos] = [x for x in gaps[pos] if not x.endswith(" lds")]
                if "rd" in drop:
                    gaps[pos] = [x for x in gaps[pos] if not x.startswith("ds_read")]
                if "valu" in drop:
                    gaps[pos] = [x for x in gaps[pos] if not (x.startswith("v_exp") or x.startswith("v_cvt") or x.startswith("v_add_f32"))]
                if "e64" in drop:
                    gaps[pos] = [x.replace("v_exp_f32 ", "v_exp_f32_e64 ").replace("v_add_f32 ", "v_add_f32_e64 ") for x in gaps[pos]]
                a.many(pre[pos])
                a.I(mf[pos])
                a.many(gaps[pos])
            if "br" not in drop:
                a.I(f"s_cbranch_vccnz {N}_{R}_slow{par}")
            a.label(f"{N}_{R}_back{par}")
            a.I(f"s_cbranch_scc1 {N}_{R}_spec{par}")

        if os.environ.get("PRIO") and not ld:
            pass
        if os.environ.get("AALIGN"):
            a.raw(".p2align 6")
            for _ in range(int(os.environ["AALIGN"]) - 1):
                a.I("s_nop 0")
        a.label(f"{N}_{R}_it0")
        iteration(0)
        a.label(f"{N}_{R}_it1")
        iteration(1)
        a.I(f"s_branch {N}_{R}_it0")

        def svc():
            lab = a.uid(f"{N}_{R}_svc")
            a.I(f"s_cmp_eq_u32 {s(sBAR)}, 0")
            a.I(f"s_cbranch_scc1 {lab}")
            if ld:
                a.I("s_waitcnt vmcnt(14)")
            if "bar" not in os.environ.get("ADROP", ""):
                a.I("s_barrier")
            a.I(f"s_sub_u32 {s(sBAR)}, {s(sBAR)}, 1")
            if ld:
                emit_dma()
            a.label(lab)

        for par in range(2):
            Sc, Sn, Pc = S[par], S[1 - par], P[par]
            a.label(f"{N}_{R}_slow{par}")
            a.I("s_cselect_b32 s22, 1, 0")
            a.I("s_nop 15")
            rowmax(Sc, T0)
            a.I(f"v_max_f32 {v(T0)}, 0, {v(T0)}")
            a.I(f"v_exp_f32_e64 {v(T1)}, -{v(T0)}")
            for j in range(16):
                a.I(f"v_sub_f32 {v(NEGM + j)}, {v(NEGM + j)}, {v(T0)}")
                a.I(f"v_sub_f32 {v(Sc + j)}, {v(Sc + j)}, {v(T0)}")
                a.I(f"v_sub_f32 {v(Sn + j)}, {v(Sn + j)}, {v(T0)}")
            for j in range(64):
                a.I(f"v_mul_f32 {v(O + j)}, {v(O + j)}, {v(T1)}")
            a.I(f"v_mul_f32 {v(VL)}, {v(VL)}, {v(T1)}")
            a.I(f"v_mov_b32 {v(VLS)}, 0")
            for i in range(8):
                a.I(f"v_exp_f32 {v(E)}, {v(Sc + 2 * i)}")
                a.I(f"v_exp_f32 {v(E + 1)}, {v(Sc + 2 * i + 1)}")
                a.I("s_nop 0")
                a.I(f"v_add_f32 {v(VLS)}, {v(VLS)}, {v(E)}")
                a.I(f"v_add_f32 {v(VLS)}, {v(VLS)}, {v(E + 1)}")
                a.I(f"v_cvt_pk_bf16_f32 {v(Pc + i)}, {v(E)}, {v(E + 1)}")
            a.I(f"s_cmp_eq_u32 {s(sPH)}, 2")
            a.I(f"s_cbranch_scc1 {N}_{R}_lback{par}")
            a.I("s_cmp_lg_u32 s22, 0")
            a.I(f"s_branch {N}_{R}_back{par}")
            a.label(f"{N}_{R}_spec{par}")
            a.I(f"s_cmp_eq_u32 {s(sPH)}, 1")
            a.I(f"s_cbranch_scc1 {N}_{R}_last{1 - par}")
            if par == 0:
                a.I(f"s_cmp_eq_u32 {s(sPH)}, 3")
                a.I(f"s_cbranch_scc1 {N}_{R}_exit0")
            a.I(f"s_mov_b32 {s(sPH)}, 1")
            a.I(f"s_mov_b32 {s(sC)}, 0")
            mask_negm()
            a.I(f"s_branch {N}_{R}_it{1 - par}")
            Pp = P[1 - par]
            a.label(f"{N}_{R}_last{par}")
            a.I(f"s_mov_b32 {s(sPH)}, 2")
            a.I("s_waitcnt lgkmcnt(0)")
            voff = lambda pos: (2 * (pos % 4) + pos // 4) * 1024
            for pos in range(8):
                a.I(f"ds_read_b128 {v(RING + 4 * pos, 4)}, {v(VVA)} offset:{8192 + par * 16384 + voff(pos)}")
            a.I(f"v_add_f32 {v(VL)}, {v(VL)}, {v(VLS)}")
            a.I(f"v_mov_b32 {v(VLS)}, 0")
            dl = []
            if par == 0:
                if ld:
                    a.I("s_waitcnt vmcnt(14)")
                a.I("s_barrier")
                a.I(f"s_sub_u32 {s(sBAR)}, {s(sBAR)}, 1")
                dl = [x or "s_nop 0" for x in dma_list()] if ld else []
            for pos in range(8):
                ks, dt = divmod(pos, 4)
                a.I(f"v_exp_f32 {e(2 * pos)}, {v(Sc + 2 * pos)}")
                a.I(f"v_exp_f32 {e(2 * pos + 1)}, {v(Sc + 2 * pos + 1)}")
                a.I("s_waitcnt lgkmcnt(7)")
                a.I(f"{MF} {v(O + 16 * dt, 16)}, {v(RING + 4 * pos, 4)}, {v(Pp + 4 * ks, 4)}, {v(O + 16 * dt, 16)}")
                if par == 0:
                    a.I(f"ds_read_b128 {v(RING + 4 * pos, 4)}, {v(VVA)} offset:{8192 + 16384 + voff(pos)}")
                else:
                    a.I(f"ds_read_b128 {v(RING + 4 * pos, 4)}, {v(VKA)} offset:{8192 + voff(pos)}")
                a.I(f"v_add_f32 {v(VLS)}, {v(VLS)}, {e(2 * pos)}")
                a.I(f"v_add_f32 {v(VLS)}, {v(VLS)}, {e(2 * pos + 1)}")
                a.I(f"v_cvt_pk_bf16_f32 {v(Pc + pos)}, {e(2 * pos)}, {e(2 * pos + 1)}")
                a.many(dl[:3])
                dl = dl[3:]
            assert not dl
            a.I(f"v_cmp_nge_f32 vcc, {s(sTHR)}, {v(VLS)}")
            a.I(f"s_cbranch_vccnz {N}_{R}_slow{par}")
            a.label(f"{N}_{R}_lback{par}")
            if par == 0:
                a.I(f"s_branch {N}_{R}_fin0")
                a.label(f"{N}_{R}_exit0")
                a.I("s_waitcnt lgkmcnt(0)")
                for pos in range(8):
                    a.I(f"ds_read_b128 {v(RING + 4 * pos, 4)}, {v(VVA)} offset:{8192 + 16384 + voff(pos)}")
                a.label(f"{N}_{R}_fin0")
            a.I(f"v_add_f32 {v(VL)}, {v(VL)}, {v(VLS)}")
            nrm = [f"v_mov_b32 {v(T2)}, {v(VL)}", None, f"v_permlane32_swap_b32 {v(VL)}, {v(T2)}",
                   f"v_add_f32 {v(VL)}, {v(VL)}, {v(T2)}", f"v_rcp_f32 {v(T0)}, {v(VL)}"]
            for pos in range(8):
                dt, ks = divmod(pos, 2)
                rp = 4 * ks + dt
                a.I(f"s_waitcnt lgkmcnt({max(0, 7 - max(rp, 4 + dt - (1 - ks) * 4))})" if False else
                    f"s_waitcnt lgkmcnt({7 - rp if ks else min(7 - rp, 7 - (4 + dt - 1) if dt else 7)})")
                a.I(f"{MF} {v(O + 16 * dt, 16)}, {v(RING + 4 * rp, 4)}, {v(Pc + 4 * ks, 4)}, {v(O + 16 * dt, 16)}")
                if pos < len(nrm) and nrm[pos]:
                    a.I(nrm[pos])
            if par == 0:
                a.I(f"s_branch {N}_{R}_epi")
        a.label(f"{N}_{R}_epi")
        st()
        svc()
        if ld and (withb2 or b2tail):
            a.I(f"s_and_b32 s53, {s(sW)}, 3")
            code_touch(a, "l3_kernel", 53, 48, EE + 2, nw_log=2)
            srd(a, 48, 4, 5, 64 * 128, add=WS_FLAG)
            a.I("s_lshl_b32 s52, s2, 7")
            a.I(f"v_lshlrev_b32 {v(EE)}, 2, v0")
            a.I(f"v_mov_b32 {v(EE + 1)}, 0")
            a.I("s_mov_b64 exec, 15")
            a.I(f"buffer_store_dword {v(EE + 1)}, {v(EE)}, s[48:51], s52 offen")
            a.I("s_mov_b64 exec, -1")
        for dt in range(4):
            for h in range(2):
                q = 2 * dt + h
                for i in range(4):
                    src = O + 16 * dt + 8 * h + 2 * i
                    a.I(f"v_mul_f32 {v(src)}, {v(src)}, {v(T0)}")
                    a.I(f"v_mul_f32 {v(src + 1)}, {v(src + 1)}, {v(T0)}")
                    a.I(f"v_cvt_pk_bf16_f32 {v(PK + 4 * q + i)}, {v(src)}, {v(src + 1)}")
                a.I(f"buffer_store_dwordx4 {v(PK + 4 * q, 4)}, {v(L16)}, s[36:39], s{46 + q // 4} offen offset:{(q % 4) * 1024}{SP}")
            if dt == 1:
                svc()
        if ld and b2tail:
            a.I(f"s_lshl_b32 s60, {s(sH)}, 2")
            a.I(f"s_add_u32 s60, s60, {s(sP)}")
            a.I("s_lshl_b32 s60, s60, 1")
            a.I(f"s_bfe_u32 s61, {s(sW)}, 0x10001")
            a.I("s_add_u32 s60, s60, s61")
            a.I(f"s_cmp_lt_u32 {s(sP)}, 4")
            a.I(f"s_cbranch_scc1 {N}_b2go")
            a.I("s_cmp_lg_u32 s60, 8")
            a.I(f"s_cbranch_scc1 {N}_{R}_tail")
            a.I("s_movk_i32 s60, 0x100")
            a.label(f"{N}_b2go")
            a.I("s_lshl_b32 s61, s61, 14")
            a.I(f"s_add_u32 s61, s61, {131072}")
            a.I(f"s_lshl_b32 s62, {s(sP)}, 2")
            a.I("s_sub_u32 s62, 28, s62")
            a.label(f"{N}_b2al")
            a.I(f"s_cmp_le_u32 {s(sBAR)}, s62")
            a.I(f"s_cbranch_scc1 {N}_b2st")
            a.I("s_waitcnt vmcnt(14)")
            a.I("s_barrier")
            a.I(f"s_sub_u32 {s(sBAR)}, {s(sBAR)}, 1")
            emit_dma()
            a.I(f"s_branch {N}_b2al")
            a.label(f"{N}_b2st")
            a.I(f"s_bitcmp1_b32 {s(sW)}, 0")
            a.I(f"s_cbranch_scc1 {N}_b2w1")
            for own in range(2):
                vmb = VM(a)
                nsv = [0]

                def svcb():
                    nsv[0] += 1
                    a.I("s_waitcnt vmcnt(14)")
                    vmb.q = vmb.q[-14:]
                    a.I("s_barrier")
                    a.I(f"s_sub_u32 {s(sBAR)}, {s(sBAR)}, 1")
                    for x in dma_list():
                        if x and x.startswith("buffer"):
                            vmb.issue(x, "dma")
                        else:
                            a.I(x or "s_nop 0")
                if own:
                    a.label(f"{N}_b2w1")
                b2_body(a, own, 60, 61, svcb, vmb, R0=16, S0=62, SR=48, slice_len=int(os.environ.get("SLICE", "90")))
                assert nsv[0] <= 12, nsv
                print("b2 svc slices", nsv[0])
                if not own:
                    a.I(f"s_branch {N}_{R}_tail")
        if ld:
            WT = int(os.environ.get("WOT", "0"))
            if withb2 and WT:
                srd(a, 48, 4, 5, 4 * MB, add=WS_WO)
                a.I("s_lshr_b32 s52, s2, 3")
                a.I("s_lshl_b32 s52, s52, 17")
                a.I("s_lshl_b32 s53, s11, 4")
                a.I("s_add_u32 s52, s52, s53")
                a.I("s_add_u32 s53, s52, 0x8000")
                a.I(f"v_lshlrev_b32 {v(EE)}, 7, v0")
            a.label(f"{N}_{R}_tail")
            if withb2 and WT:
                a.I(f"s_cmp_gt_u32 {s(sBAR)}, {WT}")
                a.I(f"s_cbranch_scc1 {N}_notouch")
                a.label(f"{N}_touch")
                a.I("s_cmp_ge_u32 s52, s53")
                a.I(f"s_cbranch_scc1 {N}_notouch")
                a.I(f"buffer_load_dword {v(EE + 1)}, {v(EE)}, s[48:51], s52 offen")
                a.I("s_add_u32 s52, s52, 0x2000")
                a.I(f"s_cmp_eq_u32 {s(sBAR)}, 0")
                a.I(f"s_cbranch_scc1 {N}_touch")
                a.label(f"{N}_notouch")
            a.I(f"s_cmp_eq_u32 {s(sBAR)}, 0")
            a.I(f"s_cbranch_scc1 {N}_{R}_done")
            a.I("s_waitcnt vmcnt(14)")
            a.I("s_barrier")
            a.I(f"s_sub_u32 {s(sBAR)}, {s(sBAR)}, 1")
            emit_dma()
            a.I(f"s_branch {N}_{R}_tail")
            a.label(f"{N}_{R}_done")
        n0 = st.n
        st.dump(sW, 4, tmpv=T0)
        st.n = n0 - 2
        a.I("s_endpgm")

    a.I(f"s_cmp_ge_u32 {s(sW)}, 4")
    a.I(f"s_cbranch_scc1 {N}_short")
    role(False)
    a.label(f"{N}_short")
    role(True)
    kend(a, N)
    return a, N, (256, 512, 163840 if (withb2 or b2tail) else 131072)


def oproj_body(a, N, st, bar_at=None):
    ACC, CR, AFR = 64, 128, 192
    DEPTH = 8
    L16, L16B, VD0, VD1, TB = 1, 2, 3, 4, 5
    a.I("s_and_b32 s10, s2, 7")
    a.I("s_lshr_b32 s11, s2, 3")
    a.I("s_and_b32 s12, s11, 3")
    a.I("s_lshl_b32 s10, s10, 2")
    a.I("s_add_u32 s17, s10, s12")
    a.I("s_lshr_b32 s18, s11, 2")
    if os.environ.get("OPX") == "same":
        a.I("s_mov_b32 s17, 0")
        a.I("s_mov_b32 s18, 0")
    if os.environ.get("OPX") == "map2":
        a.I("s_and_b32 s10, s2, 3")
        a.I("s_lshl_b32 s10, s10, 3")
        a.I("s_and_b32 s12, s11, 7")
        a.I("s_add_u32 s17, s10, s12")
        a.I("s_bfe_u32 s10, s2, 0x10002")
        a.I("s_lshl_b32 s10, s10, 2")
        a.I("s_lshr_b32 s12, s11, 3")
        a.I("s_add_u32 s18, s10, s12")
    a.I(f"v_lshlrev_b32 {v(L16)}, 4, v0")
    a.I(f"v_add_u32 {v(L16B)}, 0x40000, {v(L16)}")
    a.I("v_lshrrev_b32 v8, 3, v0")
    a.I("v_lshlrev_b32 v8, 10, v8")
    a.I("v_bfe_u32 v9, v0, 4, 1")
    a.I("v_lshlrev_b32 v10, 2, v9")
    a.I("v_and_b32 v11, 7, v0")
    a.I("v_xor_b32 v10, v10, v11")
    a.I(f"v_lshl_add_u32 {v(VD0)}, v10, 4, v8")
    a.I("s_lshl_b32 s10, s18, 7")
    a.I(f"v_add_u32 {v(VD0)}, s10, {v(VD0)}")
    a.I(f"v_add_u32 {v(VD1)}, {8192 - 1024}, {v(VD0)}")
    a.I("v_lshrrev_b32 v8, 5, v0")
    a.I("v_bfe_u32 v10, v0, 2, 2")
    a.I("v_lshl_add_u32 v8, v8, 2, v10")
    a.I(f"v_lshlrev_b32 {v(TB)}, 7, v8")
    a.I(f"v_lshl_add_u32 {v(TB)}, v9, 5, {v(TB)}")
    a.I("v_and_b32 v10, 3, v0")
    a.I(f"v_lshl_add_u32 {v(TB)}, v10, 3, {v(TB)}")
    a.I("v_bfe_u32 v10, v0, 3, 1")
    a.I(f"v_lshl_add_u32 {v(TB)}, v10, 6, {v(TB)}")
    a.I("s_lshl_b32 s19, s16, 14")
    a.I(f"v_add_u32 {v(TB)}, s19, {v(TB)}")
    a.I(f"v_xor_b32 {v(TB + 1)}, 64, {v(TB)}")
    a.I("s_lshl_b32 s40, s17, 19")
    a.I("s_lshl_b32 s10, s16, 16")
    a.I("s_add_u32 s40, s40, s10")
    a.I("s_lshl_b32 s41, s16, 20")
    ROT = int(os.environ.get("ROT", "0"))
    if ROT:
        a.I("s_and_b32 s45, s2, 7")
        a.I(f"s_mul_i32 s45, s45, {ROT}")
    a.I("s_waitcnt lgkmcnt(0)")
    srd(a, 20, 4, 5, 16 * MB, add=WS_CTX)
    srd(a, 24, 6, 7, 4 * MB)
    srd(a, 28, 8, 9, 4 * MB)
    vm, lg = VM(a), LG(a)
    st()

    def loads(g):
        sl = g % DEPTH
        a.I(f"s_add_u32 m0, s19, {sl * 2048}")
        if ROT:
            if g % 4 == 0:
                a.I(f"s_add_u32 s44, s45, {g}")
                a.I("s_and_b32 s44, s44, 63")
                a.I("s_lshl_b32 s46, s44, 14")
                a.I("s_add_u32 s46, s46, s41")
                a.I("s_lshl_b32 s44, s44, 10")
            a.I(f"s_add_u32 s42, s46, {hex((g % 4) * 16384)}")
        else:
            a.I(f"s_add_u32 s42, s41, {hex(g * 16384)}")
        vm.issue(f"buffer_load_dwordx4 {v(VD0)}, s[24:27], s42 offen lds", g)
        vm.issue(f"buffer_load_dwordx4 {v(VD1)}, s[24:27], s42 offen offset:1024 lds", g)
        if g % 4 == 0:
            a.I(f"s_add_u32 s43, s40, {'s44' if ROT else hex(g * 1024)}")
        vm.issue(f"buffer_load_dwordx4 {v(CR + 8 * sl, 4)}, {v(L16)}, s[20:23], s43 offen offset:{(g % 4) * 1024}", g)
        vm.issue(f"buffer_load_dwordx4 {v(CR + 8 * sl + 4, 4)}, {v(L16B)}, s[20:23], s43 offen offset:{(g % 4) * 1024}", g)

    def trs(g):
        sl = g % DEPTH
        vm.wait(g)
        for cb in range(2):
            d = AFR + 8 * (g & 1) + 4 * cb
            lg.issue(f"ds_read_b64_tr_b16 {v(d, 2)}, {v(TB + cb)} offset:{sl * 2048}", g)
            lg.issue(f"ds_read_b64_tr_b16 {v(d + 2, 2)}, {v(TB + cb)} offset:{sl * 2048 + 1024}", g)

    for g in range(DEPTH):
        loads(g)
    st()
    trs(0)
    st()
    for g in range(64):
        if g + 1 < 64:
            trs(g + 1)
        lg.wait(g)
        sl = g % DEPTH
        for qt in range(2):
            for cb in range(2):
                acc = v(ACC + 16 * (2 * qt + cb), 16)
                a.I(f"{MF} {acc}, {v(AFR + 8 * (g & 1) + 4 * cb, 4)}, {v(CR + 8 * sl + 4 * qt, 4)}, {'0' if g == 0 else acc}")
        if g + DEPTH < 64:
            loads(g + DEPTH)
        if g == bar_at:
            a.I("s_barrier")
    st()
    a.I(f"v_add_u32 v8, s19, {v(L16)}")
    a.I("s_nop 11")
    for tl in range(4):
        for jq in range(4):
            a.I(f"ds_write_b128 v8, {v(ACC + 16 * tl + 4 * jq, 4)} offset:{(tl * 4 + jq) * 1024}")
    a.I("v_lshrrev_b32 v9, 5, v0")
    a.I("v_and_b32 v10, 31, v0")
    a.I("v_lshlrev_b32 v10, 4, v10")
    a.I("v_lshl_add_u32 v9, v9, 13, v10")
    a.I("s_lshl_b32 s10, s16, 11")
    a.I("v_add_u32 v9, s10, v9")
    a.I("s_lshl_b32 s11, s17, 17")
    a.I("s_lshl_b32 s12, s18, 7")
    a.I("s_add_u32 s11, s11, s12")
    a.I("s_lshl_b32 s12, s16, 5")
    a.I("s_add_u32 s11, s11, s12")
    a.I("v_lshlrev_b32 v10, 11, v0")
    a.I("s_waitcnt lgkmcnt(0)")
    return ACC


def oproj_body2(a, N, st, bar_at=None):
    DEPTH = int(os.environ.get("ODEPTH", "8"))
    ACC, CR = 192 - 16 * DEPTH, 256 - 16 * DEPTH
    L16, L16B = 1, 2
    a.I("s_and_b32 s10, s2, 7")
    a.I("s_lshr_b32 s11, s2, 3")
    a.I("s_and_b32 s12, s11, 3")
    a.I("s_lshl_b32 s10, s10, 2")
    a.I("s_add_u32 s17, s10, s12")
    a.I("s_lshr_b32 s18, s11, 2")
    if os.environ.get("OPX") == "same":
        a.I("s_mov_b32 s17, 0")
        a.I("s_mov_b32 s18, 0")
    if os.environ.get("OPX") == "sameq":
        a.I("s_and_b32 s17, s17, 3")
    if os.environ.get("OPX") == "map2":
        a.I("s_and_b32 s10, s2, 3")
        a.I("s_lshl_b32 s10, s10, 3")
        a.I("s_and_b32 s12, s11, 7")
        a.I("s_add_u32 s17, s10, s12")
        a.I("s_bfe_u32 s10, s2, 0x10002")
        a.I("s_lshl_b32 s10, s10, 2")
        a.I("s_lshr_b32 s12, s11, 3")
        a.I("s_add_u32 s18, s10, s12")
    a.I(f"v_lshlrev_b32 {v(L16)}, 4, v0")
    a.I(f"v_add_u32 {v(L16B)}, 0x40000, {v(L16)}")
    a.I("s_lshl_b32 s19, s16, 14")
    a.I("s_lshl_b32 s40, s17, 19")
    a.I("s_lshl_b32 s10, s16, 16")
    a.I("s_add_u32 s40, s40, s10")
    a.I("s_lshl_b32 s41, s18, 19")
    a.I("s_lshl_b32 s10, s16, 17")
    a.I("s_add_u32 s41, s41, s10")
    a.I("s_waitcnt lgkmcnt(0)")
    srd(a, 20, 4, 5, 16 * MB, add=WS_CTX)
    srd(a, 24, 4, 5, 4 * MB, add=WS_WO)
    srd(a, 28, 8, 9, 4 * MB)
    vm = VM(a)
    st()

    def loads(g):
        sl = g % DEPTH
        L = []
        if g % 2 == 0:
            L.append(lambda: a.I(f"s_add_u32 s42, s41, {hex(g * 2048)}"))
        if g % 4 == 0:
            L.append(lambda: a.I(f"s_add_u32 s43, s40, {hex(g * 1024)}"))
        for cb in range(2):
            L.append(lambda cb=cb: vm.issue(f"buffer_load_dwordx4 {v(CR + 16 * sl + 4 * cb, 4)}, {v(L16)}, s[24:27], s42 offen "
                                            f"offset:{(g % 2) * 2048 + cb * 1024}", g))
        for qt in range(2):
            L.append(lambda qt=qt: vm.issue(f"buffer_load_dwordx4 {v(CR + 16 * sl + 8 + 4 * qt, 4)}, {v(L16 + qt)}, s[20:23], s43 offen "
                                            f"offset:{(g % 4) * 1024}", g))
        return L

    for g in range(DEPTH):
        for f in loads(g):
            f()
    st()
    st()
    for g in range(64):
        vm.wait(g)
        sl = g % DEPTH
        for qt in range(2):
            for cb in range(2):
                acc = v(ACC + 16 * (2 * qt + cb), 16)
                a.I(f"{MF} {acc}, {v(CR + 16 * sl + 4 * cb, 4)}, {v(CR + 16 * sl + 8 + 4 * qt, 4)}, {'0' if g == 0 else acc}")
        if g + DEPTH < 64:
            for f in loads(g + DEPTH):
                f()
        if g == bar_at:
            a.I("s_barrier")
    st()
    a.I(f"v_add_u32 v8, s19, {v(L16)}")
    a.I("v_lshrrev_b32 v9, 5, v0")
    a.I("v_and_b32 v10, 31, v0")
    a.I("v_lshlrev_b32 v10, 4, v10")
    a.I("v_lshl_add_u32 v9, v9, 13, v10")
    a.I("s_lshl_b32 s10, s16, 11")
    a.I("v_add_u32 v9, s10, v9")
    a.I("s_lshl_b32 s11, s17, 17")
    a.I("s_lshl_b32 s12, s18, 7")
    a.I("s_add_u32 s11, s11, s12")
    a.I("s_lshl_b32 s12, s16, 5")
    a.I("s_add_u32 s11, s11, s12")
    a.I("v_lshlrev_b32 v10, 11, v0")
    for tl in range(4):
        for jq in range(4):
            a.I(f"ds_write_b128 v8, {v(ACC + 16 * tl + 4 * jq, 4)} offset:{(tl * 4 + jq) * 1024}")
    a.I("s_waitcnt lgkmcnt(0)")
    return ACC


def oproj_body3(a, N, st, bar_at=None):
    DEPTH = 8
    ACC, FR = 64, 128
    L16, L16B, LR = 1, 2, 3
    a.I("s_and_b32 s10, s2, 7")
    a.I("s_lshr_b32 s11, s2, 3")
    a.I("s_and_b32 s12, s11, 3")
    a.I("s_lshl_b32 s10, s10, 2")
    a.I("s_add_u32 s17, s10, s12")
    a.I("s_lshr_b32 s18, s11, 2")
    a.I(f"v_lshlrev_b32 {v(L16)}, 4, v0")
    a.I(f"v_add_u32 {v(L16B)}, {0x40000 - 1024}, {v(L16)}")
    a.I("s_lshl_b32 s19, s16, 15")
    a.I(f"v_add_u32 {v(LR)}, s19, {v(L16)}")
    a.I("s_lshl_b32 s42, s18, 19")
    a.I("s_lshl_b32 s10, s16, 17")
    a.I("s_add_u32 s42, s42, s10")
    a.I("s_lshl_b32 s43, s17, 19")
    a.I("s_lshl_b32 s10, s16, 16")
    a.I("s_add_u32 s43, s43, s10")
    RB = int(os.environ.get("RB", "0"))
    if RB:
        a.I("s_lshl1_add_u32 s45, s12, s18")
        a.I("s_and_b32 s45, s45, 7")
        a.I(f"s_mul_i32 s45, s45, {RB // 8 * 1024}")
        a.I("s_mov_b32 s40, s43")
        a.I("s_mov_b32 s41, s42")
        a.I("s_add_u32 s43, s40, s45")
        a.I("s_lshl1_add_u32 s42, s45, s41")
    a.I("s_waitcnt lgkmcnt(0)")
    srd(a, 20, 4, 5, 16 * MB + 2048, add=WS_CTX - 2048)
    srd(a, 24, 4, 5, 4 * MB, add=WS_WO)
    srd(a, 28, 8, 9, 4 * MB)
    vm, lg = VM(a), LG(a)
    st()

    def loads(g):
        sl = g % DEPTH
        return [lambda: a.I(f"s_add_u32 m0, s19, {sl * 4096}"),
                lambda: a.I("s_nop 0") if g < DEPTH else None,
                lambda: vm.issue(f"buffer_load_dwordx4 {v(L16)}, s[24:27], s42 offen lds", g),
                lambda: vm.issue(f"buffer_load_dwordx4 {v(L16)}, s[24:27], s42 offen offset:1024 lds", g),
                lambda: vm.issue(f"buffer_load_dwordx4 {v(L16)}, s[20:23], s43 offen offset:2048 lds", g),
                lambda: vm.issue(f"buffer_load_dwordx4 {v(L16B)}, s[20:23], s43 offen offset:3072 lds", g),
                lambda: nxt(g), lambda: None]

    def nxt(g):
        if not RB:
            a.I("s_add_u32 s42, s42, 2048")
            a.I("s_add_u32 s43, s43, 1024")
            return
        a.I("s_add_u32 s45, s45, 1024")
        a.I(f"s_and_b32 s45, s45, {RB * 1024 - 1}")
        if (g + 1) % RB == 0:
            a.I(f"s_add_u32 s40, s40, {RB * 1024}")
            a.I(f"s_add_u32 s41, s41, {RB * 2048}")
        a.I("s_add_u32 s43, s40, s45")
        a.I("s_lshl1_add_u32 s42, s45, s41")

    def reads(g):
        vm.wait(g)
        for q in range(4):
            lg.issue(f"ds_read_b128 {v(FR + 16 * (g & 1) + 4 * q, 4)}, {v(LR)} offset:{(g % DEPTH) * 4096 + q * 1024}", g)

    for g in range(DEPTH):
        for f in loads(g):
            f()
    st()
    reads(0)
    st()
    for g in range(64):
        if g + 1 < 64:
            reads(g + 1)
        lg.wait(g)
        L = loads(g + DEPTH) if g + DEPTH < 64 else []
        fr = FR + 16 * (g & 1)
        for qt in range(2):
            for cb in range(2):
                acc = v(ACC + 16 * (2 * qt + cb), 16)
                if L:
                    L.pop(0)()
                a.I(f"{MF} {acc}, {v(fr + 4 * cb, 4)}, {v(fr + 8 + 4 * qt, 4)}, {'0' if g == 0 else acc}")
                if L:
                    L.pop(0)()
        if g == bar_at:
            a.I("s_barrier")
    st()
    a.I("v_lshrrev_b32 v9, 5, v0")
    a.I("v_and_b32 v10, 31, v0")
    a.I("v_lshlrev_b32 v10, 4, v10")
    a.I("v_lshl_add_u32 v9, v9, 13, v10")
    a.I("s_lshl_b32 s10, s16, 11")
    a.I("v_add_u32 v9, s10, v9")
    a.I("s_lshl_b32 s11, s17, 17")
    a.I("s_lshl_b32 s12, s18, 7")
    a.I("s_add_u32 s11, s11, s12")
    a.I("s_lshl_b32 s12, s16, 5")
    a.I("s_add_u32 s11, s11, s12")
    a.I("v_lshlrev_b32 v10, 11, v0")
    for tl in range(4):
        for jq in range(4):
            a.I(f"ds_write_b128 {v(LR)}, {v(ACC + 16 * tl + 4 * jq, 4)} offset:{(tl * 4 + jq) * 1024}")
    a.I("s_waitcnt lgkmcnt(0)")
    return ACC


def oproj_body4(a, N, st, bar_at=None):
    DEPTH = 4
    ACC, FR = 32, 96
    L16, L16B, LR = 1, 2, 3
    a.I("s_and_b32 s10, s2, 7")
    a.I("s_lshr_b32 s11, s2, 3")
    a.I("s_and_b32 s12, s11, 3")
    a.I("s_lshl_b32 s10, s10, 2")
    a.I("s_add_u32 s17, s10, s12")
    a.I("s_lshr_b32 s18, s11, 2")
    a.I(f"v_lshlrev_b32 {v(L16)}, 4, v0")
    a.I(f"v_add_u32 {v(L16B)}, {0x40000 - 1024}, {v(L16)}")
    a.I("s_lshl_b32 s19, s16, 14")
    a.I(f"v_add_u32 {v(LR)}, s19, {v(L16)}")
    a.I("s_lshl_b32 s42, s18, 19")
    a.I("s_lshl_b32 s10, s16, 16")
    a.I("s_add_u32 s42, s42, s10")
    a.I("s_lshl_b32 s43, s17, 19")
    a.I("s_lshl_b32 s10, s16, 15")
    a.I("s_add_u32 s43, s43, s10")
    a.I("s_waitcnt lgkmcnt(0)")
    srd(a, 20, 4, 5, 16 * MB + 2048, add=WS_CTX - 2048)
    srd(a, 24, 4, 5, 4 * MB, add=WS_WO)
    vm, lg = VM(a), LG(a)
    st()

    def loads(g):
        sl = g % DEPTH
        return [lambda: a.I(f"s_add_u32 m0, s19, {sl * 4096}"),
                lambda: a.I("s_nop 0") if g < DEPTH else None,
                lambda: vm.issue(f"buffer_load_dwordx4 {v(L16)}, s[24:27], s42 offen lds", g),
                lambda: vm.issue(f"buffer_load_dwordx4 {v(L16)}, s[24:27], s42 offen offset:1024 lds", g),
                lambda: vm.issue(f"buffer_load_dwordx4 {v(L16)}, s[20:23], s43 offen offset:2048 lds", g),
                lambda: vm.issue(f"buffer_load_dwordx4 {v(L16B)}, s[20:23], s43 offen offset:3072 lds", g),
                lambda: a.I("s_add_u32 s42, s42, 2048"),
                lambda: a.I("s_add_u32 s43, s43, 1024")]

    def reads(g):
        vm.wait(g)
        for q in range(4):
            lg.issue(f"ds_read_b128 {v(FR + 16 * (g & 1) + 4 * q, 4)}, {v(LR)} offset:{(g % DEPTH) * 4096 + q * 1024}", g)

    for g in range(DEPTH):
        for f in loads(g):
            f()
    srd(a, 28, 8, 9, 4 * MB)
    a.I("v_lshrrev_b32 v9, 5, v0")
    a.I("v_and_b32 v10, 31, v0")
    a.I("v_lshlrev_b32 v10, 4, v10")
    a.I("v_lshl_add_u32 v9, v9, 13, v10")
    a.I("s_lshl_b32 s10, s16, 10")
    a.I("v_add_u32 v9, s10, v9")
    a.I("v_add_u32 v11, 0x10000, v9")
    a.I("s_lshl_b32 s11, s17, 17")
    a.I("s_lshl_b32 s12, s18, 7")
    a.I("s_add_u32 s11, s11, s12")
    a.I("s_lshl_b32 s12, s16, 4")
    a.I("s_add_u32 s11, s11, s12")
    a.I("v_lshlrev_b32 v10, 11, v0")
    st()
    reads(0)
    st()
    NG = 32
    for g in range(NG):
        if g + 1 < NG:
            reads(g + 1)
        lg.wait(g)
        L = loads(g + DEPTH) if g + DEPTH < NG else []
        fr = FR + 16 * (g & 1)
        for qt in range(2):
            for cb in range(2):
                acc = v(ACC + 16 * (2 * qt + cb), 16)
                if L:
                    L.pop(0)()
                a.I(f"{MF} {acc}, {v(fr + 4 * cb, 4)}, {v(fr + 8 + 4 * qt, 4)}, {'0' if g == 0 else acc}")
                if L:
                    L.pop(0)()
        if g == bar_at:
            a.I("s_barrier")
    st()
    a.I("s_nop 8")
    for tl in range(4):
        for jq in range(4):
            a.I(f"ds_write_b128 {v(LR)}, {v(ACC + 16 * tl + 4 * jq, 4)} offset:{(tl * 4 + jq) * 1024}")
    a.I("s_waitcnt lgkmcnt(0)")
    a.I("s_barrier")
    for pw in range(8):
        for hl in range(2):
            a.I(f"ds_read_b128 {v(ACC + 8 * pw + 4 * hl, 4)}, {v(9 if pw < 4 else 11)} offset:{(pw % 4) * 16384 + hl * 512}")
        if pw == 6:
            a.I("s_waitcnt lgkmcnt(6)")
    for j in range(8):
        a.I(f"v_add_f32 {v(ACC + j)}, {v(ACC + j)}, {v(ACC + 8 + j)}")
        a.I(f"v_add_f32 {v(ACC + 16 + j)}, {v(ACC + 16 + j)}, {v(ACC + 24 + j)}")
    a.I("s_waitcnt lgkmcnt(0)")
    for j in range(8):
        a.I(f"v_add_f32 {v(ACC + 32 + j)}, {v(ACC + 32 + j)}, {v(ACC + 40 + j)}")
        a.I(f"v_add_f32 {v(ACC + 48 + j)}, {v(ACC + 48 + j)}, {v(ACC + 56 + j)}")
    for j in range(8):
        a.I(f"v_add_f32 {v(ACC + j)}, {v(ACC + j)}, {v(ACC + 16 + j)}")
        a.I(f"v_add_f32 {v(ACC + 32 + j)}, {v(ACC + 32 + j)}, {v(ACC + 48 + j)}")
    for j in range(8):
        a.I(f"v_add_f32 {v(ACC + j)}, {v(ACC + j)}, {v(ACC + 32 + j)}")
    for i in range(4):
        a.I(f"v_cvt_pk_bf16_f32 {v(12 + i)}, {v(ACC + 2 * i)}, {v(ACC + 2 * i + 1)}")
    a.I("buffer_store_dwordx4 v[12:15], v10, s[28:31], s11 offen")


def oproj_finish(a, ACC, PW=16384):
    for pw in range(4):
        for i in range(4):
            jq, hl = divmod(i, 2)
            if pw == 2 and i == 0 and PW > 16384:
                a.I("v_add_u32 v9, 0x10000, v9")
            a.I(f"ds_read_b128 {v(ACC + 16 * pw + 4 * i, 4)}, v9 offset:{(pw * PW) % 65536 + jq * 1024 + hl * 512}")
        if pw == 1:
            a.I("s_waitcnt lgkmcnt(0)")
            for j in range(16):
                a.I(f"v_add_f32 {v(ACC + j)}, {v(ACC + j)}, {v(ACC + 16 + j)}")
    a.I("s_waitcnt lgkmcnt(0)")
    for j in range(16):
        a.I(f"v_add_f32 {v(ACC + 32 + j)}, {v(ACC + 32 + j)}, {v(ACC + 48 + j)}")
    for j in range(16):
        a.I(f"v_add_f32 {v(ACC + j)}, {v(ACC + j)}, {v(ACC + 32 + j)}")
    for i in range(8):
        a.I(f"v_cvt_pk_bf16_f32 {v(12 + i)}, {v(ACC + 2 * i)}, {v(ACC + 2 * i + 1)}")
    a.I("buffer_store_dwordx4 v[12:15], v10, s[28:31], s11 offen")
    a.I("buffer_store_dwordx4 v[16:19], v10, s[28:31], s11 offen offset:16")


def gen_oproj():
    a = Asm()
    N = "oproj_kernel"
    kstart(a, N, 256)
    a.I("s_load_dwordx2 s[4:5], s[0:1], 88")
    a.I("s_load_dwordx2 s[6:7], s[0:1], 40")
    a.I("s_load_dwordx2 s[8:9], s[0:1], 72")
    a.I("v_lshrrev_b32 v1, 6, v0")
    a.I("v_and_b32 v0, 63, v0")
    a.I("s_nop 0")
    a.I("v_readfirstlane_b32 s16, v1")
    a.I("s_nop 0")
    st = Stamper(a, "oproj")
    ACC = oproj_body(a, N, st)
    a.I("s_barrier")
    oproj_finish(a, ACC)
    st.dump(16, 4, tmpv=8)
    kend(a, N)
    return a, N, (256, 256, 65536)


def PERMC(j):
    return 8 * (j >> 2) + (j & 3)


def gen_mat(a, dst, nf, base, consts, tmp):
    n = len(consts)
    for i in range(0, n, 4):
        for q in range(4):
            a.I(f"v_fmamk_f32 {v(tmp + q)}, {v(nf)}, {f32(float(consts[i + q]))}, {v(base)}")
        for q in range(4):
            a.I(f"v_cos_f32 {v(tmp + q)}, {v(tmp + q)}")
        a.I("s_nop 0")
        for q in range(2):
            a.I(f"v_cvt_pk_bf16_f32 {v(dst + i // 2 + q)}, {v(tmp + 2 * q)}, {v(tmp + 2 * q + 1)}")


def twiddle(a, Dr, Di, regs, nf, base, consts, sign, tmp):
    for x, c in enumerate(consts):
        A, C, S_, U = tmp, tmp + 1, tmp + 2, tmp + 3
        a.I(f"v_fmamk_f32 {v(A)}, {v(nf)}, {f32(float(c))}, {v(base)}")
        a.I(f"v_cos_f32 {v(C)}, {v(A)}")
        a.I(f"v_sin_f32 {v(S_)}, {v(A)}")
        a.I("s_nop 0")
        for j in regs[x]:
            ng = "-" if sign > 0 else ""
            ps = "" if sign > 0 else "-"
            a.I(f"v_mul_f32 {v(U)}, {v(Dr + j)}, {v(S_)}")
            a.I(f"v_mul_f32 {v(Dr + j)}, {v(Dr + j)}, {v(C)}")
            a.I(f"v_fma_f32 {v(Dr + j)}, {ng}{v(Di + j)}, {v(S_)}, {v(Dr + j)}")
            a.I(f"v_fma_f32 {v(Di + j)}, {v(Di + j)}, {v(C)}, {ps}{v(U)}")


def trig(a, j, C, S_, nf, base, c, tmp, scale=None):
    L = [f"v_fmamk_f32 {v(tmp)}, {v(nf)}, {f32(float(c))}, {v(base)}",
         f"v_cos_f32 {v(C)}, {v(tmp)}", f"v_sin_f32 {v(S_)}, {v(tmp)}"]
    return L


def cmul(a, Dr, Di, C, S_, sign, U):
    ng = "-" if sign > 0 else ""
    ps = "" if sign > 0 else "-"
    a.I(f"v_mul_f32 {v(U)}, {v(Dr)}, {v(S_)}")
    a.I(f"v_mul_f32 {v(Dr)}, {v(Dr)}, {v(C)}")
    a.I(f"v_fma_f32 {v(Dr)}, {ng}{v(Di)}, {v(S_)}, {v(Dr)}")
    a.I(f"v_fma_f32 {v(Di)}, {v(Di)}, {v(C)}, {ps}{v(U)}")


def pack(a, dst, src, n):
    for i in range(n):
        a.I(f"v_cvt_pk_bf16_f32 {v(dst + i)}, {v(src + 2 * i)}, {v(src + 2 * i + 1)}")


def b_decode(a):
    a.I("s_and_b32 s20, s2, 7")
    a.I("s_lshl_b32 s20, s20, 3")
    a.I("s_bfe_u32 s22, s2, 0x30003")
    a.I("s_or_b32 s20, s20, s22")
    a.I("s_lshr_b32 s21, s2, 6")


def gen_b1():
    a = Asm()
    N = "b1_kernel"
    kstart(a, N, 256)
    a.I("s_load_dwordx2 s[4:5], s[0:1], 88")
    a.I("s_load_dwordx4 s[8:11], s[0:1], 48")
    a.I("s_load_dwordx2 s[12:13], s[0:1], 64")
    a.I("v_lshrrev_b32 v1, 6, v0")
    a.I("v_and_b32 v2, 255, v0")
    a.I("v_and_b32 v0, 63, v0")
    a.I("v_readfirstlane_b32 s16, v1")
    b_decode(a)
    a.I("s_lshr_b32 s23, s21, 1")
    a.I("s_lshl_b32 s23, s23, 11")
    a.I("s_lshr_b32 s24, s20, 5")
    a.I("s_lshl_b32 s24, s24, 10")
    a.I("s_add_u32 s23, s23, s24")
    a.I("s_and_b32 s24, s20, 31")
    a.I("s_lshl_b32 s24, s24, 4")
    a.I("s_add_u32 s23, s23, s24")
    a.I("s_and_b32 s24, s21, 1")
    a.I("s_lshl_b32 s24, s24, 9")
    a.I("s_add_u32 s23, s23, s24")
    a.I("s_add_u32 s24, s23, 4096")
    a.I("v_lshlrev_b32 v3, 13, v2")
    a.I("s_cmp_ge_u32 s16, 4")
    a.I("s_waitcnt lgkmcnt(0)")
    a.I(f"s_cbranch_scc1 {N}_filt")
    srd(a, 28, 8, 9, 2 * MB)
    srd(a, 32, 4, 5, 257 * 8192, add=WS_Y)
    a.I("s_lshr_b32 s25, s21, 1")
    a.I("s_lshl_b32 s25, s25, 4")
    a.I("s_and_b32 s26, s21, 1")
    a.I("s_lshl_b32 s26, s26, 2")
    a.I("s_add_u32 s25, s25, s26")
    a.I("s_lshr_b32 s26, s16, 1")
    a.I("s_lshl_b32 s26, s26, 3")
    a.I("s_add_u32 s25, s25, s26")
    a.I("s_and_b32 s26, s16, 1")
    a.I("s_lshl_b32 s26, s26, 1")
    a.I("s_add_u32 s25, s25, s26")
    a.I("s_lshl_b32 s25, s25, 6")
    a.I("s_add_u32 s25, s25, s20")
    a.I("s_lshl_b32 s25, s25, 10")
    a.I(f"s_add_u32 s26, s25, {65536 - 1024}")
    a.I("s_lshl_b32 s27, s16, 11")
    a.I("s_mov_b32 m0, s27")
    a.I("v_lshlrev_b32 v4, 4, v0")
    a.I("buffer_load_dwordx4 v4, s[28:31], s25 offen lds")
    a.I("buffer_load_dwordx4 v4, s[28:31], s26 offen offset:1024 lds")
    HL, NF, BS, TM = 5, 6, 7, 8
    C32, NS32, AR, AI, XF, D1R, D1I, TR, TI, D2 = 16, 24, 32, 36, 40, 48, 64, 80, 88, 96
    a.I(f"v_lshrrev_b32 {v(HL)}, 5, v0")
    a.I(f"v_cvt_f32_u32 {v(HL)}, {v(HL)}")
    a.I("v_and_b32 v12, 31, v0")
    a.I("v_cvt_f32_u32 v12, v12")
    a.I(f"v_mul_f32 {v(NF)}, {f32(1 / 32)}, v12")
    a.I(f"v_mul_f32 {v(BS)}, {v(NF)}, {v(HL)}")
    a.I(f"v_mul_f32 {v(BS)}, {f32(8.0)}, {v(BS)}")
    nat = [16 * t + j for t in range(2) for j in range(8)]
    gen_mat(a, C32, NF, BS, nat, TM)
    a.I(f"v_add_f32 {v(BS)}, {f32(0.25)}, {v(BS)}")
    gen_mat(a, NS32, NF, BS, nat, TM)
    a.I("v_and_b32 v13, 15, v0")
    a.I("v_cvt_f32_u32 v13, v13")
    a.I(f"v_mul_f32 {v(NF)}, {f32(1 / 16)}, v13")
    a.I("v_bfe_u32 v13, v0, 4, 1")
    a.I("v_cvt_f32_u32 v13, v13")
    a.I(f"v_mul_f32 {v(BS)}, {v(NF)}, {v(HL)}")
    a.I(f"v_mul_f32 {v(BS)}, 4.0, {v(BS)}")
    a.I(f"v_fmamk_f32 {v(BS)}, v13, {f32(0.25)}, {v(BS)}")
    pc = [PERMC(j) for j in range(8)]
    gen_mat(a, AR, NF, BS, pc, TM)
    a.I(f"v_add_f32 {v(BS)}, {f32(-0.25)}, {v(BS)}")
    gen_mat(a, AI, NF, BS, pc, TM)
    a.I("v_bfe_u32 v13, v0, 4, 1")
    a.I("v_lshlrev_b32 v13, 10, v13")
    a.I("v_lshrrev_b32 v14, 5, v0")
    a.I("v_lshl_add_u32 v13, v14, 8, v13")
    a.I("v_and_b32 v15, 15, v0")
    a.I("v_lshl_add_u32 v13, v15, 3, v13")
    a.I("v_add_u32 v13, s27, v13")
    a.I("s_waitcnt vmcnt(0)")
    for t in range(2):
        for h in range(2):
            a.I(f"ds_read_b64_tr_b16 {v(XF + 4 * t + 2 * h, 2)}, v13 offset:{t * 512 + h * 128}")
    a.I(f"v_mul_f32 {v(NF)}, {f32(1 / 512)}, v12")
    a.I(f"v_mul_f32 {v(BS)}, {v(NF)}, {v(HL)}")
    a.I(f"v_mul_f32 {v(BS)}, 4.0, {v(BS)}")
    a.I("s_waitcnt lgkmcnt(0)")
    for t in range(2):
        a.I(f"{MF} {v(D1R, 16)}, {v(XF + 4 * t, 4)}, {v(C32 + 4 * t, 4)}, {'0' if t == 0 else v(D1R, 16)}")
    for t in range(2):
        a.I(f"{MF} {v(D1I, 16)}, {v(XF + 4 * t, 4)}, {v(NS32 + 4 * t, 4)}, {'0' if t == 0 else v(D1I, 16)}")
    a.I("v_and_b32 v15, 31, v0")
    a.I("v_lshlrev_b32 v15, 4, v15")
    a.I("v_lshl_add_u32 v15, v14, 11, v15")
    a.I("s_lshl_b32 s25, s16, 2")
    a.I("s_add_u32 s25, s25, 8192")
    a.I("v_add_u32 v15, s25, v15")
    a.I("s_nop 7")
    twiddle(a, D1R, D1I, [[j, j + 8] for j in range(8)], NF, BS, pc, -1, TM)
    pack(a, TR, D1R, 8)
    pack(a, TI, D1I, 8)
    a.I("s_nop 1")
    for r in range(2):
        a.I(f"{MF} {v(D2 + 16 * r, 16)}, {v(AR, 4)}, {v(TR + 4 * r, 4)}, 0")
        a.I(f"{MF} {v(D2 + 16 * r, 16)}, {v(AI, 4)}, {v(TI + 4 * r, 4)}, {v(D2 + 16 * r, 16)}")
    a.I("s_nop 11")
    for c in range(2):
        for j in range(5):
            a.I(f"v_cvt_pk_bf16_f32 {v(TR + 5 * c + j)}, {v(D2 + 8 * c + j)}, {v(D2 + 16 + 8 * c + j)}")
    for c in range(2):
        for j in range(4):
            a.I(f"ds_write_b32 v15, {v(TR + 5 * c + j)} offset:{(c * 8 + j) * 512}")
    a.I("v_cmp_eq_u32 vcc, 0, v0")
    a.I("s_and_saveexec_b64 s[36:37], vcc")
    for c in range(2):
        a.I(f"ds_write_b32 v15, {v(TR + 5 * c + 4)} offset:{8192 + 16 * c}")
    a.I("s_mov_b64 exec, s[36:37]")
    a.I("v_lshlrev_b32 v14, 4, v2")
    a.I("s_waitcnt lgkmcnt(0)")
    a.I("s_barrier")
    a.I("ds_read_b128 v[16:19], v14 offset:8192")
    a.I(f"ds_read_b128 v[20:23], v14 offset:{8192 + 4096}")
    a.I(f"ds_read_b128 v[24:27], v14 offset:{8192 + 8192}")
    a.I("v_lshlrev_b32 v13, 12, v2")
    a.I(f"v_add_u32 v13, {256 * 8192}, v13")
    a.I("s_waitcnt lgkmcnt(0)")
    a.I("buffer_store_dwordx4 v[16:19], v3, s[32:35], s23 offen")
    a.I("buffer_store_dwordx4 v[20:23], v3, s[32:35], s24 offen")
    a.I("v_cmp_gt_u32 vcc, 2, v2")
    a.I("s_and_saveexec_b64 s[36:37], vcc")
    a.I(f"s_cbranch_execz {N}_end")
    a.I("buffer_store_dwordx4 v[24:27], v13, s[32:35], s23 offen")
    a.I("s_endpgm")
    a.label(f"{N}_filt")
    srd(a, 28, 10, 11, 2048 * 514)
    srd(a, 32, 12, 13, 2048 * 514)
    srd(a, 36, 4, 5, 257 * 8192, add=WS_WF)
    a.I("s_lshr_b32 s25, s21, 1")
    a.I("s_lshl_b32 s25, s25, 5")
    a.I("s_lshr_b32 s26, s20, 5")
    a.I("s_lshl_b32 s26, s26, 4")
    a.I("s_add_u32 s25, s25, s26")
    a.I("s_and_b32 s26, s21, 1")
    a.I("s_lshl_b32 s26, s26, 2")
    a.I("s_add_u32 s25, s25, s26")
    a.I("s_lshl_b32 s25, s25, 5")
    a.I("s_and_b32 s26, s20, 31")
    a.I("s_add_u32 s25, s25, s26")
    a.I("s_mul_i32 s25, s25, 514")
    for j in range(8):
        a.I(f"s_add_u32 s{40 + j}, s25, {PERMC(j) * 32 * 514}")
    a.I("v_lshlrev_b32 v4, 1, v2")
    a.I("v_mov_b32 v5, 512")
    for q, va in enumerate((4, 5)):
        for c in range(2):
            for j in range(8):
                a.I(f"buffer_load_ushort {v(32 + 16 * q + 8 * c + j)}, {v(va)}, s[{28 + 4 * c}:{31 + 4 * c}], s{40 + j} offen")
    a.I(f"v_mov_b32 v6, {256 * 8192}")
    a.I("s_waitcnt vmcnt(16)")
    for i in range(8):
        a.I(f"v_lshl_or_b32 {v(16 + i)}, {v(33 + 2 * i)}, 16, {v(32 + 2 * i)}")
    a.I("buffer_store_dwordx4 v[16:19], v3, s[36:39], s23 offen")
    a.I("buffer_store_dwordx4 v[20:23], v3, s[36:39], s24 offen")
    a.I("v_cmp_eq_u32 vcc, 0, v2")
    a.I("s_and_saveexec_b64 s[48:49], vcc")
    a.I(f"s_cbranch_execz {N}_end")
    a.I("s_waitcnt vmcnt(2)")
    for i in range(8):
        a.I(f"v_lshl_or_b32 {v(24 + i)}, {v(49 + 2 * i)}, 16, {v(48 + 2 * i)}")
    a.I("buffer_store_dwordx4 v[24:27], v6, s[36:39], s23 offen")
    a.I("buffer_store_dwordx4 v[28:31], v6, s[36:39], s24 offen")
    kend(a, N)
    return a, N, (256, 512, 20480)


def b2_loads(a, vm, col_s, own_s, L16, YR, WR, S0, SR):
    sY, sW = S0, S0 + 2
    a.I(f"s_lshl_b32 {s(sY)}, {s(col_s)}, 13")
    a.I(f"s_lshl_b32 {s(own_s)}, {s(own_s)}, 10")
    a.I(f"s_add_u32 {s(sY)}, {s(sY)}, {s(own_s)}")
    a.I(f"s_add_u32 {s(sY + 1)}, {s(sY)}, 4096")
    a.I(f"s_add_u32 {s(sW)}, {s(sY)}, {s(own_s)}")
    a.I(f"s_add_u32 {s(sW + 1)}, {s(sW)}, 4096")
    srd(a, SR, 4, 5, 257 * 8192, add=WS_Y)
    for c in range(2):
        for t in range(2):
            vm.issue(f"buffer_load_dwordx4 {v(YR + 8 * c + 4 * t, 4)}, {v(L16)}, {s(SR, 4)}, {s(sY + c)} offen offset:{t * 2048}", "Y")
    srd(a, SR + 4, 4, 5, 257 * 8192, add=WS_WF)
    for c in range(2):
        for h in range(2):
            vm.issue(f"buffer_load_dwordx4 {v(WR + 8 * c + 4 * h, 4)}, {v(L16)}, {s(SR + 4, 4)}, {s(sW + c)} offen offset:{h * 1024}", "WF")


def b2_body(a, own, col_s, lds_s, svc, vm, R0=0, S0=20, SR=28, slice_len=110, rmap=None, after_loads=None, st=lambda: None, preloaded=False, compact_ex=False, newer=8, zpol=''):
    L16, HL, NF, BS, LF, XA, XB, TM, LB = [R0 + x for x in (1, 2, 3, 4, 5, 6, 7, 8, 12)]
    YR, YI, WR, WI = [R0 + x for x in (16, 24, 32, 40)]
    C32, S32, NS32, C64, S64 = [R0 + x for x in (48, 56, 64, 72, 88)]
    DR, DI = R0 + 104, R0 + 120
    FR, FI, FN = R0 + 136, R0 + 152, R0 + 168
    XT = 240
    if rmap:
        L16, HL, NF, BS, LF, XA, XB, TM, LB, YR, YI, WR, WI, C32, S32, NS32, C64, S64, DR, DI, FR, FI, FN = rmap
    sY, sW, sSC, sT = S0, S0 + 2, S0 + 4, S0 + 5
    I0 = a.I
    cnt = [0]

    def I(text):
        r = I0(text)
        cnt[0] += 1
        if cnt[0] >= slice_len and (text.startswith("v_cvt_pk") or text.startswith("v_fma_f32") or text.startswith("v_sin")):
            dosvc()
        return r

    def dosvc():
        a.I = I0
        svc()
        a.I = I
        cnt[0] = 0

    a.I(f"v_lshlrev_b32 {v(L16)}, 4, v0")
    if preloaded:
        vm.q += ["Y"] * 4 + ["WF"] * 4 + ["Q"] * newer
    else:
        a.I(f"s_mov_b32 {s(sT)}, {own}")
        b2_loads(a, vm, col_s, sT, L16, YR, WR, S0, SR)
    srd(a, SR + 8, 4, 5, 257 * 8192, add=WS_Z)
    a.I = I
    a.I(f"s_mov_b32 {s(sSC)}, {f32(2.0 ** -19)}")
    a.I(f"s_and_b32 {s(sT)}, {s(col_s)}, 255")
    a.I(f"s_cmp_eq_u32 {s(sT)}, 0")
    a.I(f"s_cselect_b32 {s(sSC)}, {f32(2.0 ** -20)}, {s(sSC)}")
    a.I(f"v_lshrrev_b32 {v(HL)}, 5, v0")
    a.I(f"v_cvt_f32_u32 {v(HL)}, {v(HL)}")
    a.I(f"v_mul_f32 {v(HL)}, 4.0, {v(HL)}")
    a.I(f"v_and_b32 {v(LF)}, 31, v0")
    a.I(f"v_cvt_f32_u32 {v(LF)}, {v(LF)}")
    a.I(f"v_add_f32 {v(LB)}, {f32(32.0 * own)}, {v(LF)}")
    pc = lambda n: [16 * t + PERMC(j) for t in range(n) for j in range(8)]
    a.I(f"v_mul_f32 {v(NF)}, {f32(1 / 32)}, {v(LF)}")
    a.I(f"v_mul_f32 {v(BS)}, {v(NF)}, {v(HL)}")
    gen_mat(a, C32, NF, BS, pc(2), TM)
    a.I(f"v_add_f32 {v(BS)}, {f32(-0.25)}, {v(BS)}")
    gen_mat(a, S32, NF, BS, pc(2), TM)
    for i in range(8):
        a.I(f"v_xor_b32 {v(NS32 + i)}, 0x80008000, {v(S32 + i)}")
    a.I(f"v_mul_f32 {v(NF)}, {f32(1 / 64)}, {v(LB)}")
    a.I(f"v_mul_f32 {v(BS)}, {v(NF)}, {v(HL)}")
    gen_mat(a, C64, NF, BS, pc(4), TM)
    a.I(f"v_add_f32 {v(BS)}, {f32(-0.25)}, {v(BS)}")
    gen_mat(a, S64, NF, BS, pc(4), TM)
    a.I(f"v_add_u32 {v(XA)}, {s(lds_s)}, {v(L16)}")
    a.I(f"v_add_u32 {v(XB)}, {(1 - own) * 4096}, {v(XA)}")
    a.I(f"v_add_u32 {v(XA)}, {own * 4096}, {v(XA)}")

    def mm(D, terms, fill=None, per=3):
        first = True
        for A_, B_ in terms:
            a.I(f"{MF} {v(D, 16)}, {v(A_, 4)}, {v(B_, 4)}, {'0' if first else v(D, 16)}")
            first = False
            if fill:
                for x in fill[:per]:
                    a.I(x)
                del fill[:per]

    def exchange(neg_of, ldsoff):
        nonlocal XA, XB
        if compact_ex and ldsoff:
            XA, XB, ldsoff = XB, XA, 0
        for c, F in enumerate((FR, FI)):
            for h in range(2):
                a.I(f"ds_write_b128 {v(XA)}, {v(F + 8 * own + 4 * h, 4)} offset:{ldsoff + (2 * c + h) * 1024}")
        a.I("s_waitcnt lgkmcnt(0)")
        dosvc()
        for c, F in enumerate((FR, FI)):
            for h in range(2):
                a.I(f"ds_read_b128 {v(F + 8 * (1 - own) + 4 * h, 4)}, {v(XB)} offset:{ldsoff + (2 * c + h) * 1024}")
        for i in range(8):
            a.I(f"v_xor_b32 {v(FN + 8 * own + i)}, 0x80008000, {v(neg_of + 8 * own + i)}")
        a.I("s_waitcnt lgkmcnt(0)")
        for i in range(8):
            a.I(f"v_xor_b32 {v(FN + 8 * (1 - own) + i)}, 0x80008000, {v(neg_of + 8 * (1 - own) + i)}")
        a.I("s_nop 1")

    jc = [(j & 3) + 8 * (j >> 2) for j in range(16)]
    o = 8 * (1 - own)
    T1C = [FN + j for j in range(16)]
    T1S = [FR + o + j for j in range(8)] + [FI + o + j for j in range(8)]
    a.I(f"v_mul_f32 {v(NF)}, {f32(1 / 2048)}, {v(LF)}")
    a.I(f"v_add_f32 {v(BS)}, {f32(32.0 * own)}, {v(HL)}")
    a.I(f"v_mul_f32 {v(BS)}, {v(NF)}, {v(BS)}")
    for j in range(16):
        a.many(trig(a, j, T1C[j], T1S[j], NF, BS, jc[j], TM + (j & 1)))
    a.I(f"v_mul_f32 {v(NF)}, {f32(1 / 2048)}, {v(LB)}")
    a.I(f"v_mul_f32 {v(BS)}, {v(NF)}, {v(HL)}")
    st()
    vm.wait("Y")
    st()
    mm(DR, [(YR, C32), (YR + 4, C32 + 4), (YI, S32), (YI + 4, S32 + 4)])
    mm(DI, [(YI, C32), (YI + 4, C32 + 4), (YR, NS32), (YR + 4, NS32 + 4)])
    a.I("s_nop 11")
    for j in range(16):
        cmul(a, DR + j, DI + j, T1C[j], T1S[j], -1, TM)
    pack(a, FR + 8 * own, DR, 8)
    pack(a, FI + 8 * own, DI, 8)
    exchange(FR, 0)
    st()
    if after_loads:
        after_loads()
    T2C = [YR + j for j in range(8)] + [YI + j for j in range(8)]
    fill = []
    for j in range(16):
        fill += trig(a, j, T2C[j], XT + j, NF, BS, jc[j], TM + (j & 1))
    mm(DR, [(C64 + 4 * t, FR + 4 * t) for t in range(4)] + [(S64 + 4 * t, FI + 4 * t) for t in range(4)], fill)
    mm(DI, [(C64 + 4 * t, FI + 4 * t) for t in range(4)] + [(S64 + 4 * t, FN + 4 * t) for t in range(4)], fill)
    assert not fill
    vm.wait("WF")
    for j in range(12):
        a.I(f"v_mul_f32 {v(T2C[j])}, {s(sSC)}, {v(T2C[j])}")
    for j in range(16):
        wr, wi, u = TM, TM + 1, TM + 2
        if j & 1:
            a.I(f"v_and_b32 {v(wr)}, 0xffff0000, {v(WR + j // 2)}")
            a.I(f"v_and_b32 {v(wi)}, 0xffff0000, {v(WI + j // 2)}")
        else:
            a.I(f"v_lshlrev_b32 {v(wr)}, 16, {v(WR + j // 2)}")
            a.I(f"v_lshlrev_b32 {v(wi)}, 16, {v(WI + j // 2)}")
        cmul(a, DR + j, DI + j, wr, wi, +1, u)
    pack(a, FR + 8 * own, DR, 8)
    pack(a, FI + 8 * own, DI, 8)
    exchange(FI, 8192)
    st()
    fill = [f"v_mul_f32 {v(T2C[j])}, {s(sSC)}, {v(T2C[j])}" for j in range(12, 16)]
    fill += [f"v_mul_f32 {v(XT + j)}, {s(sSC)}, {v(XT + j)}" for j in range(16)]
    mm(DR, [(FR + 4 * t, C64 + 4 * t) for t in range(4)] + [(FN + 4 * t, S64 + 4 * t) for t in range(4)], fill)
    mm(DI, [(FI + 4 * t, C64 + 4 * t) for t in range(4)] + [(FR + 4 * t, S64 + 4 * t) for t in range(4)], fill)
    a.I("s_nop 11")
    for j in range(16):
        cmul(a, DR + j, DI + j, T2C[j], XT + j, +1, TM)
    pack(a, FR, DR, 8)
    pack(a, FI, DI, 8)
    a.I("s_nop 1")
    mm(DR, [(C32, FR), (C32 + 4, FR + 4), (NS32, FI), (NS32 + 4, FI + 4)])
    mm(DI, [(C32, FI), (C32 + 4, FI + 4), (S32, FR), (S32 + 4, FR + 4)])
    a.I = I0
    a.I("s_nop 7")
    pack(a, YR, DR, 8)
    a.I("s_nop 3")
    pack(a, YI, DI, 8)
    for c in range(2):
        for h in range(2):
            vm.issue(f"buffer_store_dwordx4 {v(YR + 8 * c + 4 * h, 4)}, {v(L16)}, {s(SR + 8, 4)}, {s(sW + c)} offen offset:{h * 1024}{zpol}", "Z")


def gen_b2():
    a = Asm()
    N = "b2_kernel"
    kstart(a, N, 257)
    a.I("s_load_dwordx2 s[4:5], s[0:1], 88")
    a.I("v_lshrrev_b32 v1, 6, v0")
    a.I("v_and_b32 v0, 63, v0")
    a.I("s_mov_b32 s17, 0")
    a.I("v_readfirstlane_b32 s16, v1")
    a.I("s_waitcnt lgkmcnt(0)")
    a.I("s_cmp_eq_u32 s16, 1")
    a.I(f"s_cbranch_scc1 {N}_w1")
    b2_body(a, 0, 2, 17, lambda: a.I("s_barrier"), VM(a), slice_len=10 ** 9)
    a.I("s_endpgm")
    a.label(f"{N}_w1")
    b2_body(a, 1, 2, 17, lambda: a.I("s_barrier"), VM(a), slice_len=10 ** 9)
    kend(a, N)
    return a, N, (257, 128, 16384)


def b3_loads(a, outp=6, pol='', before=None):
    b_decode(a)
    a.I("s_lshr_b32 s23, s20, 5")
    a.I("s_lshl_b32 s23, s23, 11")
    a.I("s_lshl_b32 s24, s21, 9")
    a.I("s_add_u32 s23, s23, s24")
    a.I("s_and_b32 s24, s20, 31")
    a.I("s_lshl_b32 s24, s24, 4")
    a.I("s_add_u32 s23, s23, s24")
    a.I("s_add_u32 s24, s23, 4096")
    a.I("v_lshlrev_b32 v3, 13, v2")
    a.I(f"v_mov_b32 v4, {256 * 8192}")
    a.I("s_waitcnt lgkmcnt(0)")
    srd(a, 28, 4, 5, 257 * 8192, add=WS_Z)
    srd(a, 32, outp, outp + 1, 4 * MB)
    if before:
        before()
    a.I(f"buffer_load_dwordx4 v[16:19], v3, s[28:31], s23 offen{pol}")
    a.I(f"buffer_load_dwordx4 v[20:23], v3, s[28:31], s24 offen{pol}")
    a.I(f"buffer_load_dwordx4 v[24:27], v4, s[28:31], s23 offen{pol}")


def b3_body(a, LB=0, outp=6, nafter=0, loaded=False, mid=None, part=0, bar=None):
    if not loaded:
        b3_loads(a, outp)
    n0 = len(a.items)
    HL, NF, BS, AFL, TM = 5, 6, 7, 12, 8
    C32, NS32, BRE, BIM, MT, ZF, UR, UI, TR, TI = 32, 40, 48, 56, 64, 68, 76, 92, 108, 116
    a.I(f"v_lshrrev_b32 {v(HL)}, 5, v0")
    a.I(f"v_cvt_f32_u32 {v(HL)}, {v(HL)}")
    a.I("v_and_b32 v13, 31, v0")
    a.I("v_cvt_f32_u32 v13, v13")
    a.I(f"v_mul_f32 {v(NF)}, {f32(1 / 32)}, v13")
    a.I(f"v_mul_f32 {v(BS)}, {v(NF)}, {v(HL)}")
    a.I(f"v_mul_f32 {v(BS)}, 4.0, {v(BS)}")
    pc = [16 * t + PERMC(j) for t in range(2) for j in range(8)]
    gen_mat(a, C32, NF, BS, pc, TM)
    a.I(f"v_add_f32 {v(BS)}, {f32(0.25)}, {v(BS)}")
    gen_mat(a, NS32, NF, BS, pc, TM)
    a.I(f"v_and_b32 {v(AFL)}, 15, v0")
    a.I(f"v_cvt_f32_u32 {v(AFL)}, {v(AFL)}")
    a.I(f"v_mul_f32 {v(NF)}, {f32(1 / 16)}, {v(AFL)}")
    a.I(f"v_mul_f32 {v(BS)}, {f32(0.25)}, {v(HL)}")
    a.I("v_and_b32 v13, 16, v0")
    a.I("v_cmp_eq_u32 vcc, 0, v13")
    a.I("v_mov_b32 v14, 0")
    for B_, ph in ((BRE, None), (BIM, -0.25)):
        if ph:
            a.I(f"v_add_f32 {v(BS)}, {f32(ph)}, {v(BS)}")
        gen_mat(a, MT, NF, BS, list(range(8)), TM)
        for i in range(4):
            a.I(f"v_cndmask_b32 {v(B_ + i)}, v14, {v(MT + i)}, vcc")
            a.I(f"v_cndmask_b32 {v(B_ + 4 + i)}, {v(MT + i)}, v14, vcc")
    if part == 1:
        return
    if part == 2:
        del a.items[n0:]
    if mid:
        mid()
    a.I("v_and_b32 v13, 31, v2")
    a.I("v_lshlrev_b32 v13, 4, v13")
    a.I("v_lshrrev_b32 v15, 5, v2")
    a.I("v_lshl_add_u32 v13, v15, 1, v13")
    a.I(f"v_add_u32 v13, {LB}, v13")
    a.I("v_cmp_eq_u32 vcc, 0, v2")
    a.I(f"v_mov_b32 v15, {LB + 8192}")
    a.I(f"s_waitcnt vmcnt({nafter})")
    for i in range(4):
        a.I(f"v_cndmask_b32 {v(20 + i)}, {v(20 + i)}, v14, vcc")
    for c in range(2):
        for i in range(8):
            a.I(f"ds_write_b16{'_d16_hi' if i & 1 else ''} v13, {v(16 + 4 * c + i // 2)} offset:{i * 1024 + c * 512}")
    a.I("s_and_saveexec_b64 s[36:37], vcc")
    a.I("ds_write_b128 v15, v[24:27]")
    a.I("s_mov_b64 exec, s[36:37]")
    a.I("s_lshl_b32 s25, s16, 11")
    a.I(f"s_add_u32 s25, s25, {LB}")
    a.I("v_lshlrev_b32 v13, 4, v0")
    a.I("v_add_u32 v13, s25, v13")
    a.I("v_bfe_u32 v15, v0, 4, 1")
    a.I("s_lshl_b32 s25, s16, 2")
    a.I(f"s_add_u32 s25, s25, {LB + 8192}")
    a.I("v_lshl_add_u32 v15, v15, 1, s25")
    for j in range(1, 16):
        a.I(f"v_mov_b32 {v(UR + j)}, 0")
    a.I("s_waitcnt lgkmcnt(0)")
    if bar:
        bar()
    else:
        a.I("s_barrier")
    a.I(f"ds_read_u16 {v(UR)}, v15")
    a.I(f"ds_read_b128 {v(ZF, 4)}, v13")
    a.I(f"ds_read_b128 {v(ZF + 4, 4)}, v13 offset:1024")
    a.I("v_and_b32 v15, 1, v0")
    a.I("v_lshlrev_b32 v15, 31, v15")
    a.I("v_cmp_gt_u32 vcc, 32, v0")
    a.I(f"v_mul_f32 {v(NF)}, {f32(1 / 512)}, {v(AFL)}")
    a.I(f"v_mul_f32 {v(BS)}, {v(NF)}, {v(HL)}")
    a.I(f"v_mul_f32 {v(BS)}, 4.0, {v(BS)}")
    a.I("s_waitcnt lgkmcnt(2)")
    a.I(f"v_lshlrev_b32 {v(UR)}, 16, {v(UR)}")
    a.I(f"v_xor_b32 {v(UR)}, {v(UR)}, v15")
    a.I(f"v_cndmask_b32 {v(UR)}, v14, {v(UR)}, vcc")
    a.I("s_waitcnt lgkmcnt(0)")
    a.I("s_nop 0")
    for r in range(2):
        a.I(f"{MF} {v(UR, 16)}, {v(ZF + 4 * r, 4)}, {v(BRE + 4 * r, 4)}, {v(UR, 16)}")
    for r in range(2):
        a.I(f"{MF} {v(UI, 16)}, {v(ZF + 4 * r, 4)}, {v(BIM + 4 * r, 4)}, {'0' if r == 0 else v(UI, 16)}")
    a.I("s_lshr_b32 s25, s21, 1")
    a.I("s_lshl_b32 s25, s25, 4")
    a.I("s_and_b32 s26, s21, 1")
    a.I("s_lshl_b32 s26, s26, 2")
    a.I("s_add_u32 s25, s25, s26")
    a.I("s_lshr_b32 s26, s16, 1")
    a.I("s_lshl_b32 s26, s26, 3")
    a.I("s_add_u32 s25, s25, s26")
    a.I("s_and_b32 s26, s16, 1")
    a.I("s_lshl_b32 s26, s26, 1")
    a.I("s_add_u32 s25, s25, s26")
    a.I("s_lshl_b32 s25, s25, 6")
    a.I("s_add_u32 s25, s25, s20")
    a.I("s_lshl_b32 s25, s25, 11")
    a.I(f"s_add_u32 s26, s25, {64 * 2048}")
    jc = [(j & 3) + 8 * (j >> 2) for j in range(16)]
    twiddle(a, UR, UI, [[j] for j in range(16)], NF, BS, jc, +1, TM)
    pack(a, TR, UR, 8)
    pack(a, TI, UI, 8)
    a.I("v_and_b32 v13, 31, v0")
    a.I("v_lshlrev_b32 v13, 5, v13")
    terms = [(TR, C32), (TR + 4, C32 + 4), (TI, NS32), (TI + 4, NS32 + 4)]
    for i, (A_, B_) in enumerate(terms):
        a.I(f"{MF} {v(UR, 16)}, {v(A_, 4)}, {v(B_, 4)}, {'0' if i == 0 else v(UR, 16)}")
    a.I("v_lshrrev_b32 v15, 5, v0")
    a.I("v_lshl_add_u32 v13, v15, 4, v13")
    a.I("s_nop 9")
    pack(a, 16, UR, 8)
    a.I("s_nop 1")
    for r in range(2):
        a.I(f"v_permlane32_swap_b32 {v(16 + 4 * r)}, {v(18 + 4 * r)}")
        a.I(f"v_permlane32_swap_b32 {v(17 + 4 * r)}, {v(19 + 4 * r)}")
        a.I(f"buffer_store_dwordx4 {v(16 + 4 * r, 4)}, v13, s[32:35], s{25 + r} offen offset:1024{os.environ.get('OPB', '')}")


def gen_b3():
    a = Asm()
    N = "b3_kernel"
    kstart(a, N, 256)
    a.I("s_load_dwordx2 s[4:5], s[0:1], 88")
    a.I("s_load_dwordx2 s[6:7], s[0:1], 72")
    a.I("v_lshrrev_b32 v1, 6, v0")
    a.I("v_mov_b32 v2, v0")
    a.I("v_and_b32 v0, 63, v0")
    a.I("v_readfirstlane_b32 s16, v1")
    b3_body(a)
    kend(a, N)
    return a, N, (256, 256, 8192 + 64)


KERNELS = [gen_b1, gen_qkv, gen_b2, gen_attn, gen_b3, gen_oproj]


ALIASES = [("v_mfma_f32_16x16x32_bf16", "mf16", 4), ("v_mfma_f32_32x32x16_bf16", "mf32", 4),
           ("v_cvt_pk_bf16_f32", "cvtpk", 3)]


def compact(txt):
    lines = txt.split("\n")
    out = []
    done = False
    for l in lines:
        if l.startswith("    "):
            l = l.strip()
            for full, short, n in ALIASES:
                if l.startswith(full + " "):
                    l = short + l[len(full):]
        out.append(l)
        if l.startswith(".amdgcn_target") and not done:
            done = True
            for full, short, n in ALIASES:
                args = ["p%d" % i for i in range(n)]
                out.append(f".macro {short} " + ", ".join(args))
                out.append(f"{full} " + ", ".join("\\" + x for x in args))
                out.append(".endm")
    return "\n".join(out)


def build(kernels, path):
    hdr = open(os.path.join(os.path.dirname(os.path.abspath(__file__)), "..", "cdna_kernels", NAME + ".s.ref")).read()
    head = [l for l in hdr.splitlines() if l.startswith(";") and "@launch" not in l and "Override" not in l
            and "grid=ceil" not in l]
    txt = []
    launches = []
    descs = []
    bad = 0
    for g in kernels:
        KIDX[0] = len(launches)
        a, n, (grid, blk, lds) = g()
        if os.environ.get("PADREF") == n:
            items = []
            done = False
            for it in a.items:
                items.append(it)
                if it[0] == "i" and it[1].text == f"s_cbranch_scc1 {n}_end" and not done:
                    done = True
                    b = Asm()
                    b.I("s_memrealtime s[98:99]")
                    b.I("s_load_dwordx2 s[96:97], s[0:1], 88")
                    b.I("s_cmp_lg_u32 s2, 0")
                    b.I("s_cbranch_scc1 padref_skip")
                    b.I("s_waitcnt lgkmcnt(0)")
                    b.I(f"s_add_u32 s84, s96, {hex(200 * MB)}")
                    b.I("s_addc_u32 s85, s97, 0")
                    b.I("s_mov_b32 s86, 64")
                    b.I("s_mov_b32 s87, 0x20000")
                    b.I("v_mov_b32 v254, s98")
                    b.I("buffer_store_dword v254, off, s[84:87], 0 sc0 sc1")
                    b.label("padref_skip")
                    b.I("s_waitcnt lgkmcnt(0)")
                    items += b.items
            a.items = items
        if os.environ.get("PADK") == n:
            items = []
            cnt = 0
            for it in a.items:
                if it[0] == "i" and it[1].text == f"s_cbranch_scc1 {n}_end" and cnt == 0:
                    items.append(it)
                    b = Asm()
                    b.I("s_memrealtime s[98:99]")
                    if os.environ.get("PADREF"):
                        b.I("s_load_dwordx2 s[96:97], s[0:1], 88")
                        b.I("s_waitcnt lgkmcnt(0)")
                        b.I(f"s_add_u32 s84, s96, {hex(200 * MB)}")
                        b.I("s_addc_u32 s85, s97, 0")
                        b.I("s_mov_b32 s86, 64")
                        b.I("s_mov_b32 s87, 0x20000")
                        b.I("buffer_load_dword v254, off, s[84:87], 0 sc0 sc1")
                        b.I("s_waitcnt vmcnt(0)")
                        b.I("v_readfirstlane_b32 s98, v254")
                    items += b.items
                    cnt = 1
                    continue
                if it[0] == "i" and it[1].mn == "s_endpgm" and not (items[-1][0] == "l" and items[-1][1] == n + "_end" and items[-2][1].mn == "s_endpgm"):
                    b = Asm()
                    lab = None
                    if items[-1][0] == "l" and items[-1][1] == n + "_end":
                        lab = items.pop()
                    cnt += 1
                    b.I("s_waitcnt vmcnt(0) lgkmcnt(0)")
                    b.label(f"pad_{cnt}")
                    b.I("s_memrealtime s[96:97]")
                    b.I("s_waitcnt lgkmcnt(0)")
                    b.I("s_sub_u32 s96, s96, s98")
                    b.I(f"s_cmp_lt_u32 s96, {os.environ['PADT']}")
                    b.I(f"s_cbranch_scc1 pad_{cnt}")
                    items += b.items
                    if lab:
                        items.append(it)
                        items.append(lab)
                items.append(it)
            a.items = items
        if DBGT:
            items = []
            for it in a.items:
                if it[0] == "i" and it[1].mn == "s_endpgm" and not (items and items[-1][0] == "l" and items[-1][1] == n + "_end" and items[-2][1].mn == "s_endpgm"):
                    b = Asm()
                    lab = None
                    if items[-1][0] == "l" and items[-1][1] == n + "_end":
                        lab = items.pop()
                    dbg_stamp(b, 1)
                    items += b.items
                    if lab:
                        items.append(it)
                        items.append(lab)
                items.append(it)
            a.items = items
        bad += len(a.check())
        nv, ns, na = a.maxregs()
        print(f"{n}: {sum(1 for k, _ in a.items if k == 'i')} instrs, vgpr {nv}, agpr {na}, sgpr {ns}")
        launches.append(f"; @launch kernel={n} grid=({grid},1,1) block=({blk},1,1) lds={lds}")
        txt.append(a.text())
        descs.append(kdesc(n, nv, ns, na))
    if bad:
        print("HAZARDS:", bad)
    out = "\n".join(head) + "\n" + "\n".join(launches) + "\n" + '.amdgcn_target "amdgcn-amd-amdhsa--gfx950"\n' + \
          "".join(txt) + "".join(descs)
    out = compact(out)
    open(path, "w").write(out)
    return bad


if __name__ == "__main__":
    p = sys.argv[1] if len(sys.argv) > 1 else os.path.join(os.path.dirname(os.path.abspath(__file__)), "..",
                                                           "cdna_kernels", NAME + ".s")
    sys.exit(1 if build(KERNELS, p) else 0)
```

```python
import sys, os
sys.path.insert(0, os.path.dirname(os.path.abspath(__file__)))
import gen
from gen import *

M16 = "v_mfma_f32_16x16x32_bf16"
SP = os.environ.get("SP", " sc1")
PUMP = int(os.environ.get("PUMP", "5"))
SCAT_AT = int(os.environ.get("SCAT_AT", "52"))
PRE3 = int(os.environ.get("PRE3", "20"))
PF_AT = int(os.environ.get("PF_AT", "80"))
BP = os.environ.get("BP", " nt")
PP = os.environ.get("PP", "")
AP = os.environ.get("AP", "")
LP = os.environ.get("LP", "")
MULM = os.environ.get("MULM", "")
SIG3 = int(os.environ.get("SIG3", "123"))
B3AT = int(os.environ.get("B3AT", "75"))
GRP2 = int(os.environ.get("GRP2", "1"))
FILT_AT = int(os.environ.get("FILT_AT", "70"))
LATE_AT = int(os.environ.get("LATE_AT", "30"))
STF = eval(os.environ.get("STF", "(31, 63, 95)"))
B1START = int(os.environ.get("B1START", "6"))


def gen_l1():
    a = Asm()
    N = "l1_kernel"
    kstart(a, N, 256)
    a.I("s_load_dwordx4 s[4:7], s[0:1], 0")
    a.I("s_load_dwordx4 s[8:11], s[0:1], 16")
    a.I("s_load_dwordx2 s[12:13], s[0:1], 32")
    a.I("s_load_dwordx2 s[14:15], s[0:1], 88")
    a.I("s_load_dwordx4 s[60:63], s[0:1], 48")
    a.I("s_load_dwordx2 s[64:65], s[0:1], 64")
    a.I("s_load_dwordx2 s[90:91], s[0:1], 40")
    TID, L16 = 64, 65
    a.I(f"v_and_b32 {v(TID)}, 255, v0")
    a.I("v_lshrrev_b32 v2, 6, v0")
    a.I("v_and_b32 v0, 63, v0")
    a.I("v_readfirstlane_b32 s16, v2")
    st = Stamper(a, "l1")
    st()
    BLDS = 9 * 16384
    a.I("s_nop 0")
    if os.environ.get("CT0", "1") == "1":
        code_touch(a, N, 16, 24, 60, kd=False)
    a.I("s_and_b32 s17, s2, 7")
    a.I("s_lshr_b32 s18, s2, 3")
    a.I("s_and_b32 s19, s18, 7")
    a.I("s_lshr_b32 s18, s18, 3")
    a.I("s_lshl_b32 s40, s17, 2")
    a.I("s_add_u32 s18, s18, s40")
    if os.environ.get("L1MAP", "4x8") == "4x8":
        a.I("s_lshr_b32 s18, s2, 3")
        a.I("s_and_b32 s19, s18, 3")
        a.I("s_and_b32 s40, s17, 1")
        a.I("s_lshl_b32 s40, s40, 2")
        a.I("s_add_u32 s19, s19, s40")
        a.I("s_lshr_b32 s18, s18, 2")
        a.I("s_lshr_b32 s40, s17, 1")
        a.I("s_lshl_b32 s40, s40, 3")
        a.I("s_add_u32 s18, s18, s40")
    a.I("s_mov_b32 s41, 0")
    a.I("s_mul_i32 s42, s18, 6")
    a.I("s_cmp_ge_u32 s18, 11")
    a.I("s_cselect_b32 s41, 1, s41")
    a.I("s_cselect_b32 s40, 64, 0")
    a.I("s_cmp_ge_u32 s18, 21")
    a.I("s_cselect_b32 s41, 2, s41")
    a.I("s_cselect_b32 s40, 126, s40")
    a.I("s_sub_u32 s42, s42, s40")
    a.I("s_lshl_b32 s44, s19, 3")
    a.I("s_add_u32 s44, s44, s16")
    t1, t2, t3, G = 66, 67, 68, 69
    WV, AV, AR_, TB, SK, SV = 1, 3, 7, 9, 21, 22
    a.I(f"v_lshrrev_b32 {v(t1)}, 3, v0")
    a.I(f"v_lshlrev_b32 {v(G)}, 10, {v(t1)}")
    a.I(f"v_lshlrev_b32 {v(t1)}, 13, {v(t1)}")
    a.I("s_lshl_b32 s45, s16, 17")
    a.I(f"v_add_u32 {v(t1)}, s45, {v(t1)}")
    a.I(f"v_bfe_u32 {v(t2)}, v0, 4, 1")
    a.I(f"v_lshlrev_b32 {v(t2)}, 1, {v(t2)}")
    a.I(f"v_and_b32 {v(t3)}, 7, v0")
    a.I(f"v_xor_b32 {v(t2)}, {v(t2)}, {v(t3)}")
    a.I(f"v_lshl_add_u32 {v(WV)}, {v(t2)}, 4, {v(t1)}")
    a.I(f"v_xor_b32 {v(WV + 1)}, 64, {v(WV)}")
    a.I(f"v_add_u32 {v(WV + 1)}, {65536 - 1024}, {v(WV + 1)}")
    a.I("s_lshl_b32 s45, s44, 15")
    a.I(f"v_add_u32 {v(t1)}, s45, {v(G)}")
    a.I(f"v_lshrrev_b32 {v(t2)}, 4, v0")
    a.I(f"v_xor_b32 {v(t2)}, {v(t2)}, {v(t3)}")
    a.I(f"v_lshl_add_u32 {v(AV)}, {v(t2)}, 4, {v(t1)}")
    a.I(f"v_xor_b32 {v(AV + 1)}, 64, {v(AV)}")
    a.I(f"v_add_u32 {v(AV + 1)}, {8192 - 1024}, {v(AV + 1)}")
    a.I(f"v_add_u32 {v(AV + 2)}, {2 * (8192 - 1024)}, {v(AV)}")
    a.I(f"v_add_u32 {v(AV + 3)}, {2 * (8192 - 1024)}, {v(AV + 1)}")
    a.I("s_lshl_b32 s46, s16, 13")
    a.I("s_lshl_b32 s47, s16, 11")
    a.I("s_lshl_b32 s48, s42, 7")
    a.I("s_lshl_b32 s49, s44, 13")
    a.I("s_lshl_b32 s50, s42, 18")
    a.I("s_add_u32 s50, s50, s49")
    a.I("s_add_u32 s53, s48, 512")
    a.I("s_mov_b32 s43, s49")
    a.I(f"v_lshlrev_b32 {v(L16)}, 4, v0")
    a.I("s_lshl_b32 s45, s44, 16")
    a.I("v_lshrrev_b32 v23, 1, v0")
    a.I("v_lshlrev_b32 v23, 13, v23")
    a.I(f"v_and_b32 {v(t1)}, 1, v0")
    a.I(f"v_lshl_add_u32 v23, {v(t1)}, 7, v23")
    a.I("v_add_u32 v23, s45, v23")
    a.I("s_waitcnt lgkmcnt(0)")
    WT0 = os.environ.get("WT0", "0")
    if WT0 != "0":
        a.I("s_cmp_ge_u32 s16, 6")
        a.I(f"s_cbranch_scc1 {N}_nwt")
        a.I("s_lshr_b32 s40, s16, 1")
        a.I("s_cmp_eq_u32 s40, 1")
        a.I("s_cselect_b32 s20, s8, s10")
        a.I("s_cselect_b32 s21, s9, s11")
        a.I("s_cmp_eq_u32 s40, 2")
        a.I("s_cselect_b32 s20, s12, s20")
        a.I("s_cselect_b32 s21, s13, s21")
        a.I(f"s_mov_b32 s22, {hex(4 * MB)}")
        a.I("s_mov_b32 s23, 0x20000")
        a.I("s_and_b32 s40, s16, 1")
        a.I("s_lshl1_add_u32 s40, s2, s40")
        a.I("s_lshl_b32 s40, s40, 13")
        a.I(f"v_lshlrev_b32 {v(t1)}, 7, v0")
        a.I(f"buffer_load_dword v59, {v(t1)}, s[20:23], s40 offen")
        a.label(f"{N}_nwt")
    a.I("s_lshl_b32 s45, s44, 18")
    a.I("s_lshl_b32 s40, s42, 12")
    a.I("s_add_u32 s45, s45, s40")
    a.I(f"s_mov_b32 s92, {hex(512 * 1024)}")
    a.I("s_cmp_eq_u32 s41, 2")
    a.I("s_cselect_b32 s50, s45, s50")
    a.I("s_cselect_b32 s92, 0x2000, s92")
    a.I("s_cselect_b32 s20, s4, s6")
    a.I("s_cselect_b32 s21, s5, s7")
    a.I("s_cselect_b32 s24, s8, s10")
    a.I("s_cselect_b32 s25, s9, s11")
    a.I(f"s_cselect_b32 s51, {hex(WS_Q)}, 0")
    a.I(f"s_cselect_b32 s52, {f32(QSCALE)}, 1.0")
    a.I("s_cmp_eq_u32 s41, 1")
    a.I("s_cselect_b32 s24, s12, s24")
    a.I("s_cselect_b32 s25, s13, s25")
    a.I(f"s_cselect_b32 s51, {hex(WS_V)}, s51")
    a.I("s_mov_b32 s32, s24")
    a.I("s_mov_b32 s33, s25")
    a.I(f"s_mov_b32 s40, {hex(WS_V)}")
    a.I("s_cmp_eq_u32 s18, 10")
    a.I("s_cselect_b32 s32, s12, s32")
    a.I("s_cselect_b32 s33, s13, s33")
    a.I("s_cselect_b32 s53, 0, s53")
    a.I(f"s_add_u32 s45, s49, {hex(31 << 19)}")
    a.I("s_cmp_eq_u32 s18, 31")
    a.I("s_cselect_b32 s53, s48, s53")
    a.I("s_cselect_b32 s43, s50, s43")
    a.I(f"s_cselect_b32 s40, {hex(WS_Q)}, s40")
    a.I("s_cselect_b32 s24, s12, s24")
    a.I("s_cselect_b32 s25, s13, s25")
    a.I(f"s_cselect_b32 s48, {62 * 128}, s48")
    a.I(f"s_cselect_b32 s51, {hex(WS_V)}, s51")
    a.I("s_cselect_b32 s20, s6, s20")
    a.I("s_cselect_b32 s21, s7, s21")
    a.I("s_cselect_b32 s50, s45, s50")
    a.I(f"s_mov_b32 s22, {hex(2 * MB)}")
    a.I("s_mov_b32 s23, 0x20000")
    a.I(f"s_mov_b32 s26, {hex(4 * MB)}")
    a.I("s_mov_b32 s27, 0x20000")

    def late_setup():
        a.I("s_mov_b32 s94, s52")
        a.I("s_mov_b32 s95, s52")
        a.I(f"s_mov_b32 s34, {hex(4 * MB)}")
        a.I("s_mov_b32 s35, 0x20000")
        srd(a, 28, 14, 15, 16 * MB, add="s51")
        srd(a, 36, 14, 15, 16 * MB, add="s40")
        srd(a, 56, 4, 5, 2 * MB)
        if os.environ.get("XDROP") == "q":
            a.I("s_cmp_eq_u32 s41, 2")
            a.I("s_cselect_b32 s30, 0, s30")
        if os.environ.get("XDROP") == "all":
            a.I("s_mov_b32 s30, 0")
            a.I("s_mov_b32 s38, 0")
        a.I("s_add_u32 s13, s48, 256")
        a.I("s_add_u32 s17, s53, 256")
        a.I("s_cmp_eq_u32 s18, 31")
        a.I("s_cselect_b32 s4, s32, s24")
        a.I("s_cselect_b32 s5, s33, s25")
        a.I("s_cselect_b32 s13, s53, s13")
        a.I("s_cselect_b32 s17, s17, s53")
        a.I(f"s_mov_b32 s6, {hex(4 * MB)}")
        a.I("s_mov_b32 s7, 0x20000")

    def w_prefetch(g):
        for th, (col, sr) in enumerate([("s13", "s[4:7]"), ("s17", "s[32:35]")]):
            g.lq.append((["s_mov_b64 exec, 0xffff"], f"buffer_load_dword {v(56 + th)}, v23, {sr}, {col} offen{PP}", "pf"))

    def addr_setup():
        a.I(f"v_lshrrev_b32 {v(G)}, 4, v0")
        a.I(f"v_bfe_u32 {v(t1)}, v0, 3, 1")
        a.I(f"v_lshlrev_b32 {v(t1)}, 4, {v(t1)}")
        a.I(f"v_and_b32 {v(t2)}, 7, v0")
        a.I(f"v_add_u32 {v(t1)}, {v(t1)}, {v(t2)}")
        a.I(f"v_bfe_u32 {v(t2)}, {v(t1)}, 1, 3")
        a.I(f"v_xor_b32 {v(t2)}, {v(t2)}, {v(G)}")
        a.I(f"v_lshlrev_b32 {v(t2)}, 4, {v(t2)}")
        a.I(f"v_lshl_add_u32 {v(AR_)}, {v(t1)}, 7, {v(t2)}")
        a.I(f"v_xor_b32 {v(AR_ + 1)}, 64, {v(AR_)}")
        a.I(f"v_add_u32 {v(AR_)}, s46, {v(AR_)}")
        a.I(f"v_add_u32 {v(AR_ + 1)}, s46, {v(AR_ + 1)}")
        a.I(f"v_lshlrev_b32 {v(t2)}, 9, {v(G)}")
        a.I(f"v_lshl_add_u32 {v(SK)}, {v(t1)}, 4, {v(t2)}")
        a.I(f"v_and_b32 {v(t3)}, 15, v0")
        a.I(f"v_lshl_add_u32 {v(SV)}, {v(t3)}, 4, {v(t2)}")
        a.I(f"v_bfe_u32 {v(t1)}, v0, 2, 2")
        a.I(f"v_lshl_add_u32 {v(t1)}, {v(G)}, 3, {v(t1)}")
        a.I(f"v_lshlrev_b32 {v(t1)}, 7, {v(t1)}")
        a.I(f"v_and_b32 {v(t2)}, 3, v0")
        a.I(f"v_lshl_add_u32 {v(t1)}, {v(t2)}, 3, {v(t1)}")
        a.I(f"v_bfe_u32 {v(t2)}, v0, 3, 2")
        a.I(f"v_lshl_add_u32 {v(t1)}, {v(t2)}, 5, {v(t1)}")
        for ct in range(4):
            a.I(f"v_xor_b32 {v(TB + ct)}, {32 * ct}, {v(t1)}")
        for ct in range(4):
            a.I(f"v_add_u32 {v(TB + 4 + ct)}, 0x10000, {v(TB + ct)}")
            a.I(f"v_add_u32 {v(TB + 8 + ct)}, 0x20000, {v(TB + ct)}")

    def b_common():
        a.I("s_and_b32 s8, s2, 7")
        a.I("s_lshl_b32 s8, s8, 3")
        a.I("s_bfe_u32 s9, s2, 0x30003")
        a.I("s_or_b32 s8, s8, s9")
        a.I("s_lshr_b32 s9, s2, 6")
        a.I("s_lshr_b32 s66, s9, 1")
        a.I("s_lshl_b32 s66, s66, 11")
        a.I("s_lshr_b32 s10, s8, 5")
        a.I("s_lshl_b32 s10, s10, 10")
        a.I("s_add_u32 s66, s66, s10")
        a.I("s_and_b32 s10, s8, 31")
        a.I("s_lshl_b32 s10, s10, 4")
        a.I("s_add_u32 s66, s66, s10")
        a.I("s_and_b32 s10, s9, 1")
        a.I("s_lshl_b32 s10, s10, 9")
        a.I("s_add_u32 s66, s66, s10")

    HL, NF, BS, F2, TM, X1, X2, X3 = 70, 71, 72, 73, 74, 78, 79, 80
    C32, NS32, AR, AI, XF, D1R, D1I, TR, TI, D2 = 84, 92, 100, 104, 108, 116, 132, 148, 158, 168
    pc8 = [PERMC(j) for j in range(8)]

    def fft_loads(vm):
        a.I("s_lshr_b32 s10, s9, 1")
        a.I("s_lshl_b32 s10, s10, 4")
        a.I("s_and_b32 s11, s9, 1")
        a.I("s_lshl_b32 s11, s11, 2")
        a.I("s_add_u32 s10, s10, s11")
        a.I("s_lshr_b32 s11, s16, 1")
        a.I("s_lshl_b32 s11, s11, 3")
        a.I("s_add_u32 s10, s10, s11")
        a.I("s_and_b32 s11, s16, 1")
        a.I("s_lshl_b32 s11, s11, 1")
        a.I("s_add_u32 s10, s10, s11")
        a.I("s_lshl_b32 s10, s10, 6")
        a.I("s_add_u32 s10, s10, s8")
        a.I("s_lshl_b32 s10, s10, 10")
        a.I(f"s_add_u32 s11, s10, {65536 - 1024}")
        a.I(f"s_add_u32 s3, s47, {BLDS}")
        a.I("s_mov_b32 m0, s3")
        a.I(f"s_mov_b32 s62, {hex(2 * MB)}")
        a.I("s_mov_b32 s63, 0x20000")
        vm.issue(f"buffer_load_dwordx4 {v(L16)}, s[60:63], s10 offen{BP} lds", "bx")
        vm.issue(f"buffer_load_dwordx4 {v(L16)}, s[60:63], s11 offen offset:1024{BP} lds", "bx")

    def fft_compute(g):
        vm = g.vm
        a.I(f"v_lshrrev_b32 {v(X2)}, 5, v0")
        a.I(f"v_cvt_f32_u32 {v(HL)}, {v(X2)}")
        a.I(f"v_and_b32 {v(F2)}, 31, v0")
        a.I(f"v_cvt_f32_u32 {v(F2)}, {v(F2)}")
        a.I(f"v_mul_f32 {v(NF)}, {f32(1 / 32)}, {v(F2)}")
        a.I(f"v_mul_f32 {v(BS)}, {v(NF)}, {v(HL)}")
        a.I(f"v_mul_f32 {v(BS)}, {f32(8.0)}, {v(BS)}")
        nat = [16 * t + j for t in range(2) for j in range(8)]
        gen_mat(a, C32, NF, BS, nat, TM)
        a.I(f"v_add_f32 {v(BS)}, {f32(0.25)}, {v(BS)}")
        gen_mat(a, NS32, NF, BS, nat, TM)
        a.I(f"v_bfe_u32 {v(X1)}, v0, 4, 1")
        a.I(f"v_lshlrev_b32 {v(X1)}, 10, {v(X1)}")
        a.I(f"v_lshl_add_u32 {v(X1)}, {v(X2)}, 8, {v(X1)}")
        a.I(f"v_and_b32 {v(X3)}, 15, v0")
        a.I(f"v_lshl_add_u32 {v(X1)}, {v(X3)}, 3, {v(X1)}")
        a.I(f"v_add_u32 {v(X1)}, s3, {v(X1)}")
        vm.wait("bx")
        for t in range(2):
            for h in range(2):
                a.I(f"ds_read_b64_tr_b16 {v(XF + 4 * t + 2 * h, 2)}, {v(X1)} offset:{t * 512 + h * 128}")
        a.I(f"v_cvt_f32_u32 {v(X3)}, {v(X3)}")
        a.I(f"v_mul_f32 {v(NF)}, {f32(1 / 16)}, {v(X3)}")
        a.I(f"v_bfe_u32 {v(X1)}, v0, 4, 1")
        a.I(f"v_cvt_f32_u32 {v(X1)}, {v(X1)}")
        a.I(f"v_mul_f32 {v(BS)}, {v(NF)}, {v(HL)}")
        a.I(f"v_mul_f32 {v(BS)}, 4.0, {v(BS)}")
        a.I(f"v_fmamk_f32 {v(BS)}, {v(X1)}, {f32(0.25)}, {v(BS)}")
        a.I("s_waitcnt lgkmcnt(0)")
        for D, Mx in ((D1R, C32), (D1I, NS32)):
            for t in range(2):
                a.I(f"{MF} {v(D, 16)}, {v(XF + 4 * t, 4)}, {v(Mx + 4 * t, 4)}, {'0' if t == 0 else v(D, 16)}")
        gen_mat(a, AR, NF, BS, pc8, TM)
        a.I(f"v_add_f32 {v(BS)}, {f32(-0.25)}, {v(BS)}")
        gen_mat(a, AI, NF, BS, pc8, TM)
        a.I(f"v_mul_f32 {v(NF)}, {f32(1 / 512)}, {v(F2)}")
        a.I(f"v_mul_f32 {v(BS)}, {v(NF)}, {v(HL)}")
        a.I(f"v_mul_f32 {v(BS)}, 4.0, {v(BS)}")
        twiddle(a, D1R, D1I, [[j, j + 8] for j in range(8)], NF, BS, pc8, -1, TM)
        pack(a, TR, D1R, 8)
        pack(a, TI, D1I, 8)
        a.I(f"v_and_b32 {v(X3)}, 31, v0")
        a.I(f"v_lshlrev_b32 {v(X3)}, 4, {v(X3)}")
        for r in range(2):
            a.I(f"{MF} {v(D2 + 16 * r, 16)}, {v(AR, 4)}, {v(TR + 4 * r, 4)}, 0")
            a.I(f"{MF} {v(D2 + 16 * r, 16)}, {v(AI, 4)}, {v(TI + 4 * r, 4)}, {v(D2 + 16 * r, 16)}")
        a.I(f"v_lshl_add_u32 {v(X3)}, {v(X2)}, 11, {v(X3)}")
        a.I("s_lshl_b32 s10, s16, 2")
        a.I(f"s_add_u32 s11, s10, {BLDS + 8192}")
        a.I(f"v_add_u32 {v(X3)}, s11, {v(X3)}")
        a.I(f"v_mov_b32 {v(X2)}, s10")
        a.I(f"s_add_u32 s67, s66, {256 * 8192}")
        a.I(f"s_add_u32 s11, s66, {256 * 8192 + 4096}")
        srd(a, 60, 14, 15, 8 * MB, add=WS_Y)
        a.I("s_nop 1")
        for c in range(2):
            for j in range(5):
                a.I(f"v_cvt_pk_bf16_f32 {v(TR + 5 * c + j)}, {v(D2 + 8 * c + j)}, {v(D2 + 16 + 8 * c + j)}")
        for c in range(2):
            for j in range(4):
                a.I(f"ds_write_b32 {v(X3)}, {v(TR + 5 * c + j)} offset:{(c * 8 + j) * 512}")
        a.I = I0
        a.I("s_mov_b64 exec, 1")
        vm.issue(f"buffer_store_dword {v(TR + 4)}, {v(X2)}, s[60:63], s67 offen", "bs")
        vm.issue(f"buffer_store_dword {v(TR + 9)}, {v(X2)}, s[60:63], s11 offen", "bs")
        a.I("s_mov_b64 exec, -1")

    WFR, WFP, FX1, FX2, WF9 = 56, 52, 52, 53, 55

    def filt_setup():
        a.I("s_lshr_b32 s10, s9, 1")
        a.I("s_lshl_b32 s10, s10, 5")
        a.I("s_lshr_b32 s11, s8, 5")
        a.I("s_lshl_b32 s11, s11, 4")
        a.I("s_add_u32 s10, s10, s11")
        a.I("s_and_b32 s11, s9, 1")
        a.I("s_lshl_b32 s11, s11, 2")
        a.I("s_add_u32 s10, s10, s11")
        a.I("s_lshl_b32 s10, s10, 5")
        a.I("s_and_b32 s11, s8, 31")
        a.I("s_add_u32 s10, s10, s11")
        a.I("s_mul_i32 s19, s10, 514")
        a.I(f"v_lshlrev_b32 {v(FX1)}, 1, {v(TID)}")
        a.I(f"v_and_b32 {v(FX2)}, 3, v0")
        a.I(f"v_bfe_u32 {v(t1)}, v0, 2, 1")
        a.I(f"v_lshl_add_u32 {v(FX2)}, {v(t1)}, 3, {v(FX2)}")
        a.I(f"v_mul_u32_u24 {v(FX2)}, {32 * 514}, {v(FX2)}")
        a.I(f"v_add_u32 {v(FX2)}, 512, {v(FX2)}")
        a.I("s_cmp_ge_u32 s16, 4")
        a.I("s_cselect_b32 s8, s64, s0")
        a.I("s_cselect_b32 s9, s65, s1")
        a.I(f"s_mov_b32 s10, {2048 * 514}")
        a.I("s_mov_b32 s11, 0x20000")

    def filt_loads(g):
        for j in range(8):
            g.lq.append(([f"s_add_u32 s12, s19, {PERMC(j) * 32 * 514}"],
                         f"buffer_load_ushort {v(WFR + j)}, {v(FX1)}, s[8:11], s12 offen{BP}", "wf"))
        g.lq.append(([], f"buffer_load_ushort {v(WF9)}, {v(FX2)}, s[8:11], s19 offen{BP}", "wf"))

    def filt_finish(g):
        vm = g.vm
        L = [lambda: (g.flush("wf"), vm.wait("wf"), a.I(f"v_lshlrev_b32 {v(54)}, 1, v0"))]
        L.append(lambda: (a.I("s_mov_b64 exec, 0xff"),
                          vm.issue(f"buffer_store_short {v(WF9)}, {v(54)}, s[60:63], s67 offen", "bs"),
                          a.I("s_mov_b64 exec, -1")))
        for i in range(4):
            L.append(lambda i=i: a.I(f"v_lshl_or_b32 {v(WFP + i)}, {v(WFR + 1 + 2 * i)}, 16, {v(WFR + 2 * i)}"))
        return L

    def ys_calc():
        a.I("s_and_b32 s12, s16, 3")
        a.I("s_lshl_b32 s12, s12, 19")
        a.I(f"v_lshlrev_b32 {v(YS)}, 13, v0")
        a.I(f"v_add_u32 {v(YS)}, s12, {v(YS)}")

    def scat(g):
        g.vm.issue(f"buffer_store_dwordx4 {v(YD, 4)}, {v(YS)}, s[60:63], s66 offen", "bs")

    def scat_next():
        for i in range(4):
            a.I(f"v_mov_b32 {v(YD + i)}, {v(WFP + i)}")
        a.I(f"s_add_u32 s66, s66, {hex(WS_WF - WS_Y)}")

    YA, YD, YS = 56, 48, 23
    ACC, RING, PK, AFB = 192, 24, 56, 64
    LOOK = 4
    AHEAD = int(os.environ.get("AHEAD", "5"))

    def AF(rt, k):
        return AFB + (k * 2 + rt) * 4

    class Gen:
        def __init__(self, passes, nmerge, vmq):
            self.passes, self.nmerge = passes, nmerge
            self.vm, self.lg = VM(a), LG(a)
            self.vm.q = list(vmq)
            self.busy, self.nxt, self.dq, self.lq = {}, 0, [], []
            self.chunks, self.frags, self.groups = [], [], {}
            for pp in range(0, len(passes), 2):
                if pp // 2 < nmerge:
                    for kc in range(4):
                        c = len(self.chunks)
                        self.chunks += [(pp, kc), (pp + 1, kc)]
                        self.groups[len(self.frags)] = [c, c + 1]
                        for ks in range(4):
                            for h in range(2):
                                self.frags += [(c + h, ks, ct) for ct in range(4)]
                else:
                    for q in range(2):
                        for kc in range(4):
                            c = len(self.chunks)
                            self.chunks.append((pp + q, kc))
                            if GRP2 == 0:
                                self.groups[len(self.frags)] = [c]
                            elif kc % 2 == 0:
                                self.groups[len(self.frags)] = [c, c + 1]
                            self.frags += [(c, ks, ct) for ks in range(4) for ct in range(4)]
            self.prev = [[], []]
            self.b1busy = True
            self.skip_boundary = False

        def blk(self, c):
            nm = 8 * self.nmerge
            if c < nm:
                return 4 + 2 * ((c // 2) % 3) + (c & 1)
            if self.nmerge == 1:
                return [6, 7, 8, 9, 0, 1, 2, 3][(c - nm) % 8]
            return [8, 9, 4, 5, 0, 1, 2, 3][(c - nm) % 8]

        def dmaW(self, now, done):
            c = self.nxt
            if c >= len(self.chunks) or c > now + AHEAD:
                return False
            b = self.blk(c)
            if b in self.busy and self.busy[b] not in done:
                return False
            if b == 9 and self.b1busy:
                return False
            if b < 4 and now < 8 * self.nmerge:
                return False
            self.busy[b] = c
            self.nxt += 1
            pp, kc = self.chunks[c]
            form, wsel, wdi, osel, odi = self.passes[pp]
            sr = "s[32:35]" if wsel else "s[24:27]"
            for q in range(2):
                pre = [f"s_add_u32 m0, s47, {hex(b * 16384)}",
                       f"s_add_u32 s45, {'s53' if wsel else 's48'}, {hex((kc << 20) + wdi * 128)}"] if q == 0 else []
                self.dq.append((pre, f"buffer_load_dwordx4 {v(WV + q)}, {sr}, s45 offen offset:{q * 1024}{LP} lds", ("W", c)))
            return True

        def pump(self, n=1):
            for _ in range(n):
                q = self.dq or self.lq
                if q:
                    pre, ins, tag = q.pop(0)
                    a.many(pre)
                    self.vm.issue(ins, tag)
                    if tag == "pf":
                        a.I("s_mov_b64 exec, -1")

        def flush(self, tag=None):
            while any(tag is None or x[2] == tag for x in self.dq + self.lq):
                self.pump()

        def dmaA(self, j):
            sr = "s[56:59]" if j >= 8 else "s[20:23]"
            k = 0
            while k < len(self.dq) and not self.dq[k][0]:
                k += 1
            for i in range(4):
                pre = [f"s_add_u32 m0, s46, {hex((j % 2) * 4096)}", f"s_mov_b32 s45, {(j % 8) * 128}"] if i == 0 else []
                self.dq.insert(k + i, (pre, f"buffer_load_dwordx4 {v(AV + i)}, {sr}, s45 offen offset:{i * 1024}{AP} lds", ("A", j)))

        def readA(self, j):
            self.flush(("A", j))
            self.vm.wait(("A", j))
            for ks in range(2):
                for x in range(2):
                    self.lg.issue(f"ds_read_b128 {v(AF(x, 2 * (j % 8) + ks), 4)}, {v(AR_ + (ks ^ x))} "
                                  f"offset:{(j % 2) * 4096 + x * 1024}", ("A", j))

        def reads(self, i, halves=(0, 1)):
            c, ks, ct = self.frags[i]
            b = self.blk(c)
            base = TB + 4 * (b // 4) + ct
            off = (b % 4) * 16384 + ks * 4096
            d = RING + 4 * slot(i)
            for h in halves:
                self.lg.issue(f"ds_read_b64_tr_b16 {v(d + 2 * h, 2)}, {v(base)} offset:{off + 512 * h}", ("W", i))

        def sync(self, grp):
            for c in grp:
                self.flush(("W", c))
            self.vm.wait([("W", c) for c in grp])
            a.I("s_barrier")
            lo = self.prev[1][0] if self.prev[1] else 0
            done = set(range(lo))
            if self.prev[1]:
                self.b1busy = False
            self.prev = [self.prev[1], grp]
            while self.dmaW(grp[0], done):
                pass

        def acc(self, pp, rt, ct):
            return ACC + 32 * (pp & 1) + 4 * (4 * rt + ct)

        def epi(self, pp):
            out = []
            form, wsel, wdi, osel, u = self.passes[pp]
            so = 54 + (pp & 1)
            sr = "s[36:39]" if osel else "s[28:31]"
            def so_calc():
                a.I(f"s_add_u32 s{so}, {'s43' if osel else 's50'}, {(u & 1) * 4096}")
                assert (u >> 1) in (-1, 0, 1)
                if u >> 1:
                    a.I(f"s_{'add' if (u >> 1) > 0 else 'sub'}_u32 s{so}, s{so}, s92")
            out.append(so_calc)
            for q in range(4):
                pk = PK + 4 * (q % 2)
                if form == "K":
                    x, cp = divmod(q, 2)
                    srcs = [self.acc(pp, x, 2 * cp), self.acc(pp, x, 2 * cp + 1)]
                    off, va = x * 128 + cp * 2048, SK
                else:
                    srcs = [self.acc(pp, 0, q), self.acc(pp, 1, q)]
                    off, va = (q >> 1) * 2048 + (q & 1) * 256, SV
                for i in range(4):
                    src = srcs[i // 2] + 2 * (i % 2)
                    if form == "K" and MULM == "pk":
                        out.append(lambda src=src: a.I(f"v_pk_mul_f32 {v(src, 2)}, {v(src, 2)}, s[94:95]"))
                    elif form == "K" and MULM != "none":
                        out.append(lambda src=src: a.I(f"v_mul_f32 {v(src)}, s52, {v(src)}"))
                        out.append(lambda src=src: a.I(f"v_mul_f32 {v(src + 1)}, s52, {v(src + 1)}"))
                    out.append(lambda src=src, pk=pk, i=i: a.I(f"v_cvt_pk_bf16_f32 {v(pk + i)}, {v(src)}, {v(src + 1)}"))
                out.append(lambda pk=pk, va=va, off=off: self.vm.issue(
                    f"buffer_store_dwordx4 {v(pk, 4)}, {v(va)}, {sr}, s{so} offen offset:{off}{SP}", ("S", pp)))
            return out

        def boundary(self, pps):
            self.flush("pf")
            self.vm.wait("pf")
            ys_calc()
            a.I("s_nop 2")
            for pp in pps:
                for f in self.epi(pp):
                    f()

        def run(self, p0, p1):
            lg = self.lg
            NF_ = len(self.frags)
            NA = 8 * self.nmerge
            pend = []
            for i in range(64 * p0, 64 * p1):
                c, ks, ct = self.frags[i]
                pp, kc = self.chunks[c]
                k = 4 * kc + ks
                if i % 128 == 0 and 0 < i <= 128 * self.nmerge and not self.skip_boundary:
                    self.boundary([i // 64 - 2] + ([i // 64 - 1] if i < 128 * self.nmerge else []))
                if i % 2 == 0:
                    lg.wait([("W", i), ("W", i + 1), ("A", i // 16)])
                if i % 16 == 0 and i // 16 + 2 < NA:
                    self.dmaA(i // 16 + 2)
                wf = v(RING + 4 * slot(i), 4)
                j = i + LOOK
                for rt in range(2):
                    ac = v(self.acc(pp, rt, ct), 4)
                    af = v(AF(rt, k), 4)
                    cin = "0" if k == 0 else ac
                    if self.passes[pp][0] == "V":
                        a.I(f"{M16} {ac}, {af}, {wf}, {cin}")
                    else:
                        a.I(f"{M16} {ac}, {wf}, {af}, {cin}")
                    if j < NF_:
                        if rt == 0 and j in self.groups:
                            self.sync(self.groups[j])
                        if rt == 0 and j % 16 == 0 and j // 16 < NA:
                            self.readA(j // 16)
                        self.reads(j, (rt,))
                    if rt == 0 and pend:
                        pend.pop(0)()
                    if rt == 1 and i % 2 == 0:
                        if self.dq or self.lq:
                            self.pump(1)
                        elif pend:
                            pend.pop(0)()
                if i % 64 == 63:
                    assert not pend
                if i % 64 == 3 and i >= 128 * self.nmerge:
                    pend = self.epi(i // 64 - 1)
                if i == PF_AT:
                    w_prefetch(self)
                if i == LATE_AT:
                    filt_loads(self)
                if i == FILT_AT:
                    pend = filt_finish(self)
                if i >= 128 and i % 128 == SCAT_AT:
                    scat(self)
                if i >= 128 and i % 128 == 127:
                    scat_next()
                if i in STF:
                    st()
            self.flush()

        def wo_load(self):
            blk = 4 if self.nmerge == 1 else 6
            srd(a, 8, 90, 91, 4 * MB)
            a.I("s_lshl_b32 s12, s2, 14")
            a.I("s_lshl_b32 s13, s16, 7")
            a.I("s_add_u32 s12, s12, s13")
            a.I(f"s_add_u32 s13, s12, {8192 - 1024}")
            a.I(f"s_add_u32 s17, s47, {blk * 16384}")
            a.I("s_mov_b32 m0, s17")
            a.I(f"v_lshrrev_b32 {v(AV)}, 3, v0")
            a.I(f"v_lshlrev_b32 {v(AV)}, 10, {v(AV)}")
            a.I(f"v_and_b32 {v(AV + 1)}, 7, v0")
            a.I(f"v_lshl_add_u32 {v(AV)}, {v(AV + 1)}, 4, {v(AV)}")
            self.vm.issue(f"buffer_load_dwordx4 {v(AV)}, s[8:11], s12 offen{BP} lds", "wo")
            self.vm.issue(f"buffer_load_dwordx4 {v(AV)}, s[8:11], s13 offen offset:1024{BP} lds", "wo")
            a.I(f"v_lshrrev_b32 {v(AV + 1)}, 5, v0")
            a.I(f"v_bfe_u32 {v(AV + 2)}, v0, 2, 2")
            a.I(f"v_lshl_add_u32 {v(AV + 1)}, {v(AV + 1)}, 2, {v(AV + 2)}")
            a.I(f"v_lshlrev_b32 {v(AV + 1)}, 7, {v(AV + 1)}")
            a.I(f"v_bfe_u32 {v(AV + 2)}, v0, 4, 1")
            a.I(f"v_lshl_add_u32 {v(AV + 1)}, {v(AV + 2)}, 5, {v(AV + 1)}")
            a.I(f"v_and_b32 {v(AV + 2)}, 3, v0")
            a.I(f"v_lshl_add_u32 {v(AV + 1)}, {v(AV + 2)}, 3, {v(AV + 1)}")
            a.I(f"v_add_u32 {v(AV + 1)}, s17, {v(AV + 1)}")
            a.I(f"v_lshlrev_b32 {v(AV + 2)}, 4, v0")
            a.I("s_lshl_b32 s17, s16, 19")
            a.I("s_lshl_b32 s13, s2, 11")
            a.I("s_add_u32 s17, s17, s13")

        def fin(self, pp):
            self.vm.wait("wo")
            for cb in range(2):
                for h in range(2):
                    a.I(f"ds_read_b64_tr_b16 {v(RING + 4 * cb + 2 * h, 2)}, {v(AV + 1)} offset:{cb * 64 + h * 1024}")
            srd(a, 8, 14, 15, 4 * MB, add=WS_WO)
            a.I("s_waitcnt lgkmcnt(0)")
            for cb in range(2):
                a.I(f"buffer_store_dwordx4 {v(RING + 4 * cb, 4)}, {v(AV + 2)}, s[8:11], s17 offen offset:{cb * 1024}{SP}")
            code_touch(a, "attn_kernel", 16, 20, 32)
            for f in self.epi(pp):
                f()
            st.dump(16, 14, tmpv=24)
            a.I("s_endpgm")


    def slot(i):
        j = i % 128
        return j % 6 if j < 108 else (j - 108) % 5

    I0 = a.I
    cnt = [0]
    gp = [None]

    def Ipump(text):
        r = I0(text)
        if text.startswith("v_") and not text.startswith("v_mfma"):
            cnt[0] += 1
            if cnt[0] % PUMP == 0 and gp[0].dq:
                a.I = I0
                gp[0].pump()
                a.I = Ipump
        return r

    b_common()
    a.I("s_mov_b64 s[0:1], s[62:63]")
    g0 = Gen([("K", 0, i, 0, i) for i in range(2)], 1, [])
    a.I("s_cmp_ge_u32 s16, 4")
    a.I(f"s_cbranch_scc1 {N}_nofl")
    fft_loads(VM(a))
    a.label(f"{N}_nofl")
    for _ in range(2):
        g0.dmaW(0, set())
    g0.dmaA(0)
    PF0 = os.environ.get("PF0", "0")

    def pf0():
        a.I("s_mov_b64 exec, 0xffff")
        a.I("buffer_load_dword v58, v23, s[24:27], s48 offen")
        a.I("s_mov_b64 exec, -1")
    if PF0 == "1":
        pf0()
    g0.flush()
    if PF0 == "2":
        pf0()
    g0.dmaA(1)
    for _ in range(2):
        g0.dmaW(0, set())
    g0.flush()
    if os.environ.get("CT0", "1") != "1":
        code_touch(a, N, 16, 36, 60, kd=False)
    st()
    late_setup()
    addr_setup()
    g0.dmaW(0, set())
    a.I("s_cmp_ge_u32 s16, 4")
    a.I(f"s_cbranch_scc1 {N}_join")
    gf = Gen([("K", 0, i, 0, i) for i in range(2)], 1, ["bx", "bx"] + g0.vm.q)
    fft_compute(gf)
    a.label(f"{N}_join")
    filt_setup()
    if os.environ.get("L1PRIO"):
        a.I("s_cmp_lt_u32 s16, 4")
        a.I(f"s_cbranch_scc1 {N}_np")
        a.I(f"s_setprio {os.environ['L1PRIO']}")
        a.label(f"{N}_np")
    srd(a, 60, 14, 15, 8 * MB, add=WS_Y)
    vmq = list(g0.vm.q)
    st()
    stn = st.n
    def y_prep():
        a.I(f"v_lshlrev_b32 {v(YA)}, 4, {v(TID)}")
        a.I("s_lshr_b32 s12, s16, 2")
        a.I("s_lshl_b32 s12, s12, 12")
        a.I("s_add_u32 s66, s66, s12")
        a.I(f"s_add_u32 s67, s66, {256 * 8192 + WS_WF - WS_Y}")
        a.I(f"s_add_u32 s12, s12, {BLDS + 8192}")
        a.I(f"v_add_u32 {v(YA)}, s12, {v(YA)}")

    y_prep()

    def mkgen(passes, nmerge=1):
        g = Gen(passes, nmerge, vmq)
        g.busy, g.nxt, g.dq = dict(g0.busy), g0.nxt, list(g0.dq)
        st.n = stn
        return g

    def start(g):
        a.I("s_waitcnt lgkmcnt(0)")
        g.readA(0)
        g.sync(g.groups[0])
        st()
        g.lg.issue(f"ds_read_b128 {v(YD, 4)}, {v(YA)}", "y")
        for i in range(LOOK):
            g.reads(i)

    def capture(fn):
        n0 = len(a.items)
        fn()
        seg = a.items[n0:]
        del a.items[n0:]
        return seg

    def merge(s1, s2):
        import asmlib
        isv = lambda x: x[0] == "i" and x[1].text.startswith("s_waitcnt vmcnt")
        out, i, j = [], 0, 0
        while i < len(s1) or j < len(s2):
            x = s1[i] if i < len(s1) else None
            y = s2[j] if j < len(s2) else None
            if x is not None and y is not None and isv(x) and isv(y):
                n = min(int(x[1].text[16:-1]), int(y[1].text[16:-1]))
                out.append(("i", asmlib.Ins(f"s_waitcnt vmcnt({n})")))
                i += 1
                j += 1
            elif x is not None and isv(x):
                out.append(x)
                i += 1
            elif y is not None and isv(y):
                out.append(y)
                j += 1
            else:
                assert x[1].text == y[1].text, (x[1].text, y[1].text)
                out.append(x)
                i += 1
                j += 1
        return out

    def looped(F, lab):
        def plist(pair):
            L = []
            for pp in range(8):
                if pair == 0:
                    L.append((F, 0, pp, 0, pp))
                else:
                    rel = pp - pair
                    L.append((F, 1 if rel >= 2 else 0, rel - 2 if rel >= 2 else rel, 0, rel))
            return L
        g = mkgen(plist(0))
        start(g)
        g.run(0, 2)
        g.boundary([0])
        g.skip_boundary = True
        g.wo_load()
        st()
        a.I("s_add_u32 s48, s48, 256")
        a.I("s_add_u32 s50, s50, s92")
        a.I("s_mov_b32 s44, 0")
        g.passes = plist(2)
        s1 = capture(lambda: g.run(2, 4))
        g.passes = plist(4)
        s2 = capture(lambda: g.run(4, 6))
        a.label(lab + "_loop")
        mg = merge(s1, s2)
        drop = os.environ.get("DROP", "").split(",")

        def keep(x):
            if x[0] != "i":
                return True
            tx = x[1].text
            if "dma" in drop and tx.endswith(" lds"):
                return False
            if "st" in drop and tx.startswith("buffer_store"):
                return False
            if "valu" in drop and x[1].cls == "valu":
                return False
            if "bar" in drop and tx == "s_barrier":
                return False
            if "rd" in drop and tx.startswith("ds_read"):
                return False
            if "vw" in drop and tx.startswith("s_waitcnt vm"):
                return False
            if "lw" in drop and tx.startswith("s_waitcnt lg"):
                return False
            return True
        a.items += [x for x in mg if keep(x)]
        if F == "K":
            a.I("s_cmp_eq_u32 s18, 10")
            a.I(f"s_cbranch_scc1 {N}_Ctail")
        a.I("s_mov_b32 s48, s53")
        a.I("s_mov_b32 s34, 0")
        a.I("s_add_u32 s50, s50, s92")
        a.I("s_add_u32 s44, s44, 1")
        a.I("s_cmp_lt_u32 s44, 2")
        a.I(f"s_cbranch_scc1 {lab}_loop")
        g.passes = plist(6)
        g.fin(5)
        return g

    a.I("s_cmp_eq_u32 s18, 31")
    a.I(f"s_cbranch_scc1 {N}_D")
    a.I("s_cmp_eq_u32 s41, 1")
    a.I(f"s_cbranch_scc1 {N}_B")
    looped("K", N + "_A")
    a.label(f"{N}_Ctail")
    gc = mkgen([("K", 0, pp, 0, pp) for pp in range(4)] + [("V", 1, 0, 1, 0), ("V", 1, 1, 1, 1)])
    capture(lambda: (start(gc), gc.run(0, 2), gc.wo_load(), gc.run(2, 4)))
    gc.passes[3] = ("K", 0, 1, 0, 1)
    st.n = stn + 5
    gc.run(4, 6)
    gc.fin(5)
    a.label(N + "_B")
    looped("V", N + "_B2")
    a.label(N + "_D")
    gd = mkgen([("V", 0, 0, 0, 0), ("V", 0, 1, 0, 1)] + [("K", 1, i, 1, i) for i in range(4)], 2)
    start(gd)
    gd.run(0, 2)
    st()
    gd.run(2, 5)
    gd.wo_load()
    gd.run(5, 6)
    gd.fin(5)
    kend(a, N)
    return a, N, (256, 512, 163840)


def gen_l3():
    a = Asm()
    N = "l3_kernel"
    kstart(a, N, 256)
    a.I("s_load_dwordx2 s[4:5], s[0:1], 88")
    a.I("s_load_dwordx2 s[8:9], s[0:1], 72")
    a.I("v_lshrrev_b32 v1, 6, v0")
    a.I("v_and_b32 v2, 255, v0")
    a.I("v_and_b32 v0, 63, v0")
    a.I("v_readfirstlane_b32 s17, v1")
    st = Stamper(a, "l3")
    WF, ACCS, RING, L16, LR, CMB = 128, [68, 84], 100, 124, 125, 127
    LOOK = 5
    a.I("s_bfe_u32 s40, s2, 0x20001")
    a.I("s_and_b32 s43, s2, 1")
    a.I("s_lshl_b32 s43, s43, 5")
    a.I("s_lshr_b32 s44, s2, 3")
    a.I("s_add_u32 s43, s43, s44")
    a.I("s_lshr_b32 s41, s43, 2")
    a.I("s_and_b32 s42, s43, 3")
    a.I("s_and_b32 s16, s17, 3")
    a.I("s_lshr_b32 s18, s17, 2")
    a.I(f"v_lshlrev_b32 {v(L16)}, 4, v0")
    a.I("s_lshl_b32 s45, s42, 1")
    a.I("s_lshr_b32 s46, s16, 1")
    a.I("s_add_u32 s45, s45, s46")
    a.I("s_lshl_b32 s45, s45, 19")
    a.I("s_lshl1_add_u32 s46, s40, s18")
    a.I("s_lshl_b32 s46, s46, 16")
    a.I("s_add_u32 s45, s45, s46")
    a.I("s_and_b32 s46, s16, 1")
    a.I("s_lshl_b32 s46, s46, 10")
    a.I("s_add_u32 s45, s45, s46")
    a.I(f"s_add_u32 s45, s45, {hex(WS_WO)}")
    a.I("s_lshl_b32 s47, s18, 15")
    a.I("s_lshl_b32 s48, s16, 10")
    a.I("s_add_u32 s47, s47, s48")
    a.I("s_lshl_b32 s46, s41, 20")
    a.I("s_lshl_b32 s48, s40, 16")
    a.I("s_add_u32 s46, s46, s48")
    a.I("s_add_u32 s46, s46, s47")
    a.I(f"s_add_u32 s46, s46, {hex(WS_CTX)}")
    a.I("s_lshl_b32 s48, s18, 15")
    a.I(f"v_add_u32 {v(LR)}, s48, {v(L16)}")
    a.I(f"v_add_u32 {v(LR + 1)}, 0x10000, {v(LR)}")
    a.I("s_lshl_b32 s48, s16, 12")
    a.I(f"s_add_u32 s48, s48, {131072}")
    a.I(f"v_add_u32 {v(CMB)}, s48, {v(L16)}")
    a.I("s_waitcnt lgkmcnt(0)")
    srd(a, 52, 4, 5, 64 * MB)
    st()
    vm, lg = VM(a), LG(a)

    def sub_off(n, dst):
        a.I(f"s_add_u32 {s(dst)}, s40, {n + 1}")
        a.I(f"s_and_b32 {s(dst)}, {s(dst)}, 3")
        a.I(f"s_lshl_b32 {s(dst)}, {s(dst)}, 18")
        a.I(f"s_add_u32 {s(dst)}, {s(dst)}, s46")

    for n in range(4):
        sub_off(n, 36 + n)

    def cdma(n, i):
        return [lambda: (a.I(f"s_add_u32 m0, s47, {(n & 1) * 65536 + i * 4096}"),
                         a.I(f"s_add_u32 s49, s{36 + n}, {i * 4096}"),
                         vm.issue(f"buffer_load_dwordx4 {v(L16)}, s[52:55], s49 offen lds", ("C", n, i // 2)))]

    def wload(g):
        def f():
            if g % 2 == 0 and g:
                a.I("s_add_u32 s45, s45, 4096")
            vm.issue(f"buffer_load_dwordx4 {v(WF + 4 * g, 4)}, {v(L16)}, s[52:55], s45 offen offset:{(g % 2) * 2048}", ("W", g))
        return [f]

    pend = []
    for c in range(4):
        for i in (2 * c, 2 * c + 1):
            pend += cdma(0, i) + cdma(1, i)
        for g in range(8 * c, 8 * c + 8):
            pend += wload(g)
    tags = []
    for c in range(4):
        tags += [("C", 0, c), ("C", 1, c)] * 2 + [("W", g) for g in range(8 * c, 8 * c + 8)]
    ptag = list(tags)

    def pump(k=1):
        for _ in range(k):
            if pend:
                pend.pop(0)()
                ptag.pop(0)

    def need(tg):
        while any(x in ptag for x in tg):
            pump()

    pump(PRE3)
    b3_loads(a, 8)
    srd(a, 56, 4, 5, 16 * MB, add=WS_PART)
    srd(a, 60, 4, 5, 64 * 128, add=WS_FLAG)
    a.I("s_lshl_b32 s64, s43, 7")
    a.I("s_lshl2_add_u32 s67, s40, s64")
    LA, LB_ = 28, 29
    a.I("s_lshl_b32 s48, s18, 16")
    a.I(f"v_add_u32 {v(LA)}, s48, {v(LR)}")
    a.I(f"v_xor_b32 {v(LB_)}, 0x10000, {v(LA)}")
    st()
    AC = [68, 84, 32]
    sched = []
    for g in range(32):
        sched += [(AC[0], LA, g), (AC[1], LB_, g)]
    sched += [(AC[2], LR, g) for g in range(32)] + [(AC[1], LR + 1, g) for g in range(32)]

    def read(i):
        lg.issue(f"ds_read_b128 {v(RING + 4 * (i % 6), 4)}, {v(sched[i][1])} offset:{sched[i][2] * 1024}", i)

    def sync(tg):
        need(tg)
        vm.wait(tg)
        a.I("s_barrier")

    TMP = 48

    def slot_calc(own_expr):
        a.I(own_expr)
        a.I("s_and_b32 s50, s50, 3")
        a.I("s_lshl2_add_u32 s50, s43, s50")
        a.I("s_lshl2_add_u32 s50, s50, s40")
        a.I("s_lshl2_add_u32 s50, s50, s16")
        a.I("s_lshl_b32 s50, s50, 12")

    def give_l(A, addr, off):
        for q in range(4):
            a.I(f"ds_write_b128 {v(addr)}, {v(A + 4 * q, 4)} offset:{off + q * 1024}")

    def take_l(A, addr, off, model=False):
        for q in range(4):
            a.I(f"ds_read_b128 {v(TMP + 4 * q, 4)}, {v(addr)} offset:{off + q * 1024}")
        a.I("s_waitcnt lgkmcnt(0)")
        for j in range(16):
            a.I(f"v_add_f32 {v(A + j)}, {v(A + j)}, {v(TMP + j)}")
        for q in range(4):
            x = f"buffer_store_dwordx4 {v(A + 4 * q, 4)}, {v(L16)}, s[56:59], s50 offen offset:{q * 1024} sc1"
            vm.issue(x, "P") if model else a.I(x)

    def give(n):
        lab = a.uid(f"{N}_g")
        a.I(f"s_cmp_eq_u32 s18, {n & 1}")
        a.I(f"s_cbranch_scc1 {lab}")
        give_l(AC[2] if n == 2 else AC[1], CMB, (n & 1) * 16384)
        a.label(lab)
        a.I("s_waitcnt lgkmcnt(0)")
        lg.q = []

    sync([("C", 0, 0), ("C", 1, 0)])
    st()
    for i in range(LOOK):
        read(i)
    for i in range(128):
        ac, _, g = sched[i]
        lg.wait(i)
        if i < 64:
            need([("W", g)])
            vm.wait(("W", g))
        first = g == 0
        a.I(f"{MF} {v(ac, 16)}, {v(WF + 4 * g, 4)}, {v(RING + 4 * (i % 6), 4)}, {'0' if first else v(ac, 16)}")
        j = i + LOOK
        if j < 128:
            if j < 64 and j % 16 == 0:
                c = j // 16
                sync([("C", 0, c), ("C", 1, c)])
                if c >= 2:
                    for n in (2, 3):
                        for k in (2 * (c - 2), 2 * (c - 2) + 1):
                            pend.extend(cdma(n, k))
                            ptag.append(("C", n, c - 2))
            elif j >= 64 and j % 16 == 0:
                sync([("C", j // 32, (j % 32) // 8 + c) for c in range(2)])
            read(j)
        if i in (31, 63, 75, 95, 107):
            st()
        if j == 64:
            for n in (2, 3):
                for k in (4, 5):
                    pend.extend(cdma(n, k))
                    ptag.append(("C", n, 2))
        if i == 64 + 5:
            a.I("s_lshl_b32 s48, s18, 14")
            a.I(f"v_add_u32 v30, s48, {v(CMB)}")
            a.I("v_xor_b32 v31, 0x4000, v30")
            give_l(AC[1], 31, 0)
            a.I("s_add_u32 s51, s18, 1")
            slot_calc("s_add_u32 s50, s40, s51")
            a.I("s_waitcnt lgkmcnt(0)")
            lg.q = []
            a.I("s_barrier")
            for n in (2, 3):
                for k in (6, 7):
                    pend.extend(cdma(n, k))
                    ptag.append(("C", n, 3))
            need([("C", 3, 3)])
            take_l(AC[0], 30, 0, True)
        if i == 96 + 5:
            vm.wait([("C", 3, 2), ("C", 3, 3)])
            give(2)
            a.I("s_barrier")
            a.I("s_cmp_lg_u32 s18, 0")
            a.I(f"s_cbranch_scc1 {N}_t2")
            slot_calc("s_add_u32 s50, s40, 3")
            take_l(AC[2], CMB, 0)
            a.label(f"{N}_t2")
        pump(2 if i < 64 else 1)
    st()
    LW = 32768
    a.I("v_mov_b32 v1, 0")
    a.I("v_mov_b32 v30, %d" % LW)
    a.I("ds_write_b32 v30, v1")
    a.I("v_mov_b32 v1, 1")
    a.I("s_nop 7")
    give(3)
    a.I("s_waitcnt vmcnt(0)")
    a.I("s_barrier")
    a.I("s_cmp_eq_u32 s18, 1")
    a.I(f"s_cbranch_scc1 {N}_fin")
    a.I("s_cmp_lg_u32 s17, 0")
    a.I(f"s_cbranch_scc1 {N}_nosig")
    a.I("s_mov_b64 exec, 1")
    a.I("buffer_store_dword v1, off, s[60:63], s67 sc1")
    a.I("s_mov_b64 exec, -1")
    a.label(f"{N}_nosig")
    b3_body(a, 0, 8, loaded=True)
    a.I("s_endpgm")
    a.label(f"{N}_fin")
    A = ACCS[1]
    a.I("s_lshl2_add_u32 s50, s43, s40")
    a.I("s_lshl_b32 s50, s50, 4")
    a.I("s_add_u32 s50, s50, s16")
    a.I("s_lshl_b32 s50, s50, 12")
    a.I("v_and_b32 v3, 31, v0")
    a.I("v_lshlrev_b32 v3, 11, v3")
    a.I("v_lshrrev_b32 v4, 5, v0")
    a.I("v_lshl_add_u32 v3, v4, 4, v3")
    a.I("s_lshl2_add_u32 s65, s41, s40")
    a.I("s_lshl_b32 s65, s65, 16")
    a.I("s_lshl_b32 s66, s42, 8")
    a.I("s_add_u32 s65, s65, s66")
    a.I("s_lshl_b32 s66, s16, 6")
    a.I("s_add_u32 s65, s65, s66")
    srd(a, 52, 8, 9, 4 * MB)
    a.I(f"v_mov_b32 v5, {LW}")
    for q in range(4):
        a.I(f"ds_read_b128 {v(WF + 4 * q, 4)}, {v(CMB)} offset:{16384 + q * 1024}")
    POLL = os.environ.get("POLL", "1")
    a.I("s_mov_b32 s44, 0")
    if POLL == "1":
        a.I("s_cmp_lg_u32 s17, 4")
        a.I(f"s_cbranch_scc1 {N}_lspin")
    a.label(f"{N}_spin")
    a.I("buffer_load_dwordx4 v[4:7], off, s[60:63], s64 sc1")
    a.I("s_waitcnt vmcnt(0)")
    a.I("v_and_b32 v4, v4, v5")
    a.I("v_and_b32 v6, v6, v7")
    a.I("v_and_b32 v4, v4, v6")
    a.I("s_nop 0")
    a.I("v_readfirstlane_b32 s66, v4")
    a.I("s_nop 0")
    a.I("s_cmp_eq_u32 s66, 1")
    a.I(f"s_cbranch_scc1 {N}_got")
    a.I("s_sleep 2")
    a.I("s_add_u32 s44, s44, 1")
    a.I("s_cmp_lt_u32 s44, 0x100000")
    a.I(f"s_cbranch_scc1 {N}_spin")
    a.I(f"s_branch {N}_got")
    if POLL == "1":
        a.label(f"{N}_lspin")
        a.I("ds_read_b32 v4, v5")
        a.I("s_waitcnt lgkmcnt(0)")
        a.I("v_readfirstlane_b32 s66, v4")
        a.I("s_nop 0")
        a.I("s_cmp_eq_u32 s66, 1")
        a.I(f"s_cbranch_scc1 {N}_got2")
        a.I("s_sleep 1")
        a.I(f"s_branch {N}_lspin")
    a.label(f"{N}_got")
    if POLL == "1":
        a.I(f"v_mov_b32 v5, {LW}")
        a.I("ds_write_b32 v5, v1")
        a.label(f"{N}_got2")
    st()
    for k in range(1, 4):
        a.I(f"s_add_u32 s66, s40, {k}")
        a.I("s_and_b32 s66, s66, 3")
        a.I("s_lshl_b32 s66, s66, 14")
        a.I("s_add_u32 s66, s66, s50")
        for q in range(4):
            a.I(f"buffer_load_dwordx4 {v(WF + 16 * k + 4 * q, 4)}, {v(L16)}, s[56:59], s66 offen offset:{q * 1024} sc1")
    a.I("s_waitcnt lgkmcnt(0)")
    a.I("s_barrier")
    for k in range(4):
        if k:
            a.I(f"s_waitcnt vmcnt({4 * (3 - k)})")
        for j in range(16):
            a.I(f"v_add_f32 {v(A + j)}, {v(A + j)}, {v(WF + 16 * k + j)}")
    pack(a, 8, A, 8)
    a.I("s_nop 1")
    for h in range(2):
        a.I(f"v_permlane32_swap_b32 {v(8 + 4 * h)}, {v(10 + 4 * h)}")
        a.I(f"v_permlane32_swap_b32 {v(9 + 4 * h)}, {v(11 + 4 * h)}")
        a.I(f"buffer_store_dwordx4 {v(8 + 4 * h, 4)}, v3, s[52:55], s65 offen offset:{32 * h}{os.environ.get('OPA', '')}")
    st.dump(17, 4, tmpv=16)
    kend(a, N)
    return a, N, (256, 512, 163840)


def gen_l3v3():
    a = Asm()
    N = "l3_kernel"
    kstart(a, N, 256)
    a.I("s_load_dwordx2 s[4:5], s[0:1], 88")
    a.I("s_load_dwordx2 s[8:9], s[0:1], 72")
    a.I("v_lshrrev_b32 v1, 6, v0")
    a.I("v_and_b32 v2, 255, v0")
    a.I("v_and_b32 v0, 63, v0")
    a.I("v_readfirstlane_b32 s17, v1")
    st = Stamper(a, "l3")
    WF, ACCS, RING, L16, LR, CMB = 128, [68, 84], 100, 124, 125, 127
    LOOK = 5
    a.I("s_bfe_u32 s40, s2, 0x20001")
    a.I("s_and_b32 s43, s2, 1")
    a.I("s_lshl_b32 s43, s43, 5")
    a.I("s_lshr_b32 s44, s2, 3")
    a.I("s_add_u32 s43, s43, s44")
    a.I("s_lshr_b32 s41, s43, 2")
    a.I("s_and_b32 s42, s43, 3")
    a.I("s_and_b32 s16, s17, 3")
    a.I("s_lshr_b32 s18, s17, 2")
    a.I(f"v_lshlrev_b32 {v(L16)}, 4, v0")
    a.I("s_lshl_b32 s45, s42, 1")
    a.I("s_lshr_b32 s46, s16, 1")
    a.I("s_add_u32 s45, s45, s46")
    a.I("s_lshl_b32 s45, s45, 19")
    a.I("s_lshl1_add_u32 s46, s40, s18")
    a.I("s_lshl_b32 s46, s46, 16")
    a.I("s_add_u32 s45, s45, s46")
    a.I("s_and_b32 s46, s16, 1")
    a.I("s_lshl_b32 s46, s46, 10")
    a.I("s_add_u32 s45, s45, s46")
    a.I(f"s_add_u32 s45, s45, {hex(WS_WO)}")
    a.I("s_lshl_b32 s47, s18, 15")
    a.I("s_lshl_b32 s48, s16, 10")
    a.I("s_add_u32 s47, s47, s48")
    a.I("s_lshl_b32 s46, s41, 20")
    a.I("s_lshl_b32 s48, s40, 16")
    a.I("s_add_u32 s46, s46, s48")
    a.I("s_add_u32 s46, s46, s47")
    a.I(f"s_add_u32 s46, s46, {hex(WS_CTX)}")
    a.I("s_lshl_b32 s47, s18, 13")
    a.I("s_lshl_b32 s48, s16, 10")
    a.I("s_add_u32 s47, s47, s48")
    a.I("s_lshl_b32 s48, s18, 13")
    a.I(f"v_add_u32 {v(LR)}, s48, {v(L16)}")
    a.I(f"v_add_u32 {v(LR + 1)}, 0x10000, {v(LR)}")
    a.I("s_lshl_b32 s48, s16, 12")
    a.I(f"v_add_u32 {v(CMB)}, s48, {v(L16)}")
    a.I("s_waitcnt lgkmcnt(0)")
    srd(a, 52, 4, 5, 64 * MB)
    st()
    vm, lg = VM(a), LG(a)

    def sub_off(n, dst):
        a.I(f"s_add_u32 {s(dst)}, s40, {n + 1}")
        a.I(f"s_and_b32 {s(dst)}, {s(dst)}, 3")
        a.I(f"s_lshl_b32 {s(dst)}, {s(dst)}, 18")
        a.I(f"s_add_u32 {s(dst)}, {s(dst)}, s46")

    PB16 = int(os.environ.get("PB16", "1"))
    for n in range(4):
        sub_off(n, 36 + n)

    def cslot(n, c):
        return (n * 2 + c % 2) * 16384 if n < 3 else 98304 + c * 16384

    pend, ptag = [], []

    def cdma(n, i):
        pend.append(lambda: (a.I(f"s_add_u32 m0, s47, {cslot(n, i // 2) + (i % 2) * 4096}"),
                             a.I(f"s_add_u32 s49, s{36 + n}, {i * 4096}"),
                             vm.issue(f"buffer_load_dwordx4 {v(L16)}, s[52:55], s49 offen lds", ("C", n, i // 2))))
        ptag.append(("C", n, i // 2))

    def wload(g):
        def f():
            if g % 2 == 0 and g:
                a.I("s_add_u32 s45, s45, 4096")
            vm.issue(f"buffer_load_dwordx4 {v(WF + 4 * g, 4)}, {v(L16)}, s[52:55], s45 offen offset:{(g % 2) * 2048}", ("W", g))
        pend.append(f)
        ptag.append(("W", g))

    def pump(k=1):
        for _ in range(k):
            if pend:
                pend.pop(0)()
                ptag.pop(0)

    def need(tg):
        while any(x in ptag for x in tg):
            pump()

    for c in range(2):
        for n in range(3):
            cdma(n, 2 * c)
            cdma(n, 2 * c + 1)
        for g in range(8 * c, 8 * c + 8):
            wload(g)
    for g in range(16, 24):
        wload(g)
    pump(PRE3)
    srd(a, 56, 4, 5, 16 * MB, add=WS_PART)
    srd(a, 60, 4, 5, 64 * 128, add=WS_FLAG)
    a.I("s_lshl_b32 s64, s43, 7")
    a.I("s_lshl2_add_u32 s67, s40, s64")
    LA, LB_, LO = 28, 29, 30
    a.I("s_lshl_b32 s48, s18, 15")
    a.I(f"v_add_u32 {v(LA)}, s48, {v(LR)}")
    a.I(f"v_xor_b32 {v(LB_)}, 0x8000, {v(LA)}")
    a.I(f"v_add_u32 {v(LO)}, {98304}, {v(LR)}")
    st()
    AC = [68, 84, 32]
    sched = []
    for g in range(32):
        o = ((g // 8) % 2) * 16384 + (g % 8) * 1024
        sched += [(AC[0], LA, o, g), (AC[1], LB_, o, g), (AC[2], LR + 1, o, g)]
    OWN = 48
    sched += [(OWN, LO, (g // 8) * 16384 + (g % 8) * 1024, g) for g in range(32)]

    def read(i):
        lg.issue(f"ds_read_b128 {v(RING + 4 * (i % 6), 4)}, {v(sched[i][1])} offset:{sched[i][2]}", i)

    def sync(tg):
        need(tg)
        vm.wait(tg)
        a.I("s_barrier")

    def slot_calc(dst, own_expr):
        a.I(own_expr)
        a.I(f"s_and_b32 {s(dst)}, {s(dst)}, 3")
        a.I(f"s_lshl2_add_u32 {s(dst)}, s43, {s(dst)}")
        a.I(f"s_lshl2_add_u32 {s(dst)}, {s(dst)}, s40")
        a.I(f"s_lshl2_add_u32 {s(dst)}, {s(dst)}, s16")
        a.I(f"s_lshl_b32 {s(dst)}, {s(dst)}, 12")

    def give_l(A, addr, off):
        for q in range(4):
            a.I(f"ds_write_b128 {v(addr)}, {v(A + 4 * q, 4)} offset:{off + q * 1024}")

    def take_l(A, T, addr, off, so):
        for q in range(4):
            a.I(f"ds_read_b128 {v(T + 4 * q, 4)}, {v(addr)} offset:{off + q * 1024}")
        a.I("s_waitcnt lgkmcnt(0)")
        for j in range(16):
            a.I(f"v_add_f32 {v(A + j)}, {v(A + j)}, {v(T + j)}")
        if PB16:
            pack(a, T, A, 8)
            for q in range(2):
                a.I(f"buffer_store_dwordx4 {v(T + 4 * q, 4)}, {v(L16)}, s[56:59], {s(so)} offen offset:{q * 1024} sc1")
        else:
            for q in range(4):
                a.I(f"buffer_store_dwordx4 {v(A + 4 * q, 4)}, {v(L16)}, s[56:59], {s(so)} offen offset:{q * 1024} sc1")

    sync([("C", n, 0) for n in range(3)])
    st()
    for i in range(LOOK):
        read(i)
    NM = 128
    for i in range(NM):
        ac, _, _, g = sched[i]
        lg.wait(i)
        if i < 96:
            need([("W", g)])
            vm.wait(("W", g))
        a.I(f"{MF} {v(ac, 16)}, {v(WF + 4 * g, 4)}, {v(RING + 4 * (i % 6), 4)}, {'0' if g == 0 else v(ac, 16)}")
        j = i + LOOK
        if j < NM:
            if j < 96 and j % 24 == 0:
                sync([("C", n, j // 24) for n in range(3)])
            elif j == 96:
                sync([("C", 3, c) for c in range(4)])
            read(j)
        if i in (25, 49):
            c = i // 24
            a.I("s_barrier")
            for n in range(3):
                cdma(n, 2 * (c + 1))
                cdma(n, 2 * (c + 1) + 1)
            if c == 1:
                for g2 in range(24, 32):
                    wload(g2)
            else:
                for k in range(8):
                    cdma(3, k)
        if i == B3AT:
            n0 = len(a.items)
            b3_loads(a, 8, before=lambda: (a.I("s_cmp_lg_u32 s18, 0"), a.I(f"s_cbranch_scc1 {N}_nb3l")))
            a.items[n0:] = [x for x in a.items[n0:] if not (x[0] == "i" and x[1].text == "s_waitcnt lgkmcnt(0)")]
            a.label(f"{N}_nb3l")
        if i in (47, 95, 107):
            st()
        if i == 96 + 4:
            a.I("s_lshl_b32 s48, s18, 15")
            a.I(f"v_add_u32 {v(LA)}, s48, {v(CMB)}")
            a.I(f"v_xor_b32 {v(LB_)}, 0x8000, {v(LA)}")
            a.I(f"v_add_u32 v31, 0x10000, {v(CMB)}")
            give_l(AC[1], LB_, 0)
            a.I("s_cmp_eq_u32 s18, 0")
            a.I(f"s_cbranch_scc1 {N}_g2")
            give_l(AC[2], 31, 0)
            a.label(f"{N}_g2")
            a.I("s_add_u32 s51, s18, 1")
            slot_calc(50, "s_add_u32 s50, s40, s51")
            slot_calc(51, "s_add_u32 s51, s40, 3")
            a.I("s_waitcnt lgkmcnt(0)")
            lg.q = []
            a.I("s_barrier")
            take_l(AC[0], AC[1], LA, 0, 50)
            a.I("s_cmp_lg_u32 s18, 0")
            a.I(f"s_cbranch_scc1 {N}_t2")
            take_l(AC[2], AC[0], 31, 0, 51)
            a.label(f"{N}_t2")
        if i == SIG3:
            a.I("v_mov_b32 v1, 1")
            a.I("s_waitcnt vmcnt(0)")
            a.I("s_barrier")
            a.I("s_cmp_lg_u32 s17, 0")
            a.I(f"s_cbranch_scc1 {N}_nosig")
            a.I("s_mov_b64 exec, 1")
            a.I("buffer_store_dword v1, off, s[60:63], s67 sc1")
            a.I("s_mov_b64 exec, -1")
            a.label(f"{N}_nosig")
        pump(2 if i < 96 else 1)

    def give(n):
        lab = a.uid(f"{N}_g")
        a.I("s_cmp_eq_u32 s18, 1")
        a.I(f"s_cbranch_scc1 {lab}")
        give_l(OWN, CMB, 49152)
        a.label(lab)
        a.I("s_waitcnt lgkmcnt(0)")

    st()
    LW = 65536 + 16384
    a.I("v_mov_b32 v1, 0")
    a.I("v_mov_b32 v30, %d" % LW)
    a.I("ds_write_b32 v30, v1")
    a.I("v_mov_b32 v1, 1")
    a.I("s_nop 7")
    give(3)
    a.I("s_barrier")
    a.I("s_cmp_eq_u32 s18, 1")
    a.I(f"s_cbranch_scc1 {N}_fin")
    b3_body(a, 65536, 8, loaded=True)
    a.I("s_endpgm")
    a.label(f"{N}_fin")
    A = OWN
    a.I("s_lshl2_add_u32 s50, s43, s40")
    a.I("s_lshl_b32 s50, s50, 4")
    a.I("s_add_u32 s50, s50, s16")
    a.I("s_lshl_b32 s50, s50, 12")
    a.I("v_and_b32 v3, 31, v0")
    a.I("v_lshlrev_b32 v3, 11, v3")
    a.I("v_lshrrev_b32 v4, 5, v0")
    a.I("v_lshl_add_u32 v3, v4, 4, v3")
    a.I("s_lshl2_add_u32 s65, s41, s40")
    a.I("s_lshl_b32 s65, s65, 16")
    a.I("s_lshl_b32 s66, s42, 8")
    a.I("s_add_u32 s65, s65, s66")
    a.I("s_lshl_b32 s66, s16, 6")
    a.I("s_add_u32 s65, s65, s66")
    srd(a, 52, 8, 9, 4 * MB)
    a.I(f"v_mov_b32 v5, {LW}")
    for q in range(4):
        a.I(f"ds_read_b128 {v(WF + 4 * q, 4)}, {v(CMB)} offset:{49152 + q * 1024}")
    POLL = os.environ.get("POLL", "1")
    a.I("s_mov_b32 s44, 0")
    if POLL == "1":
        a.I("s_cmp_lg_u32 s17, 4")
        a.I(f"s_cbranch_scc1 {N}_lspin")
    a.label(f"{N}_spin")
    a.I("buffer_load_dwordx4 v[4:7], off, s[60:63], s64 sc1")
    a.I("s_waitcnt vmcnt(0)")
    a.I("v_and_b32 v4, v4, v5")
    a.I("v_and_b32 v6, v6, v7")
    a.I("v_and_b32 v4, v4, v6")
    a.I("s_nop 0")
    a.I("v_readfirstlane_b32 s66, v4")
    a.I("s_nop 0")
    a.I("s_cmp_eq_u32 s66, 1")
    a.I(f"s_cbranch_scc1 {N}_got")
    a.I("s_sleep 2")
    a.I("s_add_u32 s44, s44, 1")
    a.I("s_cmp_lt_u32 s44, 0x100000")
    a.I(f"s_cbranch_scc1 {N}_spin")
    a.I(f"s_branch {N}_got")
    if POLL == "1":
        a.label(f"{N}_lspin")
        a.I("ds_read_b32 v4, v5")
        a.I("s_waitcnt lgkmcnt(0)")
        a.I("v_readfirstlane_b32 s66, v4")
        a.I("s_nop 0")
        a.I("s_cmp_eq_u32 s66, 1")
        a.I(f"s_cbranch_scc1 {N}_got2")
        a.I("s_sleep 1")
        a.I(f"s_branch {N}_lspin")
    a.label(f"{N}_got")
    if POLL == "1":
        a.I(f"v_mov_b32 v5, {LW}")
        a.I("ds_write_b32 v5, v1")
        a.label(f"{N}_got2")
    st()
    for k in range(1, 4):
        a.I(f"s_add_u32 s66, s40, {k}")
        a.I("s_and_b32 s66, s66, 3")
        a.I("s_lshl_b32 s66, s66, 14")
        a.I("s_add_u32 s66, s66, s50")
        for q in range(2 if PB16 else 4):
            a.I(f"buffer_load_dwordx4 {v(WF + 16 * k + 4 * q, 4)}, {v(L16)}, s[56:59], s66 offen offset:{q * 1024} sc1")
    a.I("s_waitcnt lgkmcnt(0)")
    a.I("s_barrier")
    for k in range(4):
        if k:
            a.I(f"s_waitcnt vmcnt({(2 if PB16 else 4) * (3 - k)})")
        for j in range(16):
            if PB16 and k:
                if j & 1:
                    a.I(f"v_and_b32 v64, 0xffff0000, {v(WF + 16 * k + j // 2)}")
                else:
                    a.I(f"v_lshlrev_b32 v64, 16, {v(WF + 16 * k + j // 2)}")
                a.I(f"v_add_f32 {v(A + j)}, {v(A + j)}, v64")
            else:
                a.I(f"v_add_f32 {v(A + j)}, {v(A + j)}, {v(WF + 16 * k + j)}")
    pack(a, 8, A, 8)
    a.I("s_nop 1")
    for h in range(2):
        a.I(f"v_permlane32_swap_b32 {v(8 + 4 * h)}, {v(10 + 4 * h)}")
        a.I(f"v_permlane32_swap_b32 {v(9 + 4 * h)}, {v(11 + 4 * h)}")
        a.I(f"buffer_store_dwordx4 {v(8 + 4 * h, 4)}, v3, s[52:55], s65 offen offset:{32 * h}{os.environ.get('OPA', '')}")
    st.dump(17, 4, tmpv=16)
    kend(a, N)
    return a, N, (256, 512, 163840)


def gen_l3_s4():
    a = Asm()
    N = "l3_kernel"
    kstart(a, N, 256)
    a.I("s_load_dwordx2 s[4:5], s[0:1], 88")
    a.I("s_load_dwordx2 s[8:9], s[0:1], 72")
    a.I("v_lshrrev_b32 v1, 6, v0")
    a.I("v_and_b32 v0, 63, v0")
    a.I("s_nop 0")
    a.I("v_readfirstlane_b32 s17, v1")
    st = Stamper(a, "l3")
    L16, RA, RB_, ACC, FR = 128, 129, 130, 132, 164
    PB16 = int(os.environ.get("PB16", "0"))
    NST, STG = 4, 4
    a.I("s_bfe_u32 s40, s2, 0x20001")
    a.I("s_and_b32 s43, s2, 1")
    a.I("s_lshl_b32 s43, s43, 5")
    a.I("s_lshr_b32 s44, s2, 3")
    a.I("s_add_u32 s43, s43, s44")
    a.I("s_lshr_b32 s41, s43, 2")
    a.I("s_and_b32 s42, s43, 3")
    a.I(f"v_lshlrev_b32 {v(L16)}, 4, v0")
    a.I("s_lshl_b32 s45, s41, 2")
    a.I("s_add_u32 s45, s45, s17")
    a.I("s_lshl_b32 s45, s45, 18")
    a.I("s_lshl_b32 s46, s40, 16")
    a.I("s_add_u32 s45, s45, s46")
    a.I(f"s_add_u32 s45, s45, {hex(WS_CTX)}")
    a.I("s_lshl_b32 s46, s42, 1")
    a.I("s_bfe_u32 s47, s17, 0x10001")
    a.I("s_add_u32 s46, s46, s47")
    a.I("s_lshl_b32 s46, s46, 19")
    a.I("s_lshl_b32 s47, s40, 17")
    a.I("s_add_u32 s46, s46, s47")
    a.I("s_and_b32 s47, s17, 1")
    a.I("s_lshl_b32 s47, s47, 10")
    a.I("s_add_u32 s46, s46, s47")
    a.I(f"s_add_u32 s46, s46, {hex(WS_WO)}")
    a.I("s_cmp_lt_u32 s17, 4")
    a.I("s_cselect_b32 s45, s45, s46")
    a.I("s_movk_i32 s46, 0x800")
    a.I("s_cselect_b32 s46, 1024, s46")
    a.I("s_lshl_b32 s47, s17, 10")
    a.I("s_and_b32 s48, s17, 1")
    a.I("s_lshl_b32 s48, s48, 11")
    a.I(f"v_add_u32 {v(RA)}, s48, {v(L16)}")
    a.I("s_lshr_b32 s48, s17, 1")
    a.I("s_lshl_b32 s48, s48, 10")
    a.I("s_add_u32 s48, s48, 4096")
    a.I(f"v_add_u32 {v(RB_)}, s48, {v(L16)}")
    a.I(f"v_add_u32 {v(RB_ + 1)}, 0x10000, {v(RA)}")
    a.I(f"v_add_u32 v127, 0x10000, {v(RB_)}") if False else None
    a.I("s_waitcnt lgkmcnt(0)")
    srd(a, 52, 4, 5, 64 * MB)
    st()
    vm, lg = VM(a), LG(a)

    def dma(g, emit=True):
        L = [lambda: a.I(f"s_add_u32 m0, s47, {(g % (NST * STG)) * 8192}"),
             lambda: a.I("s_add_u32 s49, s45, s46") if False else a.I("s_nop 0"),
             lambda: vm.issue(f"buffer_load_dwordx4 {v(L16)}, s[52:55], s45 offen lds", g),
             lambda: a.I("s_add_u32 s45, s45, s46")]
        return L

    def first_loads():
        for g in range((NST - 1) * STG):
            for f in dma(g):
                f()
        return (NST - 1) * STG

    first_loads()
    a.I("s_and_b32 s18, s17, 1")
    a.I("s_lshr_b32 s19, s40, 1")
    a.I("s_cmp_eq_u32 s18, s19")
    a.I("s_cselect_b32 s18, 1, 0")
    a.I("s_lshr_b32 s16, s17, 1")
    a.I("s_lshl_b32 s19, s16, 6")
    a.I("v_add_u32 v2, s19, v0")
    a.I("s_cmp_eq_u32 s18, 1")
    a.I(f"s_cbranch_scc1 {N}_nob3l")
    b3_loads(a, 8)
    a.label(f"{N}_nob3l")
    st()
    RA2, RB2 = RB_ + 1, 127
    a.I(f"v_add_u32 {v(RB2)}, 0x10000, {v(RB_)}")
    NG = 64

    def reads(g):
        sl = g % (NST * STG)
        ra, rb = (RA, RB_) if sl < 8 else (RA2, RB2)
        off = (sl % 8) * 8192
        d = FR + 12 * (g % 3)
        lg.issue(f"ds_read_b128 {v(d, 4)}, {v(rb)} offset:{off}", g)
        lg.issue(f"ds_read_b128 {v(d + 4, 4)}, {v(ra)} offset:{off}", g)
        lg.issue(f"ds_read_b128 {v(d + 8, 4)}, {v(ra)} offset:{off + 1024}", g)

    pend = []

    def sync(stg):
        vm.wait(list(range(stg * STG, (stg + 1) * STG)))
        a.I("s_barrier")
        nxt = stg + NST - 2
        if stg >= 1 and (nxt + 1) * STG <= NG and nxt >= NST - 1:
            for g in range(nxt * STG, (nxt + 1) * STG):
                pend.extend(dma(g))

    sync(0)
    st()
    reads(0)
    reads(1)
    for g in range(NG):
        j = g + 2
        if j < NG and j % STG == 0:
            while pend:
                pend.pop(0)()
            sync(j // STG)
        lg.wait(g)
        d = FR + 12 * (g % 3)
        for i in range(2):
            acc = v(ACC + 16 * i, 16)
            a.I(f"{MF} {acc}, {v(d, 4)}, {v(d + 4 + 4 * i, 4)}, {'0' if g == 0 else acc}")
            if i == 0 and j < NG:
                reads(j)
            for _ in range(2 + i):
                if pend:
                    pend.pop(0)()
    st()
    srd(a, 56, 4, 5, 16 * MB, add=WS_PART)
    a.I("s_lshr_b32 s48, s17, 1")
    a.I("s_and_b32 s49, s17, 1")
    a.I("s_lshl_b32 s50, s43, 2")
    a.I("s_lshl1_add_u32 s50, s49, s50")
    a.I("s_lshl_b32 s50, s50, 2")
    a.I("s_add_u32 s50, s50, s40")
    a.I("s_lshl_b32 s50, s50, 2")
    a.I("s_add_u32 s50, s50, s48")
    a.I("s_lshl_b32 s50, s50, 12")
    a.I("s_add_u32 s51, s50, 0x10000")
    a.I("s_lshl_b32 s49, s49, 1")
    for i in range(2):
        lab = f"{N}_keep{i}"
        a.I("s_cmp_eq_u32 s49, s40")
        a.I(f"s_cbranch_scc1 {lab}")
        if PB16:
            pack(a, FR + 8 * i, ACC + 16 * i, 8)
            for q in range(2):
                a.I(f"buffer_store_dwordx4 {v(FR + 8 * i + 4 * q, 4)}, {v(L16)}, s[56:59], s{50 + i} offen offset:{q * 1024} sc1")
        else:
            for q in range(4):
                a.I(f"buffer_store_dwordx4 {v(ACC + 16 * i + 4 * q, 4)}, {v(L16)}, s[56:59], s{50 + i} offen offset:{q * 1024} sc1")
        a.label(lab)
        a.I("s_add_u32 s49, s49, 1")
    srd(a, 60, 4, 5, 64 * 128, add=WS_FLAG)
    a.I("s_lshl_b32 s64, s43, 7")
    a.I("s_lshl2_add_u32 s67, s40, s64")

    def signal():
        a.I("v_mov_b32 v1, 1")
        a.I("s_waitcnt vmcnt(0)")
        a.I("s_barrier")
        a.I("s_cmp_lg_u32 s17, 7")
        lab = a.uid(f"{N}_nosig")
        a.I(f"s_cbranch_scc1 {lab}")
        a.I("s_mov_b64 exec, 1")
        a.I("buffer_store_dword v1, off, s[60:63], s67 sc1")
        a.I("s_mov_b64 exec, -1")
        a.label(lab)

    a.I("s_cmp_eq_u32 s18, 1")
    a.I(f"s_cbranch_scc1 {N}_nob3")
    b3_body(a, 131072, 8, loaded=True, mid=signal)
    a.I("s_endpgm")
    a.label(f"{N}_nob3")
    a.I("s_bitcmp0_b32 s40, 0")
    a.I(f"s_cbranch_scc1 {N}_own0")
    for j in range(16):
        a.I(f"v_mov_b32 {v(ACC + j)}, {v(ACC + 16 + j)}")
    a.label(f"{N}_own0")
    a.I("s_lshl_b32 s50, s43, 2")
    a.I("s_add_u32 s50, s50, s40")
    a.I("s_lshl_b32 s50, s50, 4")
    a.I("s_add_u32 s50, s50, s48")
    a.I("s_lshl_b32 s50, s50, 12")
    a.I("v_and_b32 v3, 31, v0")
    a.I("v_lshlrev_b32 v3, 11, v3")
    a.I("v_lshrrev_b32 v4, 5, v0")
    a.I("v_lshl_add_u32 v3, v4, 4, v3")
    a.I("s_lshl_b32 s65, s41, 2")
    a.I("s_add_u32 s65, s65, s40")
    a.I("s_lshl_b32 s65, s65, 16")
    a.I("s_lshl_b32 s66, s42, 8")
    a.I("s_add_u32 s65, s65, s66")
    a.I("s_lshl_b32 s66, s48, 6")
    a.I("s_add_u32 s65, s65, s66")
    srd(a, 52, 8, 9, 4 * MB)
    signal()
    a.I("s_barrier")
    st()
    a.label(f"{N}_spin")
    a.I("buffer_load_dwordx4 v[4:7], off, s[60:63], s64 sc1")
    a.I("s_waitcnt vmcnt(0)")
    a.I("v_and_b32 v4, v4, v5")
    a.I("v_and_b32 v6, v6, v7")
    a.I("v_and_b32 v4, v4, v6")
    a.I("s_nop 0")
    a.I("v_readfirstlane_b32 s66, v4")
    a.I("s_nop 0")
    a.I("s_cmp_lg_u32 s66, 1")
    a.I(f"s_cbranch_scc1 {N}_spin")
    st()
    for k in range(1, 4):
        a.I(f"s_add_u32 s66, s40, {k}")
        a.I("s_and_b32 s66, s66, 3")
        a.I("s_lshl_b32 s66, s66, 14")
        a.I("s_add_u32 s66, s66, s50")
        for q in range(2 if PB16 else 4):
            a.I(f"buffer_load_dwordx4 {v(16 * k + 4 * q, 4)}, {v(L16)}, s[56:59], s66 offen offset:{q * 1024} sc1")
    for k in range(1, 4):
        a.I(f"s_waitcnt vmcnt({(2 if PB16 else 4) * (3 - k)})")
        for j in range(16):
            if PB16:
                if j & 1:
                    a.I(f"v_and_b32 v64, 0xffff0000, {v(16 * k + j // 2)}")
                else:
                    a.I(f"v_lshlrev_b32 v64, 16, {v(16 * k + j // 2)}")
                a.I(f"v_add_f32 {v(ACC + j)}, {v(ACC + j)}, v64")
            else:
                a.I(f"v_add_f32 {v(ACC + j)}, {v(ACC + j)}, {v(16 * k + j)}")
    pack(a, 8, ACC, 8)
    a.I("s_nop 1")
    for h in range(2):
        a.I(f"v_permlane32_swap_b32 {v(8 + 4 * h)}, {v(10 + 4 * h)}")
        a.I(f"v_permlane32_swap_b32 {v(9 + 4 * h)}, {v(11 + 4 * h)}")
        a.I(f"buffer_store_dwordx4 {v(8 + 4 * h, 4)}, v3, s[52:55], s65 offen offset:{32 * h}{os.environ.get('OPA', '')}")
    st.dump(17, 4, tmpv=16)
    kend(a, N)
    return a, N, (256, 512, 131072 + 8192 + 64)


def gen_l3_old():
    a = Asm()
    N = "l3_kernel"
    kstart(a, N, 256)
    a.I("s_load_dwordx2 s[4:5], s[0:1], 88")
    a.I("s_load_dwordx2 s[6:7], s[0:1], 40")
    a.I("s_load_dwordx2 s[8:9], s[0:1], 72")
    a.I("v_lshrrev_b32 v1, 6, v0")
    a.I("v_and_b32 v2, 255, v0")
    a.I("v_and_b32 v0, 63, v0")
    a.I("v_readfirstlane_b32 s16, v1")
    a.I("s_nop 0")
    a.I("s_cmp_ge_u32 s16, 4")
    a.I(f"s_cbranch_scc1 {N}_b3")
    st = Stamper(a, "l3")
    OB = int(os.environ.get('OB', '3'))
    ACC = (oproj_body3 if OB == 3 else oproj_body2)(a, N, st, bar_at=8)
    a.I("s_barrier")
    oproj_finish(a, ACC, 32768 if OB == 3 else 16384)
    st.dump(16, 4, tmpv=8)
    a.I("s_endpgm")
    a.label(f"{N}_b3")
    a.I("s_and_b32 s16, s16, 3")
    b3_body(a, 131072, 8)
    kend(a, N)
    return a, N, (256, 512, 131072 + 8192 + 64)


KERNELS = [gen_l1, lambda: gen_attn(not os.environ.get('NOB2')), {'v3': gen_l3v3, 'new': gen_l3, 's4': gen_l3_s4, 'old': gen_l3_old}[os.environ.get('L3V', 'v3')]]

if __name__ == "__main__":
    p = sys.argv[1] if len(sys.argv) > 1 else os.path.join(os.path.dirname(os.path.abspath(__file__)), "..",
                                                           "cdna_kernels", NAME + ".s")
    sys.exit(1 if build(KERNELS, p) else 0)
```

```python
import sys, os, math, struct
sys.path.insert(0, os.path.dirname(os.path.abspath(__file__)))
from asmlib import Asm, VM, LG, v, s, ag

NAME = "concat_heads__compressed_kv_cla__spectral_gfnet__prompt"
MB = 1 << 20
WS_K, WS_V, WS_CTX, WS_Y, WS_WF, WS_Z, WS_Q = 0, 16 * MB, 32 * MB, 48 * MB, 52 * MB, 56 * MB, 64 * MB
WS_WO = 60 * MB
if os.environ.get('ALIAS'):
    WS_Q = WS_CTX
WS_PART = 0
WS_FLAG = 56 * MB + 2560 * 1024
YSTR = 8320
KA = dict(x=0, ckv=8, wq=16, wuk=24, wuv=32, wo=40, bx=48, wr=56, wi=64, out=72, dbg=80, ws=88)
MF = "v_mfma_f32_32x32x16_bf16"
SP = os.environ.get("SP", " sc1")


def f32(x):
    return "0x%08x" % struct.unpack("<I", struct.pack("<f", x))[0]


def srd(a, d, lo, hi, size, add=0):
    if add:
        a.I(f"s_add_u32 {s(d)}, {s(lo)}, {add if isinstance(add, str) else hex(add)}")
        a.I(f"s_addc_u32 {s(d + 1)}, {s(hi)}, 0")
    else:
        a.I(f"s_mov_b32 {s(d)}, {s(lo)}")
        a.I(f"s_mov_b32 {s(d + 1)}, {s(hi)}")
    a.I(f"s_mov_b32 {s(d + 2)}, {size if isinstance(size, str) else hex(size)}")
    a.I(f"s_mov_b32 {s(d + 3)}, 0x20000")


STAMPS = int(os.environ.get("STAMPS", "0"))
ST0 = 72


class Stamper:
    def __init__(self, a, name=""):
        self.a, self.n = a, 0
        self.on = STAMPS and os.environ.get("STAMPK", name) == name

    def __call__(self):
        if self.on and self.n < 11:
            if self.n == 0:
                self.a.I("s_memrealtime s[68:69]")
            self.a.I(f"s_memtime {s(ST0 + 2 * self.n, 2)}")
            self.n += 1

    def dump(self, wave_s, wslo, tmpv=8):
        if not self.on:
            return
        a = self.a
        a.I("s_waitcnt vmcnt(0) lgkmcnt(0)")
        a.I(f"s_memtime {s(ST0 + 2 * self.n, 2)}")
        a.I("s_memrealtime s[70:71]")
        self.n += 1
        srd(a, 96, wslo, wslo + 1, 1 * MB, add=128 * MB)
        a.I("s_lshl_b32 s100, s2, 3")
        a.I(f"s_add_u32 s100, s100, {s(wave_s)}")
        a.I("s_lshl_b32 s100, s100, 8")
        a.I("s_waitcnt lgkmcnt(0)")
        a.I(f"v_mov_b32 {v(tmpv + 1)}, 0")
        for i in range(self.n):
            a.I(f"v_mov_b32 {v(tmpv)}, {s(ST0 + 2 * i)}")
            a.I(f"buffer_store_dword {v(tmpv)}, {v(tmpv + 1)}, s[96:99], s100 offen offset:{4 * i}")
        for i, r in ((62, 68), (63, 70), (61, ST0 + 2 * (self.n - 1))):
            a.I(f"v_mov_b32 {v(tmpv)}, {s(r)}")
            a.I(f"buffer_store_dword {v(tmpv)}, {v(tmpv + 1)}, s[96:99], s100 offen offset:{4 * i}")
        a.I("s_waitcnt vmcnt(0)")


DBGT = int(os.environ.get("DBGT", "0"))
KIDX = [0, 0]


def dbg_stamp(a, end):
    k = KIDX[0]
    lab = a.uid("dbgskip%d_%d" % (k, KIDX[1]))
    KIDX[1] += 1
    if not end:
        a.I("v_readfirstlane_b32 s89, v0")
        a.I("s_nop 1")
        a.I("s_lshr_b32 s89, s89, 6")
        a.I("s_or_b32 s89, s89, s2")
    a.I("s_cmp_lg_u32 s89, 0")
    a.I(f"s_cbranch_scc1 {lab}")
    a.I("s_load_dwordx4 s[92:95], s[90:91], 80")
    a.I("s_waitcnt vmcnt(0) lgkmcnt(0)")
    a.I("s_memrealtime s[86:87]")
    a.I(f"s_add_u32 s96, s94, {hex(200 * MB)}")
    a.I("s_addc_u32 s97, s95, 0")
    a.I("s_mov_b32 s98, 256")
    a.I("s_mov_b32 s99, 0x20000")
    a.I("s_waitcnt lgkmcnt(0)")
    a.I("v_mov_b32 v254, s86")
    a.I(f"buffer_store_dword v254, off, s[96:99], 0 offset:{8 * k + 4 * end} sc0 sc1")
    a.I("s_waitcnt vmcnt(0)")
    if end and k == DBGT - 1:
        a.I("v_lshlrev_b32 v253, 2, v0")
        a.I("buffer_load_dword v254, v253, s[96:99], 0 offen sc0 sc1")
        a.I("s_mov_b32 s96, s92")
        a.I("s_mov_b32 s97, s93")
        a.I("s_waitcnt vmcnt(0)")
        a.I("buffer_store_dword v254, v253, s[96:99], 0 offen")
        a.I(f"s_sub_u32 s96, s92, {k * 512}")
        a.I("s_subb_u32 s97, s93, 0")
        a.I("s_nop 0")
        a.I("buffer_store_dword v254, v253, s[96:99], 0 offen")
    a.label(lab)


def code_touch(a, kname, wave_s, sr, vt, nw_log=3, kd=True):
    if os.environ.get("NOCP"):
        return
    a.I(f"s_getpc_b64 {s(sr, 2)}")
    a.I(f"s_add_u32 {s(sr)}, {s(sr)}, cs_{kname}@rel32@lo+4")
    a.I(f"s_addc_u32 {s(sr + 1)}, {s(sr + 1)}, cs_{kname}@rel32@hi+12")
    a.I(f"s_mov_b32 {s(sr + 2)}, {kname}_end - {kname}")
    a.I(f"s_mov_b32 {s(sr + 3)}, 0x20000")
    a.I(f"s_lshr_b32 {s(sr + 4)}, s2, 3")
    a.I(f"s_lshl_b32 {s(sr + 4)}, {s(sr + 4)}, {nw_log}")
    a.I(f"s_add_u32 {s(sr + 4)}, {s(sr + 4)}, {s(wave_s)}")
    a.I(f"s_lshl_b32 {s(sr + 4)}, {s(sr + 4)}, {12 - nw_log}")
    a.I(f"v_lshlrev_b32 {v(vt)}, 7, v0")
    a.I(f"s_mov_b64 exec, {(1 << (32 >> nw_log)) - 1}")
    a.I(f"buffer_load_dword {v(vt + 1)}, {v(vt)}, {s(sr, 4)}, {s(sr + 4)} offen")
    if kd and os.environ.get("KD"):
        a.I(f"s_getpc_b64 {s(sr, 2)}")
        a.I(f"s_add_u32 {s(sr)}, {s(sr)}, kdl_{kname}@rel32@lo+4")
        a.I(f"s_addc_u32 {s(sr + 1)}, {s(sr + 1)}, kdl_{kname}@rel32@hi+12")
        a.I(f"s_mov_b32 {s(sr + 2)}, 64")
        a.I("s_mov_b64 exec, 1")
        a.I(f"buffer_load_dword {v(vt + 1)}, off, {s(sr, 4)}, 0")
    a.I("s_mov_b64 exec, -1")


def kstart(a, name, nwg):
    a.raw(".text")
    a.raw(f".globl {name}")
    a.raw(".p2align 8")
    a.raw(f".type {name},@function")
    a.label(name)
    a.label("cs_" + name)
    a.I(f"s_cmp_ge_u32 s2, {nwg}")
    a.I(f"s_cbranch_scc1 {name}_end")
    if DBGT:
        a.I("s_mov_b64 s[90:91], s[0:1]")
        dbg_stamp(a, 0)


def kend(a, name):
    a.label(name + "_end")
    a.I("s_endpgm")


def kdesc(name, nv, ns, na=0):
    nv = (nv + 7) // 8 * 8
    acc_off = nv
    nv = nv + (na + 7) // 8 * 8
    return f""".section .rodata,"a"
.p2align 6
kdl_{name}:
.amdhsa_kernel {name}
  .amdhsa_next_free_vgpr {nv}
  .amdhsa_next_free_sgpr {max(ns, 16)}
  .amdhsa_accum_offset {acc_off}
  .amdhsa_group_segment_fixed_size 0
  .amdhsa_kernarg_size 96
  .amdhsa_user_sgpr_count 2
  .amdhsa_user_sgpr_kernarg_segment_ptr 1
  .amdhsa_system_sgpr_workgroup_id_x 1
  .amdhsa_float_denorm_mode_32 3
.end_amdhsa_kernel
"""


QSCALE = math.log2(math.e) / math.sqrt(128.0)


def gen_qkv():
    a = Asm()
    N = "qkvproj_kernel"
    kstart(a, N, 256)
    a.I("s_load_dwordx4 s[4:7], s[0:1], 0")
    a.I("s_load_dwordx4 s[8:11], s[0:1], 16")
    a.I("s_load_dwordx2 s[12:13], s[0:1], 32")
    a.I("s_load_dwordx2 s[14:15], s[0:1], 88")
    a.I("v_lshrrev_b32 v1, 6, v0")
    a.I("v_and_b32 v0, 63, v0")
    a.I("s_and_b32 s17, s2, 7")
    a.I("v_readfirstlane_b32 s16, v1")
    a.I("s_lshr_b32 s18, s2, 3")
    a.I("s_and_b32 s19, s18, 7")
    a.I("s_lshr_b32 s18, s18, 3")
    a.I("s_lshl_b32 s40, s17, 2")
    a.I("s_add_u32 s18, s18, s40")
    a.I("s_mov_b32 s41, 0")
    a.I("s_mul_i32 s42, s18, 6")
    a.I("s_cmp_ge_u32 s18, 11")
    a.I("s_cselect_b32 s41, 1, s41")
    a.I("s_cselect_b32 s40, 64, 0")
    a.I("s_cmp_ge_u32 s18, 21")
    a.I("s_cselect_b32 s41, 2, s41")
    a.I("s_cselect_b32 s40, 126, s40")
    a.I("s_sub_u32 s42, s42, s40")
    a.I("s_lshl_b32 s44, s19, 3")
    a.I("s_add_u32 s44, s44, s16")
    hl, b4, t1, t2 = 9, 10, 11, 12
    a.I(f"v_lshrrev_b32 {v(hl)}, 5, v0")
    a.I(f"v_bfe_u32 {v(b4)}, v0, 4, 1")
    a.I(f"v_lshrrev_b32 {v(t1)}, 3, v0")
    a.I(f"v_lshlrev_b32 {v(t1)}, 10, {v(t1)}")
    a.I("s_lshl_b32 s45, s44, 15")
    a.I(f"v_add_u32 {v(t1)}, s45, {v(t1)}")
    a.I(f"v_lshrrev_b32 {v(t2)}, 4, v0")
    a.I("v_and_b32 v13, 7, v0")
    a.I(f"v_xor_b32 {v(t2)}, {v(t2)}, v13")
    a.I(f"v_lshl_add_u32 v52, {v(t2)}, 4, {v(t1)}")
    a.I("v_xor_b32 v53, 64, v52")
    a.I(f"v_add_u32 v53, {8192 - 1024}, v53")
    a.I(f"v_add_u32 v54, {2 * (8192 - 1024)}, v52")
    a.I(f"v_add_u32 v55, {2 * (8192 - 1024)}, v53")
    a.I("v_and_b32 v13, 31, v0")
    a.I(f"v_bfe_u32 {v(t2)}, v0, 1, 3")
    a.I(f"v_xor_b32 {v(t2)}, {v(t2)}, {v(hl)}")
    a.I(f"v_lshlrev_b32 {v(t2)}, 4, {v(t2)}")
    a.I(f"v_lshl_add_u32 {v(t2)}, v13, 7, {v(t2)}")
    a.I("s_mul_i32 s46, s16, 12288")
    for t in range(4):
        a.I(f"v_xor_b32 {v(56 + t)}, {32 * t}, {v(t2)}")
    for t in range(4):
        a.I(f"v_add_u32 {v(56 + t)}, s46, {v(56 + t)}")
    a.I("v_lshrrev_b32 v2, 3, v0")
    a.I("v_lshlrev_b32 v2, 13, v2")
    a.I(f"v_lshlrev_b32 {v(t1)}, 2, {v(b4)}")
    a.I(f"v_and_b32 {v(t2)}, 7, v0")
    a.I(f"v_xor_b32 {v(t1)}, {v(t1)}, {v(t2)}")
    a.I(f"v_lshl_add_u32 v2, {v(t1)}, 4, v2")
    a.I("s_lshl_b32 s45, s16, 17")
    a.I("v_add_u32 v2, s45, v2")
    a.I(f"v_add_u32 v3, {65536 - 1024}, v2")
    a.I(f"v_bfe_u32 {v(t1)}, v0, 2, 2")
    a.I(f"v_lshl_add_u32 {v(t2)}, {v(hl)}, 3, {v(t1)}")
    a.I(f"v_lshlrev_b32 v4, 7, {v(t2)}")
    a.I(f"v_lshl_add_u32 v4, {v(b4)}, 5, v4")
    a.I(f"v_and_b32 {v(t2)}, 3, v0")
    a.I(f"v_lshl_add_u32 v4, {v(t2)}, 3, v4")
    a.I(f"v_bfe_u32 {v(t2)}, v0, 3, 1")
    a.I(f"v_lshl_add_u32 v4, {v(t2)}, 6, v4")
    a.I("v_xor_b32 v5, 64, v4")
    a.I("v_add_u32 v6, 0x10000, v4")
    a.I("v_add_u32 v7, 0x10000, v5")
    a.I("v_add_u32 v50, 0x20000, v4")
    a.I("v_add_u32 v51, 0x20000, v5")
    a.I("v_lshlrev_b32 v48, 4, v0")
    a.I("s_lshl_b32 s47, s16, 11")
    a.I("s_lshl_b32 s48, s42, 7")
    a.I("s_lshl_b32 s49, s44, 13")
    a.I("s_lshl_b32 s50, s42, 18")
    a.I("s_add_u32 s50, s50, s49")
    a.I("s_waitcnt lgkmcnt(0)")
    a.I("s_cmp_eq_u32 s41, 2")
    a.I("s_cselect_b32 s20, s4, s6")
    a.I("s_cselect_b32 s21, s5, s7")
    a.I("s_cselect_b32 s24, s8, s10")
    a.I("s_cselect_b32 s25, s9, s11")
    a.I(f"s_cselect_b32 s51, {hex(WS_Q)}, 0")
    a.I(f"s_cselect_b32 s52, {f32(QSCALE)}, 1.0")
    a.I(f"s_mov_b32 s22, {hex(2 * MB)}")
    a.I("s_mov_b32 s23, 0x20000")
    a.I(f"s_mov_b32 s26, {hex(4 * MB)}")
    a.I("s_mov_b32 s27, 0x20000")
    srd(a, 28, 14, 15, 16 * MB, add="s51")
    srd(a, 32, 12, 13, 4 * MB)
    srd(a, 36, 14, 15, 16 * MB, add=WS_V)
    srd(a, 56, 6, 7, 2 * MB)
    a.I("s_cmp_eq_u32 s18, 31")
    a.I(f"s_cbranch_scc1 {N}_D")
    a.I("s_cmp_eq_u32 s41, 1")
    a.I(f"s_cbranch_scc1 {N}_B")
    a.I("s_cmp_eq_u32 s18, 10")
    a.I(f"s_cbranch_scc1 {N}_C")

    AF, ACC, RING, PK = 64, 192, 8, 32
    LOOK = 6

    def body(passes, tag):
        vm, lg = VM(a), LG(a)
        st = Stamper(a, "qkv")
        st()
        NP = len(passes)
        NC = 4 * NP
        NM = 64 * NP
        restage = tag == "D"
        blk = {}
        free = [6, 7, 8, 9]
        nxt = [0]

        def dmaW():
            c = nxt[0]
            if c >= NC or not free:
                return False
            b = free.pop(0)
            blk[c] = b
            nxt[0] += 1
            pp, kc = divmod(c, 4)
            form, su, di = passes[pp]
            a.I(f"s_add_u32 m0, s47, {hex(b * 16384)}")
            if su is not None:
                a.I(f"s_mov_b32 s45, {hex((kc << 20) + su * 128)}")
            else:
                a.I(f"s_add_u32 s45, s48, {hex((kc << 20) + di * 128)}")
            sr = "s[32:35]" if form == "V" else "s[24:27]"
            vm.issue(f"buffer_load_dwordx4 v2, {sr}, s45 offen lds", ("W", c))
            vm.issue(f"buffer_load_dwordx4 v3, {sr}, s45 offen offset:1024 lds", ("W", c))
            return True

        def dmaA(j):
            sr = "s[56:59]" if (restage and j < 8) else "s[20:23]"
            a.I(f"s_add_u32 m0, s46, {hex((j % 3) * 4096)}")
            a.I(f"s_mov_b32 s45, {(j % 8) * 128}")
            for i in range(4):
                vm.issue(f"buffer_load_dwordx4 {v(52 + i)}, {sr}, s45 offen offset:{i * 1024} lds", ("A", j))

        def readA(j):
            vm.wait(("A", j))
            for t in range(4):
                lg.issue(f"ds_read_b128 {v(AF + 16 * (j % 8) + 4 * t, 4)}, {v(56 + t)} offset:{(j % 3) * 4096}", ("A", j))

        dmaW(); dmaA(0); dmaA(1); dmaW(); dmaA(2); dmaW(); dmaW()

        def reads(i):
            c, r = divmod(i, 16)
            t, cb = divmod(r, 2)
            b = blk[c]
            base = [4, 6, 50][b // 4] + cb
            off = (b % 4) * 16384 + t * 2048
            d = RING + 4 * (i % LOOK)
            lg.issue(f"ds_read_b64_tr_b16 {v(d, 2)}, {v(base)} offset:{off}", ("W", i))
            lg.issue(f"ds_read_b64_tr_b16 {v(d + 2, 2)}, {v(base)} offset:{off + 512}", ("W", i))

        def sync(c):
            vm.wait(("W", c))
            a.I("s_barrier")
            if c >= 2:
                free.append(blk[c - 2])
            if c == (10 if restage else 5):
                free.extend([0, 1, 2, 3, 4, 5])
            n = 0
            while n < 2 and dmaW():
                n += 1

        def epi(pp):
            out = []
            form, su, di = passes[pp]
            acc = ACC + 32 * (pp & 1)
            so = 54 + (pp & 1)
            if su is not None:
                out.append(lambda: a.I(f"s_add_u32 s{so}, s49, {hex((su >> 1) * 512 * 1024 + (su & 1) * 4096)}"))
            else:
                out.append(lambda: a.I(f"s_add_u32 s{so}, s50, {hex((di >> 1) * 512 * 1024 + (di & 1) * 4096)}"))
            sr = "s[36:39]" if form == "V" else "s[28:31]"
            for cb in range(2):
                for h in range(2):
                    q = 2 * cb + h
                    for i in range(4):
                        src = acc + 16 * cb + 8 * h + 2 * i
                        if form == "K" and tag in "AD":
                            out.append(lambda src=src: a.I(f"v_mul_f32 {v(src)}, s52, {v(src)}"))
                            out.append(lambda src=src: a.I(f"v_mul_f32 {v(src + 1)}, s52, {v(src + 1)}"))
                        out.append(lambda src=src, q=q, i=i: a.I(
                            f"v_cvt_pk_bf16_f32 {v(PK + 4 * q + i)}, {v(src)}, {v(src + 1)}"))
                    out.append(lambda q=q: vm.issue(
                        f"buffer_store_dwordx4 {v(PK + 4 * q, 4)}, v48, {sr}, s{so} offen offset:{q * 1024}{SP}", ("S", pp)))
            return out

        st()
        readA(0)
        sync(0)
        st()
        for i in range(LOOK - 2):
            reads(i)
        lg.wait(("A", 0))
        for i in range(LOOK - 2, LOOK):
            reads(i)
        pend = []
        for i in range(NM):
            c, r = divmod(i, 16)
            t, cb = divmod(r, 2)
            pp, kc = divmod(c, 4)
            k = 8 * kc + t
            if i % 2 == 0:
                lg.wait([("W", i), ("W", i + 1), ("A", i // 8)])
            if pp == 0 and i % 8 == 0 and i // 8 + 3 < (11 if restage else 8):
                dmaA(i // 8 + 3)
            if restage and 72 < i <= 128 + 8 and i % 8 == 4:
                jj = 8 + (i - 76) // 8
                lg.wait(("A", jj))
                if jj + 3 < 16:
                    dmaA(jj + 3)
            acc = v(ACC + 32 * (pp & 1) + 16 * cb, 16)
            wf = v(RING + 4 * (i % LOOK), 4)
            af = v(AF + 4 * k, 4)
            cin = "0" if k == 0 else acc
            if passes[pp][0] == "V":
                a.I(f"{MF} {acc}, {af}, {wf}, {cin}")
            else:
                a.I(f"{MF} {acc}, {wf}, {af}, {cin}")
            j = i + LOOK
            if j < NM:
                if j % 16 == 0:
                    sync(j // 16)
                if j < 64 and j % 8 == 0:
                    readA(j // 8)
                reads(j)
            if restage and 64 <= i < 128 and i % 8 == 7:
                readA(8 + (i - 64) // 8)
            if i % 64 == 63:
                st()
            if i % 64 == 6 and pp >= 1:
                pend = epi(pp - 1)
            if pend:
                pend.pop(0)()
        a.I("s_nop 11")
        for f in epi(NP - 1):
            f()
        st.dump(16, 14)
        a.I("s_endpgm")

    body([("K", None, i) for i in range(6)], "A")
    a.label(N + "_B")
    body([("V", None, i) for i in range(6)], "B")
    a.label(N + "_C")
    body([("K", None, i) for i in range(4)] + [("V", 0, 0), ("V", 1, 0)], "C")
    a.label(N + "_D")
    body([("V", 62, 0), ("V", 63, 0)] + [("K", None, i) for i in range(4)], "D")
    kend(a, N)
    return a, N, (256, 512, 163840)


def gen_attn(withb2=False):
    b2tail = withb2 and os.environ.get("B2MODE", "start") == "tail"
    if b2tail:
        withb2 = False
    a = Asm()
    N = "attn_kernel"
    O, Q, S, P, NEGM, RING = 64, 128, [160, 176], [192, 200], 208, 224
    L16, VKA, VVA, VL, VLS, E, VDA, VDB, QREL, T0, T1, T2, NINF = 1, 2, 3, 4, 5, 6, 10, 11, 12, 13, 14, 15, 48
    PK = 16
    EE = 50
    sW, sH, sP, sN, sC, sPH, sTHR, sBAR, sKO, sKM, sVM, sQS = 16, 17, 18, 19, 20, 21, 40, 41, 42, 43, 44, 45
    kstart(a, N, 256)
    a.I("s_load_dwordx2 s[4:5], s[0:1], 88")
    a.I("s_load_dwordx2 s[14:15], s[0:1], 40")
    a.I("v_lshrrev_b32 v1, 6, v0")
    a.I("v_and_b32 v0, 63, v0")
    a.I("s_and_b32 s6, s2, 7")
    a.I(f"v_readfirstlane_b32 {s(sW)}, v1")
    a.I("s_lshr_b32 s7, s2, 3")
    a.I("s_and_b32 s8, s7, 3")
    a.I("s_lshl_b32 s6, s6, 2")
    a.I(f"s_add_u32 {s(sH)}, s6, s8")
    a.I(f"s_lshr_b32 {s(sP)}, s7, 2")
    a.I(f"s_lshl_b32 s6, {s(sP)}, 2")
    a.I(f"s_sub_u32 s7, 60, s6")
    a.I(f"s_add_u32 s7, s7, {s(sW)}")
    a.I(f"s_add_u32 s8, s6, 7")
    a.I(f"s_sub_u32 s8, s8, {s(sW)}")
    a.I(f"s_cmp_ge_u32 {s(sW)}, 4")
    a.I(f"s_cselect_b32 {s(sQS)}, s8, s7")
    a.I(f"s_add_u32 {s(sN)}, {s(sQS)}, 1")
    a.I("s_sub_u32 s9, 64, s6")
    a.I(f"s_lshr_b32 {s(sBAR)}, s9, 1")
    a.I("s_lshl_b32 s9, s9, 13")
    a.I(f"s_lshl_b32 s10, {s(sH)}, 19")
    a.I(f"v_lshlrev_b32 {v(L16)}, 4, v0")
    a.I(f"s_and_b32 s11, {s(sW)}, 3")
    a.I("s_lshl_b32 s11, s11, 11")
    a.I(f"v_add_u32 {v(VDA)}, s11, {v(L16)}")
    a.I(f"v_add_u32 {v(VDB)}, 0x2000, {v(VDA)}")
    a.I(f"v_and_b32 {v(T0)}, 31, v0")
    a.I(f"v_lshrrev_b32 {v(T1)}, 5, v0")
    a.I(f"v_lshlrev_b32 {v(T1)}, 2, {v(T1)}")
    a.I(f"v_sub_u32 {v(QREL)}, {v(T0)}, {v(T1)}")
    a.I(f"v_mov_b32 {v(NINF)}, 0xff800000")
    a.I(f"s_mov_b32 {s(sTHR)}, {f32(2.0 ** 14)}")
    FLG = 7 * 16384 + 8192
    if withb2:
        a.I(f"v_mov_b32 v124, {FLG}")
        for i in range(4):
            a.I(f"v_mov_b32 {v(56 + i)}, 0")
        a.I("ds_write_b128 v124, v[56:59]")
        a.I("s_and_b32 s60, s2, 7")
        a.I("s_lshl_b32 s60, s60, 5")
        a.I("s_lshr_b32 s61, s2, 3")
        a.I("s_add_u32 s60, s60, s61")
        a.I("s_cmp_eq_u32 s2, 248")
        a.I("s_cselect_b32 s61, 4, 2")
        a.I(f"s_cmp_lt_u32 {s(sW)}, s61")
        a.I("s_cselect_b32 s23, 1, 0")
        a.I(f"s_cmp_ge_u32 {s(sW)}, 2")
        a.I("s_cselect_b32 s60, 0x100, s60")
        a.I(f"s_mov_b32 s61, {131072}")
        a.I(f"s_cselect_b32 s61, {131072 + 16384}, s61")
        a.I(f"s_and_b32 s67, {s(sW)}, 1")
    a.I("s_waitcnt lgkmcnt(0)")
    srd(a, 24, 4, 5, "s9", add="s10")
    a.I(f"s_add_u32 s12, s10, {hex(WS_V - 3 * 8192)}")
    a.I(f"s_add_u32 s13, s9, {3 * 8192}")
    srd(a, 28, 4, 5, "s13", add="s12")
    srd(a, 32, 4, 5, 16 * MB, add=WS_Q)
    srd(a, 36, 4, 5, 16 * MB, add=WS_CTX)
    st = Stamper(a, "attn")
    st()
    a.I(f"s_lshl_b32 s12, {s(sQS)}, 18")
    a.I(f"s_lshl_b32 s13, {s(sH)}, 13")
    a.I("s_add_u32 s12, s12, s13")
    a.I("s_add_u32 s13, s12, 4096")

    def q_loads(vm=None):
        for t in range(8):
            x = f"buffer_load_dwordx4 {v(Q + 4 * t, 4)}, {v(L16)}, s[32:35], s{12 + t // 4} offen offset:{(t % 4) * 1024}{os.environ.get('QP', '')}"
            vm.issue(x, "Q") if vm else a.I(x)

    if withb2:
        a.I("s_cmp_eq_u32 s23, 0")
        a.I(f"s_cbranch_scc1 {N}_nob2l")
        b2_loads(a, VM(a), 60, 67, L16, 16, 32, 62, 48)
        q_loads()
        a.label(f"{N}_nob2l")
        a.I("s_barrier")
    a.I(f"s_lshl_b32 s46, {s(sQS)}, 18")
    a.I(f"s_lshl_b32 s6, {s(sH)}, 13")
    a.I("s_add_u32 s46, s46, s6")
    a.I("s_add_u32 s47, s46, 4096")
    a.I(f"s_mov_b32 {s(sKM)}, s11")
    a.I(f"s_mov_b32 {s(sKO)}, 0")

    def dma_list(withV=True):
        l = []
        if withV:
            l += [f"s_mov_b32 m0, {s(sVM)}", None,
                  f"buffer_load_dwordx4 {v(VDA)}, s[28:31], {s(sKO)} offen lds",
                  f"buffer_load_dwordx4 {v(VDA)}, s[28:31], {s(sKO)} offen offset:1024 lds",
                  f"s_add_u32 m0, {s(sVM)}, 0x4000", None,
                  f"buffer_load_dwordx4 {v(VDB)}, s[28:31], {s(sKO)} offen lds",
                  f"buffer_load_dwordx4 {v(VDB)}, s[28:31], {s(sKO)} offen offset:1024 lds"]
        l += [f"s_mov_b32 m0, {s(sKM)}", f"s_add_u32 {s(sVM)}, {s(sKM)}, 0x2000",
              f"buffer_load_dwordx4 {v(VDA)}, s[24:27], {s(sKO)} offen lds",
              f"buffer_load_dwordx4 {v(VDA)}, s[24:27], {s(sKO)} offen offset:1024 lds",
              f"s_add_u32 m0, {s(sKM)}, 0x4000", f"s_add_u32 {s(sKM)}, {s(sKM)}, 0x8000",
              f"buffer_load_dwordx4 {v(VDB)}, s[24:27], {s(sKO)} offen lds",
              f"buffer_load_dwordx4 {v(VDB)}, s[24:27], {s(sKO)} offen offset:1024 lds",
              f"s_and_b32 {s(sKM)}, {s(sKM)}, 0x1ffff",
              f"s_add_u32 {s(sKO)}, {s(sKO)}, 0x4000"]
        return l

    def emit_dma(withV=True):
        for x in dma_list(withV):
            if "dma" in os.environ.get("ADROP", "") and x and x.endswith(" lds"):
                continue
            a.I(x or "s_nop 0")

    def mask_negm():
        for j in range(16):
            a.I(f"v_cmp_le_i32 vcc, {(j & 3) + 8 * (j >> 2)}, {v(QREL)}")
            a.I("s_nop 1")
            a.I(f"v_cndmask_b32 {v(NEGM + j)}, {v(NINF)}, {v(NEGM + j)}, vcc")
        a.I("s_nop 1")

    def rowmax(Sx, dst):
        a.I(f"v_max3_f32 {v(dst)}, {v(Sx)}, {v(Sx + 1)}, {v(Sx + 2)}")
        for j in range(3, 15, 2):
            a.I(f"v_max3_f32 {v(dst)}, {v(dst)}, {v(Sx + j)}, {v(Sx + j + 1)}")
        a.I(f"v_max_f32 {v(dst)}, {v(dst)}, {v(Sx + 15)}")
        a.I(f"v_mov_b32 {v(T2)}, {v(dst)}")
        a.I("s_nop 1")
        a.I(f"v_permlane32_swap_b32 {v(dst)}, {v(T2)}")
        a.I(f"v_max_f32 {v(dst)}, {v(dst)}, {v(T2)}")

    def role(ld):
        R = "S" if ld else "L"
        if withb2 and not ld:
            a.I("s_cmp_eq_u32 s23, 0")
            a.I(f"s_cbranch_scc1 {N}_b2no")
            a.I(f"s_and_b32 s67, {s(sW)}, 2")
            a.I("s_lshl_b32 s67, s67, 2")
            a.I(f"s_add_u32 s67, s67, {FLG}")
            a.I("v_mov_b32 v124, s67")
            a.I(f"s_bitcmp1_b32 {s(sW)}, 0")
            a.I(f"s_cbranch_scc1 {N}_b2w1")
            rmap = [56, 57, 58, 59, 60, 61, 62, 120, 63, 16, 24, 32, 40, 64, 72, 80, 88, 104, 160, 176, 192, 208, 224]
            for own in range(2):
                vmb = VM(a)
                if own:
                    a.label(f"{N}_b2w1")
                ex = [0]

                def pair_sync():
                    ex[0] += 1
                    lab = a.uid(f"{N}_spin")
                    a.I(f"v_mov_b32 v125, {ex[0]}")
                    a.I(f"ds_write_b32 v124, v125 offset:{4 * own}")
                    a.label(lab)
                    a.I(f"ds_read_b32 v126, v124 offset:{4 * (1 - own)}")
                    a.I("s_waitcnt lgkmcnt(0)")
                    a.I("v_readfirstlane_b32 s67, v126")
                    a.I("s_nop 0")
                    a.I(f"s_cmp_lt_u32 s67, {ex[0]}")
                    a.I(f"s_cbranch_scc1 {lab}")
                b2_body(a, own, 60, 61, pair_sync, vmb, S0=62, SR=48, slice_len=10 ** 9, rmap=rmap, preloaded=True,
                        st=st if os.environ.get("B2ST") else (lambda: None))
                if os.environ.get("B2ST"):
                    st()
                    st.n -= 5 * (1 - own)
                assert vmb.q[-5:] == ["Q", "Z", "Z", "Z", "Z"] or "Q" not in vmb.q
                a.I(f"s_branch {N}_b2done")
            a.label(f"{N}_b2no")
        def inits(tag):
            for j in range(16):
                a.I(f"v_mov_b32 {v(NEGM + j)}, 0")
            a.I(f"s_cmp_lg_u32 {s(sN)}, 1")
            a.I(f"s_cbranch_scc1 {N}_{R}_nm1{tag}")
            mask_negm()
            a.label(f"{N}_{R}_nm1{tag}")

        inits("a")
        q_loads()
        if ld:
            emit_dma(withV=False)
            emit_dma()
        if withb2 and not ld:
            a.I("s_waitcnt vmcnt(0)")
            a.I(f"s_branch {N}_b2join")
            a.label(f"{N}_b2done")
            inits("b")
            a.I("s_waitcnt vmcnt(4)")
            a.label(f"{N}_b2join")
        a.I(f"v_mov_b32 {v(VL)}, 0")
        a.I(f"v_mov_b32 {v(VLS)}, 0")
        a.I(f"v_add_u32 {v(VKA)}, 0x8000, {v(L16)}")
        a.I(f"v_mov_b32 {v(VVA)}, {v(L16)}")
        if os.environ.get("PRIO") and not ld:
            a.I(f"s_setprio {os.environ['PRIO']}")
        if ld or not withb2:
            a.I(f"s_waitcnt vmcnt({6 if ld else 0})")
        a.I("s_barrier")
        st()
        for t in range(8):
            a.I(f"ds_read_b128 {v(RING + 4 * t, 4)}, {v(L16)} offset:{t * 1024}")
        dl = [x or "s_nop 0" for x in dma_list()] if ld else []
        for t in range(8):
            if t % 4 == 0:
                a.I("s_waitcnt lgkmcnt(4)")
            a.I(f"{MF} {v(S[0], 16)}, {v(RING + 4 * t, 4)}, {v(Q + 4 * t, 4)}, {v(NEGM if t == 0 else S[0], 16)}")
            a.I(f"ds_read_b128 {v(RING + 4 * t, 4)}, {v(L16)} offset:{16384 + t * 1024}")
            for x in dl[:3]:
                a.I(x)
            dl = dl[3:]
            for j in range(5):
                a.I(f"v_mov_b32 {v(O + 5 * t + j)}, 0")
        assert not dl
        for j in range(40, 64):
            a.I(f"v_mov_b32 {v(O + j)}, 0")
        if ld:
            emit_dma()
        rowmax(S[0], T0)
        for j in range(16):
            a.I(f"v_sub_f32 {v(S[0] + j)}, {v(S[0] + j)}, {v(T0)}")
        for j in range(16):
            a.I(f"v_sub_f32 {v(NEGM + j)}, 0, {v(T0)}")
        a.I(f"s_mov_b32 {s(sPH)}, 0")
        a.I(f"s_sub_u32 {s(sC)}, {s(sN)}, 3")
        a.I(f"s_cbranch_scc0 {N}_{R}_first")
        a.I(f"s_mov_b32 {s(sPH)}, 3")
        a.I(f"s_mov_b32 {s(sC)}, 0")
        a.I(f"s_cmp_lg_u32 {s(sN)}, 2")
        a.I(f"s_cbranch_scc1 {N}_{R}_first")
        a.I(f"s_mov_b32 {s(sPH)}, 1")
        mask_negm()
        a.label(f"{N}_{R}_first")
        e = lambda j: v(EE + (j % 6))
        if ld:
            a.I("s_waitcnt vmcnt(14)")
        a.I("s_waitcnt lgkmcnt(0)")
        a.I("s_barrier")
        a.I(f"s_sub_u32 {s(sBAR)}, {s(sBAR)}, 1")
        dl = [x or "s_nop 0" for x in dma_list()] if ld else []
        for pos in range(8):
            r = v(RING + 4 * pos, 4)
            a.I(f"{MF} {v(S[1], 16)}, {r}, {v(Q + 4 * pos, 4)}, {v(NEGM if pos == 0 else S[1], 16)}")
            a.I(f"ds_read_b128 {r}, {v(VKA)} offset:{pos * 1024}")
            a.I(f"v_exp_f32 {e(2 * pos)}, {v(S[0] + 2 * pos)}")
            a.I(f"v_exp_f32 {e(2 * pos + 1)}, {v(S[0] + 2 * pos + 1)}")
            a.many(dl[:3] or ["s_nop 0"])
            dl = dl[3:]
            a.I(f"v_add_f32 {v(VLS)}, {v(VLS)}, {e(2 * pos)}")
            a.I(f"v_add_f32 {v(VLS)}, {v(VLS)}, {e(2 * pos + 1)}")
            a.I(f"v_cvt_pk_bf16_f32 {v(P[0] + pos)}, {e(2 * pos)}, {e(2 * pos + 1)}")
        assert not dl
        a.I("s_nop 4")
        a.I(f"s_sub_u32 {s(sC)}, {s(sC)}, 1")
        a.I(f"s_branch {N}_{R}_back0")

        def iteration(par):
            gaps = [[] for _ in range(16)]
            pre = [[] for _ in range(16)]
            mf = []
            Sc, Sn, Pc, Pp = S[par], S[1 - par], P[par], P[1 - par]
            e = lambda j: v(EE + (j % 6))
            for pos in range(16):
                r = v(RING + 4 * (pos & 7), 4)
                if pos < 8:
                    mf.append(f"{MF} {v(Sn, 16)}, {r}, {v(Q + 4 * pos, 4)}, {v(NEGM if pos == 0 else Sn, 16)}")
                    ks, dt = divmod(pos, 4)
                    gaps[pos].append(f"ds_read_b128 {r}, {v(VVA)} offset:{8192 + par * 16384 + (2 * dt + ks) * 1024}")
                else:
                    ks, dt = divmod(pos - 8, 4)
                    mf.append(f"{MF} {v(O + 16 * dt, 16)}, {r}, {v(Pp + 4 * ks, 4)}, {v(O + 16 * dt, 16)}")
                    gaps[pos].append(f"ds_read_b128 {r}, {v(VKA)} offset:{par * 16384 + (pos - 8) * 1024}")
                if pos % 4 == 0:
                    pre[pos].append("s_waitcnt lgkmcnt(4)")
            early = int(os.environ.get("EARLY", "1"))
            if early:
                eg = [0, 0, 1, 2, 2, 3, 4, 5, 6, 7, 8, 9, 10, 11, 12, 13]
            else:
                eg = [0] + list(range(15))
            gaps[0].append(f"v_add_f32 {v(VL)}, {v(VL)}, {v(VLS)}")
            for j in range(16):
                gaps[eg[j]].append(f"v_exp_f32 {e(j)}, {v(Sc + j)}")
            pka = os.environ.get("PKADD")
            for j in range(1, 16):
                g = eg[j] + 1
                if pka:
                    if j == 3:
                        gaps[g].append(f"v_pk_add_f32 v[8:9], {v(EE, 2)}, {v(EE + 2, 2)}")
                    elif j % 2 == 1 and j > 3:
                        gaps[g].append(f"v_pk_add_f32 v[8:9], v[8:9], {v(EE + (j - 1) % 6, 2)}")
                    if j == 15:
                        gaps[g].append(f"v_add_f32 {v(VLS)}, v8, v9")
                elif j == 1:
                    gaps[g].append(f"v_add_f32 {v(VLS)}, {e(0)}, {e(1)}")
                else:
                    gaps[g].append(f"v_add_f32 {v(VLS)}, {v(VLS)}, {e(j)}")
                if j % 2 == 1:
                    gaps[g + (1 if (early and j == 15) else 0)].append(f"v_cvt_pk_bf16_f32 {v(Pc + j // 2)}, {e(j - 1)}, {e(j)}")
            if par == 0:
                gaps[2].append(f"v_add_u32 {v(VKA)}, 0x8000, {v(VKA)}")
                gaps[6].append(f"v_and_b32 {v(VKA)}, 0x1ffff, {v(VKA)}")
                bar = ["s_barrier", f"s_sub_u32 {s(sBAR)}, {s(sBAR)}, 1"]
                if ld:
                    bar = ["s_waitcnt vmcnt(14)"] + bar
                gaps[4] = bar + gaps[4]
                if ld:
                    d = [x for x in dma_list() if x]
                    m0a, l1, l2, m0b, l3, l4, m0c, svm, l5, l6, m0d, skm, l7, l8, sand, sko = d
                    gaps[5] = [m0a] + gaps[5] + [l1]
                    gaps[6] += [l2, m0b]
                    gaps[7] += [l3]
                    gaps[8] += [l4, m0c]
                    gaps[9] += [svm, l5]
                    gaps[10] += [l6, m0d]
                    gaps[11] += [l7]
                    gaps[12] += [l8, skm]
                    gaps[13] += [sand, sko]
            else:
                gaps[10].append(f"v_mov_b32 {v(VVA)}, {v(VKA)}")
            gaps[14].append(f"s_sub_u32 {s(sC)}, {s(sC)}, 1")
            gaps[14 if early else 15].append(f"v_cmp_nge_f32 vcc, {s(sTHR)}, {v(VLS)}")
            drop = os.environ.get("ADROP", "").split(",")
            for pos in range(16):
                if "bar" in drop:
                    gaps[pos] = [x for x in gaps[pos] if x != "s_barrier"]
                if "dma" in drop:
                    gaps[pos] = [x for x in gaps[pos] if not x.endswith(" lds")]
                if "rd" in drop:
                    gaps[pos] = [x for x in gaps[pos] if not x.startswith("ds_read")]
                if "valu" in drop:
                    gaps[pos] = [x for x in gaps[pos] if not (x.startswith("v_exp") or x.startswith("v_cvt") or x.startswith("v_add_f32"))]
                if "e64" in drop:
                    gaps[pos] = [x.replace("v_exp_f32 ", "v_exp_f32_e64 ").replace("v_add_f32 ", "v_add_f32_e64 ") for x in gaps[pos]]
                a.many(pre[pos])
                a.I(mf[pos])
                a.many(gaps[pos])
            if "br" not in drop:
                a.I(f"s_cbranch_vccnz {N}_{R}_slow{par}")
            a.label(f"{N}_{R}_back{par}")
            a.I(f"s_cbranch_scc1 {N}_{R}_spec{par}")

        if os.environ.get("PRIO") and not ld:
            pass
        if os.environ.get("AALIGN"):
            a.raw(".p2align 6")
            for _ in range(int(os.environ["AALIGN"]) - 1):
                a.I("s_nop 0")
        a.label(f"{N}_{R}_it0")
        iteration(0)
        a.label(f"{N}_{R}_it1")
        iteration(1)
        a.I(f"s_branch {N}_{R}_it0")

        def svc():
            lab = a.uid(f"{N}_{R}_svc")
            a.I(f"s_cmp_eq_u32 {s(sBAR)}, 0")
            a.I(f"s_cbranch_scc1 {lab}")
            if ld:
                a.I("s_waitcnt vmcnt(14)")
            if "bar" not in os.environ.get("ADROP", ""):
                a.I("s_barrier")
            a.I(f"s_sub_u32 {s(sBAR)}, {s(sBAR)}, 1")
            if ld:
                emit_dma()
            a.label(lab)

        for par in range(2):
            Sc, Sn, Pc = S[par], S[1 - par], P[par]
            a.label(f"{N}_{R}_slow{par}")
            a.I("s_cselect_b32 s22, 1, 0")
            a.I("s_nop 15")
            rowmax(Sc, T0)
            a.I(f"v_max_f32 {v(T0)}, 0, {v(T0)}")
            a.I(f"v_exp_f32_e64 {v(T1)}, -{v(T0)}")
            for j in range(16):
                a.I(f"v_sub_f32 {v(NEGM + j)}, {v(NEGM + j)}, {v(T0)}")
                a.I(f"v_sub_f32 {v(Sc + j)}, {v(Sc + j)}, {v(T0)}")
                a.I(f"v_sub_f32 {v(Sn + j)}, {v(Sn + j)}, {v(T0)}")
            for j in range(64):
                a.I(f"v_mul_f32 {v(O + j)}, {v(O + j)}, {v(T1)}")
            a.I(f"v_mul_f32 {v(VL)}, {v(VL)}, {v(T1)}")
            a.I(f"v_mov_b32 {v(VLS)}, 0")
            for i in range(8):
                a.I(f"v_exp_f32 {v(E)}, {v(Sc + 2 * i)}")
                a.I(f"v_exp_f32 {v(E + 1)}, {v(Sc + 2 * i + 1)}")
                a.I("s_nop 0")
                a.I(f"v_add_f32 {v(VLS)}, {v(VLS)}, {v(E)}")
                a.I(f"v_add_f32 {v(VLS)}, {v(VLS)}, {v(E + 1)}")
                a.I(f"v_cvt_pk_bf16_f32 {v(Pc + i)}, {v(E)}, {v(E + 1)}")
            a.I(f"s_cmp_eq_u32 {s(sPH)}, 2")
            a.I(f"s_cbranch_scc1 {N}_{R}_lback{par}")
            a.I("s_cmp_lg_u32 s22, 0")
            a.I(f"s_branch {N}_{R}_back{par}")
            a.label(f"{N}_{R}_spec{par}")
            a.I(f"s_cmp_eq_u32 {s(sPH)}, 1")
            a.I(f"s_cbranch_scc1 {N}_{R}_last{1 - par}")
            if par == 0:
                a.I(f"s_cmp_eq_u32 {s(sPH)}, 3")
                a.I(f"s_cbranch_scc1 {N}_{R}_exit0")
            a.I(f"s_mov_b32 {s(sPH)}, 1")
            a.I(f"s_mov_b32 {s(sC)}, 0")
            mask_negm()
            a.I(f"s_branch {N}_{R}_it{1 - par}")
            Pp = P[1 - par]
            a.label(f"{N}_{R}_last{par}")
            a.I(f"s_mov_b32 {s(sPH)}, 2")
            a.I("s_waitcnt lgkmcnt(0)")
            voff = lambda pos: (2 * (pos % 4) + pos // 4) * 1024
            for pos in range(8):
                a.I(f"ds_read_b128 {v(RING + 4 * pos, 4)}, {v(VVA)} offset:{8192 + par * 16384 + voff(pos)}")
            a.I(f"v_add_f32 {v(VL)}, {v(VL)}, {v(VLS)}")
            a.I(f"v_mov_b32 {v(VLS)}, 0")
            dl = []
            if par == 0:
                if ld:
                    a.I("s_waitcnt vmcnt(14)")
                a.I("s_barrier")
                a.I(f"s_sub_u32 {s(sBAR)}, {s(sBAR)}, 1")
                dl = [x or "s_nop 0" for x in dma_list()] if ld else []
            for pos in range(8):
                ks, dt = divmod(pos, 4)
                a.I(f"v_exp_f32 {e(2 * pos)}, {v(Sc + 2 * pos)}")
                a.I(f"v_exp_f32 {e(2 * pos + 1)}, {v(Sc + 2 * pos + 1)}")
                a.I("s_waitcnt lgkmcnt(7)")
                a.I(f"{MF} {v(O + 16 * dt, 16)}, {v(RING + 4 * pos, 4)}, {v(Pp + 4 * ks, 4)}, {v(O + 16 * dt, 16)}")
                if par == 0:
                    a.I(f"ds_read_b128 {v(RING + 4 * pos, 4)}, {v(VVA)} offset:{8192 + 16384 + voff(pos)}")
                else:
                    a.I(f"ds_read_b128 {v(RING + 4 * pos, 4)}, {v(VKA)} offset:{8192 + voff(pos)}")
                a.I(f"v_add_f32 {v(VLS)}, {v(VLS)}, {e(2 * pos)}")
                a.I(f"v_add_f32 {v(VLS)}, {v(VLS)}, {e(2 * pos + 1)}")
                a.I(f"v_cvt_pk_bf16_f32 {v(Pc + pos)}, {e(2 * pos)}, {e(2 * pos + 1)}")
                a.many(dl[:3])
                dl = dl[3:]
            assert not dl
            a.I(f"v_cmp_nge_f32 vcc, {s(sTHR)}, {v(VLS)}")
            a.I(f"s_cbranch_vccnz {N}_{R}_slow{par}")
            a.label(f"{N}_{R}_lback{par}")
            if par == 0:
                a.I(f"s_branch {N}_{R}_fin0")
                a.label(f"{N}_{R}_exit0")
                a.I("s_waitcnt lgkmcnt(0)")
                for pos in range(8):
                    a.I(f"ds_read_b128 {v(RING + 4 * pos, 4)}, {v(VVA)} offset:{8192 + 16384 + voff(pos)}")
                a.label(f"{N}_{R}_fin0")
            a.I(f"v_add_f32 {v(VL)}, {v(VL)}, {v(VLS)}")
            nrm = [f"v_mov_b32 {v(T2)}, {v(VL)}", None, f"v_permlane32_swap_b32 {v(VL)}, {v(T2)}",
                   f"v_add_f32 {v(VL)}, {v(VL)}, {v(T2)}", f"v_rcp_f32 {v(T0)}, {v(VL)}"]
            for pos in range(8):
                dt, ks = divmod(pos, 2)
                rp = 4 * ks + dt
                a.I(f"s_waitcnt lgkmcnt({max(0, 7 - max(rp, 4 + dt - (1 - ks) * 4))})" if False else
                    f"s_waitcnt lgkmcnt({7 - rp if ks else min(7 - rp, 7 - (4 + dt - 1) if dt else 7)})")
                a.I(f"{MF} {v(O + 16 * dt, 16)}, {v(RING + 4 * rp, 4)}, {v(Pc + 4 * ks, 4)}, {v(O + 16 * dt, 16)}")
                if pos < len(nrm) and nrm[pos]:
                    a.I(nrm[pos])
            if par == 0:
                a.I(f"s_branch {N}_{R}_epi")
        a.label(f"{N}_{R}_epi")
        st()
        svc()
        if ld and (withb2 or b2tail):
            a.I(f"s_and_b32 s53, {s(sW)}, 3")
            code_touch(a, "l3_kernel", 53, 48, EE + 2, nw_log=2)
            srd(a, 48, 4, 5, 64 * 128, add=WS_FLAG)
            a.I("s_lshl_b32 s52, s2, 7")
            a.I(f"v_lshlrev_b32 {v(EE)}, 2, v0")
            a.I(f"v_mov_b32 {v(EE + 1)}, 0")
            a.I("s_mov_b64 exec, 15")
            a.I(f"buffer_store_dword {v(EE + 1)}, {v(EE)}, s[48:51], s52 offen")
            a.I("s_mov_b64 exec, -1")
        for dt in range(4):
            for h in range(2):
                q = 2 * dt + h
                for i in range(4):
                    src = O + 16 * dt + 8 * h + 2 * i
                    a.I(f"v_mul_f32 {v(src)}, {v(src)}, {v(T0)}")
                    a.I(f"v_mul_f32 {v(src + 1)}, {v(src + 1)}, {v(T0)}")
                    a.I(f"v_cvt_pk_bf16_f32 {v(PK + 4 * q + i)}, {v(src)}, {v(src + 1)}")
                a.I(f"buffer_store_dwordx4 {v(PK + 4 * q, 4)}, {v(L16)}, s[36:39], s{46 + q // 4} offen offset:{(q % 4) * 1024}{SP}")
            if dt == 1:
                svc()
        if ld and b2tail:
            a.I(f"s_lshl_b32 s60, {s(sH)}, 2")
            a.I(f"s_add_u32 s60, s60, {s(sP)}")
            a.I("s_lshl_b32 s60, s60, 1")
            a.I(f"s_bfe_u32 s61, {s(sW)}, 0x10001")
            a.I("s_add_u32 s60, s60, s61")
            a.I(f"s_cmp_lt_u32 {s(sP)}, 4")
            a.I(f"s_cbranch_scc1 {N}_b2go")
            a.I("s_cmp_lg_u32 s60, 8")
            a.I(f"s_cbranch_scc1 {N}_{R}_tail")
            a.I("s_movk_i32 s60, 0x100")
            a.label(f"{N}_b2go")
            a.I("s_lshl_b32 s61, s61, 14")
            a.I(f"s_add_u32 s61, s61, {131072}")
            a.I(f"s_lshl_b32 s62, {s(sP)}, 2")
            a.I("s_sub_u32 s62, 28, s62")
            a.label(f"{N}_b2al")
            a.I(f"s_cmp_le_u32 {s(sBAR)}, s62")
            a.I(f"s_cbranch_scc1 {N}_b2st")
            a.I("s_waitcnt vmcnt(14)")
            a.I("s_barrier")
            a.I(f"s_sub_u32 {s(sBAR)}, {s(sBAR)}, 1")
            emit_dma()
            a.I(f"s_branch {N}_b2al")
            a.label(f"{N}_b2st")
            a.I(f"s_bitcmp1_b32 {s(sW)}, 0")
            a.I(f"s_cbranch_scc1 {N}_b2w1")
            for own in range(2):
                vmb = VM(a)
                nsv = [0]

                def svcb():
                    nsv[0] += 1
                    a.I("s_waitcnt vmcnt(14)")
                    vmb.q = vmb.q[-14:]
                    a.I("s_barrier")
                    a.I(f"s_sub_u32 {s(sBAR)}, {s(sBAR)}, 1")
                    for x in dma_list():
                        if x and x.startswith("buffer"):
                            vmb.issue(x, "dma")
                        else:
                            a.I(x or "s_nop 0")
                if own:
                    a.label(f"{N}_b2w1")
                b2_body(a, own, 60, 61, svcb, vmb, R0=16, S0=62, SR=48, slice_len=int(os.environ.get("SLICE", "90")))
                assert nsv[0] <= 12, nsv
                print("b2 svc slices", nsv[0])
                if not own:
                    a.I(f"s_branch {N}_{R}_tail")
        if ld:
            WT = int(os.environ.get("WOT", "0"))
            if withb2 and WT:
                srd(a, 48, 4, 5, 4 * MB, add=WS_WO)
                a.I("s_lshr_b32 s52, s2, 3")
                a.I("s_lshl_b32 s52, s52, 17")
                a.I("s_lshl_b32 s53, s11, 4")
                a.I("s_add_u32 s52, s52, s53")
                a.I("s_add_u32 s53, s52, 0x8000")
                a.I(f"v_lshlrev_b32 {v(EE)}, 7, v0")
            a.label(f"{N}_{R}_tail")
            if withb2 and WT:
                a.I(f"s_cmp_gt_u32 {s(sBAR)}, {WT}")
                a.I(f"s_cbranch_scc1 {N}_notouch")
                a.label(f"{N}_touch")
                a.I("s_cmp_ge_u32 s52, s53")
                a.I(f"s_cbranch_scc1 {N}_notouch")
                a.I(f"buffer_load_dword {v(EE + 1)}, {v(EE)}, s[48:51], s52 offen")
                a.I("s_add_u32 s52, s52, 0x2000")
                a.I(f"s_cmp_eq_u32 {s(sBAR)}, 0")
                a.I(f"s_cbranch_scc1 {N}_touch")
                a.label(f"{N}_notouch")
            a.I(f"s_cmp_eq_u32 {s(sBAR)}, 0")
            a.I(f"s_cbranch_scc1 {N}_{R}_done")
            a.I("s_waitcnt vmcnt(14)")
            a.I("s_barrier")
            a.I(f"s_sub_u32 {s(sBAR)}, {s(sBAR)}, 1")
            emit_dma()
            a.I(f"s_branch {N}_{R}_tail")
            a.label(f"{N}_{R}_done")
        n0 = st.n
        st.dump(sW, 4, tmpv=T0)
        st.n = n0 - 2
        a.I("s_endpgm")

    a.I(f"s_cmp_ge_u32 {s(sW)}, 4")
    a.I(f"s_cbranch_scc1 {N}_short")
    role(False)
    a.label(f"{N}_short")
    role(True)
    kend(a, N)
    return a, N, (256, 512, 163840 if (withb2 or b2tail) else 131072)


def oproj_body(a, N, st, bar_at=None):
    ACC, CR, AFR = 64, 128, 192
    DEPTH = 8
    L16, L16B, VD0, VD1, TB = 1, 2, 3, 4, 5
    a.I("s_and_b32 s10, s2, 7")
    a.I("s_lshr_b32 s11, s2, 3")
    a.I("s_and_b32 s12, s11, 3")
    a.I("s_lshl_b32 s10, s10, 2")
    a.I("s_add_u32 s17, s10, s12")
    a.I("s_lshr_b32 s18, s11, 2")
    if os.environ.get("OPX") == "same":
        a.I("s_mov_b32 s17, 0")
        a.I("s_mov_b32 s18, 0")
    if os.environ.get("OPX") == "map2":
        a.I("s_and_b32 s10, s2, 3")
        a.I("s_lshl_b32 s10, s10, 3")
        a.I("s_and_b32 s12, s11, 7")
        a.I("s_add_u32 s17, s10, s12")
        a.I("s_bfe_u32 s10, s2, 0x10002")
        a.I("s_lshl_b32 s10, s10, 2")
        a.I("s_lshr_b32 s12, s11, 3")
        a.I("s_add_u32 s18, s10, s12")
    a.I(f"v_lshlrev_b32 {v(L16)}, 4, v0")
    a.I(f"v_add_u32 {v(L16B)}, 0x40000, {v(L16)}")
    a.I("v_lshrrev_b32 v8, 3, v0")
    a.I("v_lshlrev_b32 v8, 10, v8")
    a.I("v_bfe_u32 v9, v0, 4, 1")
    a.I("v_lshlrev_b32 v10, 2, v9")
    a.I("v_and_b32 v11, 7, v0")
    a.I("v_xor_b32 v10, v10, v11")
    a.I(f"v_lshl_add_u32 {v(VD0)}, v10, 4, v8")
    a.I("s_lshl_b32 s10, s18, 7")
    a.I(f"v_add_u32 {v(VD0)}, s10, {v(VD0)}")
    a.I(f"v_add_u32 {v(VD1)}, {8192 - 1024}, {v(VD0)}")
    a.I("v_lshrrev_b32 v8, 5, v0")
    a.I("v_bfe_u32 v10, v0, 2, 2")
    a.I("v_lshl_add_u32 v8, v8, 2, v10")
    a.I(f"v_lshlrev_b32 {v(TB)}, 7, v8")
    a.I(f"v_lshl_add_u32 {v(TB)}, v9, 5, {v(TB)}")
    a.I("v_and_b32 v10, 3, v0")
    a.I(f"v_lshl_add_u32 {v(TB)}, v10, 3, {v(TB)}")
    a.I("v_bfe_u32 v10, v0, 3, 1")
    a.I(f"v_lshl_add_u32 {v(TB)}, v10, 6, {v(TB)}")
    a.I("s_lshl_b32 s19, s16, 14")
    a.I(f"v_add_u32 {v(TB)}, s19, {v(TB)}")
    a.I(f"v_xor_b32 {v(TB + 1)}, 64, {v(TB)}")
    a.I("s_lshl_b32 s40, s17, 19")
    a.I("s_lshl_b32 s10, s16, 16")
    a.I("s_add_u32 s40, s40, s10")
    a.I("s_lshl_b32 s41, s16, 20")
    ROT = int(os.environ.get("ROT", "0"))
    if ROT:
        a.I("s_and_b32 s45, s2, 7")
        a.I(f"s_mul_i32 s45, s45, {ROT}")
    a.I("s_waitcnt lgkmcnt(0)")
    srd(a, 20, 4, 5, 16 * MB, add=WS_CTX)
    srd(a, 24, 6, 7, 4 * MB)
    srd(a, 28, 8, 9, 4 * MB)
    vm, lg = VM(a), LG(a)
    st()

    def loads(g):
        sl = g % DEPTH
        a.I(f"s_add_u32 m0, s19, {sl * 2048}")
        if ROT:
            if g % 4 == 0:
                a.I(f"s_add_u32 s44, s45, {g}")
                a.I("s_and_b32 s44, s44, 63")
                a.I("s_lshl_b32 s46, s44, 14")
                a.I("s_add_u32 s46, s46, s41")
                a.I("s_lshl_b32 s44, s44, 10")
            a.I(f"s_add_u32 s42, s46, {hex((g % 4) * 16384)}")
        else:
            a.I(f"s_add_u32 s42, s41, {hex(g * 16384)}")
        vm.issue(f"buffer_load_dwordx4 {v(VD0)}, s[24:27], s42 offen lds", g)
        vm.issue(f"buffer_load_dwordx4 {v(VD1)}, s[24:27], s42 offen offset:1024 lds", g)
        if g % 4 == 0:
            a.I(f"s_add_u32 s43, s40, {'s44' if ROT else hex(g * 1024)}")
        vm.issue(f"buffer_load_dwordx4 {v(CR + 8 * sl, 4)}, {v(L16)}, s[20:23], s43 offen offset:{(g % 4) * 1024}", g)
        vm.issue(f"buffer_load_dwordx4 {v(CR + 8 * sl + 4, 4)}, {v(L16B)}, s[20:23], s43 offen offset:{(g % 4) * 1024}", g)

    def trs(g):
        sl = g % DEPTH
        vm.wait(g)
        for cb in range(2):
            d = AFR + 8 * (g & 1) + 4 * cb
            lg.issue(f"ds_read_b64_tr_b16 {v(d, 2)}, {v(TB + cb)} offset:{sl * 2048}", g)
            lg.issue(f"ds_read_b64_tr_b16 {v(d + 2, 2)}, {v(TB + cb)} offset:{sl * 2048 + 1024}", g)

    for g in range(DEPTH):
        loads(g)
    st()
    trs(0)
    st()
    for g in range(64):
        if g + 1 < 64:
            trs(g + 1)
        lg.wait(g)
        sl = g % DEPTH
        for qt in range(2):
            for cb in range(2):
                acc = v(ACC + 16 * (2 * qt + cb), 16)
                a.I(f"{MF} {acc}, {v(AFR + 8 * (g & 1) + 4 * cb, 4)}, {v(CR + 8 * sl + 4 * qt, 4)}, {'0' if g == 0 else acc}")
        if g + DEPTH < 64:
            loads(g + DEPTH)
        if g == bar_at:
            a.I("s_barrier")
    st()
    a.I(f"v_add_u32 v8, s19, {v(L16)}")
    a.I("s_nop 11")
    for tl in range(4):
        for jq in range(4):
            a.I(f"ds_write_b128 v8, {v(ACC + 16 * tl + 4 * jq, 4)} offset:{(tl * 4 + jq) * 1024}")
    a.I("v_lshrrev_b32 v9, 5, v0")
    a.I("v_and_b32 v10, 31, v0")
    a.I("v_lshlrev_b32 v10, 4, v10")
    a.I("v_lshl_add_u32 v9, v9, 13, v10")
    a.I("s_lshl_b32 s10, s16, 11")
    a.I("v_add_u32 v9, s10, v9")
    a.I("s_lshl_b32 s11, s17, 17")
    a.I("s_lshl_b32 s12, s18, 7")
    a.I("s_add_u32 s11, s11, s12")
    a.I("s_lshl_b32 s12, s16, 5")
    a.I("s_add_u32 s11, s11, s12")
    a.I("v_lshlrev_b32 v10, 11, v0")
    a.I("s_waitcnt lgkmcnt(0)")
    return ACC


def oproj_body2(a, N, st, bar_at=None):
    DEPTH = int(os.environ.get("ODEPTH", "8"))
    ACC, CR = 192 - 16 * DEPTH, 256 - 16 * DEPTH
    L16, L16B = 1, 2
    a.I("s_and_b32 s10, s2, 7")
    a.I("s_lshr_b32 s11, s2, 3")
    a.I("s_and_b32 s12, s11, 3")
    a.I("s_lshl_b32 s10, s10, 2")
    a.I("s_add_u32 s17, s10, s12")
    a.I("s_lshr_b32 s18, s11, 2")
    if os.environ.get("OPX") == "same":
        a.I("s_mov_b32 s17, 0")
        a.I("s_mov_b32 s18, 0")
    if os.environ.get("OPX") == "sameq":
        a.I("s_and_b32 s17, s17, 3")
    if os.environ.get("OPX") == "map2":
        a.I("s_and_b32 s10, s2, 3")
        a.I("s_lshl_b32 s10, s10, 3")
        a.I("s_and_b32 s12, s11, 7")
        a.I("s_add_u32 s17, s10, s12")
        a.I("s_bfe_u32 s10, s2, 0x10002")
        a.I("s_lshl_b32 s10, s10, 2")
        a.I("s_lshr_b32 s12, s11, 3")
        a.I("s_add_u32 s18, s10, s12")
    a.I(f"v_lshlrev_b32 {v(L16)}, 4, v0")
    a.I(f"v_add_u32 {v(L16B)}, 0x40000, {v(L16)}")
    a.I("s_lshl_b32 s19, s16, 14")
    a.I("s_lshl_b32 s40, s17, 19")
    a.I("s_lshl_b32 s10, s16, 16")
    a.I("s_add_u32 s40, s40, s10")
    a.I("s_lshl_b32 s41, s18, 19")
    a.I("s_lshl_b32 s10, s16, 17")
    a.I("s_add_u32 s41, s41, s10")
    a.I("s_waitcnt lgkmcnt(0)")
    srd(a, 20, 4, 5, 16 * MB, add=WS_CTX)
    srd(a, 24, 4, 5, 4 * MB, add=WS_WO)
    srd(a, 28, 8, 9, 4 * MB)
    vm = VM(a)
    st()

    def loads(g):
        sl = g % DEPTH
        L = []
        if g % 2 == 0:
            L.append(lambda: a.I(f"s_add_u32 s42, s41, {hex(g * 2048)}"))
        if g % 4 == 0:
            L.append(lambda: a.I(f"s_add_u32 s43, s40, {hex(g * 1024)}"))
        for cb in range(2):
            L.append(lambda cb=cb: vm.issue(f"buffer_load_dwordx4 {v(CR + 16 * sl + 4 * cb, 4)}, {v(L16)}, s[24:27], s42 offen "
                                            f"offset:{(g % 2) * 2048 + cb * 1024}", g))
        for qt in range(2):
            L.append(lambda qt=qt: vm.issue(f"buffer_load_dwordx4 {v(CR + 16 * sl + 8 + 4 * qt, 4)}, {v(L16 + qt)}, s[20:23], s43 offen "
                                            f"offset:{(g % 4) * 1024}", g))
        return L

    for g in range(DEPTH):
        for f in loads(g):
            f()
    st()
    st()
    for g in range(64):
        vm.wait(g)
        sl = g % DEPTH
        for qt in range(2):
            for cb in range(2):
                acc = v(ACC + 16 * (2 * qt + cb), 16)
                a.I(f"{MF} {acc}, {v(CR + 16 * sl + 4 * cb, 4)}, {v(CR + 16 * sl + 8 + 4 * qt, 4)}, {'0' if g == 0 else acc}")
        if g + DEPTH < 64:
            for f in loads(g + DEPTH):
                f()
        if g == bar_at:
            a.I("s_barrier")
    st()
    a.I(f"v_add_u32 v8, s19, {v(L16)}")
    a.I("v_lshrrev_b32 v9, 5, v0")
    a.I("v_and_b32 v10, 31, v0")
    a.I("v_lshlrev_b32 v10, 4, v10")
    a.I("v_lshl_add_u32 v9, v9, 13, v10")
    a.I("s_lshl_b32 s10, s16, 11")
    a.I("v_add_u32 v9, s10, v9")
    a.I("s_lshl_b32 s11, s17, 17")
    a.I("s_lshl_b32 s12, s18, 7")
    a.I("s_add_u32 s11, s11, s12")
    a.I("s_lshl_b32 s12, s16, 5")
    a.I("s_add_u32 s11, s11, s12")
    a.I("v_lshlrev_b32 v10, 11, v0")
    for tl in range(4):
        for jq in range(4):
            a.I(f"ds_write_b128 v8, {v(ACC + 16 * tl + 4 * jq, 4)} offset:{(tl * 4 + jq) * 1024}")
    a.I("s_waitcnt lgkmcnt(0)")
    return ACC


def oproj_body3(a, N, st, bar_at=None):
    DEPTH = 8
    ACC, FR = 64, 128
    L16, L16B, LR = 1, 2, 3
    a.I("s_and_b32 s10, s2, 7")
    a.I("s_lshr_b32 s11, s2, 3")
    a.I("s_and_b32 s12, s11, 3")
    a.I("s_lshl_b32 s10, s10, 2")
    a.I("s_add_u32 s17, s10, s12")
    a.I("s_lshr_b32 s18, s11, 2")
    a.I(f"v_lshlrev_b32 {v(L16)}, 4, v0")
    a.I(f"v_add_u32 {v(L16B)}, {0x40000 - 1024}, {v(L16)}")
    a.I("s_lshl_b32 s19, s16, 15")
    a.I(f"v_add_u32 {v(LR)}, s19, {v(L16)}")
    a.I("s_lshl_b32 s42, s18, 19")
    a.I("s_lshl_b32 s10, s16, 17")
    a.I("s_add_u32 s42, s42, s10")
    a.I("s_lshl_b32 s43, s17, 19")
    a.I("s_lshl_b32 s10, s16, 16")
    a.I("s_add_u32 s43, s43, s10")
    RB = int(os.environ.get("RB", "0"))
    if RB:
        a.I("s_lshl1_add_u32 s45, s12, s18")
        a.I("s_and_b32 s45, s45, 7")
        a.I(f"s_mul_i32 s45, s45, {RB // 8 * 1024}")
        a.I("s_mov_b32 s40, s43")
        a.I("s_mov_b32 s41, s42")
        a.I("s_add_u32 s43, s40, s45")
        a.I("s_lshl1_add_u32 s42, s45, s41")
    a.I("s_waitcnt lgkmcnt(0)")
    srd(a, 20, 4, 5, 16 * MB + 2048, add=WS_CTX - 2048)
    srd(a, 24, 4, 5, 4 * MB, add=WS_WO)
    srd(a, 28, 8, 9, 4 * MB)
    vm, lg = VM(a), LG(a)
    st()

    def loads(g):
        sl = g % DEPTH
        return [lambda: a.I(f"s_add_u32 m0, s19, {sl * 4096}"),
                lambda: a.I("s_nop 0") if g < DEPTH else None,
                lambda: vm.issue(f"buffer_load_dwordx4 {v(L16)}, s[24:27], s42 offen lds", g),
                lambda: vm.issue(f"buffer_load_dwordx4 {v(L16)}, s[24:27], s42 offen offset:1024 lds", g),
                lambda: vm.issue(f"buffer_load_dwordx4 {v(L16)}, s[20:23], s43 offen offset:2048 lds", g),
                lambda: vm.issue(f"buffer_load_dwordx4 {v(L16B)}, s[20:23], s43 offen offset:3072 lds", g),
                lambda: nxt(g), lambda: None]

    def nxt(g):
        if not RB:
            a.I("s_add_u32 s42, s42, 2048")
            a.I("s_add_u32 s43, s43, 1024")
            return
        a.I("s_add_u32 s45, s45, 1024")
        a.I(f"s_and_b32 s45, s45, {RB * 1024 - 1}")
        if (g + 1) % RB == 0:
            a.I(f"s_add_u32 s40, s40, {RB * 1024}")
            a.I(f"s_add_u32 s41, s41, {RB * 2048}")
        a.I("s_add_u32 s43, s40, s45")
        a.I("s_lshl1_add_u32 s42, s45, s41")

    def reads(g):
        vm.wait(g)
        for q in range(4):
            lg.issue(f"ds_read_b128 {v(FR + 16 * (g & 1) + 4 * q, 4)}, {v(LR)} offset:{(g % DEPTH) * 4096 + q * 1024}", g)

    for g in range(DEPTH):
        for f in loads(g):
            f()
    st()
    reads(0)
    st()
    for g in range(64):
        if g + 1 < 64:
            reads(g + 1)
        lg.wait(g)
        L = loads(g + DEPTH) if g + DEPTH < 64 else []
        fr = FR + 16 * (g & 1)
        for qt in range(2):
            for cb in range(2):
                acc = v(ACC + 16 * (2 * qt + cb), 16)
                if L:
                    L.pop(0)()
                a.I(f"{MF} {acc}, {v(fr + 4 * cb, 4)}, {v(fr + 8 + 4 * qt, 4)}, {'0' if g == 0 else acc}")
                if L:
                    L.pop(0)()
        if g == bar_at:
            a.I("s_barrier")
    st()
    a.I("v_lshrrev_b32 v9, 5, v0")
    a.I("v_and_b32 v10, 31, v0")
    a.I("v_lshlrev_b32 v10, 4, v10")
    a.I("v_lshl_add_u32 v9, v9, 13, v10")
    a.I("s_lshl_b32 s10, s16, 11")
    a.I("v_add_u32 v9, s10, v9")
    a.I("s_lshl_b32 s11, s17, 17")
    a.I("s_lshl_b32 s12, s18, 7")
    a.I("s_add_u32 s11, s11, s12")
    a.I("s_lshl_b32 s12, s16, 5")
    a.I("s_add_u32 s11, s11, s12")
    a.I("v_lshlrev_b32 v10, 11, v0")
    for tl in range(4):
        for jq in range(4):
            a.I(f"ds_write_b128 {v(LR)}, {v(ACC + 16 * tl + 4 * jq, 4)} offset:{(tl * 4 + jq) * 1024}")
    a.I("s_waitcnt lgkmcnt(0)")
    return ACC


def oproj_body4(a, N, st, bar_at=None):
    DEPTH = 4
    ACC, FR = 32, 96
    L16, L16B, LR = 1, 2, 3
    a.I("s_and_b32 s10, s2, 7")
    a.I("s_lshr_b32 s11, s2, 3")
    a.I("s_and_b32 s12, s11, 3")
    a.I("s_lshl_b32 s10, s10, 2")
    a.I("s_add_u32 s17, s10, s12")
    a.I("s_lshr_b32 s18, s11, 2")
    a.I(f"v_lshlrev_b32 {v(L16)}, 4, v0")
    a.I(f"v_add_u32 {v(L16B)}, {0x40000 - 1024}, {v(L16)}")
    a.I("s_lshl_b32 s19, s16, 14")
    a.I(f"v_add_u32 {v(LR)}, s19, {v(L16)}")
    a.I("s_lshl_b32 s42, s18, 19")
    a.I("s_lshl_b32 s10, s16, 16")
    a.I("s_add_u32 s42, s42, s10")
    a.I("s_lshl_b32 s43, s17, 19")
    a.I("s_lshl_b32 s10, s16, 15")
    a.I("s_add_u32 s43, s43, s10")
    a.I("s_waitcnt lgkmcnt(0)")
    srd(a, 20, 4, 5, 16 * MB + 2048, add=WS_CTX - 2048)
    srd(a, 24, 4, 5, 4 * MB, add=WS_WO)
    vm, lg = VM(a), LG(a)
    st()

    def loads(g):
        sl = g % DEPTH
        return [lambda: a.I(f"s_add_u32 m0, s19, {sl * 4096}"),
                lambda: a.I("s_nop 0") if g < DEPTH else None,
                lambda: vm.issue(f"buffer_load_dwordx4 {v(L16)}, s[24:27], s42 offen lds", g),
                lambda: vm.issue(f"buffer_load_dwordx4 {v(L16)}, s[24:27], s42 offen offset:1024 lds", g),
                lambda: vm.issue(f"buffer_load_dwordx4 {v(L16)}, s[20:23], s43 offen offset:2048 lds", g),
                lambda: vm.issue(f"buffer_load_dwordx4 {v(L16B)}, s[20:23], s43 offen offset:3072 lds", g),
                lambda: a.I("s_add_u32 s42, s42, 2048"),
                lambda: a.I("s_add_u32 s43, s43, 1024")]

    def reads(g):
        vm.wait(g)
        for q in range(4):
            lg.issue(f"ds_read_b128 {v(FR + 16 * (g & 1) + 4 * q, 4)}, {v(LR)} offset:{(g % DEPTH) * 4096 + q * 1024}", g)

    for g in range(DEPTH):
        for f in loads(g):
            f()
    srd(a, 28, 8, 9, 4 * MB)
    a.I("v_lshrrev_b32 v9, 5, v0")
    a.I("v_and_b32 v10, 31, v0")
    a.I("v_lshlrev_b32 v10, 4, v10")
    a.I("v_lshl_add_u32 v9, v9, 13, v10")
    a.I("s_lshl_b32 s10, s16, 10")
    a.I("v_add_u32 v9, s10, v9")
    a.I("v_add_u32 v11, 0x10000, v9")
    a.I("s_lshl_b32 s11, s17, 17")
    a.I("s_lshl_b32 s12, s18, 7")
    a.I("s_add_u32 s11, s11, s12")
    a.I("s_lshl_b32 s12, s16, 4")
    a.I("s_add_u32 s11, s11, s12")
    a.I("v_lshlrev_b32 v10, 11, v0")
    st()
    reads(0)
    st()
    NG = 32
    for g in range(NG):
        if g + 1 < NG:
            reads(g + 1)
        lg.wait(g)
        L = loads(g + DEPTH) if g + DEPTH < NG else []
        fr = FR + 16 * (g & 1)
        for qt in range(2):
            for cb in range(2):
                acc = v(ACC + 16 * (2 * qt + cb), 16)
                if L:
                    L.pop(0)()
                a.I(f"{MF} {acc}, {v(fr + 4 * cb, 4)}, {v(fr + 8 + 4 * qt, 4)}, {'0' if g == 0 else acc}")
                if L:
                    L.pop(0)()
        if g == bar_at:
            a.I("s_barrier")
    st()
    a.I("s_nop 8")
    for tl in range(4):
        for jq in range(4):
            a.I(f"ds_write_b128 {v(LR)}, {v(ACC + 16 * tl + 4 * jq, 4)} offset:{(tl * 4 + jq) * 1024}")
    a.I("s_waitcnt lgkmcnt(0)")
    a.I("s_barrier")
    for pw in range(8):
        for hl in range(2):
            a.I(f"ds_read_b128 {v(ACC + 8 * pw + 4 * hl, 4)}, {v(9 if pw < 4 else 11)} offset:{(pw % 4) * 16384 + hl * 512}")
        if pw == 6:
            a.I("s_waitcnt lgkmcnt(6)")
    for j in range(8):
        a.I(f"v_add_f32 {v(ACC + j)}, {v(ACC + j)}, {v(ACC + 8 + j)}")
        a.I(f"v_add_f32 {v(ACC + 16 + j)}, {v(ACC + 16 + j)}, {v(ACC + 24 + j)}")
    a.I("s_waitcnt lgkmcnt(0)")
    for j in range(8):
        a.I(f"v_add_f32 {v(ACC + 32 + j)}, {v(ACC + 32 + j)}, {v(ACC + 40 + j)}")
        a.I(f"v_add_f32 {v(ACC + 48 + j)}, {v(ACC + 48 + j)}, {v(ACC + 56 + j)}")
    for j in range(8):
        a.I(f"v_add_f32 {v(ACC + j)}, {v(ACC + j)}, {v(ACC + 16 + j)}")
        a.I(f"v_add_f32 {v(ACC + 32 + j)}, {v(ACC + 32 + j)}, {v(ACC + 48 + j)}")
    for j in range(8):
        a.I(f"v_add_f32 {v(ACC + j)}, {v(ACC + j)}, {v(ACC + 32 + j)}")
    for i in range(4):
        a.I(f"v_cvt_pk_bf16_f32 {v(12 + i)}, {v(ACC + 2 * i)}, {v(ACC + 2 * i + 1)}")
    a.I("buffer_store_dwordx4 v[12:15], v10, s[28:31], s11 offen")


def oproj_finish(a, ACC, PW=16384):
    for pw in range(4):
        for i in range(4):
            jq, hl = divmod(i, 2)
            if pw == 2 and i == 0 and PW > 16384:
                a.I("v_add_u32 v9, 0x10000, v9")
            a.I(f"ds_read_b128 {v(ACC + 16 * pw + 4 * i, 4)}, v9 offset:{(pw * PW) % 65536 + jq * 1024 + hl * 512}")
        if pw == 1:
            a.I("s_waitcnt lgkmcnt(0)")
            for j in range(16):
                a.I(f"v_add_f32 {v(ACC + j)}, {v(ACC + j)}, {v(ACC + 16 + j)}")
    a.I("s_waitcnt lgkmcnt(0)")
    for j in range(16):
        a.I(f"v_add_f32 {v(ACC + 32 + j)}, {v(ACC + 32 + j)}, {v(ACC + 48 + j)}")
    for j in range(16):
        a.I(f"v_add_f32 {v(ACC + j)}, {v(ACC + j)}, {v(ACC + 32 + j)}")
    for i in range(8):
        a.I(f"v_cvt_pk_bf16_f32 {v(12 + i)}, {v(ACC + 2 * i)}, {v(ACC + 2 * i + 1)}")
    a.I("buffer_store_dwordx4 v[12:15], v10, s[28:31], s11 offen")
    a.I("buffer_store_dwordx4 v[16:19], v10, s[28:31], s11 offen offset:16")


def gen_oproj():
    a = Asm()
    N = "oproj_kernel"
    kstart(a, N, 256)
    a.I("s_load_dwordx2 s[4:5], s[0:1], 88")
    a.I("s_load_dwordx2 s[6:7], s[0:1], 40")
    a.I("s_load_dwordx2 s[8:9], s[0:1], 72")
    a.I("v_lshrrev_b32 v1, 6, v0")
    a.I("v_and_b32 v0, 63, v0")
    a.I("s_nop 0")
    a.I("v_readfirstlane_b32 s16, v1")
    a.I("s_nop 0")
    st = Stamper(a, "oproj")
    ACC = oproj_body(a, N, st)
    a.I("s_barrier")
    oproj_finish(a, ACC)
    st.dump(16, 4, tmpv=8)
    kend(a, N)
    return a, N, (256, 256, 65536)


def PERMC(j):
    return 8 * (j >> 2) + (j & 3)


def gen_mat(a, dst, nf, base, consts, tmp):
    n = len(consts)
    for i in range(0, n, 4):
        for q in range(4):
            a.I(f"v_fmamk_f32 {v(tmp + q)}, {v(nf)}, {f32(float(consts[i + q]))}, {v(base)}")
        for q in range(4):
            a.I(f"v_cos_f32 {v(tmp + q)}, {v(tmp + q)}")
        a.I("s_nop 0")
        for q in range(2):
            a.I(f"v_cvt_pk_bf16_f32 {v(dst + i // 2 + q)}, {v(tmp + 2 * q)}, {v(tmp + 2 * q + 1)}")


def twiddle(a, Dr, Di, regs, nf, base, consts, sign, tmp):
    for x, c in enumerate(consts):
        A, C, S_, U = tmp, tmp + 1, tmp + 2, tmp + 3
        a.I(f"v_fmamk_f32 {v(A)}, {v(nf)}, {f32(float(c))}, {v(base)}")
        a.I(f"v_cos_f32 {v(C)}, {v(A)}")
        a.I(f"v_sin_f32 {v(S_)}, {v(A)}")
        a.I("s_nop 0")
        for j in regs[x]:
            ng = "-" if sign > 0 else ""
            ps = "" if sign > 0 else "-"
            a.I(f"v_mul_f32 {v(U)}, {v(Dr + j)}, {v(S_)}")
            a.I(f"v_mul_f32 {v(Dr + j)}, {v(Dr + j)}, {v(C)}")
            a.I(f"v_fma_f32 {v(Dr + j)}, {ng}{v(Di + j)}, {v(S_)}, {v(Dr + j)}")
            a.I(f"v_fma_f32 {v(Di + j)}, {v(Di + j)}, {v(C)}, {ps}{v(U)}")


def trig(a, j, C, S_, nf, base, c, tmp, scale=None):
    L = [f"v_fmamk_f32 {v(tmp)}, {v(nf)}, {f32(float(c))}, {v(base)}",
         f"v_cos_f32 {v(C)}, {v(tmp)}", f"v_sin_f32 {v(S_)}, {v(tmp)}"]
    return L


def cmul(a, Dr, Di, C, S_, sign, U):
    ng = "-" if sign > 0 else ""
    ps = "" if sign > 0 else "-"
    a.I(f"v_mul_f32 {v(U)}, {v(Dr)}, {v(S_)}")
    a.I(f"v_mul_f32 {v(Dr)}, {v(Dr)}, {v(C)}")
    a.I(f"v_fma_f32 {v(Dr)}, {ng}{v(Di)}, {v(S_)}, {v(Dr)}")
    a.I(f"v_fma_f32 {v(Di)}, {v(Di)}, {v(C)}, {ps}{v(U)}")


def pack(a, dst, src, n):
    for i in range(n):
        a.I(f"v_cvt_pk_bf16_f32 {v(dst + i)}, {v(src + 2 * i)}, {v(src + 2 * i + 1)}")


def b_decode(a):
    a.I("s_and_b32 s20, s2, 7")
    a.I("s_lshl_b32 s20, s20, 3")
    a.I("s_bfe_u32 s22, s2, 0x30003")
    a.I("s_or_b32 s20, s20, s22")
    a.I("s_lshr_b32 s21, s2, 6")


def gen_b1():
    a = Asm()
    N = "b1_kernel"
    kstart(a, N, 256)
    a.I("s_load_dwordx2 s[4:5], s[0:1], 88")
    a.I("s_load_dwordx4 s[8:11], s[0:1], 48")
    a.I("s_load_dwordx2 s[12:13], s[0:1], 64")
    a.I("v_lshrrev_b32 v1, 6, v0")
    a.I("v_and_b32 v2, 255, v0")
    a.I("v_and_b32 v0, 63, v0")
    a.I("v_readfirstlane_b32 s16, v1")
    b_decode(a)
    a.I("s_lshr_b32 s23, s21, 1")
    a.I("s_lshl_b32 s23, s23, 11")
    a.I("s_lshr_b32 s24, s20, 5")
    a.I("s_lshl_b32 s24, s24, 10")
    a.I("s_add_u32 s23, s23, s24")
    a.I("s_and_b32 s24, s20, 31")
    a.I("s_lshl_b32 s24, s24, 4")
    a.I("s_add_u32 s23, s23, s24")
    a.I("s_and_b32 s24, s21, 1")
    a.I("s_lshl_b32 s24, s24, 9")
    a.I("s_add_u32 s23, s23, s24")
    a.I("s_add_u32 s24, s23, 4096")
    a.I("v_lshlrev_b32 v3, 13, v2")
    a.I("s_cmp_ge_u32 s16, 4")
    a.I("s_waitcnt lgkmcnt(0)")
    a.I(f"s_cbranch_scc1 {N}_filt")
    srd(a, 28, 8, 9, 2 * MB)
    srd(a, 32, 4, 5, 257 * 8192, add=WS_Y)
    a.I("s_lshr_b32 s25, s21, 1")
    a.I("s_lshl_b32 s25, s25, 4")
    a.I("s_and_b32 s26, s21, 1")
    a.I("s_lshl_b32 s26, s26, 2")
    a.I("s_add_u32 s25, s25, s26")
    a.I("s_lshr_b32 s26, s16, 1")
    a.I("s_lshl_b32 s26, s26, 3")
    a.I("s_add_u32 s25, s25, s26")
    a.I("s_and_b32 s26, s16, 1")
    a.I("s_lshl_b32 s26, s26, 1")
    a.I("s_add_u32 s25, s25, s26")
    a.I("s_lshl_b32 s25, s25, 6")
    a.I("s_add_u32 s25, s25, s20")
    a.I("s_lshl_b32 s25, s25, 10")
    a.I(f"s_add_u32 s26, s25, {65536 - 1024}")
    a.I("s_lshl_b32 s27, s16, 11")
    a.I("s_mov_b32 m0, s27")
    a.I("v_lshlrev_b32 v4, 4, v0")
    a.I("buffer_load_dwordx4 v4, s[28:31], s25 offen lds")
    a.I("buffer_load_dwordx4 v4, s[28:31], s26 offen offset:1024 lds")
    HL, NF, BS, TM = 5, 6, 7, 8
    C32, NS32, AR, AI, XF, D1R, D1I, TR, TI, D2 = 16, 24, 32, 36, 40, 48, 64, 80, 88, 96
    a.I(f"v_lshrrev_b32 {v(HL)}, 5, v0")
    a.I(f"v_cvt_f32_u32 {v(HL)}, {v(HL)}")
    a.I("v_and_b32 v12, 31, v0")
    a.I("v_cvt_f32_u32 v12, v12")
    a.I(f"v_mul_f32 {v(NF)}, {f32(1 / 32)}, v12")
    a.I(f"v_mul_f32 {v(BS)}, {v(NF)}, {v(HL)}")
    a.I(f"v_mul_f32 {v(BS)}, {f32(8.0)}, {v(BS)}")
    nat = [16 * t + j for t in range(2) for j in range(8)]
    gen_mat(a, C32, NF, BS, nat, TM)
    a.I(f"v_add_f32 {v(BS)}, {f32(0.25)}, {v(BS)}")
    gen_mat(a, NS32, NF, BS, nat, TM)
    a.I("v_and_b32 v13, 15, v0")
    a.I("v_cvt_f32_u32 v13, v13")
    a.I(f"v_mul_f32 {v(NF)}, {f32(1 / 16)}, v13")
    a.I("v_bfe_u32 v13, v0, 4, 1")
    a.I("v_cvt_f32_u32 v13, v13")
    a.I(f"v_mul_f32 {v(BS)}, {v(NF)}, {v(HL)}")
    a.I(f"v_mul_f32 {v(BS)}, 4.0, {v(BS)}")
    a.I(f"v_fmamk_f32 {v(BS)}, v13, {f32(0.25)}, {v(BS)}")
    pc = [PERMC(j) for j in range(8)]
    gen_mat(a, AR, NF, BS, pc, TM)
    a.I(f"v_add_f32 {v(BS)}, {f32(-0.25)}, {v(BS)}")
    gen_mat(a, AI, NF, BS, pc, TM)
    a.I("v_bfe_u32 v13, v0, 4, 1")
    a.I("v_lshlrev_b32 v13, 10, v13")
    a.I("v_lshrrev_b32 v14, 5, v0")
    a.I("v_lshl_add_u32 v13, v14, 8, v13")
    a.I("v_and_b32 v15, 15, v0")
    a.I("v_lshl_add_u32 v13, v15, 3, v13")
    a.I("v_add_u32 v13, s27, v13")
    a.I("s_waitcnt vmcnt(0)")
    for t in range(2):
        for h in range(2):
            a.I(f"ds_read_b64_tr_b16 {v(XF + 4 * t + 2 * h, 2)}, v13 offset:{t * 512 + h * 128}")
    a.I(f"v_mul_f32 {v(NF)}, {f32(1 / 512)}, v12")
    a.I(f"v_mul_f32 {v(BS)}, {v(NF)}, {v(HL)}")
    a.I(f"v_mul_f32 {v(BS)}, 4.0, {v(BS)}")
    a.I("s_waitcnt lgkmcnt(0)")
    for t in range(2):
        a.I(f"{MF} {v(D1R, 16)}, {v(XF + 4 * t, 4)}, {v(C32 + 4 * t, 4)}, {'0' if t == 0 else v(D1R, 16)}")
    for t in range(2):
        a.I(f"{MF} {v(D1I, 16)}, {v(XF + 4 * t, 4)}, {v(NS32 + 4 * t, 4)}, {'0' if t == 0 else v(D1I, 16)}")
    a.I("v_and_b32 v15, 31, v0")
    a.I("v_lshlrev_b32 v15, 4, v15")
    a.I("v_lshl_add_u32 v15, v14, 11, v15")
    a.I("s_lshl_b32 s25, s16, 2")
    a.I("s_add_u32 s25, s25, 8192")
    a.I("v_add_u32 v15, s25, v15")
    a.I("s_nop 7")
    twiddle(a, D1R, D1I, [[j, j + 8] for j in range(8)], NF, BS, pc, -1, TM)
    pack(a, TR, D1R, 8)
    pack(a, TI, D1I, 8)
    a.I("s_nop 1")
    for r in range(2):
        a.I(f"{MF} {v(D2 + 16 * r, 16)}, {v(AR, 4)}, {v(TR + 4 * r, 4)}, 0")
        a.I(f"{MF} {v(D2 + 16 * r, 16)}, {v(AI, 4)}, {v(TI + 4 * r, 4)}, {v(D2 + 16 * r, 16)}")
    a.I("s_nop 11")
    for c in range(2):
        for j in range(5):
            a.I(f"v_cvt_pk_bf16_f32 {v(TR + 5 * c + j)}, {v(D2 + 8 * c + j)}, {v(D2 + 16 + 8 * c + j)}")
    for c in range(2):
        for j in range(4):
            a.I(f"ds_write_b32 v15, {v(TR + 5 * c + j)} offset:{(c * 8 + j) * 512}")
    a.I("v_cmp_eq_u32 vcc, 0, v0")
    a.I("s_and_saveexec_b64 s[36:37], vcc")
    for c in range(2):
        a.I(f"ds_write_b32 v15, {v(TR + 5 * c + 4)} offset:{8192 + 16 * c}")
    a.I("s_mov_b64 exec, s[36:37]")
    a.I("v_lshlrev_b32 v14, 4, v2")
    a.I("s_waitcnt lgkmcnt(0)")
    a.I("s_barrier")
    a.I("ds_read_b128 v[16:19], v14 offset:8192")
    a.I(f"ds_read_b128 v[20:23], v14 offset:{8192 + 4096}")
    a.I(f"ds_read_b128 v[24:27], v14 offset:{8192 + 8192}")
    a.I("v_lshlrev_b32 v13, 12, v2")
    a.I(f"v_add_u32 v13, {256 * 8192}, v13")
    a.I("s_waitcnt lgkmcnt(0)")
    a.I("buffer_store_dwordx4 v[16:19], v3, s[32:35], s23 offen")
    a.I("buffer_store_dwordx4 v[20:23], v3, s[32:35], s24 offen")
    a.I("v_cmp_gt_u32 vcc, 2, v2")
    a.I("s_and_saveexec_b64 s[36:37], vcc")
    a.I(f"s_cbranch_execz {N}_end")
    a.I("buffer_store_dwordx4 v[24:27], v13, s[32:35], s23 offen")
    a.I("s_endpgm")
    a.label(f"{N}_filt")
    srd(a, 28, 10, 11, 2048 * 514)
    srd(a, 32, 12, 13, 2048 * 514)
    srd(a, 36, 4, 5, 257 * 8192, add=WS_WF)
    a.I("s_lshr_b32 s25, s21, 1")
    a.I("s_lshl_b32 s25, s25, 5")
    a.I("s_lshr_b32 s26, s20, 5")
    a.I("s_lshl_b32 s26, s26, 4")
    a.I("s_add_u32 s25, s25, s26")
    a.I("s_and_b32 s26, s21, 1")
    a.I("s_lshl_b32 s26, s26, 2")
    a.I("s_add_u32 s25, s25, s26")
    a.I("s_lshl_b32 s25, s25, 5")
    a.I("s_and_b32 s26, s20, 31")
    a.I("s_add_u32 s25, s25, s26")
    a.I("s_mul_i32 s25, s25, 514")
    for j in range(8):
        a.I(f"s_add_u32 s{40 + j}, s25, {PERMC(j) * 32 * 514}")
    a.I("v_lshlrev_b32 v4, 1, v2")
    a.I("v_mov_b32 v5, 512")
    for q, va in enumerate((4, 5)):
        for c in range(2):
            for j in range(8):
                a.I(f"buffer_load_ushort {v(32 + 16 * q + 8 * c + j)}, {v(va)}, s[{28 + 4 * c}:{31 + 4 * c}], s{40 + j} offen")
    a.I(f"v_mov_b32 v6, {256 * 8192}")
    a.I("s_waitcnt vmcnt(16)")
    for i in range(8):
        a.I(f"v_lshl_or_b32 {v(16 + i)}, {v(33 + 2 * i)}, 16, {v(32 + 2 * i)}")
    a.I("buffer_store_dwordx4 v[16:19], v3, s[36:39], s23 offen")
    a.I("buffer_store_dwordx4 v[20:23], v3, s[36:39], s24 offen")
    a.I("v_cmp_eq_u32 vcc, 0, v2")
    a.I("s_and_saveexec_b64 s[48:49], vcc")
    a.I(f"s_cbranch_execz {N}_end")
    a.I("s_waitcnt vmcnt(2)")
    for i in range(8):
        a.I(f"v_lshl_or_b32 {v(24 + i)}, {v(49 + 2 * i)}, 16, {v(48 + 2 * i)}")
    a.I("buffer_store_dwordx4 v[24:27], v6, s[36:39], s23 offen")
    a.I("buffer_store_dwordx4 v[28:31], v6, s[36:39], s24 offen")
    kend(a, N)
    return a, N, (256, 512, 20480)


def b2_loads(a, vm, col_s, own_s, L16, YR, WR, S0, SR):
    sY, sW = S0, S0 + 2
    a.I(f"s_lshl_b32 {s(sY)}, {s(col_s)}, 13")
    a.I(f"s_lshl_b32 {s(own_s)}, {s(own_s)}, 10")
    a.I(f"s_add_u32 {s(sY)}, {s(sY)}, {s(own_s)}")
    a.I(f"s_add_u32 {s(sY + 1)}, {s(sY)}, 4096")
    a.I(f"s_add_u32 {s(sW)}, {s(sY)}, {s(own_s)}")
    a.I(f"s_add_u32 {s(sW + 1)}, {s(sW)}, 4096")
    srd(a, SR, 4, 5, 257 * 8192, add=WS_Y)
    for c in range(2):
        for t in range(2):
            vm.issue(f"buffer_load_dwordx4 {v(YR + 8 * c + 4 * t, 4)}, {v(L16)}, {s(SR, 4)}, {s(sY + c)} offen offset:{t * 2048}", "Y")
    srd(a, SR + 4, 4, 5, 257 * 8192, add=WS_WF)
    for c in range(2):
        for h in range(2):
            vm.issue(f"buffer_load_dwordx4 {v(WR + 8 * c + 4 * h, 4)}, {v(L16)}, {s(SR + 4, 4)}, {s(sW + c)} offen offset:{h * 1024}", "WF")


def b2_body(a, own, col_s, lds_s, svc, vm, R0=0, S0=20, SR=28, slice_len=110, rmap=None, after_loads=None, st=lambda: None, preloaded=False, compact_ex=False, newer=8, zpol=''):
    L16, HL, NF, BS, LF, XA, XB, TM, LB = [R0 + x for x in (1, 2, 3, 4, 5, 6, 7, 8, 12)]
    YR, YI, WR, WI = [R0 + x for x in (16, 24, 32, 40)]
    C32, S32, NS32, C64, S64 = [R0 + x for x in (48, 56, 64, 72, 88)]
    DR, DI = R0 + 104, R0 + 120
    FR, FI, FN = R0 + 136, R0 + 152, R0 + 168
    XT = 240
    if rmap:
        L16, HL, NF, BS, LF, XA, XB, TM, LB, YR, YI, WR, WI, C32, S32, NS32, C64, S64, DR, DI, FR, FI, FN = rmap
    sY, sW, sSC, sT = S0, S0 + 2, S0 + 4, S0 + 5
    I0 = a.I
    cnt = [0]

    def I(text):
        r = I0(text)
        cnt[0] += 1
        if cnt[0] >= slice_len and (text.startswith("v_cvt_pk") or text.startswith("v_fma_f32") or text.startswith("v_sin")):
            dosvc()
        return r

    def dosvc():
        a.I = I0
        svc()
        a.I = I
        cnt[0] = 0

    a.I(f"v_lshlrev_b32 {v(L16)}, 4, v0")
    if preloaded:
        vm.q += ["Y"] * 4 + ["WF"] * 4 + ["Q"] * newer
    else:
        a.I(f"s_mov_b32 {s(sT)}, {own}")
        b2_loads(a, vm, col_s, sT, L16, YR, WR, S0, SR)
    srd(a, SR + 8, 4, 5, 257 * 8192, add=WS_Z)
    a.I = I
    a.I(f"s_mov_b32 {s(sSC)}, {f32(2.0 ** -19)}")
    a.I(f"s_and_b32 {s(sT)}, {s(col_s)}, 255")
    a.I(f"s_cmp_eq_u32 {s(sT)}, 0")
    a.I(f"s_cselect_b32 {s(sSC)}, {f32(2.0 ** -20)}, {s(sSC)}")
    a.I(f"v_lshrrev_b32 {v(HL)}, 5, v0")
    a.I(f"v_cvt_f32_u32 {v(HL)}, {v(HL)}")
    a.I(f"v_mul_f32 {v(HL)}, 4.0, {v(HL)}")
    a.I(f"v_and_b32 {v(LF)}, 31, v0")
    a.I(f"v_cvt_f32_u32 {v(LF)}, {v(LF)}")
    a.I(f"v_add_f32 {v(LB)}, {f32(32.0 * own)}, {v(LF)}")
    pc = lambda n: [16 * t + PERMC(j) for t in range(n) for j in range(8)]
    a.I(f"v_mul_f32 {v(NF)}, {f32(1 / 32)}, {v(LF)}")
    a.I(f"v_mul_f32 {v(BS)}, {v(NF)}, {v(HL)}")
    gen_mat(a, C32, NF, BS, pc(2), TM)
    a.I(f"v_add_f32 {v(BS)}, {f32(-0.25)}, {v(BS)}")
    gen_mat(a, S32, NF, BS, pc(2), TM)
    for i in range(8):
        a.I(f"v_xor_b32 {v(NS32 + i)}, 0x80008000, {v(S32 + i)}")
    a.I(f"v_mul_f32 {v(NF)}, {f32(1 / 64)}, {v(LB)}")
    a.I(f"v_mul_f32 {v(BS)}, {v(NF)}, {v(HL)}")
    gen_mat(a, C64, NF, BS, pc(4), TM)
    a.I(f"v_add_f32 {v(BS)}, {f32(-0.25)}, {v(BS)}")
    gen_mat(a, S64, NF, BS, pc(4), TM)
    a.I(f"v_add_u32 {v(XA)}, {s(lds_s)}, {v(L16)}")
    a.I(f"v_add_u32 {v(XB)}, {(1 - own) * 4096}, {v(XA)}")
    a.I(f"v_add_u32 {v(XA)}, {own * 4096}, {v(XA)}")

    def mm(D, terms, fill=None, per=3):
        first = True
        for A_, B_ in terms:
            a.I(f"{MF} {v(D, 16)}, {v(A_, 4)}, {v(B_, 4)}, {'0' if first else v(D, 16)}")
            first = False
            if fill:
                for x in fill[:per]:
                    a.I(x)
                del fill[:per]

    def exchange(neg_of, ldsoff):
        nonlocal XA, XB
        if compact_ex and ldsoff:
            XA, XB, ldsoff = XB, XA, 0
        for c, F in enumerate((FR, FI)):
            for h in range(2):
                a.I(f"ds_write_b128 {v(XA)}, {v(F + 8 * own + 4 * h, 4)} offset:{ldsoff + (2 * c + h) * 1024}")
        a.I("s_waitcnt lgkmcnt(0)")
        dosvc()
        for c, F in enumerate((FR, FI)):
            for h in range(2):
                a.I(f"ds_read_b128 {v(F + 8 * (1 - own) + 4 * h, 4)}, {v(XB)} offset:{ldsoff + (2 * c + h) * 1024}")
        for i in range(8):
            a.I(f"v_xor_b32 {v(FN + 8 * own + i)}, 0x80008000, {v(neg_of + 8 * own + i)}")
        a.I("s_waitcnt lgkmcnt(0)")
        for i in range(8):
            a.I(f"v_xor_b32 {v(FN + 8 * (1 - own) + i)}, 0x80008000, {v(neg_of + 8 * (1 - own) + i)}")
        a.I("s_nop 1")

    jc = [(j & 3) + 8 * (j >> 2) for j in range(16)]
    o = 8 * (1 - own)
    T1C = [FN + j for j in range(16)]
    T1S = [FR + o + j for j in range(8)] + [FI + o + j for j in range(8)]
    a.I(f"v_mul_f32 {v(NF)}, {f32(1 / 2048)}, {v(LF)}")
    a.I(f"v_add_f32 {v(BS)}, {f32(32.0 * own)}, {v(HL)}")
    a.I(f"v_mul_f32 {v(BS)}, {v(NF)}, {v(BS)}")
    for j in range(16):
        a.many(trig(a, j, T1C[j], T1S[j], NF, BS, jc[j], TM + (j & 1)))
    a.I(f"v_mul_f32 {v(NF)}, {f32(1 / 2048)}, {v(LB)}")
    a.I(f"v_mul_f32 {v(BS)}, {v(NF)}, {v(HL)}")
    st()
    vm.wait("Y")
    st()
    mm(DR, [(YR, C32), (YR + 4, C32 + 4), (YI, S32), (YI + 4, S32 + 4)])
    mm(DI, [(YI, C32), (YI + 4, C32 + 4), (YR, NS32), (YR + 4, NS32 + 4)])
    a.I("s_nop 11")
    for j in range(16):
        cmul(a, DR + j, DI + j, T1C[j], T1S[j], -1, TM)
    pack(a, FR + 8 * own, DR, 8)
    pack(a, FI + 8 * own, DI, 8)
    exchange(FR, 0)
    st()
    if after_loads:
        after_loads()
    T2C = [YR + j for j in range(8)] + [YI + j for j in range(8)]
    fill = []
    for j in range(16):
        fill += trig(a, j, T2C[j], XT + j, NF, BS, jc[j], TM + (j & 1))
    mm(DR, [(C64 + 4 * t, FR + 4 * t) for t in range(4)] + [(S64 + 4 * t, FI + 4 * t) for t in range(4)], fill)
    mm(DI, [(C64 + 4 * t, FI + 4 * t) for t in range(4)] + [(S64 + 4 * t, FN + 4 * t) for t in range(4)], fill)
    assert not fill
    vm.wait("WF")
    for j in range(12):
        a.I(f"v_mul_f32 {v(T2C[j])}, {s(sSC)}, {v(T2C[j])}")
    for j in range(16):
        wr, wi, u = TM, TM + 1, TM + 2
        if j & 1:
            a.I(f"v_and_b32 {v(wr)}, 0xffff0000, {v(WR + j // 2)}")
            a.I(f"v_and_b32 {v(wi)}, 0xffff0000, {v(WI + j // 2)}")
        else:
            a.I(f"v_lshlrev_b32 {v(wr)}, 16, {v(WR + j // 2)}")
            a.I(f"v_lshlrev_b32 {v(wi)}, 16, {v(WI + j // 2)}")
        cmul(a, DR + j, DI + j, wr, wi, +1, u)
    pack(a, FR + 8 * own, DR, 8)
    pack(a, FI + 8 * own, DI, 8)
    exchange(FI, 8192)
    st()
    fill = [f"v_mul_f32 {v(T2C[j])}, {s(sSC)}, {v(T2C[j])}" for j in range(12, 16)]
    fill += [f"v_mul_f32 {v(XT + j)}, {s(sSC)}, {v(XT + j)}" for j in range(16)]
    mm(DR, [(FR + 4 * t, C64 + 4 * t) for t in range(4)] + [(FN + 4 * t, S64 + 4 * t) for t in range(4)], fill)
    mm(DI, [(FI + 4 * t, C64 + 4 * t) for t in range(4)] + [(FR + 4 * t, S64 + 4 * t) for t in range(4)], fill)
    a.I("s_nop 11")
    for j in range(16):
        cmul(a, DR + j, DI + j, T2C[j], XT + j, +1, TM)
    pack(a, FR, DR, 8)
    pack(a, FI, DI, 8)
    a.I("s_nop 1")
    mm(DR, [(C32, FR), (C32 + 4, FR + 4), (NS32, FI), (NS32 + 4, FI + 4)])
    mm(DI, [(C32, FI), (C32 + 4, FI + 4), (S32, FR), (S32 + 4, FR + 4)])
    a.I = I0
    a.I("s_nop 7")
    pack(a, YR, DR, 8)
    a.I("s_nop 3")
    pack(a, YI, DI, 8)
    for c in range(2):
        for h in range(2):
            vm.issue(f"buffer_store_dwordx4 {v(YR + 8 * c + 4 * h, 4)}, {v(L16)}, {s(SR + 8, 4)}, {s(sW + c)} offen offset:{h * 1024}{zpol}", "Z")


def gen_b2():
    a = Asm()
    N = "b2_kernel"
    kstart(a, N, 257)
    a.I("s_load_dwordx2 s[4:5], s[0:1], 88")
    a.I("v_lshrrev_b32 v1, 6, v0")
    a.I("v_and_b32 v0, 63, v0")
    a.I("s_mov_b32 s17, 0")
    a.I("v_readfirstlane_b32 s16, v1")
    a.I("s_waitcnt lgkmcnt(0)")
    a.I("s_cmp_eq_u32 s16, 1")
    a.I(f"s_cbranch_scc1 {N}_w1")
    b2_body(a, 0, 2, 17, lambda: a.I("s_barrier"), VM(a), slice_len=10 ** 9)
    a.I("s_endpgm")
    a.label(f"{N}_w1")
    b2_body(a, 1, 2, 17, lambda: a.I("s_barrier"), VM(a), slice_len=10 ** 9)
    kend(a, N)
    return a, N, (257, 128, 16384)


def b3_loads(a, outp=6, pol='', before=None):
    b_decode(a)
    a.I("s_lshr_b32 s23, s20, 5")
    a.I("s_lshl_b32 s23, s23, 11")
    a.I("s_lshl_b32 s24, s21, 9")
    a.I("s_add_u32 s23, s23, s24")
    a.I("s_and_b32 s24, s20, 31")
    a.I("s_lshl_b32 s24, s24, 4")
    a.I("s_add_u32 s23, s23, s24")
    a.I("s_add_u32 s24, s23, 4096")
    a.I("v_lshlrev_b32 v3, 13, v2")
    a.I(f"v_mov_b32 v4, {256 * 8192}")
    a.I("s_waitcnt lgkmcnt(0)")
    srd(a, 28, 4, 5, 257 * 8192, add=WS_Z)
    srd(a, 32, outp, outp + 1, 4 * MB)
    if before:
        before()
    a.I(f"buffer_load_dwordx4 v[16:19], v3, s[28:31], s23 offen{pol}")
    a.I(f"buffer_load_dwordx4 v[20:23], v3, s[28:31], s24 offen{pol}")
    a.I(f"buffer_load_dwordx4 v[24:27], v4, s[28:31], s23 offen{pol}")


def b3_body(a, LB=0, outp=6, nafter=0, loaded=False, mid=None, part=0, bar=None):
    if not loaded:
        b3_loads(a, outp)
    n0 = len(a.items)
    HL, NF, BS, AFL, TM = 5, 6, 7, 12, 8
    C32, NS32, BRE, BIM, MT, ZF, UR, UI, TR, TI = 32, 40, 48, 56, 64, 68, 76, 92, 108, 116
    a.I(f"v_lshrrev_b32 {v(HL)}, 5, v0")
    a.I(f"v_cvt_f32_u32 {v(HL)}, {v(HL)}")
    a.I("v_and_b32 v13, 31, v0")
    a.I("v_cvt_f32_u32 v13, v13")
    a.I(f"v_mul_f32 {v(NF)}, {f32(1 / 32)}, v13")
    a.I(f"v_mul_f32 {v(BS)}, {v(NF)}, {v(HL)}")
    a.I(f"v_mul_f32 {v(BS)}, 4.0, {v(BS)}")
    pc = [16 * t + PERMC(j) for t in range(2) for j in range(8)]
    gen_mat(a, C32, NF, BS, pc, TM)
    a.I(f"v_add_f32 {v(BS)}, {f32(0.25)}, {v(BS)}")
    gen_mat(a, NS32, NF, BS, pc, TM)
    a.I(f"v_and_b32 {v(AFL)}, 15, v0")
    a.I(f"v_cvt_f32_u32 {v(AFL)}, {v(AFL)}")
    a.I(f"v_mul_f32 {v(NF)}, {f32(1 / 16)}, {v(AFL)}")
    a.I(f"v_mul_f32 {v(BS)}, {f32(0.25)}, {v(HL)}")
    a.I("v_and_b32 v13, 16, v0")
    a.I("v_cmp_eq_u32 vcc, 0, v13")
    a.I("v_mov_b32 v14, 0")
    for B_, ph in ((BRE, None), (BIM, -0.25)):
        if ph:
            a.I(f"v_add_f32 {v(BS)}, {f32(ph)}, {v(BS)}")
        gen_mat(a, MT, NF, BS, list(range(8)), TM)
        for i in range(4):
            a.I(f"v_cndmask_b32 {v(B_ + i)}, v14, {v(MT + i)}, vcc")
            a.I(f"v_cndmask_b32 {v(B_ + 4 + i)}, {v(MT + i)}, v14, vcc")
    if part == 1:
        return
    if part == 2:
        del a.items[n0:]
    if mid:
        mid()
    a.I("v_and_b32 v13, 31, v2")
    a.I("v_lshlrev_b32 v13, 4, v13")
    a.I("v_lshrrev_b32 v15, 5, v2")
    a.I("v_lshl_add_u32 v13, v15, 1, v13")
    a.I(f"v_add_u32 v13, {LB}, v13")
    a.I("v_cmp_eq_u32 vcc, 0, v2")
    a.I(f"v_mov_b32 v15, {LB + 8192}")
    a.I(f"s_waitcnt vmcnt({nafter})")
    for i in range(4):
        a.I(f"v_cndmask_b32 {v(20 + i)}, {v(20 + i)}, v14, vcc")
    for c in range(2):
        for i in range(8):
            a.I(f"ds_write_b16{'_d16_hi' if i & 1 else ''} v13, {v(16 + 4 * c + i // 2)} offset:{i * 1024 + c * 512}")
    a.I("s_and_saveexec_b64 s[36:37], vcc")
    a.I("ds_write_b128 v15, v[24:27]")
    a.I("s_mov_b64 exec, s[36:37]")
    a.I("s_lshl_b32 s25, s16, 11")
    a.I(f"s_add_u32 s25, s25, {LB}")
    a.I("v_lshlrev_b32 v13, 4, v0")
    a.I("v_add_u32 v13, s25, v13")
    a.I("v_bfe_u32 v15, v0, 4, 1")
    a.I("s_lshl_b32 s25, s16, 2")
    a.I(f"s_add_u32 s25, s25, {LB + 8192}")
    a.I("v_lshl_add_u32 v15, v15, 1, s25")
    for j in range(1, 16):
        a.I(f"v_mov_b32 {v(UR + j)}, 0")
    a.I("s_waitcnt lgkmcnt(0)")
    if bar:
        bar()
    else:
        a.I("s_barrier")
    a.I(f"ds_read_u16 {v(UR)}, v15")
    a.I(f"ds_read_b128 {v(ZF, 4)}, v13")
    a.I(f"ds_read_b128 {v(ZF + 4, 4)}, v13 offset:1024")
    a.I("v_and_b32 v15, 1, v0")
    a.I("v_lshlrev_b32 v15, 31, v15")
    a.I("v_cmp_gt_u32 vcc, 32, v0")
    a.I(f"v_mul_f32 {v(NF)}, {f32(1 / 512)}, {v(AFL)}")
    a.I(f"v_mul_f32 {v(BS)}, {v(NF)}, {v(HL)}")
    a.I(f"v_mul_f32 {v(BS)}, 4.0, {v(BS)}")
    a.I("s_waitcnt lgkmcnt(2)")
    a.I(f"v_lshlrev_b32 {v(UR)}, 16, {v(UR)}")
    a.I(f"v_xor_b32 {v(UR)}, {v(UR)}, v15")
    a.I(f"v_cndmask_b32 {v(UR)}, v14, {v(UR)}, vcc")
    a.I("s_waitcnt lgkmcnt(0)")
    a.I("s_nop 0")
    for r in range(2):
        a.I(f"{MF} {v(UR, 16)}, {v(ZF + 4 * r, 4)}, {v(BRE + 4 * r, 4)}, {v(UR, 16)}")
    for r in range(2):
        a.I(f"{MF} {v(UI, 16)}, {v(ZF + 4 * r, 4)}, {v(BIM + 4 * r, 4)}, {'0' if r == 0 else v(UI, 16)}")
    a.I("s_lshr_b32 s25, s21, 1")
    a.I("s_lshl_b32 s25, s25, 4")
    a.I("s_and_b32 s26, s21, 1")
    a.I("s_lshl_b32 s26, s26, 2")
    a.I("s_add_u32 s25, s25, s26")
    a.I("s_lshr_b32 s26, s16, 1")
    a.I("s_lshl_b32 s26, s26, 3")
    a.I("s_add_u32 s25, s25, s26")
    a.I("s_and_b32 s26, s16, 1")
    a.I("s_lshl_b32 s26, s26, 1")
    a.I("s_add_u32 s25, s25, s26")
    a.I("s_lshl_b32 s25, s25, 6")
    a.I("s_add_u32 s25, s25, s20")
    a.I("s_lshl_b32 s25, s25, 11")
    a.I(f"s_add_u32 s26, s25, {64 * 2048}")
    jc = [(j & 3) + 8 * (j >> 2) for j in range(16)]
    twiddle(a, UR, UI, [[j] for j in range(16)], NF, BS, jc, +1, TM)
    pack(a, TR, UR, 8)
    pack(a, TI, UI, 8)
    a.I("v_and_b32 v13, 31, v0")
    a.I("v_lshlrev_b32 v13, 5, v13")
    terms = [(TR, C32), (TR + 4, C32 + 4), (TI, NS32), (TI + 4, NS32 + 4)]
    for i, (A_, B_) in enumerate(terms):
        a.I(f"{MF} {v(UR, 16)}, {v(A_, 4)}, {v(B_, 4)}, {'0' if i == 0 else v(UR, 16)}")
    a.I("v_lshrrev_b32 v15, 5, v0")
    a.I("v_lshl_add_u32 v13, v15, 4, v13")
    a.I("s_nop 9")
    pack(a, 16, UR, 8)
    a.I("s_nop 1")
    for r in range(2):
        a.I(f"v_permlane32_swap_b32 {v(16 + 4 * r)}, {v(18 + 4 * r)}")
        a.I(f"v_permlane32_swap_b32 {v(17 + 4 * r)}, {v(19 + 4 * r)}")
        a.I(f"buffer_store_dwordx4 {v(16 + 4 * r, 4)}, v13, s[32:35], s{25 + r} offen offset:1024{os.environ.get('OPB', ' nt')}")


def gen_b3():
    a = Asm()
    N = "b3_kernel"
    kstart(a, N, 256)
    a.I("s_load_dwordx2 s[4:5], s[0:1], 88")
    a.I("s_load_dwordx2 s[6:7], s[0:1], 72")
    a.I("v_lshrrev_b32 v1, 6, v0")
    a.I("v_mov_b32 v2, v0")
    a.I("v_and_b32 v0, 63, v0")
    a.I("v_readfirstlane_b32 s16, v1")
    b3_body(a)
    kend(a, N)
    return a, N, (256, 256, 8192 + 64)


KERNELS = [gen_b1, gen_qkv, gen_b2, gen_attn, gen_b3, gen_oproj]


ALIASES = [("v_mfma_f32_16x16x32_bf16", "mf16", 4), ("v_mfma_f32_32x32x16_bf16", "mf32", 4),
           ("v_cvt_pk_bf16_f32", "cvtpk", 3)]


def compact(txt):
    lines = txt.split("\n")
    out = []
    done = False
    for l in lines:
        if l.startswith("    "):
            l = l.strip()
            for full, short, n in ALIASES:
                if l.startswith(full + " "):
                    l = short + l[len(full):]
        out.append(l)
        if l.startswith(".amdgcn_target") and not done:
            done = True
            for full, short, n in ALIASES:
                args = ["p%d" % i for i in range(n)]
                out.append(f".macro {short} " + ", ".join(args))
                out.append(f"{full} " + ", ".join("\\" + x for x in args))
                out.append(".endm")
    return "\n".join(out)


def build(kernels, path):
    hdr = open(os.path.join(os.path.dirname(os.path.abspath(__file__)), "..", "cdna_kernels", NAME + ".s.ref")).read()
    head = [l for l in hdr.splitlines() if l.startswith(";") and "@launch" not in l and "Override" not in l
            and "grid=ceil" not in l]
    txt = []
    launches = []
    descs = []
    bad = 0
    for g in kernels:
        KIDX[0] = len(launches)
        a, n, (grid, blk, lds) = g()
        if os.environ.get("PADREF") == n:
            items = []
            done = False
            for it in a.items:
                items.append(it)
                if it[0] == "i" and it[1].text == f"s_cbranch_scc1 {n}_end" and not done:
                    done = True
                    b = Asm()
                    b.I("s_memrealtime s[98:99]")
                    b.I("s_load_dwordx2 s[96:97], s[0:1], 88")
                    b.I("s_cmp_lg_u32 s2, 0")
                    b.I("s_cbranch_scc1 padref_skip")
                    b.I("s_waitcnt lgkmcnt(0)")
                    b.I(f"s_add_u32 s84, s96, {hex(200 * MB)}")
                    b.I("s_addc_u32 s85, s97, 0")
                    b.I("s_mov_b32 s86, 64")
                    b.I("s_mov_b32 s87, 0x20000")
                    b.I("v_mov_b32 v254, s98")
                    b.I("buffer_store_dword v254, off, s[84:87], 0 sc0 sc1")
                    b.label("padref_skip")
                    b.I("s_waitcnt lgkmcnt(0)")
                    items += b.items
            a.items = items
        if os.environ.get("PADK") == n:
            items = []
            cnt = 0
            for it in a.items:
                if it[0] == "i" and it[1].text == f"s_cbranch_scc1 {n}_end" and cnt == 0:
                    items.append(it)
                    b = Asm()
                    b.I("s_memrealtime s[98:99]")
                    if os.environ.get("PADREF"):
                        b.I("s_load_dwordx2 s[96:97], s[0:1], 88")
                        b.I("s_waitcnt lgkmcnt(0)")
                        b.I(f"s_add_u32 s84, s96, {hex(200 * MB)}")
                        b.I("s_addc_u32 s85, s97, 0")
                        b.I("s_mov_b32 s86, 64")
                        b.I("s_mov_b32 s87, 0x20000")
                        b.I("buffer_load_dword v254, off, s[84:87], 0 sc0 sc1")
                        b.I("s_waitcnt vmcnt(0)")
                        b.I("v_readfirstlane_b32 s98, v254")
                    items += b.items
                    cnt = 1
                    continue
                if it[0] == "i" and it[1].mn == "s_endpgm" and not (items[-1][0] == "l" and items[-1][1] == n + "_end" and items[-2][1].mn == "s_endpgm"):
                    b = Asm()
                    lab = None
                    if items[-1][0] == "l" and items[-1][1] == n + "_end":
                        lab = items.pop()
                    cnt += 1
                    b.I("s_waitcnt vmcnt(0) lgkmcnt(0)")
                    b.label(f"pad_{cnt}")
                    b.I("s_memrealtime s[96:97]")
                    b.I("s_waitcnt lgkmcnt(0)")
                    b.I("s_sub_u32 s96, s96, s98")
                    b.I(f"s_cmp_lt_u32 s96, {os.environ['PADT']}")
                    b.I(f"s_cbranch_scc1 pad_{cnt}")
                    items += b.items
                    if lab:
                        items.append(it)
                        items.append(lab)
                items.append(it)
            a.items = items
        if DBGT:
            items = []
            for it in a.items:
                if it[0] == "i" and it[1].mn == "s_endpgm" and not (items and items[-1][0] == "l" and items[-1][1] == n + "_end" and items[-2][1].mn == "s_endpgm"):
                    b = Asm()
                    lab = None
                    if items[-1][0] == "l" and items[-1][1] == n + "_end":
                        lab = items.pop()
                    dbg_stamp(b, 1)
                    items += b.items
                    if lab:
                        items.append(it)
                        items.append(lab)
                items.append(it)
            a.items = items
        bad += len(a.check())
        nv, ns, na = a.maxregs()
        print(f"{n}: {sum(1 for k, _ in a.items if k == 'i')} instrs, vgpr {nv}, agpr {na}, sgpr {ns}")
        launches.append(f"; @launch kernel={n} grid=({grid},1,1) block=({blk},1,1) lds={lds}")
        txt.append(a.text())
        descs.append(kdesc(n, nv, ns, na))
    if bad:
        print("HAZARDS:", bad)
    out = "\n".join(head) + "\n" + "\n".join(launches) + "\n" + '.amdgcn_target "amdgcn-amd-amdhsa--gfx950"\n' + \
          "".join(txt) + "".join(descs)
    out = compact(out)
    open(path, "w").write(out)
    return bad


if __name__ == "__main__":
    p = sys.argv[1] if len(sys.argv) > 1 else os.path.join(os.path.dirname(os.path.abspath(__file__)), "..",
                                                           "cdna_kernels", NAME + ".s")
    sys.exit(1 if build(KERNELS, p) else 0)
```

```python
import sys, os
sys.path.insert(0, os.path.dirname(os.path.abspath(__file__)))
import gen
from gen import *

M16 = "v_mfma_f32_16x16x32_bf16"
SP = os.environ.get("SP", " sc1")
PUMP = int(os.environ.get("PUMP", "5"))
SCAT_AT = int(os.environ.get("SCAT_AT", "52"))
PRE3 = int(os.environ.get("PRE3", "20"))
PF_AT = int(os.environ.get("PF_AT", "80"))
BP = os.environ.get("BP", " nt")
PP = os.environ.get("PP", "")
AP = os.environ.get("AP", "")
LP = os.environ.get("LP", "")
MULM = os.environ.get("MULM", "")
SIG3 = int(os.environ.get("SIG3", "123"))
B3AT = int(os.environ.get("B3AT", "75"))
CT_AT = int(os.environ.get("CT_AT", "80"))
GRP2 = int(os.environ.get("GRP2", "1"))
FILT_AT = int(os.environ.get("FILT_AT", "70"))
LATE_AT = int(os.environ.get("LATE_AT", "30"))
STF = eval(os.environ.get("STF", "(31, 63, 95)"))
B1START = int(os.environ.get("B1START", "6"))


def gen_l1():
    a = Asm()
    N = "l1_kernel"
    kstart(a, N, 256)
    a.I("s_load_dwordx4 s[4:7], s[0:1], 0")
    a.I("s_load_dwordx4 s[8:11], s[0:1], 16")
    a.I("s_load_dwordx2 s[12:13], s[0:1], 32")
    a.I("s_load_dwordx2 s[14:15], s[0:1], 88")
    a.I("s_load_dwordx4 s[60:63], s[0:1], 48")
    a.I("s_load_dwordx2 s[64:65], s[0:1], 64")
    a.I("s_load_dwordx2 s[90:91], s[0:1], 40")
    TID, L16 = 64, 65
    a.I(f"v_and_b32 {v(TID)}, 255, v0")
    a.I("v_lshrrev_b32 v2, 6, v0")
    a.I("v_and_b32 v0, 63, v0")
    a.I("v_readfirstlane_b32 s16, v2")
    st = Stamper(a, "l1")
    st()
    BLDS = 9 * 16384
    a.I("s_nop 0")
    if os.environ.get("CT0", "1") == "1":
        code_touch(a, N, 16, 24, 60, kd=False)
    a.I("s_and_b32 s17, s2, 7")
    a.I("s_lshr_b32 s18, s2, 3")
    a.I("s_and_b32 s19, s18, 7")
    a.I("s_lshr_b32 s18, s18, 3")
    a.I("s_lshl_b32 s40, s17, 2")
    a.I("s_add_u32 s18, s18, s40")
    if os.environ.get("L1MAP", "4x8") == "4x8":
        a.I("s_lshr_b32 s18, s2, 3")
        a.I("s_and_b32 s19, s18, 3")
        a.I("s_and_b32 s40, s17, 1")
        a.I("s_lshl_b32 s40, s40, 2")
        a.I("s_add_u32 s19, s19, s40")
        a.I("s_lshr_b32 s18, s18, 2")
        a.I("s_lshr_b32 s40, s17, 1")
        a.I("s_lshl_b32 s40, s40, 3")
        a.I("s_add_u32 s18, s18, s40")
    a.I("s_mov_b32 s41, 0")
    a.I("s_mul_i32 s42, s18, 6")
    a.I("s_cmp_ge_u32 s18, 11")
    a.I("s_cselect_b32 s41, 1, s41")
    a.I("s_cselect_b32 s40, 64, 0")
    a.I("s_cmp_ge_u32 s18, 21")
    a.I("s_cselect_b32 s41, 2, s41")
    a.I("s_cselect_b32 s40, 126, s40")
    a.I("s_sub_u32 s42, s42, s40")
    a.I("s_lshl_b32 s44, s19, 3")
    a.I("s_add_u32 s44, s44, s16")
    t1, t2, t3, G = 66, 67, 68, 69
    WV, AV, AR_, TB, SK, SV = 1, 3, 7, 9, 21, 22
    a.I(f"v_lshrrev_b32 {v(t1)}, 3, v0")
    a.I(f"v_lshlrev_b32 {v(G)}, 10, {v(t1)}")
    a.I(f"v_lshlrev_b32 {v(t1)}, 13, {v(t1)}")
    a.I("s_lshl_b32 s45, s16, 17")
    a.I(f"v_add_u32 {v(t1)}, s45, {v(t1)}")
    a.I(f"v_bfe_u32 {v(t2)}, v0, 4, 1")
    a.I(f"v_lshlrev_b32 {v(t2)}, 1, {v(t2)}")
    a.I(f"v_and_b32 {v(t3)}, 7, v0")
    a.I(f"v_xor_b32 {v(t2)}, {v(t2)}, {v(t3)}")
    a.I(f"v_lshl_add_u32 {v(WV)}, {v(t2)}, 4, {v(t1)}")
    a.I(f"v_xor_b32 {v(WV + 1)}, 64, {v(WV)}")
    a.I(f"v_add_u32 {v(WV + 1)}, {65536 - 1024}, {v(WV + 1)}")
    a.I("s_lshl_b32 s45, s44, 15")
    a.I(f"v_add_u32 {v(t1)}, s45, {v(G)}")
    a.I(f"v_lshrrev_b32 {v(t2)}, 4, v0")
    a.I(f"v_xor_b32 {v(t2)}, {v(t2)}, {v(t3)}")
    a.I(f"v_lshl_add_u32 {v(AV)}, {v(t2)}, 4, {v(t1)}")
    a.I(f"v_xor_b32 {v(AV + 1)}, 64, {v(AV)}")
    a.I(f"v_add_u32 {v(AV + 1)}, {8192 - 1024}, {v(AV + 1)}")
    a.I(f"v_add_u32 {v(AV + 2)}, {2 * (8192 - 1024)}, {v(AV)}")
    a.I(f"v_add_u32 {v(AV + 3)}, {2 * (8192 - 1024)}, {v(AV + 1)}")
    a.I("s_lshl_b32 s46, s16, 13")
    a.I("s_lshl_b32 s47, s16, 11")
    a.I("s_lshl_b32 s48, s42, 7")
    a.I("s_lshl_b32 s49, s44, 13")
    a.I("s_lshl_b32 s50, s42, 18")
    a.I("s_add_u32 s50, s50, s49")
    a.I("s_add_u32 s53, s48, 512")
    a.I("s_mov_b32 s43, s49")
    a.I(f"v_lshlrev_b32 {v(L16)}, 4, v0")
    a.I("s_lshl_b32 s45, s44, 16")
    a.I("v_lshrrev_b32 v23, 1, v0")
    a.I("v_lshlrev_b32 v23, 13, v23")
    a.I(f"v_and_b32 {v(t1)}, 1, v0")
    a.I(f"v_lshl_add_u32 v23, {v(t1)}, 7, v23")
    a.I("v_add_u32 v23, s45, v23")
    a.I("s_waitcnt lgkmcnt(0)")
    WT0 = os.environ.get("WT0", "0")
    if WT0 != "0":
        a.I("s_cmp_ge_u32 s16, 6")
        a.I(f"s_cbranch_scc1 {N}_nwt")
        a.I("s_lshr_b32 s40, s16, 1")
        a.I("s_cmp_eq_u32 s40, 1")
        a.I("s_cselect_b32 s20, s8, s10")
        a.I("s_cselect_b32 s21, s9, s11")
        a.I("s_cmp_eq_u32 s40, 2")
        a.I("s_cselect_b32 s20, s12, s20")
        a.I("s_cselect_b32 s21, s13, s21")
        a.I(f"s_mov_b32 s22, {hex(4 * MB)}")
        a.I("s_mov_b32 s23, 0x20000")
        a.I("s_and_b32 s40, s16, 1")
        a.I("s_lshl1_add_u32 s40, s2, s40")
        a.I("s_lshl_b32 s40, s40, 13")
        a.I(f"v_lshlrev_b32 {v(t1)}, 7, v0")
        a.I(f"buffer_load_dword v59, {v(t1)}, s[20:23], s40 offen")
        a.label(f"{N}_nwt")
    a.I("s_lshl_b32 s45, s44, 18")
    a.I("s_lshl_b32 s40, s42, 12")
    a.I("s_add_u32 s45, s45, s40")
    a.I(f"s_mov_b32 s92, {hex(512 * 1024)}")
    a.I("s_cmp_eq_u32 s41, 2")
    a.I("s_cselect_b32 s50, s45, s50")
    a.I("s_cselect_b32 s92, 0x2000, s92")
    a.I("s_cselect_b32 s20, s4, s6")
    a.I("s_cselect_b32 s21, s5, s7")
    a.I("s_cselect_b32 s24, s8, s10")
    a.I("s_cselect_b32 s25, s9, s11")
    a.I(f"s_cselect_b32 s51, {hex(WS_Q)}, 0")
    a.I(f"s_cselect_b32 s52, {f32(QSCALE)}, 1.0")
    a.I("s_cmp_eq_u32 s41, 1")
    a.I("s_cselect_b32 s24, s12, s24")
    a.I("s_cselect_b32 s25, s13, s25")
    a.I(f"s_cselect_b32 s51, {hex(WS_V)}, s51")
    a.I("s_mov_b32 s32, s24")
    a.I("s_mov_b32 s33, s25")
    a.I(f"s_mov_b32 s40, {hex(WS_V)}")
    a.I("s_cmp_eq_u32 s18, 10")
    a.I("s_cselect_b32 s32, s12, s32")
    a.I("s_cselect_b32 s33, s13, s33")
    a.I("s_cselect_b32 s53, 0, s53")
    a.I(f"s_add_u32 s45, s49, {hex(31 << 19)}")
    a.I("s_cmp_eq_u32 s18, 31")
    a.I("s_cselect_b32 s53, s48, s53")
    a.I("s_cselect_b32 s43, s50, s43")
    a.I(f"s_cselect_b32 s40, {hex(WS_Q)}, s40")
    a.I("s_cselect_b32 s24, s12, s24")
    a.I("s_cselect_b32 s25, s13, s25")
    a.I(f"s_cselect_b32 s48, {62 * 128}, s48")
    a.I(f"s_cselect_b32 s51, {hex(WS_V)}, s51")
    a.I("s_cselect_b32 s20, s6, s20")
    a.I("s_cselect_b32 s21, s7, s21")
    a.I("s_cselect_b32 s50, s45, s50")
    a.I(f"s_mov_b32 s22, {hex(2 * MB)}")
    a.I("s_mov_b32 s23, 0x20000")
    a.I(f"s_mov_b32 s26, {hex(4 * MB)}")
    a.I("s_mov_b32 s27, 0x20000")

    def late_setup():
        a.I("s_mov_b32 s94, s52")
        a.I("s_mov_b32 s95, s52")
        a.I(f"s_mov_b32 s34, {hex(4 * MB)}")
        a.I("s_mov_b32 s35, 0x20000")
        srd(a, 28, 14, 15, 16 * MB, add="s51")
        srd(a, 36, 14, 15, 16 * MB, add="s40")
        srd(a, 56, 4, 5, 2 * MB)
        if os.environ.get("XDROP") == "q":
            a.I("s_cmp_eq_u32 s41, 2")
            a.I("s_cselect_b32 s30, 0, s30")
        if os.environ.get("XDROP") == "all":
            a.I("s_mov_b32 s30, 0")
            a.I("s_mov_b32 s38, 0")
        a.I("s_add_u32 s13, s48, 256")
        a.I("s_add_u32 s17, s53, 256")
        a.I("s_cmp_eq_u32 s18, 31")
        a.I("s_cselect_b32 s4, s32, s24")
        a.I("s_cselect_b32 s5, s33, s25")
        a.I("s_cselect_b32 s13, s53, s13")
        a.I("s_cselect_b32 s17, s17, s53")
        a.I(f"s_mov_b32 s6, {hex(4 * MB)}")
        a.I("s_mov_b32 s7, 0x20000")

    def w_prefetch(g):
        for th, (col, sr) in enumerate([("s13", "s[4:7]"), ("s17", "s[32:35]")]):
            g.lq.append((["s_mov_b64 exec, 0xffff"], f"buffer_load_dword {v(56 + th)}, v23, {sr}, {col} offen{PP}", "pf"))

    def addr_setup():
        a.I(f"v_lshrrev_b32 {v(G)}, 4, v0")
        a.I(f"v_bfe_u32 {v(t1)}, v0, 3, 1")
        a.I(f"v_lshlrev_b32 {v(t1)}, 4, {v(t1)}")
        a.I(f"v_and_b32 {v(t2)}, 7, v0")
        a.I(f"v_add_u32 {v(t1)}, {v(t1)}, {v(t2)}")
        a.I(f"v_bfe_u32 {v(t2)}, {v(t1)}, 1, 3")
        a.I(f"v_xor_b32 {v(t2)}, {v(t2)}, {v(G)}")
        a.I(f"v_lshlrev_b32 {v(t2)}, 4, {v(t2)}")
        a.I(f"v_lshl_add_u32 {v(AR_)}, {v(t1)}, 7, {v(t2)}")
        a.I(f"v_xor_b32 {v(AR_ + 1)}, 64, {v(AR_)}")
        a.I(f"v_add_u32 {v(AR_)}, s46, {v(AR_)}")
        a.I(f"v_add_u32 {v(AR_ + 1)}, s46, {v(AR_ + 1)}")
        a.I(f"v_lshlrev_b32 {v(t2)}, 9, {v(G)}")
        a.I(f"v_lshl_add_u32 {v(SK)}, {v(t1)}, 4, {v(t2)}")
        a.I(f"v_and_b32 {v(t3)}, 15, v0")
        a.I(f"v_lshl_add_u32 {v(SV)}, {v(t3)}, 4, {v(t2)}")
        a.I(f"v_bfe_u32 {v(t1)}, v0, 2, 2")
        a.I(f"v_lshl_add_u32 {v(t1)}, {v(G)}, 3, {v(t1)}")
        a.I(f"v_lshlrev_b32 {v(t1)}, 7, {v(t1)}")
        a.I(f"v_and_b32 {v(t2)}, 3, v0")
        a.I(f"v_lshl_add_u32 {v(t1)}, {v(t2)}, 3, {v(t1)}")
        a.I(f"v_bfe_u32 {v(t2)}, v0, 3, 2")
        a.I(f"v_lshl_add_u32 {v(t1)}, {v(t2)}, 5, {v(t1)}")
        for ct in range(4):
            a.I(f"v_xor_b32 {v(TB + ct)}, {32 * ct}, {v(t1)}")
        for ct in range(4):
            a.I(f"v_add_u32 {v(TB + 4 + ct)}, 0x10000, {v(TB + ct)}")
            a.I(f"v_add_u32 {v(TB + 8 + ct)}, 0x20000, {v(TB + ct)}")

    def b_common():
        a.I("s_and_b32 s8, s2, 7")
        a.I("s_lshl_b32 s8, s8, 3")
        a.I("s_bfe_u32 s9, s2, 0x30003")
        a.I("s_or_b32 s8, s8, s9")
        a.I("s_lshr_b32 s9, s2, 6")
        a.I("s_lshr_b32 s66, s9, 1")
        a.I("s_lshl_b32 s66, s66, 11")
        a.I("s_lshr_b32 s10, s8, 5")
        a.I("s_lshl_b32 s10, s10, 10")
        a.I("s_add_u32 s66, s66, s10")
        a.I("s_and_b32 s10, s8, 31")
        a.I("s_lshl_b32 s10, s10, 4")
        a.I("s_add_u32 s66, s66, s10")
        a.I("s_and_b32 s10, s9, 1")
        a.I("s_lshl_b32 s10, s10, 9")
        a.I("s_add_u32 s66, s66, s10")

    HL, NF, BS, F2, TM, X1, X2, X3 = 70, 71, 72, 73, 74, 78, 79, 80
    C32, NS32, AR, AI, XF, D1R, D1I, TR, TI, D2 = 84, 92, 100, 104, 108, 116, 132, 148, 158, 168
    pc8 = [PERMC(j) for j in range(8)]

    def fft_loads(vm):
        a.I("s_lshr_b32 s10, s9, 1")
        a.I("s_lshl_b32 s10, s10, 4")
        a.I("s_and_b32 s11, s9, 1")
        a.I("s_lshl_b32 s11, s11, 2")
        a.I("s_add_u32 s10, s10, s11")
        a.I("s_lshr_b32 s11, s16, 1")
        a.I("s_lshl_b32 s11, s11, 3")
        a.I("s_add_u32 s10, s10, s11")
        a.I("s_and_b32 s11, s16, 1")
        a.I("s_lshl_b32 s11, s11, 1")
        a.I("s_add_u32 s10, s10, s11")
        a.I("s_lshl_b32 s10, s10, 6")
        a.I("s_add_u32 s10, s10, s8")
        a.I("s_lshl_b32 s10, s10, 10")
        a.I(f"s_add_u32 s11, s10, {65536 - 1024}")
        a.I(f"s_add_u32 s3, s47, {BLDS}")
        a.I("s_mov_b32 m0, s3")
        a.I(f"s_mov_b32 s62, {hex(2 * MB)}")
        a.I("s_mov_b32 s63, 0x20000")
        vm.issue(f"buffer_load_dwordx4 {v(L16)}, s[60:63], s10 offen{BP} lds", "bx")
        vm.issue(f"buffer_load_dwordx4 {v(L16)}, s[60:63], s11 offen offset:1024{BP} lds", "bx")

    def fft_compute(g):
        vm = g.vm
        a.I(f"v_lshrrev_b32 {v(X2)}, 5, v0")
        a.I(f"v_cvt_f32_u32 {v(HL)}, {v(X2)}")
        a.I(f"v_and_b32 {v(F2)}, 31, v0")
        a.I(f"v_cvt_f32_u32 {v(F2)}, {v(F2)}")
        a.I(f"v_mul_f32 {v(NF)}, {f32(1 / 32)}, {v(F2)}")
        a.I(f"v_mul_f32 {v(BS)}, {v(NF)}, {v(HL)}")
        a.I(f"v_mul_f32 {v(BS)}, {f32(8.0)}, {v(BS)}")
        nat = [16 * t + j for t in range(2) for j in range(8)]
        gen_mat(a, C32, NF, BS, nat, TM)
        a.I(f"v_add_f32 {v(BS)}, {f32(0.25)}, {v(BS)}")
        gen_mat(a, NS32, NF, BS, nat, TM)
        a.I(f"v_bfe_u32 {v(X1)}, v0, 4, 1")
        a.I(f"v_lshlrev_b32 {v(X1)}, 10, {v(X1)}")
        a.I(f"v_lshl_add_u32 {v(X1)}, {v(X2)}, 8, {v(X1)}")
        a.I(f"v_and_b32 {v(X3)}, 15, v0")
        a.I(f"v_lshl_add_u32 {v(X1)}, {v(X3)}, 3, {v(X1)}")
        a.I(f"v_add_u32 {v(X1)}, s3, {v(X1)}")
        vm.wait("bx")
        for t in range(2):
            for h in range(2):
                a.I(f"ds_read_b64_tr_b16 {v(XF + 4 * t + 2 * h, 2)}, {v(X1)} offset:{t * 512 + h * 128}")
        a.I(f"v_cvt_f32_u32 {v(X3)}, {v(X3)}")
        a.I(f"v_mul_f32 {v(NF)}, {f32(1 / 16)}, {v(X3)}")
        a.I(f"v_bfe_u32 {v(X1)}, v0, 4, 1")
        a.I(f"v_cvt_f32_u32 {v(X1)}, {v(X1)}")
        a.I(f"v_mul_f32 {v(BS)}, {v(NF)}, {v(HL)}")
        a.I(f"v_mul_f32 {v(BS)}, 4.0, {v(BS)}")
        a.I(f"v_fmamk_f32 {v(BS)}, {v(X1)}, {f32(0.25)}, {v(BS)}")
        a.I("s_waitcnt lgkmcnt(0)")
        for D, Mx in ((D1R, C32), (D1I, NS32)):
            for t in range(2):
                a.I(f"{MF} {v(D, 16)}, {v(XF + 4 * t, 4)}, {v(Mx + 4 * t, 4)}, {'0' if t == 0 else v(D, 16)}")
        gen_mat(a, AR, NF, BS, pc8, TM)
        a.I(f"v_add_f32 {v(BS)}, {f32(-0.25)}, {v(BS)}")
        gen_mat(a, AI, NF, BS, pc8, TM)
        a.I(f"v_mul_f32 {v(NF)}, {f32(1 / 512)}, {v(F2)}")
        a.I(f"v_mul_f32 {v(BS)}, {v(NF)}, {v(HL)}")
        a.I(f"v_mul_f32 {v(BS)}, 4.0, {v(BS)}")
        twiddle(a, D1R, D1I, [[j, j + 8] for j in range(8)], NF, BS, pc8, -1, TM)
        pack(a, TR, D1R, 8)
        pack(a, TI, D1I, 8)
        a.I(f"v_and_b32 {v(X3)}, 31, v0")
        a.I(f"v_lshlrev_b32 {v(X3)}, 4, {v(X3)}")
        for r in range(2):
            a.I(f"{MF} {v(D2 + 16 * r, 16)}, {v(AR, 4)}, {v(TR + 4 * r, 4)}, 0")
            a.I(f"{MF} {v(D2 + 16 * r, 16)}, {v(AI, 4)}, {v(TI + 4 * r, 4)}, {v(D2 + 16 * r, 16)}")
        a.I(f"v_lshl_add_u32 {v(X3)}, {v(X2)}, 11, {v(X3)}")
        a.I("s_lshl_b32 s10, s16, 2")
        a.I(f"s_add_u32 s11, s10, {BLDS + 8192}")
        a.I(f"v_add_u32 {v(X3)}, s11, {v(X3)}")
        a.I(f"v_mov_b32 {v(X2)}, s10")
        a.I(f"s_add_u32 s67, s66, {256 * 8192}")
        a.I(f"s_add_u32 s11, s66, {256 * 8192 + 4096}")
        srd(a, 60, 14, 15, 8 * MB, add=WS_Y)
        a.I("s_nop 1")
        for c in range(2):
            for j in range(5):
                a.I(f"v_cvt_pk_bf16_f32 {v(TR + 5 * c + j)}, {v(D2 + 8 * c + j)}, {v(D2 + 16 + 8 * c + j)}")
        for c in range(2):
            for j in range(4):
                a.I(f"ds_write_b32 {v(X3)}, {v(TR + 5 * c + j)} offset:{(c * 8 + j) * 512}")
        a.I = I0
        a.I("s_mov_b64 exec, 1")
        vm.issue(f"buffer_store_dword {v(TR + 4)}, {v(X2)}, s[60:63], s67 offen", "bs")
        vm.issue(f"buffer_store_dword {v(TR + 9)}, {v(X2)}, s[60:63], s11 offen", "bs")
        a.I("s_mov_b64 exec, -1")

    WFR, WFP, FX1, FX2, WF9 = 56, 52, 52, 53, 55

    def filt_setup():
        a.I("s_lshr_b32 s10, s9, 1")
        a.I("s_lshl_b32 s10, s10, 5")
        a.I("s_lshr_b32 s11, s8, 5")
        a.I("s_lshl_b32 s11, s11, 4")
        a.I("s_add_u32 s10, s10, s11")
        a.I("s_and_b32 s11, s9, 1")
        a.I("s_lshl_b32 s11, s11, 2")
        a.I("s_add_u32 s10, s10, s11")
        a.I("s_lshl_b32 s10, s10, 5")
        a.I("s_and_b32 s11, s8, 31")
        a.I("s_add_u32 s10, s10, s11")
        a.I("s_mul_i32 s19, s10, 514")
        a.I(f"v_lshlrev_b32 {v(FX1)}, 1, {v(TID)}")
        a.I(f"v_and_b32 {v(FX2)}, 3, v0")
        a.I(f"v_bfe_u32 {v(t1)}, v0, 2, 1")
        a.I(f"v_lshl_add_u32 {v(FX2)}, {v(t1)}, 3, {v(FX2)}")
        a.I(f"v_mul_u32_u24 {v(FX2)}, {32 * 514}, {v(FX2)}")
        a.I(f"v_add_u32 {v(FX2)}, 512, {v(FX2)}")
        a.I("s_cmp_ge_u32 s16, 4")
        a.I("s_cselect_b32 s8, s64, s0")
        a.I("s_cselect_b32 s9, s65, s1")
        a.I(f"s_mov_b32 s10, {2048 * 514}")
        a.I("s_mov_b32 s11, 0x20000")

    def filt_loads(g):
        for j in range(8):
            g.lq.append(([f"s_add_u32 s12, s19, {PERMC(j) * 32 * 514}"],
                         f"buffer_load_ushort {v(WFR + j)}, {v(FX1)}, s[8:11], s12 offen{BP}", "wf"))
        g.lq.append(([], f"buffer_load_ushort {v(WF9)}, {v(FX2)}, s[8:11], s19 offen{BP}", "wf"))

    def filt_finish(g):
        vm = g.vm
        L = [lambda: (g.flush("wf"), vm.wait("wf"), a.I(f"v_lshlrev_b32 {v(54)}, 1, v0"))]
        L.append(lambda: (a.I("s_mov_b64 exec, 0xff"),
                          vm.issue(f"buffer_store_short {v(WF9)}, {v(54)}, s[60:63], s67 offen", "bs"),
                          a.I("s_mov_b64 exec, -1")))
        for i in range(4):
            L.append(lambda i=i: a.I(f"v_lshl_or_b32 {v(WFP + i)}, {v(WFR + 1 + 2 * i)}, 16, {v(WFR + 2 * i)}"))
        return L

    def ys_calc():
        a.I("s_and_b32 s12, s16, 3")
        a.I("s_lshl_b32 s12, s12, 19")
        a.I(f"v_lshlrev_b32 {v(YS)}, 13, v0")
        a.I(f"v_add_u32 {v(YS)}, s12, {v(YS)}")

    def scat(g):
        g.vm.issue(f"buffer_store_dwordx4 {v(YD, 4)}, {v(YS)}, s[60:63], s66 offen", "bs")

    def scat_next():
        for i in range(4):
            a.I(f"v_mov_b32 {v(YD + i)}, {v(WFP + i)}")
        a.I(f"s_add_u32 s66, s66, {hex(WS_WF - WS_Y)}")

    YA, YD, YS = 56, 48, 23
    ACC, RING, PK, AFB = 192, 24, 56, 64
    LOOK = 4
    AHEAD = int(os.environ.get("AHEAD", "5"))

    def AF(rt, k):
        return AFB + (k * 2 + rt) * 4

    class Gen:
        def __init__(self, passes, nmerge, vmq):
            self.passes, self.nmerge = passes, nmerge
            self.vm, self.lg = VM(a), LG(a)
            self.vm.q = list(vmq)
            self.busy, self.nxt, self.dq, self.lq = {}, 0, [], []
            self.chunks, self.frags, self.groups = [], [], {}
            for pp in range(0, len(passes), 2):
                if pp // 2 < nmerge:
                    for kc in range(4):
                        c = len(self.chunks)
                        self.chunks += [(pp, kc), (pp + 1, kc)]
                        self.groups[len(self.frags)] = [c, c + 1]
                        for ks in range(4):
                            for h in range(2):
                                self.frags += [(c + h, ks, ct) for ct in range(4)]
                else:
                    for q in range(2):
                        for kc in range(4):
                            c = len(self.chunks)
                            self.chunks.append((pp + q, kc))
                            if GRP2 == 0:
                                self.groups[len(self.frags)] = [c]
                            elif kc % 2 == 0:
                                self.groups[len(self.frags)] = [c, c + 1]
                            self.frags += [(c, ks, ct) for ks in range(4) for ct in range(4)]
            self.prev = [[], []]
            self.b1busy = True
            self.skip_boundary = False

        def blk(self, c):
            nm = 8 * self.nmerge
            if c < nm:
                return 4 + 2 * ((c // 2) % 3) + (c & 1)
            if self.nmerge == 1:
                return [6, 7, 8, 9, 0, 1, 2, 3][(c - nm) % 8]
            return [8, 9, 4, 5, 0, 1, 2, 3][(c - nm) % 8]

        def dmaW(self, now, done):
            c = self.nxt
            if c >= len(self.chunks) or c > now + AHEAD:
                return False
            b = self.blk(c)
            if b in self.busy and self.busy[b] not in done:
                return False
            if b == 9 and self.b1busy:
                return False
            if b < 4 and now < 8 * self.nmerge:
                return False
            self.busy[b] = c
            self.nxt += 1
            pp, kc = self.chunks[c]
            form, wsel, wdi, osel, odi = self.passes[pp]
            sr = "s[32:35]" if wsel else "s[24:27]"
            for q in range(2):
                pre = [f"s_add_u32 m0, s47, {hex(b * 16384)}",
                       f"s_add_u32 s45, {'s53' if wsel else 's48'}, {hex((kc << 20) + wdi * 128)}"] if q == 0 else []
                self.dq.append((pre, f"buffer_load_dwordx4 {v(WV + q)}, {sr}, s45 offen offset:{q * 1024}{LP} lds", ("W", c)))
            return True

        def pump(self, n=1):
            for _ in range(n):
                q = self.dq or self.lq
                if q:
                    pre, ins, tag = q.pop(0)
                    a.many(pre)
                    self.vm.issue(ins, tag)
                    if tag == "pf":
                        a.I("s_mov_b64 exec, -1")

        def flush(self, tag=None):
            while any(tag is None or x[2] == tag for x in self.dq + self.lq):
                self.pump()

        def dmaA(self, j):
            sr = "s[56:59]" if j >= 8 else "s[20:23]"
            k = 0
            while k < len(self.dq) and not self.dq[k][0]:
                k += 1
            for i in range(4):
                pre = [f"s_add_u32 m0, s46, {hex((j % 2) * 4096)}", f"s_mov_b32 s45, {(j % 8) * 128}"] if i == 0 else []
                self.dq.insert(k + i, (pre, f"buffer_load_dwordx4 {v(AV + i)}, {sr}, s45 offen offset:{i * 1024}{AP} lds", ("A", j)))

        def readA(self, j):
            self.flush(("A", j))
            self.vm.wait(("A", j))
            for ks in range(2):
                for x in range(2):
                    self.lg.issue(f"ds_read_b128 {v(AF(x, 2 * (j % 8) + ks), 4)}, {v(AR_ + (ks ^ x))} "
                                  f"offset:{(j % 2) * 4096 + x * 1024}", ("A", j))

        def reads(self, i, halves=(0, 1)):
            c, ks, ct = self.frags[i]
            b = self.blk(c)
            base = TB + 4 * (b // 4) + ct
            off = (b % 4) * 16384 + ks * 4096
            d = RING + 4 * slot(i)
            for h in halves:
                self.lg.issue(f"ds_read_b64_tr_b16 {v(d + 2 * h, 2)}, {v(base)} offset:{off + 512 * h}", ("W", i))

        def sync(self, grp):
            for c in grp:
                self.flush(("W", c))
            self.vm.wait([("W", c) for c in grp])
            a.I("s_barrier")
            lo = self.prev[1][0] if self.prev[1] else 0
            done = set(range(lo))
            if self.prev[1]:
                self.b1busy = False
            self.prev = [self.prev[1], grp]
            while self.dmaW(grp[0], done):
                pass

        def acc(self, pp, rt, ct):
            return ACC + 32 * (pp & 1) + 4 * (4 * rt + ct)

        def epi(self, pp):
            out = []
            form, wsel, wdi, osel, u = self.passes[pp]
            so = 54 + (pp & 1)
            sr = "s[36:39]" if osel else "s[28:31]"
            def so_calc():
                a.I(f"s_add_u32 s{so}, {'s43' if osel else 's50'}, {(u & 1) * 4096}")
                assert (u >> 1) in (-1, 0, 1)
                if u >> 1:
                    a.I(f"s_{'add' if (u >> 1) > 0 else 'sub'}_u32 s{so}, s{so}, s92")
            out.append(so_calc)
            for q in range(4):
                pk = PK + 4 * (q % 2)
                if form == "K":
                    x, cp = divmod(q, 2)
                    srcs = [self.acc(pp, x, 2 * cp), self.acc(pp, x, 2 * cp + 1)]
                    off, va = x * 128 + cp * 2048, SK
                else:
                    srcs = [self.acc(pp, 0, q), self.acc(pp, 1, q)]
                    off, va = (q >> 1) * 2048 + (q & 1) * 256, SV
                for i in range(4):
                    src = srcs[i // 2] + 2 * (i % 2)
                    if form == "K" and MULM == "pk":
                        out.append(lambda src=src: a.I(f"v_pk_mul_f32 {v(src, 2)}, {v(src, 2)}, s[94:95]"))
                    elif form == "K" and MULM != "none":
                        out.append(lambda src=src: a.I(f"v_mul_f32 {v(src)}, s52, {v(src)}"))
                        out.append(lambda src=src: a.I(f"v_mul_f32 {v(src + 1)}, s52, {v(src + 1)}"))
                    out.append(lambda src=src, pk=pk, i=i: a.I(f"v_cvt_pk_bf16_f32 {v(pk + i)}, {v(src)}, {v(src + 1)}"))
                out.append(lambda pk=pk, va=va, off=off: self.vm.issue(
                    f"buffer_store_dwordx4 {v(pk, 4)}, {v(va)}, {sr}, s{so} offen offset:{off}{SP}", ("S", pp)))
            return out

        def boundary(self, pps):
            self.flush("pf")
            self.vm.wait("pf")
            ys_calc()
            a.I("s_nop 2")
            for pp in pps:
                for f in self.epi(pp):
                    f()

        def run(self, p0, p1):
            lg = self.lg
            NF_ = len(self.frags)
            NA = 8 * self.nmerge
            pend = []
            for i in range(64 * p0, 64 * p1):
                c, ks, ct = self.frags[i]
                pp, kc = self.chunks[c]
                k = 4 * kc + ks
                if i % 128 == 0 and 0 < i <= 128 * self.nmerge and not self.skip_boundary:
                    self.boundary([i // 64 - 2] + ([i // 64 - 1] if i < 128 * self.nmerge else []))
                if i % 2 == 0:
                    lg.wait([("W", i), ("W", i + 1), ("A", i // 16)])
                if i % 16 == 0 and i // 16 + 2 < NA:
                    self.dmaA(i // 16 + 2)
                wf = v(RING + 4 * slot(i), 4)
                j = i + LOOK
                for rt in range(2):
                    ac = v(self.acc(pp, rt, ct), 4)
                    af = v(AF(rt, k), 4)
                    cin = "0" if k == 0 else ac
                    if self.passes[pp][0] == "V":
                        a.I(f"{M16} {ac}, {af}, {wf}, {cin}")
                    else:
                        a.I(f"{M16} {ac}, {wf}, {af}, {cin}")
                    if j < NF_:
                        if rt == 0 and j in self.groups:
                            self.sync(self.groups[j])
                        if rt == 0 and j % 16 == 0 and j // 16 < NA:
                            self.readA(j // 16)
                        self.reads(j, (rt,))
                    if rt == 0 and pend:
                        pend.pop(0)()
                    if rt == 1 and i % 2 == 0:
                        if self.dq or self.lq:
                            self.pump(1)
                        elif pend:
                            pend.pop(0)()
                if i % 64 == 63:
                    assert not pend
                if i % 64 == 3 and i >= 128 * self.nmerge:
                    pend = self.epi(i // 64 - 1)
                if i == PF_AT:
                    w_prefetch(self)
                if i == LATE_AT:
                    filt_loads(self)
                if i == FILT_AT:
                    pend = filt_finish(self)
                if i >= 128 and i % 128 == SCAT_AT:
                    scat(self)
                if i >= 128 and i % 128 == 127:
                    scat_next()
                if i >= 128 * self.nmerge and i % 128 == CT_AT:
                    code_touch(a, "attn_kernel", 16, 8, AR_)
                if i in STF:
                    st()
            self.flush()

        def wo_load(self):
            blk = 4 if self.nmerge == 1 else 6
            srd(a, 8, 90, 91, 4 * MB)
            a.I("s_lshl_b32 s12, s2, 14")
            a.I("s_lshl_b32 s13, s16, 7")
            a.I("s_add_u32 s12, s12, s13")
            a.I(f"s_add_u32 s13, s12, {8192 - 1024}")
            a.I(f"s_add_u32 s17, s47, {blk * 16384}")
            a.I("s_mov_b32 m0, s17")
            a.I(f"v_lshrrev_b32 {v(AV)}, 3, v0")
            a.I(f"v_lshlrev_b32 {v(AV)}, 10, {v(AV)}")
            a.I(f"v_and_b32 {v(AV + 1)}, 7, v0")
            a.I(f"v_lshl_add_u32 {v(AV)}, {v(AV + 1)}, 4, {v(AV)}")
            self.vm.issue(f"buffer_load_dwordx4 {v(AV)}, s[8:11], s12 offen{BP} lds", "wo")
            self.vm.issue(f"buffer_load_dwordx4 {v(AV)}, s[8:11], s13 offen offset:1024{BP} lds", "wo")
            a.I(f"v_lshrrev_b32 {v(AV + 1)}, 5, v0")
            a.I(f"v_bfe_u32 {v(AV + 2)}, v0, 2, 2")
            a.I(f"v_lshl_add_u32 {v(AV + 1)}, {v(AV + 1)}, 2, {v(AV + 2)}")
            a.I(f"v_lshlrev_b32 {v(AV + 1)}, 7, {v(AV + 1)}")
            a.I(f"v_bfe_u32 {v(AV + 2)}, v0, 4, 1")
            a.I(f"v_lshl_add_u32 {v(AV + 1)}, {v(AV + 2)}, 5, {v(AV + 1)}")
            a.I(f"v_and_b32 {v(AV + 2)}, 3, v0")
            a.I(f"v_lshl_add_u32 {v(AV + 1)}, {v(AV + 2)}, 3, {v(AV + 1)}")
            a.I(f"v_add_u32 {v(AV + 1)}, s17, {v(AV + 1)}")
            a.I(f"v_lshlrev_b32 {v(AV + 2)}, 4, v0")
            a.I("s_lshl_b32 s17, s16, 19")
            a.I("s_lshl_b32 s13, s2, 11")
            a.I("s_add_u32 s17, s17, s13")

        def fin(self, pp):
            self.vm.wait("wo")
            for cb in range(2):
                for h in range(2):
                    a.I(f"ds_read_b64_tr_b16 {v(RING + 4 * cb + 2 * h, 2)}, {v(AV + 1)} offset:{cb * 64 + h * 1024}")
            srd(a, 8, 14, 15, 4 * MB, add=WS_WO)
            a.I("s_waitcnt lgkmcnt(0)")
            for cb in range(2):
                a.I(f"buffer_store_dwordx4 {v(RING + 4 * cb, 4)}, {v(AV + 2)}, s[8:11], s17 offen offset:{cb * 1024}{SP}")
            a.I("s_nop 0")
            for f in self.epi(pp):
                f()
            st.dump(16, 14, tmpv=24)
            a.I("s_endpgm")


    def slot(i):
        j = i % 128
        return j % 6 if j < 108 else (j - 108) % 5

    I0 = a.I
    cnt = [0]
    gp = [None]

    def Ipump(text):
        r = I0(text)
        if text.startswith("v_") and not text.startswith("v_mfma"):
            cnt[0] += 1
            if cnt[0] % PUMP == 0 and gp[0].dq:
                a.I = I0
                gp[0].pump()
                a.I = Ipump
        return r

    b_common()
    a.I("s_mov_b64 s[0:1], s[62:63]")
    g0 = Gen([("K", 0, i, 0, i) for i in range(2)], 1, [])
    a.I("s_cmp_ge_u32 s16, 4")
    a.I(f"s_cbranch_scc1 {N}_nofl")
    fft_loads(VM(a))
    a.label(f"{N}_nofl")
    for _ in range(2):
        g0.dmaW(0, set())
    g0.dmaA(0)
    PF0 = os.environ.get("PF0", "0")

    def pf0():
        a.I("s_mov_b64 exec, 0xffff")
        a.I("buffer_load_dword v58, v23, s[24:27], s48 offen")
        a.I("s_mov_b64 exec, -1")
    if PF0 == "1":
        pf0()
    g0.flush()
    if PF0 == "2":
        pf0()
    g0.dmaA(1)
    for _ in range(2):
        g0.dmaW(0, set())
    g0.flush()
    if os.environ.get("CT0", "1") != "1":
        code_touch(a, N, 16, 36, 60, kd=False)
    st()
    late_setup()
    addr_setup()
    g0.dmaW(0, set())
    a.I("s_cmp_ge_u32 s16, 4")
    a.I(f"s_cbranch_scc1 {N}_join")
    gf = Gen([("K", 0, i, 0, i) for i in range(2)], 1, ["bx", "bx"] + g0.vm.q)
    fft_compute(gf)
    a.label(f"{N}_join")
    filt_setup()
    if os.environ.get("L1PRIO"):
        a.I("s_cmp_lt_u32 s16, 4")
        a.I(f"s_cbranch_scc1 {N}_np")
        a.I(f"s_setprio {os.environ['L1PRIO']}")
        a.label(f"{N}_np")
    srd(a, 60, 14, 15, 8 * MB, add=WS_Y)
    vmq = list(g0.vm.q)
    st()
    stn = st.n
    def y_prep():
        a.I(f"v_lshlrev_b32 {v(YA)}, 4, {v(TID)}")
        a.I("s_lshr_b32 s12, s16, 2")
        a.I("s_lshl_b32 s12, s12, 12")
        a.I("s_add_u32 s66, s66, s12")
        a.I(f"s_add_u32 s67, s66, {256 * 8192 + WS_WF - WS_Y}")
        a.I(f"s_add_u32 s12, s12, {BLDS + 8192}")
        a.I(f"v_add_u32 {v(YA)}, s12, {v(YA)}")

    y_prep()

    def mkgen(passes, nmerge=1):
        g = Gen(passes, nmerge, vmq)
        g.busy, g.nxt, g.dq = dict(g0.busy), g0.nxt, list(g0.dq)
        st.n = stn
        return g

    def start(g):
        a.I("s_waitcnt lgkmcnt(0)")
        g.readA(0)
        g.sync(g.groups[0])
        st()
        g.lg.issue(f"ds_read_b128 {v(YD, 4)}, {v(YA)}", "y")
        for i in range(LOOK):
            g.reads(i)

    def capture(fn):
        n0 = len(a.items)
        fn()
        seg = a.items[n0:]
        del a.items[n0:]
        return seg

    def merge(s1, s2):
        import asmlib
        isv = lambda x: x[0] == "i" and x[1].text.startswith("s_waitcnt vmcnt")
        out, i, j = [], 0, 0
        while i < len(s1) or j < len(s2):
            x = s1[i] if i < len(s1) else None
            y = s2[j] if j < len(s2) else None
            if x is not None and y is not None and isv(x) and isv(y):
                n = min(int(x[1].text[16:-1]), int(y[1].text[16:-1]))
                out.append(("i", asmlib.Ins(f"s_waitcnt vmcnt({n})")))
                i += 1
                j += 1
            elif x is not None and isv(x):
                out.append(x)
                i += 1
            elif y is not None and isv(y):
                out.append(y)
                j += 1
            else:
                assert x[1].text == y[1].text, (x[1].text, y[1].text)
                out.append(x)
                i += 1
                j += 1
        return out

    def looped(F, lab):
        def plist(pair):
            L = []
            for pp in range(8):
                if pair == 0:
                    L.append((F, 0, pp, 0, pp))
                else:
                    rel = pp - pair
                    L.append((F, 1 if rel >= 2 else 0, rel - 2 if rel >= 2 else rel, 0, rel))
            return L
        g = mkgen(plist(0))
        start(g)
        g.run(0, 2)
        g.boundary([0])
        g.skip_boundary = True
        g.wo_load()
        st()
        a.I("s_add_u32 s48, s48, 256")
        a.I("s_add_u32 s50, s50, s92")
        a.I("s_mov_b32 s44, 0")
        g.passes = plist(2)
        s1 = capture(lambda: g.run(2, 4))
        g.passes = plist(4)
        s2 = capture(lambda: g.run(4, 6))
        a.label(lab + "_loop")
        mg = merge(s1, s2)
        drop = os.environ.get("DROP", "").split(",")

        def keep(x):
            if x[0] != "i":
                return True
            tx = x[1].text
            if "dma" in drop and tx.endswith(" lds"):
                return False
            if "st" in drop and tx.startswith("buffer_store"):
                return False
            if "valu" in drop and x[1].cls == "valu":
                return False
            if "bar" in drop and tx == "s_barrier":
                return False
            if "rd" in drop and tx.startswith("ds_read"):
                return False
            if "vw" in drop and tx.startswith("s_waitcnt vm"):
                return False
            if "lw" in drop and tx.startswith("s_waitcnt lg"):
                return False
            return True
        a.items += [x for x in mg if keep(x)]
        if F == "K":
            a.I("s_cmp_eq_u32 s18, 10")
            a.I(f"s_cbranch_scc1 {N}_Ctail")
        a.I("s_mov_b32 s48, s53")
        a.I("s_mov_b32 s34, 0")
        a.I("s_add_u32 s50, s50, s92")
        a.I("s_add_u32 s44, s44, 1")
        a.I("s_cmp_lt_u32 s44, 2")
        a.I(f"s_cbranch_scc1 {lab}_loop")
        g.passes = plist(6)
        g.fin(5)
        return g

    a.I("s_cmp_eq_u32 s18, 31")
    a.I(f"s_cbranch_scc1 {N}_D")
    a.I("s_cmp_eq_u32 s41, 1")
    a.I(f"s_cbranch_scc1 {N}_B")
    looped("K", N + "_A")
    a.label(f"{N}_Ctail")
    gc = mkgen([("K", 0, pp, 0, pp) for pp in range(4)] + [("V", 1, 0, 1, 0), ("V", 1, 1, 1, 1)])
    capture(lambda: (start(gc), gc.run(0, 2), gc.wo_load(), gc.run(2, 4)))
    gc.passes[3] = ("K", 0, 1, 0, 1)
    st.n = stn + 5
    gc.run(4, 6)
    gc.fin(5)
    a.label(N + "_B")
    looped("V", N + "_B2")
    a.label(N + "_D")
    gd = mkgen([("V", 0, 0, 0, 0), ("V", 0, 1, 0, 1)] + [("K", 1, i, 1, i) for i in range(4)], 2)
    start(gd)
    gd.run(0, 2)
    st()
    gd.run(2, 5)
    gd.wo_load()
    gd.run(5, 6)
    gd.fin(5)
    kend(a, N)
    return a, N, (256, 512, 163840)


def gen_l3():
    a = Asm()
    N = "l3_kernel"
    kstart(a, N, 256)
    a.I("s_load_dwordx2 s[4:5], s[0:1], 88")
    a.I("s_load_dwordx2 s[8:9], s[0:1], 72")
    a.I("v_lshrrev_b32 v1, 6, v0")
    a.I("v_and_b32 v2, 255, v0")
    a.I("v_and_b32 v0, 63, v0")
    a.I("v_readfirstlane_b32 s17, v1")
    st = Stamper(a, "l3")
    WF, ACCS, RING, L16, LR, CMB = 128, [68, 84], 100, 124, 125, 127
    LOOK = 5
    a.I("s_bfe_u32 s40, s2, 0x20001")
    a.I("s_and_b32 s43, s2, 1")
    a.I("s_lshl_b32 s43, s43, 5")
    a.I("s_lshr_b32 s44, s2, 3")
    a.I("s_add_u32 s43, s43, s44")
    a.I("s_lshr_b32 s41, s43, 2")
    a.I("s_and_b32 s42, s43, 3")
    a.I("s_and_b32 s16, s17, 3")
    a.I("s_lshr_b32 s18, s17, 2")
    a.I(f"v_lshlrev_b32 {v(L16)}, 4, v0")
    a.I("s_lshl_b32 s45, s42, 1")
    a.I("s_lshr_b32 s46, s16, 1")
    a.I("s_add_u32 s45, s45, s46")
    a.I("s_lshl_b32 s45, s45, 19")
    a.I("s_lshl1_add_u32 s46, s40, s18")
    a.I("s_lshl_b32 s46, s46, 16")
    a.I("s_add_u32 s45, s45, s46")
    a.I("s_and_b32 s46, s16, 1")
    a.I("s_lshl_b32 s46, s46, 10")
    a.I("s_add_u32 s45, s45, s46")
    a.I(f"s_add_u32 s45, s45, {hex(WS_WO)}")
    a.I("s_lshl_b32 s47, s18, 15")
    a.I("s_lshl_b32 s48, s16, 10")
    a.I("s_add_u32 s47, s47, s48")
    a.I("s_lshl_b32 s46, s41, 20")
    a.I("s_lshl_b32 s48, s40, 16")
    a.I("s_add_u32 s46, s46, s48")
    a.I("s_add_u32 s46, s46, s47")
    a.I(f"s_add_u32 s46, s46, {hex(WS_CTX)}")
    a.I("s_lshl_b32 s48, s18, 15")
    a.I(f"v_add_u32 {v(LR)}, s48, {v(L16)}")
    a.I(f"v_add_u32 {v(LR + 1)}, 0x10000, {v(LR)}")
    a.I("s_lshl_b32 s48, s16, 12")
    a.I(f"s_add_u32 s48, s48, {131072}")
    a.I(f"v_add_u32 {v(CMB)}, s48, {v(L16)}")
    a.I("s_waitcnt lgkmcnt(0)")
    srd(a, 52, 4, 5, 64 * MB)
    st()
    vm, lg = VM(a), LG(a)

    def sub_off(n, dst):
        a.I(f"s_add_u32 {s(dst)}, s40, {n + 1}")
        a.I(f"s_and_b32 {s(dst)}, {s(dst)}, 3")
        a.I(f"s_lshl_b32 {s(dst)}, {s(dst)}, 18")
        a.I(f"s_add_u32 {s(dst)}, {s(dst)}, s46")

    for n in range(4):
        sub_off(n, 36 + n)

    def cdma(n, i):
        return [lambda: (a.I(f"s_add_u32 m0, s47, {(n & 1) * 65536 + i * 4096}"),
                         a.I(f"s_add_u32 s49, s{36 + n}, {i * 4096}"),
                         vm.issue(f"buffer_load_dwordx4 {v(L16)}, s[52:55], s49 offen lds", ("C", n, i // 2)))]

    def wload(g):
        def f():
            if g % 2 == 0 and g:
                a.I("s_add_u32 s45, s45, 4096")
            vm.issue(f"buffer_load_dwordx4 {v(WF + 4 * g, 4)}, {v(L16)}, s[52:55], s45 offen offset:{(g % 2) * 2048}", ("W", g))
        return [f]

    pend = []
    for c in range(4):
        for i in (2 * c, 2 * c + 1):
            pend += cdma(0, i) + cdma(1, i)
        for g in range(8 * c, 8 * c + 8):
            pend += wload(g)
    tags = []
    for c in range(4):
        tags += [("C", 0, c), ("C", 1, c)] * 2 + [("W", g) for g in range(8 * c, 8 * c + 8)]
    ptag = list(tags)

    def pump(k=1):
        for _ in range(k):
            if pend:
                pend.pop(0)()
                ptag.pop(0)

    def need(tg):
        while any(x in ptag for x in tg):
            pump()

    pump(PRE3)
    b3_loads(a, 8)
    srd(a, 56, 4, 5, 16 * MB, add=WS_PART)
    srd(a, 60, 4, 5, 64 * 128, add=WS_FLAG)
    a.I("s_lshl_b32 s64, s43, 7")
    a.I("s_lshl2_add_u32 s67, s40, s64")
    LA, LB_ = 28, 29
    a.I("s_lshl_b32 s48, s18, 16")
    a.I(f"v_add_u32 {v(LA)}, s48, {v(LR)}")
    a.I(f"v_xor_b32 {v(LB_)}, 0x10000, {v(LA)}")
    st()
    AC = [68, 84, 32]
    sched = []
    for g in range(32):
        sched += [(AC[0], LA, g), (AC[1], LB_, g)]
    sched += [(AC[2], LR, g) for g in range(32)] + [(AC[1], LR + 1, g) for g in range(32)]

    def read(i):
        lg.issue(f"ds_read_b128 {v(RING + 4 * (i % 6), 4)}, {v(sched[i][1])} offset:{sched[i][2] * 1024}", i)

    def sync(tg):
        need(tg)
        vm.wait(tg)
        a.I("s_barrier")

    TMP = 48

    def slot_calc(own_expr):
        a.I(own_expr)
        a.I("s_and_b32 s50, s50, 3")
        a.I("s_lshl2_add_u32 s50, s43, s50")
        a.I("s_lshl2_add_u32 s50, s50, s40")
        a.I("s_lshl2_add_u32 s50, s50, s16")
        a.I("s_lshl_b32 s50, s50, 12")

    def give_l(A, addr, off):
        for q in range(4):
            a.I(f"ds_write_b128 {v(addr)}, {v(A + 4 * q, 4)} offset:{off + q * 1024}")

    def take_l(A, addr, off, model=False):
        for q in range(4):
            a.I(f"ds_read_b128 {v(TMP + 4 * q, 4)}, {v(addr)} offset:{off + q * 1024}")
        a.I("s_waitcnt lgkmcnt(0)")
        for j in range(16):
            a.I(f"v_add_f32 {v(A + j)}, {v(A + j)}, {v(TMP + j)}")
        for q in range(4):
            x = f"buffer_store_dwordx4 {v(A + 4 * q, 4)}, {v(L16)}, s[56:59], s50 offen offset:{q * 1024} sc1"
            vm.issue(x, "P") if model else a.I(x)

    def give(n):
        lab = a.uid(f"{N}_g")
        a.I(f"s_cmp_eq_u32 s18, {n & 1}")
        a.I(f"s_cbranch_scc1 {lab}")
        give_l(AC[2] if n == 2 else AC[1], CMB, (n & 1) * 16384)
        a.label(lab)
        a.I("s_waitcnt lgkmcnt(0)")
        lg.q = []

    sync([("C", 0, 0), ("C", 1, 0)])
    st()
    for i in range(LOOK):
        read(i)
    for i in range(128):
        ac, _, g = sched[i]
        lg.wait(i)
        if i < 64:
            need([("W", g)])
            vm.wait(("W", g))
        first = g == 0
        a.I(f"{MF} {v(ac, 16)}, {v(WF + 4 * g, 4)}, {v(RING + 4 * (i % 6), 4)}, {'0' if first else v(ac, 16)}")
        j = i + LOOK
        if j < 128:
            if j < 64 and j % 16 == 0:
                c = j // 16
                sync([("C", 0, c), ("C", 1, c)])
                if c >= 2:
                    for n in (2, 3):
                        for k in (2 * (c - 2), 2 * (c - 2) + 1):
                            pend.extend(cdma(n, k))
                            ptag.append(("C", n, c - 2))
            elif j >= 64 and j % 16 == 0:
                sync([("C", j // 32, (j % 32) // 8 + c) for c in range(2)])
            read(j)
        if i in (31, 63, 75, 95, 107):
            st()
        if j == 64:
            for n in (2, 3):
                for k in (4, 5):
                    pend.extend(cdma(n, k))
                    ptag.append(("C", n, 2))
        if i == 64 + 5:
            a.I("s_lshl_b32 s48, s18, 14")
            a.I(f"v_add_u32 v30, s48, {v(CMB)}")
            a.I("v_xor_b32 v31, 0x4000, v30")
            give_l(AC[1], 31, 0)
            a.I("s_add_u32 s51, s18, 1")
            slot_calc("s_add_u32 s50, s40, s51")
            a.I("s_waitcnt lgkmcnt(0)")
            lg.q = []
            a.I("s_barrier")
            for n in (2, 3):
                for k in (6, 7):
                    pend.extend(cdma(n, k))
                    ptag.append(("C", n, 3))
            need([("C", 3, 3)])
            take_l(AC[0], 30, 0, True)
        if i == 96 + 5:
            vm.wait([("C", 3, 2), ("C", 3, 3)])
            give(2)
            a.I("s_barrier")
            a.I("s_cmp_lg_u32 s18, 0")
            a.I(f"s_cbranch_scc1 {N}_t2")
            slot_calc("s_add_u32 s50, s40, 3")
            take_l(AC[2], CMB, 0)
            a.label(f"{N}_t2")
        pump(2 if i < 64 else 1)
    st()
    LW = 32768
    a.I("v_mov_b32 v1, 0")
    a.I("v_mov_b32 v30, %d" % LW)
    a.I("ds_write_b32 v30, v1")
    a.I("v_mov_b32 v1, 1")
    a.I("s_nop 7")
    give(3)
    a.I("s_waitcnt vmcnt(0)")
    a.I("s_barrier")
    a.I("s_cmp_eq_u32 s18, 1")
    a.I(f"s_cbranch_scc1 {N}_fin")
    a.I("s_cmp_lg_u32 s17, 0")
    a.I(f"s_cbranch_scc1 {N}_nosig")
    a.I("s_mov_b64 exec, 1")
    a.I("buffer_store_dword v1, off, s[60:63], s67 sc1")
    a.I("s_mov_b64 exec, -1")
    a.label(f"{N}_nosig")
    b3_body(a, 0, 8, loaded=True)
    a.I("s_endpgm")
    a.label(f"{N}_fin")
    A = ACCS[1]
    a.I("s_lshl2_add_u32 s50, s43, s40")
    a.I("s_lshl_b32 s50, s50, 4")
    a.I("s_add_u32 s50, s50, s16")
    a.I("s_lshl_b32 s50, s50, 12")
    a.I("v_and_b32 v3, 31, v0")
    a.I("v_lshlrev_b32 v3, 11, v3")
    a.I("v_lshrrev_b32 v4, 5, v0")
    a.I("v_lshl_add_u32 v3, v4, 4, v3")
    a.I("s_lshl2_add_u32 s65, s41, s40")
    a.I("s_lshl_b32 s65, s65, 16")
    a.I("s_lshl_b32 s66, s42, 8")
    a.I("s_add_u32 s65, s65, s66")
    a.I("s_lshl_b32 s66, s16, 6")
    a.I("s_add_u32 s65, s65, s66")
    srd(a, 52, 8, 9, 4 * MB)
    a.I(f"v_mov_b32 v5, {LW}")
    for q in range(4):
        a.I(f"ds_read_b128 {v(WF + 4 * q, 4)}, {v(CMB)} offset:{16384 + q * 1024}")
    POLL = os.environ.get("POLL", "1")
    a.I("s_mov_b32 s44, 0")
    if POLL == "1":
        a.I("s_cmp_lg_u32 s17, 4")
        a.I(f"s_cbranch_scc1 {N}_lspin")
    a.label(f"{N}_spin")
    a.I("buffer_load_dwordx4 v[4:7], off, s[60:63], s64 sc1")
    a.I("s_waitcnt vmcnt(0)")
    a.I("v_and_b32 v4, v4, v5")
    a.I("v_and_b32 v6, v6, v7")
    a.I("v_and_b32 v4, v4, v6")
    a.I("s_nop 0")
    a.I("v_readfirstlane_b32 s66, v4")
    a.I("s_nop 0")
    a.I("s_cmp_eq_u32 s66, 1")
    a.I(f"s_cbranch_scc1 {N}_got")
    a.I("s_sleep 2")
    a.I("s_add_u32 s44, s44, 1")
    a.I("s_cmp_lt_u32 s44, 0x100000")
    a.I(f"s_cbranch_scc1 {N}_spin")
    a.I(f"s_branch {N}_got")
    if POLL == "1":
        a.label(f"{N}_lspin")
        a.I("ds_read_b32 v4, v5")
        a.I("s_waitcnt lgkmcnt(0)")
        a.I("v_readfirstlane_b32 s66, v4")
        a.I("s_nop 0")
        a.I("s_cmp_eq_u32 s66, 1")
        a.I(f"s_cbranch_scc1 {N}_got2")
        a.I("s_sleep 1")
        a.I(f"s_branch {N}_lspin")
    a.label(f"{N}_got")
    if POLL == "1":
        a.I(f"v_mov_b32 v5, {LW}")
        a.I("ds_write_b32 v5, v1")
        a.label(f"{N}_got2")
    st()
    for k in range(1, 4):
        a.I(f"s_add_u32 s66, s40, {k}")
        a.I("s_and_b32 s66, s66, 3")
        a.I("s_lshl_b32 s66, s66, 14")
        a.I("s_add_u32 s66, s66, s50")
        for q in range(4):
            a.I(f"buffer_load_dwordx4 {v(WF + 16 * k + 4 * q, 4)}, {v(L16)}, s[56:59], s66 offen offset:{q * 1024} sc1")
    a.I("s_waitcnt lgkmcnt(0)")
    a.I("s_barrier")
    for k in range(4):
        if k:
            a.I(f"s_waitcnt vmcnt({4 * (3 - k)})")
        for j in range(16):
            a.I(f"v_add_f32 {v(A + j)}, {v(A + j)}, {v(WF + 16 * k + j)}")
    pack(a, 8, A, 8)
    a.I("s_nop 1")
    for h in range(2):
        a.I(f"v_permlane32_swap_b32 {v(8 + 4 * h)}, {v(10 + 4 * h)}")
        a.I(f"v_permlane32_swap_b32 {v(9 + 4 * h)}, {v(11 + 4 * h)}")
        a.I(f"buffer_store_dwordx4 {v(8 + 4 * h, 4)}, v3, s[52:55], s65 offen offset:{32 * h}{os.environ.get('OPA', ' nt')}")
    st.dump(17, 4, tmpv=16)
    kend(a, N)
    return a, N, (256, 512, 163840)


def gen_l3v3():
    a = Asm()
    N = "l3_kernel"
    kstart(a, N, 256)
    a.I("s_load_dwordx2 s[4:5], s[0:1], 88")
    a.I("s_load_dwordx2 s[8:9], s[0:1], 72")
    a.I("v_lshrrev_b32 v1, 6, v0")
    a.I("v_and_b32 v2, 255, v0")
    a.I("v_and_b32 v0, 63, v0")
    a.I("v_readfirstlane_b32 s17, v1")
    st = Stamper(a, "l3")
    WF, ACCS, RING, L16, LR, CMB = 128, [68, 84], 100, 124, 125, 127
    LOOK = 5
    a.I("s_bfe_u32 s40, s2, 0x20001")
    a.I("s_and_b32 s43, s2, 1")
    a.I("s_lshl_b32 s43, s43, 5")
    a.I("s_lshr_b32 s44, s2, 3")
    a.I("s_add_u32 s43, s43, s44")
    a.I("s_lshr_b32 s41, s43, 2")
    a.I("s_and_b32 s42, s43, 3")
    a.I("s_and_b32 s16, s17, 3")
    a.I("s_lshr_b32 s18, s17, 2")
    a.I(f"v_lshlrev_b32 {v(L16)}, 4, v0")
    a.I("s_lshl_b32 s45, s42, 1")
    a.I("s_lshr_b32 s46, s16, 1")
    a.I("s_add_u32 s45, s45, s46")
    a.I("s_lshl_b32 s45, s45, 19")
    a.I("s_lshl1_add_u32 s46, s40, s18")
    a.I("s_lshl_b32 s46, s46, 16")
    a.I("s_add_u32 s45, s45, s46")
    a.I("s_and_b32 s46, s16, 1")
    a.I("s_lshl_b32 s46, s46, 10")
    a.I("s_add_u32 s45, s45, s46")
    a.I(f"s_add_u32 s45, s45, {hex(WS_WO)}")
    a.I("s_lshl_b32 s47, s18, 15")
    a.I("s_lshl_b32 s48, s16, 10")
    a.I("s_add_u32 s47, s47, s48")
    a.I("s_lshl_b32 s46, s41, 20")
    a.I("s_lshl_b32 s48, s40, 16")
    a.I("s_add_u32 s46, s46, s48")
    a.I("s_add_u32 s46, s46, s47")
    a.I(f"s_add_u32 s46, s46, {hex(WS_CTX)}")
    a.I("s_lshl_b32 s47, s18, 13")
    a.I("s_lshl_b32 s48, s16, 10")
    a.I("s_add_u32 s47, s47, s48")
    a.I("s_lshl_b32 s48, s18, 13")
    a.I(f"v_add_u32 {v(LR)}, s48, {v(L16)}")
    a.I(f"v_add_u32 {v(LR + 1)}, 0x10000, {v(LR)}")
    a.I("s_lshl_b32 s48, s16, 12")
    a.I(f"v_add_u32 {v(CMB)}, s48, {v(L16)}")
    a.I("s_waitcnt lgkmcnt(0)")
    srd(a, 52, 4, 5, 64 * MB)
    st()
    vm, lg = VM(a), LG(a)

    def sub_off(n, dst):
        a.I(f"s_add_u32 {s(dst)}, s40, {n + 1}")
        a.I(f"s_and_b32 {s(dst)}, {s(dst)}, 3")
        a.I(f"s_lshl_b32 {s(dst)}, {s(dst)}, 18")
        a.I(f"s_add_u32 {s(dst)}, {s(dst)}, s46")

    PB16 = int(os.environ.get("PB16", "1"))
    for n in range(4):
        sub_off(n, 36 + n)

    def cslot(n, c):
        return (n * 2 + c % 2) * 16384 if n < 3 else 98304 + c * 16384

    pend, ptag = [], []

    def cdma(n, i):
        pend.append(lambda: (a.I(f"s_add_u32 m0, s47, {cslot(n, i // 2) + (i % 2) * 4096}"),
                             a.I(f"s_add_u32 s49, s{36 + n}, {i * 4096}"),
                             vm.issue(f"buffer_load_dwordx4 {v(L16)}, s[52:55], s49 offen lds", ("C", n, i // 2))))
        ptag.append(("C", n, i // 2))

    def wload(g):
        def f():
            if g % 2 == 0 and g:
                a.I("s_add_u32 s45, s45, 4096")
            vm.issue(f"buffer_load_dwordx4 {v(WF + 4 * g, 4)}, {v(L16)}, s[52:55], s45 offen offset:{(g % 2) * 2048}", ("W", g))
        pend.append(f)
        ptag.append(("W", g))

    def pump(k=1):
        for _ in range(k):
            if pend:
                pend.pop(0)()
                ptag.pop(0)

    def need(tg):
        while any(x in ptag for x in tg):
            pump()

    for c in range(2):
        for n in range(3):
            cdma(n, 2 * c)
            cdma(n, 2 * c + 1)
        for g in range(8 * c, 8 * c + 8):
            wload(g)
    for g in range(16, 24):
        wload(g)
    pump(PRE3)
    srd(a, 56, 4, 5, 16 * MB, add=WS_PART)
    srd(a, 60, 4, 5, 64 * 128, add=WS_FLAG)
    a.I("s_lshl_b32 s64, s43, 7")
    a.I("s_lshl2_add_u32 s67, s40, s64")
    LA, LB_, LO = 28, 29, 30
    a.I("s_lshl_b32 s48, s18, 15")
    a.I(f"v_add_u32 {v(LA)}, s48, {v(LR)}")
    a.I(f"v_xor_b32 {v(LB_)}, 0x8000, {v(LA)}")
    a.I(f"v_add_u32 {v(LO)}, {98304}, {v(LR)}")
    st()
    AC = [68, 84, 32]
    sched = []
    for g in range(32):
        o = ((g // 8) % 2) * 16384 + (g % 8) * 1024
        sched += [(AC[0], LA, o, g), (AC[1], LB_, o, g), (AC[2], LR + 1, o, g)]
    OWN = 48
    sched += [(OWN, LO, (g // 8) * 16384 + (g % 8) * 1024, g) for g in range(32)]

    def read(i):
        lg.issue(f"ds_read_b128 {v(RING + 4 * (i % 6), 4)}, {v(sched[i][1])} offset:{sched[i][2]}", i)

    def sync(tg):
        need(tg)
        vm.wait(tg)
        a.I("s_barrier")

    def slot_calc(dst, own_expr):
        a.I(own_expr)
        a.I(f"s_and_b32 {s(dst)}, {s(dst)}, 3")
        a.I(f"s_lshl2_add_u32 {s(dst)}, s43, {s(dst)}")
        a.I(f"s_lshl2_add_u32 {s(dst)}, {s(dst)}, s40")
        a.I(f"s_lshl2_add_u32 {s(dst)}, {s(dst)}, s16")
        a.I(f"s_lshl_b32 {s(dst)}, {s(dst)}, 12")

    def give_l(A, addr, off):
        for q in range(4):
            a.I(f"ds_write_b128 {v(addr)}, {v(A + 4 * q, 4)} offset:{off + q * 1024}")

    def take_l(A, T, addr, off, so):
        for q in range(4):
            a.I(f"ds_read_b128 {v(T + 4 * q, 4)}, {v(addr)} offset:{off + q * 1024}")
        a.I("s_waitcnt lgkmcnt(0)")
        for j in range(16):
            a.I(f"v_add_f32 {v(A + j)}, {v(A + j)}, {v(T + j)}")
        if PB16:
            pack(a, T, A, 8)
            for q in range(2):
                a.I(f"buffer_store_dwordx4 {v(T + 4 * q, 4)}, {v(L16)}, s[56:59], {s(so)} offen offset:{q * 1024} sc1")
        else:
            for q in range(4):
                a.I(f"buffer_store_dwordx4 {v(A + 4 * q, 4)}, {v(L16)}, s[56:59], {s(so)} offen offset:{q * 1024} sc1")

    sync([("C", n, 0) for n in range(3)])
    st()
    for i in range(LOOK):
        read(i)
    NM = 128
    for i in range(NM):
        ac, _, _, g = sched[i]
        lg.wait(i)
        if i < 96:
            need([("W", g)])
            vm.wait(("W", g))
        a.I(f"{MF} {v(ac, 16)}, {v(WF + 4 * g, 4)}, {v(RING + 4 * (i % 6), 4)}, {'0' if g == 0 else v(ac, 16)}")
        j = i + LOOK
        if j < NM:
            if j < 96 and j % 24 == 0:
                sync([("C", n, j // 24) for n in range(3)])
            elif j == 96:
                sync([("C", 3, c) for c in range(4)])
            read(j)
        if i in (25, 49):
            c = i // 24
            a.I("s_barrier")
            for n in range(3):
                cdma(n, 2 * (c + 1))
                cdma(n, 2 * (c + 1) + 1)
            if c == 1:
                for g2 in range(24, 32):
                    wload(g2)
            else:
                for k in range(8):
                    cdma(3, k)
        if i == B3AT:
            n0 = len(a.items)
            b3_loads(a, 8, before=lambda: (a.I("s_cmp_lg_u32 s18, 0"), a.I(f"s_cbranch_scc1 {N}_nb3l")))
            a.items[n0:] = [x for x in a.items[n0:] if not (x[0] == "i" and x[1].text == "s_waitcnt lgkmcnt(0)")]
            a.label(f"{N}_nb3l")
        if i in (47, 95, 107):
            st()
        if i == 96 + 4:
            a.I("s_lshl_b32 s48, s18, 15")
            a.I(f"v_add_u32 {v(LA)}, s48, {v(CMB)}")
            a.I(f"v_xor_b32 {v(LB_)}, 0x8000, {v(LA)}")
            a.I(f"v_add_u32 v31, 0x10000, {v(CMB)}")
            give_l(AC[1], LB_, 0)
            a.I("s_cmp_eq_u32 s18, 0")
            a.I(f"s_cbranch_scc1 {N}_g2")
            give_l(AC[2], 31, 0)
            a.label(f"{N}_g2")
            a.I("s_add_u32 s51, s18, 1")
            slot_calc(50, "s_add_u32 s50, s40, s51")
            slot_calc(51, "s_add_u32 s51, s40, 3")
            a.I("s_waitcnt lgkmcnt(0)")
            lg.q = []
            a.I("s_barrier")
            take_l(AC[0], AC[1], LA, 0, 50)
            a.I("s_cmp_lg_u32 s18, 0")
            a.I(f"s_cbranch_scc1 {N}_t2")
            take_l(AC[2], AC[0], 31, 0, 51)
            a.label(f"{N}_t2")
        if i == SIG3:
            a.I("v_mov_b32 v1, 1")
            a.I("s_waitcnt vmcnt(0)")
            a.I("s_barrier")
            a.I("s_cmp_lg_u32 s17, 0")
            a.I(f"s_cbranch_scc1 {N}_nosig")
            a.I("s_mov_b64 exec, 1")
            a.I("buffer_store_dword v1, off, s[60:63], s67 sc1")
            a.I("s_mov_b64 exec, -1")
            a.label(f"{N}_nosig")
        pump(2 if i < 96 else 1)

    def give(n):
        lab = a.uid(f"{N}_g")
        a.I("s_cmp_eq_u32 s18, 1")
        a.I(f"s_cbranch_scc1 {lab}")
        give_l(OWN, CMB, 49152)
        a.label(lab)
        a.I("s_waitcnt lgkmcnt(0)")

    st()
    LW = 65536 + 16384
    a.I("v_mov_b32 v1, 0")
    a.I("v_mov_b32 v30, %d" % LW)
    a.I("ds_write_b32 v30, v1")
    a.I("v_mov_b32 v1, 1")
    a.I("s_nop 7")
    give(3)
    a.I("s_barrier")
    a.I("s_cmp_eq_u32 s18, 1")
    a.I(f"s_cbranch_scc1 {N}_fin")
    b3_body(a, 65536, 8, loaded=True)
    a.I("s_endpgm")
    a.label(f"{N}_fin")
    A = OWN
    a.I("s_lshl2_add_u32 s50, s43, s40")
    a.I("s_lshl_b32 s50, s50, 4")
    a.I("s_add_u32 s50, s50, s16")
    a.I("s_lshl_b32 s50, s50, 12")
    a.I("v_and_b32 v3, 31, v0")
    a.I("v_lshlrev_b32 v3, 11, v3")
    a.I("v_lshrrev_b32 v4, 5, v0")
    a.I("v_lshl_add_u32 v3, v4, 4, v3")
    a.I("s_lshl2_add_u32 s65, s41, s40")
    a.I("s_lshl_b32 s65, s65, 16")
    a.I("s_lshl_b32 s66, s42, 8")
    a.I("s_add_u32 s65, s65, s66")
    a.I("s_lshl_b32 s66, s16, 6")
    a.I("s_add_u32 s65, s65, s66")
    srd(a, 52, 8, 9, 4 * MB)
    a.I(f"v_mov_b32 v5, {LW}")
    for q in range(4):
        a.I(f"ds_read_b128 {v(WF + 4 * q, 4)}, {v(CMB)} offset:{49152 + q * 1024}")
    POLL = os.environ.get("POLL", "1")
    a.I("s_mov_b32 s44, 0")
    if POLL == "1":
        a.I("s_cmp_lg_u32 s17, 4")
        a.I(f"s_cbranch_scc1 {N}_lspin")
    a.label(f"{N}_spin")
    a.I("buffer_load_dwordx4 v[4:7], off, s[60:63], s64 sc1")
    a.I("s_waitcnt vmcnt(0)")
    a.I("v_and_b32 v4, v4, v5")
    a.I("v_and_b32 v6, v6, v7")
    a.I("v_and_b32 v4, v4, v6")
    a.I("s_nop 0")
    a.I("v_readfirstlane_b32 s66, v4")
    a.I("s_nop 0")
    a.I("s_cmp_eq_u32 s66, 1")
    a.I(f"s_cbranch_scc1 {N}_got")
    a.I("s_sleep 2")
    a.I("s_add_u32 s44, s44, 1")
    a.I("s_cmp_lt_u32 s44, 0x100000")
    a.I(f"s_cbranch_scc1 {N}_spin")
    a.I(f"s_branch {N}_got")
    if POLL == "1":
        a.label(f"{N}_lspin")
        a.I("ds_read_b32 v4, v5")
        a.I("s_waitcnt lgkmcnt(0)")
        a.I("v_readfirstlane_b32 s66, v4")
        a.I("s_nop 0")
        a.I("s_cmp_eq_u32 s66, 1")
        a.I(f"s_cbranch_scc1 {N}_got2")
        a.I("s_sleep 1")
        a.I(f"s_branch {N}_lspin")
    a.label(f"{N}_got")
    if POLL == "1":
        a.I(f"v_mov_b32 v5, {LW}")
        a.I("ds_write_b32 v5, v1")
        a.label(f"{N}_got2")
    st()
    for k in range(1, 4):
        a.I(f"s_add_u32 s66, s40, {k}")
        a.I("s_and_b32 s66, s66, 3")
        a.I("s_lshl_b32 s66, s66, 14")
        a.I("s_add_u32 s66, s66, s50")
        for q in range(2 if PB16 else 4):
            a.I(f"buffer_load_dwordx4 {v(WF + 16 * k + 4 * q, 4)}, {v(L16)}, s[56:59], s66 offen offset:{q * 1024} sc1")
    a.I("s_waitcnt lgkmcnt(0)")
    a.I("s_barrier")
    for k in range(4):
        if k:
            a.I(f"s_waitcnt vmcnt({(2 if PB16 else 4) * (3 - k)})")
        for j in range(16):
            if PB16 and k:
                if j & 1:
                    a.I(f"v_and_b32 v64, 0xffff0000, {v(WF + 16 * k + j // 2)}")
                else:
                    a.I(f"v_lshlrev_b32 v64, 16, {v(WF + 16 * k + j // 2)}")
                a.I(f"v_add_f32 {v(A + j)}, {v(A + j)}, v64")
            else:
                a.I(f"v_add_f32 {v(A + j)}, {v(A + j)}, {v(WF + 16 * k + j)}")
    pack(a, 8, A, 8)
    a.I("s_nop 1")
    for h in range(2):
        a.I(f"v_permlane32_swap_b32 {v(8 + 4 * h)}, {v(10 + 4 * h)}")
        a.I(f"v_permlane32_swap_b32 {v(9 + 4 * h)}, {v(11 + 4 * h)}")
        a.I(f"buffer_store_dwordx4 {v(8 + 4 * h, 4)}, v3, s[52:55], s65 offen offset:{32 * h}{os.environ.get('OPA', ' nt')}")
    st.dump(17, 4, tmpv=16)
    kend(a, N)
    return a, N, (256, 512, 163840)


def gen_l3_s4():
    a = Asm()
    N = "l3_kernel"
    kstart(a, N, 256)
    a.I("s_load_dwordx2 s[4:5], s[0:1], 88")
    a.I("s_load_dwordx2 s[8:9], s[0:1], 72")
    a.I("v_lshrrev_b32 v1, 6, v0")
    a.I("v_and_b32 v0, 63, v0")
    a.I("s_nop 0")
    a.I("v_readfirstlane_b32 s17, v1")
    st = Stamper(a, "l3")
    L16, RA, RB_, ACC, FR = 128, 129, 130, 132, 164
    PB16 = int(os.environ.get("PB16", "0"))
    NST, STG = 4, 4
    a.I("s_bfe_u32 s40, s2, 0x20001")
    a.I("s_and_b32 s43, s2, 1")
    a.I("s_lshl_b32 s43, s43, 5")
    a.I("s_lshr_b32 s44, s2, 3")
    a.I("s_add_u32 s43, s43, s44")
    a.I("s_lshr_b32 s41, s43, 2")
    a.I("s_and_b32 s42, s43, 3")
    a.I(f"v_lshlrev_b32 {v(L16)}, 4, v0")
    a.I("s_lshl_b32 s45, s41, 2")
    a.I("s_add_u32 s45, s45, s17")
    a.I("s_lshl_b32 s45, s45, 18")
    a.I("s_lshl_b32 s46, s40, 16")
    a.I("s_add_u32 s45, s45, s46")
    a.I(f"s_add_u32 s45, s45, {hex(WS_CTX)}")
    a.I("s_lshl_b32 s46, s42, 1")
    a.I("s_bfe_u32 s47, s17, 0x10001")
    a.I("s_add_u32 s46, s46, s47")
    a.I("s_lshl_b32 s46, s46, 19")
    a.I("s_lshl_b32 s47, s40, 17")
    a.I("s_add_u32 s46, s46, s47")
    a.I("s_and_b32 s47, s17, 1")
    a.I("s_lshl_b32 s47, s47, 10")
    a.I("s_add_u32 s46, s46, s47")
    a.I(f"s_add_u32 s46, s46, {hex(WS_WO)}")
    a.I("s_cmp_lt_u32 s17, 4")
    a.I("s_cselect_b32 s45, s45, s46")
    a.I("s_movk_i32 s46, 0x800")
    a.I("s_cselect_b32 s46, 1024, s46")
    a.I("s_lshl_b32 s47, s17, 10")
    a.I("s_and_b32 s48, s17, 1")
    a.I("s_lshl_b32 s48, s48, 11")
    a.I(f"v_add_u32 {v(RA)}, s48, {v(L16)}")
    a.I("s_lshr_b32 s48, s17, 1")
    a.I("s_lshl_b32 s48, s48, 10")
    a.I("s_add_u32 s48, s48, 4096")
    a.I(f"v_add_u32 {v(RB_)}, s48, {v(L16)}")
    a.I(f"v_add_u32 {v(RB_ + 1)}, 0x10000, {v(RA)}")
    a.I(f"v_add_u32 v127, 0x10000, {v(RB_)}") if False else None
    a.I("s_waitcnt lgkmcnt(0)")
    srd(a, 52, 4, 5, 64 * MB)
    st()
    vm, lg = VM(a), LG(a)

    def dma(g, emit=True):
        L = [lambda: a.I(f"s_add_u32 m0, s47, {(g % (NST * STG)) * 8192}"),
             lambda: a.I("s_add_u32 s49, s45, s46") if False else a.I("s_nop 0"),
             lambda: vm.issue(f"buffer_load_dwordx4 {v(L16)}, s[52:55], s45 offen lds", g),
             lambda: a.I("s_add_u32 s45, s45, s46")]
        return L

    def first_loads():
        for g in range((NST - 1) * STG):
            for f in dma(g):
                f()
        return (NST - 1) * STG

    first_loads()
    a.I("s_and_b32 s18, s17, 1")
    a.I("s_lshr_b32 s19, s40, 1")
    a.I("s_cmp_eq_u32 s18, s19")
    a.I("s_cselect_b32 s18, 1, 0")
    a.I("s_lshr_b32 s16, s17, 1")
    a.I("s_lshl_b32 s19, s16, 6")
    a.I("v_add_u32 v2, s19, v0")
    a.I("s_cmp_eq_u32 s18, 1")
    a.I(f"s_cbranch_scc1 {N}_nob3l")
    b3_loads(a, 8)
    a.label(f"{N}_nob3l")
    st()
    RA2, RB2 = RB_ + 1, 127
    a.I(f"v_add_u32 {v(RB2)}, 0x10000, {v(RB_)}")
    NG = 64

    def reads(g):
        sl = g % (NST * STG)
        ra, rb = (RA, RB_) if sl < 8 else (RA2, RB2)
        off = (sl % 8) * 8192
        d = FR + 12 * (g % 3)
        lg.issue(f"ds_read_b128 {v(d, 4)}, {v(rb)} offset:{off}", g)
        lg.issue(f"ds_read_b128 {v(d + 4, 4)}, {v(ra)} offset:{off}", g)
        lg.issue(f"ds_read_b128 {v(d + 8, 4)}, {v(ra)} offset:{off + 1024}", g)

    pend = []

    def sync(stg):
        vm.wait(list(range(stg * STG, (stg + 1) * STG)))
        a.I("s_barrier")
        nxt = stg + NST - 2
        if stg >= 1 and (nxt + 1) * STG <= NG and nxt >= NST - 1:
            for g in range(nxt * STG, (nxt + 1) * STG):
                pend.extend(dma(g))

    sync(0)
    st()
    reads(0)
    reads(1)
    for g in range(NG):
        j = g + 2
        if j < NG and j % STG == 0:
            while pend:
                pend.pop(0)()
            sync(j // STG)
        lg.wait(g)
        d = FR + 12 * (g % 3)
        for i in range(2):
            acc = v(ACC + 16 * i, 16)
            a.I(f"{MF} {acc}, {v(d, 4)}, {v(d + 4 + 4 * i, 4)}, {'0' if g == 0 else acc}")
            if i == 0 and j < NG:
                reads(j)
            for _ in range(2 + i):
                if pend:
                    pend.pop(0)()
    st()
    srd(a, 56, 4, 5, 16 * MB, add=WS_PART)
    a.I("s_lshr_b32 s48, s17, 1")
    a.I("s_and_b32 s49, s17, 1")
    a.I("s_lshl_b32 s50, s43, 2")
    a.I("s_lshl1_add_u32 s50, s49, s50")
    a.I("s_lshl_b32 s50, s50, 2")
    a.I("s_add_u32 s50, s50, s40")
    a.I("s_lshl_b32 s50, s50, 2")
    a.I("s_add_u32 s50, s50, s48")
    a.I("s_lshl_b32 s50, s50, 12")
    a.I("s_add_u32 s51, s50, 0x10000")
    a.I("s_lshl_b32 s49, s49, 1")
    for i in range(2):
        lab = f"{N}_keep{i}"
        a.I("s_cmp_eq_u32 s49, s40")
        a.I(f"s_cbranch_scc1 {lab}")
        if PB16:
            pack(a, FR + 8 * i, ACC + 16 * i, 8)
            for q in range(2):
                a.I(f"buffer_store_dwordx4 {v(FR + 8 * i + 4 * q, 4)}, {v(L16)}, s[56:59], s{50 + i} offen offset:{q * 1024} sc1")
        else:
            for q in range(4):
                a.I(f"buffer_store_dwordx4 {v(ACC + 16 * i + 4 * q, 4)}, {v(L16)}, s[56:59], s{50 + i} offen offset:{q * 1024} sc1")
        a.label(lab)
        a.I("s_add_u32 s49, s49, 1")
    srd(a, 60, 4, 5, 64 * 128, add=WS_FLAG)
    a.I("s_lshl_b32 s64, s43, 7")
    a.I("s_lshl2_add_u32 s67, s40, s64")

    def signal():
        a.I("v_mov_b32 v1, 1")
        a.I("s_waitcnt vmcnt(0)")
        a.I("s_barrier")
        a.I("s_cmp_lg_u32 s17, 7")
        lab = a.uid(f"{N}_nosig")
        a.I(f"s_cbranch_scc1 {lab}")
        a.I("s_mov_b64 exec, 1")
        a.I("buffer_store_dword v1, off, s[60:63], s67 sc1")
        a.I("s_mov_b64 exec, -1")
        a.label(lab)

    a.I("s_cmp_eq_u32 s18, 1")
    a.I(f"s_cbranch_scc1 {N}_nob3")
    b3_body(a, 131072, 8, loaded=True, mid=signal)
    a.I("s_endpgm")
    a.label(f"{N}_nob3")
    a.I("s_bitcmp0_b32 s40, 0")
    a.I(f"s_cbranch_scc1 {N}_own0")
    for j in range(16):
        a.I(f"v_mov_b32 {v(ACC + j)}, {v(ACC + 16 + j)}")
    a.label(f"{N}_own0")
    a.I("s_lshl_b32 s50, s43, 2")
    a.I("s_add_u32 s50, s50, s40")
    a.I("s_lshl_b32 s50, s50, 4")
    a.I("s_add_u32 s50, s50, s48")
    a.I("s_lshl_b32 s50, s50, 12")
    a.I("v_and_b32 v3, 31, v0")
    a.I("v_lshlrev_b32 v3, 11, v3")
    a.I("v_lshrrev_b32 v4, 5, v0")
    a.I("v_lshl_add_u32 v3, v4, 4, v3")
    a.I("s_lshl_b32 s65, s41, 2")
    a.I("s_add_u32 s65, s65, s40")
    a.I("s_lshl_b32 s65, s65, 16")
    a.I("s_lshl_b32 s66, s42, 8")
    a.I("s_add_u32 s65, s65, s66")
    a.I("s_lshl_b32 s66, s48, 6")
    a.I("s_add_u32 s65, s65, s66")
    srd(a, 52, 8, 9, 4 * MB)
    signal()
    a.I("s_barrier")
    st()
    a.label(f"{N}_spin")
    a.I("buffer_load_dwordx4 v[4:7], off, s[60:63], s64 sc1")
    a.I("s_waitcnt vmcnt(0)")
    a.I("v_and_b32 v4, v4, v5")
    a.I("v_and_b32 v6, v6, v7")
    a.I("v_and_b32 v4, v4, v6")
    a.I("s_nop 0")
    a.I("v_readfirstlane_b32 s66, v4")
    a.I("s_nop 0")
    a.I("s_cmp_lg_u32 s66, 1")
    a.I(f"s_cbranch_scc1 {N}_spin")
    st()
    for k in range(1, 4):
        a.I(f"s_add_u32 s66, s40, {k}")
        a.I("s_and_b32 s66, s66, 3")
        a.I("s_lshl_b32 s66, s66, 14")
        a.I("s_add_u32 s66, s66, s50")
        for q in range(2 if PB16 else 4):
            a.I(f"buffer_load_dwordx4 {v(16 * k + 4 * q, 4)}, {v(L16)}, s[56:59], s66 offen offset:{q * 1024} sc1")
    for k in range(1, 4):
        a.I(f"s_waitcnt vmcnt({(2 if PB16 else 4) * (3 - k)})")
        for j in range(16):
            if PB16:
                if j & 1:
                    a.I(f"v_and_b32 v64, 0xffff0000, {v(16 * k + j // 2)}")
                else:
                    a.I(f"v_lshlrev_b32 v64, 16, {v(16 * k + j // 2)}")
                a.I(f"v_add_f32 {v(ACC + j)}, {v(ACC + j)}, v64")
            else:
                a.I(f"v_add_f32 {v(ACC + j)}, {v(ACC + j)}, {v(16 * k + j)}")
    pack(a, 8, ACC, 8)
    a.I("s_nop 1")
    for h in range(2):
        a.I(f"v_permlane32_swap_b32 {v(8 + 4 * h)}, {v(10 + 4 * h)}")
        a.I(f"v_permlane32_swap_b32 {v(9 + 4 * h)}, {v(11 + 4 * h)}")
        a.I(f"buffer_store_dwordx4 {v(8 + 4 * h, 4)}, v3, s[52:55], s65 offen offset:{32 * h}{os.environ.get('OPA', ' nt')}")
    st.dump(17, 4, tmpv=16)
    kend(a, N)
    return a, N, (256, 512, 131072 + 8192 + 64)


def gen_l3_old():
    a = Asm()
    N = "l3_kernel"
    kstart(a, N, 256)
    a.I("s_load_dwordx2 s[4:5], s[0:1], 88")
    a.I("s_load_dwordx2 s[6:7], s[0:1], 40")
    a.I("s_load_dwordx2 s[8:9], s[0:1], 72")
    a.I("v_lshrrev_b32 v1, 6, v0")
    a.I("v_and_b32 v2, 255, v0")
    a.I("v_and_b32 v0, 63, v0")
    a.I("v_readfirstlane_b32 s16, v1")
    a.I("s_nop 0")
    a.I("s_cmp_ge_u32 s16, 4")
    a.I(f"s_cbranch_scc1 {N}_b3")
    st = Stamper(a, "l3")
    OB = int(os.environ.get('OB', '3'))
    ACC = (oproj_body3 if OB == 3 else oproj_body2)(a, N, st, bar_at=8)
    a.I("s_barrier")
    oproj_finish(a, ACC, 32768 if OB == 3 else 16384)
    st.dump(16, 4, tmpv=8)
    a.I("s_endpgm")
    a.label(f"{N}_b3")
    a.I("s_and_b32 s16, s16, 3")
    b3_body(a, 131072, 8)
    kend(a, N)
    return a, N, (256, 512, 131072 + 8192 + 64)


KERNELS = [gen_l1, lambda: gen_attn(not os.environ.get('NOB2')), {'v3': gen_l3v3, 'new': gen_l3, 's4': gen_l3_s4, 'old': gen_l3_old}[os.environ.get('L3V', 'v3')]]

if __name__ == "__main__":
    p = sys.argv[1] if len(sys.argv) > 1 else os.path.join(os.path.dirname(os.path.abspath(__file__)), "..",
                                                           "cdna_kernels", NAME + ".s")
    sys.exit(1 if build(KERNELS, p) else 0)
```

```python
import sys, os, math, struct
sys.path.insert(0, os.path.dirname(os.path.abspath(__file__)))
from asmlib import Asm, VM, LG, v, s, ag

NAME = "concat_heads__compressed_kv_cla__spectral_gfnet__prompt"
MB = 1 << 20
WS_K, WS_V, WS_CTX, WS_Y, WS_WF, WS_Z, WS_Q = 0, 16 * MB, 32 * MB, 48 * MB, 52 * MB, 56 * MB, 64 * MB
WS_WO = 60 * MB
if os.environ.get('ALIAS'):
    WS_Q = WS_CTX
WS_PART = 0
WS_FLAG = 56 * MB + 2560 * 1024
YSTR = 8320
KA = dict(x=0, ckv=8, wq=16, wuk=24, wuv=32, wo=40, bx=48, wr=56, wi=64, out=72, dbg=80, ws=88)
MF = "v_mfma_f32_32x32x16_bf16"
SP = os.environ.get("SP", " sc1")


def f32(x):
    return "0x%08x" % struct.unpack("<I", struct.pack("<f", x))[0]


def srd(a, d, lo, hi, size, add=0):
    if add:
        a.I(f"s_add_u32 {s(d)}, {s(lo)}, {add if isinstance(add, str) else hex(add)}")
        a.I(f"s_addc_u32 {s(d + 1)}, {s(hi)}, 0")
    else:
        a.I(f"s_mov_b32 {s(d)}, {s(lo)}")
        a.I(f"s_mov_b32 {s(d + 1)}, {s(hi)}")
    a.I(f"s_mov_b32 {s(d + 2)}, {size if isinstance(size, str) else hex(size)}")
    a.I(f"s_mov_b32 {s(d + 3)}, 0x20000")


STAMPS = int(os.environ.get("STAMPS", "0"))
ST0 = 72


class Stamper:
    def __init__(self, a, name=""):
        self.a, self.n = a, 0
        self.on = STAMPS and os.environ.get("STAMPK", name) == name

    def __call__(self):
        if self.on and self.n < 11:
            if self.n == 0:
                self.a.I("s_memrealtime s[68:69]")
            self.a.I(f"s_memtime {s(ST0 + 2 * self.n, 2)}")
            self.n += 1

    def dump(self, wave_s, wslo, tmpv=8):
        if not self.on:
            return
        a = self.a
        a.I("s_waitcnt vmcnt(0) lgkmcnt(0)")
        a.I(f"s_memtime {s(ST0 + 2 * self.n, 2)}")
        a.I("s_memrealtime s[70:71]")
        self.n += 1
        srd(a, 96, wslo, wslo + 1, 1 * MB, add=128 * MB)
        a.I("s_lshl_b32 s100, s2, 3")
        a.I(f"s_add_u32 s100, s100, {s(wave_s)}")
        a.I("s_lshl_b32 s100, s100, 8")
        a.I("s_waitcnt lgkmcnt(0)")
        a.I(f"v_mov_b32 {v(tmpv + 1)}, 0")
        for i in range(self.n):
            a.I(f"v_mov_b32 {v(tmpv)}, {s(ST0 + 2 * i)}")
            a.I(f"buffer_store_dword {v(tmpv)}, {v(tmpv + 1)}, s[96:99], s100 offen offset:{4 * i}")
        for i, r in ((62, 68), (63, 70), (61, ST0 + 2 * (self.n - 1))):
            a.I(f"v_mov_b32 {v(tmpv)}, {s(r)}")
            a.I(f"buffer_store_dword {v(tmpv)}, {v(tmpv + 1)}, s[96:99], s100 offen offset:{4 * i}")
        a.I("s_waitcnt vmcnt(0)")


DBGT = int(os.environ.get("DBGT", "0"))
KIDX = [0, 0]


def dbg_stamp(a, end):
    k = KIDX[0]
    lab = a.uid("dbgskip%d_%d" % (k, KIDX[1]))
    KIDX[1] += 1
    if not end:
        a.I("v_readfirstlane_b32 s89, v0")
        a.I("s_nop 1")
        a.I("s_lshr_b32 s89, s89, 6")
        a.I("s_or_b32 s89, s89, s2")
    a.I("s_cmp_lg_u32 s89, 0")
    a.I(f"s_cbranch_scc1 {lab}")
    a.I("s_load_dwordx4 s[92:95], s[90:91], 80")
    a.I("s_waitcnt vmcnt(0) lgkmcnt(0)")
    a.I("s_memrealtime s[86:87]")
    a.I(f"s_add_u32 s96, s94, {hex(200 * MB)}")
    a.I("s_addc_u32 s97, s95, 0")
    a.I("s_mov_b32 s98, 256")
    a.I("s_mov_b32 s99, 0x20000")
    a.I("s_waitcnt lgkmcnt(0)")
    a.I("v_mov_b32 v254, s86")
    a.I(f"buffer_store_dword v254, off, s[96:99], 0 offset:{8 * k + 4 * end} sc0 sc1")
    a.I("s_waitcnt vmcnt(0)")
    if end and k == DBGT - 1:
        a.I("v_lshlrev_b32 v253, 2, v0")
        a.I("buffer_load_dword v254, v253, s[96:99], 0 offen sc0 sc1")
        a.I("s_mov_b32 s96, s92")
        a.I("s_mov_b32 s97, s93")
        a.I("s_waitcnt vmcnt(0)")
        a.I("buffer_store_dword v254, v253, s[96:99], 0 offen")
        a.I(f"s_sub_u32 s96, s92, {k * 512}")
        a.I("s_subb_u32 s97, s93, 0")
        a.I("s_nop 0")
        a.I("buffer_store_dword v254, v253, s[96:99], 0 offen")
    a.label(lab)


def code_touch(a, kname, wave_s, sr, vt, nw_log=3, kd=True):
    if os.environ.get("NOCP"):
        return
    a.I(f"s_getpc_b64 {s(sr, 2)}")
    a.I(f"s_add_u32 {s(sr)}, {s(sr)}, cs_{kname}@rel32@lo+4")
    a.I(f"s_addc_u32 {s(sr + 1)}, {s(sr + 1)}, cs_{kname}@rel32@hi+12")
    a.I(f"s_mov_b32 {s(sr + 2)}, {kname}_end - {kname}")
    a.I(f"s_mov_b32 {s(sr + 3)}, 0x20000")
    a.I(f"s_lshr_b32 {s(sr + 4)}, s2, 3")
    a.I(f"s_lshl_b32 {s(sr + 4)}, {s(sr + 4)}, {nw_log}")
    a.I(f"s_add_u32 {s(sr + 4)}, {s(sr + 4)}, {s(wave_s)}")
    a.I(f"s_lshl_b32 {s(sr + 4)}, {s(sr + 4)}, {12 - nw_log}")
    a.I(f"v_lshlrev_b32 {v(vt)}, 7, v0")
    a.I(f"s_mov_b64 exec, {(1 << (32 >> nw_log)) - 1}")
    a.I(f"buffer_load_dword {v(vt + 1)}, {v(vt)}, {s(sr, 4)}, {s(sr + 4)} offen")
    if kd and os.environ.get("KD"):
        a.I(f"s_getpc_b64 {s(sr, 2)}")
        a.I(f"s_add_u32 {s(sr)}, {s(sr)}, kdl_{kname}@rel32@lo+4")
        a.I(f"s_addc_u32 {s(sr + 1)}, {s(sr + 1)}, kdl_{kname}@rel32@hi+12")
        a.I(f"s_mov_b32 {s(sr + 2)}, 64")
        a.I("s_mov_b64 exec, 1")
        a.I(f"buffer_load_dword {v(vt + 1)}, off, {s(sr, 4)}, 0")
    a.I("s_mov_b64 exec, -1")


def kstart(a, name, nwg):
    a.raw(".text")
    a.raw(f".globl {name}")
    a.raw(".p2align 8")
    a.raw(f".type {name},@function")
    a.label(name)
    a.label("cs_" + name)
    a.I(f"s_cmp_ge_u32 s2, {nwg}")
    a.I(f"s_cbranch_scc1 {name}_end")
    if DBGT:
        a.I("s_mov_b64 s[90:91], s[0:1]")
        dbg_stamp(a, 0)


def kend(a, name):
    a.label(name + "_end")
    a.I("s_endpgm")


def kdesc(name, nv, ns, na=0):
    nv = (nv + 7) // 8 * 8
    acc_off = nv
    nv = nv + (na + 7) // 8 * 8
    return f""".section .rodata,"a"
.p2align 6
kdl_{name}:
.amdhsa_kernel {name}
  .amdhsa_next_free_vgpr {nv}
  .amdhsa_next_free_sgpr {max(ns, 16)}
  .amdhsa_accum_offset {acc_off}
  .amdhsa_group_segment_fixed_size 0
  .amdhsa_kernarg_size 96
  .amdhsa_user_sgpr_count 2
  .amdhsa_user_sgpr_kernarg_segment_ptr 1
  .amdhsa_system_sgpr_workgroup_id_x 1
  .amdhsa_float_denorm_mode_32 3
.end_amdhsa_kernel
"""


QSCALE = math.log2(math.e) / math.sqrt(128.0)


def gen_qkv():
    a = Asm()
    N = "qkvproj_kernel"
    kstart(a, N, 256)
    a.I("s_load_dwordx4 s[4:7], s[0:1], 0")
    a.I("s_load_dwordx4 s[8:11], s[0:1], 16")
    a.I("s_load_dwordx2 s[12:13], s[0:1], 32")
    a.I("s_load_dwordx2 s[14:15], s[0:1], 88")
    a.I("v_lshrrev_b32 v1, 6, v0")
    a.I("v_and_b32 v0, 63, v0")
    a.I("s_and_b32 s17, s2, 7")
    a.I("v_readfirstlane_b32 s16, v1")
    a.I("s_lshr_b32 s18, s2, 3")
    a.I("s_and_b32 s19, s18, 7")
    a.I("s_lshr_b32 s18, s18, 3")
    a.I("s_lshl_b32 s40, s17, 2")
    a.I("s_add_u32 s18, s18, s40")
    a.I("s_mov_b32 s41, 0")
    a.I("s_mul_i32 s42, s18, 6")
    a.I("s_cmp_ge_u32 s18, 11")
    a.I("s_cselect_b32 s41, 1, s41")
    a.I("s_cselect_b32 s40, 64, 0")
    a.I("s_cmp_ge_u32 s18, 21")
    a.I("s_cselect_b32 s41, 2, s41")
    a.I("s_cselect_b32 s40, 126, s40")
    a.I("s_sub_u32 s42, s42, s40")
    a.I("s_lshl_b32 s44, s19, 3")
    a.I("s_add_u32 s44, s44, s16")
    hl, b4, t1, t2 = 9, 10, 11, 12
    a.I(f"v_lshrrev_b32 {v(hl)}, 5, v0")
    a.I(f"v_bfe_u32 {v(b4)}, v0, 4, 1")
    a.I(f"v_lshrrev_b32 {v(t1)}, 3, v0")
    a.I(f"v_lshlrev_b32 {v(t1)}, 10, {v(t1)}")
    a.I("s_lshl_b32 s45, s44, 15")
    a.I(f"v_add_u32 {v(t1)}, s45, {v(t1)}")
    a.I(f"v_lshrrev_b32 {v(t2)}, 4, v0")
    a.I("v_and_b32 v13, 7, v0")
    a.I(f"v_xor_b32 {v(t2)}, {v(t2)}, v13")
    a.I(f"v_lshl_add_u32 v52, {v(t2)}, 4, {v(t1)}")
    a.I("v_xor_b32 v53, 64, v52")
    a.I(f"v_add_u32 v53, {8192 - 1024}, v53")
    a.I(f"v_add_u32 v54, {2 * (8192 - 1024)}, v52")
    a.I(f"v_add_u32 v55, {2 * (8192 - 1024)}, v53")
    a.I("v_and_b32 v13, 31, v0")
    a.I(f"v_bfe_u32 {v(t2)}, v0, 1, 3")
    a.I(f"v_xor_b32 {v(t2)}, {v(t2)}, {v(hl)}")
    a.I(f"v_lshlrev_b32 {v(t2)}, 4, {v(t2)}")
    a.I(f"v_lshl_add_u32 {v(t2)}, v13, 7, {v(t2)}")
    a.I("s_mul_i32 s46, s16, 12288")
    for t in range(4):
        a.I(f"v_xor_b32 {v(56 + t)}, {32 * t}, {v(t2)}")
    for t in range(4):
        a.I(f"v_add_u32 {v(56 + t)}, s46, {v(56 + t)}")
    a.I("v_lshrrev_b32 v2, 3, v0")
    a.I("v_lshlrev_b32 v2, 13, v2")
    a.I(f"v_lshlrev_b32 {v(t1)}, 2, {v(b4)}")
    a.I(f"v_and_b32 {v(t2)}, 7, v0")
    a.I(f"v_xor_b32 {v(t1)}, {v(t1)}, {v(t2)}")
    a.I(f"v_lshl_add_u32 v2, {v(t1)}, 4, v2")
    a.I("s_lshl_b32 s45, s16, 17")
    a.I("v_add_u32 v2, s45, v2")
    a.I(f"v_add_u32 v3, {65536 - 1024}, v2")
    a.I(f"v_bfe_u32 {v(t1)}, v0, 2, 2")
    a.I(f"v_lshl_add_u32 {v(t2)}, {v(hl)}, 3, {v(t1)}")
    a.I(f"v_lshlrev_b32 v4, 7, {v(t2)}")
    a.I(f"v_lshl_add_u32 v4, {v(b4)}, 5, v4")
    a.I(f"v_and_b32 {v(t2)}, 3, v0")
    a.I(f"v_lshl_add_u32 v4, {v(t2)}, 3, v4")
    a.I(f"v_bfe_u32 {v(t2)}, v0, 3, 1")
    a.I(f"v_lshl_add_u32 v4, {v(t2)}, 6, v4")
    a.I("v_xor_b32 v5, 64, v4")
    a.I("v_add_u32 v6, 0x10000, v4")
    a.I("v_add_u32 v7, 0x10000, v5")
    a.I("v_add_u32 v50, 0x20000, v4")
    a.I("v_add_u32 v51, 0x20000, v5")
    a.I("v_lshlrev_b32 v48, 4, v0")
    a.I("s_lshl_b32 s47, s16, 11")
    a.I("s_lshl_b32 s48, s42, 7")
    a.I("s_lshl_b32 s49, s44, 13")
    a.I("s_lshl_b32 s50, s42, 18")
    a.I("s_add_u32 s50, s50, s49")
    a.I("s_waitcnt lgkmcnt(0)")
    a.I("s_cmp_eq_u32 s41, 2")
    a.I("s_cselect_b32 s20, s4, s6")
    a.I("s_cselect_b32 s21, s5, s7")
    a.I("s_cselect_b32 s24, s8, s10")
    a.I("s_cselect_b32 s25, s9, s11")
    a.I(f"s_cselect_b32 s51, {hex(WS_Q)}, 0")
    a.I(f"s_cselect_b32 s52, {f32(QSCALE)}, 1.0")
    a.I(f"s_mov_b32 s22, {hex(2 * MB)}")
    a.I("s_mov_b32 s23, 0x20000")
    a.I(f"s_mov_b32 s26, {hex(4 * MB)}")
    a.I("s_mov_b32 s27, 0x20000")
    srd(a, 28, 14, 15, 16 * MB, add="s51")
    srd(a, 32, 12, 13, 4 * MB)
    srd(a, 36, 14, 15, 16 * MB, add=WS_V)
    srd(a, 56, 6, 7, 2 * MB)
    a.I("s_cmp_eq_u32 s18, 31")
    a.I(f"s_cbranch_scc1 {N}_D")
    a.I("s_cmp_eq_u32 s41, 1")
    a.I(f"s_cbranch_scc1 {N}_B")
    a.I("s_cmp_eq_u32 s18, 10")
    a.I(f"s_cbranch_scc1 {N}_C")

    AF, ACC, RING, PK = 64, 192, 8, 32
    LOOK = 6

    def body(passes, tag):
        vm, lg = VM(a), LG(a)
        st = Stamper(a, "qkv")
        st()
        NP = len(passes)
        NC = 4 * NP
        NM = 64 * NP
        restage = tag == "D"
        blk = {}
        free = [6, 7, 8, 9]
        nxt = [0]

        def dmaW():
            c = nxt[0]
            if c >= NC or not free:
                return False
            b = free.pop(0)
            blk[c] = b
            nxt[0] += 1
            pp, kc = divmod(c, 4)
            form, su, di = passes[pp]
            a.I(f"s_add_u32 m0, s47, {hex(b * 16384)}")
            if su is not None:
                a.I(f"s_mov_b32 s45, {hex((kc << 20) + su * 128)}")
            else:
                a.I(f"s_add_u32 s45, s48, {hex((kc << 20) + di * 128)}")
            sr = "s[32:35]" if form == "V" else "s[24:27]"
            vm.issue(f"buffer_load_dwordx4 v2, {sr}, s45 offen lds", ("W", c))
            vm.issue(f"buffer_load_dwordx4 v3, {sr}, s45 offen offset:1024 lds", ("W", c))
            return True

        def dmaA(j):
            sr = "s[56:59]" if (restage and j < 8) else "s[20:23]"
            a.I(f"s_add_u32 m0, s46, {hex((j % 3) * 4096)}")
            a.I(f"s_mov_b32 s45, {(j % 8) * 128}")
            for i in range(4):
                vm.issue(f"buffer_load_dwordx4 {v(52 + i)}, {sr}, s45 offen offset:{i * 1024} lds", ("A", j))

        def readA(j):
            vm.wait(("A", j))
            for t in range(4):
                lg.issue(f"ds_read_b128 {v(AF + 16 * (j % 8) + 4 * t, 4)}, {v(56 + t)} offset:{(j % 3) * 4096}", ("A", j))

        dmaW(); dmaA(0); dmaA(1); dmaW(); dmaA(2); dmaW(); dmaW()

        def reads(i):
            c, r = divmod(i, 16)
            t, cb = divmod(r, 2)
            b = blk[c]
            base = [4, 6, 50][b // 4] + cb
            off = (b % 4) * 16384 + t * 2048
            d = RING + 4 * (i % LOOK)
            lg.issue(f"ds_read_b64_tr_b16 {v(d, 2)}, {v(base)} offset:{off}", ("W", i))
            lg.issue(f"ds_read_b64_tr_b16 {v(d + 2, 2)}, {v(base)} offset:{off + 512}", ("W", i))

        def sync(c):
            vm.wait(("W", c))
            a.I("s_barrier")
            if c >= 2:
                free.append(blk[c - 2])
            if c == (10 if restage else 5):
                free.extend([0, 1, 2, 3, 4, 5])
            n = 0
            while n < 2 and dmaW():
                n += 1

        def epi(pp):
            out = []
            form, su, di = passes[pp]
            acc = ACC + 32 * (pp & 1)
            so = 54 + (pp & 1)
            if su is not None:
                out.append(lambda: a.I(f"s_add_u32 s{so}, s49, {hex((su >> 1) * 512 * 1024 + (su & 1) * 4096)}"))
            else:
                out.append(lambda: a.I(f"s_add_u32 s{so}, s50, {hex((di >> 1) * 512 * 1024 + (di & 1) * 4096)}"))
            sr = "s[36:39]" if form == "V" else "s[28:31]"
            for cb in range(2):
                for h in range(2):
                    q = 2 * cb + h
                    for i in range(4):
                        src = acc + 16 * cb + 8 * h + 2 * i
                        if form == "K" and tag in "AD":
                            out.append(lambda src=src: a.I(f"v_mul_f32 {v(src)}, s52, {v(src)}"))
                            out.append(lambda src=src: a.I(f"v_mul_f32 {v(src + 1)}, s52, {v(src + 1)}"))
                        out.append(lambda src=src, q=q, i=i: a.I(
                            f"v_cvt_pk_bf16_f32 {v(PK + 4 * q + i)}, {v(src)}, {v(src + 1)}"))
                    out.append(lambda q=q: vm.issue(
                        f"buffer_store_dwordx4 {v(PK + 4 * q, 4)}, v48, {sr}, s{so} offen offset:{q * 1024}{SP}", ("S", pp)))
            return out

        st()
        readA(0)
        sync(0)
        st()
        for i in range(LOOK - 2):
            reads(i)
        lg.wait(("A", 0))
        for i in range(LOOK - 2, LOOK):
            reads(i)
        pend = []
        for i in range(NM):
            c, r = divmod(i, 16)
            t, cb = divmod(r, 2)
            pp, kc = divmod(c, 4)
            k = 8 * kc + t
            if i % 2 == 0:
                lg.wait([("W", i), ("W", i + 1), ("A", i // 8)])
            if pp == 0 and i % 8 == 0 and i // 8 + 3 < (11 if restage else 8):
                dmaA(i // 8 + 3)
            if restage and 72 < i <= 128 + 8 and i % 8 == 4:
                jj = 8 + (i - 76) // 8
                lg.wait(("A", jj))
                if jj + 3 < 16:
                    dmaA(jj + 3)
            acc = v(ACC + 32 * (pp & 1) + 16 * cb, 16)
            wf = v(RING + 4 * (i % LOOK), 4)
            af = v(AF + 4 * k, 4)
            cin = "0" if k == 0 else acc
            if passes[pp][0] == "V":
                a.I(f"{MF} {acc}, {af}, {wf}, {cin}")
            else:
                a.I(f"{MF} {acc}, {wf}, {af}, {cin}")
            j = i + LOOK
            if j < NM:
                if j % 16 == 0:
                    sync(j // 16)
                if j < 64 and j % 8 == 0:
                    readA(j // 8)
                reads(j)
            if restage and 64 <= i < 128 and i % 8 == 7:
                readA(8 + (i - 64) // 8)
            if i % 64 == 63:
                st()
            if i % 64 == 6 and pp >= 1:
                pend = epi(pp - 1)
            if pend:
                pend.pop(0)()
        a.I("s_nop 11")
        for f in epi(NP - 1):
            f()
        st.dump(16, 14)
        a.I("s_endpgm")

    body([("K", None, i) for i in range(6)], "A")
    a.label(N + "_B")
    body([("V", None, i) for i in range(6)], "B")
    a.label(N + "_C")
    body([("K", None, i) for i in range(4)] + [("V", 0, 0), ("V", 1, 0)], "C")
    a.label(N + "_D")
    body([("V", 62, 0), ("V", 63, 0)] + [("K", None, i) for i in range(4)], "D")
    kend(a, N)
    return a, N, (256, 512, 163840)


def gen_attn(withb2=False):
    b2tail = withb2 and os.environ.get("B2MODE", "start") == "tail"
    if b2tail:
        withb2 = False
    LT = int(os.environ.get("LT", "3"))
    a = Asm()
    N = "attn_kernel"
    O, Q, S, P, NEGM, RING = 64, 128, [160, 176], [192, 200], 208, 224
    L16, VKA, VVA, VL, VLS, E, VDA, VDB, QREL, T0, T1, T2, NINF = 1, 2, 3, 4, 5, 6, 10, 11, 12, 13, 14, 15, 48
    PK = 16
    EE = 50
    sW, sH, sP, sN, sC, sPH, sTHR, sBAR, sKO, sKM, sVM, sQS = 16, 17, 18, 19, 20, 21, 40, 41, 42, 43, 44, 45
    kstart(a, N, 256)
    a.I("s_load_dwordx2 s[4:5], s[0:1], 88")
    a.I("s_load_dwordx2 s[14:15], s[0:1], 40")
    a.I("v_lshrrev_b32 v1, 6, v0")
    a.I("v_and_b32 v0, 63, v0")
    a.I("s_and_b32 s6, s2, 7")
    a.I(f"v_readfirstlane_b32 {s(sW)}, v1")
    a.I("s_lshr_b32 s7, s2, 3")
    a.I("s_and_b32 s8, s7, 3")
    a.I("s_lshl_b32 s6, s6, 2")
    a.I(f"s_add_u32 {s(sH)}, s6, s8")
    a.I(f"s_lshr_b32 {s(sP)}, s7, 2")
    a.I(f"s_lshl_b32 s6, {s(sP)}, 2")
    a.I(f"s_sub_u32 s7, 60, s6")
    a.I(f"s_add_u32 s7, s7, {s(sW)}")
    a.I(f"s_add_u32 s8, s6, 7")
    a.I(f"s_sub_u32 s8, s8, {s(sW)}")
    a.I(f"s_cmp_ge_u32 {s(sW)}, 4")
    a.I(f"s_cselect_b32 {s(sQS)}, s8, s7")
    a.I(f"s_add_u32 {s(sN)}, {s(sQS)}, 1")
    a.I("s_sub_u32 s9, 64, s6")
    a.I(f"s_lshr_b32 {s(sBAR)}, s9, 1")
    a.I("s_lshl_b32 s9, s9, 13")
    a.I(f"s_lshl_b32 s10, {s(sH)}, 19")
    a.I(f"v_lshlrev_b32 {v(L16)}, 4, v0")
    a.I(f"s_and_b32 s11, {s(sW)}, 3")
    a.I("s_lshl_b32 s11, s11, 11")
    a.I(f"v_add_u32 {v(VDA)}, s11, {v(L16)}")
    a.I(f"v_add_u32 {v(VDB)}, 0x2000, {v(VDA)}")
    a.I(f"v_and_b32 {v(T0)}, 31, v0")
    a.I(f"v_lshrrev_b32 {v(T1)}, 5, v0")
    a.I(f"v_lshlrev_b32 {v(T1)}, 2, {v(T1)}")
    a.I(f"v_sub_u32 {v(QREL)}, {v(T0)}, {v(T1)}")
    a.I(f"v_mov_b32 {v(NINF)}, 0xff800000")
    a.I(f"s_mov_b32 {s(sTHR)}, {f32(2.0 ** 14)}")
    FLG = 7 * 16384 + 8192
    if withb2:
        a.I(f"v_mov_b32 v124, {FLG}")
        for i in range(4):
            a.I(f"v_mov_b32 {v(56 + i)}, 0")
        a.I("ds_write_b128 v124, v[56:59]")
        a.I("s_and_b32 s60, s2, 7")
        a.I("s_lshl_b32 s60, s60, 5")
        a.I("s_lshr_b32 s61, s2, 3")
        a.I("s_add_u32 s60, s60, s61")
        a.I("s_cmp_eq_u32 s2, 248")
        a.I("s_cselect_b32 s61, 4, 2")
        a.I(f"s_cmp_lt_u32 {s(sW)}, s61")
        a.I("s_cselect_b32 s23, 1, 0")
        a.I(f"s_cmp_ge_u32 {s(sW)}, 2")
        a.I("s_cselect_b32 s60, 0x100, s60")
        a.I(f"s_mov_b32 s61, {131072}")
        a.I(f"s_cselect_b32 s61, {131072 + 16384}, s61")
        a.I(f"s_and_b32 s67, {s(sW)}, 1")
    a.I("s_waitcnt lgkmcnt(0)")
    srd(a, 24, 4, 5, "s9", add="s10")
    a.I(f"s_add_u32 s12, s10, {hex(WS_V - 3 * 8192)}")
    a.I(f"s_add_u32 s13, s9, {3 * 8192}")
    srd(a, 28, 4, 5, "s13", add="s12")
    srd(a, 32, 4, 5, 16 * MB, add=WS_Q)
    srd(a, 36, 4, 5, 16 * MB, add=WS_CTX)
    st = Stamper(a, "attn")
    st()
    a.I(f"s_lshl_b32 s12, {s(sQS)}, 18")
    a.I(f"s_lshl_b32 s13, {s(sH)}, 13")
    a.I("s_add_u32 s12, s12, s13")
    a.I("s_add_u32 s13, s12, 4096")

    def q_loads(vm=None):
        for t in range(8):
            x = f"buffer_load_dwordx4 {v(Q + 4 * t, 4)}, {v(L16)}, s[32:35], s{12 + t // 4} offen offset:{(t % 4) * 1024}{os.environ.get('QP', '')}"
            vm.issue(x, "Q") if vm else a.I(x)

    if withb2:
        a.I("s_cmp_eq_u32 s23, 0")
        a.I(f"s_cbranch_scc1 {N}_nob2l")
        b2_loads(a, VM(a), 60, 67, L16, 16, 32, 62, 48)
        q_loads()
        a.label(f"{N}_nob2l")
        a.I("s_barrier")
    a.I(f"s_lshl_b32 s46, {s(sQS)}, 18")
    a.I(f"s_lshl_b32 s6, {s(sH)}, 13")
    a.I("s_add_u32 s46, s46, s6")
    a.I("s_add_u32 s47, s46, 4096")
    a.I(f"s_mov_b32 {s(sKM)}, s11")
    a.I(f"s_mov_b32 {s(sKO)}, 0")

    def dma_list(withV=True):
        l = []
        if withV:
            l += [f"s_mov_b32 m0, {s(sVM)}", None,
                  f"buffer_load_dwordx4 {v(VDA)}, s[28:31], {s(sKO)} offen lds",
                  f"buffer_load_dwordx4 {v(VDA)}, s[28:31], {s(sKO)} offen offset:1024 lds",
                  f"s_add_u32 m0, {s(sVM)}, 0x4000", None,
                  f"buffer_load_dwordx4 {v(VDB)}, s[28:31], {s(sKO)} offen lds",
                  f"buffer_load_dwordx4 {v(VDB)}, s[28:31], {s(sKO)} offen offset:1024 lds"]
        l += [f"s_mov_b32 m0, {s(sKM)}", f"s_add_u32 {s(sVM)}, {s(sKM)}, 0x2000",
              f"buffer_load_dwordx4 {v(VDA)}, s[24:27], {s(sKO)} offen lds",
              f"buffer_load_dwordx4 {v(VDA)}, s[24:27], {s(sKO)} offen offset:1024 lds",
              f"s_add_u32 m0, {s(sKM)}, 0x4000", f"s_add_u32 {s(sKM)}, {s(sKM)}, 0x8000",
              f"buffer_load_dwordx4 {v(VDB)}, s[24:27], {s(sKO)} offen lds",
              f"buffer_load_dwordx4 {v(VDB)}, s[24:27], {s(sKO)} offen offset:1024 lds",
              f"s_and_b32 {s(sKM)}, {s(sKM)}, 0x1ffff",
              f"s_add_u32 {s(sKO)}, {s(sKO)}, 0x4000"]
        return l

    def emit_dma(withV=True):
        for x in dma_list(withV):
            if "dma" in os.environ.get("ADROP", "") and x and x.endswith(" lds"):
                continue
            a.I(x or "s_nop 0")

    def mask_negm():
        for j in range(16):
            a.I(f"v_cmp_le_i32 vcc, {(j & 3) + 8 * (j >> 2)}, {v(QREL)}")
            a.I("s_nop 1")
            a.I(f"v_cndmask_b32 {v(NEGM + j)}, {v(NINF)}, {v(NEGM + j)}, vcc")
        a.I("s_nop 1")

    def rowmax(Sx, dst):
        a.I(f"v_max3_f32 {v(dst)}, {v(Sx)}, {v(Sx + 1)}, {v(Sx + 2)}")
        for j in range(3, 15, 2):
            a.I(f"v_max3_f32 {v(dst)}, {v(dst)}, {v(Sx + j)}, {v(Sx + j + 1)}")
        a.I(f"v_max_f32 {v(dst)}, {v(dst)}, {v(Sx + 15)}")
        a.I(f"v_mov_b32 {v(T2)}, {v(dst)}")
        a.I("s_nop 1")
        a.I(f"v_permlane32_swap_b32 {v(dst)}, {v(T2)}")
        a.I(f"v_max_f32 {v(dst)}, {v(dst)}, {v(T2)}")

    def role(ld):
        R = "S" if ld else "L"
        if withb2 and not ld:
            a.I("s_cmp_eq_u32 s23, 0")
            a.I(f"s_cbranch_scc1 {N}_b2no")
            a.I(f"s_and_b32 s67, {s(sW)}, 2")
            a.I("s_lshl_b32 s67, s67, 2")
            a.I(f"s_add_u32 s67, s67, {FLG}")
            a.I("v_mov_b32 v124, s67")
            a.I(f"s_bitcmp1_b32 {s(sW)}, 0")
            a.I(f"s_cbranch_scc1 {N}_b2w1")
            rmap = [56, 57, 58, 59, 60, 61, 62, 120, 63, 16, 24, 32, 40, 64, 72, 80, 88, 104, 160, 176, 192, 208, 224]
            for own in range(2):
                vmb = VM(a)
                if own:
                    a.label(f"{N}_b2w1")
                ex = [0]

                def pair_sync():
                    ex[0] += 1
                    lab = a.uid(f"{N}_spin")
                    a.I(f"v_mov_b32 v125, {ex[0]}")
                    a.I(f"ds_write_b32 v124, v125 offset:{4 * own}")
                    a.label(lab)
                    a.I(f"ds_read_b32 v126, v124 offset:{4 * (1 - own)}")
                    a.I("s_waitcnt lgkmcnt(0)")
                    a.I("v_readfirstlane_b32 s67, v126")
                    a.I("s_nop 0")
                    a.I(f"s_cmp_lt_u32 s67, {ex[0]}")
                    a.I(f"s_cbranch_scc1 {lab}")
                b2_body(a, own, 60, 61, pair_sync, vmb, S0=62, SR=48, slice_len=10 ** 9, rmap=rmap, preloaded=True,
                        st=st if os.environ.get("B2ST") else (lambda: None))
                if os.environ.get("B2ST"):
                    st()
                    st.n -= 5 * (1 - own)
                assert vmb.q[-5:] == ["Q", "Z", "Z", "Z", "Z"] or "Q" not in vmb.q
                a.I(f"s_branch {N}_b2done")
            a.label(f"{N}_b2no")
        def inits(tag):
            for j in range(16):
                a.I(f"v_mov_b32 {v(NEGM + j)}, 0")
            a.I(f"s_cmp_lg_u32 {s(sN)}, 1")
            a.I(f"s_cbranch_scc1 {N}_{R}_nm1{tag}")
            mask_negm()
            a.label(f"{N}_{R}_nm1{tag}")

        inits("a")
        q_loads()
        if ld:
            emit_dma(withV=False)
            emit_dma()
        if withb2 and not ld:
            a.I("s_waitcnt vmcnt(0)")
            a.I(f"s_branch {N}_b2join")
            a.label(f"{N}_b2done")
            inits("b")
            a.I("s_waitcnt vmcnt(4)")
            a.label(f"{N}_b2join")
        a.I(f"v_mov_b32 {v(VL)}, 0")
        a.I(f"v_mov_b32 {v(VLS)}, 0")
        a.I(f"v_add_u32 {v(VKA)}, 0x8000, {v(L16)}")
        a.I(f"v_mov_b32 {v(VVA)}, {v(L16)}")
        if os.environ.get("PRIO") and not ld:
            a.I(f"s_setprio {os.environ['PRIO']}")
        if ld or not withb2:
            a.I(f"s_waitcnt vmcnt({6 if ld else 0})")
        a.I("s_barrier")
        st()
        for t in range(8):
            a.I(f"ds_read_b128 {v(RING + 4 * t, 4)}, {v(L16)} offset:{t * 1024}")
        dl = [x or "s_nop 0" for x in dma_list()] if ld else []
        for t in range(8):
            if t % 4 == 0:
                a.I("s_waitcnt lgkmcnt(4)")
            a.I(f"{MF} {v(S[0], 16)}, {v(RING + 4 * t, 4)}, {v(Q + 4 * t, 4)}, {v(NEGM if t == 0 else S[0], 16)}")
            a.I(f"ds_read_b128 {v(RING + 4 * t, 4)}, {v(L16)} offset:{16384 + t * 1024}")
            for x in dl[:3]:
                a.I(x)
            dl = dl[3:]
            for j in range(5):
                a.I(f"v_mov_b32 {v(O + 5 * t + j)}, 0")
        assert not dl
        for j in range(40, 64):
            a.I(f"v_mov_b32 {v(O + j)}, 0")
        if ld:
            emit_dma()
        rowmax(S[0], T0)
        for j in range(16):
            a.I(f"v_sub_f32 {v(S[0] + j)}, {v(S[0] + j)}, {v(T0)}")
        for j in range(16):
            a.I(f"v_sub_f32 {v(NEGM + j)}, 0, {v(T0)}")
        a.I(f"s_mov_b32 {s(sPH)}, 0")
        a.I(f"s_sub_u32 {s(sC)}, {s(sN)}, 3")
        a.I(f"s_cbranch_scc0 {N}_{R}_first")
        a.I(f"s_mov_b32 {s(sPH)}, 3")
        a.I(f"s_mov_b32 {s(sC)}, 0")
        a.I(f"s_cmp_lg_u32 {s(sN)}, 2")
        a.I(f"s_cbranch_scc1 {N}_{R}_first")
        a.I(f"s_mov_b32 {s(sPH)}, 1")
        mask_negm()
        a.label(f"{N}_{R}_first")
        e = lambda j: v(EE + (j % 6))
        if ld:
            a.I("s_waitcnt vmcnt(14)")
        a.I("s_waitcnt lgkmcnt(0)")
        a.I("s_barrier")
        a.I(f"s_sub_u32 {s(sBAR)}, {s(sBAR)}, 1")
        dl = [x or "s_nop 0" for x in dma_list()] if ld else []
        for pos in range(8):
            r = v(RING + 4 * pos, 4)
            a.I(f"{MF} {v(S[1], 16)}, {r}, {v(Q + 4 * pos, 4)}, {v(NEGM if pos == 0 else S[1], 16)}")
            a.I(f"ds_read_b128 {r}, {v(VKA)} offset:{pos * 1024}")
            a.I(f"v_exp_f32 {e(2 * pos)}, {v(S[0] + 2 * pos)}")
            a.I(f"v_exp_f32 {e(2 * pos + 1)}, {v(S[0] + 2 * pos + 1)}")
            a.many(dl[:3] or ["s_nop 0"])
            dl = dl[3:]
            a.I(f"v_add_f32 {v(VLS)}, {v(VLS)}, {e(2 * pos)}")
            a.I(f"v_add_f32 {v(VLS)}, {v(VLS)}, {e(2 * pos + 1)}")
            a.I(f"v_cvt_pk_bf16_f32 {v(P[0] + pos)}, {e(2 * pos)}, {e(2 * pos + 1)}")
        assert not dl
        a.I("s_nop 4")
        a.I(f"s_sub_u32 {s(sC)}, {s(sC)}, 1")
        a.I(f"s_branch {N}_{R}_back0")

        def iteration(par):
            gaps = [[] for _ in range(16)]
            pre = [[] for _ in range(16)]
            mf = []
            Sc, Sn, Pc, Pp = S[par], S[1 - par], P[par], P[1 - par]
            e = lambda j: v(EE + (j % 6))
            for pos in range(16):
                r = v(RING + 4 * (pos & 7), 4)
                if pos < 8:
                    mf.append(f"{MF} {v(Sn, 16)}, {r}, {v(Q + 4 * pos, 4)}, {v(NEGM if pos == 0 else Sn, 16)}")
                    ks, dt = divmod(pos, 4)
                    gaps[pos].append(f"ds_read_b128 {r}, {v(VVA)} offset:{8192 + par * 16384 + (2 * dt + ks) * 1024}")
                else:
                    ks, dt = divmod(pos - 8, 4)
                    mf.append(f"{MF} {v(O + 16 * dt, 16)}, {r}, {v(Pp + 4 * ks, 4)}, {v(O + 16 * dt, 16)}")
                    gaps[pos].append(f"ds_read_b128 {r}, {v(VKA)} offset:{par * 16384 + (pos - 8) * 1024}")
                if pos % 4 == 0:
                    pre[pos].append("s_waitcnt lgkmcnt(4)")
            early = int(os.environ.get("EARLY", "1"))
            if early:
                eg = [0, 0, 1, 2, 2, 3, 4, 5, 6, 7, 8, 9, 10, 11, 12, 13]
            else:
                eg = [0] + list(range(15))
            gaps[0].append(f"v_add_f32 {v(VL)}, {v(VL)}, {v(VLS)}")
            for j in range(16):
                gaps[eg[j]].append(f"v_exp_f32 {e(j)}, {v(Sc + j)}")
            pka = os.environ.get("PKADD")
            for j in range(1, 16):
                g = eg[j] + 1
                if pka:
                    if j == 3:
                        gaps[g].append(f"v_pk_add_f32 v[8:9], {v(EE, 2)}, {v(EE + 2, 2)}")
                    elif j % 2 == 1 and j > 3:
                        gaps[g].append(f"v_pk_add_f32 v[8:9], v[8:9], {v(EE + (j - 1) % 6, 2)}")
                    if j == 15:
                        gaps[g].append(f"v_add_f32 {v(VLS)}, v8, v9")
                elif j == 1:
                    gaps[g].append(f"v_add_f32 {v(VLS)}, {e(0)}, {e(1)}")
                else:
                    gaps[g].append(f"v_add_f32 {v(VLS)}, {v(VLS)}, {e(j)}")
                if j % 2 == 1:
                    gaps[g + (1 if (early and j == 15) else 0)].append(f"v_cvt_pk_bf16_f32 {v(Pc + j // 2)}, {e(j - 1)}, {e(j)}")
            if par == 0:
                gaps[2].append(f"v_add_u32 {v(VKA)}, 0x8000, {v(VKA)}")
                gaps[6].append(f"v_and_b32 {v(VKA)}, 0x1ffff, {v(VKA)}")
                bar = ["s_barrier", f"s_sub_u32 {s(sBAR)}, {s(sBAR)}, 1"]
                if ld:
                    bar = ["s_waitcnt vmcnt(14)"] + bar
                gaps[4] = bar + gaps[4]
                if ld:
                    d = [x for x in dma_list() if x]
                    m0a, l1, l2, m0b, l3, l4, m0c, svm, l5, l6, m0d, skm, l7, l8, sand, sko = d
                    gaps[5] = [m0a] + gaps[5] + [l1]
                    gaps[6] += [l2, m0b]
                    gaps[7] += [l3]
                    gaps[8] += [l4, m0c]
                    gaps[9] += [svm, l5]
                    gaps[10] += [l6, m0d]
                    gaps[11] += [l7]
                    gaps[12] += [l8, skm]
                    gaps[13] += [sand, sko]
            else:
                gaps[10].append(f"v_mov_b32 {v(VVA)}, {v(VKA)}")
            gaps[14].append(f"s_sub_u32 {s(sC)}, {s(sC)}, 1")
            gaps[14 if early else 15].append(f"v_cmp_nge_f32 vcc, {s(sTHR)}, {v(VLS)}")
            drop = os.environ.get("ADROP", "").split(",")
            for pos in range(16):
                if "bar" in drop:
                    gaps[pos] = [x for x in gaps[pos] if x != "s_barrier"]
                if "dma" in drop:
                    gaps[pos] = [x for x in gaps[pos] if not x.endswith(" lds")]
                if "rd" in drop:
                    gaps[pos] = [x for x in gaps[pos] if not x.startswith("ds_read")]
                if "valu" in drop:
                    gaps[pos] = [x for x in gaps[pos] if not (x.startswith("v_exp") or x.startswith("v_cvt") or x.startswith("v_add_f32"))]
                if "e64" in drop:
                    gaps[pos] = [x.replace("v_exp_f32 ", "v_exp_f32_e64 ").replace("v_add_f32 ", "v_add_f32_e64 ") for x in gaps[pos]]
                a.many(pre[pos])
                a.I(mf[pos])
                a.many(gaps[pos])
            if "br" not in drop:
                a.I(f"s_cbranch_vccnz {N}_{R}_slow{par}")
            a.label(f"{N}_{R}_back{par}")
            a.I(f"s_cbranch_scc1 {N}_{R}_spec{par}")

        if os.environ.get("PRIO") and not ld:
            pass
        if os.environ.get("AALIGN"):
            a.raw(".p2align 6")
            for _ in range(int(os.environ["AALIGN"]) - 1):
                a.I("s_nop 0")
        a.label(f"{N}_{R}_it0")
        iteration(0)
        a.label(f"{N}_{R}_it1")
        iteration(1)
        a.I(f"s_branch {N}_{R}_it0")

        def svc():
            lab = a.uid(f"{N}_{R}_svc")
            a.I(f"s_cmp_eq_u32 {s(sBAR)}, 0")
            a.I(f"s_cbranch_scc1 {lab}")
            if ld:
                a.I("s_waitcnt vmcnt(14)")
            if "bar" not in os.environ.get("ADROP", ""):
                a.I("s_barrier")
            a.I(f"s_sub_u32 {s(sBAR)}, {s(sBAR)}, 1")
            if ld:
                emit_dma()
            a.label(lab)

        for par in range(2):
            Sc, Sn, Pc = S[par], S[1 - par], P[par]
            a.label(f"{N}_{R}_slow{par}")
            a.I("s_cselect_b32 s22, 1, 0")
            a.I("s_nop 15")
            rowmax(Sc, T0)
            a.I(f"v_max_f32 {v(T0)}, 0, {v(T0)}")
            a.I(f"v_exp_f32_e64 {v(T1)}, -{v(T0)}")
            for j in range(16):
                a.I(f"v_sub_f32 {v(NEGM + j)}, {v(NEGM + j)}, {v(T0)}")
                a.I(f"v_sub_f32 {v(Sc + j)}, {v(Sc + j)}, {v(T0)}")
                a.I(f"v_sub_f32 {v(Sn + j)}, {v(Sn + j)}, {v(T0)}")
            for j in range(64):
                a.I(f"v_mul_f32 {v(O + j)}, {v(O + j)}, {v(T1)}")
            a.I(f"v_mul_f32 {v(VL)}, {v(VL)}, {v(T1)}")
            a.I(f"v_mov_b32 {v(VLS)}, 0")
            for i in range(8):
                a.I(f"v_exp_f32 {v(E)}, {v(Sc + 2 * i)}")
                a.I(f"v_exp_f32 {v(E + 1)}, {v(Sc + 2 * i + 1)}")
                a.I("s_nop 0")
                a.I(f"v_add_f32 {v(VLS)}, {v(VLS)}, {v(E)}")
                a.I(f"v_add_f32 {v(VLS)}, {v(VLS)}, {v(E + 1)}")
                a.I(f"v_cvt_pk_bf16_f32 {v(Pc + i)}, {v(E)}, {v(E + 1)}")
            a.I(f"s_cmp_eq_u32 {s(sPH)}, 2")
            a.I(f"s_cbranch_scc1 {N}_{R}_lback{par}")
            a.I("s_cmp_lg_u32 s22, 0")
            a.I(f"s_branch {N}_{R}_back{par}")
            a.label(f"{N}_{R}_spec{par}")
            a.I(f"s_cmp_eq_u32 {s(sPH)}, 1")
            a.I(f"s_cbranch_scc1 {N}_{R}_last{1 - par}")
            if par == 0:
                a.I(f"s_cmp_eq_u32 {s(sPH)}, 3")
                a.I(f"s_cbranch_scc1 {N}_{R}_exit0")
            a.I(f"s_mov_b32 {s(sPH)}, 1")
            a.I(f"s_mov_b32 {s(sC)}, 0")
            mask_negm()
            a.I(f"s_branch {N}_{R}_it{1 - par}")
            Pp = P[1 - par]
            a.label(f"{N}_{R}_last{par}")
            a.I(f"s_mov_b32 {s(sPH)}, 2")
            a.I("s_waitcnt lgkmcnt(0)")
            voff = lambda pos: (2 * (pos % 4) + pos // 4) * 1024
            for pos in range(8):
                a.I(f"ds_read_b128 {v(RING + 4 * pos, 4)}, {v(VVA)} offset:{8192 + par * 16384 + voff(pos)}")
            a.I(f"v_add_f32 {v(VL)}, {v(VL)}, {v(VLS)}")
            a.I(f"v_mov_b32 {v(VLS)}, 0")
            dl = []
            if par == 0:
                if ld:
                    a.I("s_waitcnt vmcnt(14)")
                a.I("s_barrier")
                a.I(f"s_sub_u32 {s(sBAR)}, {s(sBAR)}, 1")
                dl = [x or "s_nop 0" for x in dma_list()] if ld else []
            for pos in range(8):
                ks, dt = divmod(pos, 4)
                a.I(f"v_exp_f32 {e(2 * pos)}, {v(Sc + 2 * pos)}")
                a.I(f"v_exp_f32 {e(2 * pos + 1)}, {v(Sc + 2 * pos + 1)}")
                a.I("s_waitcnt lgkmcnt(7)")
                a.I(f"{MF} {v(O + 16 * dt, 16)}, {v(RING + 4 * pos, 4)}, {v(Pp + 4 * ks, 4)}, {v(O + 16 * dt, 16)}")
                if par == 0:
                    a.I(f"ds_read_b128 {v(RING + 4 * pos, 4)}, {v(VVA)} offset:{8192 + 16384 + voff(pos)}")
                else:
                    a.I(f"ds_read_b128 {v(RING + 4 * pos, 4)}, {v(VKA)} offset:{8192 + voff(pos)}")
                a.I(f"v_add_f32 {v(VLS)}, {v(VLS)}, {e(2 * pos)}")
                a.I(f"v_add_f32 {v(VLS)}, {v(VLS)}, {e(2 * pos + 1)}")
                a.I(f"v_cvt_pk_bf16_f32 {v(Pc + pos)}, {e(2 * pos)}, {e(2 * pos + 1)}")
                a.many(dl[:3])
                dl = dl[3:]
            assert not dl
            a.I(f"v_cmp_nge_f32 vcc, {s(sTHR)}, {v(VLS)}")
            a.I(f"s_cbranch_vccnz {N}_{R}_slow{par}")
            a.label(f"{N}_{R}_lback{par}")
            if par == 0:
                a.I(f"s_branch {N}_{R}_fin0")
                a.label(f"{N}_{R}_exit0")
                a.I("s_waitcnt lgkmcnt(0)")
                for pos in range(8):
                    a.I(f"ds_read_b128 {v(RING + 4 * pos, 4)}, {v(VVA)} offset:{8192 + 16384 + voff(pos)}")
                a.label(f"{N}_{R}_fin0")
            a.I(f"v_add_f32 {v(VL)}, {v(VL)}, {v(VLS)}")
            nrm = [f"v_mov_b32 {v(T2)}, {v(VL)}", None, f"v_permlane32_swap_b32 {v(VL)}, {v(T2)}",
                   f"v_add_f32 {v(VL)}, {v(VL)}, {v(T2)}", f"v_rcp_f32 {v(T0)}, {v(VL)}"]
            for pos in range(8):
                dt, ks = divmod(pos, 2)
                rp = 4 * ks + dt
                a.I(f"s_waitcnt lgkmcnt({max(0, 7 - max(rp, 4 + dt - (1 - ks) * 4))})" if False else
                    f"s_waitcnt lgkmcnt({7 - rp if ks else min(7 - rp, 7 - (4 + dt - 1) if dt else 7)})")
                a.I(f"{MF} {v(O + 16 * dt, 16)}, {v(RING + 4 * rp, 4)}, {v(Pc + 4 * ks, 4)}, {v(O + 16 * dt, 16)}")
                if pos < len(nrm) and nrm[pos]:
                    a.I(nrm[pos])
            if par == 0:
                a.I(f"s_branch {N}_{R}_epi")
        a.label(f"{N}_{R}_epi")
        st()
        svc()
        if ld and (withb2 or b2tail):
            if not LT:
                a.I(f"s_and_b32 s53, {s(sW)}, 3")
                code_touch(a, "l3_kernel", 53, 48, EE + 2, nw_log=2)
            srd(a, 48, 4, 5, 64 * 128, add=WS_FLAG)
            a.I("s_lshl_b32 s52, s2, 7")
            a.I(f"v_lshlrev_b32 {v(EE)}, 2, v0")
            a.I(f"v_mov_b32 {v(EE + 1)}, 0")
            a.I("s_mov_b64 exec, 15")
            a.I(f"buffer_store_dword {v(EE + 1)}, {v(EE)}, s[48:51], s52 offen")
            a.I("s_mov_b64 exec, -1")
        for dt in range(4):
            for h in range(2):
                q = 2 * dt + h
                for i in range(4):
                    src = O + 16 * dt + 8 * h + 2 * i
                    a.I(f"v_mul_f32 {v(src)}, {v(src)}, {v(T0)}")
                    a.I(f"v_mul_f32 {v(src + 1)}, {v(src + 1)}, {v(T0)}")
                    a.I(f"v_cvt_pk_bf16_f32 {v(PK + 4 * q + i)}, {v(src)}, {v(src + 1)}")
                a.I(f"buffer_store_dwordx4 {v(PK + 4 * q, 4)}, {v(L16)}, s[36:39], s{46 + q // 4} offen offset:{(q % 4) * 1024}{SP}")
            if dt == 1:
                svc()
        if ld and b2tail:
            a.I(f"s_lshl_b32 s60, {s(sH)}, 2")
            a.I(f"s_add_u32 s60, s60, {s(sP)}")
            a.I("s_lshl_b32 s60, s60, 1")
            a.I(f"s_bfe_u32 s61, {s(sW)}, 0x10001")
            a.I("s_add_u32 s60, s60, s61")
            a.I(f"s_cmp_lt_u32 {s(sP)}, 4")
            a.I(f"s_cbranch_scc1 {N}_b2go")
            a.I("s_cmp_lg_u32 s60, 8")
            a.I(f"s_cbranch_scc1 {N}_{R}_tail")
            a.I("s_movk_i32 s60, 0x100")
            a.label(f"{N}_b2go")
            a.I("s_lshl_b32 s61, s61, 14")
            a.I(f"s_add_u32 s61, s61, {131072}")
            a.I(f"s_lshl_b32 s62, {s(sP)}, 2")
            a.I("s_sub_u32 s62, 28, s62")
            a.label(f"{N}_b2al")
            a.I(f"s_cmp_le_u32 {s(sBAR)}, s62")
            a.I(f"s_cbranch_scc1 {N}_b2st")
            a.I("s_waitcnt vmcnt(14)")
            a.I("s_barrier")
            a.I(f"s_sub_u32 {s(sBAR)}, {s(sBAR)}, 1")
            emit_dma()
            a.I(f"s_branch {N}_b2al")
            a.label(f"{N}_b2st")
            a.I(f"s_bitcmp1_b32 {s(sW)}, 0")
            a.I(f"s_cbranch_scc1 {N}_b2w1")
            for own in range(2):
                vmb = VM(a)
                nsv = [0]

                def svcb():
                    nsv[0] += 1
                    a.I("s_waitcnt vmcnt(14)")
                    vmb.q = vmb.q[-14:]
                    a.I("s_barrier")
                    a.I(f"s_sub_u32 {s(sBAR)}, {s(sBAR)}, 1")
                    for x in dma_list():
                        if x and x.startswith("buffer"):
                            vmb.issue(x, "dma")
                        else:
                            a.I(x or "s_nop 0")
                if own:
                    a.label(f"{N}_b2w1")
                b2_body(a, own, 60, 61, svcb, vmb, R0=16, S0=62, SR=48, slice_len=int(os.environ.get("SLICE", "90")))
                assert nsv[0] <= 12, nsv
                print("b2 svc slices", nsv[0])
                if not own:
                    a.I(f"s_branch {N}_{R}_tail")
        if ld:
            a.I("s_mov_b32 s54, 0")
            a.label(f"{N}_{R}_tail")
            if LT:
                a.I(f"s_cmp_gt_u32 {s(sBAR)}, {LT}")
                a.I(f"s_cbranch_scc1 {N}_notouch")
                a.I("s_cmp_lg_u32 s54, 0")
                a.I(f"s_cbranch_scc1 {N}_notouch")
                a.I("s_mov_b32 s54, 1")
                a.I(f"s_and_b32 s53, {s(sW)}, 3")
                code_touch(a, "l3_kernel", 53, 48, EE + 2, nw_log=2)
                if not os.environ.get("NOWT"):
                    srd(a, 48, 4, 5, 4 * MB, add=WS_WO)
                    a.I("s_lshr_b32 s52, s2, 3")
                    a.I("s_lshl2_add_u32 s52, s52, s53")
                    a.I("s_lshr_b32 s55, s52, 4")
                    a.I("s_lshl_b32 s55, s55, 19")
                    a.I("s_and_b32 s52, s52, 15")
                    a.I("s_lshl_b32 s52, s52, 13")
                    a.I("s_add_u32 s52, s52, s55")
                    a.I("s_bfe_u32 s55, s2, 0x20001")
                    a.I("s_lshl_b32 s55, s55, 17")
                    a.I("s_add_u32 s52, s52, s55")
                    a.I(f"v_lshlrev_b32 {v(EE)}, 7, v0")
                    a.I(f"buffer_load_dword {v(EE + 1)}, {v(EE)}, s[48:51], s52 offen")
                a.label(f"{N}_notouch")
            a.I(f"s_cmp_eq_u32 {s(sBAR)}, 0")
            a.I(f"s_cbranch_scc1 {N}_{R}_done")
            a.I("s_waitcnt vmcnt(14)")
            a.I("s_barrier")
            a.I(f"s_sub_u32 {s(sBAR)}, {s(sBAR)}, 1")
            emit_dma()
            a.I(f"s_branch {N}_{R}_tail")
            a.label(f"{N}_{R}_done")
        n0 = st.n
        st.dump(sW, 4, tmpv=T0)
        st.n = n0 - 2
        a.I("s_endpgm")

    a.I(f"s_cmp_ge_u32 {s(sW)}, 4")
    a.I(f"s_cbranch_scc1 {N}_short")
    role(False)
    a.label(f"{N}_short")
    role(True)
    kend(a, N)
    return a, N, (256, 512, 163840 if (withb2 or b2tail) else 131072)


def oproj_body(a, N, st, bar_at=None):
    ACC, CR, AFR = 64, 128, 192
    DEPTH = 8
    L16, L16B, VD0, VD1, TB = 1, 2, 3, 4, 5
    a.I("s_and_b32 s10, s2, 7")
    a.I("s_lshr_b32 s11, s2, 3")
    a.I("s_and_b32 s12, s11, 3")
    a.I("s_lshl_b32 s10, s10, 2")
    a.I("s_add_u32 s17, s10, s12")
    a.I("s_lshr_b32 s18, s11, 2")
    if os.environ.get("OPX") == "same":
        a.I("s_mov_b32 s17, 0")
        a.I("s_mov_b32 s18, 0")
    if os.environ.get("OPX") == "map2":
        a.I("s_and_b32 s10, s2, 3")
        a.I("s_lshl_b32 s10, s10, 3")
        a.I("s_and_b32 s12, s11, 7")
        a.I("s_add_u32 s17, s10, s12")
        a.I("s_bfe_u32 s10, s2, 0x10002")
        a.I("s_lshl_b32 s10, s10, 2")
        a.I("s_lshr_b32 s12, s11, 3")
        a.I("s_add_u32 s18, s10, s12")
    a.I(f"v_lshlrev_b32 {v(L16)}, 4, v0")
    a.I(f"v_add_u32 {v(L16B)}, 0x40000, {v(L16)}")
    a.I("v_lshrrev_b32 v8, 3, v0")
    a.I("v_lshlrev_b32 v8, 10, v8")
    a.I("v_bfe_u32 v9, v0, 4, 1")
    a.I("v_lshlrev_b32 v10, 2, v9")
    a.I("v_and_b32 v11, 7, v0")
    a.I("v_xor_b32 v10, v10, v11")
    a.I(f"v_lshl_add_u32 {v(VD0)}, v10, 4, v8")
    a.I("s_lshl_b32 s10, s18, 7")
    a.I(f"v_add_u32 {v(VD0)}, s10, {v(VD0)}")
    a.I(f"v_add_u32 {v(VD1)}, {8192 - 1024}, {v(VD0)}")
    a.I("v_lshrrev_b32 v8, 5, v0")
    a.I("v_bfe_u32 v10, v0, 2, 2")
    a.I("v_lshl_add_u32 v8, v8, 2, v10")
    a.I(f"v_lshlrev_b32 {v(TB)}, 7, v8")
    a.I(f"v_lshl_add_u32 {v(TB)}, v9, 5, {v(TB)}")
    a.I("v_and_b32 v10, 3, v0")
    a.I(f"v_lshl_add_u32 {v(TB)}, v10, 3, {v(TB)}")
    a.I("v_bfe_u32 v10, v0, 3, 1")
    a.I(f"v_lshl_add_u32 {v(TB)}, v10, 6, {v(TB)}")
    a.I("s_lshl_b32 s19, s16, 14")
    a.I(f"v_add_u32 {v(TB)}, s19, {v(TB)}")
    a.I(f"v_xor_b32 {v(TB + 1)}, 64, {v(TB)}")
    a.I("s_lshl_b32 s40, s17, 19")
    a.I("s_lshl_b32 s10, s16, 16")
    a.I("s_add_u32 s40, s40, s10")
    a.I("s_lshl_b32 s41, s16, 20")
    ROT = int(os.environ.get("ROT", "0"))
    if ROT:
        a.I("s_and_b32 s45, s2, 7")
        a.I(f"s_mul_i32 s45, s45, {ROT}")
    a.I("s_waitcnt lgkmcnt(0)")
    srd(a, 20, 4, 5, 16 * MB, add=WS_CTX)
    srd(a, 24, 6, 7, 4 * MB)
    srd(a, 28, 8, 9, 4 * MB)
    vm, lg = VM(a), LG(a)
    st()

    def loads(g):
        sl = g % DEPTH
        a.I(f"s_add_u32 m0, s19, {sl * 2048}")
        if ROT:
            if g % 4 == 0:
                a.I(f"s_add_u32 s44, s45, {g}")
                a.I("s_and_b32 s44, s44, 63")
                a.I("s_lshl_b32 s46, s44, 14")
                a.I("s_add_u32 s46, s46, s41")
                a.I("s_lshl_b32 s44, s44, 10")
            a.I(f"s_add_u32 s42, s46, {hex((g % 4) * 16384)}")
        else:
            a.I(f"s_add_u32 s42, s41, {hex(g * 16384)}")
        vm.issue(f"buffer_load_dwordx4 {v(VD0)}, s[24:27], s42 offen lds", g)
        vm.issue(f"buffer_load_dwordx4 {v(VD1)}, s[24:27], s42 offen offset:1024 lds", g)
        if g % 4 == 0:
            a.I(f"s_add_u32 s43, s40, {'s44' if ROT else hex(g * 1024)}")
        vm.issue(f"buffer_load_dwordx4 {v(CR + 8 * sl, 4)}, {v(L16)}, s[20:23], s43 offen offset:{(g % 4) * 1024}", g)
        vm.issue(f"buffer_load_dwordx4 {v(CR + 8 * sl + 4, 4)}, {v(L16B)}, s[20:23], s43 offen offset:{(g % 4) * 1024}", g)

    def trs(g):
        sl = g % DEPTH
        vm.wait(g)
        for cb in range(2):
            d = AFR + 8 * (g & 1) + 4 * cb
            lg.issue(f"ds_read_b64_tr_b16 {v(d, 2)}, {v(TB + cb)} offset:{sl * 2048}", g)
            lg.issue(f"ds_read_b64_tr_b16 {v(d + 2, 2)}, {v(TB + cb)} offset:{sl * 2048 + 1024}", g)

    for g in range(DEPTH):
        loads(g)
    st()
    trs(0)
    st()
    for g in range(64):
        if g + 1 < 64:
            trs(g + 1)
        lg.wait(g)
        sl = g % DEPTH
        for qt in range(2):
            for cb in range(2):
                acc = v(ACC + 16 * (2 * qt + cb), 16)
                a.I(f"{MF} {acc}, {v(AFR + 8 * (g & 1) + 4 * cb, 4)}, {v(CR + 8 * sl + 4 * qt, 4)}, {'0' if g == 0 else acc}")
        if g + DEPTH < 64:
            loads(g + DEPTH)
        if g == bar_at:
            a.I("s_barrier")
    st()
    a.I(f"v_add_u32 v8, s19, {v(L16)}")
    a.I("s_nop 11")
    for tl in range(4):
        for jq in range(4):
            a.I(f"ds_write_b128 v8, {v(ACC + 16 * tl + 4 * jq, 4)} offset:{(tl * 4 + jq) * 1024}")
    a.I("v_lshrrev_b32 v9, 5, v0")
    a.I("v_and_b32 v10, 31, v0")
    a.I("v_lshlrev_b32 v10, 4, v10")
    a.I("v_lshl_add_u32 v9, v9, 13, v10")
    a.I("s_lshl_b32 s10, s16, 11")
    a.I("v_add_u32 v9, s10, v9")
    a.I("s_lshl_b32 s11, s17, 17")
    a.I("s_lshl_b32 s12, s18, 7")
    a.I("s_add_u32 s11, s11, s12")
    a.I("s_lshl_b32 s12, s16, 5")
    a.I("s_add_u32 s11, s11, s12")
    a.I("v_lshlrev_b32 v10, 11, v0")
    a.I("s_waitcnt lgkmcnt(0)")
    return ACC


def oproj_body2(a, N, st, bar_at=None):
    DEPTH = int(os.environ.get("ODEPTH", "8"))
    ACC, CR = 192 - 16 * DEPTH, 256 - 16 * DEPTH
    L16, L16B = 1, 2
    a.I("s_and_b32 s10, s2, 7")
    a.I("s_lshr_b32 s11, s2, 3")
    a.I("s_and_b32 s12, s11, 3")
    a.I("s_lshl_b32 s10, s10, 2")
    a.I("s_add_u32 s17, s10, s12")
    a.I("s_lshr_b32 s18, s11, 2")
    if os.environ.get("OPX") == "same":
        a.I("s_mov_b32 s17, 0")
        a.I("s_mov_b32 s18, 0")
    if os.environ.get("OPX") == "sameq":
        a.I("s_and_b32 s17, s17, 3")
    if os.environ.get("OPX") == "map2":
        a.I("s_and_b32 s10, s2, 3")
        a.I("s_lshl_b32 s10, s10, 3")
        a.I("s_and_b32 s12, s11, 7")
        a.I("s_add_u32 s17, s10, s12")
        a.I("s_bfe_u32 s10, s2, 0x10002")
        a.I("s_lshl_b32 s10, s10, 2")
        a.I("s_lshr_b32 s12, s11, 3")
        a.I("s_add_u32 s18, s10, s12")
    a.I(f"v_lshlrev_b32 {v(L16)}, 4, v0")
    a.I(f"v_add_u32 {v(L16B)}, 0x40000, {v(L16)}")
    a.I("s_lshl_b32 s19, s16, 14")
    a.I("s_lshl_b32 s40, s17, 19")
    a.I("s_lshl_b32 s10, s16, 16")
    a.I("s_add_u32 s40, s40, s10")
    a.I("s_lshl_b32 s41, s18, 19")
    a.I("s_lshl_b32 s10, s16, 17")
    a.I("s_add_u32 s41, s41, s10")
    a.I("s_waitcnt lgkmcnt(0)")
    srd(a, 20, 4, 5, 16 * MB, add=WS_CTX)
    srd(a, 24, 4, 5, 4 * MB, add=WS_WO)
    srd(a, 28, 8, 9, 4 * MB)
    vm = VM(a)
    st()

    def loads(g):
        sl = g % DEPTH
        L = []
        if g % 2 == 0:
            L.append(lambda: a.I(f"s_add_u32 s42, s41, {hex(g * 2048)}"))
        if g % 4 == 0:
            L.append(lambda: a.I(f"s_add_u32 s43, s40, {hex(g * 1024)}"))
        for cb in range(2):
            L.append(lambda cb=cb: vm.issue(f"buffer_load_dwordx4 {v(CR + 16 * sl + 4 * cb, 4)}, {v(L16)}, s[24:27], s42 offen "
                                            f"offset:{(g % 2) * 2048 + cb * 1024}", g))
        for qt in range(2):
            L.append(lambda qt=qt: vm.issue(f"buffer_load_dwordx4 {v(CR + 16 * sl + 8 + 4 * qt, 4)}, {v(L16 + qt)}, s[20:23], s43 offen "
                                            f"offset:{(g % 4) * 1024}", g))
        return L

    for g in range(DEPTH):
        for f in loads(g):
            f()
    st()
    st()
    for g in range(64):
        vm.wait(g)
        sl = g % DEPTH
        for qt in range(2):
            for cb in range(2):
                acc = v(ACC + 16 * (2 * qt + cb), 16)
                a.I(f"{MF} {acc}, {v(CR + 16 * sl + 4 * cb, 4)}, {v(CR + 16 * sl + 8 + 4 * qt, 4)}, {'0' if g == 0 else acc}")
        if g + DEPTH < 64:
            for f in loads(g + DEPTH):
                f()
        if g == bar_at:
            a.I("s_barrier")
    st()
    a.I(f"v_add_u32 v8, s19, {v(L16)}")
    a.I("v_lshrrev_b32 v9, 5, v0")
    a.I("v_and_b32 v10, 31, v0")
    a.I("v_lshlrev_b32 v10, 4, v10")
    a.I("v_lshl_add_u32 v9, v9, 13, v10")
    a.I("s_lshl_b32 s10, s16, 11")
    a.I("v_add_u32 v9, s10, v9")
    a.I("s_lshl_b32 s11, s17, 17")
    a.I("s_lshl_b32 s12, s18, 7")
    a.I("s_add_u32 s11, s11, s12")
    a.I("s_lshl_b32 s12, s16, 5")
    a.I("s_add_u32 s11, s11, s12")
    a.I("v_lshlrev_b32 v10, 11, v0")
    for tl in range(4):
        for jq in range(4):
            a.I(f"ds_write_b128 v8, {v(ACC + 16 * tl + 4 * jq, 4)} offset:{(tl * 4 + jq) * 1024}")
    a.I("s_waitcnt lgkmcnt(0)")
    return ACC


def oproj_body3(a, N, st, bar_at=None):
    DEPTH = 8
    ACC, FR = 64, 128
    L16, L16B, LR = 1, 2, 3
    a.I("s_and_b32 s10, s2, 7")
    a.I("s_lshr_b32 s11, s2, 3")
    a.I("s_and_b32 s12, s11, 3")
    a.I("s_lshl_b32 s10, s10, 2")
    a.I("s_add_u32 s17, s10, s12")
    a.I("s_lshr_b32 s18, s11, 2")
    a.I(f"v_lshlrev_b32 {v(L16)}, 4, v0")
    a.I(f"v_add_u32 {v(L16B)}, {0x40000 - 1024}, {v(L16)}")
    a.I("s_lshl_b32 s19, s16, 15")
    a.I(f"v_add_u32 {v(LR)}, s19, {v(L16)}")
    a.I("s_lshl_b32 s42, s18, 19")
    a.I("s_lshl_b32 s10, s16, 17")
    a.I("s_add_u32 s42, s42, s10")
    a.I("s_lshl_b32 s43, s17, 19")
    a.I("s_lshl_b32 s10, s16, 16")
    a.I("s_add_u32 s43, s43, s10")
    RB = int(os.environ.get("RB", "0"))
    if RB:
        a.I("s_lshl1_add_u32 s45, s12, s18")
        a.I("s_and_b32 s45, s45, 7")
        a.I(f"s_mul_i32 s45, s45, {RB // 8 * 1024}")
        a.I("s_mov_b32 s40, s43")
        a.I("s_mov_b32 s41, s42")
        a.I("s_add_u32 s43, s40, s45")
        a.I("s_lshl1_add_u32 s42, s45, s41")
    a.I("s_waitcnt lgkmcnt(0)")
    srd(a, 20, 4, 5, 16 * MB + 2048, add=WS_CTX - 2048)
    srd(a, 24, 4, 5, 4 * MB, add=WS_WO)
    srd(a, 28, 8, 9, 4 * MB)
    vm, lg = VM(a), LG(a)
    st()

    def loads(g):
        sl = g % DEPTH
        return [lambda: a.I(f"s_add_u32 m0, s19, {sl * 4096}"),
                lambda: a.I("s_nop 0") if g < DEPTH else None,
                lambda: vm.issue(f"buffer_load_dwordx4 {v(L16)}, s[24:27], s42 offen lds", g),
                lambda: vm.issue(f"buffer_load_dwordx4 {v(L16)}, s[24:27], s42 offen offset:1024 lds", g),
                lambda: vm.issue(f"buffer_load_dwordx4 {v(L16)}, s[20:23], s43 offen offset:2048 lds", g),
                lambda: vm.issue(f"buffer_load_dwordx4 {v(L16B)}, s[20:23], s43 offen offset:3072 lds", g),
                lambda: nxt(g), lambda: None]

    def nxt(g):
        if not RB:
            a.I("s_add_u32 s42, s42, 2048")
            a.I("s_add_u32 s43, s43, 1024")
            return
        a.I("s_add_u32 s45, s45, 1024")
        a.I(f"s_and_b32 s45, s45, {RB * 1024 - 1}")
        if (g + 1) % RB == 0:
            a.I(f"s_add_u32 s40, s40, {RB * 1024}")
            a.I(f"s_add_u32 s41, s41, {RB * 2048}")
        a.I("s_add_u32 s43, s40, s45")
        a.I("s_lshl1_add_u32 s42, s45, s41")

    def reads(g):
        vm.wait(g)
        for q in range(4):
            lg.issue(f"ds_read_b128 {v(FR + 16 * (g & 1) + 4 * q, 4)}, {v(LR)} offset:{(g % DEPTH) * 4096 + q * 1024}", g)

    for g in range(DEPTH):
        for f in loads(g):
            f()
    st()
    reads(0)
    st()
    for g in range(64):
        if g + 1 < 64:
            reads(g + 1)
        lg.wait(g)
        L = loads(g + DEPTH) if g + DEPTH < 64 else []
        fr = FR + 16 * (g & 1)
        for qt in range(2):
            for cb in range(2):
                acc = v(ACC + 16 * (2 * qt + cb), 16)
                if L:
                    L.pop(0)()
                a.I(f"{MF} {acc}, {v(fr + 4 * cb, 4)}, {v(fr + 8 + 4 * qt, 4)}, {'0' if g == 0 else acc}")
                if L:
                    L.pop(0)()
        if g == bar_at:
            a.I("s_barrier")
    st()
    a.I("v_lshrrev_b32 v9, 5, v0")
    a.I("v_and_b32 v10, 31, v0")
    a.I("v_lshlrev_b32 v10, 4, v10")
    a.I("v_lshl_add_u32 v9, v9, 13, v10")
    a.I("s_lshl_b32 s10, s16, 11")
    a.I("v_add_u32 v9, s10, v9")
    a.I("s_lshl_b32 s11, s17, 17")
    a.I("s_lshl_b32 s12, s18, 7")
    a.I("s_add_u32 s11, s11, s12")
    a.I("s_lshl_b32 s12, s16, 5")
    a.I("s_add_u32 s11, s11, s12")
    a.I("v_lshlrev_b32 v10, 11, v0")
    for tl in range(4):
        for jq in range(4):
            a.I(f"ds_write_b128 {v(LR)}, {v(ACC + 16 * tl + 4 * jq, 4)} offset:{(tl * 4 + jq) * 1024}")
    a.I("s_waitcnt lgkmcnt(0)")
    return ACC


def oproj_body4(a, N, st, bar_at=None):
    DEPTH = 4
    ACC, FR = 32, 96
    L16, L16B, LR = 1, 2, 3
    a.I("s_and_b32 s10, s2, 7")
    a.I("s_lshr_b32 s11, s2, 3")
    a.I("s_and_b32 s12, s11, 3")
    a.I("s_lshl_b32 s10, s10, 2")
    a.I("s_add_u32 s17, s10, s12")
    a.I("s_lshr_b32 s18, s11, 2")
    a.I(f"v_lshlrev_b32 {v(L16)}, 4, v0")
    a.I(f"v_add_u32 {v(L16B)}, {0x40000 - 1024}, {v(L16)}")
    a.I("s_lshl_b32 s19, s16, 14")
    a.I(f"v_add_u32 {v(LR)}, s19, {v(L16)}")
    a.I("s_lshl_b32 s42, s18, 19")
    a.I("s_lshl_b32 s10, s16, 16")
    a.I("s_add_u32 s42, s42, s10")
    a.I("s_lshl_b32 s43, s17, 19")
    a.I("s_lshl_b32 s10, s16, 15")
    a.I("s_add_u32 s43, s43, s10")
    a.I("s_waitcnt lgkmcnt(0)")
    srd(a, 20, 4, 5, 16 * MB + 2048, add=WS_CTX - 2048)
    srd(a, 24, 4, 5, 4 * MB, add=WS_WO)
    vm, lg = VM(a), LG(a)
    st()

    def loads(g):
        sl = g % DEPTH
        return [lambda: a.I(f"s_add_u32 m0, s19, {sl * 4096}"),
                lambda: a.I("s_nop 0") if g < DEPTH else None,
                lambda: vm.issue(f"buffer_load_dwordx4 {v(L16)}, s[24:27], s42 offen lds", g),
                lambda: vm.issue(f"buffer_load_dwordx4 {v(L16)}, s[24:27], s42 offen offset:1024 lds", g),
                lambda: vm.issue(f"buffer_load_dwordx4 {v(L16)}, s[20:23], s43 offen offset:2048 lds", g),
                lambda: vm.issue(f"buffer_load_dwordx4 {v(L16B)}, s[20:23], s43 offen offset:3072 lds", g),
                lambda: a.I("s_add_u32 s42, s42, 2048"),
                lambda: a.I("s_add_u32 s43, s43, 1024")]

    def reads(g):
        vm.wait(g)
        for q in range(4):
            lg.issue(f"ds_read_b128 {v(FR + 16 * (g & 1) + 4 * q, 4)}, {v(LR)} offset:{(g % DEPTH) * 4096 + q * 1024}", g)

    for g in range(DEPTH):
        for f in loads(g):
            f()
    srd(a, 28, 8, 9, 4 * MB)
    a.I("v_lshrrev_b32 v9, 5, v0")
    a.I("v_and_b32 v10, 31, v0")
    a.I("v_lshlrev_b32 v10, 4, v10")
    a.I("v_lshl_add_u32 v9, v9, 13, v10")
    a.I("s_lshl_b32 s10, s16, 10")
    a.I("v_add_u32 v9, s10, v9")
    a.I("v_add_u32 v11, 0x10000, v9")
    a.I("s_lshl_b32 s11, s17, 17")
    a.I("s_lshl_b32 s12, s18, 7")
    a.I("s_add_u32 s11, s11, s12")
    a.I("s_lshl_b32 s12, s16, 4")
    a.I("s_add_u32 s11, s11, s12")
    a.I("v_lshlrev_b32 v10, 11, v0")
    st()
    reads(0)
    st()
    NG = 32
    for g in range(NG):
        if g + 1 < NG:
            reads(g + 1)
        lg.wait(g)
        L = loads(g + DEPTH) if g + DEPTH < NG else []
        fr = FR + 16 * (g & 1)
        for qt in range(2):
            for cb in range(2):
                acc = v(ACC + 16 * (2 * qt + cb), 16)
                if L:
                    L.pop(0)()
                a.I(f"{MF} {acc}, {v(fr + 4 * cb, 4)}, {v(fr + 8 + 4 * qt, 4)}, {'0' if g == 0 else acc}")
                if L:
                    L.pop(0)()
        if g == bar_at:
            a.I("s_barrier")
    st()
    a.I("s_nop 8")
    for tl in range(4):
        for jq in range(4):
            a.I(f"ds_write_b128 {v(LR)}, {v(ACC + 16 * tl + 4 * jq, 4)} offset:{(tl * 4 + jq) * 1024}")
    a.I("s_waitcnt lgkmcnt(0)")
    a.I("s_barrier")
    for pw in range(8):
        for hl in range(2):
            a.I(f"ds_read_b128 {v(ACC + 8 * pw + 4 * hl, 4)}, {v(9 if pw < 4 else 11)} offset:{(pw % 4) * 16384 + hl * 512}")
        if pw == 6:
            a.I("s_waitcnt lgkmcnt(6)")
    for j in range(8):
        a.I(f"v_add_f32 {v(ACC + j)}, {v(ACC + j)}, {v(ACC + 8 + j)}")
        a.I(f"v_add_f32 {v(ACC + 16 + j)}, {v(ACC + 16 + j)}, {v(ACC + 24 + j)}")
    a.I("s_waitcnt lgkmcnt(0)")
    for j in range(8):
        a.I(f"v_add_f32 {v(ACC + 32 + j)}, {v(ACC + 32 + j)}, {v(ACC + 40 + j)}")
        a.I(f"v_add_f32 {v(ACC + 48 + j)}, {v(ACC + 48 + j)}, {v(ACC + 56 + j)}")
    for j in range(8):
        a.I(f"v_add_f32 {v(ACC + j)}, {v(ACC + j)}, {v(ACC + 16 + j)}")
        a.I(f"v_add_f32 {v(ACC + 32 + j)}, {v(ACC + 32 + j)}, {v(ACC + 48 + j)}")
    for j in range(8):
        a.I(f"v_add_f32 {v(ACC + j)}, {v(ACC + j)}, {v(ACC + 32 + j)}")
    for i in range(4):
        a.I(f"v_cvt_pk_bf16_f32 {v(12 + i)}, {v(ACC + 2 * i)}, {v(ACC + 2 * i + 1)}")
    a.I("buffer_store_dwordx4 v[12:15], v10, s[28:31], s11 offen")


def oproj_finish(a, ACC, PW=16384):
    for pw in range(4):
        for i in range(4):
            jq, hl = divmod(i, 2)
            if pw == 2 and i == 0 and PW > 16384:
                a.I("v_add_u32 v9, 0x10000, v9")
            a.I(f"ds_read_b128 {v(ACC + 16 * pw + 4 * i, 4)}, v9 offset:{(pw * PW) % 65536 + jq * 1024 + hl * 512}")
        if pw == 1:
            a.I("s_waitcnt lgkmcnt(0)")
            for j in range(16):
                a.I(f"v_add_f32 {v(ACC + j)}, {v(ACC + j)}, {v(ACC + 16 + j)}")
    a.I("s_waitcnt lgkmcnt(0)")
    for j in range(16):
        a.I(f"v_add_f32 {v(ACC + 32 + j)}, {v(ACC + 32 + j)}, {v(ACC + 48 + j)}")
    for j in range(16):
        a.I(f"v_add_f32 {v(ACC + j)}, {v(ACC + j)}, {v(ACC + 32 + j)}")
    for i in range(8):
        a.I(f"v_cvt_pk_bf16_f32 {v(12 + i)}, {v(ACC + 2 * i)}, {v(ACC + 2 * i + 1)}")
    a.I("buffer_store_dwordx4 v[12:15], v10, s[28:31], s11 offen")
    a.I("buffer_store_dwordx4 v[16:19], v10, s[28:31], s11 offen offset:16")


def gen_oproj():
    a = Asm()
    N = "oproj_kernel"
    kstart(a, N, 256)
    a.I("s_load_dwordx2 s[4:5], s[0:1], 88")
    a.I("s_load_dwordx2 s[6:7], s[0:1], 40")
    a.I("s_load_dwordx2 s[8:9], s[0:1], 72")
    a.I("v_lshrrev_b32 v1, 6, v0")
    a.I("v_and_b32 v0, 63, v0")
    a.I("s_nop 0")
    a.I("v_readfirstlane_b32 s16, v1")
    a.I("s_nop 0")
    st = Stamper(a, "oproj")
    ACC = oproj_body(a, N, st)
    a.I("s_barrier")
    oproj_finish(a, ACC)
    st.dump(16, 4, tmpv=8)
    kend(a, N)
    return a, N, (256, 256, 65536)


def PERMC(j):
    return 8 * (j >> 2) + (j & 3)


def gen_mat(a, dst, nf, base, consts, tmp):
    n = len(consts)
    for i in range(0, n, 4):
        for q in range(4):
            a.I(f"v_fmamk_f32 {v(tmp + q)}, {v(nf)}, {f32(float(consts[i + q]))}, {v(base)}")
        for q in range(4):
            a.I(f"v_cos_f32 {v(tmp + q)}, {v(tmp + q)}")
        a.I("s_nop 0")
        for q in range(2):
            a.I(f"v_cvt_pk_bf16_f32 {v(dst + i // 2 + q)}, {v(tmp + 2 * q)}, {v(tmp + 2 * q + 1)}")


def twiddle(a, Dr, Di, regs, nf, base, consts, sign, tmp):
    for x, c in enumerate(consts):
        A, C, S_, U = tmp, tmp + 1, tmp + 2, tmp + 3
        a.I(f"v_fmamk_f32 {v(A)}, {v(nf)}, {f32(float(c))}, {v(base)}")
        a.I(f"v_cos_f32 {v(C)}, {v(A)}")
        a.I(f"v_sin_f32 {v(S_)}, {v(A)}")
        a.I("s_nop 0")
        for j in regs[x]:
            ng = "-" if sign > 0 else ""
            ps = "" if sign > 0 else "-"
            a.I(f"v_mul_f32 {v(U)}, {v(Dr + j)}, {v(S_)}")
            a.I(f"v_mul_f32 {v(Dr + j)}, {v(Dr + j)}, {v(C)}")
            a.I(f"v_fma_f32 {v(Dr + j)}, {ng}{v(Di + j)}, {v(S_)}, {v(Dr + j)}")
            a.I(f"v_fma_f32 {v(Di + j)}, {v(Di + j)}, {v(C)}, {ps}{v(U)}")


def trig(a, j, C, S_, nf, base, c, tmp, scale=None):
    L = [f"v_fmamk_f32 {v(tmp)}, {v(nf)}, {f32(float(c))}, {v(base)}",
         f"v_cos_f32 {v(C)}, {v(tmp)}", f"v_sin_f32 {v(S_)}, {v(tmp)}"]
    return L


def cmul(a, Dr, Di, C, S_, sign, U):
    ng = "-" if sign > 0 else ""
    ps = "" if sign > 0 else "-"
    a.I(f"v_mul_f32 {v(U)}, {v(Dr)}, {v(S_)}")
    a.I(f"v_mul_f32 {v(Dr)}, {v(Dr)}, {v(C)}")
    a.I(f"v_fma_f32 {v(Dr)}, {ng}{v(Di)}, {v(S_)}, {v(Dr)}")
    a.I(f"v_fma_f32 {v(Di)}, {v(Di)}, {v(C)}, {ps}{v(U)}")


def pack(a, dst, src, n):
    for i in range(n):
        a.I(f"v_cvt_pk_bf16_f32 {v(dst + i)}, {v(src + 2 * i)}, {v(src + 2 * i + 1)}")


def b_decode(a):
    a.I("s_and_b32 s20, s2, 7")
    a.I("s_lshl_b32 s20, s20, 3")
    a.I("s_bfe_u32 s22, s2, 0x30003")
    a.I("s_or_b32 s20, s20, s22")
    a.I("s_lshr_b32 s21, s2, 6")


def gen_b1():
    a = Asm()
    N = "b1_kernel"
    kstart(a, N, 256)
    a.I("s_load_dwordx2 s[4:5], s[0:1], 88")
    a.I("s_load_dwordx4 s[8:11], s[0:1], 48")
    a.I("s_load_dwordx2 s[12:13], s[0:1], 64")
    a.I("v_lshrrev_b32 v1, 6, v0")
    a.I("v_and_b32 v2, 255, v0")
    a.I("v_and_b32 v0, 63, v0")
    a.I("v_readfirstlane_b32 s16, v1")
    b_decode(a)
    a.I("s_lshr_b32 s23, s21, 1")
    a.I("s_lshl_b32 s23, s23, 11")
    a.I("s_lshr_b32 s24, s20, 5")
    a.I("s_lshl_b32 s24, s24, 10")
    a.I("s_add_u32 s23, s23, s24")
    a.I("s_and_b32 s24, s20, 31")
    a.I("s_lshl_b32 s24, s24, 4")
    a.I("s_add_u32 s23, s23, s24")
    a.I("s_and_b32 s24, s21, 1")
    a.I("s_lshl_b32 s24, s24, 9")
    a.I("s_add_u32 s23, s23, s24")
    a.I("s_add_u32 s24, s23, 4096")
    a.I("v_lshlrev_b32 v3, 13, v2")
    a.I("s_cmp_ge_u32 s16, 4")
    a.I("s_waitcnt lgkmcnt(0)")
    a.I(f"s_cbranch_scc1 {N}_filt")
    srd(a, 28, 8, 9, 2 * MB)
    srd(a, 32, 4, 5, 257 * 8192, add=WS_Y)
    a.I("s_lshr_b32 s25, s21, 1")
    a.I("s_lshl_b32 s25, s25, 4")
    a.I("s_and_b32 s26, s21, 1")
    a.I("s_lshl_b32 s26, s26, 2")
    a.I("s_add_u32 s25, s25, s26")
    a.I("s_lshr_b32 s26, s16, 1")
    a.I("s_lshl_b32 s26, s26, 3")
    a.I("s_add_u32 s25, s25, s26")
    a.I("s_and_b32 s26, s16, 1")
    a.I("s_lshl_b32 s26, s26, 1")
    a.I("s_add_u32 s25, s25, s26")
    a.I("s_lshl_b32 s25, s25, 6")
    a.I("s_add_u32 s25, s25, s20")
    a.I("s_lshl_b32 s25, s25, 10")
    a.I(f"s_add_u32 s26, s25, {65536 - 1024}")
    a.I("s_lshl_b32 s27, s16, 11")
    a.I("s_mov_b32 m0, s27")
    a.I("v_lshlrev_b32 v4, 4, v0")
    a.I("buffer_load_dwordx4 v4, s[28:31], s25 offen lds")
    a.I("buffer_load_dwordx4 v4, s[28:31], s26 offen offset:1024 lds")
    HL, NF, BS, TM = 5, 6, 7, 8
    C32, NS32, AR, AI, XF, D1R, D1I, TR, TI, D2 = 16, 24, 32, 36, 40, 48, 64, 80, 88, 96
    a.I(f"v_lshrrev_b32 {v(HL)}, 5, v0")
    a.I(f"v_cvt_f32_u32 {v(HL)}, {v(HL)}")
    a.I("v_and_b32 v12, 31, v0")
    a.I("v_cvt_f32_u32 v12, v12")
    a.I(f"v_mul_f32 {v(NF)}, {f32(1 / 32)}, v12")
    a.I(f"v_mul_f32 {v(BS)}, {v(NF)}, {v(HL)}")
    a.I(f"v_mul_f32 {v(BS)}, {f32(8.0)}, {v(BS)}")
    nat = [16 * t + j for t in range(2) for j in range(8)]
    gen_mat(a, C32, NF, BS, nat, TM)
    a.I(f"v_add_f32 {v(BS)}, {f32(0.25)}, {v(BS)}")
    gen_mat(a, NS32, NF, BS, nat, TM)
    a.I("v_and_b32 v13, 15, v0")
    a.I("v_cvt_f32_u32 v13, v13")
    a.I(f"v_mul_f32 {v(NF)}, {f32(1 / 16)}, v13")
    a.I("v_bfe_u32 v13, v0, 4, 1")
    a.I("v_cvt_f32_u32 v13, v13")
    a.I(f"v_mul_f32 {v(BS)}, {v(NF)}, {v(HL)}")
    a.I(f"v_mul_f32 {v(BS)}, 4.0, {v(BS)}")
    a.I(f"v_fmamk_f32 {v(BS)}, v13, {f32(0.25)}, {v(BS)}")
    pc = [PERMC(j) for j in range(8)]
    gen_mat(a, AR, NF, BS, pc, TM)
    a.I(f"v_add_f32 {v(BS)}, {f32(-0.25)}, {v(BS)}")
    gen_mat(a, AI, NF, BS, pc, TM)
    a.I("v_bfe_u32 v13, v0, 4, 1")
    a.I("v_lshlrev_b32 v13, 10, v13")
    a.I("v_lshrrev_b32 v14, 5, v0")
    a.I("v_lshl_add_u32 v13, v14, 8, v13")
    a.I("v_and_b32 v15, 15, v0")
    a.I("v_lshl_add_u32 v13, v15, 3, v13")
    a.I("v_add_u32 v13, s27, v13")
    a.I("s_waitcnt vmcnt(0)")
    for t in range(2):
        for h in range(2):
            a.I(f"ds_read_b64_tr_b16 {v(XF + 4 * t + 2 * h, 2)}, v13 offset:{t * 512 + h * 128}")
    a.I(f"v_mul_f32 {v(NF)}, {f32(1 / 512)}, v12")
    a.I(f"v_mul_f32 {v(BS)}, {v(NF)}, {v(HL)}")
    a.I(f"v_mul_f32 {v(BS)}, 4.0, {v(BS)}")
    a.I("s_waitcnt lgkmcnt(0)")
    for t in range(2):
        a.I(f"{MF} {v(D1R, 16)}, {v(XF + 4 * t, 4)}, {v(C32 + 4 * t, 4)}, {'0' if t == 0 else v(D1R, 16)}")
    for t in range(2):
        a.I(f"{MF} {v(D1I, 16)}, {v(XF + 4 * t, 4)}, {v(NS32 + 4 * t, 4)}, {'0' if t == 0 else v(D1I, 16)}")
    a.I("v_and_b32 v15, 31, v0")
    a.I("v_lshlrev_b32 v15, 4, v15")
    a.I("v_lshl_add_u32 v15, v14, 11, v15")
    a.I("s_lshl_b32 s25, s16, 2")
    a.I("s_add_u32 s25, s25, 8192")
    a.I("v_add_u32 v15, s25, v15")
    a.I("s_nop 7")
    twiddle(a, D1R, D1I, [[j, j + 8] for j in range(8)], NF, BS, pc, -1, TM)
    pack(a, TR, D1R, 8)
    pack(a, TI, D1I, 8)
    a.I("s_nop 1")
    for r in range(2):
        a.I(f"{MF} {v(D2 + 16 * r, 16)}, {v(AR, 4)}, {v(TR + 4 * r, 4)}, 0")
        a.I(f"{MF} {v(D2 + 16 * r, 16)}, {v(AI, 4)}, {v(TI + 4 * r, 4)}, {v(D2 + 16 * r, 16)}")
    a.I("s_nop 11")
    for c in range(2):
        for j in range(5):
            a.I(f"v_cvt_pk_bf16_f32 {v(TR + 5 * c + j)}, {v(D2 + 8 * c + j)}, {v(D2 + 16 + 8 * c + j)}")
    for c in range(2):
        for j in range(4):
            a.I(f"ds_write_b32 v15, {v(TR + 5 * c + j)} offset:{(c * 8 + j) * 512}")
    a.I("v_cmp_eq_u32 vcc, 0, v0")
    a.I("s_and_saveexec_b64 s[36:37], vcc")
    for c in range(2):
        a.I(f"ds_write_b32 v15, {v(TR + 5 * c + 4)} offset:{8192 + 16 * c}")
    a.I("s_mov_b64 exec, s[36:37]")
    a.I("v_lshlrev_b32 v14, 4, v2")
    a.I("s_waitcnt lgkmcnt(0)")
    a.I("s_barrier")
    a.I("ds_read_b128 v[16:19], v14 offset:8192")
    a.I(f"ds_read_b128 v[20:23], v14 offset:{8192 + 4096}")
    a.I(f"ds_read_b128 v[24:27], v14 offset:{8192 + 8192}")
    a.I("v_lshlrev_b32 v13, 12, v2")
    a.I(f"v_add_u32 v13, {256 * 8192}, v13")
    a.I("s_waitcnt lgkmcnt(0)")
    a.I("buffer_store_dwordx4 v[16:19], v3, s[32:35], s23 offen")
    a.I("buffer_store_dwordx4 v[20:23], v3, s[32:35], s24 offen")
    a.I("v_cmp_gt_u32 vcc, 2, v2")
    a.I("s_and_saveexec_b64 s[36:37], vcc")
    a.I(f"s_cbranch_execz {N}_end")
    a.I("buffer_store_dwordx4 v[24:27], v13, s[32:35], s23 offen")
    a.I("s_endpgm")
    a.label(f"{N}_filt")
    srd(a, 28, 10, 11, 2048 * 514)
    srd(a, 32, 12, 13, 2048 * 514)
    srd(a, 36, 4, 5, 257 * 8192, add=WS_WF)
    a.I("s_lshr_b32 s25, s21, 1")
    a.I("s_lshl_b32 s25, s25, 5")
    a.I("s_lshr_b32 s26, s20, 5")
    a.I("s_lshl_b32 s26, s26, 4")
    a.I("s_add_u32 s25, s25, s26")
    a.I("s_and_b32 s26, s21, 1")
    a.I("s_lshl_b32 s26, s26, 2")
    a.I("s_add_u32 s25, s25, s26")
    a.I("s_lshl_b32 s25, s25, 5")
    a.I("s_and_b32 s26, s20, 31")
    a.I("s_add_u32 s25, s25, s26")
    a.I("s_mul_i32 s25, s25, 514")
    for j in range(8):
        a.I(f"s_add_u32 s{40 + j}, s25, {PERMC(j) * 32 * 514}")
    a.I("v_lshlrev_b32 v4, 1, v2")
    a.I("v_mov_b32 v5, 512")
    for q, va in enumerate((4, 5)):
        for c in range(2):
            for j in range(8):
                a.I(f"buffer_load_ushort {v(32 + 16 * q + 8 * c + j)}, {v(va)}, s[{28 + 4 * c}:{31 + 4 * c}], s{40 + j} offen")
    a.I(f"v_mov_b32 v6, {256 * 8192}")
    a.I("s_waitcnt vmcnt(16)")
    for i in range(8):
        a.I(f"v_lshl_or_b32 {v(16 + i)}, {v(33 + 2 * i)}, 16, {v(32 + 2 * i)}")
    a.I("buffer_store_dwordx4 v[16:19], v3, s[36:39], s23 offen")
    a.I("buffer_store_dwordx4 v[20:23], v3, s[36:39], s24 offen")
    a.I("v_cmp_eq_u32 vcc, 0, v2")
    a.I("s_and_saveexec_b64 s[48:49], vcc")
    a.I(f"s_cbranch_execz {N}_end")
    a.I("s_waitcnt vmcnt(2)")
    for i in range(8):
        a.I(f"v_lshl_or_b32 {v(24 + i)}, {v(49 + 2 * i)}, 16, {v(48 + 2 * i)}")
    a.I("buffer_store_dwordx4 v[24:27], v6, s[36:39], s23 offen")
    a.I("buffer_store_dwordx4 v[28:31], v6, s[36:39], s24 offen")
    kend(a, N)
    return a, N, (256, 512, 20480)


def b2_loads(a, vm, col_s, own_s, L16, YR, WR, S0, SR):
    sY, sW = S0, S0 + 2
    a.I(f"s_lshl_b32 {s(sY)}, {s(col_s)}, 13")
    a.I(f"s_lshl_b32 {s(own_s)}, {s(own_s)}, 10")
    a.I(f"s_add_u32 {s(sY)}, {s(sY)}, {s(own_s)}")
    a.I(f"s_add_u32 {s(sY + 1)}, {s(sY)}, 4096")
    a.I(f"s_add_u32 {s(sW)}, {s(sY)}, {s(own_s)}")
    a.I(f"s_add_u32 {s(sW + 1)}, {s(sW)}, 4096")
    srd(a, SR, 4, 5, 257 * 8192, add=WS_Y)
    for c in range(2):
        for t in range(2):
            vm.issue(f"buffer_load_dwordx4 {v(YR + 8 * c + 4 * t, 4)}, {v(L16)}, {s(SR, 4)}, {s(sY + c)} offen offset:{t * 2048}", "Y")
    srd(a, SR + 4, 4, 5, 257 * 8192, add=WS_WF)
    for c in range(2):
        for h in range(2):
            vm.issue(f"buffer_load_dwordx4 {v(WR + 8 * c + 4 * h, 4)}, {v(L16)}, {s(SR + 4, 4)}, {s(sW + c)} offen offset:{h * 1024}", "WF")


def b2_body(a, own, col_s, lds_s, svc, vm, R0=0, S0=20, SR=28, slice_len=110, rmap=None, after_loads=None, st=lambda: None, preloaded=False, compact_ex=False, newer=8, zpol=''):
    L16, HL, NF, BS, LF, XA, XB, TM, LB = [R0 + x for x in (1, 2, 3, 4, 5, 6, 7, 8, 12)]
    YR, YI, WR, WI = [R0 + x for x in (16, 24, 32, 40)]
    C32, S32, NS32, C64, S64 = [R0 + x for x in (48, 56, 64, 72, 88)]
    DR, DI = R0 + 104, R0 + 120
    FR, FI, FN = R0 + 136, R0 + 152, R0 + 168
    XT = 240
    if rmap:
        L16, HL, NF, BS, LF, XA, XB, TM, LB, YR, YI, WR, WI, C32, S32, NS32, C64, S64, DR, DI, FR, FI, FN = rmap
    sY, sW, sSC, sT = S0, S0 + 2, S0 + 4, S0 + 5
    I0 = a.I
    cnt = [0]

    def I(text):
        r = I0(text)
        cnt[0] += 1
        if cnt[0] >= slice_len and (text.startswith("v_cvt_pk") or text.startswith("v_fma_f32") or text.startswith("v_sin")):
            dosvc()
        return r

    def dosvc():
        a.I = I0
        svc()
        a.I = I
        cnt[0] = 0

    a.I(f"v_lshlrev_b32 {v(L16)}, 4, v0")
    if preloaded:
        vm.q += ["Y"] * 4 + ["WF"] * 4 + ["Q"] * newer
    else:
        a.I(f"s_mov_b32 {s(sT)}, {own}")
        b2_loads(a, vm, col_s, sT, L16, YR, WR, S0, SR)
    srd(a, SR + 8, 4, 5, 257 * 8192, add=WS_Z)
    a.I = I
    a.I(f"s_mov_b32 {s(sSC)}, {f32(2.0 ** -19)}")
    a.I(f"s_and_b32 {s(sT)}, {s(col_s)}, 255")
    a.I(f"s_cmp_eq_u32 {s(sT)}, 0")
    a.I(f"s_cselect_b32 {s(sSC)}, {f32(2.0 ** -20)}, {s(sSC)}")
    a.I(f"v_lshrrev_b32 {v(HL)}, 5, v0")
    a.I(f"v_cvt_f32_u32 {v(HL)}, {v(HL)}")
    a.I(f"v_mul_f32 {v(HL)}, 4.0, {v(HL)}")
    a.I(f"v_and_b32 {v(LF)}, 31, v0")
    a.I(f"v_cvt_f32_u32 {v(LF)}, {v(LF)}")
    a.I(f"v_add_f32 {v(LB)}, {f32(32.0 * own)}, {v(LF)}")
    pc = lambda n: [16 * t + PERMC(j) for t in range(n) for j in range(8)]
    a.I(f"v_mul_f32 {v(NF)}, {f32(1 / 32)}, {v(LF)}")
    a.I(f"v_mul_f32 {v(BS)}, {v(NF)}, {v(HL)}")
    gen_mat(a, C32, NF, BS, pc(2), TM)
    a.I(f"v_add_f32 {v(BS)}, {f32(-0.25)}, {v(BS)}")
    gen_mat(a, S32, NF, BS, pc(2), TM)
    for i in range(8):
        a.I(f"v_xor_b32 {v(NS32 + i)}, 0x80008000, {v(S32 + i)}")
    a.I(f"v_mul_f32 {v(NF)}, {f32(1 / 64)}, {v(LB)}")
    a.I(f"v_mul_f32 {v(BS)}, {v(NF)}, {v(HL)}")
    gen_mat(a, C64, NF, BS, pc(4), TM)
    a.I(f"v_add_f32 {v(BS)}, {f32(-0.25)}, {v(BS)}")
    gen_mat(a, S64, NF, BS, pc(4), TM)
    a.I(f"v_add_u32 {v(XA)}, {s(lds_s)}, {v(L16)}")
    a.I(f"v_add_u32 {v(XB)}, {(1 - own) * 4096}, {v(XA)}")
    a.I(f"v_add_u32 {v(XA)}, {own * 4096}, {v(XA)}")

    def mm(D, terms, fill=None, per=3):
        first = True
        for A_, B_ in terms:
            a.I(f"{MF} {v(D, 16)}, {v(A_, 4)}, {v(B_, 4)}, {'0' if first else v(D, 16)}")
            first = False
            if fill:
                for x in fill[:per]:
                    a.I(x)
                del fill[:per]

    def exchange(neg_of, ldsoff):
        nonlocal XA, XB
        if compact_ex and ldsoff:
            XA, XB, ldsoff = XB, XA, 0
        for c, F in enumerate((FR, FI)):
            for h in range(2):
                a.I(f"ds_write_b128 {v(XA)}, {v(F + 8 * own + 4 * h, 4)} offset:{ldsoff + (2 * c + h) * 1024}")
        a.I("s_waitcnt lgkmcnt(0)")
        dosvc()
        for c, F in enumerate((FR, FI)):
            for h in range(2):
                a.I(f"ds_read_b128 {v(F + 8 * (1 - own) + 4 * h, 4)}, {v(XB)} offset:{ldsoff + (2 * c + h) * 1024}")
        for i in range(8):
            a.I(f"v_xor_b32 {v(FN + 8 * own + i)}, 0x80008000, {v(neg_of + 8 * own + i)}")
        a.I("s_waitcnt lgkmcnt(0)")
        for i in range(8):
            a.I(f"v_xor_b32 {v(FN + 8 * (1 - own) + i)}, 0x80008000, {v(neg_of + 8 * (1 - own) + i)}")
        a.I("s_nop 1")

    jc = [(j & 3) + 8 * (j >> 2) for j in range(16)]
    o = 8 * (1 - own)
    T1C = [FN + j for j in range(16)]
    T1S = [FR + o + j for j in range(8)] + [FI + o + j for j in range(8)]
    a.I(f"v_mul_f32 {v(NF)}, {f32(1 / 2048)}, {v(LF)}")
    a.I(f"v_add_f32 {v(BS)}, {f32(32.0 * own)}, {v(HL)}")
    a.I(f"v_mul_f32 {v(BS)}, {v(NF)}, {v(BS)}")
    for j in range(16):
        a.many(trig(a, j, T1C[j], T1S[j], NF, BS, jc[j], TM + (j & 1)))
    a.I(f"v_mul_f32 {v(NF)}, {f32(1 / 2048)}, {v(LB)}")
    a.I(f"v_mul_f32 {v(BS)}, {v(NF)}, {v(HL)}")
    st()
    vm.wait("Y")
    st()
    mm(DR, [(YR, C32), (YR + 4, C32 + 4), (YI, S32), (YI + 4, S32 + 4)])
    mm(DI, [(YI, C32), (YI + 4, C32 + 4), (YR, NS32), (YR + 4, NS32 + 4)])
    a.I("s_nop 11")
    for j in range(16):
        cmul(a, DR + j, DI + j, T1C[j], T1S[j], -1, TM)
    pack(a, FR + 8 * own, DR, 8)
    pack(a, FI + 8 * own, DI, 8)
    exchange(FR, 0)
    st()
    if after_loads:
        after_loads()
    T2C = [YR + j for j in range(8)] + [YI + j for j in range(8)]
    fill = []
    for j in range(16):
        fill += trig(a, j, T2C[j], XT + j, NF, BS, jc[j], TM + (j & 1))
    mm(DR, [(C64 + 4 * t, FR + 4 * t) for t in range(4)] + [(S64 + 4 * t, FI + 4 * t) for t in range(4)], fill)
    mm(DI, [(C64 + 4 * t, FI + 4 * t) for t in range(4)] + [(S64 + 4 * t, FN + 4 * t) for t in range(4)], fill)
    assert not fill
    vm.wait("WF")
    for j in range(12):
        a.I(f"v_mul_f32 {v(T2C[j])}, {s(sSC)}, {v(T2C[j])}")
    for j in range(16):
        wr, wi, u = TM, TM + 1, TM + 2
        if j & 1:
            a.I(f"v_and_b32 {v(wr)}, 0xffff0000, {v(WR + j // 2)}")
            a.I(f"v_and_b32 {v(wi)}, 0xffff0000, {v(WI + j // 2)}")
        else:
            a.I(f"v_lshlrev_b32 {v(wr)}, 16, {v(WR + j // 2)}")
            a.I(f"v_lshlrev_b32 {v(wi)}, 16, {v(WI + j // 2)}")
        cmul(a, DR + j, DI + j, wr, wi, +1, u)
    pack(a, FR + 8 * own, DR, 8)
    pack(a, FI + 8 * own, DI, 8)
    exchange(FI, 8192)
    st()
    fill = [f"v_mul_f32 {v(T2C[j])}, {s(sSC)}, {v(T2C[j])}" for j in range(12, 16)]
    fill += [f"v_mul_f32 {v(XT + j)}, {s(sSC)}, {v(XT + j)}" for j in range(16)]
    mm(DR, [(FR + 4 * t, C64 + 4 * t) for t in range(4)] + [(FN + 4 * t, S64 + 4 * t) for t in range(4)], fill)
    mm(DI, [(FI + 4 * t, C64 + 4 * t) for t in range(4)] + [(FR + 4 * t, S64 + 4 * t) for t in range(4)], fill)
    a.I("s_nop 11")
    for j in range(16):
        cmul(a, DR + j, DI + j, T2C[j], XT + j, +1, TM)
    pack(a, FR, DR, 8)
    pack(a, FI, DI, 8)
    a.I("s_nop 1")
    mm(DR, [(C32, FR), (C32 + 4, FR + 4), (NS32, FI), (NS32 + 4, FI + 4)])
    mm(DI, [(C32, FI), (C32 + 4, FI + 4), (S32, FR), (S32 + 4, FR + 4)])
    a.I = I0
    a.I("s_nop 7")
    pack(a, YR, DR, 8)
    a.I("s_nop 3")
    pack(a, YI, DI, 8)
    for c in range(2):
        for h in range(2):
            vm.issue(f"buffer_store_dwordx4 {v(YR + 8 * c + 4 * h, 4)}, {v(L16)}, {s(SR + 8, 4)}, {s(sW + c)} offen offset:{h * 1024}{zpol}", "Z")


def gen_b2():
    a = Asm()
    N = "b2_kernel"
    kstart(a, N, 257)
    a.I("s_load_dwordx2 s[4:5], s[0:1], 88")
    a.I("v_lshrrev_b32 v1, 6, v0")
    a.I("v_and_b32 v0, 63, v0")
    a.I("s_mov_b32 s17, 0")
    a.I("v_readfirstlane_b32 s16, v1")
    a.I("s_waitcnt lgkmcnt(0)")
    a.I("s_cmp_eq_u32 s16, 1")
    a.I(f"s_cbranch_scc1 {N}_w1")
    b2_body(a, 0, 2, 17, lambda: a.I("s_barrier"), VM(a), slice_len=10 ** 9)
    a.I("s_endpgm")
    a.label(f"{N}_w1")
    b2_body(a, 1, 2, 17, lambda: a.I("s_barrier"), VM(a), slice_len=10 ** 9)
    kend(a, N)
    return a, N, (257, 128, 16384)


def b3_loads(a, outp=6, pol='', before=None):
    b_decode(a)
    a.I("s_lshr_b32 s23, s20, 5")
    a.I("s_lshl_b32 s23, s23, 11")
    a.I("s_lshl_b32 s24, s21, 9")
    a.I("s_add_u32 s23, s23, s24")
    a.I("s_and_b32 s24, s20, 31")
    a.I("s_lshl_b32 s24, s24, 4")
    a.I("s_add_u32 s23, s23, s24")
    a.I("s_add_u32 s24, s23, 4096")
    a.I("v_lshlrev_b32 v3, 13, v2")
    a.I(f"v_mov_b32 v4, {256 * 8192}")
    a.I("s_waitcnt lgkmcnt(0)")
    srd(a, 28, 4, 5, 257 * 8192, add=WS_Z)
    srd(a, 32, outp, outp + 1, 4 * MB)
    if before:
        before()
    a.I(f"buffer_load_dwordx4 v[16:19], v3, s[28:31], s23 offen{pol}")
    a.I(f"buffer_load_dwordx4 v[20:23], v3, s[28:31], s24 offen{pol}")
    a.I(f"buffer_load_dwordx4 v[24:27], v4, s[28:31], s23 offen{pol}")


def b3_body(a, LB=0, outp=6, nafter=0, loaded=False, mid=None, part=0, bar=None):
    if not loaded:
        b3_loads(a, outp)
    n0 = len(a.items)
    HL, NF, BS, AFL, TM = 5, 6, 7, 12, 8
    C32, NS32, BRE, BIM, MT, ZF, UR, UI, TR, TI = 32, 40, 48, 56, 64, 68, 76, 92, 108, 116
    a.I(f"v_lshrrev_b32 {v(HL)}, 5, v0")
    a.I(f"v_cvt_f32_u32 {v(HL)}, {v(HL)}")
    a.I("v_and_b32 v13, 31, v0")
    a.I("v_cvt_f32_u32 v13, v13")
    a.I(f"v_mul_f32 {v(NF)}, {f32(1 / 32)}, v13")
    a.I(f"v_mul_f32 {v(BS)}, {v(NF)}, {v(HL)}")
    a.I(f"v_mul_f32 {v(BS)}, 4.0, {v(BS)}")
    pc = [16 * t + PERMC(j) for t in range(2) for j in range(8)]
    gen_mat(a, C32, NF, BS, pc, TM)
    a.I(f"v_add_f32 {v(BS)}, {f32(0.25)}, {v(BS)}")
    gen_mat(a, NS32, NF, BS, pc, TM)
    a.I(f"v_and_b32 {v(AFL)}, 15, v0")
    a.I(f"v_cvt_f32_u32 {v(AFL)}, {v(AFL)}")
    a.I(f"v_mul_f32 {v(NF)}, {f32(1 / 16)}, {v(AFL)}")
    a.I(f"v_mul_f32 {v(BS)}, {f32(0.25)}, {v(HL)}")
    a.I("v_and_b32 v13, 16, v0")
    a.I("v_cmp_eq_u32 vcc, 0, v13")
    a.I("v_mov_b32 v14, 0")
    for B_, ph in ((BRE, None), (BIM, -0.25)):
        if ph:
            a.I(f"v_add_f32 {v(BS)}, {f32(ph)}, {v(BS)}")
        gen_mat(a, MT, NF, BS, list(range(8)), TM)
        for i in range(4):
            a.I(f"v_cndmask_b32 {v(B_ + i)}, v14, {v(MT + i)}, vcc")
            a.I(f"v_cndmask_b32 {v(B_ + 4 + i)}, {v(MT + i)}, v14, vcc")
    if part == 1:
        return
    if part == 2:
        del a.items[n0:]
    if mid:
        mid()
    a.I("v_and_b32 v13, 31, v2")
    a.I("v_lshlrev_b32 v13, 4, v13")
    a.I("v_lshrrev_b32 v15, 5, v2")
    a.I("v_lshl_add_u32 v13, v15, 1, v13")
    a.I(f"v_add_u32 v13, {LB}, v13")
    a.I("v_cmp_eq_u32 vcc, 0, v2")
    a.I(f"v_mov_b32 v15, {LB + 8192}")
    a.I(f"s_waitcnt vmcnt({nafter})")
    for i in range(4):
        a.I(f"v_cndmask_b32 {v(20 + i)}, {v(20 + i)}, v14, vcc")
    for c in range(2):
        for i in range(8):
            a.I(f"ds_write_b16{'_d16_hi' if i & 1 else ''} v13, {v(16 + 4 * c + i // 2)} offset:{i * 1024 + c * 512}")
    a.I("s_and_saveexec_b64 s[36:37], vcc")
    a.I("ds_write_b128 v15, v[24:27]")
    a.I("s_mov_b64 exec, s[36:37]")
    a.I("s_lshl_b32 s25, s16, 11")
    a.I(f"s_add_u32 s25, s25, {LB}")
    a.I("v_lshlrev_b32 v13, 4, v0")
    a.I("v_add_u32 v13, s25, v13")
    a.I("v_bfe_u32 v15, v0, 4, 1")
    a.I("s_lshl_b32 s25, s16, 2")
    a.I(f"s_add_u32 s25, s25, {LB + 8192}")
    a.I("v_lshl_add_u32 v15, v15, 1, s25")
    for j in range(1, 16):
        a.I(f"v_mov_b32 {v(UR + j)}, 0")
    a.I("s_waitcnt lgkmcnt(0)")
    if bar:
        bar()
    else:
        a.I("s_barrier")
    a.I(f"ds_read_u16 {v(UR)}, v15")
    a.I(f"ds_read_b128 {v(ZF, 4)}, v13")
    a.I(f"ds_read_b128 {v(ZF + 4, 4)}, v13 offset:1024")
    a.I("v_and_b32 v15, 1, v0")
    a.I("v_lshlrev_b32 v15, 31, v15")
    a.I("v_cmp_gt_u32 vcc, 32, v0")
    a.I(f"v_mul_f32 {v(NF)}, {f32(1 / 512)}, {v(AFL)}")
    a.I(f"v_mul_f32 {v(BS)}, {v(NF)}, {v(HL)}")
    a.I(f"v_mul_f32 {v(BS)}, 4.0, {v(BS)}")
    a.I("s_waitcnt lgkmcnt(2)")
    a.I(f"v_lshlrev_b32 {v(UR)}, 16, {v(UR)}")
    a.I(f"v_xor_b32 {v(UR)}, {v(UR)}, v15")
    a.I(f"v_cndmask_b32 {v(UR)}, v14, {v(UR)}, vcc")
    a.I("s_waitcnt lgkmcnt(0)")
    a.I("s_nop 0")
    for r in range(2):
        a.I(f"{MF} {v(UR, 16)}, {v(ZF + 4 * r, 4)}, {v(BRE + 4 * r, 4)}, {v(UR, 16)}")
    for r in range(2):
        a.I(f"{MF} {v(UI, 16)}, {v(ZF + 4 * r, 4)}, {v(BIM + 4 * r, 4)}, {'0' if r == 0 else v(UI, 16)}")
    a.I("s_lshr_b32 s25, s21, 1")
    a.I("s_lshl_b32 s25, s25, 4")
    a.I("s_and_b32 s26, s21, 1")
    a.I("s_lshl_b32 s26, s26, 2")
    a.I("s_add_u32 s25, s25, s26")
    a.I("s_lshr_b32 s26, s16, 1")
    a.I("s_lshl_b32 s26, s26, 3")
    a.I("s_add_u32 s25, s25, s26")
    a.I("s_and_b32 s26, s16, 1")
    a.I("s_lshl_b32 s26, s26, 1")
    a.I("s_add_u32 s25, s25, s26")
    a.I("s_lshl_b32 s25, s25, 6")
    a.I("s_add_u32 s25, s25, s20")
    a.I("s_lshl_b32 s25, s25, 11")
    a.I(f"s_add_u32 s26, s25, {64 * 2048}")
    jc = [(j & 3) + 8 * (j >> 2) for j in range(16)]
    twiddle(a, UR, UI, [[j] for j in range(16)], NF, BS, jc, +1, TM)
    pack(a, TR, UR, 8)
    pack(a, TI, UI, 8)
    a.I("v_and_b32 v13, 31, v0")
    a.I("v_lshlrev_b32 v13, 5, v13")
    terms = [(TR, C32), (TR + 4, C32 + 4), (TI, NS32), (TI + 4, NS32 + 4)]
    for i, (A_, B_) in enumerate(terms):
        a.I(f"{MF} {v(UR, 16)}, {v(A_, 4)}, {v(B_, 4)}, {'0' if i == 0 else v(UR, 16)}")
    a.I("v_lshrrev_b32 v15, 5, v0")
    a.I("v_lshl_add_u32 v13, v15, 4, v13")
    a.I("s_nop 9")
    pack(a, 16, UR, 8)
    a.I("s_nop 1")
    for r in range(2):
        a.I(f"v_permlane32_swap_b32 {v(16 + 4 * r)}, {v(18 + 4 * r)}")
        a.I(f"v_permlane32_swap_b32 {v(17 + 4 * r)}, {v(19 + 4 * r)}")
        a.I(f"buffer_store_dwordx4 {v(16 + 4 * r, 4)}, v13, s[32:35], s{25 + r} offen offset:1024{os.environ.get('OPB', ' nt')}")


def gen_b3():
    a = Asm()
    N = "b3_kernel"
    kstart(a, N, 256)
    a.I("s_load_dwordx2 s[4:5], s[0:1], 88")
    a.I("s_load_dwordx2 s[6:7], s[0:1], 72")
    a.I("v_lshrrev_b32 v1, 6, v0")
    a.I("v_mov_b32 v2, v0")
    a.I("v_and_b32 v0, 63, v0")
    a.I("v_readfirstlane_b32 s16, v1")
    b3_body(a)
    kend(a, N)
    return a, N, (256, 256, 8192 + 64)


KERNELS = [gen_b1, gen_qkv, gen_b2, gen_attn, gen_b3, gen_oproj]


ALIASES = [("v_mfma_f32_16x16x32_bf16", "mf16", 4), ("v_mfma_f32_32x32x16_bf16", "mf32", 4),
           ("v_cvt_pk_bf16_f32", "cvtpk", 3)]


def compact(txt):
    lines = txt.split("\n")
    out = []
    done = False
    for l in lines:
        if l.startswith("    "):
            l = l.strip()
            for full, short, n in ALIASES:
                if l.startswith(full + " "):
                    l = short + l[len(full):]
        out.append(l)
        if l.startswith(".amdgcn_target") and not done:
            done = True
            for full, short, n in ALIASES:
                args = ["p%d" % i for i in range(n)]
                out.append(f".macro {short} " + ", ".join(args))
                out.append(f"{full} " + ", ".join("\\" + x for x in args))
                out.append(".endm")
    return "\n".join(out)


def build(kernels, path):
    hdr = open(os.path.join(os.path.dirname(os.path.abspath(__file__)), "..", "cdna_kernels", NAME + ".s.ref")).read()
    head = [l for l in hdr.splitlines() if l.startswith(";") and "@launch" not in l and "Override" not in l
            and "grid=ceil" not in l]
    txt = []
    launches = []
    descs = []
    bad = 0
    for g in kernels:
        KIDX[0] = len(launches)
        a, n, (grid, blk, lds) = g()
        if os.environ.get("PADREF") == n:
            items = []
            done = False
            for it in a.items:
                items.append(it)
                if it[0] == "i" and it[1].text == f"s_cbranch_scc1 {n}_end" and not done:
                    done = True
                    b = Asm()
                    b.I("s_memrealtime s[98:99]")
                    b.I("s_load_dwordx2 s[96:97], s[0:1], 88")
                    b.I("s_cmp_lg_u32 s2, 0")
                    b.I("s_cbranch_scc1 padref_skip")
                    b.I("s_waitcnt lgkmcnt(0)")
                    b.I(f"s_add_u32 s84, s96, {hex(200 * MB)}")
                    b.I("s_addc_u32 s85, s97, 0")
                    b.I("s_mov_b32 s86, 64")
                    b.I("s_mov_b32 s87, 0x20000")
                    b.I("v_mov_b32 v254, s98")
                    b.I("buffer_store_dword v254, off, s[84:87], 0 sc0 sc1")
                    b.label("padref_skip")
                    b.I("s_waitcnt lgkmcnt(0)")
                    items += b.items
            a.items = items
        if os.environ.get("PADK") == n:
            items = []
            cnt = 0
            for it in a.items:
                if it[0] == "i" and it[1].text == f"s_cbranch_scc1 {n}_end" and cnt == 0:
                    items.append(it)
                    b = Asm()
                    b.I("s_memrealtime s[98:99]")
                    if os.environ.get("PADREF"):
                        b.I("s_load_dwordx2 s[96:97], s[0:1], 88")
                        b.I("s_waitcnt lgkmcnt(0)")
                        b.I(f"s_add_u32 s84, s96, {hex(200 * MB)}")
                        b.I("s_addc_u32 s85, s97, 0")
                        b.I("s_mov_b32 s86, 64")
                        b.I("s_mov_b32 s87, 0x20000")
                        b.I("buffer_load_dword v254, off, s[84:87], 0 sc0 sc1")
                        b.I("s_waitcnt vmcnt(0)")
                        b.I("v_readfirstlane_b32 s98, v254")
                    items += b.items
                    cnt = 1
                    continue
                if it[0] == "i" and it[1].mn == "s_endpgm" and not (items[-1][0] == "l" and items[-1][1] == n + "_end" and items[-2][1].mn == "s_endpgm"):
                    b = Asm()
                    lab = None
                    if items[-1][0] == "l" and items[-1][1] == n + "_end":
                        lab = items.pop()
                    cnt += 1
                    b.I("s_waitcnt vmcnt(0) lgkmcnt(0)")
                    b.label(f"pad_{cnt}")
                    b.I("s_memrealtime s[96:97]")
                    b.I("s_waitcnt lgkmcnt(0)")
                    b.I("s_sub_u32 s96, s96, s98")
                    b.I(f"s_cmp_lt_u32 s96, {os.environ['PADT']}")
                    b.I(f"s_cbranch_scc1 pad_{cnt}")
                    items += b.items
                    if lab:
                        items.append(it)
                        items.append(lab)
                items.append(it)
            a.items = items
        if DBGT:
            items = []
            for it in a.items:
                if it[0] == "i" and it[1].mn == "s_endpgm" and not (items and items[-1][0] == "l" and items[-1][1] == n + "_end" and items[-2][1].mn == "s_endpgm"):
                    b = Asm()
                    lab = None
                    if items[-1][0] == "l" and items[-1][1] == n + "_end":
                        lab = items.pop()
                    dbg_stamp(b, 1)
                    items += b.items
                    if lab:
                        items.append(it)
                        items.append(lab)
                items.append(it)
            a.items = items
        bad += len(a.check())
        nv, ns, na = a.maxregs()
        print(f"{n}: {sum(1 for k, _ in a.items if k == 'i')} instrs, vgpr {nv}, agpr {na}, sgpr {ns}")
        launches.append(f"; @launch kernel={n} grid=({grid},1,1) block=({blk},1,1) lds={lds}")
        txt.append(a.text())
        descs.append(kdesc(n, nv, ns, na))
    if bad:
        print("HAZARDS:", bad)
    out = "\n".join(head) + "\n" + "\n".join(launches) + "\n" + '.amdgcn_target "amdgcn-amd-amdhsa--gfx950"\n' + \
          "".join(txt) + "".join(descs)
    out = compact(out)
    open(path, "w").write(out)
    return bad


if __name__ == "__main__":
    p = sys.argv[1] if len(sys.argv) > 1 else os.path.join(os.path.dirname(os.path.abspath(__file__)), "..",
                                                           "cdna_kernels", NAME + ".s")
    sys.exit(1 if build(KERNELS, p) else 0)
```

```python
import sys, os, math, struct
sys.path.insert(0, os.path.dirname(os.path.abspath(__file__)))
from asmlib import Asm, VM, LG, v, s, ag

NAME = "concat_heads__compressed_kv_cla__spectral_gfnet__prompt"
MB = 1 << 20
WS_K, WS_V, WS_CTX, WS_Y, WS_WF, WS_Z, WS_Q = 0, 16 * MB, 32 * MB, 48 * MB, 52 * MB, 56 * MB, 64 * MB
WS_WO = 60 * MB
if os.environ.get('ALIAS'):
    WS_Q = WS_CTX
WS_PART = 64 * MB
WS_FLAG = 56 * MB + 2560 * 1024
YSTR = 8320
KA = dict(x=0, ckv=8, wq=16, wuk=24, wuv=32, wo=40, bx=48, wr=56, wi=64, out=72, dbg=80, ws=88)
MF = "v_mfma_f32_32x32x16_bf16"
SP = os.environ.get("SP", " sc1")


def f32(x):
    return "0x%08x" % struct.unpack("<I", struct.pack("<f", x))[0]


def srd(a, d, lo, hi, size, add=0):
    if add:
        a.I(f"s_add_u32 {s(d)}, {s(lo)}, {add if isinstance(add, str) else hex(add)}")
        a.I(f"s_addc_u32 {s(d + 1)}, {s(hi)}, 0")
    else:
        a.I(f"s_mov_b32 {s(d)}, {s(lo)}")
        a.I(f"s_mov_b32 {s(d + 1)}, {s(hi)}")
    a.I(f"s_mov_b32 {s(d + 2)}, {size if isinstance(size, str) else hex(size)}")
    a.I(f"s_mov_b32 {s(d + 3)}, 0x20000")


STAMPS = int(os.environ.get("STAMPS", "0"))
ST0 = 72


class Stamper:
    def __init__(self, a, name=""):
        self.a, self.n = a, 0
        self.on = STAMPS and os.environ.get("STAMPK", name) == name

    def __call__(self):
        if self.on and self.n < 11:
            if self.n == 0:
                self.a.I("s_memrealtime s[68:69]")
            self.a.I(f"s_memtime {s(ST0 + 2 * self.n, 2)}")
            self.n += 1

    def dump(self, wave_s, wslo, tmpv=8):
        if not self.on:
            return
        a = self.a
        a.I("s_waitcnt vmcnt(0) lgkmcnt(0)")
        a.I(f"s_memtime {s(ST0 + 2 * self.n, 2)}")
        a.I("s_memrealtime s[70:71]")
        self.n += 1
        srd(a, 96, wslo, wslo + 1, 1 * MB, add=128 * MB)
        a.I("s_lshl_b32 s100, s2, 3")
        a.I(f"s_add_u32 s100, s100, {s(wave_s)}")
        a.I("s_lshl_b32 s100, s100, 8")
        a.I("s_waitcnt lgkmcnt(0)")
        a.I(f"v_mov_b32 {v(tmpv + 1)}, 0")
        for i in range(self.n):
            a.I(f"v_mov_b32 {v(tmpv)}, {s(ST0 + 2 * i)}")
            a.I(f"buffer_store_dword {v(tmpv)}, {v(tmpv + 1)}, s[96:99], s100 offen offset:{4 * i}")
        for i, r in ((62, 68), (63, 70), (61, ST0 + 2 * (self.n - 1))):
            a.I(f"v_mov_b32 {v(tmpv)}, {s(r)}")
            a.I(f"buffer_store_dword {v(tmpv)}, {v(tmpv + 1)}, s[96:99], s100 offen offset:{4 * i}")
        a.I("s_waitcnt vmcnt(0)")


DBGT = int(os.environ.get("DBGT", "0"))
KIDX = [0, 0]


def dbg_stamp(a, end):
    k = KIDX[0]
    lab = a.uid("dbgskip%d_%d" % (k, KIDX[1]))
    KIDX[1] += 1
    if not end:
        a.I("v_readfirstlane_b32 s89, v0")
        a.I("s_nop 1")
        a.I("s_lshr_b32 s89, s89, 6")
        a.I("s_or_b32 s89, s89, s2")
    a.I("s_cmp_lg_u32 s89, 0")
    a.I(f"s_cbranch_scc1 {lab}")
    a.I("s_load_dwordx4 s[92:95], s[90:91], 80")
    a.I("s_waitcnt vmcnt(0) lgkmcnt(0)")
    a.I("s_memrealtime s[86:87]")
    a.I(f"s_add_u32 s96, s94, {hex(200 * MB)}")
    a.I("s_addc_u32 s97, s95, 0")
    a.I("s_mov_b32 s98, 256")
    a.I("s_mov_b32 s99, 0x20000")
    a.I("s_waitcnt lgkmcnt(0)")
    a.I("v_mov_b32 v254, s86")
    a.I(f"buffer_store_dword v254, off, s[96:99], 0 offset:{8 * k + 4 * end} sc0 sc1")
    a.I("s_waitcnt vmcnt(0)")
    if end and k == DBGT - 1:
        a.I("v_lshlrev_b32 v253, 2, v0")
        a.I("buffer_load_dword v254, v253, s[96:99], 0 offen sc0 sc1")
        a.I("s_mov_b32 s96, s92")
        a.I("s_mov_b32 s97, s93")
        a.I("s_waitcnt vmcnt(0)")
        a.I("buffer_store_dword v254, v253, s[96:99], 0 offen")
        a.I(f"s_sub_u32 s96, s92, {k * 512}")
        a.I("s_subb_u32 s97, s93, 0")
        a.I("s_nop 0")
        a.I("buffer_store_dword v254, v253, s[96:99], 0 offen")
    a.label(lab)


def code_touch(a, kname, wave_s, sr, vt, nw_log=3, kd=True):
    if os.environ.get("NOCP"):
        return
    a.I(f"s_getpc_b64 {s(sr, 2)}")
    a.I(f"s_add_u32 {s(sr)}, {s(sr)}, cs_{kname}@rel32@lo+4")
    a.I(f"s_addc_u32 {s(sr + 1)}, {s(sr + 1)}, cs_{kname}@rel32@hi+12")
    a.I(f"s_mov_b32 {s(sr + 2)}, {kname}_end - {kname}")
    a.I(f"s_mov_b32 {s(sr + 3)}, 0x20000")
    a.I(f"s_lshr_b32 {s(sr + 4)}, s2, 3")
    a.I(f"s_lshl_b32 {s(sr + 4)}, {s(sr + 4)}, {nw_log}")
    a.I(f"s_add_u32 {s(sr + 4)}, {s(sr + 4)}, {s(wave_s)}")
    a.I(f"s_lshl_b32 {s(sr + 4)}, {s(sr + 4)}, {12 - nw_log}")
    a.I(f"v_lshlrev_b32 {v(vt)}, 7, v0")
    a.I(f"s_mov_b64 exec, {(1 << (32 >> nw_log)) - 1}")
    a.I(f"buffer_load_dword {v(vt + 1)}, {v(vt)}, {s(sr, 4)}, {s(sr + 4)} offen")
    if kd and os.environ.get("KD"):
        a.I(f"s_getpc_b64 {s(sr, 2)}")
        a.I(f"s_add_u32 {s(sr)}, {s(sr)}, kdl_{kname}@rel32@lo+4")
        a.I(f"s_addc_u32 {s(sr + 1)}, {s(sr + 1)}, kdl_{kname}@rel32@hi+12")
        a.I(f"s_mov_b32 {s(sr + 2)}, 64")
        a.I("s_mov_b64 exec, 1")
        a.I(f"buffer_load_dword {v(vt + 1)}, off, {s(sr, 4)}, 0")
    a.I("s_mov_b64 exec, -1")


def kstart(a, name, nwg):
    a.raw(".text")
    a.raw(f".globl {name}")
    a.raw(".p2align 8")
    a.raw(f".type {name},@function")
    a.label(name)
    a.label("cs_" + name)
    a.I(f"s_cmp_ge_u32 s2, {nwg}")
    a.I(f"s_cbranch_scc1 {name}_end")
    if DBGT:
        a.I("s_mov_b64 s[90:91], s[0:1]")
        dbg_stamp(a, 0)


def kend(a, name):
    a.label(name + "_end")
    a.I("s_endpgm")


def kdesc(name, nv, ns, na=0):
    nv = (nv + 7) // 8 * 8
    acc_off = nv
    nv = nv + (na + 7) // 8 * 8
    return f""".section .rodata,"a"
.p2align 6
kdl_{name}:
.amdhsa_kernel {name}
  .amdhsa_next_free_vgpr {nv}
  .amdhsa_next_free_sgpr {max(ns, 16)}
  .amdhsa_accum_offset {acc_off}
  .amdhsa_group_segment_fixed_size 0
  .amdhsa_kernarg_size 96
  .amdhsa_user_sgpr_count 2
  .amdhsa_user_sgpr_kernarg_segment_ptr 1
  .amdhsa_system_sgpr_workgroup_id_x 1
  .amdhsa_float_denorm_mode_32 3
.end_amdhsa_kernel
"""


QSCALE = math.log2(math.e) / math.sqrt(128.0)


def gen_qkv():
    a = Asm()
    N = "qkvproj_kernel"
    kstart(a, N, 256)
    a.I("s_load_dwordx4 s[4:7], s[0:1], 0")
    a.I("s_load_dwordx4 s[8:11], s[0:1], 16")
    a.I("s_load_dwordx2 s[12:13], s[0:1], 32")
    a.I("s_load_dwordx2 s[14:15], s[0:1], 88")
    a.I("v_lshrrev_b32 v1, 6, v0")
    a.I("v_and_b32 v0, 63, v0")
    a.I("s_and_b32 s17, s2, 7")
    a.I("v_readfirstlane_b32 s16, v1")
    a.I("s_lshr_b32 s18, s2, 3")
    a.I("s_and_b32 s19, s18, 7")
    a.I("s_lshr_b32 s18, s18, 3")
    a.I("s_lshl_b32 s40, s17, 2")
    a.I("s_add_u32 s18, s18, s40")
    a.I("s_mov_b32 s41, 0")
    a.I("s_mul_i32 s42, s18, 6")
    a.I("s_cmp_ge_u32 s18, 11")
    a.I("s_cselect_b32 s41, 1, s41")
    a.I("s_cselect_b32 s40, 64, 0")
    a.I("s_cmp_ge_u32 s18, 21")
    a.I("s_cselect_b32 s41, 2, s41")
    a.I("s_cselect_b32 s40, 126, s40")
    a.I("s_sub_u32 s42, s42, s40")
    a.I("s_lshl_b32 s44, s19, 3")
    a.I("s_add_u32 s44, s44, s16")
    hl, b4, t1, t2 = 9, 10, 11, 12
    a.I(f"v_lshrrev_b32 {v(hl)}, 5, v0")
    a.I(f"v_bfe_u32 {v(b4)}, v0, 4, 1")
    a.I(f"v_lshrrev_b32 {v(t1)}, 3, v0")
    a.I(f"v_lshlrev_b32 {v(t1)}, 10, {v(t1)}")
    a.I("s_lshl_b32 s45, s44, 15")
    a.I(f"v_add_u32 {v(t1)}, s45, {v(t1)}")
    a.I(f"v_lshrrev_b32 {v(t2)}, 4, v0")
    a.I("v_and_b32 v13, 7, v0")
    a.I(f"v_xor_b32 {v(t2)}, {v(t2)}, v13")
    a.I(f"v_lshl_add_u32 v52, {v(t2)}, 4, {v(t1)}")
    a.I("v_xor_b32 v53, 64, v52")
    a.I(f"v_add_u32 v53, {8192 - 1024}, v53")
    a.I(f"v_add_u32 v54, {2 * (8192 - 1024)}, v52")
    a.I(f"v_add_u32 v55, {2 * (8192 - 1024)}, v53")
    a.I("v_and_b32 v13, 31, v0")
    a.I(f"v_bfe_u32 {v(t2)}, v0, 1, 3")
    a.I(f"v_xor_b32 {v(t2)}, {v(t2)}, {v(hl)}")
    a.I(f"v_lshlrev_b32 {v(t2)}, 4, {v(t2)}")
    a.I(f"v_lshl_add_u32 {v(t2)}, v13, 7, {v(t2)}")
    a.I("s_mul_i32 s46, s16, 12288")
    for t in range(4):
        a.I(f"v_xor_b32 {v(56 + t)}, {32 * t}, {v(t2)}")
    for t in range(4):
        a.I(f"v_add_u32 {v(56 + t)}, s46, {v(56 + t)}")
    a.I("v_lshrrev_b32 v2, 3, v0")
    a.I("v_lshlrev_b32 v2, 13, v2")
    a.I(f"v_lshlrev_b32 {v(t1)}, 2, {v(b4)}")
    a.I(f"v_and_b32 {v(t2)}, 7, v0")
    a.I(f"v_xor_b32 {v(t1)}, {v(t1)}, {v(t2)}")
    a.I(f"v_lshl_add_u32 v2, {v(t1)}, 4, v2")
    a.I("s_lshl_b32 s45, s16, 17")
    a.I("v_add_u32 v2, s45, v2")
    a.I(f"v_add_u32 v3, {65536 - 1024}, v2")
    a.I(f"v_bfe_u32 {v(t1)}, v0, 2, 2")
    a.I(f"v_lshl_add_u32 {v(t2)}, {v(hl)}, 3, {v(t1)}")
    a.I(f"v_lshlrev_b32 v4, 7, {v(t2)}")
    a.I(f"v_lshl_add_u32 v4, {v(b4)}, 5, v4")
    a.I(f"v_and_b32 {v(t2)}, 3, v0")
    a.I(f"v_lshl_add_u32 v4, {v(t2)}, 3, v4")
    a.I(f"v_bfe_u32 {v(t2)}, v0, 3, 1")
    a.I(f"v_lshl_add_u32 v4, {v(t2)}, 6, v4")
    a.I("v_xor_b32 v5, 64, v4")
    a.I("v_add_u32 v6, 0x10000, v4")
    a.I("v_add_u32 v7, 0x10000, v5")
    a.I("v_add_u32 v50, 0x20000, v4")
    a.I("v_add_u32 v51, 0x20000, v5")
    a.I("v_lshlrev_b32 v48, 4, v0")
    a.I("s_lshl_b32 s47, s16, 11")
    a.I("s_lshl_b32 s48, s42, 7")
    a.I("s_lshl_b32 s49, s44, 13")
    a.I("s_lshl_b32 s50, s42, 18")
    a.I("s_add_u32 s50, s50, s49")
    a.I("s_waitcnt lgkmcnt(0)")
    a.I("s_cmp_eq_u32 s41, 2")
    a.I("s_cselect_b32 s20, s4, s6")
    a.I("s_cselect_b32 s21, s5, s7")
    a.I("s_cselect_b32 s24, s8, s10")
    a.I("s_cselect_b32 s25, s9, s11")
    a.I(f"s_cselect_b32 s51, {hex(WS_Q)}, 0")
    a.I(f"s_cselect_b32 s52, {f32(QSCALE)}, 1.0")
    a.I(f"s_mov_b32 s22, {hex(2 * MB)}")
    a.I("s_mov_b32 s23, 0x20000")
    a.I(f"s_mov_b32 s26, {hex(4 * MB)}")
    a.I("s_mov_b32 s27, 0x20000")
    srd(a, 28, 14, 15, 16 * MB, add="s51")
    srd(a, 32, 12, 13, 4 * MB)
    srd(a, 36, 14, 15, 16 * MB, add=WS_V)
    srd(a, 56, 6, 7, 2 * MB)
    a.I("s_cmp_eq_u32 s18, 31")
    a.I(f"s_cbranch_scc1 {N}_D")
    a.I("s_cmp_eq_u32 s41, 1")
    a.I(f"s_cbranch_scc1 {N}_B")
    a.I("s_cmp_eq_u32 s18, 10")
    a.I(f"s_cbranch_scc1 {N}_C")

    AF, ACC, RING, PK = 64, 192, 8, 32
    LOOK = 6

    def body(passes, tag):
        vm, lg = VM(a), LG(a)
        st = Stamper(a, "qkv")
        st()
        NP = len(passes)
        NC = 4 * NP
        NM = 64 * NP
        restage = tag == "D"
        blk = {}
        free = [6, 7, 8, 9]
        nxt = [0]

        def dmaW():
            c = nxt[0]
            if c >= NC or not free:
                return False
            b = free.pop(0)
            blk[c] = b
            nxt[0] += 1
            pp, kc = divmod(c, 4)
            form, su, di = passes[pp]
            a.I(f"s_add_u32 m0, s47, {hex(b * 16384)}")
            if su is not None:
                a.I(f"s_mov_b32 s45, {hex((kc << 20) + su * 128)}")
            else:
                a.I(f"s_add_u32 s45, s48, {hex((kc << 20) + di * 128)}")
            sr = "s[32:35]" if form == "V" else "s[24:27]"
            vm.issue(f"buffer_load_dwordx4 v2, {sr}, s45 offen lds", ("W", c))
            vm.issue(f"buffer_load_dwordx4 v3, {sr}, s45 offen offset:1024 lds", ("W", c))
            return True

        def dmaA(j):
            sr = "s[56:59]" if (restage and j < 8) else "s[20:23]"
            a.I(f"s_add_u32 m0, s46, {hex((j % 3) * 4096)}")
            a.I(f"s_mov_b32 s45, {(j % 8) * 128}")
            for i in range(4):
                vm.issue(f"buffer_load_dwordx4 {v(52 + i)}, {sr}, s45 offen offset:{i * 1024} lds", ("A", j))

        def readA(j):
            vm.wait(("A", j))
            for t in range(4):
                lg.issue(f"ds_read_b128 {v(AF + 16 * (j % 8) + 4 * t, 4)}, {v(56 + t)} offset:{(j % 3) * 4096}", ("A", j))

        dmaW(); dmaA(0); dmaA(1); dmaW(); dmaA(2); dmaW(); dmaW()

        def reads(i):
            c, r = divmod(i, 16)
            t, cb = divmod(r, 2)
            b = blk[c]
            base = [4, 6, 50][b // 4] + cb
            off = (b % 4) * 16384 + t * 2048
            d = RING + 4 * (i % LOOK)
            lg.issue(f"ds_read_b64_tr_b16 {v(d, 2)}, {v(base)} offset:{off}", ("W", i))
            lg.issue(f"ds_read_b64_tr_b16 {v(d + 2, 2)}, {v(base)} offset:{off + 512}", ("W", i))

        def sync(c):
            vm.wait(("W", c))
            a.I("s_barrier")
            if c >= 2:
                free.append(blk[c - 2])
            if c == (10 if restage else 5):
                free.extend([0, 1, 2, 3, 4, 5])
            n = 0
            while n < 2 and dmaW():
                n += 1

        def epi(pp):
            out = []
            form, su, di = passes[pp]
            acc = ACC + 32 * (pp & 1)
            so = 54 + (pp & 1)
            if su is not None:
                out.append(lambda: a.I(f"s_add_u32 s{so}, s49, {hex((su >> 1) * 512 * 1024 + (su & 1) * 4096)}"))
            else:
                out.append(lambda: a.I(f"s_add_u32 s{so}, s50, {hex((di >> 1) * 512 * 1024 + (di & 1) * 4096)}"))
            sr = "s[36:39]" if form == "V" else "s[28:31]"
            for cb in range(2):
                for h in range(2):
                    q = 2 * cb + h
                    for i in range(4):
                        src = acc + 16 * cb + 8 * h + 2 * i
                        if form == "K" and tag in "AD":
                            out.append(lambda src=src: a.I(f"v_mul_f32 {v(src)}, s52, {v(src)}"))
                            out.append(lambda src=src: a.I(f"v_mul_f32 {v(src + 1)}, s52, {v(src + 1)}"))
                        out.append(lambda src=src, q=q, i=i: a.I(
                            f"v_cvt_pk_bf16_f32 {v(PK + 4 * q + i)}, {v(src)}, {v(src + 1)}"))
                    out.append(lambda q=q: vm.issue(
                        f"buffer_store_dwordx4 {v(PK + 4 * q, 4)}, v48, {sr}, s{so} offen offset:{q * 1024}{SP}", ("S", pp)))
            return out

        st()
        readA(0)
        sync(0)
        st()
        for i in range(LOOK - 2):
            reads(i)
        lg.wait(("A", 0))
        for i in range(LOOK - 2, LOOK):
            reads(i)
        pend = []
        for i in range(NM):
            c, r = divmod(i, 16)
            t, cb = divmod(r, 2)
            pp, kc = divmod(c, 4)
            k = 8 * kc + t
            if i % 2 == 0:
                lg.wait([("W", i), ("W", i + 1), ("A", i // 8)])
            if pp == 0 and i % 8 == 0 and i // 8 + 3 < (11 if restage else 8):
                dmaA(i // 8 + 3)
            if restage and 72 < i <= 128 + 8 and i % 8 == 4:
                jj = 8 + (i - 76) // 8
                lg.wait(("A", jj))
                if jj + 3 < 16:
                    dmaA(jj + 3)
            acc = v(ACC + 32 * (pp & 1) + 16 * cb, 16)
            wf = v(RING + 4 * (i % LOOK), 4)
            af = v(AF + 4 * k, 4)
            cin = "0" if k == 0 else acc
            if passes[pp][0] == "V":
                a.I(f"{MF} {acc}, {af}, {wf}, {cin}")
            else:
                a.I(f"{MF} {acc}, {wf}, {af}, {cin}")
            j = i + LOOK
            if j < NM:
                if j % 16 == 0:
                    sync(j // 16)
                if j < 64 and j % 8 == 0:
                    readA(j // 8)
                reads(j)
            if restage and 64 <= i < 128 and i % 8 == 7:
                readA(8 + (i - 64) // 8)
            if i % 64 == 63:
                st()
            if i % 64 == 6 and pp >= 1:
                pend = epi(pp - 1)
            if pend:
                pend.pop(0)()
        a.I("s_nop 11")
        for f in epi(NP - 1):
            f()
        st.dump(16, 14)
        a.I("s_endpgm")

    body([("K", None, i) for i in range(6)], "A")
    a.label(N + "_B")
    body([("V", None, i) for i in range(6)], "B")
    a.label(N + "_C")
    body([("K", None, i) for i in range(4)] + [("V", 0, 0), ("V", 1, 0)], "C")
    a.label(N + "_D")
    body([("V", 62, 0), ("V", 63, 0)] + [("K", None, i) for i in range(4)], "D")
    kend(a, N)
    return a, N, (256, 512, 163840)


def gen_attn(withb2=False):
    b2tail = withb2 and os.environ.get("B2MODE", "start") == "tail"
    if b2tail:
        withb2 = False
    LT = int(os.environ.get("LT", "3"))
    a = Asm()
    N = "attn_kernel"
    O, Q, S, P, NEGM, RING = 64, 128, [160, 176], [192, 200], 208, 224
    L16, VKA, VVA, VL, VLS, E, VDA, VDB, QREL, T0, T1, T2, NINF = 1, 2, 3, 4, 5, 6, 10, 11, 12, 13, 14, 15, 48
    PK = 16
    EE = 50
    sW, sH, sP, sN, sC, sPH, sTHR, sBAR, sKO, sKM, sVM, sQS = 16, 17, 18, 19, 20, 21, 40, 41, 42, 43, 44, 45
    kstart(a, N, 256)
    a.I("s_load_dwordx2 s[4:5], s[0:1], 88")
    a.I("s_load_dwordx2 s[14:15], s[0:1], 40")
    a.I("v_lshrrev_b32 v1, 6, v0")
    a.I("v_and_b32 v0, 63, v0")
    a.I("s_and_b32 s6, s2, 7")
    a.I(f"v_readfirstlane_b32 {s(sW)}, v1")
    a.I("s_lshr_b32 s7, s2, 3")
    a.I("s_and_b32 s8, s7, 3")
    a.I("s_lshl_b32 s6, s6, 2")
    a.I(f"s_add_u32 {s(sH)}, s6, s8")
    a.I(f"s_lshr_b32 {s(sP)}, s7, 2")
    a.I(f"s_lshl_b32 s6, {s(sP)}, 2")
    a.I(f"s_sub_u32 s7, 60, s6")
    a.I(f"s_add_u32 s7, s7, {s(sW)}")
    a.I(f"s_add_u32 s8, s6, 7")
    a.I(f"s_sub_u32 s8, s8, {s(sW)}")
    a.I(f"s_cmp_ge_u32 {s(sW)}, 4")
    a.I(f"s_cselect_b32 {s(sQS)}, s8, s7")
    a.I(f"s_add_u32 {s(sN)}, {s(sQS)}, 1")
    a.I("s_sub_u32 s9, 64, s6")
    a.I(f"s_lshr_b32 {s(sBAR)}, s9, 1")
    a.I("s_lshl_b32 s9, s9, 13")
    a.I(f"s_lshl_b32 s10, {s(sH)}, 19")
    a.I(f"v_lshlrev_b32 {v(L16)}, 4, v0")
    a.I(f"s_and_b32 s11, {s(sW)}, 3")
    a.I("s_lshl_b32 s11, s11, 11")
    a.I(f"v_add_u32 {v(VDA)}, s11, {v(L16)}")
    a.I(f"v_add_u32 {v(VDB)}, 0x2000, {v(VDA)}")
    a.I(f"v_and_b32 {v(T0)}, 31, v0")
    a.I(f"v_lshrrev_b32 {v(T1)}, 5, v0")
    a.I(f"v_lshlrev_b32 {v(T1)}, 2, {v(T1)}")
    a.I(f"v_sub_u32 {v(QREL)}, {v(T0)}, {v(T1)}")
    a.I(f"v_mov_b32 {v(NINF)}, 0xff800000")
    a.I(f"s_mov_b32 {s(sTHR)}, {f32(2.0 ** 14)}")
    FLG = 7 * 16384 + 8192
    if withb2:
        a.I(f"v_mov_b32 v124, {FLG}")
        for i in range(4):
            a.I(f"v_mov_b32 {v(56 + i)}, 0")
        a.I("ds_write_b128 v124, v[56:59]")
        a.I("s_and_b32 s60, s2, 7")
        a.I("s_lshl_b32 s60, s60, 5")
        a.I("s_lshr_b32 s61, s2, 3")
        a.I("s_add_u32 s60, s60, s61")
        a.I("s_cmp_eq_u32 s2, 248")
        a.I("s_cselect_b32 s61, 4, 2")
        a.I(f"s_cmp_lt_u32 {s(sW)}, s61")
        a.I("s_cselect_b32 s23, 1, 0")
        a.I(f"s_cmp_ge_u32 {s(sW)}, 2")
        a.I("s_cselect_b32 s60, 0x100, s60")
        a.I(f"s_mov_b32 s61, {131072}")
        a.I(f"s_cselect_b32 s61, {131072 + 16384}, s61")
        a.I(f"s_and_b32 s67, {s(sW)}, 1")
    a.I("s_waitcnt lgkmcnt(0)")
    srd(a, 24, 4, 5, "s9", add="s10")
    a.I(f"s_add_u32 s12, s10, {hex(WS_V - 3 * 8192)}")
    a.I(f"s_add_u32 s13, s9, {3 * 8192}")
    srd(a, 28, 4, 5, "s13", add="s12")
    srd(a, 32, 4, 5, 16 * MB, add=WS_Q)
    srd(a, 36, 4, 5, 16 * MB, add=WS_CTX)
    st = Stamper(a, "attn")
    st()
    a.I(f"s_lshl_b32 s12, {s(sQS)}, 18")
    a.I(f"s_lshl_b32 s13, {s(sH)}, 13")
    a.I("s_add_u32 s12, s12, s13")
    a.I("s_add_u32 s13, s12, 4096")

    def q_loads(vm=None):
        for t in range(8):
            x = f"buffer_load_dwordx4 {v(Q + 4 * t, 4)}, {v(L16)}, s[32:35], s{12 + t // 4} offen offset:{(t % 4) * 1024}{os.environ.get('QP', '')}"
            vm.issue(x, "Q") if vm else a.I(x)

    def q_clear(r0):
        for j in range(4):
            a.I(f"v_mov_b32 {v(r0 + j)}, -1")
        for q in range(4):
            a.I(f"buffer_store_dwordx4 {v(r0, 4)}, {v(L16)}, s[32:35], s{12 + q // 2} offen offset:{(q % 2) * 1024}{SP}")

    if withb2:
        a.I("s_cmp_eq_u32 s23, 0")
        a.I(f"s_cbranch_scc1 {N}_nob2l")
        b2_loads(a, VM(a), 60, 67, L16, 16, 32, 62, 48)
        q_loads()
        a.label(f"{N}_nob2l")
        a.I("s_barrier")
    a.I(f"s_lshl_b32 s46, {s(sQS)}, 18")
    a.I(f"s_lshl_b32 s6, {s(sH)}, 13")
    a.I("s_add_u32 s46, s46, s6")
    a.I("s_add_u32 s47, s46, 4096")
    a.I(f"s_mov_b32 {s(sKM)}, s11")
    a.I(f"s_mov_b32 {s(sKO)}, 0")

    def dma_list(withV=True):
        l = []
        if withV:
            l += [f"s_mov_b32 m0, {s(sVM)}", None,
                  f"buffer_load_dwordx4 {v(VDA)}, s[28:31], {s(sKO)} offen lds",
                  f"buffer_load_dwordx4 {v(VDA)}, s[28:31], {s(sKO)} offen offset:1024 lds",
                  f"s_add_u32 m0, {s(sVM)}, 0x4000", None,
                  f"buffer_load_dwordx4 {v(VDB)}, s[28:31], {s(sKO)} offen lds",
                  f"buffer_load_dwordx4 {v(VDB)}, s[28:31], {s(sKO)} offen offset:1024 lds"]
        l += [f"s_mov_b32 m0, {s(sKM)}", f"s_add_u32 {s(sVM)}, {s(sKM)}, 0x2000",
              f"buffer_load_dwordx4 {v(VDA)}, s[24:27], {s(sKO)} offen lds",
              f"buffer_load_dwordx4 {v(VDA)}, s[24:27], {s(sKO)} offen offset:1024 lds",
              f"s_add_u32 m0, {s(sKM)}, 0x4000", f"s_add_u32 {s(sKM)}, {s(sKM)}, 0x8000",
              f"buffer_load_dwordx4 {v(VDB)}, s[24:27], {s(sKO)} offen lds",
              f"buffer_load_dwordx4 {v(VDB)}, s[24:27], {s(sKO)} offen offset:1024 lds",
              f"s_and_b32 {s(sKM)}, {s(sKM)}, 0x1ffff",
              f"s_add_u32 {s(sKO)}, {s(sKO)}, 0x4000"]
        return l

    def emit_dma(withV=True):
        for x in dma_list(withV):
            if "dma" in os.environ.get("ADROP", "") and x and x.endswith(" lds"):
                continue
            a.I(x or "s_nop 0")

    def mask_negm():
        for j in range(16):
            a.I(f"v_cmp_le_i32 vcc, {(j & 3) + 8 * (j >> 2)}, {v(QREL)}")
            a.I("s_nop 1")
            a.I(f"v_cndmask_b32 {v(NEGM + j)}, {v(NINF)}, {v(NEGM + j)}, vcc")
        a.I("s_nop 1")

    def rowmax(Sx, dst):
        a.I(f"v_max3_f32 {v(dst)}, {v(Sx)}, {v(Sx + 1)}, {v(Sx + 2)}")
        for j in range(3, 15, 2):
            a.I(f"v_max3_f32 {v(dst)}, {v(dst)}, {v(Sx + j)}, {v(Sx + j + 1)}")
        a.I(f"v_max_f32 {v(dst)}, {v(dst)}, {v(Sx + 15)}")
        a.I(f"v_mov_b32 {v(T2)}, {v(dst)}")
        a.I("s_nop 1")
        a.I(f"v_permlane32_swap_b32 {v(dst)}, {v(T2)}")
        a.I(f"v_max_f32 {v(dst)}, {v(dst)}, {v(T2)}")

    def role(ld):
        R = "S" if ld else "L"
        if withb2 and not ld:
            a.I("s_cmp_eq_u32 s23, 0")
            a.I(f"s_cbranch_scc1 {N}_b2no")
            a.I(f"s_and_b32 s67, {s(sW)}, 2")
            a.I("s_lshl_b32 s67, s67, 2")
            a.I(f"s_add_u32 s67, s67, {FLG}")
            a.I("v_mov_b32 v124, s67")
            a.I(f"s_bitcmp1_b32 {s(sW)}, 0")
            a.I(f"s_cbranch_scc1 {N}_b2w1")
            rmap = [56, 57, 58, 59, 60, 61, 62, 120, 63, 16, 24, 32, 40, 64, 72, 80, 88, 104, 160, 176, 192, 208, 224]
            for own in range(2):
                vmb = VM(a)
                if own:
                    a.label(f"{N}_b2w1")
                ex = [0]

                def pair_sync():
                    ex[0] += 1
                    lab = a.uid(f"{N}_spin")
                    a.I(f"v_mov_b32 v125, {ex[0]}")
                    a.I(f"ds_write_b32 v124, v125 offset:{4 * own}")
                    a.label(lab)
                    a.I(f"ds_read_b32 v126, v124 offset:{4 * (1 - own)}")
                    a.I("s_waitcnt lgkmcnt(0)")
                    a.I("v_readfirstlane_b32 s67, v126")
                    a.I("s_nop 0")
                    a.I(f"s_cmp_lt_u32 s67, {ex[0]}")
                    a.I(f"s_cbranch_scc1 {lab}")
                b2_body(a, own, 60, 61, pair_sync, vmb, S0=62, SR=48, slice_len=10 ** 9, rmap=rmap, preloaded=True,
                        st=st if os.environ.get("B2ST") else (lambda: None))
                if os.environ.get("B2ST"):
                    st()
                    st.n -= 5 * (1 - own)
                assert vmb.q[-5:] == ["Q", "Z", "Z", "Z", "Z"] or "Q" not in vmb.q
                a.I(f"s_branch {N}_b2done")
            a.label(f"{N}_b2no")
        def inits(tag):
            for j in range(16):
                a.I(f"v_mov_b32 {v(NEGM + j)}, 0")
            a.I(f"s_cmp_lg_u32 {s(sN)}, 1")
            a.I(f"s_cbranch_scc1 {N}_{R}_nm1{tag}")
            mask_negm()
            a.label(f"{N}_{R}_nm1{tag}")

        inits("a")
        q_loads()
        if ld:
            emit_dma(withV=False)
            emit_dma()
        if withb2 and not ld:
            a.I("s_waitcnt vmcnt(0)")
            a.I(f"s_branch {N}_b2join")
            a.label(f"{N}_b2done")
            inits("b")
            a.I("s_waitcnt vmcnt(4)")
            a.label(f"{N}_b2join")
        a.I(f"v_mov_b32 {v(VL)}, 0")
        a.I(f"v_mov_b32 {v(VLS)}, 0")
        a.I(f"v_add_u32 {v(VKA)}, 0x8000, {v(L16)}")
        a.I(f"v_mov_b32 {v(VVA)}, {v(L16)}")
        if os.environ.get("PRIO") and not ld:
            a.I(f"s_setprio {os.environ['PRIO']}")
        if ld or not withb2:
            a.I(f"s_waitcnt vmcnt({6 if ld else 0})")
        a.I("s_barrier")
        st()
        for t in range(8):
            a.I(f"ds_read_b128 {v(RING + 4 * t, 4)}, {v(L16)} offset:{t * 1024}")
        dl = [x or "s_nop 0" for x in dma_list()] if ld else []
        for t in range(8):
            if t % 4 == 0:
                a.I("s_waitcnt lgkmcnt(4)")
            a.I(f"{MF} {v(S[0], 16)}, {v(RING + 4 * t, 4)}, {v(Q + 4 * t, 4)}, {v(NEGM if t == 0 else S[0], 16)}")
            a.I(f"ds_read_b128 {v(RING + 4 * t, 4)}, {v(L16)} offset:{16384 + t * 1024}")
            for x in dl[:3]:
                a.I(x)
            dl = dl[3:]
            for j in range(5):
                a.I(f"v_mov_b32 {v(O + 5 * t + j)}, 0")
        assert not dl
        for j in range(40, 64):
            a.I(f"v_mov_b32 {v(O + j)}, 0")
        if ld:
            emit_dma()
        rowmax(S[0], T0)
        for j in range(16):
            a.I(f"v_sub_f32 {v(S[0] + j)}, {v(S[0] + j)}, {v(T0)}")
        for j in range(16):
            a.I(f"v_sub_f32 {v(NEGM + j)}, 0, {v(T0)}")
        a.I(f"s_mov_b32 {s(sPH)}, 0")
        a.I(f"s_sub_u32 {s(sC)}, {s(sN)}, 3")
        a.I(f"s_cbranch_scc0 {N}_{R}_first")
        a.I(f"s_mov_b32 {s(sPH)}, 3")
        a.I(f"s_mov_b32 {s(sC)}, 0")
        a.I(f"s_cmp_lg_u32 {s(sN)}, 2")
        a.I(f"s_cbranch_scc1 {N}_{R}_first")
        a.I(f"s_mov_b32 {s(sPH)}, 1")
        mask_negm()
        a.label(f"{N}_{R}_first")
        e = lambda j: v(EE + (j % 6))
        if ld:
            a.I("s_waitcnt vmcnt(14)")
        a.I("s_waitcnt lgkmcnt(0)")
        a.I("s_barrier")
        a.I(f"s_sub_u32 {s(sBAR)}, {s(sBAR)}, 1")
        dl = [x or "s_nop 0" for x in dma_list()] if ld else []
        for pos in range(8):
            r = v(RING + 4 * pos, 4)
            a.I(f"{MF} {v(S[1], 16)}, {r}, {v(Q + 4 * pos, 4)}, {v(NEGM if pos == 0 else S[1], 16)}")
            a.I(f"ds_read_b128 {r}, {v(VKA)} offset:{pos * 1024}")
            a.I(f"v_exp_f32 {e(2 * pos)}, {v(S[0] + 2 * pos)}")
            a.I(f"v_exp_f32 {e(2 * pos + 1)}, {v(S[0] + 2 * pos + 1)}")
            a.many(dl[:3] or ["s_nop 0"])
            dl = dl[3:]
            a.I(f"v_add_f32 {v(VLS)}, {v(VLS)}, {e(2 * pos)}")
            a.I(f"v_add_f32 {v(VLS)}, {v(VLS)}, {e(2 * pos + 1)}")
            a.I(f"v_cvt_pk_bf16_f32 {v(P[0] + pos)}, {e(2 * pos)}, {e(2 * pos + 1)}")
        assert not dl
        a.I("s_nop 4")
        a.I(f"s_sub_u32 {s(sC)}, {s(sC)}, 1")
        a.I(f"s_branch {N}_{R}_back0")

        def iteration(par):
            gaps = [[] for _ in range(16)]
            pre = [[] for _ in range(16)]
            mf = []
            Sc, Sn, Pc, Pp = S[par], S[1 - par], P[par], P[1 - par]
            e = lambda j: v(EE + (j % 6))
            for pos in range(16):
                r = v(RING + 4 * (pos & 7), 4)
                if pos < 8:
                    mf.append(f"{MF} {v(Sn, 16)}, {r}, {v(Q + 4 * pos, 4)}, {v(NEGM if pos == 0 else Sn, 16)}")
                    ks, dt = divmod(pos, 4)
                    gaps[pos].append(f"ds_read_b128 {r}, {v(VVA)} offset:{8192 + par * 16384 + (2 * dt + ks) * 1024}")
                else:
                    ks, dt = divmod(pos - 8, 4)
                    mf.append(f"{MF} {v(O + 16 * dt, 16)}, {r}, {v(Pp + 4 * ks, 4)}, {v(O + 16 * dt, 16)}")
                    gaps[pos].append(f"ds_read_b128 {r}, {v(VKA)} offset:{par * 16384 + (pos - 8) * 1024}")
                if pos % 4 == 0:
                    pre[pos].append("s_waitcnt lgkmcnt(4)")
            early = int(os.environ.get("EARLY", "1"))
            if early:
                eg = [0, 0, 1, 2, 2, 3, 4, 5, 6, 7, 8, 9, 10, 11, 12, 13]
            else:
                eg = [0] + list(range(15))
            gaps[0].append(f"v_add_f32 {v(VL)}, {v(VL)}, {v(VLS)}")
            for j in range(16):
                gaps[eg[j]].append(f"v_exp_f32 {e(j)}, {v(Sc + j)}")
            pka = os.environ.get("PKADD")
            for j in range(1, 16):
                g = eg[j] + 1
                if pka:
                    if j == 3:
                        gaps[g].append(f"v_pk_add_f32 v[8:9], {v(EE, 2)}, {v(EE + 2, 2)}")
                    elif j % 2 == 1 and j > 3:
                        gaps[g].append(f"v_pk_add_f32 v[8:9], v[8:9], {v(EE + (j - 1) % 6, 2)}")
                    if j == 15:
                        gaps[g].append(f"v_add_f32 {v(VLS)}, v8, v9")
                elif j == 1:
                    gaps[g].append(f"v_add_f32 {v(VLS)}, {e(0)}, {e(1)}")
                else:
                    gaps[g].append(f"v_add_f32 {v(VLS)}, {v(VLS)}, {e(j)}")
                if j % 2 == 1:
                    gaps[g + (1 if (early and j == 15) else 0)].append(f"v_cvt_pk_bf16_f32 {v(Pc + j // 2)}, {e(j - 1)}, {e(j)}")
            if par == 0:
                gaps[2].append(f"v_add_u32 {v(VKA)}, 0x8000, {v(VKA)}")
                gaps[6].append(f"v_and_b32 {v(VKA)}, 0x1ffff, {v(VKA)}")
                bar = ["s_barrier", f"s_sub_u32 {s(sBAR)}, {s(sBAR)}, 1"]
                if ld:
                    bar = ["s_waitcnt vmcnt(14)"] + bar
                gaps[4] = bar + gaps[4]
                if ld:
                    d = [x for x in dma_list() if x]
                    m0a, l1, l2, m0b, l3, l4, m0c, svm, l5, l6, m0d, skm, l7, l8, sand, sko = d
                    gaps[5] = [m0a] + gaps[5] + [l1]
                    gaps[6] += [l2, m0b]
                    gaps[7] += [l3]
                    gaps[8] += [l4, m0c]
                    gaps[9] += [svm, l5]
                    gaps[10] += [l6, m0d]
                    gaps[11] += [l7]
                    gaps[12] += [l8, skm]
                    gaps[13] += [sand, sko]
            else:
                gaps[10].append(f"v_mov_b32 {v(VVA)}, {v(VKA)}")
            gaps[14].append(f"s_sub_u32 {s(sC)}, {s(sC)}, 1")
            gaps[14 if early else 15].append(f"v_cmp_nge_f32 vcc, {s(sTHR)}, {v(VLS)}")
            drop = os.environ.get("ADROP", "").split(",")
            for pos in range(16):
                if "bar" in drop:
                    gaps[pos] = [x for x in gaps[pos] if x != "s_barrier"]
                if "dma" in drop:
                    gaps[pos] = [x for x in gaps[pos] if not x.endswith(" lds")]
                if "rd" in drop:
                    gaps[pos] = [x for x in gaps[pos] if not x.startswith("ds_read")]
                if "valu" in drop:
                    gaps[pos] = [x for x in gaps[pos] if not (x.startswith("v_exp") or x.startswith("v_cvt") or x.startswith("v_add_f32"))]
                if "e64" in drop:
                    gaps[pos] = [x.replace("v_exp_f32 ", "v_exp_f32_e64 ").replace("v_add_f32 ", "v_add_f32_e64 ") for x in gaps[pos]]
                a.many(pre[pos])
                a.I(mf[pos])
                a.many(gaps[pos])
            if "br" not in drop:
                a.I(f"s_cbranch_vccnz {N}_{R}_slow{par}")
            a.label(f"{N}_{R}_back{par}")
            a.I(f"s_cbranch_scc1 {N}_{R}_spec{par}")

        if os.environ.get("PRIO") and not ld:
            pass
        if os.environ.get("AALIGN"):
            a.raw(".p2align 6")
            for _ in range(int(os.environ["AALIGN"]) - 1):
                a.I("s_nop 0")
        a.label(f"{N}_{R}_it0")
        iteration(0)
        a.label(f"{N}_{R}_it1")
        iteration(1)
        a.I(f"s_branch {N}_{R}_it0")

        def svc():
            lab = a.uid(f"{N}_{R}_svc")
            a.I(f"s_cmp_eq_u32 {s(sBAR)}, 0")
            a.I(f"s_cbranch_scc1 {lab}")
            if ld:
                a.I("s_waitcnt vmcnt(14)")
            if "bar" not in os.environ.get("ADROP", ""):
                a.I("s_barrier")
            a.I(f"s_sub_u32 {s(sBAR)}, {s(sBAR)}, 1")
            if ld:
                emit_dma()
            a.label(lab)

        for par in range(2):
            Sc, Sn, Pc = S[par], S[1 - par], P[par]
            a.label(f"{N}_{R}_slow{par}")
            a.I("s_cselect_b32 s22, 1, 0")
            a.I("s_nop 15")
            rowmax(Sc, T0)
            a.I(f"v_max_f32 {v(T0)}, 0, {v(T0)}")
            a.I(f"v_exp_f32_e64 {v(T1)}, -{v(T0)}")
            for j in range(16):
                a.I(f"v_sub_f32 {v(NEGM + j)}, {v(NEGM + j)}, {v(T0)}")
                a.I(f"v_sub_f32 {v(Sc + j)}, {v(Sc + j)}, {v(T0)}")
                a.I(f"v_sub_f32 {v(Sn + j)}, {v(Sn + j)}, {v(T0)}")
            for j in range(64):
                a.I(f"v_mul_f32 {v(O + j)}, {v(O + j)}, {v(T1)}")
            a.I(f"v_mul_f32 {v(VL)}, {v(VL)}, {v(T1)}")
            a.I(f"v_mov_b32 {v(VLS)}, 0")
            for i in range(8):
                a.I(f"v_exp_f32 {v(E)}, {v(Sc + 2 * i)}")
                a.I(f"v_exp_f32 {v(E + 1)}, {v(Sc + 2 * i + 1)}")
                a.I("s_nop 0")
                a.I(f"v_add_f32 {v(VLS)}, {v(VLS)}, {v(E)}")
                a.I(f"v_add_f32 {v(VLS)}, {v(VLS)}, {v(E + 1)}")
                a.I(f"v_cvt_pk_bf16_f32 {v(Pc + i)}, {v(E)}, {v(E + 1)}")
            a.I(f"s_cmp_eq_u32 {s(sPH)}, 2")
            a.I(f"s_cbranch_scc1 {N}_{R}_lback{par}")
            a.I("s_cmp_lg_u32 s22, 0")
            a.I(f"s_branch {N}_{R}_back{par}")
            a.label(f"{N}_{R}_spec{par}")
            a.I(f"s_cmp_eq_u32 {s(sPH)}, 1")
            a.I(f"s_cbranch_scc1 {N}_{R}_last{1 - par}")
            if par == 0:
                a.I(f"s_cmp_eq_u32 {s(sPH)}, 3")
                a.I(f"s_cbranch_scc1 {N}_{R}_exit0")
            a.I(f"s_mov_b32 {s(sPH)}, 1")
            a.I(f"s_mov_b32 {s(sC)}, 0")
            mask_negm()
            a.I(f"s_branch {N}_{R}_it{1 - par}")
            Pp = P[1 - par]
            a.label(f"{N}_{R}_last{par}")
            a.I(f"s_mov_b32 {s(sPH)}, 2")
            a.I("s_waitcnt lgkmcnt(0)")
            voff = lambda pos: (2 * (pos % 4) + pos // 4) * 1024
            for pos in range(8):
                a.I(f"ds_read_b128 {v(RING + 4 * pos, 4)}, {v(VVA)} offset:{8192 + par * 16384 + voff(pos)}")
            a.I(f"v_add_f32 {v(VL)}, {v(VL)}, {v(VLS)}")
            a.I(f"v_mov_b32 {v(VLS)}, 0")
            dl = []
            if par == 0:
                if ld:
                    a.I("s_waitcnt vmcnt(14)")
                a.I("s_barrier")
                a.I(f"s_sub_u32 {s(sBAR)}, {s(sBAR)}, 1")
                dl = [x or "s_nop 0" for x in dma_list()] if ld else []
            for pos in range(8):
                ks, dt = divmod(pos, 4)
                a.I(f"v_exp_f32 {e(2 * pos)}, {v(Sc + 2 * pos)}")
                a.I(f"v_exp_f32 {e(2 * pos + 1)}, {v(Sc + 2 * pos + 1)}")
                a.I("s_waitcnt lgkmcnt(7)")
                a.I(f"{MF} {v(O + 16 * dt, 16)}, {v(RING + 4 * pos, 4)}, {v(Pp + 4 * ks, 4)}, {v(O + 16 * dt, 16)}")
                if par == 0:
                    a.I(f"ds_read_b128 {v(RING + 4 * pos, 4)}, {v(VVA)} offset:{8192 + 16384 + voff(pos)}")
                else:
                    a.I(f"ds_read_b128 {v(RING + 4 * pos, 4)}, {v(VKA)} offset:{8192 + voff(pos)}")
                a.I(f"v_add_f32 {v(VLS)}, {v(VLS)}, {e(2 * pos)}")
                a.I(f"v_add_f32 {v(VLS)}, {v(VLS)}, {e(2 * pos + 1)}")
                a.I(f"v_cvt_pk_bf16_f32 {v(Pc + pos)}, {e(2 * pos)}, {e(2 * pos + 1)}")
                a.many(dl[:3])
                dl = dl[3:]
            assert not dl
            a.I(f"v_cmp_nge_f32 vcc, {s(sTHR)}, {v(VLS)}")
            a.I(f"s_cbranch_vccnz {N}_{R}_slow{par}")
            a.label(f"{N}_{R}_lback{par}")
            if par == 0:
                a.I(f"s_branch {N}_{R}_fin0")
                a.label(f"{N}_{R}_exit0")
                a.I("s_waitcnt lgkmcnt(0)")
                for pos in range(8):
                    a.I(f"ds_read_b128 {v(RING + 4 * pos, 4)}, {v(VVA)} offset:{8192 + 16384 + voff(pos)}")
                a.label(f"{N}_{R}_fin0")
            a.I(f"v_add_f32 {v(VL)}, {v(VL)}, {v(VLS)}")
            nrm = [f"v_mov_b32 {v(T2)}, {v(VL)}", None, f"v_permlane32_swap_b32 {v(VL)}, {v(T2)}",
                   f"v_add_f32 {v(VL)}, {v(VL)}, {v(T2)}", f"v_rcp_f32 {v(T0)}, {v(VL)}"]
            for pos in range(8):
                dt, ks = divmod(pos, 2)
                rp = 4 * ks + dt
                a.I(f"s_waitcnt lgkmcnt({max(0, 7 - max(rp, 4 + dt - (1 - ks) * 4))})" if False else
                    f"s_waitcnt lgkmcnt({7 - rp if ks else min(7 - rp, 7 - (4 + dt - 1) if dt else 7)})")
                a.I(f"{MF} {v(O + 16 * dt, 16)}, {v(RING + 4 * rp, 4)}, {v(Pc + 4 * ks, 4)}, {v(O + 16 * dt, 16)}")
                if pos < len(nrm) and nrm[pos]:
                    a.I(nrm[pos])
            if par == 0:
                a.I(f"s_branch {N}_{R}_epi")
        a.label(f"{N}_{R}_epi")
        st()
        svc()
        if ld and (withb2 or b2tail):
            if not LT:
                a.I(f"s_and_b32 s53, {s(sW)}, 3")
                code_touch(a, "l3_kernel", 53, 48, EE + 2, nw_log=2)
        for dt in range(4):
            for h in range(2):
                q = 2 * dt + h
                for i in range(4):
                    src = O + 16 * dt + 8 * h + 2 * i
                    a.I(f"v_mul_f32 {v(src)}, {v(src)}, {v(T0)}")
                    a.I(f"v_mul_f32 {v(src + 1)}, {v(src + 1)}, {v(T0)}")
                    a.I(f"v_cvt_pk_bf16_f32 {v(PK + 4 * q + i)}, {v(src)}, {v(src + 1)}")
                a.I(f"buffer_store_dwordx4 {v(PK + 4 * q, 4)}, {v(L16)}, s[36:39], s{46 + q // 4} offen offset:{(q % 4) * 1024}{SP}")
            if dt == 1:
                svc()
        if ld and b2tail:
            a.I(f"s_lshl_b32 s60, {s(sH)}, 2")
            a.I(f"s_add_u32 s60, s60, {s(sP)}")
            a.I("s_lshl_b32 s60, s60, 1")
            a.I(f"s_bfe_u32 s61, {s(sW)}, 0x10001")
            a.I("s_add_u32 s60, s60, s61")
            a.I(f"s_cmp_lt_u32 {s(sP)}, 4")
            a.I(f"s_cbranch_scc1 {N}_b2go")
            a.I("s_cmp_lg_u32 s60, 8")
            a.I(f"s_cbranch_scc1 {N}_{R}_tail")
            a.I("s_movk_i32 s60, 0x100")
            a.label(f"{N}_b2go")
            a.I("s_lshl_b32 s61, s61, 14")
            a.I(f"s_add_u32 s61, s61, {131072}")
            a.I(f"s_lshl_b32 s62, {s(sP)}, 2")
            a.I("s_sub_u32 s62, 28, s62")
            a.label(f"{N}_b2al")
            a.I(f"s_cmp_le_u32 {s(sBAR)}, s62")
            a.I(f"s_cbranch_scc1 {N}_b2st")
            a.I("s_waitcnt vmcnt(14)")
            a.I("s_barrier")
            a.I(f"s_sub_u32 {s(sBAR)}, {s(sBAR)}, 1")
            emit_dma()
            a.I(f"s_branch {N}_b2al")
            a.label(f"{N}_b2st")
            a.I(f"s_bitcmp1_b32 {s(sW)}, 0")
            a.I(f"s_cbranch_scc1 {N}_b2w1")
            for own in range(2):
                vmb = VM(a)
                nsv = [0]

                def svcb():
                    nsv[0] += 1
                    a.I("s_waitcnt vmcnt(14)")
                    vmb.q = vmb.q[-14:]
                    a.I("s_barrier")
                    a.I(f"s_sub_u32 {s(sBAR)}, {s(sBAR)}, 1")
                    for x in dma_list():
                        if x and x.startswith("buffer"):
                            vmb.issue(x, "dma")
                        else:
                            a.I(x or "s_nop 0")
                if own:
                    a.label(f"{N}_b2w1")
                b2_body(a, own, 60, 61, svcb, vmb, R0=16, S0=62, SR=48, slice_len=int(os.environ.get("SLICE", "90")))
                assert nsv[0] <= 12, nsv
                print("b2 svc slices", nsv[0])
                if not own:
                    a.I(f"s_branch {N}_{R}_tail")
        if ld:
            q_clear(6)
            a.I(f"s_lshl_b32 s12, {s(sP)}, 2")
            a.I("s_sub_u32 s12, 56, s12")
            a.I(f"s_add_u32 s12, s12, {s(sW)}")
            a.I("s_lshl_b32 s12, s12, 18")
            a.I(f"s_lshl_b32 s13, {s(sH)}, 13")
            a.I("s_add_u32 s12, s12, s13")
            a.I("s_add_u32 s13, s12, 4096")
            q_clear(6)
            a.I("s_mov_b32 s54, 0")
            a.label(f"{N}_{R}_tail")
            if LT:
                a.I(f"s_cmp_gt_u32 {s(sBAR)}, {LT}")
                a.I(f"s_cbranch_scc1 {N}_notouch")
                a.I("s_cmp_lg_u32 s54, 0")
                a.I(f"s_cbranch_scc1 {N}_notouch")
                a.I("s_mov_b32 s54, 1")
                a.I(f"s_and_b32 s53, {s(sW)}, 3")
                code_touch(a, "l3_kernel", 53, 48, EE + 2, nw_log=2)
                if not os.environ.get("NOWT"):
                    srd(a, 48, 4, 5, 4 * MB, add=WS_WO)
                    a.I("s_lshr_b32 s52, s2, 3")
                    a.I("s_lshl2_add_u32 s52, s52, s53")
                    a.I("s_lshr_b32 s55, s52, 4")
                    a.I("s_lshl_b32 s55, s55, 19")
                    a.I("s_and_b32 s52, s52, 15")
                    a.I("s_lshl_b32 s52, s52, 13")
                    a.I("s_add_u32 s52, s52, s55")
                    a.I("s_bfe_u32 s55, s2, 0x20001")
                    a.I("s_lshl_b32 s55, s55, 17")
                    a.I("s_add_u32 s52, s52, s55")
                    a.I(f"v_lshlrev_b32 {v(EE)}, 7, v0")
                    a.I(f"buffer_load_dword {v(EE + 1)}, {v(EE)}, s[48:51], s52 offen")
                a.label(f"{N}_notouch")
            a.I(f"s_cmp_eq_u32 {s(sBAR)}, 0")
            a.I(f"s_cbranch_scc1 {N}_{R}_done")
            a.I("s_waitcnt vmcnt(14)")
            a.I("s_barrier")
            a.I(f"s_sub_u32 {s(sBAR)}, {s(sBAR)}, 1")
            emit_dma()
            a.I(f"s_branch {N}_{R}_tail")
            a.label(f"{N}_{R}_done")
        n0 = st.n
        st.dump(sW, 4, tmpv=T0)
        st.n = n0 - 2
        a.I("s_endpgm")

    a.I(f"s_cmp_ge_u32 {s(sW)}, 4")
    a.I(f"s_cbranch_scc1 {N}_short")
    role(False)
    a.label(f"{N}_short")
    role(True)
    kend(a, N)
    return a, N, (256, 512, 163840 if (withb2 or b2tail) else 131072)


def oproj_body(a, N, st, bar_at=None):
    ACC, CR, AFR = 64, 128, 192
    DEPTH = 8
    L16, L16B, VD0, VD1, TB = 1, 2, 3, 4, 5
    a.I("s_and_b32 s10, s2, 7")
    a.I("s_lshr_b32 s11, s2, 3")
    a.I("s_and_b32 s12, s11, 3")
    a.I("s_lshl_b32 s10, s10, 2")
    a.I("s_add_u32 s17, s10, s12")
    a.I("s_lshr_b32 s18, s11, 2")
    if os.environ.get("OPX") == "same":
        a.I("s_mov_b32 s17, 0")
        a.I("s_mov_b32 s18, 0")
    if os.environ.get("OPX") == "map2":
        a.I("s_and_b32 s10, s2, 3")
        a.I("s_lshl_b32 s10, s10, 3")
        a.I("s_and_b32 s12, s11, 7")
        a.I("s_add_u32 s17, s10, s12")
        a.I("s_bfe_u32 s10, s2, 0x10002")
        a.I("s_lshl_b32 s10, s10, 2")
        a.I("s_lshr_b32 s12, s11, 3")
        a.I("s_add_u32 s18, s10, s12")
    a.I(f"v_lshlrev_b32 {v(L16)}, 4, v0")
    a.I(f"v_add_u32 {v(L16B)}, 0x40000, {v(L16)}")
    a.I("v_lshrrev_b32 v8, 3, v0")
    a.I("v_lshlrev_b32 v8, 10, v8")
    a.I("v_bfe_u32 v9, v0, 4, 1")
    a.I("v_lshlrev_b32 v10, 2, v9")
    a.I("v_and_b32 v11, 7, v0")
    a.I("v_xor_b32 v10, v10, v11")
    a.I(f"v_lshl_add_u32 {v(VD0)}, v10, 4, v8")
    a.I("s_lshl_b32 s10, s18, 7")
    a.I(f"v_add_u32 {v(VD0)}, s10, {v(VD0)}")
    a.I(f"v_add_u32 {v(VD1)}, {8192 - 1024}, {v(VD0)}")
    a.I("v_lshrrev_b32 v8, 5, v0")
    a.I("v_bfe_u32 v10, v0, 2, 2")
    a.I("v_lshl_add_u32 v8, v8, 2, v10")
    a.I(f"v_lshlrev_b32 {v(TB)}, 7, v8")
    a.I(f"v_lshl_add_u32 {v(TB)}, v9, 5, {v(TB)}")
    a.I("v_and_b32 v10, 3, v0")
    a.I(f"v_lshl_add_u32 {v(TB)}, v10, 3, {v(TB)}")
    a.I("v_bfe_u32 v10, v0, 3, 1")
    a.I(f"v_lshl_add_u32 {v(TB)}, v10, 6, {v(TB)}")
    a.I("s_lshl_b32 s19, s16, 14")
    a.I(f"v_add_u32 {v(TB)}, s19, {v(TB)}")
    a.I(f"v_xor_b32 {v(TB + 1)}, 64, {v(TB)}")
    a.I("s_lshl_b32 s40, s17, 19")
    a.I("s_lshl_b32 s10, s16, 16")
    a.I("s_add_u32 s40, s40, s10")
    a.I("s_lshl_b32 s41, s16, 20")
    ROT = int(os.environ.get("ROT", "0"))
    if ROT:
        a.I("s_and_b32 s45, s2, 7")
        a.I(f"s_mul_i32 s45, s45, {ROT}")
    a.I("s_waitcnt lgkmcnt(0)")
    srd(a, 20, 4, 5, 16 * MB, add=WS_CTX)
    srd(a, 24, 6, 7, 4 * MB)
    srd(a, 28, 8, 9, 4 * MB)
    vm, lg = VM(a), LG(a)
    st()

    def loads(g):
        sl = g % DEPTH
        a.I(f"s_add_u32 m0, s19, {sl * 2048}")
        if ROT:
            if g % 4 == 0:
                a.I(f"s_add_u32 s44, s45, {g}")
                a.I("s_and_b32 s44, s44, 63")
                a.I("s_lshl_b32 s46, s44, 14")
                a.I("s_add_u32 s46, s46, s41")
                a.I("s_lshl_b32 s44, s44, 10")
            a.I(f"s_add_u32 s42, s46, {hex((g % 4) * 16384)}")
        else:
            a.I(f"s_add_u32 s42, s41, {hex(g * 16384)}")
        vm.issue(f"buffer_load_dwordx4 {v(VD0)}, s[24:27], s42 offen lds", g)
        vm.issue(f"buffer_load_dwordx4 {v(VD1)}, s[24:27], s42 offen offset:1024 lds", g)
        if g % 4 == 0:
            a.I(f"s_add_u32 s43, s40, {'s44' if ROT else hex(g * 1024)}")
        vm.issue(f"buffer_load_dwordx4 {v(CR + 8 * sl, 4)}, {v(L16)}, s[20:23], s43 offen offset:{(g % 4) * 1024}", g)
        vm.issue(f"buffer_load_dwordx4 {v(CR + 8 * sl + 4, 4)}, {v(L16B)}, s[20:23], s43 offen offset:{(g % 4) * 1024}", g)

    def trs(g):
        sl = g % DEPTH
        vm.wait(g)
        for cb in range(2):
            d = AFR + 8 * (g & 1) + 4 * cb
            lg.issue(f"ds_read_b64_tr_b16 {v(d, 2)}, {v(TB + cb)} offset:{sl * 2048}", g)
            lg.issue(f"ds_read_b64_tr_b16 {v(d + 2, 2)}, {v(TB + cb)} offset:{sl * 2048 + 1024}", g)

    for g in range(DEPTH):
        loads(g)
    st()
    trs(0)
    st()
    for g in range(64):
        if g + 1 < 64:
            trs(g + 1)
        lg.wait(g)
        sl = g % DEPTH
        for qt in range(2):
            for cb in range(2):
                acc = v(ACC + 16 * (2 * qt + cb), 16)
                a.I(f"{MF} {acc}, {v(AFR + 8 * (g & 1) + 4 * cb, 4)}, {v(CR + 8 * sl + 4 * qt, 4)}, {'0' if g == 0 else acc}")
        if g + DEPTH < 64:
            loads(g + DEPTH)
        if g == bar_at:
            a.I("s_barrier")
    st()
    a.I(f"v_add_u32 v8, s19, {v(L16)}")
    a.I("s_nop 11")
    for tl in range(4):
        for jq in range(4):
            a.I(f"ds_write_b128 v8, {v(ACC + 16 * tl + 4 * jq, 4)} offset:{(tl * 4 + jq) * 1024}")
    a.I("v_lshrrev_b32 v9, 5, v0")
    a.I("v_and_b32 v10, 31, v0")
    a.I("v_lshlrev_b32 v10, 4, v10")
    a.I("v_lshl_add_u32 v9, v9, 13, v10")
    a.I("s_lshl_b32 s10, s16, 11")
    a.I("v_add_u32 v9, s10, v9")
    a.I("s_lshl_b32 s11, s17, 17")
    a.I("s_lshl_b32 s12, s18, 7")
    a.I("s_add_u32 s11, s11, s12")
    a.I("s_lshl_b32 s12, s16, 5")
    a.I("s_add_u32 s11, s11, s12")
    a.I("v_lshlrev_b32 v10, 11, v0")
    a.I("s_waitcnt lgkmcnt(0)")
    return ACC


def oproj_body2(a, N, st, bar_at=None):
    DEPTH = int(os.environ.get("ODEPTH", "8"))
    ACC, CR = 192 - 16 * DEPTH, 256 - 16 * DEPTH
    L16, L16B = 1, 2
    a.I("s_and_b32 s10, s2, 7")
    a.I("s_lshr_b32 s11, s2, 3")
    a.I("s_and_b32 s12, s11, 3")
    a.I("s_lshl_b32 s10, s10, 2")
    a.I("s_add_u32 s17, s10, s12")
    a.I("s_lshr_b32 s18, s11, 2")
    if os.environ.get("OPX") == "same":
        a.I("s_mov_b32 s17, 0")
        a.I("s_mov_b32 s18, 0")
    if os.environ.get("OPX") == "sameq":
        a.I("s_and_b32 s17, s17, 3")
    if os.environ.get("OPX") == "map2":
        a.I("s_and_b32 s10, s2, 3")
        a.I("s_lshl_b32 s10, s10, 3")
        a.I("s_and_b32 s12, s11, 7")
        a.I("s_add_u32 s17, s10, s12")
        a.I("s_bfe_u32 s10, s2, 0x10002")
        a.I("s_lshl_b32 s10, s10, 2")
        a.I("s_lshr_b32 s12, s11, 3")
        a.I("s_add_u32 s18, s10, s12")
    a.I(f"v_lshlrev_b32 {v(L16)}, 4, v0")
    a.I(f"v_add_u32 {v(L16B)}, 0x40000, {v(L16)}")
    a.I("s_lshl_b32 s19, s16, 14")
    a.I("s_lshl_b32 s40, s17, 19")
    a.I("s_lshl_b32 s10, s16, 16")
    a.I("s_add_u32 s40, s40, s10")
    a.I("s_lshl_b32 s41, s18, 19")
    a.I("s_lshl_b32 s10, s16, 17")
    a.I("s_add_u32 s41, s41, s10")
    a.I("s_waitcnt lgkmcnt(0)")
    srd(a, 20, 4, 5, 16 * MB, add=WS_CTX)
    srd(a, 24, 4, 5, 4 * MB, add=WS_WO)
    srd(a, 28, 8, 9, 4 * MB)
    vm = VM(a)
    st()

    def loads(g):
        sl = g % DEPTH
        L = []
        if g % 2 == 0:
            L.append(lambda: a.I(f"s_add_u32 s42, s41, {hex(g * 2048)}"))
        if g % 4 == 0:
            L.append(lambda: a.I(f"s_add_u32 s43, s40, {hex(g * 1024)}"))
        for cb in range(2):
            L.append(lambda cb=cb: vm.issue(f"buffer_load_dwordx4 {v(CR + 16 * sl + 4 * cb, 4)}, {v(L16)}, s[24:27], s42 offen "
                                            f"offset:{(g % 2) * 2048 + cb * 1024}", g))
        for qt in range(2):
            L.append(lambda qt=qt: vm.issue(f"buffer_load_dwordx4 {v(CR + 16 * sl + 8 + 4 * qt, 4)}, {v(L16 + qt)}, s[20:23], s43 offen "
                                            f"offset:{(g % 4) * 1024}", g))
        return L

    for g in range(DEPTH):
        for f in loads(g):
            f()
    st()
    st()
    for g in range(64):
        vm.wait(g)
        sl = g % DEPTH
        for qt in range(2):
            for cb in range(2):
                acc = v(ACC + 16 * (2 * qt + cb), 16)
                a.I(f"{MF} {acc}, {v(CR + 16 * sl + 4 * cb, 4)}, {v(CR + 16 * sl + 8 + 4 * qt, 4)}, {'0' if g == 0 else acc}")
        if g + DEPTH < 64:
            for f in loads(g + DEPTH):
                f()
        if g == bar_at:
            a.I("s_barrier")
    st()
    a.I(f"v_add_u32 v8, s19, {v(L16)}")
    a.I("v_lshrrev_b32 v9, 5, v0")
    a.I("v_and_b32 v10, 31, v0")
    a.I("v_lshlrev_b32 v10, 4, v10")
    a.I("v_lshl_add_u32 v9, v9, 13, v10")
    a.I("s_lshl_b32 s10, s16, 11")
    a.I("v_add_u32 v9, s10, v9")
    a.I("s_lshl_b32 s11, s17, 17")
    a.I("s_lshl_b32 s12, s18, 7")
    a.I("s_add_u32 s11, s11, s12")
    a.I("s_lshl_b32 s12, s16, 5")
    a.I("s_add_u32 s11, s11, s12")
    a.I("v_lshlrev_b32 v10, 11, v0")
    for tl in range(4):
        for jq in range(4):
            a.I(f"ds_write_b128 v8, {v(ACC + 16 * tl + 4 * jq, 4)} offset:{(tl * 4 + jq) * 1024}")
    a.I("s_waitcnt lgkmcnt(0)")
    return ACC


def oproj_body3(a, N, st, bar_at=None):
    DEPTH = 8
    ACC, FR = 64, 128
    L16, L16B, LR = 1, 2, 3
    a.I("s_and_b32 s10, s2, 7")
    a.I("s_lshr_b32 s11, s2, 3")
    a.I("s_and_b32 s12, s11, 3")
    a.I("s_lshl_b32 s10, s10, 2")
    a.I("s_add_u32 s17, s10, s12")
    a.I("s_lshr_b32 s18, s11, 2")
    a.I(f"v_lshlrev_b32 {v(L16)}, 4, v0")
    a.I(f"v_add_u32 {v(L16B)}, {0x40000 - 1024}, {v(L16)}")
    a.I("s_lshl_b32 s19, s16, 15")
    a.I(f"v_add_u32 {v(LR)}, s19, {v(L16)}")
    a.I("s_lshl_b32 s42, s18, 19")
    a.I("s_lshl_b32 s10, s16, 17")
    a.I("s_add_u32 s42, s42, s10")
    a.I("s_lshl_b32 s43, s17, 19")
    a.I("s_lshl_b32 s10, s16, 16")
    a.I("s_add_u32 s43, s43, s10")
    RB = int(os.environ.get("RB", "0"))
    if RB:
        a.I("s_lshl1_add_u32 s45, s12, s18")
        a.I("s_and_b32 s45, s45, 7")
        a.I(f"s_mul_i32 s45, s45, {RB // 8 * 1024}")
        a.I("s_mov_b32 s40, s43")
        a.I("s_mov_b32 s41, s42")
        a.I("s_add_u32 s43, s40, s45")
        a.I("s_lshl1_add_u32 s42, s45, s41")
    a.I("s_waitcnt lgkmcnt(0)")
    srd(a, 20, 4, 5, 16 * MB + 2048, add=WS_CTX - 2048)
    srd(a, 24, 4, 5, 4 * MB, add=WS_WO)
    srd(a, 28, 8, 9, 4 * MB)
    vm, lg = VM(a), LG(a)
    st()

    def loads(g):
        sl = g % DEPTH
        return [lambda: a.I(f"s_add_u32 m0, s19, {sl * 4096}"),
                lambda: a.I("s_nop 0") if g < DEPTH else None,
                lambda: vm.issue(f"buffer_load_dwordx4 {v(L16)}, s[24:27], s42 offen lds", g),
                lambda: vm.issue(f"buffer_load_dwordx4 {v(L16)}, s[24:27], s42 offen offset:1024 lds", g),
                lambda: vm.issue(f"buffer_load_dwordx4 {v(L16)}, s[20:23], s43 offen offset:2048 lds", g),
                lambda: vm.issue(f"buffer_load_dwordx4 {v(L16B)}, s[20:23], s43 offen offset:3072 lds", g),
                lambda: nxt(g), lambda: None]

    def nxt(g):
        if not RB:
            a.I("s_add_u32 s42, s42, 2048")
            a.I("s_add_u32 s43, s43, 1024")
            return
        a.I("s_add_u32 s45, s45, 1024")
        a.I(f"s_and_b32 s45, s45, {RB * 1024 - 1}")
        if (g + 1) % RB == 0:
            a.I(f"s_add_u32 s40, s40, {RB * 1024}")
            a.I(f"s_add_u32 s41, s41, {RB * 2048}")
        a.I("s_add_u32 s43, s40, s45")
        a.I("s_lshl1_add_u32 s42, s45, s41")

    def reads(g):
        vm.wait(g)
        for q in range(4):
            lg.issue(f"ds_read_b128 {v(FR + 16 * (g & 1) + 4 * q, 4)}, {v(LR)} offset:{(g % DEPTH) * 4096 + q * 1024}", g)

    for g in range(DEPTH):
        for f in loads(g):
            f()
    st()
    reads(0)
    st()
    for g in range(64):
        if g + 1 < 64:
            reads(g + 1)
        lg.wait(g)
        L = loads(g + DEPTH) if g + DEPTH < 64 else []
        fr = FR + 16 * (g & 1)
        for qt in range(2):
            for cb in range(2):
                acc = v(ACC + 16 * (2 * qt + cb), 16)
                if L:
                    L.pop(0)()
                a.I(f"{MF} {acc}, {v(fr + 4 * cb, 4)}, {v(fr + 8 + 4 * qt, 4)}, {'0' if g == 0 else acc}")
                if L:
                    L.pop(0)()
        if g == bar_at:
            a.I("s_barrier")
    st()
    a.I("v_lshrrev_b32 v9, 5, v0")
    a.I("v_and_b32 v10, 31, v0")
    a.I("v_lshlrev_b32 v10, 4, v10")
    a.I("v_lshl_add_u32 v9, v9, 13, v10")
    a.I("s_lshl_b32 s10, s16, 11")
    a.I("v_add_u32 v9, s10, v9")
    a.I("s_lshl_b32 s11, s17, 17")
    a.I("s_lshl_b32 s12, s18, 7")
    a.I("s_add_u32 s11, s11, s12")
    a.I("s_lshl_b32 s12, s16, 5")
    a.I("s_add_u32 s11, s11, s12")
    a.I("v_lshlrev_b32 v10, 11, v0")
    for tl in range(4):
        for jq in range(4):
            a.I(f"ds_write_b128 {v(LR)}, {v(ACC + 16 * tl + 4 * jq, 4)} offset:{(tl * 4 + jq) * 1024}")
    a.I("s_waitcnt lgkmcnt(0)")
    return ACC


def oproj_body4(a, N, st, bar_at=None):
    DEPTH = 4
    ACC, FR = 32, 96
    L16, L16B, LR = 1, 2, 3
    a.I("s_and_b32 s10, s2, 7")
    a.I("s_lshr_b32 s11, s2, 3")
    a.I("s_and_b32 s12, s11, 3")
    a.I("s_lshl_b32 s10, s10, 2")
    a.I("s_add_u32 s17, s10, s12")
    a.I("s_lshr_b32 s18, s11, 2")
    a.I(f"v_lshlrev_b32 {v(L16)}, 4, v0")
    a.I(f"v_add_u32 {v(L16B)}, {0x40000 - 1024}, {v(L16)}")
    a.I("s_lshl_b32 s19, s16, 14")
    a.I(f"v_add_u32 {v(LR)}, s19, {v(L16)}")
    a.I("s_lshl_b32 s42, s18, 19")
    a.I("s_lshl_b32 s10, s16, 16")
    a.I("s_add_u32 s42, s42, s10")
    a.I("s_lshl_b32 s43, s17, 19")
    a.I("s_lshl_b32 s10, s16, 15")
    a.I("s_add_u32 s43, s43, s10")
    a.I("s_waitcnt lgkmcnt(0)")
    srd(a, 20, 4, 5, 16 * MB + 2048, add=WS_CTX - 2048)
    srd(a, 24, 4, 5, 4 * MB, add=WS_WO)
    vm, lg = VM(a), LG(a)
    st()

    def loads(g):
        sl = g % DEPTH
        return [lambda: a.I(f"s_add_u32 m0, s19, {sl * 4096}"),
                lambda: a.I("s_nop 0") if g < DEPTH else None,
                lambda: vm.issue(f"buffer_load_dwordx4 {v(L16)}, s[24:27], s42 offen lds", g),
                lambda: vm.issue(f"buffer_load_dwordx4 {v(L16)}, s[24:27], s42 offen offset:1024 lds", g),
                lambda: vm.issue(f"buffer_load_dwordx4 {v(L16)}, s[20:23], s43 offen offset:2048 lds", g),
                lambda: vm.issue(f"buffer_load_dwordx4 {v(L16B)}, s[20:23], s43 offen offset:3072 lds", g),
                lambda: a.I("s_add_u32 s42, s42, 2048"),
                lambda: a.I("s_add_u32 s43, s43, 1024")]

    def reads(g):
        vm.wait(g)
        for q in range(4):
            lg.issue(f"ds_read_b128 {v(FR + 16 * (g & 1) + 4 * q, 4)}, {v(LR)} offset:{(g % DEPTH) * 4096 + q * 1024}", g)

    for g in range(DEPTH):
        for f in loads(g):
            f()
    srd(a, 28, 8, 9, 4 * MB)
    a.I("v_lshrrev_b32 v9, 5, v0")
    a.I("v_and_b32 v10, 31, v0")
    a.I("v_lshlrev_b32 v10, 4, v10")
    a.I("v_lshl_add_u32 v9, v9, 13, v10")
    a.I("s_lshl_b32 s10, s16, 10")
    a.I("v_add_u32 v9, s10, v9")
    a.I("v_add_u32 v11, 0x10000, v9")
    a.I("s_lshl_b32 s11, s17, 17")
    a.I("s_lshl_b32 s12, s18, 7")
    a.I("s_add_u32 s11, s11, s12")
    a.I("s_lshl_b32 s12, s16, 4")
    a.I("s_add_u32 s11, s11, s12")
    a.I("v_lshlrev_b32 v10, 11, v0")
    st()
    reads(0)
    st()
    NG = 32
    for g in range(NG):
        if g + 1 < NG:
            reads(g + 1)
        lg.wait(g)
        L = loads(g + DEPTH) if g + DEPTH < NG else []
        fr = FR + 16 * (g & 1)
        for qt in range(2):
            for cb in range(2):
                acc = v(ACC + 16 * (2 * qt + cb), 16)
                if L:
                    L.pop(0)()
                a.I(f"{MF} {acc}, {v(fr + 4 * cb, 4)}, {v(fr + 8 + 4 * qt, 4)}, {'0' if g == 0 else acc}")
                if L:
                    L.pop(0)()
        if g == bar_at:
            a.I("s_barrier")
    st()
    a.I("s_nop 8")
    for tl in range(4):
        for jq in range(4):
            a.I(f"ds_write_b128 {v(LR)}, {v(ACC + 16 * tl + 4 * jq, 4)} offset:{(tl * 4 + jq) * 1024}")
    a.I("s_waitcnt lgkmcnt(0)")
    a.I("s_barrier")
    for pw in range(8):
        for hl in range(2):
            a.I(f"ds_read_b128 {v(ACC + 8 * pw + 4 * hl, 4)}, {v(9 if pw < 4 else 11)} offset:{(pw % 4) * 16384 + hl * 512}")
        if pw == 6:
            a.I("s_waitcnt lgkmcnt(6)")
    for j in range(8):
        a.I(f"v_add_f32 {v(ACC + j)}, {v(ACC + j)}, {v(ACC + 8 + j)}")
        a.I(f"v_add_f32 {v(ACC + 16 + j)}, {v(ACC + 16 + j)}, {v(ACC + 24 + j)}")
    a.I("s_waitcnt lgkmcnt(0)")
    for j in range(8):
        a.I(f"v_add_f32 {v(ACC + 32 + j)}, {v(ACC + 32 + j)}, {v(ACC + 40 + j)}")
        a.I(f"v_add_f32 {v(ACC + 48 + j)}, {v(ACC + 48 + j)}, {v(ACC + 56 + j)}")
    for j in range(8):
        a.I(f"v_add_f32 {v(ACC + j)}, {v(ACC + j)}, {v(ACC + 16 + j)}")
        a.I(f"v_add_f32 {v(ACC + 32 + j)}, {v(ACC + 32 + j)}, {v(ACC + 48 + j)}")
    for j in range(8):
        a.I(f"v_add_f32 {v(ACC + j)}, {v(ACC + j)}, {v(ACC + 32 + j)}")
    for i in range(4):
        a.I(f"v_cvt_pk_bf16_f32 {v(12 + i)}, {v(ACC + 2 * i)}, {v(ACC + 2 * i + 1)}")
    a.I("buffer_store_dwordx4 v[12:15], v10, s[28:31], s11 offen")


def oproj_finish(a, ACC, PW=16384):
    for pw in range(4):
        for i in range(4):
            jq, hl = divmod(i, 2)
            if pw == 2 and i == 0 and PW > 16384:
                a.I("v_add_u32 v9, 0x10000, v9")
            a.I(f"ds_read_b128 {v(ACC + 16 * pw + 4 * i, 4)}, v9 offset:{(pw * PW) % 65536 + jq * 1024 + hl * 512}")
        if pw == 1:
            a.I("s_waitcnt lgkmcnt(0)")
            for j in range(16):
                a.I(f"v_add_f32 {v(ACC + j)}, {v(ACC + j)}, {v(ACC + 16 + j)}")
    a.I("s_waitcnt lgkmcnt(0)")
    for j in range(16):
        a.I(f"v_add_f32 {v(ACC + 32 + j)}, {v(ACC + 32 + j)}, {v(ACC + 48 + j)}")
    for j in range(16):
        a.I(f"v_add_f32 {v(ACC + j)}, {v(ACC + j)}, {v(ACC + 32 + j)}")
    for i in range(8):
        a.I(f"v_cvt_pk_bf16_f32 {v(12 + i)}, {v(ACC + 2 * i)}, {v(ACC + 2 * i + 1)}")
    a.I("buffer_store_dwordx4 v[12:15], v10, s[28:31], s11 offen")
    a.I("buffer_store_dwordx4 v[16:19], v10, s[28:31], s11 offen offset:16")


def gen_oproj():
    a = Asm()
    N = "oproj_kernel"
    kstart(a, N, 256)
    a.I("s_load_dwordx2 s[4:5], s[0:1], 88")
    a.I("s_load_dwordx2 s[6:7], s[0:1], 40")
    a.I("s_load_dwordx2 s[8:9], s[0:1], 72")
    a.I("v_lshrrev_b32 v1, 6, v0")
    a.I("v_and_b32 v0, 63, v0")
    a.I("s_nop 0")
    a.I("v_readfirstlane_b32 s16, v1")
    a.I("s_nop 0")
    st = Stamper(a, "oproj")
    ACC = oproj_body(a, N, st)
    a.I("s_barrier")
    oproj_finish(a, ACC)
    st.dump(16, 4, tmpv=8)
    kend(a, N)
    return a, N, (256, 256, 65536)


def PERMC(j):
    return 8 * (j >> 2) + (j & 3)


def gen_mat(a, dst, nf, base, consts, tmp):
    n = len(consts)
    for i in range(0, n, 4):
        for q in range(4):
            a.I(f"v_fmamk_f32 {v(tmp + q)}, {v(nf)}, {f32(float(consts[i + q]))}, {v(base)}")
        for q in range(4):
            a.I(f"v_cos_f32 {v(tmp + q)}, {v(tmp + q)}")
        a.I("s_nop 0")
        for q in range(2):
            a.I(f"v_cvt_pk_bf16_f32 {v(dst + i // 2 + q)}, {v(tmp + 2 * q)}, {v(tmp + 2 * q + 1)}")


def twiddle(a, Dr, Di, regs, nf, base, consts, sign, tmp):
    for x, c in enumerate(consts):
        A, C, S_, U = tmp, tmp + 1, tmp + 2, tmp + 3
        a.I(f"v_fmamk_f32 {v(A)}, {v(nf)}, {f32(float(c))}, {v(base)}")
        a.I(f"v_cos_f32 {v(C)}, {v(A)}")
        a.I(f"v_sin_f32 {v(S_)}, {v(A)}")
        a.I("s_nop 0")
        for j in regs[x]:
            ng = "-" if sign > 0 else ""
            ps = "" if sign > 0 else "-"
            a.I(f"v_mul_f32 {v(U)}, {v(Dr + j)}, {v(S_)}")
            a.I(f"v_mul_f32 {v(Dr + j)}, {v(Dr + j)}, {v(C)}")
            a.I(f"v_fma_f32 {v(Dr + j)}, {ng}{v(Di + j)}, {v(S_)}, {v(Dr + j)}")
            a.I(f"v_fma_f32 {v(Di + j)}, {v(Di + j)}, {v(C)}, {ps}{v(U)}")


def trig(a, j, C, S_, nf, base, c, tmp, scale=None):
    L = [f"v_fmamk_f32 {v(tmp)}, {v(nf)}, {f32(float(c))}, {v(base)}",
         f"v_cos_f32 {v(C)}, {v(tmp)}", f"v_sin_f32 {v(S_)}, {v(tmp)}"]
    return L


def cmul(a, Dr, Di, C, S_, sign, U):
    ng = "-" if sign > 0 else ""
    ps = "" if sign > 0 else "-"
    a.I(f"v_mul_f32 {v(U)}, {v(Dr)}, {v(S_)}")
    a.I(f"v_mul_f32 {v(Dr)}, {v(Dr)}, {v(C)}")
    a.I(f"v_fma_f32 {v(Dr)}, {ng}{v(Di)}, {v(S_)}, {v(Dr)}")
    a.I(f"v_fma_f32 {v(Di)}, {v(Di)}, {v(C)}, {ps}{v(U)}")


def pack(a, dst, src, n):
    for i in range(n):
        a.I(f"v_cvt_pk_bf16_f32 {v(dst + i)}, {v(src + 2 * i)}, {v(src + 2 * i + 1)}")


def b_decode(a):
    a.I("s_and_b32 s20, s2, 7")
    a.I("s_lshl_b32 s20, s20, 3")
    a.I("s_bfe_u32 s22, s2, 0x30003")
    a.I("s_or_b32 s20, s20, s22")
    a.I("s_lshr_b32 s21, s2, 6")


def gen_b1():
    a = Asm()
    N = "b1_kernel"
    kstart(a, N, 256)
    a.I("s_load_dwordx2 s[4:5], s[0:1], 88")
    a.I("s_load_dwordx4 s[8:11], s[0:1], 48")
    a.I("s_load_dwordx2 s[12:13], s[0:1], 64")
    a.I("v_lshrrev_b32 v1, 6, v0")
    a.I("v_and_b32 v2, 255, v0")
    a.I("v_and_b32 v0, 63, v0")
    a.I("v_readfirstlane_b32 s16, v1")
    b_decode(a)
    a.I("s_lshr_b32 s23, s21, 1")
    a.I("s_lshl_b32 s23, s23, 11")
    a.I("s_lshr_b32 s24, s20, 5")
    a.I("s_lshl_b32 s24, s24, 10")
    a.I("s_add_u32 s23, s23, s24")
    a.I("s_and_b32 s24, s20, 31")
    a.I("s_lshl_b32 s24, s24, 4")
    a.I("s_add_u32 s23, s23, s24")
    a.I("s_and_b32 s24, s21, 1")
    a.I("s_lshl_b32 s24, s24, 9")
    a.I("s_add_u32 s23, s23, s24")
    a.I("s_add_u32 s24, s23, 4096")
    a.I("v_lshlrev_b32 v3, 13, v2")
    a.I("s_cmp_ge_u32 s16, 4")
    a.I("s_waitcnt lgkmcnt(0)")
    a.I(f"s_cbranch_scc1 {N}_filt")
    srd(a, 28, 8, 9, 2 * MB)
    srd(a, 32, 4, 5, 257 * 8192, add=WS_Y)
    a.I("s_lshr_b32 s25, s21, 1")
    a.I("s_lshl_b32 s25, s25, 4")
    a.I("s_and_b32 s26, s21, 1")
    a.I("s_lshl_b32 s26, s26, 2")
    a.I("s_add_u32 s25, s25, s26")
    a.I("s_lshr_b32 s26, s16, 1")
    a.I("s_lshl_b32 s26, s26, 3")
    a.I("s_add_u32 s25, s25, s26")
    a.I("s_and_b32 s26, s16, 1")
    a.I("s_lshl_b32 s26, s26, 1")
    a.I("s_add_u32 s25, s25, s26")
    a.I("s_lshl_b32 s25, s25, 6")
    a.I("s_add_u32 s25, s25, s20")
    a.I("s_lshl_b32 s25, s25, 10")
    a.I(f"s_add_u32 s26, s25, {65536 - 1024}")
    a.I("s_lshl_b32 s27, s16, 11")
    a.I("s_mov_b32 m0, s27")
    a.I("v_lshlrev_b32 v4, 4, v0")
    a.I("buffer_load_dwordx4 v4, s[28:31], s25 offen lds")
    a.I("buffer_load_dwordx4 v4, s[28:31], s26 offen offset:1024 lds")
    HL, NF, BS, TM = 5, 6, 7, 8
    C32, NS32, AR, AI, XF, D1R, D1I, TR, TI, D2 = 16, 24, 32, 36, 40, 48, 64, 80, 88, 96
    a.I(f"v_lshrrev_b32 {v(HL)}, 5, v0")
    a.I(f"v_cvt_f32_u32 {v(HL)}, {v(HL)}")
    a.I("v_and_b32 v12, 31, v0")
    a.I("v_cvt_f32_u32 v12, v12")
    a.I(f"v_mul_f32 {v(NF)}, {f32(1 / 32)}, v12")
    a.I(f"v_mul_f32 {v(BS)}, {v(NF)}, {v(HL)}")
    a.I(f"v_mul_f32 {v(BS)}, {f32(8.0)}, {v(BS)}")
    nat = [16 * t + j for t in range(2) for j in range(8)]
    gen_mat(a, C32, NF, BS, nat, TM)
    a.I(f"v_add_f32 {v(BS)}, {f32(0.25)}, {v(BS)}")
    gen_mat(a, NS32, NF, BS, nat, TM)
    a.I("v_and_b32 v13, 15, v0")
    a.I("v_cvt_f32_u32 v13, v13")
    a.I(f"v_mul_f32 {v(NF)}, {f32(1 / 16)}, v13")
    a.I("v_bfe_u32 v13, v0, 4, 1")
    a.I("v_cvt_f32_u32 v13, v13")
    a.I(f"v_mul_f32 {v(BS)}, {v(NF)}, {v(HL)}")
    a.I(f"v_mul_f32 {v(BS)}, 4.0, {v(BS)}")
    a.I(f"v_fmamk_f32 {v(BS)}, v13, {f32(0.25)}, {v(BS)}")
    pc = [PERMC(j) for j in range(8)]
    gen_mat(a, AR, NF, BS, pc, TM)
    a.I(f"v_add_f32 {v(BS)}, {f32(-0.25)}, {v(BS)}")
    gen_mat(a, AI, NF, BS, pc, TM)
    a.I("v_bfe_u32 v13, v0, 4, 1")
    a.I("v_lshlrev_b32 v13, 10, v13")
    a.I("v_lshrrev_b32 v14, 5, v0")
    a.I("v_lshl_add_u32 v13, v14, 8, v13")
    a.I("v_and_b32 v15, 15, v0")
    a.I("v_lshl_add_u32 v13, v15, 3, v13")
    a.I("v_add_u32 v13, s27, v13")
    a.I("s_waitcnt vmcnt(0)")
    for t in range(2):
        for h in range(2):
            a.I(f"ds_read_b64_tr_b16 {v(XF + 4 * t + 2 * h, 2)}, v13 offset:{t * 512 + h * 128}")
    a.I(f"v_mul_f32 {v(NF)}, {f32(1 / 512)}, v12")
    a.I(f"v_mul_f32 {v(BS)}, {v(NF)}, {v(HL)}")
    a.I(f"v_mul_f32 {v(BS)}, 4.0, {v(BS)}")
    a.I("s_waitcnt lgkmcnt(0)")
    for t in range(2):
        a.I(f"{MF} {v(D1R, 16)}, {v(XF + 4 * t, 4)}, {v(C32 + 4 * t, 4)}, {'0' if t == 0 else v(D1R, 16)}")
    for t in range(2):
        a.I(f"{MF} {v(D1I, 16)}, {v(XF + 4 * t, 4)}, {v(NS32 + 4 * t, 4)}, {'0' if t == 0 else v(D1I, 16)}")
    a.I("v_and_b32 v15, 31, v0")
    a.I("v_lshlrev_b32 v15, 4, v15")
    a.I("v_lshl_add_u32 v15, v14, 11, v15")
    a.I("s_lshl_b32 s25, s16, 2")
    a.I("s_add_u32 s25, s25, 8192")
    a.I("v_add_u32 v15, s25, v15")
    a.I("s_nop 7")
    twiddle(a, D1R, D1I, [[j, j + 8] for j in range(8)], NF, BS, pc, -1, TM)
    pack(a, TR, D1R, 8)
    pack(a, TI, D1I, 8)
    a.I("s_nop 1")
    for r in range(2):
        a.I(f"{MF} {v(D2 + 16 * r, 16)}, {v(AR, 4)}, {v(TR + 4 * r, 4)}, 0")
        a.I(f"{MF} {v(D2 + 16 * r, 16)}, {v(AI, 4)}, {v(TI + 4 * r, 4)}, {v(D2 + 16 * r, 16)}")
    a.I("s_nop 11")
    for c in range(2):
        for j in range(5):
            a.I(f"v_cvt_pk_bf16_f32 {v(TR + 5 * c + j)}, {v(D2 + 8 * c + j)}, {v(D2 + 16 + 8 * c + j)}")
    for c in range(2):
        for j in range(4):
            a.I(f"ds_write_b32 v15, {v(TR + 5 * c + j)} offset:{(c * 8 + j) * 512}")
    a.I("v_cmp_eq_u32 vcc, 0, v0")
    a.I("s_and_saveexec_b64 s[36:37], vcc")
    for c in range(2):
        a.I(f"ds_write_b32 v15, {v(TR + 5 * c + 4)} offset:{8192 + 16 * c}")
    a.I("s_mov_b64 exec, s[36:37]")
    a.I("v_lshlrev_b32 v14, 4, v2")
    a.I("s_waitcnt lgkmcnt(0)")
    a.I("s_barrier")
    a.I("ds_read_b128 v[16:19], v14 offset:8192")
    a.I(f"ds_read_b128 v[20:23], v14 offset:{8192 + 4096}")
    a.I(f"ds_read_b128 v[24:27], v14 offset:{8192 + 8192}")
    a.I("v_lshlrev_b32 v13, 12, v2")
    a.I(f"v_add_u32 v13, {256 * 8192}, v13")
    a.I("s_waitcnt lgkmcnt(0)")
    a.I("buffer_store_dwordx4 v[16:19], v3, s[32:35], s23 offen")
    a.I("buffer_store_dwordx4 v[20:23], v3, s[32:35], s24 offen")
    a.I("v_cmp_gt_u32 vcc, 2, v2")
    a.I("s_and_saveexec_b64 s[36:37], vcc")
    a.I(f"s_cbranch_execz {N}_end")
    a.I("buffer_store_dwordx4 v[24:27], v13, s[32:35], s23 offen")
    a.I("s_endpgm")
    a.label(f"{N}_filt")
    srd(a, 28, 10, 11, 2048 * 514)
    srd(a, 32, 12, 13, 2048 * 514)
    srd(a, 36, 4, 5, 257 * 8192, add=WS_WF)
    a.I("s_lshr_b32 s25, s21, 1")
    a.I("s_lshl_b32 s25, s25, 5")
    a.I("s_lshr_b32 s26, s20, 5")
    a.I("s_lshl_b32 s26, s26, 4")
    a.I("s_add_u32 s25, s25, s26")
    a.I("s_and_b32 s26, s21, 1")
    a.I("s_lshl_b32 s26, s26, 2")
    a.I("s_add_u32 s25, s25, s26")
    a.I("s_lshl_b32 s25, s25, 5")
    a.I("s_and_b32 s26, s20, 31")
    a.I("s_add_u32 s25, s25, s26")
    a.I("s_mul_i32 s25, s25, 514")
    for j in range(8):
        a.I(f"s_add_u32 s{40 + j}, s25, {PERMC(j) * 32 * 514}")
    a.I("v_lshlrev_b32 v4, 1, v2")
    a.I("v_mov_b32 v5, 512")
    for q, va in enumerate((4, 5)):
        for c in range(2):
            for j in range(8):
                a.I(f"buffer_load_ushort {v(32 + 16 * q + 8 * c + j)}, {v(va)}, s[{28 + 4 * c}:{31 + 4 * c}], s{40 + j} offen")
    a.I(f"v_mov_b32 v6, {256 * 8192}")
    a.I("s_waitcnt vmcnt(16)")
    for i in range(8):
        a.I(f"v_lshl_or_b32 {v(16 + i)}, {v(33 + 2 * i)}, 16, {v(32 + 2 * i)}")
    a.I("buffer_store_dwordx4 v[16:19], v3, s[36:39], s23 offen")
    a.I("buffer_store_dwordx4 v[20:23], v3, s[36:39], s24 offen")
    a.I("v_cmp_eq_u32 vcc, 0, v2")
    a.I("s_and_saveexec_b64 s[48:49], vcc")
    a.I(f"s_cbranch_execz {N}_end")
    a.I("s_waitcnt vmcnt(2)")
    for i in range(8):
        a.I(f"v_lshl_or_b32 {v(24 + i)}, {v(49 + 2 * i)}, 16, {v(48 + 2 * i)}")
    a.I("buffer_store_dwordx4 v[24:27], v6, s[36:39], s23 offen")
    a.I("buffer_store_dwordx4 v[28:31], v6, s[36:39], s24 offen")
    kend(a, N)
    return a, N, (256, 512, 20480)


def b2_loads(a, vm, col_s, own_s, L16, YR, WR, S0, SR):
    sY, sW = S0, S0 + 2
    a.I(f"s_lshl_b32 {s(sY)}, {s(col_s)}, 13")
    a.I(f"s_lshl_b32 {s(own_s)}, {s(own_s)}, 10")
    a.I(f"s_add_u32 {s(sY)}, {s(sY)}, {s(own_s)}")
    a.I(f"s_add_u32 {s(sY + 1)}, {s(sY)}, 4096")
    a.I(f"s_add_u32 {s(sW)}, {s(sY)}, {s(own_s)}")
    a.I(f"s_add_u32 {s(sW + 1)}, {s(sW)}, 4096")
    srd(a, SR, 4, 5, 257 * 8192, add=WS_Y)
    for c in range(2):
        for t in range(2):
            vm.issue(f"buffer_load_dwordx4 {v(YR + 8 * c + 4 * t, 4)}, {v(L16)}, {s(SR, 4)}, {s(sY + c)} offen offset:{t * 2048}", "Y")
    srd(a, SR + 4, 4, 5, 257 * 8192, add=WS_WF)
    for c in range(2):
        for h in range(2):
            vm.issue(f"buffer_load_dwordx4 {v(WR + 8 * c + 4 * h, 4)}, {v(L16)}, {s(SR + 4, 4)}, {s(sW + c)} offen offset:{h * 1024}", "WF")


def b2_body(a, own, col_s, lds_s, svc, vm, R0=0, S0=20, SR=28, slice_len=110, rmap=None, after_loads=None, st=lambda: None, preloaded=False, compact_ex=False, newer=8, zpol=''):
    L16, HL, NF, BS, LF, XA, XB, TM, LB = [R0 + x for x in (1, 2, 3, 4, 5, 6, 7, 8, 12)]
    YR, YI, WR, WI = [R0 + x for x in (16, 24, 32, 40)]
    C32, S32, NS32, C64, S64 = [R0 + x for x in (48, 56, 64, 72, 88)]
    DR, DI = R0 + 104, R0 + 120
    FR, FI, FN = R0 + 136, R0 + 152, R0 + 168
    XT = 240
    if rmap:
        L16, HL, NF, BS, LF, XA, XB, TM, LB, YR, YI, WR, WI, C32, S32, NS32, C64, S64, DR, DI, FR, FI, FN = rmap
    sY, sW, sSC, sT = S0, S0 + 2, S0 + 4, S0 + 5
    I0 = a.I
    cnt = [0]

    def I(text):
        r = I0(text)
        cnt[0] += 1
        if cnt[0] >= slice_len and (text.startswith("v_cvt_pk") or text.startswith("v_fma_f32") or text.startswith("v_sin")):
            dosvc()
        return r

    def dosvc():
        a.I = I0
        svc()
        a.I = I
        cnt[0] = 0

    a.I(f"v_lshlrev_b32 {v(L16)}, 4, v0")
    if preloaded:
        vm.q += ["Y"] * 4 + ["WF"] * 4 + ["Q"] * newer
    else:
        a.I(f"s_mov_b32 {s(sT)}, {own}")
        b2_loads(a, vm, col_s, sT, L16, YR, WR, S0, SR)
    srd(a, SR + 8, 4, 5, 257 * 8192, add=WS_Z)
    a.I = I
    a.I(f"s_mov_b32 {s(sSC)}, {f32(2.0 ** -19)}")
    a.I(f"s_and_b32 {s(sT)}, {s(col_s)}, 255")
    a.I(f"s_cmp_eq_u32 {s(sT)}, 0")
    a.I(f"s_cselect_b32 {s(sSC)}, {f32(2.0 ** -20)}, {s(sSC)}")
    a.I(f"v_lshrrev_b32 {v(HL)}, 5, v0")
    a.I(f"v_cvt_f32_u32 {v(HL)}, {v(HL)}")
    a.I(f"v_mul_f32 {v(HL)}, 4.0, {v(HL)}")
    a.I(f"v_and_b32 {v(LF)}, 31, v0")
    a.I(f"v_cvt_f32_u32 {v(LF)}, {v(LF)}")
    a.I(f"v_add_f32 {v(LB)}, {f32(32.0 * own)}, {v(LF)}")
    pc = lambda n: [16 * t + PERMC(j) for t in range(n) for j in range(8)]
    a.I(f"v_mul_f32 {v(NF)}, {f32(1 / 32)}, {v(LF)}")
    a.I(f"v_mul_f32 {v(BS)}, {v(NF)}, {v(HL)}")
    gen_mat(a, C32, NF, BS, pc(2), TM)
    a.I(f"v_add_f32 {v(BS)}, {f32(-0.25)}, {v(BS)}")
    gen_mat(a, S32, NF, BS, pc(2), TM)
    for i in range(8):
        a.I(f"v_xor_b32 {v(NS32 + i)}, 0x80008000, {v(S32 + i)}")
    a.I(f"v_mul_f32 {v(NF)}, {f32(1 / 64)}, {v(LB)}")
    a.I(f"v_mul_f32 {v(BS)}, {v(NF)}, {v(HL)}")
    gen_mat(a, C64, NF, BS, pc(4), TM)
    a.I(f"v_add_f32 {v(BS)}, {f32(-0.25)}, {v(BS)}")
    gen_mat(a, S64, NF, BS, pc(4), TM)
    a.I(f"v_add_u32 {v(XA)}, {s(lds_s)}, {v(L16)}")
    a.I(f"v_add_u32 {v(XB)}, {(1 - own) * 4096}, {v(XA)}")
    a.I(f"v_add_u32 {v(XA)}, {own * 4096}, {v(XA)}")

    def mm(D, terms, fill=None, per=3):
        first = True
        for A_, B_ in terms:
            a.I(f"{MF} {v(D, 16)}, {v(A_, 4)}, {v(B_, 4)}, {'0' if first else v(D, 16)}")
            first = False
            if fill:
                for x in fill[:per]:
                    a.I(x)
                del fill[:per]

    def exchange(neg_of, ldsoff):
        nonlocal XA, XB
        if compact_ex and ldsoff:
            XA, XB, ldsoff = XB, XA, 0
        for c, F in enumerate((FR, FI)):
            for h in range(2):
                a.I(f"ds_write_b128 {v(XA)}, {v(F + 8 * own + 4 * h, 4)} offset:{ldsoff + (2 * c + h) * 1024}")
        a.I("s_waitcnt lgkmcnt(0)")
        dosvc()
        for c, F in enumerate((FR, FI)):
            for h in range(2):
                a.I(f"ds_read_b128 {v(F + 8 * (1 - own) + 4 * h, 4)}, {v(XB)} offset:{ldsoff + (2 * c + h) * 1024}")
        for i in range(8):
            a.I(f"v_xor_b32 {v(FN + 8 * own + i)}, 0x80008000, {v(neg_of + 8 * own + i)}")
        a.I("s_waitcnt lgkmcnt(0)")
        for i in range(8):
            a.I(f"v_xor_b32 {v(FN + 8 * (1 - own) + i)}, 0x80008000, {v(neg_of + 8 * (1 - own) + i)}")
        a.I("s_nop 1")

    jc = [(j & 3) + 8 * (j >> 2) for j in range(16)]
    o = 8 * (1 - own)
    T1C = [FN + j for j in range(16)]
    T1S = [FR + o + j for j in range(8)] + [FI + o + j for j in range(8)]
    a.I(f"v_mul_f32 {v(NF)}, {f32(1 / 2048)}, {v(LF)}")
    a.I(f"v_add_f32 {v(BS)}, {f32(32.0 * own)}, {v(HL)}")
    a.I(f"v_mul_f32 {v(BS)}, {v(NF)}, {v(BS)}")
    for j in range(16):
        a.many(trig(a, j, T1C[j], T1S[j], NF, BS, jc[j], TM + (j & 1)))
    a.I(f"v_mul_f32 {v(NF)}, {f32(1 / 2048)}, {v(LB)}")
    a.I(f"v_mul_f32 {v(BS)}, {v(NF)}, {v(HL)}")
    st()
    vm.wait("Y")
    st()
    mm(DR, [(YR, C32), (YR + 4, C32 + 4), (YI, S32), (YI + 4, S32 + 4)])
    mm(DI, [(YI, C32), (YI + 4, C32 + 4), (YR, NS32), (YR + 4, NS32 + 4)])
    a.I("s_nop 11")
    for j in range(16):
        cmul(a, DR + j, DI + j, T1C[j], T1S[j], -1, TM)
    pack(a, FR + 8 * own, DR, 8)
    pack(a, FI + 8 * own, DI, 8)
    exchange(FR, 0)
    st()
    if after_loads:
        after_loads()
    T2C = [YR + j for j in range(8)] + [YI + j for j in range(8)]
    fill = []
    for j in range(16):
        fill += trig(a, j, T2C[j], XT + j, NF, BS, jc[j], TM + (j & 1))
    mm(DR, [(C64 + 4 * t, FR + 4 * t) for t in range(4)] + [(S64 + 4 * t, FI + 4 * t) for t in range(4)], fill)
    mm(DI, [(C64 + 4 * t, FI + 4 * t) for t in range(4)] + [(S64 + 4 * t, FN + 4 * t) for t in range(4)], fill)
    assert not fill
    vm.wait("WF")
    for j in range(12):
        a.I(f"v_mul_f32 {v(T2C[j])}, {s(sSC)}, {v(T2C[j])}")
    for j in range(16):
        wr, wi, u = TM, TM + 1, TM + 2
        if j & 1:
            a.I(f"v_and_b32 {v(wr)}, 0xffff0000, {v(WR + j // 2)}")
            a.I(f"v_and_b32 {v(wi)}, 0xffff0000, {v(WI + j // 2)}")
        else:
            a.I(f"v_lshlrev_b32 {v(wr)}, 16, {v(WR + j // 2)}")
            a.I(f"v_lshlrev_b32 {v(wi)}, 16, {v(WI + j // 2)}")
        cmul(a, DR + j, DI + j, wr, wi, +1, u)
    pack(a, FR + 8 * own, DR, 8)
    pack(a, FI + 8 * own, DI, 8)
    exchange(FI, 8192)
    st()
    fill = [f"v_mul_f32 {v(T2C[j])}, {s(sSC)}, {v(T2C[j])}" for j in range(12, 16)]
    fill += [f"v_mul_f32 {v(XT + j)}, {s(sSC)}, {v(XT + j)}" for j in range(16)]
    mm(DR, [(FR + 4 * t, C64 + 4 * t) for t in range(4)] + [(FN + 4 * t, S64 + 4 * t) for t in range(4)], fill)
    mm(DI, [(FI + 4 * t, C64 + 4 * t) for t in range(4)] + [(FR + 4 * t, S64 + 4 * t) for t in range(4)], fill)
    a.I("s_nop 11")
    for j in range(16):
        cmul(a, DR + j, DI + j, T2C[j], XT + j, +1, TM)
    pack(a, FR, DR, 8)
    pack(a, FI, DI, 8)
    a.I("s_nop 1")
    mm(DR, [(C32, FR), (C32 + 4, FR + 4), (NS32, FI), (NS32 + 4, FI + 4)])
    mm(DI, [(C32, FI), (C32 + 4, FI + 4), (S32, FR), (S32 + 4, FR + 4)])
    a.I = I0
    a.I("s_nop 7")
    pack(a, YR, DR, 8)
    a.I("s_nop 3")
    pack(a, YI, DI, 8)
    for c in range(2):
        for h in range(2):
            vm.issue(f"buffer_store_dwordx4 {v(YR + 8 * c + 4 * h, 4)}, {v(L16)}, {s(SR + 8, 4)}, {s(sW + c)} offen offset:{h * 1024}{zpol}", "Z")


def gen_b2():
    a = Asm()
    N = "b2_kernel"
    kstart(a, N, 257)
    a.I("s_load_dwordx2 s[4:5], s[0:1], 88")
    a.I("v_lshrrev_b32 v1, 6, v0")
    a.I("v_and_b32 v0, 63, v0")
    a.I("s_mov_b32 s17, 0")
    a.I("v_readfirstlane_b32 s16, v1")
    a.I("s_waitcnt lgkmcnt(0)")
    a.I("s_cmp_eq_u32 s16, 1")
    a.I(f"s_cbranch_scc1 {N}_w1")
    b2_body(a, 0, 2, 17, lambda: a.I("s_barrier"), VM(a), slice_len=10 ** 9)
    a.I("s_endpgm")
    a.label(f"{N}_w1")
    b2_body(a, 1, 2, 17, lambda: a.I("s_barrier"), VM(a), slice_len=10 ** 9)
    kend(a, N)
    return a, N, (257, 128, 16384)


def b3_loads(a, outp=6, pol='', before=None):
    b_decode(a)
    a.I("s_lshr_b32 s23, s20, 5")
    a.I("s_lshl_b32 s23, s23, 11")
    a.I("s_lshl_b32 s24, s21, 9")
    a.I("s_add_u32 s23, s23, s24")
    a.I("s_and_b32 s24, s20, 31")
    a.I("s_lshl_b32 s24, s24, 4")
    a.I("s_add_u32 s23, s23, s24")
    a.I("s_add_u32 s24, s23, 4096")
    a.I("v_lshlrev_b32 v3, 13, v2")
    a.I(f"v_mov_b32 v4, {256 * 8192}")
    a.I("s_waitcnt lgkmcnt(0)")
    srd(a, 28, 4, 5, 257 * 8192, add=WS_Z)
    srd(a, 32, outp, outp + 1, 4 * MB)
    if before:
        before()
    a.I(f"buffer_load_dwordx4 v[16:19], v3, s[28:31], s23 offen{pol}")
    a.I(f"buffer_load_dwordx4 v[20:23], v3, s[28:31], s24 offen{pol}")
    a.I(f"buffer_load_dwordx4 v[24:27], v4, s[28:31], s23 offen{pol}")


def b3_body(a, LB=0, outp=6, nafter=0, loaded=False, mid=None, part=0, bar=None, rm=None):
    if not loaded:
        b3_loads(a, outp)
    n0 = len(a.items)
    HL, NF, BS, AFL, TM = 5, 6, 7, 12, 8
    C32, NS32, BRE, BIM, MT, ZF, UR, UI, TR, TI = rm or (32, 40, 48, 56, 64, 68, 76, 92, 108, 116)
    a.I(f"v_lshrrev_b32 {v(HL)}, 5, v0")
    a.I(f"v_cvt_f32_u32 {v(HL)}, {v(HL)}")
    a.I("v_and_b32 v13, 31, v0")
    a.I("v_cvt_f32_u32 v13, v13")
    a.I(f"v_mul_f32 {v(NF)}, {f32(1 / 32)}, v13")
    a.I(f"v_mul_f32 {v(BS)}, {v(NF)}, {v(HL)}")
    a.I(f"v_mul_f32 {v(BS)}, 4.0, {v(BS)}")
    pc = [16 * t + PERMC(j) for t in range(2) for j in range(8)]
    gen_mat(a, C32, NF, BS, pc, TM)
    a.I(f"v_add_f32 {v(BS)}, {f32(0.25)}, {v(BS)}")
    gen_mat(a, NS32, NF, BS, pc, TM)
    a.I(f"v_and_b32 {v(AFL)}, 15, v0")
    a.I(f"v_cvt_f32_u32 {v(AFL)}, {v(AFL)}")
    a.I(f"v_mul_f32 {v(NF)}, {f32(1 / 16)}, {v(AFL)}")
    a.I(f"v_mul_f32 {v(BS)}, {f32(0.25)}, {v(HL)}")
    a.I("v_and_b32 v13, 16, v0")
    a.I("v_cmp_eq_u32 vcc, 0, v13")
    a.I("v_mov_b32 v14, 0")
    for B_, ph in ((BRE, None), (BIM, -0.25)):
        if ph:
            a.I(f"v_add_f32 {v(BS)}, {f32(ph)}, {v(BS)}")
        gen_mat(a, MT, NF, BS, list(range(8)), TM)
        for i in range(4):
            a.I(f"v_cndmask_b32 {v(B_ + i)}, v14, {v(MT + i)}, vcc")
            a.I(f"v_cndmask_b32 {v(B_ + 4 + i)}, {v(MT + i)}, v14, vcc")
    if part == 1:
        return
    if part == 2:
        del a.items[n0:]
    if mid:
        mid()
    a.I("v_and_b32 v13, 31, v2")
    a.I("v_lshlrev_b32 v13, 4, v13")
    a.I("v_lshrrev_b32 v15, 5, v2")
    a.I("v_lshl_add_u32 v13, v15, 1, v13")
    a.I(f"v_add_u32 v13, {LB}, v13")
    a.I("v_cmp_eq_u32 vcc, 0, v2")
    a.I(f"v_mov_b32 v15, {LB + 8192}")
    a.I(f"s_waitcnt vmcnt({nafter})")
    for i in range(4):
        a.I(f"v_cndmask_b32 {v(20 + i)}, {v(20 + i)}, v14, vcc")
    for c in range(2):
        for i in range(8):
            a.I(f"ds_write_b16{'_d16_hi' if i & 1 else ''} v13, {v(16 + 4 * c + i // 2)} offset:{i * 1024 + c * 512}")
    a.I("s_and_saveexec_b64 s[36:37], vcc")
    a.I("ds_write_b128 v15, v[24:27]")
    a.I("s_mov_b64 exec, s[36:37]")
    a.I("s_lshl_b32 s25, s16, 11")
    a.I(f"s_add_u32 s25, s25, {LB}")
    a.I("v_lshlrev_b32 v13, 4, v0")
    a.I("v_add_u32 v13, s25, v13")
    a.I("v_bfe_u32 v15, v0, 4, 1")
    a.I("s_lshl_b32 s25, s16, 2")
    a.I(f"s_add_u32 s25, s25, {LB + 8192}")
    a.I("v_lshl_add_u32 v15, v15, 1, s25")
    for j in range(1, 16):
        a.I(f"v_mov_b32 {v(UR + j)}, 0")
    a.I("s_waitcnt lgkmcnt(0)")
    if bar:
        bar()
    else:
        a.I("s_barrier")
    a.I(f"ds_read_u16 {v(UR)}, v15")
    a.I(f"ds_read_b128 {v(ZF, 4)}, v13")
    a.I(f"ds_read_b128 {v(ZF + 4, 4)}, v13 offset:1024")
    a.I("v_and_b32 v15, 1, v0")
    a.I("v_lshlrev_b32 v15, 31, v15")
    a.I("v_cmp_gt_u32 vcc, 32, v0")
    a.I(f"v_mul_f32 {v(NF)}, {f32(1 / 512)}, {v(AFL)}")
    a.I(f"v_mul_f32 {v(BS)}, {v(NF)}, {v(HL)}")
    a.I(f"v_mul_f32 {v(BS)}, 4.0, {v(BS)}")
    a.I("s_waitcnt lgkmcnt(2)")
    a.I(f"v_lshlrev_b32 {v(UR)}, 16, {v(UR)}")
    a.I(f"v_xor_b32 {v(UR)}, {v(UR)}, v15")
    a.I(f"v_cndmask_b32 {v(UR)}, v14, {v(UR)}, vcc")
    a.I("s_waitcnt lgkmcnt(0)")
    a.I("s_nop 0")
    for r in range(2):
        a.I(f"{MF} {v(UR, 16)}, {v(ZF + 4 * r, 4)}, {v(BRE + 4 * r, 4)}, {v(UR, 16)}")
    for r in range(2):
        a.I(f"{MF} {v(UI, 16)}, {v(ZF + 4 * r, 4)}, {v(BIM + 4 * r, 4)}, {'0' if r == 0 else v(UI, 16)}")
    a.I("s_lshr_b32 s25, s21, 1")
    a.I("s_lshl_b32 s25, s25, 4")
    a.I("s_and_b32 s26, s21, 1")
    a.I("s_lshl_b32 s26, s26, 2")
    a.I("s_add_u32 s25, s25, s26")
    a.I("s_lshr_b32 s26, s16, 1")
    a.I("s_lshl_b32 s26, s26, 3")
    a.I("s_add_u32 s25, s25, s26")
    a.I("s_and_b32 s26, s16, 1")
    a.I("s_lshl_b32 s26, s26, 1")
    a.I("s_add_u32 s25, s25, s26")
    a.I("s_lshl_b32 s25, s25, 6")
    a.I("s_add_u32 s25, s25, s20")
    a.I("s_lshl_b32 s25, s25, 11")
    a.I(f"s_add_u32 s26, s25, {64 * 2048}")
    jc = [(j & 3) + 8 * (j >> 2) for j in range(16)]
    twiddle(a, UR, UI, [[j] for j in range(16)], NF, BS, jc, +1, TM)
    pack(a, TR, UR, 8)
    pack(a, TI, UI, 8)
    a.I("v_and_b32 v13, 31, v0")
    a.I("v_lshlrev_b32 v13, 5, v13")
    terms = [(TR, C32), (TR + 4, C32 + 4), (TI, NS32), (TI + 4, NS32 + 4)]
    for i, (A_, B_) in enumerate(terms):
        a.I(f"{MF} {v(UR, 16)}, {v(A_, 4)}, {v(B_, 4)}, {'0' if i == 0 else v(UR, 16)}")
    a.I("v_lshrrev_b32 v15, 5, v0")
    a.I("v_lshl_add_u32 v13, v15, 4, v13")
    a.I("s_nop 9")
    pack(a, 16, UR, 8)
    a.I("s_nop 1")
    for r in range(2):
        a.I(f"v_permlane32_swap_b32 {v(16 + 4 * r)}, {v(18 + 4 * r)}")
        a.I(f"v_permlane32_swap_b32 {v(17 + 4 * r)}, {v(19 + 4 * r)}")
        a.I(f"buffer_store_dwordx4 {v(16 + 4 * r, 4)}, v13, s[32:35], s{25 + r} offen offset:1024{os.environ.get('OPB', ' nt')}")


def gen_b3():
    a = Asm()
    N = "b3_kernel"
    kstart(a, N, 256)
    a.I("s_load_dwordx2 s[4:5], s[0:1], 88")
    a.I("s_load_dwordx2 s[6:7], s[0:1], 72")
    a.I("v_lshrrev_b32 v1, 6, v0")
    a.I("v_mov_b32 v2, v0")
    a.I("v_and_b32 v0, 63, v0")
    a.I("v_readfirstlane_b32 s16, v1")
    b3_body(a)
    kend(a, N)
    return a, N, (256, 256, 8192 + 64)


KERNELS = [gen_b1, gen_qkv, gen_b2, gen_attn, gen_b3, gen_oproj]


ALIASES = [("v_mfma_f32_16x16x32_bf16", "mf16", 4), ("v_mfma_f32_32x32x16_bf16", "mf32", 4),
           ("v_cvt_pk_bf16_f32", "cvtpk", 3)]


def compact(txt):
    lines = txt.split("\n")
    out = []
    done = False
    for l in lines:
        if l.startswith("    "):
            l = l.strip()
            for full, short, n in ALIASES:
                if l.startswith(full + " "):
                    l = short + l[len(full):]
        out.append(l)
        if l.startswith(".amdgcn_target") and not done:
            done = True
            for full, short, n in ALIASES:
                args = ["p%d" % i for i in range(n)]
                out.append(f".macro {short} " + ", ".join(args))
                out.append(f"{full} " + ", ".join("\\" + x for x in args))
                out.append(".endm")
    return "\n".join(out)


def build(kernels, path):
    hdr = open(os.path.join(os.path.dirname(os.path.abspath(__file__)), "..", "cdna_kernels", NAME + ".s.ref")).read()
    head = [l for l in hdr.splitlines() if l.startswith(";") and "@launch" not in l and "Override" not in l
            and "grid=ceil" not in l]
    txt = []
    launches = []
    descs = []
    bad = 0
    for g in kernels:
        KIDX[0] = len(launches)
        a, n, (grid, blk, lds) = g()
        if os.environ.get("PADREF") == n:
            items = []
            done = False
            for it in a.items:
                items.append(it)
                if it[0] == "i" and it[1].text == f"s_cbranch_scc1 {n}_end" and not done:
                    done = True
                    b = Asm()
                    b.I("s_memrealtime s[98:99]")
                    b.I("s_load_dwordx2 s[96:97], s[0:1], 88")
                    b.I("s_cmp_lg_u32 s2, 0")
                    b.I("s_cbranch_scc1 padref_skip")
                    b.I("s_waitcnt lgkmcnt(0)")
                    b.I(f"s_add_u32 s84, s96, {hex(200 * MB)}")
                    b.I("s_addc_u32 s85, s97, 0")
                    b.I("s_mov_b32 s86, 64")
                    b.I("s_mov_b32 s87, 0x20000")
                    b.I("v_mov_b32 v254, s98")
                    b.I("buffer_store_dword v254, off, s[84:87], 0 sc0 sc1")
                    b.label("padref_skip")
                    b.I("s_waitcnt lgkmcnt(0)")
                    items += b.items
            a.items = items
        if os.environ.get("PADK") == n:
            items = []
            cnt = 0
            for it in a.items:
                if it[0] == "i" and it[1].text == f"s_cbranch_scc1 {n}_end" and cnt == 0:
                    items.append(it)
                    b = Asm()
                    b.I("s_memrealtime s[98:99]")
                    if os.environ.get("PADREF"):
                        b.I("s_load_dwordx2 s[96:97], s[0:1], 88")
                        b.I("s_waitcnt lgkmcnt(0)")
                        b.I(f"s_add_u32 s84, s96, {hex(200 * MB)}")
                        b.I("s_addc_u32 s85, s97, 0")
                        b.I("s_mov_b32 s86, 64")
                        b.I("s_mov_b32 s87, 0x20000")
                        b.I("buffer_load_dword v254, off, s[84:87], 0 sc0 sc1")
                        b.I("s_waitcnt vmcnt(0)")
                        b.I("v_readfirstlane_b32 s98, v254")
                    items += b.items
                    cnt = 1
                    continue
                if it[0] == "i" and it[1].mn == "s_endpgm" and not (items[-1][0] == "l" and items[-1][1] == n + "_end" and items[-2][1].mn == "s_endpgm"):
                    b = Asm()
                    lab = None
                    if items[-1][0] == "l" and items[-1][1] == n + "_end":
                        lab = items.pop()
                    cnt += 1
                    b.I("s_waitcnt vmcnt(0) lgkmcnt(0)")
                    b.label(f"pad_{cnt}")
                    b.I("s_memrealtime s[96:97]")
                    b.I("s_waitcnt lgkmcnt(0)")
                    b.I("s_sub_u32 s96, s96, s98")
                    b.I(f"s_cmp_lt_u32 s96, {os.environ['PADT']}")
                    b.I(f"s_cbranch_scc1 pad_{cnt}")
                    items += b.items
                    if lab:
                        items.append(it)
                        items.append(lab)
                items.append(it)
            a.items = items
        if DBGT:
            items = []
            for it in a.items:
                if it[0] == "i" and it[1].mn == "s_endpgm" and not (items and items[-1][0] == "l" and items[-1][1] == n + "_end" and items[-2][1].mn == "s_endpgm"):
                    b = Asm()
                    lab = None
                    if items[-1][0] == "l" and items[-1][1] == n + "_end":
                        lab = items.pop()
                    dbg_stamp(b, 1)
                    items += b.items
                    if lab:
                        items.append(it)
                        items.append(lab)
                items.append(it)
            a.items = items
        bad += len(a.check())
        nv, ns, na = a.maxregs()
        print(f"{n}: {sum(1 for k, _ in a.items if k == 'i')} instrs, vgpr {nv}, agpr {na}, sgpr {ns}")
        launches.append(f"; @launch kernel={n} grid=({grid},1,1) block=({blk},1,1) lds={lds}")
        txt.append(a.text())
        descs.append(kdesc(n, nv, ns, na))
    if bad:
        print("HAZARDS:", bad)
    out = "\n".join(head) + "\n" + "\n".join(launches) + "\n" + '.amdgcn_target "amdgcn-amd-amdhsa--gfx950"\n' + \
          "".join(txt) + "".join(descs)
    out = compact(out)
    open(path, "w").write(out)
    return bad


if __name__ == "__main__":
    p = sys.argv[1] if len(sys.argv) > 1 else os.path.join(os.path.dirname(os.path.abspath(__file__)), "..",
                                                           "cdna_kernels", NAME + ".s")
    sys.exit(1 if build(KERNELS, p) else 0)
```

```python
import sys, os
sys.path.insert(0, os.path.dirname(os.path.abspath(__file__)))
import gen
from gen import *

M16 = "v_mfma_f32_16x16x32_bf16"
SP = os.environ.get("SP", " sc1")
PUMP = int(os.environ.get("PUMP", "5"))
SCAT_AT = int(os.environ.get("SCAT_AT", "52"))
PRE3 = int(os.environ.get("PRE3", "20"))
PF_AT = int(os.environ.get("PF_AT", "80"))
BP = os.environ.get("BP", " nt")
PP = os.environ.get("PP", "")
AP = os.environ.get("AP", "")
LP = os.environ.get("LP", "")
MULM = os.environ.get("MULM", "")
SIG3 = int(os.environ.get("SIG3", "124"))
B3AT = int(os.environ.get("B3AT", "75"))
CT_AT = int(os.environ.get("CT_AT", "80"))
OWNAT = int(os.environ.get("OWNAT", "49"))
MATF = int(os.environ.get("MATF", "1"))
GRP2 = int(os.environ.get("GRP2", "1"))
FILT_AT = int(os.environ.get("FILT_AT", "70"))
LATE_AT = int(os.environ.get("LATE_AT", "30"))
STF = eval(os.environ.get("STF", "(31, 63, 95)"))
B1START = int(os.environ.get("B1START", "6"))


def gen_l1():
    a = Asm()
    N = "l1_kernel"
    kstart(a, N, 256)
    a.I("s_load_dwordx4 s[4:7], s[0:1], 0")
    a.I("s_load_dwordx4 s[8:11], s[0:1], 16")
    a.I("s_load_dwordx2 s[12:13], s[0:1], 32")
    a.I("s_load_dwordx2 s[14:15], s[0:1], 88")
    a.I("s_load_dwordx4 s[60:63], s[0:1], 48")
    a.I("s_load_dwordx2 s[64:65], s[0:1], 64")
    a.I("s_load_dwordx2 s[90:91], s[0:1], 40")
    TID, L16 = 64, 65
    a.I(f"v_and_b32 {v(TID)}, 255, v0")
    a.I("v_lshrrev_b32 v2, 6, v0")
    a.I("v_and_b32 v0, 63, v0")
    a.I("v_readfirstlane_b32 s16, v2")
    st = Stamper(a, "l1")
    st()
    BLDS = 9 * 16384
    a.I("s_nop 0")
    if os.environ.get("CT0", "1") == "1":
        code_touch(a, N, 16, 24, 60, kd=False)
    a.I("s_and_b32 s17, s2, 7")
    a.I("s_lshr_b32 s18, s2, 3")
    a.I("s_and_b32 s19, s18, 7")
    a.I("s_lshr_b32 s18, s18, 3")
    a.I("s_lshl_b32 s40, s17, 2")
    a.I("s_add_u32 s18, s18, s40")
    if os.environ.get("L1MAP", "4x8") == "4x8":
        a.I("s_lshr_b32 s18, s2, 3")
        a.I("s_and_b32 s19, s18, 3")
        a.I("s_and_b32 s40, s17, 1")
        a.I("s_lshl_b32 s40, s40, 2")
        a.I("s_add_u32 s19, s19, s40")
        a.I("s_lshr_b32 s18, s18, 2")
        a.I("s_lshr_b32 s40, s17, 1")
        a.I("s_lshl_b32 s40, s40, 3")
        a.I("s_add_u32 s18, s18, s40")
    a.I("s_mov_b32 s41, 0")
    a.I("s_mul_i32 s42, s18, 6")
    a.I("s_cmp_ge_u32 s18, 11")
    a.I("s_cselect_b32 s41, 1, s41")
    a.I("s_cselect_b32 s40, 64, 0")
    a.I("s_cmp_ge_u32 s18, 21")
    a.I("s_cselect_b32 s41, 2, s41")
    a.I("s_cselect_b32 s40, 126, s40")
    a.I("s_sub_u32 s42, s42, s40")
    a.I("s_lshl_b32 s44, s19, 3")
    a.I("s_add_u32 s44, s44, s16")
    t1, t2, t3, G = 66, 67, 68, 69
    WV, AV, AR_, TB, SK, SV = 1, 3, 7, 9, 21, 22
    a.I(f"v_lshrrev_b32 {v(t1)}, 3, v0")
    a.I(f"v_lshlrev_b32 {v(G)}, 10, {v(t1)}")
    a.I(f"v_lshlrev_b32 {v(t1)}, 13, {v(t1)}")
    a.I("s_lshl_b32 s45, s16, 17")
    a.I(f"v_add_u32 {v(t1)}, s45, {v(t1)}")
    a.I(f"v_bfe_u32 {v(t2)}, v0, 4, 1")
    a.I(f"v_lshlrev_b32 {v(t2)}, 1, {v(t2)}")
    a.I(f"v_and_b32 {v(t3)}, 7, v0")
    a.I(f"v_xor_b32 {v(t2)}, {v(t2)}, {v(t3)}")
    a.I(f"v_lshl_add_u32 {v(WV)}, {v(t2)}, 4, {v(t1)}")
    a.I(f"v_xor_b32 {v(WV + 1)}, 64, {v(WV)}")
    a.I(f"v_add_u32 {v(WV + 1)}, {65536 - 1024}, {v(WV + 1)}")
    a.I("s_lshl_b32 s45, s44, 15")
    a.I(f"v_add_u32 {v(t1)}, s45, {v(G)}")
    a.I(f"v_lshrrev_b32 {v(t2)}, 4, v0")
    a.I(f"v_xor_b32 {v(t2)}, {v(t2)}, {v(t3)}")
    a.I(f"v_lshl_add_u32 {v(AV)}, {v(t2)}, 4, {v(t1)}")
    a.I(f"v_xor_b32 {v(AV + 1)}, 64, {v(AV)}")
    a.I(f"v_add_u32 {v(AV + 1)}, {8192 - 1024}, {v(AV + 1)}")
    a.I(f"v_add_u32 {v(AV + 2)}, {2 * (8192 - 1024)}, {v(AV)}")
    a.I(f"v_add_u32 {v(AV + 3)}, {2 * (8192 - 1024)}, {v(AV + 1)}")
    a.I("s_lshl_b32 s46, s16, 13")
    a.I("s_lshl_b32 s47, s16, 11")
    a.I("s_lshl_b32 s48, s42, 7")
    a.I("s_lshl_b32 s49, s44, 13")
    a.I("s_lshl_b32 s50, s42, 18")
    a.I("s_add_u32 s50, s50, s49")
    a.I("s_add_u32 s53, s48, 512")
    a.I("s_mov_b32 s43, s49")
    a.I(f"v_lshlrev_b32 {v(L16)}, 4, v0")
    a.I("s_lshl_b32 s45, s44, 16")
    a.I("v_lshrrev_b32 v23, 1, v0")
    a.I("v_lshlrev_b32 v23, 13, v23")
    a.I(f"v_and_b32 {v(t1)}, 1, v0")
    a.I(f"v_lshl_add_u32 v23, {v(t1)}, 7, v23")
    a.I("v_add_u32 v23, s45, v23")
    a.I("s_waitcnt lgkmcnt(0)")
    WT0 = os.environ.get("WT0", "0")
    if WT0 != "0":
        a.I("s_cmp_ge_u32 s16, 6")
        a.I(f"s_cbranch_scc1 {N}_nwt")
        a.I("s_lshr_b32 s40, s16, 1")
        a.I("s_cmp_eq_u32 s40, 1")
        a.I("s_cselect_b32 s20, s8, s10")
        a.I("s_cselect_b32 s21, s9, s11")
        a.I("s_cmp_eq_u32 s40, 2")
        a.I("s_cselect_b32 s20, s12, s20")
        a.I("s_cselect_b32 s21, s13, s21")
        a.I(f"s_mov_b32 s22, {hex(4 * MB)}")
        a.I("s_mov_b32 s23, 0x20000")
        a.I("s_and_b32 s40, s16, 1")
        a.I("s_lshl1_add_u32 s40, s2, s40")
        a.I("s_lshl_b32 s40, s40, 13")
        a.I(f"v_lshlrev_b32 {v(t1)}, 7, v0")
        a.I(f"buffer_load_dword v59, {v(t1)}, s[20:23], s40 offen")
        a.label(f"{N}_nwt")
    a.I("s_lshl_b32 s45, s44, 18")
    a.I("s_lshl_b32 s40, s42, 12")
    a.I("s_add_u32 s45, s45, s40")
    a.I(f"s_mov_b32 s92, {hex(512 * 1024)}")
    a.I("s_cmp_eq_u32 s41, 2")
    a.I("s_cselect_b32 s50, s45, s50")
    a.I("s_cselect_b32 s92, 0x2000, s92")
    a.I("s_cselect_b32 s20, s4, s6")
    a.I("s_cselect_b32 s21, s5, s7")
    a.I("s_cselect_b32 s24, s8, s10")
    a.I("s_cselect_b32 s25, s9, s11")
    a.I(f"s_cselect_b32 s51, {hex(WS_Q)}, 0")
    a.I(f"s_cselect_b32 s52, {f32(QSCALE)}, 1.0")
    a.I("s_cmp_eq_u32 s41, 1")
    a.I("s_cselect_b32 s24, s12, s24")
    a.I("s_cselect_b32 s25, s13, s25")
    a.I(f"s_cselect_b32 s51, {hex(WS_V)}, s51")
    a.I("s_mov_b32 s32, s24")
    a.I("s_mov_b32 s33, s25")
    a.I(f"s_mov_b32 s40, {hex(WS_V)}")
    a.I("s_cmp_eq_u32 s18, 10")
    a.I("s_cselect_b32 s32, s12, s32")
    a.I("s_cselect_b32 s33, s13, s33")
    a.I("s_cselect_b32 s53, 0, s53")
    a.I(f"s_add_u32 s45, s49, {hex(31 << 19)}")
    a.I("s_cmp_eq_u32 s18, 31")
    a.I("s_cselect_b32 s53, s48, s53")
    a.I("s_cselect_b32 s43, s50, s43")
    a.I(f"s_cselect_b32 s40, {hex(WS_Q)}, s40")
    a.I("s_cselect_b32 s24, s12, s24")
    a.I("s_cselect_b32 s25, s13, s25")
    a.I(f"s_cselect_b32 s48, {62 * 128}, s48")
    a.I(f"s_cselect_b32 s51, {hex(WS_V)}, s51")
    a.I("s_cselect_b32 s20, s6, s20")
    a.I("s_cselect_b32 s21, s7, s21")
    a.I("s_cselect_b32 s50, s45, s50")
    a.I(f"s_mov_b32 s22, {hex(2 * MB)}")
    a.I("s_mov_b32 s23, 0x20000")
    a.I(f"s_mov_b32 s26, {hex(4 * MB)}")
    a.I("s_mov_b32 s27, 0x20000")

    def late_setup():
        a.I("s_mov_b32 s94, s52")
        a.I("s_mov_b32 s95, s52")
        a.I(f"s_mov_b32 s34, {hex(4 * MB)}")
        a.I("s_mov_b32 s35, 0x20000")
        srd(a, 28, 14, 15, 16 * MB, add="s51")
        srd(a, 36, 14, 15, 16 * MB, add="s40")
        srd(a, 56, 4, 5, 2 * MB)
        if os.environ.get("XDROP") == "q":
            a.I("s_cmp_eq_u32 s41, 2")
            a.I("s_cselect_b32 s30, 0, s30")
        if os.environ.get("XDROP") == "all":
            a.I("s_mov_b32 s30, 0")
            a.I("s_mov_b32 s38, 0")
        a.I("s_add_u32 s13, s48, 256")
        a.I("s_add_u32 s17, s53, 256")
        a.I("s_cmp_eq_u32 s18, 31")
        a.I("s_cselect_b32 s4, s32, s24")
        a.I("s_cselect_b32 s5, s33, s25")
        a.I("s_cselect_b32 s13, s53, s13")
        a.I("s_cselect_b32 s17, s17, s53")
        a.I(f"s_mov_b32 s6, {hex(4 * MB)}")
        a.I("s_mov_b32 s7, 0x20000")

    def w_prefetch(g):
        for th, (col, sr) in enumerate([("s13", "s[4:7]"), ("s17", "s[32:35]")]):
            g.lq.append((["s_mov_b64 exec, 0xffff"], f"buffer_load_dword {v(56 + th)}, v23, {sr}, {col} offen{PP}", "pf"))

    def addr_setup():
        a.I(f"v_lshrrev_b32 {v(G)}, 4, v0")
        a.I(f"v_bfe_u32 {v(t1)}, v0, 3, 1")
        a.I(f"v_lshlrev_b32 {v(t1)}, 4, {v(t1)}")
        a.I(f"v_and_b32 {v(t2)}, 7, v0")
        a.I(f"v_add_u32 {v(t1)}, {v(t1)}, {v(t2)}")
        a.I(f"v_bfe_u32 {v(t2)}, {v(t1)}, 1, 3")
        a.I(f"v_xor_b32 {v(t2)}, {v(t2)}, {v(G)}")
        a.I(f"v_lshlrev_b32 {v(t2)}, 4, {v(t2)}")
        a.I(f"v_lshl_add_u32 {v(AR_)}, {v(t1)}, 7, {v(t2)}")
        a.I(f"v_xor_b32 {v(AR_ + 1)}, 64, {v(AR_)}")
        a.I(f"v_add_u32 {v(AR_)}, s46, {v(AR_)}")
        a.I(f"v_add_u32 {v(AR_ + 1)}, s46, {v(AR_ + 1)}")
        a.I(f"v_lshlrev_b32 {v(t2)}, 9, {v(G)}")
        a.I(f"v_lshl_add_u32 {v(SK)}, {v(t1)}, 4, {v(t2)}")
        a.I(f"v_and_b32 {v(t3)}, 15, v0")
        a.I(f"v_lshl_add_u32 {v(SV)}, {v(t3)}, 4, {v(t2)}")
        a.I(f"v_bfe_u32 {v(t1)}, v0, 2, 2")
        a.I(f"v_lshl_add_u32 {v(t1)}, {v(G)}, 3, {v(t1)}")
        a.I(f"v_lshlrev_b32 {v(t1)}, 7, {v(t1)}")
        a.I(f"v_and_b32 {v(t2)}, 3, v0")
        a.I(f"v_lshl_add_u32 {v(t1)}, {v(t2)}, 3, {v(t1)}")
        a.I(f"v_bfe_u32 {v(t2)}, v0, 3, 2")
        a.I(f"v_lshl_add_u32 {v(t1)}, {v(t2)}, 5, {v(t1)}")
        for ct in range(4):
            a.I(f"v_xor_b32 {v(TB + ct)}, {32 * ct}, {v(t1)}")
        for ct in range(4):
            a.I(f"v_add_u32 {v(TB + 4 + ct)}, 0x10000, {v(TB + ct)}")
            a.I(f"v_add_u32 {v(TB + 8 + ct)}, 0x20000, {v(TB + ct)}")

    def b_common():
        a.I("s_and_b32 s8, s2, 7")
        a.I("s_lshl_b32 s8, s8, 3")
        a.I("s_bfe_u32 s9, s2, 0x30003")
        a.I("s_or_b32 s8, s8, s9")
        a.I("s_lshr_b32 s9, s2, 6")
        a.I("s_lshr_b32 s66, s9, 1")
        a.I("s_lshl_b32 s66, s66, 11")
        a.I("s_lshr_b32 s10, s8, 5")
        a.I("s_lshl_b32 s10, s10, 10")
        a.I("s_add_u32 s66, s66, s10")
        a.I("s_and_b32 s10, s8, 31")
        a.I("s_lshl_b32 s10, s10, 4")
        a.I("s_add_u32 s66, s66, s10")
        a.I("s_and_b32 s10, s9, 1")
        a.I("s_lshl_b32 s10, s10, 9")
        a.I("s_add_u32 s66, s66, s10")

    HL, NF, BS, F2, TM, X1, X2, X3 = 70, 71, 72, 73, 74, 78, 79, 80
    C32, NS32, AR, AI, XF, D1R, D1I, TR, TI, D2 = 84, 92, 100, 104, 108, 116, 132, 148, 158, 168
    pc8 = [PERMC(j) for j in range(8)]

    def fft_loads(vm):
        a.I("s_lshr_b32 s10, s9, 1")
        a.I("s_lshl_b32 s10, s10, 4")
        a.I("s_and_b32 s11, s9, 1")
        a.I("s_lshl_b32 s11, s11, 2")
        a.I("s_add_u32 s10, s10, s11")
        a.I("s_lshr_b32 s11, s16, 1")
        a.I("s_lshl_b32 s11, s11, 3")
        a.I("s_add_u32 s10, s10, s11")
        a.I("s_and_b32 s11, s16, 1")
        a.I("s_lshl_b32 s11, s11, 1")
        a.I("s_add_u32 s10, s10, s11")
        a.I("s_lshl_b32 s10, s10, 6")
        a.I("s_add_u32 s10, s10, s8")
        a.I("s_lshl_b32 s10, s10, 10")
        a.I(f"s_add_u32 s11, s10, {65536 - 1024}")
        a.I(f"s_add_u32 s3, s47, {BLDS}")
        a.I("s_mov_b32 m0, s3")
        a.I(f"s_mov_b32 s62, {hex(2 * MB)}")
        a.I("s_mov_b32 s63, 0x20000")
        vm.issue(f"buffer_load_dwordx4 {v(L16)}, s[60:63], s10 offen{BP} lds", "bx")
        vm.issue(f"buffer_load_dwordx4 {v(L16)}, s[60:63], s11 offen offset:1024{BP} lds", "bx")

    def fft_compute(g):
        vm = g.vm
        a.I(f"v_lshrrev_b32 {v(X2)}, 5, v0")
        a.I(f"v_cvt_f32_u32 {v(HL)}, {v(X2)}")
        a.I(f"v_and_b32 {v(F2)}, 31, v0")
        a.I(f"v_cvt_f32_u32 {v(F2)}, {v(F2)}")
        a.I(f"v_mul_f32 {v(NF)}, {f32(1 / 32)}, {v(F2)}")
        a.I(f"v_mul_f32 {v(BS)}, {v(NF)}, {v(HL)}")
        a.I(f"v_mul_f32 {v(BS)}, {f32(8.0)}, {v(BS)}")
        nat = [16 * t + j for t in range(2) for j in range(8)]
        gen_mat(a, C32, NF, BS, nat, TM)
        a.I(f"v_add_f32 {v(BS)}, {f32(0.25)}, {v(BS)}")
        gen_mat(a, NS32, NF, BS, nat, TM)
        a.I(f"v_bfe_u32 {v(X1)}, v0, 4, 1")
        a.I(f"v_lshlrev_b32 {v(X1)}, 10, {v(X1)}")
        a.I(f"v_lshl_add_u32 {v(X1)}, {v(X2)}, 8, {v(X1)}")
        a.I(f"v_and_b32 {v(X3)}, 15, v0")
        a.I(f"v_lshl_add_u32 {v(X1)}, {v(X3)}, 3, {v(X1)}")
        a.I(f"v_add_u32 {v(X1)}, s3, {v(X1)}")
        vm.wait("bx")
        for t in range(2):
            for h in range(2):
                a.I(f"ds_read_b64_tr_b16 {v(XF + 4 * t + 2 * h, 2)}, {v(X1)} offset:{t * 512 + h * 128}")
        a.I(f"v_cvt_f32_u32 {v(X3)}, {v(X3)}")
        a.I(f"v_mul_f32 {v(NF)}, {f32(1 / 16)}, {v(X3)}")
        a.I(f"v_bfe_u32 {v(X1)}, v0, 4, 1")
        a.I(f"v_cvt_f32_u32 {v(X1)}, {v(X1)}")
        a.I(f"v_mul_f32 {v(BS)}, {v(NF)}, {v(HL)}")
        a.I(f"v_mul_f32 {v(BS)}, 4.0, {v(BS)}")
        a.I(f"v_fmamk_f32 {v(BS)}, {v(X1)}, {f32(0.25)}, {v(BS)}")
        a.I("s_waitcnt lgkmcnt(0)")
        for D, Mx in ((D1R, C32), (D1I, NS32)):
            for t in range(2):
                a.I(f"{MF} {v(D, 16)}, {v(XF + 4 * t, 4)}, {v(Mx + 4 * t, 4)}, {'0' if t == 0 else v(D, 16)}")
        gen_mat(a, AR, NF, BS, pc8, TM)
        a.I(f"v_add_f32 {v(BS)}, {f32(-0.25)}, {v(BS)}")
        gen_mat(a, AI, NF, BS, pc8, TM)
        a.I(f"v_mul_f32 {v(NF)}, {f32(1 / 512)}, {v(F2)}")
        a.I(f"v_mul_f32 {v(BS)}, {v(NF)}, {v(HL)}")
        a.I(f"v_mul_f32 {v(BS)}, 4.0, {v(BS)}")
        twiddle(a, D1R, D1I, [[j, j + 8] for j in range(8)], NF, BS, pc8, -1, TM)
        pack(a, TR, D1R, 8)
        pack(a, TI, D1I, 8)
        a.I(f"v_and_b32 {v(X3)}, 31, v0")
        a.I(f"v_lshlrev_b32 {v(X3)}, 4, {v(X3)}")
        for r in range(2):
            a.I(f"{MF} {v(D2 + 16 * r, 16)}, {v(AR, 4)}, {v(TR + 4 * r, 4)}, 0")
            a.I(f"{MF} {v(D2 + 16 * r, 16)}, {v(AI, 4)}, {v(TI + 4 * r, 4)}, {v(D2 + 16 * r, 16)}")
        a.I(f"v_lshl_add_u32 {v(X3)}, {v(X2)}, 11, {v(X3)}")
        a.I("s_lshl_b32 s10, s16, 2")
        a.I(f"s_add_u32 s11, s10, {BLDS + 8192}")
        a.I(f"v_add_u32 {v(X3)}, s11, {v(X3)}")
        a.I(f"v_mov_b32 {v(X2)}, s10")
        a.I(f"s_add_u32 s67, s66, {256 * 8192}")
        a.I(f"s_add_u32 s11, s66, {256 * 8192 + 4096}")
        srd(a, 60, 14, 15, 8 * MB, add=WS_Y)
        a.I("s_nop 1")
        for c in range(2):
            for j in range(5):
                a.I(f"v_cvt_pk_bf16_f32 {v(TR + 5 * c + j)}, {v(D2 + 8 * c + j)}, {v(D2 + 16 + 8 * c + j)}")
        for c in range(2):
            for j in range(4):
                a.I(f"ds_write_b32 {v(X3)}, {v(TR + 5 * c + j)} offset:{(c * 8 + j) * 512}")
        a.I = I0
        a.I("s_mov_b64 exec, 1")
        vm.issue(f"buffer_store_dword {v(TR + 4)}, {v(X2)}, s[60:63], s67 offen", "bs")
        vm.issue(f"buffer_store_dword {v(TR + 9)}, {v(X2)}, s[60:63], s11 offen", "bs")
        a.I("s_mov_b64 exec, -1")

    WFR, WFP, FX1, FX2, WF9 = 56, 52, 52, 53, 55

    def filt_setup():
        a.I("s_lshr_b32 s10, s9, 1")
        a.I("s_lshl_b32 s10, s10, 5")
        a.I("s_lshr_b32 s11, s8, 5")
        a.I("s_lshl_b32 s11, s11, 4")
        a.I("s_add_u32 s10, s10, s11")
        a.I("s_and_b32 s11, s9, 1")
        a.I("s_lshl_b32 s11, s11, 2")
        a.I("s_add_u32 s10, s10, s11")
        a.I("s_lshl_b32 s10, s10, 5")
        a.I("s_and_b32 s11, s8, 31")
        a.I("s_add_u32 s10, s10, s11")
        a.I("s_mul_i32 s19, s10, 514")
        a.I(f"v_lshlrev_b32 {v(FX1)}, 1, {v(TID)}")
        a.I(f"v_and_b32 {v(FX2)}, 3, v0")
        a.I(f"v_bfe_u32 {v(t1)}, v0, 2, 1")
        a.I(f"v_lshl_add_u32 {v(FX2)}, {v(t1)}, 3, {v(FX2)}")
        a.I(f"v_mul_u32_u24 {v(FX2)}, {32 * 514}, {v(FX2)}")
        a.I(f"v_add_u32 {v(FX2)}, 512, {v(FX2)}")
        a.I("s_cmp_ge_u32 s16, 4")
        a.I("s_cselect_b32 s8, s64, s0")
        a.I("s_cselect_b32 s9, s65, s1")
        a.I(f"s_mov_b32 s10, {2048 * 514}")
        a.I("s_mov_b32 s11, 0x20000")

    def filt_loads(g):
        for j in range(8):
            g.lq.append(([f"s_add_u32 s12, s19, {PERMC(j) * 32 * 514}"],
                         f"buffer_load_ushort {v(WFR + j)}, {v(FX1)}, s[8:11], s12 offen{BP}", "wf"))
        g.lq.append(([], f"buffer_load_ushort {v(WF9)}, {v(FX2)}, s[8:11], s19 offen{BP}", "wf"))

    def filt_finish(g):
        vm = g.vm
        L = [lambda: (g.flush("wf"), vm.wait("wf"), a.I(f"v_lshlrev_b32 {v(54)}, 1, v0"))]
        L.append(lambda: (a.I("s_mov_b64 exec, 0xff"),
                          vm.issue(f"buffer_store_short {v(WF9)}, {v(54)}, s[60:63], s67 offen", "bs"),
                          a.I("s_mov_b64 exec, -1")))
        for i in range(4):
            L.append(lambda i=i: a.I(f"v_lshl_or_b32 {v(WFP + i)}, {v(WFR + 1 + 2 * i)}, 16, {v(WFR + 2 * i)}"))
        return L

    def ys_calc():
        a.I("s_and_b32 s12, s16, 3")
        a.I("s_lshl_b32 s12, s12, 19")
        a.I(f"v_lshlrev_b32 {v(YS)}, 13, v0")
        a.I(f"v_add_u32 {v(YS)}, s12, {v(YS)}")

    def scat(g):
        g.vm.issue(f"buffer_store_dwordx4 {v(YD, 4)}, {v(YS)}, s[60:63], s66 offen", "bs")

    def scat_next():
        for i in range(4):
            a.I(f"v_mov_b32 {v(YD + i)}, {v(WFP + i)}")
        a.I(f"s_add_u32 s66, s66, {hex(WS_WF - WS_Y)}")

    YA, YD, YS = 56, 48, 23
    ACC, RING, PK, AFB = 192, 24, 56, 64
    LOOK = 4
    AHEAD = int(os.environ.get("AHEAD", "5"))

    def AF(rt, k):
        return AFB + (k * 2 + rt) * 4

    class Gen:
        def __init__(self, passes, nmerge, vmq):
            self.passes, self.nmerge = passes, nmerge
            self.vm, self.lg = VM(a), LG(a)
            self.vm.q = list(vmq)
            self.busy, self.nxt, self.dq, self.lq = {}, 0, [], []
            self.chunks, self.frags, self.groups = [], [], {}
            for pp in range(0, len(passes), 2):
                if pp // 2 < nmerge:
                    for kc in range(4):
                        c = len(self.chunks)
                        self.chunks += [(pp, kc), (pp + 1, kc)]
                        self.groups[len(self.frags)] = [c, c + 1]
                        for ks in range(4):
                            for h in range(2):
                                self.frags += [(c + h, ks, ct) for ct in range(4)]
                else:
                    for q in range(2):
                        for kc in range(4):
                            c = len(self.chunks)
                            self.chunks.append((pp + q, kc))
                            if GRP2 == 0:
                                self.groups[len(self.frags)] = [c]
                            elif kc % 2 == 0:
                                self.groups[len(self.frags)] = [c, c + 1]
                            self.frags += [(c, ks, ct) for ks in range(4) for ct in range(4)]
            self.prev = [[], []]
            self.b1busy = True
            self.skip_boundary = False

        def blk(self, c):
            nm = 8 * self.nmerge
            if c < nm:
                return 4 + 2 * ((c // 2) % 3) + (c & 1)
            if self.nmerge == 1:
                return [6, 7, 8, 9, 0, 1, 2, 3][(c - nm) % 8]
            return [8, 9, 4, 5, 0, 1, 2, 3][(c - nm) % 8]

        def dmaW(self, now, done):
            c = self.nxt
            if c >= len(self.chunks) or c > now + AHEAD:
                return False
            b = self.blk(c)
            if b in self.busy and self.busy[b] not in done:
                return False
            if b == 9 and self.b1busy:
                return False
            if b < 4 and now < 8 * self.nmerge:
                return False
            self.busy[b] = c
            self.nxt += 1
            pp, kc = self.chunks[c]
            form, wsel, wdi, osel, odi = self.passes[pp]
            sr = "s[32:35]" if wsel else "s[24:27]"
            for q in range(2):
                pre = [f"s_add_u32 m0, s47, {hex(b * 16384)}",
                       f"s_add_u32 s45, {'s53' if wsel else 's48'}, {hex((kc << 20) + wdi * 128)}"] if q == 0 else []
                self.dq.append((pre, f"buffer_load_dwordx4 {v(WV + q)}, {sr}, s45 offen offset:{q * 1024}{LP} lds", ("W", c)))
            return True

        def pump(self, n=1):
            for _ in range(n):
                q = self.dq or self.lq
                if q:
                    pre, ins, tag = q.pop(0)
                    a.many(pre)
                    self.vm.issue(ins, tag)
                    if tag == "pf":
                        a.I("s_mov_b64 exec, -1")

        def flush(self, tag=None):
            while any(tag is None or x[2] == tag for x in self.dq + self.lq):
                self.pump()

        def dmaA(self, j):
            sr = "s[56:59]" if j >= 8 else "s[20:23]"
            k = 0
            while k < len(self.dq) and not self.dq[k][0]:
                k += 1
            for i in range(4):
                pre = [f"s_add_u32 m0, s46, {hex((j % 2) * 4096)}", f"s_mov_b32 s45, {(j % 8) * 128}"] if i == 0 else []
                self.dq.insert(k + i, (pre, f"buffer_load_dwordx4 {v(AV + i)}, {sr}, s45 offen offset:{i * 1024}{AP} lds", ("A", j)))

        def readA(self, j):
            self.flush(("A", j))
            self.vm.wait(("A", j))
            for ks in range(2):
                for x in range(2):
                    self.lg.issue(f"ds_read_b128 {v(AF(x, 2 * (j % 8) + ks), 4)}, {v(AR_ + (ks ^ x))} "
                                  f"offset:{(j % 2) * 4096 + x * 1024}", ("A", j))

        def reads(self, i, halves=(0, 1)):
            c, ks, ct = self.frags[i]
            b = self.blk(c)
            base = TB + 4 * (b // 4) + ct
            off = (b % 4) * 16384 + ks * 4096
            d = RING + 4 * slot(i)
            for h in halves:
                self.lg.issue(f"ds_read_b64_tr_b16 {v(d + 2 * h, 2)}, {v(base)} offset:{off + 512 * h}", ("W", i))

        def sync(self, grp):
            for c in grp:
                self.flush(("W", c))
            self.vm.wait([("W", c) for c in grp])
            a.I("s_barrier")
            lo = self.prev[1][0] if self.prev[1] else 0
            done = set(range(lo))
            if self.prev[1]:
                self.b1busy = False
            self.prev = [self.prev[1], grp]
            while self.dmaW(grp[0], done):
                pass

        def acc(self, pp, rt, ct):
            return ACC + 32 * (pp & 1) + 4 * (4 * rt + ct)

        def epi(self, pp):
            out = []
            form, wsel, wdi, osel, u = self.passes[pp]
            so = 54 + (pp & 1)
            sr = "s[36:39]" if osel else "s[28:31]"
            def so_calc():
                a.I(f"s_add_u32 s{so}, {'s43' if osel else 's50'}, {(u & 1) * 4096}")
                assert (u >> 1) in (-1, 0, 1)
                if u >> 1:
                    a.I(f"s_{'add' if (u >> 1) > 0 else 'sub'}_u32 s{so}, s{so}, s92")
            out.append(so_calc)
            for q in range(4):
                pk = PK + 4 * (q % 2)
                if form == "K":
                    x, cp = divmod(q, 2)
                    srcs = [self.acc(pp, x, 2 * cp), self.acc(pp, x, 2 * cp + 1)]
                    off, va = x * 128 + cp * 2048, SK
                else:
                    srcs = [self.acc(pp, 0, q), self.acc(pp, 1, q)]
                    off, va = (q >> 1) * 2048 + (q & 1) * 256, SV
                for i in range(4):
                    src = srcs[i // 2] + 2 * (i % 2)
                    if form == "K" and MULM == "pk":
                        out.append(lambda src=src: a.I(f"v_pk_mul_f32 {v(src, 2)}, {v(src, 2)}, s[94:95]"))
                    elif form == "K" and MULM != "none":
                        out.append(lambda src=src: a.I(f"v_mul_f32 {v(src)}, s52, {v(src)}"))
                        out.append(lambda src=src: a.I(f"v_mul_f32 {v(src + 1)}, s52, {v(src + 1)}"))
                    out.append(lambda src=src, pk=pk, i=i: a.I(f"v_cvt_pk_bf16_f32 {v(pk + i)}, {v(src)}, {v(src + 1)}"))
                out.append(lambda pk=pk, va=va, off=off: self.vm.issue(
                    f"buffer_store_dwordx4 {v(pk, 4)}, {v(va)}, {sr}, s{so} offen offset:{off}{SP}", ("S", pp)))
            return out

        def boundary(self, pps):
            self.flush("pf")
            self.vm.wait("pf")
            ys_calc()
            a.I("s_nop 2")
            for pp in pps:
                for f in self.epi(pp):
                    f()

        def run(self, p0, p1):
            lg = self.lg
            NF_ = len(self.frags)
            NA = 8 * self.nmerge
            pend = []
            for i in range(64 * p0, 64 * p1):
                c, ks, ct = self.frags[i]
                pp, kc = self.chunks[c]
                k = 4 * kc + ks
                if i % 128 == 0 and 0 < i <= 128 * self.nmerge and not self.skip_boundary:
                    self.boundary([i // 64 - 2] + ([i // 64 - 1] if i < 128 * self.nmerge else []))
                if i % 2 == 0:
                    lg.wait([("W", i), ("W", i + 1), ("A", i // 16)])
                if i % 16 == 0 and i // 16 + 2 < NA:
                    self.dmaA(i // 16 + 2)
                wf = v(RING + 4 * slot(i), 4)
                j = i + LOOK
                for rt in range(2):
                    ac = v(self.acc(pp, rt, ct), 4)
                    af = v(AF(rt, k), 4)
                    cin = "0" if k == 0 else ac
                    if self.passes[pp][0] == "V":
                        a.I(f"{M16} {ac}, {af}, {wf}, {cin}")
                    else:
                        a.I(f"{M16} {ac}, {wf}, {af}, {cin}")
                    if j < NF_:
                        if rt == 0 and j in self.groups:
                            self.sync(self.groups[j])
                        if rt == 0 and j % 16 == 0 and j // 16 < NA:
                            self.readA(j // 16)
                        self.reads(j, (rt,))
                    if rt == 0 and pend:
                        pend.pop(0)()
                    if rt == 1 and i % 2 == 0:
                        if self.dq or self.lq:
                            self.pump(1)
                        elif pend:
                            pend.pop(0)()
                if i % 64 == 63:
                    assert not pend
                if i % 64 == 3 and i >= 128 * self.nmerge:
                    pend = self.epi(i // 64 - 1)
                if i == PF_AT:
                    w_prefetch(self)
                if i == LATE_AT:
                    filt_loads(self)
                if i == FILT_AT:
                    pend = filt_finish(self)
                if i >= 128 and i % 128 == SCAT_AT:
                    scat(self)
                if i >= 128 and i % 128 == 127:
                    scat_next()
                if i >= 128 * self.nmerge and i % 128 == CT_AT:
                    code_touch(a, "attn_kernel", 16, 8, AR_)
                if i in STF:
                    st()
            self.flush()

        def wo_load(self):
            blk = 4 if self.nmerge == 1 else 6
            srd(a, 8, 90, 91, 4 * MB)
            a.I("s_lshl_b32 s12, s2, 14")
            a.I("s_lshl_b32 s13, s16, 7")
            a.I("s_add_u32 s12, s12, s13")
            a.I(f"s_add_u32 s13, s12, {8192 - 1024}")
            a.I(f"s_add_u32 s17, s47, {blk * 16384}")
            a.I("s_mov_b32 m0, s17")
            a.I(f"v_lshrrev_b32 {v(AV)}, 3, v0")
            a.I(f"v_lshlrev_b32 {v(AV)}, 10, {v(AV)}")
            a.I(f"v_and_b32 {v(AV + 1)}, 7, v0")
            a.I(f"v_lshl_add_u32 {v(AV)}, {v(AV + 1)}, 4, {v(AV)}")
            self.vm.issue(f"buffer_load_dwordx4 {v(AV)}, s[8:11], s12 offen{BP} lds", "wo")
            self.vm.issue(f"buffer_load_dwordx4 {v(AV)}, s[8:11], s13 offen offset:1024{BP} lds", "wo")
            a.I(f"v_lshrrev_b32 {v(AV + 1)}, 5, v0")
            a.I(f"v_bfe_u32 {v(AV + 2)}, v0, 2, 2")
            a.I(f"v_lshl_add_u32 {v(AV + 1)}, {v(AV + 1)}, 2, {v(AV + 2)}")
            a.I(f"v_lshlrev_b32 {v(AV + 1)}, 7, {v(AV + 1)}")
            a.I(f"v_bfe_u32 {v(AV + 2)}, v0, 4, 1")
            a.I(f"v_lshl_add_u32 {v(AV + 1)}, {v(AV + 2)}, 5, {v(AV + 1)}")
            a.I(f"v_and_b32 {v(AV + 2)}, 3, v0")
            a.I(f"v_lshl_add_u32 {v(AV + 1)}, {v(AV + 2)}, 3, {v(AV + 1)}")
            a.I(f"v_add_u32 {v(AV + 1)}, s17, {v(AV + 1)}")
            a.I(f"v_lshlrev_b32 {v(AV + 2)}, 4, v0")
            a.I("s_lshl_b32 s17, s16, 19")
            a.I("s_lshl_b32 s13, s2, 11")
            a.I("s_add_u32 s17, s17, s13")

        def fin(self, pp):
            self.vm.wait("wo")
            for cb in range(2):
                for h in range(2):
                    a.I(f"ds_read_b64_tr_b16 {v(RING + 4 * cb + 2 * h, 2)}, {v(AV + 1)} offset:{cb * 64 + h * 1024}")
            srd(a, 8, 14, 15, 4 * MB, add=WS_WO)
            a.I("s_waitcnt lgkmcnt(0)")
            for cb in range(2):
                a.I(f"buffer_store_dwordx4 {v(RING + 4 * cb, 4)}, {v(AV + 2)}, s[8:11], s17 offen offset:{cb * 1024}{SP}")
            a.I("s_nop 0")
            for f in self.epi(pp):
                f()
            st.dump(16, 14, tmpv=24)
            a.I("s_endpgm")


    def slot(i):
        j = i % 128
        return j % 6 if j < 108 else (j - 108) % 5

    I0 = a.I
    cnt = [0]
    gp = [None]

    def Ipump(text):
        r = I0(text)
        if text.startswith("v_") and not text.startswith("v_mfma"):
            cnt[0] += 1
            if cnt[0] % PUMP == 0 and gp[0].dq:
                a.I = I0
                gp[0].pump()
                a.I = Ipump
        return r

    b_common()
    a.I("s_mov_b64 s[0:1], s[62:63]")
    g0 = Gen([("K", 0, i, 0, i) for i in range(2)], 1, [])
    a.I("s_cmp_ge_u32 s16, 4")
    a.I(f"s_cbranch_scc1 {N}_nofl")
    fft_loads(VM(a))
    a.label(f"{N}_nofl")
    for _ in range(2):
        g0.dmaW(0, set())
    g0.dmaA(0)
    PF0 = os.environ.get("PF0", "0")

    def pf0():
        a.I("s_mov_b64 exec, 0xffff")
        a.I("buffer_load_dword v58, v23, s[24:27], s48 offen")
        a.I("s_mov_b64 exec, -1")
    if PF0 == "1":
        pf0()
    g0.flush()
    if PF0 == "2":
        pf0()
    g0.dmaA(1)
    for _ in range(2):
        g0.dmaW(0, set())
    g0.flush()
    if os.environ.get("CT0", "1") != "1":
        code_touch(a, N, 16, 36, 60, kd=False)
    st()
    late_setup()
    addr_setup()
    g0.dmaW(0, set())
    a.I("s_cmp_ge_u32 s16, 4")
    a.I(f"s_cbranch_scc1 {N}_join")
    gf = Gen([("K", 0, i, 0, i) for i in range(2)], 1, ["bx", "bx"] + g0.vm.q)
    fft_compute(gf)
    a.label(f"{N}_join")
    filt_setup()
    if os.environ.get("L1PRIO"):
        a.I("s_cmp_lt_u32 s16, 4")
        a.I(f"s_cbranch_scc1 {N}_np")
        a.I(f"s_setprio {os.environ['L1PRIO']}")
        a.label(f"{N}_np")
    srd(a, 60, 14, 15, 8 * MB, add=WS_Y)
    vmq = list(g0.vm.q)
    st()
    stn = st.n
    def y_prep():
        a.I(f"v_lshlrev_b32 {v(YA)}, 4, {v(TID)}")
        a.I("s_lshr_b32 s12, s16, 2")
        a.I("s_lshl_b32 s12, s12, 12")
        a.I("s_add_u32 s66, s66, s12")
        a.I(f"s_add_u32 s67, s66, {256 * 8192 + WS_WF - WS_Y}")
        a.I(f"s_add_u32 s12, s12, {BLDS + 8192}")
        a.I(f"v_add_u32 {v(YA)}, s12, {v(YA)}")

    y_prep()

    def mkgen(passes, nmerge=1):
        g = Gen(passes, nmerge, vmq)
        g.busy, g.nxt, g.dq = dict(g0.busy), g0.nxt, list(g0.dq)
        st.n = stn
        return g

    def start(g):
        a.I("s_waitcnt lgkmcnt(0)")
        g.readA(0)
        g.sync(g.groups[0])
        st()
        g.lg.issue(f"ds_read_b128 {v(YD, 4)}, {v(YA)}", "y")
        for i in range(LOOK):
            g.reads(i)

    def capture(fn):
        n0 = len(a.items)
        fn()
        seg = a.items[n0:]
        del a.items[n0:]
        return seg

    def merge(s1, s2):
        import asmlib
        isv = lambda x: x[0] == "i" and x[1].text.startswith("s_waitcnt vmcnt")
        out, i, j = [], 0, 0
        while i < len(s1) or j < len(s2):
            x = s1[i] if i < len(s1) else None
            y = s2[j] if j < len(s2) else None
            if x is not None and y is not None and isv(x) and isv(y):
                n = min(int(x[1].text[16:-1]), int(y[1].text[16:-1]))
                out.append(("i", asmlib.Ins(f"s_waitcnt vmcnt({n})")))
                i += 1
                j += 1
            elif x is not None and isv(x):
                out.append(x)
                i += 1
            elif y is not None and isv(y):
                out.append(y)
                j += 1
            else:
                assert x[1].text == y[1].text, (x[1].text, y[1].text)
                out.append(x)
                i += 1
                j += 1
        return out

    def looped(F, lab):
        def plist(pair):
            L = []
            for pp in range(8):
                if pair == 0:
                    L.append((F, 0, pp, 0, pp))
                else:
                    rel = pp - pair
                    L.append((F, 1 if rel >= 2 else 0, rel - 2 if rel >= 2 else rel, 0, rel))
            return L
        g = mkgen(plist(0))
        start(g)
        g.run(0, 2)
        g.boundary([0])
        g.skip_boundary = True
        g.wo_load()
        st()
        a.I("s_add_u32 s48, s48, 256")
        a.I("s_add_u32 s50, s50, s92")
        a.I("s_mov_b32 s44, 0")
        g.passes = plist(2)
        s1 = capture(lambda: g.run(2, 4))
        g.passes = plist(4)
        s2 = capture(lambda: g.run(4, 6))
        a.label(lab + "_loop")
        mg = merge(s1, s2)
        drop = os.environ.get("DROP", "").split(",")

        def keep(x):
            if x[0] != "i":
                return True
            tx = x[1].text
            if "dma" in drop and tx.endswith(" lds"):
                return False
            if "st" in drop and tx.startswith("buffer_store"):
                return False
            if "valu" in drop and x[1].cls == "valu":
                return False
            if "bar" in drop and tx == "s_barrier":
                return False
            if "rd" in drop and tx.startswith("ds_read"):
                return False
            if "vw" in drop and tx.startswith("s_waitcnt vm"):
                return False
            if "lw" in drop and tx.startswith("s_waitcnt lg"):
                return False
            return True
        a.items += [x for x in mg if keep(x)]
        if F == "K":
            a.I("s_cmp_eq_u32 s18, 10")
            a.I(f"s_cbranch_scc1 {N}_Ctail")
        a.I("s_mov_b32 s48, s53")
        a.I("s_mov_b32 s34, 0")
        a.I("s_add_u32 s50, s50, s92")
        a.I("s_add_u32 s44, s44, 1")
        a.I("s_cmp_lt_u32 s44, 2")
        a.I(f"s_cbranch_scc1 {lab}_loop")
        g.passes = plist(6)
        g.fin(5)
        return g

    a.I("s_cmp_eq_u32 s18, 31")
    a.I(f"s_cbranch_scc1 {N}_D")
    a.I("s_cmp_eq_u32 s41, 1")
    a.I(f"s_cbranch_scc1 {N}_B")
    looped("K", N + "_A")
    a.label(f"{N}_Ctail")
    gc = mkgen([("K", 0, pp, 0, pp) for pp in range(4)] + [("V", 1, 0, 1, 0), ("V", 1, 1, 1, 1)])
    capture(lambda: (start(gc), gc.run(0, 2), gc.wo_load(), gc.run(2, 4)))
    gc.passes[3] = ("K", 0, 1, 0, 1)
    st.n = stn + 5
    gc.run(4, 6)
    gc.fin(5)
    a.label(N + "_B")
    looped("V", N + "_B2")
    a.label(N + "_D")
    gd = mkgen([("V", 0, 0, 0, 0), ("V", 0, 1, 0, 1)] + [("K", 1, i, 1, i) for i in range(4)], 2)
    start(gd)
    gd.run(0, 2)
    st()
    gd.run(2, 5)
    gd.wo_load()
    gd.run(5, 6)
    gd.fin(5)
    kend(a, N)
    return a, N, (256, 512, 163840)


def gen_l3():
    a = Asm()
    N = "l3_kernel"
    kstart(a, N, 256)
    a.I("s_load_dwordx2 s[4:5], s[0:1], 88")
    a.I("s_load_dwordx2 s[8:9], s[0:1], 72")
    a.I("v_lshrrev_b32 v1, 6, v0")
    a.I("v_and_b32 v2, 255, v0")
    a.I("v_and_b32 v0, 63, v0")
    a.I("v_readfirstlane_b32 s17, v1")
    st = Stamper(a, "l3")
    WF, ACCS, RING, L16, LR, CMB = 128, [68, 84], 100, 124, 125, 127
    LOOK = 5
    a.I("s_bfe_u32 s40, s2, 0x20001")
    a.I("s_and_b32 s43, s2, 1")
    a.I("s_lshl_b32 s43, s43, 5")
    a.I("s_lshr_b32 s44, s2, 3")
    a.I("s_add_u32 s43, s43, s44")
    a.I("s_lshr_b32 s41, s43, 2")
    a.I("s_and_b32 s42, s43, 3")
    a.I("s_and_b32 s16, s17, 3")
    a.I("s_lshr_b32 s18, s17, 2")
    a.I(f"v_lshlrev_b32 {v(L16)}, 4, v0")
    a.I("s_lshl_b32 s45, s42, 1")
    a.I("s_lshr_b32 s46, s16, 1")
    a.I("s_add_u32 s45, s45, s46")
    a.I("s_lshl_b32 s45, s45, 19")
    a.I("s_lshl1_add_u32 s46, s40, s18")
    a.I("s_lshl_b32 s46, s46, 16")
    a.I("s_add_u32 s45, s45, s46")
    a.I("s_and_b32 s46, s16, 1")
    a.I("s_lshl_b32 s46, s46, 10")
    a.I("s_add_u32 s45, s45, s46")
    a.I(f"s_add_u32 s45, s45, {hex(WS_WO)}")
    a.I("s_lshl_b32 s47, s18, 15")
    a.I("s_lshl_b32 s48, s16, 10")
    a.I("s_add_u32 s47, s47, s48")
    a.I("s_lshl_b32 s46, s41, 20")
    a.I("s_lshl_b32 s48, s40, 16")
    a.I("s_add_u32 s46, s46, s48")
    a.I("s_add_u32 s46, s46, s47")
    a.I(f"s_add_u32 s46, s46, {hex(WS_CTX)}")
    a.I("s_lshl_b32 s48, s18, 15")
    a.I(f"v_add_u32 {v(LR)}, s48, {v(L16)}")
    a.I(f"v_add_u32 {v(LR + 1)}, 0x10000, {v(LR)}")
    a.I("s_lshl_b32 s48, s16, 12")
    a.I(f"s_add_u32 s48, s48, {131072}")
    a.I(f"v_add_u32 {v(CMB)}, s48, {v(L16)}")
    a.I("s_waitcnt lgkmcnt(0)")
    srd(a, 52, 4, 5, 64 * MB)
    st()
    vm, lg = VM(a), LG(a)

    def sub_off(n, dst):
        a.I(f"s_add_u32 {s(dst)}, s40, {n + 1}")
        a.I(f"s_and_b32 {s(dst)}, {s(dst)}, 3")
        a.I(f"s_lshl_b32 {s(dst)}, {s(dst)}, 18")
        a.I(f"s_add_u32 {s(dst)}, {s(dst)}, s46")

    for n in range(4):
        sub_off(n, 36 + n)

    def cdma(n, i):
        return [lambda: (a.I(f"s_add_u32 m0, s47, {(n & 1) * 65536 + i * 4096}"),
                         a.I(f"s_add_u32 s49, s{36 + n}, {i * 4096}"),
                         vm.issue(f"buffer_load_dwordx4 {v(L16)}, s[52:55], s49 offen lds", ("C", n, i // 2)))]

    def wload(g):
        def f():
            if g % 2 == 0 and g:
                a.I("s_add_u32 s45, s45, 4096")
            vm.issue(f"buffer_load_dwordx4 {v(WF + 4 * g, 4)}, {v(L16)}, s[52:55], s45 offen offset:{(g % 2) * 2048}", ("W", g))
        return [f]

    pend = []
    for c in range(4):
        for i in (2 * c, 2 * c + 1):
            pend += cdma(0, i) + cdma(1, i)
        for g in range(8 * c, 8 * c + 8):
            pend += wload(g)
    tags = []
    for c in range(4):
        tags += [("C", 0, c), ("C", 1, c)] * 2 + [("W", g) for g in range(8 * c, 8 * c + 8)]
    ptag = list(tags)

    def pump(k=1):
        for _ in range(k):
            if pend:
                pend.pop(0)()
                ptag.pop(0)

    def need(tg):
        while any(x in ptag for x in tg):
            pump()

    pump(PRE3)
    b3_loads(a, 8)
    srd(a, 56, 4, 5, 16 * MB, add=WS_PART)
    srd(a, 60, 4, 5, 64 * 128, add=WS_FLAG)
    a.I("s_lshl_b32 s64, s43, 7")
    a.I("s_lshl2_add_u32 s67, s40, s64")
    LA, LB_ = 28, 29
    a.I("s_lshl_b32 s48, s18, 16")
    a.I(f"v_add_u32 {v(LA)}, s48, {v(LR)}")
    a.I(f"v_xor_b32 {v(LB_)}, 0x10000, {v(LA)}")
    st()
    AC = [68, 84, 32]
    sched = []
    for g in range(32):
        sched += [(AC[0], LA, g), (AC[1], LB_, g)]
    sched += [(AC[2], LR, g) for g in range(32)] + [(AC[1], LR + 1, g) for g in range(32)]

    def read(i):
        lg.issue(f"ds_read_b128 {v(RING + 4 * (i % 6), 4)}, {v(sched[i][1])} offset:{sched[i][2] * 1024}", i)

    def sync(tg):
        need(tg)
        vm.wait(tg)
        a.I("s_barrier")

    TMP = 48

    def slot_calc(own_expr):
        a.I(own_expr)
        a.I("s_and_b32 s50, s50, 3")
        a.I("s_lshl2_add_u32 s50, s43, s50")
        a.I("s_lshl2_add_u32 s50, s50, s40")
        a.I("s_lshl2_add_u32 s50, s50, s16")
        a.I("s_lshl_b32 s50, s50, 12")

    def give_l(A, addr, off):
        for q in range(4):
            a.I(f"ds_write_b128 {v(addr)}, {v(A + 4 * q, 4)} offset:{off + q * 1024}")

    def take_l(A, addr, off, model=False):
        for q in range(4):
            a.I(f"ds_read_b128 {v(TMP + 4 * q, 4)}, {v(addr)} offset:{off + q * 1024}")
        a.I("s_waitcnt lgkmcnt(0)")
        for j in range(16):
            a.I(f"v_add_f32 {v(A + j)}, {v(A + j)}, {v(TMP + j)}")
        for q in range(4):
            x = f"buffer_store_dwordx4 {v(A + 4 * q, 4)}, {v(L16)}, s[56:59], s50 offen offset:{q * 1024} sc1"
            vm.issue(x, "P") if model else a.I(x)

    def give(n):
        lab = a.uid(f"{N}_g")
        a.I(f"s_cmp_eq_u32 s18, {n & 1}")
        a.I(f"s_cbranch_scc1 {lab}")
        give_l(AC[2] if n == 2 else AC[1], CMB, (n & 1) * 16384)
        a.label(lab)
        a.I("s_waitcnt lgkmcnt(0)")
        lg.q = []

    sync([("C", 0, 0), ("C", 1, 0)])
    st()
    for i in range(LOOK):
        read(i)
    for i in range(128):
        ac, _, g = sched[i]
        lg.wait(i)
        if i < 64:
            need([("W", g)])
            vm.wait(("W", g))
        first = g == 0
        a.I(f"{MF} {v(ac, 16)}, {v(WF + 4 * g, 4)}, {v(RING + 4 * (i % 6), 4)}, {'0' if first else v(ac, 16)}")
        j = i + LOOK
        if j < 128:
            if j < 64 and j % 16 == 0:
                c = j // 16
                sync([("C", 0, c), ("C", 1, c)])
                if c >= 2:
                    for n in (2, 3):
                        for k in (2 * (c - 2), 2 * (c - 2) + 1):
                            pend.extend(cdma(n, k))
                            ptag.append(("C", n, c - 2))
            elif j >= 64 and j % 16 == 0:
                sync([("C", j // 32, (j % 32) // 8 + c) for c in range(2)])
            read(j)
        if i in (31, 63, 75, 95, 107):
            st()
        if j == 64:
            for n in (2, 3):
                for k in (4, 5):
                    pend.extend(cdma(n, k))
                    ptag.append(("C", n, 2))
        if i == 64 + 5:
            a.I("s_lshl_b32 s48, s18, 14")
            a.I(f"v_add_u32 v30, s48, {v(CMB)}")
            a.I("v_xor_b32 v31, 0x4000, v30")
            give_l(AC[1], 31, 0)
            a.I("s_add_u32 s51, s18, 1")
            slot_calc("s_add_u32 s50, s40, s51")
            a.I("s_waitcnt lgkmcnt(0)")
            lg.q = []
            a.I("s_barrier")
            for n in (2, 3):
                for k in (6, 7):
                    pend.extend(cdma(n, k))
                    ptag.append(("C", n, 3))
            need([("C", 3, 3)])
            take_l(AC[0], 30, 0, True)
        if i == 96 + 5:
            vm.wait([("C", 3, 2), ("C", 3, 3)])
            give(2)
            a.I("s_barrier")
            a.I("s_cmp_lg_u32 s18, 0")
            a.I(f"s_cbranch_scc1 {N}_t2")
            slot_calc("s_add_u32 s50, s40, 3")
            take_l(AC[2], CMB, 0)
            a.label(f"{N}_t2")
        pump(2 if i < 64 else 1)
    st()
    LW = 32768
    a.I("v_mov_b32 v1, 0")
    a.I("v_mov_b32 v30, %d" % LW)
    a.I("ds_write_b32 v30, v1")
    a.I("v_mov_b32 v1, 1")
    a.I("s_nop 7")
    give(3)
    a.I("s_waitcnt vmcnt(0)")
    a.I("s_barrier")
    a.I("s_cmp_eq_u32 s18, 1")
    a.I(f"s_cbranch_scc1 {N}_fin")
    a.I("s_cmp_lg_u32 s17, 0")
    a.I(f"s_cbranch_scc1 {N}_nosig")
    a.I("s_mov_b64 exec, 1")
    a.I("buffer_store_dword v1, off, s[60:63], s67 sc1")
    a.I("s_mov_b64 exec, -1")
    a.label(f"{N}_nosig")
    b3_body(a, 0, 8, loaded=True)
    a.I("s_endpgm")
    a.label(f"{N}_fin")
    A = ACCS[1]
    a.I("s_lshl2_add_u32 s50, s43, s40")
    a.I("s_lshl_b32 s50, s50, 4")
    a.I("s_add_u32 s50, s50, s16")
    a.I("s_lshl_b32 s50, s50, 12")
    a.I("v_and_b32 v3, 31, v0")
    a.I("v_lshlrev_b32 v3, 11, v3")
    a.I("v_lshrrev_b32 v4, 5, v0")
    a.I("v_lshl_add_u32 v3, v4, 4, v3")
    a.I("s_lshl2_add_u32 s65, s41, s40")
    a.I("s_lshl_b32 s65, s65, 16")
    a.I("s_lshl_b32 s66, s42, 8")
    a.I("s_add_u32 s65, s65, s66")
    a.I("s_lshl_b32 s66, s16, 6")
    a.I("s_add_u32 s65, s65, s66")
    srd(a, 52, 8, 9, 4 * MB)
    a.I(f"v_mov_b32 v5, {LW}")
    for q in range(4):
        a.I(f"ds_read_b128 {v(WF + 4 * q, 4)}, {v(CMB)} offset:{16384 + q * 1024}")
    POLL = os.environ.get("POLL", "1")
    a.I("s_mov_b32 s44, 0")
    if POLL == "1":
        a.I("s_cmp_lg_u32 s17, 4")
        a.I(f"s_cbranch_scc1 {N}_lspin")
    a.label(f"{N}_spin")
    a.I("buffer_load_dwordx4 v[4:7], off, s[60:63], s64 sc1")
    a.I("s_waitcnt vmcnt(0)")
    a.I("v_and_b32 v4, v4, v5")
    a.I("v_and_b32 v6, v6, v7")
    a.I("v_and_b32 v4, v4, v6")
    a.I("s_nop 0")
    a.I("v_readfirstlane_b32 s66, v4")
    a.I("s_nop 0")
    a.I("s_cmp_eq_u32 s66, 1")
    a.I(f"s_cbranch_scc1 {N}_got")
    a.I("s_sleep 2")
    a.I("s_add_u32 s44, s44, 1")
    a.I("s_cmp_lt_u32 s44, 0x100000")
    a.I(f"s_cbranch_scc1 {N}_spin")
    a.I(f"s_branch {N}_got")
    if POLL == "1":
        a.label(f"{N}_lspin")
        a.I("ds_read_b32 v4, v5")
        a.I("s_waitcnt lgkmcnt(0)")
        a.I("v_readfirstlane_b32 s66, v4")
        a.I("s_nop 0")
        a.I("s_cmp_eq_u32 s66, 1")
        a.I(f"s_cbranch_scc1 {N}_got2")
        a.I("s_sleep 1")
        a.I(f"s_branch {N}_lspin")
    a.label(f"{N}_got")
    if POLL == "1":
        a.I(f"v_mov_b32 v5, {LW}")
        a.I("ds_write_b32 v5, v1")
        a.label(f"{N}_got2")
    st()
    for k in range(1, 4):
        a.I(f"s_add_u32 s66, s40, {k}")
        a.I("s_and_b32 s66, s66, 3")
        a.I("s_lshl_b32 s66, s66, 14")
        a.I("s_add_u32 s66, s66, s50")
        for q in range(4):
            a.I(f"buffer_load_dwordx4 {v(WF + 16 * k + 4 * q, 4)}, {v(L16)}, s[56:59], s66 offen offset:{q * 1024} sc1")
    a.I("s_waitcnt lgkmcnt(0)")
    a.I("s_barrier")
    for k in range(4):
        if k:
            a.I(f"s_waitcnt vmcnt({4 * (3 - k)})")
        for j in range(16):
            a.I(f"v_add_f32 {v(A + j)}, {v(A + j)}, {v(WF + 16 * k + j)}")
    pack(a, 8, A, 8)
    a.I("s_nop 1")
    for h in range(2):
        a.I(f"v_permlane32_swap_b32 {v(8 + 4 * h)}, {v(10 + 4 * h)}")
        a.I(f"v_permlane32_swap_b32 {v(9 + 4 * h)}, {v(11 + 4 * h)}")
        a.I(f"buffer_store_dwordx4 {v(8 + 4 * h, 4)}, v3, s[52:55], s65 offen offset:{32 * h}{os.environ.get('OPA', ' nt')}")
    st.dump(17, 4, tmpv=16)
    kend(a, N)
    return a, N, (256, 512, 163840)


def gen_l3v3():
    a = Asm()
    N = "l3_kernel"
    kstart(a, N, 256)
    a.I("s_load_dwordx2 s[4:5], s[0:1], 88")
    a.I("s_load_dwordx2 s[8:9], s[0:1], 72")
    a.I("v_lshrrev_b32 v1, 6, v0")
    a.I("v_and_b32 v2, 255, v0")
    a.I("v_and_b32 v0, 63, v0")
    a.I("v_readfirstlane_b32 s17, v1")
    st = Stamper(a, "l3")
    WF, ACCS, RING, L16, LR, CMB = 128, [68, 84], 100, 124, 125, 127
    LOOK = 5
    a.I("s_bfe_u32 s40, s2, 0x20001")
    a.I("s_and_b32 s43, s2, 1")
    a.I("s_lshl_b32 s43, s43, 5")
    a.I("s_lshr_b32 s44, s2, 3")
    a.I("s_add_u32 s43, s43, s44")
    a.I("s_lshr_b32 s41, s43, 2")
    a.I("s_and_b32 s42, s43, 3")
    a.I("s_and_b32 s16, s17, 3")
    a.I("s_lshr_b32 s18, s17, 2")
    a.I(f"v_lshlrev_b32 {v(L16)}, 4, v0")
    a.I("s_lshl_b32 s45, s42, 1")
    a.I("s_lshr_b32 s46, s16, 1")
    a.I("s_add_u32 s45, s45, s46")
    a.I("s_lshl_b32 s45, s45, 19")
    a.I("s_lshl1_add_u32 s46, s40, s18")
    a.I("s_lshl_b32 s46, s46, 16")
    a.I("s_add_u32 s45, s45, s46")
    a.I("s_and_b32 s46, s16, 1")
    a.I("s_lshl_b32 s46, s46, 10")
    a.I("s_add_u32 s45, s45, s46")
    a.I(f"s_add_u32 s45, s45, {hex(WS_WO)}")
    a.I("s_lshl_b32 s47, s18, 15")
    a.I("s_lshl_b32 s48, s16, 10")
    a.I("s_add_u32 s47, s47, s48")
    a.I("s_lshl_b32 s46, s41, 20")
    a.I("s_lshl_b32 s48, s40, 16")
    a.I("s_add_u32 s46, s46, s48")
    a.I("s_add_u32 s46, s46, s47")
    a.I(f"s_add_u32 s46, s46, {hex(WS_CTX)}")
    a.I("s_lshl_b32 s47, s18, 13")
    a.I("s_lshl_b32 s48, s16, 10")
    a.I("s_add_u32 s47, s47, s48")
    a.I("s_lshl_b32 s48, s18, 13")
    a.I(f"v_add_u32 {v(LR)}, s48, {v(L16)}")
    a.I(f"v_add_u32 {v(LR + 1)}, 0x10000, {v(LR)}")
    a.I("s_lshl_b32 s48, s16, 12")
    a.I(f"v_add_u32 {v(CMB)}, s48, {v(L16)}")
    a.I("s_waitcnt lgkmcnt(0)")
    srd(a, 52, 4, 5, 64 * MB)
    st()
    vm, lg = VM(a), LG(a)

    def sub_off(n, dst):
        a.I(f"s_add_u32 {s(dst)}, s40, {n + 1}")
        a.I(f"s_and_b32 {s(dst)}, {s(dst)}, 3")
        a.I(f"s_lshl_b32 {s(dst)}, {s(dst)}, 18")
        a.I(f"s_add_u32 {s(dst)}, {s(dst)}, s46")

    PB16 = int(os.environ.get("PB16", "1"))
    for n in range(4):
        sub_off(n, 36 + n)

    def cslot(n, c):
        return (n * 2 + c % 2) * 16384 if n < 3 else 98304 + c * 16384

    pend, ptag = [], []

    def cdma(n, i):
        pend.append(lambda: (a.I(f"s_add_u32 m0, s47, {cslot(n, i // 2) + (i % 2) * 4096}"),
                             a.I(f"s_add_u32 s49, s{36 + n}, {i * 4096}"),
                             vm.issue(f"buffer_load_dwordx4 {v(L16)}, s[52:55], s49 offen lds", ("C", n, i // 2))))
        ptag.append(("C", n, i // 2))

    def wload(g):
        def f():
            if g % 2 == 0 and g:
                a.I("s_add_u32 s45, s45, 4096")
            vm.issue(f"buffer_load_dwordx4 {v(WF + 4 * g, 4)}, {v(L16)}, s[52:55], s45 offen offset:{(g % 2) * 2048}", ("W", g))
        pend.append(f)
        ptag.append(("W", g))

    def pump(k=1):
        for _ in range(k):
            if pend:
                pend.pop(0)()
                ptag.pop(0)

    def need(tg):
        while any(x in ptag for x in tg):
            pump()

    for c in range(2):
        for n in range(3):
            cdma(n, 2 * c)
            cdma(n, 2 * c + 1)
        for g in range(8 * c, 8 * c + 8):
            wload(g)
    for g in range(16, 24):
        wload(g)
    pump(PRE3)
    srd(a, 56, 4, 5, 16 * MB, add=WS_PART)
    a.I("s_lshl2_add_u32 s60, s43, s40")
    a.I("s_lshl_b32 s60, s60, 4")
    a.I("s_add_u32 s60, s60, s16")
    a.I("s_lshl_b32 s60, s60, 12")
    for k in range(1, 4):
        a.I(f"s_add_u32 s{60 + k}, s40, {k}")
        a.I(f"s_and_b32 s{60 + k}, s{60 + k}, 3")
        a.I(f"s_lshl_b32 s{60 + k}, s{60 + k}, 14")
        a.I(f"s_add_u32 s{60 + k}, s{60 + k}, s60")

    def part_loads():
        for k in range(1, 4):
            for q in range(2):
                a.I(f"buffer_load_dwordx4 {v(WF + 16 * k + 4 * q, 4)}, {v(L16)}, s[56:59], s{60 + k} offen offset:{q * 1024} sc1")
    LA, LB_, LO = 28, 29, 30
    a.I("s_lshl_b32 s48, s18, 15")
    a.I(f"v_add_u32 {v(LA)}, s48, {v(LR)}")
    a.I(f"v_xor_b32 {v(LB_)}, 0x8000, {v(LA)}")
    a.I(f"v_add_u32 {v(LO)}, {98304}, {v(LR)}")
    st()
    AC = [68, 84, 32]
    sched = []
    for g in range(32):
        o = ((g // 8) % 2) * 16384 + (g % 8) * 1024
        sched += [(AC[0], LA, o, g), (AC[1], LB_, o, g), (AC[2], LR + 1, o, g)]
    OWN = 48
    sched += [(OWN, LO, (g // 8) * 16384 + (g % 8) * 1024, g) for g in range(32)]

    def read(i):
        lg.issue(f"ds_read_b128 {v(RING + 4 * (i % 6), 4)}, {v(sched[i][1])} offset:{sched[i][2]}", i)

    def sync(tg):
        need(tg)
        vm.wait(tg)
        a.I("s_barrier")

    def slot_calc(dst, own_expr):
        a.I(own_expr)
        a.I(f"s_and_b32 {s(dst)}, {s(dst)}, 3")
        a.I(f"s_lshl2_add_u32 {s(dst)}, s43, {s(dst)}")
        a.I(f"s_lshl2_add_u32 {s(dst)}, {s(dst)}, s40")
        a.I(f"s_lshl2_add_u32 {s(dst)}, {s(dst)}, s16")
        a.I(f"s_lshl_b32 {s(dst)}, {s(dst)}, 12")

    def give_l(A, addr, off):
        for q in range(4):
            a.I(f"ds_write_b128 {v(addr)}, {v(A + 4 * q, 4)} offset:{off + q * 1024}")

    def take_l(A, T, addr, off, so):
        for q in range(4):
            a.I(f"ds_read_b128 {v(T + 4 * q, 4)}, {v(addr)} offset:{off + q * 1024}")
        a.I("s_waitcnt lgkmcnt(0)")
        for j in range(16):
            a.I(f"v_add_f32 {v(A + j)}, {v(A + j)}, {v(T + j)}")
        if PB16:
            pack(a, T, A, 8)
            for q in range(2):
                a.I(f"buffer_store_dwordx4 {v(T + 4 * q, 4)}, {v(L16)}, s[56:59], {s(so)} offen offset:{q * 1024} sc1")
        else:
            for q in range(4):
                a.I(f"buffer_store_dwordx4 {v(A + 4 * q, 4)}, {v(L16)}, s[56:59], {s(so)} offen offset:{q * 1024} sc1")

    sync([("C", n, 0) for n in range(3)])
    st()
    for i in range(LOOK):
        read(i)
    NM = 128
    B3RM = (68, 76, 84, 92, 32, 128, 136, 152, 168, 176)
    mats = []
    for i in range(NM):
        ac, _, _, g = sched[i]
        lg.wait(i)
        if i < 96:
            need([("W", g)])
            vm.wait(("W", g))
        a.I(f"{MF} {v(ac, 16)}, {v(WF + 4 * g, 4)}, {v(RING + 4 * (i % 6), 4)}, {'0' if g == 0 else v(ac, 16)}")
        j = i + LOOK
        if j < NM:
            if j < 96 and j % 24 == 0:
                sync([("C", n, j // 24) for n in range(3)])
            elif j == 96:
                sync([("C", 3, c) for c in range(2)])
            elif j == 112:
                a.I("s_barrier")
            read(j)
        if i in (25, 49):
            c = i // 24
            a.I("s_barrier")
            for n in range(3):
                cdma(n, 2 * (c + 1))
                cdma(n, 2 * (c + 1) + 1)
            if c == 1:
                for g2 in range(24, 32):
                    wload(g2)
        if i == OWNAT:
            for k in range(8):
                cdma(3, k)
        if i == B3AT:
            n0 = len(a.items)
            b3_loads(a, 8, before=lambda: (a.I("s_cmp_lg_u32 s18, 0"), a.I(f"s_cbranch_scc1 {N}_nb3l")))
            a.items[n0:] = [x for x in a.items[n0:] if not (x[0] == "i" and x[1].text == "s_waitcnt lgkmcnt(0)")]
            a.label(f"{N}_nb3l")
        if i in (47, 95, 107):
            st()
        if i == 96 + 4:
            a.I("s_lshl_b32 s48, s18, 15")
            a.I(f"v_add_u32 {v(LA)}, s48, {v(CMB)}")
            a.I(f"v_xor_b32 {v(LB_)}, 0x8000, {v(LA)}")
            a.I(f"v_add_u32 v31, 0x10000, {v(CMB)}")
            give_l(AC[1], LB_, 0)
            a.I("s_cmp_eq_u32 s18, 0")
            a.I(f"s_cbranch_scc1 {N}_g2")
            give_l(AC[2], 31, 0)
            a.label(f"{N}_g2")
            vm.wait([("C", 3, 2), ("C", 3, 3)])
            a.I("s_add_u32 s51, s18, 1")
            slot_calc(50, "s_add_u32 s50, s40, s51")
            slot_calc(51, "s_add_u32 s51, s40, 3")
            a.I("s_waitcnt lgkmcnt(0)")
            lg.q = []
            a.I("s_barrier")
            take_l(AC[0], AC[1], LA, 0, 50)
            a.I("s_cmp_lg_u32 s18, 0")
            a.I(f"s_cbranch_scc1 {N}_t2")
            take_l(AC[2], AC[0], 31, 0, 51)
            a.label(f"{N}_t2")
            n0 = len(a.items)
            b3_body(a, 65536, 8, loaded=True, part=1, rm=B3RM)
            mats = a.items[n0:] if MATF else []
            del a.items[n0:]
        if i > 96 + 5 and mats:
            a.items.extend(mats[:9])
            del mats[:9]
        if i == SIG3:
            a.I("s_cmp_eq_u32 s18, 0")
            a.I(f"s_cbranch_scc1 {N}_nopl")
            part_loads()
            a.label(f"{N}_nopl")
        pump(2 if i < 96 else 1)

    def give(n):
        lab = a.uid(f"{N}_g")
        a.I("s_cmp_eq_u32 s18, 1")
        a.I(f"s_cbranch_scc1 {lab}")
        give_l(OWN, CMB, 49152)
        a.label(lab)
        a.I("s_waitcnt lgkmcnt(0)")

    st()
    LW = 81920
    a.I("v_mov_b32 v1, 0")
    a.I(f"v_mov_b32 v30, {LW}")
    a.I("ds_write_b32 v30, v1")
    a.I("s_nop 8")
    give(3)
    a.I("s_barrier")
    a.I("s_cmp_eq_u32 s18, 1")
    a.I(f"s_cbranch_scc1 {N}_fin")

    def meet():
        a.I(f"v_mov_b32 v30, {LW}")
        a.I("v_mov_b32 v31, 1")
        a.I("s_mov_b64 exec, 1")
        a.I("ds_add_u32 v30, v31")
        a.I("s_mov_b64 exec, -1")
        a.label(f"{N}_meet")
        a.I("ds_read_b32 v31, v30")
        a.I("s_waitcnt lgkmcnt(0)")
        a.I("v_readfirstlane_b32 s44, v31")
        a.I("s_nop 0")
        a.I("s_cmp_lt_u32 s44, 4")
        a.I(f"s_cbranch_scc1 {N}_meet")

    assert not mats
    b3_body(a, 65536, 8, loaded=True, bar=meet, part=2 if MATF else 0, rm=B3RM)
    a.I("s_endpgm")
    a.label(f"{N}_fin")
    A = OWN
    a.I("v_and_b32 v3, 31, v0")
    a.I("v_lshlrev_b32 v3, 11, v3")
    a.I("v_lshrrev_b32 v4, 5, v0")
    a.I("v_lshl_add_u32 v3, v4, 4, v3")
    a.I("s_lshl2_add_u32 s65, s41, s40")
    a.I("s_lshl_b32 s65, s65, 16")
    a.I("s_lshl_b32 s66, s42, 8")
    a.I("s_add_u32 s65, s65, s66")
    a.I("s_lshl_b32 s66, s16, 6")
    a.I("s_add_u32 s65, s65, s66")
    srd(a, 52, 8, 9, 4 * MB)
    for q in range(4):
        a.I(f"ds_read_b128 {v(WF + 4 * q, 4)}, {v(CMB)} offset:{49152 + q * 1024}")
    a.I("s_mov_b32 s44, 0")
    a.I("s_waitcnt lgkmcnt(0)")
    a.I(f"s_branch {N}_chk")
    a.label(f"{N}_again")
    part_loads()
    a.label(f"{N}_chk")
    a.I("s_waitcnt vmcnt(0)")
    regs = [WF + 16 * k + j for k in range(1, 4) for j in range(8)]
    a.I(f"v_max3_u32 v4, {v(regs[0])}, {v(regs[1])}, {v(regs[2])}")
    for j in range(3, 23, 2):
        a.I(f"v_max3_u32 v4, v4, {v(regs[j])}, {v(regs[j + 1])}")
    a.I(f"v_max_u32 v4, v4, {v(regs[23])}")
    a.I("v_cmp_eq_u32 vcc, -1, v4")
    a.I("s_add_u32 s44, s44, 1")
    a.I(f"s_cbranch_vccz {N}_got")
    a.I("s_cmp_lt_u32 s44, 0x10000")
    a.I(f"s_cbranch_scc1 {N}_again")
    a.label(f"{N}_got")
    st()
    for k in range(4):
        for j in range(16):
            if PB16 and k:
                if j & 1:
                    a.I(f"v_and_b32 v64, 0xffff0000, {v(WF + 16 * k + j // 2)}")
                else:
                    a.I(f"v_lshlrev_b32 v64, 16, {v(WF + 16 * k + j // 2)}")
                a.I(f"v_add_f32 {v(A + j)}, {v(A + j)}, v64")
            else:
                a.I(f"v_add_f32 {v(A + j)}, {v(A + j)}, {v(WF + 16 * k + j)}")
    pack(a, 8, A, 8)
    a.I("s_nop 1")
    for h in range(2):
        a.I(f"v_permlane32_swap_b32 {v(8 + 4 * h)}, {v(10 + 4 * h)}")
        a.I(f"v_permlane32_swap_b32 {v(9 + 4 * h)}, {v(11 + 4 * h)}")
        a.I(f"buffer_store_dwordx4 {v(8 + 4 * h, 4)}, v3, s[52:55], s65 offen offset:{32 * h}{os.environ.get('OPA', ' nt')}")
    st.dump(17, 4, tmpv=16)
    kend(a, N)
    return a, N, (256, 512, 163840)


def gen_l3_s4():
    a = Asm()
    N = "l3_kernel"
    kstart(a, N, 256)
    a.I("s_load_dwordx2 s[4:5], s[0:1], 88")
    a.I("s_load_dwordx2 s[8:9], s[0:1], 72")
    a.I("v_lshrrev_b32 v1, 6, v0")
    a.I("v_and_b32 v0, 63, v0")
    a.I("s_nop 0")
    a.I("v_readfirstlane_b32 s17, v1")
    st = Stamper(a, "l3")
    L16, RA, RB_, ACC, FR = 128, 129, 130, 132, 164
    PB16 = int(os.environ.get("PB16", "0"))
    NST, STG = 4, 4
    a.I("s_bfe_u32 s40, s2, 0x20001")
    a.I("s_and_b32 s43, s2, 1")
    a.I("s_lshl_b32 s43, s43, 5")
    a.I("s_lshr_b32 s44, s2, 3")
    a.I("s_add_u32 s43, s43, s44")
    a.I("s_lshr_b32 s41, s43, 2")
    a.I("s_and_b32 s42, s43, 3")
    a.I(f"v_lshlrev_b32 {v(L16)}, 4, v0")
    a.I("s_lshl_b32 s45, s41, 2")
    a.I("s_add_u32 s45, s45, s17")
    a.I("s_lshl_b32 s45, s45, 18")
    a.I("s_lshl_b32 s46, s40, 16")
    a.I("s_add_u32 s45, s45, s46")
    a.I(f"s_add_u32 s45, s45, {hex(WS_CTX)}")
    a.I("s_lshl_b32 s46, s42, 1")
    a.I("s_bfe_u32 s47, s17, 0x10001")
    a.I("s_add_u32 s46, s46, s47")
    a.I("s_lshl_b32 s46, s46, 19")
    a.I("s_lshl_b32 s47, s40, 17")
    a.I("s_add_u32 s46, s46, s47")
    a.I("s_and_b32 s47, s17, 1")
    a.I("s_lshl_b32 s47, s47, 10")
    a.I("s_add_u32 s46, s46, s47")
    a.I(f"s_add_u32 s46, s46, {hex(WS_WO)}")
    a.I("s_cmp_lt_u32 s17, 4")
    a.I("s_cselect_b32 s45, s45, s46")
    a.I("s_movk_i32 s46, 0x800")
    a.I("s_cselect_b32 s46, 1024, s46")
    a.I("s_lshl_b32 s47, s17, 10")
    a.I("s_and_b32 s48, s17, 1")
    a.I("s_lshl_b32 s48, s48, 11")
    a.I(f"v_add_u32 {v(RA)}, s48, {v(L16)}")
    a.I("s_lshr_b32 s48, s17, 1")
    a.I("s_lshl_b32 s48, s48, 10")
    a.I("s_add_u32 s48, s48, 4096")
    a.I(f"v_add_u32 {v(RB_)}, s48, {v(L16)}")
    a.I(f"v_add_u32 {v(RB_ + 1)}, 0x10000, {v(RA)}")
    a.I(f"v_add_u32 v127, 0x10000, {v(RB_)}") if False else None
    a.I("s_waitcnt lgkmcnt(0)")
    srd(a, 52, 4, 5, 64 * MB)
    st()
    vm, lg = VM(a), LG(a)

    def dma(g, emit=True):
        L = [lambda: a.I(f"s_add_u32 m0, s47, {(g % (NST * STG)) * 8192}"),
             lambda: a.I("s_add_u32 s49, s45, s46") if False else a.I("s_nop 0"),
             lambda: vm.issue(f"buffer_load_dwordx4 {v(L16)}, s[52:55], s45 offen lds", g),
             lambda: a.I("s_add_u32 s45, s45, s46")]
        return L

    def first_loads():
        for g in range((NST - 1) * STG):
            for f in dma(g):
                f()
        return (NST - 1) * STG

    first_loads()
    a.I("s_and_b32 s18, s17, 1")
    a.I("s_lshr_b32 s19, s40, 1")
    a.I("s_cmp_eq_u32 s18, s19")
    a.I("s_cselect_b32 s18, 1, 0")
    a.I("s_lshr_b32 s16, s17, 1")
    a.I("s_lshl_b32 s19, s16, 6")
    a.I("v_add_u32 v2, s19, v0")
    a.I("s_cmp_eq_u32 s18, 1")
    a.I(f"s_cbranch_scc1 {N}_nob3l")
    b3_loads(a, 8)
    a.label(f"{N}_nob3l")
    st()
    RA2, RB2 = RB_ + 1, 127
    a.I(f"v_add_u32 {v(RB2)}, 0x10000, {v(RB_)}")
    NG = 64

    def reads(g):
        sl = g % (NST * STG)
        ra, rb = (RA, RB_) if sl < 8 else (RA2, RB2)
        off = (sl % 8) * 8192
        d = FR + 12 * (g % 3)
        lg.issue(f"ds_read_b128 {v(d, 4)}, {v(rb)} offset:{off}", g)
        lg.issue(f"ds_read_b128 {v(d + 4, 4)}, {v(ra)} offset:{off}", g)
        lg.issue(f"ds_read_b128 {v(d + 8, 4)}, {v(ra)} offset:{off + 1024}", g)

    pend = []

    def sync(stg):
        vm.wait(list(range(stg * STG, (stg + 1) * STG)))
        a.I("s_barrier")
        nxt = stg + NST - 2
        if stg >= 1 and (nxt + 1) * STG <= NG and nxt >= NST - 1:
            for g in range(nxt * STG, (nxt + 1) * STG):
                pend.extend(dma(g))

    sync(0)
    st()
    reads(0)
    reads(1)
    for g in range(NG):
        j = g + 2
        if j < NG and j % STG == 0:
            while pend:
                pend.pop(0)()
            sync(j // STG)
        lg.wait(g)
        d = FR + 12 * (g % 3)
        for i in range(2):
            acc = v(ACC + 16 * i, 16)
            a.I(f"{MF} {acc}, {v(d, 4)}, {v(d + 4 + 4 * i, 4)}, {'0' if g == 0 else acc}")
            if i == 0 and j < NG:
                reads(j)
            for _ in range(2 + i):
                if pend:
                    pend.pop(0)()
    st()
    srd(a, 56, 4, 5, 16 * MB, add=WS_PART)
    a.I("s_lshr_b32 s48, s17, 1")
    a.I("s_and_b32 s49, s17, 1")
    a.I("s_lshl_b32 s50, s43, 2")
    a.I("s_lshl1_add_u32 s50, s49, s50")
    a.I("s_lshl_b32 s50, s50, 2")
    a.I("s_add_u32 s50, s50, s40")
    a.I("s_lshl_b32 s50, s50, 2")
    a.I("s_add_u32 s50, s50, s48")
    a.I("s_lshl_b32 s50, s50, 12")
    a.I("s_add_u32 s51, s50, 0x10000")
    a.I("s_lshl_b32 s49, s49, 1")
    for i in range(2):
        lab = f"{N}_keep{i}"
        a.I("s_cmp_eq_u32 s49, s40")
        a.I(f"s_cbranch_scc1 {lab}")
        if PB16:
            pack(a, FR + 8 * i, ACC + 16 * i, 8)
            for q in range(2):
                a.I(f"buffer_store_dwordx4 {v(FR + 8 * i + 4 * q, 4)}, {v(L16)}, s[56:59], s{50 + i} offen offset:{q * 1024} sc1")
        else:
            for q in range(4):
                a.I(f"buffer_store_dwordx4 {v(ACC + 16 * i + 4 * q, 4)}, {v(L16)}, s[56:59], s{50 + i} offen offset:{q * 1024} sc1")
        a.label(lab)
        a.I("s_add_u32 s49, s49, 1")
    srd(a, 60, 4, 5, 64 * 128, add=WS_FLAG)
    a.I("s_lshl_b32 s64, s43, 7")
    a.I("s_lshl2_add_u32 s67, s40, s64")

    def signal():
        a.I("v_mov_b32 v1, 1")
        a.I("s_waitcnt vmcnt(0)")
        a.I("s_barrier")
        a.I("s_cmp_lg_u32 s17, 7")
        lab = a.uid(f"{N}_nosig")
        a.I(f"s_cbranch_scc1 {lab}")
        a.I("s_mov_b64 exec, 1")
        a.I("buffer_store_dword v1, off, s[60:63], s67 sc1")
        a.I("s_mov_b64 exec, -1")
        a.label(lab)

    a.I("s_cmp_eq_u32 s18, 1")
    a.I(f"s_cbranch_scc1 {N}_nob3")
    b3_body(a, 131072, 8, loaded=True, mid=signal)
    a.I("s_endpgm")
    a.label(f"{N}_nob3")
    a.I("s_bitcmp0_b32 s40, 0")
    a.I(f"s_cbranch_scc1 {N}_own0")
    for j in range(16):
        a.I(f"v_mov_b32 {v(ACC + j)}, {v(ACC + 16 + j)}")
    a.label(f"{N}_own0")
    a.I("s_lshl_b32 s50, s43, 2")
    a.I("s_add_u32 s50, s50, s40")
    a.I("s_lshl_b32 s50, s50, 4")
    a.I("s_add_u32 s50, s50, s48")
    a.I("s_lshl_b32 s50, s50, 12")
    a.I("v_and_b32 v3, 31, v0")
    a.I("v_lshlrev_b32 v3, 11, v3")
    a.I("v_lshrrev_b32 v4, 5, v0")
    a.I("v_lshl_add_u32 v3, v4, 4, v3")
    a.I("s_lshl_b32 s65, s41, 2")
    a.I("s_add_u32 s65, s65, s40")
    a.I("s_lshl_b32 s65, s65, 16")
    a.I("s_lshl_b32 s66, s42, 8")
    a.I("s_add_u32 s65, s65, s66")
    a.I("s_lshl_b32 s66, s48, 6")
    a.I("s_add_u32 s65, s65, s66")
    srd(a, 52, 8, 9, 4 * MB)
    signal()
    a.I("s_barrier")
    st()
    a.label(f"{N}_spin")
    a.I("buffer_load_dwordx4 v[4:7], off, s[60:63], s64 sc1")
    a.I("s_waitcnt vmcnt(0)")
    a.I("v_and_b32 v4, v4, v5")
    a.I("v_and_b32 v6, v6, v7")
    a.I("v_and_b32 v4, v4, v6")
    a.I("s_nop 0")
    a.I("v_readfirstlane_b32 s66, v4")
    a.I("s_nop 0")
    a.I("s_cmp_lg_u32 s66, 1")
    a.I(f"s_cbranch_scc1 {N}_spin")
    st()
    for k in range(1, 4):
        a.I(f"s_add_u32 s66, s40, {k}")
        a.I("s_and_b32 s66, s66, 3")
        a.I("s_lshl_b32 s66, s66, 14")
        a.I("s_add_u32 s66, s66, s50")
        for q in range(2 if PB16 else 4):
            a.I(f"buffer_load_dwordx4 {v(16 * k + 4 * q, 4)}, {v(L16)}, s[56:59], s66 offen offset:{q * 1024} sc1")
    for k in range(1, 4):
        a.I(f"s_waitcnt vmcnt({(2 if PB16 else 4) * (3 - k)})")
        for j in range(16):
            if PB16:
                if j & 1:
                    a.I(f"v_and_b32 v64, 0xffff0000, {v(16 * k + j // 2)}")
                else:
                    a.I(f"v_lshlrev_b32 v64, 16, {v(16 * k + j // 2)}")
                a.I(f"v_add_f32 {v(ACC + j)}, {v(ACC + j)}, v64")
            else:
                a.I(f"v_add_f32 {v(ACC + j)}, {v(ACC + j)}, {v(16 * k + j)}")
    pack(a, 8, ACC, 8)
    a.I("s_nop 1")
    for h in range(2):
        a.I(f"v_permlane32_swap_b32 {v(8 + 4 * h)}, {v(10 + 4 * h)}")
        a.I(f"v_permlane32_swap_b32 {v(9 + 4 * h)}, {v(11 + 4 * h)}")
        a.I(f"buffer_store_dwordx4 {v(8 + 4 * h, 4)}, v3, s[52:55], s65 offen offset:{32 * h}{os.environ.get('OPA', ' nt')}")
    st.dump(17, 4, tmpv=16)
    kend(a, N)
    return a, N, (256, 512, 131072 + 8192 + 64)


def gen_l3_old():
    a = Asm()
    N = "l3_kernel"
    kstart(a, N, 256)
    a.I("s_load_dwordx2 s[4:5], s[0:1], 88")
    a.I("s_load_dwordx2 s[6:7], s[0:1], 40")
    a.I("s_load_dwordx2 s[8:9], s[0:1], 72")
    a.I("v_lshrrev_b32 v1, 6, v0")
    a.I("v_and_b32 v2, 255, v0")
    a.I("v_and_b32 v0, 63, v0")
    a.I("v_readfirstlane_b32 s16, v1")
    a.I("s_nop 0")
    a.I("s_cmp_ge_u32 s16, 4")
    a.I(f"s_cbranch_scc1 {N}_b3")
    st = Stamper(a, "l3")
    OB = int(os.environ.get('OB', '3'))
    ACC = (oproj_body3 if OB == 3 else oproj_body2)(a, N, st, bar_at=8)
    a.I("s_barrier")
    oproj_finish(a, ACC, 32768 if OB == 3 else 16384)
    st.dump(16, 4, tmpv=8)
    a.I("s_endpgm")
    a.label(f"{N}_b3")
    a.I("s_and_b32 s16, s16, 3")
    b3_body(a, 131072, 8)
    kend(a, N)
    return a, N, (256, 512, 131072 + 8192 + 64)


KERNELS = [gen_l1, lambda: gen_attn(not os.environ.get('NOB2')), {'v3': gen_l3v3, 'new': gen_l3, 's4': gen_l3_s4, 'old': gen_l3_old}[os.environ.get('L3V', 'v3')]]

if __name__ == "__main__":
    p = sys.argv[1] if len(sys.argv) > 1 else os.path.join(os.path.dirname(os.path.abspath(__file__)), "..",
                                                           "cdna_kernels", NAME + ".s")
    sys.exit(1 if build(KERNELS, p) else 0)
```

```python
import sys, os, math, struct
sys.path.insert(0, os.path.dirname(os.path.abspath(__file__)))
from asmlib import Asm, VM, LG, v, s, ag

NAME = "concat_heads__compressed_kv_cla__spectral_gfnet__prompt"
MB = 1 << 20
WS_K, WS_V, WS_CTX, WS_Y, WS_WF, WS_Z, WS_Q = 0, 16 * MB, 32 * MB, 48 * MB, 52 * MB, 56 * MB, 64 * MB
WS_WO = 60 * MB
if os.environ.get('ALIAS'):
    WS_Q = WS_CTX
WS_PART = 64 * MB
WS_FLAG = 56 * MB + 2560 * 1024
YSTR = 8320
KA = dict(x=0, ckv=8, wq=16, wuk=24, wuv=32, wo=40, bx=48, wr=56, wi=64, out=72, dbg=80, ws=88)
MF = "v_mfma_f32_32x32x16_bf16"
SP = os.environ.get("SP", " sc1")


def f32(x):
    return "0x%08x" % struct.unpack("<I", struct.pack("<f", x))[0]


def srd(a, d, lo, hi, size, add=0):
    if add:
        a.I(f"s_add_u32 {s(d)}, {s(lo)}, {add if isinstance(add, str) else hex(add)}")
        a.I(f"s_addc_u32 {s(d + 1)}, {s(hi)}, 0")
    else:
        a.I(f"s_mov_b32 {s(d)}, {s(lo)}")
        a.I(f"s_mov_b32 {s(d + 1)}, {s(hi)}")
    a.I(f"s_mov_b32 {s(d + 2)}, {size if isinstance(size, str) else hex(size)}")
    a.I(f"s_mov_b32 {s(d + 3)}, 0x20000")


STAMPS = int(os.environ.get("STAMPS", "0"))
ST0 = 72


class Stamper:
    def __init__(self, a, name=""):
        self.a, self.n = a, 0
        self.on = STAMPS and os.environ.get("STAMPK", name) == name

    def __call__(self):
        if self.on and self.n < 11:
            if self.n == 0:
                self.a.I("s_memrealtime s[68:69]")
            self.a.I(f"s_memtime {s(ST0 + 2 * self.n, 2)}")
            self.n += 1

    def dump(self, wave_s, wslo, tmpv=8):
        if not self.on:
            return
        a = self.a
        a.I("s_waitcnt vmcnt(0) lgkmcnt(0)")
        a.I(f"s_memtime {s(ST0 + 2 * self.n, 2)}")
        a.I("s_memrealtime s[70:71]")
        self.n += 1
        srd(a, 96, wslo, wslo + 1, 1 * MB, add=128 * MB)
        a.I("s_lshl_b32 s100, s2, 3")
        a.I(f"s_add_u32 s100, s100, {s(wave_s)}")
        a.I("s_lshl_b32 s100, s100, 8")
        a.I("s_waitcnt lgkmcnt(0)")
        a.I(f"v_mov_b32 {v(tmpv + 1)}, 0")
        for i in range(self.n):
            a.I(f"v_mov_b32 {v(tmpv)}, {s(ST0 + 2 * i)}")
            a.I(f"buffer_store_dword {v(tmpv)}, {v(tmpv + 1)}, s[96:99], s100 offen offset:{4 * i}")
        for i, r in ((62, 68), (63, 70), (61, ST0 + 2 * (self.n - 1))):
            a.I(f"v_mov_b32 {v(tmpv)}, {s(r)}")
            a.I(f"buffer_store_dword {v(tmpv)}, {v(tmpv + 1)}, s[96:99], s100 offen offset:{4 * i}")
        a.I("s_waitcnt vmcnt(0)")


DBGT = int(os.environ.get("DBGT", "0"))
KIDX = [0, 0]


def dbg_stamp(a, end):
    k = KIDX[0]
    lab = a.uid("dbgskip%d_%d" % (k, KIDX[1]))
    KIDX[1] += 1
    if not end:
        a.I("v_readfirstlane_b32 s89, v0")
        a.I("s_nop 1")
        a.I("s_lshr_b32 s89, s89, 6")
        a.I("s_or_b32 s89, s89, s2")
    a.I("s_cmp_lg_u32 s89, 0")
    a.I(f"s_cbranch_scc1 {lab}")
    a.I("s_load_dwordx4 s[92:95], s[90:91], 80")
    a.I("s_waitcnt vmcnt(0) lgkmcnt(0)")
    a.I("s_memrealtime s[86:87]")
    a.I(f"s_add_u32 s96, s94, {hex(200 * MB)}")
    a.I("s_addc_u32 s97, s95, 0")
    a.I("s_mov_b32 s98, 256")
    a.I("s_mov_b32 s99, 0x20000")
    a.I("s_waitcnt lgkmcnt(0)")
    a.I("v_mov_b32 v254, s86")
    a.I(f"buffer_store_dword v254, off, s[96:99], 0 offset:{8 * k + 4 * end} sc0 sc1")
    a.I("s_waitcnt vmcnt(0)")
    if end and k == DBGT - 1:
        a.I("v_lshlrev_b32 v253, 2, v0")
        a.I("buffer_load_dword v254, v253, s[96:99], 0 offen sc0 sc1")
        a.I("s_mov_b32 s96, s92")
        a.I("s_mov_b32 s97, s93")
        a.I("s_waitcnt vmcnt(0)")
        a.I("buffer_store_dword v254, v253, s[96:99], 0 offen")
        a.I(f"s_sub_u32 s96, s92, {k * 512}")
        a.I("s_subb_u32 s97, s93, 0")
        a.I("s_nop 0")
        a.I("buffer_store_dword v254, v253, s[96:99], 0 offen")
    a.label(lab)


def code_touch(a, kname, wave_s, sr, vt, nw_log=3, kd=True):
    if os.environ.get("NOCP"):
        return
    a.I(f"s_getpc_b64 {s(sr, 2)}")
    a.I(f"s_add_u32 {s(sr)}, {s(sr)}, cs_{kname}@rel32@lo+4")
    a.I(f"s_addc_u32 {s(sr + 1)}, {s(sr + 1)}, cs_{kname}@rel32@hi+12")
    a.I(f"s_mov_b32 {s(sr + 2)}, {kname}_end - {kname}")
    a.I(f"s_mov_b32 {s(sr + 3)}, 0x20000")
    a.I(f"s_lshr_b32 {s(sr + 4)}, s2, 3")
    a.I(f"s_lshl_b32 {s(sr + 4)}, {s(sr + 4)}, {nw_log}")
    a.I(f"s_add_u32 {s(sr + 4)}, {s(sr + 4)}, {s(wave_s)}")
    a.I(f"s_lshl_b32 {s(sr + 4)}, {s(sr + 4)}, {12 - nw_log}")
    a.I(f"v_lshlrev_b32 {v(vt)}, 7, v0")
    a.I(f"s_mov_b64 exec, {(1 << (32 >> nw_log)) - 1}")
    a.I(f"buffer_load_dword {v(vt + 1)}, {v(vt)}, {s(sr, 4)}, {s(sr + 4)} offen")
    if kd and os.environ.get("KD"):
        a.I(f"s_getpc_b64 {s(sr, 2)}")
        a.I(f"s_add_u32 {s(sr)}, {s(sr)}, kdl_{kname}@rel32@lo+4")
        a.I(f"s_addc_u32 {s(sr + 1)}, {s(sr + 1)}, kdl_{kname}@rel32@hi+12")
        a.I(f"s_mov_b32 {s(sr + 2)}, 64")
        a.I("s_mov_b64 exec, 1")
        a.I(f"buffer_load_dword {v(vt + 1)}, off, {s(sr, 4)}, 0")
    a.I("s_mov_b64 exec, -1")


def kstart(a, name, nwg):
    a.raw(".text")
    a.raw(f".globl {name}")
    a.raw(".p2align 8")
    a.raw(f".type {name},@function")
    a.label(name)
    a.label("cs_" + name)
    a.I(f"s_cmp_ge_u32 s2, {nwg}")
    a.I(f"s_cbranch_scc1 {name}_end")
    if DBGT:
        a.I("s_mov_b64 s[90:91], s[0:1]")
        dbg_stamp(a, 0)


def kend(a, name):
    a.label(name + "_end")
    a.I("s_endpgm")


def kdesc(name, nv, ns, na=0):
    nv = (nv + 7) // 8 * 8
    acc_off = nv
    nv = nv + (na + 7) // 8 * 8
    return f""".section .rodata,"a"
.p2align 6
kdl_{name}:
.amdhsa_kernel {name}
  .amdhsa_next_free_vgpr {nv}
  .amdhsa_next_free_sgpr {max(ns, 16)}
  .amdhsa_accum_offset {acc_off}
  .amdhsa_group_segment_fixed_size 0
  .amdhsa_kernarg_size 96
  .amdhsa_user_sgpr_count 2
  .amdhsa_user_sgpr_kernarg_segment_ptr 1
  .amdhsa_system_sgpr_workgroup_id_x 1
  .amdhsa_float_denorm_mode_32 3
.end_amdhsa_kernel
"""


QSCALE = math.log2(math.e) / math.sqrt(128.0)


def gen_qkv():
    a = Asm()
    N = "qkvproj_kernel"
    kstart(a, N, 256)
    a.I("s_load_dwordx4 s[4:7], s[0:1], 0")
    a.I("s_load_dwordx4 s[8:11], s[0:1], 16")
    a.I("s_load_dwordx2 s[12:13], s[0:1], 32")
    a.I("s_load_dwordx2 s[14:15], s[0:1], 88")
    a.I("v_lshrrev_b32 v1, 6, v0")
    a.I("v_and_b32 v0, 63, v0")
    a.I("s_and_b32 s17, s2, 7")
    a.I("v_readfirstlane_b32 s16, v1")
    a.I("s_lshr_b32 s18, s2, 3")
    a.I("s_and_b32 s19, s18, 7")
    a.I("s_lshr_b32 s18, s18, 3")
    a.I("s_lshl_b32 s40, s17, 2")
    a.I("s_add_u32 s18, s18, s40")
    a.I("s_mov_b32 s41, 0")
    a.I("s_mul_i32 s42, s18, 6")
    a.I("s_cmp_ge_u32 s18, 11")
    a.I("s_cselect_b32 s41, 1, s41")
    a.I("s_cselect_b32 s40, 64, 0")
    a.I("s_cmp_ge_u32 s18, 21")
    a.I("s_cselect_b32 s41, 2, s41")
    a.I("s_cselect_b32 s40, 126, s40")
    a.I("s_sub_u32 s42, s42, s40")
    a.I("s_lshl_b32 s44, s19, 3")
    a.I("s_add_u32 s44, s44, s16")
    hl, b4, t1, t2 = 9, 10, 11, 12
    a.I(f"v_lshrrev_b32 {v(hl)}, 5, v0")
    a.I(f"v_bfe_u32 {v(b4)}, v0, 4, 1")
    a.I(f"v_lshrrev_b32 {v(t1)}, 3, v0")
    a.I(f"v_lshlrev_b32 {v(t1)}, 10, {v(t1)}")
    a.I("s_lshl_b32 s45, s44, 15")
    a.I(f"v_add_u32 {v(t1)}, s45, {v(t1)}")
    a.I(f"v_lshrrev_b32 {v(t2)}, 4, v0")
    a.I("v_and_b32 v13, 7, v0")
    a.I(f"v_xor_b32 {v(t2)}, {v(t2)}, v13")
    a.I(f"v_lshl_add_u32 v52, {v(t2)}, 4, {v(t1)}")
    a.I("v_xor_b32 v53, 64, v52")
    a.I(f"v_add_u32 v53, {8192 - 1024}, v53")
    a.I(f"v_add_u32 v54, {2 * (8192 - 1024)}, v52")
    a.I(f"v_add_u32 v55, {2 * (8192 - 1024)}, v53")
    a.I("v_and_b32 v13, 31, v0")
    a.I(f"v_bfe_u32 {v(t2)}, v0, 1, 3")
    a.I(f"v_xor_b32 {v(t2)}, {v(t2)}, {v(hl)}")
    a.I(f"v_lshlrev_b32 {v(t2)}, 4, {v(t2)}")
    a.I(f"v_lshl_add_u32 {v(t2)}, v13, 7, {v(t2)}")
    a.I("s_mul_i32 s46, s16, 12288")
    for t in range(4):
        a.I(f"v_xor_b32 {v(56 + t)}, {32 * t}, {v(t2)}")
    for t in range(4):
        a.I(f"v_add_u32 {v(56 + t)}, s46, {v(56 + t)}")
    a.I("v_lshrrev_b32 v2, 3, v0")
    a.I("v_lshlrev_b32 v2, 13, v2")
    a.I(f"v_lshlrev_b32 {v(t1)}, 2, {v(b4)}")
    a.I(f"v_and_b32 {v(t2)}, 7, v0")
    a.I(f"v_xor_b32 {v(t1)}, {v(t1)}, {v(t2)}")
    a.I(f"v_lshl_add_u32 v2, {v(t1)}, 4, v2")
    a.I("s_lshl_b32 s45, s16, 17")
    a.I("v_add_u32 v2, s45, v2")
    a.I(f"v_add_u32 v3, {65536 - 1024}, v2")
    a.I(f"v_bfe_u32 {v(t1)}, v0, 2, 2")
    a.I(f"v_lshl_add_u32 {v(t2)}, {v(hl)}, 3, {v(t1)}")
    a.I(f"v_lshlrev_b32 v4, 7, {v(t2)}")
    a.I(f"v_lshl_add_u32 v4, {v(b4)}, 5, v4")
    a.I(f"v_and_b32 {v(t2)}, 3, v0")
    a.I(f"v_lshl_add_u32 v4, {v(t2)}, 3, v4")
    a.I(f"v_bfe_u32 {v(t2)}, v0, 3, 1")
    a.I(f"v_lshl_add_u32 v4, {v(t2)}, 6, v4")
    a.I("v_xor_b32 v5, 64, v4")
    a.I("v_add_u32 v6, 0x10000, v4")
    a.I("v_add_u32 v7, 0x10000, v5")
    a.I("v_add_u32 v50, 0x20000, v4")
    a.I("v_add_u32 v51, 0x20000, v5")
    a.I("v_lshlrev_b32 v48, 4, v0")
    a.I("s_lshl_b32 s47, s16, 11")
    a.I("s_lshl_b32 s48, s42, 7")
    a.I("s_lshl_b32 s49, s44, 13")
    a.I("s_lshl_b32 s50, s42, 18")
    a.I("s_add_u32 s50, s50, s49")
    a.I("s_waitcnt lgkmcnt(0)")
    a.I("s_cmp_eq_u32 s41, 2")
    a.I("s_cselect_b32 s20, s4, s6")
    a.I("s_cselect_b32 s21, s5, s7")
    a.I("s_cselect_b32 s24, s8, s10")
    a.I("s_cselect_b32 s25, s9, s11")
    a.I(f"s_cselect_b32 s51, {hex(WS_Q)}, 0")
    a.I(f"s_cselect_b32 s52, {f32(QSCALE)}, 1.0")
    a.I(f"s_mov_b32 s22, {hex(2 * MB)}")
    a.I("s_mov_b32 s23, 0x20000")
    a.I(f"s_mov_b32 s26, {hex(4 * MB)}")
    a.I("s_mov_b32 s27, 0x20000")
    srd(a, 28, 14, 15, 16 * MB, add="s51")
    srd(a, 32, 12, 13, 4 * MB)
    srd(a, 36, 14, 15, 16 * MB, add=WS_V)
    srd(a, 56, 6, 7, 2 * MB)
    a.I("s_cmp_eq_u32 s18, 31")
    a.I(f"s_cbranch_scc1 {N}_D")
    a.I("s_cmp_eq_u32 s41, 1")
    a.I(f"s_cbranch_scc1 {N}_B")
    a.I("s_cmp_eq_u32 s18, 10")
    a.I(f"s_cbranch_scc1 {N}_C")

    AF, ACC, RING, PK = 64, 192, 8, 32
    LOOK = 6

    def body(passes, tag):
        vm, lg = VM(a), LG(a)
        st = Stamper(a, "qkv")
        st()
        NP = len(passes)
        NC = 4 * NP
        NM = 64 * NP
        restage = tag == "D"
        blk = {}
        free = [6, 7, 8, 9]
        nxt = [0]

        def dmaW():
            c = nxt[0]
            if c >= NC or not free:
                return False
            b = free.pop(0)
            blk[c] = b
            nxt[0] += 1
            pp, kc = divmod(c, 4)
            form, su, di = passes[pp]
            a.I(f"s_add_u32 m0, s47, {hex(b * 16384)}")
            if su is not None:
                a.I(f"s_mov_b32 s45, {hex((kc << 20) + su * 128)}")
            else:
                a.I(f"s_add_u32 s45, s48, {hex((kc << 20) + di * 128)}")
            sr = "s[32:35]" if form == "V" else "s[24:27]"
            vm.issue(f"buffer_load_dwordx4 v2, {sr}, s45 offen lds", ("W", c))
            vm.issue(f"buffer_load_dwordx4 v3, {sr}, s45 offen offset:1024 lds", ("W", c))
            return True

        def dmaA(j):
            sr = "s[56:59]" if (restage and j < 8) else "s[20:23]"
            a.I(f"s_add_u32 m0, s46, {hex((j % 3) * 4096)}")
            a.I(f"s_mov_b32 s45, {(j % 8) * 128}")
            for i in range(4):
                vm.issue(f"buffer_load_dwordx4 {v(52 + i)}, {sr}, s45 offen offset:{i * 1024} lds", ("A", j))

        def readA(j):
            vm.wait(("A", j))
            for t in range(4):
                lg.issue(f"ds_read_b128 {v(AF + 16 * (j % 8) + 4 * t, 4)}, {v(56 + t)} offset:{(j % 3) * 4096}", ("A", j))

        dmaW(); dmaA(0); dmaA(1); dmaW(); dmaA(2); dmaW(); dmaW()

        def reads(i):
            c, r = divmod(i, 16)
            t, cb = divmod(r, 2)
            b = blk[c]
            base = [4, 6, 50][b // 4] + cb
            off = (b % 4) * 16384 + t * 2048
            d = RING + 4 * (i % LOOK)
            lg.issue(f"ds_read_b64_tr_b16 {v(d, 2)}, {v(base)} offset:{off}", ("W", i))
            lg.issue(f"ds_read_b64_tr_b16 {v(d + 2, 2)}, {v(base)} offset:{off + 512}", ("W", i))

        def sync(c):
            vm.wait(("W", c))
            a.I("s_barrier")
            if c >= 2:
                free.append(blk[c - 2])
            if c == (10 if restage else 5):
                free.extend([0, 1, 2, 3, 4, 5])
            n = 0
            while n < 2 and dmaW():
                n += 1

        def epi(pp):
            out = []
            form, su, di = passes[pp]
            acc = ACC + 32 * (pp & 1)
            so = 54 + (pp & 1)
            if su is not None:
                out.append(lambda: a.I(f"s_add_u32 s{so}, s49, {hex((su >> 1) * 512 * 1024 + (su & 1) * 4096)}"))
            else:
                out.append(lambda: a.I(f"s_add_u32 s{so}, s50, {hex((di >> 1) * 512 * 1024 + (di & 1) * 4096)}"))
            sr = "s[36:39]" if form == "V" else "s[28:31]"
            for cb in range(2):
                for h in range(2):
                    q = 2 * cb + h
                    for i in range(4):
                        src = acc + 16 * cb + 8 * h + 2 * i
                        if form == "K" and tag in "AD":
                            out.append(lambda src=src: a.I(f"v_mul_f32 {v(src)}, s52, {v(src)}"))
                            out.append(lambda src=src: a.I(f"v_mul_f32 {v(src + 1)}, s52, {v(src + 1)}"))
                        out.append(lambda src=src, q=q, i=i: a.I(
                            f"v_cvt_pk_bf16_f32 {v(PK + 4 * q + i)}, {v(src)}, {v(src + 1)}"))
                    out.append(lambda q=q: vm.issue(
                        f"buffer_store_dwordx4 {v(PK + 4 * q, 4)}, v48, {sr}, s{so} offen offset:{q * 1024}{SP}", ("S", pp)))
            return out

        st()
        readA(0)
        sync(0)
        st()
        for i in range(LOOK - 2):
            reads(i)
        lg.wait(("A", 0))
        for i in range(LOOK - 2, LOOK):
            reads(i)
        pend = []
        for i in range(NM):
            c, r = divmod(i, 16)
            t, cb = divmod(r, 2)
            pp, kc = divmod(c, 4)
            k = 8 * kc + t
            if i % 2 == 0:
                lg.wait([("W", i), ("W", i + 1), ("A", i // 8)])
            if pp == 0 and i % 8 == 0 and i // 8 + 3 < (11 if restage else 8):
                dmaA(i // 8 + 3)
            if restage and 72 < i <= 128 + 8 and i % 8 == 4:
                jj = 8 + (i - 76) // 8
                lg.wait(("A", jj))
                if jj + 3 < 16:
                    dmaA(jj + 3)
            acc = v(ACC + 32 * (pp & 1) + 16 * cb, 16)
            wf = v(RING + 4 * (i % LOOK), 4)
            af = v(AF + 4 * k, 4)
            cin = "0" if k == 0 else acc
            if passes[pp][0] == "V":
                a.I(f"{MF} {acc}, {af}, {wf}, {cin}")
            else:
                a.I(f"{MF} {acc}, {wf}, {af}, {cin}")
            j = i + LOOK
            if j < NM:
                if j % 16 == 0:
                    sync(j // 16)
                if j < 64 and j % 8 == 0:
                    readA(j // 8)
                reads(j)
            if restage and 64 <= i < 128 and i % 8 == 7:
                readA(8 + (i - 64) // 8)
            if i % 64 == 63:
                st()
            if i % 64 == 6 and pp >= 1:
                pend = epi(pp - 1)
            if pend:
                pend.pop(0)()
        a.I("s_nop 11")
        for f in epi(NP - 1):
            f()
        st.dump(16, 14)
        a.I("s_endpgm")

    body([("K", None, i) for i in range(6)], "A")
    a.label(N + "_B")
    body([("V", None, i) for i in range(6)], "B")
    a.label(N + "_C")
    body([("K", None, i) for i in range(4)] + [("V", 0, 0), ("V", 1, 0)], "C")
    a.label(N + "_D")
    body([("V", 62, 0), ("V", 63, 0)] + [("K", None, i) for i in range(4)], "D")
    kend(a, N)
    return a, N, (256, 512, 163840)


def gen_attn(withb2=False):
    b2tail = withb2 and os.environ.get("B2MODE", "start") == "tail"
    if b2tail:
        withb2 = False
    LT = int(os.environ.get("LT", "3"))
    a = Asm()
    N = "attn_kernel"
    O, Q, S, P, NEGM, RING = 64, 128, [160, 176], [192, 200], 208, 224
    L16, VKA, VVA, VL, VLS, E, VDA, VDB, QREL, T0, T1, T2, NINF = 1, 2, 3, 4, 5, 6, 10, 11, 12, 13, 14, 15, 48
    PK = 16
    EE = 50
    sW, sH, sP, sN, sC, sPH, sTHR, sBAR, sKO, sKM, sVM, sQS = 16, 17, 18, 19, 20, 21, 40, 41, 42, 43, 44, 45
    kstart(a, N, 256)
    a.I("s_load_dwordx2 s[4:5], s[0:1], 88")
    a.I("s_load_dwordx2 s[14:15], s[0:1], 40")
    a.I("v_lshrrev_b32 v1, 6, v0")
    a.I("v_and_b32 v0, 63, v0")
    a.I("s_and_b32 s6, s2, 7")
    a.I(f"v_readfirstlane_b32 {s(sW)}, v1")
    a.I("s_lshr_b32 s7, s2, 3")
    a.I("s_and_b32 s8, s7, 3")
    a.I("s_lshl_b32 s6, s6, 2")
    a.I(f"s_add_u32 {s(sH)}, s6, s8")
    a.I(f"s_lshr_b32 {s(sP)}, s7, 2")
    a.I(f"s_lshl_b32 s6, {s(sP)}, 2")
    a.I(f"s_sub_u32 s7, 60, s6")
    a.I(f"s_add_u32 s7, s7, {s(sW)}")
    a.I(f"s_add_u32 s8, s6, 7")
    a.I(f"s_sub_u32 s8, s8, {s(sW)}")
    a.I(f"s_cmp_ge_u32 {s(sW)}, 4")
    a.I(f"s_cselect_b32 {s(sQS)}, s8, s7")
    a.I(f"s_add_u32 {s(sN)}, {s(sQS)}, 1")
    a.I("s_sub_u32 s9, 64, s6")
    a.I(f"s_lshr_b32 {s(sBAR)}, s9, 1")
    a.I("s_lshl_b32 s9, s9, 13")
    a.I(f"s_lshl_b32 s10, {s(sH)}, 19")
    a.I(f"v_lshlrev_b32 {v(L16)}, 4, v0")
    a.I(f"s_and_b32 s11, {s(sW)}, 3")
    a.I("s_lshl_b32 s11, s11, 11")
    a.I(f"v_add_u32 {v(VDA)}, s11, {v(L16)}")
    a.I(f"v_add_u32 {v(VDB)}, 0x2000, {v(VDA)}")
    a.I(f"v_and_b32 {v(T0)}, 31, v0")
    a.I(f"v_lshrrev_b32 {v(T1)}, 5, v0")
    a.I(f"v_lshlrev_b32 {v(T1)}, 2, {v(T1)}")
    a.I(f"v_sub_u32 {v(QREL)}, {v(T0)}, {v(T1)}")
    a.I(f"v_mov_b32 {v(NINF)}, 0xff800000")
    a.I(f"s_mov_b32 {s(sTHR)}, {f32(2.0 ** 14)}")
    FLG = 7 * 16384 + 8192
    if withb2:
        a.I(f"v_mov_b32 v124, {FLG}")
        for i in range(4):
            a.I(f"v_mov_b32 {v(56 + i)}, 0")
        a.I("ds_write_b128 v124, v[56:59]")
        a.I("s_and_b32 s60, s2, 7")
        a.I("s_lshl_b32 s60, s60, 5")
        a.I("s_lshr_b32 s61, s2, 3")
        a.I("s_add_u32 s60, s60, s61")
        a.I("s_cmp_eq_u32 s2, 248")
        a.I("s_cselect_b32 s61, 4, 2")
        a.I(f"s_cmp_lt_u32 {s(sW)}, s61")
        a.I("s_cselect_b32 s23, 1, 0")
        a.I(f"s_cmp_ge_u32 {s(sW)}, 2")
        a.I("s_cselect_b32 s60, 0x100, s60")
        a.I(f"s_mov_b32 s61, {131072}")
        a.I(f"s_cselect_b32 s61, {131072 + 16384}, s61")
        a.I(f"s_and_b32 s67, {s(sW)}, 1")
    a.I("s_waitcnt lgkmcnt(0)")
    srd(a, 24, 4, 5, "s9", add="s10")
    a.I(f"s_add_u32 s12, s10, {hex(WS_V - 3 * 8192)}")
    a.I(f"s_add_u32 s13, s9, {3 * 8192}")
    srd(a, 28, 4, 5, "s13", add="s12")
    srd(a, 32, 4, 5, 16 * MB, add=WS_Q)
    srd(a, 36, 4, 5, 16 * MB, add=WS_CTX)
    st = Stamper(a, "attn")
    st()
    a.I(f"s_lshl_b32 s12, {s(sQS)}, 18")
    a.I(f"s_lshl_b32 s13, {s(sH)}, 13")
    a.I("s_add_u32 s12, s12, s13")
    a.I("s_add_u32 s13, s12, 4096")

    def q_loads(vm=None):
        for t in range(8):
            x = f"buffer_load_dwordx4 {v(Q + 4 * t, 4)}, {v(L16)}, s[32:35], s{12 + t // 4} offen offset:{(t % 4) * 1024}{os.environ.get('QP', '')}"
            vm.issue(x, "Q") if vm else a.I(x)

    def q_clear(r0):
        for j in range(4):
            a.I(f"v_mov_b32 {v(r0 + j)}, -1")
        for q in range(4):
            a.I(f"buffer_store_dwordx4 {v(r0, 4)}, {v(L16)}, s[32:35], s{12 + q // 2} offen offset:{(q % 2) * 1024}{SP}")

    if withb2:
        a.I("s_cmp_eq_u32 s23, 0")
        a.I(f"s_cbranch_scc1 {N}_nob2l")
        b2_loads(a, VM(a), 60, 67, L16, 16, 32, 62, 48)
        q_loads()
        a.label(f"{N}_nob2l")
        a.I("s_barrier")
    a.I(f"s_lshl_b32 s46, {s(sQS)}, 18")
    a.I(f"s_lshl_b32 s6, {s(sH)}, 13")
    a.I("s_add_u32 s46, s46, s6")
    a.I("s_add_u32 s47, s46, 4096")
    a.I(f"s_mov_b32 {s(sKM)}, s11")
    a.I(f"s_mov_b32 {s(sKO)}, 0")

    def dma_list(withV=True):
        l = []
        if withV:
            l += [f"s_mov_b32 m0, {s(sVM)}", None,
                  f"buffer_load_dwordx4 {v(VDA)}, s[28:31], {s(sKO)} offen lds",
                  f"buffer_load_dwordx4 {v(VDA)}, s[28:31], {s(sKO)} offen offset:1024 lds",
                  f"s_add_u32 m0, {s(sVM)}, 0x4000", None,
                  f"buffer_load_dwordx4 {v(VDB)}, s[28:31], {s(sKO)} offen lds",
                  f"buffer_load_dwordx4 {v(VDB)}, s[28:31], {s(sKO)} offen offset:1024 lds"]
        l += [f"s_mov_b32 m0, {s(sKM)}", f"s_add_u32 {s(sVM)}, {s(sKM)}, 0x2000",
              f"buffer_load_dwordx4 {v(VDA)}, s[24:27], {s(sKO)} offen lds",
              f"buffer_load_dwordx4 {v(VDA)}, s[24:27], {s(sKO)} offen offset:1024 lds",
              f"s_add_u32 m0, {s(sKM)}, 0x4000", f"s_add_u32 {s(sKM)}, {s(sKM)}, 0x8000",
              f"buffer_load_dwordx4 {v(VDB)}, s[24:27], {s(sKO)} offen lds",
              f"buffer_load_dwordx4 {v(VDB)}, s[24:27], {s(sKO)} offen offset:1024 lds",
              f"s_and_b32 {s(sKM)}, {s(sKM)}, 0x1ffff",
              f"s_add_u32 {s(sKO)}, {s(sKO)}, 0x4000"]
        return l

    def emit_dma(withV=True):
        for x in dma_list(withV):
            if "dma" in os.environ.get("ADROP", "") and x and x.endswith(" lds"):
                continue
            a.I(x or "s_nop 0")

    def mask_negm():
        for j in range(16):
            a.I(f"v_cmp_le_i32 vcc, {(j & 3) + 8 * (j >> 2)}, {v(QREL)}")
            a.I("s_nop 1")
            a.I(f"v_cndmask_b32 {v(NEGM + j)}, {v(NINF)}, {v(NEGM + j)}, vcc")
        a.I("s_nop 1")

    def rowmax(Sx, dst):
        a.I(f"v_max3_f32 {v(dst)}, {v(Sx)}, {v(Sx + 1)}, {v(Sx + 2)}")
        for j in range(3, 15, 2):
            a.I(f"v_max3_f32 {v(dst)}, {v(dst)}, {v(Sx + j)}, {v(Sx + j + 1)}")
        a.I(f"v_max_f32 {v(dst)}, {v(dst)}, {v(Sx + 15)}")
        a.I(f"v_mov_b32 {v(T2)}, {v(dst)}")
        a.I("s_nop 1")
        a.I(f"v_permlane32_swap_b32 {v(dst)}, {v(T2)}")
        a.I(f"v_max_f32 {v(dst)}, {v(dst)}, {v(T2)}")

    def role(ld):
        R = "S" if ld else "L"
        if withb2 and not ld:
            a.I("s_cmp_eq_u32 s23, 0")
            a.I(f"s_cbranch_scc1 {N}_b2no")
            a.I(f"s_and_b32 s67, {s(sW)}, 2")
            a.I("s_lshl_b32 s67, s67, 2")
            a.I(f"s_add_u32 s67, s67, {FLG}")
            a.I("v_mov_b32 v124, s67")
            a.I(f"s_bitcmp1_b32 {s(sW)}, 0")
            a.I(f"s_cbranch_scc1 {N}_b2w1")
            rmap = [56, 57, 58, 59, 60, 61, 62, 120, 63, 16, 24, 32, 40, 64, 72, 80, 88, 104, 160, 176, 192, 208, 224]
            for own in range(2):
                vmb = VM(a)
                if own:
                    a.label(f"{N}_b2w1")
                ex = [0]

                def pair_sync():
                    ex[0] += 1
                    lab = a.uid(f"{N}_spin")
                    a.I(f"v_mov_b32 v125, {ex[0]}")
                    a.I(f"ds_write_b32 v124, v125 offset:{4 * own}")
                    a.label(lab)
                    a.I(f"ds_read_b32 v126, v124 offset:{4 * (1 - own)}")
                    a.I("s_waitcnt lgkmcnt(0)")
                    a.I("v_readfirstlane_b32 s67, v126")
                    a.I("s_nop 0")
                    a.I(f"s_cmp_lt_u32 s67, {ex[0]}")
                    a.I(f"s_cbranch_scc1 {lab}")
                b2_body(a, own, 60, 61, pair_sync, vmb, S0=62, SR=48, slice_len=10 ** 9, rmap=rmap, preloaded=True,
                        st=st if os.environ.get("B2ST") else (lambda: None))
                if os.environ.get("B2ST"):
                    st()
                    st.n -= 5 * (1 - own)
                assert vmb.q[-5:] == ["Q", "Z", "Z", "Z", "Z"] or "Q" not in vmb.q
                a.I(f"s_branch {N}_b2done")
            a.label(f"{N}_b2no")
        def inits(tag):
            for j in range(16):
                a.I(f"v_mov_b32 {v(NEGM + j)}, 0")
            a.I(f"s_cmp_lg_u32 {s(sN)}, 1")
            a.I(f"s_cbranch_scc1 {N}_{R}_nm1{tag}")
            mask_negm()
            a.label(f"{N}_{R}_nm1{tag}")

        inits("a")
        q_loads()
        if ld:
            emit_dma(withV=False)
            emit_dma()
        if withb2 and not ld:
            a.I("s_waitcnt vmcnt(0)")
            a.I(f"s_branch {N}_b2join")
            a.label(f"{N}_b2done")
            inits("b")
            a.I("s_waitcnt vmcnt(4)")
            a.label(f"{N}_b2join")
        a.I(f"v_mov_b32 {v(VL)}, 0")
        a.I(f"v_mov_b32 {v(VLS)}, 0")
        a.I(f"v_add_u32 {v(VKA)}, 0x8000, {v(L16)}")
        a.I(f"v_mov_b32 {v(VVA)}, {v(L16)}")
        if os.environ.get("PRIO") and not ld:
            a.I(f"s_setprio {os.environ['PRIO']}")
        if ld or not withb2:
            a.I(f"s_waitcnt vmcnt({6 if ld else 0})")
        a.I("s_barrier")
        st()
        for t in range(8):
            a.I(f"ds_read_b128 {v(RING + 4 * t, 4)}, {v(L16)} offset:{t * 1024}")
        dl = [x or "s_nop 0" for x in dma_list()] if ld else []
        for t in range(8):
            if t % 4 == 0:
                a.I("s_waitcnt lgkmcnt(4)")
            a.I(f"{MF} {v(S[0], 16)}, {v(RING + 4 * t, 4)}, {v(Q + 4 * t, 4)}, {v(NEGM if t == 0 else S[0], 16)}")
            a.I(f"ds_read_b128 {v(RING + 4 * t, 4)}, {v(L16)} offset:{16384 + t * 1024}")
            for x in dl[:3]:
                a.I(x)
            dl = dl[3:]
            for j in range(5):
                a.I(f"v_mov_b32 {v(O + 5 * t + j)}, 0")
        assert not dl
        for j in range(40, 64):
            a.I(f"v_mov_b32 {v(O + j)}, 0")
        if ld:
            emit_dma()
        rowmax(S[0], T0)
        for j in range(16):
            a.I(f"v_sub_f32 {v(S[0] + j)}, {v(S[0] + j)}, {v(T0)}")
        for j in range(16):
            a.I(f"v_sub_f32 {v(NEGM + j)}, 0, {v(T0)}")
        a.I(f"s_mov_b32 {s(sPH)}, 0")
        a.I(f"s_sub_u32 {s(sC)}, {s(sN)}, 3")
        a.I(f"s_cbranch_scc0 {N}_{R}_first")
        a.I(f"s_mov_b32 {s(sPH)}, 3")
        a.I(f"s_mov_b32 {s(sC)}, 0")
        a.I(f"s_cmp_lg_u32 {s(sN)}, 2")
        a.I(f"s_cbranch_scc1 {N}_{R}_first")
        a.I(f"s_mov_b32 {s(sPH)}, 1")
        mask_negm()
        a.label(f"{N}_{R}_first")
        e = lambda j: v(EE + (j % 6))
        if ld:
            a.I("s_waitcnt vmcnt(14)")
        a.I("s_waitcnt lgkmcnt(0)")
        a.I("s_barrier")
        a.I(f"s_sub_u32 {s(sBAR)}, {s(sBAR)}, 1")
        dl = [x or "s_nop 0" for x in dma_list()] if ld else []
        for pos in range(8):
            r = v(RING + 4 * pos, 4)
            a.I(f"{MF} {v(S[1], 16)}, {r}, {v(Q + 4 * pos, 4)}, {v(NEGM if pos == 0 else S[1], 16)}")
            a.I(f"ds_read_b128 {r}, {v(VKA)} offset:{pos * 1024}")
            a.I(f"v_exp_f32 {e(2 * pos)}, {v(S[0] + 2 * pos)}")
            a.I(f"v_exp_f32 {e(2 * pos + 1)}, {v(S[0] + 2 * pos + 1)}")
            a.many(dl[:3] or ["s_nop 0"])
            dl = dl[3:]
            a.I(f"v_add_f32 {v(VLS)}, {v(VLS)}, {e(2 * pos)}")
            a.I(f"v_add_f32 {v(VLS)}, {v(VLS)}, {e(2 * pos + 1)}")
            a.I(f"v_cvt_pk_bf16_f32 {v(P[0] + pos)}, {e(2 * pos)}, {e(2 * pos + 1)}")
        assert not dl
        a.I("s_nop 4")
        a.I(f"s_sub_u32 {s(sC)}, {s(sC)}, 1")
        a.I(f"s_branch {N}_{R}_back0")

        def iteration(par):
            gaps = [[] for _ in range(16)]
            pre = [[] for _ in range(16)]
            mf = []
            Sc, Sn, Pc, Pp = S[par], S[1 - par], P[par], P[1 - par]
            e = lambda j: v(EE + (j % 6))
            for pos in range(16):
                r = v(RING + 4 * (pos & 7), 4)
                if pos < 8:
                    mf.append(f"{MF} {v(Sn, 16)}, {r}, {v(Q + 4 * pos, 4)}, {v(NEGM if pos == 0 else Sn, 16)}")
                    ks, dt = divmod(pos, 4)
                    gaps[pos].append(f"ds_read_b128 {r}, {v(VVA)} offset:{8192 + par * 16384 + (2 * dt + ks) * 1024}")
                else:
                    ks, dt = divmod(pos - 8, 4)
                    mf.append(f"{MF} {v(O + 16 * dt, 16)}, {r}, {v(Pp + 4 * ks, 4)}, {v(O + 16 * dt, 16)}")
                    gaps[pos].append(f"ds_read_b128 {r}, {v(VKA)} offset:{par * 16384 + (pos - 8) * 1024}")
                if pos % 4 == 0:
                    pre[pos].append("s_waitcnt lgkmcnt(4)")
            early = int(os.environ.get("EARLY", "1"))
            if early:
                eg = [0, 0, 1, 2, 2, 3, 4, 5, 6, 7, 8, 9, 10, 11, 12, 13]
            else:
                eg = [0] + list(range(15))
            gaps[0].append(f"v_add_f32 {v(VL)}, {v(VL)}, {v(VLS)}")
            for j in range(16):
                gaps[eg[j]].append(f"v_exp_f32 {e(j)}, {v(Sc + j)}")
            pka = os.environ.get("PKADD")
            for j in range(1, 16):
                g = eg[j] + 1
                if pka:
                    if j == 3:
                        gaps[g].append(f"v_pk_add_f32 v[8:9], {v(EE, 2)}, {v(EE + 2, 2)}")
                    elif j % 2 == 1 and j > 3:
                        gaps[g].append(f"v_pk_add_f32 v[8:9], v[8:9], {v(EE + (j - 1) % 6, 2)}")
                    if j == 15:
                        gaps[g].append(f"v_add_f32 {v(VLS)}, v8, v9")
                elif j == 1:
                    gaps[g].append(f"v_add_f32 {v(VLS)}, {e(0)}, {e(1)}")
                else:
                    gaps[g].append(f"v_add_f32 {v(VLS)}, {v(VLS)}, {e(j)}")
                if j % 2 == 1:
                    gaps[g + (1 if (early and j == 15) else 0)].append(f"v_cvt_pk_bf16_f32 {v(Pc + j // 2)}, {e(j - 1)}, {e(j)}")
            if par == 0:
                gaps[2].append(f"v_add_u32 {v(VKA)}, 0x8000, {v(VKA)}")
                gaps[6].append(f"v_and_b32 {v(VKA)}, 0x1ffff, {v(VKA)}")
                bar = ["s_barrier", f"s_sub_u32 {s(sBAR)}, {s(sBAR)}, 1"]
                if ld:
                    bar = ["s_waitcnt vmcnt(14)"] + bar
                gaps[4] = bar + gaps[4]
                if ld:
                    d = [x for x in dma_list() if x]
                    m0a, l1, l2, m0b, l3, l4, m0c, svm, l5, l6, m0d, skm, l7, l8, sand, sko = d
                    gaps[5] = [m0a] + gaps[5] + [l1]
                    gaps[6] += [l2, m0b]
                    gaps[7] += [l3]
                    gaps[8] += [l4, m0c]
                    gaps[9] += [svm, l5]
                    gaps[10] += [l6, m0d]
                    gaps[11] += [l7]
                    gaps[12] += [l8, skm]
                    gaps[13] += [sand, sko]
            else:
                gaps[10].append(f"v_mov_b32 {v(VVA)}, {v(VKA)}")
            gaps[14].append(f"s_sub_u32 {s(sC)}, {s(sC)}, 1")
            gaps[14 if early else 15].append(f"v_cmp_nge_f32 vcc, {s(sTHR)}, {v(VLS)}")
            drop = os.environ.get("ADROP", "").split(",")
            for pos in range(16):
                if "bar" in drop:
                    gaps[pos] = [x for x in gaps[pos] if x != "s_barrier"]
                if "dma" in drop:
                    gaps[pos] = [x for x in gaps[pos] if not x.endswith(" lds")]
                if "rd" in drop:
                    gaps[pos] = [x for x in gaps[pos] if not x.startswith("ds_read")]
                if "valu" in drop:
                    gaps[pos] = [x for x in gaps[pos] if not (x.startswith("v_exp") or x.startswith("v_cvt") or x.startswith("v_add_f32"))]
                if "e64" in drop:
                    gaps[pos] = [x.replace("v_exp_f32 ", "v_exp_f32_e64 ").replace("v_add_f32 ", "v_add_f32_e64 ") for x in gaps[pos]]
                a.many(pre[pos])
                a.I(mf[pos])
                a.many(gaps[pos])
            if "br" not in drop:
                a.I(f"s_cbranch_vccnz {N}_{R}_slow{par}")
            a.label(f"{N}_{R}_back{par}")
            a.I(f"s_cbranch_scc1 {N}_{R}_spec{par}")

        if os.environ.get("PRIO") and not ld:
            pass
        if os.environ.get("AALIGN"):
            a.raw(".p2align 6")
            for _ in range(int(os.environ["AALIGN"]) - 1):
                a.I("s_nop 0")
        a.label(f"{N}_{R}_it0")
        iteration(0)
        a.label(f"{N}_{R}_it1")
        iteration(1)
        a.I(f"s_branch {N}_{R}_it0")

        def svc():
            lab = a.uid(f"{N}_{R}_svc")
            a.I(f"s_cmp_eq_u32 {s(sBAR)}, 0")
            a.I(f"s_cbranch_scc1 {lab}")
            if ld:
                a.I("s_waitcnt vmcnt(14)")
            if "bar" not in os.environ.get("ADROP", ""):
                a.I("s_barrier")
            a.I(f"s_sub_u32 {s(sBAR)}, {s(sBAR)}, 1")
            if ld:
                emit_dma()
            a.label(lab)

        for par in range(2):
            Sc, Sn, Pc = S[par], S[1 - par], P[par]
            a.label(f"{N}_{R}_slow{par}")
            a.I("s_cselect_b32 s22, 1, 0")
            a.I("s_nop 15")
            rowmax(Sc, T0)
            a.I(f"v_max_f32 {v(T0)}, 0, {v(T0)}")
            a.I(f"v_exp_f32_e64 {v(T1)}, -{v(T0)}")
            for j in range(16):
                a.I(f"v_sub_f32 {v(NEGM + j)}, {v(NEGM + j)}, {v(T0)}")
                a.I(f"v_sub_f32 {v(Sc + j)}, {v(Sc + j)}, {v(T0)}")
                a.I(f"v_sub_f32 {v(Sn + j)}, {v(Sn + j)}, {v(T0)}")
            for j in range(64):
                a.I(f"v_mul_f32 {v(O + j)}, {v(O + j)}, {v(T1)}")
            a.I(f"v_mul_f32 {v(VL)}, {v(VL)}, {v(T1)}")
            a.I(f"v_mov_b32 {v(VLS)}, 0")
            for i in range(8):
                a.I(f"v_exp_f32 {v(E)}, {v(Sc + 2 * i)}")
                a.I(f"v_exp_f32 {v(E + 1)}, {v(Sc + 2 * i + 1)}")
                a.I("s_nop 0")
                a.I(f"v_add_f32 {v(VLS)}, {v(VLS)}, {v(E)}")
                a.I(f"v_add_f32 {v(VLS)}, {v(VLS)}, {v(E + 1)}")
                a.I(f"v_cvt_pk_bf16_f32 {v(Pc + i)}, {v(E)}, {v(E + 1)}")
            a.I(f"s_cmp_eq_u32 {s(sPH)}, 2")
            a.I(f"s_cbranch_scc1 {N}_{R}_lback{par}")
            a.I("s_cmp_lg_u32 s22, 0")
            a.I(f"s_branch {N}_{R}_back{par}")
            a.label(f"{N}_{R}_spec{par}")
            a.I(f"s_cmp_eq_u32 {s(sPH)}, 1")
            a.I(f"s_cbranch_scc1 {N}_{R}_last{1 - par}")
            if par == 0:
                a.I(f"s_cmp_eq_u32 {s(sPH)}, 3")
                a.I(f"s_cbranch_scc1 {N}_{R}_exit0")
            a.I(f"s_mov_b32 {s(sPH)}, 1")
            a.I(f"s_mov_b32 {s(sC)}, 0")
            mask_negm()
            a.I(f"s_branch {N}_{R}_it{1 - par}")
            Pp = P[1 - par]
            a.label(f"{N}_{R}_last{par}")
            a.I(f"s_mov_b32 {s(sPH)}, 2")
            a.I("s_waitcnt lgkmcnt(0)")
            voff = lambda pos: (2 * (pos % 4) + pos // 4) * 1024
            for pos in range(8):
                a.I(f"ds_read_b128 {v(RING + 4 * pos, 4)}, {v(VVA)} offset:{8192 + par * 16384 + voff(pos)}")
            a.I(f"v_add_f32 {v(VL)}, {v(VL)}, {v(VLS)}")
            a.I(f"v_mov_b32 {v(VLS)}, 0")
            dl = []
            if par == 0:
                if ld:
                    a.I("s_waitcnt vmcnt(14)")
                a.I("s_barrier")
                a.I(f"s_sub_u32 {s(sBAR)}, {s(sBAR)}, 1")
                dl = [x or "s_nop 0" for x in dma_list()] if ld else []
            for pos in range(8):
                ks, dt = divmod(pos, 4)
                a.I(f"v_exp_f32 {e(2 * pos)}, {v(Sc + 2 * pos)}")
                a.I(f"v_exp_f32 {e(2 * pos + 1)}, {v(Sc + 2 * pos + 1)}")
                a.I("s_waitcnt lgkmcnt(7)")
                a.I(f"{MF} {v(O + 16 * dt, 16)}, {v(RING + 4 * pos, 4)}, {v(Pp + 4 * ks, 4)}, {v(O + 16 * dt, 16)}")
                if par == 0:
                    a.I(f"ds_read_b128 {v(RING + 4 * pos, 4)}, {v(VVA)} offset:{8192 + 16384 + voff(pos)}")
                else:
                    a.I(f"ds_read_b128 {v(RING + 4 * pos, 4)}, {v(VKA)} offset:{8192 + voff(pos)}")
                a.I(f"v_add_f32 {v(VLS)}, {v(VLS)}, {e(2 * pos)}")
                a.I(f"v_add_f32 {v(VLS)}, {v(VLS)}, {e(2 * pos + 1)}")
                a.I(f"v_cvt_pk_bf16_f32 {v(Pc + pos)}, {e(2 * pos)}, {e(2 * pos + 1)}")
                a.many(dl[:3])
                dl = dl[3:]
            assert not dl
            a.I(f"v_cmp_nge_f32 vcc, {s(sTHR)}, {v(VLS)}")
            a.I(f"s_cbranch_vccnz {N}_{R}_slow{par}")
            a.label(f"{N}_{R}_lback{par}")
            if par == 0:
                a.I(f"s_branch {N}_{R}_fin0")
                a.label(f"{N}_{R}_exit0")
                a.I("s_waitcnt lgkmcnt(0)")
                for pos in range(8):
                    a.I(f"ds_read_b128 {v(RING + 4 * pos, 4)}, {v(VVA)} offset:{8192 + 16384 + voff(pos)}")
                a.label(f"{N}_{R}_fin0")
            a.I(f"v_add_f32 {v(VL)}, {v(VL)}, {v(VLS)}")
            nrm = [f"v_mov_b32 {v(T2)}, {v(VL)}", None, f"v_permlane32_swap_b32 {v(VL)}, {v(T2)}",
                   f"v_add_f32 {v(VL)}, {v(VL)}, {v(T2)}", f"v_rcp_f32 {v(T0)}, {v(VL)}"]
            for pos in range(8):
                dt, ks = divmod(pos, 2)
                rp = 4 * ks + dt
                a.I(f"s_waitcnt lgkmcnt({max(0, 7 - max(rp, 4 + dt - (1 - ks) * 4))})" if False else
                    f"s_waitcnt lgkmcnt({7 - rp if ks else min(7 - rp, 7 - (4 + dt - 1) if dt else 7)})")
                a.I(f"{MF} {v(O + 16 * dt, 16)}, {v(RING + 4 * rp, 4)}, {v(Pc + 4 * ks, 4)}, {v(O + 16 * dt, 16)}")
                if pos < len(nrm) and nrm[pos]:
                    a.I(nrm[pos])
            if par == 0:
                a.I(f"s_branch {N}_{R}_epi")
        a.label(f"{N}_{R}_epi")
        st()
        svc()
        if ld and (withb2 or b2tail):
            if not LT:
                a.I(f"s_and_b32 s53, {s(sW)}, 3")
                code_touch(a, "l3_kernel", 53, 48, EE + 2, nw_log=2)
        for dt in range(4):
            for h in range(2):
                q = 2 * dt + h
                for i in range(4):
                    src = O + 16 * dt + 8 * h + 2 * i
                    a.I(f"v_mul_f32 {v(src)}, {v(src)}, {v(T0)}")
                    a.I(f"v_mul_f32 {v(src + 1)}, {v(src + 1)}, {v(T0)}")
                    a.I(f"v_cvt_pk_bf16_f32 {v(PK + 4 * q + i)}, {v(src)}, {v(src + 1)}")
                a.I(f"buffer_store_dwordx4 {v(PK + 4 * q, 4)}, {v(L16)}, s[36:39], s{46 + q // 4} offen offset:{(q % 4) * 1024}{SP}")
            if dt == 1:
                svc()
        if ld and b2tail:
            a.I(f"s_lshl_b32 s60, {s(sH)}, 2")
            a.I(f"s_add_u32 s60, s60, {s(sP)}")
            a.I("s_lshl_b32 s60, s60, 1")
            a.I(f"s_bfe_u32 s61, {s(sW)}, 0x10001")
            a.I("s_add_u32 s60, s60, s61")
            a.I(f"s_cmp_lt_u32 {s(sP)}, 4")
            a.I(f"s_cbranch_scc1 {N}_b2go")
            a.I("s_cmp_lg_u32 s60, 8")
            a.I(f"s_cbranch_scc1 {N}_{R}_tail")
            a.I("s_movk_i32 s60, 0x100")
            a.label(f"{N}_b2go")
            a.I("s_lshl_b32 s61, s61, 14")
            a.I(f"s_add_u32 s61, s61, {131072}")
            a.I(f"s_lshl_b32 s62, {s(sP)}, 2")
            a.I("s_sub_u32 s62, 28, s62")
            a.label(f"{N}_b2al")
            a.I(f"s_cmp_le_u32 {s(sBAR)}, s62")
            a.I(f"s_cbranch_scc1 {N}_b2st")
            a.I("s_waitcnt vmcnt(14)")
            a.I("s_barrier")
            a.I(f"s_sub_u32 {s(sBAR)}, {s(sBAR)}, 1")
            emit_dma()
            a.I(f"s_branch {N}_b2al")
            a.label(f"{N}_b2st")
            a.I(f"s_bitcmp1_b32 {s(sW)}, 0")
            a.I(f"s_cbranch_scc1 {N}_b2w1")
            for own in range(2):
                vmb = VM(a)
                nsv = [0]

                def svcb():
                    nsv[0] += 1
                    a.I("s_waitcnt vmcnt(14)")
                    vmb.q = vmb.q[-14:]
                    a.I("s_barrier")
                    a.I(f"s_sub_u32 {s(sBAR)}, {s(sBAR)}, 1")
                    for x in dma_list():
                        if x and x.startswith("buffer"):
                            vmb.issue(x, "dma")
                        else:
                            a.I(x or "s_nop 0")
                if own:
                    a.label(f"{N}_b2w1")
                b2_body(a, own, 60, 61, svcb, vmb, R0=16, S0=62, SR=48, slice_len=int(os.environ.get("SLICE", "90")))
                assert nsv[0] <= 12, nsv
                print("b2 svc slices", nsv[0])
                if not own:
                    a.I(f"s_branch {N}_{R}_tail")
        if ld:
            q_clear(6)
            a.I(f"s_lshl_b32 s12, {s(sP)}, 2")
            a.I("s_sub_u32 s12, 56, s12")
            a.I(f"s_add_u32 s12, s12, {s(sW)}")
            a.I("s_lshl_b32 s12, s12, 18")
            a.I(f"s_lshl_b32 s13, {s(sH)}, 13")
            a.I("s_add_u32 s12, s12, s13")
            a.I("s_add_u32 s13, s12, 4096")
            q_clear(6)
            a.I("s_mov_b32 s54, 0")
            a.label(f"{N}_{R}_tail")
            if LT:
                a.I(f"s_cmp_gt_u32 {s(sBAR)}, {LT}")
                a.I(f"s_cbranch_scc1 {N}_notouch")
                a.I("s_cmp_lg_u32 s54, 0")
                a.I(f"s_cbranch_scc1 {N}_notouch")
                a.I("s_mov_b32 s54, 1")
                a.I(f"s_and_b32 s53, {s(sW)}, 3")
                code_touch(a, "l3_kernel", 53, 48, EE + 2, nw_log=2)
                if not os.environ.get("NOWT"):
                    srd(a, 48, 4, 5, 4 * MB, add=WS_WO)
                    a.I("s_lshr_b32 s52, s2, 3")
                    a.I("s_lshl2_add_u32 s52, s52, s53")
                    a.I("s_lshr_b32 s55, s52, 4")
                    a.I("s_lshl_b32 s55, s55, 19")
                    a.I("s_and_b32 s52, s52, 15")
                    a.I("s_lshl_b32 s52, s52, 13")
                    a.I("s_add_u32 s52, s52, s55")
                    a.I("s_bfe_u32 s55, s2, 0x20001")
                    a.I("s_lshl_b32 s55, s55, 17")
                    a.I("s_add_u32 s52, s52, s55")
                    a.I(f"v_lshlrev_b32 {v(EE)}, 7, v0")
                    a.I(f"buffer_load_dword {v(EE + 1)}, {v(EE)}, s[48:51], s52 offen")
                a.label(f"{N}_notouch")
            a.I(f"s_cmp_eq_u32 {s(sBAR)}, 0")
            a.I(f"s_cbranch_scc1 {N}_{R}_done")
            a.I("s_waitcnt vmcnt(14)")
            a.I("s_barrier")
            a.I(f"s_sub_u32 {s(sBAR)}, {s(sBAR)}, 1")
            emit_dma()
            a.I(f"s_branch {N}_{R}_tail")
            a.label(f"{N}_{R}_done")
        n0 = st.n
        st.dump(sW, 4, tmpv=T0)
        st.n = n0 - 2
        a.I("s_endpgm")

    a.I(f"s_cmp_ge_u32 {s(sW)}, 4")
    a.I(f"s_cbranch_scc1 {N}_short")
    role(False)
    a.label(f"{N}_short")
    role(True)
    kend(a, N)
    return a, N, (256, 512, 163840 if (withb2 or b2tail) else 131072)


def oproj_body(a, N, st, bar_at=None):
    ACC, CR, AFR = 64, 128, 192
    DEPTH = 8
    L16, L16B, VD0, VD1, TB = 1, 2, 3, 4, 5
    a.I("s_and_b32 s10, s2, 7")
    a.I("s_lshr_b32 s11, s2, 3")
    a.I("s_and_b32 s12, s11, 3")
    a.I("s_lshl_b32 s10, s10, 2")
    a.I("s_add_u32 s17, s10, s12")
    a.I("s_lshr_b32 s18, s11, 2")
    if os.environ.get("OPX") == "same":
        a.I("s_mov_b32 s17, 0")
        a.I("s_mov_b32 s18, 0")
    if os.environ.get("OPX") == "map2":
        a.I("s_and_b32 s10, s2, 3")
        a.I("s_lshl_b32 s10, s10, 3")
        a.I("s_and_b32 s12, s11, 7")
        a.I("s_add_u32 s17, s10, s12")
        a.I("s_bfe_u32 s10, s2, 0x10002")
        a.I("s_lshl_b32 s10, s10, 2")
        a.I("s_lshr_b32 s12, s11, 3")
        a.I("s_add_u32 s18, s10, s12")
    a.I(f"v_lshlrev_b32 {v(L16)}, 4, v0")
    a.I(f"v_add_u32 {v(L16B)}, 0x40000, {v(L16)}")
    a.I("v_lshrrev_b32 v8, 3, v0")
    a.I("v_lshlrev_b32 v8, 10, v8")
    a.I("v_bfe_u32 v9, v0, 4, 1")
    a.I("v_lshlrev_b32 v10, 2, v9")
    a.I("v_and_b32 v11, 7, v0")
    a.I("v_xor_b32 v10, v10, v11")
    a.I(f"v_lshl_add_u32 {v(VD0)}, v10, 4, v8")
    a.I("s_lshl_b32 s10, s18, 7")
    a.I(f"v_add_u32 {v(VD0)}, s10, {v(VD0)}")
    a.I(f"v_add_u32 {v(VD1)}, {8192 - 1024}, {v(VD0)}")
    a.I("v_lshrrev_b32 v8, 5, v0")
    a.I("v_bfe_u32 v10, v0, 2, 2")
    a.I("v_lshl_add_u32 v8, v8, 2, v10")
    a.I(f"v_lshlrev_b32 {v(TB)}, 7, v8")
    a.I(f"v_lshl_add_u32 {v(TB)}, v9, 5, {v(TB)}")
    a.I("v_and_b32 v10, 3, v0")
    a.I(f"v_lshl_add_u32 {v(TB)}, v10, 3, {v(TB)}")
    a.I("v_bfe_u32 v10, v0, 3, 1")
    a.I(f"v_lshl_add_u32 {v(TB)}, v10, 6, {v(TB)}")
    a.I("s_lshl_b32 s19, s16, 14")
    a.I(f"v_add_u32 {v(TB)}, s19, {v(TB)}")
    a.I(f"v_xor_b32 {v(TB + 1)}, 64, {v(TB)}")
    a.I("s_lshl_b32 s40, s17, 19")
    a.I("s_lshl_b32 s10, s16, 16")
    a.I("s_add_u32 s40, s40, s10")
    a.I("s_lshl_b32 s41, s16, 20")
    ROT = int(os.environ.get("ROT", "0"))
    if ROT:
        a.I("s_and_b32 s45, s2, 7")
        a.I(f"s_mul_i32 s45, s45, {ROT}")
    a.I("s_waitcnt lgkmcnt(0)")
    srd(a, 20, 4, 5, 16 * MB, add=WS_CTX)
    srd(a, 24, 6, 7, 4 * MB)
    srd(a, 28, 8, 9, 4 * MB)
    vm, lg = VM(a), LG(a)
    st()

    def loads(g):
        sl = g % DEPTH
        a.I(f"s_add_u32 m0, s19, {sl * 2048}")
        if ROT:
            if g % 4 == 0:
                a.I(f"s_add_u32 s44, s45, {g}")
                a.I("s_and_b32 s44, s44, 63")
                a.I("s_lshl_b32 s46, s44, 14")
                a.I("s_add_u32 s46, s46, s41")
                a.I("s_lshl_b32 s44, s44, 10")
            a.I(f"s_add_u32 s42, s46, {hex((g % 4) * 16384)}")
        else:
            a.I(f"s_add_u32 s42, s41, {hex(g * 16384)}")
        vm.issue(f"buffer_load_dwordx4 {v(VD0)}, s[24:27], s42 offen lds", g)
        vm.issue(f"buffer_load_dwordx4 {v(VD1)}, s[24:27], s42 offen offset:1024 lds", g)
        if g % 4 == 0:
            a.I(f"s_add_u32 s43, s40, {'s44' if ROT else hex(g * 1024)}")
        vm.issue(f"buffer_load_dwordx4 {v(CR + 8 * sl, 4)}, {v(L16)}, s[20:23], s43 offen offset:{(g % 4) * 1024}", g)
        vm.issue(f"buffer_load_dwordx4 {v(CR + 8 * sl + 4, 4)}, {v(L16B)}, s[20:23], s43 offen offset:{(g % 4) * 1024}", g)

    def trs(g):
        sl = g % DEPTH
        vm.wait(g)
        for cb in range(2):
            d = AFR + 8 * (g & 1) + 4 * cb
            lg.issue(f"ds_read_b64_tr_b16 {v(d, 2)}, {v(TB + cb)} offset:{sl * 2048}", g)
            lg.issue(f"ds_read_b64_tr_b16 {v(d + 2, 2)}, {v(TB + cb)} offset:{sl * 2048 + 1024}", g)

    for g in range(DEPTH):
        loads(g)
    st()
    trs(0)
    st()
    for g in range(64):
        if g + 1 < 64:
            trs(g + 1)
        lg.wait(g)
        sl = g % DEPTH
        for qt in range(2):
            for cb in range(2):
                acc = v(ACC + 16 * (2 * qt + cb), 16)
                a.I(f"{MF} {acc}, {v(AFR + 8 * (g & 1) + 4 * cb, 4)}, {v(CR + 8 * sl + 4 * qt, 4)}, {'0' if g == 0 else acc}")
        if g + DEPTH < 64:
            loads(g + DEPTH)
        if g == bar_at:
            a.I("s_barrier")
    st()
    a.I(f"v_add_u32 v8, s19, {v(L16)}")
    a.I("s_nop 11")
    for tl in range(4):
        for jq in range(4):
            a.I(f"ds_write_b128 v8, {v(ACC + 16 * tl + 4 * jq, 4)} offset:{(tl * 4 + jq) * 1024}")
    a.I("v_lshrrev_b32 v9, 5, v0")
    a.I("v_and_b32 v10, 31, v0")
    a.I("v_lshlrev_b32 v10, 4, v10")
    a.I("v_lshl_add_u32 v9, v9, 13, v10")
    a.I("s_lshl_b32 s10, s16, 11")
    a.I("v_add_u32 v9, s10, v9")
    a.I("s_lshl_b32 s11, s17, 17")
    a.I("s_lshl_b32 s12, s18, 7")
    a.I("s_add_u32 s11, s11, s12")
    a.I("s_lshl_b32 s12, s16, 5")
    a.I("s_add_u32 s11, s11, s12")
    a.I("v_lshlrev_b32 v10, 11, v0")
    a.I("s_waitcnt lgkmcnt(0)")
    return ACC


def oproj_body2(a, N, st, bar_at=None):
    DEPTH = int(os.environ.get("ODEPTH", "8"))
    ACC, CR = 192 - 16 * DEPTH, 256 - 16 * DEPTH
    L16, L16B = 1, 2
    a.I("s_and_b32 s10, s2, 7")
    a.I("s_lshr_b32 s11, s2, 3")
    a.I("s_and_b32 s12, s11, 3")
    a.I("s_lshl_b32 s10, s10, 2")
    a.I("s_add_u32 s17, s10, s12")
    a.I("s_lshr_b32 s18, s11, 2")
    if os.environ.get("OPX") == "same":
        a.I("s_mov_b32 s17, 0")
        a.I("s_mov_b32 s18, 0")
    if os.environ.get("OPX") == "sameq":
        a.I("s_and_b32 s17, s17, 3")
    if os.environ.get("OPX") == "map2":
        a.I("s_and_b32 s10, s2, 3")
        a.I("s_lshl_b32 s10, s10, 3")
        a.I("s_and_b32 s12, s11, 7")
        a.I("s_add_u32 s17, s10, s12")
        a.I("s_bfe_u32 s10, s2, 0x10002")
        a.I("s_lshl_b32 s10, s10, 2")
        a.I("s_lshr_b32 s12, s11, 3")
        a.I("s_add_u32 s18, s10, s12")
    a.I(f"v_lshlrev_b32 {v(L16)}, 4, v0")
    a.I(f"v_add_u32 {v(L16B)}, 0x40000, {v(L16)}")
    a.I("s_lshl_b32 s19, s16, 14")
    a.I("s_lshl_b32 s40, s17, 19")
    a.I("s_lshl_b32 s10, s16, 16")
    a.I("s_add_u32 s40, s40, s10")
    a.I("s_lshl_b32 s41, s18, 19")
    a.I("s_lshl_b32 s10, s16, 17")
    a.I("s_add_u32 s41, s41, s10")
    a.I("s_waitcnt lgkmcnt(0)")
    srd(a, 20, 4, 5, 16 * MB, add=WS_CTX)
    srd(a, 24, 4, 5, 4 * MB, add=WS_WO)
    srd(a, 28, 8, 9, 4 * MB)
    vm = VM(a)
    st()

    def loads(g):
        sl = g % DEPTH
        L = []
        if g % 2 == 0:
            L.append(lambda: a.I(f"s_add_u32 s42, s41, {hex(g * 2048)}"))
        if g % 4 == 0:
            L.append(lambda: a.I(f"s_add_u32 s43, s40, {hex(g * 1024)}"))
        for cb in range(2):
            L.append(lambda cb=cb: vm.issue(f"buffer_load_dwordx4 {v(CR + 16 * sl + 4 * cb, 4)}, {v(L16)}, s[24:27], s42 offen "
                                            f"offset:{(g % 2) * 2048 + cb * 1024}", g))
        for qt in range(2):
            L.append(lambda qt=qt: vm.issue(f"buffer_load_dwordx4 {v(CR + 16 * sl + 8 + 4 * qt, 4)}, {v(L16 + qt)}, s[20:23], s43 offen "
                                            f"offset:{(g % 4) * 1024}", g))
        return L

    for g in range(DEPTH):
        for f in loads(g):
            f()
    st()
    st()
    for g in range(64):
        vm.wait(g)
        sl = g % DEPTH
        for qt in range(2):
            for cb in range(2):
                acc = v(ACC + 16 * (2 * qt + cb), 16)
                a.I(f"{MF} {acc}, {v(CR + 16 * sl + 4 * cb, 4)}, {v(CR + 16 * sl + 8 + 4 * qt, 4)}, {'0' if g == 0 else acc}")
        if g + DEPTH < 64:
            for f in loads(g + DEPTH):
                f()
        if g == bar_at:
            a.I("s_barrier")
    st()
    a.I(f"v_add_u32 v8, s19, {v(L16)}")
    a.I("v_lshrrev_b32 v9, 5, v0")
    a.I("v_and_b32 v10, 31, v0")
    a.I("v_lshlrev_b32 v10, 4, v10")
    a.I("v_lshl_add_u32 v9, v9, 13, v10")
    a.I("s_lshl_b32 s10, s16, 11")
    a.I("v_add_u32 v9, s10, v9")
    a.I("s_lshl_b32 s11, s17, 17")
    a.I("s_lshl_b32 s12, s18, 7")
    a.I("s_add_u32 s11, s11, s12")
    a.I("s_lshl_b32 s12, s16, 5")
    a.I("s_add_u32 s11, s11, s12")
    a.I("v_lshlrev_b32 v10, 11, v0")
    for tl in range(4):
        for jq in range(4):
            a.I(f"ds_write_b128 v8, {v(ACC + 16 * tl + 4 * jq, 4)} offset:{(tl * 4 + jq) * 1024}")
    a.I("s_waitcnt lgkmcnt(0)")
    return ACC


def oproj_body3(a, N, st, bar_at=None):
    DEPTH = 8
    ACC, FR = 64, 128
    L16, L16B, LR = 1, 2, 3
    a.I("s_and_b32 s10, s2, 7")
    a.I("s_lshr_b32 s11, s2, 3")
    a.I("s_and_b32 s12, s11, 3")
    a.I("s_lshl_b32 s10, s10, 2")
    a.I("s_add_u32 s17, s10, s12")
    a.I("s_lshr_b32 s18, s11, 2")
    a.I(f"v_lshlrev_b32 {v(L16)}, 4, v0")
    a.I(f"v_add_u32 {v(L16B)}, {0x40000 - 1024}, {v(L16)}")
    a.I("s_lshl_b32 s19, s16, 15")
    a.I(f"v_add_u32 {v(LR)}, s19, {v(L16)}")
    a.I("s_lshl_b32 s42, s18, 19")
    a.I("s_lshl_b32 s10, s16, 17")
    a.I("s_add_u32 s42, s42, s10")
    a.I("s_lshl_b32 s43, s17, 19")
    a.I("s_lshl_b32 s10, s16, 16")
    a.I("s_add_u32 s43, s43, s10")
    RB = int(os.environ.get("RB", "0"))
    if RB:
        a.I("s_lshl1_add_u32 s45, s12, s18")
        a.I("s_and_b32 s45, s45, 7")
        a.I(f"s_mul_i32 s45, s45, {RB // 8 * 1024}")
        a.I("s_mov_b32 s40, s43")
        a.I("s_mov_b32 s41, s42")
        a.I("s_add_u32 s43, s40, s45")
        a.I("s_lshl1_add_u32 s42, s45, s41")
    a.I("s_waitcnt lgkmcnt(0)")
    srd(a, 20, 4, 5, 16 * MB + 2048, add=WS_CTX - 2048)
    srd(a, 24, 4, 5, 4 * MB, add=WS_WO)
    srd(a, 28, 8, 9, 4 * MB)
    vm, lg = VM(a), LG(a)
    st()

    def loads(g):
        sl = g % DEPTH
        return [lambda: a.I(f"s_add_u32 m0, s19, {sl * 4096}"),
                lambda: a.I("s_nop 0") if g < DEPTH else None,
                lambda: vm.issue(f"buffer_load_dwordx4 {v(L16)}, s[24:27], s42 offen lds", g),
                lambda: vm.issue(f"buffer_load_dwordx4 {v(L16)}, s[24:27], s42 offen offset:1024 lds", g),
                lambda: vm.issue(f"buffer_load_dwordx4 {v(L16)}, s[20:23], s43 offen offset:2048 lds", g),
                lambda: vm.issue(f"buffer_load_dwordx4 {v(L16B)}, s[20:23], s43 offen offset:3072 lds", g),
                lambda: nxt(g), lambda: None]

    def nxt(g):
        if not RB:
            a.I("s_add_u32 s42, s42, 2048")
            a.I("s_add_u32 s43, s43, 1024")
            return
        a.I("s_add_u32 s45, s45, 1024")
        a.I(f"s_and_b32 s45, s45, {RB * 1024 - 1}")
        if (g + 1) % RB == 0:
            a.I(f"s_add_u32 s40, s40, {RB * 1024}")
            a.I(f"s_add_u32 s41, s41, {RB * 2048}")
        a.I("s_add_u32 s43, s40, s45")
        a.I("s_lshl1_add_u32 s42, s45, s41")

    def reads(g):
        vm.wait(g)
        for q in range(4):
            lg.issue(f"ds_read_b128 {v(FR + 16 * (g & 1) + 4 * q, 4)}, {v(LR)} offset:{(g % DEPTH) * 4096 + q * 1024}", g)

    for g in range(DEPTH):
        for f in loads(g):
            f()
    st()
    reads(0)
    st()
    for g in range(64):
        if g + 1 < 64:
            reads(g + 1)
        lg.wait(g)
        L = loads(g + DEPTH) if g + DEPTH < 64 else []
        fr = FR + 16 * (g & 1)
        for qt in range(2):
            for cb in range(2):
                acc = v(ACC + 16 * (2 * qt + cb), 16)
                if L:
                    L.pop(0)()
                a.I(f"{MF} {acc}, {v(fr + 4 * cb, 4)}, {v(fr + 8 + 4 * qt, 4)}, {'0' if g == 0 else acc}")
                if L:
                    L.pop(0)()
        if g == bar_at:
            a.I("s_barrier")
    st()
    a.I("v_lshrrev_b32 v9, 5, v0")
    a.I("v_and_b32 v10, 31, v0")
    a.I("v_lshlrev_b32 v10, 4, v10")
    a.I("v_lshl_add_u32 v9, v9, 13, v10")
    a.I("s_lshl_b32 s10, s16, 11")
    a.I("v_add_u32 v9, s10, v9")
    a.I("s_lshl_b32 s11, s17, 17")
    a.I("s_lshl_b32 s12, s18, 7")
    a.I("s_add_u32 s11, s11, s12")
    a.I("s_lshl_b32 s12, s16, 5")
    a.I("s_add_u32 s11, s11, s12")
    a.I("v_lshlrev_b32 v10, 11, v0")
    for tl in range(4):
        for jq in range(4):
            a.I(f"ds_write_b128 {v(LR)}, {v(ACC + 16 * tl + 4 * jq, 4)} offset:{(tl * 4 + jq) * 1024}")
    a.I("s_waitcnt lgkmcnt(0)")
    return ACC


def oproj_body4(a, N, st, bar_at=None):
    DEPTH = 4
    ACC, FR = 32, 96
    L16, L16B, LR = 1, 2, 3
    a.I("s_and_b32 s10, s2, 7")
    a.I("s_lshr_b32 s11, s2, 3")
    a.I("s_and_b32 s12, s11, 3")
    a.I("s_lshl_b32 s10, s10, 2")
    a.I("s_add_u32 s17, s10, s12")
    a.I("s_lshr_b32 s18, s11, 2")
    a.I(f"v_lshlrev_b32 {v(L16)}, 4, v0")
    a.I(f"v_add_u32 {v(L16B)}, {0x40000 - 1024}, {v(L16)}")
    a.I("s_lshl_b32 s19, s16, 14")
    a.I(f"v_add_u32 {v(LR)}, s19, {v(L16)}")
    a.I("s_lshl_b32 s42, s18, 19")
    a.I("s_lshl_b32 s10, s16, 16")
    a.I("s_add_u32 s42, s42, s10")
    a.I("s_lshl_b32 s43, s17, 19")
    a.I("s_lshl_b32 s10, s16, 15")
    a.I("s_add_u32 s43, s43, s10")
    a.I("s_waitcnt lgkmcnt(0)")
    srd(a, 20, 4, 5, 16 * MB + 2048, add=WS_CTX - 2048)
    srd(a, 24, 4, 5, 4 * MB, add=WS_WO)
    vm, lg = VM(a), LG(a)
    st()

    def loads(g):
        sl = g % DEPTH
        return [lambda: a.I(f"s_add_u32 m0, s19, {sl * 4096}"),
                lambda: a.I("s_nop 0") if g < DEPTH else None,
                lambda: vm.issue(f"buffer_load_dwordx4 {v(L16)}, s[24:27], s42 offen lds", g),
                lambda: vm.issue(f"buffer_load_dwordx4 {v(L16)}, s[24:27], s42 offen offset:1024 lds", g),
                lambda: vm.issue(f"buffer_load_dwordx4 {v(L16)}, s[20:23], s43 offen offset:2048 lds", g),
                lambda: vm.issue(f"buffer_load_dwordx4 {v(L16B)}, s[20:23], s43 offen offset:3072 lds", g),
                lambda: a.I("s_add_u32 s42, s42, 2048"),
                lambda: a.I("s_add_u32 s43, s43, 1024")]

    def reads(g):
        vm.wait(g)
        for q in range(4):
            lg.issue(f"ds_read_b128 {v(FR + 16 * (g & 1) + 4 * q, 4)}, {v(LR)} offset:{(g % DEPTH) * 4096 + q * 1024}", g)

    for g in range(DEPTH):
        for f in loads(g):
            f()
    srd(a, 28, 8, 9, 4 * MB)
    a.I("v_lshrrev_b32 v9, 5, v0")
    a.I("v_and_b32 v10, 31, v0")
    a.I("v_lshlrev_b32 v10, 4, v10")
    a.I("v_lshl_add_u32 v9, v9, 13, v10")
    a.I("s_lshl_b32 s10, s16, 10")
    a.I("v_add_u32 v9, s10, v9")
    a.I("v_add_u32 v11, 0x10000, v9")
    a.I("s_lshl_b32 s11, s17, 17")
    a.I("s_lshl_b32 s12, s18, 7")
    a.I("s_add_u32 s11, s11, s12")
    a.I("s_lshl_b32 s12, s16, 4")
    a.I("s_add_u32 s11, s11, s12")
    a.I("v_lshlrev_b32 v10, 11, v0")
    st()
    reads(0)
    st()
    NG = 32
    for g in range(NG):
        if g + 1 < NG:
            reads(g + 1)
        lg.wait(g)
        L = loads(g + DEPTH) if g + DEPTH < NG else []
        fr = FR + 16 * (g & 1)
        for qt in range(2):
            for cb in range(2):
                acc = v(ACC + 16 * (2 * qt + cb), 16)
                if L:
                    L.pop(0)()
                a.I(f"{MF} {acc}, {v(fr + 4 * cb, 4)}, {v(fr + 8 + 4 * qt, 4)}, {'0' if g == 0 else acc}")
                if L:
                    L.pop(0)()
        if g == bar_at:
            a.I("s_barrier")
    st()
    a.I("s_nop 8")
    for tl in range(4):
        for jq in range(4):
            a.I(f"ds_write_b128 {v(LR)}, {v(ACC + 16 * tl + 4 * jq, 4)} offset:{(tl * 4 + jq) * 1024}")
    a.I("s_waitcnt lgkmcnt(0)")
    a.I("s_barrier")
    for pw in range(8):
        for hl in range(2):
            a.I(f"ds_read_b128 {v(ACC + 8 * pw + 4 * hl, 4)}, {v(9 if pw < 4 else 11)} offset:{(pw % 4) * 16384 + hl * 512}")
        if pw == 6:
            a.I("s_waitcnt lgkmcnt(6)")
    for j in range(8):
        a.I(f"v_add_f32 {v(ACC + j)}, {v(ACC + j)}, {v(ACC + 8 + j)}")
        a.I(f"v_add_f32 {v(ACC + 16 + j)}, {v(ACC + 16 + j)}, {v(ACC + 24 + j)}")
    a.I("s_waitcnt lgkmcnt(0)")
    for j in range(8):
        a.I(f"v_add_f32 {v(ACC + 32 + j)}, {v(ACC + 32 + j)}, {v(ACC + 40 + j)}")
        a.I(f"v_add_f32 {v(ACC + 48 + j)}, {v(ACC + 48 + j)}, {v(ACC + 56 + j)}")
    for j in range(8):
        a.I(f"v_add_f32 {v(ACC + j)}, {v(ACC + j)}, {v(ACC + 16 + j)}")
        a.I(f"v_add_f32 {v(ACC + 32 + j)}, {v(ACC + 32 + j)}, {v(ACC + 48 + j)}")
    for j in range(8):
        a.I(f"v_add_f32 {v(ACC + j)}, {v(ACC + j)}, {v(ACC + 32 + j)}")
    for i in range(4):
        a.I(f"v_cvt_pk_bf16_f32 {v(12 + i)}, {v(ACC + 2 * i)}, {v(ACC + 2 * i + 1)}")
    a.I("buffer_store_dwordx4 v[12:15], v10, s[28:31], s11 offen")


def oproj_finish(a, ACC, PW=16384):
    for pw in range(4):
        for i in range(4):
            jq, hl = divmod(i, 2)
            if pw == 2 and i == 0 and PW > 16384:
                a.I("v_add_u32 v9, 0x10000, v9")
            a.I(f"ds_read_b128 {v(ACC + 16 * pw + 4 * i, 4)}, v9 offset:{(pw * PW) % 65536 + jq * 1024 + hl * 512}")
        if pw == 1:
            a.I("s_waitcnt lgkmcnt(0)")
            for j in range(16):
                a.I(f"v_add_f32 {v(ACC + j)}, {v(ACC + j)}, {v(ACC + 16 + j)}")
    a.I("s_waitcnt lgkmcnt(0)")
    for j in range(16):
        a.I(f"v_add_f32 {v(ACC + 32 + j)}, {v(ACC + 32 + j)}, {v(ACC + 48 + j)}")
    for j in range(16):
        a.I(f"v_add_f32 {v(ACC + j)}, {v(ACC + j)}, {v(ACC + 32 + j)}")
    for i in range(8):
        a.I(f"v_cvt_pk_bf16_f32 {v(12 + i)}, {v(ACC + 2 * i)}, {v(ACC + 2 * i + 1)}")
    a.I("buffer_store_dwordx4 v[12:15], v10, s[28:31], s11 offen")
    a.I("buffer_store_dwordx4 v[16:19], v10, s[28:31], s11 offen offset:16")


def gen_oproj():
    a = Asm()
    N = "oproj_kernel"
    kstart(a, N, 256)
    a.I("s_load_dwordx2 s[4:5], s[0:1], 88")
    a.I("s_load_dwordx2 s[6:7], s[0:1], 40")
    a.I("s_load_dwordx2 s[8:9], s[0:1], 72")
    a.I("v_lshrrev_b32 v1, 6, v0")
    a.I("v_and_b32 v0, 63, v0")
    a.I("s_nop 0")
    a.I("v_readfirstlane_b32 s16, v1")
    a.I("s_nop 0")
    st = Stamper(a, "oproj")
    ACC = oproj_body(a, N, st)
    a.I("s_barrier")
    oproj_finish(a, ACC)
    st.dump(16, 4, tmpv=8)
    kend(a, N)
    return a, N, (256, 256, 65536)


def PERMC(j):
    return 8 * (j >> 2) + (j & 3)


def gen_mat(a, dst, nf, base, consts, tmp):
    n = len(consts)
    for i in range(0, n, 4):
        for q in range(4):
            a.I(f"v_fmamk_f32 {v(tmp + q)}, {v(nf)}, {f32(float(consts[i + q]))}, {v(base)}")
        for q in range(4):
            a.I(f"v_cos_f32 {v(tmp + q)}, {v(tmp + q)}")
        a.I("s_nop 0")
        for q in range(2):
            a.I(f"v_cvt_pk_bf16_f32 {v(dst + i // 2 + q)}, {v(tmp + 2 * q)}, {v(tmp + 2 * q + 1)}")


def twiddle(a, Dr, Di, regs, nf, base, consts, sign, tmp):
    for x, c in enumerate(consts):
        A, C, S_, U = tmp, tmp + 1, tmp + 2, tmp + 3
        a.I(f"v_fmamk_f32 {v(A)}, {v(nf)}, {f32(float(c))}, {v(base)}")
        a.I(f"v_cos_f32 {v(C)}, {v(A)}")
        a.I(f"v_sin_f32 {v(S_)}, {v(A)}")
        a.I("s_nop 0")
        for j in regs[x]:
            ng = "-" if sign > 0 else ""
            ps = "" if sign > 0 else "-"
            a.I(f"v_mul_f32 {v(U)}, {v(Dr + j)}, {v(S_)}")
            a.I(f"v_mul_f32 {v(Dr + j)}, {v(Dr + j)}, {v(C)}")
            a.I(f"v_fma_f32 {v(Dr + j)}, {ng}{v(Di + j)}, {v(S_)}, {v(Dr + j)}")
            a.I(f"v_fma_f32 {v(Di + j)}, {v(Di + j)}, {v(C)}, {ps}{v(U)}")


def trig(a, j, C, S_, nf, base, c, tmp, scale=None):
    L = [f"v_fmamk_f32 {v(tmp)}, {v(nf)}, {f32(float(c))}, {v(base)}",
         f"v_cos_f32 {v(C)}, {v(tmp)}", f"v_sin_f32 {v(S_)}, {v(tmp)}"]
    return L


def cmul(a, Dr, Di, C, S_, sign, U):
    ng = "-" if sign > 0 else ""
    ps = "" if sign > 0 else "-"
    a.I(f"v_mul_f32 {v(U)}, {v(Dr)}, {v(S_)}")
    a.I(f"v_mul_f32 {v(Dr)}, {v(Dr)}, {v(C)}")
    a.I(f"v_fma_f32 {v(Dr)}, {ng}{v(Di)}, {v(S_)}, {v(Dr)}")
    a.I(f"v_fma_f32 {v(Di)}, {v(Di)}, {v(C)}, {ps}{v(U)}")


def pack(a, dst, src, n):
    for i in range(n):
        a.I(f"v_cvt_pk_bf16_f32 {v(dst + i)}, {v(src + 2 * i)}, {v(src + 2 * i + 1)}")


def b_decode(a):
    a.I("s_and_b32 s20, s2, 7")
    a.I("s_lshl_b32 s20, s20, 3")
    a.I("s_bfe_u32 s22, s2, 0x30003")
    a.I("s_or_b32 s20, s20, s22")
    a.I("s_lshr_b32 s21, s2, 6")


def gen_b1():
    a = Asm()
    N = "b1_kernel"
    kstart(a, N, 256)
    a.I("s_load_dwordx2 s[4:5], s[0:1], 88")
    a.I("s_load_dwordx4 s[8:11], s[0:1], 48")
    a.I("s_load_dwordx2 s[12:13], s[0:1], 64")
    a.I("v_lshrrev_b32 v1, 6, v0")
    a.I("v_and_b32 v2, 255, v0")
    a.I("v_and_b32 v0, 63, v0")
    a.I("v_readfirstlane_b32 s16, v1")
    b_decode(a)
    a.I("s_lshr_b32 s23, s21, 1")
    a.I("s_lshl_b32 s23, s23, 11")
    a.I("s_lshr_b32 s24, s20, 5")
    a.I("s_lshl_b32 s24, s24, 10")
    a.I("s_add_u32 s23, s23, s24")
    a.I("s_and_b32 s24, s20, 31")
    a.I("s_lshl_b32 s24, s24, 4")
    a.I("s_add_u32 s23, s23, s24")
    a.I("s_and_b32 s24, s21, 1")
    a.I("s_lshl_b32 s24, s24, 9")
    a.I("s_add_u32 s23, s23, s24")
    a.I("s_add_u32 s24, s23, 4096")
    a.I("v_lshlrev_b32 v3, 13, v2")
    a.I("s_cmp_ge_u32 s16, 4")
    a.I("s_waitcnt lgkmcnt(0)")
    a.I(f"s_cbranch_scc1 {N}_filt")
    srd(a, 28, 8, 9, 2 * MB)
    srd(a, 32, 4, 5, 257 * 8192, add=WS_Y)
    a.I("s_lshr_b32 s25, s21, 1")
    a.I("s_lshl_b32 s25, s25, 4")
    a.I("s_and_b32 s26, s21, 1")
    a.I("s_lshl_b32 s26, s26, 2")
    a.I("s_add_u32 s25, s25, s26")
    a.I("s_lshr_b32 s26, s16, 1")
    a.I("s_lshl_b32 s26, s26, 3")
    a.I("s_add_u32 s25, s25, s26")
    a.I("s_and_b32 s26, s16, 1")
    a.I("s_lshl_b32 s26, s26, 1")
    a.I("s_add_u32 s25, s25, s26")
    a.I("s_lshl_b32 s25, s25, 6")
    a.I("s_add_u32 s25, s25, s20")
    a.I("s_lshl_b32 s25, s25, 10")
    a.I(f"s_add_u32 s26, s25, {65536 - 1024}")
    a.I("s_lshl_b32 s27, s16, 11")
    a.I("s_mov_b32 m0, s27")
    a.I("v_lshlrev_b32 v4, 4, v0")
    a.I("buffer_load_dwordx4 v4, s[28:31], s25 offen lds")
    a.I("buffer_load_dwordx4 v4, s[28:31], s26 offen offset:1024 lds")
    HL, NF, BS, TM = 5, 6, 7, 8
    C32, NS32, AR, AI, XF, D1R, D1I, TR, TI, D2 = 16, 24, 32, 36, 40, 48, 64, 80, 88, 96
    a.I(f"v_lshrrev_b32 {v(HL)}, 5, v0")
    a.I(f"v_cvt_f32_u32 {v(HL)}, {v(HL)}")
    a.I("v_and_b32 v12, 31, v0")
    a.I("v_cvt_f32_u32 v12, v12")
    a.I(f"v_mul_f32 {v(NF)}, {f32(1 / 32)}, v12")
    a.I(f"v_mul_f32 {v(BS)}, {v(NF)}, {v(HL)}")
    a.I(f"v_mul_f32 {v(BS)}, {f32(8.0)}, {v(BS)}")
    nat = [16 * t + j for t in range(2) for j in range(8)]
    gen_mat(a, C32, NF, BS, nat, TM)
    a.I(f"v_add_f32 {v(BS)}, {f32(0.25)}, {v(BS)}")
    gen_mat(a, NS32, NF, BS, nat, TM)
    a.I("v_and_b32 v13, 15, v0")
    a.I("v_cvt_f32_u32 v13, v13")
    a.I(f"v_mul_f32 {v(NF)}, {f32(1 / 16)}, v13")
    a.I("v_bfe_u32 v13, v0, 4, 1")
    a.I("v_cvt_f32_u32 v13, v13")
    a.I(f"v_mul_f32 {v(BS)}, {v(NF)}, {v(HL)}")
    a.I(f"v_mul_f32 {v(BS)}, 4.0, {v(BS)}")
    a.I(f"v_fmamk_f32 {v(BS)}, v13, {f32(0.25)}, {v(BS)}")
    pc = [PERMC(j) for j in range(8)]
    gen_mat(a, AR, NF, BS, pc, TM)
    a.I(f"v_add_f32 {v(BS)}, {f32(-0.25)}, {v(BS)}")
    gen_mat(a, AI, NF, BS, pc, TM)
    a.I("v_bfe_u32 v13, v0, 4, 1")
    a.I("v_lshlrev_b32 v13, 10, v13")
    a.I("v_lshrrev_b32 v14, 5, v0")
    a.I("v_lshl_add_u32 v13, v14, 8, v13")
    a.I("v_and_b32 v15, 15, v0")
    a.I("v_lshl_add_u32 v13, v15, 3, v13")
    a.I("v_add_u32 v13, s27, v13")
    a.I("s_waitcnt vmcnt(0)")
    for t in range(2):
        for h in range(2):
            a.I(f"ds_read_b64_tr_b16 {v(XF + 4 * t + 2 * h, 2)}, v13 offset:{t * 512 + h * 128}")
    a.I(f"v_mul_f32 {v(NF)}, {f32(1 / 512)}, v12")
    a.I(f"v_mul_f32 {v(BS)}, {v(NF)}, {v(HL)}")
    a.I(f"v_mul_f32 {v(BS)}, 4.0, {v(BS)}")
    a.I("s_waitcnt lgkmcnt(0)")
    for t in range(2):
        a.I(f"{MF} {v(D1R, 16)}, {v(XF + 4 * t, 4)}, {v(C32 + 4 * t, 4)}, {'0' if t == 0 else v(D1R, 16)}")
    for t in range(2):
        a.I(f"{MF} {v(D1I, 16)}, {v(XF + 4 * t, 4)}, {v(NS32 + 4 * t, 4)}, {'0' if t == 0 else v(D1I, 16)}")
    a.I("v_and_b32 v15, 31, v0")
    a.I("v_lshlrev_b32 v15, 4, v15")
    a.I("v_lshl_add_u32 v15, v14, 11, v15")
    a.I("s_lshl_b32 s25, s16, 2")
    a.I("s_add_u32 s25, s25, 8192")
    a.I("v_add_u32 v15, s25, v15")
    a.I("s_nop 7")
    twiddle(a, D1R, D1I, [[j, j + 8] for j in range(8)], NF, BS, pc, -1, TM)
    pack(a, TR, D1R, 8)
    pack(a, TI, D1I, 8)
    a.I("s_nop 1")
    for r in range(2):
        a.I(f"{MF} {v(D2 + 16 * r, 16)}, {v(AR, 4)}, {v(TR + 4 * r, 4)}, 0")
        a.I(f"{MF} {v(D2 + 16 * r, 16)}, {v(AI, 4)}, {v(TI + 4 * r, 4)}, {v(D2 + 16 * r, 16)}")
    a.I("s_nop 11")
    for c in range(2):
        for j in range(5):
            a.I(f"v_cvt_pk_bf16_f32 {v(TR + 5 * c + j)}, {v(D2 + 8 * c + j)}, {v(D2 + 16 + 8 * c + j)}")
    for c in range(2):
        for j in range(4):
            a.I(f"ds_write_b32 v15, {v(TR + 5 * c + j)} offset:{(c * 8 + j) * 512}")
    a.I("v_cmp_eq_u32 vcc, 0, v0")
    a.I("s_and_saveexec_b64 s[36:37], vcc")
    for c in range(2):
        a.I(f"ds_write_b32 v15, {v(TR + 5 * c + 4)} offset:{8192 + 16 * c}")
    a.I("s_mov_b64 exec, s[36:37]")
    a.I("v_lshlrev_b32 v14, 4, v2")
    a.I("s_waitcnt lgkmcnt(0)")
    a.I("s_barrier")
    a.I("ds_read_b128 v[16:19], v14 offset:8192")
    a.I(f"ds_read_b128 v[20:23], v14 offset:{8192 + 4096}")
    a.I(f"ds_read_b128 v[24:27], v14 offset:{8192 + 8192}")
    a.I("v_lshlrev_b32 v13, 12, v2")
    a.I(f"v_add_u32 v13, {256 * 8192}, v13")
    a.I("s_waitcnt lgkmcnt(0)")
    a.I("buffer_store_dwordx4 v[16:19], v3, s[32:35], s23 offen")
    a.I("buffer_store_dwordx4 v[20:23], v3, s[32:35], s24 offen")
    a.I("v_cmp_gt_u32 vcc, 2, v2")
    a.I("s_and_saveexec_b64 s[36:37], vcc")
    a.I(f"s_cbranch_execz {N}_end")
    a.I("buffer_store_dwordx4 v[24:27], v13, s[32:35], s23 offen")
    a.I("s_endpgm")
    a.label(f"{N}_filt")
    srd(a, 28, 10, 11, 2048 * 514)
    srd(a, 32, 12, 13, 2048 * 514)
    srd(a, 36, 4, 5, 257 * 8192, add=WS_WF)
    a.I("s_lshr_b32 s25, s21, 1")
    a.I("s_lshl_b32 s25, s25, 5")
    a.I("s_lshr_b32 s26, s20, 5")
    a.I("s_lshl_b32 s26, s26, 4")
    a.I("s_add_u32 s25, s25, s26")
    a.I("s_and_b32 s26, s21, 1")
    a.I("s_lshl_b32 s26, s26, 2")
    a.I("s_add_u32 s25, s25, s26")
    a.I("s_lshl_b32 s25, s25, 5")
    a.I("s_and_b32 s26, s20, 31")
    a.I("s_add_u32 s25, s25, s26")
    a.I("s_mul_i32 s25, s25, 514")
    for j in range(8):
        a.I(f"s_add_u32 s{40 + j}, s25, {PERMC(j) * 32 * 514}")
    a.I("v_lshlrev_b32 v4, 1, v2")
    a.I("v_mov_b32 v5, 512")
    for q, va in enumerate((4, 5)):
        for c in range(2):
            for j in range(8):
                a.I(f"buffer_load_ushort {v(32 + 16 * q + 8 * c + j)}, {v(va)}, s[{28 + 4 * c}:{31 + 4 * c}], s{40 + j} offen")
    a.I(f"v_mov_b32 v6, {256 * 8192}")
    a.I("s_waitcnt vmcnt(16)")
    for i in range(8):
        a.I(f"v_lshl_or_b32 {v(16 + i)}, {v(33 + 2 * i)}, 16, {v(32 + 2 * i)}")
    a.I("buffer_store_dwordx4 v[16:19], v3, s[36:39], s23 offen")
    a.I("buffer_store_dwordx4 v[20:23], v3, s[36:39], s24 offen")
    a.I("v_cmp_eq_u32 vcc, 0, v2")
    a.I("s_and_saveexec_b64 s[48:49], vcc")
    a.I(f"s_cbranch_execz {N}_end")
    a.I("s_waitcnt vmcnt(2)")
    for i in range(8):
        a.I(f"v_lshl_or_b32 {v(24 + i)}, {v(49 + 2 * i)}, 16, {v(48 + 2 * i)}")
    a.I("buffer_store_dwordx4 v[24:27], v6, s[36:39], s23 offen")
    a.I("buffer_store_dwordx4 v[28:31], v6, s[36:39], s24 offen")
    kend(a, N)
    return a, N, (256, 512, 20480)


def b2_loads(a, vm, col_s, own_s, L16, YR, WR, S0, SR):
    sY, sW = S0, S0 + 2
    a.I(f"s_lshl_b32 {s(sY)}, {s(col_s)}, 13")
    a.I(f"s_lshl_b32 {s(own_s)}, {s(own_s)}, 10")
    a.I(f"s_add_u32 {s(sY)}, {s(sY)}, {s(own_s)}")
    a.I(f"s_add_u32 {s(sY + 1)}, {s(sY)}, 4096")
    a.I(f"s_add_u32 {s(sW)}, {s(sY)}, {s(own_s)}")
    a.I(f"s_add_u32 {s(sW + 1)}, {s(sW)}, 4096")
    srd(a, SR, 4, 5, 257 * 8192, add=WS_Y)
    for c in range(2):
        for t in range(2):
            vm.issue(f"buffer_load_dwordx4 {v(YR + 8 * c + 4 * t, 4)}, {v(L16)}, {s(SR, 4)}, {s(sY + c)} offen offset:{t * 2048}", "Y")
    srd(a, SR + 4, 4, 5, 257 * 8192, add=WS_WF)
    for c in range(2):
        for h in range(2):
            vm.issue(f"buffer_load_dwordx4 {v(WR + 8 * c + 4 * h, 4)}, {v(L16)}, {s(SR + 4, 4)}, {s(sW + c)} offen offset:{h * 1024}", "WF")


def b2_body(a, own, col_s, lds_s, svc, vm, R0=0, S0=20, SR=28, slice_len=110, rmap=None, after_loads=None, st=lambda: None, preloaded=False, compact_ex=False, newer=8, zpol=''):
    L16, HL, NF, BS, LF, XA, XB, TM, LB = [R0 + x for x in (1, 2, 3, 4, 5, 6, 7, 8, 12)]
    YR, YI, WR, WI = [R0 + x for x in (16, 24, 32, 40)]
    C32, S32, NS32, C64, S64 = [R0 + x for x in (48, 56, 64, 72, 88)]
    DR, DI = R0 + 104, R0 + 120
    FR, FI, FN = R0 + 136, R0 + 152, R0 + 168
    XT = 240
    if rmap:
        L16, HL, NF, BS, LF, XA, XB, TM, LB, YR, YI, WR, WI, C32, S32, NS32, C64, S64, DR, DI, FR, FI, FN = rmap
    sY, sW, sSC, sT = S0, S0 + 2, S0 + 4, S0 + 5
    I0 = a.I
    cnt = [0]

    def I(text):
        r = I0(text)
        cnt[0] += 1
        if cnt[0] >= slice_len and (text.startswith("v_cvt_pk") or text.startswith("v_fma_f32") or text.startswith("v_sin")):
            dosvc()
        return r

    def dosvc():
        a.I = I0
        svc()
        a.I = I
        cnt[0] = 0

    a.I(f"v_lshlrev_b32 {v(L16)}, 4, v0")
    if preloaded:
        vm.q += ["Y"] * 4 + ["WF"] * 4 + ["Q"] * newer
    else:
        a.I(f"s_mov_b32 {s(sT)}, {own}")
        b2_loads(a, vm, col_s, sT, L16, YR, WR, S0, SR)
    srd(a, SR + 8, 4, 5, 257 * 8192, add=WS_Z)
    a.I = I
    a.I(f"s_mov_b32 {s(sSC)}, {f32(2.0 ** -19)}")
    a.I(f"s_and_b32 {s(sT)}, {s(col_s)}, 255")
    a.I(f"s_cmp_eq_u32 {s(sT)}, 0")
    a.I(f"s_cselect_b32 {s(sSC)}, {f32(2.0 ** -20)}, {s(sSC)}")
    a.I(f"v_lshrrev_b32 {v(HL)}, 5, v0")
    a.I(f"v_cvt_f32_u32 {v(HL)}, {v(HL)}")
    a.I(f"v_mul_f32 {v(HL)}, 4.0, {v(HL)}")
    a.I(f"v_and_b32 {v(LF)}, 31, v0")
    a.I(f"v_cvt_f32_u32 {v(LF)}, {v(LF)}")
    a.I(f"v_add_f32 {v(LB)}, {f32(32.0 * own)}, {v(LF)}")
    pc = lambda n: [16 * t + PERMC(j) for t in range(n) for j in range(8)]
    a.I(f"v_mul_f32 {v(NF)}, {f32(1 / 32)}, {v(LF)}")
    a.I(f"v_mul_f32 {v(BS)}, {v(NF)}, {v(HL)}")
    gen_mat(a, C32, NF, BS, pc(2), TM)
    a.I(f"v_add_f32 {v(BS)}, {f32(-0.25)}, {v(BS)}")
    gen_mat(a, S32, NF, BS, pc(2), TM)
    for i in range(8):
        a.I(f"v_xor_b32 {v(NS32 + i)}, 0x80008000, {v(S32 + i)}")
    a.I(f"v_mul_f32 {v(NF)}, {f32(1 / 64)}, {v(LB)}")
    a.I(f"v_mul_f32 {v(BS)}, {v(NF)}, {v(HL)}")
    gen_mat(a, C64, NF, BS, pc(4), TM)
    a.I(f"v_add_f32 {v(BS)}, {f32(-0.25)}, {v(BS)}")
    gen_mat(a, S64, NF, BS, pc(4), TM)
    a.I(f"v_add_u32 {v(XA)}, {s(lds_s)}, {v(L16)}")
    a.I(f"v_add_u32 {v(XB)}, {(1 - own) * 4096}, {v(XA)}")
    a.I(f"v_add_u32 {v(XA)}, {own * 4096}, {v(XA)}")

    def mm(D, terms, fill=None, per=3):
        first = True
        for A_, B_ in terms:
            a.I(f"{MF} {v(D, 16)}, {v(A_, 4)}, {v(B_, 4)}, {'0' if first else v(D, 16)}")
            first = False
            if fill:
                for x in fill[:per]:
                    a.I(x)
                del fill[:per]

    def exchange(neg_of, ldsoff):
        nonlocal XA, XB
        if compact_ex and ldsoff:
            XA, XB, ldsoff = XB, XA, 0
        for c, F in enumerate((FR, FI)):
            for h in range(2):
                a.I(f"ds_write_b128 {v(XA)}, {v(F + 8 * own + 4 * h, 4)} offset:{ldsoff + (2 * c + h) * 1024}")
        a.I("s_waitcnt lgkmcnt(0)")
        dosvc()
        for c, F in enumerate((FR, FI)):
            for h in range(2):
                a.I(f"ds_read_b128 {v(F + 8 * (1 - own) + 4 * h, 4)}, {v(XB)} offset:{ldsoff + (2 * c + h) * 1024}")
        for i in range(8):
            a.I(f"v_xor_b32 {v(FN + 8 * own + i)}, 0x80008000, {v(neg_of + 8 * own + i)}")
        a.I("s_waitcnt lgkmcnt(0)")
        for i in range(8):
            a.I(f"v_xor_b32 {v(FN + 8 * (1 - own) + i)}, 0x80008000, {v(neg_of + 8 * (1 - own) + i)}")
        a.I("s_nop 1")

    jc = [(j & 3) + 8 * (j >> 2) for j in range(16)]
    o = 8 * (1 - own)
    T1C = [FN + j for j in range(16)]
    T1S = [FR + o + j for j in range(8)] + [FI + o + j for j in range(8)]
    a.I(f"v_mul_f32 {v(NF)}, {f32(1 / 2048)}, {v(LF)}")
    a.I(f"v_add_f32 {v(BS)}, {f32(32.0 * own)}, {v(HL)}")
    a.I(f"v_mul_f32 {v(BS)}, {v(NF)}, {v(BS)}")
    for j in range(16):
        a.many(trig(a, j, T1C[j], T1S[j], NF, BS, jc[j], TM + (j & 1)))
    a.I(f"v_mul_f32 {v(NF)}, {f32(1 / 2048)}, {v(LB)}")
    a.I(f"v_mul_f32 {v(BS)}, {v(NF)}, {v(HL)}")
    st()
    vm.wait("Y")
    st()
    mm(DR, [(YR, C32), (YR + 4, C32 + 4), (YI, S32), (YI + 4, S32 + 4)])
    mm(DI, [(YI, C32), (YI + 4, C32 + 4), (YR, NS32), (YR + 4, NS32 + 4)])
    a.I("s_nop 11")
    for j in range(16):
        cmul(a, DR + j, DI + j, T1C[j], T1S[j], -1, TM)
    pack(a, FR + 8 * own, DR, 8)
    pack(a, FI + 8 * own, DI, 8)
    exchange(FR, 0)
    st()
    if after_loads:
        after_loads()
    T2C = [YR + j for j in range(8)] + [YI + j for j in range(8)]
    fill = []
    for j in range(16):
        fill += trig(a, j, T2C[j], XT + j, NF, BS, jc[j], TM + (j & 1))
    mm(DR, [(C64 + 4 * t, FR + 4 * t) for t in range(4)] + [(S64 + 4 * t, FI + 4 * t) for t in range(4)], fill)
    mm(DI, [(C64 + 4 * t, FI + 4 * t) for t in range(4)] + [(S64 + 4 * t, FN + 4 * t) for t in range(4)], fill)
    assert not fill
    vm.wait("WF")
    for j in range(12):
        a.I(f"v_mul_f32 {v(T2C[j])}, {s(sSC)}, {v(T2C[j])}")
    for j in range(16):
        wr, wi, u = TM, TM + 1, TM + 2
        if j & 1:
            a.I(f"v_and_b32 {v(wr)}, 0xffff0000, {v(WR + j // 2)}")
            a.I(f"v_and_b32 {v(wi)}, 0xffff0000, {v(WI + j // 2)}")
        else:
            a.I(f"v_lshlrev_b32 {v(wr)}, 16, {v(WR + j // 2)}")
            a.I(f"v_lshlrev_b32 {v(wi)}, 16, {v(WI + j // 2)}")
        cmul(a, DR + j, DI + j, wr, wi, +1, u)
    pack(a, FR + 8 * own, DR, 8)
    pack(a, FI + 8 * own, DI, 8)
    exchange(FI, 8192)
    st()
    fill = [f"v_mul_f32 {v(T2C[j])}, {s(sSC)}, {v(T2C[j])}" for j in range(12, 16)]
    fill += [f"v_mul_f32 {v(XT + j)}, {s(sSC)}, {v(XT + j)}" for j in range(16)]
    mm(DR, [(FR + 4 * t, C64 + 4 * t) for t in range(4)] + [(FN + 4 * t, S64 + 4 * t) for t in range(4)], fill)
    mm(DI, [(FI + 4 * t, C64 + 4 * t) for t in range(4)] + [(FR + 4 * t, S64 + 4 * t) for t in range(4)], fill)
    a.I("s_nop 11")
    for j in range(16):
        cmul(a, DR + j, DI + j, T2C[j], XT + j, +1, TM)
    pack(a, FR, DR, 8)
    pack(a, FI, DI, 8)
    a.I("s_nop 1")
    mm(DR, [(C32, FR), (C32 + 4, FR + 4), (NS32, FI), (NS32 + 4, FI + 4)])
    mm(DI, [(C32, FI), (C32 + 4, FI + 4), (S32, FR), (S32 + 4, FR + 4)])
    a.I = I0
    a.I("s_nop 7")
    pack(a, YR, DR, 8)
    a.I("s_nop 3")
    pack(a, YI, DI, 8)
    for c in range(2):
        for h in range(2):
            vm.issue(f"buffer_store_dwordx4 {v(YR + 8 * c + 4 * h, 4)}, {v(L16)}, {s(SR + 8, 4)}, {s(sW + c)} offen offset:{h * 1024}{zpol}", "Z")


def gen_b2():
    a = Asm()
    N = "b2_kernel"
    kstart(a, N, 257)
    a.I("s_load_dwordx2 s[4:5], s[0:1], 88")
    a.I("v_lshrrev_b32 v1, 6, v0")
    a.I("v_and_b32 v0, 63, v0")
    a.I("s_mov_b32 s17, 0")
    a.I("v_readfirstlane_b32 s16, v1")
    a.I("s_waitcnt lgkmcnt(0)")
    a.I("s_cmp_eq_u32 s16, 1")
    a.I(f"s_cbranch_scc1 {N}_w1")
    b2_body(a, 0, 2, 17, lambda: a.I("s_barrier"), VM(a), slice_len=10 ** 9)
    a.I("s_endpgm")
    a.label(f"{N}_w1")
    b2_body(a, 1, 2, 17, lambda: a.I("s_barrier"), VM(a), slice_len=10 ** 9)
    kend(a, N)
    return a, N, (257, 128, 16384)


def b3_loads(a, outp=6, pol='', before=None):
    b_decode(a)
    a.I("s_lshr_b32 s23, s20, 5")
    a.I("s_lshl_b32 s23, s23, 11")
    a.I("s_lshl_b32 s24, s21, 9")
    a.I("s_add_u32 s23, s23, s24")
    a.I("s_and_b32 s24, s20, 31")
    a.I("s_lshl_b32 s24, s24, 4")
    a.I("s_add_u32 s23, s23, s24")
    a.I("s_add_u32 s24, s23, 4096")
    a.I("v_lshlrev_b32 v3, 13, v2")
    a.I(f"v_mov_b32 v4, {256 * 8192}")
    a.I("s_waitcnt lgkmcnt(0)")
    srd(a, 28, 4, 5, 257 * 8192, add=WS_Z)
    srd(a, 32, outp, outp + 1, 4 * MB)
    if before:
        before()
    a.I(f"buffer_load_dwordx4 v[16:19], v3, s[28:31], s23 offen{pol}")
    a.I(f"buffer_load_dwordx4 v[20:23], v3, s[28:31], s24 offen{pol}")
    a.I(f"buffer_load_dwordx4 v[24:27], v4, s[28:31], s23 offen{pol}")


def b3_body(a, LB=0, outp=6, nafter=0, loaded=False, mid=None, part=0, bar=None, rm=None):
    if not loaded:
        b3_loads(a, outp)
    n0 = len(a.items)
    HL, NF, BS, AFL, TM = 5, 6, 7, 12, 8
    C32, NS32, BRE, BIM, MT, ZF, UR, UI, TR, TI = rm or (32, 40, 48, 56, 64, 68, 76, 92, 108, 116)
    a.I(f"v_lshrrev_b32 {v(HL)}, 5, v0")
    a.I(f"v_cvt_f32_u32 {v(HL)}, {v(HL)}")
    a.I("v_and_b32 v13, 31, v0")
    a.I("v_cvt_f32_u32 v13, v13")
    a.I(f"v_mul_f32 {v(NF)}, {f32(1 / 32)}, v13")
    a.I(f"v_mul_f32 {v(BS)}, {v(NF)}, {v(HL)}")
    a.I(f"v_mul_f32 {v(BS)}, 4.0, {v(BS)}")
    pc = [16 * t + PERMC(j) for t in range(2) for j in range(8)]
    gen_mat(a, C32, NF, BS, pc, TM)
    a.I(f"v_add_f32 {v(BS)}, {f32(0.25)}, {v(BS)}")
    gen_mat(a, NS32, NF, BS, pc, TM)
    a.I(f"v_and_b32 {v(AFL)}, 15, v0")
    a.I(f"v_cvt_f32_u32 {v(AFL)}, {v(AFL)}")
    a.I(f"v_mul_f32 {v(NF)}, {f32(1 / 16)}, {v(AFL)}")
    a.I(f"v_mul_f32 {v(BS)}, {f32(0.25)}, {v(HL)}")
    a.I("v_and_b32 v13, 16, v0")
    a.I("v_cmp_eq_u32 vcc, 0, v13")
    a.I("v_mov_b32 v14, 0")
    for B_, ph in ((BRE, None), (BIM, -0.25)):
        if ph:
            a.I(f"v_add_f32 {v(BS)}, {f32(ph)}, {v(BS)}")
        gen_mat(a, MT, NF, BS, list(range(8)), TM)
        for i in range(4):
            a.I(f"v_cndmask_b32 {v(B_ + i)}, v14, {v(MT + i)}, vcc")
            a.I(f"v_cndmask_b32 {v(B_ + 4 + i)}, {v(MT + i)}, v14, vcc")
    if part == 1:
        return
    if part == 2:
        del a.items[n0:]
    if mid:
        mid()
    a.I("v_and_b32 v13, 31, v2")
    a.I("v_lshlrev_b32 v13, 4, v13")
    a.I("v_lshrrev_b32 v15, 5, v2")
    a.I("v_lshl_add_u32 v13, v15, 1, v13")
    a.I(f"v_add_u32 v13, {LB}, v13")
    a.I("v_cmp_eq_u32 vcc, 0, v2")
    a.I(f"v_mov_b32 v15, {LB + 8192}")
    a.I(f"s_waitcnt vmcnt({nafter})")
    for i in range(4):
        a.I(f"v_cndmask_b32 {v(20 + i)}, {v(20 + i)}, v14, vcc")
    for c in range(2):
        for i in range(8):
            a.I(f"ds_write_b16{'_d16_hi' if i & 1 else ''} v13, {v(16 + 4 * c + i // 2)} offset:{i * 1024 + c * 512}")
    a.I("s_and_saveexec_b64 s[36:37], vcc")
    a.I("ds_write_b128 v15, v[24:27]")
    a.I("s_mov_b64 exec, s[36:37]")
    a.I("s_lshl_b32 s25, s16, 11")
    a.I(f"s_add_u32 s25, s25, {LB}")
    a.I("v_lshlrev_b32 v13, 4, v0")
    a.I("v_add_u32 v13, s25, v13")
    a.I("v_bfe_u32 v15, v0, 4, 1")
    a.I("s_lshl_b32 s25, s16, 2")
    a.I(f"s_add_u32 s25, s25, {LB + 8192}")
    a.I("v_lshl_add_u32 v15, v15, 1, s25")
    for j in range(1, 16):
        a.I(f"v_mov_b32 {v(UR + j)}, 0")
    a.I("s_waitcnt lgkmcnt(0)")
    if bar:
        bar()
    else:
        a.I("s_barrier")
    a.I(f"ds_read_u16 {v(UR)}, v15")
    a.I(f"ds_read_b128 {v(ZF, 4)}, v13")
    a.I(f"ds_read_b128 {v(ZF + 4, 4)}, v13 offset:1024")
    a.I("v_and_b32 v15, 1, v0")
    a.I("v_lshlrev_b32 v15, 31, v15")
    a.I("v_cmp_gt_u32 vcc, 32, v0")
    a.I(f"v_mul_f32 {v(NF)}, {f32(1 / 512)}, {v(AFL)}")
    a.I(f"v_mul_f32 {v(BS)}, {v(NF)}, {v(HL)}")
    a.I(f"v_mul_f32 {v(BS)}, 4.0, {v(BS)}")
    a.I("s_waitcnt lgkmcnt(2)")
    a.I(f"v_lshlrev_b32 {v(UR)}, 16, {v(UR)}")
    a.I(f"v_xor_b32 {v(UR)}, {v(UR)}, v15")
    a.I(f"v_cndmask_b32 {v(UR)}, v14, {v(UR)}, vcc")
    a.I("s_waitcnt lgkmcnt(0)")
    a.I("s_nop 0")
    for r in range(2):
        a.I(f"{MF} {v(UR, 16)}, {v(ZF + 4 * r, 4)}, {v(BRE + 4 * r, 4)}, {v(UR, 16)}")
    for r in range(2):
        a.I(f"{MF} {v(UI, 16)}, {v(ZF + 4 * r, 4)}, {v(BIM + 4 * r, 4)}, {'0' if r == 0 else v(UI, 16)}")
    a.I("s_lshr_b32 s25, s21, 1")
    a.I("s_lshl_b32 s25, s25, 4")
    a.I("s_and_b32 s26, s21, 1")
    a.I("s_lshl_b32 s26, s26, 2")
    a.I("s_add_u32 s25, s25, s26")
    a.I("s_lshr_b32 s26, s16, 1")
    a.I("s_lshl_b32 s26, s26, 3")
    a.I("s_add_u32 s25, s25, s26")
    a.I("s_and_b32 s26, s16, 1")
    a.I("s_lshl_b32 s26, s26, 1")
    a.I("s_add_u32 s25, s25, s26")
    a.I("s_lshl_b32 s25, s25, 6")
    a.I("s_add_u32 s25, s25, s20")
    a.I("s_lshl_b32 s25, s25, 11")
    a.I(f"s_add_u32 s26, s25, {64 * 2048}")
    jc = [(j & 3) + 8 * (j >> 2) for j in range(16)]
    twiddle(a, UR, UI, [[j] for j in range(16)], NF, BS, jc, +1, TM)
    pack(a, TR, UR, 8)
    pack(a, TI, UI, 8)
    a.I("v_and_b32 v13, 31, v0")
    a.I("v_lshlrev_b32 v13, 5, v13")
    terms = [(TR, C32), (TR + 4, C32 + 4), (TI, NS32), (TI + 4, NS32 + 4)]
    for i, (A_, B_) in enumerate(terms):
        a.I(f"{MF} {v(UR, 16)}, {v(A_, 4)}, {v(B_, 4)}, {'0' if i == 0 else v(UR, 16)}")
    a.I("v_lshrrev_b32 v15, 5, v0")
    a.I("v_lshl_add_u32 v13, v15, 4, v13")
    a.I("s_nop 9")
    pack(a, 16, UR, 8)
    a.I("s_nop 1")
    for r in range(2):
        a.I(f"v_permlane32_swap_b32 {v(16 + 4 * r)}, {v(18 + 4 * r)}")
        a.I(f"v_permlane32_swap_b32 {v(17 + 4 * r)}, {v(19 + 4 * r)}")
        a.I(f"buffer_store_dwordx4 {v(16 + 4 * r, 4)}, v13, s[32:35], s{25 + r} offen offset:1024{os.environ.get('OPB', ' nt')}")


def gen_b3():
    a = Asm()
    N = "b3_kernel"
    kstart(a, N, 256)
    a.I("s_load_dwordx2 s[4:5], s[0:1], 88")
    a.I("s_load_dwordx2 s[6:7], s[0:1], 72")
    a.I("v_lshrrev_b32 v1, 6, v0")
    a.I("v_mov_b32 v2, v0")
    a.I("v_and_b32 v0, 63, v0")
    a.I("v_readfirstlane_b32 s16, v1")
    b3_body(a)
    kend(a, N)
    return a, N, (256, 256, 8192 + 64)


KERNELS = [gen_b1, gen_qkv, gen_b2, gen_attn, gen_b3, gen_oproj]


ALIASES = [("v_mfma_f32_16x16x32_bf16", "mf16", 4), ("v_mfma_f32_32x32x16_bf16", "mf32", 4),
           ("v_cvt_pk_bf16_f32", "cvtpk", 3)]


def compact(txt):
    lines = txt.split("\n")
    out = []
    done = False
    for l in lines:
        if l.startswith("    "):
            l = l.strip()
            for full, short, n in ALIASES:
                if l.startswith(full + " "):
                    l = short + l[len(full):]
        out.append(l)
        if l.startswith(".amdgcn_target") and not done:
            done = True
            for full, short, n in ALIASES:
                args = ["p%d" % i for i in range(n)]
                out.append(f".macro {short} " + ", ".join(args))
                out.append(f"{full} " + ", ".join("\\" + x for x in args))
                out.append(".endm")
    return "\n".join(out)


DESC = """; Generated by a hand-written scheduler script (no compiler output).  Three launches:
;                with transposing LDS loads); results stored in MFMA-operand order.  Also: row rFFT(512) of B_x as two
"""


def build(kernels, path):
    hdr = open(os.path.join(os.path.dirname(os.path.abspath(__file__)), "..", "cdna_kernels", NAME + ".s.ref")).read()
    head = [l for l in hdr.splitlines() if l.startswith(";") and "@launch" not in l and "Override" not in l
            and "grid=ceil" not in l]
    txt = []
    launches = []
    descs = []
    bad = 0
    for g in kernels:
        KIDX[0] = len(launches)
        a, n, (grid, blk, lds) = g()
        if os.environ.get("PADREF") == n:
            items = []
            done = False
            for it in a.items:
                items.append(it)
                if it[0] == "i" and it[1].text == f"s_cbranch_scc1 {n}_end" and not done:
                    done = True
                    b = Asm()
                    b.I("s_memrealtime s[98:99]")
                    b.I("s_load_dwordx2 s[96:97], s[0:1], 88")
                    b.I("s_cmp_lg_u32 s2, 0")
                    b.I("s_cbranch_scc1 padref_skip")
                    b.I("s_waitcnt lgkmcnt(0)")
                    b.I(f"s_add_u32 s84, s96, {hex(200 * MB)}")
                    b.I("s_addc_u32 s85, s97, 0")
                    b.I("s_mov_b32 s86, 64")
                    b.I("s_mov_b32 s87, 0x20000")
                    b.I("v_mov_b32 v254, s98")
                    b.I("buffer_store_dword v254, off, s[84:87], 0 sc0 sc1")
                    b.label("padref_skip")
                    b.I("s_waitcnt lgkmcnt(0)")
                    items += b.items
            a.items = items
        if os.environ.get("PADK") == n:
            items = []
            cnt = 0
            for it in a.items:
                if it[0] == "i" and it[1].text == f"s_cbranch_scc1 {n}_end" and cnt == 0:
                    items.append(it)
                    b = Asm()
                    b.I("s_memrealtime s[98:99]")
                    if os.environ.get("PADREF"):
                        b.I("s_load_dwordx2 s[96:97], s[0:1], 88")
                        b.I("s_waitcnt lgkmcnt(0)")
                        b.I(f"s_add_u32 s84, s96, {hex(200 * MB)}")
                        b.I("s_addc_u32 s85, s97, 0")
                        b.I("s_mov_b32 s86, 64")
                        b.I("s_mov_b32 s87, 0x20000")
                        b.I("buffer_load_dword v254, off, s[84:87], 0 sc0 sc1")
                        b.I("s_waitcnt vmcnt(0)")
                        b.I("v_readfirstlane_b32 s98, v254")
                    items += b.items
                    cnt = 1
                    continue
                if it[0] == "i" and it[1].mn == "s_endpgm" and not (items[-1][0] == "l" and items[-1][1] == n + "_end" and items[-2][1].mn == "s_endpgm"):
                    b = Asm()
                    lab = None
                    if items[-1][0] == "l" and items[-1][1] == n + "_end":
                        lab = items.pop()
                    cnt += 1
                    b.I("s_waitcnt vmcnt(0) lgkmcnt(0)")
                    b.label(f"pad_{cnt}")
                    b.I("s_memrealtime s[96:97]")
                    b.I("s_waitcnt lgkmcnt(0)")
                    b.I("s_sub_u32 s96, s96, s98")
                    b.I(f"s_cmp_lt_u32 s96, {os.environ['PADT']}")
                    b.I(f"s_cbranch_scc1 pad_{cnt}")
                    items += b.items
                    if lab:
                        items.append(it)
                        items.append(lab)
                items.append(it)
            a.items = items
        if DBGT:
            items = []
            for it in a.items:
                if it[0] == "i" and it[1].mn == "s_endpgm" and not (items and items[-1][0] == "l" and items[-1][1] == n + "_end" and items[-2][1].mn == "s_endpgm"):
                    b = Asm()
                    lab = None
                    if items[-1][0] == "l" and items[-1][1] == n + "_end":
                        lab = items.pop()
                    dbg_stamp(b, 1)
                    items += b.items
                    if lab:
                        items.append(it)
                        items.append(lab)
                items.append(it)
            a.items = items
        bad += len(a.check())
        nv, ns, na = a.maxregs()
        print(f"{n}: {sum(1 for k, _ in a.items if k == 'i')} instrs, vgpr {nv}, agpr {na}, sgpr {ns}")
        launches.append(f"; @launch kernel={n} grid=({grid},1,1) block=({blk},1,1) lds={lds}")
        txt.append(a.text())
        descs.append(kdesc(n, nv, ns, na))
    if bad:
        print("HAZARDS:", bad)
    out = "\n".join(head) + "\n" + "\n".join(launches) + "\n" + '.amdgcn_target "amdgcn-amd-amdhsa--gfx950"\n' + \
          "".join(txt) + "".join(descs)
    out = out.replace('.amdgcn_target "amdgcn-amd-amdhsa--gfx950"\n', '.amdgcn_target "amdgcn-amd-amdhsa--gfx950"\n' + DESC, 1)
    out = compact(out)
    open(path, "w").write(out)
    return bad


if __name__ == "__main__":
    p = sys.argv[1] if len(sys.argv) > 1 else os.path.join(os.path.dirname(os.path.abspath(__file__)), "..",
                                                           "cdna_kernels", NAME + ".s")
    sys.exit(1 if build(KERNELS, p) else 0)
```

```python
import sys, os
sys.path.insert(0, os.path.dirname(os.path.abspath(__file__)))
import gen
from gen import *

M16 = "v_mfma_f32_16x16x32_bf16"
SP = os.environ.get("SP", " sc1")
PUMP = int(os.environ.get("PUMP", "5"))
SCAT_AT = int(os.environ.get("SCAT_AT", "52"))
PRE3 = int(os.environ.get("PRE3", "20"))
PF_AT = int(os.environ.get("PF_AT", "80"))
BP = os.environ.get("BP", " nt")
PP = os.environ.get("PP", "")
AP = os.environ.get("AP", "")
LP = os.environ.get("LP", "")
MULM = os.environ.get("MULM", "")
SIG3 = int(os.environ.get("SIG3", "124"))
B3AT = int(os.environ.get("B3AT", "75"))
CT_AT = int(os.environ.get("CT_AT", "80"))
OWNAT = int(os.environ.get("OWNAT", "49"))
MATF = int(os.environ.get("MATF", "0"))
GRP2 = int(os.environ.get("GRP2", "1"))
FILT_AT = int(os.environ.get("FILT_AT", "70"))
LATE_AT = int(os.environ.get("LATE_AT", "30"))
STF = eval(os.environ.get("STF", "(31, 63, 95)"))
B1START = int(os.environ.get("B1START", "6"))


def gen_l1():
    a = Asm()
    N = "l1_kernel"
    kstart(a, N, 256)
    a.I("s_load_dwordx4 s[4:7], s[0:1], 0")
    a.I("s_load_dwordx4 s[8:11], s[0:1], 16")
    a.I("s_load_dwordx2 s[12:13], s[0:1], 32")
    a.I("s_load_dwordx2 s[14:15], s[0:1], 88")
    a.I("s_load_dwordx4 s[60:63], s[0:1], 48")
    a.I("s_load_dwordx2 s[64:65], s[0:1], 64")
    a.I("s_load_dwordx2 s[90:91], s[0:1], 40")
    TID, L16 = 64, 65
    a.I(f"v_and_b32 {v(TID)}, 255, v0")
    a.I("v_lshrrev_b32 v2, 6, v0")
    a.I("v_and_b32 v0, 63, v0")
    a.I("v_readfirstlane_b32 s16, v2")
    st = Stamper(a, "l1")
    st()
    BLDS = 9 * 16384
    a.I("s_nop 0")
    if os.environ.get("CT0", "1") == "1":
        code_touch(a, N, 16, 24, 60, kd=False)
    a.I("s_and_b32 s17, s2, 7")
    a.I("s_lshr_b32 s18, s2, 3")
    a.I("s_and_b32 s19, s18, 7")
    a.I("s_lshr_b32 s18, s18, 3")
    a.I("s_lshl_b32 s40, s17, 2")
    a.I("s_add_u32 s18, s18, s40")
    if os.environ.get("L1MAP", "4x8") == "4x8":
        a.I("s_lshr_b32 s18, s2, 3")
        a.I("s_and_b32 s19, s18, 3")
        a.I("s_and_b32 s40, s17, 1")
        a.I("s_lshl_b32 s40, s40, 2")
        a.I("s_add_u32 s19, s19, s40")
        a.I("s_lshr_b32 s18, s18, 2")
        a.I("s_lshr_b32 s40, s17, 1")
        a.I("s_lshl_b32 s40, s40, 3")
        a.I("s_add_u32 s18, s18, s40")
    a.I("s_mov_b32 s41, 0")
    a.I("s_mul_i32 s42, s18, 6")
    a.I("s_cmp_ge_u32 s18, 11")
    a.I("s_cselect_b32 s41, 1, s41")
    a.I("s_cselect_b32 s40, 64, 0")
    a.I("s_cmp_ge_u32 s18, 21")
    a.I("s_cselect_b32 s41, 2, s41")
    a.I("s_cselect_b32 s40, 126, s40")
    a.I("s_sub_u32 s42, s42, s40")
    a.I("s_lshl_b32 s44, s19, 3")
    a.I("s_add_u32 s44, s44, s16")
    t1, t2, t3, G = 66, 67, 68, 69
    WV, AV, AR_, TB, SK, SV = 1, 3, 7, 9, 21, 22
    a.I(f"v_lshrrev_b32 {v(t1)}, 3, v0")
    a.I(f"v_lshlrev_b32 {v(G)}, 10, {v(t1)}")
    a.I(f"v_lshlrev_b32 {v(t1)}, 13, {v(t1)}")
    a.I("s_lshl_b32 s45, s16, 17")
    a.I(f"v_add_u32 {v(t1)}, s45, {v(t1)}")
    a.I(f"v_bfe_u32 {v(t2)}, v0, 4, 1")
    a.I(f"v_lshlrev_b32 {v(t2)}, 1, {v(t2)}")
    a.I(f"v_and_b32 {v(t3)}, 7, v0")
    a.I(f"v_xor_b32 {v(t2)}, {v(t2)}, {v(t3)}")
    a.I(f"v_lshl_add_u32 {v(WV)}, {v(t2)}, 4, {v(t1)}")
    a.I(f"v_xor_b32 {v(WV + 1)}, 64, {v(WV)}")
    a.I(f"v_add_u32 {v(WV + 1)}, {65536 - 1024}, {v(WV + 1)}")
    a.I("s_lshl_b32 s45, s44, 15")
    a.I(f"v_add_u32 {v(t1)}, s45, {v(G)}")
    a.I(f"v_lshrrev_b32 {v(t2)}, 4, v0")
    a.I(f"v_xor_b32 {v(t2)}, {v(t2)}, {v(t3)}")
    a.I(f"v_lshl_add_u32 {v(AV)}, {v(t2)}, 4, {v(t1)}")
    a.I(f"v_xor_b32 {v(AV + 1)}, 64, {v(AV)}")
    a.I(f"v_add_u32 {v(AV + 1)}, {8192 - 1024}, {v(AV + 1)}")
    a.I(f"v_add_u32 {v(AV + 2)}, {2 * (8192 - 1024)}, {v(AV)}")
    a.I(f"v_add_u32 {v(AV + 3)}, {2 * (8192 - 1024)}, {v(AV + 1)}")
    a.I("s_lshl_b32 s46, s16, 13")
    a.I("s_lshl_b32 s47, s16, 11")
    a.I("s_lshl_b32 s48, s42, 7")
    a.I("s_lshl_b32 s49, s44, 13")
    a.I("s_lshl_b32 s50, s42, 18")
    a.I("s_add_u32 s50, s50, s49")
    a.I("s_add_u32 s53, s48, 512")
    a.I("s_mov_b32 s43, s49")
    a.I(f"v_lshlrev_b32 {v(L16)}, 4, v0")
    a.I("s_lshl_b32 s45, s44, 16")
    a.I("v_lshrrev_b32 v23, 1, v0")
    a.I("v_lshlrev_b32 v23, 13, v23")
    a.I(f"v_and_b32 {v(t1)}, 1, v0")
    a.I(f"v_lshl_add_u32 v23, {v(t1)}, 7, v23")
    a.I("v_add_u32 v23, s45, v23")
    a.I("s_waitcnt lgkmcnt(0)")
    WT0 = os.environ.get("WT0", "0")
    if WT0 != "0":
        a.I("s_cmp_ge_u32 s16, 6")
        a.I(f"s_cbranch_scc1 {N}_nwt")
        a.I("s_lshr_b32 s40, s16, 1")
        a.I("s_cmp_eq_u32 s40, 1")
        a.I("s_cselect_b32 s20, s8, s10")
        a.I("s_cselect_b32 s21, s9, s11")
        a.I("s_cmp_eq_u32 s40, 2")
        a.I("s_cselect_b32 s20, s12, s20")
        a.I("s_cselect_b32 s21, s13, s21")
        a.I(f"s_mov_b32 s22, {hex(4 * MB)}")
        a.I("s_mov_b32 s23, 0x20000")
        a.I("s_and_b32 s40, s16, 1")
        a.I("s_lshl1_add_u32 s40, s2, s40")
        a.I("s_lshl_b32 s40, s40, 13")
        a.I(f"v_lshlrev_b32 {v(t1)}, 7, v0")
        a.I(f"buffer_load_dword v59, {v(t1)}, s[20:23], s40 offen")
        a.label(f"{N}_nwt")
    a.I("s_lshl_b32 s45, s44, 18")
    a.I("s_lshl_b32 s40, s42, 12")
    a.I("s_add_u32 s45, s45, s40")
    a.I(f"s_mov_b32 s92, {hex(512 * 1024)}")
    a.I("s_cmp_eq_u32 s41, 2")
    a.I("s_cselect_b32 s50, s45, s50")
    a.I("s_cselect_b32 s92, 0x2000, s92")
    a.I("s_cselect_b32 s20, s4, s6")
    a.I("s_cselect_b32 s21, s5, s7")
    a.I("s_cselect_b32 s24, s8, s10")
    a.I("s_cselect_b32 s25, s9, s11")
    a.I(f"s_cselect_b32 s51, {hex(WS_Q)}, 0")
    a.I(f"s_cselect_b32 s52, {f32(QSCALE)}, 1.0")
    a.I("s_cmp_eq_u32 s41, 1")
    a.I("s_cselect_b32 s24, s12, s24")
    a.I("s_cselect_b32 s25, s13, s25")
    a.I(f"s_cselect_b32 s51, {hex(WS_V)}, s51")
    a.I("s_mov_b32 s32, s24")
    a.I("s_mov_b32 s33, s25")
    a.I(f"s_mov_b32 s40, {hex(WS_V)}")
    a.I("s_cmp_eq_u32 s18, 10")
    a.I("s_cselect_b32 s32, s12, s32")
    a.I("s_cselect_b32 s33, s13, s33")
    a.I("s_cselect_b32 s53, 0, s53")
    a.I(f"s_add_u32 s45, s49, {hex(31 << 19)}")
    a.I("s_cmp_eq_u32 s18, 31")
    a.I("s_cselect_b32 s53, s48, s53")
    a.I("s_cselect_b32 s43, s50, s43")
    a.I(f"s_cselect_b32 s40, {hex(WS_Q)}, s40")
    a.I("s_cselect_b32 s24, s12, s24")
    a.I("s_cselect_b32 s25, s13, s25")
    a.I(f"s_cselect_b32 s48, {62 * 128}, s48")
    a.I(f"s_cselect_b32 s51, {hex(WS_V)}, s51")
    a.I("s_cselect_b32 s20, s6, s20")
    a.I("s_cselect_b32 s21, s7, s21")
    a.I("s_cselect_b32 s50, s45, s50")
    a.I(f"s_mov_b32 s22, {hex(2 * MB)}")
    a.I("s_mov_b32 s23, 0x20000")
    a.I(f"s_mov_b32 s26, {hex(4 * MB)}")
    a.I("s_mov_b32 s27, 0x20000")

    def late_setup():
        a.I("s_mov_b32 s94, s52")
        a.I("s_mov_b32 s95, s52")
        a.I(f"s_mov_b32 s34, {hex(4 * MB)}")
        a.I("s_mov_b32 s35, 0x20000")
        srd(a, 28, 14, 15, 16 * MB, add="s51")
        srd(a, 36, 14, 15, 16 * MB, add="s40")
        srd(a, 56, 4, 5, 2 * MB)
        if os.environ.get("XDROP") == "q":
            a.I("s_cmp_eq_u32 s41, 2")
            a.I("s_cselect_b32 s30, 0, s30")
        if os.environ.get("XDROP") == "all":
            a.I("s_mov_b32 s30, 0")
            a.I("s_mov_b32 s38, 0")
        a.I("s_add_u32 s13, s48, 256")
        a.I("s_add_u32 s17, s53, 256")
        a.I("s_cmp_eq_u32 s18, 31")
        a.I("s_cselect_b32 s4, s32, s24")
        a.I("s_cselect_b32 s5, s33, s25")
        a.I("s_cselect_b32 s13, s53, s13")
        a.I("s_cselect_b32 s17, s17, s53")
        a.I(f"s_mov_b32 s6, {hex(4 * MB)}")
        a.I("s_mov_b32 s7, 0x20000")

    def w_prefetch(g):
        for th, (col, sr) in enumerate([("s13", "s[4:7]"), ("s17", "s[32:35]")]):
            g.lq.append((["s_mov_b64 exec, 0xffff"], f"buffer_load_dword {v(56 + th)}, v23, {sr}, {col} offen{PP}", "pf"))

    def addr_setup():
        a.I(f"v_lshrrev_b32 {v(G)}, 4, v0")
        a.I(f"v_bfe_u32 {v(t1)}, v0, 3, 1")
        a.I(f"v_lshlrev_b32 {v(t1)}, 4, {v(t1)}")
        a.I(f"v_and_b32 {v(t2)}, 7, v0")
        a.I(f"v_add_u32 {v(t1)}, {v(t1)}, {v(t2)}")
        a.I(f"v_bfe_u32 {v(t2)}, {v(t1)}, 1, 3")
        a.I(f"v_xor_b32 {v(t2)}, {v(t2)}, {v(G)}")
        a.I(f"v_lshlrev_b32 {v(t2)}, 4, {v(t2)}")
        a.I(f"v_lshl_add_u32 {v(AR_)}, {v(t1)}, 7, {v(t2)}")
        a.I(f"v_xor_b32 {v(AR_ + 1)}, 64, {v(AR_)}")
        a.I(f"v_add_u32 {v(AR_)}, s46, {v(AR_)}")
        a.I(f"v_add_u32 {v(AR_ + 1)}, s46, {v(AR_ + 1)}")
        a.I(f"v_lshlrev_b32 {v(t2)}, 9, {v(G)}")
        a.I(f"v_lshl_add_u32 {v(SK)}, {v(t1)}, 4, {v(t2)}")
        a.I(f"v_and_b32 {v(t3)}, 15, v0")
        a.I(f"v_lshl_add_u32 {v(SV)}, {v(t3)}, 4, {v(t2)}")
        a.I(f"v_bfe_u32 {v(t1)}, v0, 2, 2")
        a.I(f"v_lshl_add_u32 {v(t1)}, {v(G)}, 3, {v(t1)}")
        a.I(f"v_lshlrev_b32 {v(t1)}, 7, {v(t1)}")
        a.I(f"v_and_b32 {v(t2)}, 3, v0")
        a.I(f"v_lshl_add_u32 {v(t1)}, {v(t2)}, 3, {v(t1)}")
        a.I(f"v_bfe_u32 {v(t2)}, v0, 3, 2")
        a.I(f"v_lshl_add_u32 {v(t1)}, {v(t2)}, 5, {v(t1)}")
        for ct in range(4):
            a.I(f"v_xor_b32 {v(TB + ct)}, {32 * ct}, {v(t1)}")
        for ct in range(4):
            a.I(f"v_add_u32 {v(TB + 4 + ct)}, 0x10000, {v(TB + ct)}")
            a.I(f"v_add_u32 {v(TB + 8 + ct)}, 0x20000, {v(TB + ct)}")

    def b_common():
        a.I("s_and_b32 s8, s2, 7")
        a.I("s_lshl_b32 s8, s8, 3")
        a.I("s_bfe_u32 s9, s2, 0x30003")
        a.I("s_or_b32 s8, s8, s9")
        a.I("s_lshr_b32 s9, s2, 6")
        a.I("s_lshr_b32 s66, s9, 1")
        a.I("s_lshl_b32 s66, s66, 11")
        a.I("s_lshr_b32 s10, s8, 5")
        a.I("s_lshl_b32 s10, s10, 10")
        a.I("s_add_u32 s66, s66, s10")
        a.I("s_and_b32 s10, s8, 31")
        a.I("s_lshl_b32 s10, s10, 4")
        a.I("s_add_u32 s66, s66, s10")
        a.I("s_and_b32 s10, s9, 1")
        a.I("s_lshl_b32 s10, s10, 9")
        a.I("s_add_u32 s66, s66, s10")

    HL, NF, BS, F2, TM, X1, X2, X3 = 70, 71, 72, 73, 74, 78, 79, 80
    C32, NS32, AR, AI, XF, D1R, D1I, TR, TI, D2 = 84, 92, 100, 104, 108, 116, 132, 148, 158, 168
    pc8 = [PERMC(j) for j in range(8)]

    def fft_loads(vm):
        a.I("s_lshr_b32 s10, s9, 1")
        a.I("s_lshl_b32 s10, s10, 4")
        a.I("s_and_b32 s11, s9, 1")
        a.I("s_lshl_b32 s11, s11, 2")
        a.I("s_add_u32 s10, s10, s11")
        a.I("s_lshr_b32 s11, s16, 1")
        a.I("s_lshl_b32 s11, s11, 3")
        a.I("s_add_u32 s10, s10, s11")
        a.I("s_and_b32 s11, s16, 1")
        a.I("s_lshl_b32 s11, s11, 1")
        a.I("s_add_u32 s10, s10, s11")
        a.I("s_lshl_b32 s10, s10, 6")
        a.I("s_add_u32 s10, s10, s8")
        a.I("s_lshl_b32 s10, s10, 10")
        a.I(f"s_add_u32 s11, s10, {65536 - 1024}")
        a.I(f"s_add_u32 s3, s47, {BLDS}")
        a.I("s_mov_b32 m0, s3")
        a.I(f"s_mov_b32 s62, {hex(2 * MB)}")
        a.I("s_mov_b32 s63, 0x20000")
        vm.issue(f"buffer_load_dwordx4 {v(L16)}, s[60:63], s10 offen{BP} lds", "bx")
        vm.issue(f"buffer_load_dwordx4 {v(L16)}, s[60:63], s11 offen offset:1024{BP} lds", "bx")

    def fft_compute(g):
        vm = g.vm
        a.I(f"v_lshrrev_b32 {v(X2)}, 5, v0")
        a.I(f"v_cvt_f32_u32 {v(HL)}, {v(X2)}")
        a.I(f"v_and_b32 {v(F2)}, 31, v0")
        a.I(f"v_cvt_f32_u32 {v(F2)}, {v(F2)}")
        a.I(f"v_mul_f32 {v(NF)}, {f32(1 / 32)}, {v(F2)}")
        a.I(f"v_mul_f32 {v(BS)}, {v(NF)}, {v(HL)}")
        a.I(f"v_mul_f32 {v(BS)}, {f32(8.0)}, {v(BS)}")
        nat = [16 * t + j for t in range(2) for j in range(8)]
        gen_mat(a, C32, NF, BS, nat, TM)
        a.I(f"v_add_f32 {v(BS)}, {f32(0.25)}, {v(BS)}")
        gen_mat(a, NS32, NF, BS, nat, TM)
        a.I(f"v_bfe_u32 {v(X1)}, v0, 4, 1")
        a.I(f"v_lshlrev_b32 {v(X1)}, 10, {v(X1)}")
        a.I(f"v_lshl_add_u32 {v(X1)}, {v(X2)}, 8, {v(X1)}")
        a.I(f"v_and_b32 {v(X3)}, 15, v0")
        a.I(f"v_lshl_add_u32 {v(X1)}, {v(X3)}, 3, {v(X1)}")
        a.I(f"v_add_u32 {v(X1)}, s3, {v(X1)}")
        vm.wait("bx")
        for t in range(2):
            for h in range(2):
                a.I(f"ds_read_b64_tr_b16 {v(XF + 4 * t + 2 * h, 2)}, {v(X1)} offset:{t * 512 + h * 128}")
        a.I(f"v_cvt_f32_u32 {v(X3)}, {v(X3)}")
        a.I(f"v_mul_f32 {v(NF)}, {f32(1 / 16)}, {v(X3)}")
        a.I(f"v_bfe_u32 {v(X1)}, v0, 4, 1")
        a.I(f"v_cvt_f32_u32 {v(X1)}, {v(X1)}")
        a.I(f"v_mul_f32 {v(BS)}, {v(NF)}, {v(HL)}")
        a.I(f"v_mul_f32 {v(BS)}, 4.0, {v(BS)}")
        a.I(f"v_fmamk_f32 {v(BS)}, {v(X1)}, {f32(0.25)}, {v(BS)}")
        a.I("s_waitcnt lgkmcnt(0)")
        for D, Mx in ((D1R, C32), (D1I, NS32)):
            for t in range(2):
                a.I(f"{MF} {v(D, 16)}, {v(XF + 4 * t, 4)}, {v(Mx + 4 * t, 4)}, {'0' if t == 0 else v(D, 16)}")
        gen_mat(a, AR, NF, BS, pc8, TM)
        a.I(f"v_add_f32 {v(BS)}, {f32(-0.25)}, {v(BS)}")
        gen_mat(a, AI, NF, BS, pc8, TM)
        a.I(f"v_mul_f32 {v(NF)}, {f32(1 / 512)}, {v(F2)}")
        a.I(f"v_mul_f32 {v(BS)}, {v(NF)}, {v(HL)}")
        a.I(f"v_mul_f32 {v(BS)}, 4.0, {v(BS)}")
        twiddle(a, D1R, D1I, [[j, j + 8] for j in range(8)], NF, BS, pc8, -1, TM)
        pack(a, TR, D1R, 8)
        pack(a, TI, D1I, 8)
        a.I(f"v_and_b32 {v(X3)}, 31, v0")
        a.I(f"v_lshlrev_b32 {v(X3)}, 4, {v(X3)}")
        for r in range(2):
            a.I(f"{MF} {v(D2 + 16 * r, 16)}, {v(AR, 4)}, {v(TR + 4 * r, 4)}, 0")
            a.I(f"{MF} {v(D2 + 16 * r, 16)}, {v(AI, 4)}, {v(TI + 4 * r, 4)}, {v(D2 + 16 * r, 16)}")
        a.I(f"v_lshl_add_u32 {v(X3)}, {v(X2)}, 11, {v(X3)}")
        a.I("s_lshl_b32 s10, s16, 2")
        a.I(f"s_add_u32 s11, s10, {BLDS + 8192}")
        a.I(f"v_add_u32 {v(X3)}, s11, {v(X3)}")
        a.I(f"v_mov_b32 {v(X2)}, s10")
        a.I(f"s_add_u32 s67, s66, {256 * 8192}")
        a.I(f"s_add_u32 s11, s66, {256 * 8192 + 4096}")
        srd(a, 60, 14, 15, 8 * MB, add=WS_Y)
        a.I("s_nop 1")
        for c in range(2):
            for j in range(5):
                a.I(f"v_cvt_pk_bf16_f32 {v(TR + 5 * c + j)}, {v(D2 + 8 * c + j)}, {v(D2 + 16 + 8 * c + j)}")
        for c in range(2):
            for j in range(4):
                a.I(f"ds_write_b32 {v(X3)}, {v(TR + 5 * c + j)} offset:{(c * 8 + j) * 512}")
        a.I = I0
        a.I("s_mov_b64 exec, 1")
        vm.issue(f"buffer_store_dword {v(TR + 4)}, {v(X2)}, s[60:63], s67 offen", "bs")
        vm.issue(f"buffer_store_dword {v(TR + 9)}, {v(X2)}, s[60:63], s11 offen", "bs")
        a.I("s_mov_b64 exec, -1")

    WFR, WFP, FX1, FX2, WF9 = 56, 52, 52, 53, 55

    def filt_setup():
        a.I("s_lshr_b32 s10, s9, 1")
        a.I("s_lshl_b32 s10, s10, 5")
        a.I("s_lshr_b32 s11, s8, 5")
        a.I("s_lshl_b32 s11, s11, 4")
        a.I("s_add_u32 s10, s10, s11")
        a.I("s_and_b32 s11, s9, 1")
        a.I("s_lshl_b32 s11, s11, 2")
        a.I("s_add_u32 s10, s10, s11")
        a.I("s_lshl_b32 s10, s10, 5")
        a.I("s_and_b32 s11, s8, 31")
        a.I("s_add_u32 s10, s10, s11")
        a.I("s_mul_i32 s19, s10, 514")
        a.I(f"v_lshlrev_b32 {v(FX1)}, 1, {v(TID)}")
        a.I(f"v_and_b32 {v(FX2)}, 3, v0")
        a.I(f"v_bfe_u32 {v(t1)}, v0, 2, 1")
        a.I(f"v_lshl_add_u32 {v(FX2)}, {v(t1)}, 3, {v(FX2)}")
        a.I(f"v_mul_u32_u24 {v(FX2)}, {32 * 514}, {v(FX2)}")
        a.I(f"v_add_u32 {v(FX2)}, 512, {v(FX2)}")
        a.I("s_cmp_ge_u32 s16, 4")
        a.I("s_cselect_b32 s8, s64, s0")
        a.I("s_cselect_b32 s9, s65, s1")
        a.I(f"s_mov_b32 s10, {2048 * 514}")
        a.I("s_mov_b32 s11, 0x20000")

    def filt_loads(g):
        for j in range(8):
            g.lq.append(([f"s_add_u32 s12, s19, {PERMC(j) * 32 * 514}"],
                         f"buffer_load_ushort {v(WFR + j)}, {v(FX1)}, s[8:11], s12 offen{BP}", "wf"))
        g.lq.append(([], f"buffer_load_ushort {v(WF9)}, {v(FX2)}, s[8:11], s19 offen{BP}", "wf"))

    def filt_finish(g):
        vm = g.vm
        L = [lambda: (g.flush("wf"), vm.wait("wf"), a.I(f"v_lshlrev_b32 {v(54)}, 1, v0"))]
        L.append(lambda: (a.I("s_mov_b64 exec, 0xff"),
                          vm.issue(f"buffer_store_short {v(WF9)}, {v(54)}, s[60:63], s67 offen", "bs"),
                          a.I("s_mov_b64 exec, -1")))
        for i in range(4):
            L.append(lambda i=i: a.I(f"v_lshl_or_b32 {v(WFP + i)}, {v(WFR + 1 + 2 * i)}, 16, {v(WFR + 2 * i)}"))
        return L

    def ys_calc():
        a.I("s_and_b32 s12, s16, 3")
        a.I("s_lshl_b32 s12, s12, 19")
        a.I(f"v_lshlrev_b32 {v(YS)}, 13, v0")
        a.I(f"v_add_u32 {v(YS)}, s12, {v(YS)}")

    def scat(g):
        g.vm.issue(f"buffer_store_dwordx4 {v(YD, 4)}, {v(YS)}, s[60:63], s66 offen", "bs")

    def scat_next():
        for i in range(4):
            a.I(f"v_mov_b32 {v(YD + i)}, {v(WFP + i)}")
        a.I(f"s_add_u32 s66, s66, {hex(WS_WF - WS_Y)}")

    YA, YD, YS = 56, 48, 23
    ACC, RING, PK, AFB = 192, 24, 56, 64
    LOOK = 4
    AHEAD = int(os.environ.get("AHEAD", "5"))

    def AF(rt, k):
        return AFB + (k * 2 + rt) * 4

    class Gen:
        def __init__(self, passes, nmerge, vmq):
            self.passes, self.nmerge = passes, nmerge
            self.vm, self.lg = VM(a), LG(a)
            self.vm.q = list(vmq)
            self.busy, self.nxt, self.dq, self.lq = {}, 0, [], []
            self.chunks, self.frags, self.groups = [], [], {}
            for pp in range(0, len(passes), 2):
                if pp // 2 < nmerge:
                    for kc in range(4):
                        c = len(self.chunks)
                        self.chunks += [(pp, kc), (pp + 1, kc)]
                        self.groups[len(self.frags)] = [c, c + 1]
                        for ks in range(4):
                            for h in range(2):
                                self.frags += [(c + h, ks, ct) for ct in range(4)]
                else:
                    for q in range(2):
                        for kc in range(4):
                            c = len(self.chunks)
                            self.chunks.append((pp + q, kc))
                            if GRP2 == 0:
                                self.groups[len(self.frags)] = [c]
                            elif kc % 2 == 0:
                                self.groups[len(self.frags)] = [c, c + 1]
                            self.frags += [(c, ks, ct) for ks in range(4) for ct in range(4)]
            self.prev = [[], []]
            self.b1busy = True
            self.skip_boundary = False

        def blk(self, c):
            nm = 8 * self.nmerge
            if c < nm:
                return 4 + 2 * ((c // 2) % 3) + (c & 1)
            if self.nmerge == 1:
                return [6, 7, 8, 9, 0, 1, 2, 3][(c - nm) % 8]
            return [8, 9, 4, 5, 0, 1, 2, 3][(c - nm) % 8]

        def dmaW(self, now, done):
            c = self.nxt
            if c >= len(self.chunks) or c > now + AHEAD:
                return False
            b = self.blk(c)
            if b in self.busy and self.busy[b] not in done:
                return False
            if b == 9 and self.b1busy:
                return False
            if b < 4 and now < 8 * self.nmerge:
                return False
            self.busy[b] = c
            self.nxt += 1
            pp, kc = self.chunks[c]
            form, wsel, wdi, osel, odi = self.passes[pp]
            sr = "s[32:35]" if wsel else "s[24:27]"
            for q in range(2):
                pre = [f"s_add_u32 m0, s47, {hex(b * 16384)}",
                       f"s_add_u32 s45, {'s53' if wsel else 's48'}, {hex((kc << 20) + wdi * 128)}"] if q == 0 else []
                self.dq.append((pre, f"buffer_load_dwordx4 {v(WV + q)}, {sr}, s45 offen offset:{q * 1024}{LP} lds", ("W", c)))
            return True

        def pump(self, n=1):
            for _ in range(n):
                q = self.dq or self.lq
                if q:
                    pre, ins, tag = q.pop(0)
                    a.many(pre)
                    self.vm.issue(ins, tag)
                    if tag == "pf":
                        a.I("s_mov_b64 exec, -1")

        def flush(self, tag=None):
            while any(tag is None or x[2] == tag for x in self.dq + self.lq):
                self.pump()

        def dmaA(self, j):
            sr = "s[56:59]" if j >= 8 else "s[20:23]"
            k = 0
            while k < len(self.dq) and not self.dq[k][0]:
                k += 1
            for i in range(4):
                pre = [f"s_add_u32 m0, s46, {hex((j % 2) * 4096)}", f"s_mov_b32 s45, {(j % 8) * 128}"] if i == 0 else []
                self.dq.insert(k + i, (pre, f"buffer_load_dwordx4 {v(AV + i)}, {sr}, s45 offen offset:{i * 1024}{AP} lds", ("A", j)))

        def readA(self, j):
            self.flush(("A", j))
            self.vm.wait(("A", j))
            for ks in range(2):
                for x in range(2):
                    self.lg.issue(f"ds_read_b128 {v(AF(x, 2 * (j % 8) + ks), 4)}, {v(AR_ + (ks ^ x))} "
                                  f"offset:{(j % 2) * 4096 + x * 1024}", ("A", j))

        def reads(self, i, halves=(0, 1)):
            c, ks, ct = self.frags[i]
            b = self.blk(c)
            base = TB + 4 * (b // 4) + ct
            off = (b % 4) * 16384 + ks * 4096
            d = RING + 4 * slot(i)
            for h in halves:
                self.lg.issue(f"ds_read_b64_tr_b16 {v(d + 2 * h, 2)}, {v(base)} offset:{off + 512 * h}", ("W", i))

        def sync(self, grp):
            for c in grp:
                self.flush(("W", c))
            self.vm.wait([("W", c) for c in grp])
            a.I("s_barrier")
            lo = self.prev[1][0] if self.prev[1] else 0
            done = set(range(lo))
            if self.prev[1]:
                self.b1busy = False
            self.prev = [self.prev[1], grp]
            while self.dmaW(grp[0], done):
                pass

        def acc(self, pp, rt, ct):
            return ACC + 32 * (pp & 1) + 4 * (4 * rt + ct)

        def epi(self, pp):
            out = []
            form, wsel, wdi, osel, u = self.passes[pp]
            so = 54 + (pp & 1)
            sr = "s[36:39]" if osel else "s[28:31]"
            def so_calc():
                a.I(f"s_add_u32 s{so}, {'s43' if osel else 's50'}, {(u & 1) * 4096}")
                assert (u >> 1) in (-1, 0, 1)
                if u >> 1:
                    a.I(f"s_{'add' if (u >> 1) > 0 else 'sub'}_u32 s{so}, s{so}, s92")
            out.append(so_calc)
            for q in range(4):
                pk = PK + 4 * (q % 2)
                if form == "K":
                    x, cp = divmod(q, 2)
                    srcs = [self.acc(pp, x, 2 * cp), self.acc(pp, x, 2 * cp + 1)]
                    off, va = x * 128 + cp * 2048, SK
                else:
                    srcs = [self.acc(pp, 0, q), self.acc(pp, 1, q)]
                    off, va = (q >> 1) * 2048 + (q & 1) * 256, SV
                for i in range(4):
                    src = srcs[i // 2] + 2 * (i % 2)
                    if form == "K" and MULM == "pk":
                        out.append(lambda src=src: a.I(f"v_pk_mul_f32 {v(src, 2)}, {v(src, 2)}, s[94:95]"))
                    elif form == "K" and MULM != "none":
                        out.append(lambda src=src: a.I(f"v_mul_f32 {v(src)}, s52, {v(src)}"))
                        out.append(lambda src=src: a.I(f"v_mul_f32 {v(src + 1)}, s52, {v(src + 1)}"))
                    out.append(lambda src=src, pk=pk, i=i: a.I(f"v_cvt_pk_bf16_f32 {v(pk + i)}, {v(src)}, {v(src + 1)}"))
                out.append(lambda pk=pk, va=va, off=off: self.vm.issue(
                    f"buffer_store_dwordx4 {v(pk, 4)}, {v(va)}, {sr}, s{so} offen offset:{off}{SP}", ("S", pp)))
            return out

        def boundary(self, pps):
            self.flush("pf")
            self.vm.wait("pf")
            ys_calc()
            a.I("s_nop 2")
            for pp in pps:
                for f in self.epi(pp):
                    f()

        def run(self, p0, p1):
            lg = self.lg
            NF_ = len(self.frags)
            NA = 8 * self.nmerge
            pend = []
            for i in range(64 * p0, 64 * p1):
                c, ks, ct = self.frags[i]
                pp, kc = self.chunks[c]
                k = 4 * kc + ks
                if i % 128 == 0 and 0 < i <= 128 * self.nmerge and not self.skip_boundary:
                    self.boundary([i // 64 - 2] + ([i // 64 - 1] if i < 128 * self.nmerge else []))
                if i % 2 == 0:
                    lg.wait([("W", i), ("W", i + 1), ("A", i // 16)])
                if i % 16 == 0 and i // 16 + 2 < NA:
                    self.dmaA(i // 16 + 2)
                wf = v(RING + 4 * slot(i), 4)
                j = i + LOOK
                for rt in range(2):
                    ac = v(self.acc(pp, rt, ct), 4)
                    af = v(AF(rt, k), 4)
                    cin = "0" if k == 0 else ac
                    if self.passes[pp][0] == "V":
                        a.I(f"{M16} {ac}, {af}, {wf}, {cin}")
                    else:
                        a.I(f"{M16} {ac}, {wf}, {af}, {cin}")
                    if j < NF_:
                        if rt == 0 and j in self.groups:
                            self.sync(self.groups[j])
                        if rt == 0 and j % 16 == 0 and j // 16 < NA:
                            self.readA(j // 16)
                        self.reads(j, (rt,))
                    if rt == 0 and pend:
                        pend.pop(0)()
                    if rt == 1 and i % 2 == 0:
                        if self.dq or self.lq:
                            self.pump(1)
                        elif pend:
                            pend.pop(0)()
                if i % 64 == 63:
                    assert not pend
                if i % 64 == 3 and i >= 128 * self.nmerge:
                    pend = self.epi(i // 64 - 1)
                if i == PF_AT:
                    w_prefetch(self)
                if i == LATE_AT:
                    filt_loads(self)
                if i == FILT_AT:
                    pend = filt_finish(self)
                if i >= 128 and i % 128 == SCAT_AT:
                    scat(self)
                if i >= 128 and i % 128 == 127:
                    scat_next()
                if i >= 128 * self.nmerge and i % 128 == CT_AT:
                    code_touch(a, "attn_kernel", 16, 8, AR_)
                if i in STF:
                    st()
            self.flush()

        def wo_load(self):
            blk = 4 if self.nmerge == 1 else 6
            srd(a, 8, 90, 91, 4 * MB)
            a.I("s_lshl_b32 s12, s2, 14")
            a.I("s_lshl_b32 s13, s16, 7")
            a.I("s_add_u32 s12, s12, s13")
            a.I(f"s_add_u32 s13, s12, {8192 - 1024}")
            a.I(f"s_add_u32 s17, s47, {blk * 16384}")
            a.I("s_mov_b32 m0, s17")
            a.I(f"v_lshrrev_b32 {v(AV)}, 3, v0")
            a.I(f"v_lshlrev_b32 {v(AV)}, 10, {v(AV)}")
            a.I(f"v_and_b32 {v(AV + 1)}, 7, v0")
            a.I(f"v_lshl_add_u32 {v(AV)}, {v(AV + 1)}, 4, {v(AV)}")
            self.vm.issue(f"buffer_load_dwordx4 {v(AV)}, s[8:11], s12 offen{BP} lds", "wo")
            self.vm.issue(f"buffer_load_dwordx4 {v(AV)}, s[8:11], s13 offen offset:1024{BP} lds", "wo")
            a.I(f"v_lshrrev_b32 {v(AV + 1)}, 5, v0")
            a.I(f"v_bfe_u32 {v(AV + 2)}, v0, 2, 2")
            a.I(f"v_lshl_add_u32 {v(AV + 1)}, {v(AV + 1)}, 2, {v(AV + 2)}")
            a.I(f"v_lshlrev_b32 {v(AV + 1)}, 7, {v(AV + 1)}")
            a.I(f"v_bfe_u32 {v(AV + 2)}, v0, 4, 1")
            a.I(f"v_lshl_add_u32 {v(AV + 1)}, {v(AV + 2)}, 5, {v(AV + 1)}")
            a.I(f"v_and_b32 {v(AV + 2)}, 3, v0")
            a.I(f"v_lshl_add_u32 {v(AV + 1)}, {v(AV + 2)}, 3, {v(AV + 1)}")
            a.I(f"v_add_u32 {v(AV + 1)}, s17, {v(AV + 1)}")
            a.I(f"v_lshlrev_b32 {v(AV + 2)}, 4, v0")
            a.I("s_lshl_b32 s17, s16, 19")
            a.I("s_lshl_b32 s13, s2, 11")
            a.I("s_add_u32 s17, s17, s13")

        def fin(self, pp):
            self.vm.wait("wo")
            for cb in range(2):
                for h in range(2):
                    a.I(f"ds_read_b64_tr_b16 {v(RING + 4 * cb + 2 * h, 2)}, {v(AV + 1)} offset:{cb * 64 + h * 1024}")
            srd(a, 8, 14, 15, 4 * MB, add=WS_WO)
            a.I("s_waitcnt lgkmcnt(0)")
            for cb in range(2):
                a.I(f"buffer_store_dwordx4 {v(RING + 4 * cb, 4)}, {v(AV + 2)}, s[8:11], s17 offen offset:{cb * 1024}{SP}")
            a.I("s_nop 0")
            for f in self.epi(pp):
                f()
            st.dump(16, 14, tmpv=24)
            a.I("s_endpgm")


    def slot(i):
        j = i % 128
        return j % 6 if j < 108 else (j - 108) % 5

    I0 = a.I
    cnt = [0]
    gp = [None]

    def Ipump(text):
        r = I0(text)
        if text.startswith("v_") and not text.startswith("v_mfma"):
            cnt[0] += 1
            if cnt[0] % PUMP == 0 and gp[0].dq:
                a.I = I0
                gp[0].pump()
                a.I = Ipump
        return r

    b_common()
    a.I("s_mov_b64 s[0:1], s[62:63]")
    g0 = Gen([("K", 0, i, 0, i) for i in range(2)], 1, [])
    a.I("s_cmp_ge_u32 s16, 4")
    a.I(f"s_cbranch_scc1 {N}_nofl")
    fft_loads(VM(a))
    a.label(f"{N}_nofl")
    for _ in range(2):
        g0.dmaW(0, set())
    g0.dmaA(0)
    PF0 = os.environ.get("PF0", "0")

    def pf0():
        a.I("s_mov_b64 exec, 0xffff")
        a.I("buffer_load_dword v58, v23, s[24:27], s48 offen")
        a.I("s_mov_b64 exec, -1")
    if PF0 == "1":
        pf0()
    g0.flush()
    if PF0 == "2":
        pf0()
    PORD = os.environ.get("PORD", "0")
    if PORD != "0":
        late_setup()
        addr_setup()
    if PORD == "2":
        a.I("s_barrier")
    g0.dmaA(1)
    for _ in range(2):
        g0.dmaW(0, set())
    g0.flush()
    st()
    if PORD == "0":
        late_setup()
        addr_setup()
    g0.dmaW(0, set())
    a.I("s_cmp_ge_u32 s16, 4")
    a.I(f"s_cbranch_scc1 {N}_join")
    gf = Gen([("K", 0, i, 0, i) for i in range(2)], 1, ["bx", "bx"] + g0.vm.q)
    fft_compute(gf)
    a.label(f"{N}_join")
    filt_setup()
    if os.environ.get("L1PRIO"):
        a.I("s_cmp_lt_u32 s16, 4")
        a.I(f"s_cbranch_scc1 {N}_np")
        a.I(f"s_setprio {os.environ['L1PRIO']}")
        a.label(f"{N}_np")
    srd(a, 60, 14, 15, 8 * MB, add=WS_Y)
    vmq = list(g0.vm.q)
    st()
    stn = st.n
    def y_prep():
        a.I(f"v_lshlrev_b32 {v(YA)}, 4, {v(TID)}")
        a.I("s_lshr_b32 s12, s16, 2")
        a.I("s_lshl_b32 s12, s12, 12")
        a.I("s_add_u32 s66, s66, s12")
        a.I(f"s_add_u32 s67, s66, {256 * 8192 + WS_WF - WS_Y}")
        a.I(f"s_add_u32 s12, s12, {BLDS + 8192}")
        a.I(f"v_add_u32 {v(YA)}, s12, {v(YA)}")

    y_prep()

    def mkgen(passes, nmerge=1):
        g = Gen(passes, nmerge, vmq)
        g.busy, g.nxt, g.dq = dict(g0.busy), g0.nxt, list(g0.dq)
        st.n = stn
        return g

    def start(g):
        a.I("s_waitcnt lgkmcnt(0)")
        g.readA(0)
        g.sync(g.groups[0])
        st()
        g.lg.issue(f"ds_read_b128 {v(YD, 4)}, {v(YA)}", "y")
        for i in range(LOOK):
            g.reads(i)

    def capture(fn):
        n0 = len(a.items)
        fn()
        seg = a.items[n0:]
        del a.items[n0:]
        return seg

    def merge(s1, s2):
        import asmlib
        isv = lambda x: x[0] == "i" and x[1].text.startswith("s_waitcnt vmcnt")
        out, i, j = [], 0, 0
        while i < len(s1) or j < len(s2):
            x = s1[i] if i < len(s1) else None
            y = s2[j] if j < len(s2) else None
            if x is not None and y is not None and isv(x) and isv(y):
                n = min(int(x[1].text[16:-1]), int(y[1].text[16:-1]))
                out.append(("i", asmlib.Ins(f"s_waitcnt vmcnt({n})")))
                i += 1
                j += 1
            elif x is not None and isv(x):
                out.append(x)
                i += 1
            elif y is not None and isv(y):
                out.append(y)
                j += 1
            else:
                assert x[1].text == y[1].text, (x[1].text, y[1].text)
                out.append(x)
                i += 1
                j += 1
        return out

    def looped(F, lab):
        def plist(pair):
            L = []
            for pp in range(8):
                if pair == 0:
                    L.append((F, 0, pp, 0, pp))
                else:
                    rel = pp - pair
                    L.append((F, 1 if rel >= 2 else 0, rel - 2 if rel >= 2 else rel, 0, rel))
            return L
        g = mkgen(plist(0))
        start(g)
        g.run(0, 2)
        g.boundary([0])
        g.skip_boundary = True
        g.wo_load()
        st()
        a.I("s_add_u32 s48, s48, 256")
        a.I("s_add_u32 s50, s50, s92")
        a.I("s_mov_b32 s44, 0")
        g.passes = plist(2)
        s1 = capture(lambda: g.run(2, 4))
        g.passes = plist(4)
        s2 = capture(lambda: g.run(4, 6))
        a.label(lab + "_loop")
        mg = merge(s1, s2)
        drop = os.environ.get("DROP", "").split(",")

        def keep(x):
            if x[0] != "i":
                return True
            tx = x[1].text
            if "dma" in drop and tx.endswith(" lds"):
                return False
            if "st" in drop and tx.startswith("buffer_store"):
                return False
            if "valu" in drop and x[1].cls == "valu":
                return False
            if "bar" in drop and tx == "s_barrier":
                return False
            if "rd" in drop and tx.startswith("ds_read"):
                return False
            if "vw" in drop and tx.startswith("s_waitcnt vm"):
                return False
            if "lw" in drop and tx.startswith("s_waitcnt lg"):
                return False
            return True
        a.items += [x for x in mg if keep(x)]
        if F == "K":
            a.I("s_cmp_eq_u32 s18, 10")
            a.I(f"s_cbranch_scc1 {N}_Ctail")
        a.I("s_mov_b32 s48, s53")
        a.I("s_mov_b32 s34, 0")
        a.I("s_add_u32 s50, s50, s92")
        a.I("s_add_u32 s44, s44, 1")
        a.I("s_cmp_lt_u32 s44, 2")
        a.I(f"s_cbranch_scc1 {lab}_loop")
        g.passes = plist(6)
        g.fin(5)
        return g

    a.I("s_cmp_eq_u32 s18, 31")
    a.I(f"s_cbranch_scc1 {N}_D")
    a.I("s_cmp_eq_u32 s41, 1")
    a.I(f"s_cbranch_scc1 {N}_B")
    looped("K", N + "_A")
    a.label(f"{N}_Ctail")
    gc = mkgen([("K", 0, pp, 0, pp) for pp in range(4)] + [("V", 1, 0, 1, 0), ("V", 1, 1, 1, 1)])
    capture(lambda: (start(gc), gc.run(0, 2), gc.wo_load(), gc.run(2, 4)))
    gc.passes[3] = ("K", 0, 1, 0, 1)
    st.n = stn + 5
    gc.run(4, 6)
    gc.fin(5)
    a.label(N + "_B")
    looped("V", N + "_B2")
    a.label(N + "_D")
    gd = mkgen([("V", 0, 0, 0, 0), ("V", 0, 1, 0, 1)] + [("K", 1, i, 1, i) for i in range(4)], 2)
    start(gd)
    gd.run(0, 2)
    st()
    gd.run(2, 5)
    gd.wo_load()
    gd.run(5, 6)
    gd.fin(5)
    kend(a, N)
    return a, N, (256, 512, 163840)


def gen_l3():
    a = Asm()
    N = "l3_kernel"
    kstart(a, N, 256)
    a.I("s_load_dwordx2 s[4:5], s[0:1], 88")
    a.I("s_load_dwordx2 s[8:9], s[0:1], 72")
    a.I("v_lshrrev_b32 v1, 6, v0")
    a.I("v_and_b32 v2, 255, v0")
    a.I("v_and_b32 v0, 63, v0")
    a.I("v_readfirstlane_b32 s17, v1")
    st = Stamper(a, "l3")
    WF, ACCS, RING, L16, LR, CMB = 128, [68, 84], 100, 124, 125, 127
    LOOK = 5
    a.I("s_bfe_u32 s40, s2, 0x20001")
    a.I("s_and_b32 s43, s2, 1")
    a.I("s_lshl_b32 s43, s43, 5")
    a.I("s_lshr_b32 s44, s2, 3")
    a.I("s_add_u32 s43, s43, s44")
    a.I("s_lshr_b32 s41, s43, 2")
    a.I("s_and_b32 s42, s43, 3")
    a.I("s_and_b32 s16, s17, 3")
    a.I("s_lshr_b32 s18, s17, 2")
    a.I(f"v_lshlrev_b32 {v(L16)}, 4, v0")
    a.I("s_lshl_b32 s45, s42, 1")
    a.I("s_lshr_b32 s46, s16, 1")
    a.I("s_add_u32 s45, s45, s46")
    a.I("s_lshl_b32 s45, s45, 19")
    a.I("s_lshl1_add_u32 s46, s40, s18")
    a.I("s_lshl_b32 s46, s46, 16")
    a.I("s_add_u32 s45, s45, s46")
    a.I("s_and_b32 s46, s16, 1")
    a.I("s_lshl_b32 s46, s46, 10")
    a.I("s_add_u32 s45, s45, s46")
    a.I(f"s_add_u32 s45, s45, {hex(WS_WO)}")
    a.I("s_lshl_b32 s47, s18, 15")
    a.I("s_lshl_b32 s48, s16, 10")
    a.I("s_add_u32 s47, s47, s48")
    a.I("s_lshl_b32 s46, s41, 20")
    a.I("s_lshl_b32 s48, s40, 16")
    a.I("s_add_u32 s46, s46, s48")
    a.I("s_add_u32 s46, s46, s47")
    a.I(f"s_add_u32 s46, s46, {hex(WS_CTX)}")
    a.I("s_lshl_b32 s48, s18, 15")
    a.I(f"v_add_u32 {v(LR)}, s48, {v(L16)}")
    a.I(f"v_add_u32 {v(LR + 1)}, 0x10000, {v(LR)}")
    a.I("s_lshl_b32 s48, s16, 12")
    a.I(f"s_add_u32 s48, s48, {131072}")
    a.I(f"v_add_u32 {v(CMB)}, s48, {v(L16)}")
    a.I("s_waitcnt lgkmcnt(0)")
    srd(a, 52, 4, 5, 64 * MB)
    st()
    vm, lg = VM(a), LG(a)

    def sub_off(n, dst):
        a.I(f"s_add_u32 {s(dst)}, s40, {n + 1}")
        a.I(f"s_and_b32 {s(dst)}, {s(dst)}, 3")
        a.I(f"s_lshl_b32 {s(dst)}, {s(dst)}, 18")
        a.I(f"s_add_u32 {s(dst)}, {s(dst)}, s46")

    for n in range(4):
        sub_off(n, 36 + n)

    def cdma(n, i):
        return [lambda: (a.I(f"s_add_u32 m0, s47, {(n & 1) * 65536 + i * 4096}"),
                         a.I(f"s_add_u32 s49, s{36 + n}, {i * 4096}"),
                         vm.issue(f"buffer_load_dwordx4 {v(L16)}, s[52:55], s49 offen lds", ("C", n, i // 2)))]

    def wload(g):
        def f():
            if g % 2 == 0 and g:
                a.I("s_add_u32 s45, s45, 4096")
            vm.issue(f"buffer_load_dwordx4 {v(WF + 4 * g, 4)}, {v(L16)}, s[52:55], s45 offen offset:{(g % 2) * 2048}", ("W", g))
        return [f]

    pend = []
    for c in range(4):
        for i in (2 * c, 2 * c + 1):
            pend += cdma(0, i) + cdma(1, i)
        for g in range(8 * c, 8 * c + 8):
            pend += wload(g)
    tags = []
    for c in range(4):
        tags += [("C", 0, c), ("C", 1, c)] * 2 + [("W", g) for g in range(8 * c, 8 * c + 8)]
    ptag = list(tags)

    def pump(k=1):
        for _ in range(k):
            if pend:
                pend.pop(0)()
                ptag.pop(0)

    def need(tg):
        while any(x in ptag for x in tg):
            pump()

    pump(PRE3)
    b3_loads(a, 8)
    srd(a, 56, 4, 5, 16 * MB, add=WS_PART)
    srd(a, 60, 4, 5, 64 * 128, add=WS_FLAG)
    a.I("s_lshl_b32 s64, s43, 7")
    a.I("s_lshl2_add_u32 s67, s40, s64")
    LA, LB_ = 28, 29
    a.I("s_lshl_b32 s48, s18, 16")
    a.I(f"v_add_u32 {v(LA)}, s48, {v(LR)}")
    a.I(f"v_xor_b32 {v(LB_)}, 0x10000, {v(LA)}")
    st()
    AC = [68, 84, 32]
    sched = []
    for g in range(32):
        sched += [(AC[0], LA, g), (AC[1], LB_, g)]
    sched += [(AC[2], LR, g) for g in range(32)] + [(AC[1], LR + 1, g) for g in range(32)]

    def read(i):
        lg.issue(f"ds_read_b128 {v(RING + 4 * (i % 6), 4)}, {v(sched[i][1])} offset:{sched[i][2] * 1024}", i)

    def sync(tg):
        need(tg)
        vm.wait(tg)
        a.I("s_barrier")

    TMP = 48

    def slot_calc(own_expr):
        a.I(own_expr)
        a.I("s_and_b32 s50, s50, 3")
        a.I("s_lshl2_add_u32 s50, s43, s50")
        a.I("s_lshl2_add_u32 s50, s50, s40")
        a.I("s_lshl2_add_u32 s50, s50, s16")
        a.I("s_lshl_b32 s50, s50, 12")

    def give_l(A, addr, off):
        for q in range(4):
            a.I(f"ds_write_b128 {v(addr)}, {v(A + 4 * q, 4)} offset:{off + q * 1024}")

    def take_l(A, addr, off, model=False):
        for q in range(4):
            a.I(f"ds_read_b128 {v(TMP + 4 * q, 4)}, {v(addr)} offset:{off + q * 1024}")
        a.I("s_waitcnt lgkmcnt(0)")
        for j in range(16):
            a.I(f"v_add_f32 {v(A + j)}, {v(A + j)}, {v(TMP + j)}")
        for q in range(4):
            x = f"buffer_store_dwordx4 {v(A + 4 * q, 4)}, {v(L16)}, s[56:59], s50 offen offset:{q * 1024} sc1"
            vm.issue(x, "P") if model else a.I(x)

    def give(n):
        lab = a.uid(f"{N}_g")
        a.I(f"s_cmp_eq_u32 s18, {n & 1}")
        a.I(f"s_cbranch_scc1 {lab}")
        give_l(AC[2] if n == 2 else AC[1], CMB, (n & 1) * 16384)
        a.label(lab)
        a.I("s_waitcnt lgkmcnt(0)")
        lg.q = []

    sync([("C", 0, 0), ("C", 1, 0)])
    st()
    for i in range(LOOK):
        read(i)
    for i in range(128):
        ac, _, g = sched[i]
        lg.wait(i)
        if i < 64:
            need([("W", g)])
            vm.wait(("W", g))
        first = g == 0
        a.I(f"{MF} {v(ac, 16)}, {v(WF + 4 * g, 4)}, {v(RING + 4 * (i % 6), 4)}, {'0' if first else v(ac, 16)}")
        j = i + LOOK
        if j < 128:
            if j < 64 and j % 16 == 0:
                c = j // 16
                sync([("C", 0, c), ("C", 1, c)])
                if c >= 2:
                    for n in (2, 3):
                        for k in (2 * (c - 2), 2 * (c - 2) + 1):
                            pend.extend(cdma(n, k))
                            ptag.append(("C", n, c - 2))
            elif j >= 64 and j % 16 == 0:
                sync([("C", j // 32, (j % 32) // 8 + c) for c in range(2)])
            read(j)
        if i in (31, 63, 75, 95, 107):
            st()
        if j == 64:
            for n in (2, 3):
                for k in (4, 5):
                    pend.extend(cdma(n, k))
                    ptag.append(("C", n, 2))
        if i == 64 + 5:
            a.I("s_lshl_b32 s48, s18, 14")
            a.I(f"v_add_u32 v30, s48, {v(CMB)}")
            a.I("v_xor_b32 v31, 0x4000, v30")
            give_l(AC[1], 31, 0)
            a.I("s_add_u32 s51, s18, 1")
            slot_calc("s_add_u32 s50, s40, s51")
            a.I("s_waitcnt lgkmcnt(0)")
            lg.q = []
            a.I("s_barrier")
            for n in (2, 3):
                for k in (6, 7):
                    pend.extend(cdma(n, k))
                    ptag.append(("C", n, 3))
            need([("C", 3, 3)])
            take_l(AC[0], 30, 0, True)
        if i == 96 + 5:
            vm.wait([("C", 3, 2), ("C", 3, 3)])
            give(2)
            a.I("s_barrier")
            a.I("s_cmp_lg_u32 s18, 0")
            a.I(f"s_cbranch_scc1 {N}_t2")
            slot_calc("s_add_u32 s50, s40, 3")
            take_l(AC[2], CMB, 0)
            a.label(f"{N}_t2")
        pump(2 if i < 64 else 1)
    st()
    LW = 32768
    a.I("v_mov_b32 v1, 0")
    a.I("v_mov_b32 v30, %d" % LW)
    a.I("ds_write_b32 v30, v1")
    a.I("v_mov_b32 v1, 1")
    a.I("s_nop 7")
    give(3)
    a.I("s_waitcnt vmcnt(0)")
    a.I("s_barrier")
    a.I("s_cmp_eq_u32 s18, 1")
    a.I(f"s_cbranch_scc1 {N}_fin")
    a.I("s_cmp_lg_u32 s17, 0")
    a.I(f"s_cbranch_scc1 {N}_nosig")
    a.I("s_mov_b64 exec, 1")
    a.I("buffer_store_dword v1, off, s[60:63], s67 sc1")
    a.I("s_mov_b64 exec, -1")
    a.label(f"{N}_nosig")
    b3_body(a, 0, 8, loaded=True)
    a.I("s_endpgm")
    a.label(f"{N}_fin")
    A = ACCS[1]
    a.I("s_lshl2_add_u32 s50, s43, s40")
    a.I("s_lshl_b32 s50, s50, 4")
    a.I("s_add_u32 s50, s50, s16")
    a.I("s_lshl_b32 s50, s50, 12")
    a.I("v_and_b32 v3, 31, v0")
    a.I("v_lshlrev_b32 v3, 11, v3")
    a.I("v_lshrrev_b32 v4, 5, v0")
    a.I("v_lshl_add_u32 v3, v4, 4, v3")
    a.I("s_lshl2_add_u32 s65, s41, s40")
    a.I("s_lshl_b32 s65, s65, 16")
    a.I("s_lshl_b32 s66, s42, 8")
    a.I("s_add_u32 s65, s65, s66")
    a.I("s_lshl_b32 s66, s16, 6")
    a.I("s_add_u32 s65, s65, s66")
    srd(a, 52, 8, 9, 4 * MB)
    a.I(f"v_mov_b32 v5, {LW}")
    for q in range(4):
        a.I(f"ds_read_b128 {v(WF + 4 * q, 4)}, {v(CMB)} offset:{16384 + q * 1024}")
    POLL = os.environ.get("POLL", "1")
    a.I("s_mov_b32 s44, 0")
    if POLL == "1":
        a.I("s_cmp_lg_u32 s17, 4")
        a.I(f"s_cbranch_scc1 {N}_lspin")
    a.label(f"{N}_spin")
    a.I("buffer_load_dwordx4 v[4:7], off, s[60:63], s64 sc1")
    a.I("s_waitcnt vmcnt(0)")
    a.I("v_and_b32 v4, v4, v5")
    a.I("v_and_b32 v6, v6, v7")
    a.I("v_and_b32 v4, v4, v6")
    a.I("s_nop 0")
    a.I("v_readfirstlane_b32 s66, v4")
    a.I("s_nop 0")
    a.I("s_cmp_eq_u32 s66, 1")
    a.I(f"s_cbranch_scc1 {N}_got")
    a.I("s_sleep 2")
    a.I("s_add_u32 s44, s44, 1")
    a.I("s_cmp_lt_u32 s44, 0x100000")
    a.I(f"s_cbranch_scc1 {N}_spin")
    a.I(f"s_branch {N}_got")
    if POLL == "1":
        a.label(f"{N}_lspin")
        a.I("ds_read_b32 v4, v5")
        a.I("s_waitcnt lgkmcnt(0)")
        a.I("v_readfirstlane_b32 s66, v4")
        a.I("s_nop 0")
        a.I("s_cmp_eq_u32 s66, 1")
        a.I(f"s_cbranch_scc1 {N}_got2")
        a.I("s_sleep 1")
        a.I(f"s_branch {N}_lspin")
    a.label(f"{N}_got")
    if POLL == "1":
        a.I(f"v_mov_b32 v5, {LW}")
        a.I("ds_write_b32 v5, v1")
        a.label(f"{N}_got2")
    st()
    for k in range(1, 4):
        a.I(f"s_add_u32 s66, s40, {k}")
        a.I("s_and_b32 s66, s66, 3")
        a.I("s_lshl_b32 s66, s66, 14")
        a.I("s_add_u32 s66, s66, s50")
        for q in range(4):
            a.I(f"buffer_load_dwordx4 {v(WF + 16 * k + 4 * q, 4)}, {v(L16)}, s[56:59], s66 offen offset:{q * 1024} sc1")
    a.I("s_waitcnt lgkmcnt(0)")
    a.I("s_barrier")
    for k in range(4):
        if k:
            a.I(f"s_waitcnt vmcnt({4 * (3 - k)})")
        for j in range(16):
            a.I(f"v_add_f32 {v(A + j)}, {v(A + j)}, {v(WF + 16 * k + j)}")
    pack(a, 8, A, 8)
    a.I("s_nop 1")
    for h in range(2):
        a.I(f"v_permlane32_swap_b32 {v(8 + 4 * h)}, {v(10 + 4 * h)}")
        a.I(f"v_permlane32_swap_b32 {v(9 + 4 * h)}, {v(11 + 4 * h)}")
        a.I(f"buffer_store_dwordx4 {v(8 + 4 * h, 4)}, v3, s[52:55], s65 offen offset:{32 * h}{os.environ.get('OPA', ' nt')}")
    st.dump(17, 4, tmpv=16)
    kend(a, N)
    return a, N, (256, 512, 163840)


def gen_l3v3():
    a = Asm()
    N = "l3_kernel"
    kstart(a, N, 256)
    a.I("s_load_dwordx2 s[4:5], s[0:1], 88")
    a.I("s_load_dwordx2 s[8:9], s[0:1], 72")
    a.I("v_lshrrev_b32 v1, 6, v0")
    a.I("v_and_b32 v2, 255, v0")
    a.I("v_and_b32 v0, 63, v0")
    a.I("v_readfirstlane_b32 s17, v1")
    st = Stamper(a, "l3")
    WF, ACCS, RING, L16, LR, CMB = 128, [68, 84], 100, 124, 125, 127
    LOOK = 5
    a.I("s_bfe_u32 s40, s2, 0x20001")
    a.I("s_and_b32 s43, s2, 1")
    a.I("s_lshl_b32 s43, s43, 5")
    a.I("s_lshr_b32 s44, s2, 3")
    a.I("s_add_u32 s43, s43, s44")
    a.I("s_lshr_b32 s41, s43, 2")
    a.I("s_and_b32 s42, s43, 3")
    a.I("s_and_b32 s16, s17, 3")
    a.I("s_lshr_b32 s18, s17, 2")
    a.I(f"v_lshlrev_b32 {v(L16)}, 4, v0")
    a.I("s_lshl_b32 s45, s42, 1")
    a.I("s_lshr_b32 s46, s16, 1")
    a.I("s_add_u32 s45, s45, s46")
    a.I("s_lshl_b32 s45, s45, 19")
    a.I("s_lshl1_add_u32 s46, s40, s18")
    a.I("s_lshl_b32 s46, s46, 16")
    a.I("s_add_u32 s45, s45, s46")
    a.I("s_and_b32 s46, s16, 1")
    a.I("s_lshl_b32 s46, s46, 10")
    a.I("s_add_u32 s45, s45, s46")
    a.I(f"s_add_u32 s45, s45, {hex(WS_WO)}")
    a.I("s_lshl_b32 s47, s18, 15")
    a.I("s_lshl_b32 s48, s16, 10")
    a.I("s_add_u32 s47, s47, s48")
    a.I("s_lshl_b32 s46, s41, 20")
    a.I("s_lshl_b32 s48, s40, 16")
    a.I("s_add_u32 s46, s46, s48")
    a.I("s_add_u32 s46, s46, s47")
    a.I(f"s_add_u32 s46, s46, {hex(WS_CTX)}")
    a.I("s_lshl_b32 s47, s18, 13")
    a.I("s_lshl_b32 s48, s16, 10")
    a.I("s_add_u32 s47, s47, s48")
    a.I("s_lshl_b32 s48, s18, 13")
    a.I(f"v_add_u32 {v(LR)}, s48, {v(L16)}")
    a.I(f"v_add_u32 {v(LR + 1)}, 0x10000, {v(LR)}")
    a.I("s_lshl_b32 s48, s16, 12")
    a.I(f"v_add_u32 {v(CMB)}, s48, {v(L16)}")
    a.I("s_waitcnt lgkmcnt(0)")
    srd(a, 52, 4, 5, 64 * MB)
    st()
    vm, lg = VM(a), LG(a)

    def sub_off(n, dst):
        a.I(f"s_add_u32 {s(dst)}, s40, {n + 1}")
        a.I(f"s_and_b32 {s(dst)}, {s(dst)}, 3")
        a.I(f"s_lshl_b32 {s(dst)}, {s(dst)}, 18")
        a.I(f"s_add_u32 {s(dst)}, {s(dst)}, s46")

    PB16 = int(os.environ.get("PB16", "1"))
    for n in range(4):
        sub_off(n, 36 + n)

    def cslot(n, c):
        return (n * 2 + c % 2) * 16384 if n < 3 else 98304 + c * 16384

    pend, ptag = [], []

    def cdma(n, i):
        pend.append(lambda: (a.I(f"s_add_u32 m0, s47, {cslot(n, i // 2) + (i % 2) * 4096}"),
                             a.I(f"s_add_u32 s49, s{36 + n}, {i * 4096}"),
                             vm.issue(f"buffer_load_dwordx4 {v(L16)}, s[52:55], s49 offen lds", ("C", n, i // 2))))
        ptag.append(("C", n, i // 2))

    def wload(g):
        def f():
            if g % 2 == 0 and g:
                a.I("s_add_u32 s45, s45, 4096")
            vm.issue(f"buffer_load_dwordx4 {v(WF + 4 * g, 4)}, {v(L16)}, s[52:55], s45 offen offset:{(g % 2) * 2048}", ("W", g))
        pend.append(f)
        ptag.append(("W", g))

    def pump(k=1):
        for _ in range(k):
            if pend:
                pend.pop(0)()
                ptag.pop(0)

    def need(tg):
        while any(x in ptag for x in tg):
            pump()

    for c in range(2):
        for n in range(3):
            cdma(n, 2 * c)
            cdma(n, 2 * c + 1)
        for g in range(8 * c, 8 * c + 8):
            wload(g)
    for g in range(16, 24):
        wload(g)
    pump(PRE3)
    srd(a, 56, 4, 5, 16 * MB, add=WS_PART)
    a.I("s_lshl2_add_u32 s60, s43, s40")
    a.I("s_lshl_b32 s60, s60, 4")
    a.I("s_add_u32 s60, s60, s16")
    a.I("s_lshl_b32 s60, s60, 12")
    for k in range(1, 4):
        a.I(f"s_add_u32 s{60 + k}, s40, {k}")
        a.I(f"s_and_b32 s{60 + k}, s{60 + k}, 3")
        a.I(f"s_lshl_b32 s{60 + k}, s{60 + k}, 14")
        a.I(f"s_add_u32 s{60 + k}, s{60 + k}, s60")

    def part_loads():
        for k in range(1, 4):
            for q in range(2):
                a.I(f"buffer_load_dwordx4 {v(WF + 16 * k + 4 * q, 4)}, {v(L16)}, s[56:59], s{60 + k} offen offset:{q * 1024} sc1")
    LA, LB_, LO = 28, 29, 30
    a.I("s_lshl_b32 s48, s18, 15")
    a.I(f"v_add_u32 {v(LA)}, s48, {v(LR)}")
    a.I(f"v_xor_b32 {v(LB_)}, 0x8000, {v(LA)}")
    a.I(f"v_add_u32 {v(LO)}, {98304}, {v(LR)}")
    st()
    AC = [68, 84, 32]
    sched = []
    for g in range(32):
        o = ((g // 8) % 2) * 16384 + (g % 8) * 1024
        sched += [(AC[0], LA, o, g), (AC[1], LB_, o, g), (AC[2], LR + 1, o, g)]
    OWN = 48
    sched += [(OWN, LO, (g // 8) * 16384 + (g % 8) * 1024, g) for g in range(32)]

    def read(i):
        lg.issue(f"ds_read_b128 {v(RING + 4 * (i % 6), 4)}, {v(sched[i][1])} offset:{sched[i][2]}", i)

    def sync(tg):
        need(tg)
        vm.wait(tg)
        a.I("s_barrier")

    def slot_calc(dst, own_expr):
        a.I(own_expr)
        a.I(f"s_and_b32 {s(dst)}, {s(dst)}, 3")
        a.I(f"s_lshl2_add_u32 {s(dst)}, s43, {s(dst)}")
        a.I(f"s_lshl2_add_u32 {s(dst)}, {s(dst)}, s40")
        a.I(f"s_lshl2_add_u32 {s(dst)}, {s(dst)}, s16")
        a.I(f"s_lshl_b32 {s(dst)}, {s(dst)}, 12")

    def give_l(A, addr, off):
        for q in range(4):
            a.I(f"ds_write_b128 {v(addr)}, {v(A + 4 * q, 4)} offset:{off + q * 1024}")

    def take_l(A, T, addr, off, so):
        for q in range(4):
            a.I(f"ds_read_b128 {v(T + 4 * q, 4)}, {v(addr)} offset:{off + q * 1024}")
        a.I("s_waitcnt lgkmcnt(0)")
        for j in range(16):
            a.I(f"v_add_f32 {v(A + j)}, {v(A + j)}, {v(T + j)}")
        if PB16:
            pack(a, T, A, 8)
            for q in range(2):
                a.I(f"buffer_store_dwordx4 {v(T + 4 * q, 4)}, {v(L16)}, s[56:59], {s(so)} offen offset:{q * 1024} sc1")
        else:
            for q in range(4):
                a.I(f"buffer_store_dwordx4 {v(A + 4 * q, 4)}, {v(L16)}, s[56:59], {s(so)} offen offset:{q * 1024} sc1")

    sync([("C", n, 0) for n in range(3)])
    st()
    for i in range(LOOK):
        read(i)
    NM = 128
    B3RM = (68, 76, 84, 92, 32, 128, 136, 152, 168, 176)
    mats = []
    for i in range(NM):
        ac, _, _, g = sched[i]
        lg.wait(i)
        if i < 96:
            need([("W", g)])
            vm.wait(("W", g))
        a.I(f"{MF} {v(ac, 16)}, {v(WF + 4 * g, 4)}, {v(RING + 4 * (i % 6), 4)}, {'0' if g == 0 else v(ac, 16)}")
        j = i + LOOK
        if j < NM:
            if j < 96 and j % 24 == 0:
                sync([("C", n, j // 24) for n in range(3)])
            elif j == 96:
                sync([("C", 3, c) for c in range(2)])
            elif j == 112:
                a.I("s_barrier")
            read(j)
        if i in (25, 49):
            c = i // 24
            a.I("s_barrier")
            for n in range(3):
                cdma(n, 2 * (c + 1))
                cdma(n, 2 * (c + 1) + 1)
            if c == 1:
                for g2 in range(24, 32):
                    wload(g2)
        if i == OWNAT:
            for k in range(8):
                cdma(3, k)
        if i == B3AT:
            n0 = len(a.items)
            b3_loads(a, 8, before=lambda: (a.I("s_cmp_lg_u32 s18, 0"), a.I(f"s_cbranch_scc1 {N}_nb3l")))
            a.items[n0:] = [x for x in a.items[n0:] if not (x[0] == "i" and x[1].text == "s_waitcnt lgkmcnt(0)")]
            a.label(f"{N}_nb3l")
        if i in (47, 95, 107):
            st()
        if i == 96 + 4:
            a.I("s_lshl_b32 s48, s18, 15")
            a.I(f"v_add_u32 {v(LA)}, s48, {v(CMB)}")
            a.I(f"v_xor_b32 {v(LB_)}, 0x8000, {v(LA)}")
            a.I(f"v_add_u32 v31, 0x10000, {v(CMB)}")
            give_l(AC[1], LB_, 0)
            a.I("s_cmp_eq_u32 s18, 0")
            a.I(f"s_cbranch_scc1 {N}_g2")
            give_l(AC[2], 31, 0)
            a.label(f"{N}_g2")
            vm.wait([("C", 3, 2), ("C", 3, 3)])
            a.I("s_add_u32 s51, s18, 1")
            slot_calc(50, "s_add_u32 s50, s40, s51")
            slot_calc(51, "s_add_u32 s51, s40, 3")
            a.I("s_waitcnt lgkmcnt(0)")
            lg.q = []
            a.I("s_barrier")
            take_l(AC[0], AC[1], LA, 0, 50)
            a.I("s_cmp_lg_u32 s18, 0")
            a.I(f"s_cbranch_scc1 {N}_t2")
            take_l(AC[2], AC[0], 31, 0, 51)
            a.label(f"{N}_t2")
            n0 = len(a.items)
            b3_body(a, 65536, 8, loaded=True, part=1, rm=B3RM)
            mats = a.items[n0:] if MATF else []
            del a.items[n0:]
        if i > 96 + 5 and mats:
            a.items.extend(mats[:9])
            del mats[:9]
        if i == SIG3:
            a.I("s_cmp_eq_u32 s18, 0")
            a.I(f"s_cbranch_scc1 {N}_nopl")
            part_loads()
            a.label(f"{N}_nopl")
        pump(2 if i < 96 else 1)

    def give(n):
        lab = a.uid(f"{N}_g")
        a.I("s_cmp_eq_u32 s18, 1")
        a.I(f"s_cbranch_scc1 {lab}")
        give_l(OWN, CMB, 49152)
        a.label(lab)
        a.I("s_waitcnt lgkmcnt(0)")

    st()
    LW = 81920
    a.I("v_mov_b32 v1, 0")
    a.I(f"v_mov_b32 v30, {LW}")
    a.I("ds_write_b32 v30, v1")
    a.I("s_nop 8")
    give(3)
    a.I("s_barrier")
    a.I("s_cmp_eq_u32 s18, 1")
    a.I(f"s_cbranch_scc1 {N}_fin")

    def meet():
        a.I(f"v_mov_b32 v30, {LW}")
        a.I("v_mov_b32 v31, 1")
        a.I("s_mov_b64 exec, 1")
        a.I("ds_add_u32 v30, v31")
        a.I("s_mov_b64 exec, -1")
        a.label(f"{N}_meet")
        a.I("ds_read_b32 v31, v30")
        a.I("s_waitcnt lgkmcnt(0)")
        a.I("v_readfirstlane_b32 s44, v31")
        a.I("s_nop 0")
        a.I("s_cmp_lt_u32 s44, 4")
        a.I(f"s_cbranch_scc1 {N}_meet")

    assert not mats
    b3_body(a, 65536, 8, loaded=True, bar=meet, part=2 if MATF else 0, rm=B3RM)
    a.I("s_endpgm")
    a.label(f"{N}_fin")
    A = OWN
    a.I("v_and_b32 v3, 31, v0")
    a.I("v_lshlrev_b32 v3, 11, v3")
    a.I("v_lshrrev_b32 v4, 5, v0")
    a.I("v_lshl_add_u32 v3, v4, 4, v3")
    a.I("s_lshl2_add_u32 s65, s41, s40")
    a.I("s_lshl_b32 s65, s65, 16")
    a.I("s_lshl_b32 s66, s42, 8")
    a.I("s_add_u32 s65, s65, s66")
    a.I("s_lshl_b32 s66, s16, 6")
    a.I("s_add_u32 s65, s65, s66")
    srd(a, 52, 8, 9, 4 * MB)
    for q in range(4):
        a.I(f"ds_read_b128 {v(WF + 4 * q, 4)}, {v(CMB)} offset:{49152 + q * 1024}")
    a.I("s_mov_b32 s44, 0")
    a.I("s_waitcnt lgkmcnt(0)")
    a.I(f"s_branch {N}_chk")
    a.label(f"{N}_again")
    part_loads()
    a.label(f"{N}_chk")
    a.I("s_waitcnt vmcnt(0)")
    regs = [WF + 16 * k + j for k in range(1, 4) for j in range(8)]
    a.I(f"v_max3_u32 v4, {v(regs[0])}, {v(regs[1])}, {v(regs[2])}")
    for j in range(3, 23, 2):
        a.I(f"v_max3_u32 v4, v4, {v(regs[j])}, {v(regs[j + 1])}")
    a.I(f"v_max_u32 v4, v4, {v(regs[23])}")
    a.I("v_cmp_eq_u32 vcc, -1, v4")
    a.I("s_add_u32 s44, s44, 1")
    a.I(f"s_cbranch_vccz {N}_got")
    a.I("s_cmp_lt_u32 s44, 0x10000")
    a.I(f"s_cbranch_scc1 {N}_again")
    a.label(f"{N}_got")
    st()
    for k in range(4):
        for j in range(16):
            if PB16 and k:
                if j & 1:
                    a.I(f"v_and_b32 v64, 0xffff0000, {v(WF + 16 * k + j // 2)}")
                else:
                    a.I(f"v_lshlrev_b32 v64, 16, {v(WF + 16 * k + j // 2)}")
                a.I(f"v_add_f32 {v(A + j)}, {v(A + j)}, v64")
            else:
                a.I(f"v_add_f32 {v(A + j)}, {v(A + j)}, {v(WF + 16 * k + j)}")
    pack(a, 8, A, 8)
    a.I("s_nop 1")
    for h in range(2):
        a.I(f"v_permlane32_swap_b32 {v(8 + 4 * h)}, {v(10 + 4 * h)}")
        a.I(f"v_permlane32_swap_b32 {v(9 + 4 * h)}, {v(11 + 4 * h)}")
        a.I(f"buffer_store_dwordx4 {v(8 + 4 * h, 4)}, v3, s[52:55], s65 offen offset:{32 * h}{os.environ.get('OPA', ' nt')}")
    st.dump(17, 4, tmpv=16)
    kend(a, N)
    return a, N, (256, 512, 163840)


def gen_l3_s4():
    a = Asm()
    N = "l3_kernel"
    kstart(a, N, 256)
    a.I("s_load_dwordx2 s[4:5], s[0:1], 88")
    a.I("s_load_dwordx2 s[8:9], s[0:1], 72")
    a.I("v_lshrrev_b32 v1, 6, v0")
    a.I("v_and_b32 v0, 63, v0")
    a.I("s_nop 0")
    a.I("v_readfirstlane_b32 s17, v1")
    st = Stamper(a, "l3")
    L16, RA, RB_, ACC, FR = 128, 129, 130, 132, 164
    PB16 = int(os.environ.get("PB16", "0"))
    NST, STG = 4, 4
    a.I("s_bfe_u32 s40, s2, 0x20001")
    a.I("s_and_b32 s43, s2, 1")
    a.I("s_lshl_b32 s43, s43, 5")
    a.I("s_lshr_b32 s44, s2, 3")
    a.I("s_add_u32 s43, s43, s44")
    a.I("s_lshr_b32 s41, s43, 2")
    a.I("s_and_b32 s42, s43, 3")
    a.I(f"v_lshlrev_b32 {v(L16)}, 4, v0")
    a.I("s_lshl_b32 s45, s41, 2")
    a.I("s_add_u32 s45, s45, s17")
    a.I("s_lshl_b32 s45, s45, 18")
    a.I("s_lshl_b32 s46, s40, 16")
    a.I("s_add_u32 s45, s45, s46")
    a.I(f"s_add_u32 s45, s45, {hex(WS_CTX)}")
    a.I("s_lshl_b32 s46, s42, 1")
    a.I("s_bfe_u32 s47, s17, 0x10001")
    a.I("s_add_u32 s46, s46, s47")
    a.I("s_lshl_b32 s46, s46, 19")
    a.I("s_lshl_b32 s47, s40, 17")
    a.I("s_add_u32 s46, s46, s47")
    a.I("s_and_b32 s47, s17, 1")
    a.I("s_lshl_b32 s47, s47, 10")
    a.I("s_add_u32 s46, s46, s47")
    a.I(f"s_add_u32 s46, s46, {hex(WS_WO)}")
    a.I("s_cmp_lt_u32 s17, 4")
    a.I("s_cselect_b32 s45, s45, s46")
    a.I("s_movk_i32 s46, 0x800")
    a.I("s_cselect_b32 s46, 1024, s46")
    a.I("s_lshl_b32 s47, s17, 10")
    a.I("s_and_b32 s48, s17, 1")
    a.I("s_lshl_b32 s48, s48, 11")
    a.I(f"v_add_u32 {v(RA)}, s48, {v(L16)}")
    a.I("s_lshr_b32 s48, s17, 1")
    a.I("s_lshl_b32 s48, s48, 10")
    a.I("s_add_u32 s48, s48, 4096")
    a.I(f"v_add_u32 {v(RB_)}, s48, {v(L16)}")
    a.I(f"v_add_u32 {v(RB_ + 1)}, 0x10000, {v(RA)}")
    a.I(f"v_add_u32 v127, 0x10000, {v(RB_)}") if False else None
    a.I("s_waitcnt lgkmcnt(0)")
    srd(a, 52, 4, 5, 64 * MB)
    st()
    vm, lg = VM(a), LG(a)

    def dma(g, emit=True):
        L = [lambda: a.I(f"s_add_u32 m0, s47, {(g % (NST * STG)) * 8192}"),
             lambda: a.I("s_add_u32 s49, s45, s46") if False else a.I("s_nop 0"),
             lambda: vm.issue(f"buffer_load_dwordx4 {v(L16)}, s[52:55], s45 offen lds", g),
             lambda: a.I("s_add_u32 s45, s45, s46")]
        return L

    def first_loads():
        for g in range((NST - 1) * STG):
            for f in dma(g):
                f()
        return (NST - 1) * STG

    first_loads()
    a.I("s_and_b32 s18, s17, 1")
    a.I("s_lshr_b32 s19, s40, 1")
    a.I("s_cmp_eq_u32 s18, s19")
    a.I("s_cselect_b32 s18, 1, 0")
    a.I("s_lshr_b32 s16, s17, 1")
    a.I("s_lshl_b32 s19, s16, 6")
    a.I("v_add_u32 v2, s19, v0")
    a.I("s_cmp_eq_u32 s18, 1")
    a.I(f"s_cbranch_scc1 {N}_nob3l")
    b3_loads(a, 8)
    a.label(f"{N}_nob3l")
    st()
    RA2, RB2 = RB_ + 1, 127
    a.I(f"v_add_u32 {v(RB2)}, 0x10000, {v(RB_)}")
    NG = 64

    def reads(g):
        sl = g % (NST * STG)
        ra, rb = (RA, RB_) if sl < 8 else (RA2, RB2)
        off = (sl % 8) * 8192
        d = FR + 12 * (g % 3)
        lg.issue(f"ds_read_b128 {v(d, 4)}, {v(rb)} offset:{off}", g)
        lg.issue(f"ds_read_b128 {v(d + 4, 4)}, {v(ra)} offset:{off}", g)
        lg.issue(f"ds_read_b128 {v(d + 8, 4)}, {v(ra)} offset:{off + 1024}", g)

    pend = []

    def sync(stg):
        vm.wait(list(range(stg * STG, (stg + 1) * STG)))
        a.I("s_barrier")
        nxt = stg + NST - 2
        if stg >= 1 and (nxt + 1) * STG <= NG and nxt >= NST - 1:
            for g in range(nxt * STG, (nxt + 1) * STG):
                pend.extend(dma(g))

    sync(0)
    st()
    reads(0)
    reads(1)
    for g in range(NG):
        j = g + 2
        if j < NG and j % STG == 0:
            while pend:
                pend.pop(0)()
            sync(j // STG)
        lg.wait(g)
        d = FR + 12 * (g % 3)
        for i in range(2):
            acc = v(ACC + 16 * i, 16)
            a.I(f"{MF} {acc}, {v(d, 4)}, {v(d + 4 + 4 * i, 4)}, {'0' if g == 0 else acc}")
            if i == 0 and j < NG:
                reads(j)
            for _ in range(2 + i):
                if pend:
                    pend.pop(0)()
    st()
    srd(a, 56, 4, 5, 16 * MB, add=WS_PART)
    a.I("s_lshr_b32 s48, s17, 1")
    a.I("s_and_b32 s49, s17, 1")
    a.I("s_lshl_b32 s50, s43, 2")
    a.I("s_lshl1_add_u32 s50, s49, s50")
    a.I("s_lshl_b32 s50, s50, 2")
    a.I("s_add_u32 s50, s50, s40")
    a.I("s_lshl_b32 s50, s50, 2")
    a.I("s_add_u32 s50, s50, s48")
    a.I("s_lshl_b32 s50, s50, 12")
    a.I("s_add_u32 s51, s50, 0x10000")
    a.I("s_lshl_b32 s49, s49, 1")
    for i in range(2):
        lab = f"{N}_keep{i}"
        a.I("s_cmp_eq_u32 s49, s40")
        a.I(f"s_cbranch_scc1 {lab}")
        if PB16:
            pack(a, FR + 8 * i, ACC + 16 * i, 8)
            for q in range(2):
                a.I(f"buffer_store_dwordx4 {v(FR + 8 * i + 4 * q, 4)}, {v(L16)}, s[56:59], s{50 + i} offen offset:{q * 1024} sc1")
        else:
            for q in range(4):
                a.I(f"buffer_store_dwordx4 {v(ACC + 16 * i + 4 * q, 4)}, {v(L16)}, s[56:59], s{50 + i} offen offset:{q * 1024} sc1")
        a.label(lab)
        a.I("s_add_u32 s49, s49, 1")
    srd(a, 60, 4, 5, 64 * 128, add=WS_FLAG)
    a.I("s_lshl_b32 s64, s43, 7")
    a.I("s_lshl2_add_u32 s67, s40, s64")

    def signal():
        a.I("v_mov_b32 v1, 1")
        a.I("s_waitcnt vmcnt(0)")
        a.I("s_barrier")
        a.I("s_cmp_lg_u32 s17, 7")
        lab = a.uid(f"{N}_nosig")
        a.I(f"s_cbranch_scc1 {lab}")
        a.I("s_mov_b64 exec, 1")
        a.I("buffer_store_dword v1, off, s[60:63], s67 sc1")
        a.I("s_mov_b64 exec, -1")
        a.label(lab)

    a.I("s_cmp_eq_u32 s18, 1")
    a.I(f"s_cbranch_scc1 {N}_nob3")
    b3_body(a, 131072, 8, loaded=True, mid=signal)
    a.I("s_endpgm")
    a.label(f"{N}_nob3")
    a.I("s_bitcmp0_b32 s40, 0")
    a.I(f"s_cbranch_scc1 {N}_own0")
    for j in range(16):
        a.I(f"v_mov_b32 {v(ACC + j)}, {v(ACC + 16 + j)}")
    a.label(f"{N}_own0")
    a.I("s_lshl_b32 s50, s43, 2")
    a.I("s_add_u32 s50, s50, s40")
    a.I("s_lshl_b32 s50, s50, 4")
    a.I("s_add_u32 s50, s50, s48")
    a.I("s_lshl_b32 s50, s50, 12")
    a.I("v_and_b32 v3, 31, v0")
    a.I("v_lshlrev_b32 v3, 11, v3")
    a.I("v_lshrrev_b32 v4, 5, v0")
    a.I("v_lshl_add_u32 v3, v4, 4, v3")
    a.I("s_lshl_b32 s65, s41, 2")
    a.I("s_add_u32 s65, s65, s40")
    a.I("s_lshl_b32 s65, s65, 16")
    a.I("s_lshl_b32 s66, s42, 8")
    a.I("s_add_u32 s65, s65, s66")
    a.I("s_lshl_b32 s66, s48, 6")
    a.I("s_add_u32 s65, s65, s66")
    srd(a, 52, 8, 9, 4 * MB)
    signal()
    a.I("s_barrier")
    st()
    a.label(f"{N}_spin")
    a.I("buffer_load_dwordx4 v[4:7], off, s[60:63], s64 sc1")
    a.I("s_waitcnt vmcnt(0)")
    a.I("v_and_b32 v4, v4, v5")
    a.I("v_and_b32 v6, v6, v7")
    a.I("v_and_b32 v4, v4, v6")
    a.I("s_nop 0")
    a.I("v_readfirstlane_b32 s66, v4")
    a.I("s_nop 0")
    a.I("s_cmp_lg_u32 s66, 1")
    a.I(f"s_cbranch_scc1 {N}_spin")
    st()
    for k in range(1, 4):
        a.I(f"s_add_u32 s66, s40, {k}")
        a.I("s_and_b32 s66, s66, 3")
        a.I("s_lshl_b32 s66, s66, 14")
        a.I("s_add_u32 s66, s66, s50")
        for q in range(2 if PB16 else 4):
            a.I(f"buffer_load_dwordx4 {v(16 * k + 4 * q, 4)}, {v(L16)}, s[56:59], s66 offen offset:{q * 1024} sc1")
    for k in range(1, 4):
        a.I(f"s_waitcnt vmcnt({(2 if PB16 else 4) * (3 - k)})")
        for j in range(16):
            if PB16:
                if j & 1:
                    a.I(f"v_and_b32 v64, 0xffff0000, {v(16 * k + j // 2)}")
                else:
                    a.I(f"v_lshlrev_b32 v64, 16, {v(16 * k + j // 2)}")
                a.I(f"v_add_f32 {v(ACC + j)}, {v(ACC + j)}, v64")
            else:
                a.I(f"v_add_f32 {v(ACC + j)}, {v(ACC + j)}, {v(16 * k + j)}")
    pack(a, 8, ACC, 8)
    a.I("s_nop 1")
    for h in range(2):
        a.I(f"v_permlane32_swap_b32 {v(8 + 4 * h)}, {v(10 + 4 * h)}")
        a.I(f"v_permlane32_swap_b32 {v(9 + 4 * h)}, {v(11 + 4 * h)}")
        a.I(f"buffer_store_dwordx4 {v(8 + 4 * h, 4)}, v3, s[52:55], s65 offen offset:{32 * h}{os.environ.get('OPA', ' nt')}")
    st.dump(17, 4, tmpv=16)
    kend(a, N)
    return a, N, (256, 512, 131072 + 8192 + 64)


def gen_l3_old():
    a = Asm()
    N = "l3_kernel"
    kstart(a, N, 256)
    a.I("s_load_dwordx2 s[4:5], s[0:1], 88")
    a.I("s_load_dwordx2 s[6:7], s[0:1], 40")
    a.I("s_load_dwordx2 s[8:9], s[0:1], 72")
    a.I("v_lshrrev_b32 v1, 6, v0")
    a.I("v_and_b32 v2, 255, v0")
    a.I("v_and_b32 v0, 63, v0")
    a.I("v_readfirstlane_b32 s16, v1")
    a.I("s_nop 0")
    a.I("s_cmp_ge_u32 s16, 4")
    a.I(f"s_cbranch_scc1 {N}_b3")
    st = Stamper(a, "l3")
    OB = int(os.environ.get('OB', '3'))
    ACC = (oproj_body3 if OB == 3 else oproj_body2)(a, N, st, bar_at=8)
    a.I("s_barrier")
    oproj_finish(a, ACC, 32768 if OB == 3 else 16384)
    st.dump(16, 4, tmpv=8)
    a.I("s_endpgm")
    a.label(f"{N}_b3")
    a.I("s_and_b32 s16, s16, 3")
    b3_body(a, 131072, 8)
    kend(a, N)
    return a, N, (256, 512, 131072 + 8192 + 64)


KERNELS = [gen_l1, lambda: gen_attn(not os.environ.get('NOB2')), {'v3': gen_l3v3, 'new': gen_l3, 's4': gen_l3_s4, 'old': gen_l3_old}[os.environ.get('L3V', 'v3')]]

if __name__ == "__main__":
    p = sys.argv[1] if len(sys.argv) > 1 else os.path.join(os.path.dirname(os.path.abspath(__file__)), "..",
                                                           "cdna_kernels", NAME + ".s")
    sys.exit(1 if build(KERNELS, p) else 0)
```

```python
import sys, os
sys.path.insert(0, os.path.dirname(os.path.abspath(__file__)))
import gen
from gen import *

M16 = "v_mfma_f32_16x16x32_bf16"
SP = os.environ.get("SP", " sc1")
PUMP = int(os.environ.get("PUMP", "5"))
SCAT_AT = int(os.environ.get("SCAT_AT", "52"))
PRE3 = int(os.environ.get("PRE3", "20"))
PF_AT = int(os.environ.get("PF_AT", "80"))
BP = os.environ.get("BP", " nt")
PP = os.environ.get("PP", "")
AP = os.environ.get("AP", "")
LP = os.environ.get("LP", "")
MULM = os.environ.get("MULM", "")
SIG3 = int(os.environ.get("SIG3", "124"))
B3AT = int(os.environ.get("B3AT", "75"))
CT_AT = int(os.environ.get("CT_AT", "80"))
OWNAT = int(os.environ.get("OWNAT", "49"))
MATF = int(os.environ.get("MATF", "0"))
GRP2 = int(os.environ.get("GRP2", "1"))
FILT_AT = int(os.environ.get("FILT_AT", "70"))
LATE_AT = int(os.environ.get("LATE_AT", "30"))
STF = eval(os.environ.get("STF", "(31, 63, 95)"))
B1START = int(os.environ.get("B1START", "6"))


def gen_l1():
    a = Asm()
    N = "l1_kernel"
    kstart(a, N, 256)
    a.I("s_load_dwordx4 s[4:7], s[0:1], 0")
    a.I("s_load_dwordx4 s[8:11], s[0:1], 16")
    a.I("s_load_dwordx2 s[12:13], s[0:1], 32")
    a.I("s_load_dwordx2 s[14:15], s[0:1], 88")
    a.I("s_load_dwordx4 s[60:63], s[0:1], 48")
    a.I("s_load_dwordx2 s[64:65], s[0:1], 64")
    a.I("s_load_dwordx2 s[90:91], s[0:1], 40")
    TID, L16 = 64, 65
    a.I(f"v_and_b32 {v(TID)}, 255, v0")
    a.I("v_lshrrev_b32 v2, 6, v0")
    a.I("v_and_b32 v0, 63, v0")
    a.I("v_readfirstlane_b32 s16, v2")
    st = Stamper(a, "l1")
    st()
    BLDS = 9 * 16384
    a.I("s_nop 0")
    if os.environ.get("CT0", "1") == "1":
        code_touch(a, N, 16, 24, 60, kd=False)
    a.I("s_and_b32 s17, s2, 7")
    a.I("s_lshr_b32 s18, s2, 3")
    a.I("s_and_b32 s19, s18, 7")
    a.I("s_lshr_b32 s18, s18, 3")
    a.I("s_lshl_b32 s40, s17, 2")
    a.I("s_add_u32 s18, s18, s40")
    if os.environ.get("L1MAP", "4x8") == "4x8":
        a.I("s_lshr_b32 s18, s2, 3")
        a.I("s_and_b32 s19, s18, 3")
        a.I("s_and_b32 s40, s17, 1")
        a.I("s_lshl_b32 s40, s40, 2")
        a.I("s_add_u32 s19, s19, s40")
        a.I("s_lshr_b32 s18, s18, 2")
        a.I("s_lshr_b32 s40, s17, 1")
        a.I("s_lshl_b32 s40, s40, 3")
        a.I("s_add_u32 s18, s18, s40")
    a.I("s_mov_b32 s41, 0")
    a.I("s_mul_i32 s42, s18, 6")
    a.I("s_cmp_ge_u32 s18, 11")
    a.I("s_cselect_b32 s41, 1, s41")
    a.I("s_cselect_b32 s40, 64, 0")
    a.I("s_cmp_ge_u32 s18, 21")
    a.I("s_cselect_b32 s41, 2, s41")
    a.I("s_cselect_b32 s40, 126, s40")
    a.I("s_sub_u32 s42, s42, s40")
    a.I("s_lshl_b32 s44, s19, 3")
    a.I("s_add_u32 s44, s44, s16")
    t1, t2, t3, G = 66, 67, 68, 69
    WV, AV, AR_, TB, SK, SV = 1, 3, 7, 9, 21, 22
    a.I(f"v_lshrrev_b32 {v(t1)}, 3, v0")
    a.I(f"v_lshlrev_b32 {v(G)}, 10, {v(t1)}")
    a.I(f"v_lshlrev_b32 {v(t1)}, 13, {v(t1)}")
    a.I("s_lshl_b32 s45, s16, 17")
    a.I(f"v_add_u32 {v(t1)}, s45, {v(t1)}")
    a.I(f"v_bfe_u32 {v(t2)}, v0, 4, 1")
    a.I(f"v_lshlrev_b32 {v(t2)}, 1, {v(t2)}")
    a.I(f"v_and_b32 {v(t3)}, 7, v0")
    a.I(f"v_xor_b32 {v(t2)}, {v(t2)}, {v(t3)}")
    a.I(f"v_lshl_add_u32 {v(WV)}, {v(t2)}, 4, {v(t1)}")
    a.I(f"v_xor_b32 {v(WV + 1)}, 64, {v(WV)}")
    a.I(f"v_add_u32 {v(WV + 1)}, {65536 - 1024}, {v(WV + 1)}")
    a.I("s_lshl_b32 s45, s44, 15")
    a.I(f"v_add_u32 {v(t1)}, s45, {v(G)}")
    a.I(f"v_lshrrev_b32 {v(t2)}, 4, v0")
    a.I(f"v_xor_b32 {v(t2)}, {v(t2)}, {v(t3)}")
    a.I(f"v_lshl_add_u32 {v(AV)}, {v(t2)}, 4, {v(t1)}")
    a.I(f"v_xor_b32 {v(AV + 1)}, 64, {v(AV)}")
    a.I(f"v_add_u32 {v(AV + 1)}, {8192 - 1024}, {v(AV + 1)}")
    a.I(f"v_add_u32 {v(AV + 2)}, {2 * (8192 - 1024)}, {v(AV)}")
    a.I(f"v_add_u32 {v(AV + 3)}, {2 * (8192 - 1024)}, {v(AV + 1)}")
    a.I("s_lshl_b32 s46, s16, 13")
    a.I("s_lshl_b32 s47, s16, 11")
    a.I("s_lshl_b32 s48, s42, 7")
    a.I("s_lshl_b32 s49, s44, 13")
    a.I("s_lshl_b32 s50, s42, 18")
    a.I("s_add_u32 s50, s50, s49")
    a.I("s_add_u32 s53, s48, 512")
    a.I("s_mov_b32 s43, s49")
    a.I(f"v_lshlrev_b32 {v(L16)}, 4, v0")
    a.I("s_lshl_b32 s45, s44, 16")
    a.I("v_lshrrev_b32 v23, 1, v0")
    a.I("v_lshlrev_b32 v23, 13, v23")
    a.I(f"v_and_b32 {v(t1)}, 1, v0")
    a.I(f"v_lshl_add_u32 v23, {v(t1)}, 7, v23")
    a.I("v_add_u32 v23, s45, v23")
    a.I("s_waitcnt lgkmcnt(0)")
    WT0 = os.environ.get("WT0", "0")
    if WT0 != "0":
        a.I("s_cmp_ge_u32 s16, 6")
        a.I(f"s_cbranch_scc1 {N}_nwt")
        a.I("s_lshr_b32 s40, s16, 1")
        a.I("s_cmp_eq_u32 s40, 1")
        a.I("s_cselect_b32 s20, s8, s10")
        a.I("s_cselect_b32 s21, s9, s11")
        a.I("s_cmp_eq_u32 s40, 2")
        a.I("s_cselect_b32 s20, s12, s20")
        a.I("s_cselect_b32 s21, s13, s21")
        a.I(f"s_mov_b32 s22, {hex(4 * MB)}")
        a.I("s_mov_b32 s23, 0x20000")
        a.I("s_and_b32 s40, s16, 1")
        a.I("s_lshl1_add_u32 s40, s2, s40")
        a.I("s_lshl_b32 s40, s40, 13")
        a.I(f"v_lshlrev_b32 {v(t1)}, 7, v0")
        a.I(f"buffer_load_dword v59, {v(t1)}, s[20:23], s40 offen")
        a.label(f"{N}_nwt")
    a.I("s_lshl_b32 s45, s44, 18")
    a.I("s_lshl_b32 s40, s42, 12")
    a.I("s_add_u32 s45, s45, s40")
    a.I(f"s_mov_b32 s92, {hex(512 * 1024)}")
    a.I("s_cmp_eq_u32 s41, 2")
    a.I("s_cselect_b32 s50, s45, s50")
    a.I("s_cselect_b32 s92, 0x2000, s92")
    a.I("s_cselect_b32 s20, s4, s6")
    a.I("s_cselect_b32 s21, s5, s7")
    a.I("s_cselect_b32 s24, s8, s10")
    a.I("s_cselect_b32 s25, s9, s11")
    a.I(f"s_cselect_b32 s51, {hex(WS_Q)}, 0")
    a.I(f"s_cselect_b32 s52, {f32(QSCALE)}, 1.0")
    a.I("s_cmp_eq_u32 s41, 1")
    a.I("s_cselect_b32 s24, s12, s24")
    a.I("s_cselect_b32 s25, s13, s25")
    a.I(f"s_cselect_b32 s51, {hex(WS_V)}, s51")
    a.I("s_mov_b32 s32, s24")
    a.I("s_mov_b32 s33, s25")
    a.I(f"s_mov_b32 s40, {hex(WS_V)}")
    a.I("s_cmp_eq_u32 s18, 10")
    a.I("s_cselect_b32 s32, s12, s32")
    a.I("s_cselect_b32 s33, s13, s33")
    a.I("s_cselect_b32 s53, 0, s53")
    a.I(f"s_add_u32 s45, s49, {hex(31 << 19)}")
    a.I("s_cmp_eq_u32 s18, 31")
    a.I("s_cselect_b32 s53, s48, s53")
    a.I("s_cselect_b32 s43, s50, s43")
    a.I(f"s_cselect_b32 s40, {hex(WS_Q)}, s40")
    a.I("s_cselect_b32 s24, s12, s24")
    a.I("s_cselect_b32 s25, s13, s25")
    a.I(f"s_cselect_b32 s48, {62 * 128}, s48")
    a.I(f"s_cselect_b32 s51, {hex(WS_V)}, s51")
    a.I("s_cselect_b32 s20, s6, s20")
    a.I("s_cselect_b32 s21, s7, s21")
    a.I("s_cselect_b32 s50, s45, s50")
    a.I(f"s_mov_b32 s22, {hex(2 * MB)}")
    a.I("s_mov_b32 s23, 0x20000")
    a.I(f"s_mov_b32 s26, {hex(4 * MB)}")
    a.I("s_mov_b32 s27, 0x20000")

    def late_setup():
        a.I("s_mov_b32 s94, s52")
        a.I("s_mov_b32 s95, s52")
        a.I(f"s_mov_b32 s34, {hex(4 * MB)}")
        a.I("s_mov_b32 s35, 0x20000")
        srd(a, 28, 14, 15, 16 * MB, add="s51")
        srd(a, 36, 14, 15, 16 * MB, add="s40")
        srd(a, 56, 4, 5, 2 * MB)
        if os.environ.get("XDROP") == "q":
            a.I("s_cmp_eq_u32 s41, 2")
            a.I("s_cselect_b32 s30, 0, s30")
        if os.environ.get("XDROP") == "all":
            a.I("s_mov_b32 s30, 0")
            a.I("s_mov_b32 s38, 0")
        a.I("s_add_u32 s13, s48, 256")
        a.I("s_add_u32 s17, s53, 256")
        a.I("s_cmp_eq_u32 s18, 31")
        a.I("s_cselect_b32 s4, s32, s24")
        a.I("s_cselect_b32 s5, s33, s25")
        a.I("s_cselect_b32 s13, s53, s13")
        a.I("s_cselect_b32 s17, s17, s53")
        a.I(f"s_mov_b32 s6, {hex(4 * MB)}")
        a.I("s_mov_b32 s7, 0x20000")

    def w_prefetch(g):
        for th, (col, sr) in enumerate([("s13", "s[4:7]"), ("s17", "s[32:35]")]):
            g.lq.append((["s_mov_b64 exec, 0xffff"], f"buffer_load_dword {v(56 + th)}, v23, {sr}, {col} offen{PP}", "pf"))

    def addr_setup():
        a.I(f"v_lshrrev_b32 {v(G)}, 4, v0")
        a.I(f"v_bfe_u32 {v(t1)}, v0, 3, 1")
        a.I(f"v_lshlrev_b32 {v(t1)}, 4, {v(t1)}")
        a.I(f"v_and_b32 {v(t2)}, 7, v0")
        a.I(f"v_add_u32 {v(t1)}, {v(t1)}, {v(t2)}")
        a.I(f"v_bfe_u32 {v(t2)}, {v(t1)}, 1, 3")
        a.I(f"v_xor_b32 {v(t2)}, {v(t2)}, {v(G)}")
        a.I(f"v_lshlrev_b32 {v(t2)}, 4, {v(t2)}")
        a.I(f"v_lshl_add_u32 {v(AR_)}, {v(t1)}, 7, {v(t2)}")
        a.I(f"v_xor_b32 {v(AR_ + 1)}, 64, {v(AR_)}")
        a.I(f"v_add_u32 {v(AR_)}, s46, {v(AR_)}")
        a.I(f"v_add_u32 {v(AR_ + 1)}, s46, {v(AR_ + 1)}")
        a.I(f"v_lshlrev_b32 {v(t2)}, 9, {v(G)}")
        a.I(f"v_lshl_add_u32 {v(SK)}, {v(t1)}, 4, {v(t2)}")
        a.I(f"v_and_b32 {v(t3)}, 15, v0")
        a.I(f"v_lshl_add_u32 {v(SV)}, {v(t3)}, 4, {v(t2)}")
        a.I(f"v_bfe_u32 {v(t1)}, v0, 2, 2")
        a.I(f"v_lshl_add_u32 {v(t1)}, {v(G)}, 3, {v(t1)}")
        a.I(f"v_lshlrev_b32 {v(t1)}, 7, {v(t1)}")
        a.I(f"v_and_b32 {v(t2)}, 3, v0")
        a.I(f"v_lshl_add_u32 {v(t1)}, {v(t2)}, 3, {v(t1)}")
        a.I(f"v_bfe_u32 {v(t2)}, v0, 3, 2")
        a.I(f"v_lshl_add_u32 {v(t1)}, {v(t2)}, 5, {v(t1)}")
        for ct in range(4):
            a.I(f"v_xor_b32 {v(TB + ct)}, {32 * ct}, {v(t1)}")
        for ct in range(4):
            a.I(f"v_add_u32 {v(TB + 4 + ct)}, 0x10000, {v(TB + ct)}")
            a.I(f"v_add_u32 {v(TB + 8 + ct)}, 0x20000, {v(TB + ct)}")

    def b_common():
        a.I("s_and_b32 s8, s2, 7")
        a.I("s_lshl_b32 s8, s8, 3")
        a.I("s_bfe_u32 s9, s2, 0x30003")
        a.I("s_or_b32 s8, s8, s9")
        a.I("s_lshr_b32 s9, s2, 6")
        a.I("s_lshr_b32 s66, s9, 1")
        a.I("s_lshl_b32 s66, s66, 11")
        a.I("s_lshr_b32 s10, s8, 5")
        a.I("s_lshl_b32 s10, s10, 10")
        a.I("s_add_u32 s66, s66, s10")
        a.I("s_and_b32 s10, s8, 31")
        a.I("s_lshl_b32 s10, s10, 4")
        a.I("s_add_u32 s66, s66, s10")
        a.I("s_and_b32 s10, s9, 1")
        a.I("s_lshl_b32 s10, s10, 9")
        a.I("s_add_u32 s66, s66, s10")

    HL, NF, BS, F2, TM, X1, X2, X3 = 70, 71, 72, 73, 74, 78, 79, 80
    C32, NS32, AR, AI, XF, D1R, D1I, TR, TI, D2 = 84, 92, 100, 104, 108, 116, 132, 148, 158, 168
    pc8 = [PERMC(j) for j in range(8)]

    def fft_loads(vm):
        a.I("s_lshr_b32 s10, s9, 1")
        a.I("s_lshl_b32 s10, s10, 4")
        a.I("s_and_b32 s11, s9, 1")
        a.I("s_lshl_b32 s11, s11, 2")
        a.I("s_add_u32 s10, s10, s11")
        a.I("s_lshr_b32 s11, s16, 1")
        a.I("s_lshl_b32 s11, s11, 3")
        a.I("s_add_u32 s10, s10, s11")
        a.I("s_and_b32 s11, s16, 1")
        a.I("s_lshl_b32 s11, s11, 1")
        a.I("s_add_u32 s10, s10, s11")
        a.I("s_lshl_b32 s10, s10, 6")
        a.I("s_add_u32 s10, s10, s8")
        a.I("s_lshl_b32 s10, s10, 10")
        a.I(f"s_add_u32 s11, s10, {65536 - 1024}")
        a.I(f"s_add_u32 s3, s47, {BLDS}")
        a.I("s_mov_b32 m0, s3")
        a.I(f"s_mov_b32 s62, {hex(2 * MB)}")
        a.I("s_mov_b32 s63, 0x20000")
        vm.issue(f"buffer_load_dwordx4 {v(L16)}, s[60:63], s10 offen{BP} lds", "bx")
        vm.issue(f"buffer_load_dwordx4 {v(L16)}, s[60:63], s11 offen offset:1024{BP} lds", "bx")

    def fft_compute(g):
        vm = g.vm
        a.I(f"v_lshrrev_b32 {v(X2)}, 5, v0")
        a.I(f"v_cvt_f32_u32 {v(HL)}, {v(X2)}")
        a.I(f"v_and_b32 {v(F2)}, 31, v0")
        a.I(f"v_cvt_f32_u32 {v(F2)}, {v(F2)}")
        a.I(f"v_mul_f32 {v(NF)}, {f32(1 / 32)}, {v(F2)}")
        a.I(f"v_mul_f32 {v(BS)}, {v(NF)}, {v(HL)}")
        a.I(f"v_mul_f32 {v(BS)}, {f32(8.0)}, {v(BS)}")
        nat = [16 * t + j for t in range(2) for j in range(8)]
        gen_mat(a, C32, NF, BS, nat, TM)
        a.I(f"v_add_f32 {v(BS)}, {f32(0.25)}, {v(BS)}")
        gen_mat(a, NS32, NF, BS, nat, TM)
        a.I(f"v_bfe_u32 {v(X1)}, v0, 4, 1")
        a.I(f"v_lshlrev_b32 {v(X1)}, 10, {v(X1)}")
        a.I(f"v_lshl_add_u32 {v(X1)}, {v(X2)}, 8, {v(X1)}")
        a.I(f"v_and_b32 {v(X3)}, 15, v0")
        a.I(f"v_lshl_add_u32 {v(X1)}, {v(X3)}, 3, {v(X1)}")
        a.I(f"v_add_u32 {v(X1)}, s3, {v(X1)}")
        vm.wait("bx")
        for t in range(2):
            for h in range(2):
                a.I(f"ds_read_b64_tr_b16 {v(XF + 4 * t + 2 * h, 2)}, {v(X1)} offset:{t * 512 + h * 128}")
        a.I(f"v_cvt_f32_u32 {v(X3)}, {v(X3)}")
        a.I(f"v_mul_f32 {v(NF)}, {f32(1 / 16)}, {v(X3)}")
        a.I(f"v_bfe_u32 {v(X1)}, v0, 4, 1")
        a.I(f"v_cvt_f32_u32 {v(X1)}, {v(X1)}")
        a.I(f"v_mul_f32 {v(BS)}, {v(NF)}, {v(HL)}")
        a.I(f"v_mul_f32 {v(BS)}, 4.0, {v(BS)}")
        a.I(f"v_fmamk_f32 {v(BS)}, {v(X1)}, {f32(0.25)}, {v(BS)}")
        a.I("s_waitcnt lgkmcnt(0)")
        for D, Mx in ((D1R, C32), (D1I, NS32)):
            for t in range(2):
                a.I(f"{MF} {v(D, 16)}, {v(XF + 4 * t, 4)}, {v(Mx + 4 * t, 4)}, {'0' if t == 0 else v(D, 16)}")
        gen_mat(a, AR, NF, BS, pc8, TM)
        a.I(f"v_add_f32 {v(BS)}, {f32(-0.25)}, {v(BS)}")
        gen_mat(a, AI, NF, BS, pc8, TM)
        a.I(f"v_mul_f32 {v(NF)}, {f32(1 / 512)}, {v(F2)}")
        a.I(f"v_mul_f32 {v(BS)}, {v(NF)}, {v(HL)}")
        a.I(f"v_mul_f32 {v(BS)}, 4.0, {v(BS)}")
        twiddle(a, D1R, D1I, [[j, j + 8] for j in range(8)], NF, BS, pc8, -1, TM)
        pack(a, TR, D1R, 8)
        pack(a, TI, D1I, 8)
        a.I(f"v_and_b32 {v(X3)}, 31, v0")
        a.I(f"v_lshlrev_b32 {v(X3)}, 4, {v(X3)}")
        for r in range(2):
            a.I(f"{MF} {v(D2 + 16 * r, 16)}, {v(AR, 4)}, {v(TR + 4 * r, 4)}, 0")
            a.I(f"{MF} {v(D2 + 16 * r, 16)}, {v(AI, 4)}, {v(TI + 4 * r, 4)}, {v(D2 + 16 * r, 16)}")
        a.I(f"v_lshl_add_u32 {v(X3)}, {v(X2)}, 11, {v(X3)}")
        a.I("s_lshl_b32 s10, s16, 2")
        a.I(f"s_add_u32 s11, s10, {BLDS + 8192}")
        a.I(f"v_add_u32 {v(X3)}, s11, {v(X3)}")
        a.I(f"v_mov_b32 {v(X2)}, s10")
        a.I(f"s_add_u32 s67, s66, {256 * 8192}")
        a.I(f"s_add_u32 s11, s66, {256 * 8192 + 4096}")
        srd(a, 60, 14, 15, 8 * MB, add=WS_Y)
        a.I("s_nop 1")
        for c in range(2):
            for j in range(5):
                a.I(f"v_cvt_pk_bf16_f32 {v(TR + 5 * c + j)}, {v(D2 + 8 * c + j)}, {v(D2 + 16 + 8 * c + j)}")
        for c in range(2):
            for j in range(4):
                a.I(f"ds_write_b32 {v(X3)}, {v(TR + 5 * c + j)} offset:{(c * 8 + j) * 512}")
        a.I = I0
        a.I("s_mov_b64 exec, 1")
        vm.issue(f"buffer_store_dword {v(TR + 4)}, {v(X2)}, s[60:63], s67 offen", "bs")
        vm.issue(f"buffer_store_dword {v(TR + 9)}, {v(X2)}, s[60:63], s11 offen", "bs")
        a.I("s_mov_b64 exec, -1")

    WFR, WFP, FX1, FX2, WF9 = 56, 52, 52, 53, 55

    def filt_setup():
        a.I("s_lshr_b32 s10, s9, 1")
        a.I("s_lshl_b32 s10, s10, 5")
        a.I("s_lshr_b32 s11, s8, 5")
        a.I("s_lshl_b32 s11, s11, 4")
        a.I("s_add_u32 s10, s10, s11")
        a.I("s_and_b32 s11, s9, 1")
        a.I("s_lshl_b32 s11, s11, 2")
        a.I("s_add_u32 s10, s10, s11")
        a.I("s_lshl_b32 s10, s10, 5")
        a.I("s_and_b32 s11, s8, 31")
        a.I("s_add_u32 s10, s10, s11")
        a.I("s_mul_i32 s19, s10, 514")
        a.I(f"v_lshlrev_b32 {v(FX1)}, 1, {v(TID)}")
        a.I(f"v_and_b32 {v(FX2)}, 3, v0")
        a.I(f"v_bfe_u32 {v(t1)}, v0, 2, 1")
        a.I(f"v_lshl_add_u32 {v(FX2)}, {v(t1)}, 3, {v(FX2)}")
        a.I(f"v_mul_u32_u24 {v(FX2)}, {32 * 514}, {v(FX2)}")
        a.I(f"v_add_u32 {v(FX2)}, 512, {v(FX2)}")
        a.I("s_cmp_ge_u32 s16, 4")
        a.I("s_cselect_b32 s8, s64, s0")
        a.I("s_cselect_b32 s9, s65, s1")
        a.I(f"s_mov_b32 s10, {2048 * 514}")
        a.I("s_mov_b32 s11, 0x20000")

    def filt_loads(g):
        for j in range(8):
            g.lq.append(([f"s_add_u32 s12, s19, {PERMC(j) * 32 * 514}"],
                         f"buffer_load_ushort {v(WFR + j)}, {v(FX1)}, s[8:11], s12 offen{BP}", "wf"))
        g.lq.append(([], f"buffer_load_ushort {v(WF9)}, {v(FX2)}, s[8:11], s19 offen{BP}", "wf"))

    def filt_finish(g):
        vm = g.vm
        L = [lambda: (g.flush("wf"), vm.wait("wf"), a.I(f"v_lshlrev_b32 {v(54)}, 1, v0"))]
        L.append(lambda: (a.I("s_mov_b64 exec, 0xff"),
                          vm.issue(f"buffer_store_short {v(WF9)}, {v(54)}, s[60:63], s67 offen", "bs"),
                          a.I("s_mov_b64 exec, -1")))
        for i in range(4):
            L.append(lambda i=i: a.I(f"v_lshl_or_b32 {v(WFP + i)}, {v(WFR + 1 + 2 * i)}, 16, {v(WFR + 2 * i)}"))
        return L

    def ys_calc():
        a.I("s_and_b32 s12, s16, 3")
        a.I("s_lshl_b32 s12, s12, 19")
        a.I(f"v_lshlrev_b32 {v(YS)}, 13, v0")
        a.I(f"v_add_u32 {v(YS)}, s12, {v(YS)}")

    def scat(g):
        g.vm.issue(f"buffer_store_dwordx4 {v(YD, 4)}, {v(YS)}, s[60:63], s66 offen", "bs")

    def scat_next():
        for i in range(4):
            a.I(f"v_mov_b32 {v(YD + i)}, {v(WFP + i)}")
        a.I(f"s_add_u32 s66, s66, {hex(WS_WF - WS_Y)}")

    YA, YD, YS = 56, 48, 23
    ACC, RING, PK, AFB = 192, 24, 56, 64
    LOOK = 4
    AHEAD = int(os.environ.get("AHEAD", "5"))

    def AF(rt, k):
        return AFB + (k * 2 + rt) * 4

    class Gen:
        def __init__(self, passes, nmerge, vmq):
            self.passes, self.nmerge = passes, nmerge
            self.vm, self.lg = VM(a), LG(a)
            self.vm.q = list(vmq)
            self.busy, self.nxt, self.dq, self.lq = {}, 0, [], []
            self.chunks, self.frags, self.groups = [], [], {}
            for pp in range(0, len(passes), 2):
                if pp // 2 < nmerge:
                    for kc in range(4):
                        c = len(self.chunks)
                        self.chunks += [(pp, kc), (pp + 1, kc)]
                        self.groups[len(self.frags)] = [c, c + 1]
                        for ks in range(4):
                            for h in range(2):
                                self.frags += [(c + h, ks, ct) for ct in range(4)]
                else:
                    for q in range(2):
                        for kc in range(4):
                            c = len(self.chunks)
                            self.chunks.append((pp + q, kc))
                            if GRP2 == 0:
                                self.groups[len(self.frags)] = [c]
                            elif kc % 2 == 0:
                                self.groups[len(self.frags)] = [c, c + 1]
                            self.frags += [(c, ks, ct) for ks in range(4) for ct in range(4)]
            self.prev = [[], []]
            self.b1busy = True
            self.skip_boundary = False

        def blk(self, c):
            nm = 8 * self.nmerge
            if c < nm:
                return 4 + 2 * ((c // 2) % 3) + (c & 1)
            if self.nmerge == 1:
                return [6, 7, 8, 9, 0, 1, 2, 3][(c - nm) % 8]
            return [8, 9, 4, 5, 0, 1, 2, 3][(c - nm) % 8]

        def dmaW(self, now, done):
            c = self.nxt
            if c >= len(self.chunks) or c > now + AHEAD:
                return False
            b = self.blk(c)
            if b in self.busy and self.busy[b] not in done:
                return False
            if b == 9 and self.b1busy:
                return False
            if b < 4 and now < 8 * self.nmerge:
                return False
            self.busy[b] = c
            self.nxt += 1
            pp, kc = self.chunks[c]
            form, wsel, wdi, osel, odi = self.passes[pp]
            sr = "s[32:35]" if wsel else "s[24:27]"
            for q in range(2):
                pre = [f"s_add_u32 m0, s47, {hex(b * 16384)}",
                       f"s_add_u32 s45, {'s53' if wsel else 's48'}, {hex((kc << 20) + wdi * 128)}"] if q == 0 else []
                self.dq.append((pre, f"buffer_load_dwordx4 {v(WV + q)}, {sr}, s45 offen offset:{q * 1024}{LP} lds", ("W", c)))
            return True

        def pump(self, n=1):
            for _ in range(n):
                q = self.dq or self.lq
                if q:
                    pre, ins, tag = q.pop(0)
                    a.many(pre)
                    self.vm.issue(ins, tag)
                    if tag == "pf":
                        a.I("s_mov_b64 exec, -1")

        def flush(self, tag=None):
            while any(tag is None or x[2] == tag for x in self.dq + self.lq):
                self.pump()

        def dmaA(self, j):
            sr = "s[56:59]" if j >= 8 else "s[20:23]"
            k = 0
            while k < len(self.dq) and not self.dq[k][0]:
                k += 1
            for i in range(4):
                pre = [f"s_add_u32 m0, s46, {hex((j % 2) * 4096)}", f"s_mov_b32 s45, {(j % 8) * 128}"] if i == 0 else []
                self.dq.insert(k + i, (pre, f"buffer_load_dwordx4 {v(AV + i)}, {sr}, s45 offen offset:{i * 1024}{AP} lds", ("A", j)))

        def readA(self, j):
            self.flush(("A", j))
            self.vm.wait(("A", j))
            for ks in range(2):
                for x in range(2):
                    self.lg.issue(f"ds_read_b128 {v(AF(x, 2 * (j % 8) + ks), 4)}, {v(AR_ + (ks ^ x))} "
                                  f"offset:{(j % 2) * 4096 + x * 1024}", ("A", j))

        def reads(self, i, halves=(0, 1)):
            c, ks, ct = self.frags[i]
            b = self.blk(c)
            base = TB + 4 * (b // 4) + ct
            off = (b % 4) * 16384 + ks * 4096
            d = RING + 4 * slot(i)
            for h in halves:
                self.lg.issue(f"ds_read_b64_tr_b16 {v(d + 2 * h, 2)}, {v(base)} offset:{off + 512 * h}", ("W", i))

        def sync(self, grp):
            for c in grp:
                self.flush(("W", c))
            self.vm.wait([("W", c) for c in grp])
            a.I("s_barrier")
            lo = self.prev[1][0] if self.prev[1] else 0
            done = set(range(lo))
            if self.prev[1]:
                self.b1busy = False
            self.prev = [self.prev[1], grp]
            while self.dmaW(grp[0], done):
                pass

        def acc(self, pp, rt, ct):
            return ACC + 32 * (pp & 1) + 4 * (4 * rt + ct)

        def epi(self, pp):
            out = []
            form, wsel, wdi, osel, u = self.passes[pp]
            so = 54 + (pp & 1)
            sr = "s[36:39]" if osel else "s[28:31]"
            def so_calc():
                a.I(f"s_add_u32 s{so}, {'s43' if osel else 's50'}, {(u & 1) * 4096}")
                assert (u >> 1) in (-1, 0, 1)
                if u >> 1:
                    a.I(f"s_{'add' if (u >> 1) > 0 else 'sub'}_u32 s{so}, s{so}, s92")
            out.append(so_calc)
            for q in range(4):
                pk = PK + 4 * (q % 2)
                if form == "K":
                    x, cp = divmod(q, 2)
                    srcs = [self.acc(pp, x, 2 * cp), self.acc(pp, x, 2 * cp + 1)]
                    off, va = x * 128 + cp * 2048, SK
                else:
                    srcs = [self.acc(pp, 0, q), self.acc(pp, 1, q)]
                    off, va = (q >> 1) * 2048 + (q & 1) * 256, SV
                for i in range(4):
                    src = srcs[i // 2] + 2 * (i % 2)
                    if form == "K" and MULM == "pk":
                        out.append(lambda src=src: a.I(f"v_pk_mul_f32 {v(src, 2)}, {v(src, 2)}, s[94:95]"))
                    elif form == "K" and MULM != "none":
                        out.append(lambda src=src: a.I(f"v_mul_f32 {v(src)}, s52, {v(src)}"))
                        out.append(lambda src=src: a.I(f"v_mul_f32 {v(src + 1)}, s52, {v(src + 1)}"))
                    out.append(lambda src=src, pk=pk, i=i: a.I(f"v_cvt_pk_bf16_f32 {v(pk + i)}, {v(src)}, {v(src + 1)}"))
                out.append(lambda pk=pk, va=va, off=off: self.vm.issue(
                    f"buffer_store_dwordx4 {v(pk, 4)}, {v(va)}, {sr}, s{so} offen offset:{off}{SP}", ("S", pp)))
            return out

        def boundary(self, pps):
            self.flush("pf")
            self.vm.wait("pf")
            ys_calc()
            a.I("s_nop 2")
            for pp in pps:
                for f in self.epi(pp):
                    f()

        def run(self, p0, p1):
            lg = self.lg
            NF_ = len(self.frags)
            NA = 8 * self.nmerge
            pend = []
            for i in range(64 * p0, 64 * p1):
                c, ks, ct = self.frags[i]
                pp, kc = self.chunks[c]
                k = 4 * kc + ks
                if i % 128 == 0 and 0 < i <= 128 * self.nmerge and not self.skip_boundary:
                    self.boundary([i // 64 - 2] + ([i // 64 - 1] if i < 128 * self.nmerge else []))
                if i % 2 == 0:
                    lg.wait([("W", i), ("W", i + 1), ("A", i // 16)])
                if i % 16 == 0 and i // 16 + 2 < NA:
                    self.dmaA(i // 16 + 2)
                wf = v(RING + 4 * slot(i), 4)
                j = i + LOOK
                for rt in range(2):
                    ac = v(self.acc(pp, rt, ct), 4)
                    af = v(AF(rt, k), 4)
                    cin = "0" if k == 0 else ac
                    if self.passes[pp][0] == "V":
                        a.I(f"{M16} {ac}, {af}, {wf}, {cin}")
                    else:
                        a.I(f"{M16} {ac}, {wf}, {af}, {cin}")
                    if j < NF_:
                        if rt == 0 and j in self.groups:
                            self.sync(self.groups[j])
                        if rt == 0 and j % 16 == 0 and j // 16 < NA:
                            self.readA(j // 16)
                        self.reads(j, (rt,))
                    if rt == 0 and pend:
                        pend.pop(0)()
                    if rt == 1 and i % 2 == 0:
                        if self.dq or self.lq:
                            self.pump(1)
                        elif pend:
                            pend.pop(0)()
                if i % 64 == 63:
                    assert not pend
                if i % 64 == 3 and i >= 128 * self.nmerge:
                    pend = self.epi(i // 64 - 1)
                if i == PF_AT:
                    w_prefetch(self)
                if i == LATE_AT:
                    filt_loads(self)
                if i == FILT_AT:
                    pend = filt_finish(self)
                if i >= 128 and i % 128 == SCAT_AT:
                    scat(self)
                if i >= 128 and i % 128 == 127:
                    scat_next()
                if i >= 128 * self.nmerge and i % 128 == CT_AT:
                    code_touch(a, "attn_kernel", 16, 8, AR_)
                if i in STF:
                    st()
            self.flush()

        def wo_load(self):
            blk = 4 if self.nmerge == 1 else 6
            srd(a, 8, 90, 91, 4 * MB)
            a.I("s_lshl_b32 s12, s2, 14")
            a.I("s_lshl_b32 s13, s16, 7")
            a.I("s_add_u32 s12, s12, s13")
            a.I(f"s_add_u32 s13, s12, {8192 - 1024}")
            a.I(f"s_add_u32 s17, s47, {blk * 16384}")
            a.I("s_mov_b32 m0, s17")
            a.I(f"v_lshrrev_b32 {v(AV)}, 3, v0")
            a.I(f"v_lshlrev_b32 {v(AV)}, 10, {v(AV)}")
            a.I(f"v_and_b32 {v(AV + 1)}, 7, v0")
            a.I(f"v_lshl_add_u32 {v(AV)}, {v(AV + 1)}, 4, {v(AV)}")
            self.vm.issue(f"buffer_load_dwordx4 {v(AV)}, s[8:11], s12 offen{BP} lds", "wo")
            self.vm.issue(f"buffer_load_dwordx4 {v(AV)}, s[8:11], s13 offen offset:1024{BP} lds", "wo")
            a.I(f"v_lshrrev_b32 {v(AV + 1)}, 5, v0")
            a.I(f"v_bfe_u32 {v(AV + 2)}, v0, 2, 2")
            a.I(f"v_lshl_add_u32 {v(AV + 1)}, {v(AV + 1)}, 2, {v(AV + 2)}")
            a.I(f"v_lshlrev_b32 {v(AV + 1)}, 7, {v(AV + 1)}")
            a.I(f"v_bfe_u32 {v(AV + 2)}, v0, 4, 1")
            a.I(f"v_lshl_add_u32 {v(AV + 1)}, {v(AV + 2)}, 5, {v(AV + 1)}")
            a.I(f"v_and_b32 {v(AV + 2)}, 3, v0")
            a.I(f"v_lshl_add_u32 {v(AV + 1)}, {v(AV + 2)}, 3, {v(AV + 1)}")
            a.I(f"v_add_u32 {v(AV + 1)}, s17, {v(AV + 1)}")
            a.I(f"v_lshlrev_b32 {v(AV + 2)}, 4, v0")
            a.I("s_lshl_b32 s17, s16, 19")
            a.I("s_lshl_b32 s13, s2, 11")
            a.I("s_add_u32 s17, s17, s13")

        def fin(self, pp):
            self.vm.wait("wo")
            for cb in range(2):
                for h in range(2):
                    a.I(f"ds_read_b64_tr_b16 {v(RING + 4 * cb + 2 * h, 2)}, {v(AV + 1)} offset:{cb * 64 + h * 1024}")
            srd(a, 8, 14, 15, 4 * MB, add=WS_WO)
            a.I("s_waitcnt lgkmcnt(0)")
            for cb in range(2):
                a.I(f"buffer_store_dwordx4 {v(RING + 4 * cb, 4)}, {v(AV + 2)}, s[8:11], s17 offen offset:{cb * 1024}{SP}")
            a.I("s_nop 0")
            for f in self.epi(pp):
                f()
            st.dump(16, 14, tmpv=24)
            a.I("s_endpgm")


    def slot(i):
        j = i % 128
        return j % 6 if j < 108 else (j - 108) % 5

    I0 = a.I
    cnt = [0]
    gp = [None]

    def Ipump(text):
        r = I0(text)
        if text.startswith("v_") and not text.startswith("v_mfma"):
            cnt[0] += 1
            if cnt[0] % PUMP == 0 and gp[0].dq:
                a.I = I0
                gp[0].pump()
                a.I = Ipump
        return r

    b_common()
    a.I("s_mov_b64 s[0:1], s[62:63]")
    g0 = Gen([("K", 0, i, 0, i) for i in range(2)], 1, [])
    a.I("s_cmp_ge_u32 s16, 4")
    a.I(f"s_cbranch_scc1 {N}_nofl")
    fft_loads(VM(a))
    a.label(f"{N}_nofl")
    for _ in range(2):
        g0.dmaW(0, set())
    g0.dmaA(0)
    PF0 = os.environ.get("PF0", "0")

    def pf0():
        a.I("s_mov_b64 exec, 0xffff")
        a.I("buffer_load_dword v58, v23, s[24:27], s48 offen")
        a.I("s_mov_b64 exec, -1")
    if PF0 == "1":
        pf0()
    g0.flush()
    if PF0 == "2":
        pf0()
    g0.dmaA(1)
    for _ in range(2):
        g0.dmaW(0, set())
    g0.flush()
    if os.environ.get("CT0", "1") != "1":
        code_touch(a, N, 16, 36, 60, kd=False)
    st()
    late_setup()
    addr_setup()
    g0.dmaW(0, set())
    a.I("s_cmp_ge_u32 s16, 4")
    a.I(f"s_cbranch_scc1 {N}_join")
    gf = Gen([("K", 0, i, 0, i) for i in range(2)], 1, ["bx", "bx"] + g0.vm.q)
    fft_compute(gf)
    a.label(f"{N}_join")
    filt_setup()
    if os.environ.get("L1PRIO"):
        a.I("s_cmp_lt_u32 s16, 4")
        a.I(f"s_cbranch_scc1 {N}_np")
        a.I(f"s_setprio {os.environ['L1PRIO']}")
        a.label(f"{N}_np")
    srd(a, 60, 14, 15, 8 * MB, add=WS_Y)
    vmq = list(g0.vm.q)
    st()
    stn = st.n
    def y_prep():
        a.I(f"v_lshlrev_b32 {v(YA)}, 4, {v(TID)}")
        a.I("s_lshr_b32 s12, s16, 2")
        a.I("s_lshl_b32 s12, s12, 12")
        a.I("s_add_u32 s66, s66, s12")
        a.I(f"s_add_u32 s67, s66, {256 * 8192 + WS_WF - WS_Y}")
        a.I(f"s_add_u32 s12, s12, {BLDS + 8192}")
        a.I(f"v_add_u32 {v(YA)}, s12, {v(YA)}")

    y_prep()

    def mkgen(passes, nmerge=1):
        g = Gen(passes, nmerge, vmq)
        g.busy, g.nxt, g.dq = dict(g0.busy), g0.nxt, list(g0.dq)
        st.n = stn
        return g

    def start(g):
        a.I("s_waitcnt lgkmcnt(0)")
        g.readA(0)
        g.sync(g.groups[0])
        st()
        g.lg.issue(f"ds_read_b128 {v(YD, 4)}, {v(YA)}", "y")
        for i in range(LOOK):
            g.reads(i)

    def capture(fn):
        n0 = len(a.items)
        fn()
        seg = a.items[n0:]
        del a.items[n0:]
        return seg

    def merge(s1, s2):
        import asmlib
        isv = lambda x: x[0] == "i" and x[1].text.startswith("s_waitcnt vmcnt")
        out, i, j = [], 0, 0
        while i < len(s1) or j < len(s2):
            x = s1[i] if i < len(s1) else None
            y = s2[j] if j < len(s2) else None
            if x is not None and y is not None and isv(x) and isv(y):
                n = min(int(x[1].text[16:-1]), int(y[1].text[16:-1]))
                out.append(("i", asmlib.Ins(f"s_waitcnt vmcnt({n})")))
                i += 1
                j += 1
            elif x is not None and isv(x):
                out.append(x)
                i += 1
            elif y is not None and isv(y):
                out.append(y)
                j += 1
            else:
                assert x[1].text == y[1].text, (x[1].text, y[1].text)
                out.append(x)
                i += 1
                j += 1
        return out

    def looped(F, lab):
        def plist(pair):
            L = []
            for pp in range(8):
                if pair == 0:
                    L.append((F, 0, pp, 0, pp))
                else:
                    rel = pp - pair
                    L.append((F, 1 if rel >= 2 else 0, rel - 2 if rel >= 2 else rel, 0, rel))
            return L
        g = mkgen(plist(0))
        start(g)
        g.run(0, 2)
        g.boundary([0])
        g.skip_boundary = True
        g.wo_load()
        st()
        a.I("s_add_u32 s48, s48, 256")
        a.I("s_add_u32 s50, s50, s92")
        a.I("s_mov_b32 s44, 0")
        g.passes = plist(2)
        s1 = capture(lambda: g.run(2, 4))
        g.passes = plist(4)
        s2 = capture(lambda: g.run(4, 6))
        a.label(lab + "_loop")
        mg = merge(s1, s2)
        drop = os.environ.get("DROP", "").split(",")

        def keep(x):
            if x[0] != "i":
                return True
            tx = x[1].text
            if "dma" in drop and tx.endswith(" lds"):
                return False
            if "st" in drop and tx.startswith("buffer_store"):
                return False
            if "valu" in drop and x[1].cls == "valu":
                return False
            if "bar" in drop and tx == "s_barrier":
                return False
            if "rd" in drop and tx.startswith("ds_read"):
                return False
            if "vw" in drop and tx.startswith("s_waitcnt vm"):
                return False
            if "lw" in drop and tx.startswith("s_waitcnt lg"):
                return False
            return True
        a.items += [x for x in mg if keep(x)]
        if F == "K":
            a.I("s_cmp_eq_u32 s18, 10")
            a.I(f"s_cbranch_scc1 {N}_Ctail")
        a.I("s_mov_b32 s48, s53")
        a.I("s_mov_b32 s34, 0")
        a.I("s_add_u32 s50, s50, s92")
        a.I("s_add_u32 s44, s44, 1")
        a.I("s_cmp_lt_u32 s44, 2")
        a.I(f"s_cbranch_scc1 {lab}_loop")
        g.passes = plist(6)
        g.fin(5)
        return g

    a.I("s_cmp_eq_u32 s18, 31")
    a.I(f"s_cbranch_scc1 {N}_D")
    a.I("s_cmp_eq_u32 s41, 1")
    a.I(f"s_cbranch_scc1 {N}_B")
    looped("K", N + "_A")
    a.label(f"{N}_Ctail")
    gc = mkgen([("K", 0, pp, 0, pp) for pp in range(4)] + [("V", 1, 0, 1, 0), ("V", 1, 1, 1, 1)])
    capture(lambda: (start(gc), gc.run(0, 2), gc.wo_load(), gc.run(2, 4)))
    gc.passes[3] = ("K", 0, 1, 0, 1)
    st.n = stn + 5
    gc.run(4, 6)
    gc.fin(5)
    a.label(N + "_B")
    looped("V", N + "_B2")
    a.label(N + "_D")
    gd = mkgen([("V", 0, 0, 0, 0), ("V", 0, 1, 0, 1)] + [("K", 1, i, 1, i) for i in range(4)], 2)
    start(gd)
    gd.run(0, 2)
    st()
    gd.run(2, 5)
    gd.wo_load()
    gd.run(5, 6)
    gd.fin(5)
    kend(a, N)
    return a, N, (256, 512, 163840)


def gen_l3():
    a = Asm()
    N = "l3_kernel"
    kstart(a, N, 256)
    a.I("s_load_dwordx2 s[4:5], s[0:1], 88")
    a.I("s_load_dwordx2 s[8:9], s[0:1], 72")
    a.I("v_lshrrev_b32 v1, 6, v0")
    a.I("v_and_b32 v2, 255, v0")
    a.I("v_and_b32 v0, 63, v0")
    a.I("v_readfirstlane_b32 s17, v1")
    st = Stamper(a, "l3")
    WF, ACCS, RING, L16, LR, CMB = 128, [68, 84], 100, 124, 125, 127
    LOOK = 5
    a.I("s_bfe_u32 s40, s2, 0x20001")
    a.I("s_and_b32 s43, s2, 1")
    a.I("s_lshl_b32 s43, s43, 5")
    a.I("s_lshr_b32 s44, s2, 3")
    a.I("s_add_u32 s43, s43, s44")
    a.I("s_lshr_b32 s41, s43, 2")
    a.I("s_and_b32 s42, s43, 3")
    a.I("s_and_b32 s16, s17, 3")
    a.I("s_lshr_b32 s18, s17, 2")
    a.I(f"v_lshlrev_b32 {v(L16)}, 4, v0")
    a.I("s_lshl_b32 s45, s42, 1")
    a.I("s_lshr_b32 s46, s16, 1")
    a.I("s_add_u32 s45, s45, s46")
    a.I("s_lshl_b32 s45, s45, 19")
    a.I("s_lshl1_add_u32 s46, s40, s18")
    a.I("s_lshl_b32 s46, s46, 16")
    a.I("s_add_u32 s45, s45, s46")
    a.I("s_and_b32 s46, s16, 1")
    a.I("s_lshl_b32 s46, s46, 10")
    a.I("s_add_u32 s45, s45, s46")
    a.I(f"s_add_u32 s45, s45, {hex(WS_WO)}")
    a.I("s_lshl_b32 s47, s18, 15")
    a.I("s_lshl_b32 s48, s16, 10")
    a.I("s_add_u32 s47, s47, s48")
    a.I("s_lshl_b32 s46, s41, 20")
    a.I("s_lshl_b32 s48, s40, 16")
    a.I("s_add_u32 s46, s46, s48")
    a.I("s_add_u32 s46, s46, s47")
    a.I(f"s_add_u32 s46, s46, {hex(WS_CTX)}")
    a.I("s_lshl_b32 s48, s18, 15")
    a.I(f"v_add_u32 {v(LR)}, s48, {v(L16)}")
    a.I(f"v_add_u32 {v(LR + 1)}, 0x10000, {v(LR)}")
    a.I("s_lshl_b32 s48, s16, 12")
    a.I(f"s_add_u32 s48, s48, {131072}")
    a.I(f"v_add_u32 {v(CMB)}, s48, {v(L16)}")
    a.I("s_waitcnt lgkmcnt(0)")
    srd(a, 52, 4, 5, 64 * MB)
    st()
    vm, lg = VM(a), LG(a)

    def sub_off(n, dst):
        a.I(f"s_add_u32 {s(dst)}, s40, {n + 1}")
        a.I(f"s_and_b32 {s(dst)}, {s(dst)}, 3")
        a.I(f"s_lshl_b32 {s(dst)}, {s(dst)}, 18")
        a.I(f"s_add_u32 {s(dst)}, {s(dst)}, s46")

    for n in range(4):
        sub_off(n, 36 + n)

    def cdma(n, i):
        return [lambda: (a.I(f"s_add_u32 m0, s47, {(n & 1) * 65536 + i * 4096}"),
                         a.I(f"s_add_u32 s49, s{36 + n}, {i * 4096}"),
                         vm.issue(f"buffer_load_dwordx4 {v(L16)}, s[52:55], s49 offen lds", ("C", n, i // 2)))]

    def wload(g):
        def f():
            if g % 2 == 0 and g:
                a.I("s_add_u32 s45, s45, 4096")
            vm.issue(f"buffer_load_dwordx4 {v(WF + 4 * g, 4)}, {v(L16)}, s[52:55], s45 offen offset:{(g % 2) * 2048}", ("W", g))
        return [f]

    pend = []
    for c in range(4):
        for i in (2 * c, 2 * c + 1):
            pend += cdma(0, i) + cdma(1, i)
        for g in range(8 * c, 8 * c + 8):
            pend += wload(g)
    tags = []
    for c in range(4):
        tags += [("C", 0, c), ("C", 1, c)] * 2 + [("W", g) for g in range(8 * c, 8 * c + 8)]
    ptag = list(tags)

    def pump(k=1):
        for _ in range(k):
            if pend:
                pend.pop(0)()
                ptag.pop(0)

    def need(tg):
        while any(x in ptag for x in tg):
            pump()

    pump(PRE3)
    b3_loads(a, 8)
    srd(a, 56, 4, 5, 16 * MB, add=WS_PART)
    srd(a, 60, 4, 5, 64 * 128, add=WS_FLAG)
    a.I("s_lshl_b32 s64, s43, 7")
    a.I("s_lshl2_add_u32 s67, s40, s64")
    LA, LB_ = 28, 29
    a.I("s_lshl_b32 s48, s18, 16")
    a.I(f"v_add_u32 {v(LA)}, s48, {v(LR)}")
    a.I(f"v_xor_b32 {v(LB_)}, 0x10000, {v(LA)}")
    st()
    AC = [68, 84, 32]
    sched = []
    for g in range(32):
        sched += [(AC[0], LA, g), (AC[1], LB_, g)]
    sched += [(AC[2], LR, g) for g in range(32)] + [(AC[1], LR + 1, g) for g in range(32)]

    def read(i):
        lg.issue(f"ds_read_b128 {v(RING + 4 * (i % 6), 4)}, {v(sched[i][1])} offset:{sched[i][2] * 1024}", i)

    def sync(tg):
        need(tg)
        vm.wait(tg)
        a.I("s_barrier")

    TMP = 48

    def slot_calc(own_expr):
        a.I(own_expr)
        a.I("s_and_b32 s50, s50, 3")
        a.I("s_lshl2_add_u32 s50, s43, s50")
        a.I("s_lshl2_add_u32 s50, s50, s40")
        a.I("s_lshl2_add_u32 s50, s50, s16")
        a.I("s_lshl_b32 s50, s50, 12")

    def give_l(A, addr, off):
        for q in range(4):
            a.I(f"ds_write_b128 {v(addr)}, {v(A + 4 * q, 4)} offset:{off + q * 1024}")

    def take_l(A, addr, off, model=False):
        for q in range(4):
            a.I(f"ds_read_b128 {v(TMP + 4 * q, 4)}, {v(addr)} offset:{off + q * 1024}")
        a.I("s_waitcnt lgkmcnt(0)")
        for j in range(16):
            a.I(f"v_add_f32 {v(A + j)}, {v(A + j)}, {v(TMP + j)}")
        for q in range(4):
            x = f"buffer_store_dwordx4 {v(A + 4 * q, 4)}, {v(L16)}, s[56:59], s50 offen offset:{q * 1024} sc1"
            vm.issue(x, "P") if model else a.I(x)

    def give(n):
        lab = a.uid(f"{N}_g")
        a.I(f"s_cmp_eq_u32 s18, {n & 1}")
        a.I(f"s_cbranch_scc1 {lab}")
        give_l(AC[2] if n == 2 else AC[1], CMB, (n & 1) * 16384)
        a.label(lab)
        a.I("s_waitcnt lgkmcnt(0)")
        lg.q = []

    sync([("C", 0, 0), ("C", 1, 0)])
    st()
    for i in range(LOOK):
        read(i)
    for i in range(128):
        ac, _, g = sched[i]
        lg.wait(i)
        if i < 64:
            need([("W", g)])
            vm.wait(("W", g))
        first = g == 0
        a.I(f"{MF} {v(ac, 16)}, {v(WF + 4 * g, 4)}, {v(RING + 4 * (i % 6), 4)}, {'0' if first else v(ac, 16)}")
        j = i + LOOK
        if j < 128:
            if j < 64 and j % 16 == 0:
                c = j // 16
                sync([("C", 0, c), ("C", 1, c)])
                if c >= 2:
                    for n in (2, 3):
                        for k in (2 * (c - 2), 2 * (c - 2) + 1):
                            pend.extend(cdma(n, k))
                            ptag.append(("C", n, c - 2))
            elif j >= 64 and j % 16 == 0:
                sync([("C", j // 32, (j % 32) // 8 + c) for c in range(2)])
            read(j)
        if i in (31, 63, 75, 95, 107):
            st()
        if j == 64:
            for n in (2, 3):
                for k in (4, 5):
                    pend.extend(cdma(n, k))
                    ptag.append(("C", n, 2))
        if i == 64 + 5:
            a.I("s_lshl_b32 s48, s18, 14")
            a.I(f"v_add_u32 v30, s48, {v(CMB)}")
            a.I("v_xor_b32 v31, 0x4000, v30")
            give_l(AC[1], 31, 0)
            a.I("s_add_u32 s51, s18, 1")
            slot_calc("s_add_u32 s50, s40, s51")
            a.I("s_waitcnt lgkmcnt(0)")
            lg.q = []
            a.I("s_barrier")
            for n in (2, 3):
                for k in (6, 7):
                    pend.extend(cdma(n, k))
                    ptag.append(("C", n, 3))
            need([("C", 3, 3)])
            take_l(AC[0], 30, 0, True)
        if i == 96 + 5:
            vm.wait([("C", 3, 2), ("C", 3, 3)])
            give(2)
            a.I("s_barrier")
            a.I("s_cmp_lg_u32 s18, 0")
            a.I(f"s_cbranch_scc1 {N}_t2")
            slot_calc("s_add_u32 s50, s40, 3")
            take_l(AC[2], CMB, 0)
            a.label(f"{N}_t2")
        pump(2 if i < 64 else 1)
    st()
    LW = 32768
    a.I("v_mov_b32 v1, 0")
    a.I("v_mov_b32 v30, %d" % LW)
    a.I("ds_write_b32 v30, v1")
    a.I("v_mov_b32 v1, 1")
    a.I("s_nop 7")
    give(3)
    a.I("s_waitcnt vmcnt(0)")
    a.I("s_barrier")
    a.I("s_cmp_eq_u32 s18, 1")
    a.I(f"s_cbranch_scc1 {N}_fin")
    a.I("s_cmp_lg_u32 s17, 0")
    a.I(f"s_cbranch_scc1 {N}_nosig")
    a.I("s_mov_b64 exec, 1")
    a.I("buffer_store_dword v1, off, s[60:63], s67 sc1")
    a.I("s_mov_b64 exec, -1")
    a.label(f"{N}_nosig")
    b3_body(a, 0, 8, loaded=True)
    a.I("s_endpgm")
    a.label(f"{N}_fin")
    A = ACCS[1]
    a.I("s_lshl2_add_u32 s50, s43, s40")
    a.I("s_lshl_b32 s50, s50, 4")
    a.I("s_add_u32 s50, s50, s16")
    a.I("s_lshl_b32 s50, s50, 12")
    a.I("v_and_b32 v3, 31, v0")
    a.I("v_lshlrev_b32 v3, 11, v3")
    a.I("v_lshrrev_b32 v4, 5, v0")
    a.I("v_lshl_add_u32 v3, v4, 4, v3")
    a.I("s_lshl2_add_u32 s65, s41, s40")
    a.I("s_lshl_b32 s65, s65, 16")
    a.I("s_lshl_b32 s66, s42, 8")
    a.I("s_add_u32 s65, s65, s66")
    a.I("s_lshl_b32 s66, s16, 6")
    a.I("s_add_u32 s65, s65, s66")
    srd(a, 52, 8, 9, 4 * MB)
    a.I(f"v_mov_b32 v5, {LW}")
    for q in range(4):
        a.I(f"ds_read_b128 {v(WF + 4 * q, 4)}, {v(CMB)} offset:{16384 + q * 1024}")
    POLL = os.environ.get("POLL", "1")
    a.I("s_mov_b32 s44, 0")
    if POLL == "1":
        a.I("s_cmp_lg_u32 s17, 4")
        a.I(f"s_cbranch_scc1 {N}_lspin")
    a.label(f"{N}_spin")
    a.I("buffer_load_dwordx4 v[4:7], off, s[60:63], s64 sc1")
    a.I("s_waitcnt vmcnt(0)")
    a.I("v_and_b32 v4, v4, v5")
    a.I("v_and_b32 v6, v6, v7")
    a.I("v_and_b32 v4, v4, v6")
    a.I("s_nop 0")
    a.I("v_readfirstlane_b32 s66, v4")
    a.I("s_nop 0")
    a.I("s_cmp_eq_u32 s66, 1")
    a.I(f"s_cbranch_scc1 {N}_got")
    a.I("s_sleep 2")
    a.I("s_add_u32 s44, s44, 1")
    a.I("s_cmp_lt_u32 s44, 0x100000")
    a.I(f"s_cbranch_scc1 {N}_spin")
    a.I(f"s_branch {N}_got")
    if POLL == "1":
        a.label(f"{N}_lspin")
        a.I("ds_read_b32 v4, v5")
        a.I("s_waitcnt lgkmcnt(0)")
        a.I("v_readfirstlane_b32 s66, v4")
        a.I("s_nop 0")
        a.I("s_cmp_eq_u32 s66, 1")
        a.I(f"s_cbranch_scc1 {N}_got2")
        a.I("s_sleep 1")
        a.I(f"s_branch {N}_lspin")
    a.label(f"{N}_got")
    if POLL == "1":
        a.I(f"v_mov_b32 v5, {LW}")
        a.I("ds_write_b32 v5, v1")
        a.label(f"{N}_got2")
    st()
    for k in range(1, 4):
        a.I(f"s_add_u32 s66, s40, {k}")
        a.I("s_and_b32 s66, s66, 3")
        a.I("s_lshl_b32 s66, s66, 14")
        a.I("s_add_u32 s66, s66, s50")
        for q in range(4):
            a.I(f"buffer_load_dwordx4 {v(WF + 16 * k + 4 * q, 4)}, {v(L16)}, s[56:59], s66 offen offset:{q * 1024} sc1")
    a.I("s_waitcnt lgkmcnt(0)")
    a.I("s_barrier")
    for k in range(4):
        if k:
            a.I(f"s_waitcnt vmcnt({4 * (3 - k)})")
        for j in range(16):
            a.I(f"v_add_f32 {v(A + j)}, {v(A + j)}, {v(WF + 16 * k + j)}")
    pack(a, 8, A, 8)
    a.I("s_nop 1")
    for h in range(2):
        a.I(f"v_permlane32_swap_b32 {v(8 + 4 * h)}, {v(10 + 4 * h)}")
        a.I(f"v_permlane32_swap_b32 {v(9 + 4 * h)}, {v(11 + 4 * h)}")
        a.I(f"buffer_store_dwordx4 {v(8 + 4 * h, 4)}, v3, s[52:55], s65 offen offset:{32 * h}{os.environ.get('OPA', ' nt')}")
    st.dump(17, 4, tmpv=16)
    kend(a, N)
    return a, N, (256, 512, 163840)


def gen_l3v3():
    a = Asm()
    N = "l3_kernel"
    kstart(a, N, 256)
    a.I("s_load_dwordx2 s[4:5], s[0:1], 88")
    a.I("s_load_dwordx2 s[8:9], s[0:1], 72")
    a.I("v_lshrrev_b32 v1, 6, v0")
    a.I("v_and_b32 v2, 255, v0")
    a.I("v_and_b32 v0, 63, v0")
    a.I("v_readfirstlane_b32 s17, v1")
    st = Stamper(a, "l3")
    WF, ACCS, RING, L16, LR, CMB = 128, [68, 84], 100, 124, 125, 127
    LOOK = 5
    a.I("s_bfe_u32 s40, s2, 0x20001")
    a.I("s_and_b32 s43, s2, 1")
    a.I("s_lshl_b32 s43, s43, 5")
    a.I("s_lshr_b32 s44, s2, 3")
    a.I("s_add_u32 s43, s43, s44")
    a.I("s_lshr_b32 s41, s43, 2")
    a.I("s_and_b32 s42, s43, 3")
    a.I("s_and_b32 s16, s17, 3")
    a.I("s_lshr_b32 s18, s17, 2")
    a.I(f"v_lshlrev_b32 {v(L16)}, 4, v0")
    a.I("s_lshl_b32 s45, s42, 1")
    a.I("s_lshr_b32 s46, s16, 1")
    a.I("s_add_u32 s45, s45, s46")
    a.I("s_lshl_b32 s45, s45, 19")
    a.I("s_lshl1_add_u32 s46, s40, s18")
    a.I("s_lshl_b32 s46, s46, 16")
    a.I("s_add_u32 s45, s45, s46")
    a.I("s_and_b32 s46, s16, 1")
    a.I("s_lshl_b32 s46, s46, 10")
    a.I("s_add_u32 s45, s45, s46")
    a.I(f"s_add_u32 s45, s45, {hex(WS_WO)}")
    a.I("s_lshl_b32 s47, s18, 15")
    a.I("s_lshl_b32 s48, s16, 10")
    a.I("s_add_u32 s47, s47, s48")
    a.I("s_lshl_b32 s46, s41, 20")
    a.I("s_lshl_b32 s48, s40, 16")
    a.I("s_add_u32 s46, s46, s48")
    a.I("s_add_u32 s46, s46, s47")
    a.I(f"s_add_u32 s46, s46, {hex(WS_CTX)}")
    a.I("s_lshl_b32 s47, s18, 13")
    a.I("s_lshl_b32 s48, s16, 10")
    a.I("s_add_u32 s47, s47, s48")
    a.I("s_lshl_b32 s48, s18, 13")
    a.I(f"v_add_u32 {v(LR)}, s48, {v(L16)}")
    a.I(f"v_add_u32 {v(LR + 1)}, 0x10000, {v(LR)}")
    a.I("s_lshl_b32 s48, s16, 12")
    a.I(f"v_add_u32 {v(CMB)}, s48, {v(L16)}")
    a.I("s_waitcnt lgkmcnt(0)")
    srd(a, 52, 4, 5, 64 * MB)
    st()
    vm, lg = VM(a), LG(a)

    def sub_off(n, dst):
        a.I(f"s_add_u32 {s(dst)}, s40, {n + 1}")
        a.I(f"s_and_b32 {s(dst)}, {s(dst)}, 3")
        a.I(f"s_lshl_b32 {s(dst)}, {s(dst)}, 18")
        a.I(f"s_add_u32 {s(dst)}, {s(dst)}, s46")

    PB16 = int(os.environ.get("PB16", "1"))
    for n in range(4):
        sub_off(n, 36 + n)

    def cslot(n, c):
        return (n * 2 + c % 2) * 16384 if n < 3 else 98304 + c * 16384

    pend, ptag = [], []

    def cdma(n, i):
        pend.append(lambda: (a.I(f"s_add_u32 m0, s47, {cslot(n, i // 2) + (i % 2) * 4096}"),
                             a.I(f"s_add_u32 s49, s{36 + n}, {i * 4096}"),
                             vm.issue(f"buffer_load_dwordx4 {v(L16)}, s[52:55], s49 offen lds", ("C", n, i // 2))))
        ptag.append(("C", n, i // 2))

    def wload(g):
        def f():
            if g % 2 == 0 and g:
                a.I("s_add_u32 s45, s45, 4096")
            vm.issue(f"buffer_load_dwordx4 {v(WF + 4 * g, 4)}, {v(L16)}, s[52:55], s45 offen offset:{(g % 2) * 2048}", ("W", g))
        pend.append(f)
        ptag.append(("W", g))

    def pump(k=1):
        for _ in range(k):
            if pend:
                pend.pop(0)()
                ptag.pop(0)

    def need(tg):
        while any(x in ptag for x in tg):
            pump()

    for c in range(2):
        for n in range(3):
            cdma(n, 2 * c)
            cdma(n, 2 * c + 1)
        for g in range(8 * c, 8 * c + 8):
            wload(g)
    for g in range(16, 24):
        wload(g)
    pump(PRE3)
    srd(a, 56, 4, 5, 16 * MB, add=WS_PART)
    a.I("s_lshl2_add_u32 s60, s43, s40")
    a.I("s_lshl_b32 s60, s60, 4")
    a.I("s_add_u32 s60, s60, s16")
    a.I("s_lshl_b32 s60, s60, 12")
    for k in range(1, 4):
        a.I(f"s_add_u32 s{60 + k}, s40, {k}")
        a.I(f"s_and_b32 s{60 + k}, s{60 + k}, 3")
        a.I(f"s_lshl_b32 s{60 + k}, s{60 + k}, 14")
        a.I(f"s_add_u32 s{60 + k}, s{60 + k}, s60")

    def part_loads():
        for k in range(1, 4):
            for q in range(2):
                a.I(f"buffer_load_dwordx4 {v(WF + 16 * k + 4 * q, 4)}, {v(L16)}, s[56:59], s{60 + k} offen offset:{q * 1024} sc1")
    LA, LB_, LO = 28, 29, 30
    a.I("s_lshl_b32 s48, s18, 15")
    a.I(f"v_add_u32 {v(LA)}, s48, {v(LR)}")
    a.I(f"v_xor_b32 {v(LB_)}, 0x8000, {v(LA)}")
    a.I(f"v_add_u32 {v(LO)}, {98304}, {v(LR)}")
    st()
    AC = [68, 84, 32]
    sched = []
    for g in range(32):
        o = ((g // 8) % 2) * 16384 + (g % 8) * 1024
        sched += [(AC[0], LA, o, g), (AC[1], LB_, o, g), (AC[2], LR + 1, o, g)]
    OWN = 48
    sched += [(OWN, LO, (g // 8) * 16384 + (g % 8) * 1024, g) for g in range(32)]

    def read(i):
        lg.issue(f"ds_read_b128 {v(RING + 4 * (i % 6), 4)}, {v(sched[i][1])} offset:{sched[i][2]}", i)

    def sync(tg):
        need(tg)
        vm.wait(tg)
        a.I("s_barrier")

    def slot_calc(dst, own_expr):
        a.I(own_expr)
        a.I(f"s_and_b32 {s(dst)}, {s(dst)}, 3")
        a.I(f"s_lshl2_add_u32 {s(dst)}, s43, {s(dst)}")
        a.I(f"s_lshl2_add_u32 {s(dst)}, {s(dst)}, s40")
        a.I(f"s_lshl2_add_u32 {s(dst)}, {s(dst)}, s16")
        a.I(f"s_lshl_b32 {s(dst)}, {s(dst)}, 12")

    def give_l(A, addr, off):
        for q in range(4):
            a.I(f"ds_write_b128 {v(addr)}, {v(A + 4 * q, 4)} offset:{off + q * 1024}")

    def take_l(A, T, addr, off, so):
        for q in range(4):
            a.I(f"ds_read_b128 {v(T + 4 * q, 4)}, {v(addr)} offset:{off + q * 1024}")
        a.I("s_waitcnt lgkmcnt(0)")
        for j in range(16):
            a.I(f"v_add_f32 {v(A + j)}, {v(A + j)}, {v(T + j)}")
        if PB16:
            pack(a, T, A, 8)
            for q in range(2):
                a.I(f"buffer_store_dwordx4 {v(T + 4 * q, 4)}, {v(L16)}, s[56:59], {s(so)} offen offset:{q * 1024} sc1")
        else:
            for q in range(4):
                a.I(f"buffer_store_dwordx4 {v(A + 4 * q, 4)}, {v(L16)}, s[56:59], {s(so)} offen offset:{q * 1024} sc1")

    sync([("C", n, 0) for n in range(3)])
    st()
    for i in range(LOOK):
        read(i)
    NM = 128
    B3RM = (68, 76, 84, 92, 32, 128, 136, 152, 168, 176)
    mats = []
    for i in range(NM):
        ac, _, _, g = sched[i]
        lg.wait(i)
        if i < 96:
            need([("W", g)])
            vm.wait(("W", g))
        a.I(f"{MF} {v(ac, 16)}, {v(WF + 4 * g, 4)}, {v(RING + 4 * (i % 6), 4)}, {'0' if g == 0 else v(ac, 16)}")
        j = i + LOOK
        if j < NM:
            if j < 96 and j % 24 == 0:
                sync([("C", n, j // 24) for n in range(3)])
            elif j == 96:
                sync([("C", 3, c) for c in range(2)])
            elif j == 112:
                a.I("s_barrier")
            read(j)
        if i in (25, 49):
            c = i // 24
            a.I("s_barrier")
            for n in range(3):
                cdma(n, 2 * (c + 1))
                cdma(n, 2 * (c + 1) + 1)
            if c == 1:
                for g2 in range(24, 32):
                    wload(g2)
        if i == OWNAT:
            for k in range(8):
                cdma(3, k)
        if i == B3AT:
            n0 = len(a.items)
            b3_loads(a, 8, before=lambda: (a.I("s_cmp_lg_u32 s18, 0"), a.I(f"s_cbranch_scc1 {N}_nb3l")))
            a.items[n0:] = [x for x in a.items[n0:] if not (x[0] == "i" and x[1].text == "s_waitcnt lgkmcnt(0)")]
            a.label(f"{N}_nb3l")
        if i in (47, 95, 107):
            st()
        if i == 96 + 4:
            a.I("s_lshl_b32 s48, s18, 15")
            a.I(f"v_add_u32 {v(LA)}, s48, {v(CMB)}")
            a.I(f"v_xor_b32 {v(LB_)}, 0x8000, {v(LA)}")
            a.I(f"v_add_u32 v31, 0x10000, {v(CMB)}")
            give_l(AC[1], LB_, 0)
            a.I("s_cmp_eq_u32 s18, 0")
            a.I(f"s_cbranch_scc1 {N}_g2")
            give_l(AC[2], 31, 0)
            a.label(f"{N}_g2")
            vm.wait([("C", 3, 2), ("C", 3, 3)])
            a.I("s_add_u32 s51, s18, 1")
            slot_calc(50, "s_add_u32 s50, s40, s51")
            slot_calc(51, "s_add_u32 s51, s40, 3")
            a.I("s_waitcnt lgkmcnt(0)")
            lg.q = []
            a.I("s_barrier")
            take_l(AC[0], AC[1], LA, 0, 50)
            a.I("s_cmp_lg_u32 s18, 0")
            a.I(f"s_cbranch_scc1 {N}_t2")
            take_l(AC[2], AC[0], 31, 0, 51)
            a.label(f"{N}_t2")
            n0 = len(a.items)
            b3_body(a, 65536, 8, loaded=True, part=1, rm=B3RM)
            mats = a.items[n0:] if MATF else []
            del a.items[n0:]
        if i > 96 + 5 and mats:
            a.items.extend(mats[:9])
            del mats[:9]
        if i == SIG3:
            a.I("s_cmp_eq_u32 s18, 0")
            a.I(f"s_cbranch_scc1 {N}_nopl")
            part_loads()
            a.label(f"{N}_nopl")
        pump(2 if i < 96 else 1)

    def give(n):
        lab = a.uid(f"{N}_g")
        a.I("s_cmp_eq_u32 s18, 1")
        a.I(f"s_cbranch_scc1 {lab}")
        give_l(OWN, CMB, 49152)
        a.label(lab)
        a.I("s_waitcnt lgkmcnt(0)")

    st()
    LW = 81920
    a.I("v_mov_b32 v1, 0")
    a.I(f"v_mov_b32 v30, {LW}")
    a.I("ds_write_b32 v30, v1")
    a.I("s_nop 8")
    give(3)
    a.I("s_barrier")
    a.I("s_cmp_eq_u32 s18, 1")
    a.I(f"s_cbranch_scc1 {N}_fin")

    def meet():
        a.I(f"v_mov_b32 v30, {LW}")
        a.I("v_mov_b32 v31, 1")
        a.I("s_mov_b64 exec, 1")
        a.I("ds_add_u32 v30, v31")
        a.I("s_mov_b64 exec, -1")
        a.label(f"{N}_meet")
        a.I("ds_read_b32 v31, v30")
        a.I("s_waitcnt lgkmcnt(0)")
        a.I("v_readfirstlane_b32 s44, v31")
        a.I("s_nop 0")
        a.I("s_cmp_lt_u32 s44, 4")
        a.I(f"s_cbranch_scc1 {N}_meet")

    assert not mats
    b3_body(a, 65536, 8, loaded=True, bar=meet, part=2 if MATF else 0, rm=B3RM)
    a.I("s_endpgm")
    a.label(f"{N}_fin")
    A = OWN
    a.I("v_and_b32 v3, 31, v0")
    a.I("v_lshlrev_b32 v3, 11, v3")
    a.I("v_lshrrev_b32 v4, 5, v0")
    a.I("v_lshl_add_u32 v3, v4, 4, v3")
    a.I("s_lshl2_add_u32 s65, s41, s40")
    a.I("s_lshl_b32 s65, s65, 16")
    a.I("s_lshl_b32 s66, s42, 8")
    a.I("s_add_u32 s65, s65, s66")
    a.I("s_lshl_b32 s66, s16, 6")
    a.I("s_add_u32 s65, s65, s66")
    srd(a, 52, 8, 9, 4 * MB)
    for q in range(4):
        a.I(f"ds_read_b128 {v(WF + 4 * q, 4)}, {v(CMB)} offset:{49152 + q * 1024}")
    a.I("s_mov_b32 s44, 0")
    a.I("s_waitcnt lgkmcnt(0)")
    a.I(f"s_branch {N}_chk")
    a.label(f"{N}_again")
    part_loads()
    a.label(f"{N}_chk")
    a.I("s_waitcnt vmcnt(0)")
    regs = [WF + 16 * k + j for k in range(1, 4) for j in range(8)]
    a.I(f"v_max3_u32 v4, {v(regs[0])}, {v(regs[1])}, {v(regs[2])}")
    for j in range(3, 23, 2):
        a.I(f"v_max3_u32 v4, v4, {v(regs[j])}, {v(regs[j + 1])}")
    a.I(f"v_max_u32 v4, v4, {v(regs[23])}")
    a.I("v_cmp_eq_u32 vcc, -1, v4")
    a.I("s_add_u32 s44, s44, 1")
    a.I(f"s_cbranch_vccz {N}_got")
    a.I("s_cmp_lt_u32 s44, 0x10000")
    a.I(f"s_cbranch_scc1 {N}_again")
    a.label(f"{N}_got")
    st()
    for k in range(4):
        for j in range(16):
            if PB16 and k:
                if j & 1:
                    a.I(f"v_and_b32 v64, 0xffff0000, {v(WF + 16 * k + j // 2)}")
                else:
                    a.I(f"v_lshlrev_b32 v64, 16, {v(WF + 16 * k + j // 2)}")
                a.I(f"v_add_f32 {v(A + j)}, {v(A + j)}, v64")
            else:
                a.I(f"v_add_f32 {v(A + j)}, {v(A + j)}, {v(WF + 16 * k + j)}")
    pack(a, 8, A, 8)
    a.I("s_nop 1")
    for h in range(2):
        a.I(f"v_permlane32_swap_b32 {v(8 + 4 * h)}, {v(10 + 4 * h)}")
        a.I(f"v_permlane32_swap_b32 {v(9 + 4 * h)}, {v(11 + 4 * h)}")
        a.I(f"buffer_store_dwordx4 {v(8 + 4 * h, 4)}, v3, s[52:55], s65 offen offset:{32 * h}{os.environ.get('OPA', ' nt')}")
    st.dump(17, 4, tmpv=16)
    kend(a, N)
    return a, N, (256, 512, 163840)


def gen_l3_s4():
    a = Asm()
    N = "l3_kernel"
    kstart(a, N, 256)
    a.I("s_load_dwordx2 s[4:5], s[0:1], 88")
    a.I("s_load_dwordx2 s[8:9], s[0:1], 72")
    a.I("v_lshrrev_b32 v1, 6, v0")
    a.I("v_and_b32 v0, 63, v0")
    a.I("s_nop 0")
    a.I("v_readfirstlane_b32 s17, v1")
    st = Stamper(a, "l3")
    L16, RA, RB_, ACC, FR = 128, 129, 130, 132, 164
    PB16 = int(os.environ.get("PB16", "0"))
    NST, STG = 4, 4
    a.I("s_bfe_u32 s40, s2, 0x20001")
    a.I("s_and_b32 s43, s2, 1")
    a.I("s_lshl_b32 s43, s43, 5")
    a.I("s_lshr_b32 s44, s2, 3")
    a.I("s_add_u32 s43, s43, s44")
    a.I("s_lshr_b32 s41, s43, 2")
    a.I("s_and_b32 s42, s43, 3")
    a.I(f"v_lshlrev_b32 {v(L16)}, 4, v0")
    a.I("s_lshl_b32 s45, s41, 2")
    a.I("s_add_u32 s45, s45, s17")
    a.I("s_lshl_b32 s45, s45, 18")
    a.I("s_lshl_b32 s46, s40, 16")
    a.I("s_add_u32 s45, s45, s46")
    a.I(f"s_add_u32 s45, s45, {hex(WS_CTX)}")
    a.I("s_lshl_b32 s46, s42, 1")
    a.I("s_bfe_u32 s47, s17, 0x10001")
    a.I("s_add_u32 s46, s46, s47")
    a.I("s_lshl_b32 s46, s46, 19")
    a.I("s_lshl_b32 s47, s40, 17")
    a.I("s_add_u32 s46, s46, s47")
    a.I("s_and_b32 s47, s17, 1")
    a.I("s_lshl_b32 s47, s47, 10")
    a.I("s_add_u32 s46, s46, s47")
    a.I(f"s_add_u32 s46, s46, {hex(WS_WO)}")
    a.I("s_cmp_lt_u32 s17, 4")
    a.I("s_cselect_b32 s45, s45, s46")
    a.I("s_movk_i32 s46, 0x800")
    a.I("s_cselect_b32 s46, 1024, s46")
    a.I("s_lshl_b32 s47, s17, 10")
    a.I("s_and_b32 s48, s17, 1")
    a.I("s_lshl_b32 s48, s48, 11")
    a.I(f"v_add_u32 {v(RA)}, s48, {v(L16)}")
    a.I("s_lshr_b32 s48, s17, 1")
    a.I("s_lshl_b32 s48, s48, 10")
    a.I("s_add_u32 s48, s48, 4096")
    a.I(f"v_add_u32 {v(RB_)}, s48, {v(L16)}")
    a.I(f"v_add_u32 {v(RB_ + 1)}, 0x10000, {v(RA)}")
    a.I(f"v_add_u32 v127, 0x10000, {v(RB_)}") if False else None
    a.I("s_waitcnt lgkmcnt(0)")
    srd(a, 52, 4, 5, 64 * MB)
    st()
    vm, lg = VM(a), LG(a)

    def dma(g, emit=True):
        L = [lambda: a.I(f"s_add_u32 m0, s47, {(g % (NST * STG)) * 8192}"),
             lambda: a.I("s_add_u32 s49, s45, s46") if False else a.I("s_nop 0"),
             lambda: vm.issue(f"buffer_load_dwordx4 {v(L16)}, s[52:55], s45 offen lds", g),
             lambda: a.I("s_add_u32 s45, s45, s46")]
        return L

    def first_loads():
        for g in range((NST - 1) * STG):
            for f in dma(g):
                f()
        return (NST - 1) * STG

    first_loads()
    a.I("s_and_b32 s18, s17, 1")
    a.I("s_lshr_b32 s19, s40, 1")
    a.I("s_cmp_eq_u32 s18, s19")
    a.I("s_cselect_b32 s18, 1, 0")
    a.I("s_lshr_b32 s16, s17, 1")
    a.I("s_lshl_b32 s19, s16, 6")
    a.I("v_add_u32 v2, s19, v0")
    a.I("s_cmp_eq_u32 s18, 1")
    a.I(f"s_cbranch_scc1 {N}_nob3l")
    b3_loads(a, 8)
    a.label(f"{N}_nob3l")
    st()
    RA2, RB2 = RB_ + 1, 127
    a.I(f"v_add_u32 {v(RB2)}, 0x10000, {v(RB_)}")
    NG = 64

    def reads(g):
        sl = g % (NST * STG)
        ra, rb = (RA, RB_) if sl < 8 else (RA2, RB2)
        off = (sl % 8) * 8192
        d = FR + 12 * (g % 3)
        lg.issue(f"ds_read_b128 {v(d, 4)}, {v(rb)} offset:{off}", g)
        lg.issue(f"ds_read_b128 {v(d + 4, 4)}, {v(ra)} offset:{off}", g)
        lg.issue(f"ds_read_b128 {v(d + 8, 4)}, {v(ra)} offset:{off + 1024}", g)

    pend = []

    def sync(stg):
        vm.wait(list(range(stg * STG, (stg + 1) * STG)))
        a.I("s_barrier")
        nxt = stg + NST - 2
        if stg >= 1 and (nxt + 1) * STG <= NG and nxt >= NST - 1:
            for g in range(nxt * STG, (nxt + 1) * STG):
                pend.extend(dma(g))

    sync(0)
    st()
    reads(0)
    reads(1)
    for g in range(NG):
        j = g + 2
        if j < NG and j % STG == 0:
            while pend:
                pend.pop(0)()
            sync(j // STG)
        lg.wait(g)
        d = FR + 12 * (g % 3)
        for i in range(2):
            acc = v(ACC + 16 * i, 16)
            a.I(f"{MF} {acc}, {v(d, 4)}, {v(d + 4 + 4 * i, 4)}, {'0' if g == 0 else acc}")
            if i == 0 and j < NG:
                reads(j)
            for _ in range(2 + i):
                if pend:
                    pend.pop(0)()
    st()
    srd(a, 56, 4, 5, 16 * MB, add=WS_PART)
    a.I("s_lshr_b32 s48, s17, 1")
    a.I("s_and_b32 s49, s17, 1")
    a.I("s_lshl_b32 s50, s43, 2")
    a.I("s_lshl1_add_u32 s50, s49, s50")
    a.I("s_lshl_b32 s50, s50, 2")
    a.I("s_add_u32 s50, s50, s40")
    a.I("s_lshl_b32 s50, s50, 2")
    a.I("s_add_u32 s50, s50, s48")
    a.I("s_lshl_b32 s50, s50, 12")
    a.I("s_add_u32 s51, s50, 0x10000")
    a.I("s_lshl_b32 s49, s49, 1")
    for i in range(2):
        lab = f"{N}_keep{i}"
        a.I("s_cmp_eq_u32 s49, s40")
        a.I(f"s_cbranch_scc1 {lab}")
        if PB16:
            pack(a, FR + 8 * i, ACC + 16 * i, 8)
            for q in range(2):
                a.I(f"buffer_store_dwordx4 {v(FR + 8 * i + 4 * q, 4)}, {v(L16)}, s[56:59], s{50 + i} offen offset:{q * 1024} sc1")
        else:
            for q in range(4):
                a.I(f"buffer_store_dwordx4 {v(ACC + 16 * i + 4 * q, 4)}, {v(L16)}, s[56:59], s{50 + i} offen offset:{q * 1024} sc1")
        a.label(lab)
        a.I("s_add_u32 s49, s49, 1")
    srd(a, 60, 4, 5, 64 * 128, add=WS_FLAG)
    a.I("s_lshl_b32 s64, s43, 7")
    a.I("s_lshl2_add_u32 s67, s40, s64")

    def signal():
        a.I("v_mov_b32 v1, 1")
        a.I("s_waitcnt vmcnt(0)")
        a.I("s_barrier")
        a.I("s_cmp_lg_u32 s17, 7")
        lab = a.uid(f"{N}_nosig")
        a.I(f"s_cbranch_scc1 {lab}")
        a.I("s_mov_b64 exec, 1")
        a.I("buffer_store_dword v1, off, s[60:63], s67 sc1")
        a.I("s_mov_b64 exec, -1")
        a.label(lab)

    a.I("s_cmp_eq_u32 s18, 1")
    a.I(f"s_cbranch_scc1 {N}_nob3")
    b3_body(a, 131072, 8, loaded=True, mid=signal)
    a.I("s_endpgm")
    a.label(f"{N}_nob3")
    a.I("s_bitcmp0_b32 s40, 0")
    a.I(f"s_cbranch_scc1 {N}_own0")
    for j in range(16):
        a.I(f"v_mov_b32 {v(ACC + j)}, {v(ACC + 16 + j)}")
    a.label(f"{N}_own0")
    a.I("s_lshl_b32 s50, s43, 2")
    a.I("s_add_u32 s50, s50, s40")
    a.I("s_lshl_b32 s50, s50, 4")
    a.I("s_add_u32 s50, s50, s48")
    a.I("s_lshl_b32 s50, s50, 12")
    a.I("v_and_b32 v3, 31, v0")
    a.I("v_lshlrev_b32 v3, 11, v3")
    a.I("v_lshrrev_b32 v4, 5, v0")
    a.I("v_lshl_add_u32 v3, v4, 4, v3")
    a.I("s_lshl_b32 s65, s41, 2")
    a.I("s_add_u32 s65, s65, s40")
    a.I("s_lshl_b32 s65, s65, 16")
    a.I("s_lshl_b32 s66, s42, 8")
    a.I("s_add_u32 s65, s65, s66")
    a.I("s_lshl_b32 s66, s48, 6")
    a.I("s_add_u32 s65, s65, s66")
    srd(a, 52, 8, 9, 4 * MB)
    signal()
    a.I("s_barrier")
    st()
    a.label(f"{N}_spin")
    a.I("buffer_load_dwordx4 v[4:7], off, s[60:63], s64 sc1")
    a.I("s_waitcnt vmcnt(0)")
    a.I("v_and_b32 v4, v4, v5")
    a.I("v_and_b32 v6, v6, v7")
    a.I("v_and_b32 v4, v4, v6")
    a.I("s_nop 0")
    a.I("v_readfirstlane_b32 s66, v4")
    a.I("s_nop 0")
    a.I("s_cmp_lg_u32 s66, 1")
    a.I(f"s_cbranch_scc1 {N}_spin")
    st()
    for k in range(1, 4):
        a.I(f"s_add_u32 s66, s40, {k}")
        a.I("s_and_b32 s66, s66, 3")
        a.I("s_lshl_b32 s66, s66, 14")
        a.I("s_add_u32 s66, s66, s50")
        for q in range(2 if PB16 else 4):
            a.I(f"buffer_load_dwordx4 {v(16 * k + 4 * q, 4)}, {v(L16)}, s[56:59], s66 offen offset:{q * 1024} sc1")
    for k in range(1, 4):
        a.I(f"s_waitcnt vmcnt({(2 if PB16 else 4) * (3 - k)})")
        for j in range(16):
            if PB16:
                if j & 1:
                    a.I(f"v_and_b32 v64, 0xffff0000, {v(16 * k + j // 2)}")
                else:
                    a.I(f"v_lshlrev_b32 v64, 16, {v(16 * k + j // 2)}")
                a.I(f"v_add_f32 {v(ACC + j)}, {v(ACC + j)}, v64")
            else:
                a.I(f"v_add_f32 {v(ACC + j)}, {v(ACC + j)}, {v(16 * k + j)}")
    pack(a, 8, ACC, 8)
    a.I("s_nop 1")
    for h in range(2):
        a.I(f"v_permlane32_swap_b32 {v(8 + 4 * h)}, {v(10 + 4 * h)}")
        a.I(f"v_permlane32_swap_b32 {v(9 + 4 * h)}, {v(11 + 4 * h)}")
        a.I(f"buffer_store_dwordx4 {v(8 + 4 * h, 4)}, v3, s[52:55], s65 offen offset:{32 * h}{os.environ.get('OPA', ' nt')}")
    st.dump(17, 4, tmpv=16)
    kend(a, N)
    return a, N, (256, 512, 131072 + 8192 + 64)


def gen_l3_old():
    a = Asm()
    N = "l3_kernel"
    kstart(a, N, 256)
    a.I("s_load_dwordx2 s[4:5], s[0:1], 88")
    a.I("s_load_dwordx2 s[6:7], s[0:1], 40")
    a.I("s_load_dwordx2 s[8:9], s[0:1], 72")
    a.I("v_lshrrev_b32 v1, 6, v0")
    a.I("v_and_b32 v2, 255, v0")
    a.I("v_and_b32 v0, 63, v0")
    a.I("v_readfirstlane_b32 s16, v1")
    a.I("s_nop 0")
    a.I("s_cmp_ge_u32 s16, 4")
    a.I(f"s_cbranch_scc1 {N}_b3")
    st = Stamper(a, "l3")
    OB = int(os.environ.get('OB', '3'))
    ACC = (oproj_body3 if OB == 3 else oproj_body2)(a, N, st, bar_at=8)
    a.I("s_barrier")
    oproj_finish(a, ACC, 32768 if OB == 3 else 16384)
    st.dump(16, 4, tmpv=8)
    a.I("s_endpgm")
    a.label(f"{N}_b3")
    a.I("s_and_b32 s16, s16, 3")
    b3_body(a, 131072, 8)
    kend(a, N)
    return a, N, (256, 512, 131072 + 8192 + 64)


KERNELS = [gen_l1, lambda: gen_attn(not os.environ.get('NOB2')), {'v3': gen_l3v3, 'new': gen_l3, 's4': gen_l3_s4, 'old': gen_l3_old}[os.environ.get('L3V', 'v3')]]

if __name__ == "__main__":
    p = sys.argv[1] if len(sys.argv) > 1 else os.path.join(os.path.dirname(os.path.abspath(__file__)), "..",
                                                           "cdna_kernels", NAME + ".s")
    sys.exit(1 if build(KERNELS, p) else 0)
```

```python
import sys, os, math, struct
sys.path.insert(0, os.path.dirname(os.path.abspath(__file__)))
from asmlib import Asm, VM, LG, v, s, ag

NAME = "concat_heads__compressed_kv_cla__spectral_gfnet__prompt"
MB = 1 << 20
WS_K, WS_V, WS_CTX, WS_Y, WS_WF, WS_Z, WS_Q = 0, 16 * MB, 32 * MB, 48 * MB, 52 * MB, 56 * MB, 64 * MB
WS_WO = 60 * MB
if os.environ.get('ALIAS'):
    WS_Q = WS_CTX
WS_PART = 64 * MB
WS_FLAG = 56 * MB + 2560 * 1024
YSTR = 8320
KA = dict(x=0, ckv=8, wq=16, wuk=24, wuv=32, wo=40, bx=48, wr=56, wi=64, out=72, dbg=80, ws=88)
MF = "v_mfma_f32_32x32x16_bf16"
SP = os.environ.get("SP", " sc1")


def f32(x):
    return "0x%08x" % struct.unpack("<I", struct.pack("<f", x))[0]


def srd(a, d, lo, hi, size, add=0):
    if add:
        a.I(f"s_add_u32 {s(d)}, {s(lo)}, {add if isinstance(add, str) else hex(add)}")
        a.I(f"s_addc_u32 {s(d + 1)}, {s(hi)}, 0")
    else:
        a.I(f"s_mov_b32 {s(d)}, {s(lo)}")
        a.I(f"s_mov_b32 {s(d + 1)}, {s(hi)}")
    a.I(f"s_mov_b32 {s(d + 2)}, {size if isinstance(size, str) else hex(size)}")
    a.I(f"s_mov_b32 {s(d + 3)}, 0x20000")


STAMPS = int(os.environ.get("STAMPS", "0"))
ST0 = 72


class Stamper:
    def __init__(self, a, name=""):
        self.a, self.n = a, 0
        self.on = STAMPS and os.environ.get("STAMPK", name) == name

    def __call__(self):
        if self.on and self.n < 11:
            if self.n == 0:
                self.a.I("s_memrealtime s[68:69]")
            self.a.I(f"s_memtime {s(ST0 + 2 * self.n, 2)}")
            self.n += 1

    def dump(self, wave_s, wslo, tmpv=8):
        if not self.on:
            return
        a = self.a
        a.I("s_waitcnt vmcnt(0) lgkmcnt(0)")
        a.I(f"s_memtime {s(ST0 + 2 * self.n, 2)}")
        a.I("s_memrealtime s[70:71]")
        self.n += 1
        srd(a, 96, wslo, wslo + 1, 1 * MB, add=128 * MB)
        a.I("s_lshl_b32 s100, s2, 3")
        a.I(f"s_add_u32 s100, s100, {s(wave_s)}")
        a.I("s_lshl_b32 s100, s100, 8")
        a.I("s_waitcnt lgkmcnt(0)")
        a.I(f"v_mov_b32 {v(tmpv + 1)}, 0")
        for i in range(self.n):
            a.I(f"v_mov_b32 {v(tmpv)}, {s(ST0 + 2 * i)}")
            a.I(f"buffer_store_dword {v(tmpv)}, {v(tmpv + 1)}, s[96:99], s100 offen offset:{4 * i}")
        for i, r in ((62, 68), (63, 70), (61, ST0 + 2 * (self.n - 1))):
            a.I(f"v_mov_b32 {v(tmpv)}, {s(r)}")
            a.I(f"buffer_store_dword {v(tmpv)}, {v(tmpv + 1)}, s[96:99], s100 offen offset:{4 * i}")
        a.I("s_waitcnt vmcnt(0)")


DBGT = int(os.environ.get("DBGT", "0"))
KIDX = [0, 0]


def dbg_stamp(a, end):
    k = KIDX[0]
    lab = a.uid("dbgskip%d_%d" % (k, KIDX[1]))
    KIDX[1] += 1
    if not end:
        a.I("v_readfirstlane_b32 s89, v0")
        a.I("s_nop 1")
        a.I("s_lshr_b32 s89, s89, 6")
        a.I("s_or_b32 s89, s89, s2")
    a.I("s_cmp_lg_u32 s89, 0")
    a.I(f"s_cbranch_scc1 {lab}")
    a.I("s_load_dwordx4 s[92:95], s[90:91], 80")
    a.I("s_waitcnt vmcnt(0) lgkmcnt(0)")
    a.I("s_memrealtime s[86:87]")
    a.I(f"s_add_u32 s96, s94, {hex(200 * MB)}")
    a.I("s_addc_u32 s97, s95, 0")
    a.I("s_mov_b32 s98, 256")
    a.I("s_mov_b32 s99, 0x20000")
    a.I("s_waitcnt lgkmcnt(0)")
    a.I("v_mov_b32 v254, s86")
    a.I(f"buffer_store_dword v254, off, s[96:99], 0 offset:{8 * k + 4 * end} sc0 sc1")
    a.I("s_waitcnt vmcnt(0)")
    if end and k == DBGT - 1:
        a.I("v_lshlrev_b32 v253, 2, v0")
        a.I("buffer_load_dword v254, v253, s[96:99], 0 offen sc0 sc1")
        a.I("s_mov_b32 s96, s92")
        a.I("s_mov_b32 s97, s93")
        a.I("s_waitcnt vmcnt(0)")
        a.I("buffer_store_dword v254, v253, s[96:99], 0 offen")
        a.I(f"s_sub_u32 s96, s92, {k * 512}")
        a.I("s_subb_u32 s97, s93, 0")
        a.I("s_nop 0")
        a.I("buffer_store_dword v254, v253, s[96:99], 0 offen")
    a.label(lab)


def code_touch(a, kname, wave_s, sr, vt, nw_log=3, kd=True):
    if os.environ.get("NOCP"):
        return
    a.I(f"s_getpc_b64 {s(sr, 2)}")
    a.I(f"s_add_u32 {s(sr)}, {s(sr)}, cs_{kname}@rel32@lo+4")
    a.I(f"s_addc_u32 {s(sr + 1)}, {s(sr + 1)}, cs_{kname}@rel32@hi+12")
    a.I(f"s_mov_b32 {s(sr + 2)}, {kname}_end - {kname}")
    a.I(f"s_mov_b32 {s(sr + 3)}, 0x20000")
    a.I(f"s_lshr_b32 {s(sr + 4)}, s2, 3")
    a.I(f"s_lshl_b32 {s(sr + 4)}, {s(sr + 4)}, {nw_log}")
    a.I(f"s_add_u32 {s(sr + 4)}, {s(sr + 4)}, {s(wave_s)}")
    a.I(f"s_lshl_b32 {s(sr + 4)}, {s(sr + 4)}, {12 - nw_log}")
    a.I(f"v_lshlrev_b32 {v(vt)}, 7, v0")
    a.I(f"s_mov_b64 exec, {(1 << (32 >> nw_log)) - 1}")
    a.I(f"buffer_load_dword {v(vt + 1)}, {v(vt)}, {s(sr, 4)}, {s(sr + 4)} offen")
    if kd and os.environ.get("KD"):
        a.I(f"s_getpc_b64 {s(sr, 2)}")
        a.I(f"s_add_u32 {s(sr)}, {s(sr)}, kdl_{kname}@rel32@lo+4")
        a.I(f"s_addc_u32 {s(sr + 1)}, {s(sr + 1)}, kdl_{kname}@rel32@hi+12")
        a.I(f"s_mov_b32 {s(sr + 2)}, 64")
        a.I("s_mov_b64 exec, 1")
        a.I(f"buffer_load_dword {v(vt + 1)}, off, {s(sr, 4)}, 0")
    a.I("s_mov_b64 exec, -1")


def kstart(a, name, nwg):
    a.raw(".text")
    a.raw(f".globl {name}")
    a.raw(".p2align 8")
    a.raw(f".type {name},@function")
    a.label(name)
    a.label("cs_" + name)
    a.I(f"s_cmp_ge_u32 s2, {nwg}")
    a.I(f"s_cbranch_scc1 {name}_end")
    if DBGT:
        a.I("s_mov_b64 s[90:91], s[0:1]")
        dbg_stamp(a, 0)


def kend(a, name):
    a.label(name + "_end")
    a.I("s_endpgm")


def kdesc(name, nv, ns, na=0):
    nv = (nv + 7) // 8 * 8
    acc_off = nv
    nv = nv + (na + 7) // 8 * 8
    return f""".section .rodata,"a"
.p2align 6
kdl_{name}:
.amdhsa_kernel {name}
  .amdhsa_next_free_vgpr {nv}
  .amdhsa_next_free_sgpr {max(ns, 16)}
  .amdhsa_accum_offset {acc_off}
  .amdhsa_group_segment_fixed_size 0
  .amdhsa_kernarg_size 96
  .amdhsa_user_sgpr_count 2
  .amdhsa_user_sgpr_kernarg_segment_ptr 1
  .amdhsa_system_sgpr_workgroup_id_x 1
  .amdhsa_float_denorm_mode_32 3
.end_amdhsa_kernel
"""


QSCALE = math.log2(math.e) / math.sqrt(128.0)


def gen_qkv():
    a = Asm()
    N = "qkvproj_kernel"
    kstart(a, N, 256)
    a.I("s_load_dwordx4 s[4:7], s[0:1], 0")
    a.I("s_load_dwordx4 s[8:11], s[0:1], 16")
    a.I("s_load_dwordx2 s[12:13], s[0:1], 32")
    a.I("s_load_dwordx2 s[14:15], s[0:1], 88")
    a.I("v_lshrrev_b32 v1, 6, v0")
    a.I("v_and_b32 v0, 63, v0")
    a.I("s_and_b32 s17, s2, 7")
    a.I("v_readfirstlane_b32 s16, v1")
    a.I("s_lshr_b32 s18, s2, 3")
    a.I("s_and_b32 s19, s18, 7")
    a.I("s_lshr_b32 s18, s18, 3")
    a.I("s_lshl_b32 s40, s17, 2")
    a.I("s_add_u32 s18, s18, s40")
    a.I("s_mov_b32 s41, 0")
    a.I("s_mul_i32 s42, s18, 6")
    a.I("s_cmp_ge_u32 s18, 11")
    a.I("s_cselect_b32 s41, 1, s41")
    a.I("s_cselect_b32 s40, 64, 0")
    a.I("s_cmp_ge_u32 s18, 21")
    a.I("s_cselect_b32 s41, 2, s41")
    a.I("s_cselect_b32 s40, 126, s40")
    a.I("s_sub_u32 s42, s42, s40")
    a.I("s_lshl_b32 s44, s19, 3")
    a.I("s_add_u32 s44, s44, s16")
    hl, b4, t1, t2 = 9, 10, 11, 12
    a.I(f"v_lshrrev_b32 {v(hl)}, 5, v0")
    a.I(f"v_bfe_u32 {v(b4)}, v0, 4, 1")
    a.I(f"v_lshrrev_b32 {v(t1)}, 3, v0")
    a.I(f"v_lshlrev_b32 {v(t1)}, 10, {v(t1)}")
    a.I("s_lshl_b32 s45, s44, 15")
    a.I(f"v_add_u32 {v(t1)}, s45, {v(t1)}")
    a.I(f"v_lshrrev_b32 {v(t2)}, 4, v0")
    a.I("v_and_b32 v13, 7, v0")
    a.I(f"v_xor_b32 {v(t2)}, {v(t2)}, v13")
    a.I(f"v_lshl_add_u32 v52, {v(t2)}, 4, {v(t1)}")
    a.I("v_xor_b32 v53, 64, v52")
    a.I(f"v_add_u32 v53, {8192 - 1024}, v53")
    a.I(f"v_add_u32 v54, {2 * (8192 - 1024)}, v52")
    a.I(f"v_add_u32 v55, {2 * (8192 - 1024)}, v53")
    a.I("v_and_b32 v13, 31, v0")
    a.I(f"v_bfe_u32 {v(t2)}, v0, 1, 3")
    a.I(f"v_xor_b32 {v(t2)}, {v(t2)}, {v(hl)}")
    a.I(f"v_lshlrev_b32 {v(t2)}, 4, {v(t2)}")
    a.I(f"v_lshl_add_u32 {v(t2)}, v13, 7, {v(t2)}")
    a.I("s_mul_i32 s46, s16, 12288")
    for t in range(4):
        a.I(f"v_xor_b32 {v(56 + t)}, {32 * t}, {v(t2)}")
    for t in range(4):
        a.I(f"v_add_u32 {v(56 + t)}, s46, {v(56 + t)}")
    a.I("v_lshrrev_b32 v2, 3, v0")
    a.I("v_lshlrev_b32 v2, 13, v2")
    a.I(f"v_lshlrev_b32 {v(t1)}, 2, {v(b4)}")
    a.I(f"v_and_b32 {v(t2)}, 7, v0")
    a.I(f"v_xor_b32 {v(t1)}, {v(t1)}, {v(t2)}")
    a.I(f"v_lshl_add_u32 v2, {v(t1)}, 4, v2")
    a.I("s_lshl_b32 s45, s16, 17")
    a.I("v_add_u32 v2, s45, v2")
    a.I(f"v_add_u32 v3, {65536 - 1024}, v2")
    a.I(f"v_bfe_u32 {v(t1)}, v0, 2, 2")
    a.I(f"v_lshl_add_u32 {v(t2)}, {v(hl)}, 3, {v(t1)}")
    a.I(f"v_lshlrev_b32 v4, 7, {v(t2)}")
    a.I(f"v_lshl_add_u32 v4, {v(b4)}, 5, v4")
    a.I(f"v_and_b32 {v(t2)}, 3, v0")
    a.I(f"v_lshl_add_u32 v4, {v(t2)}, 3, v4")
    a.I(f"v_bfe_u32 {v(t2)}, v0, 3, 1")
    a.I(f"v_lshl_add_u32 v4, {v(t2)}, 6, v4")
    a.I("v_xor_b32 v5, 64, v4")
    a.I("v_add_u32 v6, 0x10000, v4")
    a.I("v_add_u32 v7, 0x10000, v5")
    a.I("v_add_u32 v50, 0x20000, v4")
    a.I("v_add_u32 v51, 0x20000, v5")
    a.I("v_lshlrev_b32 v48, 4, v0")
    a.I("s_lshl_b32 s47, s16, 11")
    a.I("s_lshl_b32 s48, s42, 7")
    a.I("s_lshl_b32 s49, s44, 13")
    a.I("s_lshl_b32 s50, s42, 18")
    a.I("s_add_u32 s50, s50, s49")
    a.I("s_waitcnt lgkmcnt(0)")
    a.I("s_cmp_eq_u32 s41, 2")
    a.I("s_cselect_b32 s20, s4, s6")
    a.I("s_cselect_b32 s21, s5, s7")
    a.I("s_cselect_b32 s24, s8, s10")
    a.I("s_cselect_b32 s25, s9, s11")
    a.I(f"s_cselect_b32 s51, {hex(WS_Q)}, 0")
    a.I(f"s_cselect_b32 s52, {f32(QSCALE)}, 1.0")
    a.I(f"s_mov_b32 s22, {hex(2 * MB)}")
    a.I("s_mov_b32 s23, 0x20000")
    a.I(f"s_mov_b32 s26, {hex(4 * MB)}")
    a.I("s_mov_b32 s27, 0x20000")
    srd(a, 28, 14, 15, 16 * MB, add="s51")
    srd(a, 32, 12, 13, 4 * MB)
    srd(a, 36, 14, 15, 16 * MB, add=WS_V)
    srd(a, 56, 6, 7, 2 * MB)
    a.I("s_cmp_eq_u32 s18, 31")
    a.I(f"s_cbranch_scc1 {N}_D")
    a.I("s_cmp_eq_u32 s41, 1")
    a.I(f"s_cbranch_scc1 {N}_B")
    a.I("s_cmp_eq_u32 s18, 10")
    a.I(f"s_cbranch_scc1 {N}_C")

    AF, ACC, RING, PK = 64, 192, 8, 32
    LOOK = 6

    def body(passes, tag):
        vm, lg = VM(a), LG(a)
        st = Stamper(a, "qkv")
        st()
        NP = len(passes)
        NC = 4 * NP
        NM = 64 * NP
        restage = tag == "D"
        blk = {}
        free = [6, 7, 8, 9]
        nxt = [0]

        def dmaW():
            c = nxt[0]
            if c >= NC or not free:
                return False
            b = free.pop(0)
            blk[c] = b
            nxt[0] += 1
            pp, kc = divmod(c, 4)
            form, su, di = passes[pp]
            a.I(f"s_add_u32 m0, s47, {hex(b * 16384)}")
            if su is not None:
                a.I(f"s_mov_b32 s45, {hex((kc << 20) + su * 128)}")
            else:
                a.I(f"s_add_u32 s45, s48, {hex((kc << 20) + di * 128)}")
            sr = "s[32:35]" if form == "V" else "s[24:27]"
            vm.issue(f"buffer_load_dwordx4 v2, {sr}, s45 offen lds", ("W", c))
            vm.issue(f"buffer_load_dwordx4 v3, {sr}, s45 offen offset:1024 lds", ("W", c))
            return True

        def dmaA(j):
            sr = "s[56:59]" if (restage and j < 8) else "s[20:23]"
            a.I(f"s_add_u32 m0, s46, {hex((j % 3) * 4096)}")
            a.I(f"s_mov_b32 s45, {(j % 8) * 128}")
            for i in range(4):
                vm.issue(f"buffer_load_dwordx4 {v(52 + i)}, {sr}, s45 offen offset:{i * 1024} lds", ("A", j))

        def readA(j):
            vm.wait(("A", j))
            for t in range(4):
                lg.issue(f"ds_read_b128 {v(AF + 16 * (j % 8) + 4 * t, 4)}, {v(56 + t)} offset:{(j % 3) * 4096}", ("A", j))

        dmaW(); dmaA(0); dmaA(1); dmaW(); dmaA(2); dmaW(); dmaW()

        def reads(i):
            c, r = divmod(i, 16)
            t, cb = divmod(r, 2)
            b = blk[c]
            base = [4, 6, 50][b // 4] + cb
            off = (b % 4) * 16384 + t * 2048
            d = RING + 4 * (i % LOOK)
            lg.issue(f"ds_read_b64_tr_b16 {v(d, 2)}, {v(base)} offset:{off}", ("W", i))
            lg.issue(f"ds_read_b64_tr_b16 {v(d + 2, 2)}, {v(base)} offset:{off + 512}", ("W", i))

        def sync(c):
            vm.wait(("W", c))
            a.I("s_barrier")
            if c >= 2:
                free.append(blk[c - 2])
            if c == (10 if restage else 5):
                free.extend([0, 1, 2, 3, 4, 5])
            n = 0
            while n < 2 and dmaW():
                n += 1

        def epi(pp):
            out = []
            form, su, di = passes[pp]
            acc = ACC + 32 * (pp & 1)
            so = 54 + (pp & 1)
            if su is not None:
                out.append(lambda: a.I(f"s_add_u32 s{so}, s49, {hex((su >> 1) * 512 * 1024 + (su & 1) * 4096)}"))
            else:
                out.append(lambda: a.I(f"s_add_u32 s{so}, s50, {hex((di >> 1) * 512 * 1024 + (di & 1) * 4096)}"))
            sr = "s[36:39]" if form == "V" else "s[28:31]"
            for cb in range(2):
                for h in range(2):
                    q = 2 * cb + h
                    for i in range(4):
                        src = acc + 16 * cb + 8 * h + 2 * i
                        if form == "K" and tag in "AD":
                            out.append(lambda src=src: a.I(f"v_mul_f32 {v(src)}, s52, {v(src)}"))
                            out.append(lambda src=src: a.I(f"v_mul_f32 {v(src + 1)}, s52, {v(src + 1)}"))
                        out.append(lambda src=src, q=q, i=i: a.I(
                            f"v_cvt_pk_bf16_f32 {v(PK + 4 * q + i)}, {v(src)}, {v(src + 1)}"))
                    out.append(lambda q=q: vm.issue(
                        f"buffer_store_dwordx4 {v(PK + 4 * q, 4)}, v48, {sr}, s{so} offen offset:{q * 1024}{SP}", ("S", pp)))
            return out

        st()
        readA(0)
        sync(0)
        st()
        for i in range(LOOK - 2):
            reads(i)
        lg.wait(("A", 0))
        for i in range(LOOK - 2, LOOK):
            reads(i)
        pend = []
        for i in range(NM):
            c, r = divmod(i, 16)
            t, cb = divmod(r, 2)
            pp, kc = divmod(c, 4)
            k = 8 * kc + t
            if i % 2 == 0:
                lg.wait([("W", i), ("W", i + 1), ("A", i // 8)])
            if pp == 0 and i % 8 == 0 and i // 8 + 3 < (11 if restage else 8):
                dmaA(i // 8 + 3)
            if restage and 72 < i <= 128 + 8 and i % 8 == 4:
                jj = 8 + (i - 76) // 8
                lg.wait(("A", jj))
                if jj + 3 < 16:
                    dmaA(jj + 3)
            acc = v(ACC + 32 * (pp & 1) + 16 * cb, 16)
            wf = v(RING + 4 * (i % LOOK), 4)
            af = v(AF + 4 * k, 4)
            cin = "0" if k == 0 else acc
            if passes[pp][0] == "V":
                a.I(f"{MF} {acc}, {af}, {wf}, {cin}")
            else:
                a.I(f"{MF} {acc}, {wf}, {af}, {cin}")
            j = i + LOOK
            if j < NM:
                if j % 16 == 0:
                    sync(j // 16)
                if j < 64 and j % 8 == 0:
                    readA(j // 8)
                reads(j)
            if restage and 64 <= i < 128 and i % 8 == 7:
                readA(8 + (i - 64) // 8)
            if i % 64 == 63:
                st()
            if i % 64 == 6 and pp >= 1:
                pend = epi(pp - 1)
            if pend:
                pend.pop(0)()
        a.I("s_nop 11")
        for f in epi(NP - 1):
            f()
        st.dump(16, 14)
        a.I("s_endpgm")

    body([("K", None, i) for i in range(6)], "A")
    a.label(N + "_B")
    body([("V", None, i) for i in range(6)], "B")
    a.label(N + "_C")
    body([("K", None, i) for i in range(4)] + [("V", 0, 0), ("V", 1, 0)], "C")
    a.label(N + "_D")
    body([("V", 62, 0), ("V", 63, 0)] + [("K", None, i) for i in range(4)], "D")
    kend(a, N)
    return a, N, (256, 512, 163840)


def gen_attn(withb2=False):
    b2tail = withb2 and os.environ.get("B2MODE", "start") == "tail"
    if b2tail:
        withb2 = False
    LT = int(os.environ.get("LT", "3"))
    a = Asm()
    N = "attn_kernel"
    O, Q, S, P, NEGM, RING = 64, 128, [160, 176], [192, 200], 208, 224
    L16, VKA, VVA, VL, VLS, E, VDA, VDB, QREL, T0, T1, T2, NINF = 1, 2, 3, 4, 5, 6, 10, 11, 12, 13, 14, 15, 48
    PK = 16
    EE = 50
    sW, sH, sP, sN, sC, sPH, sTHR, sBAR, sKO, sKM, sVM, sQS = 16, 17, 18, 19, 20, 21, 40, 41, 42, 43, 44, 45
    kstart(a, N, 256)
    a.I("s_load_dwordx2 s[4:5], s[0:1], 88")
    a.I("s_load_dwordx2 s[14:15], s[0:1], 40")
    a.I("v_lshrrev_b32 v1, 6, v0")
    a.I("v_and_b32 v0, 63, v0")
    a.I("s_and_b32 s6, s2, 7")
    a.I(f"v_readfirstlane_b32 {s(sW)}, v1")
    a.I("s_lshr_b32 s7, s2, 3")
    a.I("s_and_b32 s8, s7, 3")
    a.I("s_lshl_b32 s6, s6, 2")
    a.I(f"s_add_u32 {s(sH)}, s6, s8")
    a.I(f"s_lshr_b32 {s(sP)}, s7, 2")
    a.I(f"s_lshl_b32 s6, {s(sP)}, 2")
    a.I(f"s_sub_u32 s7, 60, s6")
    a.I(f"s_add_u32 s7, s7, {s(sW)}")
    a.I(f"s_add_u32 s8, s6, 7")
    a.I(f"s_sub_u32 s8, s8, {s(sW)}")
    a.I(f"s_cmp_ge_u32 {s(sW)}, 4")
    a.I(f"s_cselect_b32 {s(sQS)}, s8, s7")
    a.I(f"s_add_u32 {s(sN)}, {s(sQS)}, 1")
    a.I("s_sub_u32 s9, 64, s6")
    a.I(f"s_lshr_b32 {s(sBAR)}, s9, 1")
    a.I("s_lshl_b32 s9, s9, 13")
    a.I(f"s_lshl_b32 s10, {s(sH)}, 19")
    a.I(f"v_lshlrev_b32 {v(L16)}, 4, v0")
    a.I(f"s_and_b32 s11, {s(sW)}, 3")
    a.I("s_lshl_b32 s11, s11, 11")
    a.I(f"v_add_u32 {v(VDA)}, s11, {v(L16)}")
    a.I(f"v_add_u32 {v(VDB)}, 0x2000, {v(VDA)}")
    a.I(f"v_and_b32 {v(T0)}, 31, v0")
    a.I(f"v_lshrrev_b32 {v(T1)}, 5, v0")
    a.I(f"v_lshlrev_b32 {v(T1)}, 2, {v(T1)}")
    a.I(f"v_sub_u32 {v(QREL)}, {v(T0)}, {v(T1)}")
    a.I(f"v_mov_b32 {v(NINF)}, 0xff800000")
    a.I(f"s_mov_b32 {s(sTHR)}, {f32(2.0 ** 14)}")
    FLG = 7 * 16384 + 8192
    if withb2:
        a.I(f"v_mov_b32 v124, {FLG}")
        for i in range(4):
            a.I(f"v_mov_b32 {v(56 + i)}, 0")
        a.I("ds_write_b128 v124, v[56:59]")
        a.I("s_and_b32 s60, s2, 7")
        a.I("s_lshl_b32 s60, s60, 5")
        a.I("s_lshr_b32 s61, s2, 3")
        a.I("s_add_u32 s60, s60, s61")
        a.I("s_cmp_eq_u32 s2, 248")
        a.I("s_cselect_b32 s61, 4, 2")
        a.I(f"s_cmp_lt_u32 {s(sW)}, s61")
        a.I("s_cselect_b32 s23, 1, 0")
        a.I(f"s_cmp_ge_u32 {s(sW)}, 2")
        a.I("s_cselect_b32 s60, 0x100, s60")
        a.I(f"s_mov_b32 s61, {131072}")
        a.I(f"s_cselect_b32 s61, {131072 + 16384}, s61")
        a.I(f"s_and_b32 s67, {s(sW)}, 1")
    a.I("s_waitcnt lgkmcnt(0)")
    srd(a, 24, 4, 5, "s9", add="s10")
    a.I(f"s_add_u32 s12, s10, {hex(WS_V - 3 * 8192)}")
    a.I(f"s_add_u32 s13, s9, {3 * 8192}")
    srd(a, 28, 4, 5, "s13", add="s12")
    srd(a, 32, 4, 5, 16 * MB, add=WS_Q)
    srd(a, 36, 4, 5, 16 * MB, add=WS_CTX)
    st = Stamper(a, "attn")
    st()
    a.I(f"s_lshl_b32 s12, {s(sQS)}, 18")
    a.I(f"s_lshl_b32 s13, {s(sH)}, 13")
    a.I("s_add_u32 s12, s12, s13")
    a.I("s_add_u32 s13, s12, 4096")

    def q_loads(vm=None):
        for t in range(8):
            x = f"buffer_load_dwordx4 {v(Q + 4 * t, 4)}, {v(L16)}, s[32:35], s{12 + t // 4} offen offset:{(t % 4) * 1024}{os.environ.get('QP', '')}"
            vm.issue(x, "Q") if vm else a.I(x)

    def q_clear(r0):
        for j in range(4):
            a.I(f"v_mov_b32 {v(r0 + j)}, -1")
        for q in range(4):
            a.I(f"buffer_store_dwordx4 {v(r0, 4)}, {v(L16)}, s[32:35], s{12 + q // 2} offen offset:{(q % 2) * 1024}{SP}")

    if withb2:
        a.I("s_cmp_eq_u32 s23, 0")
        a.I(f"s_cbranch_scc1 {N}_nob2l")
        b2_loads(a, VM(a), 60, 67, L16, 16, 32, 62, 48)
        q_loads()
        a.label(f"{N}_nob2l")
        a.I("s_barrier")
    a.I(f"s_lshl_b32 s46, {s(sQS)}, 18")
    a.I(f"s_lshl_b32 s6, {s(sH)}, 13")
    a.I("s_add_u32 s46, s46, s6")
    a.I("s_add_u32 s47, s46, 4096")
    a.I(f"s_mov_b32 {s(sKM)}, s11")
    a.I(f"s_mov_b32 {s(sKO)}, 0")

    def dma_list(withV=True):
        l = []
        if withV:
            l += [f"s_mov_b32 m0, {s(sVM)}", None,
                  f"buffer_load_dwordx4 {v(VDA)}, s[28:31], {s(sKO)} offen lds",
                  f"buffer_load_dwordx4 {v(VDA)}, s[28:31], {s(sKO)} offen offset:1024 lds",
                  f"s_add_u32 m0, {s(sVM)}, 0x4000", None,
                  f"buffer_load_dwordx4 {v(VDB)}, s[28:31], {s(sKO)} offen lds",
                  f"buffer_load_dwordx4 {v(VDB)}, s[28:31], {s(sKO)} offen offset:1024 lds"]
        l += [f"s_mov_b32 m0, {s(sKM)}", f"s_add_u32 {s(sVM)}, {s(sKM)}, 0x2000",
              f"buffer_load_dwordx4 {v(VDA)}, s[24:27], {s(sKO)} offen lds",
              f"buffer_load_dwordx4 {v(VDA)}, s[24:27], {s(sKO)} offen offset:1024 lds",
              f"s_add_u32 m0, {s(sKM)}, 0x4000", f"s_add_u32 {s(sKM)}, {s(sKM)}, 0x8000",
              f"buffer_load_dwordx4 {v(VDB)}, s[24:27], {s(sKO)} offen lds",
              f"buffer_load_dwordx4 {v(VDB)}, s[24:27], {s(sKO)} offen offset:1024 lds",
              f"s_and_b32 {s(sKM)}, {s(sKM)}, 0x1ffff",
              f"s_add_u32 {s(sKO)}, {s(sKO)}, 0x4000"]
        return l

    def emit_dma(withV=True):
        for x in dma_list(withV):
            if "dma" in os.environ.get("ADROP", "") and x and x.endswith(" lds"):
                continue
            a.I(x or "s_nop 0")

    def mask_negm():
        for j in range(16):
            a.I(f"v_cmp_le_i32 vcc, {(j & 3) + 8 * (j >> 2)}, {v(QREL)}")
            a.I("s_nop 1")
            a.I(f"v_cndmask_b32 {v(NEGM + j)}, {v(NINF)}, {v(NEGM + j)}, vcc")
        a.I("s_nop 1")

    def rowmax(Sx, dst):
        a.I(f"v_max3_f32 {v(dst)}, {v(Sx)}, {v(Sx + 1)}, {v(Sx + 2)}")
        for j in range(3, 15, 2):
            a.I(f"v_max3_f32 {v(dst)}, {v(dst)}, {v(Sx + j)}, {v(Sx + j + 1)}")
        a.I(f"v_max_f32 {v(dst)}, {v(dst)}, {v(Sx + 15)}")
        a.I(f"v_mov_b32 {v(T2)}, {v(dst)}")
        a.I("s_nop 1")
        a.I(f"v_permlane32_swap_b32 {v(dst)}, {v(T2)}")
        a.I(f"v_max_f32 {v(dst)}, {v(dst)}, {v(T2)}")

    def role(ld):
        R = "S" if ld else "L"
        if withb2 and not ld:
            a.I("s_cmp_eq_u32 s23, 0")
            a.I(f"s_cbranch_scc1 {N}_b2no")
            a.I(f"s_and_b32 s67, {s(sW)}, 2")
            a.I("s_lshl_b32 s67, s67, 2")
            a.I(f"s_add_u32 s67, s67, {FLG}")
            a.I("v_mov_b32 v124, s67")
            a.I(f"s_bitcmp1_b32 {s(sW)}, 0")
            a.I(f"s_cbranch_scc1 {N}_b2w1")
            rmap = [56, 57, 58, 59, 60, 61, 62, 120, 63, 16, 24, 32, 40, 64, 72, 80, 88, 104, 160, 176, 192, 208, 224]
            for own in range(2):
                vmb = VM(a)
                if own:
                    a.label(f"{N}_b2w1")
                ex = [0]

                def pair_sync():
                    ex[0] += 1
                    lab = a.uid(f"{N}_spin")
                    a.I(f"v_mov_b32 v125, {ex[0]}")
                    a.I(f"ds_write_b32 v124, v125 offset:{4 * own}")
                    a.label(lab)
                    a.I(f"ds_read_b32 v126, v124 offset:{4 * (1 - own)}")
                    a.I("s_waitcnt lgkmcnt(0)")
                    a.I("v_readfirstlane_b32 s67, v126")
                    a.I("s_nop 0")
                    a.I(f"s_cmp_lt_u32 s67, {ex[0]}")
                    a.I(f"s_cbranch_scc1 {lab}")
                b2_body(a, own, 60, 61, pair_sync, vmb, S0=62, SR=48, slice_len=10 ** 9, rmap=rmap, preloaded=True,
                        st=st if os.environ.get("B2ST") else (lambda: None))
                if os.environ.get("B2ST"):
                    st()
                    st.n -= 5 * (1 - own)
                assert vmb.q[-5:] == ["Q", "Z", "Z", "Z", "Z"] or "Q" not in vmb.q
                a.I(f"s_branch {N}_b2done")
            a.label(f"{N}_b2no")
        def inits(tag):
            for j in range(16):
                a.I(f"v_mov_b32 {v(NEGM + j)}, 0")
            a.I(f"s_cmp_lg_u32 {s(sN)}, 1")
            a.I(f"s_cbranch_scc1 {N}_{R}_nm1{tag}")
            mask_negm()
            a.label(f"{N}_{R}_nm1{tag}")

        inits("a")
        q_loads()
        if ld:
            emit_dma(withV=False)
            emit_dma()
        if withb2 and not ld:
            a.I("s_waitcnt vmcnt(0)")
            a.I(f"s_branch {N}_b2join")
            a.label(f"{N}_b2done")
            inits("b")
            a.I("s_waitcnt vmcnt(4)")
            a.label(f"{N}_b2join")
        a.I(f"v_mov_b32 {v(VL)}, 0")
        a.I(f"v_mov_b32 {v(VLS)}, 0")
        a.I(f"v_add_u32 {v(VKA)}, 0x8000, {v(L16)}")
        a.I(f"v_mov_b32 {v(VVA)}, {v(L16)}")
        if os.environ.get("PRIO") and not ld:
            a.I(f"s_setprio {os.environ['PRIO']}")
        if ld or not withb2:
            a.I(f"s_waitcnt vmcnt({6 if ld else 0})")
        a.I("s_barrier")
        st()
        for t in range(8):
            a.I(f"ds_read_b128 {v(RING + 4 * t, 4)}, {v(L16)} offset:{t * 1024}")
        dl = [x or "s_nop 0" for x in dma_list()] if ld else []
        for t in range(8):
            if t % 4 == 0:
                a.I("s_waitcnt lgkmcnt(4)")
            a.I(f"{MF} {v(S[0], 16)}, {v(RING + 4 * t, 4)}, {v(Q + 4 * t, 4)}, {v(NEGM if t == 0 else S[0], 16)}")
            a.I(f"ds_read_b128 {v(RING + 4 * t, 4)}, {v(L16)} offset:{16384 + t * 1024}")
            for x in dl[:3]:
                a.I(x)
            dl = dl[3:]
            for j in range(5):
                a.I(f"v_mov_b32 {v(O + 5 * t + j)}, 0")
        assert not dl
        for j in range(40, 64):
            a.I(f"v_mov_b32 {v(O + j)}, 0")
        if ld:
            emit_dma()
        rowmax(S[0], T0)
        for j in range(16):
            a.I(f"v_sub_f32 {v(S[0] + j)}, {v(S[0] + j)}, {v(T0)}")
        for j in range(16):
            a.I(f"v_sub_f32 {v(NEGM + j)}, 0, {v(T0)}")
        a.I(f"s_mov_b32 {s(sPH)}, 0")
        a.I(f"s_sub_u32 {s(sC)}, {s(sN)}, 3")
        a.I(f"s_cbranch_scc0 {N}_{R}_first")
        a.I(f"s_mov_b32 {s(sPH)}, 3")
        a.I(f"s_mov_b32 {s(sC)}, 0")
        a.I(f"s_cmp_lg_u32 {s(sN)}, 2")
        a.I(f"s_cbranch_scc1 {N}_{R}_first")
        a.I(f"s_mov_b32 {s(sPH)}, 1")
        mask_negm()
        a.label(f"{N}_{R}_first")
        e = lambda j: v(EE + (j % 6))
        if ld:
            a.I("s_waitcnt vmcnt(14)")
        a.I("s_waitcnt lgkmcnt(0)")
        a.I("s_barrier")
        a.I(f"s_sub_u32 {s(sBAR)}, {s(sBAR)}, 1")
        dl = [x or "s_nop 0" for x in dma_list()] if ld else []
        for pos in range(8):
            r = v(RING + 4 * pos, 4)
            a.I(f"{MF} {v(S[1], 16)}, {r}, {v(Q + 4 * pos, 4)}, {v(NEGM if pos == 0 else S[1], 16)}")
            a.I(f"ds_read_b128 {r}, {v(VKA)} offset:{pos * 1024}")
            a.I(f"v_exp_f32 {e(2 * pos)}, {v(S[0] + 2 * pos)}")
            a.I(f"v_exp_f32 {e(2 * pos + 1)}, {v(S[0] + 2 * pos + 1)}")
            a.many(dl[:3] or ["s_nop 0"])
            dl = dl[3:]
            a.I(f"v_add_f32 {v(VLS)}, {v(VLS)}, {e(2 * pos)}")
            a.I(f"v_add_f32 {v(VLS)}, {v(VLS)}, {e(2 * pos + 1)}")
            a.I(f"v_cvt_pk_bf16_f32 {v(P[0] + pos)}, {e(2 * pos)}, {e(2 * pos + 1)}")
        assert not dl
        a.I("s_nop 4")
        a.I(f"s_sub_u32 {s(sC)}, {s(sC)}, 1")
        a.I(f"s_branch {N}_{R}_back0")

        def iteration(par):
            gaps = [[] for _ in range(16)]
            pre = [[] for _ in range(16)]
            mf = []
            Sc, Sn, Pc, Pp = S[par], S[1 - par], P[par], P[1 - par]
            e = lambda j: v(EE + (j % 6))
            for pos in range(16):
                r = v(RING + 4 * (pos & 7), 4)
                if pos < 8:
                    mf.append(f"{MF} {v(Sn, 16)}, {r}, {v(Q + 4 * pos, 4)}, {v(NEGM if pos == 0 else Sn, 16)}")
                    ks, dt = divmod(pos, 4)
                    gaps[pos].append(f"ds_read_b128 {r}, {v(VVA)} offset:{8192 + par * 16384 + (2 * dt + ks) * 1024}")
                else:
                    ks, dt = divmod(pos - 8, 4)
                    mf.append(f"{MF} {v(O + 16 * dt, 16)}, {r}, {v(Pp + 4 * ks, 4)}, {v(O + 16 * dt, 16)}")
                    gaps[pos].append(f"ds_read_b128 {r}, {v(VKA)} offset:{par * 16384 + (pos - 8) * 1024}")
                if pos % 4 == 0:
                    pre[pos].append("s_waitcnt lgkmcnt(4)")
            early = int(os.environ.get("EARLY", "1"))
            if early:
                eg = [0, 0, 1, 2, 2, 3, 4, 5, 6, 7, 8, 9, 10, 11, 12, 13]
            else:
                eg = [0] + list(range(15))
            gaps[0].append(f"v_add_f32 {v(VL)}, {v(VL)}, {v(VLS)}")
            for j in range(16):
                gaps[eg[j]].append(f"v_exp_f32 {e(j)}, {v(Sc + j)}")
            pka = os.environ.get("PKADD")
            for j in range(1, 16):
                g = eg[j] + 1
                if pka:
                    if j == 3:
                        gaps[g].append(f"v_pk_add_f32 v[8:9], {v(EE, 2)}, {v(EE + 2, 2)}")
                    elif j % 2 == 1 and j > 3:
                        gaps[g].append(f"v_pk_add_f32 v[8:9], v[8:9], {v(EE + (j - 1) % 6, 2)}")
                    if j == 15:
                        gaps[g].append(f"v_add_f32 {v(VLS)}, v8, v9")
                elif j == 1:
                    gaps[g].append(f"v_add_f32 {v(VLS)}, {e(0)}, {e(1)}")
                else:
                    gaps[g].append(f"v_add_f32 {v(VLS)}, {v(VLS)}, {e(j)}")
                if j % 2 == 1:
                    gaps[g + (1 if (early and j == 15) else 0)].append(f"v_cvt_pk_bf16_f32 {v(Pc + j // 2)}, {e(j - 1)}, {e(j)}")
            if par == 0:
                gaps[2].append(f"v_add_u32 {v(VKA)}, 0x8000, {v(VKA)}")
                gaps[6].append(f"v_and_b32 {v(VKA)}, 0x1ffff, {v(VKA)}")
                bar = ["s_barrier", f"s_sub_u32 {s(sBAR)}, {s(sBAR)}, 1"]
                if ld:
                    bar = ["s_waitcnt vmcnt(14)"] + bar
                gaps[4] = bar + gaps[4]
                if ld:
                    d = [x for x in dma_list() if x]
                    m0a, l1, l2, m0b, l3, l4, m0c, svm, l5, l6, m0d, skm, l7, l8, sand, sko = d
                    gaps[5] = [m0a] + gaps[5] + [l1]
                    gaps[6] += [l2, m0b]
                    gaps[7] += [l3]
                    gaps[8] += [l4, m0c]
                    gaps[9] += [svm, l5]
                    gaps[10] += [l6, m0d]
                    gaps[11] += [l7]
                    gaps[12] += [l8, skm]
                    gaps[13] += [sand, sko]
            else:
                gaps[10].append(f"v_mov_b32 {v(VVA)}, {v(VKA)}")
            gaps[14].append(f"s_sub_u32 {s(sC)}, {s(sC)}, 1")
            gaps[14 if early else 15].append(f"v_cmp_nge_f32 vcc, {s(sTHR)}, {v(VLS)}")
            drop = os.environ.get("ADROP", "").split(",")
            for pos in range(16):
                if "bar" in drop:
                    gaps[pos] = [x for x in gaps[pos] if x != "s_barrier"]
                if "dma" in drop:
                    gaps[pos] = [x for x in gaps[pos] if not x.endswith(" lds")]
                if "rd" in drop:
                    gaps[pos] = [x for x in gaps[pos] if not x.startswith("ds_read")]
                if "valu" in drop:
                    gaps[pos] = [x for x in gaps[pos] if not (x.startswith("v_exp") or x.startswith("v_cvt") or x.startswith("v_add_f32"))]
                if "e64" in drop:
                    gaps[pos] = [x.replace("v_exp_f32 ", "v_exp_f32_e64 ").replace("v_add_f32 ", "v_add_f32_e64 ") for x in gaps[pos]]
                a.many(pre[pos])
                a.I(mf[pos])
                a.many(gaps[pos])
            if "br" not in drop:
                a.I(f"s_cbranch_vccnz {N}_{R}_slow{par}")
            a.label(f"{N}_{R}_back{par}")
            a.I(f"s_cbranch_scc1 {N}_{R}_spec{par}")

        if os.environ.get("PRIO") and not ld:
            pass
        if os.environ.get("AALIGN"):
            a.raw(".p2align 6")
            for _ in range(int(os.environ["AALIGN"]) - 1):
                a.I("s_nop 0")
        a.label(f"{N}_{R}_it0")
        iteration(0)
        a.label(f"{N}_{R}_it1")
        iteration(1)
        a.I(f"s_branch {N}_{R}_it0")

        def svc():
            lab = a.uid(f"{N}_{R}_svc")
            a.I(f"s_cmp_eq_u32 {s(sBAR)}, 0")
            a.I(f"s_cbranch_scc1 {lab}")
            if ld:
                a.I("s_waitcnt vmcnt(14)")
            if "bar" not in os.environ.get("ADROP", ""):
                a.I("s_barrier")
            a.I(f"s_sub_u32 {s(sBAR)}, {s(sBAR)}, 1")
            if ld:
                emit_dma()
            a.label(lab)

        for par in range(2):
            Sc, Sn, Pc = S[par], S[1 - par], P[par]
            a.label(f"{N}_{R}_slow{par}")
            a.I("s_cselect_b32 s22, 1, 0")
            a.I("s_nop 15")
            rowmax(Sc, T0)
            a.I(f"v_max_f32 {v(T0)}, 0, {v(T0)}")
            a.I(f"v_exp_f32_e64 {v(T1)}, -{v(T0)}")
            for j in range(16):
                a.I(f"v_sub_f32 {v(NEGM + j)}, {v(NEGM + j)}, {v(T0)}")
                a.I(f"v_sub_f32 {v(Sc + j)}, {v(Sc + j)}, {v(T0)}")
                a.I(f"v_sub_f32 {v(Sn + j)}, {v(Sn + j)}, {v(T0)}")
            for j in range(64):
                a.I(f"v_mul_f32 {v(O + j)}, {v(O + j)}, {v(T1)}")
            a.I(f"v_mul_f32 {v(VL)}, {v(VL)}, {v(T1)}")
            a.I(f"v_mov_b32 {v(VLS)}, 0")
            for i in range(8):
                a.I(f"v_exp_f32 {v(E)}, {v(Sc + 2 * i)}")
                a.I(f"v_exp_f32 {v(E + 1)}, {v(Sc + 2 * i + 1)}")
                a.I("s_nop 0")
                a.I(f"v_add_f32 {v(VLS)}, {v(VLS)}, {v(E)}")
                a.I(f"v_add_f32 {v(VLS)}, {v(VLS)}, {v(E + 1)}")
                a.I(f"v_cvt_pk_bf16_f32 {v(Pc + i)}, {v(E)}, {v(E + 1)}")
            a.I(f"s_cmp_eq_u32 {s(sPH)}, 2")
            a.I(f"s_cbranch_scc1 {N}_{R}_lback{par}")
            a.I("s_cmp_lg_u32 s22, 0")
            a.I(f"s_branch {N}_{R}_back{par}")
            a.label(f"{N}_{R}_spec{par}")
            a.I(f"s_cmp_eq_u32 {s(sPH)}, 1")
            a.I(f"s_cbranch_scc1 {N}_{R}_last{1 - par}")
            if par == 0:
                a.I(f"s_cmp_eq_u32 {s(sPH)}, 3")
                a.I(f"s_cbranch_scc1 {N}_{R}_exit0")
            a.I(f"s_mov_b32 {s(sPH)}, 1")
            a.I(f"s_mov_b32 {s(sC)}, 0")
            mask_negm()
            a.I(f"s_branch {N}_{R}_it{1 - par}")
            Pp = P[1 - par]
            a.label(f"{N}_{R}_last{par}")
            a.I(f"s_mov_b32 {s(sPH)}, 2")
            a.I("s_waitcnt lgkmcnt(0)")
            voff = lambda pos: (2 * (pos % 4) + pos // 4) * 1024
            for pos in range(8):
                a.I(f"ds_read_b128 {v(RING + 4 * pos, 4)}, {v(VVA)} offset:{8192 + par * 16384 + voff(pos)}")
            a.I(f"v_add_f32 {v(VL)}, {v(VL)}, {v(VLS)}")
            a.I(f"v_mov_b32 {v(VLS)}, 0")
            dl = []
            if par == 0:
                if ld:
                    a.I("s_waitcnt vmcnt(14)")
                a.I("s_barrier")
                a.I(f"s_sub_u32 {s(sBAR)}, {s(sBAR)}, 1")
                dl = [x or "s_nop 0" for x in dma_list()] if ld else []
            for pos in range(8):
                ks, dt = divmod(pos, 4)
                a.I(f"v_exp_f32 {e(2 * pos)}, {v(Sc + 2 * pos)}")
                a.I(f"v_exp_f32 {e(2 * pos + 1)}, {v(Sc + 2 * pos + 1)}")
                a.I("s_waitcnt lgkmcnt(7)")
                a.I(f"{MF} {v(O + 16 * dt, 16)}, {v(RING + 4 * pos, 4)}, {v(Pp + 4 * ks, 4)}, {v(O + 16 * dt, 16)}")
                if par == 0:
                    a.I(f"ds_read_b128 {v(RING + 4 * pos, 4)}, {v(VVA)} offset:{8192 + 16384 + voff(pos)}")
                else:
                    a.I(f"ds_read_b128 {v(RING + 4 * pos, 4)}, {v(VKA)} offset:{8192 + voff(pos)}")
                a.I(f"v_add_f32 {v(VLS)}, {v(VLS)}, {e(2 * pos)}")
                a.I(f"v_add_f32 {v(VLS)}, {v(VLS)}, {e(2 * pos + 1)}")
                a.I(f"v_cvt_pk_bf16_f32 {v(Pc + pos)}, {e(2 * pos)}, {e(2 * pos + 1)}")
                a.many(dl[:3])
                dl = dl[3:]
            assert not dl
            a.I(f"v_cmp_nge_f32 vcc, {s(sTHR)}, {v(VLS)}")
            a.I(f"s_cbranch_vccnz {N}_{R}_slow{par}")
            a.label(f"{N}_{R}_lback{par}")
            if par == 0:
                a.I(f"s_branch {N}_{R}_fin0")
                a.label(f"{N}_{R}_exit0")
                a.I("s_waitcnt lgkmcnt(0)")
                for pos in range(8):
                    a.I(f"ds_read_b128 {v(RING + 4 * pos, 4)}, {v(VVA)} offset:{8192 + 16384 + voff(pos)}")
                a.label(f"{N}_{R}_fin0")
            a.I(f"v_add_f32 {v(VL)}, {v(VL)}, {v(VLS)}")
            nrm = [f"v_mov_b32 {v(T2)}, {v(VL)}", None, f"v_permlane32_swap_b32 {v(VL)}, {v(T2)}",
                   f"v_add_f32 {v(VL)}, {v(VL)}, {v(T2)}", f"v_rcp_f32 {v(T0)}, {v(VL)}"]
            for pos in range(8):
                dt, ks = divmod(pos, 2)
                rp = 4 * ks + dt
                a.I(f"s_waitcnt lgkmcnt({max(0, 7 - max(rp, 4 + dt - (1 - ks) * 4))})" if False else
                    f"s_waitcnt lgkmcnt({7 - rp if ks else min(7 - rp, 7 - (4 + dt - 1) if dt else 7)})")
                a.I(f"{MF} {v(O + 16 * dt, 16)}, {v(RING + 4 * rp, 4)}, {v(Pc + 4 * ks, 4)}, {v(O + 16 * dt, 16)}")
                if pos < len(nrm) and nrm[pos]:
                    a.I(nrm[pos])
            if par == 0:
                a.I(f"s_branch {N}_{R}_epi")
        a.label(f"{N}_{R}_epi")
        st()
        svc()
        if ld and (withb2 or b2tail):
            if not LT:
                a.I(f"s_and_b32 s53, {s(sW)}, 3")
                code_touch(a, "l3_kernel", 53, 48, EE + 2, nw_log=2)
        for dt in range(4):
            for h in range(2):
                q = 2 * dt + h
                for i in range(4):
                    src = O + 16 * dt + 8 * h + 2 * i
                    a.I(f"v_mul_f32 {v(src)}, {v(src)}, {v(T0)}")
                    a.I(f"v_mul_f32 {v(src + 1)}, {v(src + 1)}, {v(T0)}")
                    a.I(f"v_cvt_pk_bf16_f32 {v(PK + 4 * q + i)}, {v(src)}, {v(src + 1)}")
                a.I(f"buffer_store_dwordx4 {v(PK + 4 * q, 4)}, {v(L16)}, s[36:39], s{46 + q // 4} offen offset:{(q % 4) * 1024}{SP}")
            if dt == 1:
                svc()
        if ld and b2tail:
            a.I(f"s_lshl_b32 s60, {s(sH)}, 2")
            a.I(f"s_add_u32 s60, s60, {s(sP)}")
            a.I("s_lshl_b32 s60, s60, 1")
            a.I(f"s_bfe_u32 s61, {s(sW)}, 0x10001")
            a.I("s_add_u32 s60, s60, s61")
            a.I(f"s_cmp_lt_u32 {s(sP)}, 4")
            a.I(f"s_cbranch_scc1 {N}_b2go")
            a.I("s_cmp_lg_u32 s60, 8")
            a.I(f"s_cbranch_scc1 {N}_{R}_tail")
            a.I("s_movk_i32 s60, 0x100")
            a.label(f"{N}_b2go")
            a.I("s_lshl_b32 s61, s61, 14")
            a.I(f"s_add_u32 s61, s61, {131072}")
            a.I(f"s_lshl_b32 s62, {s(sP)}, 2")
            a.I("s_sub_u32 s62, 28, s62")
            a.label(f"{N}_b2al")
            a.I(f"s_cmp_le_u32 {s(sBAR)}, s62")
            a.I(f"s_cbranch_scc1 {N}_b2st")
            a.I("s_waitcnt vmcnt(14)")
            a.I("s_barrier")
            a.I(f"s_sub_u32 {s(sBAR)}, {s(sBAR)}, 1")
            emit_dma()
            a.I(f"s_branch {N}_b2al")
            a.label(f"{N}_b2st")
            a.I(f"s_bitcmp1_b32 {s(sW)}, 0")
            a.I(f"s_cbranch_scc1 {N}_b2w1")
            for own in range(2):
                vmb = VM(a)
                nsv = [0]

                def svcb():
                    nsv[0] += 1
                    a.I("s_waitcnt vmcnt(14)")
                    vmb.q = vmb.q[-14:]
                    a.I("s_barrier")
                    a.I(f"s_sub_u32 {s(sBAR)}, {s(sBAR)}, 1")
                    for x in dma_list():
                        if x and x.startswith("buffer"):
                            vmb.issue(x, "dma")
                        else:
                            a.I(x or "s_nop 0")
                if own:
                    a.label(f"{N}_b2w1")
                b2_body(a, own, 60, 61, svcb, vmb, R0=16, S0=62, SR=48, slice_len=int(os.environ.get("SLICE", "90")))
                assert nsv[0] <= 12, nsv
                print("b2 svc slices", nsv[0])
                if not own:
                    a.I(f"s_branch {N}_{R}_tail")
        if ld:
            q_clear(6)
            a.I(f"s_lshl_b32 s12, {s(sP)}, 2")
            a.I("s_sub_u32 s12, 56, s12")
            a.I(f"s_add_u32 s12, s12, {s(sW)}")
            a.I("s_lshl_b32 s12, s12, 18")
            a.I(f"s_lshl_b32 s13, {s(sH)}, 13")
            a.I("s_add_u32 s12, s12, s13")
            a.I("s_add_u32 s13, s12, 4096")
            q_clear(6)
            a.I("s_mov_b32 s54, 0")
            a.label(f"{N}_{R}_tail")
            if LT:
                a.I(f"s_cmp_gt_u32 {s(sBAR)}, {LT}")
                a.I(f"s_cbranch_scc1 {N}_notouch")
                a.I("s_cmp_lg_u32 s54, 0")
                a.I(f"s_cbranch_scc1 {N}_notouch")
                a.I("s_mov_b32 s54, 1")
                a.I(f"s_and_b32 s53, {s(sW)}, 3")
                code_touch(a, "l3_kernel", 53, 48, EE + 2, nw_log=2)
                if not os.environ.get("NOWT"):
                    srd(a, 48, 4, 5, 4 * MB, add=WS_WO)
                    a.I("s_lshr_b32 s52, s2, 3")
                    a.I("s_lshl2_add_u32 s52, s52, s53")
                    a.I("s_lshr_b32 s55, s52, 4")
                    a.I("s_lshl_b32 s55, s55, 19")
                    a.I("s_and_b32 s52, s52, 15")
                    a.I("s_lshl_b32 s52, s52, 13")
                    a.I("s_add_u32 s52, s52, s55")
                    a.I("s_bfe_u32 s55, s2, 0x20001")
                    a.I("s_lshl_b32 s55, s55, 17")
                    a.I("s_add_u32 s52, s52, s55")
                    a.I(f"v_lshlrev_b32 {v(EE)}, 7, v0")
                    a.I(f"buffer_load_dword {v(EE + 1)}, {v(EE)}, s[48:51], s52 offen")
                a.label(f"{N}_notouch")
            a.I(f"s_cmp_eq_u32 {s(sBAR)}, 0")
            a.I(f"s_cbranch_scc1 {N}_{R}_done")
            a.I("s_waitcnt vmcnt(14)")
            a.I("s_barrier")
            a.I(f"s_sub_u32 {s(sBAR)}, {s(sBAR)}, 1")
            emit_dma()
            a.I(f"s_branch {N}_{R}_tail")
            a.label(f"{N}_{R}_done")
        n0 = st.n
        st.dump(sW, 4, tmpv=T0)
        st.n = n0 - 2
        a.I("s_endpgm")

    a.I(f"s_cmp_ge_u32 {s(sW)}, 4")
    a.I(f"s_cbranch_scc1 {N}_short")
    role(False)
    a.label(f"{N}_short")
    role(True)
    kend(a, N)
    return a, N, (256, 512, 163840 if (withb2 or b2tail) else 131072)


def oproj_body(a, N, st, bar_at=None):
    ACC, CR, AFR = 64, 128, 192
    DEPTH = 8
    L16, L16B, VD0, VD1, TB = 1, 2, 3, 4, 5
    a.I("s_and_b32 s10, s2, 7")
    a.I("s_lshr_b32 s11, s2, 3")
    a.I("s_and_b32 s12, s11, 3")
    a.I("s_lshl_b32 s10, s10, 2")
    a.I("s_add_u32 s17, s10, s12")
    a.I("s_lshr_b32 s18, s11, 2")
    if os.environ.get("OPX") == "same":
        a.I("s_mov_b32 s17, 0")
        a.I("s_mov_b32 s18, 0")
    if os.environ.get("OPX") == "map2":
        a.I("s_and_b32 s10, s2, 3")
        a.I("s_lshl_b32 s10, s10, 3")
        a.I("s_and_b32 s12, s11, 7")
        a.I("s_add_u32 s17, s10, s12")
        a.I("s_bfe_u32 s10, s2, 0x10002")
        a.I("s_lshl_b32 s10, s10, 2")
        a.I("s_lshr_b32 s12, s11, 3")
        a.I("s_add_u32 s18, s10, s12")
    a.I(f"v_lshlrev_b32 {v(L16)}, 4, v0")
    a.I(f"v_add_u32 {v(L16B)}, 0x40000, {v(L16)}")
    a.I("v_lshrrev_b32 v8, 3, v0")
    a.I("v_lshlrev_b32 v8, 10, v8")
    a.I("v_bfe_u32 v9, v0, 4, 1")
    a.I("v_lshlrev_b32 v10, 2, v9")
    a.I("v_and_b32 v11, 7, v0")
    a.I("v_xor_b32 v10, v10, v11")
    a.I(f"v_lshl_add_u32 {v(VD0)}, v10, 4, v8")
    a.I("s_lshl_b32 s10, s18, 7")
    a.I(f"v_add_u32 {v(VD0)}, s10, {v(VD0)}")
    a.I(f"v_add_u32 {v(VD1)}, {8192 - 1024}, {v(VD0)}")
    a.I("v_lshrrev_b32 v8, 5, v0")
    a.I("v_bfe_u32 v10, v0, 2, 2")
    a.I("v_lshl_add_u32 v8, v8, 2, v10")
    a.I(f"v_lshlrev_b32 {v(TB)}, 7, v8")
    a.I(f"v_lshl_add_u32 {v(TB)}, v9, 5, {v(TB)}")
    a.I("v_and_b32 v10, 3, v0")
    a.I(f"v_lshl_add_u32 {v(TB)}, v10, 3, {v(TB)}")
    a.I("v_bfe_u32 v10, v0, 3, 1")
    a.I(f"v_lshl_add_u32 {v(TB)}, v10, 6, {v(TB)}")
    a.I("s_lshl_b32 s19, s16, 14")
    a.I(f"v_add_u32 {v(TB)}, s19, {v(TB)}")
    a.I(f"v_xor_b32 {v(TB + 1)}, 64, {v(TB)}")
    a.I("s_lshl_b32 s40, s17, 19")
    a.I("s_lshl_b32 s10, s16, 16")
    a.I("s_add_u32 s40, s40, s10")
    a.I("s_lshl_b32 s41, s16, 20")
    ROT = int(os.environ.get("ROT", "0"))
    if ROT:
        a.I("s_and_b32 s45, s2, 7")
        a.I(f"s_mul_i32 s45, s45, {ROT}")
    a.I("s_waitcnt lgkmcnt(0)")
    srd(a, 20, 4, 5, 16 * MB, add=WS_CTX)
    srd(a, 24, 6, 7, 4 * MB)
    srd(a, 28, 8, 9, 4 * MB)
    vm, lg = VM(a), LG(a)
    st()

    def loads(g):
        sl = g % DEPTH
        a.I(f"s_add_u32 m0, s19, {sl * 2048}")
        if ROT:
            if g % 4 == 0:
                a.I(f"s_add_u32 s44, s45, {g}")
                a.I("s_and_b32 s44, s44, 63")
                a.I("s_lshl_b32 s46, s44, 14")
                a.I("s_add_u32 s46, s46, s41")
                a.I("s_lshl_b32 s44, s44, 10")
            a.I(f"s_add_u32 s42, s46, {hex((g % 4) * 16384)}")
        else:
            a.I(f"s_add_u32 s42, s41, {hex(g * 16384)}")
        vm.issue(f"buffer_load_dwordx4 {v(VD0)}, s[24:27], s42 offen lds", g)
        vm.issue(f"buffer_load_dwordx4 {v(VD1)}, s[24:27], s42 offen offset:1024 lds", g)
        if g % 4 == 0:
            a.I(f"s_add_u32 s43, s40, {'s44' if ROT else hex(g * 1024)}")
        vm.issue(f"buffer_load_dwordx4 {v(CR + 8 * sl, 4)}, {v(L16)}, s[20:23], s43 offen offset:{(g % 4) * 1024}", g)
        vm.issue(f"buffer_load_dwordx4 {v(CR + 8 * sl + 4, 4)}, {v(L16B)}, s[20:23], s43 offen offset:{(g % 4) * 1024}", g)

    def trs(g):
        sl = g % DEPTH
        vm.wait(g)
        for cb in range(2):
            d = AFR + 8 * (g & 1) + 4 * cb
            lg.issue(f"ds_read_b64_tr_b16 {v(d, 2)}, {v(TB + cb)} offset:{sl * 2048}", g)
            lg.issue(f"ds_read_b64_tr_b16 {v(d + 2, 2)}, {v(TB + cb)} offset:{sl * 2048 + 1024}", g)

    for g in range(DEPTH):
        loads(g)
    st()
    trs(0)
    st()
    for g in range(64):
        if g + 1 < 64:
            trs(g + 1)
        lg.wait(g)
        sl = g % DEPTH
        for qt in range(2):
            for cb in range(2):
                acc = v(ACC + 16 * (2 * qt + cb), 16)
                a.I(f"{MF} {acc}, {v(AFR + 8 * (g & 1) + 4 * cb, 4)}, {v(CR + 8 * sl + 4 * qt, 4)}, {'0' if g == 0 else acc}")
        if g + DEPTH < 64:
            loads(g + DEPTH)
        if g == bar_at:
            a.I("s_barrier")
    st()
    a.I(f"v_add_u32 v8, s19, {v(L16)}")
    a.I("s_nop 11")
    for tl in range(4):
        for jq in range(4):
            a.I(f"ds_write_b128 v8, {v(ACC + 16 * tl + 4 * jq, 4)} offset:{(tl * 4 + jq) * 1024}")
    a.I("v_lshrrev_b32 v9, 5, v0")
    a.I("v_and_b32 v10, 31, v0")
    a.I("v_lshlrev_b32 v10, 4, v10")
    a.I("v_lshl_add_u32 v9, v9, 13, v10")
    a.I("s_lshl_b32 s10, s16, 11")
    a.I("v_add_u32 v9, s10, v9")
    a.I("s_lshl_b32 s11, s17, 17")
    a.I("s_lshl_b32 s12, s18, 7")
    a.I("s_add_u32 s11, s11, s12")
    a.I("s_lshl_b32 s12, s16, 5")
    a.I("s_add_u32 s11, s11, s12")
    a.I("v_lshlrev_b32 v10, 11, v0")
    a.I("s_waitcnt lgkmcnt(0)")
    return ACC


def oproj_body2(a, N, st, bar_at=None):
    DEPTH = int(os.environ.get("ODEPTH", "8"))
    ACC, CR = 192 - 16 * DEPTH, 256 - 16 * DEPTH
    L16, L16B = 1, 2
    a.I("s_and_b32 s10, s2, 7")
    a.I("s_lshr_b32 s11, s2, 3")
    a.I("s_and_b32 s12, s11, 3")
    a.I("s_lshl_b32 s10, s10, 2")
    a.I("s_add_u32 s17, s10, s12")
    a.I("s_lshr_b32 s18, s11, 2")
    if os.environ.get("OPX") == "same":
        a.I("s_mov_b32 s17, 0")
        a.I("s_mov_b32 s18, 0")
    if os.environ.get("OPX") == "sameq":
        a.I("s_and_b32 s17, s17, 3")
    if os.environ.get("OPX") == "map2":
        a.I("s_and_b32 s10, s2, 3")
        a.I("s_lshl_b32 s10, s10, 3")
        a.I("s_and_b32 s12, s11, 7")
        a.I("s_add_u32 s17, s10, s12")
        a.I("s_bfe_u32 s10, s2, 0x10002")
        a.I("s_lshl_b32 s10, s10, 2")
        a.I("s_lshr_b32 s12, s11, 3")
        a.I("s_add_u32 s18, s10, s12")
    a.I(f"v_lshlrev_b32 {v(L16)}, 4, v0")
    a.I(f"v_add_u32 {v(L16B)}, 0x40000, {v(L16)}")
    a.I("s_lshl_b32 s19, s16, 14")
    a.I("s_lshl_b32 s40, s17, 19")
    a.I("s_lshl_b32 s10, s16, 16")
    a.I("s_add_u32 s40, s40, s10")
    a.I("s_lshl_b32 s41, s18, 19")
    a.I("s_lshl_b32 s10, s16, 17")
    a.I("s_add_u32 s41, s41, s10")
    a.I("s_waitcnt lgkmcnt(0)")
    srd(a, 20, 4, 5, 16 * MB, add=WS_CTX)
    srd(a, 24, 4, 5, 4 * MB, add=WS_WO)
    srd(a, 28, 8, 9, 4 * MB)
    vm = VM(a)
    st()

    def loads(g):
        sl = g % DEPTH
        L = []
        if g % 2 == 0:
            L.append(lambda: a.I(f"s_add_u32 s42, s41, {hex(g * 2048)}"))
        if g % 4 == 0:
            L.append(lambda: a.I(f"s_add_u32 s43, s40, {hex(g * 1024)}"))
        for cb in range(2):
            L.append(lambda cb=cb: vm.issue(f"buffer_load_dwordx4 {v(CR + 16 * sl + 4 * cb, 4)}, {v(L16)}, s[24:27], s42 offen "
                                            f"offset:{(g % 2) * 2048 + cb * 1024}", g))
        for qt in range(2):
            L.append(lambda qt=qt: vm.issue(f"buffer_load_dwordx4 {v(CR + 16 * sl + 8 + 4 * qt, 4)}, {v(L16 + qt)}, s[20:23], s43 offen "
                                            f"offset:{(g % 4) * 1024}", g))
        return L

    for g in range(DEPTH):
        for f in loads(g):
            f()
    st()
    st()
    for g in range(64):
        vm.wait(g)
        sl = g % DEPTH
        for qt in range(2):
            for cb in range(2):
                acc = v(ACC + 16 * (2 * qt + cb), 16)
                a.I(f"{MF} {acc}, {v(CR + 16 * sl + 4 * cb, 4)}, {v(CR + 16 * sl + 8 + 4 * qt, 4)}, {'0' if g == 0 else acc}")
        if g + DEPTH < 64:
            for f in loads(g + DEPTH):
                f()
        if g == bar_at:
            a.I("s_barrier")
    st()
    a.I(f"v_add_u32 v8, s19, {v(L16)}")
    a.I("v_lshrrev_b32 v9, 5, v0")
    a.I("v_and_b32 v10, 31, v0")
    a.I("v_lshlrev_b32 v10, 4, v10")
    a.I("v_lshl_add_u32 v9, v9, 13, v10")
    a.I("s_lshl_b32 s10, s16, 11")
    a.I("v_add_u32 v9, s10, v9")
    a.I("s_lshl_b32 s11, s17, 17")
    a.I("s_lshl_b32 s12, s18, 7")
    a.I("s_add_u32 s11, s11, s12")
    a.I("s_lshl_b32 s12, s16, 5")
    a.I("s_add_u32 s11, s11, s12")
    a.I("v_lshlrev_b32 v10, 11, v0")
    for tl in range(4):
        for jq in range(4):
            a.I(f"ds_write_b128 v8, {v(ACC + 16 * tl + 4 * jq, 4)} offset:{(tl * 4 + jq) * 1024}")
    a.I("s_waitcnt lgkmcnt(0)")
    return ACC


def oproj_body3(a, N, st, bar_at=None):
    DEPTH = 8
    ACC, FR = 64, 128
    L16, L16B, LR = 1, 2, 3
    a.I("s_and_b32 s10, s2, 7")
    a.I("s_lshr_b32 s11, s2, 3")
    a.I("s_and_b32 s12, s11, 3")
    a.I("s_lshl_b32 s10, s10, 2")
    a.I("s_add_u32 s17, s10, s12")
    a.I("s_lshr_b32 s18, s11, 2")
    a.I(f"v_lshlrev_b32 {v(L16)}, 4, v0")
    a.I(f"v_add_u32 {v(L16B)}, {0x40000 - 1024}, {v(L16)}")
    a.I("s_lshl_b32 s19, s16, 15")
    a.I(f"v_add_u32 {v(LR)}, s19, {v(L16)}")
    a.I("s_lshl_b32 s42, s18, 19")
    a.I("s_lshl_b32 s10, s16, 17")
    a.I("s_add_u32 s42, s42, s10")
    a.I("s_lshl_b32 s43, s17, 19")
    a.I("s_lshl_b32 s10, s16, 16")
    a.I("s_add_u32 s43, s43, s10")
    RB = int(os.environ.get("RB", "0"))
    if RB:
        a.I("s_lshl1_add_u32 s45, s12, s18")
        a.I("s_and_b32 s45, s45, 7")
        a.I(f"s_mul_i32 s45, s45, {RB // 8 * 1024}")
        a.I("s_mov_b32 s40, s43")
        a.I("s_mov_b32 s41, s42")
        a.I("s_add_u32 s43, s40, s45")
        a.I("s_lshl1_add_u32 s42, s45, s41")
    a.I("s_waitcnt lgkmcnt(0)")
    srd(a, 20, 4, 5, 16 * MB + 2048, add=WS_CTX - 2048)
    srd(a, 24, 4, 5, 4 * MB, add=WS_WO)
    srd(a, 28, 8, 9, 4 * MB)
    vm, lg = VM(a), LG(a)
    st()

    def loads(g):
        sl = g % DEPTH
        return [lambda: a.I(f"s_add_u32 m0, s19, {sl * 4096}"),
                lambda: a.I("s_nop 0") if g < DEPTH else None,
                lambda: vm.issue(f"buffer_load_dwordx4 {v(L16)}, s[24:27], s42 offen lds", g),
                lambda: vm.issue(f"buffer_load_dwordx4 {v(L16)}, s[24:27], s42 offen offset:1024 lds", g),
                lambda: vm.issue(f"buffer_load_dwordx4 {v(L16)}, s[20:23], s43 offen offset:2048 lds", g),
                lambda: vm.issue(f"buffer_load_dwordx4 {v(L16B)}, s[20:23], s43 offen offset:3072 lds", g),
                lambda: nxt(g), lambda: None]

    def nxt(g):
        if not RB:
            a.I("s_add_u32 s42, s42, 2048")
            a.I("s_add_u32 s43, s43, 1024")
            return
        a.I("s_add_u32 s45, s45, 1024")
        a.I(f"s_and_b32 s45, s45, {RB * 1024 - 1}")
        if (g + 1) % RB == 0:
            a.I(f"s_add_u32 s40, s40, {RB * 1024}")
            a.I(f"s_add_u32 s41, s41, {RB * 2048}")
        a.I("s_add_u32 s43, s40, s45")
        a.I("s_lshl1_add_u32 s42, s45, s41")

    def reads(g):
        vm.wait(g)
        for q in range(4):
            lg.issue(f"ds_read_b128 {v(FR + 16 * (g & 1) + 4 * q, 4)}, {v(LR)} offset:{(g % DEPTH) * 4096 + q * 1024}", g)

    for g in range(DEPTH):
        for f in loads(g):
            f()
    st()
    reads(0)
    st()
    for g in range(64):
        if g + 1 < 64:
            reads(g + 1)
        lg.wait(g)
        L = loads(g + DEPTH) if g + DEPTH < 64 else []
        fr = FR + 16 * (g & 1)
        for qt in range(2):
            for cb in range(2):
                acc = v(ACC + 16 * (2 * qt + cb), 16)
                if L:
                    L.pop(0)()
                a.I(f"{MF} {acc}, {v(fr + 4 * cb, 4)}, {v(fr + 8 + 4 * qt, 4)}, {'0' if g == 0 else acc}")
                if L:
                    L.pop(0)()
        if g == bar_at:
            a.I("s_barrier")
    st()
    a.I("v_lshrrev_b32 v9, 5, v0")
    a.I("v_and_b32 v10, 31, v0")
    a.I("v_lshlrev_b32 v10, 4, v10")
    a.I("v_lshl_add_u32 v9, v9, 13, v10")
    a.I("s_lshl_b32 s10, s16, 11")
    a.I("v_add_u32 v9, s10, v9")
    a.I("s_lshl_b32 s11, s17, 17")
    a.I("s_lshl_b32 s12, s18, 7")
    a.I("s_add_u32 s11, s11, s12")
    a.I("s_lshl_b32 s12, s16, 5")
    a.I("s_add_u32 s11, s11, s12")
    a.I("v_lshlrev_b32 v10, 11, v0")
    for tl in range(4):
        for jq in range(4):
            a.I(f"ds_write_b128 {v(LR)}, {v(ACC + 16 * tl + 4 * jq, 4)} offset:{(tl * 4 + jq) * 1024}")
    a.I("s_waitcnt lgkmcnt(0)")
    return ACC


def oproj_body4(a, N, st, bar_at=None):
    DEPTH = 4
    ACC, FR = 32, 96
    L16, L16B, LR = 1, 2, 3
    a.I("s_and_b32 s10, s2, 7")
    a.I("s_lshr_b32 s11, s2, 3")
    a.I("s_and_b32 s12, s11, 3")
    a.I("s_lshl_b32 s10, s10, 2")
    a.I("s_add_u32 s17, s10, s12")
    a.I("s_lshr_b32 s18, s11, 2")
    a.I(f"v_lshlrev_b32 {v(L16)}, 4, v0")
    a.I(f"v_add_u32 {v(L16B)}, {0x40000 - 1024}, {v(L16)}")
    a.I("s_lshl_b32 s19, s16, 14")
    a.I(f"v_add_u32 {v(LR)}, s19, {v(L16)}")
    a.I("s_lshl_b32 s42, s18, 19")
    a.I("s_lshl_b32 s10, s16, 16")
    a.I("s_add_u32 s42, s42, s10")
    a.I("s_lshl_b32 s43, s17, 19")
    a.I("s_lshl_b32 s10, s16, 15")
    a.I("s_add_u32 s43, s43, s10")
    a.I("s_waitcnt lgkmcnt(0)")
    srd(a, 20, 4, 5, 16 * MB + 2048, add=WS_CTX - 2048)
    srd(a, 24, 4, 5, 4 * MB, add=WS_WO)
    vm, lg = VM(a), LG(a)
    st()

    def loads(g):
        sl = g % DEPTH
        return [lambda: a.I(f"s_add_u32 m0, s19, {sl * 4096}"),
                lambda: a.I("s_nop 0") if g < DEPTH else None,
                lambda: vm.issue(f"buffer_load_dwordx4 {v(L16)}, s[24:27], s42 offen lds", g),
                lambda: vm.issue(f"buffer_load_dwordx4 {v(L16)}, s[24:27], s42 offen offset:1024 lds", g),
                lambda: vm.issue(f"buffer_load_dwordx4 {v(L16)}, s[20:23], s43 offen offset:2048 lds", g),
                lambda: vm.issue(f"buffer_load_dwordx4 {v(L16B)}, s[20:23], s43 offen offset:3072 lds", g),
                lambda: a.I("s_add_u32 s42, s42, 2048"),
                lambda: a.I("s_add_u32 s43, s43, 1024")]

    def reads(g):
        vm.wait(g)
        for q in range(4):
            lg.issue(f"ds_read_b128 {v(FR + 16 * (g & 1) + 4 * q, 4)}, {v(LR)} offset:{(g % DEPTH) * 4096 + q * 1024}", g)

    for g in range(DEPTH):
        for f in loads(g):
            f()
    srd(a, 28, 8, 9, 4 * MB)
    a.I("v_lshrrev_b32 v9, 5, v0")
    a.I("v_and_b32 v10, 31, v0")
    a.I("v_lshlrev_b32 v10, 4, v10")
    a.I("v_lshl_add_u32 v9, v9, 13, v10")
    a.I("s_lshl_b32 s10, s16, 10")
    a.I("v_add_u32 v9, s10, v9")
    a.I("v_add_u32 v11, 0x10000, v9")
    a.I("s_lshl_b32 s11, s17, 17")
    a.I("s_lshl_b32 s12, s18, 7")
    a.I("s_add_u32 s11, s11, s12")
    a.I("s_lshl_b32 s12, s16, 4")
    a.I("s_add_u32 s11, s11, s12")
    a.I("v_lshlrev_b32 v10, 11, v0")
    st()
    reads(0)
    st()
    NG = 32
    for g in range(NG):
        if g + 1 < NG:
            reads(g + 1)
        lg.wait(g)
        L = loads(g + DEPTH) if g + DEPTH < NG else []
        fr = FR + 16 * (g & 1)
        for qt in range(2):
            for cb in range(2):
                acc = v(ACC + 16 * (2 * qt + cb), 16)
                if L:
                    L.pop(0)()
                a.I(f"{MF} {acc}, {v(fr + 4 * cb, 4)}, {v(fr + 8 + 4 * qt, 4)}, {'0' if g == 0 else acc}")
                if L:
                    L.pop(0)()
        if g == bar_at:
            a.I("s_barrier")
    st()
    a.I("s_nop 8")
    for tl in range(4):
        for jq in range(4):
            a.I(f"ds_write_b128 {v(LR)}, {v(ACC + 16 * tl + 4 * jq, 4)} offset:{(tl * 4 + jq) * 1024}")
    a.I("s_waitcnt lgkmcnt(0)")
    a.I("s_barrier")
    for pw in range(8):
        for hl in range(2):
            a.I(f"ds_read_b128 {v(ACC + 8 * pw + 4 * hl, 4)}, {v(9 if pw < 4 else 11)} offset:{(pw % 4) * 16384 + hl * 512}")
        if pw == 6:
            a.I("s_waitcnt lgkmcnt(6)")
    for j in range(8):
        a.I(f"v_add_f32 {v(ACC + j)}, {v(ACC + j)}, {v(ACC + 8 + j)}")
        a.I(f"v_add_f32 {v(ACC + 16 + j)}, {v(ACC + 16 + j)}, {v(ACC + 24 + j)}")
    a.I("s_waitcnt lgkmcnt(0)")
    for j in range(8):
        a.I(f"v_add_f32 {v(ACC + 32 + j)}, {v(ACC + 32 + j)}, {v(ACC + 40 + j)}")
        a.I(f"v_add_f32 {v(ACC + 48 + j)}, {v(ACC + 48 + j)}, {v(ACC + 56 + j)}")
    for j in range(8):
        a.I(f"v_add_f32 {v(ACC + j)}, {v(ACC + j)}, {v(ACC + 16 + j)}")
        a.I(f"v_add_f32 {v(ACC + 32 + j)}, {v(ACC + 32 + j)}, {v(ACC + 48 + j)}")
    for j in range(8):
        a.I(f"v_add_f32 {v(ACC + j)}, {v(ACC + j)}, {v(ACC + 32 + j)}")
    for i in range(4):
        a.I(f"v_cvt_pk_bf16_f32 {v(12 + i)}, {v(ACC + 2 * i)}, {v(ACC + 2 * i + 1)}")
    a.I("buffer_store_dwordx4 v[12:15], v10, s[28:31], s11 offen")


def oproj_finish(a, ACC, PW=16384):
    for pw in range(4):
        for i in range(4):
            jq, hl = divmod(i, 2)
            if pw == 2 and i == 0 and PW > 16384:
                a.I("v_add_u32 v9, 0x10000, v9")
            a.I(f"ds_read_b128 {v(ACC + 16 * pw + 4 * i, 4)}, v9 offset:{(pw * PW) % 65536 + jq * 1024 + hl * 512}")
        if pw == 1:
            a.I("s_waitcnt lgkmcnt(0)")
            for j in range(16):
                a.I(f"v_add_f32 {v(ACC + j)}, {v(ACC + j)}, {v(ACC + 16 + j)}")
    a.I("s_waitcnt lgkmcnt(0)")
    for j in range(16):
        a.I(f"v_add_f32 {v(ACC + 32 + j)}, {v(ACC + 32 + j)}, {v(ACC + 48 + j)}")
    for j in range(16):
        a.I(f"v_add_f32 {v(ACC + j)}, {v(ACC + j)}, {v(ACC + 32 + j)}")
    for i in range(8):
        a.I(f"v_cvt_pk_bf16_f32 {v(12 + i)}, {v(ACC + 2 * i)}, {v(ACC + 2 * i + 1)}")
    a.I("buffer_store_dwordx4 v[12:15], v10, s[28:31], s11 offen")
    a.I("buffer_store_dwordx4 v[16:19], v10, s[28:31], s11 offen offset:16")


def gen_oproj():
    a = Asm()
    N = "oproj_kernel"
    kstart(a, N, 256)
    a.I("s_load_dwordx2 s[4:5], s[0:1], 88")
    a.I("s_load_dwordx2 s[6:7], s[0:1], 40")
    a.I("s_load_dwordx2 s[8:9], s[0:1], 72")
    a.I("v_lshrrev_b32 v1, 6, v0")
    a.I("v_and_b32 v0, 63, v0")
    a.I("s_nop 0")
    a.I("v_readfirstlane_b32 s16, v1")
    a.I("s_nop 0")
    st = Stamper(a, "oproj")
    ACC = oproj_body(a, N, st)
    a.I("s_barrier")
    oproj_finish(a, ACC)
    st.dump(16, 4, tmpv=8)
    kend(a, N)
    return a, N, (256, 256, 65536)


def PERMC(j):
    return 8 * (j >> 2) + (j & 3)


def gen_mat(a, dst, nf, base, consts, tmp):
    n = len(consts)
    for i in range(0, n, 4):
        for q in range(4):
            a.I(f"v_fmamk_f32 {v(tmp + q)}, {v(nf)}, {f32(float(consts[i + q]))}, {v(base)}")
        for q in range(4):
            a.I(f"v_cos_f32 {v(tmp + q)}, {v(tmp + q)}")
        a.I("s_nop 0")
        for q in range(2):
            a.I(f"v_cvt_pk_bf16_f32 {v(dst + i // 2 + q)}, {v(tmp + 2 * q)}, {v(tmp + 2 * q + 1)}")


def twiddle(a, Dr, Di, regs, nf, base, consts, sign, tmp):
    for x, c in enumerate(consts):
        A, C, S_, U = tmp, tmp + 1, tmp + 2, tmp + 3
        a.I(f"v_fmamk_f32 {v(A)}, {v(nf)}, {f32(float(c))}, {v(base)}")
        a.I(f"v_cos_f32 {v(C)}, {v(A)}")
        a.I(f"v_sin_f32 {v(S_)}, {v(A)}")
        a.I("s_nop 0")
        for j in regs[x]:
            ng = "-" if sign > 0 else ""
            ps = "" if sign > 0 else "-"
            a.I(f"v_mul_f32 {v(U)}, {v(Dr + j)}, {v(S_)}")
            a.I(f"v_mul_f32 {v(Dr + j)}, {v(Dr + j)}, {v(C)}")
            a.I(f"v_fma_f32 {v(Dr + j)}, {ng}{v(Di + j)}, {v(S_)}, {v(Dr + j)}")
            a.I(f"v_fma_f32 {v(Di + j)}, {v(Di + j)}, {v(C)}, {ps}{v(U)}")


def trig(a, j, C, S_, nf, base, c, tmp, scale=None):
    L = [f"v_fmamk_f32 {v(tmp)}, {v(nf)}, {f32(float(c))}, {v(base)}",
         f"v_cos_f32 {v(C)}, {v(tmp)}", f"v_sin_f32 {v(S_)}, {v(tmp)}"]
    return L


def cmul(a, Dr, Di, C, S_, sign, U):
    ng = "-" if sign > 0 else ""
    ps = "" if sign > 0 else "-"
    a.I(f"v_mul_f32 {v(U)}, {v(Dr)}, {v(S_)}")
    a.I(f"v_mul_f32 {v(Dr)}, {v(Dr)}, {v(C)}")
    a.I(f"v_fma_f32 {v(Dr)}, {ng}{v(Di)}, {v(S_)}, {v(Dr)}")
    a.I(f"v_fma_f32 {v(Di)}, {v(Di)}, {v(C)}, {ps}{v(U)}")


def pack(a, dst, src, n):
    for i in range(n):
        a.I(f"v_cvt_pk_bf16_f32 {v(dst + i)}, {v(src + 2 * i)}, {v(src + 2 * i + 1)}")


def b_decode(a):
    a.I("s_and_b32 s20, s2, 7")
    a.I("s_lshl_b32 s20, s20, 3")
    a.I("s_bfe_u32 s22, s2, 0x30003")
    a.I("s_or_b32 s20, s20, s22")
    a.I("s_lshr_b32 s21, s2, 6")


def gen_b1():
    a = Asm()
    N = "b1_kernel"
    kstart(a, N, 256)
    a.I("s_load_dwordx2 s[4:5], s[0:1], 88")
    a.I("s_load_dwordx4 s[8:11], s[0:1], 48")
    a.I("s_load_dwordx2 s[12:13], s[0:1], 64")
    a.I("v_lshrrev_b32 v1, 6, v0")
    a.I("v_and_b32 v2, 255, v0")
    a.I("v_and_b32 v0, 63, v0")
    a.I("v_readfirstlane_b32 s16, v1")
    b_decode(a)
    a.I("s_lshr_b32 s23, s21, 1")
    a.I("s_lshl_b32 s23, s23, 11")
    a.I("s_lshr_b32 s24, s20, 5")
    a.I("s_lshl_b32 s24, s24, 10")
    a.I("s_add_u32 s23, s23, s24")
    a.I("s_and_b32 s24, s20, 31")
    a.I("s_lshl_b32 s24, s24, 4")
    a.I("s_add_u32 s23, s23, s24")
    a.I("s_and_b32 s24, s21, 1")
    a.I("s_lshl_b32 s24, s24, 9")
    a.I("s_add_u32 s23, s23, s24")
    a.I("s_add_u32 s24, s23, 4096")
    a.I("v_lshlrev_b32 v3, 13, v2")
    a.I("s_cmp_ge_u32 s16, 4")
    a.I("s_waitcnt lgkmcnt(0)")
    a.I(f"s_cbranch_scc1 {N}_filt")
    srd(a, 28, 8, 9, 2 * MB)
    srd(a, 32, 4, 5, 257 * 8192, add=WS_Y)
    a.I("s_lshr_b32 s25, s21, 1")
    a.I("s_lshl_b32 s25, s25, 4")
    a.I("s_and_b32 s26, s21, 1")
    a.I("s_lshl_b32 s26, s26, 2")
    a.I("s_add_u32 s25, s25, s26")
    a.I("s_lshr_b32 s26, s16, 1")
    a.I("s_lshl_b32 s26, s26, 3")
    a.I("s_add_u32 s25, s25, s26")
    a.I("s_and_b32 s26, s16, 1")
    a.I("s_lshl_b32 s26, s26, 1")
    a.I("s_add_u32 s25, s25, s26")
    a.I("s_lshl_b32 s25, s25, 6")
    a.I("s_add_u32 s25, s25, s20")
    a.I("s_lshl_b32 s25, s25, 10")
    a.I(f"s_add_u32 s26, s25, {65536 - 1024}")
    a.I("s_lshl_b32 s27, s16, 11")
    a.I("s_mov_b32 m0, s27")
    a.I("v_lshlrev_b32 v4, 4, v0")
    a.I("buffer_load_dwordx4 v4, s[28:31], s25 offen lds")
    a.I("buffer_load_dwordx4 v4, s[28:31], s26 offen offset:1024 lds")
    HL, NF, BS, TM = 5, 6, 7, 8
    C32, NS32, AR, AI, XF, D1R, D1I, TR, TI, D2 = 16, 24, 32, 36, 40, 48, 64, 80, 88, 96
    a.I(f"v_lshrrev_b32 {v(HL)}, 5, v0")
    a.I(f"v_cvt_f32_u32 {v(HL)}, {v(HL)}")
    a.I("v_and_b32 v12, 31, v0")
    a.I("v_cvt_f32_u32 v12, v12")
    a.I(f"v_mul_f32 {v(NF)}, {f32(1 / 32)}, v12")
    a.I(f"v_mul_f32 {v(BS)}, {v(NF)}, {v(HL)}")
    a.I(f"v_mul_f32 {v(BS)}, {f32(8.0)}, {v(BS)}")
    nat = [16 * t + j for t in range(2) for j in range(8)]
    gen_mat(a, C32, NF, BS, nat, TM)
    a.I(f"v_add_f32 {v(BS)}, {f32(0.25)}, {v(BS)}")
    gen_mat(a, NS32, NF, BS, nat, TM)
    a.I("v_and_b32 v13, 15, v0")
    a.I("v_cvt_f32_u32 v13, v13")
    a.I(f"v_mul_f32 {v(NF)}, {f32(1 / 16)}, v13")
    a.I("v_bfe_u32 v13, v0, 4, 1")
    a.I("v_cvt_f32_u32 v13, v13")
    a.I(f"v_mul_f32 {v(BS)}, {v(NF)}, {v(HL)}")
    a.I(f"v_mul_f32 {v(BS)}, 4.0, {v(BS)}")
    a.I(f"v_fmamk_f32 {v(BS)}, v13, {f32(0.25)}, {v(BS)}")
    pc = [PERMC(j) for j in range(8)]
    gen_mat(a, AR, NF, BS, pc, TM)
    a.I(f"v_add_f32 {v(BS)}, {f32(-0.25)}, {v(BS)}")
    gen_mat(a, AI, NF, BS, pc, TM)
    a.I("v_bfe_u32 v13, v0, 4, 1")
    a.I("v_lshlrev_b32 v13, 10, v13")
    a.I("v_lshrrev_b32 v14, 5, v0")
    a.I("v_lshl_add_u32 v13, v14, 8, v13")
    a.I("v_and_b32 v15, 15, v0")
    a.I("v_lshl_add_u32 v13, v15, 3, v13")
    a.I("v_add_u32 v13, s27, v13")
    a.I("s_waitcnt vmcnt(0)")
    for t in range(2):
        for h in range(2):
            a.I(f"ds_read_b64_tr_b16 {v(XF + 4 * t + 2 * h, 2)}, v13 offset:{t * 512 + h * 128}")
    a.I(f"v_mul_f32 {v(NF)}, {f32(1 / 512)}, v12")
    a.I(f"v_mul_f32 {v(BS)}, {v(NF)}, {v(HL)}")
    a.I(f"v_mul_f32 {v(BS)}, 4.0, {v(BS)}")
    a.I("s_waitcnt lgkmcnt(0)")
    for t in range(2):
        a.I(f"{MF} {v(D1R, 16)}, {v(XF + 4 * t, 4)}, {v(C32 + 4 * t, 4)}, {'0' if t == 0 else v(D1R, 16)}")
    for t in range(2):
        a.I(f"{MF} {v(D1I, 16)}, {v(XF + 4 * t, 4)}, {v(NS32 + 4 * t, 4)}, {'0' if t == 0 else v(D1I, 16)}")
    a.I("v_and_b32 v15, 31, v0")
    a.I("v_lshlrev_b32 v15, 4, v15")
    a.I("v_lshl_add_u32 v15, v14, 11, v15")
    a.I("s_lshl_b32 s25, s16, 2")
    a.I("s_add_u32 s25, s25, 8192")
    a.I("v_add_u32 v15, s25, v15")
    a.I("s_nop 7")
    twiddle(a, D1R, D1I, [[j, j + 8] for j in range(8)], NF, BS, pc, -1, TM)
    pack(a, TR, D1R, 8)
    pack(a, TI, D1I, 8)
    a.I("s_nop 1")
    for r in range(2):
        a.I(f"{MF} {v(D2 + 16 * r, 16)}, {v(AR, 4)}, {v(TR + 4 * r, 4)}, 0")
        a.I(f"{MF} {v(D2 + 16 * r, 16)}, {v(AI, 4)}, {v(TI + 4 * r, 4)}, {v(D2 + 16 * r, 16)}")
    a.I("s_nop 11")
    for c in range(2):
        for j in range(5):
            a.I(f"v_cvt_pk_bf16_f32 {v(TR + 5 * c + j)}, {v(D2 + 8 * c + j)}, {v(D2 + 16 + 8 * c + j)}")
    for c in range(2):
        for j in range(4):
            a.I(f"ds_write_b32 v15, {v(TR + 5 * c + j)} offset:{(c * 8 + j) * 512}")
    a.I("v_cmp_eq_u32 vcc, 0, v0")
    a.I("s_and_saveexec_b64 s[36:37], vcc")
    for c in range(2):
        a.I(f"ds_write_b32 v15, {v(TR + 5 * c + 4)} offset:{8192 + 16 * c}")
    a.I("s_mov_b64 exec, s[36:37]")
    a.I("v_lshlrev_b32 v14, 4, v2")
    a.I("s_waitcnt lgkmcnt(0)")
    a.I("s_barrier")
    a.I("ds_read_b128 v[16:19], v14 offset:8192")
    a.I(f"ds_read_b128 v[20:23], v14 offset:{8192 + 4096}")
    a.I(f"ds_read_b128 v[24:27], v14 offset:{8192 + 8192}")
    a.I("v_lshlrev_b32 v13, 12, v2")
    a.I(f"v_add_u32 v13, {256 * 8192}, v13")
    a.I("s_waitcnt lgkmcnt(0)")
    a.I("buffer_store_dwordx4 v[16:19], v3, s[32:35], s23 offen")
    a.I("buffer_store_dwordx4 v[20:23], v3, s[32:35], s24 offen")
    a.I("v_cmp_gt_u32 vcc, 2, v2")
    a.I("s_and_saveexec_b64 s[36:37], vcc")
    a.I(f"s_cbranch_execz {N}_end")
    a.I("buffer_store_dwordx4 v[24:27], v13, s[32:35], s23 offen")
    a.I("s_endpgm")
    a.label(f"{N}_filt")
    srd(a, 28, 10, 11, 2048 * 514)
    srd(a, 32, 12, 13, 2048 * 514)
    srd(a, 36, 4, 5, 257 * 8192, add=WS_WF)
    a.I("s_lshr_b32 s25, s21, 1")
    a.I("s_lshl_b32 s25, s25, 5")
    a.I("s_lshr_b32 s26, s20, 5")
    a.I("s_lshl_b32 s26, s26, 4")
    a.I("s_add_u32 s25, s25, s26")
    a.I("s_and_b32 s26, s21, 1")
    a.I("s_lshl_b32 s26, s26, 2")
    a.I("s_add_u32 s25, s25, s26")
    a.I("s_lshl_b32 s25, s25, 5")
    a.I("s_and_b32 s26, s20, 31")
    a.I("s_add_u32 s25, s25, s26")
    a.I("s_mul_i32 s25, s25, 514")
    for j in range(8):
        a.I(f"s_add_u32 s{40 + j}, s25, {PERMC(j) * 32 * 514}")
    a.I("v_lshlrev_b32 v4, 1, v2")
    a.I("v_mov_b32 v5, 512")
    for q, va in enumerate((4, 5)):
        for c in range(2):
            for j in range(8):
                a.I(f"buffer_load_ushort {v(32 + 16 * q + 8 * c + j)}, {v(va)}, s[{28 + 4 * c}:{31 + 4 * c}], s{40 + j} offen")
    a.I(f"v_mov_b32 v6, {256 * 8192}")
    a.I("s_waitcnt vmcnt(16)")
    for i in range(8):
        a.I(f"v_lshl_or_b32 {v(16 + i)}, {v(33 + 2 * i)}, 16, {v(32 + 2 * i)}")
    a.I("buffer_store_dwordx4 v[16:19], v3, s[36:39], s23 offen")
    a.I("buffer_store_dwordx4 v[20:23], v3, s[36:39], s24 offen")
    a.I("v_cmp_eq_u32 vcc, 0, v2")
    a.I("s_and_saveexec_b64 s[48:49], vcc")
    a.I(f"s_cbranch_execz {N}_end")
    a.I("s_waitcnt vmcnt(2)")
    for i in range(8):
        a.I(f"v_lshl_or_b32 {v(24 + i)}, {v(49 + 2 * i)}, 16, {v(48 + 2 * i)}")
    a.I("buffer_store_dwordx4 v[24:27], v6, s[36:39], s23 offen")
    a.I("buffer_store_dwordx4 v[28:31], v6, s[36:39], s24 offen")
    kend(a, N)
    return a, N, (256, 512, 20480)


def b2_loads(a, vm, col_s, own_s, L16, YR, WR, S0, SR):
    sY, sW = S0, S0 + 2
    a.I(f"s_lshl_b32 {s(sY)}, {s(col_s)}, 13")
    a.I(f"s_lshl_b32 {s(own_s)}, {s(own_s)}, 10")
    a.I(f"s_add_u32 {s(sY)}, {s(sY)}, {s(own_s)}")
    a.I(f"s_add_u32 {s(sY + 1)}, {s(sY)}, 4096")
    a.I(f"s_add_u32 {s(sW)}, {s(sY)}, {s(own_s)}")
    a.I(f"s_add_u32 {s(sW + 1)}, {s(sW)}, 4096")
    srd(a, SR, 4, 5, 257 * 8192, add=WS_Y)
    for c in range(2):
        for t in range(2):
            vm.issue(f"buffer_load_dwordx4 {v(YR + 8 * c + 4 * t, 4)}, {v(L16)}, {s(SR, 4)}, {s(sY + c)} offen offset:{t * 2048}", "Y")
    srd(a, SR + 4, 4, 5, 257 * 8192, add=WS_WF)
    for c in range(2):
        for h in range(2):
            vm.issue(f"buffer_load_dwordx4 {v(WR + 8 * c + 4 * h, 4)}, {v(L16)}, {s(SR + 4, 4)}, {s(sW + c)} offen offset:{h * 1024}", "WF")


def b2_body(a, own, col_s, lds_s, svc, vm, R0=0, S0=20, SR=28, slice_len=110, rmap=None, after_loads=None, st=lambda: None, preloaded=False, compact_ex=False, newer=8, zpol=''):
    L16, HL, NF, BS, LF, XA, XB, TM, LB = [R0 + x for x in (1, 2, 3, 4, 5, 6, 7, 8, 12)]
    YR, YI, WR, WI = [R0 + x for x in (16, 24, 32, 40)]
    C32, S32, NS32, C64, S64 = [R0 + x for x in (48, 56, 64, 72, 88)]
    DR, DI = R0 + 104, R0 + 120
    FR, FI, FN = R0 + 136, R0 + 152, R0 + 168
    XT = 240
    if rmap:
        L16, HL, NF, BS, LF, XA, XB, TM, LB, YR, YI, WR, WI, C32, S32, NS32, C64, S64, DR, DI, FR, FI, FN = rmap
    sY, sW, sSC, sT = S0, S0 + 2, S0 + 4, S0 + 5
    I0 = a.I
    cnt = [0]

    def I(text):
        r = I0(text)
        cnt[0] += 1
        if cnt[0] >= slice_len and (text.startswith("v_cvt_pk") or text.startswith("v_fma_f32") or text.startswith("v_sin")):
            dosvc()
        return r

    def dosvc():
        a.I = I0
        svc()
        a.I = I
        cnt[0] = 0

    a.I(f"v_lshlrev_b32 {v(L16)}, 4, v0")
    if preloaded:
        vm.q += ["Y"] * 4 + ["WF"] * 4 + ["Q"] * newer
    else:
        a.I(f"s_mov_b32 {s(sT)}, {own}")
        b2_loads(a, vm, col_s, sT, L16, YR, WR, S0, SR)
    srd(a, SR + 8, 4, 5, 257 * 8192, add=WS_Z)
    a.I = I
    a.I(f"s_mov_b32 {s(sSC)}, {f32(2.0 ** -19)}")
    a.I(f"s_and_b32 {s(sT)}, {s(col_s)}, 255")
    a.I(f"s_cmp_eq_u32 {s(sT)}, 0")
    a.I(f"s_cselect_b32 {s(sSC)}, {f32(2.0 ** -20)}, {s(sSC)}")
    a.I(f"v_lshrrev_b32 {v(HL)}, 5, v0")
    a.I(f"v_cvt_f32_u32 {v(HL)}, {v(HL)}")
    a.I(f"v_mul_f32 {v(HL)}, 4.0, {v(HL)}")
    a.I(f"v_and_b32 {v(LF)}, 31, v0")
    a.I(f"v_cvt_f32_u32 {v(LF)}, {v(LF)}")
    a.I(f"v_add_f32 {v(LB)}, {f32(32.0 * own)}, {v(LF)}")
    pc = lambda n: [16 * t + PERMC(j) for t in range(n) for j in range(8)]
    a.I(f"v_mul_f32 {v(NF)}, {f32(1 / 32)}, {v(LF)}")
    a.I(f"v_mul_f32 {v(BS)}, {v(NF)}, {v(HL)}")
    gen_mat(a, C32, NF, BS, pc(2), TM)
    a.I(f"v_add_f32 {v(BS)}, {f32(-0.25)}, {v(BS)}")
    gen_mat(a, S32, NF, BS, pc(2), TM)
    for i in range(8):
        a.I(f"v_xor_b32 {v(NS32 + i)}, 0x80008000, {v(S32 + i)}")
    a.I(f"v_mul_f32 {v(NF)}, {f32(1 / 64)}, {v(LB)}")
    a.I(f"v_mul_f32 {v(BS)}, {v(NF)}, {v(HL)}")
    gen_mat(a, C64, NF, BS, pc(4), TM)
    a.I(f"v_add_f32 {v(BS)}, {f32(-0.25)}, {v(BS)}")
    gen_mat(a, S64, NF, BS, pc(4), TM)
    a.I(f"v_add_u32 {v(XA)}, {s(lds_s)}, {v(L16)}")
    a.I(f"v_add_u32 {v(XB)}, {(1 - own) * 4096}, {v(XA)}")
    a.I(f"v_add_u32 {v(XA)}, {own * 4096}, {v(XA)}")

    def mm(D, terms, fill=None, per=3):
        first = True
        for A_, B_ in terms:
            a.I(f"{MF} {v(D, 16)}, {v(A_, 4)}, {v(B_, 4)}, {'0' if first else v(D, 16)}")
            first = False
            if fill:
                for x in fill[:per]:
                    a.I(x)
                del fill[:per]

    def exchange(neg_of, ldsoff):
        nonlocal XA, XB
        if compact_ex and ldsoff:
            XA, XB, ldsoff = XB, XA, 0
        for c, F in enumerate((FR, FI)):
            for h in range(2):
                a.I(f"ds_write_b128 {v(XA)}, {v(F + 8 * own + 4 * h, 4)} offset:{ldsoff + (2 * c + h) * 1024}")
        a.I("s_waitcnt lgkmcnt(0)")
        dosvc()
        for c, F in enumerate((FR, FI)):
            for h in range(2):
                a.I(f"ds_read_b128 {v(F + 8 * (1 - own) + 4 * h, 4)}, {v(XB)} offset:{ldsoff + (2 * c + h) * 1024}")
        for i in range(8):
            a.I(f"v_xor_b32 {v(FN + 8 * own + i)}, 0x80008000, {v(neg_of + 8 * own + i)}")
        a.I("s_waitcnt lgkmcnt(0)")
        for i in range(8):
            a.I(f"v_xor_b32 {v(FN + 8 * (1 - own) + i)}, 0x80008000, {v(neg_of + 8 * (1 - own) + i)}")
        a.I("s_nop 1")

    jc = [(j & 3) + 8 * (j >> 2) for j in range(16)]
    o = 8 * (1 - own)
    T1C = [FN + j for j in range(16)]
    T1S = [FR + o + j for j in range(8)] + [FI + o + j for j in range(8)]
    a.I(f"v_mul_f32 {v(NF)}, {f32(1 / 2048)}, {v(LF)}")
    a.I(f"v_add_f32 {v(BS)}, {f32(32.0 * own)}, {v(HL)}")
    a.I(f"v_mul_f32 {v(BS)}, {v(NF)}, {v(BS)}")
    for j in range(16):
        a.many(trig(a, j, T1C[j], T1S[j], NF, BS, jc[j], TM + (j & 1)))
    a.I(f"v_mul_f32 {v(NF)}, {f32(1 / 2048)}, {v(LB)}")
    a.I(f"v_mul_f32 {v(BS)}, {v(NF)}, {v(HL)}")
    st()
    vm.wait("Y")
    st()
    mm(DR, [(YR, C32), (YR + 4, C32 + 4), (YI, S32), (YI + 4, S32 + 4)])
    mm(DI, [(YI, C32), (YI + 4, C32 + 4), (YR, NS32), (YR + 4, NS32 + 4)])
    a.I("s_nop 11")
    for j in range(16):
        cmul(a, DR + j, DI + j, T1C[j], T1S[j], -1, TM)
    pack(a, FR + 8 * own, DR, 8)
    pack(a, FI + 8 * own, DI, 8)
    exchange(FR, 0)
    st()
    if after_loads:
        after_loads()
    T2C = [YR + j for j in range(8)] + [YI + j for j in range(8)]
    fill = []
    for j in range(16):
        fill += trig(a, j, T2C[j], XT + j, NF, BS, jc[j], TM + (j & 1))
    mm(DR, [(C64 + 4 * t, FR + 4 * t) for t in range(4)] + [(S64 + 4 * t, FI + 4 * t) for t in range(4)], fill)
    mm(DI, [(C64 + 4 * t, FI + 4 * t) for t in range(4)] + [(S64 + 4 * t, FN + 4 * t) for t in range(4)], fill)
    assert not fill
    vm.wait("WF")
    for j in range(12):
        a.I(f"v_mul_f32 {v(T2C[j])}, {s(sSC)}, {v(T2C[j])}")
    for j in range(16):
        wr, wi, u = TM, TM + 1, TM + 2
        if j & 1:
            a.I(f"v_and_b32 {v(wr)}, 0xffff0000, {v(WR + j // 2)}")
            a.I(f"v_and_b32 {v(wi)}, 0xffff0000, {v(WI + j // 2)}")
        else:
            a.I(f"v_lshlrev_b32 {v(wr)}, 16, {v(WR + j // 2)}")
            a.I(f"v_lshlrev_b32 {v(wi)}, 16, {v(WI + j // 2)}")
        cmul(a, DR + j, DI + j, wr, wi, +1, u)
    pack(a, FR + 8 * own, DR, 8)
    pack(a, FI + 8 * own, DI, 8)
    exchange(FI, 8192)
    st()
    fill = [f"v_mul_f32 {v(T2C[j])}, {s(sSC)}, {v(T2C[j])}" for j in range(12, 16)]
    fill += [f"v_mul_f32 {v(XT + j)}, {s(sSC)}, {v(XT + j)}" for j in range(16)]
    mm(DR, [(FR + 4 * t, C64 + 4 * t) for t in range(4)] + [(FN + 4 * t, S64 + 4 * t) for t in range(4)], fill)
    mm(DI, [(FI + 4 * t, C64 + 4 * t) for t in range(4)] + [(FR + 4 * t, S64 + 4 * t) for t in range(4)], fill)
    a.I("s_nop 11")
    for j in range(16):
        cmul(a, DR + j, DI + j, T2C[j], XT + j, +1, TM)
    pack(a, FR, DR, 8)
    pack(a, FI, DI, 8)
    a.I("s_nop 1")
    mm(DR, [(C32, FR), (C32 + 4, FR + 4), (NS32, FI), (NS32 + 4, FI + 4)])
    mm(DI, [(C32, FI), (C32 + 4, FI + 4), (S32, FR), (S32 + 4, FR + 4)])
    a.I = I0
    a.I("s_nop 7")
    pack(a, YR, DR, 8)
    a.I("s_nop 3")
    pack(a, YI, DI, 8)
    for c in range(2):
        for h in range(2):
            vm.issue(f"buffer_store_dwordx4 {v(YR + 8 * c + 4 * h, 4)}, {v(L16)}, {s(SR + 8, 4)}, {s(sW + c)} offen offset:{h * 1024}{zpol}", "Z")


def gen_b2():
    a = Asm()
    N = "b2_kernel"
    kstart(a, N, 257)
    a.I("s_load_dwordx2 s[4:5], s[0:1], 88")
    a.I("v_lshrrev_b32 v1, 6, v0")
    a.I("v_and_b32 v0, 63, v0")
    a.I("s_mov_b32 s17, 0")
    a.I("v_readfirstlane_b32 s16, v1")
    a.I("s_waitcnt lgkmcnt(0)")
    a.I("s_cmp_eq_u32 s16, 1")
    a.I(f"s_cbranch_scc1 {N}_w1")
    b2_body(a, 0, 2, 17, lambda: a.I("s_barrier"), VM(a), slice_len=10 ** 9)
    a.I("s_endpgm")
    a.label(f"{N}_w1")
    b2_body(a, 1, 2, 17, lambda: a.I("s_barrier"), VM(a), slice_len=10 ** 9)
    kend(a, N)
    return a, N, (257, 128, 16384)


def b3_loads(a, outp=6, pol='', before=None):
    b_decode(a)
    a.I("s_lshr_b32 s23, s20, 5")
    a.I("s_lshl_b32 s23, s23, 11")
    a.I("s_lshl_b32 s24, s21, 9")
    a.I("s_add_u32 s23, s23, s24")
    a.I("s_and_b32 s24, s20, 31")
    a.I("s_lshl_b32 s24, s24, 4")
    a.I("s_add_u32 s23, s23, s24")
    a.I("s_add_u32 s24, s23, 4096")
    a.I("v_lshlrev_b32 v3, 13, v2")
    a.I(f"v_mov_b32 v4, {256 * 8192}")
    a.I("s_waitcnt lgkmcnt(0)")
    srd(a, 28, 4, 5, 257 * 8192, add=WS_Z)
    srd(a, 32, outp, outp + 1, 4 * MB)
    if before:
        before()
    a.I(f"buffer_load_dwordx4 v[16:19], v3, s[28:31], s23 offen{pol}")
    a.I(f"buffer_load_dwordx4 v[20:23], v3, s[28:31], s24 offen{pol}")
    a.I(f"buffer_load_dwordx4 v[24:27], v4, s[28:31], s23 offen{pol}")


def b3_body(a, LB=0, outp=6, nafter=0, loaded=False, mid=None, part=0, bar=None, rm=None, tw=None):
    if not loaded:
        b3_loads(a, outp)
    n0 = len(a.items)
    HL, NF, BS, AFL, TM = 5, 6, 7, 12, 8
    C32, NS32, BRE, BIM, MT, ZF, UR, UI, TR, TI = rm or (32, 40, 48, 56, 64, 68, 76, 92, 108, 116)
    a.I(f"v_lshrrev_b32 {v(HL)}, 5, v0")
    a.I(f"v_cvt_f32_u32 {v(HL)}, {v(HL)}")
    a.I("v_and_b32 v13, 31, v0")
    a.I("v_cvt_f32_u32 v13, v13")
    a.I(f"v_mul_f32 {v(NF)}, {f32(1 / 32)}, v13")
    a.I(f"v_mul_f32 {v(BS)}, {v(NF)}, {v(HL)}")
    a.I(f"v_mul_f32 {v(BS)}, 4.0, {v(BS)}")
    pc = [16 * t + PERMC(j) for t in range(2) for j in range(8)]
    gen_mat(a, C32, NF, BS, pc, TM)
    a.I(f"v_add_f32 {v(BS)}, {f32(0.25)}, {v(BS)}")
    gen_mat(a, NS32, NF, BS, pc, TM)
    a.I(f"v_and_b32 {v(AFL)}, 15, v0")
    a.I(f"v_cvt_f32_u32 {v(AFL)}, {v(AFL)}")
    a.I(f"v_mul_f32 {v(NF)}, {f32(1 / 16)}, {v(AFL)}")
    a.I(f"v_mul_f32 {v(BS)}, {f32(0.25)}, {v(HL)}")
    a.I("v_and_b32 v13, 16, v0")
    a.I("v_cmp_eq_u32 vcc, 0, v13")
    a.I("v_mov_b32 v14, 0")
    for B_, ph in ((BRE, None), (BIM, -0.25)):
        if ph:
            a.I(f"v_add_f32 {v(BS)}, {f32(ph)}, {v(BS)}")
        gen_mat(a, MT, NF, BS, list(range(8)), TM)
        for i in range(4):
            a.I(f"v_cndmask_b32 {v(B_ + i)}, v14, {v(MT + i)}, vcc")
            a.I(f"v_cndmask_b32 {v(B_ + 4 + i)}, {v(MT + i)}, v14, vcc")
    jc = [(j & 3) + 8 * (j >> 2) for j in range(16)]
    if tw is not None:
        a.I(f"v_mul_f32 {v(NF)}, {f32(1 / 512)}, {v(AFL)}")
        a.I(f"v_mul_f32 {v(BS)}, {v(NF)}, {v(HL)}")
        a.I(f"v_mul_f32 {v(BS)}, 4.0, {v(BS)}")
        for j in range(16):
            a.many(trig(a, j, tw + j, tw + 16 + j, NF, BS, jc[j], TM + (j & 1)))
    if part == 1:
        return
    if part == 2:
        del a.items[n0:]
    if mid:
        mid()
    a.I("v_and_b32 v13, 31, v2")
    a.I("v_lshlrev_b32 v13, 4, v13")
    a.I("v_lshrrev_b32 v15, 5, v2")
    a.I("v_lshl_add_u32 v13, v15, 1, v13")
    a.I(f"v_add_u32 v13, {LB}, v13")
    a.I("v_cmp_eq_u32 vcc, 0, v2")
    a.I(f"v_mov_b32 v15, {LB + 8192}")
    a.I(f"s_waitcnt vmcnt({nafter})")
    for i in range(4):
        a.I(f"v_cndmask_b32 {v(20 + i)}, {v(20 + i)}, v14, vcc")
    for c in range(2):
        for i in range(8):
            a.I(f"ds_write_b16{'_d16_hi' if i & 1 else ''} v13, {v(16 + 4 * c + i // 2)} offset:{i * 1024 + c * 512}")
    a.I("s_and_saveexec_b64 s[36:37], vcc")
    a.I("ds_write_b128 v15, v[24:27]")
    a.I("s_mov_b64 exec, s[36:37]")
    a.I("s_lshl_b32 s25, s16, 11")
    a.I(f"s_add_u32 s25, s25, {LB}")
    a.I("v_lshlrev_b32 v13, 4, v0")
    a.I("v_add_u32 v13, s25, v13")
    a.I("v_bfe_u32 v15, v0, 4, 1")
    a.I("s_lshl_b32 s25, s16, 2")
    a.I(f"s_add_u32 s25, s25, {LB + 8192}")
    a.I("v_lshl_add_u32 v15, v15, 1, s25")
    for j in range(1, 16):
        a.I(f"v_mov_b32 {v(UR + j)}, 0")
    a.I("s_waitcnt lgkmcnt(0)")
    if bar:
        bar()
    else:
        a.I("s_barrier")
    a.I(f"ds_read_u16 {v(UR)}, v15")
    a.I(f"ds_read_b128 {v(ZF, 4)}, v13")
    a.I(f"ds_read_b128 {v(ZF + 4, 4)}, v13 offset:1024")
    a.I("v_and_b32 v15, 1, v0")
    a.I("v_lshlrev_b32 v15, 31, v15")
    a.I("v_cmp_gt_u32 vcc, 32, v0")
    a.I(f"v_mul_f32 {v(NF)}, {f32(1 / 512)}, {v(AFL)}")
    a.I(f"v_mul_f32 {v(BS)}, {v(NF)}, {v(HL)}")
    a.I(f"v_mul_f32 {v(BS)}, 4.0, {v(BS)}")
    a.I("s_waitcnt lgkmcnt(2)")
    a.I(f"v_lshlrev_b32 {v(UR)}, 16, {v(UR)}")
    a.I(f"v_xor_b32 {v(UR)}, {v(UR)}, v15")
    a.I(f"v_cndmask_b32 {v(UR)}, v14, {v(UR)}, vcc")
    a.I("s_waitcnt lgkmcnt(0)")
    a.I("s_nop 0")
    for r in range(2):
        a.I(f"{MF} {v(UR, 16)}, {v(ZF + 4 * r, 4)}, {v(BRE + 4 * r, 4)}, {v(UR, 16)}")
    for r in range(2):
        a.I(f"{MF} {v(UI, 16)}, {v(ZF + 4 * r, 4)}, {v(BIM + 4 * r, 4)}, {'0' if r == 0 else v(UI, 16)}")
    a.I("s_lshr_b32 s25, s21, 1")
    a.I("s_lshl_b32 s25, s25, 4")
    a.I("s_and_b32 s26, s21, 1")
    a.I("s_lshl_b32 s26, s26, 2")
    a.I("s_add_u32 s25, s25, s26")
    a.I("s_lshr_b32 s26, s16, 1")
    a.I("s_lshl_b32 s26, s26, 3")
    a.I("s_add_u32 s25, s25, s26")
    a.I("s_and_b32 s26, s16, 1")
    a.I("s_lshl_b32 s26, s26, 1")
    a.I("s_add_u32 s25, s25, s26")
    a.I("s_lshl_b32 s25, s25, 6")
    a.I("s_add_u32 s25, s25, s20")
    a.I("s_lshl_b32 s25, s25, 11")
    a.I(f"s_add_u32 s26, s25, {64 * 2048}")
    if tw is not None:
        for j in range(16):
            cmul(a, UR + j, UI + j, tw + j, tw + 16 + j, +1, TM)
    else:
        twiddle(a, UR, UI, [[j] for j in range(16)], NF, BS, jc, +1, TM)
    pack(a, TR, UR, 8)
    pack(a, TI, UI, 8)
    a.I("v_and_b32 v13, 31, v0")
    a.I("v_lshlrev_b32 v13, 5, v13")
    terms = [(TR, C32), (TR + 4, C32 + 4), (TI, NS32), (TI + 4, NS32 + 4)]
    for i, (A_, B_) in enumerate(terms):
        a.I(f"{MF} {v(UR, 16)}, {v(A_, 4)}, {v(B_, 4)}, {'0' if i == 0 else v(UR, 16)}")
    a.I("v_lshrrev_b32 v15, 5, v0")
    a.I("v_lshl_add_u32 v13, v15, 4, v13")
    a.I("s_nop 9")
    pack(a, 16, UR, 8)
    a.I("s_nop 1")
    for r in range(2):
        a.I(f"v_permlane32_swap_b32 {v(16 + 4 * r)}, {v(18 + 4 * r)}")
        a.I(f"v_permlane32_swap_b32 {v(17 + 4 * r)}, {v(19 + 4 * r)}")
        a.I(f"buffer_store_dwordx4 {v(16 + 4 * r, 4)}, v13, s[32:35], s{25 + r} offen offset:1024{os.environ.get('OPB', ' nt')}")


def gen_b3():
    a = Asm()
    N = "b3_kernel"
    kstart(a, N, 256)
    a.I("s_load_dwordx2 s[4:5], s[0:1], 88")
    a.I("s_load_dwordx2 s[6:7], s[0:1], 72")
    a.I("v_lshrrev_b32 v1, 6, v0")
    a.I("v_mov_b32 v2, v0")
    a.I("v_and_b32 v0, 63, v0")
    a.I("v_readfirstlane_b32 s16, v1")
    b3_body(a)
    kend(a, N)
    return a, N, (256, 256, 8192 + 64)


KERNELS = [gen_b1, gen_qkv, gen_b2, gen_attn, gen_b3, gen_oproj]


ALIASES = [("v_mfma_f32_16x16x32_bf16", "mf16", 4), ("v_mfma_f32_32x32x16_bf16", "mf32", 4),
           ("v_cvt_pk_bf16_f32", "cvtpk", 3)]


def compact(txt):
    lines = txt.split("\n")
    out = []
    done = False
    for l in lines:
        if l.startswith("    "):
            l = l.strip()
            for full, short, n in ALIASES:
                if l.startswith(full + " "):
                    l = short + l[len(full):]
        out.append(l)
        if l.startswith(".amdgcn_target") and not done:
            done = True
            for full, short, n in ALIASES:
                args = ["p%d" % i for i in range(n)]
                out.append(f".macro {short} " + ", ".join(args))
                out.append(f"{full} " + ", ".join("\\" + x for x in args))
                out.append(".endm")
    return "\n".join(out)


DESC = """; Generated by a hand-written scheduler script (no compiler output).  Three launches:
;                with transposing LDS loads); results stored in MFMA-operand order.  Also: row rFFT(512) of B_x as two
"""


def build(kernels, path):
    hdr = open(os.path.join(os.path.dirname(os.path.abspath(__file__)), "..", "cdna_kernels", NAME + ".s.ref")).read()
    head = [l for l in hdr.splitlines() if l.startswith(";") and "@launch" not in l and "Override" not in l
            and "grid=ceil" not in l]
    txt = []
    launches = []
    descs = []
    bad = 0
    for g in kernels:
        KIDX[0] = len(launches)
        a, n, (grid, blk, lds) = g()
        if os.environ.get("PADREF") == n:
            items = []
            done = False
            for it in a.items:
                items.append(it)
                if it[0] == "i" and it[1].text == f"s_cbranch_scc1 {n}_end" and not done:
                    done = True
                    b = Asm()
                    b.I("s_memrealtime s[98:99]")
                    b.I("s_load_dwordx2 s[96:97], s[0:1], 88")
                    b.I("s_cmp_lg_u32 s2, 0")
                    b.I("s_cbranch_scc1 padref_skip")
                    b.I("s_waitcnt lgkmcnt(0)")
                    b.I(f"s_add_u32 s84, s96, {hex(200 * MB)}")
                    b.I("s_addc_u32 s85, s97, 0")
                    b.I("s_mov_b32 s86, 64")
                    b.I("s_mov_b32 s87, 0x20000")
                    b.I("v_mov_b32 v254, s98")
                    b.I("buffer_store_dword v254, off, s[84:87], 0 sc0 sc1")
                    b.label("padref_skip")
                    b.I("s_waitcnt lgkmcnt(0)")
                    items += b.items
            a.items = items
        if os.environ.get("PADK") == n:
            items = []
            cnt = 0
            for it in a.items:
                if it[0] == "i" and it[1].text == f"s_cbranch_scc1 {n}_end" and cnt == 0:
                    items.append(it)
                    b = Asm()
                    b.I("s_memrealtime s[98:99]")
                    if os.environ.get("PADREF"):
                        b.I("s_load_dwordx2 s[96:97], s[0:1], 88")
                        b.I("s_waitcnt lgkmcnt(0)")
                        b.I(f"s_add_u32 s84, s96, {hex(200 * MB)}")
                        b.I("s_addc_u32 s85, s97, 0")
                        b.I("s_mov_b32 s86, 64")
                        b.I("s_mov_b32 s87, 0x20000")
                        b.I("buffer_load_dword v254, off, s[84:87], 0 sc0 sc1")
                        b.I("s_waitcnt vmcnt(0)")
                        b.I("v_readfirstlane_b32 s98, v254")
                    items += b.items
                    cnt = 1
                    continue
                if it[0] == "i" and it[1].mn == "s_endpgm" and not (items[-1][0] == "l" and items[-1][1] == n + "_end" and items[-2][1].mn == "s_endpgm"):
                    b = Asm()
                    lab = None
                    if items[-1][0] == "l" and items[-1][1] == n + "_end":
                        lab = items.pop()
                    cnt += 1
                    b.I("s_waitcnt vmcnt(0) lgkmcnt(0)")
                    b.label(f"pad_{cnt}")
                    b.I("s_memrealtime s[96:97]")
                    b.I("s_waitcnt lgkmcnt(0)")
                    b.I("s_sub_u32 s96, s96, s98")
                    b.I(f"s_cmp_lt_u32 s96, {os.environ['PADT']}")
                    b.I(f"s_cbranch_scc1 pad_{cnt}")
                    items += b.items
                    if lab:
                        items.append(it)
                        items.append(lab)
                items.append(it)
            a.items = items
        if DBGT:
            items = []
            for it in a.items:
                if it[0] == "i" and it[1].mn == "s_endpgm" and not (items and items[-1][0] == "l" and items[-1][1] == n + "_end" and items[-2][1].mn == "s_endpgm"):
                    b = Asm()
                    lab = None
                    if items[-1][0] == "l" and items[-1][1] == n + "_end":
                        lab = items.pop()
                    dbg_stamp(b, 1)
                    items += b.items
                    if lab:
                        items.append(it)
                        items.append(lab)
                items.append(it)
            a.items = items
        bad += len(a.check())
        nv, ns, na = a.maxregs()
        print(f"{n}: {sum(1 for k, _ in a.items if k == 'i')} instrs, vgpr {nv}, agpr {na}, sgpr {ns}")
        launches.append(f"; @launch kernel={n} grid=({grid},1,1) block=({blk},1,1) lds={lds}")
        txt.append(a.text())
        descs.append(kdesc(n, nv, ns, na))
    if bad:
        print("HAZARDS:", bad)
    out = "\n".join(head) + "\n" + "\n".join(launches) + "\n" + '.amdgcn_target "amdgcn-amd-amdhsa--gfx950"\n' + \
          "".join(txt) + "".join(descs)
    out = out.replace('.amdgcn_target "amdgcn-amd-amdhsa--gfx950"\n', '.amdgcn_target "amdgcn-amd-amdhsa--gfx950"\n' + DESC, 1)
    out = compact(out)
    open(path, "w").write(out)
    return bad


if __name__ == "__main__":
    p = sys.argv[1] if len(sys.argv) > 1 else os.path.join(os.path.dirname(os.path.abspath(__file__)), "..",
                                                           "cdna_kernels", NAME + ".s")
    sys.exit(1 if build(KERNELS, p) else 0)
```

```python
import sys, os
sys.path.insert(0, os.path.dirname(os.path.abspath(__file__)))
import gen
from gen import *

M16 = "v_mfma_f32_16x16x32_bf16"
SP = os.environ.get("SP", " sc1")
PUMP = int(os.environ.get("PUMP", "5"))
SCAT_AT = int(os.environ.get("SCAT_AT", "52"))
PRE3 = int(os.environ.get("PRE3", "20"))
PF_AT = int(os.environ.get("PF_AT", "80"))
BP = os.environ.get("BP", " nt")
PP = os.environ.get("PP", "")
AP = os.environ.get("AP", "")
LP = os.environ.get("LP", "")
MULM = os.environ.get("MULM", "")
SIG3 = int(os.environ.get("SIG3", "124"))
B3AT = int(os.environ.get("B3AT", "75"))
CT_AT = int(os.environ.get("CT_AT", "80"))
OWNAT = int(os.environ.get("OWNAT", "49"))
MATF = int(os.environ.get("MATF", "0"))
GRP2 = int(os.environ.get("GRP2", "1"))
FILT_AT = int(os.environ.get("FILT_AT", "70"))
LATE_AT = int(os.environ.get("LATE_AT", "30"))
STF = eval(os.environ.get("STF", "(31, 63, 95)"))
B1START = int(os.environ.get("B1START", "6"))


def gen_l1():
    a = Asm()
    N = "l1_kernel"
    kstart(a, N, 256)
    a.I("s_load_dwordx4 s[4:7], s[0:1], 0")
    a.I("s_load_dwordx4 s[8:11], s[0:1], 16")
    a.I("s_load_dwordx2 s[12:13], s[0:1], 32")
    a.I("s_load_dwordx2 s[14:15], s[0:1], 88")
    a.I("s_load_dwordx4 s[60:63], s[0:1], 48")
    a.I("s_load_dwordx2 s[64:65], s[0:1], 64")
    a.I("s_load_dwordx2 s[90:91], s[0:1], 40")
    TID, L16 = 64, 65
    a.I(f"v_and_b32 {v(TID)}, 255, v0")
    a.I("v_lshrrev_b32 v2, 6, v0")
    a.I("v_and_b32 v0, 63, v0")
    a.I("v_readfirstlane_b32 s16, v2")
    st = Stamper(a, "l1")
    st()
    BLDS = 9 * 16384
    a.I("s_nop 0")
    if os.environ.get("CT0", "1") == "1":
        code_touch(a, N, 16, 24, 60, kd=False)
    a.I("s_and_b32 s17, s2, 7")
    a.I("s_lshr_b32 s18, s2, 3")
    a.I("s_and_b32 s19, s18, 7")
    a.I("s_lshr_b32 s18, s18, 3")
    a.I("s_lshl_b32 s40, s17, 2")
    a.I("s_add_u32 s18, s18, s40")
    if os.environ.get("L1MAP", "4x8") == "4x8":
        a.I("s_lshr_b32 s18, s2, 3")
        a.I("s_and_b32 s19, s18, 3")
        a.I("s_and_b32 s40, s17, 1")
        a.I("s_lshl_b32 s40, s40, 2")
        a.I("s_add_u32 s19, s19, s40")
        a.I("s_lshr_b32 s18, s18, 2")
        a.I("s_lshr_b32 s40, s17, 1")
        a.I("s_lshl_b32 s40, s40, 3")
        a.I("s_add_u32 s18, s18, s40")
    a.I("s_mov_b32 s41, 0")
    a.I("s_mul_i32 s42, s18, 6")
    a.I("s_cmp_ge_u32 s18, 11")
    a.I("s_cselect_b32 s41, 1, s41")
    a.I("s_cselect_b32 s40, 64, 0")
    a.I("s_cmp_ge_u32 s18, 21")
    a.I("s_cselect_b32 s41, 2, s41")
    a.I("s_cselect_b32 s40, 126, s40")
    a.I("s_sub_u32 s42, s42, s40")
    a.I("s_lshl_b32 s44, s19, 3")
    a.I("s_add_u32 s44, s44, s16")
    t1, t2, t3, G = 66, 67, 68, 69
    WV, AV, AR_, TB, SK, SV = 1, 3, 7, 9, 21, 22
    a.I(f"v_lshrrev_b32 {v(t1)}, 3, v0")
    a.I(f"v_lshlrev_b32 {v(G)}, 10, {v(t1)}")
    a.I(f"v_lshlrev_b32 {v(t1)}, 13, {v(t1)}")
    a.I("s_lshl_b32 s45, s16, 17")
    a.I(f"v_add_u32 {v(t1)}, s45, {v(t1)}")
    a.I(f"v_bfe_u32 {v(t2)}, v0, 4, 1")
    a.I(f"v_lshlrev_b32 {v(t2)}, 1, {v(t2)}")
    a.I(f"v_and_b32 {v(t3)}, 7, v0")
    a.I(f"v_xor_b32 {v(t2)}, {v(t2)}, {v(t3)}")
    a.I(f"v_lshl_add_u32 {v(WV)}, {v(t2)}, 4, {v(t1)}")
    a.I(f"v_xor_b32 {v(WV + 1)}, 64, {v(WV)}")
    a.I(f"v_add_u32 {v(WV + 1)}, {65536 - 1024}, {v(WV + 1)}")
    a.I("s_lshl_b32 s45, s44, 15")
    a.I(f"v_add_u32 {v(t1)}, s45, {v(G)}")
    a.I(f"v_lshrrev_b32 {v(t2)}, 4, v0")
    a.I(f"v_xor_b32 {v(t2)}, {v(t2)}, {v(t3)}")
    a.I(f"v_lshl_add_u32 {v(AV)}, {v(t2)}, 4, {v(t1)}")
    a.I(f"v_xor_b32 {v(AV + 1)}, 64, {v(AV)}")
    a.I(f"v_add_u32 {v(AV + 1)}, {8192 - 1024}, {v(AV + 1)}")
    a.I(f"v_add_u32 {v(AV + 2)}, {2 * (8192 - 1024)}, {v(AV)}")
    a.I(f"v_add_u32 {v(AV + 3)}, {2 * (8192 - 1024)}, {v(AV + 1)}")
    a.I("s_lshl_b32 s46, s16, 13")
    a.I("s_lshl_b32 s47, s16, 11")
    a.I("s_lshl_b32 s48, s42, 7")
    a.I("s_lshl_b32 s49, s44, 13")
    a.I("s_lshl_b32 s50, s42, 18")
    a.I("s_add_u32 s50, s50, s49")
    a.I("s_add_u32 s53, s48, 512")
    a.I("s_mov_b32 s43, s49")
    a.I(f"v_lshlrev_b32 {v(L16)}, 4, v0")
    a.I("s_lshl_b32 s45, s44, 16")
    a.I("v_lshrrev_b32 v23, 1, v0")
    a.I("v_lshlrev_b32 v23, 13, v23")
    a.I(f"v_and_b32 {v(t1)}, 1, v0")
    a.I(f"v_lshl_add_u32 v23, {v(t1)}, 7, v23")
    a.I("v_add_u32 v23, s45, v23")
    a.I("s_waitcnt lgkmcnt(0)")
    WT0 = os.environ.get("WT0", "0")
    if WT0 != "0":
        a.I("s_cmp_ge_u32 s16, 6")
        a.I(f"s_cbranch_scc1 {N}_nwt")
        a.I("s_lshr_b32 s40, s16, 1")
        a.I("s_cmp_eq_u32 s40, 1")
        a.I("s_cselect_b32 s20, s8, s10")
        a.I("s_cselect_b32 s21, s9, s11")
        a.I("s_cmp_eq_u32 s40, 2")
        a.I("s_cselect_b32 s20, s12, s20")
        a.I("s_cselect_b32 s21, s13, s21")
        a.I(f"s_mov_b32 s22, {hex(4 * MB)}")
        a.I("s_mov_b32 s23, 0x20000")
        a.I("s_and_b32 s40, s16, 1")
        a.I("s_lshl1_add_u32 s40, s2, s40")
        a.I("s_lshl_b32 s40, s40, 13")
        a.I(f"v_lshlrev_b32 {v(t1)}, 7, v0")
        a.I(f"buffer_load_dword v59, {v(t1)}, s[20:23], s40 offen")
        a.label(f"{N}_nwt")
    a.I("s_lshl_b32 s45, s44, 18")
    a.I("s_lshl_b32 s40, s42, 12")
    a.I("s_add_u32 s45, s45, s40")
    a.I(f"s_mov_b32 s92, {hex(512 * 1024)}")
    a.I("s_cmp_eq_u32 s41, 2")
    a.I("s_cselect_b32 s50, s45, s50")
    a.I("s_cselect_b32 s92, 0x2000, s92")
    a.I("s_cselect_b32 s20, s4, s6")
    a.I("s_cselect_b32 s21, s5, s7")
    a.I("s_cselect_b32 s24, s8, s10")
    a.I("s_cselect_b32 s25, s9, s11")
    a.I(f"s_cselect_b32 s51, {hex(WS_Q)}, 0")
    a.I(f"s_cselect_b32 s52, {f32(QSCALE)}, 1.0")
    a.I("s_cmp_eq_u32 s41, 1")
    a.I("s_cselect_b32 s24, s12, s24")
    a.I("s_cselect_b32 s25, s13, s25")
    a.I(f"s_cselect_b32 s51, {hex(WS_V)}, s51")
    a.I("s_mov_b32 s32, s24")
    a.I("s_mov_b32 s33, s25")
    a.I(f"s_mov_b32 s40, {hex(WS_V)}")
    a.I("s_cmp_eq_u32 s18, 10")
    a.I("s_cselect_b32 s32, s12, s32")
    a.I("s_cselect_b32 s33, s13, s33")
    a.I("s_cselect_b32 s53, 0, s53")
    a.I(f"s_add_u32 s45, s49, {hex(31 << 19)}")
    a.I("s_cmp_eq_u32 s18, 31")
    a.I("s_cselect_b32 s53, s48, s53")
    a.I("s_cselect_b32 s43, s50, s43")
    a.I(f"s_cselect_b32 s40, {hex(WS_Q)}, s40")
    a.I("s_cselect_b32 s24, s12, s24")
    a.I("s_cselect_b32 s25, s13, s25")
    a.I(f"s_cselect_b32 s48, {62 * 128}, s48")
    a.I(f"s_cselect_b32 s51, {hex(WS_V)}, s51")
    a.I("s_cselect_b32 s20, s6, s20")
    a.I("s_cselect_b32 s21, s7, s21")
    a.I("s_cselect_b32 s50, s45, s50")
    a.I(f"s_mov_b32 s22, {hex(2 * MB)}")
    a.I("s_mov_b32 s23, 0x20000")
    a.I(f"s_mov_b32 s26, {hex(4 * MB)}")
    a.I("s_mov_b32 s27, 0x20000")

    def late_setup():
        a.I("s_mov_b32 s94, s52")
        a.I("s_mov_b32 s95, s52")
        a.I(f"s_mov_b32 s34, {hex(4 * MB)}")
        a.I("s_mov_b32 s35, 0x20000")
        srd(a, 28, 14, 15, 16 * MB, add="s51")
        srd(a, 36, 14, 15, 16 * MB, add="s40")
        srd(a, 56, 4, 5, 2 * MB)
        if os.environ.get("XDROP") == "q":
            a.I("s_cmp_eq_u32 s41, 2")
            a.I("s_cselect_b32 s30, 0, s30")
        if os.environ.get("XDROP") == "all":
            a.I("s_mov_b32 s30, 0")
            a.I("s_mov_b32 s38, 0")
        a.I("s_add_u32 s13, s48, 256")
        a.I("s_add_u32 s17, s53, 256")
        a.I("s_cmp_eq_u32 s18, 31")
        a.I("s_cselect_b32 s4, s32, s24")
        a.I("s_cselect_b32 s5, s33, s25")
        a.I("s_cselect_b32 s13, s53, s13")
        a.I("s_cselect_b32 s17, s17, s53")
        a.I(f"s_mov_b32 s6, {hex(4 * MB)}")
        a.I("s_mov_b32 s7, 0x20000")

    def w_prefetch(g):
        for th, (col, sr) in enumerate([("s13", "s[4:7]"), ("s17", "s[32:35]")]):
            g.lq.append((["s_mov_b64 exec, 0xffff"], f"buffer_load_dword {v(56 + th)}, v23, {sr}, {col} offen{PP}", "pf"))

    def addr_setup():
        a.I(f"v_lshrrev_b32 {v(G)}, 4, v0")
        a.I(f"v_bfe_u32 {v(t1)}, v0, 3, 1")
        a.I(f"v_lshlrev_b32 {v(t1)}, 4, {v(t1)}")
        a.I(f"v_and_b32 {v(t2)}, 7, v0")
        a.I(f"v_add_u32 {v(t1)}, {v(t1)}, {v(t2)}")
        a.I(f"v_bfe_u32 {v(t2)}, {v(t1)}, 1, 3")
        a.I(f"v_xor_b32 {v(t2)}, {v(t2)}, {v(G)}")
        a.I(f"v_lshlrev_b32 {v(t2)}, 4, {v(t2)}")
        a.I(f"v_lshl_add_u32 {v(AR_)}, {v(t1)}, 7, {v(t2)}")
        a.I(f"v_xor_b32 {v(AR_ + 1)}, 64, {v(AR_)}")
        a.I(f"v_add_u32 {v(AR_)}, s46, {v(AR_)}")
        a.I(f"v_add_u32 {v(AR_ + 1)}, s46, {v(AR_ + 1)}")
        a.I(f"v_lshlrev_b32 {v(t2)}, 9, {v(G)}")
        a.I(f"v_lshl_add_u32 {v(SK)}, {v(t1)}, 4, {v(t2)}")
        a.I(f"v_and_b32 {v(t3)}, 15, v0")
        a.I(f"v_lshl_add_u32 {v(SV)}, {v(t3)}, 4, {v(t2)}")
        a.I(f"v_bfe_u32 {v(t1)}, v0, 2, 2")
        a.I(f"v_lshl_add_u32 {v(t1)}, {v(G)}, 3, {v(t1)}")
        a.I(f"v_lshlrev_b32 {v(t1)}, 7, {v(t1)}")
        a.I(f"v_and_b32 {v(t2)}, 3, v0")
        a.I(f"v_lshl_add_u32 {v(t1)}, {v(t2)}, 3, {v(t1)}")
        a.I(f"v_bfe_u32 {v(t2)}, v0, 3, 2")
        a.I(f"v_lshl_add_u32 {v(t1)}, {v(t2)}, 5, {v(t1)}")
        for ct in range(4):
            a.I(f"v_xor_b32 {v(TB + ct)}, {32 * ct}, {v(t1)}")
        for ct in range(4):
            a.I(f"v_add_u32 {v(TB + 4 + ct)}, 0x10000, {v(TB + ct)}")
            a.I(f"v_add_u32 {v(TB + 8 + ct)}, 0x20000, {v(TB + ct)}")

    def b_common():
        a.I("s_and_b32 s8, s2, 7")
        a.I("s_lshl_b32 s8, s8, 3")
        a.I("s_bfe_u32 s9, s2, 0x30003")
        a.I("s_or_b32 s8, s8, s9")
        a.I("s_lshr_b32 s9, s2, 6")
        a.I("s_lshr_b32 s66, s9, 1")
        a.I("s_lshl_b32 s66, s66, 11")
        a.I("s_lshr_b32 s10, s8, 5")
        a.I("s_lshl_b32 s10, s10, 10")
        a.I("s_add_u32 s66, s66, s10")
        a.I("s_and_b32 s10, s8, 31")
        a.I("s_lshl_b32 s10, s10, 4")
        a.I("s_add_u32 s66, s66, s10")
        a.I("s_and_b32 s10, s9, 1")
        a.I("s_lshl_b32 s10, s10, 9")
        a.I("s_add_u32 s66, s66, s10")

    HL, NF, BS, F2, TM, X1, X2, X3 = 70, 71, 72, 73, 74, 78, 79, 80
    C32, NS32, AR, AI, XF, D1R, D1I, TR, TI, D2 = 84, 92, 100, 104, 108, 116, 132, 148, 158, 168
    pc8 = [PERMC(j) for j in range(8)]

    def fft_loads(vm):
        a.I("s_lshr_b32 s10, s9, 1")
        a.I("s_lshl_b32 s10, s10, 4")
        a.I("s_and_b32 s11, s9, 1")
        a.I("s_lshl_b32 s11, s11, 2")
        a.I("s_add_u32 s10, s10, s11")
        a.I("s_lshr_b32 s11, s16, 1")
        a.I("s_lshl_b32 s11, s11, 3")
        a.I("s_add_u32 s10, s10, s11")
        a.I("s_and_b32 s11, s16, 1")
        a.I("s_lshl_b32 s11, s11, 1")
        a.I("s_add_u32 s10, s10, s11")
        a.I("s_lshl_b32 s10, s10, 6")
        a.I("s_add_u32 s10, s10, s8")
        a.I("s_lshl_b32 s10, s10, 10")
        a.I(f"s_add_u32 s11, s10, {65536 - 1024}")
        a.I(f"s_add_u32 s3, s47, {BLDS}")
        a.I("s_mov_b32 m0, s3")
        a.I(f"s_mov_b32 s62, {hex(2 * MB)}")
        a.I("s_mov_b32 s63, 0x20000")
        vm.issue(f"buffer_load_dwordx4 {v(L16)}, s[60:63], s10 offen{BP} lds", "bx")
        vm.issue(f"buffer_load_dwordx4 {v(L16)}, s[60:63], s11 offen offset:1024{BP} lds", "bx")

    def fft_compute(g):
        vm = g.vm
        a.I(f"v_lshrrev_b32 {v(X2)}, 5, v0")
        a.I(f"v_cvt_f32_u32 {v(HL)}, {v(X2)}")
        a.I(f"v_and_b32 {v(F2)}, 31, v0")
        a.I(f"v_cvt_f32_u32 {v(F2)}, {v(F2)}")
        a.I(f"v_mul_f32 {v(NF)}, {f32(1 / 32)}, {v(F2)}")
        a.I(f"v_mul_f32 {v(BS)}, {v(NF)}, {v(HL)}")
        a.I(f"v_mul_f32 {v(BS)}, {f32(8.0)}, {v(BS)}")
        nat = [16 * t + j for t in range(2) for j in range(8)]
        gen_mat(a, C32, NF, BS, nat, TM)
        a.I(f"v_add_f32 {v(BS)}, {f32(0.25)}, {v(BS)}")
        gen_mat(a, NS32, NF, BS, nat, TM)
        a.I(f"v_bfe_u32 {v(X1)}, v0, 4, 1")
        a.I(f"v_lshlrev_b32 {v(X1)}, 10, {v(X1)}")
        a.I(f"v_lshl_add_u32 {v(X1)}, {v(X2)}, 8, {v(X1)}")
        a.I(f"v_and_b32 {v(X3)}, 15, v0")
        a.I(f"v_lshl_add_u32 {v(X1)}, {v(X3)}, 3, {v(X1)}")
        a.I(f"v_add_u32 {v(X1)}, s3, {v(X1)}")
        vm.wait("bx")
        for t in range(2):
            for h in range(2):
                a.I(f"ds_read_b64_tr_b16 {v(XF + 4 * t + 2 * h, 2)}, {v(X1)} offset:{t * 512 + h * 128}")
        a.I(f"v_cvt_f32_u32 {v(X3)}, {v(X3)}")
        a.I(f"v_mul_f32 {v(NF)}, {f32(1 / 16)}, {v(X3)}")
        a.I(f"v_bfe_u32 {v(X1)}, v0, 4, 1")
        a.I(f"v_cvt_f32_u32 {v(X1)}, {v(X1)}")
        a.I(f"v_mul_f32 {v(BS)}, {v(NF)}, {v(HL)}")
        a.I(f"v_mul_f32 {v(BS)}, 4.0, {v(BS)}")
        a.I(f"v_fmamk_f32 {v(BS)}, {v(X1)}, {f32(0.25)}, {v(BS)}")
        a.I("s_waitcnt lgkmcnt(0)")
        for D, Mx in ((D1R, C32), (D1I, NS32)):
            for t in range(2):
                a.I(f"{MF} {v(D, 16)}, {v(XF + 4 * t, 4)}, {v(Mx + 4 * t, 4)}, {'0' if t == 0 else v(D, 16)}")
        gen_mat(a, AR, NF, BS, pc8, TM)
        a.I(f"v_add_f32 {v(BS)}, {f32(-0.25)}, {v(BS)}")
        gen_mat(a, AI, NF, BS, pc8, TM)
        a.I(f"v_mul_f32 {v(NF)}, {f32(1 / 512)}, {v(F2)}")
        a.I(f"v_mul_f32 {v(BS)}, {v(NF)}, {v(HL)}")
        a.I(f"v_mul_f32 {v(BS)}, 4.0, {v(BS)}")
        twiddle(a, D1R, D1I, [[j, j + 8] for j in range(8)], NF, BS, pc8, -1, TM)
        pack(a, TR, D1R, 8)
        pack(a, TI, D1I, 8)
        a.I(f"v_and_b32 {v(X3)}, 31, v0")
        a.I(f"v_lshlrev_b32 {v(X3)}, 4, {v(X3)}")
        for r in range(2):
            a.I(f"{MF} {v(D2 + 16 * r, 16)}, {v(AR, 4)}, {v(TR + 4 * r, 4)}, 0")
            a.I(f"{MF} {v(D2 + 16 * r, 16)}, {v(AI, 4)}, {v(TI + 4 * r, 4)}, {v(D2 + 16 * r, 16)}")
        a.I(f"v_lshl_add_u32 {v(X3)}, {v(X2)}, 11, {v(X3)}")
        a.I("s_lshl_b32 s10, s16, 2")
        a.I(f"s_add_u32 s11, s10, {BLDS + 8192}")
        a.I(f"v_add_u32 {v(X3)}, s11, {v(X3)}")
        a.I(f"v_mov_b32 {v(X2)}, s10")
        a.I(f"s_add_u32 s67, s66, {256 * 8192}")
        a.I(f"s_add_u32 s11, s66, {256 * 8192 + 4096}")
        srd(a, 60, 14, 15, 8 * MB, add=WS_Y)
        a.I("s_nop 1")
        for c in range(2):
            for j in range(5):
                a.I(f"v_cvt_pk_bf16_f32 {v(TR + 5 * c + j)}, {v(D2 + 8 * c + j)}, {v(D2 + 16 + 8 * c + j)}")
        for c in range(2):
            for j in range(4):
                a.I(f"ds_write_b32 {v(X3)}, {v(TR + 5 * c + j)} offset:{(c * 8 + j) * 512}")
        a.I = I0
        a.I("s_mov_b64 exec, 1")
        vm.issue(f"buffer_store_dword {v(TR + 4)}, {v(X2)}, s[60:63], s67 offen", "bs")
        vm.issue(f"buffer_store_dword {v(TR + 9)}, {v(X2)}, s[60:63], s11 offen", "bs")
        a.I("s_mov_b64 exec, -1")

    WFR, WFP, FX1, FX2, WF9 = 56, 52, 52, 53, 55

    def filt_setup():
        a.I("s_lshr_b32 s10, s9, 1")
        a.I("s_lshl_b32 s10, s10, 5")
        a.I("s_lshr_b32 s11, s8, 5")
        a.I("s_lshl_b32 s11, s11, 4")
        a.I("s_add_u32 s10, s10, s11")
        a.I("s_and_b32 s11, s9, 1")
        a.I("s_lshl_b32 s11, s11, 2")
        a.I("s_add_u32 s10, s10, s11")
        a.I("s_lshl_b32 s10, s10, 5")
        a.I("s_and_b32 s11, s8, 31")
        a.I("s_add_u32 s10, s10, s11")
        a.I("s_mul_i32 s19, s10, 514")
        a.I(f"v_lshlrev_b32 {v(FX1)}, 1, {v(TID)}")
        a.I(f"v_and_b32 {v(FX2)}, 3, v0")
        a.I(f"v_bfe_u32 {v(t1)}, v0, 2, 1")
        a.I(f"v_lshl_add_u32 {v(FX2)}, {v(t1)}, 3, {v(FX2)}")
        a.I(f"v_mul_u32_u24 {v(FX2)}, {32 * 514}, {v(FX2)}")
        a.I(f"v_add_u32 {v(FX2)}, 512, {v(FX2)}")
        a.I("s_cmp_ge_u32 s16, 4")
        a.I("s_cselect_b32 s8, s64, s0")
        a.I("s_cselect_b32 s9, s65, s1")
        a.I(f"s_mov_b32 s10, {2048 * 514}")
        a.I("s_mov_b32 s11, 0x20000")

    def filt_loads(g):
        for j in range(8):
            g.lq.append(([f"s_add_u32 s12, s19, {PERMC(j) * 32 * 514}"],
                         f"buffer_load_ushort {v(WFR + j)}, {v(FX1)}, s[8:11], s12 offen{BP}", "wf"))
        g.lq.append(([], f"buffer_load_ushort {v(WF9)}, {v(FX2)}, s[8:11], s19 offen{BP}", "wf"))

    def filt_finish(g):
        vm = g.vm
        L = [lambda: (g.flush("wf"), vm.wait("wf"), a.I(f"v_lshlrev_b32 {v(54)}, 1, v0"))]
        L.append(lambda: (a.I("s_mov_b64 exec, 0xff"),
                          vm.issue(f"buffer_store_short {v(WF9)}, {v(54)}, s[60:63], s67 offen", "bs"),
                          a.I("s_mov_b64 exec, -1")))
        for i in range(4):
            L.append(lambda i=i: a.I(f"v_lshl_or_b32 {v(WFP + i)}, {v(WFR + 1 + 2 * i)}, 16, {v(WFR + 2 * i)}"))
        return L

    def ys_calc():
        a.I("s_and_b32 s12, s16, 3")
        a.I("s_lshl_b32 s12, s12, 19")
        a.I(f"v_lshlrev_b32 {v(YS)}, 13, v0")
        a.I(f"v_add_u32 {v(YS)}, s12, {v(YS)}")

    def scat(g):
        g.vm.issue(f"buffer_store_dwordx4 {v(YD, 4)}, {v(YS)}, s[60:63], s66 offen", "bs")

    def scat_next():
        for i in range(4):
            a.I(f"v_mov_b32 {v(YD + i)}, {v(WFP + i)}")
        a.I(f"s_add_u32 s66, s66, {hex(WS_WF - WS_Y)}")

    YA, YD, YS = 56, 48, 23
    ACC, RING, PK, AFB = 192, 24, 56, 64
    LOOK = 4
    AHEAD = int(os.environ.get("AHEAD", "5"))

    def AF(rt, k):
        return AFB + (k * 2 + rt) * 4

    class Gen:
        def __init__(self, passes, nmerge, vmq):
            self.passes, self.nmerge = passes, nmerge
            self.vm, self.lg = VM(a), LG(a)
            self.vm.q = list(vmq)
            self.busy, self.nxt, self.dq, self.lq = {}, 0, [], []
            self.chunks, self.frags, self.groups = [], [], {}
            for pp in range(0, len(passes), 2):
                if pp // 2 < nmerge:
                    for kc in range(4):
                        c = len(self.chunks)
                        self.chunks += [(pp, kc), (pp + 1, kc)]
                        self.groups[len(self.frags)] = [c, c + 1]
                        for ks in range(4):
                            for h in range(2):
                                self.frags += [(c + h, ks, ct) for ct in range(4)]
                else:
                    for q in range(2):
                        for kc in range(4):
                            c = len(self.chunks)
                            self.chunks.append((pp + q, kc))
                            if GRP2 == 0:
                                self.groups[len(self.frags)] = [c]
                            elif kc % 2 == 0:
                                self.groups[len(self.frags)] = [c, c + 1]
                            self.frags += [(c, ks, ct) for ks in range(4) for ct in range(4)]
            self.prev = [[], []]
            self.b1busy = True
            self.skip_boundary = False

        def blk(self, c):
            nm = 8 * self.nmerge
            if c < nm:
                return 4 + 2 * ((c // 2) % 3) + (c & 1)
            if self.nmerge == 1:
                return [6, 7, 8, 9, 0, 1, 2, 3][(c - nm) % 8]
            return [8, 9, 4, 5, 0, 1, 2, 3][(c - nm) % 8]

        def dmaW(self, now, done):
            c = self.nxt
            if c >= len(self.chunks) or c > now + AHEAD:
                return False
            b = self.blk(c)
            if b in self.busy and self.busy[b] not in done:
                return False
            if b == 9 and self.b1busy:
                return False
            if b < 4 and now < 8 * self.nmerge:
                return False
            self.busy[b] = c
            self.nxt += 1
            pp, kc = self.chunks[c]
            form, wsel, wdi, osel, odi = self.passes[pp]
            sr = "s[32:35]" if wsel else "s[24:27]"
            for q in range(2):
                pre = [f"s_add_u32 m0, s47, {hex(b * 16384)}",
                       f"s_add_u32 s45, {'s53' if wsel else 's48'}, {hex((kc << 20) + wdi * 128)}"] if q == 0 else []
                self.dq.append((pre, f"buffer_load_dwordx4 {v(WV + q)}, {sr}, s45 offen offset:{q * 1024}{LP} lds", ("W", c)))
            return True

        def pump(self, n=1):
            for _ in range(n):
                q = self.dq or self.lq
                if q:
                    pre, ins, tag = q.pop(0)
                    a.many(pre)
                    self.vm.issue(ins, tag)
                    if tag == "pf":
                        a.I("s_mov_b64 exec, -1")

        def flush(self, tag=None):
            while any(tag is None or x[2] == tag for x in self.dq + self.lq):
                self.pump()

        def dmaA(self, j):
            sr = "s[56:59]" if j >= 8 else "s[20:23]"
            k = 0
            while k < len(self.dq) and not self.dq[k][0]:
                k += 1
            for i in range(4):
                pre = [f"s_add_u32 m0, s46, {hex((j % 2) * 4096)}", f"s_mov_b32 s45, {(j % 8) * 128}"] if i == 0 else []
                self.dq.insert(k + i, (pre, f"buffer_load_dwordx4 {v(AV + i)}, {sr}, s45 offen offset:{i * 1024}{AP} lds", ("A", j)))

        def readA(self, j):
            self.flush(("A", j))
            self.vm.wait(("A", j))
            for ks in range(2):
                for x in range(2):
                    self.lg.issue(f"ds_read_b128 {v(AF(x, 2 * (j % 8) + ks), 4)}, {v(AR_ + (ks ^ x))} "
                                  f"offset:{(j % 2) * 4096 + x * 1024}", ("A", j))

        def reads(self, i, halves=(0, 1)):
            c, ks, ct = self.frags[i]
            b = self.blk(c)
            base = TB + 4 * (b // 4) + ct
            off = (b % 4) * 16384 + ks * 4096
            d = RING + 4 * slot(i)
            for h in halves:
                self.lg.issue(f"ds_read_b64_tr_b16 {v(d + 2 * h, 2)}, {v(base)} offset:{off + 512 * h}", ("W", i))

        def sync(self, grp):
            for c in grp:
                self.flush(("W", c))
            self.vm.wait([("W", c) for c in grp])
            a.I("s_barrier")
            lo = self.prev[1][0] if self.prev[1] else 0
            done = set(range(lo))
            if self.prev[1]:
                self.b1busy = False
            self.prev = [self.prev[1], grp]
            while self.dmaW(grp[0], done):
                pass

        def acc(self, pp, rt, ct):
            return ACC + 32 * (pp & 1) + 4 * (4 * rt + ct)

        def epi(self, pp):
            out = []
            form, wsel, wdi, osel, u = self.passes[pp]
            so = 54 + (pp & 1)
            sr = "s[36:39]" if osel else "s[28:31]"
            def so_calc():
                a.I(f"s_add_u32 s{so}, {'s43' if osel else 's50'}, {(u & 1) * 4096}")
                assert (u >> 1) in (-1, 0, 1)
                if u >> 1:
                    a.I(f"s_{'add' if (u >> 1) > 0 else 'sub'}_u32 s{so}, s{so}, s92")
            out.append(so_calc)
            for q in range(4):
                pk = PK + 4 * (q % 2)
                if form == "K":
                    x, cp = divmod(q, 2)
                    srcs = [self.acc(pp, x, 2 * cp), self.acc(pp, x, 2 * cp + 1)]
                    off, va = x * 128 + cp * 2048, SK
                else:
                    srcs = [self.acc(pp, 0, q), self.acc(pp, 1, q)]
                    off, va = (q >> 1) * 2048 + (q & 1) * 256, SV
                for i in range(4):
                    src = srcs[i // 2] + 2 * (i % 2)
                    if form == "K" and MULM == "pk":
                        out.append(lambda src=src: a.I(f"v_pk_mul_f32 {v(src, 2)}, {v(src, 2)}, s[94:95]"))
                    elif form == "K" and MULM != "none":
                        out.append(lambda src=src: a.I(f"v_mul_f32 {v(src)}, s52, {v(src)}"))
                        out.append(lambda src=src: a.I(f"v_mul_f32 {v(src + 1)}, s52, {v(src + 1)}"))
                    out.append(lambda src=src, pk=pk, i=i: a.I(f"v_cvt_pk_bf16_f32 {v(pk + i)}, {v(src)}, {v(src + 1)}"))
                out.append(lambda pk=pk, va=va, off=off: self.vm.issue(
                    f"buffer_store_dwordx4 {v(pk, 4)}, {v(va)}, {sr}, s{so} offen offset:{off}{SP}", ("S", pp)))
            return out

        def boundary(self, pps):
            self.flush("pf")
            self.vm.wait("pf")
            ys_calc()
            a.I("s_nop 2")
            for pp in pps:
                for f in self.epi(pp):
                    f()

        def run(self, p0, p1):
            lg = self.lg
            NF_ = len(self.frags)
            NA = 8 * self.nmerge
            pend = []
            for i in range(64 * p0, 64 * p1):
                c, ks, ct = self.frags[i]
                pp, kc = self.chunks[c]
                k = 4 * kc + ks
                if i % 128 == 0 and 0 < i <= 128 * self.nmerge and not self.skip_boundary:
                    self.boundary([i // 64 - 2] + ([i // 64 - 1] if i < 128 * self.nmerge else []))
                if i % 2 == 0:
                    lg.wait([("W", i), ("W", i + 1), ("A", i // 16)])
                if i % 16 == 0 and i // 16 + 2 < NA:
                    self.dmaA(i // 16 + 2)
                wf = v(RING + 4 * slot(i), 4)
                j = i + LOOK
                for rt in range(2):
                    ac = v(self.acc(pp, rt, ct), 4)
                    af = v(AF(rt, k), 4)
                    cin = "0" if k == 0 else ac
                    if self.passes[pp][0] == "V":
                        a.I(f"{M16} {ac}, {af}, {wf}, {cin}")
                    else:
                        a.I(f"{M16} {ac}, {wf}, {af}, {cin}")
                    if j < NF_:
                        if rt == 0 and j in self.groups:
                            self.sync(self.groups[j])
                        if rt == 0 and j % 16 == 0 and j // 16 < NA:
                            self.readA(j // 16)
                        self.reads(j, (rt,))
                    if rt == 0 and pend:
                        pend.pop(0)()
                    if rt == 1 and i % 2 == 0:
                        if self.dq or self.lq:
                            self.pump(1)
                        elif pend:
                            pend.pop(0)()
                if i % 64 == 63:
                    assert not pend
                if i % 64 == 3 and i >= 128 * self.nmerge:
                    pend = self.epi(i // 64 - 1)
                if i == PF_AT:
                    w_prefetch(self)
                if i == LATE_AT:
                    filt_loads(self)
                if i == FILT_AT:
                    pend = filt_finish(self)
                if i >= 128 and i % 128 == SCAT_AT:
                    scat(self)
                if i >= 128 and i % 128 == 127:
                    scat_next()
                if i >= 128 * self.nmerge and i % 128 == 118 and self.tag != "C":
                    self.wo_store()
                if i >= 128 * self.nmerge and i % 128 == CT_AT:
                    code_touch(a, "attn_kernel", 16, 8, AR_)
                if i in STF:
                    st()
            self.flush()

        def wo_load(self):
            blk = 4 if self.nmerge == 1 else 6
            srd(a, 8, 90, 91, 4 * MB)
            a.I("s_lshl_b32 s12, s2, 14")
            a.I("s_lshl_b32 s13, s16, 7")
            a.I("s_add_u32 s12, s12, s13")
            a.I(f"s_add_u32 s13, s12, {8192 - 1024}")
            a.I(f"s_add_u32 s17, s47, {blk * 16384}")
            a.I("s_mov_b32 m0, s17")
            a.I(f"v_lshrrev_b32 {v(AV)}, 3, v0")
            a.I(f"v_lshlrev_b32 {v(AV)}, 10, {v(AV)}")
            a.I(f"v_and_b32 {v(AV + 1)}, 7, v0")
            a.I(f"v_lshl_add_u32 {v(AV)}, {v(AV + 1)}, 4, {v(AV)}")
            self.vm.issue(f"buffer_load_dwordx4 {v(AV)}, s[8:11], s12 offen{BP} lds", "wo")
            self.vm.issue(f"buffer_load_dwordx4 {v(AV)}, s[8:11], s13 offen offset:1024{BP} lds", "wo")
            a.I(f"v_lshrrev_b32 {v(AV + 1)}, 5, v0")
            a.I(f"v_bfe_u32 {v(AV + 2)}, v0, 2, 2")
            a.I(f"v_lshl_add_u32 {v(AV + 1)}, {v(AV + 1)}, 2, {v(AV + 2)}")
            a.I(f"v_lshlrev_b32 {v(AV + 1)}, 7, {v(AV + 1)}")
            a.I(f"v_bfe_u32 {v(AV + 2)}, v0, 4, 1")
            a.I(f"v_lshl_add_u32 {v(AV + 1)}, {v(AV + 2)}, 5, {v(AV + 1)}")
            a.I(f"v_and_b32 {v(AV + 2)}, 3, v0")
            a.I(f"v_lshl_add_u32 {v(AV + 1)}, {v(AV + 2)}, 3, {v(AV + 1)}")
            a.I(f"v_add_u32 {v(AV + 1)}, s17, {v(AV + 1)}")
            a.I(f"v_lshlrev_b32 {v(AV + 2)}, 4, v0")
            a.I("s_lshl_b32 s17, s16, 19")
            a.I("s_lshl_b32 s13, s2, 11")
            a.I("s_add_u32 s17, s17, s13")

        def wo_store(self):
            self.vm.wait("wo")
            lab = f"{N}_wos{self.tag}"
            if self.nmerge == 1:
                a.I("s_cmp_lg_u32 s44, 0")
                a.I(f"s_cbranch_scc1 {lab}")
            for cb in range(2):
                for h in range(2):
                    a.I(f"ds_read_b64_tr_b16 {v(PK + 4 * cb + 2 * h, 2)}, {v(AV + 1)} offset:{cb * 64 + h * 1024}")
            srd(a, 8, 14, 15, 4 * MB, add=WS_WO)
            a.I("s_waitcnt lgkmcnt(0)")
            for cb in range(2):
                a.I(f"buffer_store_dwordx4 {v(PK + 4 * cb, 4)}, {v(AV + 2)}, s[8:11], s17 offen offset:{cb * 1024}{SP}")
            a.label(lab)

        def fin(self, pp):
            a.I("s_nop 7")
            for f in self.epi(pp):
                f()
            st.dump(16, 14, tmpv=24)
            a.I("s_endpgm")


    def slot(i):
        j = i % 128
        return j % 6 if j < 108 else (j - 108) % 5

    I0 = a.I
    cnt = [0]
    gp = [None]

    def Ipump(text):
        r = I0(text)
        if text.startswith("v_") and not text.startswith("v_mfma"):
            cnt[0] += 1
            if cnt[0] % PUMP == 0 and gp[0].dq:
                a.I = I0
                gp[0].pump()
                a.I = Ipump
        return r

    b_common()
    a.I("s_mov_b64 s[0:1], s[62:63]")
    g0 = Gen([("K", 0, i, 0, i) for i in range(2)], 1, [])
    a.I("s_cmp_ge_u32 s16, 4")
    a.I(f"s_cbranch_scc1 {N}_nofl")
    fft_loads(VM(a))
    a.label(f"{N}_nofl")
    for _ in range(2):
        g0.dmaW(0, set())
    g0.dmaA(0)
    PF0 = os.environ.get("PF0", "0")

    def pf0():
        a.I("s_mov_b64 exec, 0xffff")
        a.I("buffer_load_dword v58, v23, s[24:27], s48 offen")
        a.I("s_mov_b64 exec, -1")
    if PF0 == "1":
        pf0()
    g0.flush()
    if PF0 == "2":
        pf0()
    PORD = os.environ.get("PORD", "0")
    if PORD != "0":
        late_setup()
        addr_setup()
    if PORD == "2":
        a.I("s_barrier")
    g0.dmaA(1)
    for _ in range(2):
        g0.dmaW(0, set())
    g0.flush()
    st()
    if PORD == "0":
        late_setup()
        addr_setup()
    g0.dmaW(0, set())
    a.I("s_cmp_ge_u32 s16, 4")
    a.I(f"s_cbranch_scc1 {N}_join")
    gf = Gen([("K", 0, i, 0, i) for i in range(2)], 1, ["bx", "bx"] + g0.vm.q)
    fft_compute(gf)
    a.label(f"{N}_join")
    filt_setup()
    if os.environ.get("L1PRIO"):
        a.I("s_cmp_lt_u32 s16, 4")
        a.I(f"s_cbranch_scc1 {N}_np")
        a.I(f"s_setprio {os.environ['L1PRIO']}")
        a.label(f"{N}_np")
    srd(a, 60, 14, 15, 8 * MB, add=WS_Y)
    vmq = list(g0.vm.q)
    st()
    stn = st.n
    def y_prep():
        a.I(f"v_lshlrev_b32 {v(YA)}, 4, {v(TID)}")
        a.I("s_lshr_b32 s12, s16, 2")
        a.I("s_lshl_b32 s12, s12, 12")
        a.I("s_add_u32 s66, s66, s12")
        a.I(f"s_add_u32 s67, s66, {256 * 8192 + WS_WF - WS_Y}")
        a.I(f"s_add_u32 s12, s12, {BLDS + 8192}")
        a.I(f"v_add_u32 {v(YA)}, s12, {v(YA)}")

    y_prep()

    def mkgen(passes, nmerge=1):
        g = Gen(passes, nmerge, vmq)
        g.busy, g.nxt, g.dq = dict(g0.busy), g0.nxt, list(g0.dq)
        st.n = stn
        return g

    def start(g):
        a.I("s_waitcnt lgkmcnt(0)")
        g.readA(0)
        g.sync(g.groups[0])
        st()
        g.lg.issue(f"ds_read_b128 {v(YD, 4)}, {v(YA)}", "y")
        for i in range(LOOK):
            g.reads(i)

    def capture(fn):
        n0 = len(a.items)
        fn()
        seg = a.items[n0:]
        del a.items[n0:]
        return seg

    def merge(s1, s2):
        import asmlib
        isv = lambda x: x[0] == "i" and x[1].text.startswith("s_waitcnt vmcnt")
        out, i, j = [], 0, 0
        while i < len(s1) or j < len(s2):
            x = s1[i] if i < len(s1) else None
            y = s2[j] if j < len(s2) else None
            if x is not None and y is not None and isv(x) and isv(y):
                n = min(int(x[1].text[16:-1]), int(y[1].text[16:-1]))
                out.append(("i", asmlib.Ins(f"s_waitcnt vmcnt({n})")))
                i += 1
                j += 1
            elif x is not None and isv(x):
                out.append(x)
                i += 1
            elif y is not None and isv(y):
                out.append(y)
                j += 1
            else:
                assert (x[1] == y[1] if x[0] != "i" else x[1].text == y[1].text), (x, y)
                out.append(x)
                i += 1
                j += 1
        return out

    def looped(F, lab):
        def plist(pair):
            L = []
            for pp in range(8):
                if pair == 0:
                    L.append((F, 0, pp, 0, pp))
                else:
                    rel = pp - pair
                    L.append((F, 1 if rel >= 2 else 0, rel - 2 if rel >= 2 else rel, 0, rel))
            return L
        g = mkgen(plist(0))
        g.tag = F
        start(g)
        g.run(0, 2)
        g.boundary([0])
        g.skip_boundary = True
        g.wo_load()
        st()
        a.I("s_add_u32 s48, s48, 256")
        a.I("s_add_u32 s50, s50, s92")
        a.I("s_mov_b32 s44, 0")
        g.passes = plist(2)
        s1 = capture(lambda: g.run(2, 4))
        g.passes = plist(4)
        s2 = capture(lambda: g.run(4, 6))
        a.label(lab + "_loop")
        mg = merge(s1, s2)
        drop = os.environ.get("DROP", "").split(",")

        def keep(x):
            if x[0] != "i":
                return True
            tx = x[1].text
            if "dma" in drop and tx.endswith(" lds"):
                return False
            if "st" in drop and tx.startswith("buffer_store"):
                return False
            if "valu" in drop and x[1].cls == "valu":
                return False
            if "bar" in drop and tx == "s_barrier":
                return False
            if "rd" in drop and tx.startswith("ds_read"):
                return False
            if "vw" in drop and tx.startswith("s_waitcnt vm"):
                return False
            if "lw" in drop and tx.startswith("s_waitcnt lg"):
                return False
            return True
        a.items += [x for x in mg if keep(x)]
        if F == "K":
            a.I("s_cmp_eq_u32 s18, 10")
            a.I(f"s_cbranch_scc1 {N}_Ctail")
        a.I("s_mov_b32 s48, s53")
        a.I("s_mov_b32 s34, 0")
        a.I("s_add_u32 s50, s50, s92")
        a.I("s_add_u32 s44, s44, 1")
        a.I("s_cmp_lt_u32 s44, 2")
        a.I(f"s_cbranch_scc1 {lab}_loop")
        g.passes = plist(6)
        g.fin(5)
        return g

    a.I("s_cmp_eq_u32 s18, 31")
    a.I(f"s_cbranch_scc1 {N}_D")
    a.I("s_cmp_eq_u32 s41, 1")
    a.I(f"s_cbranch_scc1 {N}_B")
    looped("K", N + "_A")
    a.label(f"{N}_Ctail")
    gc = mkgen([("K", 0, pp, 0, pp) for pp in range(4)] + [("V", 1, 0, 1, 0), ("V", 1, 1, 1, 1)])
    gc.tag = "C"
    capture(lambda: (start(gc), gc.run(0, 2), gc.wo_load(), gc.run(2, 4)))
    gc.passes[3] = ("K", 0, 1, 0, 1)
    st.n = stn + 5
    gc.run(4, 6)
    gc.fin(5)
    a.label(N + "_B")
    looped("V", N + "_B2")
    a.label(N + "_D")
    gd = mkgen([("V", 0, 0, 0, 0), ("V", 0, 1, 0, 1)] + [("K", 1, i, 1, i) for i in range(4)], 2)
    gd.tag = "D"
    start(gd)
    gd.run(0, 2)
    st()
    gd.run(2, 5)
    gd.wo_load()
    gd.run(5, 6)
    gd.fin(5)
    kend(a, N)
    return a, N, (256, 512, 163840)


def gen_l3():
    a = Asm()
    N = "l3_kernel"
    kstart(a, N, 256)
    a.I("s_load_dwordx2 s[4:5], s[0:1], 88")
    a.I("s_load_dwordx2 s[8:9], s[0:1], 72")
    a.I("v_lshrrev_b32 v1, 6, v0")
    a.I("v_and_b32 v2, 255, v0")
    a.I("v_and_b32 v0, 63, v0")
    a.I("v_readfirstlane_b32 s17, v1")
    st = Stamper(a, "l3")
    WF, ACCS, RING, L16, LR, CMB = 128, [68, 84], 100, 124, 125, 127
    LOOK = 5
    a.I("s_bfe_u32 s40, s2, 0x20001")
    a.I("s_and_b32 s43, s2, 1")
    a.I("s_lshl_b32 s43, s43, 5")
    a.I("s_lshr_b32 s44, s2, 3")
    a.I("s_add_u32 s43, s43, s44")
    a.I("s_lshr_b32 s41, s43, 2")
    a.I("s_and_b32 s42, s43, 3")
    a.I("s_and_b32 s16, s17, 3")
    a.I("s_lshr_b32 s18, s17, 2")
    a.I(f"v_lshlrev_b32 {v(L16)}, 4, v0")
    a.I("s_lshl_b32 s45, s42, 1")
    a.I("s_lshr_b32 s46, s16, 1")
    a.I("s_add_u32 s45, s45, s46")
    a.I("s_lshl_b32 s45, s45, 19")
    a.I("s_lshl1_add_u32 s46, s40, s18")
    a.I("s_lshl_b32 s46, s46, 16")
    a.I("s_add_u32 s45, s45, s46")
    a.I("s_and_b32 s46, s16, 1")
    a.I("s_lshl_b32 s46, s46, 10")
    a.I("s_add_u32 s45, s45, s46")
    a.I(f"s_add_u32 s45, s45, {hex(WS_WO)}")
    a.I("s_lshl_b32 s47, s18, 15")
    a.I("s_lshl_b32 s48, s16, 10")
    a.I("s_add_u32 s47, s47, s48")
    a.I("s_lshl_b32 s46, s41, 20")
    a.I("s_lshl_b32 s48, s40, 16")
    a.I("s_add_u32 s46, s46, s48")
    a.I("s_add_u32 s46, s46, s47")
    a.I(f"s_add_u32 s46, s46, {hex(WS_CTX)}")
    a.I("s_lshl_b32 s48, s18, 15")
    a.I(f"v_add_u32 {v(LR)}, s48, {v(L16)}")
    a.I(f"v_add_u32 {v(LR + 1)}, 0x10000, {v(LR)}")
    a.I("s_lshl_b32 s48, s16, 12")
    a.I(f"s_add_u32 s48, s48, {131072}")
    a.I(f"v_add_u32 {v(CMB)}, s48, {v(L16)}")
    a.I("s_waitcnt lgkmcnt(0)")
    srd(a, 52, 4, 5, 64 * MB)
    st()
    vm, lg = VM(a), LG(a)

    def sub_off(n, dst):
        a.I(f"s_add_u32 {s(dst)}, s40, {n + 1}")
        a.I(f"s_and_b32 {s(dst)}, {s(dst)}, 3")
        a.I(f"s_lshl_b32 {s(dst)}, {s(dst)}, 18")
        a.I(f"s_add_u32 {s(dst)}, {s(dst)}, s46")

    for n in range(4):
        sub_off(n, 36 + n)

    def cdma(n, i):
        return [lambda: (a.I(f"s_add_u32 m0, s47, {(n & 1) * 65536 + i * 4096}"),
                         a.I(f"s_add_u32 s49, s{36 + n}, {i * 4096}"),
                         vm.issue(f"buffer_load_dwordx4 {v(L16)}, s[52:55], s49 offen lds", ("C", n, i // 2)))]

    def wload(g):
        def f():
            if g % 2 == 0 and g:
                a.I("s_add_u32 s45, s45, 4096")
            vm.issue(f"buffer_load_dwordx4 {v(WF + 4 * g, 4)}, {v(L16)}, s[52:55], s45 offen offset:{(g % 2) * 2048}", ("W", g))
        return [f]

    pend = []
    for c in range(4):
        for i in (2 * c, 2 * c + 1):
            pend += cdma(0, i) + cdma(1, i)
        for g in range(8 * c, 8 * c + 8):
            pend += wload(g)
    tags = []
    for c in range(4):
        tags += [("C", 0, c), ("C", 1, c)] * 2 + [("W", g) for g in range(8 * c, 8 * c + 8)]
    ptag = list(tags)

    def pump(k=1):
        for _ in range(k):
            if pend:
                pend.pop(0)()
                ptag.pop(0)

    def need(tg):
        while any(x in ptag for x in tg):
            pump()

    pump(PRE3)
    b3_loads(a, 8)
    srd(a, 56, 4, 5, 16 * MB, add=WS_PART)
    srd(a, 60, 4, 5, 64 * 128, add=WS_FLAG)
    a.I("s_lshl_b32 s64, s43, 7")
    a.I("s_lshl2_add_u32 s67, s40, s64")
    LA, LB_ = 28, 29
    a.I("s_lshl_b32 s48, s18, 16")
    a.I(f"v_add_u32 {v(LA)}, s48, {v(LR)}")
    a.I(f"v_xor_b32 {v(LB_)}, 0x10000, {v(LA)}")
    st()
    AC = [68, 84, 32]
    sched = []
    for g in range(32):
        sched += [(AC[0], LA, g), (AC[1], LB_, g)]
    sched += [(AC[2], LR, g) for g in range(32)] + [(AC[1], LR + 1, g) for g in range(32)]

    def read(i):
        lg.issue(f"ds_read_b128 {v(RING + 4 * (i % 6), 4)}, {v(sched[i][1])} offset:{sched[i][2] * 1024}", i)

    def sync(tg):
        need(tg)
        vm.wait(tg)
        a.I("s_barrier")

    TMP = 48

    def slot_calc(own_expr):
        a.I(own_expr)
        a.I("s_and_b32 s50, s50, 3")
        a.I("s_lshl2_add_u32 s50, s43, s50")
        a.I("s_lshl2_add_u32 s50, s50, s40")
        a.I("s_lshl2_add_u32 s50, s50, s16")
        a.I("s_lshl_b32 s50, s50, 12")

    def give_l(A, addr, off):
        for q in range(4):
            a.I(f"ds_write_b128 {v(addr)}, {v(A + 4 * q, 4)} offset:{off + q * 1024}")

    def take_l(A, addr, off, model=False):
        for q in range(4):
            a.I(f"ds_read_b128 {v(TMP + 4 * q, 4)}, {v(addr)} offset:{off + q * 1024}")
        a.I("s_waitcnt lgkmcnt(0)")
        for j in range(16):
            a.I(f"v_add_f32 {v(A + j)}, {v(A + j)}, {v(TMP + j)}")
        for q in range(4):
            x = f"buffer_store_dwordx4 {v(A + 4 * q, 4)}, {v(L16)}, s[56:59], s50 offen offset:{q * 1024} sc1"
            vm.issue(x, "P") if model else a.I(x)

    def give(n):
        lab = a.uid(f"{N}_g")
        a.I(f"s_cmp_eq_u32 s18, {n & 1}")
        a.I(f"s_cbranch_scc1 {lab}")
        give_l(AC[2] if n == 2 else AC[1], CMB, (n & 1) * 16384)
        a.label(lab)
        a.I("s_waitcnt lgkmcnt(0)")
        lg.q = []

    sync([("C", 0, 0), ("C", 1, 0)])
    st()
    for i in range(LOOK):
        read(i)
    for i in range(128):
        ac, _, g = sched[i]
        lg.wait(i)
        if i < 64:
            need([("W", g)])
            vm.wait(("W", g))
        first = g == 0
        a.I(f"{MF} {v(ac, 16)}, {v(WF + 4 * g, 4)}, {v(RING + 4 * (i % 6), 4)}, {'0' if first else v(ac, 16)}")
        j = i + LOOK
        if j < 128:
            if j < 64 and j % 16 == 0:
                c = j // 16
                sync([("C", 0, c), ("C", 1, c)])
                if c >= 2:
                    for n in (2, 3):
                        for k in (2 * (c - 2), 2 * (c - 2) + 1):
                            pend.extend(cdma(n, k))
                            ptag.append(("C", n, c - 2))
            elif j >= 64 and j % 16 == 0:
                sync([("C", j // 32, (j % 32) // 8 + c) for c in range(2)])
            read(j)
        if i in (31, 63, 75, 95, 107):
            st()
        if j == 64:
            for n in (2, 3):
                for k in (4, 5):
                    pend.extend(cdma(n, k))
                    ptag.append(("C", n, 2))
        if i == 64 + 5:
            a.I("s_lshl_b32 s48, s18, 14")
            a.I(f"v_add_u32 v30, s48, {v(CMB)}")
            a.I("v_xor_b32 v31, 0x4000, v30")
            give_l(AC[1], 31, 0)
            a.I("s_add_u32 s51, s18, 1")
            slot_calc("s_add_u32 s50, s40, s51")
            a.I("s_waitcnt lgkmcnt(0)")
            lg.q = []
            a.I("s_barrier")
            for n in (2, 3):
                for k in (6, 7):
                    pend.extend(cdma(n, k))
                    ptag.append(("C", n, 3))
            need([("C", 3, 3)])
            take_l(AC[0], 30, 0, True)
        if i == 96 + 5:
            vm.wait([("C", 3, 2), ("C", 3, 3)])
            give(2)
            a.I("s_barrier")
            a.I("s_cmp_lg_u32 s18, 0")
            a.I(f"s_cbranch_scc1 {N}_t2")
            slot_calc("s_add_u32 s50, s40, 3")
            take_l(AC[2], CMB, 0)
            a.label(f"{N}_t2")
        pump(2 if i < 64 else 1)
    st()
    LW = 32768
    a.I("v_mov_b32 v1, 0")
    a.I("v_mov_b32 v30, %d" % LW)
    a.I("ds_write_b32 v30, v1")
    a.I("v_mov_b32 v1, 1")
    a.I("s_nop 7")
    give(3)
    a.I("s_waitcnt vmcnt(0)")
    a.I("s_barrier")
    a.I("s_cmp_eq_u32 s18, 1")
    a.I(f"s_cbranch_scc1 {N}_fin")
    a.I("s_cmp_lg_u32 s17, 0")
    a.I(f"s_cbranch_scc1 {N}_nosig")
    a.I("s_mov_b64 exec, 1")
    a.I("buffer_store_dword v1, off, s[60:63], s67 sc1")
    a.I("s_mov_b64 exec, -1")
    a.label(f"{N}_nosig")
    b3_body(a, 0, 8, loaded=True)
    a.I("s_endpgm")
    a.label(f"{N}_fin")
    A = ACCS[1]
    a.I("s_lshl2_add_u32 s50, s43, s40")
    a.I("s_lshl_b32 s50, s50, 4")
    a.I("s_add_u32 s50, s50, s16")
    a.I("s_lshl_b32 s50, s50, 12")
    a.I("v_and_b32 v3, 31, v0")
    a.I("v_lshlrev_b32 v3, 11, v3")
    a.I("v_lshrrev_b32 v4, 5, v0")
    a.I("v_lshl_add_u32 v3, v4, 4, v3")
    a.I("s_lshl2_add_u32 s65, s41, s40")
    a.I("s_lshl_b32 s65, s65, 16")
    a.I("s_lshl_b32 s66, s42, 8")
    a.I("s_add_u32 s65, s65, s66")
    a.I("s_lshl_b32 s66, s16, 6")
    a.I("s_add_u32 s65, s65, s66")
    srd(a, 52, 8, 9, 4 * MB)
    a.I(f"v_mov_b32 v5, {LW}")
    for q in range(4):
        a.I(f"ds_read_b128 {v(WF + 4 * q, 4)}, {v(CMB)} offset:{16384 + q * 1024}")
    POLL = os.environ.get("POLL", "1")
    a.I("s_mov_b32 s44, 0")
    if POLL == "1":
        a.I("s_cmp_lg_u32 s17, 4")
        a.I(f"s_cbranch_scc1 {N}_lspin")
    a.label(f"{N}_spin")
    a.I("buffer_load_dwordx4 v[4:7], off, s[60:63], s64 sc1")
    a.I("s_waitcnt vmcnt(0)")
    a.I("v_and_b32 v4, v4, v5")
    a.I("v_and_b32 v6, v6, v7")
    a.I("v_and_b32 v4, v4, v6")
    a.I("s_nop 0")
    a.I("v_readfirstlane_b32 s66, v4")
    a.I("s_nop 0")
    a.I("s_cmp_eq_u32 s66, 1")
    a.I(f"s_cbranch_scc1 {N}_got")
    a.I("s_sleep 2")
    a.I("s_add_u32 s44, s44, 1")
    a.I("s_cmp_lt_u32 s44, 0x100000")
    a.I(f"s_cbranch_scc1 {N}_spin")
    a.I(f"s_branch {N}_got")
    if POLL == "1":
        a.label(f"{N}_lspin")
        a.I("ds_read_b32 v4, v5")
        a.I("s_waitcnt lgkmcnt(0)")
        a.I("v_readfirstlane_b32 s66, v4")
        a.I("s_nop 0")
        a.I("s_cmp_eq_u32 s66, 1")
        a.I(f"s_cbranch_scc1 {N}_got2")
        a.I("s_sleep 1")
        a.I(f"s_branch {N}_lspin")
    a.label(f"{N}_got")
    if POLL == "1":
        a.I(f"v_mov_b32 v5, {LW}")
        a.I("ds_write_b32 v5, v1")
        a.label(f"{N}_got2")
    st()
    for k in range(1, 4):
        a.I(f"s_add_u32 s66, s40, {k}")
        a.I("s_and_b32 s66, s66, 3")
        a.I("s_lshl_b32 s66, s66, 14")
        a.I("s_add_u32 s66, s66, s50")
        for q in range(4):
            a.I(f"buffer_load_dwordx4 {v(WF + 16 * k + 4 * q, 4)}, {v(L16)}, s[56:59], s66 offen offset:{q * 1024} sc1")
    a.I("s_waitcnt lgkmcnt(0)")
    a.I("s_barrier")
    for k in range(4):
        if k:
            a.I(f"s_waitcnt vmcnt({4 * (3 - k)})")
        for j in range(16):
            a.I(f"v_add_f32 {v(A + j)}, {v(A + j)}, {v(WF + 16 * k + j)}")
    pack(a, 8, A, 8)
    a.I("s_nop 1")
    for h in range(2):
        a.I(f"v_permlane32_swap_b32 {v(8 + 4 * h)}, {v(10 + 4 * h)}")
        a.I(f"v_permlane32_swap_b32 {v(9 + 4 * h)}, {v(11 + 4 * h)}")
        a.I(f"buffer_store_dwordx4 {v(8 + 4 * h, 4)}, v3, s[52:55], s65 offen offset:{32 * h}{os.environ.get('OPA', ' nt')}")
    st.dump(17, 4, tmpv=16)
    kend(a, N)
    return a, N, (256, 512, 163840)


def gen_l3v3():
    a = Asm()
    N = "l3_kernel"
    kstart(a, N, 256)
    a.I("s_load_dwordx2 s[4:5], s[0:1], 88")
    a.I("s_load_dwordx2 s[8:9], s[0:1], 72")
    a.I("v_lshrrev_b32 v1, 6, v0")
    a.I("v_and_b32 v2, 255, v0")
    a.I("v_and_b32 v0, 63, v0")
    a.I("v_readfirstlane_b32 s17, v1")
    st = Stamper(a, "l3")
    WF, ACCS, RING, L16, LR, CMB = 128, [68, 84], 100, 124, 125, 127
    LOOK = 5
    a.I("s_bfe_u32 s40, s2, 0x20001")
    a.I("s_and_b32 s43, s2, 1")
    a.I("s_lshl_b32 s43, s43, 5")
    a.I("s_lshr_b32 s44, s2, 3")
    a.I("s_add_u32 s43, s43, s44")
    a.I("s_lshr_b32 s41, s43, 2")
    a.I("s_and_b32 s42, s43, 3")
    a.I("s_and_b32 s16, s17, 3")
    a.I("s_lshr_b32 s18, s17, 2")
    a.I(f"v_lshlrev_b32 {v(L16)}, 4, v0")
    a.I("s_lshl_b32 s45, s42, 1")
    a.I("s_lshr_b32 s46, s16, 1")
    a.I("s_add_u32 s45, s45, s46")
    a.I("s_lshl_b32 s45, s45, 19")
    a.I("s_lshl1_add_u32 s46, s40, s18")
    a.I("s_lshl_b32 s46, s46, 16")
    a.I("s_add_u32 s45, s45, s46")
    a.I("s_and_b32 s46, s16, 1")
    a.I("s_lshl_b32 s46, s46, 10")
    a.I("s_add_u32 s45, s45, s46")
    a.I(f"s_add_u32 s45, s45, {hex(WS_WO)}")
    a.I("s_lshl_b32 s47, s18, 15")
    a.I("s_lshl_b32 s48, s16, 10")
    a.I("s_add_u32 s47, s47, s48")
    a.I("s_lshl_b32 s46, s41, 20")
    a.I("s_lshl_b32 s48, s40, 16")
    a.I("s_add_u32 s46, s46, s48")
    a.I("s_add_u32 s46, s46, s47")
    a.I(f"s_add_u32 s46, s46, {hex(WS_CTX)}")
    a.I("s_lshl_b32 s47, s18, 13")
    a.I("s_lshl_b32 s48, s16, 10")
    a.I("s_add_u32 s47, s47, s48")
    a.I("s_lshl_b32 s48, s18, 13")
    a.I(f"v_add_u32 {v(LR)}, s48, {v(L16)}")
    a.I(f"v_add_u32 {v(LR + 1)}, 0x10000, {v(LR)}")
    a.I("s_lshl_b32 s48, s16, 12")
    a.I(f"v_add_u32 {v(CMB)}, s48, {v(L16)}")
    a.I("s_waitcnt lgkmcnt(0)")
    srd(a, 52, 4, 5, 64 * MB)
    st()
    vm, lg = VM(a), LG(a)

    def sub_off(n, dst):
        a.I(f"s_add_u32 {s(dst)}, s40, {n + 1}")
        a.I(f"s_and_b32 {s(dst)}, {s(dst)}, 3")
        a.I(f"s_lshl_b32 {s(dst)}, {s(dst)}, 18")
        a.I(f"s_add_u32 {s(dst)}, {s(dst)}, s46")

    PB16 = int(os.environ.get("PB16", "1"))
    for n in range(4):
        sub_off(n, 36 + n)

    def cslot(n, c):
        return (n * 2 + c % 2) * 16384 if n < 3 else 98304 + c * 16384

    pend, ptag = [], []

    def cdma(n, i):
        pend.append(lambda: (a.I(f"s_add_u32 m0, s47, {cslot(n, i // 2) + (i % 2) * 4096}"),
                             a.I(f"s_add_u32 s49, s{36 + n}, {i * 4096}"),
                             vm.issue(f"buffer_load_dwordx4 {v(L16)}, s[52:55], s49 offen lds", ("C", n, i // 2))))
        ptag.append(("C", n, i // 2))

    def wload(g):
        def f():
            if g % 2 == 0 and g:
                a.I("s_add_u32 s45, s45, 4096")
            vm.issue(f"buffer_load_dwordx4 {v(WF + 4 * g, 4)}, {v(L16)}, s[52:55], s45 offen offset:{(g % 2) * 2048}", ("W", g))
        pend.append(f)
        ptag.append(("W", g))

    def pump(k=1):
        for _ in range(k):
            if pend:
                pend.pop(0)()
                ptag.pop(0)

    def need(tg):
        while any(x in ptag for x in tg):
            pump()

    for c in range(2):
        for n in range(3):
            cdma(n, 2 * c)
            cdma(n, 2 * c + 1)
        for g in range(8 * c, 8 * c + 8):
            wload(g)
    for g in range(16, 24):
        wload(g)
    pump(PRE3)
    srd(a, 56, 4, 5, 16 * MB, add=WS_PART)
    a.I("s_lshl2_add_u32 s60, s43, s40")
    a.I("s_lshl_b32 s60, s60, 4")
    a.I("s_add_u32 s60, s60, s16")
    a.I("s_lshl_b32 s60, s60, 12")
    for k in range(1, 4):
        a.I(f"s_add_u32 s{60 + k}, s40, {k}")
        a.I(f"s_and_b32 s{60 + k}, s{60 + k}, 3")
        a.I(f"s_lshl_b32 s{60 + k}, s{60 + k}, 14")
        a.I(f"s_add_u32 s{60 + k}, s{60 + k}, s60")

    def part_loads():
        for k in range(1, 4):
            for q in range(2):
                a.I(f"buffer_load_dwordx4 {v(WF + 16 * k + 4 * q, 4)}, {v(L16)}, s[56:59], s{60 + k} offen offset:{q * 1024} sc1")
    LA, LB_, LO = 28, 29, 30
    a.I("s_lshl_b32 s48, s18, 15")
    a.I(f"v_add_u32 {v(LA)}, s48, {v(LR)}")
    a.I(f"v_xor_b32 {v(LB_)}, 0x8000, {v(LA)}")
    a.I(f"v_add_u32 {v(LO)}, {98304}, {v(LR)}")
    st()
    AC = [68, 84, 32]
    sched = []
    for g in range(32):
        o = ((g // 8) % 2) * 16384 + (g % 8) * 1024
        sched += [(AC[0], LA, o, g), (AC[1], LB_, o, g), (AC[2], LR + 1, o, g)]
    OWN = 48
    sched += [(OWN, LO, (g // 8) * 16384 + (g % 8) * 1024, g) for g in range(32)]

    def read(i):
        lg.issue(f"ds_read_b128 {v(RING + 4 * (i % 6), 4)}, {v(sched[i][1])} offset:{sched[i][2]}", i)

    def sync(tg):
        need(tg)
        vm.wait(tg)
        a.I("s_barrier")

    def slot_calc(dst, own_expr):
        a.I(own_expr)
        a.I(f"s_and_b32 {s(dst)}, {s(dst)}, 3")
        a.I(f"s_lshl2_add_u32 {s(dst)}, s43, {s(dst)}")
        a.I(f"s_lshl2_add_u32 {s(dst)}, {s(dst)}, s40")
        a.I(f"s_lshl2_add_u32 {s(dst)}, {s(dst)}, s16")
        a.I(f"s_lshl_b32 {s(dst)}, {s(dst)}, 12")

    def give_l(A, addr, off):
        for q in range(4):
            a.I(f"ds_write_b128 {v(addr)}, {v(A + 4 * q, 4)} offset:{off + q * 1024}")

    def take_l(A, T, addr, off, so):
        for q in range(4):
            a.I(f"ds_read_b128 {v(T + 4 * q, 4)}, {v(addr)} offset:{off + q * 1024}")
        a.I("s_waitcnt lgkmcnt(0)")
        for j in range(16):
            a.I(f"v_add_f32 {v(A + j)}, {v(A + j)}, {v(T + j)}")
        if PB16:
            pack(a, T, A, 8)
            for q in range(2):
                a.I(f"buffer_store_dwordx4 {v(T + 4 * q, 4)}, {v(L16)}, s[56:59], {s(so)} offen offset:{q * 1024} sc1")
        else:
            for q in range(4):
                a.I(f"buffer_store_dwordx4 {v(A + 4 * q, 4)}, {v(L16)}, s[56:59], {s(so)} offen offset:{q * 1024} sc1")

    sync([("C", n, 0) for n in range(3)])
    st()
    for i in range(LOOK):
        read(i)
    NM = 128
    LW = 81920
    B3RM = (68, 76, 84, 92, 32, 128, 136, 152, 168, 176)
    mats = []
    for i in range(NM):
        ac, _, _, g = sched[i]
        lg.wait(i)
        if i < 96:
            need([("W", g)])
            vm.wait(("W", g))
        a.I(f"{MF} {v(ac, 16)}, {v(WF + 4 * g, 4)}, {v(RING + 4 * (i % 6), 4)}, {'0' if g == 0 else v(ac, 16)}")
        j = i + LOOK
        if j < NM:
            if j < 96 and j % 24 == 0:
                sync([("C", n, j // 24) for n in range(3)])
            elif j == 96:
                sync([("C", 3, c) for c in range(2)])
            elif j == 112:
                a.I("s_barrier")
            read(j)
        if i in (25, 49):
            c = i // 24
            a.I("s_barrier")
            for n in range(3):
                cdma(n, 2 * (c + 1))
                cdma(n, 2 * (c + 1) + 1)
            if c == 1:
                for g2 in range(24, 32):
                    wload(g2)
        if i == OWNAT:
            for k in range(8):
                cdma(3, k)
        if i == B3AT:
            n0 = len(a.items)
            b3_loads(a, 8, before=lambda: (a.I("s_cmp_lg_u32 s18, 0"), a.I(f"s_cbranch_scc1 {N}_nb3l")))
            a.items[n0:] = [x for x in a.items[n0:] if not (x[0] == "i" and x[1].text == "s_waitcnt lgkmcnt(0)")]
            a.label(f"{N}_nb3l")
        if i in (47, 95, 107):
            st()
        if i == 96 + 4:
            a.I("s_lshl_b32 s48, s18, 15")
            a.I(f"v_add_u32 {v(LA)}, s48, {v(CMB)}")
            a.I(f"v_xor_b32 {v(LB_)}, 0x8000, {v(LA)}")
            a.I(f"v_add_u32 v31, 0x10000, {v(CMB)}")
            give_l(AC[1], LB_, 0)
            a.I("s_cmp_eq_u32 s18, 0")
            a.I(f"s_cbranch_scc1 {N}_g2")
            give_l(AC[2], 31, 0)
            a.label(f"{N}_g2")
            a.I(f"v_mov_b32 v64, {LW}")
            for j in range(2):
                a.I(f"v_mov_b32 {v(66 + j)}, 0")
            for j in range(3):
                a.I(f"ds_write_b64 v64, v[66:67] offset:{8 * j}")
            vm.wait([("C", 3, 2), ("C", 3, 3)])
            a.I("s_add_u32 s51, s18, 1")
            slot_calc(50, "s_add_u32 s50, s40, s51")
            slot_calc(51, "s_add_u32 s51, s40, 3")
            a.I("s_waitcnt lgkmcnt(0)")
            lg.q = []
            a.I("s_barrier")
            take_l(AC[0], AC[1], LA, 0, 50)
            a.I("s_cmp_lg_u32 s18, 0")
            a.I(f"s_cbranch_scc1 {N}_t2")
            take_l(AC[2], AC[0], 31, 0, 51)
            a.label(f"{N}_t2")
            n0 = len(a.items)
            b3_body(a, 65536, 8, loaded=True, part=1, rm=B3RM)
            mats = a.items[n0:] if MATF else []
            del a.items[n0:]
        if i > 96 + 5 and mats:
            a.items.extend(mats[:9])
            del mats[:9]
        if i == SIG3:
            a.I("s_cmp_eq_u32 s18, 0")
            a.I(f"s_cbranch_scc1 {N}_nopl")
            part_loads()
            a.label(f"{N}_nopl")
        pump(2 if i < 96 else 1)

    def give(n):
        lab = a.uid(f"{N}_g")
        a.I("s_cmp_eq_u32 s18, 1")
        a.I(f"s_cbranch_scc1 {lab}")
        give_l(OWN, CMB, 49152)
        a.label(lab)
        a.I("s_waitcnt lgkmcnt(0)")

    st()
    a.I("s_lshl_b32 s44, s16, 2")
    a.I(f"s_add_u32 s44, s44, {LW + 4}")
    a.I("v_mov_b32 v30, s44")
    a.I("v_mov_b32 v1, 1")
    a.I("s_cmp_eq_u32 s18, 1")
    a.I(f"s_cbranch_scc1 {N}_fin")
    a.I("s_nop 6")
    give_l(OWN, CMB, 49152)
    a.I("s_waitcnt lgkmcnt(0)")
    a.I("ds_write_b32 v30, v1")

    def meet():
        a.I(f"v_mov_b32 v30, {LW}")
        a.I("v_mov_b32 v31, 1")
        a.I("s_mov_b64 exec, 1")
        a.I("ds_add_u32 v30, v31")
        a.I("s_mov_b64 exec, -1")
        a.label(f"{N}_meet")
        a.I("ds_read_b32 v31, v30")
        a.I("s_waitcnt lgkmcnt(0)")
        a.I("v_readfirstlane_b32 s44, v31")
        a.I("s_nop 0")
        a.I("s_cmp_lt_u32 s44, 4")
        a.I(f"s_cbranch_scc1 {N}_meet")

    assert not mats
    b3_body(a, 65536, 8, loaded=True, bar=meet, part=2 if MATF else 0, rm=B3RM, tw=192)
    n_ = st.n
    st()
    st.dump(17, 4, tmpv=16)
    st.n = n_
    a.I("s_endpgm")
    a.label(f"{N}_fin")
    A = OWN
    a.I("v_and_b32 v3, 31, v0")
    a.I("v_lshlrev_b32 v3, 11, v3")
    a.I("v_lshrrev_b32 v4, 5, v0")
    a.I("v_lshl_add_u32 v3, v4, 4, v3")
    a.I("s_lshl2_add_u32 s65, s41, s40")
    a.I("s_lshl_b32 s65, s65, 16")
    a.I("s_lshl_b32 s66, s42, 8")
    a.I("s_add_u32 s65, s65, s66")
    a.I("s_lshl_b32 s66, s16, 6")
    a.I("s_add_u32 s65, s65, s66")
    srd(a, 52, 8, 9, 4 * MB)
    a.label(f"{N}_pw")
    a.I("ds_read_b32 v31, v30")
    a.I("s_waitcnt lgkmcnt(0)")
    a.I("v_readfirstlane_b32 s44, v31")
    a.I("s_nop 0")
    a.I("s_cmp_lg_u32 s44, 1")
    a.I(f"s_cbranch_scc1 {N}_pw")
    for q in range(4):
        a.I(f"ds_read_b128 {v(WF + 4 * q, 4)}, {v(CMB)} offset:{49152 + q * 1024}")
    a.I("s_mov_b32 s44, 0")
    a.I("s_waitcnt lgkmcnt(0)")
    a.I(f"s_branch {N}_chk")
    a.label(f"{N}_again")
    part_loads()
    a.label(f"{N}_chk")
    a.I("s_waitcnt vmcnt(0)")
    regs = [WF + 16 * k + j for k in range(1, 4) for j in range(8)]
    a.I(f"v_max3_u32 v4, {v(regs[0])}, {v(regs[1])}, {v(regs[2])}")
    for j in range(3, 23, 2):
        a.I(f"v_max3_u32 v4, v4, {v(regs[j])}, {v(regs[j + 1])}")
    a.I(f"v_max_u32 v4, v4, {v(regs[23])}")
    a.I("v_cmp_eq_u32 vcc, -1, v4")
    a.I("s_add_u32 s44, s44, 1")
    a.I(f"s_cbranch_vccz {N}_got")
    a.I("s_cmp_lt_u32 s44, 0x10000")
    a.I(f"s_cbranch_scc1 {N}_again")
    a.label(f"{N}_got")
    st()
    for k in range(4):
        for j in range(16):
            if PB16 and k:
                if j & 1:
                    a.I(f"v_and_b32 v64, 0xffff0000, {v(WF + 16 * k + j // 2)}")
                else:
                    a.I(f"v_lshlrev_b32 v64, 16, {v(WF + 16 * k + j // 2)}")
                a.I(f"v_add_f32 {v(A + j)}, {v(A + j)}, v64")
            else:
                a.I(f"v_add_f32 {v(A + j)}, {v(A + j)}, {v(WF + 16 * k + j)}")
    pack(a, 8, A, 8)
    a.I("s_nop 1")
    for h in range(2):
        a.I(f"v_permlane32_swap_b32 {v(8 + 4 * h)}, {v(10 + 4 * h)}")
        a.I(f"v_permlane32_swap_b32 {v(9 + 4 * h)}, {v(11 + 4 * h)}")
        a.I(f"buffer_store_dwordx4 {v(8 + 4 * h, 4)}, v3, s[52:55], s65 offen offset:{32 * h}{os.environ.get('OPA', ' nt')}")
    st.dump(17, 4, tmpv=16)
    kend(a, N)
    return a, N, (256, 512, 163840)


def gen_l3_s4():
    a = Asm()
    N = "l3_kernel"
    kstart(a, N, 256)
    a.I("s_load_dwordx2 s[4:5], s[0:1], 88")
    a.I("s_load_dwordx2 s[8:9], s[0:1], 72")
    a.I("v_lshrrev_b32 v1, 6, v0")
    a.I("v_and_b32 v0, 63, v0")
    a.I("s_nop 0")
    a.I("v_readfirstlane_b32 s17, v1")
    st = Stamper(a, "l3")
    L16, RA, RB_, ACC, FR = 128, 129, 130, 132, 164
    PB16 = int(os.environ.get("PB16", "0"))
    NST, STG = 4, 4
    a.I("s_bfe_u32 s40, s2, 0x20001")
    a.I("s_and_b32 s43, s2, 1")
    a.I("s_lshl_b32 s43, s43, 5")
    a.I("s_lshr_b32 s44, s2, 3")
    a.I("s_add_u32 s43, s43, s44")
    a.I("s_lshr_b32 s41, s43, 2")
    a.I("s_and_b32 s42, s43, 3")
    a.I(f"v_lshlrev_b32 {v(L16)}, 4, v0")
    a.I("s_lshl_b32 s45, s41, 2")
    a.I("s_add_u32 s45, s45, s17")
    a.I("s_lshl_b32 s45, s45, 18")
    a.I("s_lshl_b32 s46, s40, 16")
    a.I("s_add_u32 s45, s45, s46")
    a.I(f"s_add_u32 s45, s45, {hex(WS_CTX)}")
    a.I("s_lshl_b32 s46, s42, 1")
    a.I("s_bfe_u32 s47, s17, 0x10001")
    a.I("s_add_u32 s46, s46, s47")
    a.I("s_lshl_b32 s46, s46, 19")
    a.I("s_lshl_b32 s47, s40, 17")
    a.I("s_add_u32 s46, s46, s47")
    a.I("s_and_b32 s47, s17, 1")
    a.I("s_lshl_b32 s47, s47, 10")
    a.I("s_add_u32 s46, s46, s47")
    a.I(f"s_add_u32 s46, s46, {hex(WS_WO)}")
    a.I("s_cmp_lt_u32 s17, 4")
    a.I("s_cselect_b32 s45, s45, s46")
    a.I("s_movk_i32 s46, 0x800")
    a.I("s_cselect_b32 s46, 1024, s46")
    a.I("s_lshl_b32 s47, s17, 10")
    a.I("s_and_b32 s48, s17, 1")
    a.I("s_lshl_b32 s48, s48, 11")
    a.I(f"v_add_u32 {v(RA)}, s48, {v(L16)}")
    a.I("s_lshr_b32 s48, s17, 1")
    a.I("s_lshl_b32 s48, s48, 10")
    a.I("s_add_u32 s48, s48, 4096")
    a.I(f"v_add_u32 {v(RB_)}, s48, {v(L16)}")
    a.I(f"v_add_u32 {v(RB_ + 1)}, 0x10000, {v(RA)}")
    a.I(f"v_add_u32 v127, 0x10000, {v(RB_)}") if False else None
    a.I("s_waitcnt lgkmcnt(0)")
    srd(a, 52, 4, 5, 64 * MB)
    st()
    vm, lg = VM(a), LG(a)

    def dma(g, emit=True):
        L = [lambda: a.I(f"s_add_u32 m0, s47, {(g % (NST * STG)) * 8192}"),
             lambda: a.I("s_add_u32 s49, s45, s46") if False else a.I("s_nop 0"),
             lambda: vm.issue(f"buffer_load_dwordx4 {v(L16)}, s[52:55], s45 offen lds", g),
             lambda: a.I("s_add_u32 s45, s45, s46")]
        return L

    def first_loads():
        for g in range((NST - 1) * STG):
            for f in dma(g):
                f()
        return (NST - 1) * STG

    first_loads()
    a.I("s_and_b32 s18, s17, 1")
    a.I("s_lshr_b32 s19, s40, 1")
    a.I("s_cmp_eq_u32 s18, s19")
    a.I("s_cselect_b32 s18, 1, 0")
    a.I("s_lshr_b32 s16, s17, 1")
    a.I("s_lshl_b32 s19, s16, 6")
    a.I("v_add_u32 v2, s19, v0")
    a.I("s_cmp_eq_u32 s18, 1")
    a.I(f"s_cbranch_scc1 {N}_nob3l")
    b3_loads(a, 8)
    a.label(f"{N}_nob3l")
    st()
    RA2, RB2 = RB_ + 1, 127
    a.I(f"v_add_u32 {v(RB2)}, 0x10000, {v(RB_)}")
    NG = 64

    def reads(g):
        sl = g % (NST * STG)
        ra, rb = (RA, RB_) if sl < 8 else (RA2, RB2)
        off = (sl % 8) * 8192
        d = FR + 12 * (g % 3)
        lg.issue(f"ds_read_b128 {v(d, 4)}, {v(rb)} offset:{off}", g)
        lg.issue(f"ds_read_b128 {v(d + 4, 4)}, {v(ra)} offset:{off}", g)
        lg.issue(f"ds_read_b128 {v(d + 8, 4)}, {v(ra)} offset:{off + 1024}", g)

    pend = []

    def sync(stg):
        vm.wait(list(range(stg * STG, (stg + 1) * STG)))
        a.I("s_barrier")
        nxt = stg + NST - 2
        if stg >= 1 and (nxt + 1) * STG <= NG and nxt >= NST - 1:
            for g in range(nxt * STG, (nxt + 1) * STG):
                pend.extend(dma(g))

    sync(0)
    st()
    reads(0)
    reads(1)
    for g in range(NG):
        j = g + 2
        if j < NG and j % STG == 0:
            while pend:
                pend.pop(0)()
            sync(j // STG)
        lg.wait(g)
        d = FR + 12 * (g % 3)
        for i in range(2):
            acc = v(ACC + 16 * i, 16)
            a.I(f"{MF} {acc}, {v(d, 4)}, {v(d + 4 + 4 * i, 4)}, {'0' if g == 0 else acc}")
            if i == 0 and j < NG:
                reads(j)
            for _ in range(2 + i):
                if pend:
                    pend.pop(0)()
    st()
    srd(a, 56, 4, 5, 16 * MB, add=WS_PART)
    a.I("s_lshr_b32 s48, s17, 1")
    a.I("s_and_b32 s49, s17, 1")
    a.I("s_lshl_b32 s50, s43, 2")
    a.I("s_lshl1_add_u32 s50, s49, s50")
    a.I("s_lshl_b32 s50, s50, 2")
    a.I("s_add_u32 s50, s50, s40")
    a.I("s_lshl_b32 s50, s50, 2")
    a.I("s_add_u32 s50, s50, s48")
    a.I("s_lshl_b32 s50, s50, 12")
    a.I("s_add_u32 s51, s50, 0x10000")
    a.I("s_lshl_b32 s49, s49, 1")
    for i in range(2):
        lab = f"{N}_keep{i}"
        a.I("s_cmp_eq_u32 s49, s40")
        a.I(f"s_cbranch_scc1 {lab}")
        if PB16:
            pack(a, FR + 8 * i, ACC + 16 * i, 8)
            for q in range(2):
                a.I(f"buffer_store_dwordx4 {v(FR + 8 * i + 4 * q, 4)}, {v(L16)}, s[56:59], s{50 + i} offen offset:{q * 1024} sc1")
        else:
            for q in range(4):
                a.I(f"buffer_store_dwordx4 {v(ACC + 16 * i + 4 * q, 4)}, {v(L16)}, s[56:59], s{50 + i} offen offset:{q * 1024} sc1")
        a.label(lab)
        a.I("s_add_u32 s49, s49, 1")
    srd(a, 60, 4, 5, 64 * 128, add=WS_FLAG)
    a.I("s_lshl_b32 s64, s43, 7")
    a.I("s_lshl2_add_u32 s67, s40, s64")

    def signal():
        a.I("v_mov_b32 v1, 1")
        a.I("s_waitcnt vmcnt(0)")
        a.I("s_barrier")
        a.I("s_cmp_lg_u32 s17, 7")
        lab = a.uid(f"{N}_nosig")
        a.I(f"s_cbranch_scc1 {lab}")
        a.I("s_mov_b64 exec, 1")
        a.I("buffer_store_dword v1, off, s[60:63], s67 sc1")
        a.I("s_mov_b64 exec, -1")
        a.label(lab)

    a.I("s_cmp_eq_u32 s18, 1")
    a.I(f"s_cbranch_scc1 {N}_nob3")
    b3_body(a, 131072, 8, loaded=True, mid=signal)
    a.I("s_endpgm")
    a.label(f"{N}_nob3")
    a.I("s_bitcmp0_b32 s40, 0")
    a.I(f"s_cbranch_scc1 {N}_own0")
    for j in range(16):
        a.I(f"v_mov_b32 {v(ACC + j)}, {v(ACC + 16 + j)}")
    a.label(f"{N}_own0")
    a.I("s_lshl_b32 s50, s43, 2")
    a.I("s_add_u32 s50, s50, s40")
    a.I("s_lshl_b32 s50, s50, 4")
    a.I("s_add_u32 s50, s50, s48")
    a.I("s_lshl_b32 s50, s50, 12")
    a.I("v_and_b32 v3, 31, v0")
    a.I("v_lshlrev_b32 v3, 11, v3")
    a.I("v_lshrrev_b32 v4, 5, v0")
    a.I("v_lshl_add_u32 v3, v4, 4, v3")
    a.I("s_lshl_b32 s65, s41, 2")
    a.I("s_add_u32 s65, s65, s40")
    a.I("s_lshl_b32 s65, s65, 16")
    a.I("s_lshl_b32 s66, s42, 8")
    a.I("s_add_u32 s65, s65, s66")
    a.I("s_lshl_b32 s66, s48, 6")
    a.I("s_add_u32 s65, s65, s66")
    srd(a, 52, 8, 9, 4 * MB)
    signal()
    a.I("s_barrier")
    st()
    a.label(f"{N}_spin")
    a.I("buffer_load_dwordx4 v[4:7], off, s[60:63], s64 sc1")
    a.I("s_waitcnt vmcnt(0)")
    a.I("v_and_b32 v4, v4, v5")
    a.I("v_and_b32 v6, v6, v7")
    a.I("v_and_b32 v4, v4, v6")
    a.I("s_nop 0")
    a.I("v_readfirstlane_b32 s66, v4")
    a.I("s_nop 0")
    a.I("s_cmp_lg_u32 s66, 1")
    a.I(f"s_cbranch_scc1 {N}_spin")
    st()
    for k in range(1, 4):
        a.I(f"s_add_u32 s66, s40, {k}")
        a.I("s_and_b32 s66, s66, 3")
        a.I("s_lshl_b32 s66, s66, 14")
        a.I("s_add_u32 s66, s66, s50")
        for q in range(2 if PB16 else 4):
            a.I(f"buffer_load_dwordx4 {v(16 * k + 4 * q, 4)}, {v(L16)}, s[56:59], s66 offen offset:{q * 1024} sc1")
    for k in range(1, 4):
        a.I(f"s_waitcnt vmcnt({(2 if PB16 else 4) * (3 - k)})")
        for j in range(16):
            if PB16:
                if j & 1:
                    a.I(f"v_and_b32 v64, 0xffff0000, {v(16 * k + j // 2)}")
                else:
                    a.I(f"v_lshlrev_b32 v64, 16, {v(16 * k + j // 2)}")
                a.I(f"v_add_f32 {v(ACC + j)}, {v(ACC + j)}, v64")
            else:
                a.I(f"v_add_f32 {v(ACC + j)}, {v(ACC + j)}, {v(16 * k + j)}")
    pack(a, 8, ACC, 8)
    a.I("s_nop 1")
    for h in range(2):
        a.I(f"v_permlane32_swap_b32 {v(8 + 4 * h)}, {v(10 + 4 * h)}")
        a.I(f"v_permlane32_swap_b32 {v(9 + 4 * h)}, {v(11 + 4 * h)}")
        a.I(f"buffer_store_dwordx4 {v(8 + 4 * h, 4)}, v3, s[52:55], s65 offen offset:{32 * h}{os.environ.get('OPA', ' nt')}")
    st.dump(17, 4, tmpv=16)
    kend(a, N)
    return a, N, (256, 512, 131072 + 8192 + 64)


def gen_l3_old():
    a = Asm()
    N = "l3_kernel"
    kstart(a, N, 256)
    a.I("s_load_dwordx2 s[4:5], s[0:1], 88")
    a.I("s_load_dwordx2 s[6:7], s[0:1], 40")
    a.I("s_load_dwordx2 s[8:9], s[0:1], 72")
    a.I("v_lshrrev_b32 v1, 6, v0")
    a.I("v_and_b32 v2, 255, v0")
    a.I("v_and_b32 v0, 63, v0")
    a.I("v_readfirstlane_b32 s16, v1")
    a.I("s_nop 0")
    a.I("s_cmp_ge_u32 s16, 4")
    a.I(f"s_cbranch_scc1 {N}_b3")
    st = Stamper(a, "l3")
    OB = int(os.environ.get('OB', '3'))
    ACC = (oproj_body3 if OB == 3 else oproj_body2)(a, N, st, bar_at=8)
    a.I("s_barrier")
    oproj_finish(a, ACC, 32768 if OB == 3 else 16384)
    st.dump(16, 4, tmpv=8)
    a.I("s_endpgm")
    a.label(f"{N}_b3")
    a.I("s_and_b32 s16, s16, 3")
    b3_body(a, 131072, 8)
    kend(a, N)
    return a, N, (256, 512, 131072 + 8192 + 64)


KERNELS = [gen_l1, lambda: gen_attn(not os.environ.get('NOB2')), {'v3': gen_l3v3, 'new': gen_l3, 's4': gen_l3_s4, 'old': gen_l3_old}[os.environ.get('L3V', 'v3')]]

if __name__ == "__main__":
    p = sys.argv[1] if len(sys.argv) > 1 else os.path.join(os.path.dirname(os.path.abspath(__file__)), "..",
                                                           "cdna_kernels", NAME + ".s")
    sys.exit(1 if build(KERNELS, p) else 0)
```

```python
import sys, os, math, struct
sys.path.insert(0, os.path.dirname(os.path.abspath(__file__)))
from asmlib import Asm, VM, LG, v, s, ag

NAME = "concat_heads__compressed_kv_cla__spectral_gfnet__prompt"
MB = 1 << 20
WS_K, WS_V, WS_CTX, WS_Y, WS_WF, WS_Z, WS_Q = 0, 16 * MB, 32 * MB, 48 * MB, 52 * MB, 56 * MB, 64 * MB
WS_WO = 60 * MB
if os.environ.get('ALIAS'):
    WS_Q = WS_CTX
WS_PART = 64 * MB
WS_FLAG = 56 * MB + 2560 * 1024
YSTR = 8320
KA = dict(x=0, ckv=8, wq=16, wuk=24, wuv=32, wo=40, bx=48, wr=56, wi=64, out=72, dbg=80, ws=88)
MF = "v_mfma_f32_32x32x16_bf16"
SP = os.environ.get("SP", " sc1")


def f32(x):
    return "0x%08x" % struct.unpack("<I", struct.pack("<f", x))[0]


def srd(a, d, lo, hi, size, add=0):
    if add:
        a.I(f"s_add_u32 {s(d)}, {s(lo)}, {add if isinstance(add, str) else hex(add)}")
        a.I(f"s_addc_u32 {s(d + 1)}, {s(hi)}, 0")
    else:
        a.I(f"s_mov_b32 {s(d)}, {s(lo)}")
        a.I(f"s_mov_b32 {s(d + 1)}, {s(hi)}")
    a.I(f"s_mov_b32 {s(d + 2)}, {size if isinstance(size, str) else hex(size)}")
    a.I(f"s_mov_b32 {s(d + 3)}, 0x20000")


STAMPS = int(os.environ.get("STAMPS", "0"))
ST0 = 72


class Stamper:
    def __init__(self, a, name=""):
        self.a, self.n = a, 0
        self.on = STAMPS and os.environ.get("STAMPK", name) == name

    def __call__(self):
        if self.on and self.n < 11:
            if self.n == 0:
                self.a.I("s_memrealtime s[68:69]")
            self.a.I(f"s_memtime {s(ST0 + 2 * self.n, 2)}")
            self.n += 1

    def dump(self, wave_s, wslo, tmpv=8):
        if not self.on:
            return
        a = self.a
        a.I("s_waitcnt vmcnt(0) lgkmcnt(0)")
        a.I(f"s_memtime {s(ST0 + 2 * self.n, 2)}")
        a.I("s_memrealtime s[70:71]")
        self.n += 1
        srd(a, 96, wslo, wslo + 1, 1 * MB, add=128 * MB)
        a.I("s_lshl_b32 s100, s2, 3")
        a.I(f"s_add_u32 s100, s100, {s(wave_s)}")
        a.I("s_lshl_b32 s100, s100, 8")
        a.I("s_waitcnt lgkmcnt(0)")
        a.I(f"v_mov_b32 {v(tmpv + 1)}, 0")
        for i in range(self.n):
            a.I(f"v_mov_b32 {v(tmpv)}, {s(ST0 + 2 * i)}")
            a.I(f"buffer_store_dword {v(tmpv)}, {v(tmpv + 1)}, s[96:99], s100 offen offset:{4 * i}")
        for i, r in ((62, 68), (63, 70), (61, ST0 + 2 * (self.n - 1))):
            a.I(f"v_mov_b32 {v(tmpv)}, {s(r)}")
            a.I(f"buffer_store_dword {v(tmpv)}, {v(tmpv + 1)}, s[96:99], s100 offen offset:{4 * i}")
        a.I("s_waitcnt vmcnt(0)")


DBGT = int(os.environ.get("DBGT", "0"))
KIDX = [0, 0]


def dbg_stamp(a, end):
    k = KIDX[0]
    lab = a.uid("dbgskip%d_%d" % (k, KIDX[1]))
    KIDX[1] += 1
    if not end:
        a.I("v_readfirstlane_b32 s89, v0")
        a.I("s_nop 1")
        a.I("s_lshr_b32 s89, s89, 6")
        a.I("s_or_b32 s89, s89, s2")
    a.I("s_cmp_lg_u32 s89, 0")
    a.I(f"s_cbranch_scc1 {lab}")
    a.I("s_load_dwordx4 s[92:95], s[90:91], 80")
    a.I("s_waitcnt vmcnt(0) lgkmcnt(0)")
    a.I("s_memrealtime s[86:87]")
    a.I(f"s_add_u32 s96, s94, {hex(200 * MB)}")
    a.I("s_addc_u32 s97, s95, 0")
    a.I("s_mov_b32 s98, 256")
    a.I("s_mov_b32 s99, 0x20000")
    a.I("s_waitcnt lgkmcnt(0)")
    a.I("v_mov_b32 v254, s86")
    a.I(f"buffer_store_dword v254, off, s[96:99], 0 offset:{8 * k + 4 * end} sc0 sc1")
    a.I("s_waitcnt vmcnt(0)")
    if end and k == DBGT - 1:
        a.I("v_lshlrev_b32 v253, 2, v0")
        a.I("buffer_load_dword v254, v253, s[96:99], 0 offen sc0 sc1")
        a.I("s_mov_b32 s96, s92")
        a.I("s_mov_b32 s97, s93")
        a.I("s_waitcnt vmcnt(0)")
        a.I("buffer_store_dword v254, v253, s[96:99], 0 offen")
        a.I(f"s_sub_u32 s96, s92, {k * 512}")
        a.I("s_subb_u32 s97, s93, 0")
        a.I("s_nop 0")
        a.I("buffer_store_dword v254, v253, s[96:99], 0 offen")
    a.label(lab)


def code_touch(a, kname, wave_s, sr, vt, nw_log=3, kd=True):
    if os.environ.get("NOCP"):
        return
    a.I(f"s_getpc_b64 {s(sr, 2)}")
    a.I(f"s_add_u32 {s(sr)}, {s(sr)}, cs_{kname}@rel32@lo+4")
    a.I(f"s_addc_u32 {s(sr + 1)}, {s(sr + 1)}, cs_{kname}@rel32@hi+12")
    a.I(f"s_mov_b32 {s(sr + 2)}, {kname}_end - {kname}")
    a.I(f"s_mov_b32 {s(sr + 3)}, 0x20000")
    a.I(f"s_lshr_b32 {s(sr + 4)}, s2, 3")
    a.I(f"s_lshl_b32 {s(sr + 4)}, {s(sr + 4)}, {nw_log}")
    a.I(f"s_add_u32 {s(sr + 4)}, {s(sr + 4)}, {s(wave_s)}")
    a.I(f"s_lshl_b32 {s(sr + 4)}, {s(sr + 4)}, {12 - nw_log}")
    a.I(f"v_lshlrev_b32 {v(vt)}, 7, v0")
    a.I(f"s_mov_b64 exec, {(1 << (32 >> nw_log)) - 1}")
    a.I(f"buffer_load_dword {v(vt + 1)}, {v(vt)}, {s(sr, 4)}, {s(sr + 4)} offen")
    if kd and os.environ.get("KD"):
        a.I(f"s_getpc_b64 {s(sr, 2)}")
        a.I(f"s_add_u32 {s(sr)}, {s(sr)}, kdl_{kname}@rel32@lo+4")
        a.I(f"s_addc_u32 {s(sr + 1)}, {s(sr + 1)}, kdl_{kname}@rel32@hi+12")
        a.I(f"s_mov_b32 {s(sr + 2)}, 64")
        a.I("s_mov_b64 exec, 1")
        a.I(f"buffer_load_dword {v(vt + 1)}, off, {s(sr, 4)}, 0")
    a.I("s_mov_b64 exec, -1")


def kstart(a, name, nwg):
    a.raw(".text")
    a.raw(f".globl {name}")
    a.raw(".p2align 8")
    a.raw(f".type {name},@function")
    a.label(name)
    a.label("cs_" + name)
    a.I(f"s_cmp_ge_u32 s2, {nwg}")
    a.I(f"s_cbranch_scc1 {name}_end")
    if DBGT:
        a.I("s_mov_b64 s[90:91], s[0:1]")
        dbg_stamp(a, 0)


def kend(a, name):
    a.label(name + "_end")
    a.I("s_endpgm")


def kdesc(name, nv, ns, na=0):
    nv = (nv + 7) // 8 * 8
    acc_off = nv
    nv = nv + (na + 7) // 8 * 8
    return f""".section .rodata,"a"
.p2align 6
kdl_{name}:
.amdhsa_kernel {name}
  .amdhsa_next_free_vgpr {nv}
  .amdhsa_next_free_sgpr {max(ns, 16)}
  .amdhsa_accum_offset {acc_off}
  .amdhsa_group_segment_fixed_size 0
  .amdhsa_kernarg_size 96
  .amdhsa_user_sgpr_count 2
  .amdhsa_user_sgpr_kernarg_segment_ptr 1
  .amdhsa_system_sgpr_workgroup_id_x 1
  .amdhsa_float_denorm_mode_32 3
.end_amdhsa_kernel
"""


QSCALE = math.log2(math.e) / math.sqrt(128.0)


def gen_qkv():
    a = Asm()
    N = "qkvproj_kernel"
    kstart(a, N, 256)
    a.I("s_load_dwordx4 s[4:7], s[0:1], 0")
    a.I("s_load_dwordx4 s[8:11], s[0:1], 16")
    a.I("s_load_dwordx2 s[12:13], s[0:1], 32")
    a.I("s_load_dwordx2 s[14:15], s[0:1], 88")
    a.I("v_lshrrev_b32 v1, 6, v0")
    a.I("v_and_b32 v0, 63, v0")
    a.I("s_and_b32 s17, s2, 7")
    a.I("v_readfirstlane_b32 s16, v1")
    a.I("s_lshr_b32 s18, s2, 3")
    a.I("s_and_b32 s19, s18, 7")
    a.I("s_lshr_b32 s18, s18, 3")
    a.I("s_lshl_b32 s40, s17, 2")
    a.I("s_add_u32 s18, s18, s40")
    a.I("s_mov_b32 s41, 0")
    a.I("s_mul_i32 s42, s18, 6")
    a.I("s_cmp_ge_u32 s18, 11")
    a.I("s_cselect_b32 s41, 1, s41")
    a.I("s_cselect_b32 s40, 64, 0")
    a.I("s_cmp_ge_u32 s18, 21")
    a.I("s_cselect_b32 s41, 2, s41")
    a.I("s_cselect_b32 s40, 126, s40")
    a.I("s_sub_u32 s42, s42, s40")
    a.I("s_lshl_b32 s44, s19, 3")
    a.I("s_add_u32 s44, s44, s16")
    hl, b4, t1, t2 = 9, 10, 11, 12
    a.I(f"v_lshrrev_b32 {v(hl)}, 5, v0")
    a.I(f"v_bfe_u32 {v(b4)}, v0, 4, 1")
    a.I(f"v_lshrrev_b32 {v(t1)}, 3, v0")
    a.I(f"v_lshlrev_b32 {v(t1)}, 10, {v(t1)}")
    a.I("s_lshl_b32 s45, s44, 15")
    a.I(f"v_add_u32 {v(t1)}, s45, {v(t1)}")
    a.I(f"v_lshrrev_b32 {v(t2)}, 4, v0")
    a.I("v_and_b32 v13, 7, v0")
    a.I(f"v_xor_b32 {v(t2)}, {v(t2)}, v13")
    a.I(f"v_lshl_add_u32 v52, {v(t2)}, 4, {v(t1)}")
    a.I("v_xor_b32 v53, 64, v52")
    a.I(f"v_add_u32 v53, {8192 - 1024}, v53")
    a.I(f"v_add_u32 v54, {2 * (8192 - 1024)}, v52")
    a.I(f"v_add_u32 v55, {2 * (8192 - 1024)}, v53")
    a.I("v_and_b32 v13, 31, v0")
    a.I(f"v_bfe_u32 {v(t2)}, v0, 1, 3")
    a.I(f"v_xor_b32 {v(t2)}, {v(t2)}, {v(hl)}")
    a.I(f"v_lshlrev_b32 {v(t2)}, 4, {v(t2)}")
    a.I(f"v_lshl_add_u32 {v(t2)}, v13, 7, {v(t2)}")
    a.I("s_mul_i32 s46, s16, 12288")
    for t in range(4):
        a.I(f"v_xor_b32 {v(56 + t)}, {32 * t}, {v(t2)}")
    for t in range(4):
        a.I(f"v_add_u32 {v(56 + t)}, s46, {v(56 + t)}")
    a.I("v_lshrrev_b32 v2, 3, v0")
    a.I("v_lshlrev_b32 v2, 13, v2")
    a.I(f"v_lshlrev_b32 {v(t1)}, 2, {v(b4)}")
    a.I(f"v_and_b32 {v(t2)}, 7, v0")
    a.I(f"v_xor_b32 {v(t1)}, {v(t1)}, {v(t2)}")
    a.I(f"v_lshl_add_u32 v2, {v(t1)}, 4, v2")
    a.I("s_lshl_b32 s45, s16, 17")
    a.I("v_add_u32 v2, s45, v2")
    a.I(f"v_add_u32 v3, {65536 - 1024}, v2")
    a.I(f"v_bfe_u32 {v(t1)}, v0, 2, 2")
    a.I(f"v_lshl_add_u32 {v(t2)}, {v(hl)}, 3, {v(t1)}")
    a.I(f"v_lshlrev_b32 v4, 7, {v(t2)}")
    a.I(f"v_lshl_add_u32 v4, {v(b4)}, 5, v4")
    a.I(f"v_and_b32 {v(t2)}, 3, v0")
    a.I(f"v_lshl_add_u32 v4, {v(t2)}, 3, v4")
    a.I(f"v_bfe_u32 {v(t2)}, v0, 3, 1")
    a.I(f"v_lshl_add_u32 v4, {v(t2)}, 6, v4")
    a.I("v_xor_b32 v5, 64, v4")
    a.I("v_add_u32 v6, 0x10000, v4")
    a.I("v_add_u32 v7, 0x10000, v5")
    a.I("v_add_u32 v50, 0x20000, v4")
    a.I("v_add_u32 v51, 0x20000, v5")
    a.I("v_lshlrev_b32 v48, 4, v0")
    a.I("s_lshl_b32 s47, s16, 11")
    a.I("s_lshl_b32 s48, s42, 7")
    a.I("s_lshl_b32 s49, s44, 13")
    a.I("s_lshl_b32 s50, s42, 18")
    a.I("s_add_u32 s50, s50, s49")
    a.I("s_waitcnt lgkmcnt(0)")
    a.I("s_cmp_eq_u32 s41, 2")
    a.I("s_cselect_b32 s20, s4, s6")
    a.I("s_cselect_b32 s21, s5, s7")
    a.I("s_cselect_b32 s24, s8, s10")
    a.I("s_cselect_b32 s25, s9, s11")
    a.I(f"s_cselect_b32 s51, {hex(WS_Q)}, 0")
    a.I(f"s_cselect_b32 s52, {f32(QSCALE)}, 1.0")
    a.I(f"s_mov_b32 s22, {hex(2 * MB)}")
    a.I("s_mov_b32 s23, 0x20000")
    a.I(f"s_mov_b32 s26, {hex(4 * MB)}")
    a.I("s_mov_b32 s27, 0x20000")
    srd(a, 28, 14, 15, 16 * MB, add="s51")
    srd(a, 32, 12, 13, 4 * MB)
    srd(a, 36, 14, 15, 16 * MB, add=WS_V)
    srd(a, 56, 6, 7, 2 * MB)
    a.I("s_cmp_eq_u32 s18, 31")
    a.I(f"s_cbranch_scc1 {N}_D")
    a.I("s_cmp_eq_u32 s41, 1")
    a.I(f"s_cbranch_scc1 {N}_B")
    a.I("s_cmp_eq_u32 s18, 10")
    a.I(f"s_cbranch_scc1 {N}_C")

    AF, ACC, RING, PK = 64, 192, 8, 32
    LOOK = 6

    def body(passes, tag):
        vm, lg = VM(a), LG(a)
        st = Stamper(a, "qkv")
        st()
        NP = len(passes)
        NC = 4 * NP
        NM = 64 * NP
        restage = tag == "D"
        blk = {}
        free = [6, 7, 8, 9]
        nxt = [0]

        def dmaW():
            c = nxt[0]
            if c >= NC or not free:
                return False
            b = free.pop(0)
            blk[c] = b
            nxt[0] += 1
            pp, kc = divmod(c, 4)
            form, su, di = passes[pp]
            a.I(f"s_add_u32 m0, s47, {hex(b * 16384)}")
            if su is not None:
                a.I(f"s_mov_b32 s45, {hex((kc << 20) + su * 128)}")
            else:
                a.I(f"s_add_u32 s45, s48, {hex((kc << 20) + di * 128)}")
            sr = "s[32:35]" if form == "V" else "s[24:27]"
            vm.issue(f"buffer_load_dwordx4 v2, {sr}, s45 offen lds", ("W", c))
            vm.issue(f"buffer_load_dwordx4 v3, {sr}, s45 offen offset:1024 lds", ("W", c))
            return True

        def dmaA(j):
            sr = "s[56:59]" if (restage and j < 8) else "s[20:23]"
            a.I(f"s_add_u32 m0, s46, {hex((j % 3) * 4096)}")
            a.I(f"s_mov_b32 s45, {(j % 8) * 128}")
            for i in range(4):
                vm.issue(f"buffer_load_dwordx4 {v(52 + i)}, {sr}, s45 offen offset:{i * 1024} lds", ("A", j))

        def readA(j):
            vm.wait(("A", j))
            for t in range(4):
                lg.issue(f"ds_read_b128 {v(AF + 16 * (j % 8) + 4 * t, 4)}, {v(56 + t)} offset:{(j % 3) * 4096}", ("A", j))

        dmaW(); dmaA(0); dmaA(1); dmaW(); dmaA(2); dmaW(); dmaW()

        def reads(i):
            c, r = divmod(i, 16)
            t, cb = divmod(r, 2)
            b = blk[c]
            base = [4, 6, 50][b // 4] + cb
            off = (b % 4) * 16384 + t * 2048
            d = RING + 4 * (i % LOOK)
            lg.issue(f"ds_read_b64_tr_b16 {v(d, 2)}, {v(base)} offset:{off}", ("W", i))
            lg.issue(f"ds_read_b64_tr_b16 {v(d + 2, 2)}, {v(base)} offset:{off + 512}", ("W", i))

        def sync(c):
            vm.wait(("W", c))
            a.I("s_barrier")
            if c >= 2:
                free.append(blk[c - 2])
            if c == (10 if restage else 5):
                free.extend([0, 1, 2, 3, 4, 5])
            n = 0
            while n < 2 and dmaW():
                n += 1

        def epi(pp):
            out = []
            form, su, di = passes[pp]
            acc = ACC + 32 * (pp & 1)
            so = 54 + (pp & 1)
            if su is not None:
                out.append(lambda: a.I(f"s_add_u32 s{so}, s49, {hex((su >> 1) * 512 * 1024 + (su & 1) * 4096)}"))
            else:
                out.append(lambda: a.I(f"s_add_u32 s{so}, s50, {hex((di >> 1) * 512 * 1024 + (di & 1) * 4096)}"))
            sr = "s[36:39]" if form == "V" else "s[28:31]"
            for cb in range(2):
                for h in range(2):
                    q = 2 * cb + h
                    for i in range(4):
                        src = acc + 16 * cb + 8 * h + 2 * i
                        if form == "K" and tag in "AD":
                            out.append(lambda src=src: a.I(f"v_mul_f32 {v(src)}, s52, {v(src)}"))
                            out.append(lambda src=src: a.I(f"v_mul_f32 {v(src + 1)}, s52, {v(src + 1)}"))
                        out.append(lambda src=src, q=q, i=i: a.I(
                            f"v_cvt_pk_bf16_f32 {v(PK + 4 * q + i)}, {v(src)}, {v(src + 1)}"))
                    out.append(lambda q=q: vm.issue(
                        f"buffer_store_dwordx4 {v(PK + 4 * q, 4)}, v48, {sr}, s{so} offen offset:{q * 1024}{SP}", ("S", pp)))
            return out

        st()
        readA(0)
        sync(0)
        st()
        for i in range(LOOK - 2):
            reads(i)
        lg.wait(("A", 0))
        for i in range(LOOK - 2, LOOK):
            reads(i)
        pend = []
        for i in range(NM):
            c, r = divmod(i, 16)
            t, cb = divmod(r, 2)
            pp, kc = divmod(c, 4)
            k = 8 * kc + t
            if i % 2 == 0:
                lg.wait([("W", i), ("W", i + 1), ("A", i // 8)])
            if pp == 0 and i % 8 == 0 and i // 8 + 3 < (11 if restage else 8):
                dmaA(i // 8 + 3)
            if restage and 72 < i <= 128 + 8 and i % 8 == 4:
                jj = 8 + (i - 76) // 8
                lg.wait(("A", jj))
                if jj + 3 < 16:
                    dmaA(jj + 3)
            acc = v(ACC + 32 * (pp & 1) + 16 * cb, 16)
            wf = v(RING + 4 * (i % LOOK), 4)
            af = v(AF + 4 * k, 4)
            cin = "0" if k == 0 else acc
            if passes[pp][0] == "V":
                a.I(f"{MF} {acc}, {af}, {wf}, {cin}")
            else:
                a.I(f"{MF} {acc}, {wf}, {af}, {cin}")
            j = i + LOOK
            if j < NM:
                if j % 16 == 0:
                    sync(j // 16)
                if j < 64 and j % 8 == 0:
                    readA(j // 8)
                reads(j)
            if restage and 64 <= i < 128 and i % 8 == 7:
                readA(8 + (i - 64) // 8)
            if i % 64 == 63:
                st()
            if i % 64 == 6 and pp >= 1:
                pend = epi(pp - 1)
            if pend:
                pend.pop(0)()
        a.I("s_nop 11")
        for f in epi(NP - 1):
            f()
        st.dump(16, 14)
        a.I("s_endpgm")

    body([("K", None, i) for i in range(6)], "A")
    a.label(N + "_B")
    body([("V", None, i) for i in range(6)], "B")
    a.label(N + "_C")
    body([("K", None, i) for i in range(4)] + [("V", 0, 0), ("V", 1, 0)], "C")
    a.label(N + "_D")
    body([("V", 62, 0), ("V", 63, 0)] + [("K", None, i) for i in range(4)], "D")
    kend(a, N)
    return a, N, (256, 512, 163840)


def gen_attn(withb2=False):
    b2tail = withb2 and os.environ.get("B2MODE", "start") == "tail"
    if b2tail:
        withb2 = False
    LT = int(os.environ.get("LT", "3"))
    a = Asm()
    N = "attn_kernel"
    O, Q, S, P, NEGM, RING = 64, 128, [160, 176], [192, 200], 208, 224
    L16, VKA, VVA, VL, VLS, E, VDA, VDB, QREL, T0, T1, T2, NINF = 1, 2, 3, 4, 5, 6, 10, 11, 12, 13, 14, 15, 48
    PK = 16
    EE = 50
    sW, sH, sP, sN, sC, sPH, sTHR, sBAR, sKO, sKM, sVM, sQS = 16, 17, 18, 19, 20, 21, 40, 41, 42, 43, 44, 45
    kstart(a, N, 256)
    a.I("s_load_dwordx2 s[4:5], s[0:1], 88")
    a.I("s_load_dwordx2 s[14:15], s[0:1], 40")
    a.I("v_lshrrev_b32 v1, 6, v0")
    a.I("v_and_b32 v0, 63, v0")
    a.I("s_and_b32 s6, s2, 7")
    a.I(f"v_readfirstlane_b32 {s(sW)}, v1")
    a.I("s_lshr_b32 s7, s2, 3")
    a.I("s_and_b32 s8, s7, 3")
    a.I("s_lshl_b32 s6, s6, 2")
    a.I(f"s_add_u32 {s(sH)}, s6, s8")
    a.I(f"s_lshr_b32 {s(sP)}, s7, 2")
    a.I(f"s_lshl_b32 s6, {s(sP)}, 2")
    a.I(f"s_sub_u32 s7, 60, s6")
    a.I(f"s_add_u32 s7, s7, {s(sW)}")
    a.I(f"s_add_u32 s8, s6, 7")
    a.I(f"s_sub_u32 s8, s8, {s(sW)}")
    a.I(f"s_cmp_ge_u32 {s(sW)}, 4")
    a.I(f"s_cselect_b32 {s(sQS)}, s8, s7")
    a.I(f"s_add_u32 {s(sN)}, {s(sQS)}, 1")
    a.I("s_sub_u32 s9, 64, s6")
    a.I(f"s_lshr_b32 {s(sBAR)}, s9, 1")
    a.I("s_lshl_b32 s9, s9, 13")
    a.I(f"s_lshl_b32 s10, {s(sH)}, 19")
    a.I(f"v_lshlrev_b32 {v(L16)}, 4, v0")
    a.I(f"s_and_b32 s11, {s(sW)}, 3")
    a.I("s_lshl_b32 s11, s11, 11")
    a.I(f"v_add_u32 {v(VDA)}, s11, {v(L16)}")
    a.I(f"v_add_u32 {v(VDB)}, 0x2000, {v(VDA)}")
    a.I(f"v_and_b32 {v(T0)}, 31, v0")
    a.I(f"v_lshrrev_b32 {v(T1)}, 5, v0")
    a.I(f"v_lshlrev_b32 {v(T1)}, 2, {v(T1)}")
    a.I(f"v_sub_u32 {v(QREL)}, {v(T0)}, {v(T1)}")
    a.I(f"v_mov_b32 {v(NINF)}, 0xff800000")
    a.I(f"s_mov_b32 {s(sTHR)}, {f32(2.0 ** 14)}")
    FLG = 7 * 16384 + 8192
    if withb2:
        a.I(f"v_mov_b32 v124, {FLG}")
        for i in range(4):
            a.I(f"v_mov_b32 {v(56 + i)}, 0")
        a.I("ds_write_b128 v124, v[56:59]")
        a.I("s_and_b32 s60, s2, 7")
        a.I("s_lshl_b32 s60, s60, 5")
        a.I("s_lshr_b32 s61, s2, 3")
        a.I("s_add_u32 s60, s60, s61")
        a.I("s_cmp_eq_u32 s2, 248")
        a.I("s_cselect_b32 s61, 4, 2")
        a.I(f"s_cmp_lt_u32 {s(sW)}, s61")
        a.I("s_cselect_b32 s23, 1, 0")
        a.I(f"s_cmp_ge_u32 {s(sW)}, 2")
        a.I("s_cselect_b32 s60, 0x100, s60")
        a.I(f"s_mov_b32 s61, {131072}")
        a.I(f"s_cselect_b32 s61, {131072 + 16384}, s61")
        a.I(f"s_and_b32 s67, {s(sW)}, 1")
    a.I("s_waitcnt lgkmcnt(0)")
    srd(a, 24, 4, 5, "s9", add="s10")
    a.I(f"s_add_u32 s12, s10, {hex(WS_V - 3 * 8192)}")
    a.I(f"s_add_u32 s13, s9, {3 * 8192}")
    srd(a, 28, 4, 5, "s13", add="s12")
    srd(a, 32, 4, 5, 16 * MB, add=WS_Q)
    srd(a, 36, 4, 5, 16 * MB, add=WS_CTX)
    st = Stamper(a, "attn")
    st()
    a.I(f"s_lshl_b32 s12, {s(sQS)}, 18")
    a.I(f"s_lshl_b32 s13, {s(sH)}, 13")
    a.I("s_add_u32 s12, s12, s13")
    a.I("s_add_u32 s13, s12, 4096")

    def q_loads(vm=None):
        for t in range(8):
            x = f"buffer_load_dwordx4 {v(Q + 4 * t, 4)}, {v(L16)}, s[32:35], s{12 + t // 4} offen offset:{(t % 4) * 1024}{os.environ.get('QP', '')}"
            vm.issue(x, "Q") if vm else a.I(x)

    def q_clear(r0):
        for j in range(4):
            a.I(f"v_mov_b32 {v(r0 + j)}, -1")
        for q in range(4):
            a.I(f"buffer_store_dwordx4 {v(r0, 4)}, {v(L16)}, s[32:35], s{12 + q // 2} offen offset:{(q % 2) * 1024}{SP}")

    if withb2:
        a.I("s_cmp_eq_u32 s23, 0")
        a.I(f"s_cbranch_scc1 {N}_nob2l")
        b2_loads(a, VM(a), 60, 67, L16, 16, 32, 62, 48)
        q_loads()
        a.label(f"{N}_nob2l")
        a.I("s_barrier")
    a.I(f"s_lshl_b32 s46, {s(sQS)}, 18")
    a.I(f"s_lshl_b32 s6, {s(sH)}, 13")
    a.I("s_add_u32 s46, s46, s6")
    a.I("s_add_u32 s47, s46, 4096")
    a.I(f"s_mov_b32 {s(sKM)}, s11")
    a.I(f"s_mov_b32 {s(sKO)}, 0")

    def dma_list(withV=True):
        l = []
        if withV:
            l += [f"s_mov_b32 m0, {s(sVM)}", None,
                  f"buffer_load_dwordx4 {v(VDA)}, s[28:31], {s(sKO)} offen lds",
                  f"buffer_load_dwordx4 {v(VDA)}, s[28:31], {s(sKO)} offen offset:1024 lds",
                  f"s_add_u32 m0, {s(sVM)}, 0x4000", None,
                  f"buffer_load_dwordx4 {v(VDB)}, s[28:31], {s(sKO)} offen lds",
                  f"buffer_load_dwordx4 {v(VDB)}, s[28:31], {s(sKO)} offen offset:1024 lds"]
        l += [f"s_mov_b32 m0, {s(sKM)}", f"s_add_u32 {s(sVM)}, {s(sKM)}, 0x2000",
              f"buffer_load_dwordx4 {v(VDA)}, s[24:27], {s(sKO)} offen lds",
              f"buffer_load_dwordx4 {v(VDA)}, s[24:27], {s(sKO)} offen offset:1024 lds",
              f"s_add_u32 m0, {s(sKM)}, 0x4000", f"s_add_u32 {s(sKM)}, {s(sKM)}, 0x8000",
              f"buffer_load_dwordx4 {v(VDB)}, s[24:27], {s(sKO)} offen lds",
              f"buffer_load_dwordx4 {v(VDB)}, s[24:27], {s(sKO)} offen offset:1024 lds",
              f"s_and_b32 {s(sKM)}, {s(sKM)}, 0x1ffff",
              f"s_add_u32 {s(sKO)}, {s(sKO)}, 0x4000"]
        return l

    def emit_dma(withV=True):
        for x in dma_list(withV):
            if "dma" in os.environ.get("ADROP", "") and x and x.endswith(" lds"):
                continue
            a.I(x or "s_nop 0")

    def mask_negm():
        for j in range(16):
            a.I(f"v_cmp_le_i32 vcc, {(j & 3) + 8 * (j >> 2)}, {v(QREL)}")
            a.I("s_nop 1")
            a.I(f"v_cndmask_b32 {v(NEGM + j)}, {v(NINF)}, {v(NEGM + j)}, vcc")
        a.I("s_nop 1")

    def rowmax(Sx, dst):
        a.I(f"v_max3_f32 {v(dst)}, {v(Sx)}, {v(Sx + 1)}, {v(Sx + 2)}")
        for j in range(3, 15, 2):
            a.I(f"v_max3_f32 {v(dst)}, {v(dst)}, {v(Sx + j)}, {v(Sx + j + 1)}")
        a.I(f"v_max_f32 {v(dst)}, {v(dst)}, {v(Sx + 15)}")
        a.I(f"v_mov_b32 {v(T2)}, {v(dst)}")
        a.I("s_nop 1")
        a.I(f"v_permlane32_swap_b32 {v(dst)}, {v(T2)}")
        a.I(f"v_max_f32 {v(dst)}, {v(dst)}, {v(T2)}")

    def role(ld):
        R = "S" if ld else "L"
        if withb2 and not ld:
            a.I("s_cmp_eq_u32 s23, 0")
            a.I(f"s_cbranch_scc1 {N}_b2no")
            a.I(f"s_and_b32 s67, {s(sW)}, 2")
            a.I("s_lshl_b32 s67, s67, 2")
            a.I(f"s_add_u32 s67, s67, {FLG}")
            a.I("v_mov_b32 v124, s67")
            a.I(f"s_bitcmp1_b32 {s(sW)}, 0")
            a.I(f"s_cbranch_scc1 {N}_b2w1")
            rmap = [56, 57, 58, 59, 60, 61, 62, 120, 63, 16, 24, 32, 40, 64, 72, 80, 88, 104, 160, 176, 192, 208, 224]
            for own in range(2):
                vmb = VM(a)
                if own:
                    a.label(f"{N}_b2w1")
                ex = [0]

                def sig():
                    ex[0] += 1
                    a.I(f"v_mov_b32 v125, {ex[0]}")
                    a.I(f"ds_write_b32 v124, v125 offset:{4 * own}")

                def wait_():
                    lab = a.uid(f"{N}_spin")
                    a.label(lab)
                    a.I(f"ds_read_b32 v126, v124 offset:{4 * (1 - own)}")
                    a.I("s_waitcnt lgkmcnt(0)")
                    a.I("v_readfirstlane_b32 s67, v126")
                    a.I("s_nop 0")
                    a.I(f"s_cmp_lt_u32 s67, {ex[0]}")
                    a.I(f"s_cbranch_scc1 {lab}")
                pair_sync = None
                b2_body(a, own, 60, 61, pair_sync, vmb, S0=62, SR=48, slice_len=10 ** 9, rmap=rmap, preloaded=True, split=(sig, wait_),
                        st=st if os.environ.get("B2ST") else (lambda: None))
                if os.environ.get("B2ST"):
                    st()
                    st.n -= 5 * (1 - own)
                assert vmb.q[-5:] == ["Q", "Z", "Z", "Z", "Z"] or "Q" not in vmb.q
                a.I(f"s_branch {N}_b2done")
            a.label(f"{N}_b2no")
        def inits(tag):
            for j in range(16):
                a.I(f"v_mov_b32 {v(NEGM + j)}, 0")
            a.I(f"s_cmp_lg_u32 {s(sN)}, 1")
            a.I(f"s_cbranch_scc1 {N}_{R}_nm1{tag}")
            mask_negm()
            a.label(f"{N}_{R}_nm1{tag}")

        inits("a")
        q_loads()
        if ld:
            emit_dma(withV=False)
            emit_dma()
        if withb2 and not ld:
            a.I("s_waitcnt vmcnt(0)")
            a.I(f"s_branch {N}_b2join")
            a.label(f"{N}_b2done")
            inits("b")
            a.I("s_waitcnt vmcnt(4)")
            a.label(f"{N}_b2join")
        a.I(f"v_mov_b32 {v(VL)}, 0")
        a.I(f"v_mov_b32 {v(VLS)}, 0")
        a.I(f"v_add_u32 {v(VKA)}, 0x8000, {v(L16)}")
        a.I(f"v_mov_b32 {v(VVA)}, {v(L16)}")
        if os.environ.get("PRIO") and not ld:
            a.I(f"s_setprio {os.environ['PRIO']}")
        if ld or not withb2:
            a.I(f"s_waitcnt vmcnt({6 if ld else 0})")
        a.I("s_barrier")
        st()
        for t in range(8):
            a.I(f"ds_read_b128 {v(RING + 4 * t, 4)}, {v(L16)} offset:{t * 1024}")
        dl = [x or "s_nop 0" for x in dma_list()] if ld else []
        for t in range(8):
            if t % 4 == 0:
                a.I("s_waitcnt lgkmcnt(4)")
            a.I(f"{MF} {v(S[0], 16)}, {v(RING + 4 * t, 4)}, {v(Q + 4 * t, 4)}, {v(NEGM if t == 0 else S[0], 16)}")
            a.I(f"ds_read_b128 {v(RING + 4 * t, 4)}, {v(L16)} offset:{16384 + t * 1024}")
            for x in dl[:3]:
                a.I(x)
            dl = dl[3:]
            for j in range(5):
                a.I(f"v_mov_b32 {v(O + 5 * t + j)}, 0")
        assert not dl
        for j in range(40, 64):
            a.I(f"v_mov_b32 {v(O + j)}, 0")
        if ld:
            emit_dma()
        rowmax(S[0], T0)
        for j in range(16):
            a.I(f"v_sub_f32 {v(S[0] + j)}, {v(S[0] + j)}, {v(T0)}")
        for j in range(16):
            a.I(f"v_sub_f32 {v(NEGM + j)}, 0, {v(T0)}")
        a.I(f"s_mov_b32 {s(sPH)}, 0")
        a.I(f"s_sub_u32 {s(sC)}, {s(sN)}, 3")
        a.I(f"s_cbranch_scc0 {N}_{R}_first")
        a.I(f"s_mov_b32 {s(sPH)}, 3")
        a.I(f"s_mov_b32 {s(sC)}, 0")
        a.I(f"s_cmp_lg_u32 {s(sN)}, 2")
        a.I(f"s_cbranch_scc1 {N}_{R}_first")
        a.I(f"s_mov_b32 {s(sPH)}, 1")
        mask_negm()
        a.label(f"{N}_{R}_first")
        e = lambda j: v(EE + (j % 6))
        if ld:
            a.I("s_waitcnt vmcnt(14)")
        a.I("s_waitcnt lgkmcnt(0)")
        a.I("s_barrier")
        a.I(f"s_sub_u32 {s(sBAR)}, {s(sBAR)}, 1")
        dl = [x or "s_nop 0" for x in dma_list()] if ld else []
        for pos in range(8):
            r = v(RING + 4 * pos, 4)
            a.I(f"{MF} {v(S[1], 16)}, {r}, {v(Q + 4 * pos, 4)}, {v(NEGM if pos == 0 else S[1], 16)}")
            a.I(f"ds_read_b128 {r}, {v(VKA)} offset:{pos * 1024}")
            a.I(f"v_exp_f32 {e(2 * pos)}, {v(S[0] + 2 * pos)}")
            a.I(f"v_exp_f32 {e(2 * pos + 1)}, {v(S[0] + 2 * pos + 1)}")
            a.many(dl[:3] or ["s_nop 0"])
            dl = dl[3:]
            a.I(f"v_add_f32 {v(VLS)}, {v(VLS)}, {e(2 * pos)}")
            a.I(f"v_add_f32 {v(VLS)}, {v(VLS)}, {e(2 * pos + 1)}")
            a.I(f"v_cvt_pk_bf16_f32 {v(P[0] + pos)}, {e(2 * pos)}, {e(2 * pos + 1)}")
        assert not dl
        a.I("s_nop 4")
        a.I(f"s_sub_u32 {s(sC)}, {s(sC)}, 1")
        a.I(f"s_branch {N}_{R}_back0")

        def iteration(par):
            gaps = [[] for _ in range(16)]
            pre = [[] for _ in range(16)]
            mf = []
            Sc, Sn, Pc, Pp = S[par], S[1 - par], P[par], P[1 - par]
            e = lambda j: v(EE + (j % 6))
            for pos in range(16):
                r = v(RING + 4 * (pos & 7), 4)
                if pos < 8:
                    mf.append(f"{MF} {v(Sn, 16)}, {r}, {v(Q + 4 * pos, 4)}, {v(NEGM if pos == 0 else Sn, 16)}")
                    ks, dt = divmod(pos, 4)
                    gaps[pos].append(f"ds_read_b128 {r}, {v(VVA)} offset:{8192 + par * 16384 + (2 * dt + ks) * 1024}")
                else:
                    ks, dt = divmod(pos - 8, 4)
                    mf.append(f"{MF} {v(O + 16 * dt, 16)}, {r}, {v(Pp + 4 * ks, 4)}, {v(O + 16 * dt, 16)}")
                    gaps[pos].append(f"ds_read_b128 {r}, {v(VKA)} offset:{par * 16384 + (pos - 8) * 1024}")
                if pos % 4 == 0:
                    pre[pos].append("s_waitcnt lgkmcnt(4)")
            early = int(os.environ.get("EARLY", "1"))
            if early:
                eg = [0, 0, 1, 2, 2, 3, 4, 5, 6, 7, 8, 9, 10, 11, 12, 13]
            else:
                eg = [0] + list(range(15))
            gaps[0].append(f"v_add_f32 {v(VL)}, {v(VL)}, {v(VLS)}")
            for j in range(16):
                gaps[eg[j]].append(f"v_exp_f32 {e(j)}, {v(Sc + j)}")
            pka = os.environ.get("PKADD")
            for j in range(1, 16):
                g = eg[j] + 1
                if pka:
                    if j == 3:
                        gaps[g].append(f"v_pk_add_f32 v[8:9], {v(EE, 2)}, {v(EE + 2, 2)}")
                    elif j % 2 == 1 and j > 3:
                        gaps[g].append(f"v_pk_add_f32 v[8:9], v[8:9], {v(EE + (j - 1) % 6, 2)}")
                    if j == 15:
                        gaps[g].append(f"v_add_f32 {v(VLS)}, v8, v9")
                elif j == 1:
                    gaps[g].append(f"v_add_f32 {v(VLS)}, {e(0)}, {e(1)}")
                else:
                    gaps[g].append(f"v_add_f32 {v(VLS)}, {v(VLS)}, {e(j)}")
                if j % 2 == 1:
                    gaps[g + (1 if (early and j == 15) else 0)].append(f"v_cvt_pk_bf16_f32 {v(Pc + j // 2)}, {e(j - 1)}, {e(j)}")
            if par == 0:
                gaps[2].append(f"v_add_u32 {v(VKA)}, 0x8000, {v(VKA)}")
                gaps[6].append(f"v_and_b32 {v(VKA)}, 0x1ffff, {v(VKA)}")
                bar = ["s_barrier", f"s_sub_u32 {s(sBAR)}, {s(sBAR)}, 1"]
                if ld:
                    bar = ["s_waitcnt vmcnt(14)"] + bar
                gaps[4] = bar + gaps[4]
                if ld:
                    d = [x for x in dma_list() if x]
                    m0a, l1, l2, m0b, l3, l4, m0c, svm, l5, l6, m0d, skm, l7, l8, sand, sko = d
                    gaps[5] = [m0a] + gaps[5] + [l1]
                    gaps[6] += [l2, m0b]
                    gaps[7] += [l3]
                    gaps[8] += [l4, m0c]
                    gaps[9] += [svm, l5]
                    gaps[10] += [l6, m0d]
                    gaps[11] += [l7]
                    gaps[12] += [l8, skm]
                    gaps[13] += [sand, sko]
            else:
                gaps[10].append(f"v_mov_b32 {v(VVA)}, {v(VKA)}")
            gaps[14].append(f"s_sub_u32 {s(sC)}, {s(sC)}, 1")
            gaps[14 if early else 15].append(f"v_cmp_nge_f32 vcc, {s(sTHR)}, {v(VLS)}")
            drop = os.environ.get("ADROP", "").split(",")
            for pos in range(16):
                if "bar" in drop:
                    gaps[pos] = [x for x in gaps[pos] if x != "s_barrier"]
                if "dma" in drop:
                    gaps[pos] = [x for x in gaps[pos] if not x.endswith(" lds")]
                if "rd" in drop:
                    gaps[pos] = [x for x in gaps[pos] if not x.startswith("ds_read")]
                if "valu" in drop:
                    gaps[pos] = [x for x in gaps[pos] if not (x.startswith("v_exp") or x.startswith("v_cvt") or x.startswith("v_add_f32"))]
                if "e64" in drop:
                    gaps[pos] = [x.replace("v_exp_f32 ", "v_exp_f32_e64 ").replace("v_add_f32 ", "v_add_f32_e64 ") for x in gaps[pos]]
                a.many(pre[pos])
                a.I(mf[pos])
                a.many(gaps[pos])
            if "br" not in drop:
                a.I(f"s_cbranch_vccnz {N}_{R}_slow{par}")
            a.label(f"{N}_{R}_back{par}")
            a.I(f"s_cbranch_scc1 {N}_{R}_spec{par}")

        if os.environ.get("PRIO") and not ld:
            pass
        if os.environ.get("AALIGN"):
            a.raw(".p2align 6")
            for _ in range(int(os.environ["AALIGN"]) - 1):
                a.I("s_nop 0")
        a.label(f"{N}_{R}_it0")
        iteration(0)
        a.label(f"{N}_{R}_it1")
        iteration(1)
        a.I(f"s_branch {N}_{R}_it0")

        def svc():
            lab = a.uid(f"{N}_{R}_svc")
            a.I(f"s_cmp_eq_u32 {s(sBAR)}, 0")
            a.I(f"s_cbranch_scc1 {lab}")
            if ld:
                a.I("s_waitcnt vmcnt(14)")
            if "bar" not in os.environ.get("ADROP", ""):
                a.I("s_barrier")
            a.I(f"s_sub_u32 {s(sBAR)}, {s(sBAR)}, 1")
            if ld:
                emit_dma()
            a.label(lab)

        for par in range(2):
            Sc, Sn, Pc = S[par], S[1 - par], P[par]
            a.label(f"{N}_{R}_slow{par}")
            a.I("s_cselect_b32 s22, 1, 0")
            a.I("s_nop 15")
            rowmax(Sc, T0)
            a.I(f"v_max_f32 {v(T0)}, 0, {v(T0)}")
            a.I(f"v_exp_f32_e64 {v(T1)}, -{v(T0)}")
            for j in range(16):
                a.I(f"v_sub_f32 {v(NEGM + j)}, {v(NEGM + j)}, {v(T0)}")
                a.I(f"v_sub_f32 {v(Sc + j)}, {v(Sc + j)}, {v(T0)}")
                a.I(f"v_sub_f32 {v(Sn + j)}, {v(Sn + j)}, {v(T0)}")
            for j in range(64):
                a.I(f"v_mul_f32 {v(O + j)}, {v(O + j)}, {v(T1)}")
            a.I(f"v_mul_f32 {v(VL)}, {v(VL)}, {v(T1)}")
            a.I(f"v_mov_b32 {v(VLS)}, 0")
            for i in range(8):
                a.I(f"v_exp_f32 {v(E)}, {v(Sc + 2 * i)}")
                a.I(f"v_exp_f32 {v(E + 1)}, {v(Sc + 2 * i + 1)}")
                a.I("s_nop 0")
                a.I(f"v_add_f32 {v(VLS)}, {v(VLS)}, {v(E)}")
                a.I(f"v_add_f32 {v(VLS)}, {v(VLS)}, {v(E + 1)}")
                a.I(f"v_cvt_pk_bf16_f32 {v(Pc + i)}, {v(E)}, {v(E + 1)}")
            a.I(f"s_cmp_eq_u32 {s(sPH)}, 2")
            a.I(f"s_cbranch_scc1 {N}_{R}_lback{par}")
            a.I("s_cmp_lg_u32 s22, 0")
            a.I(f"s_branch {N}_{R}_back{par}")
            a.label(f"{N}_{R}_spec{par}")
            a.I(f"s_cmp_eq_u32 {s(sPH)}, 1")
            a.I(f"s_cbranch_scc1 {N}_{R}_last{1 - par}")
            if par == 0:
                a.I(f"s_cmp_eq_u32 {s(sPH)}, 3")
                a.I(f"s_cbranch_scc1 {N}_{R}_exit0")
            a.I(f"s_mov_b32 {s(sPH)}, 1")
            a.I(f"s_mov_b32 {s(sC)}, 0")
            mask_negm()
            a.I(f"s_branch {N}_{R}_it{1 - par}")
            Pp = P[1 - par]
            a.label(f"{N}_{R}_last{par}")
            a.I(f"s_mov_b32 {s(sPH)}, 2")
            a.I("s_waitcnt lgkmcnt(0)")
            voff = lambda pos: (2 * (pos % 4) + pos // 4) * 1024
            for pos in range(8):
                a.I(f"ds_read_b128 {v(RING + 4 * pos, 4)}, {v(VVA)} offset:{8192 + par * 16384 + voff(pos)}")
            a.I(f"v_add_f32 {v(VL)}, {v(VL)}, {v(VLS)}")
            a.I(f"v_mov_b32 {v(VLS)}, 0")
            dl = []
            if par == 0:
                if ld:
                    a.I("s_waitcnt vmcnt(14)")
                a.I("s_barrier")
                a.I(f"s_sub_u32 {s(sBAR)}, {s(sBAR)}, 1")
                dl = [x or "s_nop 0" for x in dma_list()] if ld else []
            for pos in range(8):
                ks, dt = divmod(pos, 4)
                a.I(f"v_exp_f32 {e(2 * pos)}, {v(Sc + 2 * pos)}")
                a.I(f"v_exp_f32 {e(2 * pos + 1)}, {v(Sc + 2 * pos + 1)}")
                a.I("s_waitcnt lgkmcnt(7)")
                a.I(f"{MF} {v(O + 16 * dt, 16)}, {v(RING + 4 * pos, 4)}, {v(Pp + 4 * ks, 4)}, {v(O + 16 * dt, 16)}")
                if par == 0:
                    a.I(f"ds_read_b128 {v(RING + 4 * pos, 4)}, {v(VVA)} offset:{8192 + 16384 + voff(pos)}")
                else:
                    a.I(f"ds_read_b128 {v(RING + 4 * pos, 4)}, {v(VKA)} offset:{8192 + voff(pos)}")
                a.I(f"v_add_f32 {v(VLS)}, {v(VLS)}, {e(2 * pos)}")
                a.I(f"v_add_f32 {v(VLS)}, {v(VLS)}, {e(2 * pos + 1)}")
                a.I(f"v_cvt_pk_bf16_f32 {v(Pc + pos)}, {e(2 * pos)}, {e(2 * pos + 1)}")
                a.many(dl[:3])
                dl = dl[3:]
            assert not dl
            a.I(f"v_cmp_nge_f32 vcc, {s(sTHR)}, {v(VLS)}")
            a.I(f"s_cbranch_vccnz {N}_{R}_slow{par}")
            a.label(f"{N}_{R}_lback{par}")
            if par == 0:
                a.I(f"s_branch {N}_{R}_fin0")
                a.label(f"{N}_{R}_exit0")
                a.I("s_waitcnt lgkmcnt(0)")
                for pos in range(8):
                    a.I(f"ds_read_b128 {v(RING + 4 * pos, 4)}, {v(VVA)} offset:{8192 + 16384 + voff(pos)}")
                a.label(f"{N}_{R}_fin0")
            a.I(f"v_add_f32 {v(VL)}, {v(VL)}, {v(VLS)}")
            nrm = [f"v_mov_b32 {v(T2)}, {v(VL)}", None, f"v_permlane32_swap_b32 {v(VL)}, {v(T2)}",
                   f"v_add_f32 {v(VL)}, {v(VL)}, {v(T2)}", f"v_rcp_f32 {v(T0)}, {v(VL)}"]
            for pos in range(8):
                dt, ks = divmod(pos, 2)
                rp = 4 * ks + dt
                a.I(f"s_waitcnt lgkmcnt({max(0, 7 - max(rp, 4 + dt - (1 - ks) * 4))})" if False else
                    f"s_waitcnt lgkmcnt({7 - rp if ks else min(7 - rp, 7 - (4 + dt - 1) if dt else 7)})")
                a.I(f"{MF} {v(O + 16 * dt, 16)}, {v(RING + 4 * rp, 4)}, {v(Pc + 4 * ks, 4)}, {v(O + 16 * dt, 16)}")
                if pos < len(nrm) and nrm[pos]:
                    a.I(nrm[pos])
            if par == 0:
                a.I(f"s_branch {N}_{R}_epi")
        a.label(f"{N}_{R}_epi")
        st()
        svc()
        if ld and (withb2 or b2tail):
            if not LT:
                a.I(f"s_and_b32 s53, {s(sW)}, 3")
                code_touch(a, "l3_kernel", 53, 48, EE + 2, nw_log=2)
        for dt in range(4):
            for h in range(2):
                q = 2 * dt + h
                for i in range(4):
                    src = O + 16 * dt + 8 * h + 2 * i
                    a.I(f"v_mul_f32 {v(src)}, {v(src)}, {v(T0)}")
                    a.I(f"v_mul_f32 {v(src + 1)}, {v(src + 1)}, {v(T0)}")
                    a.I(f"v_cvt_pk_bf16_f32 {v(PK + 4 * q + i)}, {v(src)}, {v(src + 1)}")
                a.I(f"buffer_store_dwordx4 {v(PK + 4 * q, 4)}, {v(L16)}, s[36:39], s{46 + q // 4} offen offset:{(q % 4) * 1024}{SP if ld else os.environ.get('SPC', SP)}")
            if dt == 1:
                svc()
        if ld and b2tail:
            a.I(f"s_lshl_b32 s60, {s(sH)}, 2")
            a.I(f"s_add_u32 s60, s60, {s(sP)}")
            a.I("s_lshl_b32 s60, s60, 1")
            a.I(f"s_bfe_u32 s61, {s(sW)}, 0x10001")
            a.I("s_add_u32 s60, s60, s61")
            a.I(f"s_cmp_lt_u32 {s(sP)}, 4")
            a.I(f"s_cbranch_scc1 {N}_b2go")
            a.I("s_cmp_lg_u32 s60, 8")
            a.I(f"s_cbranch_scc1 {N}_{R}_tail")
            a.I("s_movk_i32 s60, 0x100")
            a.label(f"{N}_b2go")
            a.I("s_lshl_b32 s61, s61, 14")
            a.I(f"s_add_u32 s61, s61, {131072}")
            a.I(f"s_lshl_b32 s62, {s(sP)}, 2")
            a.I("s_sub_u32 s62, 28, s62")
            a.label(f"{N}_b2al")
            a.I(f"s_cmp_le_u32 {s(sBAR)}, s62")
            a.I(f"s_cbranch_scc1 {N}_b2st")
            a.I("s_waitcnt vmcnt(14)")
            a.I("s_barrier")
            a.I(f"s_sub_u32 {s(sBAR)}, {s(sBAR)}, 1")
            emit_dma()
            a.I(f"s_branch {N}_b2al")
            a.label(f"{N}_b2st")
            a.I(f"s_bitcmp1_b32 {s(sW)}, 0")
            a.I(f"s_cbranch_scc1 {N}_b2w1")
            for own in range(2):
                vmb = VM(a)
                nsv = [0]

                def svcb():
                    nsv[0] += 1
                    a.I("s_waitcnt vmcnt(14)")
                    vmb.q = vmb.q[-14:]
                    a.I("s_barrier")
                    a.I(f"s_sub_u32 {s(sBAR)}, {s(sBAR)}, 1")
                    for x in dma_list():
                        if x and x.startswith("buffer"):
                            vmb.issue(x, "dma")
                        else:
                            a.I(x or "s_nop 0")
                if own:
                    a.label(f"{N}_b2w1")
                b2_body(a, own, 60, 61, svcb, vmb, R0=16, S0=62, SR=48, slice_len=int(os.environ.get("SLICE", "90")))
                assert nsv[0] <= 12, nsv
                print("b2 svc slices", nsv[0])
                if not own:
                    a.I(f"s_branch {N}_{R}_tail")
        if ld:
            q_clear(6)
            a.I(f"s_lshl_b32 s12, {s(sP)}, 2")
            a.I("s_sub_u32 s12, 56, s12")
            a.I(f"s_add_u32 s12, s12, {s(sW)}")
            a.I("s_lshl_b32 s12, s12, 18")
            a.I(f"s_lshl_b32 s13, {s(sH)}, 13")
            a.I("s_add_u32 s12, s12, s13")
            a.I("s_add_u32 s13, s12, 4096")
            q_clear(6)
            a.I("s_mov_b32 s54, 0")
            a.label(f"{N}_{R}_tail")
            if LT:
                a.I(f"s_cmp_gt_u32 {s(sBAR)}, {LT}")
                a.I(f"s_cbranch_scc1 {N}_notouch")
                a.I("s_cmp_lg_u32 s54, 0")
                a.I(f"s_cbranch_scc1 {N}_notouch")
                a.I("s_mov_b32 s54, 1")
                a.I(f"s_and_b32 s53, {s(sW)}, 3")
                code_touch(a, "l3_kernel", 53, 48, EE + 2, nw_log=2)
                if not os.environ.get("NOWT"):
                    srd(a, 48, 4, 5, 4 * MB, add=WS_WO)
                    a.I("s_lshr_b32 s52, s2, 3")
                    a.I("s_lshl2_add_u32 s52, s52, s53")
                    a.I("s_lshr_b32 s55, s52, 4")
                    a.I("s_lshl_b32 s55, s55, 19")
                    a.I("s_and_b32 s52, s52, 15")
                    a.I("s_lshl_b32 s52, s52, 13")
                    a.I("s_add_u32 s52, s52, s55")
                    a.I("s_bfe_u32 s55, s2, 0x20001")
                    a.I("s_lshl_b32 s55, s55, 17")
                    a.I("s_add_u32 s52, s52, s55")
                    a.I(f"v_lshlrev_b32 {v(EE)}, 7, v0")
                    a.I(f"buffer_load_dword {v(EE + 1)}, {v(EE)}, s[48:51], s52 offen")
                a.label(f"{N}_notouch")
            a.I(f"s_cmp_eq_u32 {s(sBAR)}, 0")
            a.I(f"s_cbranch_scc1 {N}_{R}_done")
            a.I("s_waitcnt vmcnt(14)")
            a.I("s_barrier")
            a.I(f"s_sub_u32 {s(sBAR)}, {s(sBAR)}, 1")
            emit_dma()
            a.I(f"s_branch {N}_{R}_tail")
            a.label(f"{N}_{R}_done")
        n0 = st.n
        st.dump(sW, 4, tmpv=T0)
        st.n = n0 - 2
        a.I("s_endpgm")

    a.I(f"s_cmp_ge_u32 {s(sW)}, 4")
    a.I(f"s_cbranch_scc1 {N}_short")
    role(False)
    a.label(f"{N}_short")
    role(True)
    kend(a, N)
    return a, N, (256, 512, 163840 if (withb2 or b2tail) else 131072)


def oproj_body(a, N, st, bar_at=None):
    ACC, CR, AFR = 64, 128, 192
    DEPTH = 8
    L16, L16B, VD0, VD1, TB = 1, 2, 3, 4, 5
    a.I("s_and_b32 s10, s2, 7")
    a.I("s_lshr_b32 s11, s2, 3")
    a.I("s_and_b32 s12, s11, 3")
    a.I("s_lshl_b32 s10, s10, 2")
    a.I("s_add_u32 s17, s10, s12")
    a.I("s_lshr_b32 s18, s11, 2")
    if os.environ.get("OPX") == "same":
        a.I("s_mov_b32 s17, 0")
        a.I("s_mov_b32 s18, 0")
    if os.environ.get("OPX") == "map2":
        a.I("s_and_b32 s10, s2, 3")
        a.I("s_lshl_b32 s10, s10, 3")
        a.I("s_and_b32 s12, s11, 7")
        a.I("s_add_u32 s17, s10, s12")
        a.I("s_bfe_u32 s10, s2, 0x10002")
        a.I("s_lshl_b32 s10, s10, 2")
        a.I("s_lshr_b32 s12, s11, 3")
        a.I("s_add_u32 s18, s10, s12")
    a.I(f"v_lshlrev_b32 {v(L16)}, 4, v0")
    a.I(f"v_add_u32 {v(L16B)}, 0x40000, {v(L16)}")
    a.I("v_lshrrev_b32 v8, 3, v0")
    a.I("v_lshlrev_b32 v8, 10, v8")
    a.I("v_bfe_u32 v9, v0, 4, 1")
    a.I("v_lshlrev_b32 v10, 2, v9")
    a.I("v_and_b32 v11, 7, v0")
    a.I("v_xor_b32 v10, v10, v11")
    a.I(f"v_lshl_add_u32 {v(VD0)}, v10, 4, v8")
    a.I("s_lshl_b32 s10, s18, 7")
    a.I(f"v_add_u32 {v(VD0)}, s10, {v(VD0)}")
    a.I(f"v_add_u32 {v(VD1)}, {8192 - 1024}, {v(VD0)}")
    a.I("v_lshrrev_b32 v8, 5, v0")
    a.I("v_bfe_u32 v10, v0, 2, 2")
    a.I("v_lshl_add_u32 v8, v8, 2, v10")
    a.I(f"v_lshlrev_b32 {v(TB)}, 7, v8")
    a.I(f"v_lshl_add_u32 {v(TB)}, v9, 5, {v(TB)}")
    a.I("v_and_b32 v10, 3, v0")
    a.I(f"v_lshl_add_u32 {v(TB)}, v10, 3, {v(TB)}")
    a.I("v_bfe_u32 v10, v0, 3, 1")
    a.I(f"v_lshl_add_u32 {v(TB)}, v10, 6, {v(TB)}")
    a.I("s_lshl_b32 s19, s16, 14")
    a.I(f"v_add_u32 {v(TB)}, s19, {v(TB)}")
    a.I(f"v_xor_b32 {v(TB + 1)}, 64, {v(TB)}")
    a.I("s_lshl_b32 s40, s17, 19")
    a.I("s_lshl_b32 s10, s16, 16")
    a.I("s_add_u32 s40, s40, s10")
    a.I("s_lshl_b32 s41, s16, 20")
    ROT = int(os.environ.get("ROT", "0"))
    if ROT:
        a.I("s_and_b32 s45, s2, 7")
        a.I(f"s_mul_i32 s45, s45, {ROT}")
    a.I("s_waitcnt lgkmcnt(0)")
    srd(a, 20, 4, 5, 16 * MB, add=WS_CTX)
    srd(a, 24, 6, 7, 4 * MB)
    srd(a, 28, 8, 9, 4 * MB)
    vm, lg = VM(a), LG(a)
    st()

    def loads(g):
        sl = g % DEPTH
        a.I(f"s_add_u32 m0, s19, {sl * 2048}")
        if ROT:
            if g % 4 == 0:
                a.I(f"s_add_u32 s44, s45, {g}")
                a.I("s_and_b32 s44, s44, 63")
                a.I("s_lshl_b32 s46, s44, 14")
                a.I("s_add_u32 s46, s46, s41")
                a.I("s_lshl_b32 s44, s44, 10")
            a.I(f"s_add_u32 s42, s46, {hex((g % 4) * 16384)}")
        else:
            a.I(f"s_add_u32 s42, s41, {hex(g * 16384)}")
        vm.issue(f"buffer_load_dwordx4 {v(VD0)}, s[24:27], s42 offen lds", g)
        vm.issue(f"buffer_load_dwordx4 {v(VD1)}, s[24:27], s42 offen offset:1024 lds", g)
        if g % 4 == 0:
            a.I(f"s_add_u32 s43, s40, {'s44' if ROT else hex(g * 1024)}")
        vm.issue(f"buffer_load_dwordx4 {v(CR + 8 * sl, 4)}, {v(L16)}, s[20:23], s43 offen offset:{(g % 4) * 1024}", g)
        vm.issue(f"buffer_load_dwordx4 {v(CR + 8 * sl + 4, 4)}, {v(L16B)}, s[20:23], s43 offen offset:{(g % 4) * 1024}", g)

    def trs(g):
        sl = g % DEPTH
        vm.wait(g)
        for cb in range(2):
            d = AFR + 8 * (g & 1) + 4 * cb
            lg.issue(f"ds_read_b64_tr_b16 {v(d, 2)}, {v(TB + cb)} offset:{sl * 2048}", g)
            lg.issue(f"ds_read_b64_tr_b16 {v(d + 2, 2)}, {v(TB + cb)} offset:{sl * 2048 + 1024}", g)

    for g in range(DEPTH):
        loads(g)
    st()
    trs(0)
    st()
    for g in range(64):
        if g + 1 < 64:
            trs(g + 1)
        lg.wait(g)
        sl = g % DEPTH
        for qt in range(2):
            for cb in range(2):
                acc = v(ACC + 16 * (2 * qt + cb), 16)
                a.I(f"{MF} {acc}, {v(AFR + 8 * (g & 1) + 4 * cb, 4)}, {v(CR + 8 * sl + 4 * qt, 4)}, {'0' if g == 0 else acc}")
        if g + DEPTH < 64:
            loads(g + DEPTH)
        if g == bar_at:
            a.I("s_barrier")
    st()
    a.I(f"v_add_u32 v8, s19, {v(L16)}")
    a.I("s_nop 11")
    for tl in range(4):
        for jq in range(4):
            a.I(f"ds_write_b128 v8, {v(ACC + 16 * tl + 4 * jq, 4)} offset:{(tl * 4 + jq) * 1024}")
    a.I("v_lshrrev_b32 v9, 5, v0")
    a.I("v_and_b32 v10, 31, v0")
    a.I("v_lshlrev_b32 v10, 4, v10")
    a.I("v_lshl_add_u32 v9, v9, 13, v10")
    a.I("s_lshl_b32 s10, s16, 11")
    a.I("v_add_u32 v9, s10, v9")
    a.I("s_lshl_b32 s11, s17, 17")
    a.I("s_lshl_b32 s12, s18, 7")
    a.I("s_add_u32 s11, s11, s12")
    a.I("s_lshl_b32 s12, s16, 5")
    a.I("s_add_u32 s11, s11, s12")
    a.I("v_lshlrev_b32 v10, 11, v0")
    a.I("s_waitcnt lgkmcnt(0)")
    return ACC


def oproj_body2(a, N, st, bar_at=None):
    DEPTH = int(os.environ.get("ODEPTH", "8"))
    ACC, CR = 192 - 16 * DEPTH, 256 - 16 * DEPTH
    L16, L16B = 1, 2
    a.I("s_and_b32 s10, s2, 7")
    a.I("s_lshr_b32 s11, s2, 3")
    a.I("s_and_b32 s12, s11, 3")
    a.I("s_lshl_b32 s10, s10, 2")
    a.I("s_add_u32 s17, s10, s12")
    a.I("s_lshr_b32 s18, s11, 2")
    if os.environ.get("OPX") == "same":
        a.I("s_mov_b32 s17, 0")
        a.I("s_mov_b32 s18, 0")
    if os.environ.get("OPX") == "sameq":
        a.I("s_and_b32 s17, s17, 3")
    if os.environ.get("OPX") == "map2":
        a.I("s_and_b32 s10, s2, 3")
        a.I("s_lshl_b32 s10, s10, 3")
        a.I("s_and_b32 s12, s11, 7")
        a.I("s_add_u32 s17, s10, s12")
        a.I("s_bfe_u32 s10, s2, 0x10002")
        a.I("s_lshl_b32 s10, s10, 2")
        a.I("s_lshr_b32 s12, s11, 3")
        a.I("s_add_u32 s18, s10, s12")
    a.I(f"v_lshlrev_b32 {v(L16)}, 4, v0")
    a.I(f"v_add_u32 {v(L16B)}, 0x40000, {v(L16)}")
    a.I("s_lshl_b32 s19, s16, 14")
    a.I("s_lshl_b32 s40, s17, 19")
    a.I("s_lshl_b32 s10, s16, 16")
    a.I("s_add_u32 s40, s40, s10")
    a.I("s_lshl_b32 s41, s18, 19")
    a.I("s_lshl_b32 s10, s16, 17")
    a.I("s_add_u32 s41, s41, s10")
    a.I("s_waitcnt lgkmcnt(0)")
    srd(a, 20, 4, 5, 16 * MB, add=WS_CTX)
    srd(a, 24, 4, 5, 4 * MB, add=WS_WO)
    srd(a, 28, 8, 9, 4 * MB)
    vm = VM(a)
    st()

    def loads(g):
        sl = g % DEPTH
        L = []
        if g % 2 == 0:
            L.append(lambda: a.I(f"s_add_u32 s42, s41, {hex(g * 2048)}"))
        if g % 4 == 0:
            L.append(lambda: a.I(f"s_add_u32 s43, s40, {hex(g * 1024)}"))
        for cb in range(2):
            L.append(lambda cb=cb: vm.issue(f"buffer_load_dwordx4 {v(CR + 16 * sl + 4 * cb, 4)}, {v(L16)}, s[24:27], s42 offen "
                                            f"offset:{(g % 2) * 2048 + cb * 1024}", g))
        for qt in range(2):
            L.append(lambda qt=qt: vm.issue(f"buffer_load_dwordx4 {v(CR + 16 * sl + 8 + 4 * qt, 4)}, {v(L16 + qt)}, s[20:23], s43 offen "
                                            f"offset:{(g % 4) * 1024}", g))
        return L

    for g in range(DEPTH):
        for f in loads(g):
            f()
    st()
    st()
    for g in range(64):
        vm.wait(g)
        sl = g % DEPTH
        for qt in range(2):
            for cb in range(2):
                acc = v(ACC + 16 * (2 * qt + cb), 16)
                a.I(f"{MF} {acc}, {v(CR + 16 * sl + 4 * cb, 4)}, {v(CR + 16 * sl + 8 + 4 * qt, 4)}, {'0' if g == 0 else acc}")
        if g + DEPTH < 64:
            for f in loads(g + DEPTH):
                f()
        if g == bar_at:
            a.I("s_barrier")
    st()
    a.I(f"v_add_u32 v8, s19, {v(L16)}")
    a.I("v_lshrrev_b32 v9, 5, v0")
    a.I("v_and_b32 v10, 31, v0")
    a.I("v_lshlrev_b32 v10, 4, v10")
    a.I("v_lshl_add_u32 v9, v9, 13, v10")
    a.I("s_lshl_b32 s10, s16, 11")
    a.I("v_add_u32 v9, s10, v9")
    a.I("s_lshl_b32 s11, s17, 17")
    a.I("s_lshl_b32 s12, s18, 7")
    a.I("s_add_u32 s11, s11, s12")
    a.I("s_lshl_b32 s12, s16, 5")
    a.I("s_add_u32 s11, s11, s12")
    a.I("v_lshlrev_b32 v10, 11, v0")
    for tl in range(4):
        for jq in range(4):
            a.I(f"ds_write_b128 v8, {v(ACC + 16 * tl + 4 * jq, 4)} offset:{(tl * 4 + jq) * 1024}")
    a.I("s_waitcnt lgkmcnt(0)")
    return ACC


def oproj_body3(a, N, st, bar_at=None):
    DEPTH = 8
    ACC, FR = 64, 128
    L16, L16B, LR = 1, 2, 3
    a.I("s_and_b32 s10, s2, 7")
    a.I("s_lshr_b32 s11, s2, 3")
    a.I("s_and_b32 s12, s11, 3")
    a.I("s_lshl_b32 s10, s10, 2")
    a.I("s_add_u32 s17, s10, s12")
    a.I("s_lshr_b32 s18, s11, 2")
    a.I(f"v_lshlrev_b32 {v(L16)}, 4, v0")
    a.I(f"v_add_u32 {v(L16B)}, {0x40000 - 1024}, {v(L16)}")
    a.I("s_lshl_b32 s19, s16, 15")
    a.I(f"v_add_u32 {v(LR)}, s19, {v(L16)}")
    a.I("s_lshl_b32 s42, s18, 19")
    a.I("s_lshl_b32 s10, s16, 17")
    a.I("s_add_u32 s42, s42, s10")
    a.I("s_lshl_b32 s43, s17, 19")
    a.I("s_lshl_b32 s10, s16, 16")
    a.I("s_add_u32 s43, s43, s10")
    RB = int(os.environ.get("RB", "0"))
    if RB:
        a.I("s_lshl1_add_u32 s45, s12, s18")
        a.I("s_and_b32 s45, s45, 7")
        a.I(f"s_mul_i32 s45, s45, {RB // 8 * 1024}")
        a.I("s_mov_b32 s40, s43")
        a.I("s_mov_b32 s41, s42")
        a.I("s_add_u32 s43, s40, s45")
        a.I("s_lshl1_add_u32 s42, s45, s41")
    a.I("s_waitcnt lgkmcnt(0)")
    srd(a, 20, 4, 5, 16 * MB + 2048, add=WS_CTX - 2048)
    srd(a, 24, 4, 5, 4 * MB, add=WS_WO)
    srd(a, 28, 8, 9, 4 * MB)
    vm, lg = VM(a), LG(a)
    st()

    def loads(g):
        sl = g % DEPTH
        return [lambda: a.I(f"s_add_u32 m0, s19, {sl * 4096}"),
                lambda: a.I("s_nop 0") if g < DEPTH else None,
                lambda: vm.issue(f"buffer_load_dwordx4 {v(L16)}, s[24:27], s42 offen lds", g),
                lambda: vm.issue(f"buffer_load_dwordx4 {v(L16)}, s[24:27], s42 offen offset:1024 lds", g),
                lambda: vm.issue(f"buffer_load_dwordx4 {v(L16)}, s[20:23], s43 offen offset:2048 lds", g),
                lambda: vm.issue(f"buffer_load_dwordx4 {v(L16B)}, s[20:23], s43 offen offset:3072 lds", g),
                lambda: nxt(g), lambda: None]

    def nxt(g):
        if not RB:
            a.I("s_add_u32 s42, s42, 2048")
            a.I("s_add_u32 s43, s43, 1024")
            return
        a.I("s_add_u32 s45, s45, 1024")
        a.I(f"s_and_b32 s45, s45, {RB * 1024 - 1}")
        if (g + 1) % RB == 0:
            a.I(f"s_add_u32 s40, s40, {RB * 1024}")
            a.I(f"s_add_u32 s41, s41, {RB * 2048}")
        a.I("s_add_u32 s43, s40, s45")
        a.I("s_lshl1_add_u32 s42, s45, s41")

    def reads(g):
        vm.wait(g)
        for q in range(4):
            lg.issue(f"ds_read_b128 {v(FR + 16 * (g & 1) + 4 * q, 4)}, {v(LR)} offset:{(g % DEPTH) * 4096 + q * 1024}", g)

    for g in range(DEPTH):
        for f in loads(g):
            f()
    st()
    reads(0)
    st()
    for g in range(64):
        if g + 1 < 64:
            reads(g + 1)
        lg.wait(g)
        L = loads(g + DEPTH) if g + DEPTH < 64 else []
        fr = FR + 16 * (g & 1)
        for qt in range(2):
            for cb in range(2):
                acc = v(ACC + 16 * (2 * qt + cb), 16)
                if L:
                    L.pop(0)()
                a.I(f"{MF} {acc}, {v(fr + 4 * cb, 4)}, {v(fr + 8 + 4 * qt, 4)}, {'0' if g == 0 else acc}")
                if L:
                    L.pop(0)()
        if g == bar_at:
            a.I("s_barrier")
    st()
    a.I("v_lshrrev_b32 v9, 5, v0")
    a.I("v_and_b32 v10, 31, v0")
    a.I("v_lshlrev_b32 v10, 4, v10")
    a.I("v_lshl_add_u32 v9, v9, 13, v10")
    a.I("s_lshl_b32 s10, s16, 11")
    a.I("v_add_u32 v9, s10, v9")
    a.I("s_lshl_b32 s11, s17, 17")
    a.I("s_lshl_b32 s12, s18, 7")
    a.I("s_add_u32 s11, s11, s12")
    a.I("s_lshl_b32 s12, s16, 5")
    a.I("s_add_u32 s11, s11, s12")
    a.I("v_lshlrev_b32 v10, 11, v0")
    for tl in range(4):
        for jq in range(4):
            a.I(f"ds_write_b128 {v(LR)}, {v(ACC + 16 * tl + 4 * jq, 4)} offset:{(tl * 4 + jq) * 1024}")
    a.I("s_waitcnt lgkmcnt(0)")
    return ACC


def oproj_body4(a, N, st, bar_at=None):
    DEPTH = 4
    ACC, FR = 32, 96
    L16, L16B, LR = 1, 2, 3
    a.I("s_and_b32 s10, s2, 7")
    a.I("s_lshr_b32 s11, s2, 3")
    a.I("s_and_b32 s12, s11, 3")
    a.I("s_lshl_b32 s10, s10, 2")
    a.I("s_add_u32 s17, s10, s12")
    a.I("s_lshr_b32 s18, s11, 2")
    a.I(f"v_lshlrev_b32 {v(L16)}, 4, v0")
    a.I(f"v_add_u32 {v(L16B)}, {0x40000 - 1024}, {v(L16)}")
    a.I("s_lshl_b32 s19, s16, 14")
    a.I(f"v_add_u32 {v(LR)}, s19, {v(L16)}")
    a.I("s_lshl_b32 s42, s18, 19")
    a.I("s_lshl_b32 s10, s16, 16")
    a.I("s_add_u32 s42, s42, s10")
    a.I("s_lshl_b32 s43, s17, 19")
    a.I("s_lshl_b32 s10, s16, 15")
    a.I("s_add_u32 s43, s43, s10")
    a.I("s_waitcnt lgkmcnt(0)")
    srd(a, 20, 4, 5, 16 * MB + 2048, add=WS_CTX - 2048)
    srd(a, 24, 4, 5, 4 * MB, add=WS_WO)
    vm, lg = VM(a), LG(a)
    st()

    def loads(g):
        sl = g % DEPTH
        return [lambda: a.I(f"s_add_u32 m0, s19, {sl * 4096}"),
                lambda: a.I("s_nop 0") if g < DEPTH else None,
                lambda: vm.issue(f"buffer_load_dwordx4 {v(L16)}, s[24:27], s42 offen lds", g),
                lambda: vm.issue(f"buffer_load_dwordx4 {v(L16)}, s[24:27], s42 offen offset:1024 lds", g),
                lambda: vm.issue(f"buffer_load_dwordx4 {v(L16)}, s[20:23], s43 offen offset:2048 lds", g),
                lambda: vm.issue(f"buffer_load_dwordx4 {v(L16B)}, s[20:23], s43 offen offset:3072 lds", g),
                lambda: a.I("s_add_u32 s42, s42, 2048"),
                lambda: a.I("s_add_u32 s43, s43, 1024")]

    def reads(g):
        vm.wait(g)
        for q in range(4):
            lg.issue(f"ds_read_b128 {v(FR + 16 * (g & 1) + 4 * q, 4)}, {v(LR)} offset:{(g % DEPTH) * 4096 + q * 1024}", g)

    for g in range(DEPTH):
        for f in loads(g):
            f()
    srd(a, 28, 8, 9, 4 * MB)
    a.I("v_lshrrev_b32 v9, 5, v0")
    a.I("v_and_b32 v10, 31, v0")
    a.I("v_lshlrev_b32 v10, 4, v10")
    a.I("v_lshl_add_u32 v9, v9, 13, v10")
    a.I("s_lshl_b32 s10, s16, 10")
    a.I("v_add_u32 v9, s10, v9")
    a.I("v_add_u32 v11, 0x10000, v9")
    a.I("s_lshl_b32 s11, s17, 17")
    a.I("s_lshl_b32 s12, s18, 7")
    a.I("s_add_u32 s11, s11, s12")
    a.I("s_lshl_b32 s12, s16, 4")
    a.I("s_add_u32 s11, s11, s12")
    a.I("v_lshlrev_b32 v10, 11, v0")
    st()
    reads(0)
    st()
    NG = 32
    for g in range(NG):
        if g + 1 < NG:
            reads(g + 1)
        lg.wait(g)
        L = loads(g + DEPTH) if g + DEPTH < NG else []
        fr = FR + 16 * (g & 1)
        for qt in range(2):
            for cb in range(2):
                acc = v(ACC + 16 * (2 * qt + cb), 16)
                if L:
                    L.pop(0)()
                a.I(f"{MF} {acc}, {v(fr + 4 * cb, 4)}, {v(fr + 8 + 4 * qt, 4)}, {'0' if g == 0 else acc}")
                if L:
                    L.pop(0)()
        if g == bar_at:
            a.I("s_barrier")
    st()
    a.I("s_nop 8")
    for tl in range(4):
        for jq in range(4):
            a.I(f"ds_write_b128 {v(LR)}, {v(ACC + 16 * tl + 4 * jq, 4)} offset:{(tl * 4 + jq) * 1024}")
    a.I("s_waitcnt lgkmcnt(0)")
    a.I("s_barrier")
    for pw in range(8):
        for hl in range(2):
            a.I(f"ds_read_b128 {v(ACC + 8 * pw + 4 * hl, 4)}, {v(9 if pw < 4 else 11)} offset:{(pw % 4) * 16384 + hl * 512}")
        if pw == 6:
            a.I("s_waitcnt lgkmcnt(6)")
    for j in range(8):
        a.I(f"v_add_f32 {v(ACC + j)}, {v(ACC + j)}, {v(ACC + 8 + j)}")
        a.I(f"v_add_f32 {v(ACC + 16 + j)}, {v(ACC + 16 + j)}, {v(ACC + 24 + j)}")
    a.I("s_waitcnt lgkmcnt(0)")
    for j in range(8):
        a.I(f"v_add_f32 {v(ACC + 32 + j)}, {v(ACC + 32 + j)}, {v(ACC + 40 + j)}")
        a.I(f"v_add_f32 {v(ACC + 48 + j)}, {v(ACC + 48 + j)}, {v(ACC + 56 + j)}")
    for j in range(8):
        a.I(f"v_add_f32 {v(ACC + j)}, {v(ACC + j)}, {v(ACC + 16 + j)}")
        a.I(f"v_add_f32 {v(ACC + 32 + j)}, {v(ACC + 32 + j)}, {v(ACC + 48 + j)}")
    for j in range(8):
        a.I(f"v_add_f32 {v(ACC + j)}, {v(ACC + j)}, {v(ACC + 32 + j)}")
    for i in range(4):
        a.I(f"v_cvt_pk_bf16_f32 {v(12 + i)}, {v(ACC + 2 * i)}, {v(ACC + 2 * i + 1)}")
    a.I("buffer_store_dwordx4 v[12:15], v10, s[28:31], s11 offen")


def oproj_finish(a, ACC, PW=16384):
    for pw in range(4):
        for i in range(4):
            jq, hl = divmod(i, 2)
            if pw == 2 and i == 0 and PW > 16384:
                a.I("v_add_u32 v9, 0x10000, v9")
            a.I(f"ds_read_b128 {v(ACC + 16 * pw + 4 * i, 4)}, v9 offset:{(pw * PW) % 65536 + jq * 1024 + hl * 512}")
        if pw == 1:
            a.I("s_waitcnt lgkmcnt(0)")
            for j in range(16):
                a.I(f"v_add_f32 {v(ACC + j)}, {v(ACC + j)}, {v(ACC + 16 + j)}")
    a.I("s_waitcnt lgkmcnt(0)")
    for j in range(16):
        a.I(f"v_add_f32 {v(ACC + 32 + j)}, {v(ACC + 32 + j)}, {v(ACC + 48 + j)}")
    for j in range(16):
        a.I(f"v_add_f32 {v(ACC + j)}, {v(ACC + j)}, {v(ACC + 32 + j)}")
    for i in range(8):
        a.I(f"v_cvt_pk_bf16_f32 {v(12 + i)}, {v(ACC + 2 * i)}, {v(ACC + 2 * i + 1)}")
    a.I("buffer_store_dwordx4 v[12:15], v10, s[28:31], s11 offen")
    a.I("buffer_store_dwordx4 v[16:19], v10, s[28:31], s11 offen offset:16")


def gen_oproj():
    a = Asm()
    N = "oproj_kernel"
    kstart(a, N, 256)
    a.I("s_load_dwordx2 s[4:5], s[0:1], 88")
    a.I("s_load_dwordx2 s[6:7], s[0:1], 40")
    a.I("s_load_dwordx2 s[8:9], s[0:1], 72")
    a.I("v_lshrrev_b32 v1, 6, v0")
    a.I("v_and_b32 v0, 63, v0")
    a.I("s_nop 0")
    a.I("v_readfirstlane_b32 s16, v1")
    a.I("s_nop 0")
    st = Stamper(a, "oproj")
    ACC = oproj_body(a, N, st)
    a.I("s_barrier")
    oproj_finish(a, ACC)
    st.dump(16, 4, tmpv=8)
    kend(a, N)
    return a, N, (256, 256, 65536)


def PERMC(j):
    return 8 * (j >> 2) + (j & 3)


def gen_mat(a, dst, nf, base, consts, tmp):
    n = len(consts)
    for i in range(0, n, 4):
        for q in range(4):
            a.I(f"v_fmamk_f32 {v(tmp + q)}, {v(nf)}, {f32(float(consts[i + q]))}, {v(base)}")
        for q in range(4):
            a.I(f"v_cos_f32 {v(tmp + q)}, {v(tmp + q)}")
        a.I("s_nop 0")
        for q in range(2):
            a.I(f"v_cvt_pk_bf16_f32 {v(dst + i // 2 + q)}, {v(tmp + 2 * q)}, {v(tmp + 2 * q + 1)}")


def twiddle(a, Dr, Di, regs, nf, base, consts, sign, tmp):
    for x, c in enumerate(consts):
        A, C, S_, U = tmp, tmp + 1, tmp + 2, tmp + 3
        a.I(f"v_fmamk_f32 {v(A)}, {v(nf)}, {f32(float(c))}, {v(base)}")
        a.I(f"v_cos_f32 {v(C)}, {v(A)}")
        a.I(f"v_sin_f32 {v(S_)}, {v(A)}")
        a.I("s_nop 0")
        for j in regs[x]:
            ng = "-" if sign > 0 else ""
            ps = "" if sign > 0 else "-"
            a.I(f"v_mul_f32 {v(U)}, {v(Dr + j)}, {v(S_)}")
            a.I(f"v_mul_f32 {v(Dr + j)}, {v(Dr + j)}, {v(C)}")
            a.I(f"v_fma_f32 {v(Dr + j)}, {ng}{v(Di + j)}, {v(S_)}, {v(Dr + j)}")
            a.I(f"v_fma_f32 {v(Di + j)}, {v(Di + j)}, {v(C)}, {ps}{v(U)}")


def trig(a, j, C, S_, nf, base, c, tmp, scale=None):
    L = [f"v_fmamk_f32 {v(tmp)}, {v(nf)}, {f32(float(c))}, {v(base)}",
         f"v_cos_f32 {v(C)}, {v(tmp)}", f"v_sin_f32 {v(S_)}, {v(tmp)}"]
    return L


def cmul(a, Dr, Di, C, S_, sign, U):
    ng = "-" if sign > 0 else ""
    ps = "" if sign > 0 else "-"
    a.I(f"v_mul_f32 {v(U)}, {v(Dr)}, {v(S_)}")
    a.I(f"v_mul_f32 {v(Dr)}, {v(Dr)}, {v(C)}")
    a.I(f"v_fma_f32 {v(Dr)}, {ng}{v(Di)}, {v(S_)}, {v(Dr)}")
    a.I(f"v_fma_f32 {v(Di)}, {v(Di)}, {v(C)}, {ps}{v(U)}")


def pack(a, dst, src, n):
    for i in range(n):
        a.I(f"v_cvt_pk_bf16_f32 {v(dst + i)}, {v(src + 2 * i)}, {v(src + 2 * i + 1)}")


def b_decode(a):
    a.I("s_and_b32 s20, s2, 7")
    a.I("s_lshl_b32 s20, s20, 3")
    a.I("s_bfe_u32 s22, s2, 0x30003")
    a.I("s_or_b32 s20, s20, s22")
    a.I("s_lshr_b32 s21, s2, 6")


def gen_b1():
    a = Asm()
    N = "b1_kernel"
    kstart(a, N, 256)
    a.I("s_load_dwordx2 s[4:5], s[0:1], 88")
    a.I("s_load_dwordx4 s[8:11], s[0:1], 48")
    a.I("s_load_dwordx2 s[12:13], s[0:1], 64")
    a.I("v_lshrrev_b32 v1, 6, v0")
    a.I("v_and_b32 v2, 255, v0")
    a.I("v_and_b32 v0, 63, v0")
    a.I("v_readfirstlane_b32 s16, v1")
    b_decode(a)
    a.I("s_lshr_b32 s23, s21, 1")
    a.I("s_lshl_b32 s23, s23, 11")
    a.I("s_lshr_b32 s24, s20, 5")
    a.I("s_lshl_b32 s24, s24, 10")
    a.I("s_add_u32 s23, s23, s24")
    a.I("s_and_b32 s24, s20, 31")
    a.I("s_lshl_b32 s24, s24, 4")
    a.I("s_add_u32 s23, s23, s24")
    a.I("s_and_b32 s24, s21, 1")
    a.I("s_lshl_b32 s24, s24, 9")
    a.I("s_add_u32 s23, s23, s24")
    a.I("s_add_u32 s24, s23, 4096")
    a.I("v_lshlrev_b32 v3, 13, v2")
    a.I("s_cmp_ge_u32 s16, 4")
    a.I("s_waitcnt lgkmcnt(0)")
    a.I(f"s_cbranch_scc1 {N}_filt")
    srd(a, 28, 8, 9, 2 * MB)
    srd(a, 32, 4, 5, 257 * 8192, add=WS_Y)
    a.I("s_lshr_b32 s25, s21, 1")
    a.I("s_lshl_b32 s25, s25, 4")
    a.I("s_and_b32 s26, s21, 1")
    a.I("s_lshl_b32 s26, s26, 2")
    a.I("s_add_u32 s25, s25, s26")
    a.I("s_lshr_b32 s26, s16, 1")
    a.I("s_lshl_b32 s26, s26, 3")
    a.I("s_add_u32 s25, s25, s26")
    a.I("s_and_b32 s26, s16, 1")
    a.I("s_lshl_b32 s26, s26, 1")
    a.I("s_add_u32 s25, s25, s26")
    a.I("s_lshl_b32 s25, s25, 6")
    a.I("s_add_u32 s25, s25, s20")
    a.I("s_lshl_b32 s25, s25, 10")
    a.I(f"s_add_u32 s26, s25, {65536 - 1024}")
    a.I("s_lshl_b32 s27, s16, 11")
    a.I("s_mov_b32 m0, s27")
    a.I("v_lshlrev_b32 v4, 4, v0")
    a.I("buffer_load_dwordx4 v4, s[28:31], s25 offen lds")
    a.I("buffer_load_dwordx4 v4, s[28:31], s26 offen offset:1024 lds")
    HL, NF, BS, TM = 5, 6, 7, 8
    C32, NS32, AR, AI, XF, D1R, D1I, TR, TI, D2 = 16, 24, 32, 36, 40, 48, 64, 80, 88, 96
    a.I(f"v_lshrrev_b32 {v(HL)}, 5, v0")
    a.I(f"v_cvt_f32_u32 {v(HL)}, {v(HL)}")
    a.I("v_and_b32 v12, 31, v0")
    a.I("v_cvt_f32_u32 v12, v12")
    a.I(f"v_mul_f32 {v(NF)}, {f32(1 / 32)}, v12")
    a.I(f"v_mul_f32 {v(BS)}, {v(NF)}, {v(HL)}")
    a.I(f"v_mul_f32 {v(BS)}, {f32(8.0)}, {v(BS)}")
    nat = [16 * t + j for t in range(2) for j in range(8)]
    gen_mat(a, C32, NF, BS, nat, TM)
    a.I(f"v_add_f32 {v(BS)}, {f32(0.25)}, {v(BS)}")
    gen_mat(a, NS32, NF, BS, nat, TM)
    a.I("v_and_b32 v13, 15, v0")
    a.I("v_cvt_f32_u32 v13, v13")
    a.I(f"v_mul_f32 {v(NF)}, {f32(1 / 16)}, v13")
    a.I("v_bfe_u32 v13, v0, 4, 1")
    a.I("v_cvt_f32_u32 v13, v13")
    a.I(f"v_mul_f32 {v(BS)}, {v(NF)}, {v(HL)}")
    a.I(f"v_mul_f32 {v(BS)}, 4.0, {v(BS)}")
    a.I(f"v_fmamk_f32 {v(BS)}, v13, {f32(0.25)}, {v(BS)}")
    pc = [PERMC(j) for j in range(8)]
    gen_mat(a, AR, NF, BS, pc, TM)
    a.I(f"v_add_f32 {v(BS)}, {f32(-0.25)}, {v(BS)}")
    gen_mat(a, AI, NF, BS, pc, TM)
    a.I("v_bfe_u32 v13, v0, 4, 1")
    a.I("v_lshlrev_b32 v13, 10, v13")
    a.I("v_lshrrev_b32 v14, 5, v0")
    a.I("v_lshl_add_u32 v13, v14, 8, v13")
    a.I("v_and_b32 v15, 15, v0")
    a.I("v_lshl_add_u32 v13, v15, 3, v13")
    a.I("v_add_u32 v13, s27, v13")
    a.I("s_waitcnt vmcnt(0)")
    for t in range(2):
        for h in range(2):
            a.I(f"ds_read_b64_tr_b16 {v(XF + 4 * t + 2 * h, 2)}, v13 offset:{t * 512 + h * 128}")
    a.I(f"v_mul_f32 {v(NF)}, {f32(1 / 512)}, v12")
    a.I(f"v_mul_f32 {v(BS)}, {v(NF)}, {v(HL)}")
    a.I(f"v_mul_f32 {v(BS)}, 4.0, {v(BS)}")
    a.I("s_waitcnt lgkmcnt(0)")
    for t in range(2):
        a.I(f"{MF} {v(D1R, 16)}, {v(XF + 4 * t, 4)}, {v(C32 + 4 * t, 4)}, {'0' if t == 0 else v(D1R, 16)}")
    for t in range(2):
        a.I(f"{MF} {v(D1I, 16)}, {v(XF + 4 * t, 4)}, {v(NS32 + 4 * t, 4)}, {'0' if t == 0 else v(D1I, 16)}")
    a.I("v_and_b32 v15, 31, v0")
    a.I("v_lshlrev_b32 v15, 4, v15")
    a.I("v_lshl_add_u32 v15, v14, 11, v15")
    a.I("s_lshl_b32 s25, s16, 2")
    a.I("s_add_u32 s25, s25, 8192")
    a.I("v_add_u32 v15, s25, v15")
    a.I("s_nop 7")
    twiddle(a, D1R, D1I, [[j, j + 8] for j in range(8)], NF, BS, pc, -1, TM)
    pack(a, TR, D1R, 8)
    pack(a, TI, D1I, 8)
    a.I("s_nop 1")
    for r in range(2):
        a.I(f"{MF} {v(D2 + 16 * r, 16)}, {v(AR, 4)}, {v(TR + 4 * r, 4)}, 0")
        a.I(f"{MF} {v(D2 + 16 * r, 16)}, {v(AI, 4)}, {v(TI + 4 * r, 4)}, {v(D2 + 16 * r, 16)}")
    a.I("s_nop 11")
    for c in range(2):
        for j in range(5):
            a.I(f"v_cvt_pk_bf16_f32 {v(TR + 5 * c + j)}, {v(D2 + 8 * c + j)}, {v(D2 + 16 + 8 * c + j)}")
    for c in range(2):
        for j in range(4):
            a.I(f"ds_write_b32 v15, {v(TR + 5 * c + j)} offset:{(c * 8 + j) * 512}")
    a.I("v_cmp_eq_u32 vcc, 0, v0")
    a.I("s_and_saveexec_b64 s[36:37], vcc")
    for c in range(2):
        a.I(f"ds_write_b32 v15, {v(TR + 5 * c + 4)} offset:{8192 + 16 * c}")
    a.I("s_mov_b64 exec, s[36:37]")
    a.I("v_lshlrev_b32 v14, 4, v2")
    a.I("s_waitcnt lgkmcnt(0)")
    a.I("s_barrier")
    a.I("ds_read_b128 v[16:19], v14 offset:8192")
    a.I(f"ds_read_b128 v[20:23], v14 offset:{8192 + 4096}")
    a.I(f"ds_read_b128 v[24:27], v14 offset:{8192 + 8192}")
    a.I("v_lshlrev_b32 v13, 12, v2")
    a.I(f"v_add_u32 v13, {256 * 8192}, v13")
    a.I("s_waitcnt lgkmcnt(0)")
    a.I("buffer_store_dwordx4 v[16:19], v3, s[32:35], s23 offen")
    a.I("buffer_store_dwordx4 v[20:23], v3, s[32:35], s24 offen")
    a.I("v_cmp_gt_u32 vcc, 2, v2")
    a.I("s_and_saveexec_b64 s[36:37], vcc")
    a.I(f"s_cbranch_execz {N}_end")
    a.I("buffer_store_dwordx4 v[24:27], v13, s[32:35], s23 offen")
    a.I("s_endpgm")
    a.label(f"{N}_filt")
    srd(a, 28, 10, 11, 2048 * 514)
    srd(a, 32, 12, 13, 2048 * 514)
    srd(a, 36, 4, 5, 257 * 8192, add=WS_WF)
    a.I("s_lshr_b32 s25, s21, 1")
    a.I("s_lshl_b32 s25, s25, 5")
    a.I("s_lshr_b32 s26, s20, 5")
    a.I("s_lshl_b32 s26, s26, 4")
    a.I("s_add_u32 s25, s25, s26")
    a.I("s_and_b32 s26, s21, 1")
    a.I("s_lshl_b32 s26, s26, 2")
    a.I("s_add_u32 s25, s25, s26")
    a.I("s_lshl_b32 s25, s25, 5")
    a.I("s_and_b32 s26, s20, 31")
    a.I("s_add_u32 s25, s25, s26")
    a.I("s_mul_i32 s25, s25, 514")
    for j in range(8):
        a.I(f"s_add_u32 s{40 + j}, s25, {PERMC(j) * 32 * 514}")
    a.I("v_lshlrev_b32 v4, 1, v2")
    a.I("v_mov_b32 v5, 512")
    for q, va in enumerate((4, 5)):
        for c in range(2):
            for j in range(8):
                a.I(f"buffer_load_ushort {v(32 + 16 * q + 8 * c + j)}, {v(va)}, s[{28 + 4 * c}:{31 + 4 * c}], s{40 + j} offen")
    a.I(f"v_mov_b32 v6, {256 * 8192}")
    a.I("s_waitcnt vmcnt(16)")
    for i in range(8):
        a.I(f"v_lshl_or_b32 {v(16 + i)}, {v(33 + 2 * i)}, 16, {v(32 + 2 * i)}")
    a.I("buffer_store_dwordx4 v[16:19], v3, s[36:39], s23 offen")
    a.I("buffer_store_dwordx4 v[20:23], v3, s[36:39], s24 offen")
    a.I("v_cmp_eq_u32 vcc, 0, v2")
    a.I("s_and_saveexec_b64 s[48:49], vcc")
    a.I(f"s_cbranch_execz {N}_end")
    a.I("s_waitcnt vmcnt(2)")
    for i in range(8):
        a.I(f"v_lshl_or_b32 {v(24 + i)}, {v(49 + 2 * i)}, 16, {v(48 + 2 * i)}")
    a.I("buffer_store_dwordx4 v[24:27], v6, s[36:39], s23 offen")
    a.I("buffer_store_dwordx4 v[28:31], v6, s[36:39], s24 offen")
    kend(a, N)
    return a, N, (256, 512, 20480)


def b2_loads(a, vm, col_s, own_s, L16, YR, WR, S0, SR):
    sY, sW = S0, S0 + 2
    a.I(f"s_lshl_b32 {s(sY)}, {s(col_s)}, 13")
    a.I(f"s_lshl_b32 {s(own_s)}, {s(own_s)}, 10")
    a.I(f"s_add_u32 {s(sY)}, {s(sY)}, {s(own_s)}")
    a.I(f"s_add_u32 {s(sY + 1)}, {s(sY)}, 4096")
    a.I(f"s_add_u32 {s(sW)}, {s(sY)}, {s(own_s)}")
    a.I(f"s_add_u32 {s(sW + 1)}, {s(sW)}, 4096")
    srd(a, SR, 4, 5, 257 * 8192, add=WS_Y)
    for c in range(2):
        for t in range(2):
            vm.issue(f"buffer_load_dwordx4 {v(YR + 8 * c + 4 * t, 4)}, {v(L16)}, {s(SR, 4)}, {s(sY + c)} offen offset:{t * 2048}", "Y")
    srd(a, SR + 4, 4, 5, 257 * 8192, add=WS_WF)
    for c in range(2):
        for h in range(2):
            vm.issue(f"buffer_load_dwordx4 {v(WR + 8 * c + 4 * h, 4)}, {v(L16)}, {s(SR + 4, 4)}, {s(sW + c)} offen offset:{h * 1024}", "WF")


def b2_body(a, own, col_s, lds_s, svc, vm, R0=0, S0=20, SR=28, slice_len=110, rmap=None, after_loads=None, st=lambda: None, preloaded=False, compact_ex=False, newer=8, zpol='', split=None):
    L16, HL, NF, BS, LF, XA, XB, TM, LB = [R0 + x for x in (1, 2, 3, 4, 5, 6, 7, 8, 12)]
    YR, YI, WR, WI = [R0 + x for x in (16, 24, 32, 40)]
    C32, S32, NS32, C64, S64 = [R0 + x for x in (48, 56, 64, 72, 88)]
    DR, DI = R0 + 104, R0 + 120
    FR, FI, FN = R0 + 136, R0 + 152, R0 + 168
    XT = 240
    if rmap:
        L16, HL, NF, BS, LF, XA, XB, TM, LB, YR, YI, WR, WI, C32, S32, NS32, C64, S64, DR, DI, FR, FI, FN = rmap
    sY, sW, sSC, sT = S0, S0 + 2, S0 + 4, S0 + 5
    I0 = a.I
    cnt = [0]

    def I(text):
        r = I0(text)
        cnt[0] += 1
        if cnt[0] >= slice_len and (text.startswith("v_cvt_pk") or text.startswith("v_fma_f32") or text.startswith("v_sin")):
            dosvc()
        return r

    def dosvc():
        a.I = I0
        svc()
        a.I = I
        cnt[0] = 0

    a.I(f"v_lshlrev_b32 {v(L16)}, 4, v0")
    if preloaded:
        vm.q += ["Y"] * 4 + ["WF"] * 4 + ["Q"] * newer
    else:
        a.I(f"s_mov_b32 {s(sT)}, {own}")
        b2_loads(a, vm, col_s, sT, L16, YR, WR, S0, SR)
    srd(a, SR + 8, 4, 5, 257 * 8192, add=WS_Z)
    a.I = I
    a.I(f"s_mov_b32 {s(sSC)}, {f32(2.0 ** -19)}")
    a.I(f"s_and_b32 {s(sT)}, {s(col_s)}, 255")
    a.I(f"s_cmp_eq_u32 {s(sT)}, 0")
    a.I(f"s_cselect_b32 {s(sSC)}, {f32(2.0 ** -20)}, {s(sSC)}")
    a.I(f"v_lshrrev_b32 {v(HL)}, 5, v0")
    a.I(f"v_cvt_f32_u32 {v(HL)}, {v(HL)}")
    a.I(f"v_mul_f32 {v(HL)}, 4.0, {v(HL)}")
    a.I(f"v_and_b32 {v(LF)}, 31, v0")
    a.I(f"v_cvt_f32_u32 {v(LF)}, {v(LF)}")
    a.I(f"v_add_f32 {v(LB)}, {f32(32.0 * own)}, {v(LF)}")
    pc = lambda n: [16 * t + PERMC(j) for t in range(n) for j in range(8)]
    a.I(f"v_mul_f32 {v(NF)}, {f32(1 / 32)}, {v(LF)}")
    a.I(f"v_mul_f32 {v(BS)}, {v(NF)}, {v(HL)}")
    gen_mat(a, C32, NF, BS, pc(2), TM)
    a.I(f"v_add_f32 {v(BS)}, {f32(-0.25)}, {v(BS)}")
    gen_mat(a, S32, NF, BS, pc(2), TM)
    for i in range(8):
        a.I(f"v_xor_b32 {v(NS32 + i)}, 0x80008000, {v(S32 + i)}")
    a.I(f"v_mul_f32 {v(NF)}, {f32(1 / 64)}, {v(LB)}")
    a.I(f"v_mul_f32 {v(BS)}, {v(NF)}, {v(HL)}")
    gen_mat(a, C64, NF, BS, pc(4), TM)
    a.I(f"v_add_f32 {v(BS)}, {f32(-0.25)}, {v(BS)}")
    gen_mat(a, S64, NF, BS, pc(4), TM)
    a.I(f"v_add_u32 {v(XA)}, {s(lds_s)}, {v(L16)}")
    a.I(f"v_add_u32 {v(XB)}, {(1 - own) * 4096}, {v(XA)}")
    a.I(f"v_add_u32 {v(XA)}, {own * 4096}, {v(XA)}")

    def mm(D, terms, fill=None, per=3, first=True):
        for A_, B_ in terms:
            a.I(f"{MF} {v(D, 16)}, {v(A_, 4)}, {v(B_, 4)}, {'0' if first else v(D, 16)}")
            first = False
            if fill:
                for x in fill[:per]:
                    a.I(x)
                del fill[:per]

    exo = [0]

    def ex_put(neg_of, ldsoff):
        nonlocal XA, XB
        if compact_ex and ldsoff:
            XA, XB, ldsoff = XB, XA, 0
        exo[0] = ldsoff
        for c, F in enumerate((FR, FI)):
            for h in range(2):
                a.I(f"ds_write_b128 {v(XA)}, {v(F + 8 * own + 4 * h, 4)} offset:{ldsoff + (2 * c + h) * 1024}")
        for i in range(8):
            a.I(f"v_xor_b32 {v(FN + 8 * own + i)}, 0x80008000, {v(neg_of + 8 * own + i)}")
        a.I("s_waitcnt lgkmcnt(0)")
        if split:
            split[0]()

    def ex_get(neg_of):
        if split:
            split[1]()
        else:
            dosvc()
        for c, F in enumerate((FR, FI)):
            for h in range(2):
                a.I(f"ds_read_b128 {v(F + 8 * (1 - own) + 4 * h, 4)}, {v(XB)} offset:{exo[0] + (2 * c + h) * 1024}")
        a.I("s_waitcnt lgkmcnt(0)")
        for i in range(8):
            a.I(f"v_xor_b32 {v(FN + 8 * (1 - own) + i)}, 0x80008000, {v(neg_of + 8 * (1 - own) + i)}")
        a.I("s_nop 1")

    def stage(neg_of, ldsoff, DRt, DIt, fill):
        ex_put(neg_of, ldsoff)
        mine, theirs = (2 * own, 2 * own + 1), (2 - 2 * own, 3 - 2 * own)
        mm(DR, [x for t in mine for x in DRt(t)], fill)
        mm(DI, [x for t in mine for x in DIt(t)], fill)
        ex_get(neg_of)
        st()
        mm(DR, [x for t in theirs for x in DRt(t)], fill, first=False)
        mm(DI, [x for t in theirs for x in DIt(t)], fill, first=False)

    jc = [(j & 3) + 8 * (j >> 2) for j in range(16)]
    o = 8 * (1 - own)
    T1C = [FN + j for j in range(16)]
    T1S = [FR + o + j for j in range(8)] + [FI + o + j for j in range(8)]
    a.I(f"v_mul_f32 {v(NF)}, {f32(1 / 2048)}, {v(LF)}")
    a.I(f"v_add_f32 {v(BS)}, {f32(32.0 * own)}, {v(HL)}")
    a.I(f"v_mul_f32 {v(BS)}, {v(NF)}, {v(BS)}")
    for j in range(16):
        a.many(trig(a, j, T1C[j], T1S[j], NF, BS, jc[j], TM + (j & 1)))
    a.I(f"v_mul_f32 {v(NF)}, {f32(1 / 2048)}, {v(LB)}")
    a.I(f"v_mul_f32 {v(BS)}, {v(NF)}, {v(HL)}")
    st()
    vm.wait("Y")
    st()
    mm(DR, [(YR, C32), (YR + 4, C32 + 4), (YI, S32), (YI + 4, S32 + 4)])
    mm(DI, [(YI, C32), (YI + 4, C32 + 4), (YR, NS32), (YR + 4, NS32 + 4)])
    a.I("s_nop 11")
    for j in range(16):
        cmul(a, DR + j, DI + j, T1C[j], T1S[j], -1, TM)
    pack(a, FR + 8 * own, DR, 8)
    pack(a, FI + 8 * own, DI, 8)
    T2C = [YR + j for j in range(8)] + [YI + j for j in range(8)]
    fill = []
    for j in range(16):
        fill += trig(a, j, T2C[j], XT + j, NF, BS, jc[j], TM + (j & 1))
    stage(FR, 0, lambda t: [(C64 + 4 * t, FR + 4 * t), (S64 + 4 * t, FI + 4 * t)],
          lambda t: [(C64 + 4 * t, FI + 4 * t), (S64 + 4 * t, FN + 4 * t)], fill)
    assert not fill
    vm.wait("WF")
    for j in range(12):
        a.I(f"v_mul_f32 {v(T2C[j])}, {s(sSC)}, {v(T2C[j])}")
    for j in range(16):
        wr, wi, u = TM, TM + 1, TM + 2
        if j & 1:
            a.I(f"v_and_b32 {v(wr)}, 0xffff0000, {v(WR + j // 2)}")
            a.I(f"v_and_b32 {v(wi)}, 0xffff0000, {v(WI + j // 2)}")
        else:
            a.I(f"v_lshlrev_b32 {v(wr)}, 16, {v(WR + j // 2)}")
            a.I(f"v_lshlrev_b32 {v(wi)}, 16, {v(WI + j // 2)}")
        cmul(a, DR + j, DI + j, wr, wi, +1, u)
    pack(a, FR + 8 * own, DR, 8)
    pack(a, FI + 8 * own, DI, 8)
    fill = [f"v_mul_f32 {v(T2C[j])}, {s(sSC)}, {v(T2C[j])}" for j in range(12, 16)]
    fill += [f"v_mul_f32 {v(XT + j)}, {s(sSC)}, {v(XT + j)}" for j in range(16)]
    stage(FI, 8192, lambda t: [(FR + 4 * t, C64 + 4 * t), (FN + 4 * t, S64 + 4 * t)],
          lambda t: [(FI + 4 * t, C64 + 4 * t), (FR + 4 * t, S64 + 4 * t)], fill)
    a.I("s_nop 11")
    for j in range(16):
        cmul(a, DR + j, DI + j, T2C[j], XT + j, +1, TM)
    pack(a, FR, DR, 8)
    pack(a, FI, DI, 8)
    a.I("s_nop 1")
    mm(DR, [(C32, FR), (C32 + 4, FR + 4), (NS32, FI), (NS32 + 4, FI + 4)])
    mm(DI, [(C32, FI), (C32 + 4, FI + 4), (S32, FR), (S32 + 4, FR + 4)])
    a.I = I0
    a.I("s_nop 7")
    pack(a, YR, DR, 8)
    a.I("s_nop 3")
    pack(a, YI, DI, 8)
    for c in range(2):
        for h in range(2):
            vm.issue(f"buffer_store_dwordx4 {v(YR + 8 * c + 4 * h, 4)}, {v(L16)}, {s(SR + 8, 4)}, {s(sW + c)} offen offset:{h * 1024}{zpol}", "Z")


def gen_b2():
    a = Asm()
    N = "b2_kernel"
    kstart(a, N, 257)
    a.I("s_load_dwordx2 s[4:5], s[0:1], 88")
    a.I("v_lshrrev_b32 v1, 6, v0")
    a.I("v_and_b32 v0, 63, v0")
    a.I("s_mov_b32 s17, 0")
    a.I("v_readfirstlane_b32 s16, v1")
    a.I("s_waitcnt lgkmcnt(0)")
    a.I("s_cmp_eq_u32 s16, 1")
    a.I(f"s_cbranch_scc1 {N}_w1")
    b2_body(a, 0, 2, 17, lambda: a.I("s_barrier"), VM(a), slice_len=10 ** 9)
    a.I("s_endpgm")
    a.label(f"{N}_w1")
    b2_body(a, 1, 2, 17, lambda: a.I("s_barrier"), VM(a), slice_len=10 ** 9)
    kend(a, N)
    return a, N, (257, 128, 16384)


def b3_loads(a, outp=6, pol='', before=None):
    b_decode(a)
    a.I("s_lshr_b32 s23, s20, 5")
    a.I("s_lshl_b32 s23, s23, 11")
    a.I("s_lshl_b32 s24, s21, 9")
    a.I("s_add_u32 s23, s23, s24")
    a.I("s_and_b32 s24, s20, 31")
    a.I("s_lshl_b32 s24, s24, 4")
    a.I("s_add_u32 s23, s23, s24")
    a.I("s_add_u32 s24, s23, 4096")
    a.I("v_lshlrev_b32 v3, 13, v2")
    a.I(f"v_mov_b32 v4, {256 * 8192}")
    a.I("s_waitcnt lgkmcnt(0)")
    srd(a, 28, 4, 5, 257 * 8192, add=WS_Z)
    srd(a, 32, outp, outp + 1, 4 * MB)
    if before:
        before()
    a.I(f"buffer_load_dwordx4 v[16:19], v3, s[28:31], s23 offen{pol}")
    a.I(f"buffer_load_dwordx4 v[20:23], v3, s[28:31], s24 offen{pol}")
    a.I(f"buffer_load_dwordx4 v[24:27], v4, s[28:31], s23 offen{pol}")


def b3_body(a, LB=0, outp=6, nafter=0, loaded=False, mid=None, part=0, bar=None, rm=None, tw=None):
    if not loaded:
        b3_loads(a, outp)
    n0 = len(a.items)
    HL, NF, BS, AFL, TM = 5, 6, 7, 12, 8
    C32, NS32, BRE, BIM, MT, ZF, UR, UI, TR, TI = rm or (32, 40, 48, 56, 64, 68, 76, 92, 108, 116)
    a.I(f"v_lshrrev_b32 {v(HL)}, 5, v0")
    a.I(f"v_cvt_f32_u32 {v(HL)}, {v(HL)}")
    a.I("v_and_b32 v13, 31, v0")
    a.I("v_cvt_f32_u32 v13, v13")
    a.I(f"v_mul_f32 {v(NF)}, {f32(1 / 32)}, v13")
    a.I(f"v_mul_f32 {v(BS)}, {v(NF)}, {v(HL)}")
    a.I(f"v_mul_f32 {v(BS)}, 4.0, {v(BS)}")
    pc = [16 * t + PERMC(j) for t in range(2) for j in range(8)]
    gen_mat(a, C32, NF, BS, pc, TM)
    a.I(f"v_add_f32 {v(BS)}, {f32(0.25)}, {v(BS)}")
    gen_mat(a, NS32, NF, BS, pc, TM)
    a.I(f"v_and_b32 {v(AFL)}, 15, v0")
    a.I(f"v_cvt_f32_u32 {v(AFL)}, {v(AFL)}")
    a.I(f"v_mul_f32 {v(NF)}, {f32(1 / 16)}, {v(AFL)}")
    a.I(f"v_mul_f32 {v(BS)}, {f32(0.25)}, {v(HL)}")
    a.I("v_and_b32 v13, 16, v0")
    a.I("v_cmp_eq_u32 vcc, 0, v13")
    a.I("v_mov_b32 v14, 0")
    for B_, ph in ((BRE, None), (BIM, -0.25)):
        if ph:
            a.I(f"v_add_f32 {v(BS)}, {f32(ph)}, {v(BS)}")
        gen_mat(a, MT, NF, BS, list(range(8)), TM)
        for i in range(4):
            a.I(f"v_cndmask_b32 {v(B_ + i)}, v14, {v(MT + i)}, vcc")
            a.I(f"v_cndmask_b32 {v(B_ + 4 + i)}, {v(MT + i)}, v14, vcc")
    jc = [(j & 3) + 8 * (j >> 2) for j in range(16)]
    if tw is not None:
        a.I(f"v_mul_f32 {v(NF)}, {f32(1 / 512)}, {v(AFL)}")
        a.I(f"v_mul_f32 {v(BS)}, {v(NF)}, {v(HL)}")
        a.I(f"v_mul_f32 {v(BS)}, 4.0, {v(BS)}")
        for j in range(16):
            a.many(trig(a, j, tw + j, tw + 16 + j, NF, BS, jc[j], TM + (j & 1)))
    if part == 1:
        return
    if part == 2:
        del a.items[n0:]
    if mid:
        mid()
    a.I("v_and_b32 v13, 31, v2")
    a.I("v_lshlrev_b32 v13, 4, v13")
    a.I("v_lshrrev_b32 v15, 5, v2")
    a.I("v_lshl_add_u32 v13, v15, 1, v13")
    a.I(f"v_add_u32 v13, {LB}, v13")
    a.I("v_cmp_eq_u32 vcc, 0, v2")
    a.I(f"v_mov_b32 v15, {LB + 8192}")
    a.I(f"s_waitcnt vmcnt({nafter})")
    for i in range(4):
        a.I(f"v_cndmask_b32 {v(20 + i)}, {v(20 + i)}, v14, vcc")
    for c in range(2):
        for i in range(8):
            a.I(f"ds_write_b16{'_d16_hi' if i & 1 else ''} v13, {v(16 + 4 * c + i // 2)} offset:{i * 1024 + c * 512}")
    a.I("s_and_saveexec_b64 s[36:37], vcc")
    a.I("ds_write_b128 v15, v[24:27]")
    a.I("s_mov_b64 exec, s[36:37]")
    a.I("s_lshl_b32 s25, s16, 11")
    a.I(f"s_add_u32 s25, s25, {LB}")
    a.I("v_lshlrev_b32 v13, 4, v0")
    a.I("v_add_u32 v13, s25, v13")
    a.I("v_bfe_u32 v15, v0, 4, 1")
    a.I("s_lshl_b32 s25, s16, 2")
    a.I(f"s_add_u32 s25, s25, {LB + 8192}")
    a.I("v_lshl_add_u32 v15, v15, 1, s25")
    for j in range(1, 16):
        a.I(f"v_mov_b32 {v(UR + j)}, 0")
    a.I("s_waitcnt lgkmcnt(0)")
    if bar:
        bar()
    else:
        a.I("s_barrier")
    a.I(f"ds_read_u16 {v(UR)}, v15")
    a.I(f"ds_read_b128 {v(ZF, 4)}, v13")
    a.I(f"ds_read_b128 {v(ZF + 4, 4)}, v13 offset:1024")
    a.I("v_and_b32 v15, 1, v0")
    a.I("v_lshlrev_b32 v15, 31, v15")
    a.I("v_cmp_gt_u32 vcc, 32, v0")
    a.I(f"v_mul_f32 {v(NF)}, {f32(1 / 512)}, {v(AFL)}")
    a.I(f"v_mul_f32 {v(BS)}, {v(NF)}, {v(HL)}")
    a.I(f"v_mul_f32 {v(BS)}, 4.0, {v(BS)}")
    a.I("s_waitcnt lgkmcnt(2)")
    a.I(f"v_lshlrev_b32 {v(UR)}, 16, {v(UR)}")
    a.I(f"v_xor_b32 {v(UR)}, {v(UR)}, v15")
    a.I(f"v_cndmask_b32 {v(UR)}, v14, {v(UR)}, vcc")
    a.I("s_waitcnt lgkmcnt(0)")
    a.I("s_nop 0")
    for r in range(2):
        a.I(f"{MF} {v(UR, 16)}, {v(ZF + 4 * r, 4)}, {v(BRE + 4 * r, 4)}, {v(UR, 16)}")
    for r in range(2):
        a.I(f"{MF} {v(UI, 16)}, {v(ZF + 4 * r, 4)}, {v(BIM + 4 * r, 4)}, {'0' if r == 0 else v(UI, 16)}")
    a.I("s_lshr_b32 s25, s21, 1")
    a.I("s_lshl_b32 s25, s25, 4")
    a.I("s_and_b32 s26, s21, 1")
    a.I("s_lshl_b32 s26, s26, 2")
    a.I("s_add_u32 s25, s25, s26")
    a.I("s_lshr_b32 s26, s16, 1")
    a.I("s_lshl_b32 s26, s26, 3")
    a.I("s_add_u32 s25, s25, s26")
    a.I("s_and_b32 s26, s16, 1")
    a.I("s_lshl_b32 s26, s26, 1")
    a.I("s_add_u32 s25, s25, s26")
    a.I("s_lshl_b32 s25, s25, 6")
    a.I("s_add_u32 s25, s25, s20")
    a.I("s_lshl_b32 s25, s25, 11")
    a.I(f"s_add_u32 s26, s25, {64 * 2048}")
    if tw is not None:
        for j in range(16):
            cmul(a, UR + j, UI + j, tw + j, tw + 16 + j, +1, TM)
    else:
        twiddle(a, UR, UI, [[j] for j in range(16)], NF, BS, jc, +1, TM)
    pack(a, TR, UR, 8)
    pack(a, TI, UI, 8)
    a.I("v_and_b32 v13, 31, v0")
    a.I("v_lshlrev_b32 v13, 5, v13")
    terms = [(TR, C32), (TR + 4, C32 + 4), (TI, NS32), (TI + 4, NS32 + 4)]
    for i, (A_, B_) in enumerate(terms):
        a.I(f"{MF} {v(UR, 16)}, {v(A_, 4)}, {v(B_, 4)}, {'0' if i == 0 else v(UR, 16)}")
    a.I("v_lshrrev_b32 v15, 5, v0")
    a.I("v_lshl_add_u32 v13, v15, 4, v13")
    a.I("s_nop 9")
    pack(a, 16, UR, 8)
    a.I("s_nop 1")
    for r in range(2):
        a.I(f"v_permlane32_swap_b32 {v(16 + 4 * r)}, {v(18 + 4 * r)}")
        a.I(f"v_permlane32_swap_b32 {v(17 + 4 * r)}, {v(19 + 4 * r)}")
        a.I(f"buffer_store_dwordx4 {v(16 + 4 * r, 4)}, v13, s[32:35], s{25 + r} offen offset:1024{os.environ.get('OPB', ' nt')}")


def gen_b3():
    a = Asm()
    N = "b3_kernel"
    kstart(a, N, 256)
    a.I("s_load_dwordx2 s[4:5], s[0:1], 88")
    a.I("s_load_dwordx2 s[6:7], s[0:1], 72")
    a.I("v_lshrrev_b32 v1, 6, v0")
    a.I("v_mov_b32 v2, v0")
    a.I("v_and_b32 v0, 63, v0")
    a.I("v_readfirstlane_b32 s16, v1")
    b3_body(a)
    kend(a, N)
    return a, N, (256, 256, 8192 + 64)


KERNELS = [gen_b1, gen_qkv, gen_b2, gen_attn, gen_b3, gen_oproj]


ALIASES = [("v_mfma_f32_16x16x32_bf16", "mf16", 4), ("v_mfma_f32_32x32x16_bf16", "mf32", 4),
           ("v_cvt_pk_bf16_f32", "cvtpk", 3)]


def compact(txt):
    lines = txt.split("\n")
    out = []
    done = False
    for l in lines:
        if l.startswith("    "):
            l = l.strip()
            for full, short, n in ALIASES:
                if l.startswith(full + " "):
                    l = short + l[len(full):]
        out.append(l)
        if l.startswith(".amdgcn_target") and not done:
            done = True
            for full, short, n in ALIASES:
                args = ["p%d" % i for i in range(n)]
                out.append(f".macro {short} " + ", ".join(args))
                out.append(f"{full} " + ", ".join("\\" + x for x in args))
                out.append(".endm")
    return "\n".join(out)


DESC = """; Generated by a hand-written scheduler script (no compiler output).  Three launches:
;                with transposing LDS loads); results stored in MFMA-operand order.  Also: row rFFT(512) of B_x as two
"""


def build(kernels, path):
    hdr = open(os.path.join(os.path.dirname(os.path.abspath(__file__)), "..", "cdna_kernels", NAME + ".s.ref")).read()
    head = [l for l in hdr.splitlines() if l.startswith(";") and "@launch" not in l and "Override" not in l
            and "grid=ceil" not in l]
    txt = []
    launches = []
    descs = []
    bad = 0
    for g in kernels:
        KIDX[0] = len(launches)
        a, n, (grid, blk, lds) = g()
        if os.environ.get("PADREF") == n:
            items = []
            done = False
            for it in a.items:
                items.append(it)
                if it[0] == "i" and it[1].text == f"s_cbranch_scc1 {n}_end" and not done:
                    done = True
                    b = Asm()
                    b.I("s_memrealtime s[98:99]")
                    b.I("s_load_dwordx2 s[96:97], s[0:1], 88")
                    b.I("s_cmp_lg_u32 s2, 0")
                    b.I("s_cbranch_scc1 padref_skip")
                    b.I("s_waitcnt lgkmcnt(0)")
                    b.I(f"s_add_u32 s84, s96, {hex(200 * MB)}")
                    b.I("s_addc_u32 s85, s97, 0")
                    b.I("s_mov_b32 s86, 64")
                    b.I("s_mov_b32 s87, 0x20000")
                    b.I("v_mov_b32 v254, s98")
                    b.I("buffer_store_dword v254, off, s[84:87], 0 sc0 sc1")
                    b.label("padref_skip")
                    b.I("s_waitcnt lgkmcnt(0)")
                    items += b.items
            a.items = items
        if os.environ.get("PADK") == n:
            items = []
            cnt = 0
            for it in a.items:
                if it[0] == "i" and it[1].text == f"s_cbranch_scc1 {n}_end" and cnt == 0:
                    items.append(it)
                    b = Asm()
                    b.I("s_memrealtime s[98:99]")
                    if os.environ.get("PADREF"):
                        b.I("s_load_dwordx2 s[96:97], s[0:1], 88")
                        b.I("s_waitcnt lgkmcnt(0)")
                        b.I(f"s_add_u32 s84, s96, {hex(200 * MB)}")
                        b.I("s_addc_u32 s85, s97, 0")
                        b.I("s_mov_b32 s86, 64")
                        b.I("s_mov_b32 s87, 0x20000")
                        b.I("buffer_load_dword v254, off, s[84:87], 0 sc0 sc1")
                        b.I("s_waitcnt vmcnt(0)")
                        b.I("v_readfirstlane_b32 s98, v254")
                    items += b.items
                    cnt = 1
                    continue
                if it[0] == "i" and it[1].mn == "s_endpgm" and not (items[-1][0] == "l" and items[-1][1] == n + "_end" and items[-2][1].mn == "s_endpgm"):
                    b = Asm()
                    lab = None
                    if items[-1][0] == "l" and items[-1][1] == n + "_end":
                        lab = items.pop()
                    cnt += 1
                    b.I("s_waitcnt vmcnt(0) lgkmcnt(0)")
                    b.label(f"pad_{cnt}")
                    b.I("s_memrealtime s[96:97]")
                    b.I("s_waitcnt lgkmcnt(0)")
                    b.I("s_sub_u32 s96, s96, s98")
                    b.I(f"s_cmp_lt_u32 s96, {os.environ['PADT']}")
                    b.I(f"s_cbranch_scc1 pad_{cnt}")
                    items += b.items
                    if lab:
                        items.append(it)
                        items.append(lab)
                items.append(it)
            a.items = items
        if DBGT:
            items = []
            for it in a.items:
                if it[0] == "i" and it[1].mn == "s_endpgm" and not (items and items[-1][0] == "l" and items[-1][1] == n + "_end" and items[-2][1].mn == "s_endpgm"):
                    b = Asm()
                    lab = None
                    if items[-1][0] == "l" and items[-1][1] == n + "_end":
                        lab = items.pop()
                    dbg_stamp(b, 1)
                    items += b.items
                    if lab:
                        items.append(it)
                        items.append(lab)
                items.append(it)
            a.items = items
        bad += len(a.check())
        nv, ns, na = a.maxregs()
        print(f"{n}: {sum(1 for k, _ in a.items if k == 'i')} instrs, vgpr {nv}, agpr {na}, sgpr {ns}")
        launches.append(f"; @launch kernel={n} grid=({grid},1,1) block=({blk},1,1) lds={lds}")
        txt.append(a.text())
        descs.append(kdesc(n, nv, ns, na))
    if bad:
        print("HAZARDS:", bad)
    out = "\n".join(head) + "\n" + "\n".join(launches) + "\n" + '.amdgcn_target "amdgcn-amd-amdhsa--gfx950"\n' + \
          "".join(txt) + "".join(descs)
    out = out.replace('.amdgcn_target "amdgcn-amd-amdhsa--gfx950"\n', '.amdgcn_target "amdgcn-amd-amdhsa--gfx950"\n' + DESC, 1)
    out = compact(out)
    open(path, "w").write(out)
    return bad


if __name__ == "__main__":
    p = sys.argv[1] if len(sys.argv) > 1 else os.path.join(os.path.dirname(os.path.abspath(__file__)), "..",
                                                           "cdna_kernels", NAME + ".s")
    sys.exit(1 if build(KERNELS, p) else 0)
```

```python
import sys, os
sys.path.insert(0, os.path.dirname(os.path.abspath(__file__)))
import gen
from gen import *

M16 = "v_mfma_f32_16x16x32_bf16"
SP = os.environ.get("SP", " sc1")
PUMP = int(os.environ.get("PUMP", "5"))
SCAT_AT = int(os.environ.get("SCAT_AT", "52"))
PRE3 = int(os.environ.get("PRE3", "20"))
PF_AT = int(os.environ.get("PF_AT", "80"))
BP = os.environ.get("BP", " nt")
PP = os.environ.get("PP", "")
AP = os.environ.get("AP", "")
LP = os.environ.get("LP", "")
MULM = os.environ.get("MULM", "")
SIG3 = int(os.environ.get("SIG3", "124"))
B3AT = int(os.environ.get("B3AT", "75"))
CT_AT = int(os.environ.get("CT_AT", "80"))
OWNAT = int(os.environ.get("OWNAT", "49"))
MATF = int(os.environ.get("MATF", "0"))
STAG = int(os.environ.get("STAG", "0"))
EARLYE = int(os.environ.get("EARLYE", "0"))
GRP2 = int(os.environ.get("GRP2", "1"))
FILT_AT = int(os.environ.get("FILT_AT", "70"))
LATE_AT = int(os.environ.get("LATE_AT", "30"))
STF = eval(os.environ.get("STF", "(31, 63, 95)"))
B1START = int(os.environ.get("B1START", "6"))


def gen_l1():
    a = Asm()
    N = "l1_kernel"
    kstart(a, N, 256)
    a.I("s_load_dwordx4 s[4:7], s[0:1], 0")
    a.I("s_load_dwordx4 s[8:11], s[0:1], 16")
    a.I("s_load_dwordx2 s[12:13], s[0:1], 32")
    a.I("s_load_dwordx2 s[14:15], s[0:1], 88")
    a.I("s_load_dwordx4 s[60:63], s[0:1], 48")
    a.I("s_load_dwordx2 s[64:65], s[0:1], 64")
    a.I("s_load_dwordx2 s[90:91], s[0:1], 40")
    TID, L16 = 64, 65
    a.I(f"v_and_b32 {v(TID)}, 255, v0")
    a.I("v_lshrrev_b32 v2, 6, v0")
    a.I("v_and_b32 v0, 63, v0")
    a.I("v_readfirstlane_b32 s16, v2")
    st = Stamper(a, "l1")
    st()
    BLDS = 9 * 16384
    a.I("s_nop 0")
    if os.environ.get("CT0", "1") == "1":
        code_touch(a, N, 16, 24, 60, kd=False)
    a.I("s_and_b32 s17, s2, 7")
    a.I("s_lshr_b32 s18, s2, 3")
    a.I("s_and_b32 s19, s18, 7")
    a.I("s_lshr_b32 s18, s18, 3")
    a.I("s_lshl_b32 s40, s17, 2")
    a.I("s_add_u32 s18, s18, s40")
    if os.environ.get("L1MAP", "4x8") == "4x8":
        a.I("s_lshr_b32 s18, s2, 3")
        a.I("s_and_b32 s19, s18, 3")
        a.I("s_and_b32 s40, s17, 1")
        a.I("s_lshl_b32 s40, s40, 2")
        a.I("s_add_u32 s19, s19, s40")
        a.I("s_lshr_b32 s18, s18, 2")
        a.I("s_lshr_b32 s40, s17, 1")
        a.I("s_lshl_b32 s40, s40, 3")
        a.I("s_add_u32 s18, s18, s40")
    a.I("s_mov_b32 s41, 0")
    a.I("s_mul_i32 s42, s18, 6")
    a.I("s_cmp_ge_u32 s18, 11")
    a.I("s_cselect_b32 s41, 1, s41")
    a.I("s_cselect_b32 s40, 64, 0")
    a.I("s_cmp_ge_u32 s18, 21")
    a.I("s_cselect_b32 s41, 2, s41")
    a.I("s_cselect_b32 s40, 126, s40")
    a.I("s_sub_u32 s42, s42, s40")
    a.I("s_lshl_b32 s44, s19, 3")
    a.I("s_add_u32 s44, s44, s16")
    t1, t2, t3, G = 66, 67, 68, 69
    WV, AV, AR_, TB, SK, SV = 1, 3, 7, 9, 21, 22
    a.I(f"v_lshrrev_b32 {v(t1)}, 3, v0")
    a.I(f"v_lshlrev_b32 {v(G)}, 10, {v(t1)}")
    a.I(f"v_lshlrev_b32 {v(t1)}, 13, {v(t1)}")
    a.I("s_lshl_b32 s45, s16, 17")
    a.I(f"v_add_u32 {v(t1)}, s45, {v(t1)}")
    a.I(f"v_bfe_u32 {v(t2)}, v0, 4, 1")
    a.I(f"v_lshlrev_b32 {v(t2)}, 1, {v(t2)}")
    a.I(f"v_and_b32 {v(t3)}, 7, v0")
    a.I(f"v_xor_b32 {v(t2)}, {v(t2)}, {v(t3)}")
    a.I(f"v_lshl_add_u32 {v(WV)}, {v(t2)}, 4, {v(t1)}")
    a.I(f"v_xor_b32 {v(WV + 1)}, 64, {v(WV)}")
    a.I(f"v_add_u32 {v(WV + 1)}, {65536 - 1024}, {v(WV + 1)}")
    a.I("s_lshl_b32 s45, s44, 15")
    a.I(f"v_add_u32 {v(t1)}, s45, {v(G)}")
    a.I(f"v_lshrrev_b32 {v(t2)}, 4, v0")
    a.I(f"v_xor_b32 {v(t2)}, {v(t2)}, {v(t3)}")
    a.I(f"v_lshl_add_u32 {v(AV)}, {v(t2)}, 4, {v(t1)}")
    a.I(f"v_xor_b32 {v(AV + 1)}, 64, {v(AV)}")
    a.I(f"v_add_u32 {v(AV + 1)}, {8192 - 1024}, {v(AV + 1)}")
    a.I(f"v_add_u32 {v(AV + 2)}, {2 * (8192 - 1024)}, {v(AV)}")
    a.I(f"v_add_u32 {v(AV + 3)}, {2 * (8192 - 1024)}, {v(AV + 1)}")
    a.I("s_lshl_b32 s46, s16, 13")
    a.I("s_lshl_b32 s47, s16, 11")
    a.I("s_lshl_b32 s48, s42, 7")
    a.I("s_lshl_b32 s49, s44, 13")
    a.I("s_lshl_b32 s50, s42, 18")
    a.I("s_add_u32 s50, s50, s49")
    a.I("s_add_u32 s53, s48, 512")
    a.I("s_mov_b32 s43, s49")
    a.I(f"v_lshlrev_b32 {v(L16)}, 4, v0")
    a.I("s_lshl_b32 s45, s44, 16")
    a.I("v_lshrrev_b32 v23, 1, v0")
    a.I("v_lshlrev_b32 v23, 13, v23")
    a.I(f"v_and_b32 {v(t1)}, 1, v0")
    a.I(f"v_lshl_add_u32 v23, {v(t1)}, 7, v23")
    a.I("v_add_u32 v23, s45, v23")
    a.I("s_waitcnt lgkmcnt(0)")
    WT0 = os.environ.get("WT0", "0")
    if WT0 != "0":
        a.I("s_cmp_ge_u32 s16, 6")
        a.I(f"s_cbranch_scc1 {N}_nwt")
        a.I("s_lshr_b32 s40, s16, 1")
        a.I("s_cmp_eq_u32 s40, 1")
        a.I("s_cselect_b32 s20, s8, s10")
        a.I("s_cselect_b32 s21, s9, s11")
        a.I("s_cmp_eq_u32 s40, 2")
        a.I("s_cselect_b32 s20, s12, s20")
        a.I("s_cselect_b32 s21, s13, s21")
        a.I(f"s_mov_b32 s22, {hex(4 * MB)}")
        a.I("s_mov_b32 s23, 0x20000")
        a.I("s_and_b32 s40, s16, 1")
        a.I("s_lshl1_add_u32 s40, s2, s40")
        a.I("s_lshl_b32 s40, s40, 13")
        a.I(f"v_lshlrev_b32 {v(t1)}, 7, v0")
        a.I(f"buffer_load_dword v59, {v(t1)}, s[20:23], s40 offen")
        a.label(f"{N}_nwt")
    a.I("s_lshl_b32 s45, s44, 18")
    a.I("s_lshl_b32 s40, s42, 12")
    a.I("s_add_u32 s45, s45, s40")
    a.I(f"s_mov_b32 s92, {hex(512 * 1024)}")
    a.I("s_cmp_eq_u32 s41, 2")
    a.I("s_cselect_b32 s50, s45, s50")
    a.I("s_cselect_b32 s92, 0x2000, s92")
    a.I("s_cselect_b32 s20, s4, s6")
    a.I("s_cselect_b32 s21, s5, s7")
    a.I("s_cselect_b32 s24, s8, s10")
    a.I("s_cselect_b32 s25, s9, s11")
    a.I(f"s_cselect_b32 s51, {hex(WS_Q)}, 0")
    a.I(f"s_cselect_b32 s52, {f32(QSCALE)}, 1.0")
    a.I("s_cmp_eq_u32 s41, 1")
    a.I("s_cselect_b32 s24, s12, s24")
    a.I("s_cselect_b32 s25, s13, s25")
    a.I(f"s_cselect_b32 s51, {hex(WS_V)}, s51")
    a.I("s_mov_b32 s32, s24")
    a.I("s_mov_b32 s33, s25")
    a.I(f"s_mov_b32 s40, {hex(WS_V)}")
    a.I("s_cmp_eq_u32 s18, 10")
    a.I("s_cselect_b32 s32, s12, s32")
    a.I("s_cselect_b32 s33, s13, s33")
    a.I("s_cselect_b32 s53, 0, s53")
    a.I(f"s_add_u32 s45, s49, {hex(31 << 19)}")
    a.I("s_cmp_eq_u32 s18, 31")
    a.I("s_cselect_b32 s53, s48, s53")
    a.I("s_cselect_b32 s43, s50, s43")
    a.I(f"s_cselect_b32 s40, {hex(WS_Q)}, s40")
    a.I("s_cselect_b32 s24, s12, s24")
    a.I("s_cselect_b32 s25, s13, s25")
    a.I(f"s_cselect_b32 s48, {62 * 128}, s48")
    a.I(f"s_cselect_b32 s51, {hex(WS_V)}, s51")
    a.I("s_cselect_b32 s20, s6, s20")
    a.I("s_cselect_b32 s21, s7, s21")
    a.I("s_cselect_b32 s50, s45, s50")
    a.I(f"s_mov_b32 s22, {hex(2 * MB)}")
    a.I("s_mov_b32 s23, 0x20000")
    a.I(f"s_mov_b32 s26, {hex(4 * MB)}")
    a.I("s_mov_b32 s27, 0x20000")

    def late_setup():
        a.I("s_mov_b32 s94, s52")
        a.I("s_mov_b32 s95, s52")
        a.I(f"s_mov_b32 s34, {hex(4 * MB)}")
        a.I("s_mov_b32 s35, 0x20000")
        srd(a, 28, 14, 15, 16 * MB, add="s51")
        srd(a, 36, 14, 15, 16 * MB, add="s40")
        srd(a, 56, 4, 5, 2 * MB)
        if os.environ.get("XDROP") == "q":
            a.I("s_cmp_eq_u32 s41, 2")
            a.I("s_cselect_b32 s30, 0, s30")
        if os.environ.get("XDROP") == "all":
            a.I("s_mov_b32 s30, 0")
            a.I("s_mov_b32 s38, 0")
        a.I("s_add_u32 s13, s48, 256")
        a.I("s_add_u32 s17, s53, 256")
        a.I("s_cmp_eq_u32 s18, 31")
        a.I("s_cselect_b32 s4, s32, s24")
        a.I("s_cselect_b32 s5, s33, s25")
        a.I("s_cselect_b32 s13, s53, s13")
        a.I("s_cselect_b32 s17, s17, s53")
        a.I(f"s_mov_b32 s6, {hex(4 * MB)}")
        a.I("s_mov_b32 s7, 0x20000")

    def w_prefetch(g):
        for th, (col, sr) in enumerate([("s13", "s[4:7]"), ("s17", "s[32:35]")]):
            g.lq.append((["s_mov_b64 exec, 0xffff"], f"buffer_load_dword {v(56 + th)}, v23, {sr}, {col} offen{PP}", "pf"))

    def addr_setup():
        a.I(f"v_lshrrev_b32 {v(G)}, 4, v0")
        a.I(f"v_bfe_u32 {v(t1)}, v0, 3, 1")
        a.I(f"v_lshlrev_b32 {v(t1)}, 4, {v(t1)}")
        a.I(f"v_and_b32 {v(t2)}, 7, v0")
        a.I(f"v_add_u32 {v(t1)}, {v(t1)}, {v(t2)}")
        a.I(f"v_bfe_u32 {v(t2)}, {v(t1)}, 1, 3")
        a.I(f"v_xor_b32 {v(t2)}, {v(t2)}, {v(G)}")
        a.I(f"v_lshlrev_b32 {v(t2)}, 4, {v(t2)}")
        a.I(f"v_lshl_add_u32 {v(AR_)}, {v(t1)}, 7, {v(t2)}")
        a.I(f"v_xor_b32 {v(AR_ + 1)}, 64, {v(AR_)}")
        a.I(f"v_add_u32 {v(AR_)}, s46, {v(AR_)}")
        a.I(f"v_add_u32 {v(AR_ + 1)}, s46, {v(AR_ + 1)}")
        a.I(f"v_lshlrev_b32 {v(t2)}, 9, {v(G)}")
        a.I(f"v_lshl_add_u32 {v(SK)}, {v(t1)}, 4, {v(t2)}")
        a.I(f"v_and_b32 {v(t3)}, 15, v0")
        a.I(f"v_lshl_add_u32 {v(SV)}, {v(t3)}, 4, {v(t2)}")
        a.I(f"v_bfe_u32 {v(t1)}, v0, 2, 2")
        a.I(f"v_lshl_add_u32 {v(t1)}, {v(G)}, 3, {v(t1)}")
        a.I(f"v_lshlrev_b32 {v(t1)}, 7, {v(t1)}")
        a.I(f"v_and_b32 {v(t2)}, 3, v0")
        a.I(f"v_lshl_add_u32 {v(t1)}, {v(t2)}, 3, {v(t1)}")
        a.I(f"v_bfe_u32 {v(t2)}, v0, 3, 2")
        a.I(f"v_lshl_add_u32 {v(t1)}, {v(t2)}, 5, {v(t1)}")
        for ct in range(4):
            a.I(f"v_xor_b32 {v(TB + ct)}, {32 * ct}, {v(t1)}")
        for ct in range(4):
            a.I(f"v_add_u32 {v(TB + 4 + ct)}, 0x10000, {v(TB + ct)}")
            a.I(f"v_add_u32 {v(TB + 8 + ct)}, 0x20000, {v(TB + ct)}")

    def b_common():
        a.I("s_and_b32 s8, s2, 7")
        a.I("s_lshl_b32 s8, s8, 3")
        a.I("s_bfe_u32 s9, s2, 0x30003")
        a.I("s_or_b32 s8, s8, s9")
        a.I("s_lshr_b32 s9, s2, 6")
        a.I("s_lshr_b32 s66, s9, 1")
        a.I("s_lshl_b32 s66, s66, 11")
        a.I("s_lshr_b32 s10, s8, 5")
        a.I("s_lshl_b32 s10, s10, 10")
        a.I("s_add_u32 s66, s66, s10")
        a.I("s_and_b32 s10, s8, 31")
        a.I("s_lshl_b32 s10, s10, 4")
        a.I("s_add_u32 s66, s66, s10")
        a.I("s_and_b32 s10, s9, 1")
        a.I("s_lshl_b32 s10, s10, 9")
        a.I("s_add_u32 s66, s66, s10")

    HL, NF, BS, F2, TM, X1, X2, X3 = 70, 71, 72, 73, 74, 78, 79, 80
    C32, NS32, AR, AI, XF, D1R, D1I, TR, TI, D2 = 84, 92, 100, 104, 108, 116, 132, 148, 158, 168
    pc8 = [PERMC(j) for j in range(8)]

    def fft_loads(vm):
        a.I("s_lshr_b32 s10, s9, 1")
        a.I("s_lshl_b32 s10, s10, 4")
        a.I("s_and_b32 s11, s9, 1")
        a.I("s_lshl_b32 s11, s11, 2")
        a.I("s_add_u32 s10, s10, s11")
        a.I("s_lshr_b32 s11, s16, 1")
        a.I("s_lshl_b32 s11, s11, 3")
        a.I("s_add_u32 s10, s10, s11")
        a.I("s_and_b32 s11, s16, 1")
        a.I("s_lshl_b32 s11, s11, 1")
        a.I("s_add_u32 s10, s10, s11")
        a.I("s_lshl_b32 s10, s10, 6")
        a.I("s_add_u32 s10, s10, s8")
        a.I("s_lshl_b32 s10, s10, 10")
        a.I(f"s_add_u32 s11, s10, {65536 - 1024}")
        a.I(f"s_add_u32 s3, s47, {BLDS}")
        a.I("s_mov_b32 m0, s3")
        a.I(f"s_mov_b32 s62, {hex(2 * MB)}")
        a.I("s_mov_b32 s63, 0x20000")
        vm.issue(f"buffer_load_dwordx4 {v(L16)}, s[60:63], s10 offen{BP} lds", "bx")
        vm.issue(f"buffer_load_dwordx4 {v(L16)}, s[60:63], s11 offen offset:1024{BP} lds", "bx")

    def fft_compute(g):
        vm = g.vm
        a.I(f"v_lshrrev_b32 {v(X2)}, 5, v0")
        a.I(f"v_cvt_f32_u32 {v(HL)}, {v(X2)}")
        a.I(f"v_and_b32 {v(F2)}, 31, v0")
        a.I(f"v_cvt_f32_u32 {v(F2)}, {v(F2)}")
        a.I(f"v_mul_f32 {v(NF)}, {f32(1 / 32)}, {v(F2)}")
        a.I(f"v_mul_f32 {v(BS)}, {v(NF)}, {v(HL)}")
        a.I(f"v_mul_f32 {v(BS)}, {f32(8.0)}, {v(BS)}")
        nat = [16 * t + j for t in range(2) for j in range(8)]
        gen_mat(a, C32, NF, BS, nat, TM)
        a.I(f"v_add_f32 {v(BS)}, {f32(0.25)}, {v(BS)}")
        gen_mat(a, NS32, NF, BS, nat, TM)
        a.I(f"v_bfe_u32 {v(X1)}, v0, 4, 1")
        a.I(f"v_lshlrev_b32 {v(X1)}, 10, {v(X1)}")
        a.I(f"v_lshl_add_u32 {v(X1)}, {v(X2)}, 8, {v(X1)}")
        a.I(f"v_and_b32 {v(X3)}, 15, v0")
        a.I(f"v_lshl_add_u32 {v(X1)}, {v(X3)}, 3, {v(X1)}")
        a.I(f"v_add_u32 {v(X1)}, s3, {v(X1)}")
        vm.wait("bx")
        for t in range(2):
            for h in range(2):
                a.I(f"ds_read_b64_tr_b16 {v(XF + 4 * t + 2 * h, 2)}, {v(X1)} offset:{t * 512 + h * 128}")
        a.I(f"v_cvt_f32_u32 {v(X3)}, {v(X3)}")
        a.I(f"v_mul_f32 {v(NF)}, {f32(1 / 16)}, {v(X3)}")
        a.I(f"v_bfe_u32 {v(X1)}, v0, 4, 1")
        a.I(f"v_cvt_f32_u32 {v(X1)}, {v(X1)}")
        a.I(f"v_mul_f32 {v(BS)}, {v(NF)}, {v(HL)}")
        a.I(f"v_mul_f32 {v(BS)}, 4.0, {v(BS)}")
        a.I(f"v_fmamk_f32 {v(BS)}, {v(X1)}, {f32(0.25)}, {v(BS)}")
        a.I("s_waitcnt lgkmcnt(0)")
        for D, Mx in ((D1R, C32), (D1I, NS32)):
            for t in range(2):
                a.I(f"{MF} {v(D, 16)}, {v(XF + 4 * t, 4)}, {v(Mx + 4 * t, 4)}, {'0' if t == 0 else v(D, 16)}")
        gen_mat(a, AR, NF, BS, pc8, TM)
        a.I(f"v_add_f32 {v(BS)}, {f32(-0.25)}, {v(BS)}")
        gen_mat(a, AI, NF, BS, pc8, TM)
        a.I(f"v_mul_f32 {v(NF)}, {f32(1 / 512)}, {v(F2)}")
        a.I(f"v_mul_f32 {v(BS)}, {v(NF)}, {v(HL)}")
        a.I(f"v_mul_f32 {v(BS)}, 4.0, {v(BS)}")
        twiddle(a, D1R, D1I, [[j, j + 8] for j in range(8)], NF, BS, pc8, -1, TM)
        pack(a, TR, D1R, 8)
        pack(a, TI, D1I, 8)
        a.I(f"v_and_b32 {v(X3)}, 31, v0")
        a.I(f"v_lshlrev_b32 {v(X3)}, 4, {v(X3)}")
        for r in range(2):
            a.I(f"{MF} {v(D2 + 16 * r, 16)}, {v(AR, 4)}, {v(TR + 4 * r, 4)}, 0")
            a.I(f"{MF} {v(D2 + 16 * r, 16)}, {v(AI, 4)}, {v(TI + 4 * r, 4)}, {v(D2 + 16 * r, 16)}")
        a.I(f"v_lshl_add_u32 {v(X3)}, {v(X2)}, 11, {v(X3)}")
        a.I("s_lshl_b32 s10, s16, 2")
        a.I(f"s_add_u32 s11, s10, {BLDS + 8192}")
        a.I(f"v_add_u32 {v(X3)}, s11, {v(X3)}")
        a.I(f"v_mov_b32 {v(X2)}, s10")
        a.I(f"s_add_u32 s67, s66, {256 * 8192}")
        a.I(f"s_add_u32 s11, s66, {256 * 8192 + 4096}")
        srd(a, 60, 14, 15, 8 * MB, add=WS_Y)
        a.I("s_nop 1")
        for c in range(2):
            for j in range(5):
                a.I(f"v_cvt_pk_bf16_f32 {v(TR + 5 * c + j)}, {v(D2 + 8 * c + j)}, {v(D2 + 16 + 8 * c + j)}")
        for c in range(2):
            for j in range(4):
                a.I(f"ds_write_b32 {v(X3)}, {v(TR + 5 * c + j)} offset:{(c * 8 + j) * 512}")
        a.I = I0
        a.I("s_mov_b64 exec, 1")
        vm.issue(f"buffer_store_dword {v(TR + 4)}, {v(X2)}, s[60:63], s67 offen", "bs")
        vm.issue(f"buffer_store_dword {v(TR + 9)}, {v(X2)}, s[60:63], s11 offen", "bs")
        a.I("s_mov_b64 exec, -1")

    WFR, WFP, FX1, FX2, WF9 = 56, 52, 52, 53, 55

    def filt_setup():
        a.I("s_lshr_b32 s10, s9, 1")
        a.I("s_lshl_b32 s10, s10, 5")
        a.I("s_lshr_b32 s11, s8, 5")
        a.I("s_lshl_b32 s11, s11, 4")
        a.I("s_add_u32 s10, s10, s11")
        a.I("s_and_b32 s11, s9, 1")
        a.I("s_lshl_b32 s11, s11, 2")
        a.I("s_add_u32 s10, s10, s11")
        a.I("s_lshl_b32 s10, s10, 5")
        a.I("s_and_b32 s11, s8, 31")
        a.I("s_add_u32 s10, s10, s11")
        a.I("s_mul_i32 s19, s10, 514")
        a.I(f"v_lshlrev_b32 {v(FX1)}, 1, {v(TID)}")
        a.I(f"v_and_b32 {v(FX2)}, 3, v0")
        a.I(f"v_bfe_u32 {v(t1)}, v0, 2, 1")
        a.I(f"v_lshl_add_u32 {v(FX2)}, {v(t1)}, 3, {v(FX2)}")
        a.I(f"v_mul_u32_u24 {v(FX2)}, {32 * 514}, {v(FX2)}")
        a.I(f"v_add_u32 {v(FX2)}, 512, {v(FX2)}")
        a.I("s_cmp_ge_u32 s16, 4")
        a.I("s_cselect_b32 s8, s64, s0")
        a.I("s_cselect_b32 s9, s65, s1")
        a.I(f"s_mov_b32 s10, {2048 * 514}")
        a.I("s_mov_b32 s11, 0x20000")

    def filt_loads(g):
        for j in range(8):
            g.lq.append(([f"s_add_u32 s12, s19, {PERMC(j) * 32 * 514}"],
                         f"buffer_load_ushort {v(WFR + j)}, {v(FX1)}, s[8:11], s12 offen{BP}", "wf"))
        g.lq.append(([], f"buffer_load_ushort {v(WF9)}, {v(FX2)}, s[8:11], s19 offen{BP}", "wf"))

    def filt_finish(g):
        vm = g.vm
        L = [lambda: (g.flush("wf"), vm.wait("wf"), a.I(f"v_lshlrev_b32 {v(54)}, 1, v0"))]
        L.append(lambda: (a.I("s_mov_b64 exec, 0xff"),
                          vm.issue(f"buffer_store_short {v(WF9)}, {v(54)}, s[60:63], s67 offen", "bs"),
                          a.I("s_mov_b64 exec, -1")))
        for i in range(4):
            L.append(lambda i=i: a.I(f"v_lshl_or_b32 {v(WFP + i)}, {v(WFR + 1 + 2 * i)}, 16, {v(WFR + 2 * i)}"))
        return L

    def ys_calc():
        a.I("s_and_b32 s12, s16, 3")
        a.I("s_lshl_b32 s12, s12, 19")
        a.I(f"v_lshlrev_b32 {v(YS)}, 13, v0")
        a.I(f"v_add_u32 {v(YS)}, s12, {v(YS)}")

    def scat(g):
        g.vm.issue(f"buffer_store_dwordx4 {v(YD, 4)}, {v(YS)}, s[60:63], s66 offen", "bs")

    def scat_next():
        for i in range(4):
            a.I(f"v_mov_b32 {v(YD + i)}, {v(WFP + i)}")
        a.I(f"s_add_u32 s66, s66, {hex(WS_WF - WS_Y)}")

    YA, YD, YS = 56, 48, 23
    ACC, RING, PK, AFB = 192, 24, 56, 64
    LOOK = 4
    AHEAD = int(os.environ.get("AHEAD", "5"))

    def AF(rt, k):
        return AFB + (k * 2 + rt) * 4

    class Gen:
        def __init__(self, passes, nmerge, vmq):
            self.passes, self.nmerge = passes, nmerge
            self.vm, self.lg = VM(a), LG(a)
            self.vm.q = list(vmq)
            self.busy, self.nxt, self.dq, self.lq = {}, 0, [], []
            self.chunks, self.frags, self.groups = [], [], {}
            for pp in range(0, len(passes), 2):
                if pp // 2 < nmerge:
                    for kc in range(4):
                        c = len(self.chunks)
                        self.chunks += [(pp, kc), (pp + 1, kc)]
                        self.groups[len(self.frags)] = [c, c + 1]
                        if EARLYE and kc == 3:
                            for cp in range(2):
                                self.frags += [(c + h, ks, 2 * cp + e) for ks in range(4) for h in range(2) for e in range(2)]
                        else:
                            for ks in range(4):
                                for h in range(2):
                                    self.frags += [(c + h, ks, ct) for ct in range(4)]
                else:
                    for q in range(2):
                        for kc in range(4):
                            c = len(self.chunks)
                            self.chunks.append((pp + q, kc))
                            if GRP2 == 0:
                                self.groups[len(self.frags)] = [c]
                            elif kc % 2 == 0:
                                self.groups[len(self.frags)] = [c, c + 1]
                            if not EARLYE or kc < 2:
                                self.frags += [(c, ks, ct) for ks in range(4) for ct in range(4)]
                            elif kc == 3:
                                for cp in range(2):
                                    self.frags += [(cc, ks, 2 * cp + e) for cc in (c - 1, c) for ks in range(4) for e in range(2)]
            self.aread = {}
            seen = set()
            for i_, (c_, ks_, ct_) in enumerate(self.frags):
                pj = (i_ // 128) * 8 + (4 * self.chunks[c_][1] + ks_) // 2
                if pj not in seen:
                    seen.add(pj)
                    self.aread[i_] = pj
            self.prev = [[], []]
            self.b1busy = True
            self.skip_boundary = False
            self.pend = []

        def blk(self, c):
            nm = 8 * self.nmerge
            if c < nm:
                return 4 + 2 * ((c // 2) % 3) + (c & 1)
            if self.nmerge == 1:
                return [6, 7, 8, 9, 0, 1, 2, 3][(c - nm) % 8]
            return [8, 9, 4, 5, 0, 1, 2, 3][(c - nm) % 8]

        def dmaW(self, now, done):
            c = self.nxt
            if c >= len(self.chunks) or c > now + AHEAD:
                return False
            b = self.blk(c)
            if b in self.busy and self.busy[b] not in done:
                return False
            if b == 9 and self.b1busy:
                return False
            if b < 4 and now < 8 * self.nmerge:
                return False
            self.busy[b] = c
            self.nxt += 1
            pp, kc = self.chunks[c]
            form, wsel, wdi, osel, odi = self.passes[pp]
            sr = "s[32:35]" if wsel else "s[24:27]"
            for q in range(2):
                pre = [f"s_add_u32 m0, s47, {hex(b * 16384)}",
                       f"s_add_u32 s45, {'s53' if wsel else 's48'}, {hex((kc << 20) + wdi * 128)}"] if q == 0 else []
                self.dq.append((pre, f"buffer_load_dwordx4 {v(WV + q)}, {sr}, s45 offen offset:{q * 1024}{LP} lds", ("W", c)))
            return True

        def pump(self, n=1):
            for _ in range(n):
                q = self.dq or self.lq
                if q:
                    pre, ins, tag = q.pop(0)
                    a.many(pre)
                    self.vm.issue(ins, tag)
                    if tag == "pf":
                        a.I("s_mov_b64 exec, -1")

        def flush(self, tag=None):
            while any(tag is None or x[2] == tag for x in self.dq + self.lq):
                self.pump()

        def dmaA(self, j):
            sr = "s[56:59]" if j >= 8 else "s[20:23]"
            k = 0
            while k < len(self.dq) and not self.dq[k][0]:
                k += 1
            for i in range(4):
                pre = [f"s_add_u32 m0, s46, {hex((j % 2) * 4096)}", f"s_mov_b32 s45, {(j % 8) * 128}"] if i == 0 else []
                self.dq.insert(k + i, (pre, f"buffer_load_dwordx4 {v(AV + i)}, {sr}, s45 offen offset:{i * 1024}{AP} lds", ("A", j)))

        def readA(self, j):
            self.flush(("A", j))
            self.vm.wait(("A", j))
            for ks in range(2):
                for x in range(2):
                    self.lg.issue(f"ds_read_b128 {v(AF(x, 2 * (j % 8) + ks), 4)}, {v(AR_ + (ks ^ x))} "
                                  f"offset:{(j % 2) * 4096 + x * 1024}", ("A", j))

        def reads(self, i, halves=(0, 1)):
            c, ks, ct = self.frags[i]
            b = self.blk(c)
            base = TB + 4 * (b // 4) + ct
            off = (b % 4) * 16384 + ks * 4096
            d = RING + 4 * slot(i)
            for h in halves:
                self.lg.issue(f"ds_read_b64_tr_b16 {v(d + 2 * h, 2)}, {v(base)} offset:{off + 512 * h}", ("W", i))

        def sync(self, grp):
            for c in grp:
                self.flush(("W", c))
            self.vm.wait([("W", c) for c in grp])
            a.I("s_barrier")
            lo = self.prev[1][0] if self.prev[1] else 0
            done = set(range(lo))
            if self.prev[1]:
                self.b1busy = False
            self.prev = [self.prev[1], grp]
            while self.dmaW(grp[0], done):
                pass

        def acc(self, pp, rt, ct):
            return ACC + 32 * (pp & 1) + 4 * (4 * rt + ct)

        def epi(self, pp, stag=False, sp=SP, qs=(0, 1, 2, 3)):
            out = []
            late = []
            associate = lambda L: [(p_ + k, f) for k, (p_, f) in enumerate(L)]
            form, wsel, wdi, osel, u = self.passes[pp]
            so = 54 + (pp & 1)
            sr = "s[36:39]" if osel else "s[28:31]"
            def so_calc():
                a.I(f"s_add_u32 s{so}, {'s43' if osel else 's50'}, {(u & 1) * 4096}")
                assert (u >> 1) in (-1, 0, 1)
                if u >> 1:
                    a.I(f"s_{'add' if (u >> 1) > 0 else 'sub'}_u32 s{so}, s{so}, s92")
            out.append(so_calc)
            for q in qs:
                pk = PK + 4 * (q % 2)
                if form == "K":
                    cp, x = divmod(q, 2)
                    srcs = [self.acc(pp, x, 2 * cp), self.acc(pp, x, 2 * cp + 1)]
                    off, va = x * 128 + cp * 2048, SK
                else:
                    srcs = [self.acc(pp, 0, q), self.acc(pp, 1, q)]
                    off, va = (q >> 1) * 2048 + (q & 1) * 256, SV
                for i in range(4):
                    src = srcs[i // 2] + 2 * (i % 2)
                    if form == "K" and MULM == "pk":
                        out.append(lambda src=src: a.I(f"v_pk_mul_f32 {v(src, 2)}, {v(src, 2)}, s[94:95]"))
                    elif form == "K" and MULM != "none":
                        out.append(lambda src=src: a.I(f"v_mul_f32 {v(src)}, s52, {v(src)}"))
                        out.append(lambda src=src: a.I(f"v_mul_f32 {v(src + 1)}, s52, {v(src + 1)}"))
                    out.append(lambda src=src, pk=pk, i=i: a.I(f"v_cvt_pk_bf16_f32 {v(pk + i)}, {v(src)}, {v(src + 1)}"))
                sp_ = "" if (os.environ.get("SPQ") and q in (0, 2)) else sp
                stx = f"buffer_store_dwordx4 {v(pk, 4)}, {v(va)}, {sr}, s{so} offen offset:{off}{sp_}"
                if stag:
                    def site(half, stx=stx):
                        lab = f"{N}_sg{self.tag}{(pp // 2) if self.tag in 'CD' else 0}_{pp & 1}_{len(self.sites)}"
                        self.sites.append(lab)
                        a.I(f"s_bitcmp{1 - half}_b32 s16, 2")
                        a.I(f"s_cbranch_scc1 {lab}")
                        a.I(stx)
                        a.label(lab)
                    out.append(lambda site=site: site(0))
                    late.append((len(out) + STAG, lambda site=site: site(1)))
                else:
                    out.append(lambda stx=stx: self.vm.issue(stx, ("S", pp)))
            for pos, f in associate(late):
                out.insert(min(pos, len(out)), f)
            return out

        def boundary(self, pps):
            self.flush("pf")
            self.vm.wait("pf")
            ys_calc()
            a.I("s_nop 2")
            while self.pend:
                self.pend.pop(0)()
            for pp in pps:
                for f in self.epi(pp, qs=(2, 3) if EARLYE else (0, 1, 2, 3), sp=os.environ.get("SPB", SP)):
                    f()

        def run(self, p0, p1):
            lg = self.lg
            NF_ = len(self.frags)
            NA = 8 * self.nmerge
            pend = self.pend
            for i in range(64 * p0, 64 * p1):
                c, ks, ct = self.frags[i]
                pp, kc = self.chunks[c]
                k = 4 * kc + ks
                if i % 128 == 0 and 0 < i <= 128 * self.nmerge and not self.skip_boundary:
                    self.boundary([i // 64 - 2] + ([i // 64 - 1] if i < 128 * self.nmerge else []))
                if i % 2 == 0:
                    lg.wait([("W", i), ("W", i + 1), ("A", (i // 128) * 8 + k // 2)])
                if self.aread.get(i) is not None and self.aread[i] + 2 < NA:
                    self.dmaA(self.aread[i] + 2)
                wf = v(RING + 4 * slot(i), 4)
                j = i + LOOK
                for rt in range(2):
                    ac = v(self.acc(pp, rt, ct), 4)
                    af = v(AF(rt, k), 4)
                    cin = "0" if k == 0 else ac
                    if self.passes[pp][0] == "V":
                        a.I(f"{M16} {ac}, {af}, {wf}, {cin}")
                    else:
                        a.I(f"{M16} {ac}, {wf}, {af}, {cin}")
                    if j < NF_:
                        if rt == 0 and j in self.groups:
                            self.sync(self.groups[j])
                        ja = self.aread.get(j)
                        if rt == 0 and ja is not None and ja < NA:
                            self.readA(ja)
                        self.reads(j, (rt,))
                    if rt == 0 and pend:
                        pend.pop(0)()
                    if rt == 1 and i % 2 == 0 and (self.dq or self.lq):
                        self.pump(1)
                    if rt == 1 and pend and ((i % 2 == 0 and not (self.dq or self.lq)) or (EARLYE and i % 64 > 48)):
                        pend.pop(0)()
                if i % 64 == 63 and not (i < 128 * self.nmerge and i % 128 == 127):
                    assert not pend
                if EARLYE and i < 128 * self.nmerge and i % 128 == 112:
                    pend.append(lambda: (self.flush("pf"), self.vm.wait("pf")))
                    pend += self.epi(i // 128 * 2, qs=(0, 1)) + self.epi(i // 128 * 2 + 1, qs=(0, 1))
                if i % 64 == 3 and i >= 128 * self.nmerge:
                    if i % 128 == 3:
                        self.sites = []
                        self.tagn = getattr(self, "tagn", 0)
                    pend += self.epi(i // 64 - 1, stag=STAG > 0, qs=(2, 3) if EARLYE else (0, 1, 2, 3))
                if EARLYE and i % 64 == 48 and i >= 128 * self.nmerge:
                    assert not pend
                    pend += self.epi(i // 64, qs=(0, 1))
                if i == PF_AT:
                    w_prefetch(self)
                if i == LATE_AT:
                    filt_loads(self)
                if i == FILT_AT:
                    pend += filt_finish(self)
                if i >= 128 and i % 128 == SCAT_AT:
                    scat(self)
                if i >= 128 and i % 128 == 127:
                    scat_next()
                if i >= 128 * self.nmerge and i % 128 == (108 if EARLYE else 118) and self.tag != "C":
                    self.wo_store()
                if i >= 128 * self.nmerge and i % 128 == CT_AT:
                    code_touch(a, "attn_kernel", 16, 8, AR_)
                if i in STF:
                    st()
            self.flush()

        def wo_load(self):
            blk = 4 if self.nmerge == 1 else 6
            srd(a, 8, 90, 91, 4 * MB)
            a.I("s_lshl_b32 s12, s2, 14")
            a.I("s_lshl_b32 s13, s16, 7")
            a.I("s_add_u32 s12, s12, s13")
            a.I(f"s_add_u32 s13, s12, {8192 - 1024}")
            a.I(f"s_add_u32 s17, s47, {blk * 16384}")
            a.I("s_mov_b32 m0, s17")
            a.I(f"v_lshrrev_b32 {v(AV)}, 3, v0")
            a.I(f"v_lshlrev_b32 {v(AV)}, 10, {v(AV)}")
            a.I(f"v_and_b32 {v(AV + 1)}, 7, v0")
            a.I(f"v_lshl_add_u32 {v(AV)}, {v(AV + 1)}, 4, {v(AV)}")
            self.vm.issue(f"buffer_load_dwordx4 {v(AV)}, s[8:11], s12 offen{BP} lds", "wo")
            self.vm.issue(f"buffer_load_dwordx4 {v(AV)}, s[8:11], s13 offen offset:1024{BP} lds", "wo")
            a.I(f"v_lshrrev_b32 {v(AV + 1)}, 5, v0")
            a.I(f"v_bfe_u32 {v(AV + 2)}, v0, 2, 2")
            a.I(f"v_lshl_add_u32 {v(AV + 1)}, {v(AV + 1)}, 2, {v(AV + 2)}")
            a.I(f"v_lshlrev_b32 {v(AV + 1)}, 7, {v(AV + 1)}")
            a.I(f"v_bfe_u32 {v(AV + 2)}, v0, 4, 1")
            a.I(f"v_lshl_add_u32 {v(AV + 1)}, {v(AV + 2)}, 5, {v(AV + 1)}")
            a.I(f"v_and_b32 {v(AV + 2)}, 3, v0")
            a.I(f"v_lshl_add_u32 {v(AV + 1)}, {v(AV + 2)}, 3, {v(AV + 1)}")
            a.I(f"v_add_u32 {v(AV + 1)}, s17, {v(AV + 1)}")
            a.I(f"v_lshlrev_b32 {v(AV + 2)}, 4, v0")
            a.I("s_lshl_b32 s17, s16, 19")
            a.I("s_lshl_b32 s13, s2, 11")
            a.I("s_add_u32 s17, s17, s13")

        def wo_store(self):
            self.vm.wait("wo")
            lab = f"{N}_wos{self.tag}"
            if self.nmerge == 1:
                a.I("s_cmp_lg_u32 s44, 0")
                a.I(f"s_cbranch_scc1 {lab}")
            for cb in range(2):
                for h in range(2):
                    a.I(f"ds_read_b64_tr_b16 {v(PK + 4 * cb + 2 * h, 2)}, {v(AV + 1)} offset:{cb * 64 + h * 1024}")
            srd(a, 8, 14, 15, 4 * MB, add=WS_WO)
            a.I("s_waitcnt lgkmcnt(0)")
            for cb in range(2):
                a.I(f"buffer_store_dwordx4 {v(PK + 4 * cb, 4)}, {v(AV + 2)}, s[8:11], s17 offen offset:{cb * 1024}{SP}")
            a.label(lab)

        def fin(self, pp):
            a.I("s_nop 7")
            for f in self.epi(pp, sp=os.environ.get("SPL", SP), qs=(2, 3) if EARLYE else (0, 1, 2, 3)):
                f()
            st.dump(16, 14, tmpv=24)
            a.I("s_endpgm")


    def slot(i):
        j = i % 128
        return j % 6 if j < 108 else (j - 108) % 5

    I0 = a.I
    cnt = [0]
    gp = [None]

    def Ipump(text):
        r = I0(text)
        if text.startswith("v_") and not text.startswith("v_mfma"):
            cnt[0] += 1
            if cnt[0] % PUMP == 0 and gp[0].dq:
                a.I = I0
                gp[0].pump()
                a.I = Ipump
        return r

    b_common()
    a.I("s_mov_b64 s[0:1], s[62:63]")
    g0 = Gen([("K", 0, i, 0, i) for i in range(2)], 1, [])
    a.I("s_cmp_ge_u32 s16, 4")
    a.I(f"s_cbranch_scc1 {N}_nofl")
    fft_loads(VM(a))
    a.label(f"{N}_nofl")
    for _ in range(2):
        g0.dmaW(0, set())
    g0.dmaA(0)
    PF0 = os.environ.get("PF0", "0")

    def pf0():
        a.I("s_mov_b64 exec, 0xffff")
        a.I("buffer_load_dword v58, v23, s[24:27], s48 offen")
        a.I("s_mov_b64 exec, -1")
    if PF0 == "1":
        pf0()
    g0.flush()
    if PF0 == "2":
        pf0()
    PORD = os.environ.get("PORD", "0")
    if PORD != "0":
        late_setup()
        addr_setup()
    if PORD == "2":
        a.I("s_barrier")
    g0.dmaA(1)
    for _ in range(2):
        g0.dmaW(0, set())
    g0.flush()
    st()
    if PORD == "0":
        late_setup()
        addr_setup()
    g0.dmaW(0, set())
    a.I("s_cmp_ge_u32 s16, 4")
    a.I(f"s_cbranch_scc1 {N}_join")
    gf = Gen([("K", 0, i, 0, i) for i in range(2)], 1, ["bx", "bx"] + g0.vm.q)
    fft_compute(gf)
    a.label(f"{N}_join")
    filt_setup()
    if os.environ.get("L1PRIO"):
        a.I("s_cmp_lt_u32 s16, 4")
        a.I(f"s_cbranch_scc1 {N}_np")
        a.I(f"s_setprio {os.environ['L1PRIO']}")
        a.label(f"{N}_np")
    srd(a, 60, 14, 15, 8 * MB, add=WS_Y)
    vmq = list(g0.vm.q)
    st()
    stn = st.n
    def y_prep():
        a.I(f"v_lshlrev_b32 {v(YA)}, 4, {v(TID)}")
        a.I("s_lshr_b32 s12, s16, 2")
        a.I("s_lshl_b32 s12, s12, 12")
        a.I("s_add_u32 s66, s66, s12")
        a.I(f"s_add_u32 s67, s66, {256 * 8192 + WS_WF - WS_Y}")
        a.I(f"s_add_u32 s12, s12, {BLDS + 8192}")
        a.I(f"v_add_u32 {v(YA)}, s12, {v(YA)}")

    y_prep()

    def mkgen(passes, nmerge=1):
        g = Gen(passes, nmerge, vmq)
        g.busy, g.nxt, g.dq = dict(g0.busy), g0.nxt, list(g0.dq)
        st.n = stn
        return g

    def start(g):
        a.I("s_waitcnt lgkmcnt(0)")
        g.readA(0)
        g.sync(g.groups[0])
        st()
        g.lg.issue(f"ds_read_b128 {v(YD, 4)}, {v(YA)}", "y")
        for i in range(LOOK):
            g.reads(i)

    def capture(fn):
        n0 = len(a.items)
        fn()
        seg = a.items[n0:]
        del a.items[n0:]
        return seg

    def merge(s1, s2):
        import asmlib
        isv = lambda x: x[0] == "i" and x[1].text.startswith("s_waitcnt vmcnt")
        out, i, j = [], 0, 0
        while i < len(s1) or j < len(s2):
            x = s1[i] if i < len(s1) else None
            y = s2[j] if j < len(s2) else None
            if x is not None and y is not None and isv(x) and isv(y):
                n = min(int(x[1].text[16:-1]), int(y[1].text[16:-1]))
                out.append(("i", asmlib.Ins(f"s_waitcnt vmcnt({n})")))
                i += 1
                j += 1
            elif x is not None and isv(x):
                out.append(x)
                i += 1
            elif y is not None and isv(y):
                out.append(y)
                j += 1
            else:
                assert (x[1] == y[1] if x[0] != "i" else x[1].text == y[1].text), (x, y)
                out.append(x)
                i += 1
                j += 1
        return out

    def looped(F, lab):
        def plist(pair):
            L = []
            for pp in range(8):
                if pair == 0:
                    L.append((F, 0, pp, 0, pp))
                else:
                    rel = pp - pair
                    L.append((F, 1 if rel >= 2 else 0, rel - 2 if rel >= 2 else rel, 0, rel))
            return L
        g = mkgen(plist(0))
        g.tag = F
        start(g)
        g.run(0, 2)
        g.boundary([0])
        g.skip_boundary = True
        g.wo_load()
        st()
        a.I("s_add_u32 s48, s48, 256")
        a.I("s_add_u32 s50, s50, s92")
        a.I("s_mov_b32 s44, 0")
        g.passes = plist(2)
        s1 = capture(lambda: g.run(2, 4))
        g.passes = plist(4)
        s2 = capture(lambda: g.run(4, 6))
        a.label(lab + "_loop")
        mg = merge(s1, s2)
        drop = os.environ.get("DROP", "").split(",")

        def keep(x):
            if x[0] != "i":
                return True
            tx = x[1].text
            if "dma" in drop and tx.endswith(" lds"):
                return False
            if "st" in drop and tx.startswith("buffer_store"):
                return False
            if "valu" in drop and x[1].cls == "valu":
                return False
            if "bar" in drop and tx == "s_barrier":
                return False
            if "rd" in drop and tx.startswith("ds_read"):
                return False
            if "vw" in drop and tx.startswith("s_waitcnt vm"):
                return False
            if "lw" in drop and tx.startswith("s_waitcnt lg"):
                return False
            return True
        a.items += [x for x in mg if keep(x)]
        if F == "K":
            a.I("s_cmp_eq_u32 s18, 10")
            a.I(f"s_cbranch_scc1 {N}_Ctail")
        a.I("s_mov_b32 s48, s53")
        a.I("s_mov_b32 s34, 0")
        a.I("s_add_u32 s50, s50, s92")
        a.I("s_add_u32 s44, s44, 1")
        a.I("s_cmp_lt_u32 s44, 2")
        a.I(f"s_cbranch_scc1 {lab}_loop")
        g.passes = plist(6)
        g.fin(5)
        return g

    a.I("s_cmp_eq_u32 s18, 31")
    a.I(f"s_cbranch_scc1 {N}_D")
    a.I("s_cmp_eq_u32 s41, 1")
    a.I(f"s_cbranch_scc1 {N}_B")
    looped("K", N + "_A")
    a.label(f"{N}_Ctail")
    gc = mkgen([("K", 0, pp, 0, pp) for pp in range(4)] + [("V", 1, 0, 1, 0), ("V", 1, 1, 1, 1)])
    gc.tag = "C"
    capture(lambda: (start(gc), gc.run(0, 2), gc.wo_load(), gc.run(2, 4)))
    gc.passes[3] = ("K", 0, 1, 0, 1)
    st.n = stn + 5
    gc.run(4, 6)
    gc.fin(5)
    a.label(N + "_B")
    looped("V", N + "_B2")
    a.label(N + "_D")
    gd = mkgen([("V", 0, 0, 0, 0), ("V", 0, 1, 0, 1)] + [("K", 1, i, 1, i) for i in range(4)], 2)
    gd.tag = "D"
    start(gd)
    gd.run(0, 2)
    st()
    gd.run(2, 5)
    gd.wo_load()
    gd.run(5, 6)
    gd.fin(5)
    kend(a, N)
    return a, N, (256, 512, 163840)


def gen_l3():
    a = Asm()
    N = "l3_kernel"
    kstart(a, N, 256)
    a.I("s_load_dwordx2 s[4:5], s[0:1], 88")
    a.I("s_load_dwordx2 s[8:9], s[0:1], 72")
    a.I("v_lshrrev_b32 v1, 6, v0")
    a.I("v_and_b32 v2, 255, v0")
    a.I("v_and_b32 v0, 63, v0")
    a.I("v_readfirstlane_b32 s17, v1")
    st = Stamper(a, "l3")
    WF, ACCS, RING, L16, LR, CMB = 128, [68, 84], 100, 124, 125, 127
    LOOK = 5
    a.I("s_bfe_u32 s40, s2, 0x20001")
    a.I("s_and_b32 s43, s2, 1")
    a.I("s_lshl_b32 s43, s43, 5")
    a.I("s_lshr_b32 s44, s2, 3")
    a.I("s_add_u32 s43, s43, s44")
    a.I("s_lshr_b32 s41, s43, 2")
    a.I("s_and_b32 s42, s43, 3")
    a.I("s_and_b32 s16, s17, 3")
    a.I("s_lshr_b32 s18, s17, 2")
    a.I(f"v_lshlrev_b32 {v(L16)}, 4, v0")
    a.I("s_lshl_b32 s45, s42, 1")
    a.I("s_lshr_b32 s46, s16, 1")
    a.I("s_add_u32 s45, s45, s46")
    a.I("s_lshl_b32 s45, s45, 19")
    a.I("s_lshl1_add_u32 s46, s40, s18")
    a.I("s_lshl_b32 s46, s46, 16")
    a.I("s_add_u32 s45, s45, s46")
    a.I("s_and_b32 s46, s16, 1")
    a.I("s_lshl_b32 s46, s46, 10")
    a.I("s_add_u32 s45, s45, s46")
    a.I(f"s_add_u32 s45, s45, {hex(WS_WO)}")
    a.I("s_lshl_b32 s47, s18, 15")
    a.I("s_lshl_b32 s48, s16, 10")
    a.I("s_add_u32 s47, s47, s48")
    a.I("s_lshl_b32 s46, s41, 20")
    a.I("s_lshl_b32 s48, s40, 16")
    a.I("s_add_u32 s46, s46, s48")
    a.I("s_add_u32 s46, s46, s47")
    a.I(f"s_add_u32 s46, s46, {hex(WS_CTX)}")
    a.I("s_lshl_b32 s48, s18, 15")
    a.I(f"v_add_u32 {v(LR)}, s48, {v(L16)}")
    a.I(f"v_add_u32 {v(LR + 1)}, 0x10000, {v(LR)}")
    a.I("s_lshl_b32 s48, s16, 12")
    a.I(f"s_add_u32 s48, s48, {131072}")
    a.I(f"v_add_u32 {v(CMB)}, s48, {v(L16)}")
    a.I("s_waitcnt lgkmcnt(0)")
    srd(a, 52, 4, 5, 64 * MB)
    st()
    vm, lg = VM(a), LG(a)

    def sub_off(n, dst):
        a.I(f"s_add_u32 {s(dst)}, s40, {n + 1}")
        a.I(f"s_and_b32 {s(dst)}, {s(dst)}, 3")
        a.I(f"s_lshl_b32 {s(dst)}, {s(dst)}, 18")
        a.I(f"s_add_u32 {s(dst)}, {s(dst)}, s46")

    for n in range(4):
        sub_off(n, 36 + n)

    def cdma(n, i):
        return [lambda: (a.I(f"s_add_u32 m0, s47, {(n & 1) * 65536 + i * 4096}"),
                         a.I(f"s_add_u32 s49, s{36 + n}, {i * 4096}"),
                         vm.issue(f"buffer_load_dwordx4 {v(L16)}, s[52:55], s49 offen lds", ("C", n, i // 2)))]

    def wload(g):
        def f():
            if g % 2 == 0 and g:
                a.I("s_add_u32 s45, s45, 4096")
            vm.issue(f"buffer_load_dwordx4 {v(WF + 4 * g, 4)}, {v(L16)}, s[52:55], s45 offen offset:{(g % 2) * 2048}", ("W", g))
        return [f]

    pend = []
    for c in range(4):
        for i in (2 * c, 2 * c + 1):
            pend += cdma(0, i) + cdma(1, i)
        for g in range(8 * c, 8 * c + 8):
            pend += wload(g)
    tags = []
    for c in range(4):
        tags += [("C", 0, c), ("C", 1, c)] * 2 + [("W", g) for g in range(8 * c, 8 * c + 8)]
    ptag = list(tags)

    def pump(k=1):
        for _ in range(k):
            if pend:
                pend.pop(0)()
                ptag.pop(0)

    def need(tg):
        while any(x in ptag for x in tg):
            pump()

    pump(PRE3)
    b3_loads(a, 8)
    srd(a, 56, 4, 5, 16 * MB, add=WS_PART)
    srd(a, 60, 4, 5, 64 * 128, add=WS_FLAG)
    a.I("s_lshl_b32 s64, s43, 7")
    a.I("s_lshl2_add_u32 s67, s40, s64")
    LA, LB_ = 28, 29
    a.I("s_lshl_b32 s48, s18, 16")
    a.I(f"v_add_u32 {v(LA)}, s48, {v(LR)}")
    a.I(f"v_xor_b32 {v(LB_)}, 0x10000, {v(LA)}")
    st()
    AC = [68, 84, 32]
    sched = []
    for g in range(32):
        sched += [(AC[0], LA, g), (AC[1], LB_, g)]
    sched += [(AC[2], LR, g) for g in range(32)] + [(AC[1], LR + 1, g) for g in range(32)]

    def read(i):
        lg.issue(f"ds_read_b128 {v(RING + 4 * (i % 6), 4)}, {v(sched[i][1])} offset:{sched[i][2] * 1024}", i)

    def sync(tg):
        need(tg)
        vm.wait(tg)
        a.I("s_barrier")

    TMP = 48

    def slot_calc(own_expr):
        a.I(own_expr)
        a.I("s_and_b32 s50, s50, 3")
        a.I("s_lshl2_add_u32 s50, s43, s50")
        a.I("s_lshl2_add_u32 s50, s50, s40")
        a.I("s_lshl2_add_u32 s50, s50, s16")
        a.I("s_lshl_b32 s50, s50, 12")

    def give_l(A, addr, off):
        for q in range(4):
            a.I(f"ds_write_b128 {v(addr)}, {v(A + 4 * q, 4)} offset:{off + q * 1024}")

    def take_l(A, addr, off, model=False):
        for q in range(4):
            a.I(f"ds_read_b128 {v(TMP + 4 * q, 4)}, {v(addr)} offset:{off + q * 1024}")
        a.I("s_waitcnt lgkmcnt(0)")
        for j in range(16):
            a.I(f"v_add_f32 {v(A + j)}, {v(A + j)}, {v(TMP + j)}")
        for q in range(4):
            x = f"buffer_store_dwordx4 {v(A + 4 * q, 4)}, {v(L16)}, s[56:59], s50 offen offset:{q * 1024} sc1"
            vm.issue(x, "P") if model else a.I(x)

    def give(n):
        lab = a.uid(f"{N}_g")
        a.I(f"s_cmp_eq_u32 s18, {n & 1}")
        a.I(f"s_cbranch_scc1 {lab}")
        give_l(AC[2] if n == 2 else AC[1], CMB, (n & 1) * 16384)
        a.label(lab)
        a.I("s_waitcnt lgkmcnt(0)")
        lg.q = []

    sync([("C", 0, 0), ("C", 1, 0)])
    st()
    for i in range(LOOK):
        read(i)
    for i in range(128):
        ac, _, g = sched[i]
        lg.wait(i)
        if i < 64:
            need([("W", g)])
            vm.wait(("W", g))
        first = g == 0
        a.I(f"{MF} {v(ac, 16)}, {v(WF + 4 * g, 4)}, {v(RING + 4 * (i % 6), 4)}, {'0' if first else v(ac, 16)}")
        j = i + LOOK
        if j < 128:
            if j < 64 and j % 16 == 0:
                c = j // 16
                sync([("C", 0, c), ("C", 1, c)])
                if c >= 2:
                    for n in (2, 3):
                        for k in (2 * (c - 2), 2 * (c - 2) + 1):
                            pend.extend(cdma(n, k))
                            ptag.append(("C", n, c - 2))
            elif j >= 64 and j % 16 == 0:
                sync([("C", j // 32, (j % 32) // 8 + c) for c in range(2)])
            read(j)
        if i in (31, 63, 75, 95, 107):
            st()
        if j == 64:
            for n in (2, 3):
                for k in (4, 5):
                    pend.extend(cdma(n, k))
                    ptag.append(("C", n, 2))
        if i == 64 + 5:
            a.I("s_lshl_b32 s48, s18, 14")
            a.I(f"v_add_u32 v30, s48, {v(CMB)}")
            a.I("v_xor_b32 v31, 0x4000, v30")
            give_l(AC[1], 31, 0)
            a.I("s_add_u32 s51, s18, 1")
            slot_calc("s_add_u32 s50, s40, s51")
            a.I("s_waitcnt lgkmcnt(0)")
            lg.q = []
            a.I("s_barrier")
            for n in (2, 3):
                for k in (6, 7):
                    pend.extend(cdma(n, k))
                    ptag.append(("C", n, 3))
            need([("C", 3, 3)])
            take_l(AC[0], 30, 0, True)
        if i == 96 + 5:
            vm.wait([("C", 3, 2), ("C", 3, 3)])
            give(2)
            a.I("s_barrier")
            a.I("s_cmp_lg_u32 s18, 0")
            a.I(f"s_cbranch_scc1 {N}_t2")
            slot_calc("s_add_u32 s50, s40, 3")
            take_l(AC[2], CMB, 0)
            a.label(f"{N}_t2")
        pump(2 if i < 64 else 1)
    st()
    LW = 32768
    a.I("v_mov_b32 v1, 0")
    a.I("v_mov_b32 v30, %d" % LW)
    a.I("ds_write_b32 v30, v1")
    a.I("v_mov_b32 v1, 1")
    a.I("s_nop 7")
    give(3)
    a.I("s_waitcnt vmcnt(0)")
    a.I("s_barrier")
    a.I("s_cmp_eq_u32 s18, 1")
    a.I(f"s_cbranch_scc1 {N}_fin")
    a.I("s_cmp_lg_u32 s17, 0")
    a.I(f"s_cbranch_scc1 {N}_nosig")
    a.I("s_mov_b64 exec, 1")
    a.I("buffer_store_dword v1, off, s[60:63], s67 sc1")
    a.I("s_mov_b64 exec, -1")
    a.label(f"{N}_nosig")
    b3_body(a, 0, 8, loaded=True)
    a.I("s_endpgm")
    a.label(f"{N}_fin")
    A = ACCS[1]
    a.I("s_lshl2_add_u32 s50, s43, s40")
    a.I("s_lshl_b32 s50, s50, 4")
    a.I("s_add_u32 s50, s50, s16")
    a.I("s_lshl_b32 s50, s50, 12")
    a.I("v_and_b32 v3, 31, v0")
    a.I("v_lshlrev_b32 v3, 11, v3")
    a.I("v_lshrrev_b32 v4, 5, v0")
    a.I("v_lshl_add_u32 v3, v4, 4, v3")
    a.I("s_lshl2_add_u32 s65, s41, s40")
    a.I("s_lshl_b32 s65, s65, 16")
    a.I("s_lshl_b32 s66, s42, 8")
    a.I("s_add_u32 s65, s65, s66")
    a.I("s_lshl_b32 s66, s16, 6")
    a.I("s_add_u32 s65, s65, s66")
    srd(a, 52, 8, 9, 4 * MB)
    a.I(f"v_mov_b32 v5, {LW}")
    for q in range(4):
        a.I(f"ds_read_b128 {v(WF + 4 * q, 4)}, {v(CMB)} offset:{16384 + q * 1024}")
    POLL = os.environ.get("POLL", "1")
    a.I("s_mov_b32 s44, 0")
    if POLL == "1":
        a.I("s_cmp_lg_u32 s17, 4")
        a.I(f"s_cbranch_scc1 {N}_lspin")
    a.label(f"{N}_spin")
    a.I("buffer_load_dwordx4 v[4:7], off, s[60:63], s64 sc1")
    a.I("s_waitcnt vmcnt(0)")
    a.I("v_and_b32 v4, v4, v5")
    a.I("v_and_b32 v6, v6, v7")
    a.I("v_and_b32 v4, v4, v6")
    a.I("s_nop 0")
    a.I("v_readfirstlane_b32 s66, v4")
    a.I("s_nop 0")
    a.I("s_cmp_eq_u32 s66, 1")
    a.I(f"s_cbranch_scc1 {N}_got")
    a.I("s_sleep 2")
    a.I("s_add_u32 s44, s44, 1")
    a.I("s_cmp_lt_u32 s44, 0x100000")
    a.I(f"s_cbranch_scc1 {N}_spin")
    a.I(f"s_branch {N}_got")
    if POLL == "1":
        a.label(f"{N}_lspin")
        a.I("ds_read_b32 v4, v5")
        a.I("s_waitcnt lgkmcnt(0)")
        a.I("v_readfirstlane_b32 s66, v4")
        a.I("s_nop 0")
        a.I("s_cmp_eq_u32 s66, 1")
        a.I(f"s_cbranch_scc1 {N}_got2")
        a.I("s_sleep 1")
        a.I(f"s_branch {N}_lspin")
    a.label(f"{N}_got")
    if POLL == "1":
        a.I(f"v_mov_b32 v5, {LW}")
        a.I("ds_write_b32 v5, v1")
        a.label(f"{N}_got2")
    st()
    for k in range(1, 4):
        a.I(f"s_add_u32 s66, s40, {k}")
        a.I("s_and_b32 s66, s66, 3")
        a.I("s_lshl_b32 s66, s66, 14")
        a.I("s_add_u32 s66, s66, s50")
        for q in range(4):
            a.I(f"buffer_load_dwordx4 {v(WF + 16 * k + 4 * q, 4)}, {v(L16)}, s[56:59], s66 offen offset:{q * 1024} sc1")
    a.I("s_waitcnt lgkmcnt(0)")
    a.I("s_barrier")
    for k in range(4):
        if k:
            a.I(f"s_waitcnt vmcnt({4 * (3 - k)})")
        for j in range(16):
            a.I(f"v_add_f32 {v(A + j)}, {v(A + j)}, {v(WF + 16 * k + j)}")
    pack(a, 8, A, 8)
    a.I("s_nop 1")
    for h in range(2):
        a.I(f"v_permlane32_swap_b32 {v(8 + 4 * h)}, {v(10 + 4 * h)}")
        a.I(f"v_permlane32_swap_b32 {v(9 + 4 * h)}, {v(11 + 4 * h)}")
        a.I(f"buffer_store_dwordx4 {v(8 + 4 * h, 4)}, v3, s[52:55], s65 offen offset:{32 * h}{os.environ.get('OPA', ' nt')}")
    st.dump(17, 4, tmpv=16)
    kend(a, N)
    return a, N, (256, 512, 163840)


def gen_l3v3():
    a = Asm()
    N = "l3_kernel"
    kstart(a, N, 256)
    a.I("s_load_dwordx2 s[4:5], s[0:1], 88")
    a.I("s_load_dwordx2 s[8:9], s[0:1], 72")
    a.I("v_lshrrev_b32 v1, 6, v0")
    a.I("v_and_b32 v2, 255, v0")
    a.I("v_and_b32 v0, 63, v0")
    a.I("v_readfirstlane_b32 s17, v1")
    st = Stamper(a, "l3")
    WF, ACCS, RING, L16, LR, CMB = 128, [68, 84], 100, 124, 125, 127
    LOOK = 5
    a.I("s_bfe_u32 s40, s2, 0x20001")
    a.I("s_and_b32 s43, s2, 1")
    a.I("s_lshl_b32 s43, s43, 5")
    a.I("s_lshr_b32 s44, s2, 3")
    a.I("s_add_u32 s43, s43, s44")
    a.I("s_lshr_b32 s41, s43, 2")
    a.I("s_and_b32 s42, s43, 3")
    a.I("s_and_b32 s16, s17, 3")
    a.I("s_lshr_b32 s18, s17, 2")
    a.I(f"v_lshlrev_b32 {v(L16)}, 4, v0")
    a.I("s_lshl_b32 s45, s42, 1")
    a.I("s_lshr_b32 s46, s16, 1")
    a.I("s_add_u32 s45, s45, s46")
    a.I("s_lshl_b32 s45, s45, 19")
    a.I("s_lshl1_add_u32 s46, s40, s18")
    a.I("s_lshl_b32 s46, s46, 16")
    a.I("s_add_u32 s45, s45, s46")
    a.I("s_and_b32 s46, s16, 1")
    a.I("s_lshl_b32 s46, s46, 10")
    a.I("s_add_u32 s45, s45, s46")
    a.I(f"s_add_u32 s45, s45, {hex(WS_WO)}")
    a.I("s_lshl_b32 s47, s18, 15")
    a.I("s_lshl_b32 s48, s16, 10")
    a.I("s_add_u32 s47, s47, s48")
    a.I("s_lshl_b32 s46, s41, 20")
    a.I("s_lshl_b32 s48, s40, 16")
    a.I("s_add_u32 s46, s46, s48")
    a.I("s_add_u32 s46, s46, s47")
    a.I(f"s_add_u32 s46, s46, {hex(WS_CTX)}")
    a.I("s_lshl_b32 s47, s18, 13")
    a.I("s_lshl_b32 s48, s16, 10")
    a.I("s_add_u32 s47, s47, s48")
    a.I("s_lshl_b32 s48, s18, 13")
    a.I(f"v_add_u32 {v(LR)}, s48, {v(L16)}")
    a.I(f"v_add_u32 {v(LR + 1)}, 0x10000, {v(LR)}")
    a.I("s_lshl_b32 s48, s16, 12")
    a.I(f"v_add_u32 {v(CMB)}, s48, {v(L16)}")
    a.I("s_waitcnt lgkmcnt(0)")
    srd(a, 52, 4, 5, 64 * MB)
    st()
    vm, lg = VM(a), LG(a)

    def sub_off(n, dst):
        a.I(f"s_add_u32 {s(dst)}, s40, {n + 1}")
        a.I(f"s_and_b32 {s(dst)}, {s(dst)}, 3")
        a.I(f"s_lshl_b32 {s(dst)}, {s(dst)}, 18")
        a.I(f"s_add_u32 {s(dst)}, {s(dst)}, s46")

    PB16 = int(os.environ.get("PB16", "1"))
    for n in range(4):
        sub_off(n, 36 + n)

    def cslot(n, c):
        return (n * 2 + c % 2) * 16384 if n < 3 else 98304 + c * 16384

    pend, ptag = [], []

    def cdma(n, i):
        pend.append(lambda: (a.I(f"s_add_u32 m0, s47, {cslot(n, i // 2) + (i % 2) * 4096}"),
                             a.I(f"s_add_u32 s49, s{36 + n}, {i * 4096}"),
                             vm.issue(f"buffer_load_dwordx4 {v(L16)}, s[52:55], s49 offen lds", ("C", n, i // 2))))
        ptag.append(("C", n, i // 2))

    def wload(g):
        def f():
            if g % 2 == 0 and g:
                a.I("s_add_u32 s45, s45, 4096")
            vm.issue(f"buffer_load_dwordx4 {v(WF + 4 * g, 4)}, {v(L16)}, s[52:55], s45 offen offset:{(g % 2) * 2048}", ("W", g))
        pend.append(f)
        ptag.append(("W", g))

    def pump(k=1):
        for _ in range(k):
            if pend:
                pend.pop(0)()
                ptag.pop(0)

    def need(tg):
        while any(x in ptag for x in tg):
            pump()

    for c in range(2):
        for n in range(3):
            cdma(n, 2 * c)
            cdma(n, 2 * c + 1)
        for g in range(8 * c, 8 * c + 8):
            wload(g)
    for g in range(16, 24):
        wload(g)
    pump(PRE3)
    srd(a, 56, 4, 5, 16 * MB, add=WS_PART)
    a.I("s_lshl2_add_u32 s60, s43, s40")
    a.I("s_lshl_b32 s60, s60, 4")
    a.I("s_add_u32 s60, s60, s16")
    a.I("s_lshl_b32 s60, s60, 12")
    for k in range(1, 4):
        a.I(f"s_add_u32 s{60 + k}, s40, {k}")
        a.I(f"s_and_b32 s{60 + k}, s{60 + k}, 3")
        a.I(f"s_lshl_b32 s{60 + k}, s{60 + k}, 14")
        a.I(f"s_add_u32 s{60 + k}, s{60 + k}, s60")

    def part_loads():
        for k in range(1, 4):
            for q in range(2):
                a.I(f"buffer_load_dwordx4 {v(WF + 16 * k + 4 * q, 4)}, {v(L16)}, s[56:59], s{60 + k} offen offset:{q * 1024} sc1")
    LA, LB_, LO = 28, 29, 30
    a.I("s_lshl_b32 s48, s18, 15")
    a.I(f"v_add_u32 {v(LA)}, s48, {v(LR)}")
    a.I(f"v_xor_b32 {v(LB_)}, 0x8000, {v(LA)}")
    a.I(f"v_add_u32 {v(LO)}, {98304}, {v(LR)}")
    st()
    AC = [68, 84, 32]
    sched = []
    for g in range(32):
        o = ((g // 8) % 2) * 16384 + (g % 8) * 1024
        sched += [(AC[0], LA, o, g), (AC[1], LB_, o, g), (AC[2], LR + 1, o, g)]
    OWN = 48
    sched += [(OWN, LO, (g // 8) * 16384 + (g % 8) * 1024, g) for g in range(32)]

    def read(i):
        lg.issue(f"ds_read_b128 {v(RING + 4 * (i % 6), 4)}, {v(sched[i][1])} offset:{sched[i][2]}", i)

    def sync(tg):
        need(tg)
        vm.wait(tg)
        a.I("s_barrier")

    def slot_calc(dst, own_expr):
        a.I(own_expr)
        a.I(f"s_and_b32 {s(dst)}, {s(dst)}, 3")
        a.I(f"s_lshl2_add_u32 {s(dst)}, s43, {s(dst)}")
        a.I(f"s_lshl2_add_u32 {s(dst)}, {s(dst)}, s40")
        a.I(f"s_lshl2_add_u32 {s(dst)}, {s(dst)}, s16")
        a.I(f"s_lshl_b32 {s(dst)}, {s(dst)}, 12")

    def give_l(A, addr, off):
        for q in range(4):
            a.I(f"ds_write_b128 {v(addr)}, {v(A + 4 * q, 4)} offset:{off + q * 1024}")

    def take_l(A, T, addr, off, so):
        for q in range(4):
            a.I(f"ds_read_b128 {v(T + 4 * q, 4)}, {v(addr)} offset:{off + q * 1024}")
        a.I("s_waitcnt lgkmcnt(0)")
        for j in range(16):
            a.I(f"v_add_f32 {v(A + j)}, {v(A + j)}, {v(T + j)}")
        if PB16:
            pack(a, T, A, 8)
            for q in range(2):
                a.I(f"buffer_store_dwordx4 {v(T + 4 * q, 4)}, {v(L16)}, s[56:59], {s(so)} offen offset:{q * 1024} sc1")
        else:
            for q in range(4):
                a.I(f"buffer_store_dwordx4 {v(A + 4 * q, 4)}, {v(L16)}, s[56:59], {s(so)} offen offset:{q * 1024} sc1")

    sync([("C", n, 0) for n in range(3)])
    st()
    for i in range(LOOK):
        read(i)
    NM = 128
    LW = 81920
    B3RM = (68, 76, 84, 92, 32, 128, 136, 152, 168, 176)
    mats = []
    for i in range(NM):
        ac, _, _, g = sched[i]
        lg.wait(i)
        if i < 96:
            need([("W", g)])
            vm.wait(("W", g))
        a.I(f"{MF} {v(ac, 16)}, {v(WF + 4 * g, 4)}, {v(RING + 4 * (i % 6), 4)}, {'0' if g == 0 else v(ac, 16)}")
        j = i + LOOK
        if j < NM:
            if j < 96 and j % 24 == 0:
                sync([("C", n, j // 24) for n in range(3)])
            elif j == 96:
                sync([("C", 3, c) for c in range(2)])
            elif j == 112:
                a.I("s_barrier")
            read(j)
        if i in (25, 49):
            c = i // 24
            a.I("s_barrier")
            for n in range(3):
                cdma(n, 2 * (c + 1))
                cdma(n, 2 * (c + 1) + 1)
            if c == 1:
                for g2 in range(24, 32):
                    wload(g2)
        if i == OWNAT:
            for k in range(8):
                cdma(3, k)
        if i == B3AT:
            n0 = len(a.items)
            b3_loads(a, 8, before=lambda: (a.I("s_cmp_lg_u32 s18, 0"), a.I(f"s_cbranch_scc1 {N}_nb3l")))
            a.items[n0:] = [x for x in a.items[n0:] if not (x[0] == "i" and x[1].text == "s_waitcnt lgkmcnt(0)")]
            a.label(f"{N}_nb3l")
        if i in (47, 95, 107):
            st()
        if i == 96 + 4:
            a.I("s_lshl_b32 s48, s18, 15")
            a.I(f"v_add_u32 {v(LA)}, s48, {v(CMB)}")
            a.I(f"v_xor_b32 {v(LB_)}, 0x8000, {v(LA)}")
            a.I(f"v_add_u32 v31, 0x10000, {v(CMB)}")
            give_l(AC[1], LB_, 0)
            a.I("s_cmp_eq_u32 s18, 0")
            a.I(f"s_cbranch_scc1 {N}_g2")
            give_l(AC[2], 31, 0)
            a.label(f"{N}_g2")
            a.I(f"v_mov_b32 v64, {LW}")
            for j in range(2):
                a.I(f"v_mov_b32 {v(66 + j)}, 0")
            for j in range(3):
                a.I(f"ds_write_b64 v64, v[66:67] offset:{8 * j}")
            vm.wait([("C", 3, 2), ("C", 3, 3)])
            a.I("s_add_u32 s51, s18, 1")
            slot_calc(50, "s_add_u32 s50, s40, s51")
            slot_calc(51, "s_add_u32 s51, s40, 3")
            a.I("s_waitcnt lgkmcnt(0)")
            lg.q = []
            a.I("s_barrier")
            take_l(AC[0], AC[1], LA, 0, 50)
            a.I("s_cmp_lg_u32 s18, 0")
            a.I(f"s_cbranch_scc1 {N}_t2")
            take_l(AC[2], AC[0], 31, 0, 51)
            a.label(f"{N}_t2")
            n0 = len(a.items)
            b3_body(a, 65536, 8, loaded=True, part=1, rm=B3RM)
            mats = a.items[n0:] if MATF else []
            del a.items[n0:]
        if i > 96 + 5 and mats:
            a.items.extend(mats[:9])
            del mats[:9]
        if i == SIG3:
            a.I("s_cmp_eq_u32 s18, 0")
            a.I(f"s_cbranch_scc1 {N}_nopl")
            part_loads()
            a.label(f"{N}_nopl")
        pump(2 if i < 96 else 1)

    def give(n):
        lab = a.uid(f"{N}_g")
        a.I("s_cmp_eq_u32 s18, 1")
        a.I(f"s_cbranch_scc1 {lab}")
        give_l(OWN, CMB, 49152)
        a.label(lab)
        a.I("s_waitcnt lgkmcnt(0)")

    st()
    a.I("s_lshl_b32 s44, s16, 2")
    a.I(f"s_add_u32 s44, s44, {LW + 4}")
    a.I("v_mov_b32 v30, s44")
    a.I("v_mov_b32 v1, 1")
    a.I("s_cmp_eq_u32 s18, 1")
    a.I(f"s_cbranch_scc1 {N}_fin")
    a.I("s_nop 6")
    give_l(OWN, CMB, 49152)
    a.I("s_waitcnt lgkmcnt(0)")
    a.I("ds_write_b32 v30, v1")

    def meet():
        a.I(f"v_mov_b32 v30, {LW}")
        a.I("v_mov_b32 v31, 1")
        a.I("s_mov_b64 exec, 1")
        a.I("ds_add_u32 v30, v31")
        a.I("s_mov_b64 exec, -1")
        a.label(f"{N}_meet")
        a.I("ds_read_b32 v31, v30")
        a.I("s_waitcnt lgkmcnt(0)")
        a.I("v_readfirstlane_b32 s44, v31")
        a.I("s_nop 0")
        a.I("s_cmp_lt_u32 s44, 4")
        a.I(f"s_cbranch_scc1 {N}_meet")

    assert not mats
    b3_body(a, 65536, 8, loaded=True, bar=meet, part=2 if MATF else 0, rm=B3RM, tw=192)
    n_ = st.n
    st()
    st.dump(17, 4, tmpv=16)
    st.n = n_
    a.I("s_endpgm")
    a.label(f"{N}_fin")
    A = OWN
    a.I("v_and_b32 v3, 31, v0")
    a.I("v_lshlrev_b32 v3, 11, v3")
    a.I("v_lshrrev_b32 v4, 5, v0")
    a.I("v_lshl_add_u32 v3, v4, 4, v3")
    a.I("s_lshl2_add_u32 s65, s41, s40")
    a.I("s_lshl_b32 s65, s65, 16")
    a.I("s_lshl_b32 s66, s42, 8")
    a.I("s_add_u32 s65, s65, s66")
    a.I("s_lshl_b32 s66, s16, 6")
    a.I("s_add_u32 s65, s65, s66")
    srd(a, 52, 8, 9, 4 * MB)
    a.label(f"{N}_pw")
    a.I("ds_read_b32 v31, v30")
    a.I("s_waitcnt lgkmcnt(0)")
    a.I("v_readfirstlane_b32 s44, v31")
    a.I("s_nop 0")
    a.I("s_cmp_lg_u32 s44, 1")
    a.I(f"s_cbranch_scc1 {N}_pw")
    for q in range(4):
        a.I(f"ds_read_b128 {v(WF + 4 * q, 4)}, {v(CMB)} offset:{49152 + q * 1024}")
    a.I("s_mov_b32 s44, 0")
    a.I("s_waitcnt lgkmcnt(0)")
    a.I(f"s_branch {N}_chk")
    a.label(f"{N}_again")
    part_loads()
    a.label(f"{N}_chk")
    a.I("s_waitcnt vmcnt(0)")
    regs = [WF + 16 * k + j for k in range(1, 4) for j in range(8)]
    a.I(f"v_max3_u32 v4, {v(regs[0])}, {v(regs[1])}, {v(regs[2])}")
    for j in range(3, 23, 2):
        a.I(f"v_max3_u32 v4, v4, {v(regs[j])}, {v(regs[j + 1])}")
    a.I(f"v_max_u32 v4, v4, {v(regs[23])}")
    a.I("v_cmp_eq_u32 vcc, -1, v4")
    a.I("s_add_u32 s44, s44, 1")
    a.I(f"s_cbranch_vccz {N}_got")
    a.I("s_cmp_lt_u32 s44, 0x10000")
    a.I(f"s_cbranch_scc1 {N}_again")
    a.label(f"{N}_got")
    st()
    for k in range(4):
        for j in range(16):
            if PB16 and k:
                if j & 1:
                    a.I(f"v_and_b32 v64, 0xffff0000, {v(WF + 16 * k + j // 2)}")
                else:
                    a.I(f"v_lshlrev_b32 v64, 16, {v(WF + 16 * k + j // 2)}")
                a.I(f"v_add_f32 {v(A + j)}, {v(A + j)}, v64")
            else:
                a.I(f"v_add_f32 {v(A + j)}, {v(A + j)}, {v(WF + 16 * k + j)}")
    pack(a, 8, A, 8)
    a.I("s_nop 1")
    for h in range(2):
        a.I(f"v_permlane32_swap_b32 {v(8 + 4 * h)}, {v(10 + 4 * h)}")
        a.I(f"v_permlane32_swap_b32 {v(9 + 4 * h)}, {v(11 + 4 * h)}")
        a.I(f"buffer_store_dwordx4 {v(8 + 4 * h, 4)}, v3, s[52:55], s65 offen offset:{32 * h}{os.environ.get('OPA', ' nt')}")
    st.dump(17, 4, tmpv=16)
    kend(a, N)
    return a, N, (256, 512, 163840)


def gen_l3_s4():
    a = Asm()
    N = "l3_kernel"
    kstart(a, N, 256)
    a.I("s_load_dwordx2 s[4:5], s[0:1], 88")
    a.I("s_load_dwordx2 s[8:9], s[0:1], 72")
    a.I("v_lshrrev_b32 v1, 6, v0")
    a.I("v_and_b32 v0, 63, v0")
    a.I("s_nop 0")
    a.I("v_readfirstlane_b32 s17, v1")
    st = Stamper(a, "l3")
    L16, RA, RB_, ACC, FR = 128, 129, 130, 132, 164
    PB16 = int(os.environ.get("PB16", "0"))
    NST, STG = 4, 4
    a.I("s_bfe_u32 s40, s2, 0x20001")
    a.I("s_and_b32 s43, s2, 1")
    a.I("s_lshl_b32 s43, s43, 5")
    a.I("s_lshr_b32 s44, s2, 3")
    a.I("s_add_u32 s43, s43, s44")
    a.I("s_lshr_b32 s41, s43, 2")
    a.I("s_and_b32 s42, s43, 3")
    a.I(f"v_lshlrev_b32 {v(L16)}, 4, v0")
    a.I("s_lshl_b32 s45, s41, 2")
    a.I("s_add_u32 s45, s45, s17")
    a.I("s_lshl_b32 s45, s45, 18")
    a.I("s_lshl_b32 s46, s40, 16")
    a.I("s_add_u32 s45, s45, s46")
    a.I(f"s_add_u32 s45, s45, {hex(WS_CTX)}")
    a.I("s_lshl_b32 s46, s42, 1")
    a.I("s_bfe_u32 s47, s17, 0x10001")
    a.I("s_add_u32 s46, s46, s47")
    a.I("s_lshl_b32 s46, s46, 19")
    a.I("s_lshl_b32 s47, s40, 17")
    a.I("s_add_u32 s46, s46, s47")
    a.I("s_and_b32 s47, s17, 1")
    a.I("s_lshl_b32 s47, s47, 10")
    a.I("s_add_u32 s46, s46, s47")
    a.I(f"s_add_u32 s46, s46, {hex(WS_WO)}")
    a.I("s_cmp_lt_u32 s17, 4")
    a.I("s_cselect_b32 s45, s45, s46")
    a.I("s_movk_i32 s46, 0x800")
    a.I("s_cselect_b32 s46, 1024, s46")
    a.I("s_lshl_b32 s47, s17, 10")
    a.I("s_and_b32 s48, s17, 1")
    a.I("s_lshl_b32 s48, s48, 11")
    a.I(f"v_add_u32 {v(RA)}, s48, {v(L16)}")
    a.I("s_lshr_b32 s48, s17, 1")
    a.I("s_lshl_b32 s48, s48, 10")
    a.I("s_add_u32 s48, s48, 4096")
    a.I(f"v_add_u32 {v(RB_)}, s48, {v(L16)}")
    a.I(f"v_add_u32 {v(RB_ + 1)}, 0x10000, {v(RA)}")
    a.I(f"v_add_u32 v127, 0x10000, {v(RB_)}") if False else None
    a.I("s_waitcnt lgkmcnt(0)")
    srd(a, 52, 4, 5, 64 * MB)
    st()
    vm, lg = VM(a), LG(a)

    def dma(g, emit=True):
        L = [lambda: a.I(f"s_add_u32 m0, s47, {(g % (NST * STG)) * 8192}"),
             lambda: a.I("s_add_u32 s49, s45, s46") if False else a.I("s_nop 0"),
             lambda: vm.issue(f"buffer_load_dwordx4 {v(L16)}, s[52:55], s45 offen lds", g),
             lambda: a.I("s_add_u32 s45, s45, s46")]
        return L

    def first_loads():
        for g in range((NST - 1) * STG):
            for f in dma(g):
                f()
        return (NST - 1) * STG

    first_loads()
    a.I("s_and_b32 s18, s17, 1")
    a.I("s_lshr_b32 s19, s40, 1")
    a.I("s_cmp_eq_u32 s18, s19")
    a.I("s_cselect_b32 s18, 1, 0")
    a.I("s_lshr_b32 s16, s17, 1")
    a.I("s_lshl_b32 s19, s16, 6")
    a.I("v_add_u32 v2, s19, v0")
    a.I("s_cmp_eq_u32 s18, 1")
    a.I(f"s_cbranch_scc1 {N}_nob3l")
    b3_loads(a, 8)
    a.label(f"{N}_nob3l")
    st()
    RA2, RB2 = RB_ + 1, 127
    a.I(f"v_add_u32 {v(RB2)}, 0x10000, {v(RB_)}")
    NG = 64

    def reads(g):
        sl = g % (NST * STG)
        ra, rb = (RA, RB_) if sl < 8 else (RA2, RB2)
        off = (sl % 8) * 8192
        d = FR + 12 * (g % 3)
        lg.issue(f"ds_read_b128 {v(d, 4)}, {v(rb)} offset:{off}", g)
        lg.issue(f"ds_read_b128 {v(d + 4, 4)}, {v(ra)} offset:{off}", g)
        lg.issue(f"ds_read_b128 {v(d + 8, 4)}, {v(ra)} offset:{off + 1024}", g)

    pend = []

    def sync(stg):
        vm.wait(list(range(stg * STG, (stg + 1) * STG)))
        a.I("s_barrier")
        nxt = stg + NST - 2
        if stg >= 1 and (nxt + 1) * STG <= NG and nxt >= NST - 1:
            for g in range(nxt * STG, (nxt + 1) * STG):
                pend.extend(dma(g))

    sync(0)
    st()
    reads(0)
    reads(1)
    for g in range(NG):
        j = g + 2
        if j < NG and j % STG == 0:
            while pend:
                pend.pop(0)()
            sync(j // STG)
        lg.wait(g)
        d = FR + 12 * (g % 3)
        for i in range(2):
            acc = v(ACC + 16 * i, 16)
            a.I(f"{MF} {acc}, {v(d, 4)}, {v(d + 4 + 4 * i, 4)}, {'0' if g == 0 else acc}")
            if i == 0 and j < NG:
                reads(j)
            for _ in range(2 + i):
                if pend:
                    pend.pop(0)()
    st()
    srd(a, 56, 4, 5, 16 * MB, add=WS_PART)
    a.I("s_lshr_b32 s48, s17, 1")
    a.I("s_and_b32 s49, s17, 1")
    a.I("s_lshl_b32 s50, s43, 2")
    a.I("s_lshl1_add_u32 s50, s49, s50")
    a.I("s_lshl_b32 s50, s50, 2")
    a.I("s_add_u32 s50, s50, s40")
    a.I("s_lshl_b32 s50, s50, 2")
    a.I("s_add_u32 s50, s50, s48")
    a.I("s_lshl_b32 s50, s50, 12")
    a.I("s_add_u32 s51, s50, 0x10000")
    a.I("s_lshl_b32 s49, s49, 1")
    for i in range(2):
        lab = f"{N}_keep{i}"
        a.I("s_cmp_eq_u32 s49, s40")
        a.I(f"s_cbranch_scc1 {lab}")
        if PB16:
            pack(a, FR + 8 * i, ACC + 16 * i, 8)
            for q in range(2):
                a.I(f"buffer_store_dwordx4 {v(FR + 8 * i + 4 * q, 4)}, {v(L16)}, s[56:59], s{50 + i} offen offset:{q * 1024} sc1")
        else:
            for q in range(4):
                a.I(f"buffer_store_dwordx4 {v(ACC + 16 * i + 4 * q, 4)}, {v(L16)}, s[56:59], s{50 + i} offen offset:{q * 1024} sc1")
        a.label(lab)
        a.I("s_add_u32 s49, s49, 1")
    srd(a, 60, 4, 5, 64 * 128, add=WS_FLAG)
    a.I("s_lshl_b32 s64, s43, 7")
    a.I("s_lshl2_add_u32 s67, s40, s64")

    def signal():
        a.I("v_mov_b32 v1, 1")
        a.I("s_waitcnt vmcnt(0)")
        a.I("s_barrier")
        a.I("s_cmp_lg_u32 s17, 7")
        lab = a.uid(f"{N}_nosig")
        a.I(f"s_cbranch_scc1 {lab}")
        a.I("s_mov_b64 exec, 1")
        a.I("buffer_store_dword v1, off, s[60:63], s67 sc1")
        a.I("s_mov_b64 exec, -1")
        a.label(lab)

    a.I("s_cmp_eq_u32 s18, 1")
    a.I(f"s_cbranch_scc1 {N}_nob3")
    b3_body(a, 131072, 8, loaded=True, mid=signal)
    a.I("s_endpgm")
    a.label(f"{N}_nob3")
    a.I("s_bitcmp0_b32 s40, 0")
    a.I(f"s_cbranch_scc1 {N}_own0")
    for j in range(16):
        a.I(f"v_mov_b32 {v(ACC + j)}, {v(ACC + 16 + j)}")
    a.label(f"{N}_own0")
    a.I("s_lshl_b32 s50, s43, 2")
    a.I("s_add_u32 s50, s50, s40")
    a.I("s_lshl_b32 s50, s50, 4")
    a.I("s_add_u32 s50, s50, s48")
    a.I("s_lshl_b32 s50, s50, 12")
    a.I("v_and_b32 v3, 31, v0")
    a.I("v_lshlrev_b32 v3, 11, v3")
    a.I("v_lshrrev_b32 v4, 5, v0")
    a.I("v_lshl_add_u32 v3, v4, 4, v3")
    a.I("s_lshl_b32 s65, s41, 2")
    a.I("s_add_u32 s65, s65, s40")
    a.I("s_lshl_b32 s65, s65, 16")
    a.I("s_lshl_b32 s66, s42, 8")
    a.I("s_add_u32 s65, s65, s66")
    a.I("s_lshl_b32 s66, s48, 6")
    a.I("s_add_u32 s65, s65, s66")
    srd(a, 52, 8, 9, 4 * MB)
    signal()
    a.I("s_barrier")
    st()
    a.label(f"{N}_spin")
    a.I("buffer_load_dwordx4 v[4:7], off, s[60:63], s64 sc1")
    a.I("s_waitcnt vmcnt(0)")
    a.I("v_and_b32 v4, v4, v5")
    a.I("v_and_b32 v6, v6, v7")
    a.I("v_and_b32 v4, v4, v6")
    a.I("s_nop 0")
    a.I("v_readfirstlane_b32 s66, v4")
    a.I("s_nop 0")
    a.I("s_cmp_lg_u32 s66, 1")
    a.I(f"s_cbranch_scc1 {N}_spin")
    st()
    for k in range(1, 4):
        a.I(f"s_add_u32 s66, s40, {k}")
        a.I("s_and_b32 s66, s66, 3")
        a.I("s_lshl_b32 s66, s66, 14")
        a.I("s_add_u32 s66, s66, s50")
        for q in range(2 if PB16 else 4):
            a.I(f"buffer_load_dwordx4 {v(16 * k + 4 * q, 4)}, {v(L16)}, s[56:59], s66 offen offset:{q * 1024} sc1")
    for k in range(1, 4):
        a.I(f"s_waitcnt vmcnt({(2 if PB16 else 4) * (3 - k)})")
        for j in range(16):
            if PB16:
                if j & 1:
                    a.I(f"v_and_b32 v64, 0xffff0000, {v(16 * k + j // 2)}")
                else:
                    a.I(f"v_lshlrev_b32 v64, 16, {v(16 * k + j // 2)}")
                a.I(f"v_add_f32 {v(ACC + j)}, {v(ACC + j)}, v64")
            else:
                a.I(f"v_add_f32 {v(ACC + j)}, {v(ACC + j)}, {v(16 * k + j)}")
    pack(a, 8, ACC, 8)
    a.I("s_nop 1")
    for h in range(2):
        a.I(f"v_permlane32_swap_b32 {v(8 + 4 * h)}, {v(10 + 4 * h)}")
        a.I(f"v_permlane32_swap_b32 {v(9 + 4 * h)}, {v(11 + 4 * h)}")
        a.I(f"buffer_store_dwordx4 {v(8 + 4 * h, 4)}, v3, s[52:55], s65 offen offset:{32 * h}{os.environ.get('OPA', ' nt')}")
    st.dump(17, 4, tmpv=16)
    kend(a, N)
    return a, N, (256, 512, 131072 + 8192 + 64)


def gen_l3_old():
    a = Asm()
    N = "l3_kernel"
    kstart(a, N, 256)
    a.I("s_load_dwordx2 s[4:5], s[0:1], 88")
    a.I("s_load_dwordx2 s[6:7], s[0:1], 40")
    a.I("s_load_dwordx2 s[8:9], s[0:1], 72")
    a.I("v_lshrrev_b32 v1, 6, v0")
    a.I("v_and_b32 v2, 255, v0")
    a.I("v_and_b32 v0, 63, v0")
    a.I("v_readfirstlane_b32 s16, v1")
    a.I("s_nop 0")
    a.I("s_cmp_ge_u32 s16, 4")
    a.I(f"s_cbranch_scc1 {N}_b3")
    st = Stamper(a, "l3")
    OB = int(os.environ.get('OB', '3'))
    ACC = (oproj_body3 if OB == 3 else oproj_body2)(a, N, st, bar_at=8)
    a.I("s_barrier")
    oproj_finish(a, ACC, 32768 if OB == 3 else 16384)
    st.dump(16, 4, tmpv=8)
    a.I("s_endpgm")
    a.label(f"{N}_b3")
    a.I("s_and_b32 s16, s16, 3")
    b3_body(a, 131072, 8)
    kend(a, N)
    return a, N, (256, 512, 131072 + 8192 + 64)


KERNELS = [gen_l1, lambda: gen_attn(not os.environ.get('NOB2')), {'v3': gen_l3v3, 'new': gen_l3, 's4': gen_l3_s4, 'old': gen_l3_old}[os.environ.get('L3V', 'v3')]]

if __name__ == "__main__":
    p = sys.argv[1] if len(sys.argv) > 1 else os.path.join(os.path.dirname(os.path.abspath(__file__)), "..",
                                                           "cdna_kernels", NAME + ".s")
    sys.exit(1 if build(KERNELS, p) else 0)
```
